```python
import torch

def _softmax(x, axis=-1):
    return torch.softmax(x, dim=axis)
def _gelu(x):
    return torch.nn.functional.gelu(x, approximate="tanh")
def _silu(x):
    return torch.nn.functional.silu(x)
def _sigmoid(x):
    return torch.sigmoid(x)
def _layernorm(x, axis=-1, eps=1e-5):
    m = x.mean(dim=axis, keepdim=True)
    v = x.var(dim=axis, keepdim=True, unbiased=False)
    return (x - m) / torch.sqrt(v + eps)
def _scatter_add(tgt, idx, src, axis=0):
    return tgt.clone().index_add_(axis, idx, src)
def _segment_sum(src, seg, n):
    out = torch.zeros((n,) + src.shape[1:], dtype=src.dtype)
    return out.index_add_(0, seg, src)
def _pad(x, pw):
    flat = tuple(v for pair in reversed(pw) for v in pair)
    return torch.nn.functional.pad(x, flat)

kernel_name = 'interleave_layers__linear_attn_block__dense_activation_squared_relu__prompt'

def setup_inputs():

    _w = (lambda a: (lambda t: t.to(torch.bfloat16) if t.is_floating_point() else t)(torch.as_tensor(a)))
    def _A_setup():
        B, S, D = 1, 2048, 640
        return {
            "x": _w((lambda *s: torch.randn(*s, dtype=torch.bfloat16) * 0.05)(B, S, D)),
            "wqkv": _w((lambda *s: torch.randn(*s, dtype=torch.bfloat16) * 0.1)(D, 3 * D)),
            "wo": _w((lambda *s: torch.randn(*s, dtype=torch.bfloat16) * 0.05)(D, D)),
        }
    _A_in = _A_setup()

    def _B_setup():
        B, S, D, F = 1, 2048, 640, 1728
        return {
            "x": _w((lambda *s: torch.randn(*s, dtype=torch.bfloat16) * 0.05)(B, S, D)),
            "w1": _w((lambda *s: torch.randn(*s, dtype=torch.bfloat16) * 0.05)(D, F)),
            "b1": _w((lambda *s: torch.randn(*s, dtype=torch.bfloat16) * 0.2)(F)),
            "w2": _w((lambda *s: torch.randn(*s, dtype=torch.bfloat16) * 0.05)(F, D)),
            "b2": _w((lambda *s: torch.randn(*s, dtype=torch.bfloat16) * 0.8)(D)),
        }
    _B_in = _B_setup()

    return {
        "A_x": _A_in["x"],
        "A_wqkv": _A_in["wqkv"],
        "A_wo": _A_in["wo"],
        "B_x": _B_in["x"],
        "B_w1": _B_in["w1"],
        "B_b1": _B_in["b1"],
        "B_w2": _B_in["w2"],
        "B_b2": _B_in["b2"],
    }

def reference(A_x, A_wqkv, A_wo, B_x, B_w1, B_b1, B_w2, B_b2):
    def _A_ref(x, wqkv, wo):
        B, S, D = x.shape
        H = 32; Dh = D // H
        qkv = (lambda x, *d: x.permute(*d))((x @ wqkv).reshape(B, S, 3, H, Dh), 2, 0, 3, 1, 4)
        q, k, v = qkv[0], qkv[1], qkv[2]
        phi = lambda t: torch.where(t > 0, t + 1, torch.exp(t)) + 1e-6
        pq, pk = phi(q), phi(k)
        kv = torch.einsum("bhsd,bhse->bhde", pk, v)
        z = torch.einsum("bhsd->bhd", pk)
        num = torch.einsum("bhqd,bhde->bhqe", pq, kv)
        den = torch.einsum("bhqd,bhd->bhq", pq, z)[..., None] + 1e-6
        o = num / den
        return (lambda x, *d: x.permute(*d))(o, 0, 2, 1, 3).reshape(B, S, D) @ wo

    def _B_ref(x, w1, b1, w2, b2):
        h = torch.einsum("bsd,df->bsf", x, w1) + b1
        zero = torch.zeros_like(h)
        r = torch.where(h > zero, h, zero)
        h = r * r
        out = torch.einsum("bsf,fd->bsd", h, w2) + b2
        return out

    x = A_x
    x = x + _A_ref(_layernorm(x, axis=-1), A_wqkv, A_wo)
    x = x + _B_ref(_layernorm(x, axis=-1), B_w1, B_b1, B_w2, B_b2)
    x = x + _A_ref(_layernorm(x, axis=-1), A_wqkv, A_wo)
    x = x + _B_ref(_layernorm(x, axis=-1), B_w1, B_b1, B_w2, B_b2)
    return x
```

```python
import re


class R:
    __slots__ = ("k", "i", "n")

    def __init__(self, k, i, n=1):
        self.k, self.i, self.n = k, i, n

    def __str__(self):
        if self.k in ("vcc", "exec", "m0", "scc"):
            return self.k
        if self.n == 1:
            return f"{self.k}{self.i}"
        return f"{self.k}[{self.i}:{self.i + self.n - 1}]"

    __repr__ = __str__

    def regs(self):
        if self.k in ("vcc", "exec", "m0", "scc"):
            return [(self.k, 0)]
        return [(self.k, self.i + j) for j in range(self.n)]

    def __getitem__(self, j):
        if isinstance(j, slice):
            a = j.start or 0
            b = j.stop if j.stop is not None else self.n
            assert 0 <= a < b <= self.n
            return R(self.k, self.i + a, b - a)
        assert 0 <= j < self.n, (self, j)
        return R(self.k, self.i + j, 1)


def v(i, n=1):
    assert 0 <= i and i + n <= 256, (i, n)
    return R("v", i, n)


def a(i, n=1):
    assert 0 <= i and i + n <= 256, (i, n)
    return R("a", i, n)


def s(i, n=1):
    assert 0 <= i and i + n <= 102, (i, n)
    return R("s", i, n)


VCC = R("vcc", 0, 2)
EXEC = R("exec", 0, 2)
M0 = R("m0", 0)


class Neg:
    def __init__(self, r):
        self.r = r

    def __str__(self):
        return f"-{self.r}"

    def regs(self):
        return self.r.regs()


def f2u(x):
    import struct
    return struct.unpack("<I", struct.pack("<f", x))[0]


def lit(x):
    return f"0x{f2u(x):08x}"


TRANS = ("v_exp_f32", "v_log_f32", "v_rcp_f32", "v_rsq_f32", "v_sqrt_f32", "v_sin_f32", "v_cos_f32")
RMW = ("v_fmac_f32", "v_dot2c_f32_bf16", "v_writelane_b32")


class Op:
    __slots__ = ("kind", "dst", "maybe", "tag", "done")

    def __init__(self, kind, dst, maybe, tag=None):
        self.kind, self.dst, self.maybe, self.tag, self.done = kind, set(dst), maybe, tag, False


class Emitter:
    def __init__(self):
        self.lines = []
        self.pos = 0
        self.vm = []
        self.lg = []
        self.smem = []
        self.lastw = {}
        self.lastc = {}
        self.lastst = {}
        self.cond = 0
        self.regions = []
        self.nregion = 0
        self._cstack = []
        self.nops = 0
        self.ninst = 0
        self.stats = {}
        self.lab = 0

    def raw(self, t):
        self.lines.append(t)

    def comment(self, t):
        self.lines.append("; " + t)

    def newlabel(self, p="L"):
        self.lab += 1
        return f"{p}_{self.lab}"

    def label(self, l):
        self.lines.append(l + ":")

    def _put(self, text, states=1):
        self.lines.append("  " + text)
        self.pos += states
        self.ninst += 1
        k = text.split()[0]
        self.stats[k] = self.stats.get(k, 0) + 1

    def nop(self, n):
        while n > 0:
            k = min(n, 16)
            self._put(f"s_nop {k - 1}", k)
            self.nops += 1
            n -= k

    def _cnt_after(self, q, op):
        i = q.index(op)
        act = set(self.regions)
        return sum(1 for o in q[i + 1:] if (not o.maybe) or o.maybe in act), i

    def wait_ops(self, ops):
        vmn = lgn = None
        vi = li = -1
        for op in ops:
            if op is None or op.done:
                continue
            if op.kind == "vm":
                n, i = self._cnt_after(self.vm, op)
                if i > vi:
                    vi, vmn = i, n
            elif op.kind == "lg":
                n, i = self._cnt_after(self.lg, op)
                if self.smem:
                    n, i = 0, len(self.lg) - 1
                if i > li:
                    li, lgn = i, n
            elif op.kind == "sm":
                li, lgn = len(self.lg) - 1, 0
        parts = []
        if vmn is not None:
            if vmn <= 63:
                parts.append(f"vmcnt({vmn})")
            for o in self.vm[:vi + 1]:
                o.done = True
            self.vm = self.vm[vi + 1:]
        if lgn is not None:
            lgn = min(lgn, 15)
            parts.append(f"lgkmcnt({lgn})")
            for o in self.lg[:li + 1]:
                o.done = True
            self.lg = self.lg[li + 1:]
            if lgn == 0:
                for o in self.smem + self.lg:
                    o.done = True
                self.smem = []
                self.lg = []
        if parts:
            self._put("s_waitcnt " + " ".join(parts))

    def wait_all_lg(self):
        if self.lg or self.smem:
            self.wait_ops(self.lg[-1:] + self.smem[-1:])

    def wait_all_vm(self):
        if self.vm:
            self._put("s_waitcnt vmcnt(0)")
            for o in self.vm:
                o.done = True
            self.vm = []

    def _pending(self, regs):
        regs = set(regs)
        out = []
        for q in (self.vm, self.lg, self.smem):
            for o in q:
                if o.dst & regs:
                    out.append(o)
        return out

    def _need(self, cls, rd, wr, cregs=(), abregs=(), exactc=False, op=""):
        need = 0

        def req(p, n):
            nonlocal need
            d = self.pos - p - 1
            if n - d > need:
                need = n - d

        for r in rd:
            w = self.lastw.get(r)
            if not w:
                continue
            p, c = w
            if c in ("valu", "trans", "dot") and r[0] in "va":
                if cls == "mfma":
                    req(p, 2 if c != "dot" else 3)
                if cls in ("permlane", "dpp"):
                    req(p, 2)
                if cls == "readlane":
                    req(p, 1)
                if c == "trans" and cls in ("valu", "dot", "permlane", "dpp", "readlane", "vmem", "ds"):
                    req(p, 1)
                if c == "dot" and not (cls == "dot" and r in wr):
                    req(p, 3)
            if c == "mfma":
                if cls == "mfma":
                    if r in abregs:
                        req(p, 8)
                    elif r in cregs:
                        req(p, 0 if exactc else 6)
                else:
                    req(p, 8)
            if c == "valu_s":
                if cls in ("valu", "trans", "dot", "dpp", "permlane", "mfma"):
                    req(p, 2)
                if cls == "readlane":
                    req(p, 4)
                if cls == "vmem":
                    req(p, 5)
            if c == "salu" and r[0] == "m0" and cls == "vmem":
                req(p, 1)
        for r in wr:
            w = self.lastw.get(r)
            if w and w[1] == "mfma" and cls != "mfma":
                req(w[0], 8)
            if w and w[1] == "mfma" and cls == "mfma" and r not in cregs:
                req(w[0], 8)
            if w and w[1] == "dot" and cls != "dot":
                req(w[0], 3)
            if cls in ("valu", "trans", "dot", "dpp", "permlane") and r in self.lastc:
                req(self.lastc[r], 3)
            if r in self.lastst and cls != "mfma":
                req(self.lastst[r], 2)
        return need

    def _regs(self, ops):
        out = []
        for o in ops:
            if isinstance(o, (R, Neg)):
                out += o.regs()
        return out

    def _issue(self, text, cls, rd, wr, wcls=None, **kw):
        pend = self._pending(list(rd) + list(wr))
        if pend:
            self.wait_ops(pend)
        n = self._need(cls, rd, wr, **kw)
        if n > 0:
            self.nop(n)
        p = self.pos
        self._put(text)
        for r in wr:
            c = wcls or cls
            if c in ("permlane", "dpp", "readlane"):
                c = "valu"
            if c in ("valu", "trans", "dot") and r[0] in ("s", "vcc", "exec"):
                c = "valu_s"
            self.lastw[r] = (p, c)
        return p

    def V(self, op, *ops, mods=""):
        base = op.replace("_e64", "").replace("_e32", "")
        dst = ops[0]
        wr = self._regs([dst])
        rd = self._regs(ops[1:])
        cls = "valu"
        if base in TRANS:
            cls = "trans"
        if base.startswith("v_dot2"):
            cls = "dot"
        if base in RMW:
            rd = rd + wr
        if base.startswith("v_permlane"):
            cls = "permlane"
            rd = self._regs(ops)
            wr = self._regs(ops)
        if base in ("v_readfirstlane_b32", "v_readlane_b32"):
            cls = "readlane"
        if "dpp" in op or "row_" in mods or "quad_perm" in mods:
            cls = "dpp"
        if base in ("v_add_co_u32", "v_addc_co_u32", "v_sub_co_u32"):
            wr = self._regs(ops[:2])
            rd = self._regs(ops[2:])
        text = f"{op} " + ", ".join(str(o) for o in ops) + (" " + mods if mods else "")
        self._issue(text, cls, rd, wr)

    def S(self, op, *ops):
        if op.startswith("s_cmp") or op.startswith("s_bitcmp"):
            wr, rd = [], self._regs(ops)
        else:
            wr, rd = self._regs(ops[:1]), self._regs(ops[1:])
        if "saveexec" in op:
            wr = wr + [("exec", 0)]
        text = f"{op} " + ", ".join(str(o) for o in ops)
        self._issue(text, "salu", rd, wr)

    def mfma(self, d, x, y, c):
        ab = self._regs([x, y])
        cr = self._regs([c])
        exact = isinstance(c, R) and c.k == d.k and c.i == d.i and c.n == d.n
        text = f"v_mfma_f32_16x16x32_bf16 {d}, {x}, {y}, {c}"
        p = self._issue(text, "mfma", ab + cr, d.regs(), cregs=set(cr), abregs=set(ab), exactc=exact)
        for r in cr:
            self.lastc[r] = p

    def ds_read(self, d, addr, off=0, w=None):
        w = w or {1: "b32", 2: "b64", 4: "b128"}[d.n]
        assert 0 <= off < 65536, off
        text = f"ds_read_{w} {d}, {addr}" + (f" offset:{off}" if off else "")
        self._issue(text, "ds", addr.regs(), d.regs(), wcls="load")
        o = Op("lg", d.regs(), self.cur_region())
        self.lg.append(o)
        return o

    def ds_write(self, addr, d, off=0):
        w = {1: "b32", 2: "b64", 4: "b128"}[d.n]
        assert 0 <= off < 65536, off
        text = f"ds_write_{w} {addr}, {d}" + (f" offset:{off}" if off else "")
        self._issue(text, "ds", addr.regs() + d.regs(), [])
        o = Op("lg", [], self.cur_region())
        self.lg.append(o)
        return o

    def _so(self, so):
        return self._regs([so]) if isinstance(so, R) else []

    def bload(self, d, voff, srd, so=0, off=0, mods="", w=None):
        w = w or {1: "dword", 2: "dwordx2", 3: "dwordx3", 4: "dwordx4"}[d.n]
        assert 0 <= off < 4096, off
        text = f"buffer_load_{w} {d}, {voff}, {srd}, {so} offen" + (f" offset:{off}" if off else "") + (" " + mods if mods else "")
        self._issue(text, "vmem", voff.regs() + srd.regs() + self._so(so), d.regs(), wcls="load")
        o = Op("vm", d.regs(), self.cur_region())
        self.vm.append(o)
        return o

    def dma(self, voff, srd, so=0, off=0, mods=""):
        assert 0 <= off < 4096, off
        text = f"buffer_load_dwordx4 {voff}, {srd}, {so} offen" + (f" offset:{off}" if off else "") + (" " + mods if mods else "") + " lds"
        self._issue(text, "vmem", voff.regs() + srd.regs() + self._so(so) + [("m0", 0)], [])
        o = Op("vm", [], self.cur_region())
        self.vm.append(o)
        return o

    def bstore(self, d, voff, srd, so=0, off=0, mods="", w=None):
        w = w or {1: "dword", 2: "dwordx2", 3: "dwordx3", 4: "dwordx4"}[d.n]
        assert 0 <= off < 4096, off
        text = f"buffer_store_{w} {d}, {voff}, {srd}, {so} offen" + (f" offset:{off}" if off else "") + (" " + mods if mods else "")
        p = self._issue(text, "vmem", d.regs() + voff.regs() + srd.regs() + self._so(so), [])
        if d.n >= 3:
            for r in d.regs():
                self.lastst[r] = p
        o = Op("vm", [], self.cur_region())
        self.vm.append(o)
        return o

    def gload(self, d, voff, sbase, off=0, mods=""):
        w = {1: "dword", 2: "dwordx2", 4: "dwordx4"}[d.n]
        text = f"global_load_{w} {d}, {voff}, {sbase}" + (f" offset:{off}" if off else "") + (" " + mods if mods else "")
        self._issue(text, "vmem", voff.regs() + sbase.regs(), d.regs(), wcls="load")
        o = Op("vm", d.regs(), self.cur_region())
        self.vm.append(o)
        return o

    def sload(self, d, base, off):
        w = {1: "dword", 2: "dwordx2", 4: "dwordx4", 8: "dwordx8", 16: "dwordx16"}[d.n]
        text = f"s_load_{w} {d}, {base}, {off}"
        self._issue(text, "salu", base.regs(), d.regs(), wcls="load")
        o = Op("sm", d.regs(), self.cur_region())
        self.smem.append(o)
        return o

    def memtime(self, d, real=False):
        text = ("s_memrealtime " if real else "s_memtime ") + str(d)
        self._issue(text, "salu", [], d.regs(), wcls="load")
        o = Op("sm", d.regs(), self.cur_region())
        self.smem.append(o)
        return o

    def barrier(self):
        self._put("s_barrier")

    def misc(self, text):
        self._put(text)

    def branch(self, op, lab):
        self._put(f"{op} {lab}")

    def cur_region(self):
        return self.regions[-1] if self.regions else 0

    def cond_begin(self):
        self.cond += 1
        self.nregion += 1
        self.regions.append(self.nregion)
        self._cstack.append((self.pos, list(self.vm), list(self.lg), list(self.smem)))

    def cond_end(self):
        self.cond -= 1
        rid = self.regions.pop()
        p0, vm0, lg0, sm0 = self._cstack.pop()
        ln = self.pos - p0
        newq = []
        for q0, q in ((vm0, self.vm), (lg0, self.lg), (sm0, self.smem)):
            for o in q0:
                o.done = False
            inside = [o for o in q if o not in q0]
            for o in inside:
                assert not o.dst, "load left pending in a conditional region"
            newq.append(list(q0) + inside)
        self.vm, self.lg, self.smem = newq
        for r, (p, c) in list(self.lastw.items()):
            if p < p0:
                self.lastw[r] = (p + ln, c)
        for d in (self.lastc, self.lastst):
            for r, p in list(d.items()):
                if p < p0:
                    d[r] = p + ln

    def reset_state(self):
        self.vm, self.lg, self.smem = [], [], []
        self.lastw, self.lastc, self.lastst = {}, {}, {}

    def text(self):
        return "\n".join(self.lines) + "\n"
```

```python
from asmgen import *
from layout import *
from gen_prep import mk_srd, allreduce_g
import math

BIG = 0x40000000
LOG2E = 1.4426950408889634
LN2 = 0.6931471805599453

IMG = 0
ZT = 6144
RST = 6400
DUMMY = 6912
RING = 8192
RB = 152
LDS_BYTES = RING + RB * KB
FI = 8

WS, OUT, XIN, SB2 = s(8, 4), s(12, 4), s(16, 4), s(20, 4)
sWave, sR, sC, sCG, sRH, sKH, sW2048 = [s(24 + i) for i in range(7)]
sSeg = {"A": s(31), "O": s(32), "B": s(33), "C": s(34)}
sXr, sHr, sSTr, sFRL, sFRG, sFC = [s(35 + i) for i in range(6)]
sA, sB, sD, sE, sDm, sLd = [s(41 + i) for i in range(6)]
sMaskV = s(48, 2)
sCnt = s(50)
sTT = s(51)
sTm = s(52, 2)
sOx, sOxh, sOst, sOo, sOoh, sOh, sOhh, sKv = [s(54 + i) for i in range(8)]
STAMP0 = 72

vLane, vN, vG, vL16 = v(1), v(2), v(3), v(4)
vW = [v(5), v(6), v(7)]
vK = [v(8), v(9), v(10)]
vDma = v(11)
vAx = [v(12), v(13)]
vAo = [v(14), v(15)]
vAh = [v(16), v(17)]
vSt, vStW, vKvSrc, vKvDst, vT16, vZ01, vZ2, vRT, vRW, vRF, vOut, vOut4, vOne = [v(18 + i) for i in range(13)]
vOh, vXs, vXh, vHs, vHh, vFl, vPollR, vPollC, vXch = [v(31 + i) for i in range(9)]
XE = [v(40, 4), v(44, 4)]
vC2 = v(48, 2)
vC2b = v(50, 2)
vLn2 = v(52, 2)
vEps = v(54, 2)
RT = v(56, 8)
ACC = v(64, 64)
FIFO = v(128, 4 * FI)
RES = v(160, 20)
B2F = v(180, 20)
TMP = v(200, 56)


class Main:
    def __init__(self, e, opt):
        self.e = e
        self.opt = opt
        self.nstamp = 0
        self.segs = []
        pos = 0
        for p in range(2):
            for k, n in (("A", NA), ("O", NO), ("B", NB), ("C", NC)):
                self.segs.append((k, pos, n))
                pos += n
        self.total = pos
        self.ngroups = pos // 8
        self.issued = 0
        self.dmaop = {}
        self.freed = 0
        self.hold = None
        self.visible = 0
        self.seq = []
        self.seqstart = {}
        for p in range(2):
            b = self.segs[4 * p + 0][1]
            self.seqstart[("A1", p)] = len(self.seq)
            self.seq += [(b + i, "W") for i in range(105)]
            self.seqstart[("A2", p)] = len(self.seq)
            self.seq += [(b + 105 + i, "W") for i in range(63)]
            b = self.segs[4 * p + 1][1]
            self.seqstart[("A4", p)] = len(self.seq)
            self.seq += [(b + 2 * i, "K") for i in range(50)]
            b = self.segs[4 * p + 2][1]
            self.seqstart[("B1a", p)] = len(self.seq)
            self.seq += [(b + i, "W") for i in range(84)]
            self.seqstart[("B1b", p)] = len(self.seq)
            self.seq += [(b + 84 + i, "W") for i in range(63)]
            b = self.segs[4 * p + 3][1]
            self.seqstart[("B2", p)] = len(self.seq)
            self.seq += [(b + 2 * i, "K") for i in range(135)]
        self.rd = 0
        self.cons = 0
        self.lastbar = 0
        self.warn = []

    def stamp(self, name):
        if not self.opt.get("stamps"):
            return
        e = self.e
        e.wait_all_lg()
        e.memtime(sTm)
        e.V("v_writelane_b32", v(53), sTm[0], self.nstamp)
        self.opt.setdefault("stampnames", []).append(name)
        self.nstamp += 1
        assert self.nstamp <= 64

    def endpos(self, i):
        p, k = self.seq[i]
        return p + (2 if k == "K" else 1)

    def ldsaddr(self, pos):
        return RING + (pos % RB) * KB

    def can_issue(self):
        if self.issued >= self.ngroups:
            return False
        lim = self.freed if self.hold is None else min(self.freed, self.hold)
        return 8 * (self.issued + 1) <= lim + RB

    def dma_group(self):
        e = self.e
        g = self.issued
        self.issued += 1
        pos = 8 * g
        for k, b, n in self.segs:
            if b <= pos < b + n:
                break
        e.S("s_add_u32", M0, sW2048, self.ldsaddr(pos))
        yield
        e.S("s_add_u32", sDm, sSeg[k], (pos - b) * KB)
        yield
        e.dma(vDma, WS, sDm, 0)
        yield
        self.dmaop[g] = e.dma(vDma, WS, sDm, 1024)
        yield

    def dma_filler(self):
        while True:
            if self.can_issue() and not self.dma_paused:
                for _ in self.dma_group():
                    yield True
            else:
                yield False

    def flush_dma_partial(self):
        while self.issued > 0 and (self.issued - 1) not in self.dmaop:
            next(self.dmaf)

    def dma_all(self):
        self.flush_dma_partial()
        while self.can_issue():
            for _ in self.dma_group():
                pass

    def ring_barrier(self, need_idx, extra_ops=(), free_all=False):
        e = self.e
        need_idx = min(need_idx, len(self.seq))
        upto = self.endpos(need_idx - 1) if need_idx > 0 else 0
        g = (upto + 7) // 8
        self.flush_dma_partial()
        while self.issued < g:
            assert self.can_issue(), ("ring deadlock", self.issued, g, self.freed, self.hold)
            self.warn.append(f"forced dma group {self.issued} at seq {self.rd}")
            for _ in self.dma_group():
                pass
        ops = list(extra_ops)
        if g > 0 and 8 * g > self.visible:
            ops.append(self.dmaop[g - 1])
        e.wait_ops(ops)
        e.barrier()
        self.visible = max(self.visible, 8 * g)
        self.freed = self.seq[self.cons][0] if self.cons < len(self.seq) else self.total
        self.lastbar = self.rd

    def issue_read(self):
        e = self.e
        i = self.rd
        if i >= len(self.seq):
            return
        pos, k = self.seq[i]
        assert self.endpos(i) <= self.visible, ("read of invisible block", i, pos, self.visible)
        ad = self.ldsaddr(pos)
        base = (vW if k == "W" else vK)[ad >> 16]
        slot = i % FI
        e.ds_read(FIFO[4 * slot:4 * slot + 4], base, ad & 0xffff)
        self.rd += 1

    def prime(self):
        while self.rd < self.cons + FI and self.rd < len(self.seq) and self.endpos(self.rd) <= self.visible:
            self.issue_read()

    def run_pass(self, n, mf, pre=None, fillers=(), chunk=24, stop_reads=None, spare=2, hooks=None):
        e = self.e
        fillers = list(fillers)
        for t in range(n):
            i = self.cons
            if pre:
                pre(t)
            assert self.rd > i, ("fifo underrun", i)
            slot = i % FI
            mf(t, FIFO[4 * slot:4 * slot + 4])
            self.cons += 1
            if self.rd < (stop_reads if stop_reads is not None else len(self.seq)):
                if self.endpos(self.rd) > self.visible or self.rd - self.lastbar >= chunk:
                    lim = stop_reads if stop_reads is not None else len(self.seq)
                    ex = []
                    after = None
                    if hooks and hooks.get("bar"):
                        ex, after = hooks["bar"](t)
                    self.ring_barrier(min(self.rd + chunk, lim), ex)
                    if after:
                        after()
                self.issue_read()
            k = spare
            while k > 0:
                did = False
                for f in list(fillers):
                    try:
                        next(f)
                        did = True
                        break
                    except StopIteration:
                        fillers.remove(f)
                if not did:
                    if not next(self.dmaf):
                        break
                k -= 1
        for f in fillers:
            for _ in f:
                pass

    def prologue(self):
        e = self.e
        e.S("s_cmp_ge_u32", s(2), 256)
        e.branch("s_cbranch_scc1", "main_end")
        e.sload(s(64, 2), s(0, 2), 0)
        e.sload(s(66, 2), s(0, 2), 56)
        e.sload(s(68, 2), s(0, 2), 64)
        e.sload(s(70, 2), s(0, 2), 80)
        T0, T1, T2, T3 = TMP[0], TMP[1], TMP[2], TMP[3]
        e.V("v_lshrrev_b32", T0, 6, v(0))
        e.V("v_and_b32", vLane, 63, v(0))
        e.V("v_readfirstlane_b32", sWave, T0)
        e.V("v_lshlrev_b32", vL16, 4, vLane)
        e.V("v_and_b32", vN, 15, vLane)
        e.V("v_lshrrev_b32", vG, 4, vLane)
        e.S("s_and_b32", sA, s(2), 7)
        e.S("s_lshl_b32", sA, sA, 1)
        e.S("s_lshr_b32", sB, s(2), 7)
        e.S("s_add_u32", sR, sA, sB)
        e.S("s_bfe_u32", sC, s(2), (4 << 16) | 3)
        e.S("s_and_b32", sCG, sC, 7)
        e.S("s_lshr_b32", sRH, sC, 3)
        e.S("s_and_b32", sKH, sWave, 1)
        e.S("s_lshl_b32", sW2048, sWave, 11)
        e.S("s_mul_i32", sA, sC, NA * KB)
        e.S("s_add_u32", sSeg["A"], sA, WA)
        e.S("s_mul_i32", sA, sCG, NO * KB)
        e.S("s_add_u32", sSeg["O"], sA, WO)
        e.S("s_mul_i32", sA, sC, NB * KB)
        e.S("s_add_u32", sSeg["B"], sA, WB)
        e.S("s_mul_i32", sA, sCG, NC * KB)
        e.S("s_add_u32", sSeg["C"], sA, WC)
        e.V("v_add_u32", vDma, sW2048, vL16)
        mk_srd(e, WS, s(70, 2), WS_USED)
        self.dma_paused = False
        self.dmaf = self.dma_filler()
        first = self.opt.get("first_groups", 4)
        for _ in range(first):
            for _ in self.dma_group():
                pass
        e.S("s_mul_i32", sXr, sR, 160 * KB)
        e.S("s_mul_i32", sHr, sR, 432 * KB)
        e.S("s_lshl_b32", sSTr, sR, 13)
        e.S("s_mul_i32", sA, sWave, 40 * KB)
        e.V("v_add_u32", vAx[0], sA, vL16)
        e.V("v_add_u32", vAx[1], 20 * KB, vAx[0])
        e.V("v_lshlrev_b32", T0, 11, vG)
        e.V("v_lshl_add_u32", T0, vN, 3, T0)
        e.S("s_lshl_b32", sA, sWave, 8)
        e.V("v_add_u32", vSt, sA, T0)

    def prologue2(self):
        e = self.e
        T0, T1, T2, T3, T4, T5 = [TMP[40 + i] for i in range(6)]
        mk_srd(e, OUT, s(68, 2), XSZ)
        mk_srd(e, XIN, s(64, 2), XSZ)
        mk_srd(e, SB2, s(66, 2), D * 2)
        for j in range(3):
            if j == 0:
                e.V("v_mov_b32", vW[0], vL16)
            else:
                e.V("v_add_u32", vW[j], j * 65536, vL16)
        e.S("s_lshl_b32", sA, sKH, 10)
        for j in range(3):
            e.V("v_add_u32", vK[j], sA, vW[j])
        e.V("v_lshlrev_b32", T4, 4, v(0))
        Z = TMP[44:48]
        Z = TMP[48:52]
        for j in range(4):
            e.V("v_mov_b32", Z[j], 0)
        e.ds_write(T4, Z, 0)
        e.ds_write(T4, Z, 4096)
        e.S("s_lshl_b32", sTT, sRH, 2)
        e.S("s_add_u32", sTT, sTT, sWave)
        e.S("s_xor_b32", sB, sTT, 1)
        for u, st in ((0, sTT), (1, sB)):
            e.S("s_mul_i32", sA, st, 20 * KB)
            e.S("s_mul_i32", sD, sKH, 10 * KB)
            e.S("s_add_u32", sA, sA, sD)
            e.V("v_add_u32", vAo[u], sA, vL16)
            e.S("s_mul_i32", sA, st, 54 * KB)
            e.S("s_mul_i32", sD, sKH, 27 * KB)
            e.S("s_add_u32", sA, sA, sD)
            e.V("v_add_u32", vAh[u], sA, vL16)
        e.V("v_lshrrev_b32", T0, 1, vG)
        e.V("v_and_b32", T1, 1, vG)
        e.V("v_lshlrev_b32", T2, 4, vN)
        e.V("v_lshl_add_u32", T3, T0, 8, T2)
        e.V("v_lshl_add_u32", T3, T1, 3, T3)
        e.S("s_mul_i32", sA, sTT, 20 * KB)
        e.V("v_add_u32", vXs, sA, vL16)
        e.V("v_add_u32", vXh, sA, T3)
        e.S("s_mul_i32", sA, sWave, 108 * KB)
        e.V("v_add_u32", vHs, sA, vL16)
        e.V("v_add_u32", vHh, sA, T3)
        e.S("s_mul_i32", sA, sWave, 40 * KB)
        e.V("v_lshl_add_u32", T3, vG, 3, T2)
        e.V("v_add_u32", vOh, sA, T3)
        e.S("s_lshl_b32", sA, sTT, 7)
        e.V("v_lshl_add_u32", T3, vN, 3, sA)
        e.V("v_lshl_add_u32", vStW, T0, 2, T3)
        e.S("s_lshl_b32", sA, sWave, 7)
        e.S("s_add_u32", sA, sA, RST)
        e.V("v_lshl_add_u32", vRT, vG, 4, sA)
        e.V("v_lshl_add_u32", vRW, vN, 2, sA)
        e.S("s_lshl_b32", sA, sTT, 6)
        e.S("s_add_u32", sA, sA, RST)
        e.V("v_lshl_add_u32", vRF, vN, 2, sA)
        e.V("v_lshlrev_b32", T3, 4, vG)
        e.V("v_add_u32", vZ2, ZT + 128, T3)
        e.V("v_cmp_gt_u32", VCC, 10, vN)
        e.V("v_add_u32", T3, ZT, T3)
        e.V("v_cndmask_b32", vZ01, vZ2, T3, VCC)
        e.S("s_lshl_b32", sA, sR, 3)
        e.S("s_add_u32", sA, sA, sTT)
        e.S("s_mul_i32", sA, sA, 16 * 1280)
        e.S("s_mul_i32", sB, sCG, 160)
        e.S("s_add_u32", sA, sA, sB)
        e.V("v_mul_u32_u24", T3, 1280, vN)
        e.V("v_add_u32", T3, sA, T3)
        e.V("v_lshl_add_u32", vOut, vG, 4, T3)
        e.V("v_lshl_add_u32", vOut4, vG, 3, T3)
        e.bload(RES[10:14], vOut, XIN, 0, 0)
        e.bload(RES[14:18], vOut, XIN, 0, 64)
        e.bload(RES[18:20], vOut4, XIN, 0, 128)
        e.V("v_lshl_add_u32", T4, vG, 4, sB)
        e.V("v_lshl_add_u32", T5, vG, 3, sB)
        e.bload(B2F[10:14], T4, SB2, 0, 0)
        e.bload(B2F[14:18], T4, SB2, 0, 64)
        e.bload(B2F[18:20], T5, SB2, 0, 128)
        e.S("s_mul_i32", sA, sWave, 5120)
        e.V("v_add_u32", vXch, sA, vL16)
        e.V("v_lshlrev_b32", vFl, 2, vN)
        e.V("v_mov_b32", vPollR, 0)
        e.V("v_mov_b32", vPollC, 0)
        e.S("s_mov_b32", sA, "0x3f803f80")
        e.V("v_mov_b32", vOne, sA)
        e.V("v_mov_b32", vLn2[0], lit(LN2))
        e.V("v_mov_b32", vEps[0], lit(1e-6))
        e.S("s_mov_b32", sMaskV[0], "0x00ff00ff")
        e.S("s_mov_b32", sMaskV[1], "0x00ff00ff")
        e.S("s_lshl_b32", sA, sR, 8)
        e.S("s_add_u32", sFRL, sA, FLG_RL)
        e.S("s_add_u32", sFRG, sA, FLG_RG)
        e.S("s_lshl_b32", sA, sC, 8)
        e.S("s_add_u32", sFC, sA, FLG_C)
        e.S("s_lshl_b32", sA, sCG, 11)
        e.S("s_add_u32", sOx, sXr, sA)
        e.S("s_lshr_b32", sA, sCG, 1)
        e.S("s_lshl_b32", sA, sA, 10)
        e.S("s_and_b32", sB, sCG, 1)
        e.S("s_lshl_b32", sB, sB, 9)
        e.S("s_add_u32", sA, sA, sB)
        e.S("s_add_u32", sA, sA, 16 * KB)
        e.S("s_add_u32", sOxh, sXr, sA)
        e.S("s_lshl_b32", sA, sCG, 10)
        e.S("s_add_u32", sOst, sSTr, sA)
        e.S("s_lshl_b32", sA, sC, 10)
        e.S("s_add_u32", sOo, sXr, sA)
        e.S("s_lshl_b32", sA, sC, 8)
        e.S("s_add_u32", sA, sA, 16 * KB)
        e.S("s_add_u32", sOoh, sXr, sA)
        e.S("s_mul_i32", sA, sC, 3 * KB)
        e.S("s_add_u32", sOh, sHr, sA)
        e.S("s_lshl_b32", sA, sC, 9)
        e.S("s_add_u32", sA, sA, 48 * KB)
        e.S("s_add_u32", sOhh, sHr, sA)
        e.S("s_mul_i32", sKv, sC, 16 * KVSZ)
        U, Hh, Ee, Dq = T0, T1, T2, T3
        e.S("s_mov_b32", sA, 52429)
        e.V("v_mul_u32_u24", U, sA, v(0))
        e.V("v_lshrrev_b32", U, 18, U)
        e.V("v_mul_u32_u24", Dq, 5, U)
        e.V("v_sub_u32", Dq, v(0), Dq)
        e.V("v_cmp_le_u32", VCC, 21, U)
        e.V("v_cndmask_b32", Hh, 0, 1, VCC)
        e.V("v_mul_u32_u24", Ee, 21, Hh)
        e.V("v_sub_u32", Ee, U, Ee)
        A0, A1, A2, A3 = TMP[24], TMP[25], TMP[26], TMP[27]
        e.V("v_cmp_le_u32", s(66, 2), 16, Ee)
        e.V("v_cmp_eq_u32", s(64, 2), 4, Dq)
        e.V("v_cndmask_b32", A0, 0, 1, s(66, 2))
        e.V("v_lshl_add_u32", A0, Hh, 1, A0)
        e.V("v_add_u32", A1, 4, Hh)
        e.V("v_cndmask_b32", A1, A1, 6, s(66, 2))
        e.V("v_cndmask_b32", A0, A0, A1, s(64, 2))
        e.V("v_cndmask_b32", A1, Dq, Hh, s(64, 2))
        e.V("v_lshl_add_u32", A2, Hh, 2, Ee)
        e.V("v_subrev_u32", A2, 8, A2)
        e.V("v_cndmask_b32", A2, Ee, A2, s(66, 2))
        e.V("v_cmp_eq_u32", VCC, 20, Ee)
        e.V("v_cndmask_b32", A2, A2, 0, VCC)
        e.V("v_lshl_add_u32", A1, A1, 4, A2)
        e.V("v_lshlrev_b32", A1, 4, A1)
        e.V("v_lshl_add_u32", vKvSrc, A0, 10, A1)
        e.V("v_mul_u32_u24", A0, 5, Hh)
        e.V("v_add_u32", A0, A0, Dq)
        e.V("v_cmp_le_u32", s(64, 2), 8, A0)
        e.V("v_lshrrev_b32", A1, 1, A0)
        e.V("v_subrev_u32", A2, 8, A0)
        e.V("v_cndmask_b32", A1, A1, A2, s(64, 2))
        e.V("v_and_b32", A2, 1, A0)
        e.V("v_cndmask_b32", A2, A2, 0, s(64, 2))
        e.V("v_lshlrev_b32", A2, 3, A2)
        e.V("v_cndmask_b32", A0, 0, 1, s(64, 2))
        e.V("v_lshl_add_u32", A3, Hh, 1, A0)
        e.V("v_lshl_add_u32", A3, A3, 2, A1)
        e.V("v_lshl_add_u32", A3, A3, 4, A2)
        e.V("v_add_u32", A3, ZT, A3)
        e.V("v_mul_u32_u24", T4, 20, Hh)
        e.V("v_add_u32", T4, T4, Ee)
        e.V("v_cmp_le_u32", s(66, 2), 32, T4)
        e.V("v_and_b32", T5, 1, T4)
        e.V("v_cndmask_b32", T5, T5, 2, s(66, 2))
        e.V("v_lshl_add_u32", A0, T5, 1, A0)
        e.V("v_lshrrev_b32", T5, 1, T4)
        e.V("v_subrev_u32", T4, 32, T4)
        e.V("v_cndmask_b32", T4, T5, T4, s(66, 2))
        e.V("v_lshl_add_u32", T4, A1, 4, T4)
        e.V("v_lshl_add_u32", T4, T4, 4, A2)
        e.V("v_lshl_add_u32", T4, A0, 10, T4)
        e.V("v_cndmask_b32", T4, T4, A3, VCC)
        e.V("v_cmp_gt_u32", VCC, 210, v(0))
        e.V("v_mov_b32", T5, DUMMY)
        e.V("v_cndmask_b32", vKvDst, T5, T4, VCC)
        e.V("v_cndmask_b32", vKvSrc, 0, vKvSrc, VCC)
        e.V("v_lshlrev_b32", T4, 4, v(0))
        e.V("v_mov_b32", T5, BIG)
        e.V("v_cndmask_b32", vT16, T5, T4, VCC)

    def unpack(self, dst, pk):
        e = self.e
        for a_ in range(2):
            for j in range(4):
                e.V("v_lshlrev_b32", dst[8 * a_ + j], 16, pk[4 * a_ + j])
                e.V("v_and_b32", dst[8 * a_ + 4 + j], "0xffff0000", pk[4 * a_ + j])
        for j in range(2):
            e.V("v_lshlrev_b32", dst[16 + 2 * j], 16, pk[8 + j])
            e.V("v_and_b32", dst[16 + 2 * j + 1], "0xffff0000", pk[8 + j])

    def aload_gen(self, vaddr, sbase_terms, nks):
        e = self.e
        for ks in range(nks):
            if ks % 4 == 0:
                e.S("s_add_u32", sLd, sbase_terms[0], sbase_terms[1] + ks * KB)
            for u in range(2):
                e.bload(a((ks * 2 + u) * 4, 4), vaddr[u], WS, sLd, (ks % 4) * KB, "sc1")
                yield ks

    def make_aloader(self, vaddr, terms, nks, ntile, dist, perstep=2):
        gen = self.aload_gen(vaddr, terms, nks)
        st = {"n": 0}

        def upto(ks):
            while st["n"] < 2 * min(ks + 1, nks):
                next(gen)
                st["n"] += 1
            if st["n"] >= 2 * nks:
                self.dma_paused = False

        def pre(t):
            ks, T = divmod(t, ntile)
            if T == 0:
                upto(ks)
            if T == 1:
                upto(ks + dist - 1)
            if T == 2 % ntile:
                upto(ks + dist)
        return upto, pre

    def stats_loads(self, ver):
        e = self.e
        e.S("s_add_u32", sA, sSTr, STB[ver])
        for u in range(2):
            for k in range(2):
                e.bload(TMP[4 * u + 2 * k:4 * u + 2 * k + 2], vSt, WS, sA, k * 1024 + u * 128, "sc1")

    def stats_gen(self, need_T):
        e = self.e
        for u in range(2):
            sm, sq, t0, t1 = TMP[4 * u], TMP[4 * u + 1], TMP[4 * u + 2], TMP[4 * u + 3]
            e.V("v_add_f32", sm, sm, t0); yield
            e.V("v_add_f32", sq, sq, t1); yield
            for op in ("v_permlane32_swap_b32", "v_permlane16_swap_b32"):
                e.V("v_mov_b32", t0, sm); yield
                e.V("v_mov_b32", t1, sq); yield
                e.V(op, sm, t0); yield
                e.V(op, sq, t1); yield
                e.V("v_add_f32", sm, sm, t0); yield
                e.V("v_add_f32", sq, sq, t1); yield
            e.V("v_mul_f32", sm, lit(1.0 / D), sm); yield
            e.V("v_mul_f32", t0, sm, sm); yield
            e.V("v_fma_f32", sq, sq, self.cInvD, Neg(t0)); yield
            e.V("v_max_f32", sq, 0, sq); yield
            e.V("v_add_f32", sq, lit(1e-5), sq); yield
            e.V("v_rsq_f32", t0, sq); yield
            e.V("v_cvt_pk_bf16_f32", XE[u][0], sm, sm); yield
            e.V("v_mul_f32", sq, sq, t0); yield
            e.ds_write(vRW, t0, 64 * u); yield
            c2 = vC2 if u == 0 else vC2b
            e.V("v_mul_f32", c2[0], lit(LOG2E), t0); yield
            e.V("v_lshlrev_b32", t1, 16, XE[u][0]); yield
            e.V("v_sub_f32", sm, sm, t1); yield
            e.V("v_cvt_pk_bf16_f32", XE[u][1], sm, 0); yield
            e.V("v_cvt_pk_bf16_f32", t1, sq, sq); yield
            e.V("v_lshlrev_b32", t1, 16, t1); yield
            e.V("v_sub_f32", t1, sq, t1); yield
            e.V("v_cvt_pk_bf16_f32", XE[u][2], sq, t1); yield
            e.V("v_mov_b32", XE[u][3], 0); yield
        if need_T:
            for u in range(2):
                e.ds_read(RT[4 * u:4 * u + 4], vRT, 64 * u); yield

    def phi_pair(self, src, c2, bcast, t):
        e = self.e
        m = "op_sel_hi:[1,0]" if bcast else ""
        e.V("v_pk_mul_f32", t[0:2], src, c2, mods=m)
        e.V("v_min_f32", t[2], 0, t[0])
        e.V("v_min_f32", t[3], 0, t[1])
        e.V("v_exp_f32", t[2], t[2])
        e.V("v_exp_f32", t[3], t[3])
        e.V("v_max_f32", t[0], 0, t[0])
        e.V("v_max_f32", t[1], 0, t[1])
        e.V("v_pk_fma_f32", t[0:2], t[0:2], vLn2, vEps, mods="op_sel_hi:[1,0,0]")
        e.V("v_pk_add_f32", t[0:2], t[0:2], t[2:4])

    def scratch(self, nblk, endpos):
        st = endpos - nblk
        if (st % RB) + nblk > RB:
            st = endpos - (endpos % RB) - nblk
        return st, self.ldsaddr(st)

    def poll(self, kind, val):
        e = self.e
        skip = e.newlabel("nopoll")
        loop = e.newlabel("poll")
        e.S("s_cmp_lg_u32", sWave, 0)
        e.branch("s_cbranch_scc1", skip)
        e.cond_begin()
        acc = vPollR if kind == "row" else vPollC
        t = TMP[55]
        e.S("s_mov_b32", sCnt, 0)
        e.label(loop)
        e.misc(f"buffer_load_dword {t}, {vFl}, {WS}, {sFRL if kind == 'row' else sFC} offen sc1")
        e.misc("s_add_u32 %s, %s, 1" % (sCnt, sCnt))
        e.misc("s_waitcnt vmcnt(0)")
        e.misc(f"v_max_u32 {acc}, {acc}, {t}")
        e.misc(f"v_cmp_gt_u32 vcc, {val}, {acc}")
        e.misc(f"s_cbranch_vccz {skip}")
        if kind == "row":
            e.misc(f"s_and_b32 {sA}, {sCnt}, 3")
            e.misc(f"s_cbranch_scc1 {loop}")
            e.misc(f"buffer_load_dword {t}, {vFl}, {WS}, {sFRG} offen sc1")
            e.misc("s_waitcnt vmcnt(0)")
            e.misc(f"v_max_u32 {acc}, {acc}, {t}")
        else:
            e.misc("s_sleep 2")
        e.misc(f"s_cmp_lt_u32 {sCnt}, 0x40000")
        e.misc(f"s_cbranch_scc1 {loop}")
        e.cond_end()
        e.label(skip)

    def flag(self, kind, val):
        e = self.e
        lst = [(1, sFRG, "sc1", sC), (2, sFRL, "", sC)] if kind == "row" else [(1, sFC, "sc1", sR)]
        for w, sb, m, sidx in lst:
            skip = e.newlabel("noflag")
            e.S("s_cmp_lg_u32", sWave, w)
            e.branch("s_cbranch_scc1", skip)
            e.cond_begin()
            e.S("s_lshl_b32", sA, sidx, 2)
            e.V("v_mov_b32", TMP[54], sA)
            e.V("v_mov_b32", TMP[55], val)
            e.S("s_mov_b64", EXEC, 1)
            e.bstore(TMP[55], TMP[54], WS, sb, 0, m)
            e.S("s_mov_b64", EXEC, -1)
            e.cond_end()
            e.label(skip)

    def handoff(self, val, ops, shadow=None):
        e = self.e
        e.wait_all_lg()
        self.ring_barrier(self.cons + FI + self.opt.get("ahead", 16), ops)
        self.hold = None
        self.flag("row", val)
        self.stamp("flag")
        self.dma_paused = False
        self.dma_all()
        self.prime()
        if shadow:
            shadow()
        self.poll("row", val)
        e.barrier()
        self.stamp("go")

    def phaseA(self, p):
        e = self.e
        opt = self.opt
        xv = 2 * p
        acc = lambda T, u: ACC[(T * 2 + u) * 4:(T * 2 + u) * 4 + 4]
        xf = lambda ks, u: a((ks * 2 + u) * 4, 4) if ks < 20 else XE[u]
        self.stats_loads(xv)
        upto, pre = self.make_aloader(vAx, (sXr, XB[xv]), 20, 5, opt.get("adist", 5))
        self.dma_paused = True
        upto(opt.get("adist", 5) - 1)
        if p == 0:
            for _ in range(opt.get("second_groups", 6)):
                for _ in self.dma_group():
                    pass
            self.dma_paused = False
            self.prologue2()
            e.wait_all_lg()
            self.ring_barrier(FI + 16)
            self.prime()
            self.stamp("start")
        i0 = self.seqstart[("A1", p)]
        a1end = self.seq[i0][0] + 105
        sst, sad = self.scratch(28, a1end)
        self.hold = sst

        def mf(t, W):
            ks, T = divmod(t, 5)
            for u in range(2):
                e.mfma(acc(T, u), xf(ks, u), W, acc(T, u) if ks else 0)
        self.run_pass(105, mf, pre, [self.stats_gen(True)], stop_reads=self.seqstart[("A4", p)])
        self.stamp("A1")
        C2T = TMP[8:16]
        for j in range(8):
            e.V("v_mul_f32", C2T[j], lit(LOG2E), RT[j])
        KF = [TMP[16:20], TMP[20:24], TMP[24:28]]
        VF = {3: TMP[28:32], 4: TMP[32:36], 2: TMP[36:40]}
        tt = [TMP[40:44], TMP[44:48]]
        n = 0
        for T in range(3):
            for u in range(2):
                for h in range(2):
                    t = tt[n % 2]
                    n += 1
                    self.phi_pair(acc(T, u)[2 * h:2 * h + 2], C2T[4 * u + 2 * h:4 * u + 2 * h + 2], False, t)
                    e.V("v_cvt_pk_bf16_f32", KF[T][2 * u + h], t[0], t[1])
        for T in (3, 4, 2):
            for u in range(2):
                for h in range(2):
                    x = acc(T, u)[2 * h:2 * h + 2]
                    e.V("v_pk_mul_f32", x, x, RT[4 * u + 2 * h:4 * u + 2 * h + 2])
            for u in range(2):
                for h in range(2):
                    x = acc(T, u)[2 * h:2 * h + 2]
                    e.V("v_cvt_pk_bf16_f32", VF[T][2 * u + h], x[0], x[1])
        for j in range(4):
            e.V("v_cndmask_b32", VF[2][j], VF[2][j], vOne, sMaskV)
        PR = [ACC[4 * i:4 * i + 4] for i in range(7)]
        prods = [(0, 3), (0, 2), (1, 4), (1, 2), (2, 3), (2, 4), (2, 2)]
        for i, (kt, vt) in enumerate(prods):
            e.mfma(PR[i], KF[kt], VF[vt], 0)
        e.S("s_mul_i32", sA, sWave, 7168)
        e.S("s_add_u32", sA, sA, sad)
        e.V("v_add_u32", TMP[0], sA, vL16)
        e.V("v_add_u32", TMP[1], sad, vKvSrc)
        self.ring_barrier(self.rd)
        for i in range(7):
            e.ds_write(TMP[0], PR[i], i * 1024)
        e.wait_all_lg()
        e.barrier()
        RD = [TMP[16 + 4 * w:20 + 4 * w] for w in range(4)]
        for w in range(4):
            e.ds_read(RD[w], TMP[1], w * 7168)
        for h in range(2):
            e.V("v_pk_add_f32", RD[0][2 * h:2 * h + 2], RD[0][2 * h:2 * h + 2], RD[1][2 * h:2 * h + 2])
            e.V("v_pk_add_f32", RD[2][2 * h:2 * h + 2], RD[2][2 * h:2 * h + 2], RD[3][2 * h:2 * h + 2])
        for h in range(2):
            e.V("v_pk_add_f32", RD[0][2 * h:2 * h + 2], RD[0][2 * h:2 * h + 2], RD[2][2 * h:2 * h + 2])
        e.S("s_mul_i32", sA, sR, KVSZ)
        e.S("s_add_u32", sA, sA, sKv)
        e.S("s_add_u32", sA, sA, KVB[p])
        kvst = e.bstore(RD[0], vT16, WS, sA, 0, "sc1")
        self.stamp("kvpub")
        state = {"n": 0}

        def barhook(t):
            def rel():
                self.hold = None

            def relflag():
                self.hold = None
                self.flag("col", p + 1)
            if t >= opt.get("kvflag_at", 12) and not state.get("done"):
                state["done"] = True
                return [kvst], relflag
            return [], rel

        def mfq(t, W):
            ks, T = divmod(t, 3)
            for u in range(2):
                e.mfma(acc(5 + T, u), W, xf(ks, u), acc(5 + T, u) if ks else 0)
        self.lastbar = self.rd - 8
        self.run_pass(63, mfq, None, [], stop_reads=self.seqstart[("A4", p)], hooks={"bar": barhook})
        assert state.get("done")
        self.stamp("A2")
        PQ0 = [TMP[0:4], TMP[4:8]]
        PQ1 = [TMP[8:12], TMP[12:16]]
        tq = [TMP[16:20], TMP[20:24]]
        for u in range(2):
            c2 = vC2 if u == 0 else vC2b
            for h in range(2):
                self.phi_pair(acc(5, u)[2 * h:2 * h + 2], c2, True, tq[0])
                self.phi_pair(acc(6, u)[2 * h:2 * h + 2], c2, True, tq[1])
                e.V("v_cvt_pk_bf16_f32", PQ0[u][2 * h], tq[0][0], tq[1][0])
                e.V("v_cvt_pk_bf16_f32", PQ0[u][2 * h + 1], tq[0][1], tq[1][1])
            for h in range(2):
                self.phi_pair(acc(7, u)[2 * h:2 * h + 2], c2, True, tq[h])
                e.V("v_cvt_pk_bf16_f32", PQ1[u][h], tq[h][0], tq[h][1])
            e.V("v_mov_b32", PQ1[u][2], 0)
            e.V("v_mov_b32", PQ1[u][3], 0)
        self.stamp("qepi")
        self.poll("col", p + 1)
        self.ring_barrier(self.rd)
        self.stamp("kvgo")
        PL = [ACC[4 * i:4 * i + 4] for i in range(16)]
        for i in range(16):
            e.S("s_add_u32", sA if i % 2 == 0 else sB, sKv, KVB[p] + i * KVSZ)
            e.bload(PL[i], vT16, WS, sA if i % 2 == 0 else sB, 0, "sc1")
        self.dma_all()
        for st in (1, 2, 4, 8):
            for i in range(0, 16, 2 * st):
                for h in range(2):
                    e.V("v_pk_add_f32", PL[i][2 * h:2 * h + 2], PL[i][2 * h:2 * h + 2], PL[i + st][2 * h:2 * h + 2])
        e.V("v_cvt_pk_bf16_f32", TMP[16], PL[0][0], PL[0][1])
        e.V("v_cvt_pk_bf16_f32", TMP[17], PL[0][2], PL[0][3])
        e.ds_write(vKvDst, TMP[16:18])
        e.wait_all_lg()
        e.barrier()
        FR = [TMP[16 + 4 * i:20 + 4 * i] for i in range(10)]
        for T in range(3):
            for ks in range(2):
                e.ds_read(FR[T * 2 + ks], vL16, IMG + (T * 2 + ks) * KB)
        for ks in range(2):
            e.ds_read(FR[6 + ks], vZ01, ks * 64)
            e.ds_read(FR[8 + ks], vZ2, ks * 64)
        oa = lambda T, u: ACC[(T * 2 + u) * 4:(T * 2 + u) * 4 + 4]
        for T in (3, 4, 0, 1, 2):
            for u in range(2):
                e.mfma(oa(T, u), FR[2 * T], PQ0[u], 0)
        for T in (3, 4, 0, 1, 2):
            for u in range(2):
                e.mfma(oa(T, u), FR[2 * T + 1], PQ1[u], oa(T, u))
        e.S("s_add_u32", sA, sOo, OB[p])
        e.S("s_add_u32", sB, sOoh, OB[p])
        e.S("s_add_u32", sD, sOoh, OB[p] + 20 * KB)
        ops = []
        for u in range(2):
            for T in (3, 4):
                for h in range(2):
                    x = oa(T, u)[2 * h:2 * h + 2]
                    e.V("v_pk_add_f32", x, x, vEps, mods="op_sel_hi:[1,0]")
                for j in range(4):
                    e.V("v_rcp_f32", oa(T, u)[j], oa(T, u)[j])
        for u in range(2):
            for T in range(3):
                for h in range(2):
                    x = oa(T, u)[2 * h:2 * h + 2]
                    e.V("v_pk_mul_f32", x, x, oa(3 if T < 2 else 4, u)[2 * h:2 * h + 2])
            o4 = TMP[16 + 8 * u:20 + 8 * u]
            o2 = TMP[20 + 8 * u:22 + 8 * u]
            for j in range(4):
                e.V("v_cvt_pk_bf16_f32", o4[j], oa(0, u)[j], oa(1, u)[j])
            for h in range(2):
                e.V("v_cvt_pk_bf16_f32", o2[h], oa(2, u)[2 * h], oa(2, u)[2 * h + 1])
            ops.append(e.bstore(o4, vAx[u], WS, sA, 0, "sc1"))
            e.misc("s_mov_b32 exec_hi, 0")
            ops.append(e.bstore(o2, vOh, WS, sB if u == 0 else sD, 0, "sc1"))
            e.misc("s_mov_b32 exec_hi, -1")
        self.stamp("A3")
        def shadow():
            if p == 0:
                self.unpack(RES, RES[10:20])
                self.unpack(B2F, B2F[10:20])
        self.handoff(4 * p + 1, ops, shadow)

    def phase64(self, p, kind):
        e = self.e
        opt = self.opt
        nks = 10 if kind == "O" else 27
        name = "A4" if kind == "O" else "B2"
        acc = lambda T, u: ACC[(u * 5 + T) * 4:(u * 5 + T) * 4 + 4]
        if kind == "O":
            upto, pre = self.make_aloader(vAo, (sXr, OB[p]), nks, 5, opt.get("adist", 5))
            self.dma_paused = True
        else:
            upto, pre = self.make_aloader(vAh, (sHr, HB[p]), nks, 5, opt.get("adist", 5))
            self.dma_paused = False
        upto(opt.get("adist", 5) - 1)
        if kind == "C":
            self.dma_paused = False
            e.ds_read(TMP[50], vRF)
        i0 = self.seqstart[(name, p)]
        endp = self.seq[i0][0] + 10 * nks
        sst, sad = self.scratch(20, endp)
        self.hold = sst
        stop = i0 + 5 * nks

        def mf(t, W):
            ks, T = divmod(t, 5)
            for u in range(2):
                e.mfma(acc(T, u), W, a((ks * 2 + u) * 4, 4), acc(T, u) if ks else 0)
        self.run_pass(5 * nks, mf, pre, [], chunk=(12 if kind == "O" else opt.get("chunkC", 8)), stop_reads=stop)
        self.stamp(name)
        e.V("v_add_u32", TMP[0], sad, vXch)
        e.S("s_xor_b32", sA, sWave, 1)
        e.S("s_mul_i32", sA, sA, 5120)
        e.S("s_add_u32", sA, sA, sad)
        e.V("v_add_u32", TMP[1], sA, vL16)
        self.ring_barrier(self.rd)
        for T in range(5):
            e.ds_write(TMP[0], acc(T, 1), T * KB)
        e.wait_all_lg()
        e.barrier()
        PT = TMP[4:24]
        for T in range(5):
            e.ds_read(PT[4 * T:4 * T + 4], TMP[1], T * KB)
        own = ACC[0:20]
        if kind == "C":
            e.V("v_mul_f32", TMP[50], TMP[50], TMP[50])
        for h in range(10):
            x = own[2 * h:2 * h + 2]
            e.V("v_pk_add_f32", x, x, PT[2 * h:2 * h + 2])
            if kind == "O":
                e.V("v_pk_add_f32", x, x, RES[2 * h:2 * h + 2])
            else:
                e.V("v_pk_fma_f32", x, x, TMP[50:52], RES[2 * h:2 * h + 2], mods="op_sel_hi:[1,0,1]")
        PK = TMP[24:34]
        for a_ in range(2):
            for j in range(4):
                e.V("v_cvt_pk_bf16_f32", PK[4 * a_ + j], own[8 * a_ + j], own[8 * a_ + 4 + j])
        for h in range(2):
            e.V("v_cvt_pk_bf16_f32", PK[8 + h], own[16 + 2 * h], own[16 + 2 * h + 1])
        last = kind == "C" and p == 1
        if last:
            e.bstore(PK[0:4], vOut, OUT, 0, 0)
            e.bstore(PK[4:8], vOut, OUT, 0, 64)
            e.bstore(PK[8:10], vOut4, OUT, 0, 128)
            self.stamp("end")
            return
        xv = 2 * p + (1 if kind == "O" else 2)
        ops = []
        e.S("s_add_u32", sA, sOx, XB[xv])
        e.S("s_add_u32", sB, sOxh, XB[xv])
        e.S("s_add_u32", sD, sOst, STB[xv])
        ops.append(e.bstore(PK[0:4], vXs, WS, sA, 0, "sc1"))
        ops.append(e.bstore(PK[4:8], vXs, WS, sA, 1024, "sc1"))
        ops.append(e.bstore(PK[8:10], vXh, WS, sB, 0, "sc1"))
        sm, sq, t0 = TMP[36], TMP[37], TMP[38]
        e.V("v_mov_b32", sm, 0)
        e.V("v_mov_b32", sq, 0)
        for j in range(10):
            e.V("v_dot2c_f32_bf16", sm, PK[j], vOne)
            e.V("v_dot2c_f32_bf16", sq, PK[j], PK[j])
        e.V("v_permlane32_swap_b32", sm, sq)
        e.V("v_add_f32", sm, sm, sq)
        e.V("v_mov_b32", t0, sm)
        e.V("v_permlane16_swap_b32", sm, t0)
        e.V("v_add_f32", sm, sm, t0)
        ops.append(e.bstore(sm, vStW, WS, sD, 0, "sc1"))
        self.stamp(name + "epi")

        def shadow():
            self.unpack(RES, PK)
            if kind == "O":
                for h in range(10):
                    x = RES[2 * h:2 * h + 2]
                    e.V("v_pk_add_f32", x, x, B2F[2 * h:2 * h + 2])
        self.handoff(4 * p + (2 if kind == "O" else 4), ops, shadow)

    def phaseB1(self, p):
        e = self.e
        opt = self.opt
        xv = 2 * p + 1
        acc = lambda T, u: ACC[(T * 2 + u) * 4:(T * 2 + u) * 4 + 4]
        xf = lambda ks, u: a((ks * 2 + u) * 4, 4) if ks < 20 else XE[u]
        self.stats_loads(xv)
        upto, pre = self.make_aloader(vAx, (sXr, XB[xv]), 20, 4, opt.get("adist", 5))
        self.dma_paused = True
        upto(opt.get("adist", 5) - 1)
        stop = self.seqstart[("B2", p)]

        def mf(t, W):
            ks, T = divmod(t, 4)
            for u in range(2):
                e.mfma(acc(T, u), W, xf(ks, u), acc(T, u) if ks else 0)
        self.run_pass(84, mf, pre, [self.stats_gen(False)], stop_reads=stop)
        self.stamp("B1a")
        ops = []

        def epi(pairs, single):
            n = 0
            for u in range(2):
                sb = sD if u == 0 else sE
                e.S("s_add_u32", sb, sOh, HB[p] + u * 54 * KB); yield
                for a_ in pairs:
                    o = TMP[16 + 4 * (n % 4):20 + 4 * (n % 4)]
                    n += 1
                    for j in range(4):
                        x, y = acc(2 * a_, u)[j], acc(2 * a_ + 1, u)[j]
                        e.V("v_mul_f32_e64", x, x, f"|{x}|"); yield
                        e.V("v_mul_f32_e64", y, y, f"|{y}|"); yield
                        e.V("v_cvt_pk_bf16_f32", o[j], x, y); yield
                        e.V("v_pk_max_i16", o[j], o[j], 0); yield
                    ops.append(e.bstore(o, vHs, WS, sb, a_ * KB, "sc1")); yield
            if single:
                for u in range(2):
                    o = TMP[32 + 2 * u:34 + 2 * u]
                    for j in range(4):
                        x = acc(6, u)[j]
                        e.V("v_mul_f32_e64", x, x, f"|{x}|"); yield
                    for h in range(2):
                        e.V("v_cvt_pk_bf16_f32", o[h], acc(6, u)[2 * h], acc(6, u)[2 * h + 1]); yield
                        e.V("v_pk_max_i16", o[h], o[h], 0); yield
                skip = e.newlabel("noh")
                e.S("s_cmp_ge_u32", sC, 12)
                e.branch("s_cbranch_scc1", skip)
                e.cond_begin()
                for u in range(2):
                    o = TMP[32 + 2 * u:34 + 2 * u]
                    e.S("s_add_u32", sA, sOhh, HB[p] + u * 54 * KB)
                    ops.append(e.bstore(o, vHh, WS, sA, 0, "sc1"))
                e.cond_end()
                e.label(skip)
                yield

        def mf2(t, W):
            ks, T = divmod(t, 3)
            for u in range(2):
                e.mfma(acc(4 + T, u), W, xf(ks, u), acc(4 + T, u) if ks else 0)
        self.run_pass(63, mf2, None, [epi([0, 1], False)], stop_reads=stop)
        self.stamp("B1b")
        for _ in epi([2], True):
            pass
        self.stamp("B1epi")
        self.handoff(4 * p + 3, ops)

    def gen(self):
        e = self.e
        e.reset_state()
        self.cInvD = s(63)
        self.prologue()
        e.S("s_mov_b32", self.cInvD, lit(1.0 / D))
        self.stamp("entry")
        stop = self.opt.get("stop", 99)
        n = 0
        for p in range(2):
            for f in (lambda: self.phaseA(p), lambda: self.phase64(p, "O"), lambda: self.phaseB1(p), lambda: self.phase64(p, "C")):
                if n < stop:
                    f()
                n += 1
        if self.opt.get("stamps"):
            e.wait_all_vm()
            e.S("s_lshl_b32", sA, s(2), 2)
            e.S("s_add_u32", sA, sA, sWave)
            e.S("s_lshl_b32", sA, sA, 8)
            e.S("s_add_u32", sA, sA, STAMP)
            e.V("v_lshlrev_b32", TMP[1], 2, vLane)
            e.bstore(v(53), TMP[1], WS, sA)
        e.label("main_end")
        e.misc("s_endpgm")
```

```python
from asmgen import *
from layout import *

NWG_PREP = 544
BIG = 0x40000000


def mk_srd(e, d, ptr, nbytes):
    e.S("s_mov_b32", d[0], ptr[0])
    e.S("s_mov_b32", d[1], ptr[1])
    e.S("s_mov_b32", d[2], nbytes)
    e.S("s_mov_b32", d[3], "0x00020000")


def allreduce_g(e, x, t):
    e.V("v_mov_b32", t, x)
    e.V("v_permlane32_swap_b32", x, t)
    e.V("v_add_f32", x, x, t)
    e.V("v_mov_b32", t, x)
    e.V("v_permlane16_swap_b32", x, t)
    e.V("v_add_f32", x, x, t)


def gen_prep(e, code_label, code_bytes):
    e.reset_state()
    P = s(16, 16)
    px, pqkv, pwo, pw1, pb1, pw2 = P[0:2], P[2:4], P[4:6], P[8:10], P[10:12], P[12:14]
    pws = s(36, 2)
    SRC, WS, SB1 = s(8, 4), s(12, 4), s(40, 4)
    sJ, sT, sP, sC, sStride, sRow, sD0, sDS, sA, sB = [s(44 + i) for i in range(10)]
    sTmp = [s(56 + i) for i in range(8)]
    vLane, vN, vG, vL16, vCol, vReg, vLeft, vT0, vT1 = [v(1 + i) for i in range(9)]
    RAW = v(16, 40)
    PK = v(56, 20)
    EX = v(76, 4)
    vBias = v(80)
    vSum = v(81)

    end = "prep_end"
    e.S("s_cmp_ge_u32", s(2), NWG_PREP)
    e.branch("s_cbranch_scc1", end)
    e.sload(P, s(0, 2), 0)
    e.sload(pws, s(0, 2), 80)
    e.V("v_lshrrev_b32", vT0, 6, v(0))
    e.V("v_and_b32", vLane, 63, v(0))
    e.V("v_readfirstlane_b32", sJ, vT0)
    e.V("v_and_b32", vN, 15, vLane)
    e.V("v_lshrrev_b32", vG, 4, vLane)
    e.V("v_lshlrev_b32", vL16, 4, vLane)
    e.S("s_lshl_b32", sA, s(2), 2)
    e.S("s_add_u32", sJ, sJ, sA)
    mk_srd(e, WS, pws, WS_USED)
    mk_srd(e, SB1, pb1, F * 2)
    mk_srd(e, SRC, px, XSZ)

    e.S("s_cmp_ge_u32", sJ, 1664)
    e.branch("s_cbranch_scc1", "prep_x")
    e.S("s_cmp_ge_u32", sJ, 1184)
    e.branch("s_cbranch_scc1", "prep_wc")
    e.S("s_cmp_ge_u32", sJ, 1024)
    e.branch("s_cbranch_scc1", "prep_wo")
    e.S("s_cmp_ge_u32", sJ, 512)
    e.branch("s_cbranch_scc1", "prep_wb")

    def lane_terms(stride, lt_a, lt_b, lt_g):
        e.S("s_mov_b32", sA, 8 * stride)
        e.V("v_mad_u32_u24", vReg, vG, sA, vCol)
        if lt_g:
            e.S("s_mov_b32", sA, lt_g * stride)
            e.V("v_mad_u32_u24", vLeft, vG, sA, vCol)
        else:
            e.V("v_lshrrev_b32", vT0, 1, vG)
            e.V("v_and_b32", vT1, 1, vG)
            e.S("s_mov_b32", sA, lt_a * stride)
            e.V("v_mad_u32_u24", vLeft, vT0, sA, vCol)
            e.S("s_mov_b32", sA, lt_b * stride)
            e.V("v_mad_u32_u24", vLeft, vT1, sA, vLeft)

    def load_block(b, vaddr, srow, rconst, stride):
        for i in range(8):
            t = sTmp[i]
            e.S("s_add_u32", t, srow, (rconst + i) * stride)
            e.bload(RAW[b * 8 + i], vaddr, SRC, t, 0, w="ushort")

    def pack_block(b):
        for i in range(4):
            e.V("v_lshl_or_b32", PK[b * 4 + i], RAW[b * 8 + 2 * i + 1], 16, RAW[b * 8 + 2 * i])

    def colsum_extra(with_bias):
        e.S("s_mov_b32", sA, "0x3f803f80")
        e.V("v_mov_b32", vT1, sA)
        e.V("v_mov_b32", vSum, 0)
        for i in range(20):
            e.V("v_dot2c_f32_bf16", vSum, PK[i], vT1)
        allreduce_g(e, vSum, vT0)
        e.V("v_sub_f32", vSum, 0, vSum)
        e.V("v_cvt_pk_bf16_f32", vT0, vSum, vSum)
        e.V("v_lshlrev_b32", vT0, 16, vT0)
        e.V("v_sub_f32", vT0, vSum, vT0)
        e.V("v_cvt_pk_bf16_f32", EX[0], vSum, vT0)
        e.V("v_and_b32", EX[1], "0xffff", EX[0])
        e.V("v_mov_b32", EX[3], 0)
        if with_bias:
            e.V("v_lshl_or_b32", EX[2], vBias, 16, vBias)
            e.S("s_cmp_eq_u32", sP, 0)
            e.S("s_cselect_b32", sA, -1, 0)
            e.V("v_and_b32", EX[2], sA, EX[2])
        else:
            e.V("v_mov_b32", EX[2], 0)
        e.S("s_mul_i32", sA, sDS, 20)
        e.S("s_add_u32", sA, sA, sD0)
        e.S("s_lshl_b32", sB, sP, 8)
        e.S("s_add_u32", sA, sA, sB)
        e.S("s_mov_b64", EXEC, "0xffff")
        e.bstore(EX, vL16, WS, sA)

    def linear_stores():
        for b in range(5):
            pack_block(b)
            if b < 4:
                e.S("s_lshl_b32", sA, sP, 2)
                e.S("s_add_u32", sA, sA, b)
            else:
                e.S("s_add_u32", sA, sP, 16)
            e.S("s_mul_i32", sA, sA, sDS)
            e.S("s_add_u32", sA, sA, sD0)
            e.bstore(PK[b * 4:b * 4 + 4], vL16, WS, sA)

    def xorder_loads(stride):
        e.S("s_mul_i32", sRow, sP, 160 * stride)
        lane_terms(stride, 80, 8, 0)
        for b in range(4):
            load_block(b, vReg, sRow, 80 * (b >> 1) + 32 * (b & 1), stride)
        load_block(4, vLeft, sRow, 64, stride)

    mk_srd(e, SRC, pqkv, D * 3 * D * 2)
    e.S("s_and_b32", sT, sJ, 7)
    e.S("s_bfe_u32", sP, sJ, (2 << 16) | 3)
    e.S("s_lshr_b32", sC, sJ, 5)
    e.S("s_mov_b32", sA, 640)
    for t, val in ((1, 660), (2, 656), (3, 1280), (4, 1300), (5, 0), (6, 1), (7, 32)):
        e.S("s_cmp_eq_u32", sT, t)
        e.S("s_cselect_b32", sA, val, sA)
    e.S("s_mul_i32", sB, sC, 40)
    e.S("s_add_u32", sA, sA, sB)
    e.V("v_add_u32", vCol, sA, vN)
    e.V("v_add_u32", vT0, vCol, vN)
    e.S("s_sub_u32", sB, sT, 5)
    e.S("s_cmp_lt_u32", sB, 2)
    e.S("s_cselect_b64", VCC, -1, 0)
    e.V("v_cndmask_b32", vCol, vCol, vT0, VCC)
    e.V("v_lshrrev_b32", vT0, 3, vN)
    e.V("v_mul_u32_u24", vT0, 640, vT0)
    e.V("v_bfe_u32", vT1, vN, 2, 1)
    e.V("v_mul_u32_u24", vT1, 20, vT1)
    e.V("v_add3_u32", vT0, vT0, vT1, sA)
    e.V("v_and_b32", vT1, 3, vN)
    e.V("v_add_u32", vT0, vT0, vT1)
    e.S("s_cmp_eq_u32", sT, 2)
    e.S("s_cselect_b64", VCC, -1, 0)
    e.V("v_cndmask_b32", vCol, vCol, vT0, VCC)
    e.V("v_lshlrev_b32", vCol, 1, vCol)
    e.S("s_cmp_eq_u32", sT, 7)
    e.S("s_cselect_b32", sB, 8, 16)
    e.V("v_cmp_le_u32", VCC, sB, vN)
    e.V("v_mov_b32", vT0, BIG)
    e.V("v_cndmask_b32", vCol, vCol, vT0, VCC)
    xorder_loads(3840)
    e.S("s_cmp_lt_u32", sT, 5)
    e.S("s_cselect_b32", sDS, 5, 3)
    e.S("s_cselect_b32", sA, 0, 100)
    e.S("s_add_u32", sA, sA, sT)
    e.S("s_mul_i32", sB, sC, NA)
    e.S("s_add_u32", sA, sA, sB)
    e.S("s_lshl_b32", sA, sA, 10)
    e.S("s_add_u32", sD0, sA, WA)
    e.S("s_lshl_b32", sDS, sDS, 10)
    linear_stores()
    colsum_extra(False)
    e.misc("s_endpgm")

    e.reset_state()
    e.label("prep_wb")
    mk_srd(e, SRC, pw1, D * F * 2)
    e.S("s_sub_u32", sJ, sJ, 512)
    e.S("s_and_b32", sT, sJ, 7)
    e.S("s_bfe_u32", sP, sJ, (2 << 16) | 3)
    e.S("s_lshr_b32", sC, sJ, 5)
    e.S("s_cmp_eq_u32", sT, 7)
    e.branch("s_cbranch_scc1", "prep_flags")
    e.S("s_mul_i32", sA, sC, 112)
    e.S("s_max_u32", sB, sC, 12)
    e.S("s_sub_u32", sB, sB, 12)
    e.S("s_lshl_b32", sB, sB, 4)
    e.S("s_sub_u32", sA, sA, sB)
    e.S("s_lshr_b32", sB, sT, 1)
    e.S("s_lshl_b32", sB, sB, 5)
    e.S("s_add_u32", sA, sA, sB)
    e.S("s_and_b32", sB, sT, 1)
    e.S("s_add_u32", sA, sA, sB)
    e.V("v_add_u32", vCol, sA, vN)
    e.V("v_add_u32", vT0, vCol, vN)
    e.S("s_cmp_lt_u32", sT, 6)
    e.S("s_cselect_b64", VCC, -1, 0)
    e.V("v_cndmask_b32", vCol, vCol, vT0, VCC)
    e.V("v_lshlrev_b32", vCol, 1, vCol)
    e.S("s_lshl_b32", sA, sT, 4)
    e.S("s_add_u32", sA, sA, sC)
    e.S("s_cmp_ge_u32", sA, 6 * 16 + 12)
    e.S("s_cselect_b64", VCC, -1, 0)
    e.V("v_mov_b32", vT0, BIG)
    e.V("v_cndmask_b32", vCol, vCol, vT0, VCC)
    e.bload(vBias, vCol, SB1, 0, 0, w="ushort")
    xorder_loads(3456)
    e.S("s_cmp_lt_u32", sT, 4)
    e.S("s_cselect_b32", sDS, 4, 3)
    e.S("s_cselect_b32", sA, 0, 80)
    e.S("s_add_u32", sA, sA, sT)
    e.S("s_mul_i32", sB, sC, NB)
    e.S("s_add_u32", sA, sA, sB)
    e.S("s_lshl_b32", sA, sA, 10)
    e.S("s_add_u32", sD0, sA, WB)
    e.S("s_lshl_b32", sDS, sDS, 10)
    linear_stores()
    colsum_extra(True)
    e.misc("s_endpgm")

    e.reset_state()
    e.label("prep_flags")
    e.S("s_lshr_b32", sA, sJ, 3)
    e.S("s_lshl_b32", sA, sA, 8)
    e.V("v_lshlrev_b32", vT0, 2, vLane)
    e.V("v_mov_b32", vT1, 0)
    e.bstore(vT1, vT0, WS, sA)
    e.misc("s_endpgm")

    def ocols(scg):
        e.S("s_mul_i32", sA, scg, 80)
        e.S("s_lshr_b32", sB, sT, 1)
        e.S("s_lshl_b32", sB, sB, 5)
        e.S("s_add_u32", sA, sA, sB)
        e.S("s_and_b32", sB, sT, 1)
        e.S("s_add_u32", sA, sA, sB)
        e.V("v_add_u32", vCol, sA, vN)
        e.V("v_add_u32", vT0, vCol, vN)
        e.S("s_cmp_lt_u32", sT, 4)
        e.S("s_cselect_b64", VCC, -1, 0)
        e.V("v_cndmask_b32", vCol, vCol, vT0, VCC)
        e.V("v_lshlrev_b32", vCol, 1, vCol)

    def div5(dstq, dstr, src):
        e.S("s_mul_i32", dstq, src, 52429)
        e.S("s_lshr_b32", dstq, dstq, 18)
        e.S("s_mul_i32", sA, dstq, 5)
        e.S("s_sub_u32", dstr, src, sA)

    def split_store(b, sks, half):
        pack_block(b)
        e.S("s_mul_i32", sA, sks, 10240)
        e.S("s_add_u32", sA, sA, sD0)
        e.S("s_cmp_ge_u32", sks, half)
        e.S("s_cselect_b32", sB, half * 10240 - 1024, 0)
        e.S("s_sub_u32", sA, sA, sB)
        e.bstore(PK[b * 4:b * 4 + 4], vL16, WS, sA)

    e.reset_state()
    e.label("prep_wo")
    mk_srd(e, SRC, pwo, D * D * 2)
    e.S("s_sub_u32", sJ, sJ, 1024)
    div5(sC, sT, sJ)
    e.S("s_and_b32", sP, sC, 3)
    e.S("s_lshr_b32", sC, sC, 2)
    ocols(sC)
    e.S("s_mul_i32", sRow, sP, 160 * 1280)
    lane_terms(1280, 0, 0, 40)
    for b in range(4):
        load_block(b, vReg, sRow, 40 * b, 1280)
    load_block(4, vLeft, sRow, 32, 1280)
    e.S("s_mul_i32", sD0, sC, NO * KB)
    e.S("s_lshl_b32", sA, sT, 11)
    e.S("s_add_u32", sD0, sD0, sA)
    e.S("s_add_u32", sD0, sD0, WO)
    for b in range(5):
        if b < 4:
            e.S("s_lshl_b32", sDS, sP, 2)
            e.S("s_add_u32", sDS, sDS, b)
        else:
            e.S("s_add_u32", sDS, sP, 16)
        split_store(b, sDS, 10)
    e.misc("s_endpgm")

    e.reset_state()
    e.label("prep_wc")
    mk_srd(e, SRC, pw2, F * D * 2)
    e.S("s_sub_u32", sJ, sJ, 1184)
    div5(sC, sT, sJ)
    e.S("s_mul_i32", sB, sC, 43691)
    e.S("s_lshr_b32", sB, sB, 19)
    e.S("s_mul_i32", sA, sB, 12)
    e.S("s_sub_u32", sP, sC, sA)
    e.S("s_mov_b32", sC, sB)
    ocols(sC)
    lane_terms(1280, 112, 8, 0)
    for b in range(4):
        e.S("s_lshl_b32", sDS, sP, 2)
        e.S("s_add_u32", sDS, sDS, b)
        e.S("s_mul_i32", sA, sDS, 43691)
        e.S("s_lshr_b32", sA, sA, 17)
        e.S("s_mul_i32", sB, sA, 3)
        e.S("s_sub_u32", sB, sDS, sB)
        e.S("s_lshl_b32", sRow, sB, 5)
        e.S("s_mul_i32", sB, sA, 112)
        e.S("s_add_u32", sRow, sRow, sB)
        e.S("s_max_u32", sB, sA, 12)
        e.S("s_sub_u32", sB, sB, 12)
        e.S("s_lshl_b32", sB, sB, 4)
        e.S("s_sub_u32", sRow, sRow, sB)
        e.S("s_mul_i32", sRow, sRow, 1280)
        load_block(b, vReg, sRow, 0, 1280)
    e.S("s_and_b32", sA, sP, -2)
    e.S("s_mul_i32", sRow, sA, 112 * 1280)
    load_block(4, vLeft, sRow, 96, 1280)
    e.S("s_mul_i32", sD0, sC, NC * KB)
    e.S("s_lshl_b32", sA, sT, 11)
    e.S("s_add_u32", sD0, sD0, sA)
    e.S("s_add_u32", sD0, sD0, WC)
    for b in range(4):
        e.S("s_lshl_b32", sDS, sP, 2)
        e.S("s_add_u32", sDS, sDS, b)
        split_store(b, sDS, 27)
    e.S("s_bitcmp1_b32", sP, 0)
    e.branch("s_cbranch_scc1", end)
    e.S("s_lshr_b32", sDS, sP, 1)
    e.S("s_add_u32", sDS, sDS, 48)
    split_store(4, sDS, 27)
    e.misc("s_endpgm")

    e.reset_state()
    e.label("prep_x")
    e.S("s_sub_u32", sJ, sJ, 1664)
    e.S("s_and_b32", sP, sJ, 3)
    e.S("s_lshr_b32", sC, sJ, 2)
    e.V("v_mul_u32_u24", vCol, 1280, vN)
    e.V("v_lshl_add_u32", vReg, vG, 4, vCol)
    e.V("v_lshrrev_b32", vT0, 1, vG)
    e.V("v_mul_u32_u24", vT0, 160, vT0)
    e.V("v_and_b32", vT1, 1, vG)
    e.V("v_lshl_add_u32", vT0, vT1, 4, vT0)
    e.V("v_add_u32", vLeft, vT0, vCol)
    e.S("s_mul_i32", sRow, sC, 16 * 1280)
    e.S("s_mul_i32", sA, sP, 320)
    e.S("s_add_u32", sRow, sRow, sA)
    for b in range(4):
        e.bload(PK[b * 4:b * 4 + 4], vReg, SRC, sRow, (80 * (b >> 1) + 32 * (b & 1)) * 2)
    e.bload(PK[16:20], vLeft, SRC, sRow, 128)
    if code_label:
        e.S("s_getpc_b64", s(60, 2))
        e.label("prep_pc")
        e.S("s_add_u32", s(60), s(60), f"{code_label}-prep_pc")
        e.S("s_addc_u32", s(61), s(61), 0)
        e.S("s_lshr_b32", sA, sJ, 5)
        e.S("s_lshl_b32", sA, sA, 2)
        e.S("s_add_u32", sA, sA, sP)
        nrep = (code_bytes + 65535) // 65536
        for rep in range(nrep):
            e.S("s_lshl_b32", sB, sA, 10)
            e.S("s_add_u32", sB, sB, rep * 65536)
            e.S("s_min_u32", sB, sB, code_bytes - 1024)
            e.V("v_add_u32", vT0, sB, vL16)
            e.gload(RAW[4 * rep:4 * rep + 4], vT0, s(60, 2))
    e.S("s_mul_i32", sD0, sC, 20 * KB)
    e.S("s_add_u32", sD0, sD0, XB[0])
    e.S("s_lshl_b32", sA, sP, 12)
    e.S("s_add_u32", sA, sA, sD0)
    for b in range(4):
        e.bstore(PK[b * 4:b * 4 + 4], vL16, WS, sA, b * 1024)
    e.S("s_lshl_b32", sA, sP, 10)
    e.S("s_add_u32", sA, sA, sD0)
    e.S("s_add_u32", sA, sA, 16 * KB)
    e.bstore(PK[16:20], vL16, WS, sA)
    s0, q0, s1, q1, sl, ql, one = [v(100 + i) for i in range(7)]
    e.S("s_mov_b32", sA, "0x3f803f80")
    e.V("v_mov_b32", one, sA)
    for r_ in (s0, q0, s1, q1, sl, ql):
        e.V("v_mov_b32", r_, 0)
    for i in range(8):
        e.V("v_dot2c_f32_bf16", s0, PK[i], one)
        e.V("v_dot2c_f32_bf16", q0, PK[i], PK[i])
        e.V("v_dot2c_f32_bf16", s1, PK[8 + i], one)
        e.V("v_dot2c_f32_bf16", q1, PK[8 + i], PK[8 + i])
    for i in range(4):
        e.V("v_dot2c_f32_bf16", sl, PK[16 + i], one)
        e.V("v_dot2c_f32_bf16", ql, PK[16 + i], PK[16 + i])
    e.V("v_cmp_gt_u32", VCC, 2, vG)
    e.V("v_cndmask_b32", vT0, 0, sl, VCC)
    e.V("v_add_f32", s0, s0, vT0)
    e.V("v_cndmask_b32", vT0, 0, ql, VCC)
    e.V("v_add_f32", q0, q0, vT0)
    e.V("v_cndmask_b32", vT0, sl, 0, VCC)
    e.V("v_add_f32", s1, s1, vT0)
    e.V("v_cndmask_b32", vT0, ql, 0, VCC)
    e.V("v_add_f32", q1, q1, vT0)
    for r_ in (s0, q0, s1, q1):
        allreduce_g(e, r_, vT0)
    e.V("v_cndmask_b32", s0, s1, s0, VCC)
    e.V("v_cndmask_b32", q0, q1, q0, VCC)
    e.V("v_and_b32", vT1, 1, vG)
    e.V("v_cmp_eq_u32", VCC, 0, vT1)
    e.V("v_cndmask_b32", s0, q0, s0, VCC)
    e.V("v_lshlrev_b32", vT0, 3, vN)
    e.V("v_lshl_add_u32", vT0, vT1, 2, vT0)
    e.V("v_lshrrev_b32", vT1, 1, vG)
    e.V("v_lshl_add_u32", vT0, vT1, 10, vT0)
    e.S("s_lshr_b32", sA, sC, 3)
    e.S("s_lshl_b32", sA, sA, 13)
    e.S("s_and_b32", sB, sC, 7)
    e.S("s_lshl_b32", sB, sB, 7)
    e.S("s_add_u32", sA, sA, sB)
    e.S("s_lshl_b32", sB, sP, 11)
    e.S("s_add_u32", sA, sA, sB)
    e.S("s_add_u32", sA, sA, STB[0])
    e.bstore(s0, vT0, WS, sA)
    e.label(end)
    e.misc("s_endpgm")
```

```python
S, D, F, H = 2048, 640, 1728, 32
KB = 1024

FLG = 0
FLG_RL, FLG_RG, FLG_C = 0, 4096, 8192
FLG_BYTES = 16384
NA, NO, NB, NC = 168, 104, 152, 272
WA = 65536
WO = WA + 16 * NA * KB
WB = WO + 8 * NO * KB
WC = WB + 16 * NB * KB
XSZ = S * D * 2
X0 = WC + 8 * NC * KB
XB = [X0 + i * XSZ for i in range(4)]
STSZ = 16 * 8192
ST0 = X0 + 4 * XSZ
STB = [ST0 + i * STSZ for i in range(4)]
O0 = ST0 + 4 * STSZ
OB = [O0 + i * XSZ for i in range(2)]
HSZ = S * F * 2
H0 = O0 + 2 * XSZ
HB = [H0 + i * HSZ for i in range(2)]
KVSZ = 3584
KV0 = H0 + 2 * HSZ
KVB = [KV0 + i * 256 * KVSZ for i in range(2)]
STAMP = KV0 + 2 * 256 * KVSZ
STAMPSZ = 1024 * 256
WS_USED = STAMP + STAMPSZ


def f0(c):
    return 112 * c - 16 * max(0, c - 12)


def xrow(ks, g, i):
    if ks < 16:
        return 80 * (ks >> 1) + 32 * (ks & 1) + 8 * g + i
    q = ks - 16
    return 160 * q + 64 + 80 * (g >> 1) + 8 * (g & 1) + i


def orow(ks, g, i):
    if ks < 16:
        return 40 * ks + 8 * g + i
    q = ks - 16
    return 160 * q + 32 + 40 * g + i


def hrow(ks, g, i):
    if ks < 48:
        return f0(ks // 3) + 32 * (ks % 3) + 8 * g + i
    q = ks - 48
    return 224 * q + 96 + 112 * (g >> 1) + 8 * (g & 1) + i


def acol(c, T, n):
    if T == 0:
        return 640 + 40 * c + n
    if T == 1:
        return 640 + 40 * c + 20 + n
    if T == 2:
        return 40 * c + (640 if n < 8 else 1280) + 16 + ((n >> 2) & 1) * 20 + (n & 3)
    if T == 3:
        return 1280 + 40 * c + n
    if T == 4:
        return 1280 + 40 * c + 20 + n
    if T in (5, 6):
        return 40 * c + 2 * n + (T - 5)
    return 40 * c + 32 + n if n < 8 else None


def bcol(c, T, n):
    if T < 6:
        return f0(c) + 32 * (T >> 1) + (T & 1) + 2 * n
    return f0(c) + 96 + n if c < 12 else None


def ocol(cg, T, n):
    if T < 4:
        return 80 * cg + 32 * (T >> 1) + (T & 1) + 2 * n
    return 80 * cg + 64 + n


def ablk(ks, T):
    return ks * 5 + T if T < 5 else 105 + ks * 3 + (T - 5)


def bblk(ks, T):
    return ks * 4 + T if T < 4 else 84 + ks * 3 + (T - 4)


def oblk(ks, T):
    return 2 * (5 * (ks % 10) + T) + ks // 10


def cblk(ks, T):
    return 2 * (5 * (ks % 27) + T) + ks // 27


if __name__ == "__main__":
    print(hex(WA), hex(WO), hex(WB), hex(WC), hex(X0), hex(ST0), hex(O0), hex(H0), hex(KV0), hex(STAMP), WS_USED)
    assert sorted(xrow(k, g, i) for k in range(20) for g in range(4) for i in range(8)) == list(range(640))
    assert sorted(orow(k, g, i) for k in range(20) for g in range(4) for i in range(8)) == list(range(640))
    assert sorted(hrow(k, g, i) for k in range(54) for g in range(4) for i in range(8)) == list(range(1728))
    assert sorted(x for c in range(16) for T in range(8) for n in range(16) for x in [acol(c, T, n)] if x is not None) == list(range(1920))
    assert sorted(x for c in range(16) for T in range(7) for n in range(16) for x in [bcol(c, T, n)] if x is not None) == list(range(1728))
    assert sorted(ocol(c, T, n) for c in range(8) for T in range(5) for n in range(16)) == list(range(640))
    print("ok")
```

```python
import re


class R:
    __slots__ = ("k", "i", "n")

    def __init__(self, k, i, n=1):
        self.k, self.i, self.n = k, i, n

    def __str__(self):
        if self.k in ("vcc", "exec", "m0", "scc"):
            return self.k
        if self.n == 1:
            return f"{self.k}{self.i}"
        return f"{self.k}[{self.i}:{self.i + self.n - 1}]"

    __repr__ = __str__

    def regs(self):
        if self.k in ("vcc", "exec", "m0", "scc"):
            return [(self.k, 0)]
        return [(self.k, self.i + j) for j in range(self.n)]

    def __getitem__(self, j):
        if isinstance(j, slice):
            a = j.start or 0
            b = j.stop if j.stop is not None else self.n
            assert 0 <= a < b <= self.n
            return R(self.k, self.i + a, b - a)
        assert 0 <= j < self.n, (self, j)
        return R(self.k, self.i + j, 1)


def v(i, n=1):
    assert 0 <= i and i + n <= 256, (i, n)
    return R("v", i, n)


def a(i, n=1):
    assert 0 <= i and i + n <= 256, (i, n)
    return R("a", i, n)


def s(i, n=1):
    assert 0 <= i and i + n <= 102, (i, n)
    return R("s", i, n)


VCC = R("vcc", 0, 2)
EXEC = R("exec", 0, 2)
M0 = R("m0", 0)


class Neg:
    def __init__(self, r):
        self.r = r

    def __str__(self):
        return f"-{self.r}"

    def regs(self):
        return self.r.regs()


def f2u(x):
    import struct
    return struct.unpack("<I", struct.pack("<f", x))[0]


def lit(x):
    return f"0x{f2u(x):08x}"


TRANS = ("v_exp_f32", "v_log_f32", "v_rcp_f32", "v_rsq_f32", "v_sqrt_f32", "v_sin_f32", "v_cos_f32")
RMW = ("v_fmac_f32", "v_dot2c_f32_bf16", "v_writelane_b32")


class Op:
    __slots__ = ("kind", "dst", "maybe", "tag", "done")

    def __init__(self, kind, dst, maybe, tag=None):
        self.kind, self.dst, self.maybe, self.tag, self.done = kind, set(dst), maybe, tag, False


class Emitter:
    def __init__(self):
        self.lines = []
        self.pos = 0
        self.vm = []
        self.lg = []
        self.smem = []
        self.lastw = {}
        self.lastc = {}
        self.lastst = {}
        self.bg = None
        self.cond = 0
        self.regions = []
        self.nregion = 0
        self._cstack = []
        self.nops = 0
        self.ninst = 0
        self.stats = {}
        self.lab = 0

    def raw(self, t):
        self.lines.append(t)

    def comment(self, t):
        self.lines.append("; " + t)

    def newlabel(self, p="L"):
        self.lab += 1
        return f"{p}_{self.lab}"

    def label(self, l):
        self.lines.append(l + ":")

    def _put(self, text, states=1):
        self.lines.append("  " + text)
        self.pos += states
        self.ninst += 1
        k = text.split()[0]
        self.stats[k] = self.stats.get(k, 0) + 1

    def nop(self, n):
        while n > 0:
            k = min(n, 16)
            self._put(f"s_nop {k - 1}", k)
            self.nops += 1
            n -= k

    def _cnt_after(self, q, op):
        i = q.index(op)
        act = set(self.regions)
        return sum(1 for o in q[i + 1:] if (not o.maybe) or o.maybe in act), i

    def wait_ops(self, ops):
        vmn = lgn = None
        vi = li = -1
        for op in ops:
            if op is None or op.done:
                continue
            if op.kind == "vm":
                n, i = self._cnt_after(self.vm, op)
                if i > vi:
                    vi, vmn = i, n
            elif op.kind == "lg":
                n, i = self._cnt_after(self.lg, op)
                if self.smem:
                    n, i = 0, len(self.lg) - 1
                if i > li:
                    li, lgn = i, n
            elif op.kind == "sm":
                li, lgn = len(self.lg) - 1, 0
        parts = []
        if vmn is not None:
            if vmn <= 63:
                parts.append(f"vmcnt({vmn})")
            for o in self.vm[:vi + 1]:
                o.done = True
            self.vm = self.vm[vi + 1:]
        if lgn is not None:
            lgn = min(lgn, 15)
            parts.append(f"lgkmcnt({lgn})")
            for o in self.lg[:li + 1]:
                o.done = True
            self.lg = self.lg[li + 1:]
            if lgn == 0:
                for o in self.smem + self.lg:
                    o.done = True
                self.smem = []
                self.lg = []
        if parts:
            self._put("s_waitcnt " + " ".join(parts))

    def wait_all_lg(self):
        if self.lg or self.smem:
            self.wait_ops(self.lg[-1:] + self.smem[-1:])

    def wait_all_vm(self):
        if self.vm:
            self._put("s_waitcnt vmcnt(0)")
            for o in self.vm:
                o.done = True
            self.vm = []

    def _pending(self, regs):
        regs = set(regs)
        out = []
        for q in (self.vm, self.lg, self.smem):
            for o in q:
                if o.dst & regs:
                    out.append(o)
        return out

    def _need(self, cls, rd, wr, cregs=(), abregs=(), exactc=False, op=""):
        need = 0

        def req(p, n):
            nonlocal need
            d = self.pos - p - 1
            if n - d > need:
                need = n - d

        for r in rd:
            w = self.lastw.get(r)
            if not w:
                continue
            p, c = w
            if c in ("valu", "trans", "dot") and r[0] in "va":
                if cls == "mfma":
                    req(p, 2 if c != "dot" else 3)
                if cls in ("permlane", "dpp"):
                    req(p, 2)
                if cls == "readlane":
                    req(p, 1)
                if c == "trans" and cls in ("valu", "dot", "permlane", "dpp", "readlane", "vmem", "ds"):
                    req(p, 1)
                if c == "dot" and not (cls == "dot" and r in wr):
                    req(p, 3)
            if c == "mfma":
                if cls == "mfma":
                    if r in abregs:
                        req(p, 8)
                    elif r in cregs:
                        req(p, 0 if exactc else 6)
                else:
                    req(p, 8)
            if c == "valu_s":
                if cls in ("valu", "trans", "dot", "dpp", "permlane", "mfma"):
                    req(p, 2)
                if cls == "readlane":
                    req(p, 4)
                if cls == "vmem":
                    req(p, 5)
            if c == "salu" and r[0] == "m0" and cls == "vmem":
                req(p, 1)
        for r in wr:
            w = self.lastw.get(r)
            if w and w[1] == "mfma" and cls != "mfma":
                req(w[0], 8)
            if w and w[1] == "mfma" and cls == "mfma" and r not in cregs:
                req(w[0], 8)
            if w and w[1] == "dot" and cls != "dot":
                req(w[0], 3)
            if cls in ("valu", "trans", "dot", "dpp", "permlane") and r in self.lastc:
                req(self.lastc[r], 3)
            if r in self.lastst and cls != "mfma":
                req(self.lastst[r], 2)
        return need

    def _regs(self, ops):
        out = []
        for o in ops:
            if isinstance(o, (R, Neg)):
                out += o.regs()
        return out

    def _issue(self, text, cls, rd, wr, wcls=None, **kw):
        pend = self._pending(list(rd) + list(wr))
        if pend:
            self.wait_ops(pend)
        n = self._need(cls, rd, wr, **kw)
        if n > 0:
            self.nop(n)
        p = self.pos
        self._put(text)
        for r in wr:
            c = wcls or cls
            if c in ("permlane", "dpp", "readlane"):
                c = "valu"
            if c in ("valu", "trans", "dot") and r[0] in ("s", "vcc", "exec"):
                c = "valu_s"
            self.lastw[r] = (p, c)
        return p

    def V(self, op, *ops, mods=""):
        base = op.replace("_e64", "").replace("_e32", "")
        dst = ops[0]
        wr = self._regs([dst])
        rd = self._regs(ops[1:])
        cls = "valu"
        if base in TRANS:
            cls = "trans"
        if base.startswith("v_dot2"):
            cls = "dot"
        if base in RMW:
            rd = rd + wr
        if base.startswith("v_permlane"):
            cls = "permlane"
            rd = self._regs(ops)
            wr = self._regs(ops)
        if base in ("v_readfirstlane_b32", "v_readlane_b32"):
            cls = "readlane"
        if "dpp" in op or "row_" in mods or "quad_perm" in mods:
            cls = "dpp"
        if base in ("v_add_co_u32", "v_addc_co_u32", "v_sub_co_u32"):
            wr = self._regs(ops[:2])
            rd = self._regs(ops[2:])
        text = f"{op} " + ", ".join(str(o) for o in ops) + (" " + mods if mods else "")
        self._issue(text, cls, rd, wr)
        if self.bg and not self.cond:
            f, self.bg = self.bg, None
            f()
            self.bg = f

    def S(self, op, *ops):
        if op.startswith("s_cmp") or op.startswith("s_bitcmp"):
            wr, rd = [], self._regs(ops)
        else:
            wr, rd = self._regs(ops[:1]), self._regs(ops[1:])
        if "saveexec" in op:
            wr = wr + [("exec", 0)]
        text = f"{op} " + ", ".join(str(o) for o in ops)
        self._issue(text, "salu", rd, wr)

    def mfma(self, d, x, y, c):
        ab = self._regs([x, y])
        cr = self._regs([c])
        exact = isinstance(c, R) and c.k == d.k and c.i == d.i and c.n == d.n
        text = f"v_mfma_f32_16x16x32_bf16 {d}, {x}, {y}, {c}"
        p = self._issue(text, "mfma", ab + cr, d.regs(), cregs=set(cr), abregs=set(ab), exactc=exact)
        for r in cr:
            self.lastc[r] = p

    def ds_read(self, d, addr, off=0, w=None):
        w = w or {1: "b32", 2: "b64", 4: "b128"}[d.n]
        assert 0 <= off < 65536, off
        text = f"ds_read_{w} {d}, {addr}" + (f" offset:{off}" if off else "")
        self._issue(text, "ds", addr.regs(), d.regs(), wcls="load")
        o = Op("lg", d.regs(), self.cur_region())
        self.lg.append(o)
        return o

    def ds_write(self, addr, d, off=0):
        w = {1: "b32", 2: "b64", 4: "b128"}[d.n]
        assert 0 <= off < 65536, off
        text = f"ds_write_{w} {addr}, {d}" + (f" offset:{off}" if off else "")
        self._issue(text, "ds", addr.regs() + d.regs(), [])
        o = Op("lg", [], self.cur_region())
        self.lg.append(o)
        return o

    def _so(self, so):
        return self._regs([so]) if isinstance(so, R) else []

    def bload(self, d, voff, srd, so=0, off=0, mods="", w=None):
        w = w or {1: "dword", 2: "dwordx2", 3: "dwordx3", 4: "dwordx4"}[d.n]
        assert 0 <= off < 4096, off
        text = f"buffer_load_{w} {d}, {voff}, {srd}, {so} offen" + (f" offset:{off}" if off else "") + (" " + mods if mods else "")
        self._issue(text, "vmem", voff.regs() + srd.regs() + self._so(so), d.regs(), wcls="load")
        o = Op("vm", d.regs(), self.cur_region())
        self.vm.append(o)
        return o

    def touch(self, d, voff, srd, so=0, off=0, mods=""):
        text = f"buffer_load_dword {d}, {voff}, {srd}, {so} offen" + (f" offset:{off}" if off else "") + (" " + mods if mods else "")
        self._issue(text, "vmem", voff.regs() + srd.regs() + self._so(so), [])
        o = Op("vm", [], self.cur_region())
        self.vm.append(o)
        return o

    def dma(self, voff, srd, so=0, off=0, mods=""):
        assert 0 <= off < 4096, off
        text = f"buffer_load_dwordx4 {voff}, {srd}, {so} offen" + (f" offset:{off}" if off else "") + (" " + mods if mods else "") + " lds"
        self._issue(text, "vmem", voff.regs() + srd.regs() + self._so(so) + [("m0", 0)], [])
        o = Op("vm", [], self.cur_region())
        self.vm.append(o)
        return o

    def bstore(self, d, voff, srd, so=0, off=0, mods="", w=None):
        w = w or {1: "dword", 2: "dwordx2", 3: "dwordx3", 4: "dwordx4"}[d.n]
        assert 0 <= off < 4096, off
        text = f"buffer_store_{w} {d}, {voff}, {srd}, {so} offen" + (f" offset:{off}" if off else "") + (" " + mods if mods else "")
        p = self._issue(text, "vmem", d.regs() + voff.regs() + srd.regs() + self._so(so), [])
        if d.n >= 3:
            for r in d.regs():
                self.lastst[r] = p
        o = Op("vm", [], self.cur_region())
        self.vm.append(o)
        return o

    def gload(self, d, voff, sbase, off=0, mods=""):
        w = {1: "dword", 2: "dwordx2", 4: "dwordx4"}[d.n]
        text = f"global_load_{w} {d}, {voff}, {sbase}" + (f" offset:{off}" if off else "") + (" " + mods if mods else "")
        self._issue(text, "vmem", voff.regs() + sbase.regs(), d.regs(), wcls="load")
        o = Op("vm", d.regs(), self.cur_region())
        self.vm.append(o)
        return o

    def sload(self, d, base, off):
        w = {1: "dword", 2: "dwordx2", 4: "dwordx4", 8: "dwordx8", 16: "dwordx16"}[d.n]
        text = f"s_load_{w} {d}, {base}, {off}"
        self._issue(text, "salu", base.regs(), d.regs(), wcls="load")
        o = Op("sm", d.regs(), self.cur_region())
        self.smem.append(o)
        return o

    def memtime(self, d, real=False):
        text = ("s_memrealtime " if real else "s_memtime ") + str(d)
        self._issue(text, "salu", [], d.regs(), wcls="load")
        o = Op("sm", d.regs(), self.cur_region())
        self.smem.append(o)
        return o

    def barrier(self):
        self._put("s_barrier")

    def misc(self, text):
        self._put(text)

    def branch(self, op, lab):
        self._put(f"{op} {lab}")

    def cur_region(self):
        return self.regions[-1] if self.regions else 0

    def cond_begin(self):
        self.cond += 1
        self.nregion += 1
        self.regions.append(self.nregion)
        self._cstack.append((self.pos, list(self.vm), list(self.lg), list(self.smem)))

    def cond_end(self):
        self.cond -= 1
        rid = self.regions.pop()
        p0, vm0, lg0, sm0 = self._cstack.pop()
        ln = self.pos - p0
        newq = []
        for q0, q in ((vm0, self.vm), (lg0, self.lg), (sm0, self.smem)):
            for o in q0:
                o.done = False
            inside = [o for o in q if o not in q0]
            for o in inside:
                assert not o.dst, "load left pending in a conditional region"
            newq.append(list(q0) + inside)
        self.vm, self.lg, self.smem = newq
        for r, (p, c) in list(self.lastw.items()):
            if p < p0:
                self.lastw[r] = (p + ln, c)
        for d in (self.lastc, self.lastst):
            for r, p in list(d.items()):
                if p < p0:
                    d[r] = p + ln

    def reset_state(self):
        self.vm, self.lg, self.smem = [], [], []
        self.lastw, self.lastc, self.lastst = {}, {}, {}

    def text(self):
        return "\n".join(self.lines) + "\n"
```

```python
from asmgen import *
from layout import *
from gen_prep import mk_srd, allreduce_g
import math

BIG = 0x40000000
LOG2E = 1.4426950408889634
LN2 = 0.6931471805599453

IMG = 0
ZT = 6144
RST = 6400
DUMMY = 6912
RING = 8192
RB = 152
LDS_BYTES = RING + RB * KB
FI = 8

WS, OUT, XIN, SB2 = s(8, 4), s(12, 4), s(16, 4), s(20, 4)
sWave, sR, sC, sCG, sRH, sKH, sW2048 = [s(24 + i) for i in range(7)]
sSeg = {"A": s(31), "O": s(32), "B": s(33), "C": s(34)}
sXr, sHr, sSTr, sFRL, sFRG, sFC = [s(35 + i) for i in range(6)]
sA, sB, sD, sE, sDm, sLd = [s(41 + i) for i in range(6)]
sMaskV = s(48, 2)
sCnt = s(50)
sTT = s(51)
sTm = s(52, 2)
sOx, sOxh, sOst, sOo, sOoh, sOh, sOhh, sKv = [s(54 + i) for i in range(8)]
sLocal, sX1 = s(72), s(73)
sNan = s(74, 2)
vDum = v(49)

vLane, vN, vG, vL16 = v(1), v(2), v(3), v(4)
vW = [v(5), v(6), v(7)]
vK = [v(8), v(9), v(10)]
vDma = v(11)
vAx = [v(12), v(13)]
vAo = [v(14), v(15)]
vAh = [v(16), v(17)]
vSt, vStW, vKvSrc, vKvDst, vT16, vZ01, vZ2, vRT, vRW, vRF, vOut, vOut4, vOne = [v(18 + i) for i in range(13)]
vOh, vXs, vXh, vHs, vHh, vFl, vPollR, vPollC, vXch = [v(31 + i) for i in range(9)]
XE = [v(40, 4), v(44, 4)]
vC2 = v(48, 2)
vC2b = v(50, 2)
vLn2 = v(52, 2)
vEps = v(54, 2)
RT = v(56, 8)
ACC = v(64, 64)
FIFO = v(128, 4 * FI)
RES = v(160, 20)
B2F = v(180, 20)
TMP = v(200, 56)


class Main:
    def __init__(self, e, opt):
        self.e = e
        self.opt = opt
        self.nstamp = 0
        self.segs = []
        pos = 0
        for p in range(2):
            for k, n in (("A", NA), ("O", NO), ("B", NB), ("C", NC)):
                self.segs.append((k, pos, n))
                pos += n
        self.total = pos
        self.ngroups = pos // 8
        self.issued = 0
        self.dmaop = {}
        self.freed = 0
        self.hold = None
        self.visible = 0
        self.seq = []
        self.seqstart = {}
        for p in range(2):
            b = self.segs[4 * p + 0][1]
            self.seqstart[("A1", p)] = len(self.seq)
            self.seq += [(b + i, "W") for i in range(105)]
            self.seqstart[("A2", p)] = len(self.seq)
            self.seq += [(b + 105 + i, "W") for i in range(63)]
            b = self.segs[4 * p + 1][1]
            self.seqstart[("A4", p)] = len(self.seq)
            self.seq += [(b + 2 * i, "K") for i in range(50)]
            b = self.segs[4 * p + 2][1]
            self.seqstart[("B1a", p)] = len(self.seq)
            self.seq += [(b + i, "W") for i in range(84)]
            self.seqstart[("B1b", p)] = len(self.seq)
            self.seq += [(b + 84 + i, "W") for i in range(63)]
            b = self.segs[4 * p + 3][1]
            self.seqstart[("B2", p)] = len(self.seq)
            self.seq += [(b + 2 * i, "K") for i in range(135)]
        self.rd = 0
        self.cons = 0
        self.lastbar = 0
        self.warn = []

    def stamp(self, name):
        if not self.opt.get("stamps"):
            return
        e = self.e
        e.wait_all_lg()
        e.memtime(sTm)
        e.V("v_writelane_b32", v(53), sTm[0], self.nstamp)
        self.opt.setdefault("stampnames", []).append(name)
        self.nstamp += 1
        assert self.nstamp <= 64

    def endpos(self, i):
        p, k = self.seq[i]
        return p + (2 if k == "K" else 1)

    def ldsaddr(self, pos):
        return RING + (pos % RB) * KB

    def can_issue(self):
        if self.issued >= self.ngroups:
            return False
        lim = self.freed if self.hold is None else min(self.freed, self.hold)
        return 8 * (self.issued + 1) <= lim + RB

    def dma_group(self):
        e = self.e
        g = self.issued
        self.issued += 1
        pos = 8 * g
        for k, b, n in self.segs:
            if b <= pos < b + n:
                break
        e.S("s_add_u32", M0, sW2048, self.ldsaddr(pos))
        yield
        e.S("s_add_u32", sDm, sSeg[k], (pos - b) * KB)
        yield
        e.dma(vDma, WS, sDm, 0)
        yield
        self.dmaop[g] = e.dma(vDma, WS, sDm, 1024)
        yield

    def dma_filler(self):
        while True:
            if self.can_issue():
                for _ in self.dma_group():
                    yield True
            else:
                yield False

    def flush_dma_partial(self):
        while self.issued > 0 and (self.issued - 1) not in self.dmaop:
            next(self.dmaf)

    def dma_all(self):
        self.flush_dma_partial()
        while self.can_issue():
            for _ in self.dma_group():
                pass

    def ring_barrier(self, need_idx, extra_ops=(), free_all=False):
        e = self.e
        need_idx = min(need_idx, len(self.seq))
        upto = self.endpos(need_idx - 1) if need_idx > 0 else 0
        g = (upto + 7) // 8
        self.flush_dma_partial()
        while self.issued < g:
            assert self.can_issue(), ("ring deadlock", self.issued, g, self.freed, self.hold)
            self.warn.append(f"forced dma group {self.issued} at seq {self.rd}")
            for _ in self.dma_group():
                pass
        ops = list(extra_ops)
        for gg in range(self.visible // 8, g):
            ops.append(self.dmaop[gg])
        e.wait_ops(ops)
        e.barrier()
        self.visible = max(self.visible, 8 * g)
        self.freed = self.seq[self.cons][0] if self.cons < len(self.seq) else self.total
        self.lastbar = self.rd

    def issue_read(self):
        e = self.e
        i = self.rd
        if i >= len(self.seq):
            return
        pos, k = self.seq[i]
        assert self.endpos(i) <= self.visible, ("read of invisible block", i, pos, self.visible)
        ad = self.ldsaddr(pos)
        base = (vW if k == "W" else vK)[ad >> 16]
        slot = i % FI
        e.ds_read(FIFO[4 * slot:4 * slot + 4], base, ad & 0xffff)
        self.rd += 1

    def prime(self):
        while self.rd < self.cons + FI and self.rd < len(self.seq) and self.endpos(self.rd) <= self.visible:
            self.issue_read()

    def run_pass(self, n, mf, ntile, xf, fillers=(), chunk=24, stop_reads=None, hooks=None,
                 aload=None, vrate=0.5, amix=(1, 0), over=0, force_bar=None, late=None, see_all=False):
        e = self.e
        fillers = list(fillers)
        lim = stop_reads if stop_reads is not None else len(self.seq)
        st = {"credit": 0.0, "k": 0}

        def one_vmem():
            na, nd = amix
            if st.get("late"):
                n0 = len(e.vm)
                try:
                    next(st["late"])
                    return True, len(e.vm) > n0
                except StopIteration:
                    st["late"] = None
            use_a = aload is not None and not aload.done and (st["k"] % (na + nd) < na or not (self.mid_group() or self.can_issue()))
            if use_a:
                r = aload.step()
                if r:
                    st["k"] += 1
                return True, r
            if aload is not None and not aload.done and nd == 0:
                return False, False
            n0 = len(e.vm)
            if not next(self.dmaf):
                return False, False
            r = len(e.vm) > n0
            if r:
                st["k"] += 1
            return True, r

        def fill(budget):
            while budget > 0:
                n0 = e.ninst
                did = False
                if st["credit"] >= 1.0:
                    did, was = one_vmem()
                    if was:
                        st["credit"] -= 1.0
                    if not did:
                        st["credit"] = min(st["credit"], 1.0)
                if not did:
                    for f in list(fillers):
                        try:
                            if next(f) == "idle":
                                continue
                            did = True
                            break
                        except StopIteration:
                            fillers.remove(f)
                if not did:
                    return
                budget -= e.ninst - n0

        def waits_for(t):
            regs = []
            for tt in (t, t + 1):
                if tt < n:
                    ks = tt // ntile
                    if aload is not None:
                        aload.upto(ks)
                    idx = self.cons + (tt - t)
                    if idx < self.rd:
                        regs += FIFO[4 * (idx % FI):4 * (idx % FI) + 4].regs()
                    regs += xf(ks, 0).regs() + xf(ks, 1).regs()
            return e._pending(regs)

        e.wait_ops(waits_for(0))
        if aload is not None:
            self.stamp("1st")
        for t in range(n):
            if aload is not None and self.opt.get("midstamp") and t == n // 2:
                self.stamp("half")
            i = self.cons
            assert self.rd > i, ("fifo underrun", i)
            W = FIFO[4 * (i % FI):4 * (i % FI) + 4]
            own = 8 * self.issued < self.endpos(lim - 1)
            if (aload is not None and not aload.done) or st.get("late"):
                st["credit"] += vrate
            elif own:
                st["credit"] += max(vrate, 0.5)
            else:
                st["credit"] += self.opt.get("rateAB", 0.25) if self.segof(8 * self.issued) in "AB" else self.opt.get("rateOC", 0.45)
            ov = over if fillers else 0
            mf(t, W, 0)
            bar = self.rd < lim and (self.endpos(self.rd) > self.visible or self.rd - self.lastbar >= chunk)
            bar = bar or t == force_bar
            if late and t == late[0]:
                st["late"] = late[1]
            if bar:
                ex, after = [], None
                if hooks and hooks.get("bar"):
                    ex, after = hooks["bar"](t)
                self.ring_barrier(lim if see_all else min(self.rd + chunk, lim), ex)
                if after:
                    after()
            else:
                fill(2 + ov)
            mf(t, W, 1)
            self.cons += 1
            used = 0
            if self.rd < lim:
                self.issue_read()
                used = 1
            pend = waits_for(t + 1) if (t % 2 == 1 and t + 1 < n) else []
            fill(2 + ov - used - (1 if pend else 0))
            if pend:
                e.wait_ops(waits_for(t + 1))
        if late and late[0] >= n:
            st["late"] = late[1]
        for f in fillers + ([st["late"]] if st.get("late") else []):
            for _ in f:
                pass

    def segof(self, pos):
        for k, b, n in self.segs:
            if b <= pos < b + n:
                return k
        return "O"

    def mid_group(self):
        return self.issued > 0 and (self.issued - 1) not in self.dmaop

    def dma_burst(self, maxgroups=99):
        e = self.e
        self.flush_dma_partial()
        gs = []
        while self.can_issue() and len(gs) < maxgroups:
            gs.append(self.issued)
            self.issued += 1
        for w in (1, 2, 3):
            mine = gs[w - 1::3]
            if not mine:
                continue
            skip = e.newlabel("noburst")
            e.S("s_cmp_lg_u32", sWave, w)
            e.branch("s_cbranch_scc1", skip)
            e.cond_begin()
            for g in mine:
                pos = 8 * g
                for k, b, n in self.segs:
                    if b <= pos < b + n:
                        break
                for h in range(2):
                    e.S("s_mov_b32", M0, self.ldsaddr(pos) + h * 4096)
                    e.S("s_add_u32", sDm, sSeg[k], (pos - b) * KB + h * 4096)
                    for q in range(4):
                        self.dmaop[g] = e.dma(vL16, WS, sDm, q * 1024)
            e.cond_end()
            e.label(skip)

    def prologue(self):
        e = self.e
        e.S("s_cmp_ge_u32", s(2), 256)
        e.branch("s_cbranch_scc1", "main_end")
        e.sload(s(64, 2), s(0, 2), 0)
        e.sload(s(66, 2), s(0, 2), 56)
        e.sload(s(68, 2), s(0, 2), 64)
        e.sload(s(70, 2), s(0, 2), 80)
        T0, T1, T2, T3 = TMP[0], TMP[1], TMP[2], TMP[3]
        e.V("v_lshrrev_b32", T0, 6, v(0))
        e.V("v_and_b32", vLane, 63, v(0))
        e.V("v_readfirstlane_b32", sWave, T0)
        e.V("v_lshlrev_b32", vL16, 4, vLane)
        e.V("v_and_b32", vN, 15, vLane)
        e.V("v_lshrrev_b32", vG, 4, vLane)
        e.S("s_and_b32", sA, s(2), 7)
        e.S("s_lshl_b32", sA, sA, 1)
        e.S("s_lshr_b32", sB, s(2), 7)
        e.S("s_add_u32", sR, sA, sB)
        e.S("s_bfe_u32", sC, s(2), (4 << 16) | 3)
        e.S("s_and_b32", sCG, sC, 7)
        e.S("s_lshr_b32", sRH, sC, 3)
        e.S("s_and_b32", sKH, sWave, 1)
        e.S("s_lshl_b32", sW2048, sWave, 11)
        e.S("s_mul_i32", sA, sC, NA * KB)
        e.S("s_add_u32", sSeg["A"], sA, WA)
        e.S("s_mul_i32", sA, sCG, NO * KB)
        e.S("s_add_u32", sSeg["O"], sA, WO)
        e.S("s_mul_i32", sA, sC, NB * KB)
        e.S("s_add_u32", sSeg["B"], sA, WB)
        e.S("s_mul_i32", sA, sCG, NC * KB)
        e.S("s_add_u32", sSeg["C"], sA, WC)
        e.V("v_add_u32", vDma, sW2048, vL16)
        mk_srd(e, WS, s(70, 2), WS_USED)
        self.dmaf = self.dma_filler()
        first = self.opt.get("first_groups", 4)
        for _ in range(first):
            for _ in self.dma_group():
                pass
        e.S("s_mul_i32", sXr, sR, 160 * KB)
        e.S("s_mul_i32", sHr, sR, 432 * KB)
        e.S("s_lshl_b32", sSTr, sR, 13)
        e.S("s_mul_i32", sA, sWave, 40 * KB)
        e.V("v_add_u32", vAx[0], sA, vL16)
        e.V("v_add_u32", vAx[1], 20 * KB, vAx[0])
        e.V("v_lshlrev_b32", T0, 11, vG)
        e.V("v_lshl_add_u32", T0, vN, 3, T0)
        e.S("s_lshl_b32", sA, sWave, 8)
        e.V("v_add_u32", vSt, sA, T0)

    def prologue2(self):
        e = self.e
        T0, T1, T2, T3, T4, T5 = [TMP[40 + i] for i in range(6)]
        mk_srd(e, OUT, s(68, 2), XSZ)
        mk_srd(e, XIN, s(64, 2), XSZ)
        mk_srd(e, SB2, s(66, 2), D * 2)
        for j in range(3):
            if j == 0:
                e.V("v_mov_b32", vW[0], vL16)
            else:
                e.V("v_add_u32", vW[j], j * 65536, vL16)
        e.S("s_lshl_b32", sA, sKH, 10)
        for j in range(3):
            e.V("v_add_u32", vK[j], sA, vW[j])
        e.V("v_lshlrev_b32", T4, 4, v(0))
        Z = TMP[44:48]
        Z = TMP[48:52]
        for j in range(4):
            e.V("v_mov_b32", Z[j], 0)
        e.ds_write(T4, Z, 0)
        e.ds_write(T4, Z, 4096)
        e.S("s_lshl_b32", sTT, sRH, 2)
        e.S("s_add_u32", sTT, sTT, sWave)
        e.S("s_xor_b32", sB, sTT, 1)
        for u, st in ((0, sTT), (1, sB)):
            e.S("s_mul_i32", sA, st, 20 * KB)
            e.S("s_mul_i32", sD, sKH, 10 * KB)
            e.S("s_add_u32", sA, sA, sD)
            e.V("v_add_u32", vAo[u], sA, vL16)
            e.S("s_mul_i32", sA, st, 54 * KB)
            e.S("s_mul_i32", sD, sKH, 27 * KB)
            e.S("s_add_u32", sA, sA, sD)
            e.V("v_add_u32", vAh[u], sA, vL16)
        e.V("v_lshrrev_b32", T0, 1, vG)
        e.V("v_and_b32", T1, 1, vG)
        e.V("v_lshlrev_b32", T2, 4, vN)
        e.V("v_lshl_add_u32", T3, T0, 8, T2)
        e.V("v_lshl_add_u32", T3, T1, 3, T3)
        e.S("s_mul_i32", sA, sTT, 20 * KB)
        e.V("v_add_u32", vXs, sA, vL16)
        e.V("v_add_u32", vXh, sA, T3)
        e.S("s_mul_i32", sA, sWave, 108 * KB)
        e.V("v_add_u32", vHs, sA, vL16)
        e.S("s_cmp_ge_u32", sC, 12)
        e.S("s_cselect_b32", sA, BIG, sA)
        e.V("v_add_u32", vHh, sA, T3)
        e.S("s_mul_i32", sA, sWave, 40 * KB)
        e.V("v_lshl_add_u32", T3, vG, 3, T2)
        e.V("v_add_u32", vOh, sA, T3)
        e.V("v_cmp_gt_u32", VCC, 2, vG)
        e.V("v_mov_b32", T3, BIG)
        e.V("v_cndmask_b32", vOh, T3, vOh, VCC)
        e.S("s_lshl_b32", sA, sTT, 7)
        e.V("v_lshl_add_u32", T3, vN, 3, sA)
        e.V("v_lshl_add_u32", vStW, T0, 2, T3)
        e.S("s_lshl_b32", sA, sWave, 7)
        e.S("s_add_u32", sA, sA, RST)
        e.V("v_lshl_add_u32", vRT, vG, 4, sA)
        e.V("v_lshl_add_u32", vRW, vN, 2, sA)
        e.S("s_lshl_b32", sA, sTT, 6)
        e.S("s_add_u32", sA, sA, RST)
        e.V("v_lshl_add_u32", vRF, vN, 2, sA)
        e.V("v_lshlrev_b32", T3, 4, vG)
        e.V("v_add_u32", vZ2, ZT + 128, T3)
        e.V("v_cmp_gt_u32", VCC, 10, vN)
        e.V("v_add_u32", T3, ZT, T3)
        e.V("v_cndmask_b32", vZ01, vZ2, T3, VCC)
        e.S("s_lshl_b32", sA, sR, 3)
        e.S("s_add_u32", sA, sA, sTT)
        e.S("s_mul_i32", sA, sA, 16 * 1280)
        e.S("s_mul_i32", sB, sCG, 160)
        e.S("s_add_u32", sA, sA, sB)
        e.V("v_mul_u32_u24", T3, 1280, vN)
        e.V("v_add_u32", T3, sA, T3)
        e.V("v_lshl_add_u32", vOut, vG, 4, T3)
        e.V("v_lshl_add_u32", vOut4, vG, 3, T3)
        e.bload(RES[10:14], vOut, XIN, 0, 0)
        e.bload(RES[14:18], vOut, XIN, 0, 64)
        e.bload(RES[18:20], vOut4, XIN, 0, 128)
        e.V("v_lshl_add_u32", T4, vG, 4, sB)
        e.V("v_lshl_add_u32", T5, vG, 3, sB)
        e.bload(B2F[10:14], T4, SB2, 0, 0)
        e.bload(B2F[14:18], T4, SB2, 0, 64)
        e.bload(B2F[18:20], T5, SB2, 0, 128)
        e.S("s_mul_i32", sA, sWave, 5120)
        e.V("v_add_u32", vXch, sA, vL16)
        e.V("v_lshlrev_b32", vFl, 2, vN)
        e.V("v_mov_b32", vPollR, 0)
        e.V("v_mov_b32", vPollC, 0)
        e.S("s_mov_b32", sA, "0x3f803f80")
        e.V("v_mov_b32", vOne, sA)
        e.V("v_mov_b32", vLn2[0], lit(LN2))
        e.V("v_mov_b32", vEps[0], lit(1e-6))
        e.S("s_mov_b32", sMaskV[0], "0x00ff00ff")
        e.S("s_mov_b32", sMaskV[1], "0x00ff00ff")
        e.S("s_lshl_b32", sA, sR, 8)
        e.S("s_add_u32", sFRL, sA, FLG_RL)
        e.S("s_add_u32", sFRG, sA, FLG_RG)
        e.S("s_lshl_b32", sA, sC, 8)
        e.S("s_add_u32", sFC, sA, FLG_C)
        e.S("s_lshl_b32", sA, sCG, 11)
        e.S("s_add_u32", sOx, sXr, sA)
        e.S("s_lshr_b32", sA, sCG, 1)
        e.S("s_lshl_b32", sA, sA, 10)
        e.S("s_and_b32", sB, sCG, 1)
        e.S("s_lshl_b32", sB, sB, 9)
        e.S("s_add_u32", sA, sA, sB)
        e.S("s_add_u32", sA, sA, 16 * KB)
        e.S("s_add_u32", sOxh, sXr, sA)
        e.S("s_lshl_b32", sA, sCG, 10)
        e.S("s_add_u32", sOst, sSTr, sA)
        e.S("s_lshl_b32", sA, sC, 10)
        e.S("s_add_u32", sOo, sXr, sA)
        e.S("s_lshl_b32", sA, sC, 8)
        e.S("s_add_u32", sA, sA, 16 * KB)
        e.S("s_add_u32", sOoh, sXr, sA)
        e.S("s_mul_i32", sA, sC, 3 * KB)
        e.S("s_add_u32", sOh, sHr, sA)
        e.S("s_lshl_b32", sA, sC, 9)
        e.S("s_add_u32", sA, sA, 48 * KB)
        e.S("s_add_u32", sOhh, sHr, sA)
        e.S("s_mul_i32", sKv, sC, 16 * KVSZ)
        e.misc(f"s_getreg_b32 {sX1}, hwreg(HW_REG_XCC_ID, 0, 4)")
        e.S("s_add_u32", sX1, sX1, 1)
        e.S("s_mov_b32", sLocal, 0)
        skip = e.newlabel("noxid")
        e.S("s_cmp_lg_u32", sWave, 3)
        e.branch("s_cbranch_scc1", skip)
        e.cond_begin()
        e.S("s_lshl_b32", sA, sR, 8)
        e.S("s_add_u32", sA, sA, FLG_X)
        e.S("s_lshl_b32", sB, sC, 2)
        e.V("v_mov_b32", T4, sB)
        e.V("v_mov_b32", T5, sX1)
        e.S("s_mov_b64", EXEC, 1)
        e.bstore(T5, T4, WS, sA, 0, "sc1")
        e.S("s_mov_b64", EXEC, -1)
        e.cond_end()
        e.label(skip)
        U, Hh, Ee, Dq = T0, T1, T2, T3
        e.S("s_mov_b32", sA, 52429)
        e.V("v_mul_u32_u24", U, sA, v(0))
        e.V("v_lshrrev_b32", U, 18, U)
        e.V("v_mul_u32_u24", Dq, 5, U)
        e.V("v_sub_u32", Dq, v(0), Dq)
        e.V("v_cmp_le_u32", VCC, 21, U)
        e.V("v_cndmask_b32", Hh, 0, 1, VCC)
        e.V("v_mul_u32_u24", Ee, 21, Hh)
        e.V("v_sub_u32", Ee, U, Ee)
        A0, A1, A2, A3 = TMP[24], TMP[25], TMP[26], TMP[27]
        e.V("v_cmp_le_u32", s(66, 2), 16, Ee)
        e.V("v_cmp_eq_u32", s(64, 2), 4, Dq)
        e.V("v_cndmask_b32", A0, 0, 1, s(66, 2))
        e.V("v_lshl_add_u32", A0, Hh, 1, A0)
        e.V("v_add_u32", A1, 4, Hh)
        e.V("v_cndmask_b32", A1, A1, 6, s(66, 2))
        e.V("v_cndmask_b32", A0, A0, A1, s(64, 2))
        e.V("v_cndmask_b32", A1, Dq, Hh, s(64, 2))
        e.V("v_lshl_add_u32", A2, Hh, 2, Ee)
        e.V("v_subrev_u32", A2, 8, A2)
        e.V("v_cndmask_b32", A2, Ee, A2, s(66, 2))
        e.V("v_cmp_eq_u32", VCC, 20, Ee)
        e.V("v_cndmask_b32", A2, A2, 0, VCC)
        e.V("v_lshl_add_u32", A1, A1, 4, A2)
        e.V("v_lshlrev_b32", A1, 4, A1)
        e.V("v_lshl_add_u32", vKvSrc, A0, 10, A1)
        e.V("v_mul_u32_u24", A0, 5, Hh)
        e.V("v_add_u32", A0, A0, Dq)
        e.V("v_cmp_le_u32", s(64, 2), 8, A0)
        e.V("v_lshrrev_b32", A1, 1, A0)
        e.V("v_subrev_u32", A2, 8, A0)
        e.V("v_cndmask_b32", A1, A1, A2, s(64, 2))
        e.V("v_and_b32", A2, 1, A0)
        e.V("v_cndmask_b32", A2, A2, 0, s(64, 2))
        e.V("v_lshlrev_b32", A2, 3, A2)
        e.V("v_cndmask_b32", A0, 0, 1, s(64, 2))
        e.V("v_lshl_add_u32", A3, Hh, 1, A0)
        e.V("v_lshl_add_u32", A3, A3, 2, A1)
        e.V("v_lshl_add_u32", A3, A3, 4, A2)
        e.V("v_add_u32", A3, ZT, A3)
        e.V("v_mul_u32_u24", T4, 20, Hh)
        e.V("v_add_u32", T4, T4, Ee)
        e.V("v_cmp_le_u32", s(66, 2), 32, T4)
        e.V("v_and_b32", T5, 1, T4)
        e.V("v_cndmask_b32", T5, T5, 2, s(66, 2))
        e.V("v_lshl_add_u32", A0, T5, 1, A0)
        e.V("v_lshrrev_b32", T5, 1, T4)
        e.V("v_subrev_u32", T4, 32, T4)
        e.V("v_cndmask_b32", T4, T5, T4, s(66, 2))
        e.V("v_lshl_add_u32", T4, A1, 4, T4)
        e.V("v_lshl_add_u32", T4, T4, 4, A2)
        e.V("v_lshl_add_u32", T4, A0, 10, T4)
        e.V("v_cndmask_b32", T4, T4, A3, VCC)
        e.V("v_cmp_gt_u32", VCC, 210, v(0))
        e.V("v_mov_b32", T5, DUMMY)
        e.V("v_cndmask_b32", vKvDst, T5, T4, VCC)
        e.V("v_cndmask_b32", vKvSrc, 0, vKvSrc, VCC)
        e.V("v_lshlrev_b32", T4, 4, v(0))
        e.V("v_mov_b32", T5, BIG)
        e.V("v_cndmask_b32", vT16, T5, T4, VCC)

    def unpack(self, dst, pk):
        e = self.e
        for a_ in range(2):
            for j in range(4):
                e.V("v_lshlrev_b32", dst[8 * a_ + j], 16, pk[4 * a_ + j])
                e.V("v_and_b32", dst[8 * a_ + 4 + j], "0xffff0000", pk[4 * a_ + j])
        for j in range(2):
            e.V("v_lshlrev_b32", dst[16 + 2 * j], 16, pk[8 + j])
            e.V("v_and_b32", dst[16 + 2 * j + 1], "0xffff0000", pk[8 + j])

    class ALoad:
        def __init__(self, m, vaddr, terms, nks):
            self.m, self.vaddr, self.terms, self.nks = m, vaddr, terms, nks
            self.n = 0
            self.based = -1
            self.done = False

        def step(self):
            e = self.m.e
            ks, u = divmod(self.n, 2)
            if ks // 4 != self.based:
                self.based = ks // 4
                e.S("s_add_u32", sLd, self.terms[0], self.terms[1] + (ks // 4) * 4 * KB)
                return False
            e.bload(a(self.n * 4, 4), self.vaddr[u], WS, sLd, (ks % 4) * KB, "sc1")
            self.n += 1
            self.done = self.n >= 2 * self.nks
            return True

        def upto(self, ks):
            while self.n < 2 * min(ks + 1, self.nks):
                self.step()

    def stats_loads(self, ver):
        e = self.e
        e.S("s_add_u32", sA, sSTr, STB[ver])
        for u in range(2):
            for k in range(2):
                e.bload(TMP[4 * u + 2 * k:4 * u + 2 * k + 2], vSt, WS, sA, k * 1024 + u * 128, "sc1")

    def stats_gen(self, need_T):
        e = self.e
        for u in range(2):
            sm, sq, t0, t1 = TMP[4 * u], TMP[4 * u + 1], TMP[4 * u + 2], TMP[4 * u + 3]
            e.V("v_add_f32", sm, sm, t0); yield
            e.V("v_add_f32", sq, sq, t1); yield
            for op in ("v_permlane32_swap_b32", "v_permlane16_swap_b32"):
                e.V("v_mov_b32", t0, sm); yield
                e.V("v_mov_b32", t1, sq); yield
                e.V(op, sm, t0); yield
                e.V(op, sq, t1); yield
                e.V("v_add_f32", sm, sm, t0); yield
                e.V("v_add_f32", sq, sq, t1); yield
            e.V("v_mul_f32", sm, lit(1.0 / D), sm); yield
            e.V("v_mul_f32", t0, sm, sm); yield
            e.V("v_fma_f32", sq, sq, self.cInvD, Neg(t0)); yield
            e.V("v_max_f32", sq, 0, sq); yield
            e.V("v_add_f32", sq, lit(1e-5), sq); yield
            e.V("v_rsq_f32", t0, sq); yield
            e.V("v_cvt_pk_bf16_f32", XE[u][0], sm, sm); yield
            e.V("v_mul_f32", sq, sq, t0); yield
            e.ds_write(vRW, t0, 64 * u); yield
            c2 = vC2 if u == 0 else vC2b
            e.V("v_mul_f32", c2[0], lit(LOG2E), t0); yield
            e.V("v_lshlrev_b32", t1, 16, XE[u][0]); yield
            e.V("v_sub_f32", sm, sm, t1); yield
            e.V("v_cvt_pk_bf16_f32", XE[u][1], sm, 0); yield
            e.V("v_cvt_pk_bf16_f32", t1, sq, sq); yield
            e.V("v_lshlrev_b32", t1, 16, t1); yield
            e.V("v_sub_f32", t1, sq, t1); yield
            e.V("v_cvt_pk_bf16_f32", XE[u][2], sq, t1); yield
            e.V("v_mov_b32", XE[u][3], 0); yield
        if need_T:
            for u in range(2):
                e.ds_read(RT[4 * u:4 * u + 4], vRT, 64 * u); yield

    def phi_pair(self, src, c2, bcast, t):
        e = self.e
        m = "op_sel_hi:[1,0]" if bcast else ""
        e.V("v_pk_mul_f32", t[0:2], src, c2, mods=m)
        e.V("v_exp_f32_e64", t[2], t[0], mods="clamp")
        e.V("v_exp_f32_e64", t[3], t[1], mods="clamp")
        e.V("v_max_f32", t[0], 0, t[0])
        e.V("v_max_f32", t[1], 0, t[1])
        e.V("v_pk_add_f32", t[2:4], t[2:4], vEps, mods="op_sel_hi:[1,0]")
        e.V("v_pk_fma_f32", t[0:2], t[0:2], vLn2, t[2:4], mods="op_sel_hi:[1,0,1]")

    def scratch(self, nblk, endpos):
        st = endpos - nblk
        if (st % RB) + nblk > RB:
            st = endpos - (endpos % RB) - nblk
        return st, self.ldsaddr(st)

    def bg_on(self, every=None):
        every = every or self.opt.get("bg_every", 10)
        st = {"n": 0}

        def f():
            st["n"] += 1
            if st["n"] >= (2 * every if self.segof(8 * self.issued) in "AB" else every):
                n0 = len(self.e.vm)
                while len(self.e.vm) == n0:
                    if not next(self.dmaf):
                        return
                st["n"] = 0
        self.e.bg = f if self.opt.get("bg", 1) else None

    def bg_off(self):
        self.e.bg = None

    def gstore(self, lst, cold=False):
        e = self.e
        mode = self.opt.get("mode", "dual")
        if cold:
            mode = "safe"
        if mode != "dual":
            return [e.bstore(d, vo, WS, so, off, "sc1" if mode == "safe" else "") for d, vo, so, off in lst]
        ls, le = e.newlabel("st_safe"), e.newlabel("st_end")
        regs = []
        for d, vo, so, off in lst:
            regs += d.regs() + vo.regs()
        e.wait_ops(e._pending(regs))
        e.S("s_cmp_eq_u32", sLocal, 0)
        need = e._need("vmem", regs, [])
        if need > 1:
            e.nop(need - 1)
        e.branch("s_cbranch_scc1", ls)
        n0 = len(e.lines)
        ops = [e.bstore(d, vo, WS, so, off, "") for d, vo, so, off in lst]
        body = e.lines[n0:]
        assert len(body) == len(lst), body
        e.raw(f"  s_branch {le}")
        e.label(ls)
        for l in body:
            e.raw(l + " sc1")
        e.label(le)
        return ops

    def touch_gen(self, lst, cold=False):
        e = self.e
        if cold or not self.opt.get("touch", 0):
            return
        for _ in range(self.opt.get("touch_delay", 60)):
            yield "idle"
        for vo, sb, add, off in lst:
            e.S("s_add_u32", sE, sb, add); yield
            e.touch(vDum, vo, WS, sE, off); yield

    def local_gen(self):
        e = self.e
        e.S("s_lshl_b32", sE, sR, 8); yield
        e.S("s_add_u32", sE, sE, FLG_X); yield
        e.bload(TMP[52], vFl, WS, sE, 0, "sc1"); yield
        for _ in range(40):
            yield "idle"
        e.V("v_cmp_ne_u32", VCC, sX1, TMP[52]); yield
        e.S("s_cmp_eq_u64", VCC, 0)
        e.S("s_cselect_b32", sLocal, 1, 0); yield

    def poll(self, kind, val):
        e = self.e
        skip = e.newlabel("nopoll")
        loop = e.newlabel("poll")
        e.S("s_cmp_lg_u32", sWave, 0)
        e.branch("s_cbranch_scc1", skip)
        e.cond_begin()
        acc = vPollR if kind == "row" else vPollC
        t = TMP[55]
        e.S("s_mov_b32", sCnt, 0)
        e.label(loop)
        e.misc(f"buffer_load_dword {t}, {vFl}, {WS}, {sFRL if kind == 'row' else sFC} offen sc1")
        e.misc("s_add_u32 %s, %s, 1" % (sCnt, sCnt))
        e.misc("s_waitcnt vmcnt(0)")
        e.misc(f"v_max_u32 {acc}, {acc}, {t}")
        e.misc(f"v_cmp_gt_u32 vcc, {val}, {acc}")
        e.misc(f"s_cbranch_vccz {skip}")
        if kind == "row":
            e.misc(f"s_and_b32 {sA}, {sCnt}, 3")
            e.misc(f"s_cbranch_scc1 {loop}")
            e.misc(f"buffer_load_dword {t}, {vFl}, {WS}, {sFRG} offen sc1")
            e.misc("s_waitcnt vmcnt(0)")
            e.misc(f"v_max_u32 {acc}, {acc}, {t}")
        else:
            e.misc("s_sleep 2")
        e.misc(f"s_cmp_lt_u32 {sCnt}, 0x40000")
        e.misc(f"s_cbranch_scc1 {loop}")
        e.cond_end()
        e.label(skip)

    def flag(self, kind, val):
        e = self.e
        lst = [(1, sFRG, "sc1", sC), (2, sFRL, "", sC)] if kind == "row" else [(1, sFC, "sc1", sR)]
        for w, sb, m, sidx in lst:
            skip = e.newlabel("noflag")
            e.S("s_cmp_lg_u32", sWave, w)
            e.branch("s_cbranch_scc1", skip)
            e.cond_begin()
            e.S("s_lshl_b32", sA, sidx, 2)
            e.V("v_mov_b32", TMP[54], sA)
            e.V("v_mov_b32", TMP[55], val)
            e.S("s_mov_b64", EXEC, 1)
            e.bstore(TMP[55], TMP[54], WS, sb, 0, m)
            e.S("s_mov_b64", EXEC, -1)
            e.cond_end()
            e.label(skip)

    def handoff(self, val, ops, shadow=None):
        e = self.e
        e.wait_all_lg()
        self.ring_barrier(self.cons + FI + self.opt.get("ahead", 16), ops)
        self.hold = None
        self.flag("row", val)
        self.stamp("flag")
        self.dma_burst(self.opt.get("burst", 6))
        self.prime()
        if shadow:
            shadow()
        self.poll("row", val)
        e.barrier()
        self.stamp("go")

    def phaseA(self, p):
        e = self.e
        opt = self.opt
        xv = 2 * p
        acc = lambda T, u: ACC[(T * 2 + u) * 4:(T * 2 + u) * 4 + 4]
        xf = lambda ks, u: a((ks * 2 + u) * 4, 4) if ks < 20 else XE[u]
        self.stats_loads(xv)
        al = self.ALoad(self, vAx, (sXr, XB[xv]), 20)
        al.upto(opt.get("adist", 8) - 1)
        if p == 0:
            for _ in range(opt.get("second_groups", 6)):
                for _ in self.dma_group():
                    pass
            self.prologue2()
            e.wait_all_lg()
            self.ring_barrier(FI + 16)
            self.prime()
            self.stamp("start")
        i0 = self.seqstart[("A1", p)]
        fb = 102
        sst, sad = self.scratch(28, self.seq[i0 + fb][0])
        self.hold = sst

        def mf(t, W, u):
            ks, T = divmod(t, 5)
            e.mfma(acc(T, u), xf(ks, u), W, acc(T, u) if ks else 0)
        self.run_pass(105, mf, 5, xf, [self.stats_gen(True)], stop_reads=self.seqstart[("A4", p)], aload=al,
                      amix=(2, 1) if p == 0 else (1, 0), vrate=0.67 if p == 0 else 0.5, force_bar=fb)
        assert sst + 28 <= self.freed
        self.stamp("A1")
        self.bg_on()
        C2T = TMP[8:16]
        for j in range(8):
            e.V("v_mul_f32", C2T[j], lit(LOG2E), RT[j])
        KF = [TMP[16:20], TMP[20:24], TMP[24:28]]
        VF = {3: TMP[28:32], 4: TMP[32:36], 2: TMP[36:40]}
        tt = [TMP[40:44], TMP[44:48]]
        n = 0
        for T in range(3):
            for u in range(2):
                for h in range(2):
                    t = tt[n % 2]
                    n += 1
                    self.phi_pair(acc(T, u)[2 * h:2 * h + 2], C2T[4 * u + 2 * h:4 * u + 2 * h + 2], False, t)
                    e.V("v_cvt_pk_bf16_f32", KF[T][2 * u + h], t[0], t[1])
        for T in (3, 4, 2):
            for u in range(2):
                for h in range(2):
                    x = acc(T, u)[2 * h:2 * h + 2]
                    e.V("v_pk_mul_f32", x, x, RT[4 * u + 2 * h:4 * u + 2 * h + 2])
            for u in range(2):
                for h in range(2):
                    x = acc(T, u)[2 * h:2 * h + 2]
                    e.V("v_cvt_pk_bf16_f32", VF[T][2 * u + h], x[0], x[1])
        for j in range(4):
            e.V("v_cndmask_b32", VF[2][j], VF[2][j], vOne, sMaskV)
        PR = [ACC[4 * i:4 * i + 4] for i in range(7)]
        prods = [(0, 3), (0, 2), (1, 4), (1, 2), (2, 3), (2, 4), (2, 2)]
        for i, (kt, vt) in enumerate(prods):
            e.mfma(PR[i], KF[kt], VF[vt], 0)
        e.S("s_mul_i32", sA, sWave, 7168)
        e.S("s_add_u32", sA, sA, sad)
        e.V("v_add_u32", TMP[0], sA, vL16)
        e.V("v_add_u32", TMP[1], sad, vKvSrc)
        for i in range(7):
            e.ds_write(TMP[0], PR[i], i * 1024)
        e.wait_all_lg()
        e.barrier()
        RD = [TMP[16 + 4 * w:20 + 4 * w] for w in range(4)]
        for w in range(4):
            e.ds_read(RD[w], TMP[1], w * 7168)
        for h in range(2):
            e.V("v_pk_add_f32", RD[0][2 * h:2 * h + 2], RD[0][2 * h:2 * h + 2], RD[1][2 * h:2 * h + 2])
            e.V("v_pk_add_f32", RD[2][2 * h:2 * h + 2], RD[2][2 * h:2 * h + 2], RD[3][2 * h:2 * h + 2])
        for h in range(2):
            e.V("v_pk_add_f32", RD[0][2 * h:2 * h + 2], RD[0][2 * h:2 * h + 2], RD[2][2 * h:2 * h + 2])
        e.S("s_mul_i32", sA, sR, KVSZ)
        e.S("s_add_u32", sA, sA, sKv)
        e.S("s_add_u32", sA, sA, KVB[p])
        kvst = e.bstore(RD[0], vT16, WS, sA, 0, "sc1")
        self.bg_off()
        self.stamp("kvpub")
        PL = [ACC[4 * i:4 * i + 4] for i in range(10)] + [TMP[24 + 4 * i:28 + 4 * i] for i in range(6)]

        def barhook(t):
            def rel():
                self.hold = None
            return [], rel

        def kvloads():
            for i in range(16):
                if i % 2 == 0:
                    e.S("s_add_u32", sB, sKv, KVB[p] + i * KVSZ); yield
                e.bload(PL[i], vT16, WS, sB, (i % 2) * KVSZ, "sc1"); yield

        def kvsum():
            for st in (1, 2, 4, 8):
                for i in range(0, 16, 2 * st):
                    for h in range(2):
                        e.V("v_pk_add_f32", PL[i][2 * h:2 * h + 2], PL[i][2 * h:2 * h + 2], PL[i + st][2 * h:2 * h + 2])
            e.V("v_cmp_u_f32", VCC, PL[0][0], PL[0][1])
            e.V("v_cmp_u_f32", sNan, PL[0][2], PL[0][3])
            e.S("s_or_b64", VCC, VCC, sNan)

        def mfq(t, W, u):
            ks, T = divmod(t, 3)
            e.mfma(acc(5 + T, u), W, xf(ks, u), acc(5 + T, u) if ks else 0)
        self.lastbar = self.rd - 8
        fl = [self.touch_gen([(vAx[0], sOo, OB[p], 0), (vAx[1], sOo, OB[p], 0), (vOh, sOoh, OB[p], 0), (vOh, sOoh, OB[p] + 20 * KB, 0)], p == 0)]
        if p == 0:
            fl.append(self.local_gen())
        self.run_pass(63, mfq, 3, xf, fl, stop_reads=self.seqstart[("A4", p)], hooks={"bar": barhook},
                      late=(opt.get("kvload_at", 30), kvloads()), see_all=True)
        self.stamp("A2")
        PQ0 = [TMP[0:4], TMP[4:8]]
        PQ1 = [TMP[8:12], TMP[12:16]]
        tq = [TMP[16:20], TMP[20:24]]
        for u in range(2):
            c2 = vC2 if u == 0 else vC2b
            for h in range(2):
                self.phi_pair(acc(5, u)[2 * h:2 * h + 2], c2, True, tq[0])
                self.phi_pair(acc(6, u)[2 * h:2 * h + 2], c2, True, tq[1])
                e.V("v_cvt_pk_bf16_f32", PQ0[u][2 * h], tq[0][0], tq[1][0])
                e.V("v_cvt_pk_bf16_f32", PQ0[u][2 * h + 1], tq[0][1], tq[1][1])
            for h in range(2):
                self.phi_pair(acc(7, u)[2 * h:2 * h + 2], c2, True, tq[h])
                e.V("v_cvt_pk_bf16_f32", PQ1[u][h], tq[h][0], tq[h][1])
            e.V("v_mov_b32", PQ1[u][2], 0)
            e.V("v_mov_b32", PQ1[u][3], 0)
        self.stamp("qepi")
        kvsum()
        lok, lre = e.newlabel("kvok"), e.newlabel("kvretry")
        e.branch("s_cbranch_scc0", lok)
        e.cond_begin()
        e.S("s_mov_b32", sCnt, 0)
        e.label(lre)
        e.misc("s_sleep 4")
        for _ in kvloads():
            pass
        kvsum()
        e.branch("s_cbranch_scc0", lok)
        e.S("s_add_u32", sCnt, sCnt, 1)
        e.S("s_cmp_lt_u32", sCnt, 0x10000)
        e.branch("s_cbranch_scc1", lre)
        e.cond_end()
        e.label(lok)
        self.stamp("kvgo")
        self.bg_on(5)
        e.V("v_cvt_pk_bf16_f32", TMP[16], PL[0][0], PL[0][1])
        e.V("v_cvt_pk_bf16_f32", TMP[17], PL[0][2], PL[0][3])
        e.ds_write(vKvDst, TMP[16:18])
        e.wait_all_lg()
        e.barrier()
        FR = [TMP[16 + 4 * i:20 + 4 * i] for i in range(10)]
        for T in range(3):
            for ks in range(2):
                e.ds_read(FR[T * 2 + ks], vL16, IMG + (T * 2 + ks) * KB)
        for ks in range(2):
            e.ds_read(FR[6 + ks], vZ01, ks * 64)
            e.ds_read(FR[8 + ks], vZ2, ks * 64)
        oa = lambda T, u: ACC[(T * 2 + u) * 4:(T * 2 + u) * 4 + 4]
        for T in (3, 4, 0, 1, 2):
            for u in range(2):
                e.mfma(oa(T, u), FR[2 * T], PQ0[u], 0)
        for T in (3, 4, 0, 1, 2):
            for u in range(2):
                e.mfma(oa(T, u), FR[2 * T + 1], PQ1[u], oa(T, u))
        e.S("s_add_u32", sA, sOo, OB[p])
        e.S("s_add_u32", sB, sOoh, OB[p])
        e.S("s_add_u32", sD, sOoh, OB[p] + 20 * KB)
        ops = []
        for u in range(2):
            for x in (oa(3, u)[0], oa(3, u)[2], oa(4, u)[0]):
                e.V("v_add_f32", x, vEps[0], x)
        for u in range(2):
            for x in (oa(3, u)[0], oa(3, u)[2], oa(4, u)[0]):
                e.V("v_rcp_f32", x, x)
        for u in range(2):
            for T in range(3):
                for h in range(2):
                    x = oa(T, u)[2 * h:2 * h + 2]
                    dn = oa(3, u)[2 * h:2 * h + 2] if T < 2 else oa(4, u)[0:2]
                    e.V("v_pk_mul_f32", x, x, dn, mods="op_sel_hi:[1,0]")
            o4 = TMP[16 + 8 * u:20 + 8 * u]
            o2 = TMP[20 + 8 * u:22 + 8 * u]
            for j in range(4):
                e.V("v_cvt_pk_bf16_f32", o4[j], oa(0, u)[j], oa(1, u)[j])
            for h in range(2):
                e.V("v_cvt_pk_bf16_f32", o2[h], oa(2, u)[2 * h], oa(2, u)[2 * h + 1])
            if u == 0:
                ops += self.gstore([(o4, vAx[u], sA, 0), (o2, vOh, sB, 0)], p == 0)
            else:
                ops += self.gstore([(o4, vAx[u], sA, 0), (o2, vOh, sD, 0)], p == 0)
        self.bg_off()
        self.stamp("A3")
        def shadow():
            if p == 0:
                self.unpack(RES, RES[10:20])
                self.unpack(B2F, B2F[10:20])
        self.handoff(4 * p + 1, ops, shadow)

    def phase64(self, p, kind):
        e = self.e
        opt = self.opt
        nks = 10 if kind == "O" else 27
        name = "A4" if kind == "O" else "B2"
        acc = lambda T, u: ACC[(u * 5 + T) * 4:(u * 5 + T) * 4 + 4]
        if kind == "O":
            al = self.ALoad(self, vAo, (sXr, OB[p]), nks)
        else:
            al = self.ALoad(self, vAh, (sHr, HB[p]), nks)
        al.upto(opt.get("adist", 8) - 1)
        xf = lambda ks, u: a((ks * 2 + u) * 4, 4)
        if kind == "C":
            e.ds_read(TMP[50], vRF)
        i0 = self.seqstart[(name, p)]
        fb = 5 * nks - 3
        sst, sad = self.scratch(20, self.seq[i0 + fb][0])
        self.hold = sst
        stop = i0 + 5 * nks

        def mf(t, W, u):
            ks, T = divmod(t, 5)
            e.mfma(acc(T, u), W, xf(ks, u), acc(T, u) if ks else 0)
        last = kind == "C" and p == 1
        xv = 2 * p + (1 if kind == "O" else 2)
        fl = [] if last else [self.touch_gen([(vXs, sOx, XB[xv], 0), (vXs, sOx, XB[xv], 1024), (vXh, sOxh, XB[xv], 0), (vStW, sOst, STB[xv], 0)])]
        self.run_pass(5 * nks, mf, 5, xf, fl, force_bar=fb, chunk=(12 if kind == "O" else opt.get("chunkC", 8)), stop_reads=stop, aload=al,
                      amix=(1, 0) if kind == "O" else tuple(opt.get("amixC", (3, 2))), vrate=0.5 if kind == "O" else opt.get("vrateC", 0.8))
        self.stamp(name)
        self.bg_on()
        e.V("v_add_u32", TMP[0], sad, vXch)
        e.S("s_xor_b32", sA, sWave, 1)
        e.S("s_mul_i32", sA, sA, 5120)
        e.S("s_add_u32", sA, sA, sad)
        e.V("v_add_u32", TMP[1], sA, vL16)
        assert sst + 20 <= self.freed
        for T in range(5):
            e.ds_write(TMP[0], acc(T, 1), T * KB)
        e.wait_all_lg()
        e.barrier()
        PT = TMP[4:24]
        for T in range(5):
            e.ds_read(PT[4 * T:4 * T + 4], TMP[1], T * KB)
        own = ACC[0:20]
        if kind == "C":
            e.V("v_mul_f32", TMP[50], TMP[50], TMP[50])
        for h in range(10):
            x = own[2 * h:2 * h + 2]
            e.V("v_pk_add_f32", x, x, PT[2 * h:2 * h + 2])
            if kind == "O":
                e.V("v_pk_add_f32", x, x, RES[2 * h:2 * h + 2])
            else:
                e.V("v_pk_fma_f32", x, x, TMP[50:52], RES[2 * h:2 * h + 2], mods="op_sel_hi:[1,0,1]")
        PK = TMP[24:34]
        for a_ in range(2):
            for j in range(4):
                e.V("v_cvt_pk_bf16_f32", PK[4 * a_ + j], own[8 * a_ + j], own[8 * a_ + 4 + j])
        for h in range(2):
            e.V("v_cvt_pk_bf16_f32", PK[8 + h], own[16 + 2 * h], own[16 + 2 * h + 1])
        self.bg_off()
        if last:
            e.bstore(PK[0:4], vOut, OUT, 0, 0)
            e.bstore(PK[4:8], vOut, OUT, 0, 64)
            e.bstore(PK[8:10], vOut4, OUT, 0, 128)
            self.stamp("end")
            return
        xv = 2 * p + (1 if kind == "O" else 2)
        ops = []
        e.S("s_add_u32", sA, sOx, XB[xv])
        e.S("s_add_u32", sB, sOxh, XB[xv])
        e.S("s_add_u32", sD, sOst, STB[xv])
        ops += self.gstore([(PK[0:4], vXs, sA, 0), (PK[4:8], vXs, sA, 1024), (PK[8:10], vXh, sB, 0)])
        sm, sq, t0 = TMP[36], TMP[37], TMP[38]
        e.V("v_mov_b32", sm, 0)
        e.V("v_mov_b32", sq, 0)
        for j in range(10):
            e.V("v_dot2c_f32_bf16", sm, PK[j], vOne)
            e.V("v_dot2c_f32_bf16", sq, PK[j], PK[j])
        e.V("v_permlane32_swap_b32", sm, sq)
        e.V("v_add_f32", sm, sm, sq)
        e.V("v_mov_b32", t0, sm)
        e.V("v_permlane16_swap_b32", sm, t0)
        e.V("v_add_f32", sm, sm, t0)
        ops += self.gstore([(sm, vStW, sD, 0)])
        self.stamp(name + "epi")

        def shadow():
            self.unpack(RES, PK)
            if kind == "O":
                for h in range(10):
                    x = RES[2 * h:2 * h + 2]
                    e.V("v_pk_add_f32", x, x, B2F[2 * h:2 * h + 2])
        self.handoff(4 * p + (2 if kind == "O" else 4), ops, shadow)

    def phaseB1(self, p):
        e = self.e
        opt = self.opt
        xv = 2 * p + 1
        acc = lambda T, u: ACC[(T * 2 + u) * 4:(T * 2 + u) * 4 + 4]
        xf = lambda ks, u: a((ks * 2 + u) * 4, 4) if ks < 20 else XE[u]
        self.stats_loads(xv)
        al = self.ALoad(self, vAx, (sXr, XB[xv]), 20)
        al.upto(opt.get("adist", 8) - 1)
        stop = self.seqstart[("B2", p)]

        def mf(t, W, u):
            ks, T = divmod(t, 4)
            e.mfma(acc(T, u), W, xf(ks, u), acc(T, u) if ks else 0)
        tl = [(vHs, sOh, HB[p] + u * 54 * KB, a_ * KB) for a_ in range(3) for u in range(2)] + [(vHh, sOhh, HB[p] + u * 54 * KB, 0) for u in range(2)]
        self.run_pass(84, mf, 4, xf, [self.stats_gen(False), self.touch_gen(tl, p == 0)], stop_reads=stop, aload=al)
        self.stamp("B1a")
        ops = []

        def epi(pairs, single):
            n = 0
            for u in range(2):
                sb = sD if u == 0 else sE
                e.S("s_add_u32", sb, sOh, HB[p] + u * 54 * KB); yield
                for a_ in pairs:
                    o = TMP[16 + 4 * (n % 4):20 + 4 * (n % 4)]
                    n += 1
                    for j in range(4):
                        x, y = acc(2 * a_, u)[j], acc(2 * a_ + 1, u)[j]
                        e.V("v_mul_f32_e64", x, x, f"|{x}|"); yield
                        e.V("v_mul_f32_e64", y, y, f"|{y}|"); yield
                        e.V("v_cvt_pk_bf16_f32", o[j], x, y); yield
                        e.V("v_pk_max_i16", o[j], o[j], 0); yield
                    ops.extend(self.gstore([(o, vHs, sb, a_ * KB)], p == 0)); yield
            if single:
                for u in range(2):
                    o = TMP[32 + 2 * u:34 + 2 * u]
                    for j in range(4):
                        x = acc(6, u)[j]
                        e.V("v_mul_f32_e64", x, x, f"|{x}|"); yield
                    for h in range(2):
                        e.V("v_cvt_pk_bf16_f32", o[h], acc(6, u)[2 * h], acc(6, u)[2 * h + 1]); yield
                        e.V("v_pk_max_i16", o[h], o[h], 0); yield
                e.S("s_add_u32", sA, sOhh, HB[p])
                e.S("s_add_u32", sB, sOhh, HB[p] + 54 * KB)
                ops.extend(self.gstore([(TMP[32:34], vHh, sA, 0), (TMP[34:36], vHh, sB, 0)], p == 0))
                yield

        def mf2(t, W, u):
            ks, T = divmod(t, 3)
            e.mfma(acc(4 + T, u), W, xf(ks, u), acc(4 + T, u) if ks else 0)
        self.run_pass(63, mf2, 3, xf, [epi([0, 1], False)], stop_reads=stop)
        self.stamp("B1b")
        for _ in epi([2], True):
            pass
        self.stamp("B1epi")
        self.handoff(4 * p + 3, ops)

    def gen(self):
        e = self.e
        e.reset_state()
        self.cInvD = s(63)
        self.prologue()
        e.S("s_mov_b32", self.cInvD, lit(1.0 / D))
        self.stamp("entry")
        if self.opt.get("stamps"):
            e.memtime(sTm, True)
            e.V("v_writelane_b32", v(53), sTm[0], 62)
        stop = self.opt.get("stop", 99)
        n = 0
        for p in range(2):
            for f in (lambda: self.phaseA(p), lambda: self.phase64(p, "O"), lambda: self.phaseB1(p), lambda: self.phase64(p, "C")):
                if n < stop:
                    f()
                n += 1
        if self.opt.get("stamps"):
            e.wait_all_vm()
            e.memtime(sTm, True)
            e.V("v_writelane_b32", v(53), sTm[0], 63)
            e.S("s_lshl_b32", sA, s(2), 2)
            e.S("s_add_u32", sA, sA, sWave)
            e.S("s_lshl_b32", sA, sA, 8)
            e.S("s_add_u32", sA, sA, STAMP)
            e.V("v_lshlrev_b32", TMP[1], 2, vLane)
            e.bstore(v(53), TMP[1], WS, sA)
        e.label("main_end")
        e.misc("s_endpgm")
```

```python
from asmgen import *
from layout import *

NWG_PREP = 544
BIG = 0x40000000


def mk_srd(e, d, ptr, nbytes):
    e.S("s_mov_b32", d[0], ptr[0])
    e.S("s_mov_b32", d[1], ptr[1])
    e.S("s_mov_b32", d[2], nbytes)
    e.S("s_mov_b32", d[3], "0x00020000")


def allreduce_g(e, x, t):
    e.V("v_mov_b32", t, x)
    e.V("v_permlane32_swap_b32", x, t)
    e.V("v_add_f32", x, x, t)
    e.V("v_mov_b32", t, x)
    e.V("v_permlane16_swap_b32", x, t)
    e.V("v_add_f32", x, x, t)


def gen_prep(e, code_label, code_bytes, stamps=False):
    e.reset_state()
    def endpgm():
        if stamps:
            e.wait_all_vm()
            e.misc("s_waitcnt vmcnt(0)")
            e.memtime(s(70, 2), True)
            e.S("s_mov_b64", EXEC, 1)
            e.V("v_mov_b32", v(90), s(68))
            e.V("v_mov_b32", v(91), s(70))
            e.S("s_lshl_b32", s(72), s(73), 3)
            e.V("v_mov_b32", v(92), s(72))
            e.S("s_mov_b32", s(72), PSTAMP)
            e.bstore(v(90, 2), v(92), s(12, 4), s(72))
        e.misc("s_endpgm")

    P = s(16, 16)
    px, pqkv, pwo, pw1, pb1, pw2 = P[0:2], P[2:4], P[4:6], P[8:10], P[10:12], P[12:14]
    pws = s(36, 2)
    SRC, WS, SB1 = s(8, 4), s(12, 4), s(40, 4)
    sJ, sT, sP, sC, sStride, sRow, sD0, sDS, sA, sB = [s(44 + i) for i in range(10)]
    sTmp = [s(56 + i) for i in range(8)]
    vLane, vN, vG, vL16, vCol, vReg, vLeft, vT0, vT1 = [v(1 + i) for i in range(9)]
    RAW = v(16, 40)
    PK = v(56, 20)
    EX = v(76, 4)
    vBias = v(80)
    vSum = v(81)

    end = "prep_end"
    e.S("s_cmp_ge_u32", s(2), NWG_PREP)
    e.branch("s_cbranch_scc1", end)
    if stamps:
        e.memtime(s(68, 2), True)
    e.sload(P, s(0, 2), 0)
    e.sload(pws, s(0, 2), 80)
    e.V("v_lshrrev_b32", vT0, 6, v(0))
    e.V("v_and_b32", vLane, 63, v(0))
    e.V("v_readfirstlane_b32", sJ, vT0)
    e.V("v_and_b32", vN, 15, vLane)
    e.V("v_lshrrev_b32", vG, 4, vLane)
    e.V("v_lshlrev_b32", vL16, 4, vLane)
    e.S("s_lshl_b32", sA, s(2), 2)
    e.S("s_add_u32", sJ, sJ, sA)
    e.S("s_mov_b32", s(73), sJ)
    mk_srd(e, WS, pws, WS_USED)
    mk_srd(e, SB1, pb1, F * 2)
    mk_srd(e, SRC, px, XSZ)

    e.S("s_cmp_ge_u32", sJ, 1664)
    e.branch("s_cbranch_scc1", "prep_x")
    e.S("s_cmp_ge_u32", sJ, 1184)
    e.branch("s_cbranch_scc1", "prep_wc")
    e.S("s_cmp_ge_u32", sJ, 1024)
    e.branch("s_cbranch_scc1", "prep_wo")
    e.S("s_cmp_ge_u32", sJ, 512)
    e.branch("s_cbranch_scc1", "prep_wb")

    def lane_terms(stride, lt_a, lt_b, lt_g):
        e.S("s_mov_b32", sA, 8 * stride)
        e.V("v_mad_u32_u24", vReg, vG, sA, vCol)
        if lt_g:
            e.S("s_mov_b32", sA, lt_g * stride)
            e.V("v_mad_u32_u24", vLeft, vG, sA, vCol)
        else:
            e.V("v_lshrrev_b32", vT0, 1, vG)
            e.V("v_and_b32", vT1, 1, vG)
            e.S("s_mov_b32", sA, lt_a * stride)
            e.V("v_mad_u32_u24", vLeft, vT0, sA, vCol)
            e.S("s_mov_b32", sA, lt_b * stride)
            e.V("v_mad_u32_u24", vLeft, vT1, sA, vLeft)

    def load_block(b, vaddr, srow, rconst, stride):
        for i in range(8):
            t = sTmp[i]
            e.S("s_add_u32", t, srow, (rconst + i) * stride)
            e.bload(RAW[b * 8 + i], vaddr, SRC, t, 0, w="ushort")

    def pack_block(b):
        for i in range(4):
            e.V("v_lshl_or_b32", PK[b * 4 + i], RAW[b * 8 + 2 * i + 1], 16, RAW[b * 8 + 2 * i])

    def colsum_extra(with_bias):
        e.S("s_mov_b32", sA, "0x3f803f80")
        e.V("v_mov_b32", vT1, sA)
        e.V("v_mov_b32", vSum, 0)
        for i in range(20):
            e.V("v_dot2c_f32_bf16", vSum, PK[i], vT1)
        allreduce_g(e, vSum, vT0)
        e.V("v_sub_f32", vSum, 0, vSum)
        e.V("v_cvt_pk_bf16_f32", vT0, vSum, vSum)
        e.V("v_lshlrev_b32", vT0, 16, vT0)
        e.V("v_sub_f32", vT0, vSum, vT0)
        e.V("v_cvt_pk_bf16_f32", EX[0], vSum, vT0)
        e.V("v_and_b32", EX[1], "0xffff", EX[0])
        e.V("v_mov_b32", EX[3], 0)
        if with_bias:
            e.V("v_lshl_or_b32", EX[2], vBias, 16, vBias)
            e.S("s_cmp_eq_u32", sP, 0)
            e.S("s_cselect_b32", sA, -1, 0)
            e.V("v_and_b32", EX[2], sA, EX[2])
        else:
            e.V("v_mov_b32", EX[2], 0)
        e.S("s_mul_i32", sA, sDS, 20)
        e.S("s_add_u32", sA, sA, sD0)
        e.S("s_lshl_b32", sB, sP, 8)
        e.S("s_add_u32", sA, sA, sB)
        e.S("s_mov_b64", EXEC, "0xffff")
        e.bstore(EX, vL16, WS, sA)

    def linear_stores():
        for b in range(5):
            pack_block(b)
            if b < 4:
                e.S("s_lshl_b32", sA, sP, 2)
                e.S("s_add_u32", sA, sA, b)
            else:
                e.S("s_add_u32", sA, sP, 16)
            e.S("s_mul_i32", sA, sA, sDS)
            e.S("s_add_u32", sA, sA, sD0)
            e.bstore(PK[b * 4:b * 4 + 4], vL16, WS, sA)

    def xorder_loads(stride):
        e.S("s_mul_i32", sRow, sP, 160 * stride)
        lane_terms(stride, 80, 8, 0)
        for b in range(4):
            load_block(b, vReg, sRow, 80 * (b >> 1) + 32 * (b & 1), stride)
        load_block(4, vLeft, sRow, 64, stride)

    mk_srd(e, SRC, pqkv, D * 3 * D * 2)
    e.S("s_and_b32", sT, sJ, 7)
    e.S("s_bfe_u32", sP, sJ, (2 << 16) | 3)
    e.S("s_lshr_b32", sC, sJ, 5)
    e.S("s_mov_b32", sA, 640)
    for t, val in ((1, 660), (2, 656), (3, 1280), (4, 1300), (5, 0), (6, 1), (7, 32)):
        e.S("s_cmp_eq_u32", sT, t)
        e.S("s_cselect_b32", sA, val, sA)
    e.S("s_mul_i32", sB, sC, 40)
    e.S("s_add_u32", sA, sA, sB)
    e.V("v_add_u32", vCol, sA, vN)
    e.V("v_add_u32", vT0, vCol, vN)
    e.S("s_sub_u32", sB, sT, 5)
    e.S("s_cmp_lt_u32", sB, 2)
    e.S("s_cselect_b64", VCC, -1, 0)
    e.V("v_cndmask_b32", vCol, vCol, vT0, VCC)
    e.V("v_lshrrev_b32", vT0, 3, vN)
    e.V("v_mul_u32_u24", vT0, 640, vT0)
    e.V("v_bfe_u32", vT1, vN, 2, 1)
    e.V("v_mul_u32_u24", vT1, 20, vT1)
    e.V("v_add3_u32", vT0, vT0, vT1, sA)
    e.V("v_and_b32", vT1, 3, vN)
    e.V("v_add_u32", vT0, vT0, vT1)
    e.S("s_cmp_eq_u32", sT, 2)
    e.S("s_cselect_b64", VCC, -1, 0)
    e.V("v_cndmask_b32", vCol, vCol, vT0, VCC)
    e.V("v_lshlrev_b32", vCol, 1, vCol)
    e.S("s_cmp_eq_u32", sT, 7)
    e.S("s_cselect_b32", sB, 8, 16)
    e.V("v_cmp_le_u32", VCC, sB, vN)
    e.V("v_mov_b32", vT0, BIG)
    e.V("v_cndmask_b32", vCol, vCol, vT0, VCC)
    xorder_loads(3840)
    e.S("s_cmp_lt_u32", sT, 5)
    e.S("s_cselect_b32", sDS, 5, 3)
    e.S("s_cselect_b32", sA, 0, 100)
    e.S("s_add_u32", sA, sA, sT)
    e.S("s_mul_i32", sB, sC, NA)
    e.S("s_add_u32", sA, sA, sB)
    e.S("s_lshl_b32", sA, sA, 10)
    e.S("s_add_u32", sD0, sA, WA)
    e.S("s_lshl_b32", sDS, sDS, 10)
    linear_stores()
    colsum_extra(False)
    endpgm()

    e.reset_state()
    e.label("prep_wb")
    mk_srd(e, SRC, pw1, D * F * 2)
    e.S("s_sub_u32", sJ, sJ, 512)
    e.S("s_and_b32", sT, sJ, 7)
    e.S("s_bfe_u32", sP, sJ, (2 << 16) | 3)
    e.S("s_lshr_b32", sC, sJ, 5)
    e.S("s_cmp_eq_u32", sT, 7)
    e.branch("s_cbranch_scc1", "prep_flags")
    e.S("s_mul_i32", sA, sC, 112)
    e.S("s_max_u32", sB, sC, 12)
    e.S("s_sub_u32", sB, sB, 12)
    e.S("s_lshl_b32", sB, sB, 4)
    e.S("s_sub_u32", sA, sA, sB)
    e.S("s_lshr_b32", sB, sT, 1)
    e.S("s_lshl_b32", sB, sB, 5)
    e.S("s_add_u32", sA, sA, sB)
    e.S("s_and_b32", sB, sT, 1)
    e.S("s_add_u32", sA, sA, sB)
    e.V("v_add_u32", vCol, sA, vN)
    e.V("v_add_u32", vT0, vCol, vN)
    e.S("s_cmp_lt_u32", sT, 6)
    e.S("s_cselect_b64", VCC, -1, 0)
    e.V("v_cndmask_b32", vCol, vCol, vT0, VCC)
    e.V("v_lshlrev_b32", vCol, 1, vCol)
    e.S("s_lshl_b32", sA, sT, 4)
    e.S("s_add_u32", sA, sA, sC)
    e.S("s_cmp_ge_u32", sA, 6 * 16 + 12)
    e.S("s_cselect_b64", VCC, -1, 0)
    e.V("v_mov_b32", vT0, BIG)
    e.V("v_cndmask_b32", vCol, vCol, vT0, VCC)
    e.bload(vBias, vCol, SB1, 0, 0, w="ushort")
    xorder_loads(3456)
    e.S("s_cmp_lt_u32", sT, 4)
    e.S("s_cselect_b32", sDS, 4, 3)
    e.S("s_cselect_b32", sA, 0, 80)
    e.S("s_add_u32", sA, sA, sT)
    e.S("s_mul_i32", sB, sC, NB)
    e.S("s_add_u32", sA, sA, sB)
    e.S("s_lshl_b32", sA, sA, 10)
    e.S("s_add_u32", sD0, sA, WB)
    e.S("s_lshl_b32", sDS, sDS, 10)
    linear_stores()
    colsum_extra(True)
    endpgm()

    e.reset_state()
    e.label("prep_flags")
    e.S("s_lshr_b32", sA, sJ, 3)
    e.S("s_lshl_b32", sA, sA, 8)
    e.V("v_lshlrev_b32", vT0, 2, vLane)
    e.V("v_mov_b32", vT1, 0)
    e.bstore(vT1, vT0, WS, sA)
    endpgm()

    def ocols(scg):
        e.S("s_mul_i32", sA, scg, 80)
        e.S("s_lshr_b32", sB, sT, 1)
        e.S("s_lshl_b32", sB, sB, 5)
        e.S("s_add_u32", sA, sA, sB)
        e.S("s_and_b32", sB, sT, 1)
        e.S("s_add_u32", sA, sA, sB)
        e.V("v_add_u32", vCol, sA, vN)
        e.V("v_add_u32", vT0, vCol, vN)
        e.S("s_cmp_lt_u32", sT, 4)
        e.S("s_cselect_b64", VCC, -1, 0)
        e.V("v_cndmask_b32", vCol, vCol, vT0, VCC)
        e.V("v_lshlrev_b32", vCol, 1, vCol)

    def div5(dstq, dstr, src):
        e.S("s_mul_i32", dstq, src, 52429)
        e.S("s_lshr_b32", dstq, dstq, 18)
        e.S("s_mul_i32", sA, dstq, 5)
        e.S("s_sub_u32", dstr, src, sA)

    def split_store(b, sks, half):
        pack_block(b)
        e.S("s_mul_i32", sA, sks, 10240)
        e.S("s_add_u32", sA, sA, sD0)
        e.S("s_cmp_ge_u32", sks, half)
        e.S("s_cselect_b32", sB, half * 10240 - 1024, 0)
        e.S("s_sub_u32", sA, sA, sB)
        e.bstore(PK[b * 4:b * 4 + 4], vL16, WS, sA)

    e.reset_state()
    e.label("prep_wo")
    mk_srd(e, SRC, pwo, D * D * 2)
    e.S("s_sub_u32", sJ, sJ, 1024)
    div5(sC, sT, sJ)
    e.S("s_and_b32", sP, sC, 3)
    e.S("s_lshr_b32", sC, sC, 2)
    ocols(sC)
    e.S("s_mul_i32", sRow, sP, 160 * 1280)
    lane_terms(1280, 0, 0, 40)
    for b in range(4):
        load_block(b, vReg, sRow, 40 * b, 1280)
    load_block(4, vLeft, sRow, 32, 1280)
    e.S("s_mul_i32", sD0, sC, NO * KB)
    e.S("s_lshl_b32", sA, sT, 11)
    e.S("s_add_u32", sD0, sD0, sA)
    e.S("s_add_u32", sD0, sD0, WO)
    for b in range(5):
        if b < 4:
            e.S("s_lshl_b32", sDS, sP, 2)
            e.S("s_add_u32", sDS, sDS, b)
        else:
            e.S("s_add_u32", sDS, sP, 16)
        split_store(b, sDS, 10)
    endpgm()

    e.reset_state()
    e.label("prep_wc")
    mk_srd(e, SRC, pw2, F * D * 2)
    e.S("s_sub_u32", sJ, sJ, 1184)
    div5(sC, sT, sJ)
    e.S("s_mul_i32", sB, sC, 43691)
    e.S("s_lshr_b32", sB, sB, 19)
    e.S("s_mul_i32", sA, sB, 12)
    e.S("s_sub_u32", sP, sC, sA)
    e.S("s_mov_b32", sC, sB)
    ocols(sC)
    lane_terms(1280, 112, 8, 0)
    for b in range(4):
        e.S("s_lshl_b32", sDS, sP, 2)
        e.S("s_add_u32", sDS, sDS, b)
        e.S("s_mul_i32", sA, sDS, 43691)
        e.S("s_lshr_b32", sA, sA, 17)
        e.S("s_mul_i32", sB, sA, 3)
        e.S("s_sub_u32", sB, sDS, sB)
        e.S("s_lshl_b32", sRow, sB, 5)
        e.S("s_mul_i32", sB, sA, 112)
        e.S("s_add_u32", sRow, sRow, sB)
        e.S("s_max_u32", sB, sA, 12)
        e.S("s_sub_u32", sB, sB, 12)
        e.S("s_lshl_b32", sB, sB, 4)
        e.S("s_sub_u32", sRow, sRow, sB)
        e.S("s_mul_i32", sRow, sRow, 1280)
        load_block(b, vReg, sRow, 0, 1280)
    e.S("s_and_b32", sA, sP, -2)
    e.S("s_mul_i32", sRow, sA, 112 * 1280)
    load_block(4, vLeft, sRow, 96, 1280)
    e.S("s_mul_i32", sD0, sC, NC * KB)
    e.S("s_lshl_b32", sA, sT, 11)
    e.S("s_add_u32", sD0, sD0, sA)
    e.S("s_add_u32", sD0, sD0, WC)
    for b in range(4):
        e.S("s_lshl_b32", sDS, sP, 2)
        e.S("s_add_u32", sDS, sDS, b)
        split_store(b, sDS, 27)
    e.S("s_bitcmp1_b32", sP, 0)
    e.branch("s_cbranch_scc1", "prep_end2")
    e.S("s_lshr_b32", sDS, sP, 1)
    e.S("s_add_u32", sDS, sDS, 48)
    split_store(4, sDS, 27)
    endpgm()

    e.reset_state()
    e.label("prep_x")
    e.S("s_sub_u32", sJ, sJ, 1664)
    e.S("s_and_b32", sP, sJ, 3)
    e.S("s_lshr_b32", sC, sJ, 2)
    e.V("v_mul_u32_u24", vCol, 1280, vN)
    e.V("v_lshl_add_u32", vReg, vG, 4, vCol)
    e.V("v_lshrrev_b32", vT0, 1, vG)
    e.V("v_mul_u32_u24", vT0, 160, vT0)
    e.V("v_and_b32", vT1, 1, vG)
    e.V("v_lshl_add_u32", vT0, vT1, 4, vT0)
    e.V("v_add_u32", vLeft, vT0, vCol)
    e.S("s_mul_i32", sRow, sC, 16 * 1280)
    e.S("s_mul_i32", sA, sP, 320)
    e.S("s_add_u32", sRow, sRow, sA)
    for b in range(4):
        e.bload(PK[b * 4:b * 4 + 4], vReg, SRC, sRow, (80 * (b >> 1) + 32 * (b & 1)) * 2)
    e.bload(PK[16:20], vLeft, SRC, sRow, 128)
    if code_label:
        e.S("s_getpc_b64", s(60, 2))
        e.label("prep_pc")
        e.S("s_add_u32", s(60), s(60), f"{code_label}-prep_pc")
        e.S("s_addc_u32", s(61), s(61), 0)
        e.S("s_lshr_b32", sA, sJ, 5)
        e.S("s_lshl_b32", sA, sA, 2)
        e.S("s_add_u32", sA, sA, sP)
        nrep = (code_bytes + 65535) // 65536
        for rep in range(nrep):
            e.S("s_lshl_b32", sB, sA, 10)
            e.S("s_add_u32", sB, sB, rep * 65536)
            e.S("s_min_u32", sB, sB, code_bytes - 1024)
            e.V("v_add_u32", vT0, sB, vL16)
            e.gload(RAW[4 * rep:4 * rep + 4], vT0, s(60, 2))
    for i in range(4):
        e.V("v_mov_b32", EX[i], -1)
    e.S("s_mul_i32", sA, sJ, KVSZ)
    e.S("s_add_u32", sA, sA, KVB[0])
    for off in (0, 1024, 2048, KVSZ - 1024):
        e.bstore(EX, vL16, WS, sA, off)
    e.S("s_mul_i32", sD0, sC, 20 * KB)
    e.S("s_add_u32", sD0, sD0, XB[0])
    e.S("s_lshl_b32", sA, sP, 12)
    e.S("s_add_u32", sA, sA, sD0)
    for b in range(4):
        e.bstore(PK[b * 4:b * 4 + 4], vL16, WS, sA, b * 1024)
    e.S("s_lshl_b32", sA, sP, 10)
    e.S("s_add_u32", sA, sA, sD0)
    e.S("s_add_u32", sA, sA, 16 * KB)
    e.bstore(PK[16:20], vL16, WS, sA)
    s0, q0, s1, q1, sl, ql, one = [v(100 + i) for i in range(7)]
    e.S("s_mov_b32", sA, "0x3f803f80")
    e.V("v_mov_b32", one, sA)
    for r_ in (s0, q0, s1, q1, sl, ql):
        e.V("v_mov_b32", r_, 0)
    for i in range(8):
        e.V("v_dot2c_f32_bf16", s0, PK[i], one)
        e.V("v_dot2c_f32_bf16", q0, PK[i], PK[i])
        e.V("v_dot2c_f32_bf16", s1, PK[8 + i], one)
        e.V("v_dot2c_f32_bf16", q1, PK[8 + i], PK[8 + i])
    for i in range(4):
        e.V("v_dot2c_f32_bf16", sl, PK[16 + i], one)
        e.V("v_dot2c_f32_bf16", ql, PK[16 + i], PK[16 + i])
    e.V("v_cmp_gt_u32", VCC, 2, vG)
    e.V("v_cndmask_b32", vT0, 0, sl, VCC)
    e.V("v_add_f32", s0, s0, vT0)
    e.V("v_cndmask_b32", vT0, 0, ql, VCC)
    e.V("v_add_f32", q0, q0, vT0)
    e.V("v_cndmask_b32", vT0, sl, 0, VCC)
    e.V("v_add_f32", s1, s1, vT0)
    e.V("v_cndmask_b32", vT0, ql, 0, VCC)
    e.V("v_add_f32", q1, q1, vT0)
    for r_ in (s0, q0, s1, q1):
        allreduce_g(e, r_, vT0)
    e.V("v_cndmask_b32", s0, s1, s0, VCC)
    e.V("v_cndmask_b32", q0, q1, q0, VCC)
    e.V("v_and_b32", vT1, 1, vG)
    e.V("v_cmp_eq_u32", VCC, 0, vT1)
    e.V("v_cndmask_b32", s0, q0, s0, VCC)
    e.V("v_lshlrev_b32", vT0, 3, vN)
    e.V("v_lshl_add_u32", vT0, vT1, 2, vT0)
    e.V("v_lshrrev_b32", vT1, 1, vG)
    e.V("v_lshl_add_u32", vT0, vT1, 10, vT0)
    e.S("s_lshr_b32", sA, sC, 3)
    e.S("s_lshl_b32", sA, sA, 13)
    e.S("s_and_b32", sB, sC, 7)
    e.S("s_lshl_b32", sB, sB, 7)
    e.S("s_add_u32", sA, sA, sB)
    e.S("s_lshl_b32", sB, sP, 11)
    e.S("s_add_u32", sA, sA, sB)
    e.S("s_add_u32", sA, sA, STB[0])
    e.bstore(s0, vT0, WS, sA)
    e.label("prep_end2")
    endpgm()
    e.label(end)
    e.misc("s_endpgm")
```

```python
import os
REUSE = int(os.environ.get('REUSE', '1'))
S, D, F, H = 2048, 640, 1728, 32
KB = 1024

FLG = 0
FLG_RL, FLG_RG, FLG_C, FLG_X = 0, 4096, 8192, 12288
EPOCH = 16384
FLG_BYTES = 16384
NA, NO, NB, NC = 168, 104, 152, 272
WA = 65536
WO = WA + 16 * NA * KB
WB = WO + 8 * NO * KB
WC = WB + 16 * NB * KB
XSZ = S * D * 2
X0 = WC + 8 * NC * KB
XB = [X0 + (0 if REUSE else i) * XSZ for i in range(4)]
STSZ = 16 * 8192
ST0 = X0 + (1 if REUSE else 4) * XSZ
STB = [ST0 + (0 if REUSE else i) * STSZ for i in range(4)]
O0 = ST0 + (1 if REUSE else 4) * STSZ
OB = [O0 + (0 if REUSE else i) * XSZ for i in range(2)]
HSZ = S * F * 2
H0 = O0 + (1 if REUSE else 2) * XSZ
HB = [H0 + (0 if REUSE else i) * HSZ for i in range(2)]
KVSZ = 3584
KV0 = H0 + (1 if REUSE else 2) * HSZ
KVB = [KV0 + i * 256 * KVSZ for i in range(2)]
STAMP = KV0 + 2 * 256 * KVSZ
STAMPSZ = 1024 * 256
PSTAMP = STAMP + STAMPSZ
WS_USED = PSTAMP + 32768


def f0(c):
    return 112 * c - 16 * max(0, c - 12)


def xrow(ks, g, i):
    if ks < 16:
        return 80 * (ks >> 1) + 32 * (ks & 1) + 8 * g + i
    q = ks - 16
    return 160 * q + 64 + 80 * (g >> 1) + 8 * (g & 1) + i


def orow(ks, g, i):
    if ks < 16:
        return 40 * ks + 8 * g + i
    q = ks - 16
    return 160 * q + 32 + 40 * g + i


def hrow(ks, g, i):
    if ks < 48:
        return f0(ks // 3) + 32 * (ks % 3) + 8 * g + i
    q = ks - 48
    return 224 * q + 96 + 112 * (g >> 1) + 8 * (g & 1) + i


def acol(c, T, n):
    if T == 0:
        return 640 + 40 * c + n
    if T == 1:
        return 640 + 40 * c + 20 + n
    if T == 2:
        return 40 * c + (640 if n < 8 else 1280) + 16 + ((n >> 2) & 1) * 20 + (n & 3)
    if T == 3:
        return 1280 + 40 * c + n
    if T == 4:
        return 1280 + 40 * c + 20 + n
    if T in (5, 6):
        return 40 * c + 2 * n + (T - 5)
    return 40 * c + 32 + n if n < 8 else None


def bcol(c, T, n):
    if T < 6:
        return f0(c) + 32 * (T >> 1) + (T & 1) + 2 * n
    return f0(c) + 96 + n if c < 12 else None


def ocol(cg, T, n):
    if T < 4:
        return 80 * cg + 32 * (T >> 1) + (T & 1) + 2 * n
    return 80 * cg + 64 + n


def ablk(ks, T):
    return ks * 5 + T if T < 5 else 105 + ks * 3 + (T - 5)


def bblk(ks, T):
    return ks * 4 + T if T < 4 else 84 + ks * 3 + (T - 4)


def oblk(ks, T):
    return 2 * (5 * (ks % 10) + T) + ks // 10


def cblk(ks, T):
    return 2 * (5 * (ks % 27) + T) + ks // 27


if __name__ == "__main__":
    print(hex(WA), hex(WO), hex(WB), hex(WC), hex(X0), hex(ST0), hex(O0), hex(H0), hex(KV0), hex(STAMP), WS_USED)
    assert sorted(xrow(k, g, i) for k in range(20) for g in range(4) for i in range(8)) == list(range(640))
    assert sorted(orow(k, g, i) for k in range(20) for g in range(4) for i in range(8)) == list(range(640))
    assert sorted(hrow(k, g, i) for k in range(54) for g in range(4) for i in range(8)) == list(range(1728))
    assert sorted(x for c in range(16) for T in range(8) for n in range(16) for x in [acol(c, T, n)] if x is not None) == list(range(1920))
    assert sorted(x for c in range(16) for T in range(7) for n in range(16) for x in [bcol(c, T, n)] if x is not None) == list(range(1728))
    assert sorted(ocol(c, T, n) for c in range(8) for T in range(5) for n in range(16)) == list(range(640))
    print("ok")
```

```python
from asmgen import *
from layout import *
from gen_prep import mk_srd, allreduce_g
import math

BIG = 0x40000000
LOG2E = 1.4426950408889634
LN2 = 0.6931471805599453

IMG = 0
ZT = 6144
RST = 6400
DUMMY = 6912
RING = 8192
RB = 152
LDS_BYTES = RING + RB * KB
FI = 8

WS, OUT, XIN, SB2 = s(8, 4), s(12, 4), s(16, 4), s(20, 4)
sWave, sR, sC, sCG, sRH, sKH, sW2048 = [s(24 + i) for i in range(7)]
sSeg = {"A": s(31), "O": s(32), "B": s(33), "C": s(34)}
sXr, sHr, sSTr, sFRL, sFRG, sFC = [s(35 + i) for i in range(6)]
sA, sB, sD, sE, sDm, sLd = [s(41 + i) for i in range(6)]
sMaskV = s(48, 2)
sCnt = s(50)
sTT = s(51)
sTm = s(52, 2)
sOx, sOxh, sOst, sOo, sOoh, sOh, sOhh, sKv = [s(54 + i) for i in range(8)]
sLocal, sX1 = s(72), s(73)
sNan = s(74, 2)
vDum = v(49)

vLane, vN, vG, vL16 = v(1), v(2), v(3), v(4)
vW = [v(5), v(6), v(7)]
vK = [v(8), v(9), v(10)]
vDma = v(11)
vAx = [v(12), v(13)]
vAo = [v(14), v(15)]
vAh = [v(16), v(17)]
vSt, vStW, vKvSrc, vKvDst, vT16, vZ01, vZ2, vRT, vRW, vRF, vOut, vOut4, vOne = [v(18 + i) for i in range(13)]
vOh, vXs, vXh, vHs, vHh, vFl, vPollR, vPollC, vXch = [v(31 + i) for i in range(9)]
XE = [v(40, 4), v(44, 4)]
vC2 = v(48, 2)
vC2b = v(50, 2)
vLn2 = v(52, 2)
vEps = v(54, 2)
RT = v(56, 8)
ACC = v(64, 64)
FIFO = v(128, 4 * FI)
RES = v(160, 20)
B2F = v(180, 20)
TMP = v(200, 56)


class Main:
    def __init__(self, e, opt):
        self.e = e
        self.opt = opt
        self.nstamp = 0
        self.segs = []
        pos = 0
        for p in range(2):
            for k, n in (("A", NA), ("O", NO), ("B", NB), ("C", NC)):
                self.segs.append((k, pos, n))
                pos += n
        self.total = pos
        self.ngroups = pos // 8
        self.issued = 0
        self.dmaop = {}
        self.freed = 0
        self.hold = None
        self.visible = 0
        self.seq = []
        self.seqstart = {}
        for p in range(2):
            b = self.segs[4 * p + 0][1]
            self.seqstart[("A1", p)] = len(self.seq)
            self.seq += [(b + i, "W") for i in range(105)]
            self.seqstart[("A2", p)] = len(self.seq)
            self.seq += [(b + 105 + i, "W") for i in range(63)]
            b = self.segs[4 * p + 1][1]
            self.seqstart[("A4", p)] = len(self.seq)
            self.seq += [(b + 2 * i, "K") for i in range(50)]
            b = self.segs[4 * p + 2][1]
            self.seqstart[("B1a", p)] = len(self.seq)
            self.seq += [(b + i, "W") for i in range(84)]
            self.seqstart[("B1b", p)] = len(self.seq)
            self.seq += [(b + 84 + i, "W") for i in range(63)]
            b = self.segs[4 * p + 3][1]
            self.seqstart[("B2", p)] = len(self.seq)
            self.seq += [(b + 2 * i, "K") for i in range(135)]
        self.rd = 0
        self.cons = 0
        self.lastbar = 0
        self.warn = []

    def stamp(self, name):
        if not self.opt.get("stamps"):
            return
        e = self.e
        e.wait_all_lg()
        e.memtime(sTm)
        e.V("v_writelane_b32", v(53), sTm[0], self.nstamp)
        self.opt.setdefault("stampnames", []).append(name)
        self.nstamp += 1
        assert self.nstamp <= 64

    def endpos(self, i):
        p, k = self.seq[i]
        return p + (2 if k == "K" else 1)

    def ldsaddr(self, pos):
        return RING + (pos % RB) * KB

    def can_issue(self):
        if self.issued >= self.ngroups:
            return False
        lim = self.freed if self.hold is None else min(self.freed, self.hold)
        return 8 * (self.issued + 1) <= lim + RB

    def dma_group(self):
        e = self.e
        g = self.issued
        self.issued += 1
        pos = 8 * g
        for k, b, n in self.segs:
            if b <= pos < b + n:
                break
        e.S("s_add_u32", M0, sW2048, self.ldsaddr(pos))
        yield
        e.S("s_add_u32", sDm, sSeg[k], (pos - b) * KB)
        yield
        e.dma(vDma, WS, sDm, 0)
        yield
        self.dmaop[g] = e.dma(vDma, WS, sDm, 1024)
        yield

    def dma_filler(self):
        while True:
            if self.can_issue():
                for _ in self.dma_group():
                    yield True
            else:
                yield False

    def flush_dma_partial(self):
        while self.issued > 0 and (self.issued - 1) not in self.dmaop:
            next(self.dmaf)

    def dma_all(self):
        self.flush_dma_partial()
        while self.can_issue():
            for _ in self.dma_group():
                pass

    def ring_barrier(self, need_idx, extra_ops=(), free_all=False):
        e = self.e
        need_idx = min(need_idx, len(self.seq))
        upto = self.endpos(need_idx - 1) if need_idx > 0 else 0
        g = (upto + 7) // 8
        self.flush_dma_partial()
        while self.issued < g:
            assert self.can_issue(), ("ring deadlock", self.issued, g, self.freed, self.hold)
            self.warn.append(f"forced dma group {self.issued} at seq {self.rd}")
            for _ in self.dma_group():
                pass
        ops = list(extra_ops)
        for gg in range(self.visible // 8, g):
            ops.append(self.dmaop[gg])
        e.wait_ops(ops)
        e.barrier()
        self.visible = max(self.visible, 8 * g)
        self.freed = self.seq[self.cons][0] if self.cons < len(self.seq) else self.total
        self.lastbar = self.rd

    def issue_read(self):
        e = self.e
        i = self.rd
        if i >= len(self.seq):
            return
        pos, k = self.seq[i]
        assert self.endpos(i) <= self.visible, ("read of invisible block", i, pos, self.visible)
        ad = self.ldsaddr(pos)
        base = (vW if k == "W" else vK)[ad >> 16]
        slot = i % FI
        e.ds_read(FIFO[4 * slot:4 * slot + 4], base, ad & 0xffff)
        self.rd += 1

    def prime(self):
        while self.rd < self.cons + FI and self.rd < len(self.seq) and self.endpos(self.rd) <= self.visible:
            self.issue_read()

    def run_pass(self, n, mf, ntile, xf, fillers=(), chunk=24, stop_reads=None, hooks=None,
                 aload=None, vrate=0.5, amix=(1, 0), over=0, force_bar=None, late=None, see_all=False):
        e = self.e
        fillers = list(fillers)
        lim = stop_reads if stop_reads is not None else len(self.seq)
        st = {"credit": 0.0, "k": 0}

        def one_vmem():
            na, nd = amix
            if st.get("late"):
                n0 = len(e.vm)
                try:
                    next(st["late"])
                    return True, len(e.vm) > n0
                except StopIteration:
                    st["late"] = None
            use_a = aload is not None and not aload.done and (st["k"] % (na + nd) < na or not (self.mid_group() or self.can_issue()))
            if use_a:
                r = aload.step()
                if r:
                    st["k"] += 1
                return True, r
            if aload is not None and not aload.done and nd == 0:
                return False, False
            n0 = len(e.vm)
            if not next(self.dmaf):
                return False, False
            r = len(e.vm) > n0
            if r:
                st["k"] += 1
            return True, r

        def fill(budget):
            while budget > 0:
                n0 = e.ninst
                did = False
                if st["credit"] >= 1.0:
                    did, was = one_vmem()
                    if was:
                        st["credit"] -= 1.0
                    if not did:
                        st["credit"] = min(st["credit"], 1.0)
                if not did:
                    for f in list(fillers):
                        try:
                            if next(f) == "idle":
                                continue
                            did = True
                            break
                        except StopIteration:
                            fillers.remove(f)
                if not did:
                    return
                budget -= e.ninst - n0

        def waits_for(t):
            regs = []
            for tt in (t, t + 1):
                if tt < n:
                    ks = tt // ntile
                    if aload is not None:
                        aload.upto(ks)
                    idx = self.cons + (tt - t)
                    if idx < self.rd:
                        regs += FIFO[4 * (idx % FI):4 * (idx % FI) + 4].regs()
                    regs += xf(ks, 0).regs() + xf(ks, 1).regs()
            return e._pending(regs)

        e.wait_ops(waits_for(0))
        if aload is not None:
            self.stamp("1st")
        for t in range(n):
            if aload is not None and self.opt.get("midstamp") and t == n // 2:
                self.stamp("half")
            i = self.cons
            assert self.rd > i, ("fifo underrun", i)
            W = FIFO[4 * (i % FI):4 * (i % FI) + 4]
            own = 8 * self.issued < self.endpos(lim - 1)
            if (aload is not None and not aload.done) or st.get("late"):
                st["credit"] += vrate
            elif own:
                st["credit"] += max(vrate, 0.5)
            else:
                st["credit"] += self.opt.get("rateAB", 0.25) if self.segof(8 * self.issued) in "AB" else self.opt.get("rateOC", 0.45)
            ov = over if fillers else 0
            mf(t, W, 0)
            bar = self.rd < lim and (self.endpos(self.rd) > self.visible or self.rd - self.lastbar >= chunk)
            bar = bar or t == force_bar
            if late and t == late[0]:
                st["late"] = late[1]
            if bar:
                ex, after = [], None
                if hooks and hooks.get("bar"):
                    ex, after = hooks["bar"](t)
                self.ring_barrier(lim if see_all else min(self.rd + chunk, lim), ex)
                if after:
                    after()
            else:
                fill(2 + ov)
            mf(t, W, 1)
            self.cons += 1
            used = 0
            if self.rd < lim:
                self.issue_read()
                used = 1
            pend = waits_for(t + 1) if (t % 2 == 1 and t + 1 < n) else []
            fill(2 + ov - used - (1 if pend else 0))
            if pend:
                e.wait_ops(waits_for(t + 1))
        if late and late[0] >= n:
            st["late"] = late[1]
        for f in fillers + ([st["late"]] if st.get("late") else []):
            for _ in f:
                pass

    def segof(self, pos):
        for k, b, n in self.segs:
            if b <= pos < b + n:
                return k
        return "O"

    def mid_group(self):
        return self.issued > 0 and (self.issued - 1) not in self.dmaop

    def dma_burst(self, maxgroups=99):
        e = self.e
        self.flush_dma_partial()
        gs = []
        while self.can_issue() and len(gs) < maxgroups:
            gs.append(self.issued)
            self.issued += 1
        for w in (1, 2, 3):
            mine = gs[w - 1::3]
            if not mine:
                continue
            skip = e.newlabel("noburst")
            e.S("s_cmp_lg_u32", sWave, w)
            e.branch("s_cbranch_scc1", skip)
            e.cond_begin()
            for g in mine:
                pos = 8 * g
                for k, b, n in self.segs:
                    if b <= pos < b + n:
                        break
                for h in range(2):
                    e.S("s_mov_b32", M0, self.ldsaddr(pos) + h * 4096)
                    e.S("s_add_u32", sDm, sSeg[k], (pos - b) * KB + h * 4096)
                    for q in range(4):
                        self.dmaop[g] = e.dma(vL16, WS, sDm, q * 1024)
            e.cond_end()
            e.label(skip)

    def prologue(self):
        e = self.e
        e.S("s_cmp_ge_u32", s(2), 256)
        e.branch("s_cbranch_scc1", "main_end")
        e.sload(s(64, 2), s(0, 2), 0)
        e.sload(s(66, 2), s(0, 2), 56)
        e.sload(s(68, 2), s(0, 2), 64)
        e.sload(s(70, 2), s(0, 2), 80)
        T0, T1, T2, T3 = TMP[0], TMP[1], TMP[2], TMP[3]
        e.V("v_lshrrev_b32", T0, 6, v(0))
        e.V("v_and_b32", vLane, 63, v(0))
        e.V("v_readfirstlane_b32", sWave, T0)
        e.V("v_lshlrev_b32", vL16, 4, vLane)
        e.V("v_and_b32", vN, 15, vLane)
        e.V("v_lshrrev_b32", vG, 4, vLane)
        e.S("s_and_b32", sA, s(2), 7)
        e.S("s_lshl_b32", sA, sA, 1)
        e.S("s_lshr_b32", sB, s(2), 7)
        e.S("s_add_u32", sR, sA, sB)
        e.S("s_bfe_u32", sC, s(2), (4 << 16) | 3)
        e.S("s_and_b32", sCG, sC, 7)
        e.S("s_lshr_b32", sRH, sC, 3)
        e.S("s_and_b32", sKH, sWave, 1)
        e.S("s_lshl_b32", sW2048, sWave, 11)
        e.S("s_mul_i32", sA, sC, NA * KB)
        e.S("s_add_u32", sSeg["A"], sA, WA)
        e.S("s_mul_i32", sA, sCG, NO * KB)
        e.S("s_add_u32", sSeg["O"], sA, WO)
        e.S("s_mul_i32", sA, sC, NB * KB)
        e.S("s_add_u32", sSeg["B"], sA, WB)
        e.S("s_mul_i32", sA, sCG, NC * KB)
        e.S("s_add_u32", sSeg["C"], sA, WC)
        e.V("v_add_u32", vDma, sW2048, vL16)
        mk_srd(e, WS, s(70, 2), WS_USED)
        self.dmaf = self.dma_filler()
        first = self.opt.get("first_groups", 4)
        for _ in range(first):
            for _ in self.dma_group():
                pass
        e.S("s_mul_i32", sXr, sR, 160 * KB)
        e.S("s_mul_i32", sHr, sR, 432 * KB)
        e.S("s_lshl_b32", sSTr, sR, 13)
        e.S("s_mul_i32", sA, sWave, 40 * KB)
        e.V("v_add_u32", vAx[0], sA, vL16)
        e.V("v_add_u32", vAx[1], 20 * KB, vAx[0])
        e.V("v_lshlrev_b32", T0, 11, vG)
        e.V("v_lshl_add_u32", T0, vN, 3, T0)
        e.S("s_lshl_b32", sA, sWave, 8)
        e.V("v_add_u32", vSt, sA, T0)

    def prologue2(self):
        e = self.e
        T0, T1, T2, T3, T4, T5 = [TMP[40 + i] for i in range(6)]
        mk_srd(e, OUT, s(68, 2), XSZ)
        mk_srd(e, XIN, s(64, 2), XSZ)
        mk_srd(e, SB2, s(66, 2), D * 2)
        for j in range(3):
            if j == 0:
                e.V("v_mov_b32", vW[0], vL16)
            else:
                e.V("v_add_u32", vW[j], j * 65536, vL16)
        e.S("s_lshl_b32", sA, sKH, 10)
        for j in range(3):
            e.V("v_add_u32", vK[j], sA, vW[j])
        e.V("v_lshlrev_b32", T4, 4, v(0))
        Z = TMP[44:48]
        Z = TMP[48:52]
        for j in range(4):
            e.V("v_mov_b32", Z[j], 0)
        e.ds_write(T4, Z, 0)
        e.ds_write(T4, Z, 4096)
        e.S("s_lshl_b32", sTT, sRH, 2)
        e.S("s_add_u32", sTT, sTT, sWave)
        e.S("s_xor_b32", sB, sTT, 1)
        for u, st in ((0, sTT), (1, sB)):
            e.S("s_mul_i32", sA, st, 20 * KB)
            e.S("s_mul_i32", sD, sKH, 10 * KB)
            e.S("s_add_u32", sA, sA, sD)
            e.V("v_add_u32", vAo[u], sA, vL16)
            e.S("s_mul_i32", sA, st, 54 * KB)
            e.S("s_mul_i32", sD, sKH, 27 * KB)
            e.S("s_add_u32", sA, sA, sD)
            e.V("v_add_u32", vAh[u], sA, vL16)
        e.V("v_lshrrev_b32", T0, 1, vG)
        e.V("v_and_b32", T1, 1, vG)
        e.V("v_lshlrev_b32", T2, 4, vN)
        e.V("v_lshl_add_u32", T3, T0, 8, T2)
        e.V("v_lshl_add_u32", T3, T1, 3, T3)
        e.S("s_mul_i32", sA, sTT, 20 * KB)
        e.V("v_add_u32", vXs, sA, vL16)
        e.V("v_add_u32", vXh, sA, T3)
        e.S("s_mul_i32", sA, sWave, 108 * KB)
        e.V("v_add_u32", vHs, sA, vL16)
        e.S("s_cmp_ge_u32", sC, 12)
        e.S("s_cselect_b32", sA, BIG, sA)
        e.V("v_add_u32", vHh, sA, T3)
        e.S("s_mul_i32", sA, sWave, 40 * KB)
        e.V("v_lshl_add_u32", T3, vG, 3, T2)
        e.V("v_add_u32", vOh, sA, T3)
        e.V("v_cmp_gt_u32", VCC, 2, vG)
        e.V("v_mov_b32", T3, BIG)
        e.V("v_cndmask_b32", vOh, T3, vOh, VCC)
        e.S("s_lshl_b32", sA, sTT, 7)
        e.V("v_lshl_add_u32", T3, vN, 3, sA)
        e.V("v_lshl_add_u32", vStW, T0, 2, T3)
        e.S("s_lshl_b32", sA, sWave, 7)
        e.S("s_add_u32", sA, sA, RST)
        e.V("v_lshl_add_u32", vRT, vG, 4, sA)
        e.V("v_lshl_add_u32", vRW, vN, 2, sA)
        e.S("s_lshl_b32", sA, sTT, 6)
        e.S("s_add_u32", sA, sA, RST)
        e.V("v_lshl_add_u32", vRF, vN, 2, sA)
        e.V("v_lshlrev_b32", T3, 4, vG)
        e.V("v_add_u32", vZ2, ZT + 128, T3)
        e.V("v_cmp_gt_u32", VCC, 10, vN)
        e.V("v_add_u32", T3, ZT, T3)
        e.V("v_cndmask_b32", vZ01, vZ2, T3, VCC)
        e.S("s_lshl_b32", sA, sR, 3)
        e.S("s_add_u32", sA, sA, sTT)
        e.S("s_mul_i32", sA, sA, 16 * 1280)
        e.S("s_mul_i32", sB, sCG, 160)
        e.S("s_add_u32", sA, sA, sB)
        e.V("v_mul_u32_u24", T3, 1280, vN)
        e.V("v_add_u32", T3, sA, T3)
        e.V("v_lshl_add_u32", vOut, vG, 4, T3)
        e.V("v_lshl_add_u32", vOut4, vG, 3, T3)
        e.bload(RES[10:14], vOut, XIN, 0, 0)
        e.bload(RES[14:18], vOut, XIN, 0, 64)
        e.bload(RES[18:20], vOut4, XIN, 0, 128)
        e.V("v_lshl_add_u32", T4, vG, 4, sB)
        e.V("v_lshl_add_u32", T5, vG, 3, sB)
        e.bload(B2F[10:14], T4, SB2, 0, 0)
        e.bload(B2F[14:18], T4, SB2, 0, 64)
        e.bload(B2F[18:20], T5, SB2, 0, 128)
        e.S("s_mul_i32", sA, sWave, 5120)
        e.V("v_add_u32", vXch, sA, vL16)
        e.V("v_lshlrev_b32", vFl, 2, vN)
        e.V("v_mov_b32", vPollR, 0)
        e.V("v_mov_b32", vPollC, 0)
        e.S("s_mov_b32", sA, "0x3f803f80")
        e.V("v_mov_b32", vOne, sA)
        e.V("v_mov_b32", vLn2[0], lit(LN2))
        e.V("v_mov_b32", vEps[0], lit(1e-6))
        e.S("s_mov_b32", sMaskV[0], "0x00ff00ff")
        e.S("s_mov_b32", sMaskV[1], "0x00ff00ff")
        e.S("s_lshl_b32", sA, sR, 8)
        e.S("s_add_u32", sFRL, sA, FLG_RL)
        e.S("s_add_u32", sFRG, sA, FLG_RG)
        e.S("s_lshl_b32", sA, sC, 8)
        e.S("s_add_u32", sFC, sA, FLG_C)
        e.S("s_lshl_b32", sA, sCG, 11)
        e.S("s_add_u32", sOx, sXr, sA)
        e.S("s_lshr_b32", sA, sCG, 1)
        e.S("s_lshl_b32", sA, sA, 10)
        e.S("s_and_b32", sB, sCG, 1)
        e.S("s_lshl_b32", sB, sB, 9)
        e.S("s_add_u32", sA, sA, sB)
        e.S("s_add_u32", sA, sA, 16 * KB)
        e.S("s_add_u32", sOxh, sXr, sA)
        e.S("s_lshl_b32", sA, sCG, 10)
        e.S("s_add_u32", sOst, sSTr, sA)
        e.S("s_lshl_b32", sA, sC, 10)
        e.S("s_add_u32", sOo, sXr, sA)
        e.S("s_lshl_b32", sA, sC, 8)
        e.S("s_add_u32", sA, sA, 16 * KB)
        e.S("s_add_u32", sOoh, sXr, sA)
        e.S("s_mul_i32", sA, sC, 3 * KB)
        e.S("s_add_u32", sOh, sHr, sA)
        e.S("s_lshl_b32", sA, sC, 9)
        e.S("s_add_u32", sA, sA, 48 * KB)
        e.S("s_add_u32", sOhh, sHr, sA)
        e.S("s_mul_i32", sKv, sC, 16 * KVSZ)
        e.misc(f"s_getreg_b32 {sX1}, hwreg(HW_REG_XCC_ID, 0, 4)")
        e.S("s_add_u32", sX1, sX1, 1)
        e.S("s_mov_b32", sLocal, 0)
        skip = e.newlabel("noxid")
        e.S("s_cmp_lg_u32", sWave, 3)
        e.branch("s_cbranch_scc1", skip)
        e.cond_begin()
        e.S("s_lshl_b32", sA, sR, 8)
        e.S("s_add_u32", sA, sA, FLG_X)
        e.S("s_lshl_b32", sB, sC, 2)
        e.V("v_mov_b32", T4, sB)
        e.V("v_mov_b32", T5, sX1)
        e.S("s_mov_b64", EXEC, 1)
        e.bstore(T5, T4, WS, sA, 0, "sc1")
        e.S("s_mov_b64", EXEC, -1)
        e.cond_end()
        e.label(skip)
        U, Hh, Ee, Dq = T0, T1, T2, T3
        e.S("s_mov_b32", sA, 52429)
        e.V("v_mul_u32_u24", U, sA, v(0))
        e.V("v_lshrrev_b32", U, 18, U)
        e.V("v_mul_u32_u24", Dq, 5, U)
        e.V("v_sub_u32", Dq, v(0), Dq)
        e.V("v_cmp_le_u32", VCC, 21, U)
        e.V("v_cndmask_b32", Hh, 0, 1, VCC)
        e.V("v_mul_u32_u24", Ee, 21, Hh)
        e.V("v_sub_u32", Ee, U, Ee)
        A0, A1, A2, A3 = TMP[24], TMP[25], TMP[26], TMP[27]
        e.V("v_cmp_le_u32", s(66, 2), 16, Ee)
        e.V("v_cmp_eq_u32", s(64, 2), 4, Dq)
        e.V("v_cndmask_b32", A0, 0, 1, s(66, 2))
        e.V("v_lshl_add_u32", A0, Hh, 1, A0)
        e.V("v_add_u32", A1, 4, Hh)
        e.V("v_cndmask_b32", A1, A1, 6, s(66, 2))
        e.V("v_cndmask_b32", A0, A0, A1, s(64, 2))
        e.V("v_cndmask_b32", A1, Dq, Hh, s(64, 2))
        e.V("v_lshl_add_u32", A2, Hh, 2, Ee)
        e.V("v_subrev_u32", A2, 8, A2)
        e.V("v_cndmask_b32", A2, Ee, A2, s(66, 2))
        e.V("v_cmp_eq_u32", VCC, 20, Ee)
        e.V("v_cndmask_b32", A2, A2, 0, VCC)
        e.V("v_lshl_add_u32", A1, A1, 4, A2)
        e.V("v_lshlrev_b32", A1, 4, A1)
        e.V("v_lshl_add_u32", vKvSrc, A0, 10, A1)
        e.V("v_mul_u32_u24", A0, 5, Hh)
        e.V("v_add_u32", A0, A0, Dq)
        e.V("v_cmp_le_u32", s(64, 2), 8, A0)
        e.V("v_lshrrev_b32", A1, 1, A0)
        e.V("v_subrev_u32", A2, 8, A0)
        e.V("v_cndmask_b32", A1, A1, A2, s(64, 2))
        e.V("v_and_b32", A2, 1, A0)
        e.V("v_cndmask_b32", A2, A2, 0, s(64, 2))
        e.V("v_lshlrev_b32", A2, 3, A2)
        e.V("v_cndmask_b32", A0, 0, 1, s(64, 2))
        e.V("v_lshl_add_u32", A3, Hh, 1, A0)
        e.V("v_lshl_add_u32", A3, A3, 2, A1)
        e.V("v_lshl_add_u32", A3, A3, 4, A2)
        e.V("v_add_u32", A3, ZT, A3)
        e.V("v_mul_u32_u24", T4, 20, Hh)
        e.V("v_add_u32", T4, T4, Ee)
        e.V("v_cmp_le_u32", s(66, 2), 32, T4)
        e.V("v_and_b32", T5, 1, T4)
        e.V("v_cndmask_b32", T5, T5, 2, s(66, 2))
        e.V("v_lshl_add_u32", A0, T5, 1, A0)
        e.V("v_lshrrev_b32", T5, 1, T4)
        e.V("v_subrev_u32", T4, 32, T4)
        e.V("v_cndmask_b32", T4, T5, T4, s(66, 2))
        e.V("v_lshl_add_u32", T4, A1, 4, T4)
        e.V("v_lshl_add_u32", T4, T4, 4, A2)
        e.V("v_lshl_add_u32", T4, A0, 10, T4)
        e.V("v_cndmask_b32", T4, T4, A3, VCC)
        e.V("v_cmp_gt_u32", VCC, 210, v(0))
        e.V("v_mov_b32", T5, DUMMY)
        e.V("v_cndmask_b32", vKvDst, T5, T4, VCC)
        e.V("v_cndmask_b32", vKvSrc, 0, vKvSrc, VCC)
        e.V("v_lshlrev_b32", T4, 4, v(0))
        e.V("v_mov_b32", T5, BIG)
        e.V("v_cndmask_b32", vT16, T5, T4, VCC)

    def unpack(self, dst, pk):
        e = self.e
        for a_ in range(2):
            for j in range(4):
                e.V("v_lshlrev_b32", dst[8 * a_ + j], 16, pk[4 * a_ + j])
                e.V("v_and_b32", dst[8 * a_ + 4 + j], "0xffff0000", pk[4 * a_ + j])
        for j in range(2):
            e.V("v_lshlrev_b32", dst[16 + 2 * j], 16, pk[8 + j])
            e.V("v_and_b32", dst[16 + 2 * j + 1], "0xffff0000", pk[8 + j])

    class ALoad:
        def __init__(self, m, vaddr, terms, nks):
            self.m, self.vaddr, self.terms, self.nks = m, vaddr, terms, nks
            self.n = 0
            self.based = -1
            self.done = False

        def step(self):
            e = self.m.e
            ks, u = divmod(self.n, 2)
            if ks // 4 != self.based:
                self.based = ks // 4
                e.S("s_add_u32", sLd, self.terms[0], self.terms[1] + (ks // 4) * 4 * KB)
                return False
            e.bload(a(self.n * 4, 4), self.vaddr[u], WS, sLd, (ks % 4) * KB, "sc1")
            self.n += 1
            self.done = self.n >= 2 * self.nks
            return True

        def upto(self, ks):
            while self.n < 2 * min(ks + 1, self.nks):
                self.step()

    def stats_loads(self, ver):
        e = self.e
        e.S("s_add_u32", sA, sSTr, STB[ver])
        for u in range(2):
            for k in range(2):
                e.bload(TMP[4 * u + 2 * k:4 * u + 2 * k + 2], vSt, WS, sA, k * 1024 + u * 128, "sc1")

    def stats_gen(self, need_T):
        e = self.e
        for u in range(2):
            sm, sq, t0, t1 = TMP[4 * u], TMP[4 * u + 1], TMP[4 * u + 2], TMP[4 * u + 3]
            e.V("v_add_f32", sm, sm, t0); yield
            e.V("v_add_f32", sq, sq, t1); yield
            for op in ("v_permlane32_swap_b32", "v_permlane16_swap_b32"):
                e.V("v_mov_b32", t0, sm); yield
                e.V("v_mov_b32", t1, sq); yield
                e.V(op, sm, t0); yield
                e.V(op, sq, t1); yield
                e.V("v_add_f32", sm, sm, t0); yield
                e.V("v_add_f32", sq, sq, t1); yield
            e.V("v_mul_f32", sm, lit(1.0 / D), sm); yield
            e.V("v_mul_f32", t0, sm, sm); yield
            e.V("v_fma_f32", sq, sq, self.cInvD, Neg(t0)); yield
            e.V("v_max_f32", sq, 0, sq); yield
            e.V("v_add_f32", sq, lit(1e-5), sq); yield
            e.V("v_rsq_f32", t0, sq); yield
            e.V("v_cvt_pk_bf16_f32", XE[u][0], sm, sm); yield
            e.V("v_mul_f32", sq, sq, t0); yield
            e.ds_write(vRW, t0, 64 * u); yield
            c2 = vC2 if u == 0 else vC2b
            e.V("v_mul_f32", c2[0], lit(LOG2E), t0); yield
            e.V("v_lshlrev_b32", t1, 16, XE[u][0]); yield
            e.V("v_sub_f32", sm, sm, t1); yield
            e.V("v_cvt_pk_bf16_f32", XE[u][1], sm, 0); yield
            e.V("v_cvt_pk_bf16_f32", t1, sq, sq); yield
            e.V("v_lshlrev_b32", t1, 16, t1); yield
            e.V("v_sub_f32", t1, sq, t1); yield
            e.V("v_cvt_pk_bf16_f32", XE[u][2], sq, t1); yield
            e.V("v_mov_b32", XE[u][3], 0); yield
        if need_T:
            for u in range(2):
                e.ds_read(RT[4 * u:4 * u + 4], vRT, 64 * u); yield

    def phi_pair(self, src, c2, bcast, t):
        e = self.e
        m = "op_sel_hi:[1,0]" if bcast else ""
        e.V("v_pk_mul_f32", t[0:2], src, c2, mods=m)
        e.V("v_exp_f32_e64", t[2], t[0], mods="clamp")
        e.V("v_exp_f32_e64", t[3], t[1], mods="clamp")
        e.V("v_max_f32", t[0], 0, t[0])
        e.V("v_max_f32", t[1], 0, t[1])
        e.V("v_pk_add_f32", t[2:4], t[2:4], vEps, mods="op_sel_hi:[1,0]")
        e.V("v_pk_fma_f32", t[0:2], t[0:2], vLn2, t[2:4], mods="op_sel_hi:[1,0,1]")

    def scratch(self, nblk, endpos):
        st = endpos - nblk
        if (st % RB) + nblk > RB:
            st = endpos - (endpos % RB) - nblk
        return st, self.ldsaddr(st)

    def bg_on(self, every=None):
        every = every or self.opt.get("bg_every", 10)
        st = {"n": 0}

        def f():
            st["n"] += 1
            if st["n"] >= (2 * every if self.segof(8 * self.issued) in "AB" else every):
                n0 = len(self.e.vm)
                while len(self.e.vm) == n0:
                    if not next(self.dmaf):
                        return
                st["n"] = 0
        self.e.bg = f if self.opt.get("bg", 1) else None

    def bg_off(self):
        self.e.bg = None

    def gstore(self, lst, cold=False):
        e = self.e
        mode = self.opt.get("mode", "dual")
        if cold:
            mode = "safe"
        if mode != "dual":
            return [e.bstore(d, vo, WS, so, off, "sc1" if mode == "safe" else "") for d, vo, so, off in lst]
        ls, le = e.newlabel("st_safe"), e.newlabel("st_end")
        regs = []
        for d, vo, so, off in lst:
            regs += d.regs() + vo.regs()
        e.wait_ops(e._pending(regs))
        e.S("s_cmp_eq_u32", sLocal, 0)
        need = e._need("vmem", regs, [])
        if need > 1:
            e.nop(need - 1)
        e.branch("s_cbranch_scc1", ls)
        n0 = len(e.lines)
        ops = [e.bstore(d, vo, WS, so, off, "") for d, vo, so, off in lst]
        body = e.lines[n0:]
        assert len(body) == len(lst), body
        e.raw(f"  s_branch {le}")
        e.label(ls)
        for l in body:
            e.raw(l + " sc1")
        e.label(le)
        return ops

    def touch_gen(self, lst, cold=False):
        e = self.e
        if cold or not self.opt.get("touch", 0):
            return
        for _ in range(self.opt.get("touch_delay", 60)):
            yield "idle"
        for vo, sb, add, off in lst:
            e.S("s_add_u32", sE, sb, add); yield
            e.touch(vDum, vo, WS, sE, off); yield

    def local_gen(self):
        e = self.e
        e.S("s_lshl_b32", sE, sR, 8); yield
        e.S("s_add_u32", sE, sE, FLG_X); yield
        e.bload(TMP[52], vFl, WS, sE, 0, "sc1"); yield
        for _ in range(40):
            yield "idle"
        e.V("v_cmp_ne_u32", VCC, sX1, TMP[52]); yield
        e.S("s_cmp_eq_u64", VCC, 0)
        e.S("s_cselect_b32", sLocal, 1, 0); yield

    def poll(self, kind, val):
        e = self.e
        skip = e.newlabel("nopoll")
        loop = e.newlabel("poll")
        e.S("s_cmp_lg_u32", sWave, 0)
        e.branch("s_cbranch_scc1", skip)
        e.cond_begin()
        acc = vPollR if kind == "row" else vPollC
        t = TMP[55]
        e.S("s_mov_b32", sCnt, 0)
        e.label(loop)
        e.misc(f"buffer_load_dword {t}, {vFl}, {WS}, {sFRL if kind == 'row' else sFC} offen sc1")
        e.misc("s_add_u32 %s, %s, 1" % (sCnt, sCnt))
        e.misc("s_waitcnt vmcnt(0)")
        e.misc(f"v_max_u32 {acc}, {acc}, {t}")
        e.misc(f"v_cmp_gt_u32 vcc, {val}, {acc}")
        e.misc(f"s_cbranch_vccz {skip}")
        if kind == "row":
            e.misc(f"s_and_b32 {sA}, {sCnt}, 3")
            e.misc(f"s_cbranch_scc1 {loop}")
            e.misc(f"buffer_load_dword {t}, {vFl}, {WS}, {sFRG} offen sc1")
            e.misc("s_waitcnt vmcnt(0)")
            e.misc(f"v_max_u32 {acc}, {acc}, {t}")
        else:
            e.misc("s_sleep 2")
        e.misc(f"s_cmp_lt_u32 {sCnt}, 0x40000")
        e.misc(f"s_cbranch_scc1 {loop}")
        e.cond_end()
        e.label(skip)

    def flag(self, kind, val):
        e = self.e
        lst = [(1, sFRG, "sc1", sC), (2, sFRL, "", sC)] if kind == "row" else [(1, sFC, "sc1", sR)]
        for w, sb, m, sidx in lst:
            skip = e.newlabel("noflag")
            e.S("s_cmp_lg_u32", sWave, w)
            e.branch("s_cbranch_scc1", skip)
            e.cond_begin()
            e.S("s_lshl_b32", sA, sidx, 2)
            e.V("v_mov_b32", TMP[54], sA)
            e.V("v_mov_b32", TMP[55], val)
            e.S("s_mov_b64", EXEC, 1)
            e.bstore(TMP[55], TMP[54], WS, sb, 0, m)
            e.S("s_mov_b64", EXEC, -1)
            e.cond_end()
            e.label(skip)

    def handoff(self, val, ops, shadow=None):
        e = self.e
        e.wait_all_lg()
        self.ring_barrier(self.cons + FI + self.opt.get("ahead", 16), ops)
        self.hold = None
        self.flag("row", val)
        self.stamp("flag")
        self.dma_burst(self.opt.get("burst", 6))
        self.prime()
        if shadow:
            shadow()
        self.poll("row", val)
        e.barrier()
        self.stamp("go")

    def phaseA(self, p):
        e = self.e
        opt = self.opt
        xv = 2 * p
        acc = lambda T, u: ACC[(T * 2 + u) * 4:(T * 2 + u) * 4 + 4]
        xf = lambda ks, u: a((ks * 2 + u) * 4, 4) if ks < 20 else XE[u]
        self.stats_loads(xv)
        al = self.ALoad(self, vAx, (sXr, XB[xv]), 20)
        al.upto(opt.get("adist", 8) - 1)
        if p == 0:
            for _ in range(opt.get("second_groups", 6)):
                for _ in self.dma_group():
                    pass
            self.prologue2()
            e.wait_all_lg()
            self.ring_barrier(FI + 16)
            self.prime()
            self.stamp("start")
        i0 = self.seqstart[("A1", p)]
        fb = 102
        sst, sad = self.scratch(28, self.seq[i0 + fb][0])
        self.hold = sst

        def mf(t, W, u):
            ks, T = divmod(t, 5)
            e.mfma(acc(T, u), xf(ks, u), W, acc(T, u) if ks else 0)
        self.run_pass(105, mf, 5, xf, [self.stats_gen(True)], stop_reads=self.seqstart[("A4", p)], aload=al,
                      amix=(2, 1) if p == 0 else (1, 0), vrate=0.67 if p == 0 else 0.5, force_bar=fb)
        assert sst + 28 <= self.freed
        self.stamp("A1")
        self.bg_on()
        C2T = TMP[8:16]
        for j in range(8):
            e.V("v_mul_f32", C2T[j], lit(LOG2E), RT[j])
        KF = [TMP[16:20], TMP[20:24], TMP[24:28]]
        VF = {3: TMP[28:32], 4: TMP[32:36], 2: TMP[36:40]}
        tt = [TMP[40:44], TMP[44:48]]
        n = 0
        for T in range(3):
            for u in range(2):
                for h in range(2):
                    t = tt[n % 2]
                    n += 1
                    self.phi_pair(acc(T, u)[2 * h:2 * h + 2], C2T[4 * u + 2 * h:4 * u + 2 * h + 2], False, t)
                    e.V("v_cvt_pk_bf16_f32", KF[T][2 * u + h], t[0], t[1])
        for T in (3, 4, 2):
            for u in range(2):
                for h in range(2):
                    x = acc(T, u)[2 * h:2 * h + 2]
                    e.V("v_pk_mul_f32", x, x, RT[4 * u + 2 * h:4 * u + 2 * h + 2])
            for u in range(2):
                for h in range(2):
                    x = acc(T, u)[2 * h:2 * h + 2]
                    e.V("v_cvt_pk_bf16_f32", VF[T][2 * u + h], x[0], x[1])
        for j in range(4):
            e.V("v_cndmask_b32", VF[2][j], VF[2][j], vOne, sMaskV)
        PR = [ACC[4 * i:4 * i + 4] for i in range(7)]
        prods = [(0, 3), (0, 2), (1, 4), (1, 2), (2, 3), (2, 4), (2, 2)]
        for i, (kt, vt) in enumerate(prods):
            e.mfma(PR[i], KF[kt], VF[vt], 0)
        e.S("s_mul_i32", sA, sWave, 7168)
        e.S("s_add_u32", sA, sA, sad)
        e.V("v_add_u32", TMP[0], sA, vL16)
        e.V("v_add_u32", TMP[1], sad, vKvSrc)
        for i in range(7):
            e.ds_write(TMP[0], PR[i], i * 1024)
        e.wait_all_lg()
        e.barrier()
        RD = [TMP[16 + 4 * w:20 + 4 * w] for w in range(4)]
        for w in range(4):
            e.ds_read(RD[w], TMP[1], w * 7168)
        for h in range(2):
            e.V("v_pk_add_f32", RD[0][2 * h:2 * h + 2], RD[0][2 * h:2 * h + 2], RD[1][2 * h:2 * h + 2])
            e.V("v_pk_add_f32", RD[2][2 * h:2 * h + 2], RD[2][2 * h:2 * h + 2], RD[3][2 * h:2 * h + 2])
        for h in range(2):
            e.V("v_pk_add_f32", RD[0][2 * h:2 * h + 2], RD[0][2 * h:2 * h + 2], RD[2][2 * h:2 * h + 2])
        e.S("s_mul_i32", sA, sR, KVSZ)
        e.S("s_add_u32", sA, sA, sKv)
        e.S("s_add_u32", sA, sA, KVB[p])
        kvst = e.bstore(RD[0], vT16, WS, sA, 0, "sc1")
        self.bg_off()
        self.stamp("kvpub")
        PL = [ACC[4 * i:4 * i + 4] for i in range(10)] + [TMP[24 + 4 * i:28 + 4 * i] for i in range(6)]

        def barhook(t):
            def rel():
                self.hold = None
            return [], rel

        def kvloads():
            for i in range(16):
                if i % 2 == 0:
                    e.S("s_add_u32", sB, sKv, KVB[p] + i * KVSZ); yield
                e.bload(PL[i], vT16, WS, sB, (i % 2) * KVSZ, "sc1"); yield

        def kvsum():
            for st in (1, 2, 4, 8):
                for i in range(0, 16, 2 * st):
                    for h in range(2):
                        e.V("v_pk_add_f32", PL[i][2 * h:2 * h + 2], PL[i][2 * h:2 * h + 2], PL[i + st][2 * h:2 * h + 2])
            e.V("v_cmp_u_f32", VCC, PL[0][0], PL[0][1])
            e.V("v_cmp_u_f32", sNan, PL[0][2], PL[0][3])
            e.S("s_or_b64", VCC, VCC, sNan)

        def mfq(t, W, u):
            ks, T = divmod(t, 3)
            e.mfma(acc(5 + T, u), W, xf(ks, u), acc(5 + T, u) if ks else 0)
        self.lastbar = self.rd - 8
        fl = [self.touch_gen([(vAx[0], sOo, OB[p], 0), (vAx[1], sOo, OB[p], 0), (vOh, sOoh, OB[p], 0), (vOh, sOoh, OB[p] + 20 * KB, 0)], p == 0)]
        if p == 0:
            fl.append(self.local_gen())
        self.run_pass(63, mfq, 3, xf, fl, stop_reads=self.seqstart[("A4", p)], hooks={"bar": barhook},
                      late=(opt.get("kvload_at", 30), kvloads()), see_all=True)
        self.stamp("A2")
        PQ0 = [TMP[0:4], TMP[4:8]]
        PQ1 = [TMP[8:12], TMP[12:16]]
        tq = [TMP[16:20], TMP[20:24]]
        for u in range(2):
            c2 = vC2 if u == 0 else vC2b
            for h in range(2):
                self.phi_pair(acc(5, u)[2 * h:2 * h + 2], c2, True, tq[0])
                self.phi_pair(acc(6, u)[2 * h:2 * h + 2], c2, True, tq[1])
                e.V("v_cvt_pk_bf16_f32", PQ0[u][2 * h], tq[0][0], tq[1][0])
                e.V("v_cvt_pk_bf16_f32", PQ0[u][2 * h + 1], tq[0][1], tq[1][1])
            for h in range(2):
                self.phi_pair(acc(7, u)[2 * h:2 * h + 2], c2, True, tq[h])
                e.V("v_cvt_pk_bf16_f32", PQ1[u][h], tq[h][0], tq[h][1])
            e.V("v_mov_b32", PQ1[u][2], 0)
            e.V("v_mov_b32", PQ1[u][3], 0)
        self.stamp("qepi")
        kvsum()
        lok, lre = e.newlabel("kvok"), e.newlabel("kvretry")
        e.branch("s_cbranch_scc0", lok)
        e.cond_begin()
        e.S("s_mov_b32", sCnt, 0)
        e.label(lre)
        e.misc("s_sleep 4")
        for _ in kvloads():
            pass
        kvsum()
        e.branch("s_cbranch_scc0", lok)
        e.S("s_add_u32", sCnt, sCnt, 1)
        e.S("s_cmp_lt_u32", sCnt, 0x10000)
        e.branch("s_cbranch_scc1", lre)
        e.cond_end()
        e.label(lok)
        self.stamp("kvgo")
        self.bg_on(5)
        e.V("v_cvt_pk_bf16_f32", TMP[16], PL[0][0], PL[0][1])
        e.V("v_cvt_pk_bf16_f32", TMP[17], PL[0][2], PL[0][3])
        e.ds_write(vKvDst, TMP[16:18])
        e.wait_all_lg()
        e.barrier()
        FR = [TMP[16 + 4 * i:20 + 4 * i] for i in range(10)]
        for T in range(3):
            for ks in range(2):
                e.ds_read(FR[T * 2 + ks], vL16, IMG + (T * 2 + ks) * KB)
        for ks in range(2):
            e.ds_read(FR[6 + ks], vZ01, ks * 64)
            e.ds_read(FR[8 + ks], vZ2, ks * 64)
        oa = lambda T, u: ACC[(T * 2 + u) * 4:(T * 2 + u) * 4 + 4]
        for T in (3, 4, 0, 1, 2):
            for u in range(2):
                e.mfma(oa(T, u), FR[2 * T], PQ0[u], 0)
        for T in (3, 4, 0, 1, 2):
            for u in range(2):
                e.mfma(oa(T, u), FR[2 * T + 1], PQ1[u], oa(T, u))
        e.S("s_add_u32", sA, sOo, OB[p])
        e.S("s_add_u32", sB, sOoh, OB[p])
        e.S("s_add_u32", sD, sOoh, OB[p] + 20 * KB)
        ops = []
        for u in range(2):
            for x in (oa(3, u)[0], oa(3, u)[2], oa(4, u)[0]):
                e.V("v_add_f32", x, vEps[0], x)
        for u in range(2):
            for x in (oa(3, u)[0], oa(3, u)[2], oa(4, u)[0]):
                e.V("v_rcp_f32", x, x)
        for u in range(2):
            for T in range(3):
                for h in range(2):
                    x = oa(T, u)[2 * h:2 * h + 2]
                    dn = oa(3, u)[2 * h:2 * h + 2] if T < 2 else oa(4, u)[0:2]
                    e.V("v_pk_mul_f32", x, x, dn, mods="op_sel_hi:[1,0]")
            o4 = TMP[16 + 8 * u:20 + 8 * u]
            o2 = TMP[20 + 8 * u:22 + 8 * u]
            for j in range(4):
                e.V("v_cvt_pk_bf16_f32", o4[j], oa(0, u)[j], oa(1, u)[j])
            for h in range(2):
                e.V("v_cvt_pk_bf16_f32", o2[h], oa(2, u)[2 * h], oa(2, u)[2 * h + 1])
            if u == 0:
                ops += self.gstore([(o4, vAx[u], sA, 0), (o2, vOh, sB, 0)], p == 0)
            else:
                ops += self.gstore([(o4, vAx[u], sA, 0), (o2, vOh, sD, 0)], p == 0)
        self.bg_off()
        self.stamp("A3")
        def shadow():
            if p == 0:
                self.unpack(RES, RES[10:20])
                self.unpack(B2F, B2F[10:20])
        self.handoff(4 * p + 1, ops, shadow)

    def phase64(self, p, kind):
        e = self.e
        opt = self.opt
        nks = 10 if kind == "O" else 27
        name = "A4" if kind == "O" else "B2"
        acc = lambda T, u: ACC[(u * 5 + T) * 4:(u * 5 + T) * 4 + 4]
        if kind == "O":
            al = self.ALoad(self, vAo, (sXr, OB[p]), nks)
        else:
            al = self.ALoad(self, vAh, (sHr, HB[p]), nks)
        al.upto(opt.get("adist", 8) - 1)
        xf = lambda ks, u: a((ks * 2 + u) * 4, 4)
        if kind == "C":
            e.ds_read(TMP[50], vRF)
        i0 = self.seqstart[(name, p)]
        fb = 5 * nks - 3
        sst, sad = self.scratch(20, self.seq[i0 + fb][0])
        self.hold = sst
        stop = i0 + 5 * nks

        def mf(t, W, u):
            ks, T = divmod(t, 5)
            e.mfma(acc(T, u), W, xf(ks, u), acc(T, u) if ks else 0)
        last = kind == "C" and p == 1
        xv = 2 * p + (1 if kind == "O" else 2)
        fl = [] if last else [self.touch_gen([(vXs, sOx, XB[xv], 0), (vXs, sOx, XB[xv], 1024), (vXh, sOxh, XB[xv], 0), (vStW, sOst, STB[xv], 0)])]
        self.run_pass(5 * nks, mf, 5, xf, fl, force_bar=fb, chunk=(12 if kind == "O" else opt.get("chunkC", 8)), stop_reads=stop, aload=al,
                      amix=(1, 0) if kind == "O" else tuple(opt.get("amixC", (3, 2))), vrate=0.5 if kind == "O" else opt.get("vrateC", 0.8))
        self.stamp(name)
        self.bg_on()
        e.V("v_add_u32", TMP[0], sad, vXch)
        e.S("s_xor_b32", sA, sWave, 1)
        e.S("s_mul_i32", sA, sA, 5120)
        e.S("s_add_u32", sA, sA, sad)
        e.V("v_add_u32", TMP[1], sA, vL16)
        assert sst + 20 <= self.freed
        for T in range(5):
            e.ds_write(TMP[0], acc(T, 1), T * KB)
        e.wait_all_lg()
        e.barrier()
        PT = TMP[4:24]
        for T in range(5):
            e.ds_read(PT[4 * T:4 * T + 4], TMP[1], T * KB)
        own = ACC[0:20]
        if kind == "C":
            e.V("v_mul_f32", TMP[50], TMP[50], TMP[50])
        for h in range(10):
            x = own[2 * h:2 * h + 2]
            e.V("v_pk_add_f32", x, x, PT[2 * h:2 * h + 2])
            if kind == "O":
                e.V("v_pk_add_f32", x, x, RES[2 * h:2 * h + 2])
            else:
                e.V("v_pk_fma_f32", x, x, TMP[50:52], RES[2 * h:2 * h + 2], mods="op_sel_hi:[1,0,1]")
        PK = TMP[24:34]
        for a_ in range(2):
            for j in range(4):
                e.V("v_cvt_pk_bf16_f32", PK[4 * a_ + j], own[8 * a_ + j], own[8 * a_ + 4 + j])
        for h in range(2):
            e.V("v_cvt_pk_bf16_f32", PK[8 + h], own[16 + 2 * h], own[16 + 2 * h + 1])
        self.bg_off()
        if last:
            e.bstore(PK[0:4], vOut, OUT, 0, 0)
            e.bstore(PK[4:8], vOut, OUT, 0, 64)
            e.bstore(PK[8:10], vOut4, OUT, 0, 128)
            self.stamp("end")
            return
        xv = 2 * p + (1 if kind == "O" else 2)
        ops = []
        e.S("s_add_u32", sA, sOx, XB[xv])
        e.S("s_add_u32", sB, sOxh, XB[xv])
        e.S("s_add_u32", sD, sOst, STB[xv])
        ops += self.gstore([(PK[0:4], vXs, sA, 0), (PK[4:8], vXs, sA, 1024), (PK[8:10], vXh, sB, 0)])
        sm, sq, t0 = TMP[36], TMP[37], TMP[38]
        e.V("v_mov_b32", sm, 0)
        e.V("v_mov_b32", sq, 0)
        for j in range(10):
            e.V("v_dot2c_f32_bf16", sm, PK[j], vOne)
            e.V("v_dot2c_f32_bf16", sq, PK[j], PK[j])
        e.V("v_permlane32_swap_b32", sm, sq)
        e.V("v_add_f32", sm, sm, sq)
        e.V("v_mov_b32", t0, sm)
        e.V("v_permlane16_swap_b32", sm, t0)
        e.V("v_add_f32", sm, sm, t0)
        ops += self.gstore([(sm, vStW, sD, 0)])
        self.stamp(name + "epi")

        def shadow():
            self.unpack(RES, PK)
            if kind == "O":
                for h in range(10):
                    x = RES[2 * h:2 * h + 2]
                    e.V("v_pk_add_f32", x, x, B2F[2 * h:2 * h + 2])
        self.handoff(4 * p + (2 if kind == "O" else 4), ops, shadow)

    def phaseB1(self, p):
        e = self.e
        opt = self.opt
        xv = 2 * p + 1
        acc = lambda T, u: ACC[(T * 2 + u) * 4:(T * 2 + u) * 4 + 4]
        xf = lambda ks, u: a((ks * 2 + u) * 4, 4) if ks < 20 else XE[u]
        self.stats_loads(xv)
        al = self.ALoad(self, vAx, (sXr, XB[xv]), 20)
        al.upto(opt.get("adist", 8) - 1)
        stop = self.seqstart[("B2", p)]

        def mf(t, W, u):
            ks, T = divmod(t, 4)
            e.mfma(acc(T, u), W, xf(ks, u), acc(T, u) if ks else 0)
        tl = [(vHs, sOh, HB[p] + u * 54 * KB, a_ * KB) for a_ in range(3) for u in range(2)] + [(vHh, sOhh, HB[p] + u * 54 * KB, 0) for u in range(2)]
        self.run_pass(84, mf, 4, xf, [self.stats_gen(False), self.touch_gen(tl, p == 0)], stop_reads=stop, aload=al)
        self.stamp("B1a")
        ops = []

        def epi(pairs, single):
            n = 0
            for u in range(2):
                sb = sD if u == 0 else sE
                e.S("s_add_u32", sb, sOh, HB[p] + u * 54 * KB); yield
                for a_ in pairs:
                    o = TMP[16 + 4 * (n % 4):20 + 4 * (n % 4)]
                    n += 1
                    for j in range(4):
                        x, y = acc(2 * a_, u)[j], acc(2 * a_ + 1, u)[j]
                        e.V("v_mul_f32_e64", x, x, f"|{x}|"); yield
                        e.V("v_mul_f32_e64", y, y, f"|{y}|"); yield
                        e.V("v_cvt_pk_bf16_f32", o[j], x, y); yield
                        e.V("v_pk_max_i16", o[j], o[j], 0); yield
                    ops.extend(self.gstore([(o, vHs, sb, a_ * KB)], p == 0)); yield
            if single:
                for u in range(2):
                    o = TMP[32 + 2 * u:34 + 2 * u]
                    for j in range(4):
                        x = acc(6, u)[j]
                        e.V("v_mul_f32_e64", x, x, f"|{x}|"); yield
                    for h in range(2):
                        e.V("v_cvt_pk_bf16_f32", o[h], acc(6, u)[2 * h], acc(6, u)[2 * h + 1]); yield
                        e.V("v_pk_max_i16", o[h], o[h], 0); yield
                e.S("s_add_u32", sA, sOhh, HB[p])
                e.S("s_add_u32", sB, sOhh, HB[p] + 54 * KB)
                ops.extend(self.gstore([(TMP[32:34], vHh, sA, 0), (TMP[34:36], vHh, sB, 0)], p == 0))
                yield

        def mf2(t, W, u):
            ks, T = divmod(t, 3)
            e.mfma(acc(4 + T, u), W, xf(ks, u), acc(4 + T, u) if ks else 0)
        self.run_pass(63, mf2, 3, xf, [epi([0, 1], False)], stop_reads=stop)
        self.stamp("B1b")
        for _ in epi([2], True):
            pass
        self.stamp("B1epi")
        self.handoff(4 * p + 3, ops)

    def gen(self):
        e = self.e
        e.reset_state()
        self.cInvD = s(63)
        self.prologue()
        e.S("s_mov_b32", self.cInvD, lit(1.0 / D))
        if self.opt.get("dbg"):
            e.memtime(s(76, 2), True)
            e.memtime(s(78, 2))
            e.wait_all_lg()
        self.stamp("entry")
        if self.opt.get("stamps"):
            e.memtime(sTm, True)
            e.V("v_writelane_b32", v(53), sTm[0], 62)
        stop = self.opt.get("stop", 99)
        n = 0
        for p in range(2):
            for f in (lambda: self.phaseA(p), lambda: self.phase64(p, "O"), lambda: self.phaseB1(p), lambda: self.phase64(p, "C")):
                if n < stop:
                    f()
                n += 1
        if self.opt.get("stamps"):
            e.wait_all_vm()
            e.memtime(sTm, True)
            e.V("v_writelane_b32", v(53), sTm[0], 63)
            e.S("s_lshl_b32", sA, s(2), 2)
            e.S("s_add_u32", sA, sA, sWave)
            e.S("s_lshl_b32", sA, sA, 8)
            e.S("s_add_u32", sA, sA, STAMP)
            e.V("v_lshlrev_b32", TMP[1], 2, vLane)
            e.bstore(v(53), TMP[1], WS, sA)
        if self.opt.get("dbg"):
            e.wait_all_vm()
            e.memtime(s(80, 2), True)
            e.memtime(s(82, 2))
            e.sload(s(84, 2), s(0, 2), 72)
            e.S("s_sub_u32", s(84), s(84), 512)
            e.S("s_subb_u32", s(85), s(85), 0)
            e.S("s_sub_u32", s(82), s(82), s(78))
            e.V("v_mov_b32", TMP[0], s(76))
            e.V("v_mov_b32", TMP[1], s(80))
            e.V("v_mov_b32", TMP[2], s(82))
            e.S("s_lshr_b32", sA, s(2), 6)
            e.S("s_mul_i32", sA, sA, 12)
            e.S("s_add_u32", sA, sA, 16)
            e.V("v_mov_b32", TMP[4], sA)
            e.S("s_and_b32", sA, s(2), 63)
            e.S("s_add_u32", sA, sA, sWave)
            e.S("s_cmp_lg_u32", sA, 0)
            e.branch("s_cbranch_scc1", "main_end")
            e.S("s_mov_b64", EXEC, 1)
            e.misc(f"global_store_dwordx3 {TMP[4]}, {TMP[0:3]}, s[84:85]")
        e.label("main_end")
        e.misc("s_endpgm")
```

```python
from asmgen import *
from layout import *

NWG_PREP = 544
BIG = 0x40000000


def mk_srd(e, d, ptr, nbytes):
    e.S("s_mov_b32", d[0], ptr[0])
    e.S("s_mov_b32", d[1], ptr[1])
    e.S("s_mov_b32", d[2], nbytes)
    e.S("s_mov_b32", d[3], "0x00020000")


def allreduce_g(e, x, t):
    e.V("v_mov_b32", t, x)
    e.V("v_permlane32_swap_b32", x, t)
    e.V("v_add_f32", x, x, t)
    e.V("v_mov_b32", t, x)
    e.V("v_permlane16_swap_b32", x, t)
    e.V("v_add_f32", x, x, t)


def gen_prep(e, code_label, code_bytes, stamps=False, dbg=False):
    e.reset_state()
    def endpgm():
        if stamps:
            e.wait_all_vm()
            e.misc("s_waitcnt vmcnt(0)")
            e.memtime(s(70, 2), True)
            e.S("s_mov_b64", EXEC, 1)
            e.V("v_mov_b32", v(90), s(68))
            e.V("v_mov_b32", v(91), s(70))
            e.S("s_lshl_b32", s(72), s(73), 3)
            e.V("v_mov_b32", v(92), s(72))
            e.S("s_mov_b32", s(72), PSTAMP)
            e.bstore(v(90, 2), v(92), s(12, 4), s(72))
        e.misc("s_endpgm")

    P = s(16, 16)
    px, pqkv, pwo, pw1, pb1, pw2 = P[0:2], P[2:4], P[4:6], P[8:10], P[10:12], P[12:14]
    pws = s(36, 2)
    SRC, WS, SB1 = s(8, 4), s(12, 4), s(40, 4)
    sJ, sT, sP, sC, sStride, sRow, sD0, sDS, sA, sB = [s(44 + i) for i in range(10)]
    sTmp = [s(56 + i) for i in range(8)]
    vLane, vN, vG, vL16, vCol, vReg, vLeft, vT0, vT1 = [v(1 + i) for i in range(9)]
    RAW = v(16, 40)
    PK = v(56, 20)
    EX = v(76, 4)
    vBias = v(80)
    vSum = v(81)

    end = "prep_end"
    e.S("s_cmp_ge_u32", s(2), NWG_PREP)
    e.branch("s_cbranch_scc1", end)
    if stamps or dbg:
        e.memtime(s(68, 2), True)
    e.sload(P, s(0, 2), 0)
    e.sload(pws, s(0, 2), 80)
    e.V("v_lshrrev_b32", vT0, 6, v(0))
    e.V("v_and_b32", vLane, 63, v(0))
    e.V("v_readfirstlane_b32", sJ, vT0)
    e.V("v_and_b32", vN, 15, vLane)
    e.V("v_lshrrev_b32", vG, 4, vLane)
    e.V("v_lshlrev_b32", vL16, 4, vLane)
    e.S("s_lshl_b32", sA, s(2), 2)
    e.S("s_add_u32", sJ, sJ, sA)
    e.S("s_mov_b32", s(73), sJ)
    mk_srd(e, WS, pws, WS_USED)
    mk_srd(e, SB1, pb1, F * 2)
    mk_srd(e, SRC, px, XSZ)

    e.S("s_cmp_ge_u32", sJ, 1664)
    e.branch("s_cbranch_scc1", "prep_x")
    e.S("s_cmp_ge_u32", sJ, 1184)
    e.branch("s_cbranch_scc1", "prep_wc")
    e.S("s_cmp_ge_u32", sJ, 1024)
    e.branch("s_cbranch_scc1", "prep_wo")
    e.S("s_cmp_ge_u32", sJ, 512)
    e.branch("s_cbranch_scc1", "prep_wb")

    def lane_terms(stride, lt_a, lt_b, lt_g):
        e.S("s_mov_b32", sA, 8 * stride)
        e.V("v_mad_u32_u24", vReg, vG, sA, vCol)
        if lt_g:
            e.S("s_mov_b32", sA, lt_g * stride)
            e.V("v_mad_u32_u24", vLeft, vG, sA, vCol)
        else:
            e.V("v_lshrrev_b32", vT0, 1, vG)
            e.V("v_and_b32", vT1, 1, vG)
            e.S("s_mov_b32", sA, lt_a * stride)
            e.V("v_mad_u32_u24", vLeft, vT0, sA, vCol)
            e.S("s_mov_b32", sA, lt_b * stride)
            e.V("v_mad_u32_u24", vLeft, vT1, sA, vLeft)

    def load_block(b, vaddr, srow, rconst, stride):
        for i in range(8):
            t = sTmp[i]
            e.S("s_add_u32", t, srow, (rconst + i) * stride)
            e.bload(RAW[b * 8 + i], vaddr, SRC, t, 0, w="ushort")

    def pack_block(b):
        for i in range(4):
            e.V("v_lshl_or_b32", PK[b * 4 + i], RAW[b * 8 + 2 * i + 1], 16, RAW[b * 8 + 2 * i])

    def colsum_extra(with_bias):
        e.S("s_mov_b32", sA, "0x3f803f80")
        e.V("v_mov_b32", vT1, sA)
        e.V("v_mov_b32", vSum, 0)
        for i in range(20):
            e.V("v_dot2c_f32_bf16", vSum, PK[i], vT1)
        allreduce_g(e, vSum, vT0)
        e.V("v_sub_f32", vSum, 0, vSum)
        e.V("v_cvt_pk_bf16_f32", vT0, vSum, vSum)
        e.V("v_lshlrev_b32", vT0, 16, vT0)
        e.V("v_sub_f32", vT0, vSum, vT0)
        e.V("v_cvt_pk_bf16_f32", EX[0], vSum, vT0)
        e.V("v_and_b32", EX[1], "0xffff", EX[0])
        e.V("v_mov_b32", EX[3], 0)
        if with_bias:
            e.V("v_lshl_or_b32", EX[2], vBias, 16, vBias)
            e.S("s_cmp_eq_u32", sP, 0)
            e.S("s_cselect_b32", sA, -1, 0)
            e.V("v_and_b32", EX[2], sA, EX[2])
        else:
            e.V("v_mov_b32", EX[2], 0)
        e.S("s_mul_i32", sA, sDS, 20)
        e.S("s_add_u32", sA, sA, sD0)
        e.S("s_lshl_b32", sB, sP, 8)
        e.S("s_add_u32", sA, sA, sB)
        e.S("s_mov_b64", EXEC, "0xffff")
        e.bstore(EX, vL16, WS, sA)

    def linear_stores():
        for b in range(5):
            pack_block(b)
            if b < 4:
                e.S("s_lshl_b32", sA, sP, 2)
                e.S("s_add_u32", sA, sA, b)
            else:
                e.S("s_add_u32", sA, sP, 16)
            e.S("s_mul_i32", sA, sA, sDS)
            e.S("s_add_u32", sA, sA, sD0)
            e.bstore(PK[b * 4:b * 4 + 4], vL16, WS, sA)

    def xorder_loads(stride):
        e.S("s_mul_i32", sRow, sP, 160 * stride)
        lane_terms(stride, 80, 8, 0)
        for b in range(4):
            load_block(b, vReg, sRow, 80 * (b >> 1) + 32 * (b & 1), stride)
        load_block(4, vLeft, sRow, 64, stride)

    mk_srd(e, SRC, pqkv, D * 3 * D * 2)
    e.S("s_and_b32", sT, sJ, 7)
    e.S("s_bfe_u32", sP, sJ, (2 << 16) | 3)
    e.S("s_lshr_b32", sC, sJ, 5)
    e.S("s_mov_b32", sA, 640)
    for t, val in ((1, 660), (2, 656), (3, 1280), (4, 1300), (5, 0), (6, 1), (7, 32)):
        e.S("s_cmp_eq_u32", sT, t)
        e.S("s_cselect_b32", sA, val, sA)
    e.S("s_mul_i32", sB, sC, 40)
    e.S("s_add_u32", sA, sA, sB)
    e.V("v_add_u32", vCol, sA, vN)
    e.V("v_add_u32", vT0, vCol, vN)
    e.S("s_sub_u32", sB, sT, 5)
    e.S("s_cmp_lt_u32", sB, 2)
    e.S("s_cselect_b64", VCC, -1, 0)
    e.V("v_cndmask_b32", vCol, vCol, vT0, VCC)
    e.V("v_lshrrev_b32", vT0, 3, vN)
    e.V("v_mul_u32_u24", vT0, 640, vT0)
    e.V("v_bfe_u32", vT1, vN, 2, 1)
    e.V("v_mul_u32_u24", vT1, 20, vT1)
    e.V("v_add3_u32", vT0, vT0, vT1, sA)
    e.V("v_and_b32", vT1, 3, vN)
    e.V("v_add_u32", vT0, vT0, vT1)
    e.S("s_cmp_eq_u32", sT, 2)
    e.S("s_cselect_b64", VCC, -1, 0)
    e.V("v_cndmask_b32", vCol, vCol, vT0, VCC)
    e.V("v_lshlrev_b32", vCol, 1, vCol)
    e.S("s_cmp_eq_u32", sT, 7)
    e.S("s_cselect_b32", sB, 8, 16)
    e.V("v_cmp_le_u32", VCC, sB, vN)
    e.V("v_mov_b32", vT0, BIG)
    e.V("v_cndmask_b32", vCol, vCol, vT0, VCC)
    xorder_loads(3840)
    e.S("s_cmp_lt_u32", sT, 5)
    e.S("s_cselect_b32", sDS, 5, 3)
    e.S("s_cselect_b32", sA, 0, 100)
    e.S("s_add_u32", sA, sA, sT)
    e.S("s_mul_i32", sB, sC, NA)
    e.S("s_add_u32", sA, sA, sB)
    e.S("s_lshl_b32", sA, sA, 10)
    e.S("s_add_u32", sD0, sA, WA)
    e.S("s_lshl_b32", sDS, sDS, 10)
    linear_stores()
    colsum_extra(False)
    endpgm()

    e.reset_state()
    e.label("prep_wb")
    mk_srd(e, SRC, pw1, D * F * 2)
    e.S("s_sub_u32", sJ, sJ, 512)
    e.S("s_and_b32", sT, sJ, 7)
    e.S("s_bfe_u32", sP, sJ, (2 << 16) | 3)
    e.S("s_lshr_b32", sC, sJ, 5)
    e.S("s_cmp_eq_u32", sT, 7)
    e.branch("s_cbranch_scc1", "prep_flags")
    e.S("s_mul_i32", sA, sC, 112)
    e.S("s_max_u32", sB, sC, 12)
    e.S("s_sub_u32", sB, sB, 12)
    e.S("s_lshl_b32", sB, sB, 4)
    e.S("s_sub_u32", sA, sA, sB)
    e.S("s_lshr_b32", sB, sT, 1)
    e.S("s_lshl_b32", sB, sB, 5)
    e.S("s_add_u32", sA, sA, sB)
    e.S("s_and_b32", sB, sT, 1)
    e.S("s_add_u32", sA, sA, sB)
    e.V("v_add_u32", vCol, sA, vN)
    e.V("v_add_u32", vT0, vCol, vN)
    e.S("s_cmp_lt_u32", sT, 6)
    e.S("s_cselect_b64", VCC, -1, 0)
    e.V("v_cndmask_b32", vCol, vCol, vT0, VCC)
    e.V("v_lshlrev_b32", vCol, 1, vCol)
    e.S("s_lshl_b32", sA, sT, 4)
    e.S("s_add_u32", sA, sA, sC)
    e.S("s_cmp_ge_u32", sA, 6 * 16 + 12)
    e.S("s_cselect_b64", VCC, -1, 0)
    e.V("v_mov_b32", vT0, BIG)
    e.V("v_cndmask_b32", vCol, vCol, vT0, VCC)
    e.bload(vBias, vCol, SB1, 0, 0, w="ushort")
    xorder_loads(3456)
    e.S("s_cmp_lt_u32", sT, 4)
    e.S("s_cselect_b32", sDS, 4, 3)
    e.S("s_cselect_b32", sA, 0, 80)
    e.S("s_add_u32", sA, sA, sT)
    e.S("s_mul_i32", sB, sC, NB)
    e.S("s_add_u32", sA, sA, sB)
    e.S("s_lshl_b32", sA, sA, 10)
    e.S("s_add_u32", sD0, sA, WB)
    e.S("s_lshl_b32", sDS, sDS, 10)
    linear_stores()
    colsum_extra(True)
    endpgm()

    e.reset_state()
    e.label("prep_flags")
    if dbg:
        e.memtime(s(70, 2), True)
        e.sload(s(74, 2), s(0, 2), 72)
        e.V("v_mov_b32", v(90), s(68))
        e.V("v_mov_b32", v(91), s(70))
        e.V("v_mov_b32", v(92), 0)
        e.S("s_cmp_lg_u32", sJ, 7)
        e.branch("s_cbranch_scc1", "prep_nodbg")
        e.S("s_mov_b32", s(72), PSTAMP)
        e.bstore(v(90, 2), v(92), WS, s(72))
        e.label("prep_nodbg")
    e.S("s_lshr_b32", sA, sJ, 3)
    e.S("s_lshl_b32", sA, sA, 8)
    e.V("v_lshlrev_b32", vT0, 2, vLane)
    e.V("v_mov_b32", vT1, 0)
    e.bstore(vT1, vT0, WS, sA)
    endpgm()

    def ocols(scg):
        e.S("s_mul_i32", sA, scg, 80)
        e.S("s_lshr_b32", sB, sT, 1)
        e.S("s_lshl_b32", sB, sB, 5)
        e.S("s_add_u32", sA, sA, sB)
        e.S("s_and_b32", sB, sT, 1)
        e.S("s_add_u32", sA, sA, sB)
        e.V("v_add_u32", vCol, sA, vN)
        e.V("v_add_u32", vT0, vCol, vN)
        e.S("s_cmp_lt_u32", sT, 4)
        e.S("s_cselect_b64", VCC, -1, 0)
        e.V("v_cndmask_b32", vCol, vCol, vT0, VCC)
        e.V("v_lshlrev_b32", vCol, 1, vCol)

    def div5(dstq, dstr, src):
        e.S("s_mul_i32", dstq, src, 52429)
        e.S("s_lshr_b32", dstq, dstq, 18)
        e.S("s_mul_i32", sA, dstq, 5)
        e.S("s_sub_u32", dstr, src, sA)

    def split_store(b, sks, half):
        pack_block(b)
        e.S("s_mul_i32", sA, sks, 10240)
        e.S("s_add_u32", sA, sA, sD0)
        e.S("s_cmp_ge_u32", sks, half)
        e.S("s_cselect_b32", sB, half * 10240 - 1024, 0)
        e.S("s_sub_u32", sA, sA, sB)
        e.bstore(PK[b * 4:b * 4 + 4], vL16, WS, sA)

    e.reset_state()
    e.label("prep_wo")
    mk_srd(e, SRC, pwo, D * D * 2)
    e.S("s_sub_u32", sJ, sJ, 1024)
    div5(sC, sT, sJ)
    e.S("s_and_b32", sP, sC, 3)
    e.S("s_lshr_b32", sC, sC, 2)
    ocols(sC)
    e.S("s_mul_i32", sRow, sP, 160 * 1280)
    lane_terms(1280, 0, 0, 40)
    for b in range(4):
        load_block(b, vReg, sRow, 40 * b, 1280)
    load_block(4, vLeft, sRow, 32, 1280)
    e.S("s_mul_i32", sD0, sC, NO * KB)
    e.S("s_lshl_b32", sA, sT, 11)
    e.S("s_add_u32", sD0, sD0, sA)
    e.S("s_add_u32", sD0, sD0, WO)
    for b in range(5):
        if b < 4:
            e.S("s_lshl_b32", sDS, sP, 2)
            e.S("s_add_u32", sDS, sDS, b)
        else:
            e.S("s_add_u32", sDS, sP, 16)
        split_store(b, sDS, 10)
    endpgm()

    e.reset_state()
    e.label("prep_wc")
    mk_srd(e, SRC, pw2, F * D * 2)
    e.S("s_sub_u32", sJ, sJ, 1184)
    div5(sC, sT, sJ)
    e.S("s_mul_i32", sB, sC, 43691)
    e.S("s_lshr_b32", sB, sB, 19)
    e.S("s_mul_i32", sA, sB, 12)
    e.S("s_sub_u32", sP, sC, sA)
    e.S("s_mov_b32", sC, sB)
    ocols(sC)
    lane_terms(1280, 112, 8, 0)
    for b in range(4):
        e.S("s_lshl_b32", sDS, sP, 2)
        e.S("s_add_u32", sDS, sDS, b)
        e.S("s_mul_i32", sA, sDS, 43691)
        e.S("s_lshr_b32", sA, sA, 17)
        e.S("s_mul_i32", sB, sA, 3)
        e.S("s_sub_u32", sB, sDS, sB)
        e.S("s_lshl_b32", sRow, sB, 5)
        e.S("s_mul_i32", sB, sA, 112)
        e.S("s_add_u32", sRow, sRow, sB)
        e.S("s_max_u32", sB, sA, 12)
        e.S("s_sub_u32", sB, sB, 12)
        e.S("s_lshl_b32", sB, sB, 4)
        e.S("s_sub_u32", sRow, sRow, sB)
        e.S("s_mul_i32", sRow, sRow, 1280)
        load_block(b, vReg, sRow, 0, 1280)
    e.S("s_and_b32", sA, sP, -2)
    e.S("s_mul_i32", sRow, sA, 112 * 1280)
    load_block(4, vLeft, sRow, 96, 1280)
    e.S("s_mul_i32", sD0, sC, NC * KB)
    e.S("s_lshl_b32", sA, sT, 11)
    e.S("s_add_u32", sD0, sD0, sA)
    e.S("s_add_u32", sD0, sD0, WC)
    for b in range(4):
        e.S("s_lshl_b32", sDS, sP, 2)
        e.S("s_add_u32", sDS, sDS, b)
        split_store(b, sDS, 27)
    e.S("s_bitcmp1_b32", sP, 0)
    e.branch("s_cbranch_scc1", "prep_end2")
    e.S("s_lshr_b32", sDS, sP, 1)
    e.S("s_add_u32", sDS, sDS, 48)
    split_store(4, sDS, 27)
    endpgm()

    e.reset_state()
    e.label("prep_x")
    e.S("s_sub_u32", sJ, sJ, 1664)
    e.S("s_and_b32", sP, sJ, 3)
    e.S("s_lshr_b32", sC, sJ, 2)
    e.V("v_mul_u32_u24", vCol, 1280, vN)
    e.V("v_lshl_add_u32", vReg, vG, 4, vCol)
    e.V("v_lshrrev_b32", vT0, 1, vG)
    e.V("v_mul_u32_u24", vT0, 160, vT0)
    e.V("v_and_b32", vT1, 1, vG)
    e.V("v_lshl_add_u32", vT0, vT1, 4, vT0)
    e.V("v_add_u32", vLeft, vT0, vCol)
    e.S("s_mul_i32", sRow, sC, 16 * 1280)
    e.S("s_mul_i32", sA, sP, 320)
    e.S("s_add_u32", sRow, sRow, sA)
    for b in range(4):
        e.bload(PK[b * 4:b * 4 + 4], vReg, SRC, sRow, (80 * (b >> 1) + 32 * (b & 1)) * 2)
    e.bload(PK[16:20], vLeft, SRC, sRow, 128)
    if code_label:
        e.S("s_getpc_b64", s(60, 2))
        e.label("prep_pc")
        e.S("s_add_u32", s(60), s(60), f"{code_label}-prep_pc")
        e.S("s_addc_u32", s(61), s(61), 0)
        e.S("s_lshr_b32", sA, sJ, 5)
        e.S("s_lshl_b32", sA, sA, 2)
        e.S("s_add_u32", sA, sA, sP)
        nrep = (code_bytes + 65535) // 65536
        for rep in range(nrep):
            e.S("s_lshl_b32", sB, sA, 10)
            e.S("s_add_u32", sB, sB, rep * 65536)
            e.S("s_min_u32", sB, sB, code_bytes - 1024)
            e.V("v_add_u32", vT0, sB, vL16)
            e.gload(RAW[4 * rep:4 * rep + 4], vT0, s(60, 2))
    for i in range(4):
        e.V("v_mov_b32", EX[i], -1)
    e.S("s_mul_i32", sA, sJ, KVSZ)
    e.S("s_add_u32", sA, sA, KVB[0])
    for off in (0, 1024, 2048, KVSZ - 1024):
        e.bstore(EX, vL16, WS, sA, off)
    e.S("s_mul_i32", sD0, sC, 20 * KB)
    e.S("s_add_u32", sD0, sD0, XB[0])
    e.S("s_lshl_b32", sA, sP, 12)
    e.S("s_add_u32", sA, sA, sD0)
    for b in range(4):
        e.bstore(PK[b * 4:b * 4 + 4], vL16, WS, sA, b * 1024)
    e.S("s_lshl_b32", sA, sP, 10)
    e.S("s_add_u32", sA, sA, sD0)
    e.S("s_add_u32", sA, sA, 16 * KB)
    e.bstore(PK[16:20], vL16, WS, sA)
    s0, q0, s1, q1, sl, ql, one = [v(100 + i) for i in range(7)]
    e.S("s_mov_b32", sA, "0x3f803f80")
    e.V("v_mov_b32", one, sA)
    for r_ in (s0, q0, s1, q1, sl, ql):
        e.V("v_mov_b32", r_, 0)
    for i in range(8):
        e.V("v_dot2c_f32_bf16", s0, PK[i], one)
        e.V("v_dot2c_f32_bf16", q0, PK[i], PK[i])
        e.V("v_dot2c_f32_bf16", s1, PK[8 + i], one)
        e.V("v_dot2c_f32_bf16", q1, PK[8 + i], PK[8 + i])
    for i in range(4):
        e.V("v_dot2c_f32_bf16", sl, PK[16 + i], one)
        e.V("v_dot2c_f32_bf16", ql, PK[16 + i], PK[16 + i])
    e.V("v_cmp_gt_u32", VCC, 2, vG)
    e.V("v_cndmask_b32", vT0, 0, sl, VCC)
    e.V("v_add_f32", s0, s0, vT0)
    e.V("v_cndmask_b32", vT0, 0, ql, VCC)
    e.V("v_add_f32", q0, q0, vT0)
    e.V("v_cndmask_b32", vT0, sl, 0, VCC)
    e.V("v_add_f32", s1, s1, vT0)
    e.V("v_cndmask_b32", vT0, ql, 0, VCC)
    e.V("v_add_f32", q1, q1, vT0)
    for r_ in (s0, q0, s1, q1):
        allreduce_g(e, r_, vT0)
    e.V("v_cndmask_b32", s0, s1, s0, VCC)
    e.V("v_cndmask_b32", q0, q1, q0, VCC)
    e.V("v_and_b32", vT1, 1, vG)
    e.V("v_cmp_eq_u32", VCC, 0, vT1)
    e.V("v_cndmask_b32", s0, q0, s0, VCC)
    e.V("v_lshlrev_b32", vT0, 3, vN)
    e.V("v_lshl_add_u32", vT0, vT1, 2, vT0)
    e.V("v_lshrrev_b32", vT1, 1, vG)
    e.V("v_lshl_add_u32", vT0, vT1, 10, vT0)
    e.S("s_lshr_b32", sA, sC, 3)
    e.S("s_lshl_b32", sA, sA, 13)
    e.S("s_and_b32", sB, sC, 7)
    e.S("s_lshl_b32", sB, sB, 7)
    e.S("s_add_u32", sA, sA, sB)
    e.S("s_lshl_b32", sB, sP, 11)
    e.S("s_add_u32", sA, sA, sB)
    e.S("s_add_u32", sA, sA, STB[0])
    e.bstore(s0, vT0, WS, sA)
    e.label("prep_end2")
    endpgm()
    e.label(end)
    e.misc("s_endpgm")
```

```python
from asmgen import *
from layout import *
from gen_prep import mk_srd, allreduce_g
import math

BIG = 0x40000000
LOG2E = 1.4426950408889634
LN2 = 0.6931471805599453

IMG = 0
ZT = 6144
RST = 6400
DUMMY = 6912
RING = 8192
RB = 152
LDS_BYTES = RING + RB * KB
FI = 8

WS, OUT, XIN, SB2 = s(8, 4), s(12, 4), s(16, 4), s(20, 4)
sWave, sR, sC, sCG, sRH, sKH, sW2048 = [s(24 + i) for i in range(7)]
sSeg = {"A": s(31), "O": s(32), "B": s(33), "C": s(34)}
sXr, sHr, sSTr, sFRL, sFRG, sFC = [s(35 + i) for i in range(6)]
sA, sB, sD, sE, sDm, sLd = [s(41 + i) for i in range(6)]
sMaskV = s(48, 2)
sCnt = s(50)
sTT = s(51)
sTm = s(52, 2)
sOx, sOxh, sOst, sOo, sOoh, sOh, sOhh, sKv = [s(54 + i) for i in range(8)]
sLocal, sX1 = s(72), s(73)
sNan = s(74, 2)
vDum = v(49)

vLane, vN, vG, vL16 = v(1), v(2), v(3), v(4)
vW = [v(5), v(6), v(7)]
vK = [v(8), v(9), v(10)]
vDma = v(11)
vAx = [v(12), v(13)]
vAo = [v(14), v(15)]
vAh = [v(16), v(17)]
vSt, vStW, vKvSrc, vKvDst, vT16, vZ01, vZ2, vRT, vRW, vRF, vOut, vOut4, vOne = [v(18 + i) for i in range(13)]
vOh, vXs, vXh, vHs, vHh, vFl, vPollR, vPollC, vXch = [v(31 + i) for i in range(9)]
XE = [v(40, 4), v(44, 4)]
vC2 = v(48, 2)
vC2b = v(50, 2)
vLn2 = v(52, 2)
vEps = v(54, 2)
RT = v(56, 8)
ACC = v(64, 64)
FIFO = v(128, 4 * FI)
RES = v(160, 20)
B2F = v(180, 20)
TMP = v(200, 56)


class Main:
    def __init__(self, e, opt):
        self.e = e
        self.opt = opt
        self.nstamp = 0
        self.segs = []
        pos = 0
        for p in range(2):
            for k, n in (("A", NA), ("O", NO), ("B", NB), ("C", NC)):
                self.segs.append((k, pos, n))
                pos += n
        self.total = pos
        self.ngroups = pos // 8
        self.issued = 0
        self.dmaop = {}
        self.freed = 0
        self.hold = None
        self.visible = 0
        self.seq = []
        self.seqstart = {}
        for p in range(2):
            b = self.segs[4 * p + 0][1]
            self.seqstart[("A1", p)] = len(self.seq)
            self.seq += [(b + i, "W") for i in range(105)]
            self.seqstart[("A2", p)] = len(self.seq)
            self.seq += [(b + 105 + i, "W") for i in range(63)]
            b = self.segs[4 * p + 1][1]
            self.seqstart[("A4", p)] = len(self.seq)
            self.seq += [(b + 2 * i, "K") for i in range(50)]
            b = self.segs[4 * p + 2][1]
            self.seqstart[("B1a", p)] = len(self.seq)
            self.seq += [(b + i, "W") for i in range(84)]
            self.seqstart[("B1b", p)] = len(self.seq)
            self.seq += [(b + 84 + i, "W") for i in range(63)]
            b = self.segs[4 * p + 3][1]
            self.seqstart[("B2", p)] = len(self.seq)
            self.seq += [(b + 2 * i, "K") for i in range(135)]
        self.rd = 0
        self.cons = 0
        self.lastbar = 0
        self.warn = []

    def stamp(self, name):
        if not self.opt.get("stamps"):
            return
        e = self.e
        e.wait_all_lg()
        e.memtime(sTm)
        e.V("v_writelane_b32", v(53), sTm[0], self.nstamp)
        self.opt.setdefault("stampnames", []).append(name)
        self.nstamp += 1
        assert self.nstamp <= 64

    def endpos(self, i):
        p, k = self.seq[i]
        return p + (2 if k == "K" else 1)

    def ldsaddr(self, pos):
        return RING + (pos % RB) * KB

    def can_issue(self):
        if self.issued >= self.ngroups:
            return False
        lim = self.freed if self.hold is None else min(self.freed, self.hold)
        return 8 * (self.issued + 1) <= lim + RB

    def dma_group(self):
        e = self.e
        g = self.issued
        self.issued += 1
        pos = 8 * g
        for k, b, n in self.segs:
            if b <= pos < b + n:
                break
        e.S("s_add_u32", M0, sW2048, self.ldsaddr(pos))
        yield
        e.S("s_add_u32", sDm, sSeg[k], (pos - b) * KB)
        yield
        e.dma(vDma, WS, sDm, 0)
        yield
        self.dmaop[g] = e.dma(vDma, WS, sDm, 1024)
        yield

    def dma_filler(self):
        while True:
            if self.can_issue():
                for _ in self.dma_group():
                    yield True
            else:
                yield False

    def flush_dma_partial(self):
        while self.issued > 0 and (self.issued - 1) not in self.dmaop:
            next(self.dmaf)

    def dma_all(self):
        self.flush_dma_partial()
        while self.can_issue():
            for _ in self.dma_group():
                pass

    def ring_barrier(self, need_idx, extra_ops=(), free_all=False):
        e = self.e
        need_idx = min(need_idx, len(self.seq))
        upto = self.endpos(need_idx - 1) if need_idx > 0 else 0
        g = (upto + 7) // 8
        self.flush_dma_partial()
        while self.issued < g:
            assert self.can_issue(), ("ring deadlock", self.issued, g, self.freed, self.hold)
            self.warn.append(f"forced dma group {self.issued} at seq {self.rd}")
            for _ in self.dma_group():
                pass
        ops = list(extra_ops)
        for gg in range(self.visible // 8, g):
            ops.append(self.dmaop[gg])
        e.wait_ops(ops)
        e.barrier()
        self.visible = max(self.visible, 8 * g)
        self.freed = self.seq[self.cons][0] if self.cons < len(self.seq) else self.total
        self.lastbar = self.rd

    def issue_read(self):
        e = self.e
        i = self.rd
        if i >= len(self.seq):
            return
        pos, k = self.seq[i]
        assert self.endpos(i) <= self.visible, ("read of invisible block", i, pos, self.visible)
        ad = self.ldsaddr(pos)
        base = (vW if k == "W" else vK)[ad >> 16]
        slot = i % FI
        e.ds_read(FIFO[4 * slot:4 * slot + 4], base, ad & 0xffff)
        self.rd += 1

    def prime(self):
        while self.rd < self.cons + FI and self.rd < len(self.seq) and self.endpos(self.rd) <= self.visible:
            self.issue_read()

    def run_pass(self, n, mf, ntile, xf, fillers=(), chunk=24, stop_reads=None, hooks=None,
                 aload=None, vrate=0.5, amix=(1, 0), over=0, force_bar=None, late=None, see_all=False):
        e = self.e
        fillers = list(fillers)
        lim = stop_reads if stop_reads is not None else len(self.seq)
        st = {"credit": 0.0, "k": 0}

        def one_vmem():
            na, nd = amix
            if st.get("late"):
                n0 = len(e.vm)
                try:
                    next(st["late"])
                    return True, len(e.vm) > n0
                except StopIteration:
                    st["late"] = None
            use_a = aload is not None and not aload.done and (st["k"] % (na + nd) < na or not (self.mid_group() or self.can_issue()))
            if use_a:
                r = aload.step()
                if r:
                    st["k"] += 1
                return True, r
            if aload is not None and not aload.done and nd == 0:
                return False, False
            n0 = len(e.vm)
            if not next(self.dmaf):
                return False, False
            r = len(e.vm) > n0
            if r:
                st["k"] += 1
            return True, r

        def fill(budget):
            while budget > 0:
                n0 = e.ninst
                did = False
                if st["credit"] >= 1.0:
                    did, was = one_vmem()
                    if was:
                        st["credit"] -= 1.0
                    if not did:
                        st["credit"] = min(st["credit"], 1.0)
                if not did:
                    for f in list(fillers):
                        try:
                            if next(f) == "idle":
                                continue
                            did = True
                            break
                        except StopIteration:
                            fillers.remove(f)
                if not did:
                    return
                budget -= e.ninst - n0

        def waits_for(t):
            regs = []
            for tt in (t, t + 1):
                if tt < n:
                    ks = tt // ntile
                    if aload is not None:
                        aload.upto(ks)
                    idx = self.cons + (tt - t)
                    if idx < self.rd:
                        regs += FIFO[4 * (idx % FI):4 * (idx % FI) + 4].regs()
                    regs += xf(ks, 0).regs() + xf(ks, 1).regs()
            return e._pending(regs)

        e.wait_ops(waits_for(0))
        if aload is not None:
            self.stamp("1st")
        for t in range(n):
            if aload is not None and self.opt.get("midstamp") and t == n // 2:
                self.stamp("half")
            i = self.cons
            assert self.rd > i, ("fifo underrun", i)
            W = FIFO[4 * (i % FI):4 * (i % FI) + 4]
            own = 8 * self.issued < self.endpos(lim - 1)
            if (aload is not None and not aload.done) or st.get("late"):
                st["credit"] += vrate
            elif own:
                st["credit"] += max(vrate, 0.5)
            else:
                st["credit"] += self.opt.get("rateAB", 0.25) if self.segof(8 * self.issued) in "AB" else self.opt.get("rateOC", 0.45)
            ov = over if fillers else 0
            mf(t, W, 0)
            bar = self.rd < lim and (self.endpos(self.rd) > self.visible or self.rd - self.lastbar >= chunk)
            bar = bar or t == force_bar
            if late and t == late[0]:
                st["late"] = late[1]
            if bar:
                ex, after = [], None
                if hooks and hooks.get("bar"):
                    ex, after = hooks["bar"](t)
                self.ring_barrier(lim if see_all else min(self.rd + chunk, lim), ex)
                if after:
                    after()
            else:
                fill(2 + ov)
            mf(t, W, 1)
            self.cons += 1
            used = 0
            if self.rd < lim:
                self.issue_read()
                used = 1
            pend = waits_for(t + 1) if (t % 2 == 1 and t + 1 < n) else []
            fill(2 + ov - used - (1 if pend else 0))
            if pend:
                e.wait_ops(waits_for(t + 1))
        if late and late[0] >= n:
            st["late"] = late[1]
        for f in fillers + ([st["late"]] if st.get("late") else []):
            for _ in f:
                pass

    def segof(self, pos):
        for k, b, n in self.segs:
            if b <= pos < b + n:
                return k
        return "O"

    def mid_group(self):
        return self.issued > 0 and (self.issued - 1) not in self.dmaop

    def dma_burst(self, maxgroups=99):
        e = self.e
        self.flush_dma_partial()
        gs = []
        while self.can_issue() and len(gs) < maxgroups:
            gs.append(self.issued)
            self.issued += 1
        for w in (1, 2, 3):
            mine = gs[w - 1::3]
            if not mine:
                continue
            skip = e.newlabel("noburst")
            e.S("s_cmp_lg_u32", sWave, w)
            e.branch("s_cbranch_scc1", skip)
            e.cond_begin()
            for g in mine:
                pos = 8 * g
                for k, b, n in self.segs:
                    if b <= pos < b + n:
                        break
                for h in range(2):
                    e.S("s_mov_b32", M0, self.ldsaddr(pos) + h * 4096)
                    e.S("s_add_u32", sDm, sSeg[k], (pos - b) * KB + h * 4096)
                    for q in range(4):
                        self.dmaop[g] = e.dma(vL16, WS, sDm, q * 1024)
            e.cond_end()
            e.label(skip)

    def prologue(self):
        e = self.e
        e.S("s_cmp_ge_u32", s(2), 256)
        e.branch("s_cbranch_scc1", "main_end")
        e.sload(s(64, 2), s(0, 2), 0)
        e.sload(s(66, 2), s(0, 2), 56)
        e.sload(s(68, 2), s(0, 2), 64)
        e.sload(s(70, 2), s(0, 2), 80)
        T0, T1, T2, T3 = TMP[0], TMP[1], TMP[2], TMP[3]
        e.V("v_lshrrev_b32", T0, 6, v(0))
        e.V("v_and_b32", vLane, 63, v(0))
        e.V("v_readfirstlane_b32", sWave, T0)
        e.V("v_lshlrev_b32", vL16, 4, vLane)
        e.V("v_and_b32", vN, 15, vLane)
        e.V("v_lshrrev_b32", vG, 4, vLane)
        e.S("s_and_b32", sA, s(2), 7)
        e.S("s_lshl_b32", sA, sA, 1)
        e.S("s_lshr_b32", sB, s(2), 7)
        e.S("s_add_u32", sR, sA, sB)
        e.S("s_bfe_u32", sC, s(2), (4 << 16) | 3)
        e.S("s_and_b32", sCG, sC, 7)
        e.S("s_lshr_b32", sRH, sC, 3)
        e.S("s_and_b32", sKH, sWave, 1)
        e.S("s_lshl_b32", sW2048, sWave, 11)
        e.S("s_mul_i32", sA, sC, NA * KB)
        e.S("s_add_u32", sSeg["A"], sA, WA)
        e.S("s_mul_i32", sA, sCG, NO * KB)
        e.S("s_add_u32", sSeg["O"], sA, WO)
        e.S("s_mul_i32", sA, sC, NB * KB)
        e.S("s_add_u32", sSeg["B"], sA, WB)
        e.S("s_mul_i32", sA, sCG, NC * KB)
        e.S("s_add_u32", sSeg["C"], sA, WC)
        e.V("v_add_u32", vDma, sW2048, vL16)
        mk_srd(e, WS, s(70, 2), WS_USED)
        self.dmaf = self.dma_filler()
        first = self.opt.get("first_groups", 4)
        for _ in range(first):
            for _ in self.dma_group():
                pass
        e.S("s_mul_i32", sXr, sR, 160 * KB)
        e.S("s_mul_i32", sHr, sR, 432 * KB)
        e.S("s_lshl_b32", sSTr, sR, 13)
        e.S("s_mul_i32", sA, sWave, 40 * KB)
        e.V("v_add_u32", vAx[0], sA, vL16)
        e.V("v_add_u32", vAx[1], 20 * KB, vAx[0])
        e.V("v_lshlrev_b32", T0, 11, vG)
        e.V("v_lshl_add_u32", T0, vN, 3, T0)
        e.S("s_lshl_b32", sA, sWave, 8)
        e.V("v_add_u32", vSt, sA, T0)

    def prologue2(self):
        e = self.e
        T0, T1, T2, T3, T4, T5 = [TMP[40 + i] for i in range(6)]
        mk_srd(e, OUT, s(68, 2), XSZ)
        mk_srd(e, XIN, s(64, 2), XSZ)
        mk_srd(e, SB2, s(66, 2), D * 2)
        for j in range(3):
            if j == 0:
                e.V("v_mov_b32", vW[0], vL16)
            else:
                e.V("v_add_u32", vW[j], j * 65536, vL16)
        e.S("s_lshl_b32", sA, sKH, 10)
        for j in range(3):
            e.V("v_add_u32", vK[j], sA, vW[j])
        e.V("v_lshlrev_b32", T4, 4, v(0))
        Z = TMP[44:48]
        Z = TMP[48:52]
        for j in range(4):
            e.V("v_mov_b32", Z[j], 0)
        e.ds_write(T4, Z, 0)
        e.ds_write(T4, Z, 4096)
        e.S("s_lshl_b32", sTT, sRH, 2)
        e.S("s_add_u32", sTT, sTT, sWave)
        e.S("s_xor_b32", sB, sTT, 1)
        for u, st in ((0, sTT), (1, sB)):
            e.S("s_mul_i32", sA, st, 20 * KB)
            e.S("s_mul_i32", sD, sKH, 10 * KB)
            e.S("s_add_u32", sA, sA, sD)
            e.V("v_add_u32", vAo[u], sA, vL16)
            e.S("s_mul_i32", sA, st, 54 * KB)
            e.S("s_mul_i32", sD, sKH, 27 * KB)
            e.S("s_add_u32", sA, sA, sD)
            e.V("v_add_u32", vAh[u], sA, vL16)
        e.V("v_lshrrev_b32", T0, 1, vG)
        e.V("v_and_b32", T1, 1, vG)
        e.V("v_lshlrev_b32", T2, 4, vN)
        e.V("v_lshl_add_u32", T3, T0, 8, T2)
        e.V("v_lshl_add_u32", T3, T1, 3, T3)
        e.S("s_mul_i32", sA, sTT, 20 * KB)
        e.V("v_add_u32", vXs, sA, vL16)
        e.V("v_add_u32", vXh, sA, T3)
        e.S("s_mul_i32", sA, sWave, 108 * KB)
        e.V("v_add_u32", vHs, sA, vL16)
        e.S("s_cmp_ge_u32", sC, 12)
        e.S("s_cselect_b32", sA, BIG, sA)
        e.V("v_add_u32", vHh, sA, T3)
        e.S("s_mul_i32", sA, sWave, 40 * KB)
        e.V("v_lshl_add_u32", T3, vG, 3, T2)
        e.V("v_add_u32", vOh, sA, T3)
        e.V("v_cmp_gt_u32", VCC, 2, vG)
        e.V("v_mov_b32", T3, BIG)
        e.V("v_cndmask_b32", vOh, T3, vOh, VCC)
        e.S("s_lshl_b32", sA, sTT, 7)
        e.V("v_lshl_add_u32", T3, vN, 3, sA)
        e.V("v_lshl_add_u32", vStW, T0, 2, T3)
        e.S("s_lshl_b32", sA, sWave, 7)
        e.S("s_add_u32", sA, sA, RST)
        e.V("v_lshl_add_u32", vRT, vG, 4, sA)
        e.V("v_lshl_add_u32", vRW, vN, 2, sA)
        e.S("s_lshl_b32", sA, sTT, 6)
        e.S("s_add_u32", sA, sA, RST)
        e.V("v_lshl_add_u32", vRF, vN, 2, sA)
        e.V("v_lshlrev_b32", T3, 4, vG)
        e.V("v_add_u32", vZ2, ZT + 128, T3)
        e.V("v_cmp_gt_u32", VCC, 10, vN)
        e.V("v_add_u32", T3, ZT, T3)
        e.V("v_cndmask_b32", vZ01, vZ2, T3, VCC)
        e.S("s_lshl_b32", sA, sR, 3)
        e.S("s_add_u32", sA, sA, sTT)
        e.S("s_mul_i32", sA, sA, 16 * 1280)
        e.S("s_mul_i32", sB, sCG, 160)
        e.S("s_add_u32", sA, sA, sB)
        e.V("v_mul_u32_u24", T3, 1280, vN)
        e.V("v_add_u32", T3, sA, T3)
        e.V("v_lshl_add_u32", vOut, vG, 4, T3)
        e.V("v_lshl_add_u32", vOut4, vG, 3, T3)
        e.bload(RES[10:14], vOut, XIN, 0, 0)
        e.bload(RES[14:18], vOut, XIN, 0, 64)
        e.bload(RES[18:20], vOut4, XIN, 0, 128)
        e.V("v_lshl_add_u32", T4, vG, 4, sB)
        e.V("v_lshl_add_u32", T5, vG, 3, sB)
        e.bload(B2F[10:14], T4, SB2, 0, 0)
        e.bload(B2F[14:18], T4, SB2, 0, 64)
        e.bload(B2F[18:20], T5, SB2, 0, 128)
        e.S("s_mul_i32", sA, sWave, 5120)
        e.V("v_add_u32", vXch, sA, vL16)
        e.V("v_lshlrev_b32", vFl, 2, vN)
        e.V("v_mov_b32", vPollR, 0)
        e.V("v_mov_b32", vPollC, 0)
        e.S("s_mov_b32", sA, "0x3f803f80")
        e.V("v_mov_b32", vOne, sA)
        e.V("v_mov_b32", vLn2[0], lit(LN2))
        e.V("v_mov_b32", vEps[0], lit(1e-6))
        e.S("s_mov_b32", sMaskV[0], "0x00ff00ff")
        e.S("s_mov_b32", sMaskV[1], "0x00ff00ff")
        e.S("s_lshl_b32", sA, sR, 8)
        e.S("s_add_u32", sFRL, sA, FLG_RL)
        e.S("s_add_u32", sFRG, sA, FLG_RG)
        e.S("s_lshl_b32", sA, sC, 8)
        e.S("s_add_u32", sFC, sA, FLG_C)
        e.S("s_lshl_b32", sA, sCG, 11)
        e.S("s_add_u32", sOx, sXr, sA)
        e.S("s_lshr_b32", sA, sCG, 1)
        e.S("s_lshl_b32", sA, sA, 10)
        e.S("s_and_b32", sB, sCG, 1)
        e.S("s_lshl_b32", sB, sB, 9)
        e.S("s_add_u32", sA, sA, sB)
        e.S("s_add_u32", sA, sA, 16 * KB)
        e.S("s_add_u32", sOxh, sXr, sA)
        e.S("s_lshl_b32", sA, sCG, 10)
        e.S("s_add_u32", sOst, sSTr, sA)
        e.S("s_lshl_b32", sA, sC, 10)
        e.S("s_add_u32", sOo, sXr, sA)
        e.S("s_lshl_b32", sA, sC, 8)
        e.S("s_add_u32", sA, sA, 16 * KB)
        e.S("s_add_u32", sOoh, sXr, sA)
        e.S("s_mul_i32", sA, sC, 3 * KB)
        e.S("s_add_u32", sOh, sHr, sA)
        e.S("s_lshl_b32", sA, sC, 9)
        e.S("s_add_u32", sA, sA, 48 * KB)
        e.S("s_add_u32", sOhh, sHr, sA)
        e.S("s_mul_i32", sKv, sC, 16 * KVSZ)
        e.misc(f"s_getreg_b32 {sX1}, hwreg(HW_REG_XCC_ID, 0, 4)")
        e.S("s_add_u32", sX1, sX1, 1)
        e.S("s_mov_b32", sLocal, 0)
        skip = e.newlabel("noxid")
        e.S("s_cmp_lg_u32", sWave, 3)
        e.branch("s_cbranch_scc1", skip)
        e.cond_begin()
        e.S("s_lshl_b32", sA, sR, 8)
        e.S("s_add_u32", sA, sA, FLG_X)
        e.S("s_lshl_b32", sB, sC, 2)
        e.V("v_mov_b32", T4, sB)
        e.V("v_mov_b32", T5, sX1)
        e.S("s_mov_b64", EXEC, 1)
        e.bstore(T5, T4, WS, sA, 0, "sc1")
        e.S("s_mov_b64", EXEC, -1)
        e.cond_end()
        e.label(skip)
        U, Hh, Ee, Dq = T0, T1, T2, T3
        e.S("s_mov_b32", sA, 52429)
        e.V("v_mul_u32_u24", U, sA, v(0))
        e.V("v_lshrrev_b32", U, 18, U)
        e.V("v_mul_u32_u24", Dq, 5, U)
        e.V("v_sub_u32", Dq, v(0), Dq)
        e.V("v_cmp_le_u32", VCC, 21, U)
        e.V("v_cndmask_b32", Hh, 0, 1, VCC)
        e.V("v_mul_u32_u24", Ee, 21, Hh)
        e.V("v_sub_u32", Ee, U, Ee)
        A0, A1, A2, A3 = TMP[24], TMP[25], TMP[26], TMP[27]
        e.V("v_cmp_le_u32", s(66, 2), 16, Ee)
        e.V("v_cmp_eq_u32", s(64, 2), 4, Dq)
        e.V("v_cndmask_b32", A0, 0, 1, s(66, 2))
        e.V("v_lshl_add_u32", A0, Hh, 1, A0)
        e.V("v_add_u32", A1, 4, Hh)
        e.V("v_cndmask_b32", A1, A1, 6, s(66, 2))
        e.V("v_cndmask_b32", A0, A0, A1, s(64, 2))
        e.V("v_cndmask_b32", A1, Dq, Hh, s(64, 2))
        e.V("v_lshl_add_u32", A2, Hh, 2, Ee)
        e.V("v_subrev_u32", A2, 8, A2)
        e.V("v_cndmask_b32", A2, Ee, A2, s(66, 2))
        e.V("v_cmp_eq_u32", VCC, 20, Ee)
        e.V("v_cndmask_b32", A2, A2, 0, VCC)
        e.V("v_lshl_add_u32", A1, A1, 4, A2)
        e.V("v_lshlrev_b32", A1, 4, A1)
        e.V("v_lshl_add_u32", vKvSrc, A0, 10, A1)
        e.V("v_mul_u32_u24", A0, 5, Hh)
        e.V("v_add_u32", A0, A0, Dq)
        e.V("v_cmp_le_u32", s(64, 2), 8, A0)
        e.V("v_lshrrev_b32", A1, 1, A0)
        e.V("v_subrev_u32", A2, 8, A0)
        e.V("v_cndmask_b32", A1, A1, A2, s(64, 2))
        e.V("v_and_b32", A2, 1, A0)
        e.V("v_cndmask_b32", A2, A2, 0, s(64, 2))
        e.V("v_lshlrev_b32", A2, 3, A2)
        e.V("v_cndmask_b32", A0, 0, 1, s(64, 2))
        e.V("v_lshl_add_u32", A3, Hh, 1, A0)
        e.V("v_lshl_add_u32", A3, A3, 2, A1)
        e.V("v_lshl_add_u32", A3, A3, 4, A2)
        e.V("v_add_u32", A3, ZT, A3)
        e.V("v_mul_u32_u24", T4, 20, Hh)
        e.V("v_add_u32", T4, T4, Ee)
        e.V("v_cmp_le_u32", s(66, 2), 32, T4)
        e.V("v_and_b32", T5, 1, T4)
        e.V("v_cndmask_b32", T5, T5, 2, s(66, 2))
        e.V("v_lshl_add_u32", A0, T5, 1, A0)
        e.V("v_lshrrev_b32", T5, 1, T4)
        e.V("v_subrev_u32", T4, 32, T4)
        e.V("v_cndmask_b32", T4, T5, T4, s(66, 2))
        e.V("v_lshl_add_u32", T4, A1, 4, T4)
        e.V("v_lshl_add_u32", T4, T4, 4, A2)
        e.V("v_lshl_add_u32", T4, A0, 10, T4)
        e.V("v_cndmask_b32", T4, T4, A3, VCC)
        e.V("v_cmp_gt_u32", VCC, 210, v(0))
        e.V("v_mov_b32", T5, DUMMY)
        e.V("v_cndmask_b32", vKvDst, T5, T4, VCC)
        e.V("v_cndmask_b32", vKvSrc, 0, vKvSrc, VCC)
        e.V("v_lshlrev_b32", T4, 4, v(0))
        e.V("v_mov_b32", T5, BIG)
        e.V("v_cndmask_b32", vT16, T5, T4, VCC)

    def unpack(self, dst, pk):
        e = self.e
        for a_ in range(2):
            for j in range(4):
                e.V("v_lshlrev_b32", dst[8 * a_ + j], 16, pk[4 * a_ + j])
                e.V("v_and_b32", dst[8 * a_ + 4 + j], "0xffff0000", pk[4 * a_ + j])
        for j in range(2):
            e.V("v_lshlrev_b32", dst[16 + 2 * j], 16, pk[8 + j])
            e.V("v_and_b32", dst[16 + 2 * j + 1], "0xffff0000", pk[8 + j])

    class ALoad:
        def __init__(self, m, vaddr, terms, nks):
            self.m, self.vaddr, self.terms, self.nks = m, vaddr, terms, nks
            self.n = 0
            self.based = -1
            self.done = False

        def step(self):
            e = self.m.e
            ks, u = divmod(self.n, 2)
            if ks // 4 != self.based:
                self.based = ks // 4
                e.S("s_add_u32", sLd, self.terms[0], self.terms[1] + (ks // 4) * 4 * KB)
                return False
            e.bload(a(self.n * 4, 4), self.vaddr[u], WS, sLd, (ks % 4) * KB, "sc1")
            self.n += 1
            self.done = self.n >= 2 * self.nks
            return True

        def upto(self, ks):
            while self.n < 2 * min(ks + 1, self.nks):
                self.step()

    def stats_loads(self, ver):
        e = self.e
        e.S("s_add_u32", sA, sSTr, STB[ver])
        for u in range(2):
            for k in range(2):
                e.bload(TMP[4 * u + 2 * k:4 * u + 2 * k + 2], vSt, WS, sA, k * 1024 + u * 128, "sc1")

    def stats_gen(self, need_T):
        e = self.e
        for u in range(2):
            sm, sq, t0, t1 = TMP[4 * u], TMP[4 * u + 1], TMP[4 * u + 2], TMP[4 * u + 3]
            e.V("v_add_f32", sm, sm, t0); yield
            e.V("v_add_f32", sq, sq, t1); yield
            for op in ("v_permlane32_swap_b32", "v_permlane16_swap_b32"):
                e.V("v_mov_b32", t0, sm); yield
                e.V("v_mov_b32", t1, sq); yield
                e.V(op, sm, t0); yield
                e.V(op, sq, t1); yield
                e.V("v_add_f32", sm, sm, t0); yield
                e.V("v_add_f32", sq, sq, t1); yield
            e.V("v_mul_f32", sm, lit(1.0 / D), sm); yield
            e.V("v_mul_f32", t0, sm, sm); yield
            e.V("v_fma_f32", sq, sq, self.cInvD, Neg(t0)); yield
            e.V("v_max_f32", sq, 0, sq); yield
            e.V("v_add_f32", sq, lit(1e-5), sq); yield
            e.V("v_rsq_f32", t0, sq); yield
            e.V("v_cvt_pk_bf16_f32", XE[u][0], sm, sm); yield
            e.V("v_mul_f32", sq, sq, t0); yield
            e.ds_write(vRW, t0, 64 * u); yield
            c2 = vC2 if u == 0 else vC2b
            e.V("v_mul_f32", c2[0], lit(LOG2E), t0); yield
            e.V("v_lshlrev_b32", t1, 16, XE[u][0]); yield
            e.V("v_sub_f32", sm, sm, t1); yield
            e.V("v_cvt_pk_bf16_f32", XE[u][1], sm, 0); yield
            e.V("v_cvt_pk_bf16_f32", t1, sq, sq); yield
            e.V("v_lshlrev_b32", t1, 16, t1); yield
            e.V("v_sub_f32", t1, sq, t1); yield
            e.V("v_cvt_pk_bf16_f32", XE[u][2], sq, t1); yield
            e.V("v_mov_b32", XE[u][3], 0); yield
        if need_T:
            for u in range(2):
                e.ds_read(RT[4 * u:4 * u + 4], vRT, 64 * u); yield

    def phi_pair(self, src, c2, bcast, t):
        e = self.e
        m = "op_sel_hi:[1,0]" if bcast else ""
        e.V("v_pk_mul_f32", t[0:2], src, c2, mods=m)
        e.V("v_exp_f32_e64", t[2], t[0], mods="clamp")
        e.V("v_exp_f32_e64", t[3], t[1], mods="clamp")
        e.V("v_max_f32", t[0], 0, t[0])
        e.V("v_max_f32", t[1], 0, t[1])
        e.V("v_pk_add_f32", t[2:4], t[2:4], vEps, mods="op_sel_hi:[1,0]")
        e.V("v_pk_fma_f32", t[0:2], t[0:2], vLn2, t[2:4], mods="op_sel_hi:[1,0,1]")

    def scratch(self, nblk, endpos):
        st = endpos - nblk
        if (st % RB) + nblk > RB:
            st = endpos - (endpos % RB) - nblk
        return st, self.ldsaddr(st)

    def bg_on(self, every=None):
        every = every or self.opt.get("bg_every", 10)
        st = {"n": 0}

        def f():
            st["n"] += 1
            if st["n"] >= (2 * every if self.segof(8 * self.issued) in "AB" else every):
                n0 = len(self.e.vm)
                while len(self.e.vm) == n0:
                    if not next(self.dmaf):
                        return
                st["n"] = 0
        self.e.bg = f if self.opt.get("bg", 1) else None

    def bg_off(self):
        self.e.bg = None

    def gstore(self, lst, cold=False):
        e = self.e
        mode = self.opt.get("mode", "dual")
        if cold:
            mode = "safe"
        if mode != "dual":
            return [e.bstore(d, vo, WS, so, off, "sc1" if mode == "safe" else "") for d, vo, so, off in lst]
        ls, le = e.newlabel("st_safe"), e.newlabel("st_end")
        regs = []
        for d, vo, so, off in lst:
            regs += d.regs() + vo.regs()
        e.wait_ops(e._pending(regs))
        e.S("s_cmp_eq_u32", sLocal, 0)
        need = e._need("vmem", regs, [])
        if need > 1:
            e.nop(need - 1)
        e.branch("s_cbranch_scc1", ls)
        n0 = len(e.lines)
        ops = [e.bstore(d, vo, WS, so, off, "") for d, vo, so, off in lst]
        body = e.lines[n0:]
        assert len(body) == len(lst), body
        e.raw(f"  s_branch {le}")
        e.label(ls)
        for l in body:
            e.raw(l + " sc1")
        e.label(le)
        return ops

    def touch_gen(self, lst, cold=False):
        e = self.e
        if cold or not self.opt.get("touch", 0):
            return
        for _ in range(self.opt.get("touch_delay", 60)):
            yield "idle"
        for vo, sb, add, off in lst:
            e.S("s_add_u32", sE, sb, add); yield
            e.touch(vDum, vo, WS, sE, off); yield

    def local_gen(self):
        e = self.e
        e.S("s_lshl_b32", sE, sR, 8); yield
        e.S("s_add_u32", sE, sE, FLG_X); yield
        e.bload(TMP[52], vFl, WS, sE, 0, "sc1"); yield
        for _ in range(40):
            yield "idle"
        e.V("v_cmp_ne_u32", VCC, sX1, TMP[52]); yield
        e.S("s_cmp_eq_u64", VCC, 0)
        e.S("s_cselect_b32", sLocal, 1, 0); yield

    def poll(self, kind, val):
        e = self.e
        skip = e.newlabel("nopoll")
        loop = e.newlabel("poll")
        e.S("s_cmp_lg_u32", sWave, 0)
        e.branch("s_cbranch_scc1", skip)
        e.cond_begin()
        acc = vPollR if kind == "row" else vPollC
        t = TMP[55]
        e.S("s_mov_b32", sCnt, 0)
        e.label(loop)
        e.misc(f"buffer_load_dword {t}, {vFl}, {WS}, {sFRL if kind == 'row' else sFC} offen sc1")
        e.misc("s_add_u32 %s, %s, 1" % (sCnt, sCnt))
        e.misc("s_waitcnt vmcnt(0)")
        e.misc(f"v_max_u32 {acc}, {acc}, {t}")
        e.misc(f"v_cmp_gt_u32 vcc, {val}, {acc}")
        e.misc(f"s_cbranch_vccz {skip}")
        if kind == "row":
            e.misc(f"s_and_b32 {sA}, {sCnt}, 3")
            e.misc(f"s_cbranch_scc1 {loop}")
            e.misc(f"buffer_load_dword {t}, {vFl}, {WS}, {sFRG} offen sc1")
            e.misc("s_waitcnt vmcnt(0)")
            e.misc(f"v_max_u32 {acc}, {acc}, {t}")
        else:
            e.misc("s_sleep 2")
        e.misc(f"s_cmp_lt_u32 {sCnt}, 0x40000")
        e.misc(f"s_cbranch_scc1 {loop}")
        e.cond_end()
        e.label(skip)

    def flag(self, kind, val):
        e = self.e
        lst = [(1, sFRG, "sc1", sC), (2, sFRL, "", sC)] if kind == "row" else [(1, sFC, "sc1", sR)]
        for w, sb, m, sidx in lst:
            skip = e.newlabel("noflag")
            e.S("s_cmp_lg_u32", sWave, w)
            e.branch("s_cbranch_scc1", skip)
            e.cond_begin()
            e.S("s_lshl_b32", sA, sidx, 2)
            e.V("v_mov_b32", TMP[54], sA)
            e.V("v_mov_b32", TMP[55], val)
            e.S("s_mov_b64", EXEC, 1)
            e.bstore(TMP[55], TMP[54], WS, sb, 0, m)
            e.S("s_mov_b64", EXEC, -1)
            e.cond_end()
            e.label(skip)

    def handoff(self, val, ops, shadow=None):
        e = self.e
        e.wait_all_lg()
        self.ring_barrier(self.cons + FI + self.opt.get("ahead", 16), ops)
        self.hold = None
        self.flag("row", val)
        self.stamp("flag")
        self.dma_burst(self.opt.get("burst", 6))
        self.prime()
        if shadow:
            shadow()
        self.poll("row", val)
        e.barrier()
        self.stamp("go")

    def phaseA(self, p):
        e = self.e
        opt = self.opt
        xv = 2 * p
        acc = lambda T, u: ACC[(T * 2 + u) * 4:(T * 2 + u) * 4 + 4]
        xf = lambda ks, u: a((ks * 2 + u) * 4, 4) if ks < 20 else XE[u]
        self.stats_loads(xv)
        al = self.ALoad(self, vAx, (sXr, XB[xv]), 20)
        al.upto(opt.get("adist", 8) - 1)
        if p == 0:
            for _ in range(opt.get("second_groups", 6)):
                for _ in self.dma_group():
                    pass
            self.prologue2()
            e.wait_all_lg()
            self.ring_barrier(FI + 16)
            self.prime()
            self.stamp("start")
        i0 = self.seqstart[("A1", p)]
        fb = 102
        sst, sad = self.scratch(28, self.seq[i0 + fb][0])
        self.hold = sst

        def mf(t, W, u):
            ks, T = divmod(t, 5)
            e.mfma(acc(T, u), xf(ks, u), W, acc(T, u) if ks else 0)
        self.run_pass(105, mf, 5, xf, [self.stats_gen(True)], stop_reads=self.seqstart[("A4", p)], aload=al,
                      amix=(2, 1) if p == 0 else (1, 0), vrate=0.67 if p == 0 else 0.5, force_bar=fb)
        assert sst + 28 <= self.freed
        self.stamp("A1")
        self.bg_on()
        C2T = TMP[8:16]
        for j in range(8):
            e.V("v_mul_f32", C2T[j], lit(LOG2E), RT[j])
        KF = [TMP[16:20], TMP[20:24], TMP[24:28]]
        VF = {3: TMP[28:32], 4: TMP[32:36], 2: TMP[36:40]}
        tt = [TMP[40:44], TMP[44:48]]
        n = 0
        for T in range(3):
            for u in range(2):
                for h in range(2):
                    t = tt[n % 2]
                    n += 1
                    self.phi_pair(acc(T, u)[2 * h:2 * h + 2], C2T[4 * u + 2 * h:4 * u + 2 * h + 2], False, t)
                    e.V("v_cvt_pk_bf16_f32", KF[T][2 * u + h], t[0], t[1])
        for T in (3, 4, 2):
            for u in range(2):
                for h in range(2):
                    x = acc(T, u)[2 * h:2 * h + 2]
                    e.V("v_pk_mul_f32", x, x, RT[4 * u + 2 * h:4 * u + 2 * h + 2])
            for u in range(2):
                for h in range(2):
                    x = acc(T, u)[2 * h:2 * h + 2]
                    e.V("v_cvt_pk_bf16_f32", VF[T][2 * u + h], x[0], x[1])
        for j in range(4):
            e.V("v_cndmask_b32", VF[2][j], VF[2][j], vOne, sMaskV)
        PR = [ACC[4 * i:4 * i + 4] for i in range(7)]
        prods = [(0, 3), (0, 2), (1, 4), (1, 2), (2, 3), (2, 4), (2, 2)]
        for i, (kt, vt) in enumerate(prods):
            e.mfma(PR[i], KF[kt], VF[vt], 0)
        e.S("s_mul_i32", sA, sWave, 7168)
        e.S("s_add_u32", sA, sA, sad)
        e.V("v_add_u32", TMP[0], sA, vL16)
        e.V("v_add_u32", TMP[1], sad, vKvSrc)
        for i in range(7):
            e.ds_write(TMP[0], PR[i], i * 1024)
        e.wait_all_lg()
        e.barrier()
        RD = [TMP[16 + 4 * w:20 + 4 * w] for w in range(4)]
        for w in range(4):
            e.ds_read(RD[w], TMP[1], w * 7168)
        for h in range(2):
            e.V("v_pk_add_f32", RD[0][2 * h:2 * h + 2], RD[0][2 * h:2 * h + 2], RD[1][2 * h:2 * h + 2])
            e.V("v_pk_add_f32", RD[2][2 * h:2 * h + 2], RD[2][2 * h:2 * h + 2], RD[3][2 * h:2 * h + 2])
        for h in range(2):
            e.V("v_pk_add_f32", RD[0][2 * h:2 * h + 2], RD[0][2 * h:2 * h + 2], RD[2][2 * h:2 * h + 2])
        e.S("s_mul_i32", sA, sR, KVSZ)
        e.S("s_add_u32", sA, sA, sKv)
        e.S("s_add_u32", sA, sA, KVB[p])
        kvst = e.bstore(RD[0], vT16, WS, sA, 0, "sc1")
        self.bg_off()
        self.stamp("kvpub")
        PL = [ACC[4 * i:4 * i + 4] for i in range(10)] + [TMP[24 + 4 * i:28 + 4 * i] for i in range(6)]

        def barhook(t):
            def rel():
                self.hold = None
            return [], rel

        def kvloads():
            for i in range(16):
                if i % 2 == 0:
                    e.S("s_add_u32", sB, sKv, KVB[p] + i * KVSZ); yield
                e.bload(PL[i], vT16, WS, sB, (i % 2) * KVSZ, "sc1"); yield

        def kvsum():
            for st in (1, 2, 4, 8):
                for i in range(0, 16, 2 * st):
                    for h in range(2):
                        e.V("v_pk_add_f32", PL[i][2 * h:2 * h + 2], PL[i][2 * h:2 * h + 2], PL[i + st][2 * h:2 * h + 2])
            e.V("v_cmp_u_f32", VCC, PL[0][0], PL[0][1])
            e.V("v_cmp_u_f32", sNan, PL[0][2], PL[0][3])
            e.S("s_or_b64", VCC, VCC, sNan)

        def mfq(t, W, u):
            ks, T = divmod(t, 3)
            e.mfma(acc(5 + T, u), W, xf(ks, u), acc(5 + T, u) if ks else 0)
        self.lastbar = self.rd - 8
        fl = [self.touch_gen([(vAx[0], sOo, OB[p], 0), (vAx[1], sOo, OB[p], 0), (vOh, sOoh, OB[p], 0), (vOh, sOoh, OB[p] + 20 * KB, 0)], p == 0)]
        if p == 0:
            fl.append(self.local_gen())
        self.run_pass(63, mfq, 3, xf, fl, stop_reads=self.seqstart[("A4", p)], hooks={"bar": barhook},
                      late=(opt.get("kvload_at", 30), kvloads()), see_all=True)
        self.stamp("A2")
        PQ0 = [TMP[0:4], TMP[4:8]]
        PQ1 = [TMP[8:12], TMP[12:16]]
        tq = [TMP[16:20], TMP[20:24]]
        for u in range(2):
            c2 = vC2 if u == 0 else vC2b
            for h in range(2):
                self.phi_pair(acc(5, u)[2 * h:2 * h + 2], c2, True, tq[0])
                self.phi_pair(acc(6, u)[2 * h:2 * h + 2], c2, True, tq[1])
                e.V("v_cvt_pk_bf16_f32", PQ0[u][2 * h], tq[0][0], tq[1][0])
                e.V("v_cvt_pk_bf16_f32", PQ0[u][2 * h + 1], tq[0][1], tq[1][1])
            for h in range(2):
                self.phi_pair(acc(7, u)[2 * h:2 * h + 2], c2, True, tq[h])
                e.V("v_cvt_pk_bf16_f32", PQ1[u][h], tq[h][0], tq[h][1])
            e.V("v_mov_b32", PQ1[u][2], 0)
            e.V("v_mov_b32", PQ1[u][3], 0)
        self.stamp("qepi")
        kvsum()
        lok, lre = e.newlabel("kvok"), e.newlabel("kvretry")
        e.branch("s_cbranch_scc0", lok)
        e.cond_begin()
        e.S("s_mov_b32", sCnt, 0)
        e.label(lre)
        e.misc("s_sleep 4")
        for _ in kvloads():
            pass
        kvsum()
        e.branch("s_cbranch_scc0", lok)
        e.S("s_add_u32", sCnt, sCnt, 1)
        e.S("s_cmp_lt_u32", sCnt, 0x10000)
        e.branch("s_cbranch_scc1", lre)
        e.cond_end()
        e.label(lok)
        self.stamp("kvgo")
        self.bg_on(5)
        e.V("v_cvt_pk_bf16_f32", TMP[16], PL[0][0], PL[0][1])
        e.V("v_cvt_pk_bf16_f32", TMP[17], PL[0][2], PL[0][3])
        e.ds_write(vKvDst, TMP[16:18])
        e.wait_all_lg()
        e.barrier()
        FR = [TMP[16 + 4 * i:20 + 4 * i] for i in range(10)]
        for T in range(3):
            for ks in range(2):
                e.ds_read(FR[T * 2 + ks], vL16, IMG + (T * 2 + ks) * KB)
        for ks in range(2):
            e.ds_read(FR[6 + ks], vZ01, ks * 64)
            e.ds_read(FR[8 + ks], vZ2, ks * 64)
        oa = lambda T, u: ACC[(T * 2 + u) * 4:(T * 2 + u) * 4 + 4]
        for T in (3, 4, 0, 1, 2):
            for u in range(2):
                e.mfma(oa(T, u), FR[2 * T], PQ0[u], 0)
        for T in (3, 4, 0, 1, 2):
            for u in range(2):
                e.mfma(oa(T, u), FR[2 * T + 1], PQ1[u], oa(T, u))
        e.S("s_add_u32", sA, sOo, OB[p])
        e.S("s_add_u32", sB, sOoh, OB[p])
        e.S("s_add_u32", sD, sOoh, OB[p] + 20 * KB)
        ops = []
        for u in range(2):
            for x in (oa(3, u)[0], oa(3, u)[2], oa(4, u)[0]):
                e.V("v_add_f32", x, vEps[0], x)
        for u in range(2):
            for x in (oa(3, u)[0], oa(3, u)[2], oa(4, u)[0]):
                e.V("v_rcp_f32", x, x)
        for u in range(2):
            for T in range(3):
                for h in range(2):
                    x = oa(T, u)[2 * h:2 * h + 2]
                    dn = oa(3, u)[2 * h:2 * h + 2] if T < 2 else oa(4, u)[0:2]
                    e.V("v_pk_mul_f32", x, x, dn, mods="op_sel_hi:[1,0]")
            o4 = TMP[16 + 8 * u:20 + 8 * u]
            o2 = TMP[20 + 8 * u:22 + 8 * u]
            for j in range(4):
                e.V("v_cvt_pk_bf16_f32", o4[j], oa(0, u)[j], oa(1, u)[j])
            for h in range(2):
                e.V("v_cvt_pk_bf16_f32", o2[h], oa(2, u)[2 * h], oa(2, u)[2 * h + 1])
            if u == 0:
                ops += self.gstore([(o4, vAx[u], sA, 0), (o2, vOh, sB, 0)], p == 0)
            else:
                ops += self.gstore([(o4, vAx[u], sA, 0), (o2, vOh, sD, 0)], p == 0)
        self.bg_off()
        self.stamp("A3")
        def shadow():
            if p == 0:
                self.unpack(RES, RES[10:20])
                self.unpack(B2F, B2F[10:20])
        self.handoff(4 * p + 1, ops, shadow)

    def phase64(self, p, kind):
        e = self.e
        opt = self.opt
        nks = 10 if kind == "O" else 27
        name = "A4" if kind == "O" else "B2"
        acc = lambda T, u: ACC[(u * 5 + T) * 4:(u * 5 + T) * 4 + 4]
        if kind == "O":
            al = self.ALoad(self, vAo, (sXr, OB[p]), nks)
        else:
            al = self.ALoad(self, vAh, (sHr, HB[p]), nks)
        al.upto(opt.get("adist", 8) - 1)
        xf = lambda ks, u: a((ks * 2 + u) * 4, 4)
        if kind == "C":
            e.ds_read(TMP[50], vRF)
        i0 = self.seqstart[(name, p)]
        fb = 5 * nks - 3
        sst, sad = self.scratch(20, self.seq[i0 + fb][0])
        self.hold = sst
        stop = i0 + 5 * nks

        def mf(t, W, u):
            ks, T = divmod(t, 5)
            e.mfma(acc(T, u), W, xf(ks, u), acc(T, u) if ks else 0)
        last = kind == "C" and p == 1
        xv = 2 * p + (1 if kind == "O" else 2)
        fl = [] if last else [self.touch_gen([(vXs, sOx, XB[xv], 0), (vXs, sOx, XB[xv], 1024), (vXh, sOxh, XB[xv], 0), (vStW, sOst, STB[xv], 0)])]
        self.run_pass(5 * nks, mf, 5, xf, fl, force_bar=fb, chunk=(12 if kind == "O" else opt.get("chunkC", 8)), stop_reads=stop, aload=al,
                      amix=(1, 0) if kind == "O" else tuple(opt.get("amixC", (3, 2))), vrate=0.5 if kind == "O" else opt.get("vrateC", 0.8))
        self.stamp(name)
        self.bg_on()
        e.V("v_add_u32", TMP[0], sad, vXch)
        e.S("s_xor_b32", sA, sWave, 1)
        e.S("s_mul_i32", sA, sA, 5120)
        e.S("s_add_u32", sA, sA, sad)
        e.V("v_add_u32", TMP[1], sA, vL16)
        assert sst + 20 <= self.freed
        for T in range(5):
            e.ds_write(TMP[0], acc(T, 1), T * KB)
        e.wait_all_lg()
        e.barrier()
        PT = TMP[4:24]
        for T in range(5):
            e.ds_read(PT[4 * T:4 * T + 4], TMP[1], T * KB)
        own = ACC[0:20]
        if kind == "C":
            e.V("v_mul_f32", TMP[50], TMP[50], TMP[50])
        for h in range(10):
            x = own[2 * h:2 * h + 2]
            e.V("v_pk_add_f32", x, x, PT[2 * h:2 * h + 2])
            if kind == "O":
                e.V("v_pk_add_f32", x, x, RES[2 * h:2 * h + 2])
            else:
                e.V("v_pk_fma_f32", x, x, TMP[50:52], RES[2 * h:2 * h + 2], mods="op_sel_hi:[1,0,1]")
        PK = TMP[24:34]
        for a_ in range(2):
            for j in range(4):
                e.V("v_cvt_pk_bf16_f32", PK[4 * a_ + j], own[8 * a_ + j], own[8 * a_ + 4 + j])
        for h in range(2):
            e.V("v_cvt_pk_bf16_f32", PK[8 + h], own[16 + 2 * h], own[16 + 2 * h + 1])
        self.bg_off()
        if last:
            e.bstore(PK[0:4], vOut, OUT, 0, 0)
            e.bstore(PK[4:8], vOut, OUT, 0, 64)
            e.bstore(PK[8:10], vOut4, OUT, 0, 128)
            self.stamp("end")
            return
        xv = 2 * p + (1 if kind == "O" else 2)
        ops = []
        e.S("s_add_u32", sA, sOx, XB[xv])
        e.S("s_add_u32", sB, sOxh, XB[xv])
        e.S("s_add_u32", sD, sOst, STB[xv])
        ops += self.gstore([(PK[0:4], vXs, sA, 0), (PK[4:8], vXs, sA, 1024), (PK[8:10], vXh, sB, 0)])
        sm, sq, t0 = TMP[36], TMP[37], TMP[38]
        e.V("v_mov_b32", sm, 0)
        e.V("v_mov_b32", sq, 0)
        for j in range(10):
            e.V("v_dot2c_f32_bf16", sm, PK[j], vOne)
            e.V("v_dot2c_f32_bf16", sq, PK[j], PK[j])
        e.V("v_permlane32_swap_b32", sm, sq)
        e.V("v_add_f32", sm, sm, sq)
        e.V("v_mov_b32", t0, sm)
        e.V("v_permlane16_swap_b32", sm, t0)
        e.V("v_add_f32", sm, sm, t0)
        ops += self.gstore([(sm, vStW, sD, 0)])
        self.stamp(name + "epi")

        def shadow():
            self.unpack(RES, PK)
            if kind == "O":
                for h in range(10):
                    x = RES[2 * h:2 * h + 2]
                    e.V("v_pk_add_f32", x, x, B2F[2 * h:2 * h + 2])
        self.handoff(4 * p + (2 if kind == "O" else 4), ops, shadow)

    def phaseB1(self, p):
        e = self.e
        opt = self.opt
        xv = 2 * p + 1
        acc = lambda T, u: ACC[(T * 2 + u) * 4:(T * 2 + u) * 4 + 4]
        xf = lambda ks, u: a((ks * 2 + u) * 4, 4) if ks < 20 else XE[u]
        self.stats_loads(xv)
        al = self.ALoad(self, vAx, (sXr, XB[xv]), 20)
        al.upto(opt.get("adist", 8) - 1)
        stop = self.seqstart[("B2", p)]

        def mf(t, W, u):
            ks, T = divmod(t, 4)
            e.mfma(acc(T, u), W, xf(ks, u), acc(T, u) if ks else 0)
        tl = [(vHs, sOh, HB[p] + u * 54 * KB, a_ * KB) for a_ in range(3) for u in range(2)] + [(vHh, sOhh, HB[p] + u * 54 * KB, 0) for u in range(2)]
        self.run_pass(84, mf, 4, xf, [self.stats_gen(False), self.touch_gen(tl, p == 0)], stop_reads=stop, aload=al)
        self.stamp("B1a")
        ops = []

        def epi(pairs, single):
            n = 0
            for u in range(2):
                sb = sD if u == 0 else sE
                e.S("s_add_u32", sb, sOh, HB[p] + u * 54 * KB); yield
                for a_ in pairs:
                    o = TMP[16 + 4 * (n % 4):20 + 4 * (n % 4)]
                    n += 1
                    for j in range(4):
                        x, y = acc(2 * a_, u)[j], acc(2 * a_ + 1, u)[j]
                        e.V("v_mul_f32_e64", x, x, f"|{x}|"); yield
                        e.V("v_mul_f32_e64", y, y, f"|{y}|"); yield
                        e.V("v_cvt_pk_bf16_f32", o[j], x, y); yield
                        e.V("v_pk_max_i16", o[j], o[j], 0); yield
                    ops.extend(self.gstore([(o, vHs, sb, a_ * KB)], p == 0)); yield
            if single:
                for u in range(2):
                    o = TMP[32 + 2 * u:34 + 2 * u]
                    for j in range(4):
                        x = acc(6, u)[j]
                        e.V("v_mul_f32_e64", x, x, f"|{x}|"); yield
                    for h in range(2):
                        e.V("v_cvt_pk_bf16_f32", o[h], acc(6, u)[2 * h], acc(6, u)[2 * h + 1]); yield
                        e.V("v_pk_max_i16", o[h], o[h], 0); yield
                e.S("s_add_u32", sA, sOhh, HB[p])
                e.S("s_add_u32", sB, sOhh, HB[p] + 54 * KB)
                ops.extend(self.gstore([(TMP[32:34], vHh, sA, 0), (TMP[34:36], vHh, sB, 0)], p == 0))
                yield

        def mf2(t, W, u):
            ks, T = divmod(t, 3)
            e.mfma(acc(4 + T, u), W, xf(ks, u), acc(4 + T, u) if ks else 0)
        self.run_pass(63, mf2, 3, xf, [epi([0, 1], False)], stop_reads=stop)
        self.stamp("B1b")
        for _ in epi([2], True):
            pass
        self.stamp("B1epi")
        self.handoff(4 * p + 3, ops)

    def gen(self):
        e = self.e
        e.reset_state()
        self.cInvD = s(63)
        self.prologue()
        e.S("s_mov_b32", self.cInvD, lit(1.0 / D))
        if self.opt.get("dbg"):
            e.memtime(s(76, 2), True)
            e.memtime(s(78, 2))
            e.wait_all_lg()
        self.stamp("entry")
        if self.opt.get("stamps"):
            e.memtime(sTm, True)
            e.V("v_writelane_b32", v(53), sTm[0], 62)
        stop = self.opt.get("stop", 99)
        n = 0
        for p in range(2):
            for f in (lambda: self.phaseA(p), lambda: self.phase64(p, "O"), lambda: self.phaseB1(p), lambda: self.phase64(p, "C")):
                if n < stop:
                    f()
                n += 1
        if self.opt.get("stamps"):
            e.wait_all_vm()
            e.memtime(sTm, True)
            e.V("v_writelane_b32", v(53), sTm[0], 63)
            e.S("s_lshl_b32", sA, s(2), 2)
            e.S("s_add_u32", sA, sA, sWave)
            e.S("s_lshl_b32", sA, sA, 8)
            e.S("s_add_u32", sA, sA, STAMP)
            e.V("v_lshlrev_b32", TMP[1], 2, vLane)
            e.bstore(v(53), TMP[1], WS, sA)
        if self.opt.get("dbg"):
            e.wait_all_vm()
            e.memtime(s(80, 2), True)
            e.memtime(s(82, 2))
            e.sload(s(84, 2), s(0, 2), 72)
            e.S("s_mov_b32", sA, PSTAMP)
            e.V("v_mov_b32", TMP[4], 0)
            e.bload(TMP[3], TMP[4], WS, sA)
            e.S("s_sub_u32", s(82), s(82), s(78))
            e.V("v_mov_b32", TMP[0], s(76))
            e.V("v_mov_b32", TMP[1], s(80))
            e.V("v_mov_b32", TMP[2], s(82))
            e.S("s_lshr_b32", sA, s(2), 6)
            e.S("s_mul_i32", sA, sA, 16)
            e.V("v_sub_u32", TMP[0], TMP[0], TMP[3])
            e.V("v_sub_u32", TMP[1], TMP[1], TMP[3])
            e.V("v_mov_b32", TMP[4], sA)
            e.S("s_and_b32", sA, s(2), 63)
            e.S("s_add_u32", sA, sA, sWave)
            e.S("s_cmp_lg_u32", sA, 0)
            e.branch("s_cbranch_scc1", "main_end")
            e.S("s_mov_b64", EXEC, 1)
            e.misc(f"global_store_dwordx4 {TMP[4]}, {TMP[0:4]}, s[84:85]")
        e.label("main_end")
        e.misc("s_endpgm")
```

```python
from asmgen import *
from layout import *
from gen_prep import mk_srd, allreduce_g
import math

BIG = 0x40000000
LOG2E = 1.4426950408889634
LN2 = 0.6931471805599453

IMG = 0
ZT = 6144
RST = 6400
DUMMY = 6912
RING = 8192
RB = 152
LDS_BYTES = RING + RB * KB
FI = 8

WS, OUT, XIN, SB2 = s(8, 4), s(12, 4), s(16, 4), s(20, 4)
sWave, sR, sC, sCG, sRH, sKH, sW2048 = [s(24 + i) for i in range(7)]
sSeg = {"A": s(31), "O": s(32), "B": s(33), "C": s(34)}
sXr, sHr, sSTr, sFRL, sFRG, sFC = [s(35 + i) for i in range(6)]
sA, sB, sD, sE, sDm, sLd = [s(41 + i) for i in range(6)]
sMaskV = s(48, 2)
sCnt = s(50)
sTT = s(51)
sTm = s(52, 2)
sOx, sOxh, sOst, sOo, sOoh, sOh, sOhh, sKv = [s(54 + i) for i in range(8)]
sLocal, sX1 = s(72), s(73)
sNan = s(74, 2)
vDum = v(49)

vLane, vN, vG, vL16 = v(1), v(2), v(3), v(4)
vW = [v(5), v(6), v(7)]
vK = [v(8), v(9), v(10)]
vDma = v(11)
vAx = [v(12), v(13)]
vAo = [v(14), v(15)]
vAh = [v(16), v(17)]
vSt, vStW, vKvSrc, vKvDst, vT16, vZ01, vZ2, vRT, vRW, vRF, vOut, vOut4, vOne = [v(18 + i) for i in range(13)]
vOh, vXs, vXh, vHs, vHh, vFl, vPollR, vPollC, vXch = [v(31 + i) for i in range(9)]
XE = [v(40, 4), v(44, 4)]
vC2 = v(48, 2)
vC2b = v(50, 2)
vLn2 = v(52, 2)
vEps = v(54, 2)
RT = v(56, 8)
ACC = v(64, 64)
FIFO = v(128, 4 * FI)
RES = v(160, 20)
B2F = v(180, 20)
TMP = v(200, 56)


class Main:
    def __init__(self, e, opt):
        self.e = e
        self.opt = opt
        self.nstamp = 0
        self.segs = []
        pos = 0
        for p in range(2):
            for k, n in (("A", NA), ("O", NO), ("B", NB), ("C", NC)):
                self.segs.append((k, pos, n))
                pos += n
        self.total = pos
        self.ngroups = pos // 8
        self.issued = 0
        self.dmaop = {}
        self.freed = 0
        self.hold = None
        self.visible = 0
        self.seq = []
        self.seqstart = {}
        for p in range(2):
            b = self.segs[4 * p + 0][1]
            self.seqstart[("A1", p)] = len(self.seq)
            self.seq += [(b + i, "W") for i in range(105)]
            self.seqstart[("A2", p)] = len(self.seq)
            self.seq += [(b + 105 + i, "W") for i in range(63)]
            b = self.segs[4 * p + 1][1]
            self.seqstart[("A4", p)] = len(self.seq)
            self.seq += [(b + 2 * i, "K") for i in range(50)]
            b = self.segs[4 * p + 2][1]
            self.seqstart[("B1a", p)] = len(self.seq)
            self.seq += [(b + i, "W") for i in range(84)]
            self.seqstart[("B1b", p)] = len(self.seq)
            self.seq += [(b + 84 + i, "W") for i in range(63)]
            b = self.segs[4 * p + 3][1]
            self.seqstart[("B2", p)] = len(self.seq)
            self.seq += [(b + 2 * i, "K") for i in range(135)]
        self.rd = 0
        self.cons = 0
        self.lastbar = 0
        self.warn = []

    def stamp(self, name):
        if not self.opt.get("stamps"):
            return
        e = self.e
        e.wait_all_lg()
        e.memtime(sTm)
        e.V("v_writelane_b32", v(53), sTm[0], self.nstamp)
        self.opt.setdefault("stampnames", []).append(name)
        self.nstamp += 1
        assert self.nstamp <= 64

    def endpos(self, i):
        p, k = self.seq[i]
        return p + (2 if k == "K" else 1)

    def ldsaddr(self, pos):
        return RING + (pos % RB) * KB

    def can_issue(self):
        if self.issued >= self.ngroups:
            return False
        lim = self.freed if self.hold is None else min(self.freed, self.hold)
        return 8 * (self.issued + 1) <= lim + RB

    def dma_group(self):
        e = self.e
        g = self.issued
        self.issued += 1
        pos = 8 * g
        for k, b, n in self.segs:
            if b <= pos < b + n:
                break
        e.S("s_add_u32", M0, sW2048, self.ldsaddr(pos))
        yield
        e.S("s_add_u32", sDm, sSeg[k], (pos - b) * KB)
        yield
        e.dma(vDma, WS, sDm, 0)
        yield
        self.dmaop[g] = e.dma(vDma, WS, sDm, 1024)
        yield

    def dma_filler(self):
        while True:
            if self.can_issue():
                for _ in self.dma_group():
                    yield True
            else:
                yield False

    def flush_dma_partial(self):
        while self.issued > 0 and (self.issued - 1) not in self.dmaop:
            next(self.dmaf)

    def dma_all(self):
        self.flush_dma_partial()
        while self.can_issue():
            for _ in self.dma_group():
                pass

    def ring_barrier(self, need_idx, extra_ops=(), free_all=False):
        e = self.e
        need_idx = min(need_idx, len(self.seq))
        upto = self.endpos(need_idx - 1) if need_idx > 0 else 0
        g = (upto + 7) // 8
        self.flush_dma_partial()
        while self.issued < g:
            assert self.can_issue(), ("ring deadlock", self.issued, g, self.freed, self.hold)
            self.warn.append(f"forced dma group {self.issued} at seq {self.rd}")
            for _ in self.dma_group():
                pass
        ops = list(extra_ops)
        for gg in range(self.visible // 8, g):
            ops.append(self.dmaop[gg])
        e.wait_ops(ops)
        e.barrier()
        self.visible = max(self.visible, 8 * g)
        self.freed = self.seq[self.cons][0] if self.cons < len(self.seq) else self.total
        self.lastbar = self.rd

    def issue_read(self):
        e = self.e
        i = self.rd
        if i >= len(self.seq):
            return
        pos, k = self.seq[i]
        assert self.endpos(i) <= self.visible, ("read of invisible block", i, pos, self.visible)
        ad = self.ldsaddr(pos)
        base = (vW if k == "W" else vK)[ad >> 16]
        slot = i % FI
        e.ds_read(FIFO[4 * slot:4 * slot + 4], base, ad & 0xffff)
        self.rd += 1

    def prime(self):
        while self.rd < self.cons + FI and self.rd < len(self.seq) and self.endpos(self.rd) <= self.visible:
            self.issue_read()

    def run_pass(self, n, mf, ntile, xf, fillers=(), chunk=24, stop_reads=None, hooks=None,
                 aload=None, vrate=0.5, amix=(1, 0), over=0, force_bar=None, late=None, see_all=False):
        e = self.e
        fillers = list(fillers)
        lim = stop_reads if stop_reads is not None else len(self.seq)
        st = {"credit": 0.0, "k": 0}

        def one_vmem():
            na, nd = amix
            if st.get("late"):
                n0 = len(e.vm)
                try:
                    next(st["late"])
                    return True, len(e.vm) > n0
                except StopIteration:
                    st["late"] = None
            use_a = aload is not None and not aload.done and (st["k"] % (na + nd) < na or not (self.mid_group() or self.can_issue()))
            if use_a:
                r = aload.step()
                if r:
                    st["k"] += 1
                return True, r
            if aload is not None and not aload.done and nd == 0:
                return False, False
            n0 = len(e.vm)
            if not next(self.dmaf):
                return False, False
            r = len(e.vm) > n0
            if r:
                st["k"] += 1
            return True, r

        def fill(budget):
            while budget > 0:
                n0 = e.ninst
                did = False
                if st["credit"] >= 1.0:
                    did, was = one_vmem()
                    if was:
                        st["credit"] -= 1.0
                    if not did:
                        st["credit"] = min(st["credit"], 1.0)
                if not did:
                    for f in list(fillers):
                        try:
                            if next(f) == "idle":
                                continue
                            did = True
                            break
                        except StopIteration:
                            fillers.remove(f)
                if not did:
                    return
                budget -= e.ninst - n0

        def waits_for(t):
            regs = []
            for tt in (t, t + 1):
                if tt < n:
                    ks = tt // ntile
                    if aload is not None:
                        aload.upto(ks)
                    idx = self.cons + (tt - t)
                    if idx < self.rd:
                        regs += FIFO[4 * (idx % FI):4 * (idx % FI) + 4].regs()
                    regs += xf(ks, 0).regs() + xf(ks, 1).regs()
            return e._pending(regs)

        e.wait_ops(waits_for(0))
        if aload is not None:
            self.stamp("1st")
        for t in range(n):
            if aload is not None and self.opt.get("midstamp") and t == n // 2:
                self.stamp("half")
            i = self.cons
            assert self.rd > i, ("fifo underrun", i)
            W = FIFO[4 * (i % FI):4 * (i % FI) + 4]
            own = 8 * self.issued < self.endpos(lim - 1)
            if (aload is not None and not aload.done) or st.get("late"):
                st["credit"] += vrate
            elif own:
                st["credit"] += max(vrate, 0.5)
            else:
                st["credit"] += self.opt.get("rateAB", 0.25) if self.segof(8 * self.issued) in "AB" else self.opt.get("rateOC", 0.45)
            ov = over if fillers else 0
            mf(t, W, 0)
            bar = self.rd < lim and (self.endpos(self.rd) > self.visible or self.rd - self.lastbar >= chunk)
            bar = bar or t == force_bar
            if late and t == late[0]:
                st["late"] = late[1]
            if bar:
                ex, after = [], None
                if hooks and hooks.get("bar"):
                    ex, after = hooks["bar"](t)
                self.ring_barrier(lim if see_all else min(self.rd + chunk, lim), ex)
                if after:
                    after()
            else:
                fill(2 + ov)
            mf(t, W, 1)
            self.cons += 1
            used = 0
            if self.rd < lim:
                self.issue_read()
                used = 1
            pend = waits_for(t + 1) if (t % 2 == 1 and t + 1 < n) else []
            fill(2 + ov - used - (1 if pend else 0))
            if pend:
                e.wait_ops(waits_for(t + 1))
        if late and late[0] >= n:
            st["late"] = late[1]
        for f in fillers + ([st["late"]] if st.get("late") else []):
            for _ in f:
                pass

    def segof(self, pos):
        for k, b, n in self.segs:
            if b <= pos < b + n:
                return k
        return "O"

    def mid_group(self):
        return self.issued > 0 and (self.issued - 1) not in self.dmaop

    def dma_burst(self, maxgroups=99):
        e = self.e
        self.flush_dma_partial()
        gs = []
        while self.can_issue() and len(gs) < maxgroups:
            gs.append(self.issued)
            self.issued += 1
        for w in (1, 2, 3):
            mine = gs[w - 1::3]
            if not mine:
                continue
            skip = e.newlabel("noburst")
            e.S("s_cmp_lg_u32", sWave, w)
            e.branch("s_cbranch_scc1", skip)
            e.cond_begin()
            for g in mine:
                pos = 8 * g
                for k, b, n in self.segs:
                    if b <= pos < b + n:
                        break
                for h in range(2):
                    e.S("s_mov_b32", M0, self.ldsaddr(pos) + h * 4096)
                    e.S("s_add_u32", sDm, sSeg[k], (pos - b) * KB + h * 4096)
                    for q in range(4):
                        self.dmaop[g] = e.dma(vL16, WS, sDm, q * 1024)
            e.cond_end()
            e.label(skip)

    def prologue(self):
        e = self.e
        e.S("s_cmp_ge_u32", s(2), 256)
        e.branch("s_cbranch_scc1", "main_end")
        e.sload(s(64, 2), s(0, 2), 0)
        e.sload(s(66, 2), s(0, 2), 56)
        e.sload(s(68, 2), s(0, 2), 64)
        e.sload(s(70, 2), s(0, 2), 80)
        T0, T1, T2, T3 = TMP[0], TMP[1], TMP[2], TMP[3]
        e.V("v_lshrrev_b32", T0, 6, v(0))
        e.V("v_and_b32", vLane, 63, v(0))
        e.V("v_readfirstlane_b32", sWave, T0)
        e.V("v_lshlrev_b32", vL16, 4, vLane)
        e.V("v_and_b32", vN, 15, vLane)
        e.V("v_lshrrev_b32", vG, 4, vLane)
        e.S("s_and_b32", sA, s(2), 7)
        e.S("s_lshl_b32", sA, sA, 1)
        e.S("s_lshr_b32", sB, s(2), 7)
        e.S("s_add_u32", sR, sA, sB)
        e.S("s_bfe_u32", sC, s(2), (4 << 16) | 3)
        e.S("s_and_b32", sCG, sC, 7)
        e.S("s_lshr_b32", sRH, sC, 3)
        e.S("s_and_b32", sKH, sWave, 1)
        e.S("s_lshl_b32", sW2048, sWave, 11)
        e.S("s_mul_i32", sA, sC, NA * KB)
        e.S("s_add_u32", sSeg["A"], sA, WA)
        e.S("s_mul_i32", sA, sCG, NO * KB)
        e.S("s_add_u32", sSeg["O"], sA, WO)
        e.S("s_mul_i32", sA, sC, NB * KB)
        e.S("s_add_u32", sSeg["B"], sA, WB)
        e.S("s_mul_i32", sA, sCG, NC * KB)
        e.S("s_add_u32", sSeg["C"], sA, WC)
        e.V("v_add_u32", vDma, sW2048, vL16)
        mk_srd(e, WS, s(70, 2), WS_USED)
        self.dmaf = self.dma_filler()
        first = self.opt.get("first_groups", 4)
        for _ in range(first):
            for _ in self.dma_group():
                pass
        e.S("s_mul_i32", sXr, sR, 160 * KB)
        e.S("s_mul_i32", sHr, sR, 432 * KB)
        e.S("s_lshl_b32", sSTr, sR, 13)
        e.S("s_mul_i32", sA, sWave, 40 * KB)
        e.V("v_add_u32", vAx[0], sA, vL16)
        e.V("v_add_u32", vAx[1], 20 * KB, vAx[0])
        e.V("v_lshlrev_b32", T0, 11, vG)
        e.V("v_lshl_add_u32", T0, vN, 3, T0)
        e.S("s_lshl_b32", sA, sWave, 8)
        e.V("v_add_u32", vSt, sA, T0)

    def prologue2(self):
        e = self.e
        T0, T1, T2, T3, T4, T5 = [TMP[40 + i] for i in range(6)]
        mk_srd(e, OUT, s(68, 2), XSZ)
        mk_srd(e, XIN, s(64, 2), XSZ)
        mk_srd(e, SB2, s(66, 2), D * 2)
        for j in range(3):
            if j == 0:
                e.V("v_mov_b32", vW[0], vL16)
            else:
                e.V("v_add_u32", vW[j], j * 65536, vL16)
        e.S("s_lshl_b32", sA, sKH, 10)
        for j in range(3):
            e.V("v_add_u32", vK[j], sA, vW[j])
        e.V("v_lshlrev_b32", T4, 4, v(0))
        Z = TMP[44:48]
        Z = TMP[48:52]
        for j in range(4):
            e.V("v_mov_b32", Z[j], 0)
        e.ds_write(T4, Z, 0)
        e.ds_write(T4, Z, 4096)
        e.S("s_lshl_b32", sTT, sRH, 2)
        e.S("s_add_u32", sTT, sTT, sWave)
        e.S("s_xor_b32", sB, sTT, 1)
        for u, st in ((0, sTT), (1, sB)):
            e.S("s_mul_i32", sA, st, 20 * KB)
            e.S("s_mul_i32", sD, sKH, 10 * KB)
            e.S("s_add_u32", sA, sA, sD)
            e.V("v_add_u32", vAo[u], sA, vL16)
            e.S("s_mul_i32", sA, st, 54 * KB)
            e.S("s_mul_i32", sD, sKH, 27 * KB)
            e.S("s_add_u32", sA, sA, sD)
            e.V("v_add_u32", vAh[u], sA, vL16)
        e.V("v_lshrrev_b32", T0, 1, vG)
        e.V("v_and_b32", T1, 1, vG)
        e.V("v_lshlrev_b32", T2, 4, vN)
        e.V("v_lshl_add_u32", T3, T0, 8, T2)
        e.V("v_lshl_add_u32", T3, T1, 3, T3)
        e.S("s_mul_i32", sA, sTT, 20 * KB)
        e.V("v_add_u32", vXs, sA, vL16)
        e.V("v_add_u32", vXh, sA, T3)
        e.S("s_mul_i32", sA, sWave, 108 * KB)
        e.V("v_add_u32", vHs, sA, vL16)
        e.S("s_cmp_ge_u32", sC, 12)
        e.S("s_cselect_b32", sA, BIG, sA)
        e.V("v_add_u32", vHh, sA, T3)
        e.S("s_mul_i32", sA, sWave, 40 * KB)
        e.V("v_lshl_add_u32", T3, vG, 3, T2)
        e.V("v_add_u32", vOh, sA, T3)
        e.V("v_cmp_gt_u32", VCC, 2, vG)
        e.V("v_mov_b32", T3, BIG)
        e.V("v_cndmask_b32", vOh, T3, vOh, VCC)
        e.S("s_lshl_b32", sA, sTT, 7)
        e.V("v_lshl_add_u32", T3, vN, 3, sA)
        e.V("v_lshl_add_u32", vStW, T0, 2, T3)
        e.S("s_lshl_b32", sA, sWave, 7)
        e.S("s_add_u32", sA, sA, RST)
        e.V("v_lshl_add_u32", vRT, vG, 4, sA)
        e.V("v_lshl_add_u32", vRW, vN, 2, sA)
        e.S("s_lshl_b32", sA, sTT, 6)
        e.S("s_add_u32", sA, sA, RST)
        e.V("v_lshl_add_u32", vRF, vN, 2, sA)
        e.V("v_lshlrev_b32", T3, 4, vG)
        e.V("v_add_u32", vZ2, ZT + 128, T3)
        e.V("v_cmp_gt_u32", VCC, 10, vN)
        e.V("v_add_u32", T3, ZT, T3)
        e.V("v_cndmask_b32", vZ01, vZ2, T3, VCC)
        e.S("s_lshl_b32", sA, sR, 3)
        e.S("s_add_u32", sA, sA, sTT)
        e.S("s_mul_i32", sA, sA, 16 * 1280)
        e.S("s_mul_i32", sB, sCG, 160)
        e.S("s_add_u32", sA, sA, sB)
        e.V("v_mul_u32_u24", T3, 1280, vN)
        e.V("v_add_u32", T3, sA, T3)
        e.V("v_lshl_add_u32", vOut, vG, 4, T3)
        e.V("v_lshl_add_u32", vOut4, vG, 3, T3)
        e.bload(RES[10:14], vOut, XIN, 0, 0)
        e.bload(RES[14:18], vOut, XIN, 0, 64)
        e.bload(RES[18:20], vOut4, XIN, 0, 128)
        e.V("v_lshl_add_u32", T4, vG, 4, sB)
        e.V("v_lshl_add_u32", T5, vG, 3, sB)
        e.bload(B2F[10:14], T4, SB2, 0, 0)
        e.bload(B2F[14:18], T4, SB2, 0, 64)
        e.bload(B2F[18:20], T5, SB2, 0, 128)
        e.S("s_mul_i32", sA, sWave, 5120)
        e.V("v_add_u32", vXch, sA, vL16)
        e.V("v_lshlrev_b32", vFl, 2, vN)
        e.V("v_mov_b32", vPollR, 0)
        e.V("v_mov_b32", vPollC, 0)
        e.S("s_mov_b32", sA, "0x3f803f80")
        e.V("v_mov_b32", vOne, sA)
        e.V("v_mov_b32", vLn2[0], lit(LN2))
        e.V("v_mov_b32", vEps[0], lit(1e-6))
        e.S("s_mov_b32", sMaskV[0], "0x00ff00ff")
        e.S("s_mov_b32", sMaskV[1], "0x00ff00ff")
        e.S("s_lshl_b32", sA, sR, 8)
        e.S("s_add_u32", sFRL, sA, FLG_RL)
        e.S("s_add_u32", sFRG, sA, FLG_RG)
        e.S("s_lshl_b32", sA, sC, 8)
        e.S("s_add_u32", sFC, sA, FLG_C)
        e.S("s_lshl_b32", sA, sCG, 11)
        e.S("s_add_u32", sOx, sXr, sA)
        e.S("s_lshr_b32", sA, sCG, 1)
        e.S("s_lshl_b32", sA, sA, 10)
        e.S("s_and_b32", sB, sCG, 1)
        e.S("s_lshl_b32", sB, sB, 9)
        e.S("s_add_u32", sA, sA, sB)
        e.S("s_add_u32", sA, sA, 16 * KB)
        e.S("s_add_u32", sOxh, sXr, sA)
        e.S("s_lshl_b32", sA, sCG, 10)
        e.S("s_add_u32", sOst, sSTr, sA)
        e.S("s_lshl_b32", sA, sC, 10)
        e.S("s_add_u32", sOo, sXr, sA)
        e.S("s_lshl_b32", sA, sC, 8)
        e.S("s_add_u32", sA, sA, 16 * KB)
        e.S("s_add_u32", sOoh, sXr, sA)
        e.S("s_mul_i32", sA, sC, 3 * KB)
        e.S("s_add_u32", sOh, sHr, sA)
        e.S("s_lshl_b32", sA, sC, 9)
        e.S("s_add_u32", sA, sA, 48 * KB)
        e.S("s_add_u32", sOhh, sHr, sA)
        e.S("s_mul_i32", sKv, sC, 16 * KVSZ)
        e.misc(f"s_getreg_b32 {sX1}, hwreg(HW_REG_XCC_ID, 0, 4)")
        e.S("s_add_u32", sX1, sX1, 1)
        e.S("s_mov_b32", sLocal, 0)
        skip = e.newlabel("noxid")
        e.S("s_cmp_lg_u32", sWave, 3)
        e.branch("s_cbranch_scc1", skip)
        e.cond_begin()
        e.S("s_lshl_b32", sA, sR, 8)
        e.S("s_add_u32", sA, sA, FLG_X)
        e.S("s_lshl_b32", sB, sC, 2)
        e.V("v_mov_b32", T4, sB)
        e.V("v_mov_b32", T5, sX1)
        e.S("s_mov_b64", EXEC, 1)
        e.bstore(T5, T4, WS, sA, 0, "sc1")
        e.S("s_mov_b64", EXEC, -1)
        e.cond_end()
        e.label(skip)
        U, Hh, Ee, Dq = T0, T1, T2, T3
        e.S("s_mov_b32", sA, 52429)
        e.V("v_mul_u32_u24", U, sA, v(0))
        e.V("v_lshrrev_b32", U, 18, U)
        e.V("v_mul_u32_u24", Dq, 5, U)
        e.V("v_sub_u32", Dq, v(0), Dq)
        e.V("v_cmp_le_u32", VCC, 21, U)
        e.V("v_cndmask_b32", Hh, 0, 1, VCC)
        e.V("v_mul_u32_u24", Ee, 21, Hh)
        e.V("v_sub_u32", Ee, U, Ee)
        A0, A1, A2, A3 = TMP[24], TMP[25], TMP[26], TMP[27]
        e.V("v_cmp_le_u32", s(66, 2), 16, Ee)
        e.V("v_cmp_eq_u32", s(64, 2), 4, Dq)
        e.V("v_cndmask_b32", A0, 0, 1, s(66, 2))
        e.V("v_lshl_add_u32", A0, Hh, 1, A0)
        e.V("v_add_u32", A1, 4, Hh)
        e.V("v_cndmask_b32", A1, A1, 6, s(66, 2))
        e.V("v_cndmask_b32", A0, A0, A1, s(64, 2))
        e.V("v_cndmask_b32", A1, Dq, Hh, s(64, 2))
        e.V("v_lshl_add_u32", A2, Hh, 2, Ee)
        e.V("v_subrev_u32", A2, 8, A2)
        e.V("v_cndmask_b32", A2, Ee, A2, s(66, 2))
        e.V("v_cmp_eq_u32", VCC, 20, Ee)
        e.V("v_cndmask_b32", A2, A2, 0, VCC)
        e.V("v_lshl_add_u32", A1, A1, 4, A2)
        e.V("v_lshlrev_b32", A1, 4, A1)
        e.V("v_lshl_add_u32", vKvSrc, A0, 10, A1)
        e.V("v_mul_u32_u24", A0, 5, Hh)
        e.V("v_add_u32", A0, A0, Dq)
        e.V("v_cmp_le_u32", s(64, 2), 8, A0)
        e.V("v_lshrrev_b32", A1, 1, A0)
        e.V("v_subrev_u32", A2, 8, A0)
        e.V("v_cndmask_b32", A1, A1, A2, s(64, 2))
        e.V("v_and_b32", A2, 1, A0)
        e.V("v_cndmask_b32", A2, A2, 0, s(64, 2))
        e.V("v_lshlrev_b32", A2, 3, A2)
        e.V("v_cndmask_b32", A0, 0, 1, s(64, 2))
        e.V("v_lshl_add_u32", A3, Hh, 1, A0)
        e.V("v_lshl_add_u32", A3, A3, 2, A1)
        e.V("v_lshl_add_u32", A3, A3, 4, A2)
        e.V("v_add_u32", A3, ZT, A3)
        e.V("v_mul_u32_u24", T4, 20, Hh)
        e.V("v_add_u32", T4, T4, Ee)
        e.V("v_cmp_le_u32", s(66, 2), 32, T4)
        e.V("v_and_b32", T5, 1, T4)
        e.V("v_cndmask_b32", T5, T5, 2, s(66, 2))
        e.V("v_lshl_add_u32", A0, T5, 1, A0)
        e.V("v_lshrrev_b32", T5, 1, T4)
        e.V("v_subrev_u32", T4, 32, T4)
        e.V("v_cndmask_b32", T4, T5, T4, s(66, 2))
        e.V("v_lshl_add_u32", T4, A1, 4, T4)
        e.V("v_lshl_add_u32", T4, T4, 4, A2)
        e.V("v_lshl_add_u32", T4, A0, 10, T4)
        e.V("v_cndmask_b32", T4, T4, A3, VCC)
        e.V("v_cmp_gt_u32", VCC, 210, v(0))
        e.V("v_mov_b32", T5, DUMMY)
        e.V("v_cndmask_b32", vKvDst, T5, T4, VCC)
        e.V("v_cndmask_b32", vKvSrc, 0, vKvSrc, VCC)
        e.V("v_lshlrev_b32", T4, 4, v(0))
        e.V("v_mov_b32", T5, BIG)
        e.V("v_cndmask_b32", vT16, T5, T4, VCC)

    def unpack(self, dst, pk):
        e = self.e
        for a_ in range(2):
            for j in range(4):
                e.V("v_lshlrev_b32", dst[8 * a_ + j], 16, pk[4 * a_ + j])
                e.V("v_and_b32", dst[8 * a_ + 4 + j], "0xffff0000", pk[4 * a_ + j])
        for j in range(2):
            e.V("v_lshlrev_b32", dst[16 + 2 * j], 16, pk[8 + j])
            e.V("v_and_b32", dst[16 + 2 * j + 1], "0xffff0000", pk[8 + j])

    class ALoad:
        def __init__(self, m, vaddr, terms, nks):
            self.m, self.vaddr, self.terms, self.nks = m, vaddr, terms, nks
            self.n = 0
            self.based = -1
            self.done = False

        def step(self):
            e = self.m.e
            ks, u = divmod(self.n, 2)
            if ks // 4 != self.based:
                self.based = ks // 4
                e.S("s_add_u32", sLd, self.terms[0], self.terms[1] + (ks // 4) * 4 * KB)
                return False
            e.bload(a(self.n * 4, 4), self.vaddr[u], WS, sLd, (ks % 4) * KB, "sc1")
            self.n += 1
            self.done = self.n >= 2 * self.nks
            return True

        def upto(self, ks):
            while self.n < 2 * min(ks + 1, self.nks):
                self.step()

    def stats_loads(self, ver):
        e = self.e
        e.S("s_add_u32", sA, sSTr, STB[ver])
        for u in range(2):
            for k in range(2):
                e.bload(TMP[4 * u + 2 * k:4 * u + 2 * k + 2], vSt, WS, sA, k * 1024 + u * 128, "sc1")

    def stats_gen(self, need_T):
        e = self.e
        for u in range(2):
            sm, sq, t0, t1 = TMP[4 * u], TMP[4 * u + 1], TMP[4 * u + 2], TMP[4 * u + 3]
            e.V("v_add_f32", sm, sm, t0); yield
            e.V("v_add_f32", sq, sq, t1); yield
            for op in ("v_permlane32_swap_b32", "v_permlane16_swap_b32"):
                e.V("v_mov_b32", t0, sm); yield
                e.V("v_mov_b32", t1, sq); yield
                e.V(op, sm, t0); yield
                e.V(op, sq, t1); yield
                e.V("v_add_f32", sm, sm, t0); yield
                e.V("v_add_f32", sq, sq, t1); yield
            e.V("v_mul_f32", sm, lit(1.0 / D), sm); yield
            e.V("v_mul_f32", t0, sm, sm); yield
            e.V("v_fma_f32", sq, sq, self.cInvD, Neg(t0)); yield
            e.V("v_max_f32", sq, 0, sq); yield
            e.V("v_add_f32", sq, lit(1e-5), sq); yield
            e.V("v_rsq_f32", t0, sq); yield
            e.V("v_cvt_pk_bf16_f32", XE[u][0], sm, sm); yield
            e.V("v_mul_f32", sq, sq, t0); yield
            e.ds_write(vRW, t0, 64 * u); yield
            c2 = vC2 if u == 0 else vC2b
            e.V("v_mul_f32", c2[0], lit(LOG2E), t0); yield
            e.V("v_lshlrev_b32", t1, 16, XE[u][0]); yield
            e.V("v_sub_f32", sm, sm, t1); yield
            e.V("v_cvt_pk_bf16_f32", XE[u][1], sm, 0); yield
            e.V("v_cvt_pk_bf16_f32", t1, sq, sq); yield
            e.V("v_lshlrev_b32", t1, 16, t1); yield
            e.V("v_sub_f32", t1, sq, t1); yield
            e.V("v_cvt_pk_bf16_f32", XE[u][2], sq, t1); yield
            e.V("v_mov_b32", XE[u][3], 0); yield
        if need_T:
            for u in range(2):
                e.ds_read(RT[4 * u:4 * u + 4], vRT, 64 * u); yield

    def phi_pair(self, src, c2, bcast, t):
        e = self.e
        m = "op_sel_hi:[1,0]" if bcast else ""
        e.V("v_pk_mul_f32", t[0:2], src, c2, mods=m)
        e.V("v_exp_f32_e64", t[2], t[0], mods="clamp")
        e.V("v_exp_f32_e64", t[3], t[1], mods="clamp")
        e.V("v_max_f32", t[0], 0, t[0])
        e.V("v_max_f32", t[1], 0, t[1])
        e.V("v_pk_add_f32", t[2:4], t[2:4], vEps, mods="op_sel_hi:[1,0]")
        e.V("v_pk_fma_f32", t[0:2], t[0:2], vLn2, t[2:4], mods="op_sel_hi:[1,0,1]")

    def scratch(self, nblk, endpos):
        st = endpos - nblk
        if (st % RB) + nblk > RB:
            st = endpos - (endpos % RB) - nblk
        return st, self.ldsaddr(st)

    def bg_on(self, every=None):
        every = every or self.opt.get("bg_every", 10)
        st = {"n": 0}

        def f():
            st["n"] += 1
            if st["n"] >= (2 * every if self.segof(8 * self.issued) in "AB" else every):
                n0 = len(self.e.vm)
                while len(self.e.vm) == n0:
                    if not next(self.dmaf):
                        return
                st["n"] = 0
        self.e.bg = f if self.opt.get("bg", 1) else None

    def bg_off(self):
        self.e.bg = None

    def gstore(self, lst, cold=False):
        e = self.e
        mode = self.opt.get("mode", "dual")
        if cold:
            mode = "safe"
        if mode != "dual":
            return [e.bstore(d, vo, WS, so, off, "sc1" if mode == "safe" else "") for d, vo, so, off in lst]
        ls, le = e.newlabel("st_safe"), e.newlabel("st_end")
        regs = []
        for d, vo, so, off in lst:
            regs += d.regs() + vo.regs()
        e.wait_ops(e._pending(regs))
        e.S("s_cmp_eq_u32", sLocal, 0)
        need = e._need("vmem", regs, [])
        if need > 1:
            e.nop(need - 1)
        e.branch("s_cbranch_scc1", ls)
        n0 = len(e.lines)
        ops = [e.bstore(d, vo, WS, so, off, "") for d, vo, so, off in lst]
        body = e.lines[n0:]
        assert len(body) == len(lst), body
        e.raw(f"  s_branch {le}")
        e.label(ls)
        for l in body:
            e.raw(l + " sc1")
        e.label(le)
        return ops

    def touch_gen(self, lst, cold=False):
        e = self.e
        if cold or not self.opt.get("touch", 0):
            return
        for _ in range(self.opt.get("touch_delay", 60)):
            yield "idle"
        for vo, sb, add, off in lst:
            e.S("s_add_u32", sE, sb, add); yield
            e.touch(vDum, vo, WS, sE, off); yield

    def local_gen(self):
        e = self.e
        e.S("s_lshl_b32", sE, sR, 8); yield
        e.S("s_add_u32", sE, sE, FLG_X); yield
        e.bload(TMP[52], vFl, WS, sE, 0, "sc1"); yield
        for _ in range(40):
            yield "idle"
        e.V("v_cmp_ne_u32", VCC, sX1, TMP[52]); yield
        e.S("s_cmp_eq_u64", VCC, 0)
        e.S("s_cselect_b32", sLocal, 1, 0); yield

    def poll(self, kind, val):
        e = self.e
        skip = e.newlabel("nopoll")
        loop = e.newlabel("poll")
        e.S("s_cmp_lg_u32", sWave, 0)
        e.branch("s_cbranch_scc1", skip)
        e.cond_begin()
        acc = vPollR if kind == "row" else vPollC
        t = TMP[55]
        e.S("s_mov_b32", sCnt, 0)
        e.label(loop)
        e.misc(f"buffer_load_dword {t}, {vFl}, {WS}, {sFRL if kind == 'row' else sFC} offen sc1")
        e.misc("s_add_u32 %s, %s, 1" % (sCnt, sCnt))
        e.misc("s_waitcnt vmcnt(0)")
        e.misc(f"v_max_u32 {acc}, {acc}, {t}")
        e.misc(f"v_cmp_gt_u32 vcc, {val}, {acc}")
        e.misc(f"s_cbranch_vccz {skip}")
        if kind == "row":
            e.misc(f"s_and_b32 {sA}, {sCnt}, 3")
            e.misc(f"s_cbranch_scc1 {loop}")
            e.misc(f"buffer_load_dword {t}, {vFl}, {WS}, {sFRG} offen sc1")
            e.misc("s_waitcnt vmcnt(0)")
            e.misc(f"v_max_u32 {acc}, {acc}, {t}")
        else:
            e.misc("s_sleep 2")
        e.misc(f"s_cmp_lt_u32 {sCnt}, 0x40000")
        e.misc(f"s_cbranch_scc1 {loop}")
        e.cond_end()
        e.label(skip)

    def flag(self, kind, val):
        e = self.e
        lst = [(1, sFRG, "sc1", sC), (2, sFRL, "", sC)] if kind == "row" else [(1, sFC, "sc1", sR)]
        for w, sb, m, sidx in lst:
            skip = e.newlabel("noflag")
            e.S("s_cmp_lg_u32", sWave, w)
            e.branch("s_cbranch_scc1", skip)
            e.cond_begin()
            e.S("s_lshl_b32", sA, sidx, 2)
            e.V("v_mov_b32", TMP[54], sA)
            e.V("v_mov_b32", TMP[55], val)
            e.S("s_mov_b64", EXEC, 1)
            e.bstore(TMP[55], TMP[54], WS, sb, 0, m)
            e.S("s_mov_b64", EXEC, -1)
            e.cond_end()
            e.label(skip)

    def handoff(self, val, ops, shadow=None):
        e = self.e
        e.wait_all_lg()
        self.ring_barrier(self.cons + FI + self.opt.get("ahead", 16), ops)
        self.hold = None
        self.flag("row", val)
        self.stamp("flag")
        self.dma_burst(self.opt.get("burst", 6))
        self.prime()
        if shadow:
            shadow()
        self.poll("row", val)
        e.barrier()
        self.stamp("go")

    def phaseA(self, p):
        e = self.e
        opt = self.opt
        xv = 2 * p
        acc = lambda T, u: ACC[(T * 2 + u) * 4:(T * 2 + u) * 4 + 4]
        xf = lambda ks, u: a((ks * 2 + u) * 4, 4) if ks < 20 else XE[u]
        self.stats_loads(xv)
        al = self.ALoad(self, vAx, (sXr, XB[xv]), 20)
        al.upto(opt.get("adist", 8) - 1)
        if p == 0:
            for _ in range(opt.get("second_groups", 6)):
                for _ in self.dma_group():
                    pass
            self.prologue2()
            e.wait_all_lg()
            self.ring_barrier(FI + 16)
            self.prime()
            self.stamp("start")
        i0 = self.seqstart[("A1", p)]
        fb = 102
        sst, sad = self.scratch(28, self.seq[i0 + fb][0])
        self.hold = sst

        def mf(t, W, u):
            ks, T = divmod(t, 5)
            e.mfma(acc(T, u), xf(ks, u), W, acc(T, u) if ks else 0)
        self.run_pass(105, mf, 5, xf, [self.stats_gen(True)], stop_reads=self.seqstart[("A4", p)], aload=al,
                      amix=(2, 1) if p == 0 else (1, 0), vrate=0.67 if p == 0 else 0.5, force_bar=fb)
        assert sst + 28 <= self.freed
        self.stamp("A1")
        self.bg_on()
        C2T = TMP[8:16]
        for j in range(8):
            e.V("v_mul_f32", C2T[j], lit(LOG2E), RT[j])
        KF = [TMP[16:20], TMP[20:24], TMP[24:28]]
        VF = {3: TMP[28:32], 4: TMP[32:36], 2: TMP[36:40]}
        tt = [TMP[40:44], TMP[44:48]]
        n = 0
        for T in range(3):
            for u in range(2):
                for h in range(2):
                    t = tt[n % 2]
                    n += 1
                    self.phi_pair(acc(T, u)[2 * h:2 * h + 2], C2T[4 * u + 2 * h:4 * u + 2 * h + 2], False, t)
                    e.V("v_cvt_pk_bf16_f32", KF[T][2 * u + h], t[0], t[1])
        for T in (3, 4, 2):
            for u in range(2):
                for h in range(2):
                    x = acc(T, u)[2 * h:2 * h + 2]
                    e.V("v_pk_mul_f32", x, x, RT[4 * u + 2 * h:4 * u + 2 * h + 2])
            for u in range(2):
                for h in range(2):
                    x = acc(T, u)[2 * h:2 * h + 2]
                    e.V("v_cvt_pk_bf16_f32", VF[T][2 * u + h], x[0], x[1])
        for j in range(4):
            e.V("v_cndmask_b32", VF[2][j], VF[2][j], vOne, sMaskV)
        PR = [ACC[4 * i:4 * i + 4] for i in range(7)]
        prods = [(0, 3), (0, 2), (1, 4), (1, 2), (2, 3), (2, 4), (2, 2)]
        for i, (kt, vt) in enumerate(prods):
            e.mfma(PR[i], KF[kt], VF[vt], 0)
        e.S("s_mul_i32", sA, sWave, 7168)
        e.S("s_add_u32", sA, sA, sad)
        e.V("v_add_u32", TMP[0], sA, vL16)
        e.V("v_add_u32", TMP[1], sad, vKvSrc)
        for i in range(7):
            e.ds_write(TMP[0], PR[i], i * 1024)
        e.wait_all_lg()
        e.barrier()
        RD = [TMP[16 + 4 * w:20 + 4 * w] for w in range(4)]
        for w in range(4):
            e.ds_read(RD[w], TMP[1], w * 7168)
        for h in range(2):
            e.V("v_pk_add_f32", RD[0][2 * h:2 * h + 2], RD[0][2 * h:2 * h + 2], RD[1][2 * h:2 * h + 2])
            e.V("v_pk_add_f32", RD[2][2 * h:2 * h + 2], RD[2][2 * h:2 * h + 2], RD[3][2 * h:2 * h + 2])
        for h in range(2):
            e.V("v_pk_add_f32", RD[0][2 * h:2 * h + 2], RD[0][2 * h:2 * h + 2], RD[2][2 * h:2 * h + 2])
        e.S("s_mul_i32", sA, sR, KVSZ)
        e.S("s_add_u32", sA, sA, sKv)
        e.S("s_add_u32", sA, sA, KVB[p])
        kvst = e.bstore(RD[0], vT16, WS, sA, 0, "sc1")
        self.bg_off()
        self.stamp("kvpub")
        PL = [ACC[4 * i:4 * i + 4] for i in range(10)] + [TMP[24 + 4 * i:28 + 4 * i] for i in range(6)]

        def barhook(t):
            def rel():
                self.hold = None
            return [], rel

        def kvloads():
            for i in range(16):
                if i % 2 == 0:
                    e.S("s_add_u32", sB, sKv, KVB[p] + i * KVSZ); yield
                e.bload(PL[i], vT16, WS, sB, (i % 2) * KVSZ, "sc1"); yield

        def kvsum():
            for st in (1, 2, 4, 8):
                for i in range(0, 16, 2 * st):
                    for h in range(2):
                        e.V("v_pk_add_f32", PL[i][2 * h:2 * h + 2], PL[i][2 * h:2 * h + 2], PL[i + st][2 * h:2 * h + 2])
            e.V("v_cmp_u_f32", VCC, PL[0][0], PL[0][1])
            e.V("v_cmp_u_f32", sNan, PL[0][2], PL[0][3])
            e.S("s_or_b64", VCC, VCC, sNan)

        def mfq(t, W, u):
            ks, T = divmod(t, 3)
            e.mfma(acc(5 + T, u), W, xf(ks, u), acc(5 + T, u) if ks else 0)
        self.lastbar = self.rd - 8
        fl = [self.touch_gen([(vAx[0], sOo, OB[p], 0), (vAx[1], sOo, OB[p], 0), (vOh, sOoh, OB[p], 0), (vOh, sOoh, OB[p] + 20 * KB, 0)], p == 0)]
        if p == 0:
            fl.append(self.local_gen())
        self.run_pass(63, mfq, 3, xf, fl, stop_reads=self.seqstart[("A4", p)], hooks={"bar": barhook},
                      late=(opt.get("kvload_at", 30), kvloads()), see_all=True)
        self.stamp("A2")
        PQ0 = [TMP[0:4], TMP[4:8]]
        PQ1 = [TMP[8:12], TMP[12:16]]
        tq = [TMP[16:20], TMP[20:24]]
        for u in range(2):
            c2 = vC2 if u == 0 else vC2b
            for h in range(2):
                self.phi_pair(acc(5, u)[2 * h:2 * h + 2], c2, True, tq[0])
                self.phi_pair(acc(6, u)[2 * h:2 * h + 2], c2, True, tq[1])
                e.V("v_cvt_pk_bf16_f32", PQ0[u][2 * h], tq[0][0], tq[1][0])
                e.V("v_cvt_pk_bf16_f32", PQ0[u][2 * h + 1], tq[0][1], tq[1][1])
            for h in range(2):
                self.phi_pair(acc(7, u)[2 * h:2 * h + 2], c2, True, tq[h])
                e.V("v_cvt_pk_bf16_f32", PQ1[u][h], tq[h][0], tq[h][1])
            e.V("v_mov_b32", PQ1[u][2], 0)
            e.V("v_mov_b32", PQ1[u][3], 0)
        self.stamp("qepi")
        kvsum()
        lok, lre = e.newlabel("kvok"), e.newlabel("kvretry")
        e.branch("s_cbranch_scc0", lok)
        e.cond_begin()
        e.S("s_mov_b32", sCnt, 0)
        e.label(lre)
        e.misc("s_sleep 4")
        for _ in kvloads():
            pass
        kvsum()
        e.branch("s_cbranch_scc0", lok)
        e.S("s_add_u32", sCnt, sCnt, 1)
        e.S("s_cmp_lt_u32", sCnt, 0x10000)
        e.branch("s_cbranch_scc1", lre)
        e.cond_end()
        e.label(lok)
        self.stamp("kvgo")
        self.bg_on(5)
        e.V("v_cvt_pk_bf16_f32", TMP[16], PL[0][0], PL[0][1])
        e.V("v_cvt_pk_bf16_f32", TMP[17], PL[0][2], PL[0][3])
        e.ds_write(vKvDst, TMP[16:18])
        e.wait_all_lg()
        e.barrier()
        FR = [TMP[16 + 4 * i:20 + 4 * i] for i in range(10)]
        for T in range(3):
            for ks in range(2):
                e.ds_read(FR[T * 2 + ks], vL16, IMG + (T * 2 + ks) * KB)
        for ks in range(2):
            e.ds_read(FR[6 + ks], vZ01, ks * 64)
            e.ds_read(FR[8 + ks], vZ2, ks * 64)
        oa = lambda T, u: ACC[(T * 2 + u) * 4:(T * 2 + u) * 4 + 4]
        for T in (3, 4, 0, 1, 2):
            for u in range(2):
                e.mfma(oa(T, u), FR[2 * T], PQ0[u], 0)
        for T in (3, 4, 0, 1, 2):
            for u in range(2):
                e.mfma(oa(T, u), FR[2 * T + 1], PQ1[u], oa(T, u))
        e.S("s_add_u32", sA, sOo, OB[p])
        e.S("s_add_u32", sB, sOoh, OB[p])
        e.S("s_add_u32", sD, sOoh, OB[p] + 20 * KB)
        ops = []
        for u in range(2):
            for x in (oa(3, u)[0], oa(3, u)[2], oa(4, u)[0]):
                e.V("v_add_f32", x, vEps[0], x)
        for u in range(2):
            for x in (oa(3, u)[0], oa(3, u)[2], oa(4, u)[0]):
                e.V("v_rcp_f32", x, x)
        for u in range(2):
            for T in range(3):
                for h in range(2):
                    x = oa(T, u)[2 * h:2 * h + 2]
                    dn = oa(3, u)[2 * h:2 * h + 2] if T < 2 else oa(4, u)[0:2]
                    e.V("v_pk_mul_f32", x, x, dn, mods="op_sel_hi:[1,0]")
            o4 = TMP[16 + 8 * u:20 + 8 * u]
            o2 = TMP[20 + 8 * u:22 + 8 * u]
            for j in range(4):
                e.V("v_cvt_pk_bf16_f32", o4[j], oa(0, u)[j], oa(1, u)[j])
            for h in range(2):
                e.V("v_cvt_pk_bf16_f32", o2[h], oa(2, u)[2 * h], oa(2, u)[2 * h + 1])
            if u == 0:
                ops += self.gstore([(o4, vAx[u], sA, 0), (o2, vOh, sB, 0)], p == 0)
            else:
                ops += self.gstore([(o4, vAx[u], sA, 0), (o2, vOh, sD, 0)], p == 0)
        self.bg_off()
        self.stamp("A3")
        def shadow():
            if p == 0:
                self.unpack(RES, RES[10:20])
                self.unpack(B2F, B2F[10:20])
        self.handoff(4 * p + 1, ops, shadow)

    def phase64(self, p, kind):
        e = self.e
        opt = self.opt
        nks = 10 if kind == "O" else 27
        name = "A4" if kind == "O" else "B2"
        acc = lambda T, u: ACC[(u * 5 + T) * 4:(u * 5 + T) * 4 + 4]
        if kind == "O":
            al = self.ALoad(self, vAo, (sXr, OB[p]), nks)
        else:
            al = self.ALoad(self, vAh, (sHr, HB[p]), nks)
        al.upto(opt.get("adist", 8) - 1)
        xf = lambda ks, u: a((ks * 2 + u) * 4, 4)
        if kind == "C":
            e.ds_read(TMP[50], vRF)
        i0 = self.seqstart[(name, p)]
        fb = 5 * nks - 3
        sst, sad = self.scratch(20, self.seq[i0 + fb][0])
        self.hold = sst
        stop = i0 + 5 * nks

        def mf(t, W, u):
            ks, T = divmod(t, 5)
            e.mfma(acc(T, u), W, xf(ks, u), acc(T, u) if ks else 0)
        last = kind == "C" and p == 1
        xv = 2 * p + (1 if kind == "O" else 2)
        fl = [] if last else [self.touch_gen([(vXs, sOx, XB[xv], 0), (vXs, sOx, XB[xv], 1024), (vXh, sOxh, XB[xv], 0), (vStW, sOst, STB[xv], 0)])]
        self.run_pass(5 * nks, mf, 5, xf, fl, force_bar=fb, chunk=(12 if kind == "O" else opt.get("chunkC", 8)), stop_reads=stop, aload=al,
                      amix=(1, 0) if kind == "O" else tuple(opt.get("amixC", (3, 2))), vrate=0.5 if kind == "O" else opt.get("vrateC", 0.8))
        self.stamp(name)
        self.bg_on()
        e.V("v_add_u32", TMP[0], sad, vXch)
        e.S("s_xor_b32", sA, sWave, 1)
        e.S("s_mul_i32", sA, sA, 5120)
        e.S("s_add_u32", sA, sA, sad)
        e.V("v_add_u32", TMP[1], sA, vL16)
        assert sst + 20 <= self.freed
        for T in range(5):
            e.ds_write(TMP[0], acc(T, 1), T * KB)
        e.wait_all_lg()
        e.barrier()
        PT = TMP[4:24]
        for T in range(5):
            e.ds_read(PT[4 * T:4 * T + 4], TMP[1], T * KB)
        own = ACC[0:20]
        if kind == "C":
            e.V("v_mul_f32", TMP[50], TMP[50], TMP[50])
        for h in range(10):
            x = own[2 * h:2 * h + 2]
            e.V("v_pk_add_f32", x, x, PT[2 * h:2 * h + 2])
            if kind == "O":
                e.V("v_pk_add_f32", x, x, RES[2 * h:2 * h + 2])
            else:
                e.V("v_pk_fma_f32", x, x, TMP[50:52], RES[2 * h:2 * h + 2], mods="op_sel_hi:[1,0,1]")
        PK = TMP[24:34]
        for a_ in range(2):
            for j in range(4):
                e.V("v_cvt_pk_bf16_f32", PK[4 * a_ + j], own[8 * a_ + j], own[8 * a_ + 4 + j])
        for h in range(2):
            e.V("v_cvt_pk_bf16_f32", PK[8 + h], own[16 + 2 * h], own[16 + 2 * h + 1])
        self.bg_off()
        if last:
            e.bstore(PK[0:4], vOut, OUT, 0, 0)
            e.bstore(PK[4:8], vOut, OUT, 0, 64)
            e.bstore(PK[8:10], vOut4, OUT, 0, 128)
            self.stamp("end")
            return
        xv = 2 * p + (1 if kind == "O" else 2)
        ops = []
        e.S("s_add_u32", sA, sOx, XB[xv])
        e.S("s_add_u32", sB, sOxh, XB[xv])
        e.S("s_add_u32", sD, sOst, STB[xv])
        ops += self.gstore([(PK[0:4], vXs, sA, 0), (PK[4:8], vXs, sA, 1024), (PK[8:10], vXh, sB, 0)])
        sm, sq, t0 = TMP[36], TMP[37], TMP[38]
        e.V("v_mov_b32", sm, 0)
        e.V("v_mov_b32", sq, 0)
        for j in range(10):
            e.V("v_dot2c_f32_bf16", sm, PK[j], vOne)
            e.V("v_dot2c_f32_bf16", sq, PK[j], PK[j])
        e.V("v_permlane32_swap_b32", sm, sq)
        e.V("v_add_f32", sm, sm, sq)
        e.V("v_mov_b32", t0, sm)
        e.V("v_permlane16_swap_b32", sm, t0)
        e.V("v_add_f32", sm, sm, t0)
        ops += self.gstore([(sm, vStW, sD, 0)])
        self.stamp(name + "epi")

        def shadow():
            self.unpack(RES, PK)
            if kind == "O":
                for h in range(10):
                    x = RES[2 * h:2 * h + 2]
                    e.V("v_pk_add_f32", x, x, B2F[2 * h:2 * h + 2])
        self.handoff(4 * p + (2 if kind == "O" else 4), ops, shadow)

    def phaseB1(self, p):
        e = self.e
        opt = self.opt
        xv = 2 * p + 1
        acc = lambda T, u: ACC[(T * 2 + u) * 4:(T * 2 + u) * 4 + 4]
        xf = lambda ks, u: a((ks * 2 + u) * 4, 4) if ks < 20 else XE[u]
        self.stats_loads(xv)
        al = self.ALoad(self, vAx, (sXr, XB[xv]), 20)
        al.upto(opt.get("adist", 8) - 1)
        stop = self.seqstart[("B2", p)]

        def mf(t, W, u):
            ks, T = divmod(t, 4)
            e.mfma(acc(T, u), W, xf(ks, u), acc(T, u) if ks else 0)
        tl = [(vHs, sOh, HB[p] + u * 54 * KB, a_ * KB) for a_ in range(3) for u in range(2)] + [(vHh, sOhh, HB[p] + u * 54 * KB, 0) for u in range(2)]
        self.run_pass(84, mf, 4, xf, [self.stats_gen(False), self.touch_gen(tl, p == 0)], stop_reads=stop, aload=al)
        self.stamp("B1a")
        ops = []

        def epi(pairs, single):
            n = 0
            for u in range(2):
                sb = sD if u == 0 else sE
                e.S("s_add_u32", sb, sOh, HB[p] + u * 54 * KB); yield
                for a_ in pairs:
                    o = TMP[16 + 4 * (n % 4):20 + 4 * (n % 4)]
                    n += 1
                    for j in range(4):
                        x, y = acc(2 * a_, u)[j], acc(2 * a_ + 1, u)[j]
                        e.V("v_mul_f32_e64", x, x, f"|{x}|"); yield
                        e.V("v_mul_f32_e64", y, y, f"|{y}|"); yield
                        e.V("v_cvt_pk_bf16_f32", o[j], x, y); yield
                        e.V("v_pk_max_i16", o[j], o[j], 0); yield
                    ops.extend(self.gstore([(o, vHs, sb, a_ * KB)], p == 0)); yield
            if single:
                for u in range(2):
                    o = TMP[32 + 2 * u:34 + 2 * u]
                    for j in range(4):
                        x = acc(6, u)[j]
                        e.V("v_mul_f32_e64", x, x, f"|{x}|"); yield
                    for h in range(2):
                        e.V("v_cvt_pk_bf16_f32", o[h], acc(6, u)[2 * h], acc(6, u)[2 * h + 1]); yield
                        e.V("v_pk_max_i16", o[h], o[h], 0); yield
                e.S("s_add_u32", sA, sOhh, HB[p])
                e.S("s_add_u32", sB, sOhh, HB[p] + 54 * KB)
                ops.extend(self.gstore([(TMP[32:34], vHh, sA, 0), (TMP[34:36], vHh, sB, 0)], p == 0))
                yield

        def mf2(t, W, u):
            ks, T = divmod(t, 3)
            e.mfma(acc(4 + T, u), W, xf(ks, u), acc(4 + T, u) if ks else 0)
        self.run_pass(63, mf2, 3, xf, [epi([0, 1], False)], stop_reads=stop)
        self.stamp("B1b")
        for _ in epi([2], True):
            pass
        self.stamp("B1epi")
        self.handoff(4 * p + 3, ops)

    def gen(self):
        e = self.e
        e.reset_state()
        self.cInvD = s(63)
        self.prologue()
        e.S("s_mov_b32", self.cInvD, lit(1.0 / D))
        if self.opt.get("dbg"):
            e.memtime(s(76, 2), True)
            e.memtime(s(78, 2))
            e.wait_all_lg()
        self.stamp("entry")
        if self.opt.get("stamps"):
            e.memtime(sTm, True)
            e.V("v_writelane_b32", v(53), sTm[0], 62)
        stop = self.opt.get("stop", 99)
        n = 0
        for p in range(2):
            for f in (lambda: self.phaseA(p), lambda: self.phase64(p, "O"), lambda: self.phaseB1(p), lambda: self.phase64(p, "C")):
                if n < stop:
                    f()
                n += 1
        if self.opt.get("stamps"):
            e.wait_all_vm()
            e.memtime(sTm, True)
            e.V("v_writelane_b32", v(53), sTm[0], 63)
            e.S("s_lshl_b32", sA, s(2), 2)
            e.S("s_add_u32", sA, sA, sWave)
            e.S("s_lshl_b32", sA, sA, 8)
            e.S("s_add_u32", sA, sA, STAMP)
            e.V("v_lshlrev_b32", TMP[1], 2, vLane)
            e.bstore(v(53), TMP[1], WS, sA)
        if self.opt.get("dbg"):
            e.wait_all_vm()
            e.memtime(s(80, 2), True)
            e.memtime(s(82, 2))
            e.sload(s(84, 2), s(0, 2), 72)
            e.S("s_mov_b32", sA, PSTAMP)
            e.V("v_mov_b32", TMP[4], 0)
            e.bload(TMP[3], TMP[4], WS, sA)
            e.S("s_sub_u32", s(82), s(82), s(78))
            e.V("v_mov_b32", TMP[0], s(76))
            e.V("v_mov_b32", TMP[1], s(80))
            e.V("v_mov_b32", TMP[2], s(82))
            if self.opt.get("spin"):
                e.V("v_readfirstlane_b32", s(86), TMP[3])
                e.label("spin_loop")
                e.misc("s_memrealtime s[88:89]")
                e.misc("s_waitcnt lgkmcnt(0)")
                e.misc("s_sub_u32 s88, s88, s86")
                e.misc(f"s_cmp_lt_u32 s88, {self.opt['spin']}")
                e.misc("s_cbranch_scc1 spin_loop")
            e.S("s_lshr_b32", sA, s(2), 6)
            e.S("s_mul_i32", sA, sA, 16)
            e.V("v_sub_u32", TMP[0], TMP[0], TMP[3])
            e.V("v_sub_u32", TMP[1], TMP[1], TMP[3])
            e.V("v_mov_b32", TMP[4], sA)
            e.S("s_and_b32", sA, s(2), 63)
            e.S("s_add_u32", sA, sA, sWave)
            e.S("s_cmp_lg_u32", sA, 0)
            e.branch("s_cbranch_scc1", "main_end")
            e.S("s_mov_b64", EXEC, 1)
            e.misc(f"global_store_dwordx4 {TMP[4]}, {TMP[0:4]}, s[84:85]")
        e.label("main_end")
        e.misc("s_endpgm")
```

```python
from asmgen import *
from layout import *

NWG_PREP = 544
BIG = 0x40000000


def mk_srd(e, d, ptr, nbytes):
    e.S("s_mov_b32", d[0], ptr[0])
    e.S("s_mov_b32", d[1], ptr[1])
    e.S("s_mov_b32", d[2], nbytes)
    e.S("s_mov_b32", d[3], "0x00020000")


def allreduce_g(e, x, t):
    e.V("v_mov_b32", t, x)
    e.V("v_permlane32_swap_b32", x, t)
    e.V("v_add_f32", x, x, t)
    e.V("v_mov_b32", t, x)
    e.V("v_permlane16_swap_b32", x, t)
    e.V("v_add_f32", x, x, t)


def gen_prep(e, code_label, code_bytes, stamps=False, dbg=False):
    e.reset_state()
    def endpgm():
        if stamps:
            e.wait_all_vm()
            e.misc("s_waitcnt vmcnt(0)")
            e.memtime(s(70, 2), True)
            e.S("s_mov_b64", EXEC, 1)
            e.V("v_mov_b32", v(90), s(68))
            e.V("v_mov_b32", v(91), s(70))
            e.S("s_lshl_b32", s(72), s(73), 3)
            e.V("v_mov_b32", v(92), s(72))
            e.S("s_mov_b32", s(72), PSTAMP)
            e.bstore(v(90, 2), v(92), s(12, 4), s(72))
        e.misc("s_endpgm")

    P = s(16, 16)
    px, pqkv, pwo, pw1, pb1, pw2 = P[0:2], P[2:4], P[4:6], P[8:10], P[10:12], P[12:14]
    pws = s(36, 2)
    SRC, WS, SB1 = s(8, 4), s(12, 4), s(40, 4)
    sJ, sT, sP, sC, sStride, sRow, sD0, sDS, sA, sB = [s(44 + i) for i in range(10)]
    sTmp = [s(56 + i) for i in range(8)]
    vLane, vN, vG, vL16, vCol, vReg, vLeft, vT0, vT1 = [v(1 + i) for i in range(9)]
    RAW = v(16, 40)
    PK = v(56, 20)
    EX = v(76, 4)
    vBias = v(80)
    vSum = v(81)

    end = "prep_end"
    e.S("s_cmp_ge_u32", s(2), NWG_PREP)
    e.branch("s_cbranch_scc1", end)
    if stamps or dbg:
        e.memtime(s(68, 2), True)
    e.sload(P, s(0, 2), 0)
    e.sload(pws, s(0, 2), 80)
    e.V("v_lshrrev_b32", vT0, 6, v(0))
    e.V("v_and_b32", vLane, 63, v(0))
    e.V("v_readfirstlane_b32", sJ, vT0)
    e.V("v_and_b32", vN, 15, vLane)
    e.V("v_lshrrev_b32", vG, 4, vLane)
    e.V("v_lshlrev_b32", vL16, 4, vLane)
    e.S("s_lshl_b32", sA, s(2), 2)
    e.S("s_add_u32", sJ, sJ, sA)
    e.S("s_mov_b32", s(73), sJ)
    mk_srd(e, WS, pws, WS_USED)
    mk_srd(e, SB1, pb1, F * 2)
    mk_srd(e, SRC, px, XSZ)

    e.S("s_cmp_ge_u32", sJ, 1664)
    e.branch("s_cbranch_scc1", "prep_x")
    e.S("s_cmp_ge_u32", sJ, 1184)
    e.branch("s_cbranch_scc1", "prep_wc")
    e.S("s_cmp_ge_u32", sJ, 1024)
    e.branch("s_cbranch_scc1", "prep_wo")
    e.S("s_cmp_ge_u32", sJ, 512)
    e.branch("s_cbranch_scc1", "prep_wb")

    def lane_terms(stride, lt_a, lt_b, lt_g):
        e.S("s_mov_b32", sA, 8 * stride)
        e.V("v_mad_u32_u24", vReg, vG, sA, vCol)
        if lt_g:
            e.S("s_mov_b32", sA, lt_g * stride)
            e.V("v_mad_u32_u24", vLeft, vG, sA, vCol)
        else:
            e.V("v_lshrrev_b32", vT0, 1, vG)
            e.V("v_and_b32", vT1, 1, vG)
            e.S("s_mov_b32", sA, lt_a * stride)
            e.V("v_mad_u32_u24", vLeft, vT0, sA, vCol)
            e.S("s_mov_b32", sA, lt_b * stride)
            e.V("v_mad_u32_u24", vLeft, vT1, sA, vLeft)

    def load_block(b, vaddr, srow, rconst, stride):
        for i in range(8):
            t = sTmp[i]
            e.S("s_add_u32", t, srow, (rconst + i) * stride)
            e.bload(RAW[b * 8 + i], vaddr, SRC, t, 0, w="ushort")

    def pack_block(b):
        for i in range(4):
            e.V("v_lshl_or_b32", PK[b * 4 + i], RAW[b * 8 + 2 * i + 1], 16, RAW[b * 8 + 2 * i])

    def colsum_extra(with_bias):
        e.S("s_mov_b32", sA, "0x3f803f80")
        e.V("v_mov_b32", vT1, sA)
        e.V("v_mov_b32", vSum, 0)
        for i in range(20):
            e.V("v_dot2c_f32_bf16", vSum, PK[i], vT1)
        allreduce_g(e, vSum, vT0)
        e.V("v_sub_f32", vSum, 0, vSum)
        e.V("v_cvt_pk_bf16_f32", vT0, vSum, vSum)
        e.V("v_lshlrev_b32", vT0, 16, vT0)
        e.V("v_sub_f32", vT0, vSum, vT0)
        e.V("v_cvt_pk_bf16_f32", EX[0], vSum, vT0)
        e.V("v_and_b32", EX[1], "0xffff", EX[0])
        e.V("v_mov_b32", EX[3], 0)
        if with_bias:
            e.V("v_lshl_or_b32", EX[2], vBias, 16, vBias)
            e.S("s_cmp_eq_u32", sP, 0)
            e.S("s_cselect_b32", sA, -1, 0)
            e.V("v_and_b32", EX[2], sA, EX[2])
        else:
            e.V("v_mov_b32", EX[2], 0)
        e.S("s_mul_i32", sA, sDS, 20)
        e.S("s_add_u32", sA, sA, sD0)
        e.S("s_lshl_b32", sB, sP, 8)
        e.S("s_add_u32", sA, sA, sB)
        e.S("s_mov_b64", EXEC, "0xffff")
        e.bstore(EX, vL16, WS, sA)

    def linear_stores():
        for b in range(5):
            pack_block(b)
            if b < 4:
                e.S("s_lshl_b32", sA, sP, 2)
                e.S("s_add_u32", sA, sA, b)
            else:
                e.S("s_add_u32", sA, sP, 16)
            e.S("s_mul_i32", sA, sA, sDS)
            e.S("s_add_u32", sA, sA, sD0)
            e.bstore(PK[b * 4:b * 4 + 4], vL16, WS, sA)

    def xorder_loads(stride):
        e.S("s_mul_i32", sRow, sP, 160 * stride)
        lane_terms(stride, 80, 8, 0)
        for b in range(4):
            load_block(b, vReg, sRow, 80 * (b >> 1) + 32 * (b & 1), stride)
        load_block(4, vLeft, sRow, 64, stride)

    if dbg:
        e.memtime(s(70, 2), True)
        e.sload(s(74, 2), s(0, 2), 72)
        e.V("v_mov_b32", v(90), s(68))
        e.V("v_mov_b32", v(91), s(70))
        e.V("v_mov_b32", v(92), 0)
        e.S("s_cmp_lg_u32", sJ, 0)
        e.branch("s_cbranch_scc1", "prep_nodbg")
        e.S("s_mov_b32", s(72), PSTAMP)
        e.bstore(v(90, 2), v(92), WS, s(72))
        e.label("prep_nodbg")
    mk_srd(e, SRC, pqkv, D * 3 * D * 2)
    e.S("s_and_b32", sT, sJ, 7)
    e.S("s_bfe_u32", sP, sJ, (2 << 16) | 3)
    e.S("s_lshr_b32", sC, sJ, 5)
    e.S("s_mov_b32", sA, 640)
    for t, val in ((1, 660), (2, 656), (3, 1280), (4, 1300), (5, 0), (6, 1), (7, 32)):
        e.S("s_cmp_eq_u32", sT, t)
        e.S("s_cselect_b32", sA, val, sA)
    e.S("s_mul_i32", sB, sC, 40)
    e.S("s_add_u32", sA, sA, sB)
    e.V("v_add_u32", vCol, sA, vN)
    e.V("v_add_u32", vT0, vCol, vN)
    e.S("s_sub_u32", sB, sT, 5)
    e.S("s_cmp_lt_u32", sB, 2)
    e.S("s_cselect_b64", VCC, -1, 0)
    e.V("v_cndmask_b32", vCol, vCol, vT0, VCC)
    e.V("v_lshrrev_b32", vT0, 3, vN)
    e.V("v_mul_u32_u24", vT0, 640, vT0)
    e.V("v_bfe_u32", vT1, vN, 2, 1)
    e.V("v_mul_u32_u24", vT1, 20, vT1)
    e.V("v_add3_u32", vT0, vT0, vT1, sA)
    e.V("v_and_b32", vT1, 3, vN)
    e.V("v_add_u32", vT0, vT0, vT1)
    e.S("s_cmp_eq_u32", sT, 2)
    e.S("s_cselect_b64", VCC, -1, 0)
    e.V("v_cndmask_b32", vCol, vCol, vT0, VCC)
    e.V("v_lshlrev_b32", vCol, 1, vCol)
    e.S("s_cmp_eq_u32", sT, 7)
    e.S("s_cselect_b32", sB, 8, 16)
    e.V("v_cmp_le_u32", VCC, sB, vN)
    e.V("v_mov_b32", vT0, BIG)
    e.V("v_cndmask_b32", vCol, vCol, vT0, VCC)
    xorder_loads(3840)
    e.S("s_cmp_lt_u32", sT, 5)
    e.S("s_cselect_b32", sDS, 5, 3)
    e.S("s_cselect_b32", sA, 0, 100)
    e.S("s_add_u32", sA, sA, sT)
    e.S("s_mul_i32", sB, sC, NA)
    e.S("s_add_u32", sA, sA, sB)
    e.S("s_lshl_b32", sA, sA, 10)
    e.S("s_add_u32", sD0, sA, WA)
    e.S("s_lshl_b32", sDS, sDS, 10)
    linear_stores()
    colsum_extra(False)
    endpgm()

    e.reset_state()
    e.label("prep_wb")
    mk_srd(e, SRC, pw1, D * F * 2)
    e.S("s_sub_u32", sJ, sJ, 512)
    e.S("s_and_b32", sT, sJ, 7)
    e.S("s_bfe_u32", sP, sJ, (2 << 16) | 3)
    e.S("s_lshr_b32", sC, sJ, 5)
    e.S("s_cmp_eq_u32", sT, 7)
    e.branch("s_cbranch_scc1", "prep_flags")
    e.S("s_mul_i32", sA, sC, 112)
    e.S("s_max_u32", sB, sC, 12)
    e.S("s_sub_u32", sB, sB, 12)
    e.S("s_lshl_b32", sB, sB, 4)
    e.S("s_sub_u32", sA, sA, sB)
    e.S("s_lshr_b32", sB, sT, 1)
    e.S("s_lshl_b32", sB, sB, 5)
    e.S("s_add_u32", sA, sA, sB)
    e.S("s_and_b32", sB, sT, 1)
    e.S("s_add_u32", sA, sA, sB)
    e.V("v_add_u32", vCol, sA, vN)
    e.V("v_add_u32", vT0, vCol, vN)
    e.S("s_cmp_lt_u32", sT, 6)
    e.S("s_cselect_b64", VCC, -1, 0)
    e.V("v_cndmask_b32", vCol, vCol, vT0, VCC)
    e.V("v_lshlrev_b32", vCol, 1, vCol)
    e.S("s_lshl_b32", sA, sT, 4)
    e.S("s_add_u32", sA, sA, sC)
    e.S("s_cmp_ge_u32", sA, 6 * 16 + 12)
    e.S("s_cselect_b64", VCC, -1, 0)
    e.V("v_mov_b32", vT0, BIG)
    e.V("v_cndmask_b32", vCol, vCol, vT0, VCC)
    e.bload(vBias, vCol, SB1, 0, 0, w="ushort")
    xorder_loads(3456)
    e.S("s_cmp_lt_u32", sT, 4)
    e.S("s_cselect_b32", sDS, 4, 3)
    e.S("s_cselect_b32", sA, 0, 80)
    e.S("s_add_u32", sA, sA, sT)
    e.S("s_mul_i32", sB, sC, NB)
    e.S("s_add_u32", sA, sA, sB)
    e.S("s_lshl_b32", sA, sA, 10)
    e.S("s_add_u32", sD0, sA, WB)
    e.S("s_lshl_b32", sDS, sDS, 10)
    linear_stores()
    colsum_extra(True)
    endpgm()

    e.reset_state()
    e.label("prep_flags")
    e.S("s_lshr_b32", sA, sJ, 3)
    e.S("s_lshl_b32", sA, sA, 8)
    e.V("v_lshlrev_b32", vT0, 2, vLane)
    e.V("v_mov_b32", vT1, 0)
    e.bstore(vT1, vT0, WS, sA)
    endpgm()

    def ocols(scg):
        e.S("s_mul_i32", sA, scg, 80)
        e.S("s_lshr_b32", sB, sT, 1)
        e.S("s_lshl_b32", sB, sB, 5)
        e.S("s_add_u32", sA, sA, sB)
        e.S("s_and_b32", sB, sT, 1)
        e.S("s_add_u32", sA, sA, sB)
        e.V("v_add_u32", vCol, sA, vN)
        e.V("v_add_u32", vT0, vCol, vN)
        e.S("s_cmp_lt_u32", sT, 4)
        e.S("s_cselect_b64", VCC, -1, 0)
        e.V("v_cndmask_b32", vCol, vCol, vT0, VCC)
        e.V("v_lshlrev_b32", vCol, 1, vCol)

    def div5(dstq, dstr, src):
        e.S("s_mul_i32", dstq, src, 52429)
        e.S("s_lshr_b32", dstq, dstq, 18)
        e.S("s_mul_i32", sA, dstq, 5)
        e.S("s_sub_u32", dstr, src, sA)

    def split_store(b, sks, half):
        pack_block(b)
        e.S("s_mul_i32", sA, sks, 10240)
        e.S("s_add_u32", sA, sA, sD0)
        e.S("s_cmp_ge_u32", sks, half)
        e.S("s_cselect_b32", sB, half * 10240 - 1024, 0)
        e.S("s_sub_u32", sA, sA, sB)
        e.bstore(PK[b * 4:b * 4 + 4], vL16, WS, sA)

    e.reset_state()
    e.label("prep_wo")
    mk_srd(e, SRC, pwo, D * D * 2)
    e.S("s_sub_u32", sJ, sJ, 1024)
    div5(sC, sT, sJ)
    e.S("s_and_b32", sP, sC, 3)
    e.S("s_lshr_b32", sC, sC, 2)
    ocols(sC)
    e.S("s_mul_i32", sRow, sP, 160 * 1280)
    lane_terms(1280, 0, 0, 40)
    for b in range(4):
        load_block(b, vReg, sRow, 40 * b, 1280)
    load_block(4, vLeft, sRow, 32, 1280)
    e.S("s_mul_i32", sD0, sC, NO * KB)
    e.S("s_lshl_b32", sA, sT, 11)
    e.S("s_add_u32", sD0, sD0, sA)
    e.S("s_add_u32", sD0, sD0, WO)
    for b in range(5):
        if b < 4:
            e.S("s_lshl_b32", sDS, sP, 2)
            e.S("s_add_u32", sDS, sDS, b)
        else:
            e.S("s_add_u32", sDS, sP, 16)
        split_store(b, sDS, 10)
    endpgm()

    e.reset_state()
    e.label("prep_wc")
    mk_srd(e, SRC, pw2, F * D * 2)
    e.S("s_sub_u32", sJ, sJ, 1184)
    div5(sC, sT, sJ)
    e.S("s_mul_i32", sB, sC, 43691)
    e.S("s_lshr_b32", sB, sB, 19)
    e.S("s_mul_i32", sA, sB, 12)
    e.S("s_sub_u32", sP, sC, sA)
    e.S("s_mov_b32", sC, sB)
    ocols(sC)
    lane_terms(1280, 112, 8, 0)
    for b in range(4):
        e.S("s_lshl_b32", sDS, sP, 2)
        e.S("s_add_u32", sDS, sDS, b)
        e.S("s_mul_i32", sA, sDS, 43691)
        e.S("s_lshr_b32", sA, sA, 17)
        e.S("s_mul_i32", sB, sA, 3)
        e.S("s_sub_u32", sB, sDS, sB)
        e.S("s_lshl_b32", sRow, sB, 5)
        e.S("s_mul_i32", sB, sA, 112)
        e.S("s_add_u32", sRow, sRow, sB)
        e.S("s_max_u32", sB, sA, 12)
        e.S("s_sub_u32", sB, sB, 12)
        e.S("s_lshl_b32", sB, sB, 4)
        e.S("s_sub_u32", sRow, sRow, sB)
        e.S("s_mul_i32", sRow, sRow, 1280)
        load_block(b, vReg, sRow, 0, 1280)
    e.S("s_and_b32", sA, sP, -2)
    e.S("s_mul_i32", sRow, sA, 112 * 1280)
    load_block(4, vLeft, sRow, 96, 1280)
    e.S("s_mul_i32", sD0, sC, NC * KB)
    e.S("s_lshl_b32", sA, sT, 11)
    e.S("s_add_u32", sD0, sD0, sA)
    e.S("s_add_u32", sD0, sD0, WC)
    for b in range(4):
        e.S("s_lshl_b32", sDS, sP, 2)
        e.S("s_add_u32", sDS, sDS, b)
        split_store(b, sDS, 27)
    e.S("s_bitcmp1_b32", sP, 0)
    e.branch("s_cbranch_scc1", "prep_end2")
    e.S("s_lshr_b32", sDS, sP, 1)
    e.S("s_add_u32", sDS, sDS, 48)
    split_store(4, sDS, 27)
    endpgm()

    e.reset_state()
    e.label("prep_x")
    e.S("s_sub_u32", sJ, sJ, 1664)
    e.S("s_and_b32", sP, sJ, 3)
    e.S("s_lshr_b32", sC, sJ, 2)
    e.V("v_mul_u32_u24", vCol, 1280, vN)
    e.V("v_lshl_add_u32", vReg, vG, 4, vCol)
    e.V("v_lshrrev_b32", vT0, 1, vG)
    e.V("v_mul_u32_u24", vT0, 160, vT0)
    e.V("v_and_b32", vT1, 1, vG)
    e.V("v_lshl_add_u32", vT0, vT1, 4, vT0)
    e.V("v_add_u32", vLeft, vT0, vCol)
    e.S("s_mul_i32", sRow, sC, 16 * 1280)
    e.S("s_mul_i32", sA, sP, 320)
    e.S("s_add_u32", sRow, sRow, sA)
    for b in range(4):
        e.bload(PK[b * 4:b * 4 + 4], vReg, SRC, sRow, (80 * (b >> 1) + 32 * (b & 1)) * 2)
    e.bload(PK[16:20], vLeft, SRC, sRow, 128)
    if code_label:
        e.S("s_getpc_b64", s(60, 2))
        e.label("prep_pc")
        e.S("s_add_u32", s(60), s(60), f"{code_label}-prep_pc")
        e.S("s_addc_u32", s(61), s(61), 0)
        e.S("s_lshr_b32", sA, sJ, 5)
        e.S("s_lshl_b32", sA, sA, 2)
        e.S("s_add_u32", sA, sA, sP)
        nrep = (code_bytes + 65535) // 65536
        for rep in range(nrep):
            e.S("s_lshl_b32", sB, sA, 10)
            e.S("s_add_u32", sB, sB, rep * 65536)
            e.S("s_min_u32", sB, sB, code_bytes - 1024)
            e.V("v_add_u32", vT0, sB, vL16)
            e.gload(RAW[4 * rep:4 * rep + 4], vT0, s(60, 2))
    for i in range(4):
        e.V("v_mov_b32", EX[i], -1)
    e.S("s_mul_i32", sA, sJ, KVSZ)
    e.S("s_add_u32", sA, sA, KVB[0])
    for off in (0, 1024, 2048, KVSZ - 1024):
        e.bstore(EX, vL16, WS, sA, off)
    e.S("s_mul_i32", sD0, sC, 20 * KB)
    e.S("s_add_u32", sD0, sD0, XB[0])
    e.S("s_lshl_b32", sA, sP, 12)
    e.S("s_add_u32", sA, sA, sD0)
    for b in range(4):
        e.bstore(PK[b * 4:b * 4 + 4], vL16, WS, sA, b * 1024)
    e.S("s_lshl_b32", sA, sP, 10)
    e.S("s_add_u32", sA, sA, sD0)
    e.S("s_add_u32", sA, sA, 16 * KB)
    e.bstore(PK[16:20], vL16, WS, sA)
    s0, q0, s1, q1, sl, ql, one = [v(100 + i) for i in range(7)]
    e.S("s_mov_b32", sA, "0x3f803f80")
    e.V("v_mov_b32", one, sA)
    for r_ in (s0, q0, s1, q1, sl, ql):
        e.V("v_mov_b32", r_, 0)
    for i in range(8):
        e.V("v_dot2c_f32_bf16", s0, PK[i], one)
        e.V("v_dot2c_f32_bf16", q0, PK[i], PK[i])
        e.V("v_dot2c_f32_bf16", s1, PK[8 + i], one)
        e.V("v_dot2c_f32_bf16", q1, PK[8 + i], PK[8 + i])
    for i in range(4):
        e.V("v_dot2c_f32_bf16", sl, PK[16 + i], one)
        e.V("v_dot2c_f32_bf16", ql, PK[16 + i], PK[16 + i])
    e.V("v_cmp_gt_u32", VCC, 2, vG)
    e.V("v_cndmask_b32", vT0, 0, sl, VCC)
    e.V("v_add_f32", s0, s0, vT0)
    e.V("v_cndmask_b32", vT0, 0, ql, VCC)
    e.V("v_add_f32", q0, q0, vT0)
    e.V("v_cndmask_b32", vT0, sl, 0, VCC)
    e.V("v_add_f32", s1, s1, vT0)
    e.V("v_cndmask_b32", vT0, ql, 0, VCC)
    e.V("v_add_f32", q1, q1, vT0)
    for r_ in (s0, q0, s1, q1):
        allreduce_g(e, r_, vT0)
    e.V("v_cndmask_b32", s0, s1, s0, VCC)
    e.V("v_cndmask_b32", q0, q1, q0, VCC)
    e.V("v_and_b32", vT1, 1, vG)
    e.V("v_cmp_eq_u32", VCC, 0, vT1)
    e.V("v_cndmask_b32", s0, q0, s0, VCC)
    e.V("v_lshlrev_b32", vT0, 3, vN)
    e.V("v_lshl_add_u32", vT0, vT1, 2, vT0)
    e.V("v_lshrrev_b32", vT1, 1, vG)
    e.V("v_lshl_add_u32", vT0, vT1, 10, vT0)
    e.S("s_lshr_b32", sA, sC, 3)
    e.S("s_lshl_b32", sA, sA, 13)
    e.S("s_and_b32", sB, sC, 7)
    e.S("s_lshl_b32", sB, sB, 7)
    e.S("s_add_u32", sA, sA, sB)
    e.S("s_lshl_b32", sB, sP, 11)
    e.S("s_add_u32", sA, sA, sB)
    e.S("s_add_u32", sA, sA, STB[0])
    e.bstore(s0, vT0, WS, sA)
    e.label("prep_end2")
    endpgm()
    e.label(end)
    e.misc("s_endpgm")
```

```python
from asmgen import *
from layout import *
from gen_prep import mk_srd, allreduce_g
import math

BIG = 0x40000000
LOG2E = 1.4426950408889634
LN2 = 0.6931471805599453

IMG = 0
ZT = 6144
RST = 6400
DUMMY = 6912
RING = 8192
RB = 152
LDS_BYTES = RING + RB * KB
FI = 8

WS, OUT, XIN, SB2 = s(8, 4), s(12, 4), s(16, 4), s(20, 4)
sWave, sR, sC, sCG, sRH, sKH, sW2048 = [s(24 + i) for i in range(7)]
sSeg = {"A": s(31), "O": s(32), "B": s(33), "C": s(34)}
sXr, sHr, sSTr, sFRL, sFRG, sFC = [s(35 + i) for i in range(6)]
sA, sB, sD, sE, sDm, sLd = [s(41 + i) for i in range(6)]
sMaskV = s(48, 2)
sCnt = s(50)
sTT = s(51)
sTm = s(52, 2)
sOx, sOxh, sOst, sOo, sOoh, sOh, sOhh, sKv = [s(54 + i) for i in range(8)]
sLocal, sX1 = s(72), s(73)
sNan = s(74, 2)
vDum = v(49)

vLane, vN, vG, vL16 = v(1), v(2), v(3), v(4)
vW = [v(5), v(6), v(7)]
vK = [v(8), v(9), v(10)]
vDma = v(11)
vAx = [v(12), v(13)]
vAo = [v(14), v(15)]
vAh = [v(16), v(17)]
vSt, vStW, vKvSrc, vKvDst, vT16, vZ01, vZ2, vRT, vRW, vRF, vOut, vOut4, vOne = [v(18 + i) for i in range(13)]
vOh, vXs, vXh, vHs, vHh, vFl, vPollR, vPollC, vXch = [v(31 + i) for i in range(9)]
XE = [v(40, 4), v(44, 4)]
vC2 = v(48, 2)
vC2b = v(50, 2)
vLn2 = v(52, 2)
vEps = v(54, 2)
RT = v(56, 8)
ACC = v(64, 64)
FIFO = v(128, 4 * FI)
RES = v(160, 20)
B2F = v(180, 20)
TMP = v(200, 56)


class Main:
    def __init__(self, e, opt):
        self.e = e
        self.opt = opt
        self.nstamp = 0
        self.segs = []
        pos = 0
        for p in range(2):
            for k, n in (("A", NA), ("O", NO), ("B", NB), ("C", NC)):
                self.segs.append((k, pos, n))
                pos += n
        self.total = pos
        self.ngroups = pos // 8
        self.issued = 0
        self.dmaop = {}
        self.freed = 0
        self.hold = None
        self.visible = 0
        self.seq = []
        self.seqstart = {}
        for p in range(2):
            b = self.segs[4 * p + 0][1]
            self.seqstart[("A1", p)] = len(self.seq)
            self.seq += [(b + i, "W") for i in range(105)]
            self.seqstart[("A2", p)] = len(self.seq)
            self.seq += [(b + 105 + i, "W") for i in range(63)]
            b = self.segs[4 * p + 1][1]
            self.seqstart[("A4", p)] = len(self.seq)
            self.seq += [(b + 2 * i, "K") for i in range(50)]
            b = self.segs[4 * p + 2][1]
            self.seqstart[("B1a", p)] = len(self.seq)
            self.seq += [(b + i, "W") for i in range(84)]
            self.seqstart[("B1b", p)] = len(self.seq)
            self.seq += [(b + 84 + i, "W") for i in range(63)]
            b = self.segs[4 * p + 3][1]
            self.seqstart[("B2", p)] = len(self.seq)
            self.seq += [(b + 2 * i, "K") for i in range(135)]
        self.rd = 0
        self.cons = 0
        self.lastbar = 0
        self.warn = []

    def stamp(self, name):
        if not self.opt.get("stamps"):
            return
        e = self.e
        e.wait_all_lg()
        e.memtime(sTm)
        e.V("v_writelane_b32", v(53), sTm[0], self.nstamp)
        self.opt.setdefault("stampnames", []).append(name)
        self.nstamp += 1
        assert self.nstamp <= 64

    def endpos(self, i):
        p, k = self.seq[i]
        return p + (2 if k == "K" else 1)

    def ldsaddr(self, pos):
        return RING + (pos % RB) * KB

    def can_issue(self):
        if self.issued >= self.ngroups:
            return False
        lim = self.freed if self.hold is None else min(self.freed, self.hold)
        return 8 * (self.issued + 1) <= lim + RB

    def dma_group(self):
        e = self.e
        g = self.issued
        self.issued += 1
        pos = 8 * g
        for k, b, n in self.segs:
            if b <= pos < b + n:
                break
        e.S("s_add_u32", M0, sW2048, self.ldsaddr(pos))
        yield
        e.S("s_add_u32", sDm, sSeg[k], (pos - b) * KB)
        yield
        e.dma(vDma, WS, sDm, 0)
        yield
        self.dmaop[g] = e.dma(vDma, WS, sDm, 1024)
        yield

    def dma_filler(self):
        while True:
            if self.can_issue():
                for _ in self.dma_group():
                    yield True
            else:
                yield False

    def flush_dma_partial(self):
        while self.issued > 0 and (self.issued - 1) not in self.dmaop:
            next(self.dmaf)

    def dma_all(self):
        self.flush_dma_partial()
        while self.can_issue():
            for _ in self.dma_group():
                pass

    def ring_barrier(self, need_idx, extra_ops=(), free_all=False):
        e = self.e
        need_idx = min(need_idx, len(self.seq))
        upto = self.endpos(need_idx - 1) if need_idx > 0 else 0
        g = (upto + 7) // 8
        self.flush_dma_partial()
        while self.issued < g:
            assert self.can_issue(), ("ring deadlock", self.issued, g, self.freed, self.hold)
            self.warn.append(f"forced dma group {self.issued} at seq {self.rd}")
            for _ in self.dma_group():
                pass
        ops = list(extra_ops)
        for gg in range(self.visible // 8, g):
            ops.append(self.dmaop[gg])
        e.wait_ops(ops)
        e.barrier()
        self.visible = max(self.visible, 8 * g)
        self.freed = self.seq[self.cons][0] if self.cons < len(self.seq) else self.total
        self.lastbar = self.rd

    def issue_read(self):
        e = self.e
        i = self.rd
        if i >= len(self.seq):
            return
        pos, k = self.seq[i]
        assert self.endpos(i) <= self.visible, ("read of invisible block", i, pos, self.visible)
        ad = self.ldsaddr(pos)
        base = (vW if k == "W" else vK)[ad >> 16]
        slot = i % FI
        e.ds_read(FIFO[4 * slot:4 * slot + 4], base, ad & 0xffff)
        self.rd += 1

    def prime(self):
        while self.rd < self.cons + FI and self.rd < len(self.seq) and self.endpos(self.rd) <= self.visible:
            self.issue_read()

    def run_pass(self, n, mf, ntile, xf, fillers=(), chunk=24, stop_reads=None, hooks=None,
                 aload=None, vrate=0.5, amix=(1, 0), over=0, force_bar=None, late=None, see_all=False):
        e = self.e
        fillers = list(fillers)
        lim = stop_reads if stop_reads is not None else len(self.seq)
        st = {"credit": 0.0, "k": 0}

        def one_vmem():
            na, nd = amix
            if st.get("late"):
                n0 = len(e.vm)
                try:
                    next(st["late"])
                    return True, len(e.vm) > n0
                except StopIteration:
                    st["late"] = None
            use_a = aload is not None and not aload.done and (st["k"] % (na + nd) < na or not (self.mid_group() or self.can_issue()))
            if use_a:
                r = aload.step()
                if r:
                    st["k"] += 1
                return True, r
            if aload is not None and not aload.done and nd == 0:
                return False, False
            n0 = len(e.vm)
            if not next(self.dmaf):
                return False, False
            r = len(e.vm) > n0
            if r:
                st["k"] += 1
            return True, r

        def fill(budget):
            while budget > 0:
                n0 = e.ninst
                did = False
                if st["credit"] >= 1.0:
                    did, was = one_vmem()
                    if was:
                        st["credit"] -= 1.0
                    if not did:
                        st["credit"] = min(st["credit"], 1.0)
                if not did:
                    for f in list(fillers):
                        try:
                            if next(f) == "idle":
                                continue
                            did = True
                            break
                        except StopIteration:
                            fillers.remove(f)
                if not did:
                    return
                budget -= e.ninst - n0

        def waits_for(t):
            regs = []
            for tt in (t, t + 1):
                if tt < n:
                    ks = tt // ntile
                    if aload is not None:
                        aload.upto(ks)
                    idx = self.cons + (tt - t)
                    if idx < self.rd:
                        regs += FIFO[4 * (idx % FI):4 * (idx % FI) + 4].regs()
                    regs += xf(ks, 0).regs() + xf(ks, 1).regs()
            return e._pending(regs)

        e.wait_ops(waits_for(0))
        if aload is not None:
            self.stamp("1st")
        for t in range(n):
            if aload is not None and self.opt.get("midstamp") and t == n // 2:
                self.stamp("half")
            i = self.cons
            assert self.rd > i, ("fifo underrun", i)
            W = FIFO[4 * (i % FI):4 * (i % FI) + 4]
            own = 8 * self.issued < self.endpos(lim - 1)
            if (aload is not None and not aload.done) or st.get("late"):
                st["credit"] += vrate
            elif own:
                st["credit"] += max(vrate, 0.5)
            else:
                st["credit"] += self.opt.get("rateAB", 0.25) if self.segof(8 * self.issued) in "AB" else self.opt.get("rateOC", 0.45)
            ov = over if fillers else 0
            mf(t, W, 0)
            bar = self.rd < lim and (self.endpos(self.rd) > self.visible or self.rd - self.lastbar >= chunk)
            bar = bar or t == force_bar
            if late and t == late[0]:
                st["late"] = late[1]
            if bar:
                ex, after = [], None
                if hooks and hooks.get("bar"):
                    ex, after = hooks["bar"](t)
                self.ring_barrier(lim if see_all else min(self.rd + chunk, lim), ex)
                if after:
                    after()
            else:
                fill(2 + ov)
            mf(t, W, 1)
            self.cons += 1
            used = 0
            if self.rd < lim:
                self.issue_read()
                used = 1
            pend = waits_for(t + 1) if (t % 2 == 1 and t + 1 < n) else []
            fill(2 + ov - used - (1 if pend else 0))
            if pend:
                e.wait_ops(waits_for(t + 1))
        if late and late[0] >= n:
            st["late"] = late[1]
        for f in fillers + ([st["late"]] if st.get("late") else []):
            for _ in f:
                pass

    def segof(self, pos):
        for k, b, n in self.segs:
            if b <= pos < b + n:
                return k
        return "O"

    def mid_group(self):
        return self.issued > 0 and (self.issued - 1) not in self.dmaop

    def dma_burst(self, maxgroups=99):
        e = self.e
        self.flush_dma_partial()
        gs = []
        while self.can_issue() and len(gs) < maxgroups:
            gs.append(self.issued)
            self.issued += 1
        for w in (1, 2, 3):
            mine = gs[w - 1::3]
            if not mine:
                continue
            skip = e.newlabel("noburst")
            e.S("s_cmp_lg_u32", sWave, w)
            e.branch("s_cbranch_scc1", skip)
            e.cond_begin()
            for g in mine:
                pos = 8 * g
                for k, b, n in self.segs:
                    if b <= pos < b + n:
                        break
                for h in range(2):
                    e.S("s_mov_b32", M0, self.ldsaddr(pos) + h * 4096)
                    e.S("s_add_u32", sDm, sSeg[k], (pos - b) * KB + h * 4096)
                    for q in range(4):
                        self.dmaop[g] = e.dma(vL16, WS, sDm, q * 1024)
            e.cond_end()
            e.label(skip)

    def prologue(self):
        e = self.e
        e.S("s_cmp_ge_u32", s(2), 256)
        e.branch("s_cbranch_scc1", "main_end")
        e.sload(s(64, 2), s(0, 2), 0)
        e.sload(s(66, 2), s(0, 2), 56)
        e.sload(s(68, 2), s(0, 2), 64)
        e.sload(s(70, 2), s(0, 2), 80)
        T0, T1, T2, T3 = TMP[0], TMP[1], TMP[2], TMP[3]
        e.V("v_lshrrev_b32", T0, 6, v(0))
        e.V("v_and_b32", vLane, 63, v(0))
        e.V("v_readfirstlane_b32", sWave, T0)
        e.V("v_lshlrev_b32", vL16, 4, vLane)
        e.V("v_and_b32", vN, 15, vLane)
        e.V("v_lshrrev_b32", vG, 4, vLane)
        e.S("s_and_b32", sA, s(2), 7)
        e.S("s_lshl_b32", sA, sA, 1)
        e.S("s_lshr_b32", sB, s(2), 7)
        e.S("s_add_u32", sR, sA, sB)
        e.S("s_bfe_u32", sC, s(2), (4 << 16) | 3)
        e.S("s_and_b32", sCG, sC, 7)
        e.S("s_lshr_b32", sRH, sC, 3)
        e.S("s_and_b32", sKH, sWave, 1)
        e.S("s_lshl_b32", sW2048, sWave, 11)
        e.S("s_mul_i32", sA, sC, NA * KB)
        e.S("s_add_u32", sSeg["A"], sA, WA)
        e.S("s_mul_i32", sA, sCG, NO * KB)
        e.S("s_add_u32", sSeg["O"], sA, WO)
        e.S("s_mul_i32", sA, sC, NB * KB)
        e.S("s_add_u32", sSeg["B"], sA, WB)
        e.S("s_mul_i32", sA, sCG, NC * KB)
        e.S("s_add_u32", sSeg["C"], sA, WC)
        e.V("v_add_u32", vDma, sW2048, vL16)
        mk_srd(e, WS, s(70, 2), WS_USED)
        self.dmaf = self.dma_filler()
        first = self.opt.get("first_groups", 4)
        for _ in range(first):
            for _ in self.dma_group():
                pass
        e.S("s_mul_i32", sXr, sR, 160 * KB)
        e.S("s_mul_i32", sHr, sR, 432 * KB)
        e.S("s_lshl_b32", sSTr, sR, 13)
        e.S("s_mul_i32", sA, sWave, 40 * KB)
        e.V("v_add_u32", vAx[0], sA, vL16)
        e.V("v_add_u32", vAx[1], 20 * KB, vAx[0])
        e.V("v_lshlrev_b32", T0, 11, vG)
        e.V("v_lshl_add_u32", T0, vN, 3, T0)
        e.S("s_lshl_b32", sA, sWave, 8)
        e.V("v_add_u32", vSt, sA, T0)

    def prologue2(self):
        e = self.e
        T0, T1, T2, T3, T4, T5 = [TMP[40 + i] for i in range(6)]
        mk_srd(e, OUT, s(68, 2), XSZ)
        mk_srd(e, XIN, s(64, 2), XSZ)
        mk_srd(e, SB2, s(66, 2), D * 2)
        for j in range(3):
            if j == 0:
                e.V("v_mov_b32", vW[0], vL16)
            else:
                e.V("v_add_u32", vW[j], j * 65536, vL16)
        e.S("s_lshl_b32", sA, sKH, 10)
        for j in range(3):
            e.V("v_add_u32", vK[j], sA, vW[j])
        e.V("v_lshlrev_b32", T4, 4, v(0))
        Z = TMP[44:48]
        Z = TMP[48:52]
        for j in range(4):
            e.V("v_mov_b32", Z[j], 0)
        e.ds_write(T4, Z, 0)
        e.ds_write(T4, Z, 4096)
        e.S("s_lshl_b32", sTT, sRH, 2)
        e.S("s_add_u32", sTT, sTT, sWave)
        e.S("s_xor_b32", sB, sTT, 1)
        for u, st in ((0, sTT), (1, sB)):
            e.S("s_mul_i32", sA, st, 20 * KB)
            e.S("s_mul_i32", sD, sKH, 10 * KB)
            e.S("s_add_u32", sA, sA, sD)
            e.V("v_add_u32", vAo[u], sA, vL16)
            e.S("s_mul_i32", sA, st, 54 * KB)
            e.S("s_mul_i32", sD, sKH, 27 * KB)
            e.S("s_add_u32", sA, sA, sD)
            e.V("v_add_u32", vAh[u], sA, vL16)
        e.V("v_lshrrev_b32", T0, 1, vG)
        e.V("v_and_b32", T1, 1, vG)
        e.V("v_lshlrev_b32", T2, 4, vN)
        e.V("v_lshl_add_u32", T3, T0, 8, T2)
        e.V("v_lshl_add_u32", T3, T1, 3, T3)
        e.S("s_mul_i32", sA, sTT, 20 * KB)
        e.V("v_add_u32", vXs, sA, vL16)
        e.V("v_add_u32", vXh, sA, T3)
        e.S("s_mul_i32", sA, sWave, 108 * KB)
        e.V("v_add_u32", vHs, sA, vL16)
        e.S("s_cmp_ge_u32", sC, 12)
        e.S("s_cselect_b32", sA, BIG, sA)
        e.V("v_add_u32", vHh, sA, T3)
        e.S("s_mul_i32", sA, sWave, 40 * KB)
        e.V("v_lshl_add_u32", T3, vG, 3, T2)
        e.V("v_add_u32", vOh, sA, T3)
        e.V("v_cmp_gt_u32", VCC, 2, vG)
        e.V("v_mov_b32", T3, BIG)
        e.V("v_cndmask_b32", vOh, T3, vOh, VCC)
        e.S("s_lshl_b32", sA, sTT, 7)
        e.V("v_lshl_add_u32", T3, vN, 3, sA)
        e.V("v_lshl_add_u32", vStW, T0, 2, T3)
        e.S("s_lshl_b32", sA, sWave, 7)
        e.S("s_add_u32", sA, sA, RST)
        e.V("v_lshl_add_u32", vRT, vG, 4, sA)
        e.V("v_lshl_add_u32", vRW, vN, 2, sA)
        e.S("s_lshl_b32", sA, sTT, 6)
        e.S("s_add_u32", sA, sA, RST)
        e.V("v_lshl_add_u32", vRF, vN, 2, sA)
        e.V("v_lshlrev_b32", T3, 4, vG)
        e.V("v_add_u32", vZ2, ZT + 128, T3)
        e.V("v_cmp_gt_u32", VCC, 10, vN)
        e.V("v_add_u32", T3, ZT, T3)
        e.V("v_cndmask_b32", vZ01, vZ2, T3, VCC)
        e.S("s_lshl_b32", sA, sR, 3)
        e.S("s_add_u32", sA, sA, sTT)
        e.S("s_mul_i32", sA, sA, 16 * 1280)
        e.S("s_mul_i32", sB, sCG, 160)
        e.S("s_add_u32", sA, sA, sB)
        e.V("v_mul_u32_u24", T3, 1280, vN)
        e.V("v_add_u32", T3, sA, T3)
        e.V("v_lshl_add_u32", vOut, vG, 4, T3)
        e.V("v_lshl_add_u32", vOut4, vG, 3, T3)
        e.bload(RES[10:14], vOut, XIN, 0, 0)
        e.bload(RES[14:18], vOut, XIN, 0, 64)
        e.bload(RES[18:20], vOut4, XIN, 0, 128)
        e.V("v_lshl_add_u32", T4, vG, 4, sB)
        e.V("v_lshl_add_u32", T5, vG, 3, sB)
        e.bload(B2F[10:14], T4, SB2, 0, 0)
        e.bload(B2F[14:18], T4, SB2, 0, 64)
        e.bload(B2F[18:20], T5, SB2, 0, 128)
        e.S("s_mul_i32", sA, sWave, 5120)
        e.V("v_add_u32", vXch, sA, vL16)
        e.V("v_lshlrev_b32", vFl, 2, vN)
        e.V("v_mov_b32", vPollR, 0)
        e.V("v_mov_b32", vPollC, 0)
        e.S("s_mov_b32", sA, "0x3f803f80")
        e.V("v_mov_b32", vOne, sA)
        e.V("v_mov_b32", vLn2[0], lit(LN2))
        e.V("v_mov_b32", vEps[0], lit(1e-6))
        e.S("s_mov_b32", sMaskV[0], "0x00ff00ff")
        e.S("s_mov_b32", sMaskV[1], "0x00ff00ff")
        e.S("s_lshl_b32", sA, sR, 8)
        e.S("s_add_u32", sFRL, sA, FLG_RL)
        e.S("s_add_u32", sFRG, sA, FLG_RG)
        e.S("s_lshl_b32", sA, sC, 8)
        e.S("s_add_u32", sFC, sA, FLG_C)
        e.S("s_lshl_b32", sA, sCG, 11)
        e.S("s_add_u32", sOx, sXr, sA)
        e.S("s_lshr_b32", sA, sCG, 1)
        e.S("s_lshl_b32", sA, sA, 10)
        e.S("s_and_b32", sB, sCG, 1)
        e.S("s_lshl_b32", sB, sB, 9)
        e.S("s_add_u32", sA, sA, sB)
        e.S("s_add_u32", sA, sA, 16 * KB)
        e.S("s_add_u32", sOxh, sXr, sA)
        e.S("s_lshl_b32", sA, sCG, 10)
        e.S("s_add_u32", sOst, sSTr, sA)
        e.S("s_lshl_b32", sA, sC, 10)
        e.S("s_add_u32", sOo, sXr, sA)
        e.S("s_lshl_b32", sA, sC, 8)
        e.S("s_add_u32", sA, sA, 16 * KB)
        e.S("s_add_u32", sOoh, sXr, sA)
        e.S("s_mul_i32", sA, sC, 3 * KB)
        e.S("s_add_u32", sOh, sHr, sA)
        e.S("s_lshl_b32", sA, sC, 9)
        e.S("s_add_u32", sA, sA, 48 * KB)
        e.S("s_add_u32", sOhh, sHr, sA)
        e.S("s_mul_i32", sKv, sC, 16 * KVSZ)
        e.misc(f"s_getreg_b32 {sX1}, hwreg(HW_REG_XCC_ID, 0, 4)")
        e.S("s_add_u32", sX1, sX1, 1)
        e.S("s_mov_b32", sLocal, 0)
        skip = e.newlabel("noxid")
        e.S("s_cmp_lg_u32", sWave, 3)
        e.branch("s_cbranch_scc1", skip)
        e.cond_begin()
        e.S("s_lshl_b32", sA, sR, 8)
        e.S("s_add_u32", sA, sA, FLG_X)
        e.S("s_lshl_b32", sB, sC, 2)
        e.V("v_mov_b32", T4, sB)
        e.V("v_mov_b32", T5, sX1)
        e.S("s_mov_b64", EXEC, 1)
        e.bstore(T5, T4, WS, sA, 0, "sc1")
        e.S("s_mov_b64", EXEC, -1)
        e.cond_end()
        e.label(skip)
        U, Hh, Ee, Dq = T0, T1, T2, T3
        e.S("s_mov_b32", sA, 52429)
        e.V("v_mul_u32_u24", U, sA, v(0))
        e.V("v_lshrrev_b32", U, 18, U)
        e.V("v_mul_u32_u24", Dq, 5, U)
        e.V("v_sub_u32", Dq, v(0), Dq)
        e.V("v_cmp_le_u32", VCC, 21, U)
        e.V("v_cndmask_b32", Hh, 0, 1, VCC)
        e.V("v_mul_u32_u24", Ee, 21, Hh)
        e.V("v_sub_u32", Ee, U, Ee)
        A0, A1, A2, A3 = TMP[24], TMP[25], TMP[26], TMP[27]
        e.V("v_cmp_le_u32", s(66, 2), 16, Ee)
        e.V("v_cmp_eq_u32", s(64, 2), 4, Dq)
        e.V("v_cndmask_b32", A0, 0, 1, s(66, 2))
        e.V("v_lshl_add_u32", A0, Hh, 1, A0)
        e.V("v_add_u32", A1, 4, Hh)
        e.V("v_cndmask_b32", A1, A1, 6, s(66, 2))
        e.V("v_cndmask_b32", A0, A0, A1, s(64, 2))
        e.V("v_cndmask_b32", A1, Dq, Hh, s(64, 2))
        e.V("v_lshl_add_u32", A2, Hh, 2, Ee)
        e.V("v_subrev_u32", A2, 8, A2)
        e.V("v_cndmask_b32", A2, Ee, A2, s(66, 2))
        e.V("v_cmp_eq_u32", VCC, 20, Ee)
        e.V("v_cndmask_b32", A2, A2, 0, VCC)
        e.V("v_lshl_add_u32", A1, A1, 4, A2)
        e.V("v_lshlrev_b32", A1, 4, A1)
        e.V("v_lshl_add_u32", vKvSrc, A0, 10, A1)
        e.V("v_mul_u32_u24", A0, 5, Hh)
        e.V("v_add_u32", A0, A0, Dq)
        e.V("v_cmp_le_u32", s(64, 2), 8, A0)
        e.V("v_lshrrev_b32", A1, 1, A0)
        e.V("v_subrev_u32", A2, 8, A0)
        e.V("v_cndmask_b32", A1, A1, A2, s(64, 2))
        e.V("v_and_b32", A2, 1, A0)
        e.V("v_cndmask_b32", A2, A2, 0, s(64, 2))
        e.V("v_lshlrev_b32", A2, 3, A2)
        e.V("v_cndmask_b32", A0, 0, 1, s(64, 2))
        e.V("v_lshl_add_u32", A3, Hh, 1, A0)
        e.V("v_lshl_add_u32", A3, A3, 2, A1)
        e.V("v_lshl_add_u32", A3, A3, 4, A2)
        e.V("v_add_u32", A3, ZT, A3)
        e.V("v_mul_u32_u24", T4, 20, Hh)
        e.V("v_add_u32", T4, T4, Ee)
        e.V("v_cmp_le_u32", s(66, 2), 32, T4)
        e.V("v_and_b32", T5, 1, T4)
        e.V("v_cndmask_b32", T5, T5, 2, s(66, 2))
        e.V("v_lshl_add_u32", A0, T5, 1, A0)
        e.V("v_lshrrev_b32", T5, 1, T4)
        e.V("v_subrev_u32", T4, 32, T4)
        e.V("v_cndmask_b32", T4, T5, T4, s(66, 2))
        e.V("v_lshl_add_u32", T4, A1, 4, T4)
        e.V("v_lshl_add_u32", T4, T4, 4, A2)
        e.V("v_lshl_add_u32", T4, A0, 10, T4)
        e.V("v_cndmask_b32", T4, T4, A3, VCC)
        e.V("v_cmp_gt_u32", VCC, 210, v(0))
        e.V("v_mov_b32", T5, DUMMY)
        e.V("v_cndmask_b32", vKvDst, T5, T4, VCC)
        e.V("v_cndmask_b32", vKvSrc, 0, vKvSrc, VCC)
        e.V("v_lshlrev_b32", T4, 4, v(0))
        e.V("v_mov_b32", T5, BIG)
        e.V("v_cndmask_b32", vT16, T5, T4, VCC)

    def unpack(self, dst, pk):
        e = self.e
        for a_ in range(2):
            for j in range(4):
                e.V("v_lshlrev_b32", dst[8 * a_ + j], 16, pk[4 * a_ + j])
                e.V("v_and_b32", dst[8 * a_ + 4 + j], "0xffff0000", pk[4 * a_ + j])
        for j in range(2):
            e.V("v_lshlrev_b32", dst[16 + 2 * j], 16, pk[8 + j])
            e.V("v_and_b32", dst[16 + 2 * j + 1], "0xffff0000", pk[8 + j])

    class ALoad:
        def __init__(self, m, vaddr, terms, nks):
            self.m, self.vaddr, self.terms, self.nks = m, vaddr, terms, nks
            self.n = 0
            self.based = -1
            self.done = False

        def step(self):
            e = self.m.e
            ks, u = divmod(self.n, 2)
            if ks // 4 != self.based:
                self.based = ks // 4
                e.S("s_add_u32", sLd, self.terms[0], self.terms[1] + (ks // 4) * 4 * KB)
                return False
            e.bload(a(self.n * 4, 4), self.vaddr[u], WS, sLd, (ks % 4) * KB, "sc1")
            self.n += 1
            self.done = self.n >= 2 * self.nks
            return True

        def upto(self, ks):
            while self.n < 2 * min(ks + 1, self.nks):
                self.step()

    def stats_loads(self, ver):
        e = self.e
        e.S("s_add_u32", sA, sSTr, STB[ver])
        for u in range(2):
            for k in range(2):
                e.bload(TMP[4 * u + 2 * k:4 * u + 2 * k + 2], vSt, WS, sA, k * 1024 + u * 128, "sc1")

    def stats_gen(self, need_T):
        e = self.e
        for u in range(2):
            sm, sq, t0, t1 = TMP[4 * u], TMP[4 * u + 1], TMP[4 * u + 2], TMP[4 * u + 3]
            e.V("v_add_f32", sm, sm, t0); yield
            e.V("v_add_f32", sq, sq, t1); yield
            for op in ("v_permlane32_swap_b32", "v_permlane16_swap_b32"):
                e.V("v_mov_b32", t0, sm); yield
                e.V("v_mov_b32", t1, sq); yield
                e.V(op, sm, t0); yield
                e.V(op, sq, t1); yield
                e.V("v_add_f32", sm, sm, t0); yield
                e.V("v_add_f32", sq, sq, t1); yield
            e.V("v_mul_f32", sm, lit(1.0 / D), sm); yield
            e.V("v_mul_f32", t0, sm, sm); yield
            e.V("v_fma_f32", sq, sq, self.cInvD, Neg(t0)); yield
            e.V("v_max_f32", sq, 0, sq); yield
            e.V("v_add_f32", sq, lit(1e-5), sq); yield
            e.V("v_rsq_f32", t0, sq); yield
            e.V("v_cvt_pk_bf16_f32", XE[u][0], sm, sm); yield
            e.V("v_mul_f32", sq, sq, t0); yield
            e.ds_write(vRW, t0, 64 * u); yield
            c2 = vC2 if u == 0 else vC2b
            e.V("v_mul_f32", c2[0], lit(LOG2E), t0); yield
            e.V("v_lshlrev_b32", t1, 16, XE[u][0]); yield
            e.V("v_sub_f32", sm, sm, t1); yield
            e.V("v_cvt_pk_bf16_f32", XE[u][1], sm, 0); yield
            e.V("v_cvt_pk_bf16_f32", t1, sq, sq); yield
            e.V("v_lshlrev_b32", t1, 16, t1); yield
            e.V("v_sub_f32", t1, sq, t1); yield
            e.V("v_cvt_pk_bf16_f32", XE[u][2], sq, t1); yield
            e.V("v_mov_b32", XE[u][3], 0); yield
        if need_T:
            for u in range(2):
                e.ds_read(RT[4 * u:4 * u + 4], vRT, 64 * u); yield

    def phi_pair(self, src, c2, bcast, t):
        e = self.e
        m = "op_sel_hi:[1,0]" if bcast else ""
        e.V("v_pk_mul_f32", t[0:2], src, c2, mods=m)
        e.V("v_exp_f32_e64", t[2], t[0], mods="clamp")
        e.V("v_exp_f32_e64", t[3], t[1], mods="clamp")
        e.V("v_max_f32", t[0], 0, t[0])
        e.V("v_max_f32", t[1], 0, t[1])
        e.V("v_pk_add_f32", t[2:4], t[2:4], vEps, mods="op_sel_hi:[1,0]")
        e.V("v_pk_fma_f32", t[0:2], t[0:2], vLn2, t[2:4], mods="op_sel_hi:[1,0,1]")

    def scratch(self, nblk, endpos):
        st = endpos - nblk
        if (st % RB) + nblk > RB:
            st = endpos - (endpos % RB) - nblk
        return st, self.ldsaddr(st)

    def bg_on(self, every=None):
        every = every or self.opt.get("bg_every", 10)
        st = {"n": 0}

        def f():
            st["n"] += 1
            if st["n"] >= (2 * every if self.segof(8 * self.issued) in "AB" else every):
                n0 = len(self.e.vm)
                while len(self.e.vm) == n0:
                    if not next(self.dmaf):
                        return
                st["n"] = 0
        self.e.bg = f if self.opt.get("bg", 1) else None

    def bg_off(self):
        self.e.bg = None

    def gstore(self, lst, cold=False):
        e = self.e
        mode = self.opt.get("mode", "dual")
        if cold:
            mode = "safe"
        if mode != "dual":
            return [e.bstore(d, vo, WS, so, off, "sc1" if mode == "safe" else "") for d, vo, so, off in lst]
        ls, le = e.newlabel("st_safe"), e.newlabel("st_end")
        regs = []
        for d, vo, so, off in lst:
            regs += d.regs() + vo.regs()
        e.wait_ops(e._pending(regs))
        e.S("s_cmp_eq_u32", sLocal, 0)
        need = e._need("vmem", regs, [])
        if need > 1:
            e.nop(need - 1)
        e.branch("s_cbranch_scc1", ls)
        n0 = len(e.lines)
        ops = [e.bstore(d, vo, WS, so, off, "") for d, vo, so, off in lst]
        body = e.lines[n0:]
        assert len(body) == len(lst), body
        e.raw(f"  s_branch {le}")
        e.label(ls)
        for l in body:
            e.raw(l + " sc1")
        e.label(le)
        return ops

    def touch_gen(self, lst, cold=False):
        e = self.e
        if cold or not self.opt.get("touch", 0):
            return
        for _ in range(self.opt.get("touch_delay", 60)):
            yield "idle"
        for vo, sb, add, off in lst:
            e.S("s_add_u32", sE, sb, add); yield
            e.touch(vDum, vo, WS, sE, off); yield

    def local_gen(self):
        e = self.e
        e.S("s_lshl_b32", sE, sR, 8); yield
        e.S("s_add_u32", sE, sE, FLG_X); yield
        e.bload(TMP[52], vFl, WS, sE, 0, "sc1"); yield
        for _ in range(40):
            yield "idle"
        e.V("v_cmp_ne_u32", VCC, sX1, TMP[52]); yield
        e.S("s_cmp_eq_u64", VCC, 0)
        e.S("s_cselect_b32", sLocal, 1, 0); yield

    def poll(self, kind, val):
        e = self.e
        skip = e.newlabel("nopoll")
        loop = e.newlabel("poll")
        e.S("s_cmp_lg_u32", sWave, 0)
        e.branch("s_cbranch_scc1", skip)
        e.cond_begin()
        acc = vPollR if kind == "row" else vPollC
        t = TMP[55]
        e.S("s_mov_b32", sCnt, 0)
        e.label(loop)
        e.misc(f"buffer_load_dword {t}, {vFl}, {WS}, {sFRL if kind == 'row' else sFC} offen sc1")
        e.misc("s_add_u32 %s, %s, 1" % (sCnt, sCnt))
        e.misc("s_waitcnt vmcnt(0)")
        e.misc(f"v_max_u32 {acc}, {acc}, {t}")
        e.misc(f"v_cmp_gt_u32 vcc, {val}, {acc}")
        e.misc(f"s_cbranch_vccz {skip}")
        if kind == "row":
            e.misc(f"s_and_b32 {sA}, {sCnt}, 3")
            e.misc(f"s_cbranch_scc1 {loop}")
            e.misc(f"buffer_load_dword {t}, {vFl}, {WS}, {sFRG} offen sc1")
            e.misc("s_waitcnt vmcnt(0)")
            e.misc(f"v_max_u32 {acc}, {acc}, {t}")
        else:
            e.misc("s_sleep 2")
        e.misc(f"s_cmp_lt_u32 {sCnt}, 0x40000")
        e.misc(f"s_cbranch_scc1 {loop}")
        e.cond_end()
        e.label(skip)

    def flag(self, kind, val):
        e = self.e
        lst = [(1, sFRG, "sc1", sC), (2, sFRL, "", sC)] if kind == "row" else [(1, sFC, "sc1", sR)]
        for w, sb, m, sidx in lst:
            skip = e.newlabel("noflag")
            e.S("s_cmp_lg_u32", sWave, w)
            e.branch("s_cbranch_scc1", skip)
            e.cond_begin()
            e.S("s_lshl_b32", sA, sidx, 2)
            e.V("v_mov_b32", TMP[54], sA)
            e.V("v_mov_b32", TMP[55], val)
            e.S("s_mov_b64", EXEC, 1)
            e.bstore(TMP[55], TMP[54], WS, sb, 0, m)
            e.S("s_mov_b64", EXEC, -1)
            e.cond_end()
            e.label(skip)

    def handoff(self, val, ops, shadow=None):
        e = self.e
        e.wait_all_lg()
        self.ring_barrier(self.cons + FI + self.opt.get("ahead", 16), ops)
        self.hold = None
        self.flag("row", val)
        self.stamp("flag")
        self.dma_burst(self.opt.get("burst", 6))
        self.prime()
        if shadow:
            shadow()
        self.poll("row", val)
        e.barrier()
        self.stamp("go")

    def phaseA(self, p):
        e = self.e
        opt = self.opt
        xv = 2 * p
        acc = lambda T, u: ACC[(T * 2 + u) * 4:(T * 2 + u) * 4 + 4]
        xf = lambda ks, u: a((ks * 2 + u) * 4, 4) if ks < 20 else XE[u]
        self.stats_loads(xv)
        al = self.ALoad(self, vAx, (sXr, XB[xv]), 20)
        al.upto(opt.get("adist", 8) - 1)
        if p == 0:
            for _ in range(opt.get("second_groups", 6)):
                for _ in self.dma_group():
                    pass
            self.prologue2()
            e.wait_all_lg()
            self.ring_barrier(FI + 16)
            self.prime()
            self.stamp("start")
        i0 = self.seqstart[("A1", p)]
        fb = 102
        sst, sad = self.scratch(28, self.seq[i0 + fb][0])
        self.hold = sst

        def mf(t, W, u):
            ks, T = divmod(t, 5)
            e.mfma(acc(T, u), xf(ks, u), W, acc(T, u) if ks else 0)
        self.run_pass(105, mf, 5, xf, [self.stats_gen(True)], stop_reads=self.seqstart[("A4", p)], aload=al,
                      amix=(2, 1) if p == 0 else (1, 0), vrate=0.67 if p == 0 else 0.5, force_bar=fb)
        assert sst + 28 <= self.freed
        self.stamp("A1")
        self.bg_on()
        C2T = TMP[8:16]
        for j in range(8):
            e.V("v_mul_f32", C2T[j], lit(LOG2E), RT[j])
        KF = [TMP[16:20], TMP[20:24], TMP[24:28]]
        VF = {3: TMP[28:32], 4: TMP[32:36], 2: TMP[36:40]}
        tt = [TMP[40:44], TMP[44:48]]
        n = 0
        for T in range(3):
            for u in range(2):
                for h in range(2):
                    t = tt[n % 2]
                    n += 1
                    self.phi_pair(acc(T, u)[2 * h:2 * h + 2], C2T[4 * u + 2 * h:4 * u + 2 * h + 2], False, t)
                    e.V("v_cvt_pk_bf16_f32", KF[T][2 * u + h], t[0], t[1])
        for T in (3, 4, 2):
            for u in range(2):
                for h in range(2):
                    x = acc(T, u)[2 * h:2 * h + 2]
                    e.V("v_pk_mul_f32", x, x, RT[4 * u + 2 * h:4 * u + 2 * h + 2])
            for u in range(2):
                for h in range(2):
                    x = acc(T, u)[2 * h:2 * h + 2]
                    e.V("v_cvt_pk_bf16_f32", VF[T][2 * u + h], x[0], x[1])
        for j in range(4):
            e.V("v_cndmask_b32", VF[2][j], VF[2][j], vOne, sMaskV)
        PR = [ACC[4 * i:4 * i + 4] for i in range(7)]
        prods = [(0, 3), (0, 2), (1, 4), (1, 2), (2, 3), (2, 4), (2, 2)]
        for i, (kt, vt) in enumerate(prods):
            e.mfma(PR[i], KF[kt], VF[vt], 0)
        e.S("s_mul_i32", sA, sWave, 7168)
        e.S("s_add_u32", sA, sA, sad)
        e.V("v_add_u32", TMP[0], sA, vL16)
        e.V("v_add_u32", TMP[1], sad, vKvSrc)
        for i in range(7):
            e.ds_write(TMP[0], PR[i], i * 1024)
        e.wait_all_lg()
        e.barrier()
        RD = [TMP[16 + 4 * w:20 + 4 * w] for w in range(4)]
        for w in range(4):
            e.ds_read(RD[w], TMP[1], w * 7168)
        for h in range(2):
            e.V("v_pk_add_f32", RD[0][2 * h:2 * h + 2], RD[0][2 * h:2 * h + 2], RD[1][2 * h:2 * h + 2])
            e.V("v_pk_add_f32", RD[2][2 * h:2 * h + 2], RD[2][2 * h:2 * h + 2], RD[3][2 * h:2 * h + 2])
        for h in range(2):
            e.V("v_pk_add_f32", RD[0][2 * h:2 * h + 2], RD[0][2 * h:2 * h + 2], RD[2][2 * h:2 * h + 2])
        e.S("s_mul_i32", sA, sR, KVSZ)
        e.S("s_add_u32", sA, sA, sKv)
        e.S("s_add_u32", sA, sA, KVB[p])
        kvst = e.bstore(RD[0], vT16, WS, sA, 0, "sc1")
        self.bg_off()
        self.stamp("kvpub")
        PL = [ACC[4 * i:4 * i + 4] for i in range(10)] + [TMP[24 + 4 * i:28 + 4 * i] for i in range(6)]

        def barhook(t):
            def rel():
                self.hold = None
            return [], rel

        def kvloads():
            for i in range(16):
                if i % 2 == 0:
                    e.S("s_add_u32", sB, sKv, KVB[p] + i * KVSZ); yield
                e.bload(PL[i], vT16, WS, sB, (i % 2) * KVSZ, "sc1"); yield

        def kvsum():
            for st in (1, 2, 4, 8):
                for i in range(0, 16, 2 * st):
                    for h in range(2):
                        e.V("v_pk_add_f32", PL[i][2 * h:2 * h + 2], PL[i][2 * h:2 * h + 2], PL[i + st][2 * h:2 * h + 2])
            e.V("v_cmp_u_f32", VCC, PL[0][0], PL[0][1])
            e.V("v_cmp_u_f32", sNan, PL[0][2], PL[0][3])
            e.S("s_or_b64", VCC, VCC, sNan)

        def mfq(t, W, u):
            ks, T = divmod(t, 3)
            e.mfma(acc(5 + T, u), W, xf(ks, u), acc(5 + T, u) if ks else 0)
        self.lastbar = self.rd - 8
        fl = [self.touch_gen([(vAx[0], sOo, OB[p], 0), (vAx[1], sOo, OB[p], 0), (vOh, sOoh, OB[p], 0), (vOh, sOoh, OB[p] + 20 * KB, 0)], p == 0)]
        if p == 0:
            fl.append(self.local_gen())
        self.run_pass(63, mfq, 3, xf, fl, stop_reads=self.seqstart[("A4", p)], hooks={"bar": barhook},
                      late=(opt.get("kvload_at", 30), kvloads()), see_all=True)
        self.stamp("A2")
        PQ0 = [TMP[0:4], TMP[4:8]]
        PQ1 = [TMP[8:12], TMP[12:16]]
        tq = [TMP[16:20], TMP[20:24]]
        for u in range(2):
            c2 = vC2 if u == 0 else vC2b
            for h in range(2):
                self.phi_pair(acc(5, u)[2 * h:2 * h + 2], c2, True, tq[0])
                self.phi_pair(acc(6, u)[2 * h:2 * h + 2], c2, True, tq[1])
                e.V("v_cvt_pk_bf16_f32", PQ0[u][2 * h], tq[0][0], tq[1][0])
                e.V("v_cvt_pk_bf16_f32", PQ0[u][2 * h + 1], tq[0][1], tq[1][1])
            for h in range(2):
                self.phi_pair(acc(7, u)[2 * h:2 * h + 2], c2, True, tq[h])
                e.V("v_cvt_pk_bf16_f32", PQ1[u][h], tq[h][0], tq[h][1])
            e.V("v_mov_b32", PQ1[u][2], 0)
            e.V("v_mov_b32", PQ1[u][3], 0)
        self.stamp("qepi")
        kvsum()
        lok, lre = e.newlabel("kvok"), e.newlabel("kvretry")
        e.branch("s_cbranch_scc0", lok)
        e.cond_begin()
        e.S("s_mov_b32", sCnt, 0)
        e.label(lre)
        e.misc("s_sleep 4")
        for _ in kvloads():
            pass
        kvsum()
        e.branch("s_cbranch_scc0", lok)
        e.S("s_add_u32", sCnt, sCnt, 1)
        e.S("s_cmp_lt_u32", sCnt, 0x10000)
        e.branch("s_cbranch_scc1", lre)
        e.cond_end()
        e.label(lok)
        self.stamp("kvgo")
        self.bg_on(5)
        e.V("v_cvt_pk_bf16_f32", TMP[16], PL[0][0], PL[0][1])
        e.V("v_cvt_pk_bf16_f32", TMP[17], PL[0][2], PL[0][3])
        e.ds_write(vKvDst, TMP[16:18])
        e.wait_all_lg()
        e.barrier()
        FR = [TMP[16 + 4 * i:20 + 4 * i] for i in range(10)]
        for T in range(3):
            for ks in range(2):
                e.ds_read(FR[T * 2 + ks], vL16, IMG + (T * 2 + ks) * KB)
        for ks in range(2):
            e.ds_read(FR[6 + ks], vZ01, ks * 64)
            e.ds_read(FR[8 + ks], vZ2, ks * 64)
        oa = lambda T, u: ACC[(T * 2 + u) * 4:(T * 2 + u) * 4 + 4]
        for T in (3, 4, 0, 1, 2):
            for u in range(2):
                e.mfma(oa(T, u), FR[2 * T], PQ0[u], 0)
        for T in (3, 4, 0, 1, 2):
            for u in range(2):
                e.mfma(oa(T, u), FR[2 * T + 1], PQ1[u], oa(T, u))
        e.S("s_add_u32", sA, sOo, OB[p])
        e.S("s_add_u32", sB, sOoh, OB[p])
        e.S("s_add_u32", sD, sOoh, OB[p] + 20 * KB)
        ops = []
        for u in range(2):
            for x in (oa(3, u)[0], oa(3, u)[2], oa(4, u)[0]):
                e.V("v_add_f32", x, vEps[0], x)
        for u in range(2):
            for x in (oa(3, u)[0], oa(3, u)[2], oa(4, u)[0]):
                e.V("v_rcp_f32", x, x)
        for u in range(2):
            for T in range(3):
                for h in range(2):
                    x = oa(T, u)[2 * h:2 * h + 2]
                    dn = oa(3, u)[2 * h:2 * h + 2] if T < 2 else oa(4, u)[0:2]
                    e.V("v_pk_mul_f32", x, x, dn, mods="op_sel_hi:[1,0]")
            o4 = TMP[16 + 8 * u:20 + 8 * u]
            o2 = TMP[20 + 8 * u:22 + 8 * u]
            for j in range(4):
                e.V("v_cvt_pk_bf16_f32", o4[j], oa(0, u)[j], oa(1, u)[j])
            for h in range(2):
                e.V("v_cvt_pk_bf16_f32", o2[h], oa(2, u)[2 * h], oa(2, u)[2 * h + 1])
            if u == 0:
                ops += self.gstore([(o4, vAx[u], sA, 0), (o2, vOh, sB, 0)], p == 0)
            else:
                ops += self.gstore([(o4, vAx[u], sA, 0), (o2, vOh, sD, 0)], p == 0)
        self.bg_off()
        self.stamp("A3")
        def shadow():
            if p == 0:
                self.unpack(RES, RES[10:20])
                self.unpack(B2F, B2F[10:20])
        self.handoff(4 * p + 1, ops, shadow)

    def phase64(self, p, kind):
        e = self.e
        opt = self.opt
        nks = 10 if kind == "O" else 27
        name = "A4" if kind == "O" else "B2"
        acc = lambda T, u: ACC[(u * 5 + T) * 4:(u * 5 + T) * 4 + 4]
        if kind == "O":
            al = self.ALoad(self, vAo, (sXr, OB[p]), nks)
        else:
            al = self.ALoad(self, vAh, (sHr, HB[p]), nks)
        al.upto(opt.get("adist", 8) - 1)
        xf = lambda ks, u: a((ks * 2 + u) * 4, 4)
        if kind == "C":
            e.ds_read(TMP[50], vRF)
        i0 = self.seqstart[(name, p)]
        fb = 5 * nks - 3
        sst, sad = self.scratch(20, self.seq[i0 + fb][0])
        self.hold = sst
        stop = i0 + 5 * nks

        def mf(t, W, u):
            ks, T = divmod(t, 5)
            e.mfma(acc(T, u), W, xf(ks, u), acc(T, u) if ks else 0)
        last = kind == "C" and p == 1
        xv = 2 * p + (1 if kind == "O" else 2)
        fl = [] if last else [self.touch_gen([(vXs, sOx, XB[xv], 0), (vXs, sOx, XB[xv], 1024), (vXh, sOxh, XB[xv], 0), (vStW, sOst, STB[xv], 0)])]
        self.run_pass(5 * nks, mf, 5, xf, fl, force_bar=fb, chunk=(12 if kind == "O" else opt.get("chunkC", 8)), stop_reads=stop, aload=al,
                      amix=(1, 0) if kind == "O" else tuple(opt.get("amixC", (3, 2))), vrate=0.5 if kind == "O" else opt.get("vrateC", 0.8))
        self.stamp(name)
        self.bg_on()
        e.V("v_add_u32", TMP[0], sad, vXch)
        e.S("s_xor_b32", sA, sWave, 1)
        e.S("s_mul_i32", sA, sA, 5120)
        e.S("s_add_u32", sA, sA, sad)
        e.V("v_add_u32", TMP[1], sA, vL16)
        assert sst + 20 <= self.freed
        for T in range(5):
            e.ds_write(TMP[0], acc(T, 1), T * KB)
        e.wait_all_lg()
        e.barrier()
        PT = TMP[4:24]
        for T in range(5):
            e.ds_read(PT[4 * T:4 * T + 4], TMP[1], T * KB)
        own = ACC[0:20]
        if kind == "C":
            e.V("v_mul_f32", TMP[50], TMP[50], TMP[50])
        for h in range(10):
            x = own[2 * h:2 * h + 2]
            e.V("v_pk_add_f32", x, x, PT[2 * h:2 * h + 2])
            if kind == "O":
                e.V("v_pk_add_f32", x, x, RES[2 * h:2 * h + 2])
            else:
                e.V("v_pk_fma_f32", x, x, TMP[50:52], RES[2 * h:2 * h + 2], mods="op_sel_hi:[1,0,1]")
        PK = TMP[24:34]
        for a_ in range(2):
            for j in range(4):
                e.V("v_cvt_pk_bf16_f32", PK[4 * a_ + j], own[8 * a_ + j], own[8 * a_ + 4 + j])
        for h in range(2):
            e.V("v_cvt_pk_bf16_f32", PK[8 + h], own[16 + 2 * h], own[16 + 2 * h + 1])
        self.bg_off()
        if last:
            om = self.opt.get("outmod", "")
            e.bstore(PK[0:4], vOut, OUT, 0, 0, om)
            e.bstore(PK[4:8], vOut, OUT, 0, 64, om)
            e.bstore(PK[8:10], vOut4, OUT, 0, 128, om)
            self.stamp("end")
            return
        xv = 2 * p + (1 if kind == "O" else 2)
        ops = []
        e.S("s_add_u32", sA, sOx, XB[xv])
        e.S("s_add_u32", sB, sOxh, XB[xv])
        e.S("s_add_u32", sD, sOst, STB[xv])
        ops += self.gstore([(PK[0:4], vXs, sA, 0), (PK[4:8], vXs, sA, 1024), (PK[8:10], vXh, sB, 0)])
        sm, sq, t0 = TMP[36], TMP[37], TMP[38]
        e.V("v_mov_b32", sm, 0)
        e.V("v_mov_b32", sq, 0)
        for j in range(10):
            e.V("v_dot2c_f32_bf16", sm, PK[j], vOne)
            e.V("v_dot2c_f32_bf16", sq, PK[j], PK[j])
        e.V("v_permlane32_swap_b32", sm, sq)
        e.V("v_add_f32", sm, sm, sq)
        e.V("v_mov_b32", t0, sm)
        e.V("v_permlane16_swap_b32", sm, t0)
        e.V("v_add_f32", sm, sm, t0)
        ops += self.gstore([(sm, vStW, sD, 0)])
        self.stamp(name + "epi")

        def shadow():
            self.unpack(RES, PK)
            if kind == "O":
                for h in range(10):
                    x = RES[2 * h:2 * h + 2]
                    e.V("v_pk_add_f32", x, x, B2F[2 * h:2 * h + 2])
        self.handoff(4 * p + (2 if kind == "O" else 4), ops, shadow)

    def phaseB1(self, p):
        e = self.e
        opt = self.opt
        xv = 2 * p + 1
        acc = lambda T, u: ACC[(T * 2 + u) * 4:(T * 2 + u) * 4 + 4]
        xf = lambda ks, u: a((ks * 2 + u) * 4, 4) if ks < 20 else XE[u]
        self.stats_loads(xv)
        al = self.ALoad(self, vAx, (sXr, XB[xv]), 20)
        al.upto(opt.get("adist", 8) - 1)
        stop = self.seqstart[("B2", p)]

        def mf(t, W, u):
            ks, T = divmod(t, 4)
            e.mfma(acc(T, u), W, xf(ks, u), acc(T, u) if ks else 0)
        tl = [(vHs, sOh, HB[p] + u * 54 * KB, a_ * KB) for a_ in range(3) for u in range(2)] + [(vHh, sOhh, HB[p] + u * 54 * KB, 0) for u in range(2)]
        self.run_pass(84, mf, 4, xf, [self.stats_gen(False), self.touch_gen(tl, p == 0)], stop_reads=stop, aload=al)
        self.stamp("B1a")
        ops = []

        def epi(pairs, single):
            n = 0
            for u in range(2):
                sb = sD if u == 0 else sE
                e.S("s_add_u32", sb, sOh, HB[p] + u * 54 * KB); yield
                for a_ in pairs:
                    o = TMP[16 + 4 * (n % 4):20 + 4 * (n % 4)]
                    n += 1
                    for j in range(4):
                        x, y = acc(2 * a_, u)[j], acc(2 * a_ + 1, u)[j]
                        e.V("v_mul_f32_e64", x, x, f"|{x}|"); yield
                        e.V("v_mul_f32_e64", y, y, f"|{y}|"); yield
                        e.V("v_cvt_pk_bf16_f32", o[j], x, y); yield
                        e.V("v_pk_max_i16", o[j], o[j], 0); yield
                    ops.extend(self.gstore([(o, vHs, sb, a_ * KB)], p == 0)); yield
            if single:
                for u in range(2):
                    o = TMP[32 + 2 * u:34 + 2 * u]
                    for j in range(4):
                        x = acc(6, u)[j]
                        e.V("v_mul_f32_e64", x, x, f"|{x}|"); yield
                    for h in range(2):
                        e.V("v_cvt_pk_bf16_f32", o[h], acc(6, u)[2 * h], acc(6, u)[2 * h + 1]); yield
                        e.V("v_pk_max_i16", o[h], o[h], 0); yield
                e.S("s_add_u32", sA, sOhh, HB[p])
                e.S("s_add_u32", sB, sOhh, HB[p] + 54 * KB)
                ops.extend(self.gstore([(TMP[32:34], vHh, sA, 0), (TMP[34:36], vHh, sB, 0)], p == 0))
                yield

        def mf2(t, W, u):
            ks, T = divmod(t, 3)
            e.mfma(acc(4 + T, u), W, xf(ks, u), acc(4 + T, u) if ks else 0)
        self.run_pass(63, mf2, 3, xf, [epi([0, 1], False)], stop_reads=stop)
        self.stamp("B1b")
        for _ in epi([2], True):
            pass
        self.stamp("B1epi")
        self.handoff(4 * p + 3, ops)

    def gen(self):
        e = self.e
        e.reset_state()
        self.cInvD = s(63)
        self.prologue()
        e.S("s_mov_b32", self.cInvD, lit(1.0 / D))
        if self.opt.get("dbg"):
            e.memtime(s(76, 2), True)
            e.memtime(s(78, 2))
            e.wait_all_lg()
        self.stamp("entry")
        if self.opt.get("stamps"):
            e.memtime(sTm, True)
            e.V("v_writelane_b32", v(53), sTm[0], 62)
        stop = self.opt.get("stop", 99)
        n = 0
        for p in range(2):
            for f in (lambda: self.phaseA(p), lambda: self.phase64(p, "O"), lambda: self.phaseB1(p), lambda: self.phase64(p, "C")):
                if n < stop:
                    f()
                n += 1
        if self.opt.get("stamps"):
            e.wait_all_vm()
            e.memtime(sTm, True)
            e.V("v_writelane_b32", v(53), sTm[0], 63)
            e.S("s_lshl_b32", sA, s(2), 2)
            e.S("s_add_u32", sA, sA, sWave)
            e.S("s_lshl_b32", sA, sA, 8)
            e.S("s_add_u32", sA, sA, STAMP)
            e.V("v_lshlrev_b32", TMP[1], 2, vLane)
            e.bstore(v(53), TMP[1], WS, sA)
        if self.opt.get("dbg"):
            e.wait_all_vm()
            e.memtime(s(80, 2), True)
            e.memtime(s(82, 2))
            e.sload(s(84, 2), s(0, 2), 72)
            e.S("s_mov_b32", sA, PSTAMP)
            e.V("v_mov_b32", TMP[4], 0)
            e.bload(TMP[3], TMP[4], WS, sA)
            e.S("s_sub_u32", s(82), s(82), s(78))
            e.V("v_mov_b32", TMP[0], s(76))
            e.V("v_mov_b32", TMP[1], s(80))
            e.V("v_mov_b32", TMP[2], s(82))
            if self.opt.get("spin"):
                e.V("v_readfirstlane_b32", s(86), TMP[3])
                e.label("spin_loop")
                e.misc("s_memrealtime s[88:89]")
                e.misc("s_waitcnt lgkmcnt(0)")
                e.misc("s_sub_u32 s88, s88, s86")
                e.misc(f"s_cmp_lt_u32 s88, {self.opt['spin']}")
                e.misc("s_cbranch_scc1 spin_loop")
            e.S("s_lshr_b32", sA, s(2), 6)
            e.S("s_mul_i32", sA, sA, 16)
            e.V("v_sub_u32", TMP[0], TMP[0], TMP[3])
            e.V("v_sub_u32", TMP[1], TMP[1], TMP[3])
            e.V("v_mov_b32", TMP[4], sA)
            e.S("s_and_b32", sA, s(2), 63)
            e.S("s_add_u32", sA, sA, sWave)
            e.S("s_cmp_lg_u32", sA, 0)
            e.branch("s_cbranch_scc1", "main_end")
            e.S("s_mov_b64", EXEC, 1)
            e.misc(f"global_store_dwordx4 {TMP[4]}, {TMP[0:4]}, s[84:85]")
        e.label("main_end")
        e.misc("s_endpgm")
```

```python
import re


class R:
    __slots__ = ("k", "i", "n")

    def __init__(self, k, i, n=1):
        self.k, self.i, self.n = k, i, n

    def __str__(self):
        if self.k in ("vcc", "exec", "m0", "scc"):
            return self.k
        if self.n == 1:
            return f"{self.k}{self.i}"
        return f"{self.k}[{self.i}:{self.i + self.n - 1}]"

    __repr__ = __str__

    def regs(self):
        if self.k in ("vcc", "exec", "m0", "scc"):
            return [(self.k, 0)]
        return [(self.k, self.i + j) for j in range(self.n)]

    def __getitem__(self, j):
        if isinstance(j, slice):
            a = j.start or 0
            b = j.stop if j.stop is not None else self.n
            assert 0 <= a < b <= self.n
            return R(self.k, self.i + a, b - a)
        assert 0 <= j < self.n, (self, j)
        return R(self.k, self.i + j, 1)


def v(i, n=1):
    assert 0 <= i and i + n <= 256, (i, n)
    return R("v", i, n)


def a(i, n=1):
    assert 0 <= i and i + n <= 256, (i, n)
    return R("a", i, n)


def s(i, n=1):
    assert 0 <= i and i + n <= 102, (i, n)
    return R("s", i, n)


VCC = R("vcc", 0, 2)
EXEC = R("exec", 0, 2)
M0 = R("m0", 0)


class Neg:
    def __init__(self, r):
        self.r = r

    def __str__(self):
        return f"-{self.r}"

    def regs(self):
        return self.r.regs()


def f2u(x):
    import struct
    return struct.unpack("<I", struct.pack("<f", x))[0]


def lit(x):
    return f"0x{f2u(x):08x}"


TRANS = ("v_exp_f32", "v_log_f32", "v_rcp_f32", "v_rsq_f32", "v_sqrt_f32", "v_sin_f32", "v_cos_f32")
RMW = ("v_fmac_f32", "v_dot2c_f32_bf16", "v_writelane_b32")


class Op:
    __slots__ = ("kind", "dst", "maybe", "tag", "done", "t")

    def __init__(self, kind, dst, maybe, tag=None):
        self.kind, self.dst, self.maybe, self.tag, self.done = kind, set(dst), maybe, tag, False
        self.t = 0


class Emitter:
    def __init__(self):
        self.lines = []
        self.pos = 0
        self.vm = []
        self.lg = []
        self.smem = []
        self.lastw = {}
        self.lastc = {}
        self.lastst = {}
        self.bg = None
        self.T = 0
        self.t_mfma = -100
        self.pipe = []
        self.cap = 13
        self.vcls = (300, 66, 0)
        self.fab = 0
        self.cond = 0
        self.regions = []
        self.nregion = 0
        self._cstack = []
        self.nops = 0
        self.ninst = 0
        self.stats = {}
        self.lab = 0

    def raw(self, t):
        self.lines.append(t)

    def comment(self, t):
        self.lines.append("; " + t)

    def newlabel(self, p="L"):
        self.lab += 1
        return f"{p}_{self.lab}"

    def label(self, l):
        self.lines.append(l + ":")

    def _put(self, text, states=1):
        self.lines.append("  " + text)
        self.pos += states
        self.ninst += 1
        k = text.split()[0]
        self.stats[k] = self.stats.get(k, 0) + 1
        if k.startswith("v_mfma"):
            self.T = max(self.T, self.t_mfma + 16)
            self.t_mfma = self.T
            self.T += 8
        elif k == "s_nop":
            self.T += 4 * states
        elif k.startswith(("v_exp", "v_rcp", "v_rsq", "v_permlane")):
            self.T += 8
        elif k == "ds_write_b128":
            self.T += 40
        elif k == "s_barrier":
            self.T += 20
        elif k.startswith(("v_pk_", "v_cvt_pk")) or k.endswith("_e64"):
            self.T += 5
        else:
            self.T += 4

    def nop(self, n):
        while n > 0:
            k = min(n, 16)
            self._put(f"s_nop {k - 1}", k)
            self.nops += 1
            n -= k

    def _cnt_after(self, q, op):
        i = q.index(op)
        act = set(self.regions)
        return sum(1 for o in q[i + 1:] if (not o.maybe) or o.maybe in act), i

    def outstanding(self):
        self.pipe = [t for t in self.pipe if t > self.T]
        return len(self.pipe)

    def predict(self, cls):
        lat, svc, fsvc = cls
        last = self.pipe[-1] if self.pipe else 0
        return max(last + svc, max(self.T, self.fab if fsvc else 0) + fsvc + lat)

    def _vm(self, dst, cls=None):
        o = Op("vm", dst, self.cur_region())
        if self.outstanding() >= self.cap:
            self.T = self.pipe[-self.cap]
        cls = cls or self.vcls
        o.t = self.predict(cls)
        if cls[2]:
            self.fab = max(self.T, self.fab) + cls[2]
        self.pipe.append(o.t)
        self.vm.append(o)
        return o

    def wait_ops(self, ops):
        for op in ops:
            if op is not None and not op.done and not self.cond:
                self.T = max(self.T, op.t)
        vmn = lgn = None
        vi = li = -1
        for op in ops:
            if op is None or op.done:
                continue
            if op.kind == "vm":
                n, i = self._cnt_after(self.vm, op)
                if i > vi:
                    vi, vmn = i, n
            elif op.kind == "lg":
                n, i = self._cnt_after(self.lg, op)
                if self.smem:
                    n, i = 0, len(self.lg) - 1
                if i > li:
                    li, lgn = i, n
            elif op.kind == "sm":
                li, lgn = len(self.lg) - 1, 0
        parts = []
        if vmn is not None:
            if vmn <= 63:
                parts.append(f"vmcnt({vmn})")
            for o in self.vm[:vi + 1]:
                o.done = True
            self.vm = self.vm[vi + 1:]
        if lgn is not None:
            lgn = min(lgn, 15)
            parts.append(f"lgkmcnt({lgn})")
            for o in self.lg[:li + 1]:
                o.done = True
            self.lg = self.lg[li + 1:]
            if lgn == 0:
                for o in self.smem + self.lg:
                    o.done = True
                self.smem = []
                self.lg = []
        if parts:
            self._put("s_waitcnt " + " ".join(parts))

    def wait_all_lg(self):
        if self.lg or self.smem:
            self.wait_ops(self.lg[-1:] + self.smem[-1:])

    def wait_all_vm(self):
        if self.vm:
            self._put("s_waitcnt vmcnt(0)")
            for o in self.vm:
                o.done = True
            self.vm = []

    def _pending(self, regs):
        regs = set(regs)
        out = []
        for q in (self.vm, self.lg, self.smem):
            for o in q:
                if o.dst & regs:
                    out.append(o)
        return out

    def _need(self, cls, rd, wr, cregs=(), abregs=(), exactc=False, op=""):
        need = 0

        def req(p, n):
            nonlocal need
            d = self.pos - p - 1
            if n - d > need:
                need = n - d

        for r in rd:
            w = self.lastw.get(r)
            if not w:
                continue
            p, c = w
            if c in ("valu", "trans", "dot") and r[0] in "va":
                if cls == "mfma":
                    req(p, 2 if c != "dot" else 3)
                if cls in ("permlane", "dpp"):
                    req(p, 2)
                if cls == "readlane":
                    req(p, 1)
                if c == "trans" and cls in ("valu", "dot", "permlane", "dpp", "readlane", "vmem", "ds"):
                    req(p, 1)
                if c == "dot" and not (cls == "dot" and r in wr):
                    req(p, 3)
            if c == "mfma":
                if cls == "mfma":
                    if r in abregs:
                        req(p, 8)
                    elif r in cregs:
                        req(p, 0 if exactc else 6)
                else:
                    req(p, 8)
            if c == "valu_s":
                if cls in ("valu", "trans", "dot", "dpp", "permlane", "mfma"):
                    req(p, 2)
                if cls == "readlane":
                    req(p, 4)
                if cls == "vmem":
                    req(p, 5)
            if c == "salu" and r[0] == "m0" and cls == "vmem":
                req(p, 1)
        for r in wr:
            w = self.lastw.get(r)
            if w and w[1] == "mfma" and cls != "mfma":
                req(w[0], 8)
            if w and w[1] == "mfma" and cls == "mfma" and r not in cregs:
                req(w[0], 8)
            if w and w[1] == "dot" and cls != "dot":
                req(w[0], 3)
            if cls in ("valu", "trans", "dot", "dpp", "permlane") and r in self.lastc:
                req(self.lastc[r], 3)
            if r in self.lastst and cls != "mfma":
                req(self.lastst[r], 2)
        return need

    def _regs(self, ops):
        out = []
        for o in ops:
            if isinstance(o, (R, Neg)):
                out += o.regs()
        return out

    def _issue(self, text, cls, rd, wr, wcls=None, **kw):
        pend = self._pending(list(rd) + list(wr))
        if pend:
            self.wait_ops(pend)
        n = self._need(cls, rd, wr, **kw)
        if n > 0:
            self.nop(n)
        p = self.pos
        self._put(text)
        for r in wr:
            c = wcls or cls
            if c in ("permlane", "dpp", "readlane"):
                c = "valu"
            if c in ("valu", "trans", "dot") and r[0] in ("s", "vcc", "exec"):
                c = "valu_s"
            self.lastw[r] = (p, c)
        return p

    def V(self, op, *ops, mods=""):
        base = op.replace("_e64", "").replace("_e32", "")
        dst = ops[0]
        wr = self._regs([dst])
        rd = self._regs(ops[1:])
        cls = "valu"
        if base in TRANS:
            cls = "trans"
        if base.startswith("v_dot2"):
            cls = "dot"
        if base in RMW:
            rd = rd + wr
        if base.startswith("v_permlane"):
            cls = "permlane"
            rd = self._regs(ops)
            wr = self._regs(ops)
        if base in ("v_readfirstlane_b32", "v_readlane_b32"):
            cls = "readlane"
        if "dpp" in op or "row_" in mods or "quad_perm" in mods:
            cls = "dpp"
        if base in ("v_add_co_u32", "v_addc_co_u32", "v_sub_co_u32"):
            wr = self._regs(ops[:2])
            rd = self._regs(ops[2:])
        text = f"{op} " + ", ".join(str(o) for o in ops) + (" " + mods if mods else "")
        self._issue(text, cls, rd, wr)
        if self.bg and not self.cond:
            f, self.bg = self.bg, None
            f()
            self.bg = f

    def S(self, op, *ops):
        if op.startswith("s_cmp") or op.startswith("s_bitcmp"):
            wr, rd = [], self._regs(ops)
        else:
            wr, rd = self._regs(ops[:1]), self._regs(ops[1:])
        if "saveexec" in op:
            wr = wr + [("exec", 0)]
        text = f"{op} " + ", ".join(str(o) for o in ops)
        self._issue(text, "salu", rd, wr)

    def mfma(self, d, x, y, c):
        ab = self._regs([x, y])
        cr = self._regs([c])
        exact = isinstance(c, R) and c.k == d.k and c.i == d.i and c.n == d.n
        text = f"v_mfma_f32_16x16x32_bf16 {d}, {x}, {y}, {c}"
        p = self._issue(text, "mfma", ab + cr, d.regs(), cregs=set(cr), abregs=set(ab), exactc=exact)
        for r in cr:
            self.lastc[r] = p

    def ds_read(self, d, addr, off=0, w=None):
        w = w or {1: "b32", 2: "b64", 4: "b128"}[d.n]
        assert 0 <= off < 65536, off
        text = f"ds_read_{w} {d}, {addr}" + (f" offset:{off}" if off else "")
        self._issue(text, "ds", addr.regs(), d.regs(), wcls="load")
        o = Op("lg", d.regs(), self.cur_region())
        o.t = self.T + 110
        self.lg.append(o)
        return o

    def ds_write(self, addr, d, off=0):
        w = {1: "b32", 2: "b64", 4: "b128"}[d.n]
        assert 0 <= off < 65536, off
        text = f"ds_write_{w} {addr}, {d}" + (f" offset:{off}" if off else "")
        self._issue(text, "ds", addr.regs() + d.regs(), [])
        o = Op("lg", [], self.cur_region())
        o.t = self.T + 60
        self.lg.append(o)
        return o

    def _so(self, so):
        return self._regs([so]) if isinstance(so, R) else []

    def bload(self, d, voff, srd, so=0, off=0, mods="", w=None, cls=None):
        w = w or {1: "dword", 2: "dwordx2", 3: "dwordx3", 4: "dwordx4"}[d.n]
        assert 0 <= off < 4096, off
        text = f"buffer_load_{w} {d}, {voff}, {srd}, {so} offen" + (f" offset:{off}" if off else "") + (" " + mods if mods else "")
        self._issue(text, "vmem", voff.regs() + srd.regs() + self._so(so), d.regs(), wcls="load")
        return self._vm(d.regs(), cls)

    def touch(self, d, voff, srd, so=0, off=0, mods="", cls=None):
        text = f"buffer_load_dword {d}, {voff}, {srd}, {so} offen" + (f" offset:{off}" if off else "") + (" " + mods if mods else "")
        self._issue(text, "vmem", voff.regs() + srd.regs() + self._so(so), [])
        return self._vm([], cls)

    def dma(self, voff, srd, so=0, off=0, mods="", cls=None):
        assert 0 <= off < 4096, off
        text = f"buffer_load_dwordx4 {voff}, {srd}, {so} offen" + (f" offset:{off}" if off else "") + (" " + mods if mods else "") + " lds"
        self._issue(text, "vmem", voff.regs() + srd.regs() + self._so(so) + [("m0", 0)], [])
        return self._vm([], cls)

    def bstore(self, d, voff, srd, so=0, off=0, mods="", w=None, cls=None):
        w = w or {1: "dword", 2: "dwordx2", 3: "dwordx3", 4: "dwordx4"}[d.n]
        assert 0 <= off < 4096, off
        text = f"buffer_store_{w} {d}, {voff}, {srd}, {so} offen" + (f" offset:{off}" if off else "") + (" " + mods if mods else "")
        p = self._issue(text, "vmem", d.regs() + voff.regs() + srd.regs() + self._so(so), [])
        if d.n >= 3:
            for r in d.regs():
                self.lastst[r] = p
        return self._vm([], cls)

    def gload(self, d, voff, sbase, off=0, mods="", cls=None):
        w = {1: "dword", 2: "dwordx2", 4: "dwordx4"}[d.n]
        text = f"global_load_{w} {d}, {voff}, {sbase}" + (f" offset:{off}" if off else "") + (" " + mods if mods else "")
        self._issue(text, "vmem", voff.regs() + sbase.regs(), d.regs(), wcls="load")
        return self._vm(d.regs(), cls)

    def sload(self, d, base, off):
        w = {1: "dword", 2: "dwordx2", 4: "dwordx4", 8: "dwordx8", 16: "dwordx16"}[d.n]
        text = f"s_load_{w} {d}, {base}, {off}"
        self._issue(text, "salu", base.regs(), d.regs(), wcls="load")
        o = Op("sm", d.regs(), self.cur_region())
        self.smem.append(o)
        return o

    def memtime(self, d, real=False):
        text = ("s_memrealtime " if real else "s_memtime ") + str(d)
        self._issue(text, "salu", [], d.regs(), wcls="load")
        o = Op("sm", d.regs(), self.cur_region())
        self.smem.append(o)
        return o

    def barrier(self):
        self._put("s_barrier")

    def misc(self, text):
        self._put(text)

    def branch(self, op, lab):
        self._put(f"{op} {lab}")

    def cur_region(self):
        return self.regions[-1] if self.regions else 0

    def cond_begin(self):
        self.cond += 1
        self.nregion += 1
        self.regions.append(self.nregion)
        self._cstack.append((self.pos, list(self.vm), list(self.lg), list(self.smem), self.T, list(self.pipe)))

    def cond_end(self):
        self.cond -= 1
        rid = self.regions.pop()
        p0, vm0, lg0, sm0, self.T, self.pipe = self._cstack.pop()
        ln = self.pos - p0
        newq = []
        for q0, q in ((vm0, self.vm), (lg0, self.lg), (sm0, self.smem)):
            for o in q0:
                o.done = False
            inside = [o for o in q if o not in q0]
            for o in inside:
                assert not o.dst, "load left pending in a conditional region"
            newq.append(list(q0) + inside)
        self.vm, self.lg, self.smem = newq
        for r, (p, c) in list(self.lastw.items()):
            if p < p0:
                self.lastw[r] = (p + ln, c)
        for d in (self.lastc, self.lastst):
            for r, p in list(d.items()):
                if p < p0:
                    d[r] = p + ln

    def reset_state(self):
        self.vm, self.lg, self.smem = [], [], []
        self.lastw, self.lastc, self.lastst = {}, {}, {}

    def text(self):
        return "\n".join(self.lines) + "\n"
```

```python
from asmgen import *
from layout import *
from gen_prep import mk_srd, allreduce_g
import math

BIG = 0x40000000
LOG2E = 1.4426950408889634
LN2 = 0.6931471805599453

IMG = 0
ZT = 6144
RST = 6400
DUMMY = 6912
RING = 8192
RB = 152
LDS_BYTES = RING + RB * KB
FI = 8

WS, OUT, XIN, SB2 = s(8, 4), s(12, 4), s(16, 4), s(20, 4)
sWave, sR, sC, sCG, sRH, sKH, sW2048 = [s(24 + i) for i in range(7)]
sSeg = {"A": s(31), "O": s(32), "B": s(33), "C": s(34)}
sXr, sHr, sSTr, sFRL, sFRG, sFC = [s(35 + i) for i in range(6)]
sA, sB, sD, sE, sDm, sLd = [s(41 + i) for i in range(6)]
sMaskV = s(48, 2)
sCnt = s(50)
sTT = s(51)
sTm = s(52, 2)
sOx, sOxh, sOst, sOo, sOoh, sOh, sOhh, sKv = [s(54 + i) for i in range(8)]
sLocal, sX1 = s(47), s(62)
sNan = s(90, 2)
sBase = s(92)
sOk = s(94, 2)
SR1, SR2 = s(84, 4), s(96, 4)
PP = s(64, 16)
pOut, pWs = s(80, 2), s(82, 2)
vDum = v(49)

vLane, vN, vG, vL16 = v(1), v(2), v(3), v(4)
vW = [v(5), v(6), v(7)]
vK = [v(8), v(9), v(10)]
vDma = v(11)
vAx = [v(12), v(13)]
vAo = [v(14), v(15)]
vAh = [v(16), v(17)]
vSt, vStW, vKvSrc, vKvDst, vT16, vZ01, vZ2, vRT, vRW, vRF, vOut, vOut4, vOne = [v(18 + i) for i in range(13)]
vOh, vXs, vXh, vHs, vHh, vFl, vPollR, vPollC, vXch = [v(31 + i) for i in range(9)]
XE = [v(40, 4), v(44, 4)]
vC2 = v(48, 2)
vC2b = v(50, 2)
vLn2 = v(52, 2)
vEps = v(54, 2)
RT = v(56, 8)
ACC = v(64, 64)
FIFO = v(128, 4 * FI)
RES = v(160, 20)
B2F = v(180, 20)
TMP = v(200, 56)


class Main:
    def __init__(self, e, opt):
        self.e = e
        self.opt = opt
        self.kname = opt["kname"]
        self.nstamp = 0
        self.segs = []
        pos = 0
        for p in range(2):
            for k, n in (("A", NA), ("O", NO), ("B", NB), ("C", NC)):
                self.segs.append((k, pos, n))
                pos += n
        self.total = pos
        self.ngroups = pos // 8
        self.issued = 0
        self.dmaop = {}
        self.freed = 0
        self.hold = None
        self.visible = 0
        self.seq = []
        self.seqstart = {}
        for p in range(2):
            b = self.segs[4 * p + 0][1]
            self.seqstart[("A1", p)] = len(self.seq)
            self.seq += [(b + i, "W") for i in range(105)]
            self.seqstart[("A2", p)] = len(self.seq)
            self.seq += [(b + 105 + i, "W") for i in range(63)]
            b = self.segs[4 * p + 1][1]
            self.seqstart[("A4", p)] = len(self.seq)
            self.seq += [(b + 2 * i, "K") for i in range(50)]
            b = self.segs[4 * p + 2][1]
            self.seqstart[("B1a", p)] = len(self.seq)
            self.seq += [(b + i, "W") for i in range(84)]
            self.seqstart[("B1b", p)] = len(self.seq)
            self.seq += [(b + 84 + i, "W") for i in range(63)]
            b = self.segs[4 * p + 3][1]
            self.seqstart[("B2", p)] = len(self.seq)
            self.seq += [(b + 2 * i, "K") for i in range(135)]
        self.rd = 0
        self.cons = 0
        self.lastbar = 0
        self.gate = NA // 8
        self.warn = []
        self.model = []
        self.own_end = 0
        self.deadline = lambda: 1 << 30

    def stamp(self, name):
        self.model.append((name, self.e.T))
        if not self.opt.get("stamps"):
            return
        e = self.e
        e.wait_all_lg()
        e.memtime(sTm)
        e.V("v_writelane_b32", v(53), sTm[0], self.nstamp)
        self.opt.setdefault("stampnames", []).append(name)
        self.nstamp += 1
        assert self.nstamp <= 64

    def endpos(self, i):
        p, k = self.seq[i]
        return p + (2 if k == "K" else 1)

    def ldsaddr(self, pos):
        return RING + (pos % RB) * KB

    def can_issue(self):
        if self.issued >= min(self.ngroups, self.gate):
            return False
        lim = self.freed if self.hold is None else min(self.freed, self.hold)
        return 8 * (self.issued + 1) <= lim + RB

    def dma_group(self):
        e = self.e
        g = self.issued
        self.issued += 1
        pos = 8 * g
        for k, b, n in self.segs:
            if b <= pos < b + n:
                break
        e.S("s_add_u32", M0, sW2048, self.ldsaddr(pos))
        yield
        e.S("s_add_u32", sDm, sSeg[k], (pos - b) * KB)
        yield
        md = "nt" if k in self.opt.get("ntseg", "") else ""
        e.dma(vDma, WS, sDm, 0, md, cls=self.dcls(k))
        yield
        self.dmaop[g] = e.dma(vDma, WS, sDm, 1024, md, cls=self.dcls(k))
        yield

    def dcls(self, k):
        return (750, 80, self.opt.get("svcAB", 150)) if k in "AB" else (750, self.opt.get("svcOC", 92), 75)

    def dma_ok(self):
        e = self.e
        if self.mid_group():
            g = self.issued - 1
        elif self.can_issue():
            g = self.issued
        else:
            return False
        if e.outstanding() >= self.opt.get("qmax", 11):
            return False
        if self.mid_group() or 8 * g < self.own_end:
            return True
        c = self.dcls(self.segof(8 * g))
        return e.predict(c) + c[2] <= self.deadline()

    def dma_filler(self):
        while True:
            if self.can_issue():
                for _ in self.dma_group():
                    yield True
            else:
                yield False

    def flush_dma_partial(self):
        while self.issued > 0 and (self.issued - 1) not in self.dmaop:
            next(self.dmaf)

    def dma_all(self):
        self.flush_dma_partial()
        while self.can_issue():
            for _ in self.dma_group():
                pass

    def ring_barrier(self, need_idx, extra_ops=(), free_all=False):
        e = self.e
        need_idx = min(need_idx, len(self.seq))
        upto = self.endpos(need_idx - 1) if need_idx > 0 else 0
        g = (upto + 7) // 8
        self.flush_dma_partial()
        while self.issued < g:
            assert self.can_issue(), ("ring deadlock", self.issued, g, self.freed, self.hold)
            self.warn.append(f"forced dma group {self.issued} at seq {self.rd}")
            for _ in self.dma_group():
                pass
        ops = list(extra_ops)
        for gg in range(self.visible // 8, g):
            ops.append(self.dmaop[gg])
        e.wait_ops(ops)
        e.barrier()
        self.visible = max(self.visible, 8 * g)
        self.freed = self.seq[self.cons][0] if self.cons < len(self.seq) else self.total
        self.lastbar = self.rd

    def issue_read(self):
        e = self.e
        i = self.rd
        if i >= len(self.seq):
            return
        pos, k = self.seq[i]
        assert self.endpos(i) <= self.visible, ("read of invisible block", i, pos, self.visible)
        ad = self.ldsaddr(pos)
        base = (vW if k == "W" else vK)[ad >> 16]
        slot = i % FI
        e.ds_read(FIFO[4 * slot:4 * slot + 4], base, ad & 0xffff)
        self.rd += 1

    def prime(self):
        while self.rd < self.cons + FI and self.rd < len(self.seq) and self.endpos(self.rd) <= self.visible:
            self.issue_read()

    def run_pass(self, n, mf, ntile, xf, fillers=(), chunk=24, stop_reads=None, hooks=None,
                 aload=None, vrate=0.5, amix=(1, 0), over=0, force_bar=None, late=None, see_all=False, tail=2000):
        e = self.e
        fillers = list(fillers)
        lim = stop_reads if stop_reads is not None else len(self.seq)
        st = {"next": 0, "k": 0, "t": 0}
        self.own_end = self.endpos(lim - 1)
        self.deadline = lambda: e.T + (n - st["t"]) * 33 + tail

        i_first = self.cons

        def dma_need():
            g = self.issued - 1 if self.mid_group() else self.issued
            for i in range(self.cons, lim):
                if self.endpos(i) > 8 * g:
                    return i - i_first - FI - chunk
            return 1 << 20

        def one_vmem():
            na, nd = amix
            n0 = len(e.vm)
            if st.get("late"):
                if e.T < st["next"]:
                    return False
                try:
                    next(st["late"])
                except StopIteration:
                    st["late"] = None
                    return False
            else:
                na_ = (aload.n // 2) * ntile if (aload is not None and not aload.done) else 1 << 21
                nd_ = dma_need() if (self.mid_group() or self.can_issue()) else 1 << 22
                urgent = min(na_, nd_) - st["t"] <= self.opt.get("horizon", 16)
                if e.T < st["next"] and not urgent:
                    return False
                if na_ <= nd_:
                    if na_ >= 1 << 21 or (e.outstanding() >= self.opt.get("qmax", 11) and not urgent):
                        return False
                    aload.step()
                elif urgent or self.dma_ok():
                    next(self.dmaf)
                else:
                    return False
            if len(e.vm) > n0:
                st["k"] += 1
                st["next"] = e.T + self.opt.get("vgap", 40)
            return True

        def fill(budget):
            while budget > 0:
                n0 = e.ninst
                did = one_vmem()
                if not did:
                    for f in list(fillers):
                        try:
                            if next(f) == "idle":
                                continue
                            did = True
                            break
                        except StopIteration:
                            fillers.remove(f)
                if not did:
                    return
                budget -= e.ninst - n0

        def waits_for(t):
            regs = []
            for tt in (t, t + 1):
                if tt < n:
                    ks = tt // ntile
                    if aload is not None:
                        aload.upto(ks)
                    idx = self.cons + (tt - t)
                    if idx < self.rd:
                        regs += FIFO[4 * (idx % FI):4 * (idx % FI) + 4].regs()
                    regs += xf(ks, 0).regs() + xf(ks, 1).regs()
            return e._pending(regs)

        e.wait_ops(waits_for(0))
        if aload is not None:
            self.stamp("1st")
            self.warn.append(f"fill {8 * self.issued - self.seq[self.cons][0]}")
        for t in range(n):
            if aload is not None and self.opt.get("midstamp") and t == n // 2:
                self.stamp("half")
            i = self.cons
            assert self.rd > i, ("fifo underrun", i)
            W = FIFO[4 * (i % FI):4 * (i % FI) + 4]
            st["t"] = t
            ov = over if fillers else 0
            mf(t, W, 0)
            bar = self.rd < lim and (self.endpos(self.rd) > self.visible or self.rd - self.lastbar >= chunk)
            bar = bar or t == force_bar
            if late and t == late[0]:
                st["late"] = late[1]
            if bar:
                ex, after = [], None
                if hooks and hooks.get("bar"):
                    ex, after = hooks["bar"](t)
                self.ring_barrier(lim if see_all else min(self.rd + chunk, lim), ex)
                if after:
                    after()
            else:
                fill(2 + ov)
            mf(t, W, 1)
            self.cons += 1
            used = 0
            if self.rd < lim:
                self.issue_read()
                used = 1
            pend = waits_for(t + 1) if (t % 2 == 1 and t + 1 < n) else []
            fill(2 + ov - used - (1 if pend else 0))
            if pend:
                e.wait_ops(waits_for(t + 1))
        if late and late[0] >= n:
            st["late"] = late[1]
        for f in fillers + ([st["late"]] if st.get("late") else []):
            for _ in f:
                pass

    def segof(self, pos):
        for k, b, n in self.segs:
            if b <= pos < b + n:
                return k
        return "O"

    def mid_group(self):
        return self.issued > 0 and (self.issued - 1) not in self.dmaop

    def dma_burst(self, maxgroups=99):
        e = self.e
        self.flush_dma_partial()
        gs = []
        while self.can_issue() and len(gs) < maxgroups:
            gs.append(self.issued)
            self.issued += 1
        for w in (1, 2, 3):
            mine = gs[w - 1::3]
            if not mine:
                continue
            skip = e.newlabel("noburst")
            e.S("s_cmp_lg_u32", sWave, w)
            e.branch("s_cbranch_scc1", skip)
            e.cond_begin()
            for g in mine:
                pos = 8 * g
                for k, b, n in self.segs:
                    if b <= pos < b + n:
                        break
                for h in range(2):
                    e.S("s_mov_b32", M0, self.ldsaddr(pos) + h * 4096)
                    e.S("s_add_u32", sDm, sSeg[k], (pos - b) * KB + h * 4096)
                    for q in range(4):
                        self.dmaop[g] = e.dma(vL16, WS, sDm, q * 1024)
            e.cond_end()
            e.label(skip)

    def prologue(self):
        e = self.e
        e.S("s_cmp_ge_u32", s(2), 256)
        e.branch("s_cbranch_scc1", "main_end")
        if self.opt.get("stamps"):
            e.V("v_mov_b32", v(53), 0)
        self.stamp("t0")
        e.sload(PP, s(0, 2), 0)
        e.sload(pOut, s(0, 2), 64)
        e.sload(pWs, s(0, 2), 80)
        T0, T1, T2, T3 = TMP[44], TMP[45], TMP[46], TMP[47]
        e.V("v_lshrrev_b32", T0, 6, v(0))
        e.V("v_and_b32", vLane, 63, v(0))
        e.V("v_readfirstlane_b32", sWave, T0)
        e.V("v_lshlrev_b32", vL16, 4, vLane)
        e.V("v_and_b32", vN, 15, vLane)
        e.V("v_lshrrev_b32", vG, 4, vLane)
        self.c1280, self.vBig = s(54), TMP[43]
        e.S("s_mov_b32", self.c1280, 1280)
        e.V("v_mov_b32", self.vBig, BIG)
        e.S("s_and_b32", sA, s(2), 7)
        e.S("s_lshl_b32", sA, sA, 1)
        e.S("s_lshr_b32", sB, s(2), 7)
        e.S("s_add_u32", sR, sA, sB)
        e.S("s_bfe_u32", sC, s(2), (4 << 16) | 3)
        XJ = self.XJ = [RES[0:4], RES[4:8], B2F[0:4]]
        XD = self.XD = [B2F[4], B2F[5], B2F[6]]
        XS = [B2F[7], B2F[8], B2F[9]]
        e.V("v_lshrrev_b32", T1, 3, vLane)
        e.S("s_mul_i32", sA, sWave, 24)
        e.V("v_and_b32", T3, 7, vLane)
        for k in range(3):
            q, c16 = XD[k], XS[k]
            e.S("s_add_u32", sB, sA, 8 * k)
            e.V("v_add_u32", q, sB, T1)
            e.V("v_lshrrev_b32", T0, 3, q)
            e.V("v_lshl_add_u32", c16, T0, 1, q)
            e.V("v_subrev_u32", T0, 64, q)
            e.V("v_lshrrev_b32", T2, 1, T0)
            e.V("v_lshl_add_u32", T0, T2, 3, T0)
            e.V("v_add_u32", T0, 8, T0)
            e.V("v_cmp_le_u32", VCC, 64, q)
            e.V("v_cndmask_b32", c16, c16, T0, VCC)
            e.V("v_lshlrev_b32", c16, 4, c16)
            e.V("v_mad_u32_u24", c16, T3, self.c1280, c16)
            e.V("v_lshlrev_b32", q, 8, q)
            e.V("v_lshl_add_u32", q, T3, 4, q)
            if k == 2 or True:
                e.V("v_cmp_le_u32", VCC, 80 * 256, q)
                e.V("v_cndmask_b32", c16, c16, self.vBig, VCC)
                e.V("v_cndmask_b32", q, q, self.vBig, VCC)
        e.S("s_lshl_b32", sA, sR, 4)
        e.S("s_add_u32", sA, sA, sC)
        e.S("s_mul_i32", sA, sA, 8 * 1280)
        mk_srd(e, XIN, PP[0:2], XSZ)
        for k in range(3):
            e.bload(XJ[k], XS[k], XIN, sA, 0, cls=(2000, 100, 0))
        e.S("s_getpc_b64", s(88, 2))
        e.label("main_pc")
        e.S("s_sub_u32", s(88), s(88), "main_pc-" + self.kname)
        e.S("s_subb_u32", s(89), s(89), 0)
        e.S("s_lshr_b32", sB, s(2), 3)
        e.S("s_lshl_b32", sB, sB, 2)
        e.S("s_add_u32", sB, sB, sWave)
        e.S("s_lshl_b32", sB, sB, 9)
        e.S("s_min_u32", sB, sB, self.opt.get("code_bytes", 32768) - 512)
        e.V("v_lshl_add_u32", T2, vLane, 3, sB)
        e.misc(f"global_load_dword {vDum}, {T2}, s[88:89]")
        e._vm([], (2000, 30, 0))
        mk_srd(e, WS, pWs, WS_USED)
        e.sload(sBase, pWs, EPOCH)

    def job_loads(self, raw, srd, sstride, vreg, vleft, rows):
        e = self.e
        for b in range(5):
            e.S("s_mul_i32", sLd, rows[b], sstride)
            for i in range(8):
                e.bload(raw[b * 8 + i], vleft if b == 4 else vreg, srd, sLd, 0, w="ushort", cls=(2500, 32, 0))
                if i < 7:
                    e.S("s_add_u32", sLd, sLd, sstride)

    def job_pack(self, raw, pk, vst, dest):
        e = self.e
        ops = []
        for b in range(5):
            for i in range(4):
                e.V("v_lshl_or_b32", pk[b * 4 + i], raw[b * 8 + 2 * i + 1], 16, raw[b * 8 + 2 * i])
            ops.append(e.bstore(pk[b * 4:b * 4 + 4], vst, WS, dest[b], 0, "sc1", cls=(1000, 70, 0)))
        return ops

    def lane_terms(self, vreg, vleft, vcol, sstride, sa, sb, t0, t1):
        e = self.e
        e.S("s_lshl_b32", sD, sstride, 3)
        e.V("v_mad_u32_u24", vreg, vG, sD, vcol)
        e.V("v_lshrrev_b32", t0, 1, vG)
        e.V("v_and_b32", t1, 1, vG)
        e.S("s_mul_i32", sD, sa, sstride)
        e.V("v_mad_u32_u24", vleft, t0, sD, vcol)
        e.S("s_mul_i32", sD, sb, sstride)
        e.V("v_mad_u32_u24", vleft, t1, sD, vleft)

    def startup(self):
        e = self.e
        RAW1, PK1, EX = ACC[0:40], ACC[40:60], ACC[60:64]
        RAW2, PK2 = TMP[0:40], FIFO[0:20]
        vCol, vReg, vLeft, vT0, vT1, vSt1, vSt2, vBias, vSum = [FIFO[20 + i] for i in range(9)]
        sT, sP, sStr = s(54), s(55), s(56)
        rows = [s(57 + i) for i in range(5)]
        D1 = [s(64), s(65), s(66), s(67), s(70), s(71)]
        D2 = [s(72 + i) for i in range(5)]
        sP1 = s(93)
        mk_srd(e, OUT, PP[10:12], F * 2)
        mk_srd(e, SB2, PP[14:16], D * 2)
        e.S("s_lshl_b32", sA, sR, 2)
        e.S("s_add_u32", sA, sA, sWave)
        e.S("s_and_b32", sT, sA, 7)
        e.S("s_bfe_u32", sP, sA, (2 << 16) | 3)
        e.S("s_mov_b32", sP1, sP)
        e.V("v_mov_b32", vSt1, vL16)
        lb, lj = e.newlabel("job_w1"), e.newlabel("job_go")
        e.S("s_cmp_ge_u32", sR, 8)
        e.branch("s_cbranch_scc1", lb)
        e.cond_begin()
        mk_srd(e, SR1, PP[2:4], D * 3 * D * 2)
        e.S("s_mov_b32", sStr, 3840)
        e.S("s_mov_b32", sA, 640)
        for t, val in ((1, 660), (2, 656), (3, 1280), (4, 1300), (5, 0), (6, 1), (7, 32)):
            e.S("s_cmp_eq_u32", sT, t)
            e.S("s_cselect_b32", sA, val, sA)
        e.S("s_mul_i32", sB, sC, 40)
        e.S("s_add_u32", sA, sA, sB)
        e.V("v_add_u32", vCol, sA, vN)
        e.V("v_add_u32", vT0, vCol, vN)
        e.S("s_sub_u32", sB, sT, 5)
        e.S("s_cmp_lt_u32", sB, 2)
        e.S("s_cselect_b64", VCC, -1, 0)
        e.V("v_cndmask_b32", vCol, vCol, vT0, VCC)
        e.V("v_lshrrev_b32", vT0, 3, vN)
        e.V("v_mul_u32_u24", vT0, 640, vT0)
        e.V("v_bfe_u32", vT1, vN, 2, 1)
        e.V("v_mul_u32_u24", vT1, 20, vT1)
        e.V("v_add3_u32", vT0, vT0, vT1, sA)
        e.V("v_and_b32", vT1, 3, vN)
        e.V("v_add_u32", vT0, vT0, vT1)
        e.S("s_cmp_eq_u32", sT, 2)
        e.S("s_cselect_b64", VCC, -1, 0)
        e.V("v_cndmask_b32", vCol, vCol, vT0, VCC)
        e.V("v_lshlrev_b32", vCol, 1, vCol)
        e.S("s_cmp_eq_u32", sT, 7)
        e.S("s_cselect_b32", sB, 8, 16)
        e.V("v_cmp_le_u32", VCC, sB, vN)
        e.V("v_mov_b32", vT0, BIG)
        e.V("v_cndmask_b32", vCol, vCol, vT0, VCC)
        e.V("v_mov_b32", vBias, vT0)
        e.S("s_cmp_lt_u32", sT, 5)
        e.S("s_cselect_b32", sE, 5, 3)
        e.S("s_cselect_b32", sA, 0, 100)
        e.S("s_mul_i32", sB, sC, NA)
        e.S("s_add_u32", sB, sB, WA // KB)
        e.branch("s_branch", lj)
        e.cond_end()
        e.label(lb)
        e.cond_begin()
        mk_srd(e, SR1, PP[8:10], D * F * 2)
        e.S("s_mov_b32", sStr, 3456)
        e.S("s_mul_i32", sA, sC, 112)
        e.S("s_max_u32", sB, sC, 12)
        e.S("s_sub_u32", sB, sB, 12)
        e.S("s_lshl_b32", sB, sB, 4)
        e.S("s_sub_u32", sA, sA, sB)
        e.S("s_lshr_b32", sB, sT, 1)
        e.S("s_lshl_b32", sB, sB, 5)
        e.S("s_add_u32", sA, sA, sB)
        e.S("s_and_b32", sB, sT, 1)
        e.S("s_add_u32", sA, sA, sB)
        e.V("v_add_u32", vCol, sA, vN)
        e.V("v_add_u32", vT0, vCol, vN)
        e.S("s_cmp_lt_u32", sT, 6)
        e.S("s_cselect_b64", VCC, -1, 0)
        e.V("v_cndmask_b32", vCol, vCol, vT0, VCC)
        e.V("v_lshlrev_b32", vCol, 1, vCol)
        e.S("s_lshl_b32", sA, sT, 4)
        e.S("s_add_u32", sA, sA, sC)
        e.S("s_cmp_ge_u32", sA, 6 * 16 + 12)
        e.S("s_cselect_b64", VCC, -1, 0)
        e.V("v_mov_b32", vT0, BIG)
        e.V("v_cndmask_b32", vCol, vCol, vT0, VCC)
        e.V("v_mov_b32", vBias, vCol)
        e.S("s_cmp_eq_u32", sT, 7)
        e.S("s_cselect_b64", VCC, -1, 0)
        e.V("v_cndmask_b32", vSt1, vSt1, vT0, VCC)
        e.S("s_cmp_lt_u32", sT, 4)
        e.S("s_cselect_b32", sE, 4, 3)
        e.S("s_cselect_b32", sA, 0, 80)
        e.S("s_mul_i32", sB, sC, NB)
        e.S("s_add_u32", sB, sB, WB // KB)
        e.cond_end()
        e.label(lj)
        e.S("s_add_u32", sA, sA, sT)
        e.S("s_add_u32", sA, sA, sB)
        e.S("s_and_b32", sB, sR, 1)
        e.S("s_lshl_b32", sB, sB, 4)
        e.S("s_add_u32", sB, sB, sC)
        e.S("s_lshl_b32", sB, sB, 2)
        e.S("s_add_u32", sB, sB, sWave)
        e.S("s_lshl_b32", sD, sP, 7)
        e.S("s_add_u32", sB, sB, sD)
        e.S("s_mul_i32", sB, sB, sStr)
        e.S("s_mul_i32", sB, sB, 5)
        e.S("s_lshr_b32", sB, sB, 2)
        e.S("s_and_b32", sB, sB, -128)
        e.V("v_min_u32", vT0, 38, vLane)
        e.V("v_lshlrev_b32", vT0, 7, vT0)
        if self.opt.get("r1touch", 1):
            e.touch(vDum, vT0, SR1, sB, 0, cls=(2000, 30, 0))
        e.S("s_mul_i32", sB, sP, 160)
        for b in range(4):
            e.S("s_add_u32", rows[b], sB, 80 * (b >> 1) + 32 * (b & 1))
        e.S("s_add_u32", rows[4], sB, 64)
        self.lane_terms(vReg, vLeft, vCol, sStr, 80, 8, vT0, vT1)
        self.stamp("dec1")
        self.job_loads(RAW1, SR1, sStr, vReg, vLeft, rows)
        self.stamp("iss1")
        e.bload(vBias, vBias, OUT, 0, 0, w="ushort", cls=(2500, 10, 0))
        e.S("s_lshl_b32", sB, sP, 2)
        for b in range(6):
            if b < 4:
                e.S("s_add_u32", sD, sB, b)
            elif b == 4:
                e.S("s_add_u32", sD, sP, 16)
            else:
                e.S("s_mov_b32", sD, 20)
            e.S("s_mul_i32", sD, sD, sE)
            e.S("s_add_u32", sD, sD, sA)
            e.S("s_lshl_b32", D1[b], sD, 10)
        e.S("s_lshl_b32", sB, sP, 8)
        e.S("s_add_u32", D1[5], D1[5], sB)
        e.S("s_and_b32", sCG, sC, 7)
        e.S("s_lshr_b32", sRH, sC, 3)
        e.S("s_lshl_b32", sA, s(2), 2)
        e.S("s_add_u32", sA, sA, sWave)
        e.V("v_min_u32", vT0, 17, vLane)
        e.V("v_lshlrev_b32", vT0, 7, vT0)
        mk_srd(e, SR2, PP[12:14], F * D * 2)
        e.S("s_mul_i32", sB, sA, 2160)
        e.touch(vDum, vT0, SR2, sB, 0, cls=(2000, 30, 0))
        e.V("v_min_u32", vT0, 7 * 128, vT0)
        mk_srd(e, SR2, PP[4:6], D * D * 2)
        e.S("s_mul_i32", sB, sA, 800)
        e.touch(vDum, vT0, SR2, sB, 0, cls=(2000, 30, 0))
        self.prologue2()
        self.stamp("pro2")
        sT, sP, sStr = s(88), s(89), s(100)
        rows = [s(3 + i) for i in range(5)]
        e.S("s_lshl_b32", sA, sRH, 4)
        e.S("s_add_u32", sA, sA, sR)
        e.S("s_lshl_b32", sA, sA, 2)
        e.S("s_add_u32", sA, sA, sWave)
        e.S("s_mul_i32", sP, sA, 52429)
        e.S("s_lshr_b32", sP, sP, 18)
        e.S("s_mul_i32", sB, sP, 5)
        e.S("s_sub_u32", sT, sA, sB)
        e.S("s_mul_i32", sA, sCG, 80)
        e.S("s_lshr_b32", sB, sT, 1)
        e.S("s_lshl_b32", sB, sB, 5)
        e.S("s_add_u32", sA, sA, sB)
        e.S("s_and_b32", sB, sT, 1)
        e.S("s_add_u32", sA, sA, sB)
        e.V("v_add_u32", vCol, sA, vN)
        e.V("v_add_u32", vT0, vCol, vN)
        e.S("s_cmp_lt_u32", sT, 4)
        e.S("s_cselect_b64", VCC, -1, 0)
        e.V("v_cndmask_b32", vCol, vCol, vT0, VCC)
        e.V("v_lshlrev_b32", vCol, 1, vCol)
        e.S("s_cmp_ge_u32", sP, 16)
        e.S("s_cselect_b64", VCC, -1, 0)
        e.V("v_mov_b32", vT0, BIG)
        e.V("v_cndmask_b32", vCol, vCol, vT0, VCC)
        e.V("v_cndmask_b32", vSt2, vL16, vT0, VCC)
        e.S("s_mov_b32", sStr, 1280)
        lc, lj = e.newlabel("job_w2"), e.newlabel("job_go")
        sHalf, sLa, sLb = s(77), s(78), s(79)
        e.S("s_cmp_ge_u32", sP, 4)
        e.branch("s_cbranch_scc1", lc)
        e.cond_begin()
        mk_srd(e, SR2, PP[4:6], D * D * 2)
        e.S("s_mul_i32", sB, sP, 160)
        for b in range(4):
            e.S("s_add_u32", rows[b], sB, 40 * b)
        e.S("s_add_u32", rows[4], sB, 32)
        e.S("s_mov_b32", sHalf, 10)
        e.S("s_mov_b32", sLa, 80)
        e.S("s_mov_b32", sLb, 40)
        e.S("s_add_u32", D2[4], sP, 16)
        e.S("s_mul_i32", sE, sCG, NO)
        e.S("s_add_u32", sE, sE, WO // KB)
        e.branch("s_branch", lj)
        e.cond_end()
        e.label(lc)
        e.cond_begin()
        mk_srd(e, SR2, PP[12:14], F * D * 2)
        e.S("s_sub_u32", sP, sP, 4)
        e.S("s_min_u32", sP, sP, 11)
        for b in range(4):
            e.S("s_lshl_b32", sD, sP, 2)
            e.S("s_add_u32", sD, sD, b)
            e.S("s_mul_i32", sA, sD, 43691)
            e.S("s_lshr_b32", sA, sA, 17)
            e.S("s_mul_i32", sB, sA, 16)
            e.S("s_min_u32", sB, sB, 192)
            e.S("s_lshl_b32", sD, sD, 5)
            e.S("s_add_u32", rows[b], sD, sB)
        e.S("s_and_b32", sA, sP, -2)
        e.S("s_mul_i32", sA, sA, 112)
        e.S("s_add_u32", rows[4], sA, 96)
        e.S("s_mov_b32", sHalf, 27)
        e.S("s_mov_b32", sLa, 112)
        e.S("s_mov_b32", sLb, 8)
        e.S("s_lshr_b32", D2[4], sP, 1)
        e.S("s_add_u32", D2[4], D2[4], 48)
        e.S("s_bitcmp1_b32", sP, 0)
        e.S("s_cselect_b32", D2[4], BIG // 10240, D2[4])
        e.S("s_mul_i32", sE, sCG, NC)
        e.S("s_add_u32", sE, sE, WC // KB)
        e.cond_end()
        e.label(lj)
        e.S("s_lshl_b32", sA, sT, 1)
        e.S("s_add_u32", sE, sE, sA)
        for b in range(5):
            if b < 4:
                e.S("s_lshl_b32", sD, sP, 2)
                e.S("s_add_u32", D2[b], sD, b)
            e.S("s_cmp_ge_u32", D2[b], sHalf)
            e.S("s_cselect_b32", sA, sHalf, 0)
            e.S("s_cselect_b32", sB, 1, 0)
            e.S("s_sub_u32", sD, D2[b], sA)
            e.S("s_mul_i32", sD, sD, 10)
            e.S("s_add_u32", sD, sD, sB)
            e.S("s_add_u32", sD, sD, sE)
            e.S("s_lshl_b32", D2[b], sD, 10)
        self.lane_terms(vReg, vLeft, vCol, sStr, sLa, sLb, vT0, vT1)
        self.stamp("dec2")
        XJ, XD = self.XJ, self.XD
        e.S("s_mov_b32", sA, "0x3f803f80")
        e.V("v_mov_b32", vOne, sA)
        e.S("s_lshr_b32", sA, sC, 1)
        e.S("s_lshl_b32", sB, sR, 3)
        e.S("s_add_u32", sA, sA, sB)
        e.S("s_mul_i32", sA, sA, 20 * KB)
        e.S("s_and_b32", sB, sC, 1)
        e.S("s_lshl_b32", sB, sB, 7)
        e.S("s_add_u32", sA, sA, sB)
        e.S("s_add_u32", sA, sA, XB[0])
        ops0 = [e.bstore(XJ[k], XD[k], WS, sA, 0, "sc1", cls=(1000, 70, 0)) for k in range(3)]
        xs = RES[8:10]
        xz = TMP[50:52]
        for r_ in (xs[0], xs[1], xz[0], xz[1]):
            e.V("v_mov_b32", r_, 0)
        for k in range(3):
            for i in range(4):
                e.V("v_dot2c_f32_bf16", xs[0], XJ[k][i], vOne)
                e.V("v_dot2c_f32_bf16", xs[1], XJ[k][i], XJ[k][i])
        for h in range(2):
            e.V("v_add_f32_dpp", xs[h], xs[h], xs[h], mods="row_ror:8 row_mask:0xf bank_mask:0xf")
            allreduce_g(e, xs[h], vT0)
        e.S("s_lshl_b32", sA, sR, 3)
        e.S("s_add_u32", sA, sA, sWave)
        e.S("s_lshl_b32", sA, sA, 10)
        e.S("s_lshl_b32", sB, sC, 6)
        e.S("s_add_u32", sA, sA, sB)
        e.S("s_add_u32", sA, sA, STB[0])
        e.S("s_add_u32", sB, sA, 4096)
        e.V("v_lshlrev_b32", vT0, 3, vLane)
        e.S("s_mov_b64", EXEC, "0xff")
        ops0.append(e.bstore(xs, vT0, WS, sA, 0, "sc1", cls=(1000, 20, 0)))
        ops0.append(e.bstore(xz, vT0, WS, sB, 0, "sc1", cls=(1000, 20, 0)))
        e.S("s_mov_b64", EXEC, -1)
        self.stamp("xjob")
        ops1 = self.job_pack(RAW1, PK1, vSt1, D1)
        self.stamp("r1")
        e.V("v_mov_b32", vSum, 0)
        for i in range(20):
            e.V("v_dot2c_f32_bf16", vSum, PK1[i], vOne)
        allreduce_g(e, vSum, vT0)
        e.V("v_sub_f32", vSum, 0, vSum)
        e.V("v_cvt_pk_bf16_f32", vT0, vSum, vSum)
        e.V("v_lshlrev_b32", vT0, 16, vT0)
        e.V("v_sub_f32", vT0, vSum, vT0)
        e.V("v_cvt_pk_bf16_f32", EX[0], vSum, vT0)
        e.V("v_and_b32", EX[1], "0xffff", EX[0])
        e.V("v_mov_b32", EX[3], 0)
        e.V("v_lshl_or_b32", EX[2], vBias, 16, vBias)
        e.S("s_cmp_eq_u32", sP1, 0)
        e.S("s_cselect_b32", sA, -1, 0)
        e.V("v_and_b32", EX[2], sA, EX[2])
        e.S("s_mov_b64", EXEC, "0xffff")
        ops1.append(e.bstore(EX, vSt1, WS, D1[5], 0, "sc1", cls=(1000, 20, 0)))
        e.S("s_mov_b64", EXEC, -1)
        MK = RAW1[0:4]
        for i in range(4):
            e.V("v_mov_b32", MK[i], -1)
        e.S("s_lshl_b32", sA, sC, 4)
        e.S("s_add_u32", sA, sA, sR)
        e.S("s_mul_i32", sA, sA, KVSZ)
        e.S("s_mul_i32", sB, sWave, 896)
        e.S("s_min_u32", sB, sB, KVSZ - 1024)
        e.S("s_add_u32", sA, sA, sB)
        e.S("s_add_u32", sB, sA, KVB[1])
        e.S("s_add_u32", sA, sA, KVB[0])
        ops1.append(e.bstore(MK, vL16, WS, sA, 0, "sc1", cls=(1000, 70, 0)))
        ops1.append(e.bstore(MK, vL16, WS, sB, 0, "sc1", cls=(1000, 70, 0)))
        e.wait_ops(ops0 + ops1)
        e.barrier()
        self.flag("both", 1)
        self.stamp("w1flag")
        self.job_loads(RAW2, SR2, sStr, vReg, vLeft, rows)
        self.stamp("iss2")
        self.ops2 = self.job_pack(RAW2, PK2, vSt2, D2)
        self.stamp("r2")
        self.poll("both", 1)
        e.barrier()
        self.stamp("w1go")

    def w2_gen(self):
        e = self.e
        t = TMP[53]
        e.V("v_bfe_u32", t, vLane, 4, 1); yield
        e.V("v_lshl_add_u32", t, t, 11, vFl); yield
        e.S("s_lshl_b32", sE, sCG, 8); yield
        e.S("s_add_u32", sE, sE, FLG_C); yield
        e.bload(TMP[54], t, WS, sE, 0, "sc1", cls=(900, 10, 0)); yield
        for _ in range(50):
            yield "idle"
        e.S("s_add_u32", sD, sBase, 2); yield
        lok, lre = e.newlabel("w2ok"), e.newlabel("w2retry")
        e.V("v_cmp_ne_u32", VCC, sD, TMP[54])
        e.S("s_cmp_eq_u64", VCC, 0)
        e.branch("s_cbranch_scc1", lok)
        e.cond_begin()
        e.S("s_mov_b32", sCnt, 0)
        e.label(lre)
        e.misc("s_sleep 4")
        e.bload(TMP[54], t, WS, sE, 0, "sc1")
        e.V("v_cmp_ne_u32", VCC, sD, TMP[54])
        e.S("s_cmp_eq_u64", VCC, 0)
        e.branch("s_cbranch_scc1", lok)
        e.S("s_add_u32", sCnt, sCnt, 1)
        e.S("s_cmp_lt_u32", sCnt, 0x20000)
        e.branch("s_cbranch_scc1", lre)
        e.cond_end()
        e.label(lok)
        self.gate = 1 << 20
        yield

    def prologue2(self):
        e = self.e
        T0, T1, T2, T3, T4, T5 = [TMP[40 + i] for i in range(6)]
        mk_srd(e, OUT, pOut, XSZ)
        e.S("s_and_b32", sKH, sWave, 1)
        e.S("s_lshl_b32", sW2048, sWave, 11)
        e.S("s_mul_i32", sA, sC, NA * KB)
        e.S("s_add_u32", sSeg["A"], sA, WA)
        e.S("s_mul_i32", sA, sCG, NO * KB)
        e.S("s_add_u32", sSeg["O"], sA, WO)
        e.S("s_mul_i32", sA, sC, NB * KB)
        e.S("s_add_u32", sSeg["B"], sA, WB)
        e.S("s_mul_i32", sA, sCG, NC * KB)
        e.S("s_add_u32", sSeg["C"], sA, WC)
        e.V("v_add_u32", vDma, sW2048, vL16)
        e.S("s_mul_i32", sXr, sR, 160 * KB)
        e.S("s_mul_i32", sHr, sR, 432 * KB)
        e.S("s_lshl_b32", sSTr, sR, 13)
        e.S("s_mul_i32", sA, sWave, 40 * KB)
        e.V("v_add_u32", vAx[0], sA, vL16)
        e.V("v_add_u32", vAx[1], 20 * KB, vAx[0])
        e.V("v_lshlrev_b32", T0, 11, vG)
        e.V("v_lshl_add_u32", T0, vN, 3, T0)
        e.S("s_lshl_b32", sA, sWave, 8)
        e.V("v_add_u32", vSt, sA, T0)
        e.S("s_mov_b32", self.cInvD, lit(1.0 / D))
        for j in range(3):
            if j == 0:
                e.V("v_mov_b32", vW[0], vL16)
            else:
                e.V("v_add_u32", vW[j], j * 65536, vL16)
        e.S("s_lshl_b32", sA, sKH, 10)
        for j in range(3):
            e.V("v_add_u32", vK[j], sA, vW[j])
        e.V("v_lshlrev_b32", T4, 4, v(0))
        Z = TMP[44:48]
        Z = TMP[48:52]
        for j in range(4):
            e.V("v_mov_b32", Z[j], 0)
        e.ds_write(T4, Z, 0)
        e.ds_write(T4, Z, 4096)
        e.S("s_lshl_b32", sTT, sRH, 2)
        e.S("s_add_u32", sTT, sTT, sWave)
        e.S("s_xor_b32", sB, sTT, 1)
        for u, st in ((0, sTT), (1, sB)):
            e.S("s_mul_i32", sA, st, 20 * KB)
            e.S("s_mul_i32", sD, sKH, 10 * KB)
            e.S("s_add_u32", sA, sA, sD)
            e.V("v_add_u32", vAo[u], sA, vL16)
            e.S("s_mul_i32", sA, st, 54 * KB)
            e.S("s_mul_i32", sD, sKH, 27 * KB)
            e.S("s_add_u32", sA, sA, sD)
            e.V("v_add_u32", vAh[u], sA, vL16)
        e.V("v_lshrrev_b32", T0, 1, vG)
        e.V("v_and_b32", T1, 1, vG)
        e.V("v_lshlrev_b32", T2, 4, vN)
        e.V("v_lshl_add_u32", T3, T0, 8, T2)
        e.V("v_lshl_add_u32", T3, T1, 3, T3)
        e.S("s_mul_i32", sA, sTT, 20 * KB)
        e.V("v_add_u32", vXs, sA, vL16)
        e.V("v_add_u32", vXh, sA, T3)
        e.S("s_mul_i32", sA, sWave, 108 * KB)
        e.V("v_add_u32", vHs, sA, vL16)
        e.S("s_cmp_ge_u32", sC, 12)
        e.S("s_cselect_b32", sA, BIG, sA)
        e.V("v_add_u32", vHh, sA, T3)
        e.S("s_mul_i32", sA, sWave, 40 * KB)
        e.V("v_lshl_add_u32", T3, vG, 3, T2)
        e.V("v_add_u32", vOh, sA, T3)
        e.V("v_cmp_gt_u32", VCC, 2, vG)
        e.V("v_mov_b32", T3, BIG)
        e.V("v_cndmask_b32", vOh, T3, vOh, VCC)
        e.S("s_lshl_b32", sA, sTT, 7)
        e.V("v_lshl_add_u32", T3, vN, 3, sA)
        e.V("v_lshl_add_u32", vStW, T0, 2, T3)
        e.S("s_lshl_b32", sA, sWave, 7)
        e.S("s_add_u32", sA, sA, RST)
        e.V("v_lshl_add_u32", vRT, vG, 4, sA)
        e.V("v_lshl_add_u32", vRW, vN, 2, sA)
        e.S("s_lshl_b32", sA, sTT, 6)
        e.S("s_add_u32", sA, sA, RST)
        e.V("v_lshl_add_u32", vRF, vN, 2, sA)
        e.V("v_lshlrev_b32", T3, 4, vG)
        e.V("v_add_u32", vZ2, ZT + 128, T3)
        e.V("v_cmp_gt_u32", VCC, 10, vN)
        e.V("v_add_u32", T3, ZT, T3)
        e.V("v_cndmask_b32", vZ01, vZ2, T3, VCC)
        e.S("s_lshl_b32", sA, sR, 3)
        e.S("s_add_u32", sA, sA, sTT)
        e.S("s_mul_i32", sA, sA, 16 * 1280)
        e.S("s_mul_i32", sB, sCG, 160)
        e.S("s_add_u32", sA, sA, sB)
        e.V("v_mul_u32_u24", T3, 1280, vN)
        e.V("v_add_u32", T3, sA, T3)
        e.V("v_lshl_add_u32", vOut, vG, 4, T3)
        e.V("v_lshl_add_u32", vOut4, vG, 3, T3)
        e.bload(RES[10:14], vOut, XIN, 0, 0)
        e.bload(RES[14:18], vOut, XIN, 0, 64)
        e.bload(RES[18:20], vOut4, XIN, 0, 128)
        e.V("v_lshl_add_u32", T4, vG, 4, sB)
        e.V("v_lshl_add_u32", T5, vG, 3, sB)
        e.bload(B2F[10:14], T4, SB2, 0, 0)
        e.bload(B2F[14:18], T4, SB2, 0, 64)
        e.bload(B2F[18:20], T5, SB2, 0, 128)
        e.S("s_mul_i32", sA, sWave, 5120)
        e.V("v_add_u32", vXch, sA, vL16)
        e.V("v_lshlrev_b32", vFl, 2, vN)
        e.V("v_mov_b32", vLn2[0], lit(LN2))
        e.V("v_mov_b32", vEps[0], lit(1e-6))
        e.S("s_mov_b32", sMaskV[0], "0x00ff00ff")
        e.S("s_mov_b32", sMaskV[1], "0x00ff00ff")
        e.S("s_lshl_b32", sA, sR, 8)
        e.S("s_add_u32", sFRL, sA, FLG_RL)
        e.S("s_add_u32", sFRG, sA, FLG_RG)
        e.S("s_lshl_b32", sA, sC, 8)
        e.S("s_add_u32", sFC, sA, FLG_C)
        e.S("s_lshl_b32", sA, sCG, 11)
        e.S("s_add_u32", sOx, sXr, sA)
        e.S("s_lshr_b32", sA, sCG, 1)
        e.S("s_lshl_b32", sA, sA, 10)
        e.S("s_and_b32", sB, sCG, 1)
        e.S("s_lshl_b32", sB, sB, 9)
        e.S("s_add_u32", sA, sA, sB)
        e.S("s_add_u32", sA, sA, 16 * KB)
        e.S("s_add_u32", sOxh, sXr, sA)
        e.S("s_lshl_b32", sA, sCG, 10)
        e.S("s_add_u32", sOst, sSTr, sA)
        e.S("s_lshl_b32", sA, sC, 10)
        e.S("s_add_u32", sOo, sXr, sA)
        e.S("s_lshl_b32", sA, sC, 8)
        e.S("s_add_u32", sA, sA, 16 * KB)
        e.S("s_add_u32", sOoh, sXr, sA)
        e.S("s_mul_i32", sA, sC, 3 * KB)
        e.S("s_add_u32", sOh, sHr, sA)
        e.S("s_lshl_b32", sA, sC, 9)
        e.S("s_add_u32", sA, sA, 48 * KB)
        e.S("s_add_u32", sOhh, sHr, sA)
        e.S("s_mul_i32", sKv, sC, 16 * KVSZ)
        e.misc(f"s_getreg_b32 {sX1}, hwreg(HW_REG_XCC_ID, 0, 4)")
        e.S("s_and_b32", sX1, sX1, 7)
        e.S("s_add_u32", sX1, sX1, 8)
        e.S("s_add_u32", sX1, sX1, sBase)
        e.S("s_mov_b32", sLocal, 0)
        skip = e.newlabel("noxid")
        e.S("s_cmp_lg_u32", sWave, 3)
        e.branch("s_cbranch_scc1", skip)
        e.cond_begin()
        e.S("s_lshl_b32", sA, sR, 8)
        e.S("s_add_u32", sA, sA, FLG_X)
        e.S("s_lshl_b32", sB, sC, 2)
        e.V("v_mov_b32", T4, sB)
        e.V("v_mov_b32", T5, sX1)
        e.S("s_mov_b64", EXEC, 1)
        e.bstore(T5, T4, WS, sA, 0, "sc1")
        e.S("s_mov_b64", EXEC, -1)
        e.cond_end()
        e.label(skip)
        U, Hh, Ee, Dq = T0, T1, T2, T3
        e.S("s_mov_b32", sA, 52429)
        e.V("v_mul_u32_u24", U, sA, v(0))
        e.V("v_lshrrev_b32", U, 18, U)
        e.V("v_mul_u32_u24", Dq, 5, U)
        e.V("v_sub_u32", Dq, v(0), Dq)
        e.V("v_cmp_le_u32", VCC, 21, U)
        e.V("v_cndmask_b32", Hh, 0, 1, VCC)
        e.V("v_mul_u32_u24", Ee, 21, Hh)
        e.V("v_sub_u32", Ee, U, Ee)
        A0, A1, A2, A3 = TMP[46], TMP[47], TMP[52], TMP[53]
        e.V("v_cmp_le_u32", s(100, 2), 16, Ee)
        e.V("v_cmp_eq_u32", s(88, 2), 4, Dq)
        e.V("v_cndmask_b32", A0, 0, 1, s(100, 2))
        e.V("v_lshl_add_u32", A0, Hh, 1, A0)
        e.V("v_add_u32", A1, 4, Hh)
        e.V("v_cndmask_b32", A1, A1, 6, s(100, 2))
        e.V("v_cndmask_b32", A0, A0, A1, s(88, 2))
        e.V("v_cndmask_b32", A1, Dq, Hh, s(88, 2))
        e.V("v_lshl_add_u32", A2, Hh, 2, Ee)
        e.V("v_subrev_u32", A2, 8, A2)
        e.V("v_cndmask_b32", A2, Ee, A2, s(100, 2))
        e.V("v_cmp_eq_u32", VCC, 20, Ee)
        e.V("v_cndmask_b32", A2, A2, 0, VCC)
        e.V("v_lshl_add_u32", A1, A1, 4, A2)
        e.V("v_lshlrev_b32", A1, 4, A1)
        e.V("v_lshl_add_u32", vKvSrc, A0, 10, A1)
        e.V("v_mul_u32_u24", A0, 5, Hh)
        e.V("v_add_u32", A0, A0, Dq)
        e.V("v_cmp_le_u32", s(88, 2), 8, A0)
        e.V("v_lshrrev_b32", A1, 1, A0)
        e.V("v_subrev_u32", A2, 8, A0)
        e.V("v_cndmask_b32", A1, A1, A2, s(88, 2))
        e.V("v_and_b32", A2, 1, A0)
        e.V("v_cndmask_b32", A2, A2, 0, s(88, 2))
        e.V("v_lshlrev_b32", A2, 3, A2)
        e.V("v_cndmask_b32", A0, 0, 1, s(88, 2))
        e.V("v_lshl_add_u32", A3, Hh, 1, A0)
        e.V("v_lshl_add_u32", A3, A3, 2, A1)
        e.V("v_lshl_add_u32", A3, A3, 4, A2)
        e.V("v_add_u32", A3, ZT, A3)
        e.V("v_mul_u32_u24", T4, 20, Hh)
        e.V("v_add_u32", T4, T4, Ee)
        e.V("v_cmp_le_u32", s(100, 2), 32, T4)
        e.V("v_and_b32", T5, 1, T4)
        e.V("v_cndmask_b32", T5, T5, 2, s(100, 2))
        e.V("v_lshl_add_u32", A0, T5, 1, A0)
        e.V("v_lshrrev_b32", T5, 1, T4)
        e.V("v_subrev_u32", T4, 32, T4)
        e.V("v_cndmask_b32", T4, T5, T4, s(100, 2))
        e.V("v_lshl_add_u32", T4, A1, 4, T4)
        e.V("v_lshl_add_u32", T4, T4, 4, A2)
        e.V("v_lshl_add_u32", T4, A0, 10, T4)
        e.V("v_cndmask_b32", T4, T4, A3, VCC)
        e.V("v_cmp_gt_u32", VCC, 210, v(0))
        e.V("v_mov_b32", T5, DUMMY)
        e.V("v_cndmask_b32", vKvDst, T5, T4, VCC)
        e.V("v_cndmask_b32", vKvSrc, 0, vKvSrc, VCC)
        e.V("v_lshlrev_b32", T4, 4, v(0))
        e.V("v_mov_b32", T5, BIG)
        e.V("v_cndmask_b32", vT16, T5, T4, VCC)

    def unpack(self, dst, pk):
        e = self.e
        for a_ in range(2):
            for j in range(4):
                e.V("v_lshlrev_b32", dst[8 * a_ + j], 16, pk[4 * a_ + j])
                e.V("v_and_b32", dst[8 * a_ + 4 + j], "0xffff0000", pk[4 * a_ + j])
        for j in range(2):
            e.V("v_lshlrev_b32", dst[16 + 2 * j], 16, pk[8 + j])
            e.V("v_and_b32", dst[16 + 2 * j + 1], "0xffff0000", pk[8 + j])

    class ALoad:
        def __init__(self, m, vaddr, terms, nks):
            self.m, self.vaddr, self.terms, self.nks = m, vaddr, terms, nks
            self.n = 0
            self.based = -1
            self.done = False

        def step(self):
            e = self.m.e
            ks, u = divmod(self.n, 2)
            if ks // 4 != self.based:
                self.based = ks // 4
                e.S("s_add_u32", sLd, self.terms[0], self.terms[1] + (ks // 4) * 4 * KB)
                return False
            e.bload(a(self.n * 4, 4), self.vaddr[u], WS, sLd, (ks % 4) * KB, self.m.opt.get("amod", "sc1"), cls=(self.m.opt.get("latA", 600), 76, 33 if self.nks == 27 else 16))
            self.n += 1
            self.done = self.n >= 2 * self.nks
            return True

        def upto(self, ks):
            while self.n < 2 * min(ks + 1, self.nks):
                self.step()

    def stats_loads(self, ver):
        e = self.e
        e.S("s_add_u32", sA, sSTr, STB[ver])
        for u in range(2):
            for k in range(2):
                e.bload(TMP[4 * u + 2 * k:4 * u + 2 * k + 2], vSt, WS, sA, k * 1024 + u * 128, "sc1", cls=(600, 20, 0))

    def stats_gen(self, need_T, have=False):
        e = self.e
        for u in range(2):
            sm, sq, t0, t1 = TMP[4 * u], TMP[4 * u + 1], TMP[4 * u + 2], TMP[4 * u + 3]
            if not have:
                e.V("v_add_f32", sm, sm, t0); yield
                e.V("v_add_f32", sq, sq, t1); yield
            for op in () if have else ("v_permlane32_swap_b32", "v_permlane16_swap_b32"):
                e.V("v_mov_b32", t0, sm); yield
                e.V("v_mov_b32", t1, sq); yield
                e.V(op, sm, t0); yield
                e.V(op, sq, t1); yield
                e.V("v_add_f32", sm, sm, t0); yield
                e.V("v_add_f32", sq, sq, t1); yield
            e.V("v_mul_f32", sm, lit(1.0 / D), sm); yield
            e.V("v_mul_f32", t0, sm, sm); yield
            e.V("v_fma_f32", sq, sq, self.cInvD, Neg(t0)); yield
            e.V("v_max_f32", sq, 0, sq); yield
            e.V("v_add_f32", sq, lit(1e-5), sq); yield
            e.V("v_rsq_f32", t0, sq); yield
            e.V("v_cvt_pk_bf16_f32", XE[u][0], sm, sm); yield
            e.V("v_mul_f32", sq, sq, t0); yield
            e.ds_write(vRW, t0, 64 * u); yield
            c2 = vC2 if u == 0 else vC2b
            e.V("v_mul_f32", c2[0], lit(LOG2E), t0); yield
            e.V("v_lshlrev_b32", t1, 16, XE[u][0]); yield
            e.V("v_sub_f32", sm, sm, t1); yield
            e.V("v_cvt_pk_bf16_f32", XE[u][1], sm, 0); yield
            e.V("v_cvt_pk_bf16_f32", t1, sq, sq); yield
            e.V("v_lshlrev_b32", t1, 16, t1); yield
            e.V("v_sub_f32", t1, sq, t1); yield
            e.V("v_cvt_pk_bf16_f32", XE[u][2], sq, t1); yield
            e.V("v_mov_b32", XE[u][3], 0); yield
        if need_T:
            for u in range(2):
                e.ds_read(RT[4 * u:4 * u + 4], vRT, 64 * u); yield

    def phi_pair(self, src, c2, bcast, t):
        e = self.e
        m = "op_sel_hi:[1,0]" if bcast else ""
        e.V("v_pk_mul_f32", t[0:2], src, c2, mods=m)
        e.V("v_exp_f32_e64", t[2], t[0], mods="clamp")
        e.V("v_exp_f32_e64", t[3], t[1], mods="clamp")
        e.V("v_max_f32", t[0], 0, t[0])
        e.V("v_max_f32", t[1], 0, t[1])
        e.V("v_pk_add_f32", t[2:4], t[2:4], vEps, mods="op_sel_hi:[1,0]")
        e.V("v_pk_fma_f32", t[0:2], t[0:2], vLn2, t[2:4], mods="op_sel_hi:[1,0,1]")

    def scratch(self, nblk, endpos):
        st = endpos - nblk
        if (st % RB) + nblk > RB:
            st = endpos - (endpos % RB) - nblk
        return st, self.ldsaddr(st)

    def bg_on(self, tail):
        e = self.e
        st = {"next": 0}
        t_end = e.T + tail
        self.deadline = lambda: t_end

        def f():
            if e.T >= st["next"] and self.dma_ok():
                n0 = len(e.vm)
                while len(e.vm) == n0:
                    next(self.dmaf)
                st["next"] = e.T + self.opt.get("vgap", 40)
        self.e.bg = f

    def bg_off(self):
        self.e.bg = None

    def gstore(self, lst, cold=False):
        e = self.e
        mode = self.opt.get("mode", "dual")
        if cold:
            mode = "safe"
        if mode != "dual":
            return [e.bstore(d, vo, WS, so, off, "sc1" if mode == "safe" else "") for d, vo, so, off in lst]
        ls, le = e.newlabel("st_safe"), e.newlabel("st_end")
        regs = []
        for d, vo, so, off in lst:
            regs += d.regs() + vo.regs()
        e.wait_ops(e._pending(regs))
        e.S("s_cmp_eq_u32", sLocal, 0)
        need = e._need("vmem", regs, [])
        if need > 1:
            e.nop(need - 1)
        e.branch("s_cbranch_scc1", ls)
        n0 = len(e.lines)
        ops = [e.bstore(d, vo, WS, so, off, "") for d, vo, so, off in lst]
        body = e.lines[n0:]
        assert len(body) == len(lst), body
        e.raw(f"  s_branch {le}")
        e.label(ls)
        for l in body:
            e.raw(l + " sc1")
        e.label(le)
        return ops

    def touch_gen(self, lst, cold=False):
        e = self.e
        if cold or not self.opt.get("touch", 0):
            return
        for _ in range(self.opt.get("touch_delay", 60)):
            yield "idle"
        for vo, sb, add, off in lst:
            e.S("s_add_u32", sE, sb, add); yield
            e.touch(vDum, vo, WS, sE, off); yield

    def local_gen(self):
        e = self.e
        e.S("s_lshl_b32", sE, sR, 8); yield
        e.S("s_add_u32", sE, sE, FLG_X); yield
        e.bload(TMP[52], vFl, WS, sE, 0, "sc1"); yield
        for _ in range(40):
            yield "idle"
        e.V("v_cmp_ne_u32", VCC, sX1, TMP[52]); yield
        e.S("s_cmp_eq_u64", VCC, 0)
        e.S("s_cselect_b32", sLocal, 1, 0); yield

    def poll(self, kind, val):
        e = self.e
        skip = e.newlabel("nopoll")
        loop = e.newlabel("poll")
        e.S("s_cmp_lg_u32", sWave, 0)
        e.branch("s_cbranch_scc1", skip)
        e.cond_begin()
        t = TMP[55]
        e.S("s_mov_b32", sCnt, 0)
        e.S("s_mov_b64", sOk, 0)
        e.S("s_add_u32", sB, sBase, val)
        va, vb, sa, sb = vFl, vFl, sFRL, sFRG
        if kind == "both":
            va, vb, sa, sb = TMP[53], TMP[54], 0, 0
            e.V("v_cmp_gt_u32", VCC, 2, vG)
            e.V("v_mov_b32", va, sFC)
            e.V("v_mov_b32", vb, sFRL)
            e.V("v_cndmask_b32", va, vb, va, VCC)
            e.V("v_add_u32", va, va, vFl)
            e.V("v_mov_b32", vb, FLG_RG - FLG_RL)
            e.V("v_cndmask_b32", vb, vb, 0, VCC)
            e.V("v_add_u32", vb, va, vb)
        e.label(loop)

        def chk():
            e.misc("s_waitcnt vmcnt(0)")
            e.misc(f"v_subrev_u32 {t}, {sB}, {t}")
            e.misc(f"v_cmp_ge_u32 vcc, {8 - val}, {t}")
            e.misc(f"s_or_b64 {sOk}, {sOk}, vcc")
            e.misc(f"s_cmp_eq_u64 {sOk}, -1")
            e.misc(f"s_cbranch_scc1 {skip}")
        e.misc(f"buffer_load_dword {t}, {va}, {WS}, {sa} offen sc1")
        e.misc("s_add_u32 %s, %s, 1" % (sCnt, sCnt))
        chk()
        if kind == "both":
            e.misc("s_sleep 3")
        e.misc(f"s_and_b32 {sA}, {sCnt}, 3")
        e.misc(f"s_cbranch_scc1 {loop}")
        e.misc(f"buffer_load_dword {t}, {vb}, {WS}, {sb} offen sc1")
        chk()
        e.misc(f"s_cmp_lt_u32 {sCnt}, 0x40000")
        e.misc(f"s_cbranch_scc1 {loop}")
        e.cond_end()
        e.label(skip)

    def flag(self, kind, val):
        e = self.e
        lst = [(1, sFRG, "sc1", sC), (2, sFRL, "", sC)] if kind != "col" else []
        if kind != "row":
            lst.append((3, sFC, "sc1", sR))
        for w, sb, m, sidx in lst:
            skip = e.newlabel("noflag")
            e.S("s_cmp_lg_u32", sWave, w)
            e.branch("s_cbranch_scc1", skip)
            e.cond_begin()
            e.S("s_lshl_b32", sA, sidx, 2)
            e.V("v_mov_b32", TMP[54], sA)
            e.S("s_add_u32", sA, sBase, val)
            e.V("v_mov_b32", TMP[55], sA)
            e.S("s_mov_b64", EXEC, 1)
            e.bstore(TMP[55], TMP[54], WS, sb, 0, m)
            e.S("s_mov_b64", EXEC, -1)
            e.cond_end()
            e.label(skip)

    def handoff(self, val, ops, shadow=None, touch=()):
        e = self.e
        t_st = e.T
        self.deadline = lambda: t_st + self.opt.get("topup", 1100)
        self.own_end = 0
        while self.dma_ok():
            next(self.dmaf)
        e.wait_all_lg()
        self.ring_barrier(self.cons + FI + self.opt.get("ahead", 16), ops)
        self.hold = None
        self.flag("row", val)
        self.stamp("flag")
        t_flag = e.T
        if self.opt.get("post_touch", 0):
            for k, (vo, sb, add, off) in enumerate(touch):
                sr = sE if k % 2 else sD
                e.S("s_add_u32", sr, sb, add)
                e.touch(vDum, vo, WS, sr, off, "sc1", cls=(750, 66, 30))
        self.deadline = lambda: t_flag + self.opt.get("topup2", 950)
        while self.dma_ok():
            next(self.dmaf)
        self.prime()
        if shadow:
            shadow()
        self.poll("row", val)
        e.T = max(e.T, t_flag + 1000)
        e.barrier()
        self.stamp("go")

    def phaseA(self, p):
        e = self.e
        opt = self.opt
        xv = 2 * p
        acc = lambda T, u: ACC[(T * 2 + u) * 4:(T * 2 + u) * 4 + 4]
        xf = lambda ks, u: a((ks * 2 + u) * 4, 4) if ks < 20 else XE[u]
        if p == 0:
            for _ in range(opt.get("first_groups", 3)):
                for _ in self.dma_group():
                    pass
        self.stats_loads(xv)
        al = self.ALoad(self, vAx, (sXr, XB[xv]), 20)
        al.upto(opt.get("adist", 8) - 1)
        fl0 = [self.stats_gen(True)]
        if p == 0:
            e.wait_all_lg()
            self.ring_barrier(FI + 8, self.ops2)
            self.flag("col", 2)
            self.prime()
            self.stamp("start")
            fl0.append(self.w2_gen())
        i0 = self.seqstart[("A1", p)]
        fb = 102
        sst, sad = self.scratch(28, self.seq[i0 + fb][0])
        self.hold = sst

        def mf(t, W, u):
            ks, T = divmod(t, 5)
            e.mfma(acc(T, u), xf(ks, u), W, acc(T, u) if ks else 0)
        self.run_pass(105, mf, 5, xf, fl0, chunk=(8 if p == 0 else 24), stop_reads=self.seqstart[("A4", p)], aload=al,
                      amix=(2, 1) if p == 0 else (1, 0), force_bar=fb, tail=6000)
        assert sst + 28 <= self.freed
        self.stamp("A1")
        self.bg_on(5000)
        C2T = TMP[8:16]
        for j in range(8):
            e.V("v_mul_f32", C2T[j], lit(LOG2E), RT[j])
        KF = [TMP[16:20], TMP[20:24], TMP[24:28]]
        VF = {3: TMP[28:32], 4: TMP[32:36], 2: TMP[36:40]}
        tt = [TMP[40:44], TMP[44:48]]
        n = 0
        for T in range(3):
            for u in range(2):
                for h in range(2):
                    t = tt[n % 2]
                    n += 1
                    self.phi_pair(acc(T, u)[2 * h:2 * h + 2], C2T[4 * u + 2 * h:4 * u + 2 * h + 2], False, t)
                    e.V("v_cvt_pk_bf16_f32", KF[T][2 * u + h], t[0], t[1])
        for T in (3, 4, 2):
            for u in range(2):
                for h in range(2):
                    x = acc(T, u)[2 * h:2 * h + 2]
                    e.V("v_pk_mul_f32", x, x, RT[4 * u + 2 * h:4 * u + 2 * h + 2])
            for u in range(2):
                for h in range(2):
                    x = acc(T, u)[2 * h:2 * h + 2]
                    e.V("v_cvt_pk_bf16_f32", VF[T][2 * u + h], x[0], x[1])
        for j in range(4):
            e.V("v_cndmask_b32", VF[2][j], VF[2][j], vOne, sMaskV)
        PR = [ACC[4 * i:4 * i + 4] for i in range(7)]
        prods = [(0, 3), (0, 2), (1, 4), (1, 2), (2, 3), (2, 4), (2, 2)]
        for i, (kt, vt) in enumerate(prods):
            e.mfma(PR[i], KF[kt], VF[vt], 0)
        e.S("s_mul_i32", sA, sWave, 7168)
        e.S("s_add_u32", sA, sA, sad)
        e.V("v_add_u32", TMP[0], sA, vL16)
        e.V("v_add_u32", TMP[1], sad, vKvSrc)
        for i in range(7):
            e.ds_write(TMP[0], PR[i], i * 1024)
        e.wait_all_lg()
        e.barrier()
        RD = [TMP[16 + 4 * w:20 + 4 * w] for w in range(4)]
        for w in range(4):
            e.ds_read(RD[w], TMP[1], w * 7168)
        for h in range(2):
            e.V("v_pk_add_f32", RD[0][2 * h:2 * h + 2], RD[0][2 * h:2 * h + 2], RD[1][2 * h:2 * h + 2])
            e.V("v_pk_add_f32", RD[2][2 * h:2 * h + 2], RD[2][2 * h:2 * h + 2], RD[3][2 * h:2 * h + 2])
        for h in range(2):
            e.V("v_pk_add_f32", RD[0][2 * h:2 * h + 2], RD[0][2 * h:2 * h + 2], RD[2][2 * h:2 * h + 2])
        e.S("s_mul_i32", sA, sR, KVSZ)
        e.S("s_add_u32", sA, sA, sKv)
        e.S("s_add_u32", sA, sA, KVB[p])
        kvst = e.bstore(RD[0], vT16, WS, sA, 0, "sc1")
        self.bg_off()
        self.stamp("kvpub")
        PL = [ACC[4 * i:4 * i + 4] for i in range(10)] + [TMP[24 + 4 * i:28 + 4 * i] for i in range(6)]

        def barhook(t):
            def rel():
                self.hold = None
            return [], rel

        def kvloads():
            for i in range(16):
                if i % 2 == 0:
                    e.S("s_add_u32", sB, sKv, KVB[p] + i * KVSZ); yield
                e.bload(PL[i], vT16, WS, sB, (i % 2) * KVSZ, "sc1", cls=(800, 80, 130)); yield

        def kvsum():
            for st in (1, 2, 4, 8):
                for i in range(0, 16, 2 * st):
                    for h in range(2):
                        e.V("v_pk_add_f32", PL[i][2 * h:2 * h + 2], PL[i][2 * h:2 * h + 2], PL[i + st][2 * h:2 * h + 2])
            e.V("v_cmp_u_f32", VCC, PL[0][0], PL[0][1])
            e.V("v_cmp_u_f32", sNan, PL[0][2], PL[0][3])
            e.S("s_or_b64", VCC, VCC, sNan)

        def mfq(t, W, u):
            ks, T = divmod(t, 3)
            e.mfma(acc(5 + T, u), W, xf(ks, u), acc(5 + T, u) if ks else 0)
        self.lastbar = self.rd - 8
        fl = [self.touch_gen([(vAx[0], sOo, OB[p], 0), (vAx[1], sOo, OB[p], 0), (vOh, sOoh, OB[p], 0), (vOh, sOoh, OB[p] + 20 * KB, 0)], p == 0)]
        if p == 0:
            fl.append(self.local_gen())
        self.run_pass(63, mfq, 3, xf, fl, stop_reads=self.seqstart[("A4", p)], hooks={"bar": barhook},
                      late=(opt.get("kvload_at", 30), kvloads()), see_all=True, force_bar=61, tail=1600 + self.opt.get("slack", 400))
        self.stamp("A2")
        self.bg_on(1600 + self.opt.get("slack", 400))
        PQ0 = [TMP[0:4], TMP[4:8]]
        PQ1 = [TMP[8:12], TMP[12:16]]
        tq = [TMP[16:20], TMP[20:24]]
        for u in range(2):
            c2 = vC2 if u == 0 else vC2b
            for h in range(2):
                self.phi_pair(acc(5, u)[2 * h:2 * h + 2], c2, True, tq[0])
                self.phi_pair(acc(6, u)[2 * h:2 * h + 2], c2, True, tq[1])
                e.V("v_cvt_pk_bf16_f32", PQ0[u][2 * h], tq[0][0], tq[1][0])
                e.V("v_cvt_pk_bf16_f32", PQ0[u][2 * h + 1], tq[0][1], tq[1][1])
            for h in range(2):
                self.phi_pair(acc(7, u)[2 * h:2 * h + 2], c2, True, tq[h])
                e.V("v_cvt_pk_bf16_f32", PQ1[u][h], tq[h][0], tq[h][1])
            e.V("v_mov_b32", PQ1[u][2], 0)
            e.V("v_mov_b32", PQ1[u][3], 0)
        self.bg_off()
        self.stamp("qepi")
        kvsum()
        lok, lre = e.newlabel("kvok"), e.newlabel("kvretry")
        e.branch("s_cbranch_scc0", lok)
        e.cond_begin()
        e.S("s_mov_b32", sCnt, 0)
        e.label(lre)
        e.misc("s_sleep 4")
        for _ in kvloads():
            pass
        kvsum()
        e.branch("s_cbranch_scc0", lok)
        e.S("s_add_u32", sCnt, sCnt, 1)
        e.S("s_cmp_lt_u32", sCnt, 0x10000)
        e.branch("s_cbranch_scc1", lre)
        e.cond_end()
        e.label(lok)
        self.stamp("kvgo")
        self.bg_on(900 + self.opt.get("slack", 400))
        e.V("v_cvt_pk_bf16_f32", TMP[16], PL[0][0], PL[0][1])
        e.V("v_cvt_pk_bf16_f32", TMP[17], PL[0][2], PL[0][3])
        e.ds_write(vKvDst, TMP[16:18])
        e.wait_all_lg()
        e.barrier()
        FR = [TMP[16 + 4 * i:20 + 4 * i] for i in range(10)]
        for T in range(3):
            for ks in range(2):
                e.ds_read(FR[T * 2 + ks], vL16, IMG + (T * 2 + ks) * KB)
        for ks in range(2):
            e.ds_read(FR[6 + ks], vZ01, ks * 64)
            e.ds_read(FR[8 + ks], vZ2, ks * 64)
        oa = lambda T, u: ACC[(T * 2 + u) * 4:(T * 2 + u) * 4 + 4]
        for T in (3, 4, 0, 1, 2):
            for u in range(2):
                e.mfma(oa(T, u), FR[2 * T], PQ0[u], 0)
        for T in (3, 4, 0, 1, 2):
            for u in range(2):
                e.mfma(oa(T, u), FR[2 * T + 1], PQ1[u], oa(T, u))
        e.S("s_add_u32", sA, sOo, OB[p])
        e.S("s_add_u32", sB, sOoh, OB[p])
        e.S("s_add_u32", sD, sOoh, OB[p] + 20 * KB)
        ops = []
        for u in range(2):
            for x in (oa(3, u)[0], oa(3, u)[2], oa(4, u)[0]):
                e.V("v_add_f32", x, vEps[0], x)
        for u in range(2):
            for x in (oa(3, u)[0], oa(3, u)[2], oa(4, u)[0]):
                e.V("v_rcp_f32", x, x)
        for u in range(2):
            for T in range(3):
                for h in range(2):
                    x = oa(T, u)[2 * h:2 * h + 2]
                    dn = oa(3, u)[2 * h:2 * h + 2] if T < 2 else oa(4, u)[0:2]
                    e.V("v_pk_mul_f32", x, x, dn, mods="op_sel_hi:[1,0]")
            o4 = TMP[16 + 8 * u:20 + 8 * u]
            o2 = TMP[20 + 8 * u:22 + 8 * u]
            for j in range(4):
                e.V("v_cvt_pk_bf16_f32", o4[j], oa(0, u)[j], oa(1, u)[j])
            for h in range(2):
                e.V("v_cvt_pk_bf16_f32", o2[h], oa(2, u)[2 * h], oa(2, u)[2 * h + 1])
            if u == 0:
                ops += self.gstore([(o4, vAx[u], sA, 0), (o2, vOh, sB, 0)], p == 0)
            else:
                ops += self.gstore([(o4, vAx[u], sA, 0), (o2, vOh, sD, 0)], p == 0)
        self.bg_off()
        self.stamp("A3")
        def shadow():
            if p == 0:
                self.unpack(RES, RES[10:20])
                self.unpack(B2F, B2F[10:20])
        self.handoff(4 * p + 2, ops, shadow, [(vAx[0], sOo, OB[p], 0), (vAx[1], sOo, OB[p], 0), (vOh, sOoh, OB[p], 0), (vOh, sOoh, OB[p] + 20 * KB, 0)])

    def phase64(self, p, kind):
        e = self.e
        opt = self.opt
        nks = 10 if kind == "O" else 27
        name = "A4" if kind == "O" else "B2"
        acc = lambda T, u: ACC[(u * 5 + T) * 4:(u * 5 + T) * 4 + 4]
        if kind == "O":
            al = self.ALoad(self, vAo, (sXr, OB[p]), nks)
        else:
            al = self.ALoad(self, vAh, (sHr, HB[p]), nks)
        al.upto(opt.get("adist", 8) - 1)
        xf = lambda ks, u: a((ks * 2 + u) * 4, 4)
        if kind == "C":
            e.ds_read(TMP[50], vRF)
        i0 = self.seqstart[(name, p)]
        fb = 5 * nks - 3
        sst, sad = self.scratch(20, self.seq[i0 + fb][0])
        self.hold = sst
        stop = i0 + 5 * nks

        def mf(t, W, u):
            ks, T = divmod(t, 5)
            e.mfma(acc(T, u), W, xf(ks, u), acc(T, u) if ks else 0)
        last = kind == "C" and p == 1
        xv = 2 * p + (1 if kind == "O" else 2)
        fl = [] if last else [self.touch_gen([(vXs, sOx, XB[xv], 0), (vXs, sOx, XB[xv], 1024), (vXh, sOxh, XB[xv], 0), (vStW, sOst, STB[xv], 0)])]
        self.run_pass(5 * nks, mf, 5, xf, fl, force_bar=fb, chunk=(12 if kind == "O" else opt.get("chunkC", 8)), stop_reads=stop, aload=al,
                      amix=(1, 0) if kind == "O" else tuple(opt.get("amixC", (3, 2))), tail=900 + self.opt.get("slack", 400))
        self.stamp(name)
        self.bg_on(900 + self.opt.get("slack", 400))
        e.V("v_add_u32", TMP[0], sad, vXch)
        e.S("s_xor_b32", sA, sWave, 1)
        e.S("s_mul_i32", sA, sA, 5120)
        e.S("s_add_u32", sA, sA, sad)
        e.V("v_add_u32", TMP[1], sA, vL16)
        assert sst + 20 <= self.freed
        for T in range(5):
            e.ds_write(TMP[0], acc(T, 1), T * KB)
        e.wait_all_lg()
        e.barrier()
        PT = TMP[4:24]
        for T in range(5):
            e.ds_read(PT[4 * T:4 * T + 4], TMP[1], T * KB)
        own = ACC[0:20]
        if kind == "C":
            e.V("v_mul_f32", TMP[50], TMP[50], TMP[50])
        for h in range(10):
            x = own[2 * h:2 * h + 2]
            e.V("v_pk_add_f32", x, x, PT[2 * h:2 * h + 2])
            if kind == "O":
                e.V("v_pk_add_f32", x, x, RES[2 * h:2 * h + 2])
            else:
                e.V("v_pk_fma_f32", x, x, TMP[50:52], RES[2 * h:2 * h + 2], mods="op_sel_hi:[1,0,1]")
        PK = TMP[24:34]
        for a_ in range(2):
            for j in range(4):
                e.V("v_cvt_pk_bf16_f32", PK[4 * a_ + j], own[8 * a_ + j], own[8 * a_ + 4 + j])
        for h in range(2):
            e.V("v_cvt_pk_bf16_f32", PK[8 + h], own[16 + 2 * h], own[16 + 2 * h + 1])
        self.bg_off()
        if last:
            om = self.opt.get("outmod", "")
            e.bstore(PK[0:4], vOut, OUT, 0, 0, om)
            e.bstore(PK[4:8], vOut, OUT, 0, 64, om)
            e.bstore(PK[8:10], vOut4, OUT, 0, 128, om)
            self.stamp("end")
            return
        xv = 2 * p + (1 if kind == "O" else 2)
        ops = []
        e.S("s_add_u32", sA, sOx, XB[xv])
        e.S("s_add_u32", sB, sOxh, XB[xv])
        e.S("s_add_u32", sD, sOst, STB[xv])
        ops += self.gstore([(PK[0:4], vXs, sA, 0), (PK[4:8], vXs, sA, 1024), (PK[8:10], vXh, sB, 0)])
        sm, sq, t0 = TMP[36], TMP[37], TMP[38]
        e.V("v_mov_b32", sm, 0)
        e.V("v_mov_b32", sq, 0)
        for j in range(10):
            e.V("v_dot2c_f32_bf16", sm, PK[j], vOne)
            e.V("v_dot2c_f32_bf16", sq, PK[j], PK[j])
        e.V("v_permlane32_swap_b32", sm, sq)
        e.V("v_add_f32", sm, sm, sq)
        e.V("v_mov_b32", t0, sm)
        e.V("v_permlane16_swap_b32", sm, t0)
        e.V("v_add_f32", sm, sm, t0)
        ops += self.gstore([(sm, vStW, sD, 0)])
        self.stamp(name + "epi")

        def shadow():
            self.unpack(RES, PK)
            if kind == "O":
                for h in range(10):
                    x = RES[2 * h:2 * h + 2]
                    e.V("v_pk_add_f32", x, x, B2F[2 * h:2 * h + 2])
        self.handoff(4 * p + (3 if kind == "O" else 5), ops, shadow,
                     [(vStW, sOst, STB[xv], 0), (vXs, sOx, XB[xv], 0), (vXs, sOx, XB[xv], 1024), (vXh, sOxh, XB[xv], 0)])

    def phaseB1(self, p):
        e = self.e
        opt = self.opt
        xv = 2 * p + 1
        acc = lambda T, u: ACC[(T * 2 + u) * 4:(T * 2 + u) * 4 + 4]
        xf = lambda ks, u: a((ks * 2 + u) * 4, 4) if ks < 20 else XE[u]
        self.stats_loads(xv)
        al = self.ALoad(self, vAx, (sXr, XB[xv]), 20)
        al.upto(opt.get("adist", 8) - 1)
        stop = self.seqstart[("B2", p)]

        def mf(t, W, u):
            ks, T = divmod(t, 4)
            e.mfma(acc(T, u), W, xf(ks, u), acc(T, u) if ks else 0)
        tl = [(vHs, sOh, HB[p] + u * 54 * KB, a_ * KB) for a_ in range(3) for u in range(2)] + [(vHh, sOhh, HB[p] + u * 54 * KB, 0) for u in range(2)]
        self.run_pass(84, mf, 4, xf, [self.stats_gen(False), self.touch_gen(tl, p == 0)], stop_reads=stop, aload=al, tail=2100 + 300 + self.opt.get("slack", 400))
        self.stamp("B1a")
        ops = []

        def epi(pairs, single):
            n = 0
            for u in range(2):
                sb = sD if u == 0 else sE
                e.S("s_add_u32", sb, sOh, HB[p] + u * 54 * KB); yield
                for a_ in pairs:
                    o = TMP[16 + 4 * (n % 4):20 + 4 * (n % 4)]
                    n += 1
                    for j in range(4):
                        x, y = acc(2 * a_, u)[j], acc(2 * a_ + 1, u)[j]
                        e.V("v_mul_f32_e64", x, x, f"|{x}|"); yield
                        e.V("v_mul_f32_e64", y, y, f"|{y}|"); yield
                        e.V("v_cvt_pk_bf16_f32", o[j], x, y); yield
                        e.V("v_pk_max_i16", o[j], o[j], 0); yield
                    ops.extend(self.gstore([(o, vHs, sb, a_ * KB)], p == 0)); yield
            if single:
                for u in range(2):
                    o = TMP[32 + 2 * u:34 + 2 * u]
                    for j in range(4):
                        x = acc(6, u)[j]
                        e.V("v_mul_f32_e64", x, x, f"|{x}|"); yield
                    for h in range(2):
                        e.V("v_cvt_pk_bf16_f32", o[h], acc(6, u)[2 * h], acc(6, u)[2 * h + 1]); yield
                        e.V("v_pk_max_i16", o[h], o[h], 0); yield
                e.S("s_add_u32", sA, sOhh, HB[p])
                e.S("s_add_u32", sB, sOhh, HB[p] + 54 * KB)
                ops.extend(self.gstore([(TMP[32:34], vHh, sA, 0), (TMP[34:36], vHh, sB, 0)], p == 0))
                yield

        def mf2(t, W, u):
            ks, T = divmod(t, 3)
            e.mfma(acc(4 + T, u), W, xf(ks, u), acc(4 + T, u) if ks else 0)
        self.run_pass(63, mf2, 3, xf, [epi([0, 1], False)], stop_reads=stop, force_bar=61, chunk=opt.get("chunkB", 16), tail=300 + self.opt.get("slack", 400))
        self.stamp("B1b")
        for _ in epi([2], True):
            pass
        self.stamp("B1epi")
        self.handoff(4 * p + 4, ops, None, tl)

    def gen(self):
        e = self.e
        e.reset_state()
        self.cInvD = s(63)
        self.dmaf = self.dma_filler()
        self.prologue()
        self.stamp("entry")
        if self.opt.get("stamps"):
            e.memtime(sTm, True)
            e.V("v_writelane_b32", v(53), sTm[0], 62)
        self.startup()
        stop = self.opt.get("stop", 99)
        n = 0
        for p in range(2):
            for f in (lambda: self.phaseA(p), lambda: self.phase64(p, "O"), lambda: self.phaseB1(p), lambda: self.phase64(p, "C")):
                if n < stop:
                    f()
                n += 1
        if self.opt.get("stamps"):
            e.wait_all_vm()
            e.memtime(sTm, True)
            e.V("v_writelane_b32", v(53), sTm[0], 63)
            e.S("s_lshl_b32", sA, s(2), 2)
            e.S("s_add_u32", sA, sA, sWave)
            e.S("s_lshl_b32", sA, sA, 8)
            e.S("s_add_u32", sA, sA, STAMP)
            e.V("v_lshlrev_b32", TMP[1], 2, vLane)
            e.bstore(v(53), TMP[1], WS, sA)
        e.S("s_add_u32", sA, s(2), sWave)
        e.S("s_cmp_lg_u32", sA, 0)
        e.branch("s_cbranch_scc1", "main_end")
        e.S("s_add_u32", sA, sBase, 16)
        e.V("v_mov_b32", TMP[0], sA)
        e.V("v_mov_b32", TMP[1], EPOCH)
        e.S("s_mov_b64", EXEC, 1)
        e.bstore(TMP[0], TMP[1], WS, 0)
        e.label("main_end")
        e.misc("s_endpgm")
```

```python
from asmgen import *
from layout import *
from gen_prep import mk_srd, allreduce_g
import math

BIG = 0x40000000
LOG2E = 1.4426950408889634
LN2 = 0.6931471805599453

IMG = 0
ZT = 6144
RST = 6400
DUMMY = 6912
RING = 8192
RB = 152
LDS_BYTES = RING + RB * KB
FI = 8

WS, OUT, XIN, SB2 = s(8, 4), s(12, 4), s(16, 4), s(20, 4)
sWave, sR, sC, sCG, sRH, sKH, sW2048 = [s(24 + i) for i in range(7)]
sSeg = {"A": s(31), "O": s(32), "B": s(33), "C": s(34)}
sXr, sHr, sSTr, sFRL, sFRG, sFC = [s(35 + i) for i in range(6)]
sA, sB, sD, sE, sDm, sLd = [s(41 + i) for i in range(6)]
sMaskV = s(48, 2)
sCnt = s(50)
sTT = s(51)
sTm = s(52, 2)
sOx, sOxh, sOst, sOo, sOoh, sOh, sOhh, sKv = [s(54 + i) for i in range(8)]
sLocal, sX1 = s(47), s(62)
sNan = s(90, 2)
sBase = s(92)
sOk = s(94, 2)
SR1, SR2 = s(84, 4), s(96, 4)
PP = s(64, 16)
pOut, pWs = s(80, 2), s(82, 2)
vDum = v(49)

vLane, vN, vG, vL16 = v(1), v(2), v(3), v(4)
vW = [v(5), v(6), v(7)]
vK = [v(8), v(9), v(10)]
vDma = v(11)
vAx = [v(12), v(13)]
vAo = [v(14), v(15)]
vAh = [v(16), v(17)]
vSt, vStW, vKvSrc, vKvDst, vT16, vZ01, vZ2, vRT, vRW, vRF, vOut, vOut4, vOne = [v(18 + i) for i in range(13)]
vOh, vXs, vXh, vHs, vHh, vFl, vPollR, vPollC, vXch = [v(31 + i) for i in range(9)]
XE = [v(40, 4), v(44, 4)]
vC2 = v(48, 2)
vC2b = v(50, 2)
vLn2 = v(52, 2)
vEps = v(54, 2)
RT = v(56, 8)
ACC = v(64, 64)
FIFO = v(128, 4 * FI)
RES = v(160, 20)
B2F = v(180, 20)
TMP = v(200, 56)


class Main:
    def __init__(self, e, opt):
        self.e = e
        self.opt = opt
        self.kname = opt["kname"]
        self.nstamp = 0
        self.segs = []
        pos = 0
        for p in range(2):
            for k, n in (("A", NA), ("O", NO), ("B", NB), ("C", NC)):
                self.segs.append((k, pos, n))
                pos += n
        self.total = pos
        self.ngroups = pos // 8
        self.issued = 0
        self.dmaop = {}
        self.freed = 0
        self.hold = None
        self.visible = 0
        self.seq = []
        self.seqstart = {}
        for p in range(2):
            b = self.segs[4 * p + 0][1]
            self.seqstart[("A1", p)] = len(self.seq)
            self.seq += [(b + i, "W") for i in range(105)]
            self.seqstart[("A2", p)] = len(self.seq)
            self.seq += [(b + 105 + i, "W") for i in range(63)]
            b = self.segs[4 * p + 1][1]
            self.seqstart[("A4", p)] = len(self.seq)
            self.seq += [(b + 2 * i, "K") for i in range(50)]
            b = self.segs[4 * p + 2][1]
            self.seqstart[("B1a", p)] = len(self.seq)
            self.seq += [(b + i, "W") for i in range(84)]
            self.seqstart[("B1b", p)] = len(self.seq)
            self.seq += [(b + 84 + i, "W") for i in range(63)]
            b = self.segs[4 * p + 3][1]
            self.seqstart[("B2", p)] = len(self.seq)
            self.seq += [(b + 2 * i, "K") for i in range(135)]
        self.rd = 0
        self.cons = 0
        self.lastbar = 0
        self.gate = NA // 8
        self.warn = []
        self.model = []
        self.own_end = 0
        self.deadline = lambda: 1 << 30

    def stamp(self, name):
        self.model.append((name, self.e.T))
        if not self.opt.get("stamps"):
            return
        e = self.e
        e.wait_all_lg()
        e.memtime(sTm)
        e.V("v_writelane_b32", v(53), sTm[0], self.nstamp)
        self.opt.setdefault("stampnames", []).append(name)
        self.nstamp += 1
        assert self.nstamp <= 64

    def endpos(self, i):
        p, k = self.seq[i]
        return p + (2 if k == "K" else 1)

    def ldsaddr(self, pos):
        return RING + (pos % RB) * KB

    def can_issue(self):
        if self.issued >= min(self.ngroups, self.gate):
            return False
        lim = self.freed if self.hold is None else min(self.freed, self.hold)
        return 8 * (self.issued + 1) <= lim + RB

    def dma_group(self):
        e = self.e
        g = self.issued
        self.issued += 1
        pos = 8 * g
        for k, b, n in self.segs:
            if b <= pos < b + n:
                break
        e.S("s_add_u32", M0, sW2048, self.ldsaddr(pos))
        yield
        e.S("s_add_u32", sDm, sSeg[k], (pos - b) * KB)
        yield
        md = "nt" if k in self.opt.get("ntseg", "") else ""
        e.dma(vDma, WS, sDm, 0, md, cls=self.dcls(k))
        yield
        self.dmaop[g] = e.dma(vDma, WS, sDm, 1024, md, cls=self.dcls(k))
        yield

    def dcls(self, k):
        return (750, 80, self.opt.get("svcAB", 150)) if k in "AB" else (750, self.opt.get("svcOC", 92), 75)

    def dma_ok(self):
        e = self.e
        if self.mid_group():
            g = self.issued - 1
        elif self.can_issue():
            g = self.issued
        else:
            return False
        if e.outstanding() >= self.opt.get("qmax", 11):
            return False
        if self.mid_group() or 8 * g < self.own_end:
            return True
        c = self.dcls(self.segof(8 * g))
        return e.predict(c) + c[2] <= self.deadline()

    def dma_filler(self):
        while True:
            if self.can_issue():
                for _ in self.dma_group():
                    yield True
            else:
                yield False

    def flush_dma_partial(self):
        while self.issued > 0 and (self.issued - 1) not in self.dmaop:
            next(self.dmaf)

    def dma_all(self):
        self.flush_dma_partial()
        while self.can_issue():
            for _ in self.dma_group():
                pass

    def ring_barrier(self, need_idx, extra_ops=(), free_all=False):
        e = self.e
        need_idx = min(need_idx, len(self.seq))
        upto = self.endpos(need_idx - 1) if need_idx > 0 else 0
        g = (upto + 7) // 8
        self.flush_dma_partial()
        while self.issued < g:
            assert self.can_issue(), ("ring deadlock", self.issued, g, self.freed, self.hold)
            self.warn.append(f"forced dma group {self.issued} at seq {self.rd}")
            for _ in self.dma_group():
                pass
        ops = list(extra_ops)
        for gg in range(self.visible // 8, g):
            ops.append(self.dmaop[gg])
        e.wait_ops(ops)
        e.barrier()
        self.visible = max(self.visible, 8 * g)
        self.freed = self.seq[self.cons][0] if self.cons < len(self.seq) else self.total
        self.lastbar = self.rd

    def issue_read(self):
        e = self.e
        i = self.rd
        if i >= len(self.seq):
            return
        pos, k = self.seq[i]
        assert self.endpos(i) <= self.visible, ("read of invisible block", i, pos, self.visible)
        ad = self.ldsaddr(pos)
        base = (vW if k == "W" else vK)[ad >> 16]
        slot = i % FI
        e.ds_read(FIFO[4 * slot:4 * slot + 4], base, ad & 0xffff)
        self.rd += 1

    def prime(self):
        while self.rd < self.cons + FI and self.rd < len(self.seq) and self.endpos(self.rd) <= self.visible:
            self.issue_read()

    def run_pass(self, n, mf, ntile, xf, fillers=(), chunk=24, stop_reads=None, hooks=None,
                 aload=None, vrate=0.5, amix=(1, 0), over=0, force_bar=None, late=None, see_all=False, tail=2000):
        e = self.e
        fillers = list(fillers)
        lim = stop_reads if stop_reads is not None else len(self.seq)
        st = {"next": 0, "k": 0, "t": 0}
        self.own_end = self.endpos(lim - 1)
        self.deadline = lambda: e.T + (n - st["t"]) * 33 + tail

        i_first = self.cons

        def dma_need():
            g = self.issued - 1 if self.mid_group() else self.issued
            for i in range(self.cons, lim):
                if self.endpos(i) > 8 * g:
                    return i - i_first - FI - chunk
            return 1 << 20

        def one_vmem():
            na, nd = amix
            n0 = len(e.vm)
            if st.get("late"):
                if e.T < st["next"]:
                    return False
                try:
                    next(st["late"])
                except StopIteration:
                    st["late"] = None
                    return False
            else:
                na_ = (aload.n // 2) * ntile if (aload is not None and not aload.done) else 1 << 21
                nd_ = dma_need() if (self.mid_group() or self.can_issue()) else 1 << 22
                urgent = min(na_, nd_) - st["t"] <= self.opt.get("horizon", 16)
                if e.T < st["next"] and not urgent:
                    return False
                if na_ <= nd_:
                    if na_ >= 1 << 21 or (e.outstanding() >= self.opt.get("qmax", 11) and not urgent):
                        return False
                    aload.step()
                elif urgent or self.dma_ok():
                    next(self.dmaf)
                else:
                    return False
            if len(e.vm) > n0:
                st["k"] += 1
                st["next"] = e.T + self.opt.get("vgap", 40)
            return True

        def fill(budget):
            while budget > 0:
                n0 = e.ninst
                did = one_vmem()
                if not did:
                    for f in list(fillers):
                        try:
                            if next(f) == "idle":
                                continue
                            did = True
                            break
                        except StopIteration:
                            fillers.remove(f)
                if not did:
                    return
                budget -= e.ninst - n0

        def waits_for(t):
            regs = []
            for tt in (t, t + 1):
                if tt < n:
                    ks = tt // ntile
                    if aload is not None:
                        aload.upto(ks)
                    idx = self.cons + (tt - t)
                    if idx < self.rd:
                        regs += FIFO[4 * (idx % FI):4 * (idx % FI) + 4].regs()
                    regs += xf(ks, 0).regs() + xf(ks, 1).regs()
            return e._pending(regs)

        e.wait_ops(waits_for(0))
        if aload is not None:
            self.stamp("1st")
            self.warn.append(f"fill {8 * self.issued - self.seq[self.cons][0]}")
        for t in range(n):
            if aload is not None and self.opt.get("midstamp") and t == n // 2:
                self.stamp("half")
            i = self.cons
            assert self.rd > i, ("fifo underrun", i)
            W = FIFO[4 * (i % FI):4 * (i % FI) + 4]
            st["t"] = t
            ov = over if fillers else 0
            mf(t, W, 0)
            bar = self.rd < lim and (self.endpos(self.rd) > self.visible or self.rd - self.lastbar >= chunk)
            bar = bar or t == force_bar
            if late and t >= late[0] and not st.get("lateon") and (aload is None or aload.done) and 8 * self.issued >= min(self.own_end, self.endpos(min(i_first + n + FI, lim) - 1)) and not self.mid_group():
                st["late"] = late[1]
                st["lateon"] = True
                self.warn.append(f"late at {t}")
            if bar:
                ex, after = [], None
                if hooks and hooks.get("bar"):
                    ex, after = hooks["bar"](t)
                self.ring_barrier(lim if see_all else min(self.rd + chunk, lim), ex)
                if after:
                    after()
            else:
                fill(2 + ov)
            mf(t, W, 1)
            self.cons += 1
            used = 0
            if self.rd < lim:
                self.issue_read()
                used = 1
            pend = waits_for(t + 1) if (t % 2 == 1 and t + 1 < n) else []
            fill(2 + ov - used - (1 if pend else 0))
            if pend:
                e.wait_ops(waits_for(t + 1))
        if late and not st.get("lateon"):
            st["late"] = late[1]
        for f in fillers + ([st["late"]] if st.get("late") else []):
            for _ in f:
                pass

    def segof(self, pos):
        for k, b, n in self.segs:
            if b <= pos < b + n:
                return k
        return "O"

    def mid_group(self):
        return self.issued > 0 and (self.issued - 1) not in self.dmaop

    def dma_burst(self, maxgroups=99):
        e = self.e
        self.flush_dma_partial()
        gs = []
        while self.can_issue() and len(gs) < maxgroups:
            gs.append(self.issued)
            self.issued += 1
        for w in (1, 2, 3):
            mine = gs[w - 1::3]
            if not mine:
                continue
            skip = e.newlabel("noburst")
            e.S("s_cmp_lg_u32", sWave, w)
            e.branch("s_cbranch_scc1", skip)
            e.cond_begin()
            for g in mine:
                pos = 8 * g
                for k, b, n in self.segs:
                    if b <= pos < b + n:
                        break
                for h in range(2):
                    e.S("s_mov_b32", M0, self.ldsaddr(pos) + h * 4096)
                    e.S("s_add_u32", sDm, sSeg[k], (pos - b) * KB + h * 4096)
                    for q in range(4):
                        self.dmaop[g] = e.dma(vL16, WS, sDm, q * 1024)
            e.cond_end()
            e.label(skip)

    def prologue(self):
        e = self.e
        e.S("s_cmp_ge_u32", s(2), 256)
        e.branch("s_cbranch_scc1", "main_end")
        if self.opt.get("stamps"):
            e.V("v_mov_b32", v(53), 0)
        self.stamp("t0")
        e.sload(PP, s(0, 2), 0)
        e.sload(pOut, s(0, 2), 64)
        e.sload(pWs, s(0, 2), 80)
        T0, T1, T2, T3 = TMP[48], TMP[49], TMP[50], TMP[51]
        e.S("s_getpc_b64", s(88, 2))
        e.label("main_pc")
        e.V("v_lshlrev_b32", T2, 5, v(0))
        e.S("s_sub_u32", s(88), s(88), "main_pc-" + self.kname)
        e.S("s_subb_u32", s(89), s(89), 0)
        e.misc(f"global_load_dword {vDum}, {T2}, s[88:89]")
        e._vm([], (2000, 30, 0))
        e.V("v_lshrrev_b32", T0, 6, v(0))
        e.V("v_and_b32", vLane, 63, v(0))
        e.V("v_readfirstlane_b32", sWave, T0)
        e.S("s_lshr_b32", sB, s(2), 3)
        e.S("s_mul_i32", sB, sB, 1792)
        e.S("s_add_u32", sB, sB, 8192)
        e.V("v_lshl_add_u32", T2, v(0), 3, sB)
        e.V("v_min_u32", T2, self.opt.get("code_bytes", 32768) - 4, T2)
        e.misc(f"global_load_dword {vDum}, {T2}, s[88:89]")
        e._vm([], (2000, 30, 0))
        e.V("v_lshlrev_b32", vL16, 4, vLane)
        e.V("v_and_b32", vN, 15, vLane)
        e.V("v_lshrrev_b32", vG, 4, vLane)
        self.vBig = TMP[52]
        e.V("v_mov_b32", self.vBig, BIG)
        e.S("s_and_b32", sA, s(2), 7)
        e.S("s_lshl_b32", sA, sA, 1)
        e.S("s_lshr_b32", sB, s(2), 7)
        e.S("s_add_u32", sR, sA, sB)
        e.S("s_bfe_u32", sC, s(2), (4 << 16) | 3)

    def gather(self, raw, srd, sstride, vaddr, srow, n=8):
        e = self.e
        e.S("s_mul_i32", sLd, srow, sstride)
        for i in range(n):
            e.bload(raw[i], vaddr, srd, sLd, 0, w="ushort", cls=(2500, 32, 0))
            if i < n - 1:
                e.S("s_add_u32", sLd, sLd, sstride)

    def pack(self, raw, n=4):
        for i in range(n):
            self.e.V("v_lshl_or_b32", raw[i], raw[2 * i + 1], 16, raw[2 * i])

    def colsum(self, regs, ex, vs, vt):
        e = self.e
        e.V("v_mov_b32", vs, 0)
        for r_ in regs:
            e.V("v_dot2c_f32_bf16", vs, r_, vOne)
        allreduce_g(e, vs, vt)
        e.V("v_sub_f32", vs, 0, vs)
        e.V("v_cvt_pk_bf16_f32", vt, vs, vs)
        e.V("v_lshlrev_b32", vt, 16, vt)
        e.V("v_sub_f32", vt, vs, vt)
        e.V("v_cvt_pk_bf16_f32", ex[0], vs, vt)
        e.V("v_and_b32", ex[1], "0xffff", ex[0])

    def startup(self):
        e = self.e
        vBig = self.vBig
        RAW1, EX = ACC[0:20], ACC[20:24]
        RAW2 = TMP[0:48]
        vCol, vReg, vLeft, vT0, vT1, vSum, vLd = [FIFO[i] for i in range(7)]
        vA0, vA1, vA2, vSt2, vBias = RES[8], RES[9], B2F[8], B2F[9], TMP[50]
        sT, sP = s(54), s(55)
        sStr = s(56)
        e.S("s_lshr_b32", sP, sR, 1)
        e.S("s_and_b32", sT, sR, 1)
        e.S("s_lshl_b32", sT, sT, 2)
        e.S("s_add_u32", sT, sT, sWave)
        e.S("s_mov_b32", s(4), (656 << 20) | (660 << 10) | 640)
        e.S("s_mov_b32", s(5), 0)
        e.S("s_mul_i32", sA, sT, 10)
        e.S("s_lshr_b32", sA, s(4), sA)
        e.S("s_and_b32", sA, sA, 1023)
        for t, val in ((3, 1280), (4, 1300), (5, 0), (6, 1), (7, 32)):
            e.S("s_cmp_eq_u32", sT, t)
            e.S("s_cselect_b32", sA, val, sA)
        e.S("s_mul_i32", sB, sC, 40)
        e.S("s_add_u32", sA, sA, sB)
        e.V("v_add_u32", vCol, sA, vN)
        e.V("v_add_u32", vT0, vCol, vN)
        e.S("s_sub_u32", sB, sT, 5)
        e.S("s_cmp_lt_u32", sB, 2)
        e.S("s_cselect_b64", VCC, -1, 0)
        e.V("v_cndmask_b32", vCol, vCol, vT0, VCC)
        e.V("v_lshrrev_b32", vT0, 3, vN)
        e.V("v_mul_u32_u24", vT0, 632 - 32, vT0)
        e.V("v_lshrrev_b32", vT1, 2, vN)
        e.V("v_lshl_add_u32", vT0, vT1, 4, vT0)
        e.V("v_add3_u32", vT0, vT0, vN, sA)
        e.S("s_cmp_eq_u32", sT, 2)
        e.S("s_cselect_b64", VCC, -1, 0)
        e.V("v_cndmask_b32", vCol, vCol, vT0, VCC)
        e.V("v_lshlrev_b32", vCol, 1, vCol)
        e.S("s_cmp_eq_u32", sT, 7)
        e.S("s_cselect_b32", sB, 8, 16)
        e.V("v_cmp_le_u32", VCC, sB, vN)
        e.S("s_mov_b32", sStr, 3840)
        e.V("v_cndmask_b32", vCol, vCol, vBig, VCC)
        e.S("s_mov_b32", sD, 8 * 3840)
        e.V("v_mad_u32_u24", vReg, vG, sD, vCol)
        e.V("v_and_b32", vT0, 1, vG)
        e.V("v_lshrrev_b32", vT1, 1, vG)
        e.V("v_lshl_add_u32", vLd, vT0, 1, vT1)
        e.S("s_mov_b32", sD, 4 * 3840)
        e.V("v_mad_u32_u24", vLeft, vLd, sD, vCol)
        mk_srd(e, SR1, PP[2:4], D * 3 * D * 2)
        self.stamp("dec1")
        e.S("s_mul_i32", sB, sP, 80)
        self.gather(RAW1[0:8], SR1, sStr, vReg, sB)
        e.S("s_add_u32", sA, sB, 32)
        self.gather(RAW1[8:16], SR1, sStr, vReg, sA)
        e.S("s_add_u32", sA, sB, 64)
        self.gather(RAW1[16:20], SR1, sStr, vLeft, sA, 4)
        self.stamp("iss1")
        XJ = [RES[0:4], RES[4:8], B2F[0:4]]
        XD = [B2F[4], B2F[5], B2F[6]]
        XS = [ACC[32], ACC[33], ACC[34]]
        T0, T1, T2, T3 = TMP[48], TMP[49], TMP[50], TMP[51]
        mk_srd(e, XIN, PP[0:2], XSZ)
        e.V("v_lshrrev_b32", T1, 3, vLane)
        e.S("s_mul_i32", sA, sWave, 24)
        e.V("v_and_b32", T3, 7, vLane)
        e.S("s_lshl_b32", sE, sR, 4)
        e.S("s_add_u32", sE, sE, sC)
        e.S("s_mul_i32", sE, sE, 8 * 1280)
        e.S("s_mov_b32", sD, 1280)
        for k in range(3):
            q, c16 = XD[k], XS[k]
            e.S("s_add_u32", sB, sA, 8 * k)
            e.V("v_add_u32", q, sB, T1)
            e.V("v_lshrrev_b32", T0, 3, q)
            e.V("v_lshl_add_u32", c16, T0, 1, q)
            e.V("v_subrev_u32", T0, 64, q)
            e.V("v_lshrrev_b32", T2, 1, T0)
            e.V("v_lshl_add_u32", T0, T2, 3, T0)
            e.V("v_add_u32", T0, 8, T0)
            e.V("v_cmp_le_u32", VCC, 64, q)
            e.V("v_cndmask_b32", c16, c16, T0, VCC)
            e.V("v_lshlrev_b32", c16, 4, c16)
            e.V("v_mad_u32_u24", c16, T3, sD, c16)
            e.V("v_cmp_le_u32", VCC, 80, q)
            e.V("v_lshlrev_b32", q, 8, q)
            e.V("v_lshl_add_u32", q, T3, 4, q)
            e.V("v_cndmask_b32", c16, c16, vBig, VCC)
            e.V("v_cndmask_b32", q, q, vBig, VCC)
            e.bload(XJ[k], c16, XIN, sE, 0, cls=(2000, 100, 0))
        def r2touch():
            e.S("s_lshl_b32", sA, s(2), 2)
            e.S("s_add_u32", sA, sA, sWave)
            e.V("v_min_u32", T0, 17, vLane)
            e.V("v_lshlrev_b32", T0, 7, T0)
            e.S("s_mul_i32", sB, sA, 2160)
            mk_srd(e, SR2, PP[8:10], F * D * 2)
            e.touch(vDum, T0, SR2, sB, 0, cls=(2000, 30, 0))
            mk_srd(e, SR2, PP[12:14], F * D * 2)
            e.touch(vDum, T0, SR2, sB, 0, cls=(2000, 30, 0))
            e.V("v_min_u32", T0, 7 * 128, T0)
            mk_srd(e, SR2, PP[4:6], D * D * 2)
            e.S("s_mul_i32", sB, sA, 800)
            e.touch(vDum, T0, SR2, sB, 0, cls=(2000, 30, 0))
        if self.opt.get("r2touch", 3) == 1:
            r2touch()
        mk_srd(e, WS, pWs, WS_USED)
        e.sload(sBase, pWs, EPOCH)
        e.S("s_mov_b32", sA, "0x3f803f80")
        e.V("v_mov_b32", vOne, sA)
        self.stamp("issx")
        e.S("s_cmp_lt_u32", sT, 5)
        e.S("s_cselect_b32", sE, 5, 3)
        e.S("s_cselect_b32", sA, 0, 100)
        e.S("s_add_u32", sA, sA, sT)
        e.S("s_mul_i32", sB, sC, NA)
        e.S("s_add_u32", sA, sA, sB)
        e.S("s_add_u32", sA, sA, WA // KB)
        e.S("s_lshl_b32", sA, sA, 10)
        e.S("s_lshl_b32", sE, sE, 10)
        e.S("s_mul_i32", sB, sP, sE)
        e.S("s_lshl_b32", sB, sB, 1)
        e.S("s_add_u32", sB, sB, sA)
        ops1 = []
        self.pack(RAW1[0:8])
        ops1.append(e.bstore(RAW1[0:4], vL16, WS, sB, 0, "sc1", cls=(1000, 70, 0)))
        e.S("s_add_u32", sB, sB, sE)
        self.pack(RAW1[8:16])
        ops1.append(e.bstore(RAW1[8:12], vL16, WS, sB, 0, "sc1", cls=(1000, 70, 0)))
        e.S("s_lshr_b32", sB, sP, 1)
        e.S("s_add_u32", sB, sB, 16)
        e.S("s_mul_i32", sB, sB, sE)
        e.S("s_add_u32", sB, sB, sA)
        e.S("s_and_b32", sD, sP, 1)
        e.S("s_lshl_b32", s(4), sD, 9)
        e.S("s_add_u32", sB, sB, s(4))
        e.V("v_lshlrev_b32", vT0, 8, vG)
        e.V("v_and_b32", vT0, 256, vT0)
        e.V("v_lshl_add_u32", vT0, vN, 4, vT0)
        e.V("v_lshrrev_b32", vT1, 1, vG)
        e.V("v_lshl_add_u32", vLd, vT1, 3, vT0)
        self.pack(RAW1[16:20], 2)
        ops1.append(e.bstore(RAW1[16:18], vLd, WS, sB, 0, "sc1", cls=(1000, 40, 0)))
        self.colsum([RAW1[i] for i in (0, 1, 2, 3, 8, 9, 10, 11, 16, 17)], EX, vSum, vT0)
        e.S("s_mul_i32", sB, sE, 20)
        e.S("s_add_u32", sB, sB, sA)
        e.S("s_lshr_b32", sA, sP, 1)
        e.S("s_lshl_b32", sA, sA, 8)
        e.S("s_add_u32", sB, sB, sA)
        e.S("s_lshl_b32", sD, sD, 3)
        e.S("s_add_u32", sB, sB, sD)
        e.S("s_mov_b64", EXEC, "0xffff")
        ops1.append(e.bstore(EX[0:2], vL16, WS, sB, 0, "sc1", cls=(1000, 20, 0)))
        e.S("s_mov_b64", EXEC, -1)
        self.stamp("r1")
        if self.opt.get("r2touch", 3) == 2:
            r2touch()
        e.S("s_lshr_b32", sA, sC, 1)
        e.S("s_lshl_b32", sB, sR, 3)
        e.S("s_add_u32", sA, sA, sB)
        e.S("s_mul_i32", sA, sA, 20 * KB)
        e.S("s_and_b32", sB, sC, 1)
        e.S("s_lshl_b32", sB, sB, 7)
        e.S("s_add_u32", sA, sA, sB)
        e.S("s_add_u32", sA, sA, XB[0])
        ops1 += [e.bstore(XJ[k], XD[k], WS, sA, 0, "sc1", cls=(1000, 70, 0)) for k in range(3)]
        xs = ACC[26:28]
        xz = ACC[24:26]
        MK = ACC[28:32]
        for r_ in (xs[0], xs[1], xz[0], xz[1]):
            e.V("v_mov_b32", r_, 0)
        for k in range(3):
            for i in range(4):
                e.V("v_dot2c_f32_bf16", xs[0], XJ[k][i], vOne)
                e.V("v_dot2c_f32_bf16", xs[1], XJ[k][i], XJ[k][i])
        for h in range(2):
            e.V("v_add_f32_dpp", xs[h], xs[h], xs[h], mods="row_ror:8 row_mask:0xf bank_mask:0xf")
            allreduce_g(e, xs[h], vT0)
        e.S("s_lshl_b32", sA, sR, 3)
        e.S("s_add_u32", sA, sA, sWave)
        e.S("s_lshl_b32", sA, sA, 10)
        e.S("s_lshl_b32", sB, sC, 6)
        e.S("s_add_u32", sA, sA, sB)
        e.S("s_add_u32", sA, sA, STB[0])
        e.S("s_add_u32", sB, sA, 4096)
        e.V("v_lshlrev_b32", vT0, 3, vLane)
        e.S("s_mov_b64", EXEC, "0xff")
        ops1.append(e.bstore(xs, vT0, WS, sA, 0, "sc1", cls=(1000, 20, 0)))
        ops1.append(e.bstore(xz, vT0, WS, sB, 0, "sc1", cls=(1000, 20, 0)))
        e.S("s_mov_b64", EXEC, -1)
        for i in range(4):
            e.V("v_mov_b32", MK[i], -1)
        e.S("s_lshl_b32", sA, sC, 4)
        e.S("s_add_u32", sA, sA, sR)
        e.S("s_mul_i32", sA, sA, KVSZ)
        e.S("s_mul_i32", sB, sWave, 896)
        e.S("s_min_u32", sB, sB, KVSZ - 1024)
        e.S("s_add_u32", sA, sA, sB)
        e.S("s_add_u32", sA, sA, KVB[0])
        ops1.append(e.bstore(MK, vL16, WS, sA, 0, "sc1", cls=(1000, 70, 0)))
        self.stamp("xjob")
        e.S("s_and_b32", sCG, sC, 7)
        e.S("s_lshr_b32", sRH, sC, 3)
        if self.opt.get("r2touch", 3) == 3:
            r2touch()
        mk_srd(e, SB2, PP[14:16], D * 2)
        self.prologue2()
        self.stamp("pro2")
        sT, sP, sStr, sJ = s(88), s(89), s(100), s(101)
        rows = [s(3 + i) for i in range(5)] + [s(93)]
        D2 = [s(64), s(65), s(66), s(67), s(70), s(71), s(78)]
        mk_srd(e, SR1, PP[10:12], F * 2)
        e.S("s_lshl_b32", sJ, sRH, 4)
        e.S("s_add_u32", sJ, sJ, sR)
        e.S("s_lshl_b32", sJ, sJ, 2)
        e.S("s_add_u32", sJ, sJ, sWave)
        e.V("v_lshrrev_b32", vT0, 1, vG)
        e.V("v_and_b32", vT1, 1, vG)
        e.V("v_mov_b32", vSt2, vL16)
        e.V("v_mov_b32", vBias, vBig)
        e.S("s_mov_b32", D2[6], BIG)
        lo, lc, lj = e.newlabel("job_wo"), e.newlabel("job_w2"), e.newlabel("job_go")

        def cols(sbase, nsingle):
            e.S("s_lshr_b32", sB, sT, 1)
            e.S("s_lshl_b32", sB, sB, 5)
            e.S("s_add_u32", sA, sbase, sB)
            e.S("s_and_b32", sB, sT, 1)
            e.S("s_add_u32", sA, sA, sB)
            e.S("s_lshl_b32", sA, sA, 1)
            e.S("s_cmp_lt_u32", sT, nsingle)
            e.S("s_cselect_b32", sB, 4, 2)
            e.V("v_mul_u32_u24", vCol, sB, vN)
            e.V("v_add_u32", vCol, sA, vCol)

        def terms(stride, ca, cb):
            e.S("s_mov_b32", sStr, stride)
            e.S("s_mov_b32", sD, 8 * stride)
            e.V("v_mad_u32_u24", vReg, vG, sD, vCol)
            e.S("s_mov_b32", sD, ca * stride)
            e.V("v_mad_u32_u24", vLeft, vT0, sD, vCol)
            e.S("s_mov_b32", sD, cb * stride)
            e.V("v_mad_u32_u24", vLeft, vT1, sD, vLeft)

        def dests(kind):
            for b in range(6 if kind == "C" else 5):
                if kind == "B":
                    e.S("s_mul_i32", sD, D2[b], s(79))
                else:
                    half = 10 if kind == "O" else 27
                    e.S("s_mul_i32", sD, D2[b], 10)
                    e.S("s_cmp_ge_u32", D2[b], half)
                    e.S("s_cselect_b32", sA, 10 * half - 1, 0)
                    e.S("s_sub_u32", sD, sD, sA)
                e.S("s_add_u32", sD, sD, sE)
                e.S("s_lshl_b32", D2[b], sD, 10)

        def quarter_ks():
            e.S("s_lshl_b32", sA, sP, 2)
            for b in range(4):
                e.S("s_add_u32", D2[b], sA, b)
            e.S("s_add_u32", D2[4], sP, 16)
            e.S("s_mov_b32", D2[5], BIG)
            e.S("s_mov_b32", rows[5], 0)
            e.V("v_mov_b32", vA0, vReg)
            e.V("v_mov_b32", vA1, vLeft)
            e.V("v_mov_b32", vA2, vBig)

        e.S("s_cmp_ge_u32", sJ, 76)
        e.branch("s_cbranch_scc1", lc)
        e.S("s_cmp_ge_u32", sJ, 56)
        e.branch("s_cbranch_scc1", lo)
        e.cond_begin()
        mk_srd(e, SR2, PP[8:10], D * F * 2)
        e.S("s_mul_i32", sP, sJ, 9363)
        e.S("s_lshr_b32", sP, sP, 16)
        e.S("s_mul_i32", sA, sP, 7)
        e.S("s_sub_u32", sT, sJ, sA)
        e.S("s_lshr_b32", sJ, sP, 2)
        e.S("s_lshl_b32", sJ, sJ, 3)
        e.S("s_add_u32", sJ, sJ, sCG)
        e.S("s_and_b32", sP, sP, 3)
        e.S("s_mul_i32", sE, sJ, 112)
        e.S("s_max_u32", sB, sJ, 12)
        e.S("s_sub_u32", sB, sB, 12)
        e.S("s_lshl_b32", sB, sB, 4)
        e.S("s_sub_u32", sE, sE, sB)
        cols(sE, 6)
        e.S("s_lshl_b32", sA, sT, 4)
        e.S("s_add_u32", sA, sA, sJ)
        e.S("s_cmp_ge_u32", sA, 6 * 16 + 12)
        e.S("s_cselect_b64", VCC, -1, 0)
        e.V("v_cndmask_b32", vCol, vCol, vBig, VCC)
        e.S("s_cmp_eq_u32", sP, 0)
        e.S("s_cselect_b64", VCC, -1, 0)
        e.V("v_cndmask_b32", vBias, vBig, vCol, VCC)
        terms(3456, 80, 8)
        e.S("s_mul_i32", sB, sP, 160)
        for b in range(4):
            e.S("s_add_u32", rows[b], sB, 80 * (b >> 1) + 32 * (b & 1))
        e.S("s_add_u32", rows[4], sB, 64)
        quarter_ks()
        e.S("s_cmp_lt_u32", sT, 4)
        e.S("s_cselect_b32", s(79), 4, 3)
        e.S("s_cselect_b32", sE, 0, 80)
        e.S("s_add_u32", sE, sE, sT)
        e.S("s_mul_i32", sB, sJ, NB)
        e.S("s_add_u32", sE, sE, sB)
        e.S("s_add_u32", sE, sE, WB // KB)
        dests("B")
        e.S("s_mul_i32", sD, s(79), 20)
        e.S("s_add_u32", sD, sD, sE)
        e.S("s_lshl_b32", sD, sD, 2)
        e.S("s_add_u32", sD, sD, sP)
        e.S("s_lshl_b32", D2[6], sD, 8)
        e.branch("s_branch", lj)
        e.cond_end()
        e.label(lo)
        e.cond_begin()
        mk_srd(e, SR2, PP[4:6], D * D * 2)
        e.S("s_sub_u32", sJ, sJ, 56)
        e.S("s_mul_i32", sP, sJ, 52429)
        e.S("s_lshr_b32", sP, sP, 18)
        e.S("s_mul_i32", sA, sP, 5)
        e.S("s_sub_u32", sT, sJ, sA)
        e.S("s_mul_i32", sE, sCG, 80)
        cols(sE, 4)
        terms(1280, 80, 40)
        e.S("s_mul_i32", sB, sP, 160)
        for b in range(4):
            e.S("s_add_u32", rows[b], sB, 40 * b)
        e.S("s_add_u32", rows[4], sB, 32)
        quarter_ks()
        e.S("s_mul_i32", sE, sCG, NO)
        e.S("s_add_u32", sE, sE, WO // KB)
        e.S("s_lshl_b32", sA, sT, 1)
        e.S("s_add_u32", sE, sE, sA)
        dests("O")
        e.branch("s_branch", lj)
        e.cond_end()
        e.label(lc)
        e.cond_begin()
        mk_srd(e, SR2, PP[12:14], F * D * 2)
        e.S("s_sub_u32", sJ, sJ, 76)
        e.S("s_mul_i32", sP, sJ, 52429)
        e.S("s_lshr_b32", sP, sP, 18)
        e.S("s_mul_i32", sA, sP, 5)
        e.S("s_sub_u32", sT, sJ, sA)
        e.S("s_mul_i32", sE, sCG, 80)
        cols(sE, 4)
        e.S("s_cmp_ge_u32", sP, 9)
        e.S("s_cselect_b64", VCC, -1, 0)
        e.V("v_cndmask_b32", vCol, vCol, vBig, VCC)
        e.V("v_cndmask_b32", vSt2, vSt2, vBig, VCC)
        e.S("s_min_u32", sP, sP, 8)
        terms(1280, 112, 8)
        e.S("s_cmp_eq_u32", sP, 8)
        e.S("s_cselect_b64", VCC, -1, 0)
        e.V("v_cndmask_b32", vA0, vReg, vLeft, VCC)
        e.V("v_mov_b32", vA1, vA0)
        e.V("v_mov_b32", vA2, vA0)
        e.S("s_mul_i32", sJ, sP, 6)
        for b in range(6):
            e.S("s_add_u32", D2[b], sJ, b)
            e.S("s_lshl_b32", sA, sP, 5)
            e.S("s_add_u32", sA, sA, 16 * (b // 3))
            e.S("s_min_u32", sA, sA, 192)
            e.S("s_lshl_b32", sB, D2[b], 5)
            e.S("s_add_u32", sA, sA, sB)
            e.S("s_cmp_eq_u32", sP, 8)
            e.S("s_cselect_b32", rows[b], 224 * b + 96, sA)
        e.S("s_mul_i32", sE, sCG, NC)
        e.S("s_add_u32", sE, sE, WC // KB)
        e.S("s_lshl_b32", sA, sT, 1)
        e.S("s_add_u32", sE, sE, sA)
        dests("C")
        e.cond_end()
        e.label(lj)
        e.S("s_lshl_b32", sA, sC, 4)
        e.S("s_add_u32", sA, sA, sR)
        e.S("s_mul_i32", sA, sA, KVSZ)
        e.S("s_mul_i32", sB, sWave, 896)
        e.S("s_min_u32", sB, sB, KVSZ - 1024)
        e.S("s_add_u32", sA, sA, sB)
        e.S("s_add_u32", s(79), sA, KVB[1])
        self.stamp("dec2")
        e.wait_ops(ops1)
        e.barrier()
        self.flag("both", 1)
        self.stamp("w1flag")
        self.ops2 = []

        def r2_loads():
            for b in range(6):
                va = vA0 if b < 4 else (vA1 if b == 4 else vA2)
                e.S("s_mul_i32", sE, rows[b], sStr); yield
                for i in range(8):
                    e.bload(RAW2[8 * b + i], va, SR2, sE, 0, w="ushort", cls=(1500, 32, 0)); yield
                    if i < 7:
                        e.S("s_add_u32", sE, sE, sStr); yield
            e.bload(vBias, vBias, SR1, 0, 0, w="ushort", cls=(1500, 10, 0)); yield

        def r2_pack():
            vs, vt, EX2, MK = TMP[48], TMP[49], RAW2[4:8], RAW2[12:16]
            for b in range(6):
                raw = RAW2[8 * b:8 * b + 8]
                for i in range(4):
                    e.V("v_lshl_or_b32", raw[i], raw[2 * i + 1], 16, raw[2 * i]); yield
                self.ops2.append(e.bstore(raw[0:4], vSt2, WS, D2[b], 0, "sc1", cls=(1000, 70, 0))); yield
            for i in range(4):
                e.V("v_mov_b32", MK[i], -1); yield
            self.ops2.append(e.bstore(MK, vL16, WS, s(79), 0, "sc1", cls=(1000, 70, 0))); yield
            self.colsum([RAW2[8 * b + i] for b in range(5) for i in range(4)], EX2, vs, vt)
            e.V("v_lshlrev_b32", EX2[3], 16, vBias)
            e.V("v_or_b32", EX2[1], EX2[1], EX2[3])
            e.V("v_mov_b32", EX2[2], 0)
            e.S("s_mov_b64", EXEC, "0xffff")
            self.ops2.append(e.bstore(EX2, vL16, WS, D2[6], 0, "sc1", cls=(1000, 20, 0)))
            e.S("s_mov_b64", EXEC, -1)
            yield
        self.r2_loads, self.r2_pack = r2_loads(), r2_pack()
        for _ in self.r2_loads:
            pass
        self.late_loads()
        self.stamp("iss2")
        for _ in self.r2_pack:
            pass
        self.stamp("r2")
        self.poll("both", 1)
        e.barrier()
        self.stamp("w1go")

    def w2_gen(self):
        e = self.e
        t = RES[0]
        e.V("v_bfe_u32", t, vLane, 4, 1); yield
        e.V("v_lshl_add_u32", t, t, 11, vFl); yield
        e.S("s_lshl_b32", sE, sCG, 8); yield
        e.S("s_add_u32", sE, sE, FLG_C); yield
        e.bload(RES[1], t, WS, sE, 0, "sc1", cls=(900, 10, 0)); yield
        for _ in range(50):
            yield "idle"
        e.S("s_add_u32", sD, sBase, 2); yield
        lok, lre = e.newlabel("w2ok"), e.newlabel("w2retry")
        e.V("v_cmp_ne_u32", VCC, sD, RES[1])
        e.S("s_cmp_eq_u64", VCC, 0)
        e.branch("s_cbranch_scc1", lok)
        e.cond_begin()
        e.S("s_mov_b32", sCnt, 0)
        e.label(lre)
        e.misc("s_sleep 4")
        e.bload(RES[1], t, WS, sE, 0, "sc1")
        e.V("v_cmp_ne_u32", VCC, sD, RES[1])
        e.S("s_cmp_eq_u64", VCC, 0)
        e.branch("s_cbranch_scc1", lok)
        e.S("s_add_u32", sCnt, sCnt, 1)
        e.S("s_cmp_lt_u32", sCnt, 0x20000)
        e.branch("s_cbranch_scc1", lre)
        e.cond_end()
        e.label(lok)
        self.gate = 1 << 20
        yield

    def prologue2(self):
        e = self.e
        T0, T1, T2, T3, T4, T5 = [TMP[40 + i] for i in range(6)]
        mk_srd(e, OUT, pOut, XSZ)
        e.S("s_and_b32", sKH, sWave, 1)
        e.S("s_lshl_b32", sW2048, sWave, 11)
        e.S("s_mul_i32", sA, sC, NA * KB)
        e.S("s_add_u32", sSeg["A"], sA, WA)
        e.S("s_mul_i32", sA, sCG, NO * KB)
        e.S("s_add_u32", sSeg["O"], sA, WO)
        e.S("s_mul_i32", sA, sC, NB * KB)
        e.S("s_add_u32", sSeg["B"], sA, WB)
        e.S("s_mul_i32", sA, sCG, NC * KB)
        e.S("s_add_u32", sSeg["C"], sA, WC)
        e.V("v_add_u32", vDma, sW2048, vL16)
        e.S("s_mul_i32", sXr, sR, 160 * KB)
        e.S("s_mul_i32", sHr, sR, 432 * KB)
        e.S("s_lshl_b32", sSTr, sR, 13)
        e.S("s_mul_i32", sA, sWave, 40 * KB)
        e.V("v_add_u32", vAx[0], sA, vL16)
        e.V("v_add_u32", vAx[1], 20 * KB, vAx[0])
        e.V("v_lshlrev_b32", T0, 11, vG)
        e.V("v_lshl_add_u32", T0, vN, 3, T0)
        e.S("s_lshl_b32", sA, sWave, 8)
        e.V("v_add_u32", vSt, sA, T0)
        e.S("s_mov_b32", self.cInvD, lit(1.0 / D))
        for j in range(3):
            if j == 0:
                e.V("v_mov_b32", vW[0], vL16)
            else:
                e.V("v_add_u32", vW[j], j * 65536, vL16)
        e.S("s_lshl_b32", sA, sKH, 10)
        for j in range(3):
            e.V("v_add_u32", vK[j], sA, vW[j])
        e.V("v_lshlrev_b32", T4, 4, v(0))
        Z = TMP[44:48]
        Z = TMP[48:52]
        for j in range(4):
            e.V("v_mov_b32", Z[j], 0)
        e.ds_write(T4, Z, 0)
        e.ds_write(T4, Z, 4096)
        e.S("s_lshl_b32", sTT, sRH, 2)
        e.S("s_add_u32", sTT, sTT, sWave)
        e.S("s_xor_b32", sB, sTT, 1)
        for u, st in ((0, sTT), (1, sB)):
            e.S("s_mul_i32", sA, st, 20 * KB)
            e.S("s_mul_i32", sD, sKH, 10 * KB)
            e.S("s_add_u32", sA, sA, sD)
            e.V("v_add_u32", vAo[u], sA, vL16)
            e.S("s_mul_i32", sA, st, 54 * KB)
            e.S("s_mul_i32", sD, sKH, 27 * KB)
            e.S("s_add_u32", sA, sA, sD)
            e.V("v_add_u32", vAh[u], sA, vL16)
        e.V("v_lshrrev_b32", T0, 1, vG)
        e.V("v_and_b32", T1, 1, vG)
        e.V("v_lshlrev_b32", T2, 4, vN)
        e.V("v_lshl_add_u32", T3, T0, 8, T2)
        e.V("v_lshl_add_u32", T3, T1, 3, T3)
        e.S("s_mul_i32", sA, sTT, 20 * KB)
        e.V("v_add_u32", vXs, sA, vL16)
        e.V("v_add_u32", vXh, sA, T3)
        e.S("s_mul_i32", sA, sWave, 108 * KB)
        e.V("v_add_u32", vHs, sA, vL16)
        e.S("s_cmp_ge_u32", sC, 12)
        e.S("s_cselect_b32", sA, BIG, sA)
        e.V("v_add_u32", vHh, sA, T3)
        e.S("s_mul_i32", sA, sWave, 40 * KB)
        e.V("v_lshl_add_u32", T3, vG, 3, T2)
        e.V("v_add_u32", vOh, sA, T3)
        e.V("v_cmp_gt_u32", VCC, 2, vG)
        e.V("v_mov_b32", T3, BIG)
        e.V("v_cndmask_b32", vOh, T3, vOh, VCC)
        e.S("s_lshl_b32", sA, sTT, 7)
        e.V("v_lshl_add_u32", T3, vN, 3, sA)
        e.V("v_lshl_add_u32", vStW, T0, 2, T3)
        e.S("s_lshl_b32", sA, sWave, 7)
        e.S("s_add_u32", sA, sA, RST)
        e.V("v_lshl_add_u32", vRT, vG, 4, sA)
        e.V("v_lshl_add_u32", vRW, vN, 2, sA)
        e.S("s_lshl_b32", sA, sTT, 6)
        e.S("s_add_u32", sA, sA, RST)
        e.V("v_lshl_add_u32", vRF, vN, 2, sA)
        e.V("v_lshlrev_b32", T3, 4, vG)
        e.V("v_add_u32", vZ2, ZT + 128, T3)
        e.V("v_cmp_gt_u32", VCC, 10, vN)
        e.V("v_add_u32", T3, ZT, T3)
        e.V("v_cndmask_b32", vZ01, vZ2, T3, VCC)
        e.S("s_lshl_b32", sA, sR, 3)
        e.S("s_add_u32", sA, sA, sTT)
        e.S("s_mul_i32", sA, sA, 16 * 1280)
        e.S("s_mul_i32", sB, sCG, 160)
        e.S("s_add_u32", sA, sA, sB)
        e.V("v_mul_u32_u24", T3, 1280, vN)
        e.V("v_add_u32", T3, sA, T3)
        e.V("v_lshl_add_u32", vOut, vG, 4, T3)
        e.V("v_lshl_add_u32", vOut4, vG, 3, T3)
        e.S("s_mul_i32", sA, sWave, 5120)
        e.V("v_add_u32", vXch, sA, vL16)
        e.V("v_lshlrev_b32", vFl, 2, vN)
        e.V("v_mov_b32", vLn2[0], lit(LN2))
        e.V("v_mov_b32", vEps[0], lit(1e-6))
        e.S("s_mov_b32", sMaskV[0], "0x00ff00ff")
        e.S("s_mov_b32", sMaskV[1], "0x00ff00ff")
        e.S("s_lshl_b32", sA, sR, 8)
        e.S("s_add_u32", sFRL, sA, FLG_RL)
        e.S("s_add_u32", sFRG, sA, FLG_RG)
        e.S("s_lshl_b32", sA, sC, 8)
        e.S("s_add_u32", sFC, sA, FLG_C)
        e.S("s_lshl_b32", sA, sCG, 11)
        e.S("s_add_u32", sOx, sXr, sA)
        e.S("s_lshr_b32", sA, sCG, 1)
        e.S("s_lshl_b32", sA, sA, 10)
        e.S("s_and_b32", sB, sCG, 1)
        e.S("s_lshl_b32", sB, sB, 9)
        e.S("s_add_u32", sA, sA, sB)
        e.S("s_add_u32", sA, sA, 16 * KB)
        e.S("s_add_u32", sOxh, sXr, sA)
        e.S("s_lshl_b32", sA, sCG, 10)
        e.S("s_add_u32", sOst, sSTr, sA)
        e.S("s_lshl_b32", sA, sC, 10)
        e.S("s_add_u32", sOo, sXr, sA)
        e.S("s_lshl_b32", sA, sC, 8)
        e.S("s_add_u32", sA, sA, 16 * KB)
        e.S("s_add_u32", sOoh, sXr, sA)
        e.S("s_mul_i32", sA, sC, 3 * KB)
        e.S("s_add_u32", sOh, sHr, sA)
        e.S("s_lshl_b32", sA, sC, 9)
        e.S("s_add_u32", sA, sA, 48 * KB)
        e.S("s_add_u32", sOhh, sHr, sA)
        e.S("s_mul_i32", sKv, sC, 16 * KVSZ)
        e.misc(f"s_getreg_b32 {sX1}, hwreg(HW_REG_XCC_ID, 0, 4)")
        e.S("s_and_b32", sX1, sX1, 7)
        e.S("s_add_u32", sX1, sX1, 8)
        e.S("s_add_u32", sX1, sX1, sBase)
        e.S("s_mov_b32", sLocal, 0)
        U, Hh, Ee, Dq = T0, T1, T2, T3
        e.S("s_mov_b32", sA, 52429)
        e.V("v_mul_u32_u24", U, sA, v(0))
        e.V("v_lshrrev_b32", U, 18, U)
        e.V("v_mul_u32_u24", Dq, 5, U)
        e.V("v_sub_u32", Dq, v(0), Dq)
        e.V("v_cmp_le_u32", VCC, 21, U)
        e.V("v_cndmask_b32", Hh, 0, 1, VCC)
        e.V("v_mul_u32_u24", Ee, 21, Hh)
        e.V("v_sub_u32", Ee, U, Ee)
        A0, A1, A2, A3 = TMP[46], TMP[47], TMP[38], TMP[39]
        e.V("v_cmp_le_u32", s(100, 2), 16, Ee)
        e.V("v_cmp_eq_u32", s(88, 2), 4, Dq)
        e.V("v_cndmask_b32", A0, 0, 1, s(100, 2))
        e.V("v_lshl_add_u32", A0, Hh, 1, A0)
        e.V("v_add_u32", A1, 4, Hh)
        e.V("v_cndmask_b32", A1, A1, 6, s(100, 2))
        e.V("v_cndmask_b32", A0, A0, A1, s(88, 2))
        e.V("v_cndmask_b32", A1, Dq, Hh, s(88, 2))
        e.V("v_lshl_add_u32", A2, Hh, 2, Ee)
        e.V("v_subrev_u32", A2, 8, A2)
        e.V("v_cndmask_b32", A2, Ee, A2, s(100, 2))
        e.V("v_cmp_eq_u32", VCC, 20, Ee)
        e.V("v_cndmask_b32", A2, A2, 0, VCC)
        e.V("v_lshl_add_u32", A1, A1, 4, A2)
        e.V("v_lshlrev_b32", A1, 4, A1)
        e.V("v_lshl_add_u32", vKvSrc, A0, 10, A1)
        e.V("v_mul_u32_u24", A0, 5, Hh)
        e.V("v_add_u32", A0, A0, Dq)
        e.V("v_cmp_le_u32", s(88, 2), 8, A0)
        e.V("v_lshrrev_b32", A1, 1, A0)
        e.V("v_subrev_u32", A2, 8, A0)
        e.V("v_cndmask_b32", A1, A1, A2, s(88, 2))
        e.V("v_and_b32", A2, 1, A0)
        e.V("v_cndmask_b32", A2, A2, 0, s(88, 2))
        e.V("v_lshlrev_b32", A2, 3, A2)
        e.V("v_cndmask_b32", A0, 0, 1, s(88, 2))
        e.V("v_lshl_add_u32", A3, Hh, 1, A0)
        e.V("v_lshl_add_u32", A3, A3, 2, A1)
        e.V("v_lshl_add_u32", A3, A3, 4, A2)
        e.V("v_add_u32", A3, ZT, A3)
        e.V("v_mul_u32_u24", T4, 20, Hh)
        e.V("v_add_u32", T4, T4, Ee)
        e.V("v_cmp_le_u32", s(100, 2), 32, T4)
        e.V("v_and_b32", T5, 1, T4)
        e.V("v_cndmask_b32", T5, T5, 2, s(100, 2))
        e.V("v_lshl_add_u32", A0, T5, 1, A0)
        e.V("v_lshrrev_b32", T5, 1, T4)
        e.V("v_subrev_u32", T4, 32, T4)
        e.V("v_cndmask_b32", T4, T5, T4, s(100, 2))
        e.V("v_lshl_add_u32", T4, A1, 4, T4)
        e.V("v_lshl_add_u32", T4, T4, 4, A2)
        e.V("v_lshl_add_u32", T4, A0, 10, T4)
        e.V("v_cndmask_b32", T4, T4, A3, VCC)
        e.V("v_cmp_gt_u32", VCC, 210, v(0))
        e.V("v_mov_b32", T5, DUMMY)
        e.V("v_cndmask_b32", vKvDst, T5, T4, VCC)
        e.V("v_cndmask_b32", vKvSrc, 0, vKvSrc, VCC)
        e.V("v_lshlrev_b32", T4, 4, v(0))
        e.V("v_mov_b32", T5, BIG)
        e.V("v_cndmask_b32", vT16, T5, T4, VCC)

    def late_loads(self):
        e = self.e
        T4, T5 = TMP[48], TMP[49]
        e.S("s_mul_i32", sB, sCG, 160)
        e.bload(RES[10:14], vOut, XIN, 0, 0)
        e.bload(RES[14:18], vOut, XIN, 0, 64)
        e.bload(RES[18:20], vOut4, XIN, 0, 128)
        e.V("v_lshl_add_u32", T4, vG, 4, sB)
        e.V("v_lshl_add_u32", T5, vG, 3, sB)
        e.bload(B2F[10:14], T4, SB2, 0, 0)
        e.bload(B2F[14:18], T4, SB2, 0, 64)
        e.bload(B2F[18:20], T5, SB2, 0, 128)
        skip = e.newlabel("noxid")
        e.S("s_cmp_lg_u32", sWave, 3)
        e.branch("s_cbranch_scc1", skip)
        e.cond_begin()
        e.S("s_lshl_b32", sA, sR, 8)
        e.S("s_add_u32", sA, sA, FLG_X)
        e.S("s_lshl_b32", sB, sC, 2)
        e.V("v_mov_b32", T4, sB)
        e.V("v_mov_b32", T5, sX1)
        e.S("s_mov_b64", EXEC, 1)
        e.bstore(T5, T4, WS, sA, 0, "sc1")
        e.S("s_mov_b64", EXEC, -1)
        e.cond_end()
        e.label(skip)

    def unpack(self, dst, pk):
        e = self.e
        for a_ in range(2):
            for j in range(4):
                e.V("v_lshlrev_b32", dst[8 * a_ + j], 16, pk[4 * a_ + j])
                e.V("v_and_b32", dst[8 * a_ + 4 + j], "0xffff0000", pk[4 * a_ + j])
        for j in range(2):
            e.V("v_lshlrev_b32", dst[16 + 2 * j], 16, pk[8 + j])
            e.V("v_and_b32", dst[16 + 2 * j + 1], "0xffff0000", pk[8 + j])

    class ALoad:
        def __init__(self, m, vaddr, terms, nks):
            self.m, self.vaddr, self.terms, self.nks = m, vaddr, terms, nks
            self.n = 0
            self.based = -1
            self.done = False

        def step(self):
            e = self.m.e
            ks, u = divmod(self.n, 2)
            if ks // 4 != self.based:
                self.based = ks // 4
                e.S("s_add_u32", sLd, self.terms[0], self.terms[1] + (ks // 4) * 4 * KB)
                return False
            e.bload(a(self.n * 4, 4), self.vaddr[u], WS, sLd, (ks % 4) * KB, self.m.opt.get("amod", "sc1"), cls=(self.m.opt.get("latA", 600), 76, 33 if self.nks == 27 else 16))
            self.n += 1
            self.done = self.n >= 2 * self.nks
            return True

        def upto(self, ks):
            while self.n < 2 * min(ks + 1, self.nks):
                self.step()

    def stats_loads(self, ver):
        e = self.e
        e.S("s_add_u32", sA, sSTr, STB[ver])
        for u in range(2):
            for k in range(2):
                e.bload(TMP[4 * u + 2 * k:4 * u + 2 * k + 2], vSt, WS, sA, k * 1024 + u * 128, "sc1", cls=(600, 20, 0))

    def stats_gen(self, need_T, have=False):
        e = self.e
        for u in range(2):
            sm, sq, t0, t1 = TMP[4 * u], TMP[4 * u + 1], TMP[4 * u + 2], TMP[4 * u + 3]
            if not have:
                e.V("v_add_f32", sm, sm, t0); yield
                e.V("v_add_f32", sq, sq, t1); yield
            for op in () if have else ("v_permlane32_swap_b32", "v_permlane16_swap_b32"):
                e.V("v_mov_b32", t0, sm); yield
                e.V("v_mov_b32", t1, sq); yield
                e.V(op, sm, t0); yield
                e.V(op, sq, t1); yield
                e.V("v_add_f32", sm, sm, t0); yield
                e.V("v_add_f32", sq, sq, t1); yield
            e.V("v_mul_f32", sm, lit(1.0 / D), sm); yield
            e.V("v_mul_f32", t0, sm, sm); yield
            e.V("v_fma_f32", sq, sq, self.cInvD, Neg(t0)); yield
            e.V("v_max_f32", sq, 0, sq); yield
            e.V("v_add_f32", sq, lit(1e-5), sq); yield
            e.V("v_rsq_f32", t0, sq); yield
            e.V("v_cvt_pk_bf16_f32", XE[u][0], sm, sm); yield
            e.V("v_mul_f32", sq, sq, t0); yield
            e.ds_write(vRW, t0, 64 * u); yield
            c2 = vC2 if u == 0 else vC2b
            e.V("v_mul_f32", c2[0], lit(LOG2E), t0); yield
            e.V("v_lshlrev_b32", t1, 16, XE[u][0]); yield
            e.V("v_sub_f32", sm, sm, t1); yield
            e.V("v_cvt_pk_bf16_f32", XE[u][1], sm, sq); yield
            e.V("v_and_b32", t1, "0xffff0000", XE[u][1]); yield
            e.V("v_sub_f32", t1, sq, t1); yield
            e.V("v_cvt_pk_bf16_f32", XE[u][3], sm, t1); yield
            e.V("v_mov_b32", XE[u][2], XE[u][0]); yield
        if need_T:
            for u in range(2):
                e.ds_read(RT[4 * u:4 * u + 4], vRT, 64 * u); yield

    def phi_pair(self, src, c2, bcast, t):
        e = self.e
        m = "op_sel_hi:[1,0]" if bcast else ""
        e.V("v_pk_mul_f32", t[0:2], src, c2, mods=m)
        e.V("v_exp_f32_e64", t[2], t[0], mods="clamp")
        e.V("v_exp_f32_e64", t[3], t[1], mods="clamp")
        e.V("v_max_f32", t[0], 0, t[0])
        e.V("v_max_f32", t[1], 0, t[1])
        e.V("v_pk_add_f32", t[2:4], t[2:4], vEps, mods="op_sel_hi:[1,0]")
        e.V("v_pk_fma_f32", t[0:2], t[0:2], vLn2, t[2:4], mods="op_sel_hi:[1,0,1]")

    def scratch(self, nblk, endpos):
        st = endpos - nblk
        if (st % RB) + nblk > RB:
            st = endpos - (endpos % RB) - nblk
        return st, self.ldsaddr(st)

    def bg_on(self, tail):
        e = self.e
        st = {"next": 0}
        t_end = e.T + tail
        self.deadline = lambda: t_end

        def f():
            if e.T >= st["next"] and self.dma_ok():
                n0 = len(e.vm)
                while len(e.vm) == n0:
                    next(self.dmaf)
                st["next"] = e.T + self.opt.get("vgap", 40)
        self.e.bg = f

    def bg_off(self):
        self.e.bg = None

    def gstore(self, lst, cold=False):
        e = self.e
        mode = self.opt.get("mode", "dual")
        if cold:
            mode = "safe"
        if mode != "dual":
            return [e.bstore(d, vo, WS, so, off, "sc1" if mode == "safe" else "") for d, vo, so, off in lst]
        ls, le = e.newlabel("st_safe"), e.newlabel("st_end")
        regs = []
        for d, vo, so, off in lst:
            regs += d.regs() + vo.regs()
        e.wait_ops(e._pending(regs))
        e.S("s_cmp_eq_u32", sLocal, 0)
        need = e._need("vmem", regs, [])
        if need > 1:
            e.nop(need - 1)
        e.branch("s_cbranch_scc1", ls)
        n0 = len(e.lines)
        ops = [e.bstore(d, vo, WS, so, off, "") for d, vo, so, off in lst]
        body = e.lines[n0:]
        assert len(body) == len(lst), body
        e.raw(f"  s_branch {le}")
        e.label(ls)
        for l in body:
            e.raw(l + " sc1")
        e.label(le)
        return ops

    def touch_gen(self, lst, cold=False):
        e = self.e
        if cold or not self.opt.get("touch", 0):
            return
        for _ in range(self.opt.get("touch_delay", 60)):
            yield "idle"
        for vo, sb, add, off in lst:
            e.S("s_add_u32", sE, sb, add); yield
            e.touch(vDum, vo, WS, sE, off); yield

    def local_gen(self):
        e = self.e
        e.S("s_lshl_b32", sE, sR, 8); yield
        e.S("s_add_u32", sE, sE, FLG_X); yield
        e.bload(TMP[52], vFl, WS, sE, 0, "sc1"); yield
        for _ in range(40):
            yield "idle"
        e.V("v_cmp_ne_u32", VCC, sX1, TMP[52]); yield
        e.S("s_cmp_eq_u64", VCC, 0)
        e.S("s_cselect_b32", sLocal, 1, 0); yield

    def poll(self, kind, val):
        e = self.e
        skip = e.newlabel("nopoll")
        loop = e.newlabel("poll")
        e.S("s_cmp_lg_u32", sWave, 0)
        e.branch("s_cbranch_scc1", skip)
        e.cond_begin()
        t = TMP[55]
        e.S("s_mov_b32", sCnt, 0)
        e.S("s_mov_b64", sOk, 0)
        e.S("s_add_u32", sB, sBase, val)
        va, vb, sa, sb = vFl, vFl, sFRL, sFRG
        if kind == "both":
            va, vb, sa, sb = TMP[53], TMP[54], 0, 0
            e.V("v_cmp_gt_u32", VCC, 2, vG)
            e.V("v_mov_b32", va, sFC)
            e.V("v_mov_b32", vb, sFRL)
            e.V("v_cndmask_b32", va, vb, va, VCC)
            e.V("v_add_u32", va, va, vFl)
            e.V("v_mov_b32", vb, FLG_RG - FLG_RL)
            e.V("v_cndmask_b32", vb, vb, 0, VCC)
            e.V("v_add_u32", vb, va, vb)
        e.label(loop)

        def chk():
            e.misc("s_waitcnt vmcnt(0)")
            e.misc(f"v_subrev_u32 {t}, {sB}, {t}")
            e.misc(f"v_cmp_ge_u32 vcc, {8 - val}, {t}")
            e.misc(f"s_or_b64 {sOk}, {sOk}, vcc")
            e.misc(f"s_cmp_eq_u64 {sOk}, -1")
            e.misc(f"s_cbranch_scc1 {skip}")
        e.misc(f"buffer_load_dword {t}, {va}, {WS}, {sa} offen sc1")
        e.misc("s_add_u32 %s, %s, 1" % (sCnt, sCnt))
        chk()
        if kind == "both":
            e.misc("s_sleep 3")
        e.misc(f"s_and_b32 {sA}, {sCnt}, 3")
        e.misc(f"s_cbranch_scc1 {loop}")
        e.misc(f"buffer_load_dword {t}, {vb}, {WS}, {sb} offen sc1")
        chk()
        e.misc(f"s_cmp_lt_u32 {sCnt}, 0x40000")
        e.misc(f"s_cbranch_scc1 {loop}")
        e.cond_end()
        e.label(skip)

    def flag(self, kind, val):
        e = self.e
        lst = [(1, sFRG, "sc1", sC), (2, sFRL, "", sC)] if kind != "col" else []
        if kind != "row":
            lst.append((3, sFC, "sc1", sR))
        for w, sb, m, sidx in lst:
            skip = e.newlabel("noflag")
            e.S("s_cmp_lg_u32", sWave, w)
            e.branch("s_cbranch_scc1", skip)
            e.cond_begin()
            e.S("s_lshl_b32", sA, sidx, 2)
            e.V("v_mov_b32", TMP[54], sA)
            e.S("s_add_u32", sA, sBase, val)
            e.V("v_mov_b32", TMP[55], sA)
            e.S("s_mov_b64", EXEC, 1)
            e.bstore(TMP[55], TMP[54], WS, sb, 0, m)
            e.S("s_mov_b64", EXEC, -1)
            e.cond_end()
            e.label(skip)

    def handoff(self, val, ops, shadow=None, touch=()):
        e = self.e
        t_st = e.T
        self.deadline = lambda: t_st + self.opt.get("topup", 1100)
        self.own_end = 0
        while self.dma_ok():
            next(self.dmaf)
        e.wait_all_lg()
        self.ring_barrier(self.cons + FI + self.opt.get("ahead", 16), ops)
        self.hold = None
        self.flag("row", val)
        self.stamp("flag")
        t_flag = e.T
        if self.opt.get("post_touch", 0):
            for k, (vo, sb, add, off) in enumerate(touch):
                sr = sE if k % 2 else sD
                e.S("s_add_u32", sr, sb, add)
                e.touch(vDum, vo, WS, sr, off, "sc1", cls=(750, 66, 30))
        self.deadline = lambda: t_flag + self.opt.get("topup2", 950)
        while self.dma_ok():
            next(self.dmaf)
        self.prime()
        if shadow:
            shadow()
        self.poll("row", val)
        e.T = max(e.T, t_flag + 1000)
        e.barrier()
        self.stamp("go")

    def phaseA(self, p):
        e = self.e
        opt = self.opt
        xv = 2 * p
        acc = lambda T, u: ACC[(T * 2 + u) * 4:(T * 2 + u) * 4 + 4]
        xf = lambda ks, u: a((ks * 2 + u) * 4, 4) if ks < 20 else XE[u]
        if p == 0:
            for _ in range(opt.get("first_groups", 3)):
                for _ in self.dma_group():
                    pass
        self.stats_loads(xv)
        al = self.ALoad(self, vAx, (sXr, XB[xv]), 20)
        al.upto(opt.get("adist", 8) - 1)
        fl0 = [self.stats_gen(True)]
        if p == 0:
            e.wait_all_lg()
            self.ring_barrier(FI + 8, self.ops2)
            self.flag("col", 2)
            self.prime()
            self.stamp("start")
            fl0.append(self.w2_gen())
        i0 = self.seqstart[("A1", p)]
        fb = 102
        sst, sad = self.scratch(28, self.seq[i0 + fb][0])
        self.hold = sst

        def mf(t, W, u):
            ks, T = divmod(t, 5)
            e.mfma(acc(T, u), xf(ks, u), W, acc(T, u) if ks else 0)
        self.run_pass(105, mf, 5, xf, fl0, chunk=(8 if p == 0 else 24), stop_reads=self.seqstart[("A4", p)], aload=al,
                      force_bar=fb, tail=6000,
                      late=None)
        assert sst + 28 <= self.freed
        self.stamp("A1")
        self.bg_on(5000)
        C2T = TMP[8:16] if p else ACC[40:48]
        for j in range(8):
            e.V("v_mul_f32", C2T[j], lit(LOG2E), RT[j])
        KF = [TMP[16:20], TMP[20:24], TMP[24:28]]
        VF = {3: TMP[28:32], 4: TMP[32:36], 2: TMP[36:40]}
        tt = [TMP[40:44], TMP[44:48]]
        TA0, TA1 = TMP[48], TMP[49]
        if p == 0:
            KF = [RES[0:4], RES[4:8], B2F[0:4]]
            VF = {3: B2F[4:8], 4: ACC[56:60], 2: ACC[60:64]}
            tt = [ACC[48:52], ACC[52:56]]
        n = 0
        for T in range(3):
            for u in range(2):
                for h in range(2):
                    t = tt[n % 2]
                    n += 1
                    self.phi_pair(acc(T, u)[2 * h:2 * h + 2], C2T[4 * u + 2 * h:4 * u + 2 * h + 2], False, t)
                    e.V("v_cvt_pk_bf16_f32", KF[T][2 * u + h], t[0], t[1])
        for T in (3, 4, 2):
            for u in range(2):
                for h in range(2):
                    x = acc(T, u)[2 * h:2 * h + 2]
                    e.V("v_pk_mul_f32", x, x, RT[4 * u + 2 * h:4 * u + 2 * h + 2])
            for u in range(2):
                for h in range(2):
                    x = acc(T, u)[2 * h:2 * h + 2]
                    e.V("v_cvt_pk_bf16_f32", VF[T][2 * u + h], x[0], x[1])
        for j in range(4):
            e.V("v_cndmask_b32", VF[2][j], VF[2][j], vOne, sMaskV)
        PR = [ACC[4 * i:4 * i + 4] for i in range(7)]
        prods = [(0, 3), (0, 2), (1, 4), (1, 2), (2, 3), (2, 4), (2, 2)]
        for i, (kt, vt) in enumerate(prods):
            e.mfma(PR[i], KF[kt], VF[vt], 0)
        e.S("s_mul_i32", sA, sWave, 7168)
        e.S("s_add_u32", sA, sA, sad)
        e.V("v_add_u32", TA0, sA, vL16)
        e.V("v_add_u32", TA1, sad, vKvSrc)
        for i in range(7):
            e.ds_write(TA0, PR[i], i * 1024)
        e.wait_all_lg()
        e.barrier()
        RD = [ACC[4 * w:4 * w + 4] for w in range(4)]
        for w in range(4):
            e.ds_read(RD[w], TA1, w * 7168)
        for h in range(2):
            e.V("v_pk_add_f32", RD[0][2 * h:2 * h + 2], RD[0][2 * h:2 * h + 2], RD[1][2 * h:2 * h + 2])
            e.V("v_pk_add_f32", RD[2][2 * h:2 * h + 2], RD[2][2 * h:2 * h + 2], RD[3][2 * h:2 * h + 2])
        for h in range(2):
            e.V("v_pk_add_f32", RD[0][2 * h:2 * h + 2], RD[0][2 * h:2 * h + 2], RD[2][2 * h:2 * h + 2])
        e.S("s_mul_i32", sA, sR, KVSZ)
        e.S("s_add_u32", sA, sA, sKv)
        e.S("s_add_u32", sA, sA, KVB[p])
        kvst = e.bstore(RD[0], vT16, WS, sA, 0, "sc1")
        self.bg_off()
        self.stamp("kvpub")
        PL = [ACC[4 * i:4 * i + 4] for i in range(10)] + [TMP[24 + 4 * i:28 + 4 * i] for i in range(6)]

        st2 = {}

        def barhook(t):
            def rel():
                self.hold = None

            def relflag():
                self.hold = None
                self.flag("col", 2)
            return [], rel

        def kvloads():
            for i in range(16):
                if i % 2 == 0:
                    e.S("s_add_u32", sB, sKv, KVB[p] + i * KVSZ); yield
                e.bload(PL[i], vT16, WS, sB, (i % 2) * KVSZ, "sc1", cls=(800, 80, 130)); yield

        def kvsum():
            for st in (1, 2, 4, 8):
                for i in range(0, 16, 2 * st):
                    for h in range(2):
                        e.V("v_pk_add_f32", PL[i][2 * h:2 * h + 2], PL[i][2 * h:2 * h + 2], PL[i + st][2 * h:2 * h + 2])
            e.V("v_cmp_u_f32", VCC, PL[0][0], PL[0][1])
            e.V("v_cmp_u_f32", sNan, PL[0][2], PL[0][3])
            e.S("s_or_b64", VCC, VCC, sNan)

        def mfq(t, W, u):
            ks, T = divmod(t, 3)
            e.mfma(acc(5 + T, u), W, xf(ks, u), acc(5 + T, u) if ks else 0)
        self.lastbar = self.rd - 8
        fl = [self.touch_gen([(vAx[0], sOo, OB[p], 0), (vAx[1], sOo, OB[p], 0), (vOh, sOoh, OB[p], 0), (vOh, sOoh, OB[p] + 20 * KB, 0)], p == 0)]
        if p == 0:
            fl = [self.local_gen()]
        self.run_pass(63, mfq, 3, xf, fl, stop_reads=self.seqstart[("A4", p)], hooks={"bar": barhook},
                      late=(opt.get("kvload_at", 30), kvloads()), see_all=True, force_bar=61, tail=1600 + self.opt.get("slack", 400))
        self.stamp("A2")
        self.bg_on(1600 + self.opt.get("slack", 400))
        PQ0 = [TMP[0:4], TMP[4:8]]
        PQ1 = [TMP[8:12], TMP[12:16]]
        tq = [TMP[16:20], TMP[20:24]]
        for u in range(2):
            c2 = vC2 if u == 0 else vC2b
            for h in range(2):
                self.phi_pair(acc(5, u)[2 * h:2 * h + 2], c2, True, tq[0])
                self.phi_pair(acc(6, u)[2 * h:2 * h + 2], c2, True, tq[1])
                e.V("v_cvt_pk_bf16_f32", PQ0[u][2 * h], tq[0][0], tq[1][0])
                e.V("v_cvt_pk_bf16_f32", PQ0[u][2 * h + 1], tq[0][1], tq[1][1])
            for h in range(2):
                self.phi_pair(acc(7, u)[2 * h:2 * h + 2], c2, True, tq[h])
                e.V("v_cvt_pk_bf16_f32", PQ1[u][h], tq[h][0], tq[h][1])
            e.V("v_mov_b32", PQ1[u][2], 0)
            e.V("v_mov_b32", PQ1[u][3], 0)
        self.bg_off()
        self.stamp("qepi")
        kvsum()
        lok, lre = e.newlabel("kvok"), e.newlabel("kvretry")
        e.branch("s_cbranch_scc0", lok)
        e.cond_begin()
        e.S("s_mov_b32", sCnt, 0)
        e.label(lre)
        e.misc("s_sleep 4")
        for _ in kvloads():
            pass
        kvsum()
        e.branch("s_cbranch_scc0", lok)
        e.S("s_add_u32", sCnt, sCnt, 1)
        e.S("s_cmp_lt_u32", sCnt, 0x10000)
        e.branch("s_cbranch_scc1", lre)
        e.cond_end()
        e.label(lok)
        self.stamp("kvgo")

        self.bg_on(900 + self.opt.get("slack", 400))
        e.V("v_cvt_pk_bf16_f32", TMP[16], PL[0][0], PL[0][1])
        e.V("v_cvt_pk_bf16_f32", TMP[17], PL[0][2], PL[0][3])
        e.ds_write(vKvDst, TMP[16:18])
        e.wait_all_lg()
        e.barrier()
        FR = [TMP[16 + 4 * i:20 + 4 * i] for i in range(10)]
        for T in range(3):
            for ks in range(2):
                e.ds_read(FR[T * 2 + ks], vL16, IMG + (T * 2 + ks) * KB)
        for ks in range(2):
            e.ds_read(FR[6 + ks], vZ01, ks * 64)
            e.ds_read(FR[8 + ks], vZ2, ks * 64)
        oa = lambda T, u: ACC[(T * 2 + u) * 4:(T * 2 + u) * 4 + 4]
        for T in (3, 4, 0, 1, 2):
            for u in range(2):
                e.mfma(oa(T, u), FR[2 * T], PQ0[u], 0)
        for T in (3, 4, 0, 1, 2):
            for u in range(2):
                e.mfma(oa(T, u), FR[2 * T + 1], PQ1[u], oa(T, u))
        e.S("s_add_u32", sA, sOo, OB[p])
        e.S("s_add_u32", sB, sOoh, OB[p])
        e.S("s_add_u32", sD, sOoh, OB[p] + 20 * KB)
        ops = []
        for u in range(2):
            for x in (oa(3, u)[0], oa(3, u)[2], oa(4, u)[0]):
                e.V("v_add_f32", x, vEps[0], x)
        for u in range(2):
            for x in (oa(3, u)[0], oa(3, u)[2], oa(4, u)[0]):
                e.V("v_rcp_f32", x, x)
        for u in range(2):
            for T in range(3):
                for h in range(2):
                    x = oa(T, u)[2 * h:2 * h + 2]
                    dn = oa(3, u)[2 * h:2 * h + 2] if T < 2 else oa(4, u)[0:2]
                    e.V("v_pk_mul_f32", x, x, dn, mods="op_sel_hi:[1,0]")
            o4 = TMP[16 + 8 * u:20 + 8 * u]
            o2 = TMP[20 + 8 * u:22 + 8 * u]
            for j in range(4):
                e.V("v_cvt_pk_bf16_f32", o4[j], oa(0, u)[j], oa(1, u)[j])
            for h in range(2):
                e.V("v_cvt_pk_bf16_f32", o2[h], oa(2, u)[2 * h], oa(2, u)[2 * h + 1])
            if u == 0:
                ops += self.gstore([(o4, vAx[u], sA, 0), (o2, vOh, sB, 0)], p == 0)
            else:
                ops += self.gstore([(o4, vAx[u], sA, 0), (o2, vOh, sD, 0)], p == 0)
        self.bg_off()
        self.stamp("A3")
        def shadow():
            if p == 0:
                self.unpack(RES, RES[10:20])
                self.unpack(B2F, B2F[10:20])
        self.handoff(4 * p + 2, ops, shadow, [(vAx[0], sOo, OB[p], 0), (vAx[1], sOo, OB[p], 0), (vOh, sOoh, OB[p], 0), (vOh, sOoh, OB[p] + 20 * KB, 0)])

    def phase64(self, p, kind):
        e = self.e
        opt = self.opt
        nks = 10 if kind == "O" else 27
        name = "A4" if kind == "O" else "B2"
        acc = lambda T, u: ACC[(u * 5 + T) * 4:(u * 5 + T) * 4 + 4]
        if kind == "O":
            al = self.ALoad(self, vAo, (sXr, OB[p]), nks)
        else:
            al = self.ALoad(self, vAh, (sHr, HB[p]), nks)
        al.upto(opt.get("adist", 8) - 1)
        xf = lambda ks, u: a((ks * 2 + u) * 4, 4)
        if kind == "C":
            e.ds_read(TMP[50], vRF)
        i0 = self.seqstart[(name, p)]
        fb = 5 * nks - 3
        sst, sad = self.scratch(20, self.seq[i0 + fb][0])
        self.hold = sst
        stop = i0 + 5 * nks

        def mf(t, W, u):
            ks, T = divmod(t, 5)
            e.mfma(acc(T, u), W, xf(ks, u), acc(T, u) if ks else 0)
        last = kind == "C" and p == 1
        xv = 2 * p + (1 if kind == "O" else 2)
        fl = [] if last else [self.touch_gen([(vXs, sOx, XB[xv], 0), (vXs, sOx, XB[xv], 1024), (vXh, sOxh, XB[xv], 0), (vStW, sOst, STB[xv], 0)])]
        self.run_pass(5 * nks, mf, 5, xf, fl, force_bar=fb, chunk=(12 if kind == "O" else opt.get("chunkC", 8)), stop_reads=stop, aload=al,
                      amix=(1, 0) if kind == "O" else tuple(opt.get("amixC", (3, 2))), tail=900 + self.opt.get("slack", 400))
        self.stamp(name)
        self.bg_on(900 + self.opt.get("slack", 400))
        e.V("v_add_u32", TMP[0], sad, vXch)
        e.S("s_xor_b32", sA, sWave, 1)
        e.S("s_mul_i32", sA, sA, 5120)
        e.S("s_add_u32", sA, sA, sad)
        e.V("v_add_u32", TMP[1], sA, vL16)
        assert sst + 20 <= self.freed
        for T in range(5):
            e.ds_write(TMP[0], acc(T, 1), T * KB)
        e.wait_all_lg()
        e.barrier()
        PT = TMP[4:24]
        for T in range(5):
            e.ds_read(PT[4 * T:4 * T + 4], TMP[1], T * KB)
        own = ACC[0:20]
        if kind == "C":
            e.V("v_mul_f32", TMP[50], TMP[50], TMP[50])
        for h in range(10):
            x = own[2 * h:2 * h + 2]
            e.V("v_pk_add_f32", x, x, PT[2 * h:2 * h + 2])
            if kind == "O":
                e.V("v_pk_add_f32", x, x, RES[2 * h:2 * h + 2])
            else:
                e.V("v_pk_fma_f32", x, x, TMP[50:52], RES[2 * h:2 * h + 2], mods="op_sel_hi:[1,0,1]")
        PK = TMP[24:34]
        for a_ in range(2):
            for j in range(4):
                e.V("v_cvt_pk_bf16_f32", PK[4 * a_ + j], own[8 * a_ + j], own[8 * a_ + 4 + j])
        for h in range(2):
            e.V("v_cvt_pk_bf16_f32", PK[8 + h], own[16 + 2 * h], own[16 + 2 * h + 1])
        self.bg_off()
        if last:
            om = self.opt.get("outmod", "")
            e.bstore(PK[0:4], vOut, OUT, 0, 0, om)
            e.bstore(PK[4:8], vOut, OUT, 0, 64, om)
            e.bstore(PK[8:10], vOut4, OUT, 0, 128, om)
            self.stamp("end")
            return
        xv = 2 * p + (1 if kind == "O" else 2)
        ops = []
        e.S("s_add_u32", sA, sOx, XB[xv])
        e.S("s_add_u32", sB, sOxh, XB[xv])
        e.S("s_add_u32", sD, sOst, STB[xv])
        ops += self.gstore([(PK[0:4], vXs, sA, 0), (PK[4:8], vXs, sA, 1024), (PK[8:10], vXh, sB, 0)])
        sm, sq, t0 = TMP[36], TMP[37], TMP[38]
        e.V("v_mov_b32", sm, 0)
        e.V("v_mov_b32", sq, 0)
        for j in range(10):
            e.V("v_dot2c_f32_bf16", sm, PK[j], vOne)
            e.V("v_dot2c_f32_bf16", sq, PK[j], PK[j])
        e.V("v_permlane32_swap_b32", sm, sq)
        e.V("v_add_f32", sm, sm, sq)
        e.V("v_mov_b32", t0, sm)
        e.V("v_permlane16_swap_b32", sm, t0)
        e.V("v_add_f32", sm, sm, t0)
        ops += self.gstore([(sm, vStW, sD, 0)])
        self.stamp(name + "epi")

        def shadow():
            self.unpack(RES, PK)
            if kind == "O":
                for h in range(10):
                    x = RES[2 * h:2 * h + 2]
                    e.V("v_pk_add_f32", x, x, B2F[2 * h:2 * h + 2])
        self.handoff(4 * p + (3 if kind == "O" else 5), ops, shadow,
                     [(vStW, sOst, STB[xv], 0), (vXs, sOx, XB[xv], 0), (vXs, sOx, XB[xv], 1024), (vXh, sOxh, XB[xv], 0)])

    def phaseB1(self, p):
        e = self.e
        opt = self.opt
        xv = 2 * p + 1
        acc = lambda T, u: ACC[(T * 2 + u) * 4:(T * 2 + u) * 4 + 4]
        xf = lambda ks, u: a((ks * 2 + u) * 4, 4) if ks < 20 else XE[u]
        self.stats_loads(xv)
        al = self.ALoad(self, vAx, (sXr, XB[xv]), 20)
        al.upto(opt.get("adist", 8) - 1)
        stop = self.seqstart[("B2", p)]

        def mf(t, W, u):
            ks, T = divmod(t, 4)
            e.mfma(acc(T, u), W, xf(ks, u), acc(T, u) if ks else 0)
        tl = [(vHs, sOh, HB[p] + u * 54 * KB, a_ * KB) for a_ in range(3) for u in range(2)] + [(vHh, sOhh, HB[p] + u * 54 * KB, 0) for u in range(2)]
        self.run_pass(84, mf, 4, xf, [self.stats_gen(False), self.touch_gen(tl, p == 0)], stop_reads=stop, aload=al, tail=2100 + 300 + self.opt.get("slack", 400))
        self.stamp("B1a")
        ops = []

        def epi(pairs, single):
            n = 0
            for u in range(2):
                sb = sD if u == 0 else sE
                e.S("s_add_u32", sb, sOh, HB[p] + u * 54 * KB); yield
                for a_ in pairs:
                    o = TMP[16 + 4 * (n % 4):20 + 4 * (n % 4)]
                    n += 1
                    for j in range(4):
                        x, y = acc(2 * a_, u)[j], acc(2 * a_ + 1, u)[j]
                        e.V("v_mul_f32_e64", x, x, f"|{x}|"); yield
                        e.V("v_mul_f32_e64", y, y, f"|{y}|"); yield
                        e.V("v_cvt_pk_bf16_f32", o[j], x, y); yield
                        e.V("v_pk_max_i16", o[j], o[j], 0); yield
                    ops.extend(self.gstore([(o, vHs, sb, a_ * KB)], p == 0)); yield
            if single:
                for u in range(2):
                    o = TMP[32 + 2 * u:34 + 2 * u]
                    for j in range(4):
                        x = acc(6, u)[j]
                        e.V("v_mul_f32_e64", x, x, f"|{x}|"); yield
                    for h in range(2):
                        e.V("v_cvt_pk_bf16_f32", o[h], acc(6, u)[2 * h], acc(6, u)[2 * h + 1]); yield
                        e.V("v_pk_max_i16", o[h], o[h], 0); yield
                e.S("s_add_u32", sA, sOhh, HB[p])
                e.S("s_add_u32", sB, sOhh, HB[p] + 54 * KB)
                ops.extend(self.gstore([(TMP[32:34], vHh, sA, 0), (TMP[34:36], vHh, sB, 0)], p == 0))
                yield

        def mf2(t, W, u):
            ks, T = divmod(t, 3)
            e.mfma(acc(4 + T, u), W, xf(ks, u), acc(4 + T, u) if ks else 0)
        self.run_pass(63, mf2, 3, xf, [epi([0, 1], False)], stop_reads=stop, force_bar=61, chunk=opt.get("chunkB", 16), tail=300 + self.opt.get("slack", 400))
        self.stamp("B1b")
        for _ in epi([2], True):
            pass
        self.stamp("B1epi")
        self.handoff(4 * p + 4, ops, None, tl)

    def gen(self):
        e = self.e
        e.reset_state()
        self.cInvD = s(63)
        self.dmaf = self.dma_filler()
        self.prologue()
        self.stamp("entry")
        if self.opt.get("stamps"):
            e.memtime(sTm, True)
            e.V("v_writelane_b32", v(53), sTm[0], 62)
        self.startup()
        stop = self.opt.get("stop", 99)
        n = 0
        for p in range(2):
            for f in (lambda: self.phaseA(p), lambda: self.phase64(p, "O"), lambda: self.phaseB1(p), lambda: self.phase64(p, "C")):
                if n < stop:
                    f()
                n += 1
        if self.opt.get("stamps"):
            e.wait_all_vm()
            e.memtime(sTm, True)
            e.V("v_writelane_b32", v(53), sTm[0], 63)
            e.S("s_lshl_b32", sA, s(2), 2)
            e.S("s_add_u32", sA, sA, sWave)
            e.S("s_lshl_b32", sA, sA, 8)
            e.S("s_add_u32", sA, sA, STAMP)
            e.V("v_lshlrev_b32", TMP[1], 2, vLane)
            e.bstore(v(53), TMP[1], WS, sA)
        e.S("s_add_u32", sA, s(2), sWave)
        e.S("s_cmp_lg_u32", sA, 0)
        e.branch("s_cbranch_scc1", "main_end")
        e.S("s_add_u32", sA, sBase, 16)
        e.V("v_mov_b32", TMP[0], sA)
        e.V("v_mov_b32", TMP[1], EPOCH)
        e.S("s_mov_b64", EXEC, 1)
        e.bstore(TMP[0], TMP[1], WS, 0)
        e.label("main_end")
        e.misc("s_endpgm")
```

```python
from asmgen import *
from layout import *
from gen_prep import mk_srd, allreduce_g
import math

BIG = 0x40000000
LOG2E = 1.4426950408889634
LN2 = 0.6931471805599453

IMG = 0
ZT = 6144
RST = 6400
DUMMY = 6912
RING = 8192
RB = 152
LDS_BYTES = RING + RB * KB
FI = 8

WS, OUT, XIN, SB2 = s(8, 4), s(12, 4), s(16, 4), s(20, 4)
sWave, sR, sC, sCG, sRH, sKH, sW2048 = [s(24 + i) for i in range(7)]
sSeg = {"A": s(31), "O": s(32), "B": s(33), "C": s(34)}
sXr, sHr, sSTr, sFRL, sFRG, sFC = [s(35 + i) for i in range(6)]
sA, sB, sD, sE, sDm, sLd = [s(41 + i) for i in range(6)]
sMaskV = s(48, 2)
sCnt = s(50)
sTT = s(51)
sTm = s(52, 2)
sOx, sOxh, sOst, sOo, sOoh, sOh, sOhh, sKv = [s(54 + i) for i in range(8)]
sLocal, sX1 = s(47), s(62)
sNan = s(90, 2)
sBase = s(92)
sOk = s(94, 2)
SR1, SR2 = s(84, 4), s(96, 4)
PP = s(64, 16)
pOut, pWs = s(80, 2), s(82, 2)
vDum = v(49)

vLane, vN, vG, vL16 = v(1), v(2), v(3), v(4)
vW = [v(5), v(6), v(7)]
vK = [v(8), v(9), v(10)]
vDma = v(11)
vAx = [v(12), v(13)]
vAo = [v(14), v(15)]
vAh = [v(16), v(17)]
vSt, vStW, vKvSrc, vKvDst, vT16, vZ01, vZ2, vRT, vRW, vRF, vOut, vOut4, vOne = [v(18 + i) for i in range(13)]
vOh, vXs, vXh, vHs, vHh, vFl, vPollR, vPollC, vXch = [v(31 + i) for i in range(9)]
XE = [v(40, 4), v(44, 4)]
vC2 = v(48, 2)
vC2b = v(50, 2)
vLn2 = v(52, 2)
vEps = v(54, 2)
RT = v(56, 8)
ACC = v(64, 64)
FIFO = v(128, 4 * FI)
RES = v(160, 20)
B2F = v(180, 20)
TMP = v(200, 56)


class Main:
    def __init__(self, e, opt):
        self.e = e
        self.opt = opt
        self.kname = opt["kname"]
        self.nstamp = 0
        self.segs = []
        pos = 0
        for p in range(2):
            for k, n in (("A", NA), ("O", NO), ("B", NB), ("C", NC)):
                self.segs.append((k, pos, n))
                pos += n
        self.total = pos
        self.ngroups = pos // 8
        self.issued = 0
        self.dmaop = {}
        self.freed = 0
        self.hold = None
        self.visible = 0
        self.seq = []
        self.seqstart = {}
        for p in range(2):
            b = self.segs[4 * p + 0][1]
            self.seqstart[("A1", p)] = len(self.seq)
            self.seq += [(b + i, "W") for i in range(105)]
            self.seqstart[("A2", p)] = len(self.seq)
            self.seq += [(b + 105 + i, "W") for i in range(63)]
            b = self.segs[4 * p + 1][1]
            self.seqstart[("A4", p)] = len(self.seq)
            self.seq += [(b + 2 * i, "K") for i in range(50)]
            b = self.segs[4 * p + 2][1]
            self.seqstart[("B1a", p)] = len(self.seq)
            self.seq += [(b + i, "W") for i in range(84)]
            self.seqstart[("B1b", p)] = len(self.seq)
            self.seq += [(b + 84 + i, "W") for i in range(63)]
            b = self.segs[4 * p + 3][1]
            self.seqstart[("B2", p)] = len(self.seq)
            self.seq += [(b + 2 * i, "K") for i in range(135)]
        self.rd = 0
        self.cons = 0
        self.lastbar = 0
        self.gate = NA // 8
        self.warn = []
        self.model = []
        self.own_end = 0
        self.deadline = lambda: 1 << 30

    def stamp(self, name):
        self.model.append((name, self.e.T))
        if not self.opt.get("stamps"):
            return
        e = self.e
        e.wait_all_lg()
        e.memtime(sTm)
        e.V("v_writelane_b32", v(53), sTm[0], self.nstamp)
        self.opt.setdefault("stampnames", []).append(name)
        self.nstamp += 1
        assert self.nstamp <= 64

    def endpos(self, i):
        p, k = self.seq[i]
        return p + (2 if k == "K" else 1)

    def ldsaddr(self, pos):
        return RING + (pos % RB) * KB

    def can_issue(self):
        if self.issued >= min(self.ngroups, self.gate):
            return False
        lim = self.freed if self.hold is None else min(self.freed, self.hold)
        return 8 * (self.issued + 1) <= lim + RB

    def dma_group(self):
        e = self.e
        g = self.issued
        self.issued += 1
        pos = 8 * g
        for k, b, n in self.segs:
            if b <= pos < b + n:
                break
        e.S("s_add_u32", M0, sW2048, self.ldsaddr(pos))
        yield
        e.S("s_add_u32", sDm, sSeg[k], (pos - b) * KB)
        yield
        md = "nt" if k in self.opt.get("ntseg", "") else ""
        e.dma(vDma, WS, sDm, 0, md, cls=self.dcls(k))
        yield
        self.dmaop[g] = e.dma(vDma, WS, sDm, 1024, md, cls=self.dcls(k))
        yield

    def dcls(self, k):
        return (750, 80, self.opt.get("svcAB", 150)) if k in "AB" else (750, self.opt.get("svcOC", 92), 75)

    def dma_ok(self):
        e = self.e
        if self.mid_group():
            g = self.issued - 1
        elif self.can_issue():
            g = self.issued
        else:
            return False
        if e.outstanding() >= self.opt.get("qmax", 13):
            return False
        if self.mid_group() or 8 * g < self.own_end:
            return True
        c = self.dcls(self.segof(8 * g))
        return e.predict(c) + c[2] <= self.deadline()

    def dma_filler(self):
        while True:
            if self.can_issue():
                for _ in self.dma_group():
                    yield True
            else:
                yield False

    def flush_dma_partial(self):
        while self.issued > 0 and (self.issued - 1) not in self.dmaop:
            next(self.dmaf)

    def dma_all(self):
        self.flush_dma_partial()
        while self.can_issue():
            for _ in self.dma_group():
                pass

    def ring_barrier(self, need_idx, extra_ops=(), free_all=False):
        e = self.e
        need_idx = min(need_idx, len(self.seq))
        upto = self.endpos(need_idx - 1) if need_idx > 0 else 0
        g = (upto + 7) // 8
        self.flush_dma_partial()
        while self.issued < g:
            assert self.can_issue(), ("ring deadlock", self.issued, g, self.freed, self.hold)
            self.warn.append(f"forced dma group {self.issued} at seq {self.rd}")
            for _ in self.dma_group():
                pass
        ops = list(extra_ops)
        for gg in range(self.visible // 8, g):
            ops.append(self.dmaop[gg])
        e.wait_ops(ops)
        e.barrier()
        self.visible = max(self.visible, 8 * g)
        self.freed = self.seq[self.cons][0] if self.cons < len(self.seq) else self.total
        self.lastbar = self.rd

    def issue_read(self):
        e = self.e
        i = self.rd
        if i >= len(self.seq):
            return
        pos, k = self.seq[i]
        assert self.endpos(i) <= self.visible, ("read of invisible block", i, pos, self.visible)
        ad = self.ldsaddr(pos)
        base = (vW if k == "W" else vK)[ad >> 16]
        slot = i % FI
        e.ds_read(FIFO[4 * slot:4 * slot + 4], base, ad & 0xffff)
        self.rd += 1

    def prime(self):
        while self.rd < self.cons + FI and self.rd < len(self.seq) and self.endpos(self.rd) <= self.visible:
            self.issue_read()

    def run_pass(self, n, mf, ntile, xf, fillers=(), chunk=24, stop_reads=None, hooks=None,
                 aload=None, vrate=0.5, amix=(1, 0), over=0, force_bar=None, late=None, see_all=False, tail=2000):
        e = self.e
        fillers = list(fillers)
        lim = stop_reads if stop_reads is not None else len(self.seq)
        st = {"next": 0, "k": 0, "t": 0}
        self.own_end = self.endpos(lim - 1)
        self.deadline = lambda: e.T + (n - st["t"]) * 33 + tail

        i_first = self.cons

        def dma_need():
            g = self.issued - 1 if self.mid_group() else self.issued
            for i in range(self.cons, lim):
                if self.endpos(i) > 8 * g:
                    return i - i_first - FI - chunk
            return 1 << 20

        def one_vmem():
            na, nd = amix
            n0 = len(e.vm)
            if st.get("late"):
                if e.T < st["next"]:
                    return False
                try:
                    next(st["late"])
                except StopIteration:
                    st["late"] = None
                    return False
            else:
                na_ = (aload.n // 2) * ntile if (aload is not None and not aload.done) else 1 << 21
                nd_ = dma_need() if (self.mid_group() or self.can_issue()) else 1 << 22
                urgent = min(na_, nd_) - st["t"] <= self.opt.get("horizon", 24)
                if e.T < st["next"] and not urgent:
                    return False
                if na_ <= nd_:
                    if na_ >= 1 << 21 or (e.outstanding() >= self.opt.get("qmax", 13) and not urgent):
                        return False
                    aload.step()
                elif urgent or self.dma_ok():
                    next(self.dmaf)
                else:
                    return False
            if len(e.vm) > n0:
                st["k"] += 1
                st["next"] = e.T + self.opt.get("vgap", 24)
            return True

        def fill(budget):
            while budget > 0:
                n0 = e.ninst
                did = one_vmem()
                if not did:
                    for f in list(fillers):
                        try:
                            if next(f) == "idle":
                                continue
                            did = True
                            break
                        except StopIteration:
                            fillers.remove(f)
                if not did:
                    return
                budget -= e.ninst - n0

        def waits_for(t):
            regs = []
            for tt in (t, t + 1):
                if tt < n:
                    ks = tt // ntile
                    if aload is not None:
                        aload.upto(ks)
                    idx = self.cons + (tt - t)
                    if idx < self.rd:
                        regs += FIFO[4 * (idx % FI):4 * (idx % FI) + 4].regs()
                    regs += xf(ks, 0).regs() + xf(ks, 1).regs()
            return e._pending(regs)

        e.wait_ops(waits_for(0))
        if aload is not None:
            self.stamp("1st")
            self.warn.append(f"fill {8 * self.issued - self.seq[self.cons][0]}")
        for t in range(n):
            if aload is not None and self.opt.get("midstamp") and t == n // 2:
                self.stamp("half")
            i = self.cons
            assert self.rd > i, ("fifo underrun", i)
            W = FIFO[4 * (i % FI):4 * (i % FI) + 4]
            st["t"] = t
            ov = over if fillers else 0
            mf(t, W, 0)
            bar = self.rd < lim and (self.endpos(self.rd) > self.visible or self.rd - self.lastbar >= chunk)
            bar = bar or t == force_bar
            if late and t >= late[0] and not st.get("lateon") and (aload is None or aload.done) and 8 * self.issued >= min(self.own_end, self.endpos(min(i_first + n + FI, lim) - 1)) and not self.mid_group():
                st["late"] = late[1]
                st["lateon"] = True
                self.warn.append(f"late at {t}")
            if bar:
                ex, after = [], None
                if hooks and hooks.get("bar"):
                    ex, after = hooks["bar"](t)
                self.ring_barrier(lim if see_all else min(self.rd + chunk, lim), ex)
                if after:
                    after()
            else:
                fill(2 + ov)
            mf(t, W, 1)
            self.cons += 1
            used = 0
            if self.rd < lim:
                self.issue_read()
                used = 1
            pend = waits_for(t + 1) if (t % 2 == 1 and t + 1 < n) else []
            fill(2 + ov - used - (1 if pend else 0))
            if pend:
                e.wait_ops(waits_for(t + 1))
        if late and not st.get("lateon"):
            st["late"] = late[1]
        for f in fillers + ([st["late"]] if st.get("late") else []):
            for _ in f:
                pass

    def segof(self, pos):
        for k, b, n in self.segs:
            if b <= pos < b + n:
                return k
        return "O"

    def mid_group(self):
        return self.issued > 0 and (self.issued - 1) not in self.dmaop

    def dma_burst(self, maxgroups=99):
        e = self.e
        self.flush_dma_partial()
        gs = []
        while self.can_issue() and len(gs) < maxgroups:
            gs.append(self.issued)
            self.issued += 1
        for w in (1, 2, 3):
            mine = gs[w - 1::3]
            if not mine:
                continue
            skip = e.newlabel("noburst")
            e.S("s_cmp_lg_u32", sWave, w)
            e.branch("s_cbranch_scc1", skip)
            e.cond_begin()
            for g in mine:
                pos = 8 * g
                for k, b, n in self.segs:
                    if b <= pos < b + n:
                        break
                for h in range(2):
                    e.S("s_mov_b32", M0, self.ldsaddr(pos) + h * 4096)
                    e.S("s_add_u32", sDm, sSeg[k], (pos - b) * KB + h * 4096)
                    for q in range(4):
                        self.dmaop[g] = e.dma(vL16, WS, sDm, q * 1024)
            e.cond_end()
            e.label(skip)

    def prologue(self):
        e = self.e
        e.S("s_cmp_ge_u32", s(2), 256)
        e.branch("s_cbranch_scc1", "main_end")
        if self.opt.get("stamps"):
            e.V("v_mov_b32", v(53), 0)
        self.stamp("t0")
        if self.opt.get("spin"):
            e.memtime(sTm, True)
            e.V("v_mov_b32", v(51), sTm[0])
        e.sload(PP, s(0, 2), 0)
        e.sload(pOut, s(0, 2), 64)
        e.sload(pWs, s(0, 2), 80)
        T0, T1, T2, T3 = TMP[48], TMP[49], TMP[50], TMP[51]
        e.S("s_getpc_b64", s(88, 2))
        e.label("main_pc")
        e.V("v_lshlrev_b32", T2, 5, v(0))
        e.S("s_sub_u32", s(88), s(88), "main_pc-" + self.kname)
        e.S("s_subb_u32", s(89), s(89), 0)
        e.misc(f"global_load_dword {vDum}, {T2}, s[88:89]")
        e._vm([], (2000, 30, 0))
        e.V("v_lshrrev_b32", T0, 6, v(0))
        e.V("v_and_b32", vLane, 63, v(0))
        e.V("v_readfirstlane_b32", sWave, T0)
        e.S("s_lshr_b32", sB, s(2), 3)
        e.S("s_mul_i32", sB, sB, 1792)
        e.S("s_add_u32", sB, sB, 8192)
        e.V("v_lshl_add_u32", T2, v(0), 3, sB)
        e.V("v_min_u32", T2, self.opt.get("code_bytes", 32768) - 4, T2)
        e.misc(f"global_load_dword {vDum}, {T2}, s[88:89]")
        e._vm([], (2000, 30, 0))
        e.V("v_lshlrev_b32", vL16, 4, vLane)
        e.V("v_and_b32", vN, 15, vLane)
        e.V("v_lshrrev_b32", vG, 4, vLane)
        self.vBig = TMP[52]
        e.V("v_mov_b32", self.vBig, BIG)
        e.S("s_and_b32", sA, s(2), 7)
        e.S("s_lshl_b32", sA, sA, 1)
        e.S("s_lshr_b32", sB, s(2), 7)
        e.S("s_add_u32", sR, sA, sB)
        e.S("s_bfe_u32", sC, s(2), (4 << 16) | 3)

    def gather(self, raw, srd, sstride, vaddr, srow, n=8):
        e = self.e
        e.S("s_mul_i32", sLd, srow, sstride)
        for i in range(n):
            e.bload(raw[i], vaddr, srd, sLd, 0, w="ushort", cls=(2500, 32, 0))
            if i < n - 1:
                e.S("s_add_u32", sLd, sLd, sstride)

    def pack(self, raw, n=4):
        for i in range(n):
            self.e.V("v_lshl_or_b32", raw[i], raw[2 * i + 1], 16, raw[2 * i])

    def colsum(self, regs, ex, vs, vt):
        e = self.e
        e.V("v_mov_b32", vs, 0)
        for r_ in regs:
            e.V("v_dot2c_f32_bf16", vs, r_, vOne)
        allreduce_g(e, vs, vt)
        e.V("v_sub_f32", vs, 0, vs)
        e.V("v_cvt_pk_bf16_f32", vt, vs, vs)
        e.V("v_lshlrev_b32", vt, 16, vt)
        e.V("v_sub_f32", vt, vs, vt)
        e.V("v_cvt_pk_bf16_f32", ex[0], vs, vt)
        e.V("v_and_b32", ex[1], "0xffff", ex[0])

    def startup(self):
        e = self.e
        vBig = self.vBig
        RAW1, EX = ACC[0:20], ACC[20:24]
        RAW2 = TMP[0:48]
        vCol, vReg, vLeft, vT0, vT1, vSum, vLd = [FIFO[i] for i in range(7)]
        vA0, vA1, vA2, vSt2, vBias = RES[8], RES[9], B2F[8], B2F[9], TMP[50]
        sT, sP = s(54), s(55)
        sStr = s(56)
        e.S("s_lshr_b32", sP, sR, 1)
        e.S("s_and_b32", sT, sR, 1)
        e.S("s_lshl_b32", sT, sT, 2)
        e.S("s_add_u32", sT, sT, sWave)
        e.S("s_mov_b32", s(4), (656 << 20) | (660 << 10) | 640)
        e.S("s_mov_b32", s(5), 0)
        e.S("s_mul_i32", sA, sT, 10)
        e.S("s_lshr_b32", sA, s(4), sA)
        e.S("s_and_b32", sA, sA, 1023)
        for t, val in ((3, 1280), (4, 1300), (5, 0), (6, 1), (7, 32)):
            e.S("s_cmp_eq_u32", sT, t)
            e.S("s_cselect_b32", sA, val, sA)
        e.S("s_mul_i32", sB, sC, 40)
        e.S("s_add_u32", sA, sA, sB)
        e.V("v_add_u32", vCol, sA, vN)
        e.V("v_add_u32", vT0, vCol, vN)
        e.S("s_sub_u32", sB, sT, 5)
        e.S("s_cmp_lt_u32", sB, 2)
        e.S("s_cselect_b64", VCC, -1, 0)
        e.V("v_cndmask_b32", vCol, vCol, vT0, VCC)
        e.V("v_lshrrev_b32", vT0, 3, vN)
        e.V("v_mul_u32_u24", vT0, 632 - 32, vT0)
        e.V("v_lshrrev_b32", vT1, 2, vN)
        e.V("v_lshl_add_u32", vT0, vT1, 4, vT0)
        e.V("v_add3_u32", vT0, vT0, vN, sA)
        e.S("s_cmp_eq_u32", sT, 2)
        e.S("s_cselect_b64", VCC, -1, 0)
        e.V("v_cndmask_b32", vCol, vCol, vT0, VCC)
        e.V("v_lshlrev_b32", vCol, 1, vCol)
        e.S("s_cmp_eq_u32", sT, 7)
        e.S("s_cselect_b32", sB, 8, 16)
        e.V("v_cmp_le_u32", VCC, sB, vN)
        e.S("s_mov_b32", sStr, 3840)
        e.V("v_cndmask_b32", vCol, vCol, vBig, VCC)
        e.S("s_mov_b32", sD, 8 * 3840)
        e.V("v_mad_u32_u24", vReg, vG, sD, vCol)
        e.V("v_and_b32", vT0, 1, vG)
        e.V("v_lshrrev_b32", vT1, 1, vG)
        e.V("v_lshl_add_u32", vLd, vT0, 1, vT1)
        e.S("s_mov_b32", sD, 4 * 3840)
        e.V("v_mad_u32_u24", vLeft, vLd, sD, vCol)
        mk_srd(e, SR1, PP[2:4], D * 3 * D * 2)
        self.stamp("dec1")
        e.S("s_mul_i32", sB, sP, 80)
        self.gather(RAW1[0:8], SR1, sStr, vReg, sB)
        e.S("s_add_u32", sA, sB, 32)
        self.gather(RAW1[8:16], SR1, sStr, vReg, sA)
        e.S("s_add_u32", sA, sB, 64)
        self.gather(RAW1[16:20], SR1, sStr, vLeft, sA, 4)
        self.stamp("iss1")
        XJ = [RES[0:4], RES[4:8], B2F[0:4]]
        XD = [B2F[4], B2F[5], B2F[6]]
        XS = [ACC[32], ACC[33], ACC[34]]
        T0, T1, T2, T3 = TMP[48], TMP[49], TMP[50], TMP[51]
        mk_srd(e, XIN, PP[0:2], XSZ)
        e.V("v_lshrrev_b32", T1, 3, vLane)
        e.S("s_mul_i32", sA, sWave, 24)
        e.V("v_and_b32", T3, 7, vLane)
        e.S("s_lshl_b32", sE, sR, 4)
        e.S("s_add_u32", sE, sE, sC)
        e.S("s_mul_i32", sE, sE, 8 * 1280)
        e.S("s_mov_b32", sD, 1280)
        for k in range(3):
            q, c16 = XD[k], XS[k]
            e.S("s_add_u32", sB, sA, 8 * k)
            e.V("v_add_u32", q, sB, T1)
            e.V("v_lshrrev_b32", T0, 3, q)
            e.V("v_lshl_add_u32", c16, T0, 1, q)
            e.V("v_subrev_u32", T0, 64, q)
            e.V("v_lshrrev_b32", T2, 1, T0)
            e.V("v_lshl_add_u32", T0, T2, 3, T0)
            e.V("v_add_u32", T0, 8, T0)
            e.V("v_cmp_le_u32", VCC, 64, q)
            e.V("v_cndmask_b32", c16, c16, T0, VCC)
            e.V("v_lshlrev_b32", c16, 4, c16)
            e.V("v_mad_u32_u24", c16, T3, sD, c16)
            e.V("v_cmp_le_u32", VCC, 80, q)
            e.V("v_lshlrev_b32", q, 8, q)
            e.V("v_lshl_add_u32", q, T3, 4, q)
            e.V("v_cndmask_b32", c16, c16, vBig, VCC)
            e.V("v_cndmask_b32", q, q, vBig, VCC)
            e.bload(XJ[k], c16, XIN, sE, 0, cls=(2000, 100, 0))
        def r2touch():
            e.S("s_lshl_b32", sA, s(2), 2)
            e.S("s_add_u32", sA, sA, sWave)
            e.V("v_min_u32", T0, 17, vLane)
            e.V("v_lshlrev_b32", T0, 7, T0)
            e.S("s_mul_i32", sB, sA, 2160)
            mk_srd(e, SR2, PP[8:10], F * D * 2)
            e.touch(vDum, T0, SR2, sB, 0, cls=(2000, 30, 0))
            mk_srd(e, SR2, PP[12:14], F * D * 2)
            e.touch(vDum, T0, SR2, sB, 0, cls=(2000, 30, 0))
            e.V("v_min_u32", T0, 7 * 128, T0)
            mk_srd(e, SR2, PP[4:6], D * D * 2)
            e.S("s_mul_i32", sB, sA, 800)
            e.touch(vDum, T0, SR2, sB, 0, cls=(2000, 30, 0))
        if self.opt.get("r2touch", 3) == 1:
            r2touch()
        mk_srd(e, WS, pWs, WS_USED)
        e.sload(sBase, pWs, EPOCH)
        e.S("s_mov_b32", sA, "0x3f803f80")
        e.V("v_mov_b32", vOne, sA)
        self.stamp("issx")
        e.S("s_cmp_lt_u32", sT, 5)
        e.S("s_cselect_b32", sE, 5, 3)
        e.S("s_cselect_b32", sA, 0, 100)
        e.S("s_add_u32", sA, sA, sT)
        e.S("s_mul_i32", sB, sC, NA)
        e.S("s_add_u32", sA, sA, sB)
        e.S("s_add_u32", sA, sA, WA // KB)
        e.S("s_lshl_b32", sA, sA, 10)
        e.S("s_lshl_b32", sE, sE, 10)
        e.S("s_mul_i32", sB, sP, sE)
        e.S("s_lshl_b32", sB, sB, 1)
        e.S("s_add_u32", sB, sB, sA)
        ops1 = []
        self.pack(RAW1[0:8])
        ops1.append(e.bstore(RAW1[0:4], vL16, WS, sB, 0, "sc1", cls=(1000, 70, 0)))
        e.S("s_add_u32", sB, sB, sE)
        self.pack(RAW1[8:16])
        ops1.append(e.bstore(RAW1[8:12], vL16, WS, sB, 0, "sc1", cls=(1000, 70, 0)))
        e.S("s_lshr_b32", sB, sP, 1)
        e.S("s_add_u32", sB, sB, 16)
        e.S("s_mul_i32", sB, sB, sE)
        e.S("s_add_u32", sB, sB, sA)
        e.S("s_and_b32", sD, sP, 1)
        e.S("s_lshl_b32", s(4), sD, 9)
        e.S("s_add_u32", sB, sB, s(4))
        e.V("v_lshlrev_b32", vT0, 8, vG)
        e.V("v_and_b32", vT0, 256, vT0)
        e.V("v_lshl_add_u32", vT0, vN, 4, vT0)
        e.V("v_lshrrev_b32", vT1, 1, vG)
        e.V("v_lshl_add_u32", vLd, vT1, 3, vT0)
        self.pack(RAW1[16:20], 2)
        ops1.append(e.bstore(RAW1[16:18], vLd, WS, sB, 0, "sc1", cls=(1000, 40, 0)))
        self.colsum([RAW1[i] for i in (0, 1, 2, 3, 8, 9, 10, 11, 16, 17)], EX, vSum, vT0)
        e.S("s_mul_i32", sB, sE, 20)
        e.S("s_add_u32", sB, sB, sA)
        e.S("s_lshr_b32", sA, sP, 1)
        e.S("s_lshl_b32", sA, sA, 8)
        e.S("s_add_u32", sB, sB, sA)
        e.S("s_lshl_b32", sD, sD, 3)
        e.S("s_add_u32", sB, sB, sD)
        e.S("s_mov_b64", EXEC, "0xffff")
        ops1.append(e.bstore(EX[0:2], vL16, WS, sB, 0, "sc1", cls=(1000, 20, 0)))
        e.S("s_mov_b64", EXEC, -1)
        self.stamp("r1")
        if self.opt.get("r2touch", 3) == 2:
            r2touch()
        e.S("s_lshr_b32", sA, sC, 1)
        e.S("s_lshl_b32", sB, sR, 3)
        e.S("s_add_u32", sA, sA, sB)
        e.S("s_mul_i32", sA, sA, 20 * KB)
        e.S("s_and_b32", sB, sC, 1)
        e.S("s_lshl_b32", sB, sB, 7)
        e.S("s_add_u32", sA, sA, sB)
        e.S("s_add_u32", sA, sA, XB[0])
        ops1 += [e.bstore(XJ[k], XD[k], WS, sA, 0, "sc1", cls=(1000, 70, 0)) for k in range(3)]
        xs = ACC[26:28]
        xz = ACC[24:26]
        MK = ACC[28:32]
        for r_ in (xs[0], xs[1], xz[0], xz[1]):
            e.V("v_mov_b32", r_, 0)
        for k in range(3):
            for i in range(4):
                e.V("v_dot2c_f32_bf16", xs[0], XJ[k][i], vOne)
                e.V("v_dot2c_f32_bf16", xs[1], XJ[k][i], XJ[k][i])
        for h in range(2):
            e.V("v_add_f32_dpp", xs[h], xs[h], xs[h], mods="row_ror:8 row_mask:0xf bank_mask:0xf")
            allreduce_g(e, xs[h], vT0)
        e.S("s_lshl_b32", sA, sR, 3)
        e.S("s_add_u32", sA, sA, sWave)
        e.S("s_lshl_b32", sA, sA, 10)
        e.S("s_lshl_b32", sB, sC, 6)
        e.S("s_add_u32", sA, sA, sB)
        e.S("s_add_u32", sA, sA, STB[0])
        e.S("s_add_u32", sB, sA, 4096)
        e.V("v_lshlrev_b32", vT0, 3, vLane)
        e.S("s_mov_b64", EXEC, "0xff")
        ops1.append(e.bstore(xs, vT0, WS, sA, 0, "sc1", cls=(1000, 20, 0)))
        ops1.append(e.bstore(xz, vT0, WS, sB, 0, "sc1", cls=(1000, 20, 0)))
        e.S("s_mov_b64", EXEC, -1)
        for i in range(4):
            e.V("v_mov_b32", MK[i], -1)
        e.S("s_lshl_b32", sA, sC, 4)
        e.S("s_add_u32", sA, sA, sR)
        e.S("s_mul_i32", sA, sA, KVSZ)
        e.S("s_mul_i32", sB, sWave, 896)
        e.S("s_min_u32", sB, sB, KVSZ - 1024)
        e.S("s_add_u32", sA, sA, sB)
        e.S("s_add_u32", sA, sA, KVB[0])
        ops1.append(e.bstore(MK, vL16, WS, sA, 0, "sc1", cls=(1000, 70, 0)))
        self.stamp("xjob")
        e.S("s_and_b32", sCG, sC, 7)
        e.S("s_lshr_b32", sRH, sC, 3)
        if self.opt.get("r2touch", 3) == 3:
            r2touch()
        mk_srd(e, SB2, PP[14:16], D * 2)
        self.prologue2()
        self.stamp("pro2")
        sT, sP, sStr, sJ = s(88), s(89), s(100), s(101)
        rows = [s(3 + i) for i in range(5)] + [s(93)]
        D2 = [s(64), s(65), s(66), s(67), s(70), s(71), s(78)]
        mk_srd(e, SR1, PP[10:12], F * 2)
        e.S("s_lshl_b32", sJ, sRH, 4)
        e.S("s_add_u32", sJ, sJ, sR)
        e.S("s_lshl_b32", sJ, sJ, 2)
        e.S("s_add_u32", sJ, sJ, sWave)
        e.V("v_lshrrev_b32", vT0, 1, vG)
        e.V("v_and_b32", vT1, 1, vG)
        e.V("v_mov_b32", vSt2, vL16)
        e.V("v_mov_b32", vBias, vBig)
        e.S("s_mov_b32", D2[6], BIG)
        lo, lc, lj = e.newlabel("job_wo"), e.newlabel("job_w2"), e.newlabel("job_go")

        def cols(sbase, nsingle):
            e.S("s_lshr_b32", sB, sT, 1)
            e.S("s_lshl_b32", sB, sB, 5)
            e.S("s_add_u32", sA, sbase, sB)
            e.S("s_and_b32", sB, sT, 1)
            e.S("s_add_u32", sA, sA, sB)
            e.S("s_lshl_b32", sA, sA, 1)
            e.S("s_cmp_lt_u32", sT, nsingle)
            e.S("s_cselect_b32", sB, 4, 2)
            e.V("v_mul_u32_u24", vCol, sB, vN)
            e.V("v_add_u32", vCol, sA, vCol)

        def terms(stride, ca, cb):
            e.S("s_mov_b32", sStr, stride)
            e.S("s_mov_b32", sD, 8 * stride)
            e.V("v_mad_u32_u24", vReg, vG, sD, vCol)
            e.S("s_mov_b32", sD, ca * stride)
            e.V("v_mad_u32_u24", vLeft, vT0, sD, vCol)
            e.S("s_mov_b32", sD, cb * stride)
            e.V("v_mad_u32_u24", vLeft, vT1, sD, vLeft)

        def dests(kind):
            for b in range(6 if kind == "C" else 5):
                if kind == "B":
                    e.S("s_mul_i32", sD, D2[b], s(79))
                else:
                    half = 10 if kind == "O" else 27
                    e.S("s_mul_i32", sD, D2[b], 10)
                    e.S("s_cmp_ge_u32", D2[b], half)
                    e.S("s_cselect_b32", sA, 10 * half - 1, 0)
                    e.S("s_sub_u32", sD, sD, sA)
                e.S("s_add_u32", sD, sD, sE)
                e.S("s_lshl_b32", D2[b], sD, 10)

        def quarter_ks():
            e.S("s_lshl_b32", sA, sP, 2)
            for b in range(4):
                e.S("s_add_u32", D2[b], sA, b)
            e.S("s_add_u32", D2[4], sP, 16)
            e.S("s_mov_b32", D2[5], BIG)
            e.S("s_mov_b32", rows[5], 0)
            e.V("v_mov_b32", vA0, vReg)
            e.V("v_mov_b32", vA1, vLeft)
            e.V("v_mov_b32", vA2, vBig)

        e.S("s_cmp_ge_u32", sJ, 76)
        e.branch("s_cbranch_scc1", lc)
        e.S("s_cmp_ge_u32", sJ, 56)
        e.branch("s_cbranch_scc1", lo)
        e.cond_begin()
        mk_srd(e, SR2, PP[8:10], D * F * 2)
        e.S("s_mul_i32", sP, sJ, 9363)
        e.S("s_lshr_b32", sP, sP, 16)
        e.S("s_mul_i32", sA, sP, 7)
        e.S("s_sub_u32", sT, sJ, sA)
        e.S("s_lshr_b32", sJ, sP, 2)
        e.S("s_lshl_b32", sJ, sJ, 3)
        e.S("s_add_u32", sJ, sJ, sCG)
        e.S("s_and_b32", sP, sP, 3)
        e.S("s_mul_i32", sE, sJ, 112)
        e.S("s_max_u32", sB, sJ, 12)
        e.S("s_sub_u32", sB, sB, 12)
        e.S("s_lshl_b32", sB, sB, 4)
        e.S("s_sub_u32", sE, sE, sB)
        cols(sE, 6)
        e.S("s_lshl_b32", sA, sT, 4)
        e.S("s_add_u32", sA, sA, sJ)
        e.S("s_cmp_ge_u32", sA, 6 * 16 + 12)
        e.S("s_cselect_b64", VCC, -1, 0)
        e.V("v_cndmask_b32", vCol, vCol, vBig, VCC)
        e.S("s_cmp_eq_u32", sP, 0)
        e.S("s_cselect_b64", VCC, -1, 0)
        e.V("v_cndmask_b32", vBias, vBig, vCol, VCC)
        terms(3456, 80, 8)
        e.S("s_mul_i32", sB, sP, 160)
        for b in range(4):
            e.S("s_add_u32", rows[b], sB, 80 * (b >> 1) + 32 * (b & 1))
        e.S("s_add_u32", rows[4], sB, 64)
        quarter_ks()
        e.S("s_cmp_lt_u32", sT, 4)
        e.S("s_cselect_b32", s(79), 4, 3)
        e.S("s_cselect_b32", sE, 0, 80)
        e.S("s_add_u32", sE, sE, sT)
        e.S("s_mul_i32", sB, sJ, NB)
        e.S("s_add_u32", sE, sE, sB)
        e.S("s_add_u32", sE, sE, WB // KB)
        dests("B")
        e.S("s_mul_i32", sD, s(79), 20)
        e.S("s_add_u32", sD, sD, sE)
        e.S("s_lshl_b32", sD, sD, 2)
        e.S("s_add_u32", sD, sD, sP)
        e.S("s_lshl_b32", D2[6], sD, 8)
        e.branch("s_branch", lj)
        e.cond_end()
        e.label(lo)
        e.cond_begin()
        mk_srd(e, SR2, PP[4:6], D * D * 2)
        e.S("s_sub_u32", sJ, sJ, 56)
        e.S("s_mul_i32", sP, sJ, 52429)
        e.S("s_lshr_b32", sP, sP, 18)
        e.S("s_mul_i32", sA, sP, 5)
        e.S("s_sub_u32", sT, sJ, sA)
        e.S("s_mul_i32", sE, sCG, 80)
        cols(sE, 4)
        terms(1280, 80, 40)
        e.S("s_mul_i32", sB, sP, 160)
        for b in range(4):
            e.S("s_add_u32", rows[b], sB, 40 * b)
        e.S("s_add_u32", rows[4], sB, 32)
        quarter_ks()
        e.S("s_mul_i32", sE, sCG, NO)
        e.S("s_add_u32", sE, sE, WO // KB)
        e.S("s_lshl_b32", sA, sT, 1)
        e.S("s_add_u32", sE, sE, sA)
        dests("O")
        e.branch("s_branch", lj)
        e.cond_end()
        e.label(lc)
        e.cond_begin()
        mk_srd(e, SR2, PP[12:14], F * D * 2)
        e.S("s_sub_u32", sJ, sJ, 76)
        e.S("s_mul_i32", sP, sJ, 52429)
        e.S("s_lshr_b32", sP, sP, 18)
        e.S("s_mul_i32", sA, sP, 5)
        e.S("s_sub_u32", sT, sJ, sA)
        e.S("s_mul_i32", sE, sCG, 80)
        cols(sE, 4)
        e.S("s_cmp_ge_u32", sP, 9)
        e.S("s_cselect_b64", VCC, -1, 0)
        e.V("v_cndmask_b32", vCol, vCol, vBig, VCC)
        e.V("v_cndmask_b32", vSt2, vSt2, vBig, VCC)
        e.S("s_min_u32", sP, sP, 8)
        terms(1280, 112, 8)
        e.S("s_cmp_eq_u32", sP, 8)
        e.S("s_cselect_b64", VCC, -1, 0)
        e.V("v_cndmask_b32", vA0, vReg, vLeft, VCC)
        e.V("v_mov_b32", vA1, vA0)
        e.V("v_mov_b32", vA2, vA0)
        e.S("s_mul_i32", sJ, sP, 6)
        for b in range(6):
            e.S("s_add_u32", D2[b], sJ, b)
            e.S("s_lshl_b32", sA, sP, 5)
            e.S("s_add_u32", sA, sA, 16 * (b // 3))
            e.S("s_min_u32", sA, sA, 192)
            e.S("s_lshl_b32", sB, D2[b], 5)
            e.S("s_add_u32", sA, sA, sB)
            e.S("s_cmp_eq_u32", sP, 8)
            e.S("s_cselect_b32", rows[b], 224 * b + 96, sA)
        e.S("s_mul_i32", sE, sCG, NC)
        e.S("s_add_u32", sE, sE, WC // KB)
        e.S("s_lshl_b32", sA, sT, 1)
        e.S("s_add_u32", sE, sE, sA)
        dests("C")
        e.cond_end()
        e.label(lj)
        e.S("s_lshl_b32", sA, sC, 4)
        e.S("s_add_u32", sA, sA, sR)
        e.S("s_mul_i32", sA, sA, KVSZ)
        e.S("s_mul_i32", sB, sWave, 896)
        e.S("s_min_u32", sB, sB, KVSZ - 1024)
        e.S("s_add_u32", sA, sA, sB)
        e.S("s_add_u32", s(79), sA, KVB[1])
        self.stamp("dec2")
        e.wait_ops(ops1)
        e.barrier()
        self.flag("both", 1)
        self.stamp("w1flag")
        self.ops2 = []

        def r2_loads():
            for b in range(6):
                va = vA0 if b < 4 else (vA1 if b == 4 else vA2)
                e.S("s_mul_i32", sE, rows[b], sStr); yield
                for i in range(8):
                    e.bload(RAW2[8 * b + i], va, SR2, sE, 0, w="ushort", cls=(1500, 32, 0)); yield
                    if i < 7:
                        e.S("s_add_u32", sE, sE, sStr); yield
            e.bload(vBias, vBias, SR1, 0, 0, w="ushort", cls=(1500, 10, 0)); yield

        def r2_pack():
            vs, vt, EX2, MK = TMP[48], TMP[49], RAW2[4:8], RAW2[12:16]
            for b in range(6):
                raw = RAW2[8 * b:8 * b + 8]
                for i in range(4):
                    e.V("v_lshl_or_b32", raw[i], raw[2 * i + 1], 16, raw[2 * i]); yield
                self.ops2.append(e.bstore(raw[0:4], vSt2, WS, D2[b], 0, "sc1", cls=(1000, 70, 0))); yield
            for i in range(4):
                e.V("v_mov_b32", MK[i], -1); yield
            self.ops2.append(e.bstore(MK, vL16, WS, s(79), 0, "sc1", cls=(1000, 70, 0))); yield
            self.colsum([RAW2[8 * b + i] for b in range(5) for i in range(4)], EX2, vs, vt)
            e.V("v_lshlrev_b32", EX2[3], 16, vBias)
            e.V("v_or_b32", EX2[1], EX2[1], EX2[3])
            e.V("v_mov_b32", EX2[2], 0)
            e.S("s_mov_b64", EXEC, "0xffff")
            self.ops2.append(e.bstore(EX2, vL16, WS, D2[6], 0, "sc1", cls=(1000, 20, 0)))
            e.S("s_mov_b64", EXEC, -1)
            yield
        self.r2_loads, self.r2_pack = r2_loads(), r2_pack()
        for _ in self.r2_loads:
            pass
        self.late_loads()
        self.stamp("iss2")
        for _ in self.r2_pack:
            pass
        self.stamp("r2")
        self.poll("both", 1)
        e.barrier()
        self.stamp("w1go")

    def w2_gen(self):
        e = self.e
        t = RES[0]
        e.V("v_bfe_u32", t, vLane, 4, 1); yield
        e.V("v_lshl_add_u32", t, t, 11, vFl); yield
        e.S("s_lshl_b32", sE, sCG, 8); yield
        e.S("s_add_u32", sE, sE, FLG_C); yield
        e.bload(RES[1], t, WS, sE, 0, "sc1", cls=(900, 10, 0)); yield
        for _ in range(50):
            yield "idle"
        e.S("s_add_u32", sD, sBase, 2); yield
        lok, lre = e.newlabel("w2ok"), e.newlabel("w2retry")
        e.V("v_cmp_ne_u32", VCC, sD, RES[1])
        e.S("s_cmp_eq_u64", VCC, 0)
        e.branch("s_cbranch_scc1", lok)
        e.cond_begin()
        e.S("s_mov_b32", sCnt, 0)
        e.label(lre)
        e.misc("s_sleep 4")
        e.bload(RES[1], t, WS, sE, 0, "sc1")
        e.V("v_cmp_ne_u32", VCC, sD, RES[1])
        e.S("s_cmp_eq_u64", VCC, 0)
        e.branch("s_cbranch_scc1", lok)
        e.S("s_add_u32", sCnt, sCnt, 1)
        e.S("s_cmp_lt_u32", sCnt, 0x20000)
        e.branch("s_cbranch_scc1", lre)
        e.cond_end()
        e.label(lok)
        self.gate = 1 << 20
        yield

    def prologue2(self):
        e = self.e
        T0, T1, T2, T3, T4, T5 = [TMP[40 + i] for i in range(6)]
        mk_srd(e, OUT, pOut, XSZ)
        e.S("s_and_b32", sKH, sWave, 1)
        e.S("s_lshl_b32", sW2048, sWave, 11)
        e.S("s_mul_i32", sA, sC, NA * KB)
        e.S("s_add_u32", sSeg["A"], sA, WA)
        e.S("s_mul_i32", sA, sCG, NO * KB)
        e.S("s_add_u32", sSeg["O"], sA, WO)
        e.S("s_mul_i32", sA, sC, NB * KB)
        e.S("s_add_u32", sSeg["B"], sA, WB)
        e.S("s_mul_i32", sA, sCG, NC * KB)
        e.S("s_add_u32", sSeg["C"], sA, WC)
        e.V("v_add_u32", vDma, sW2048, vL16)
        e.S("s_mul_i32", sXr, sR, 160 * KB)
        e.S("s_mul_i32", sHr, sR, 432 * KB)
        e.S("s_lshl_b32", sSTr, sR, 13)
        e.S("s_mul_i32", sA, sWave, 40 * KB)
        e.V("v_add_u32", vAx[0], sA, vL16)
        e.V("v_add_u32", vAx[1], 20 * KB, vAx[0])
        e.V("v_lshlrev_b32", T0, 11, vG)
        e.V("v_lshl_add_u32", T0, vN, 3, T0)
        e.S("s_lshl_b32", sA, sWave, 8)
        e.V("v_add_u32", vSt, sA, T0)
        e.S("s_mov_b32", self.cInvD, lit(1.0 / D))
        for j in range(3):
            if j == 0:
                e.V("v_mov_b32", vW[0], vL16)
            else:
                e.V("v_add_u32", vW[j], j * 65536, vL16)
        e.S("s_lshl_b32", sA, sKH, 10)
        for j in range(3):
            e.V("v_add_u32", vK[j], sA, vW[j])
        e.V("v_lshlrev_b32", T4, 4, v(0))
        Z = TMP[44:48]
        Z = TMP[48:52]
        for j in range(4):
            e.V("v_mov_b32", Z[j], 0)
        e.ds_write(T4, Z, 0)
        e.ds_write(T4, Z, 4096)
        e.S("s_lshl_b32", sTT, sRH, 2)
        e.S("s_add_u32", sTT, sTT, sWave)
        e.S("s_xor_b32", sB, sTT, 1)
        for u, st in ((0, sTT), (1, sB)):
            e.S("s_mul_i32", sA, st, 20 * KB)
            e.S("s_mul_i32", sD, sKH, 10 * KB)
            e.S("s_add_u32", sA, sA, sD)
            e.V("v_add_u32", vAo[u], sA, vL16)
            e.S("s_mul_i32", sA, st, 54 * KB)
            e.S("s_mul_i32", sD, sKH, 27 * KB)
            e.S("s_add_u32", sA, sA, sD)
            e.V("v_add_u32", vAh[u], sA, vL16)
        e.V("v_lshrrev_b32", T0, 1, vG)
        e.V("v_and_b32", T1, 1, vG)
        e.V("v_lshlrev_b32", T2, 4, vN)
        e.V("v_lshl_add_u32", T3, T0, 8, T2)
        e.V("v_lshl_add_u32", T3, T1, 3, T3)
        e.S("s_mul_i32", sA, sTT, 20 * KB)
        e.V("v_add_u32", vXs, sA, vL16)
        e.V("v_add_u32", vXh, sA, T3)
        e.S("s_mul_i32", sA, sWave, 108 * KB)
        e.V("v_add_u32", vHs, sA, vL16)
        e.S("s_cmp_ge_u32", sC, 12)
        e.S("s_cselect_b32", sA, BIG, sA)
        e.V("v_add_u32", vHh, sA, T3)
        e.S("s_mul_i32", sA, sWave, 40 * KB)
        e.V("v_lshl_add_u32", T3, vG, 3, T2)
        e.V("v_add_u32", vOh, sA, T3)
        e.V("v_cmp_gt_u32", VCC, 2, vG)
        e.V("v_mov_b32", T3, BIG)
        e.V("v_cndmask_b32", vOh, T3, vOh, VCC)
        e.S("s_lshl_b32", sA, sTT, 7)
        e.V("v_lshl_add_u32", T3, vN, 3, sA)
        e.V("v_lshl_add_u32", vStW, T0, 2, T3)
        e.S("s_lshl_b32", sA, sWave, 7)
        e.S("s_add_u32", sA, sA, RST)
        e.V("v_lshl_add_u32", vRT, vG, 4, sA)
        e.V("v_lshl_add_u32", vRW, vN, 2, sA)
        e.S("s_lshl_b32", sA, sTT, 6)
        e.S("s_add_u32", sA, sA, RST)
        e.V("v_lshl_add_u32", vRF, vN, 2, sA)
        e.V("v_lshlrev_b32", T3, 4, vG)
        e.V("v_add_u32", vZ2, ZT + 128, T3)
        e.V("v_cmp_gt_u32", VCC, 10, vN)
        e.V("v_add_u32", T3, ZT, T3)
        e.V("v_cndmask_b32", vZ01, vZ2, T3, VCC)
        e.S("s_lshl_b32", sA, sR, 3)
        e.S("s_add_u32", sA, sA, sTT)
        e.S("s_mul_i32", sA, sA, 16 * 1280)
        e.S("s_mul_i32", sB, sCG, 160)
        e.S("s_add_u32", sA, sA, sB)
        e.V("v_mul_u32_u24", T3, 1280, vN)
        e.V("v_add_u32", T3, sA, T3)
        e.V("v_lshl_add_u32", vOut, vG, 4, T3)
        e.V("v_lshl_add_u32", vOut4, vG, 3, T3)
        e.S("s_mul_i32", sA, sWave, 5120)
        e.V("v_add_u32", vXch, sA, vL16)
        e.V("v_lshlrev_b32", vFl, 2, vN)
        e.V("v_mov_b32", vLn2[0], lit(LN2))
        e.V("v_mov_b32", vEps[0], lit(1e-6))
        e.S("s_mov_b32", sMaskV[0], "0x00ff00ff")
        e.S("s_mov_b32", sMaskV[1], "0x00ff00ff")
        e.S("s_lshl_b32", sA, sR, 8)
        e.S("s_add_u32", sFRL, sA, FLG_RL)
        e.S("s_add_u32", sFRG, sA, FLG_RG)
        e.S("s_lshl_b32", sA, sC, 8)
        e.S("s_add_u32", sFC, sA, FLG_C)
        e.S("s_lshl_b32", sA, sCG, 11)
        e.S("s_add_u32", sOx, sXr, sA)
        e.S("s_lshr_b32", sA, sCG, 1)
        e.S("s_lshl_b32", sA, sA, 10)
        e.S("s_and_b32", sB, sCG, 1)
        e.S("s_lshl_b32", sB, sB, 9)
        e.S("s_add_u32", sA, sA, sB)
        e.S("s_add_u32", sA, sA, 16 * KB)
        e.S("s_add_u32", sOxh, sXr, sA)
        e.S("s_lshl_b32", sA, sCG, 10)
        e.S("s_add_u32", sOst, sSTr, sA)
        e.S("s_lshl_b32", sA, sC, 10)
        e.S("s_add_u32", sOo, sXr, sA)
        e.S("s_lshl_b32", sA, sC, 8)
        e.S("s_add_u32", sA, sA, 16 * KB)
        e.S("s_add_u32", sOoh, sXr, sA)
        e.S("s_mul_i32", sA, sC, 3 * KB)
        e.S("s_add_u32", sOh, sHr, sA)
        e.S("s_lshl_b32", sA, sC, 9)
        e.S("s_add_u32", sA, sA, 48 * KB)
        e.S("s_add_u32", sOhh, sHr, sA)
        e.S("s_mul_i32", sKv, sC, 16 * KVSZ)
        e.misc(f"s_getreg_b32 {sX1}, hwreg(HW_REG_XCC_ID, 0, 4)")
        e.S("s_and_b32", sX1, sX1, 7)
        e.S("s_add_u32", sX1, sX1, 8)
        e.S("s_add_u32", sX1, sX1, sBase)
        e.S("s_mov_b32", sLocal, 0)
        U, Hh, Ee, Dq = T0, T1, T2, T3
        e.S("s_mov_b32", sA, 52429)
        e.V("v_mul_u32_u24", U, sA, v(0))
        e.V("v_lshrrev_b32", U, 18, U)
        e.V("v_mul_u32_u24", Dq, 5, U)
        e.V("v_sub_u32", Dq, v(0), Dq)
        e.V("v_cmp_le_u32", VCC, 21, U)
        e.V("v_cndmask_b32", Hh, 0, 1, VCC)
        e.V("v_mul_u32_u24", Ee, 21, Hh)
        e.V("v_sub_u32", Ee, U, Ee)
        A0, A1, A2, A3 = TMP[46], TMP[47], TMP[38], TMP[39]
        e.V("v_cmp_le_u32", s(100, 2), 16, Ee)
        e.V("v_cmp_eq_u32", s(88, 2), 4, Dq)
        e.V("v_cndmask_b32", A0, 0, 1, s(100, 2))
        e.V("v_lshl_add_u32", A0, Hh, 1, A0)
        e.V("v_add_u32", A1, 4, Hh)
        e.V("v_cndmask_b32", A1, A1, 6, s(100, 2))
        e.V("v_cndmask_b32", A0, A0, A1, s(88, 2))
        e.V("v_cndmask_b32", A1, Dq, Hh, s(88, 2))
        e.V("v_lshl_add_u32", A2, Hh, 2, Ee)
        e.V("v_subrev_u32", A2, 8, A2)
        e.V("v_cndmask_b32", A2, Ee, A2, s(100, 2))
        e.V("v_cmp_eq_u32", VCC, 20, Ee)
        e.V("v_cndmask_b32", A2, A2, 0, VCC)
        e.V("v_lshl_add_u32", A1, A1, 4, A2)
        e.V("v_lshlrev_b32", A1, 4, A1)
        e.V("v_lshl_add_u32", vKvSrc, A0, 10, A1)
        e.V("v_mul_u32_u24", A0, 5, Hh)
        e.V("v_add_u32", A0, A0, Dq)
        e.V("v_cmp_le_u32", s(88, 2), 8, A0)
        e.V("v_lshrrev_b32", A1, 1, A0)
        e.V("v_subrev_u32", A2, 8, A0)
        e.V("v_cndmask_b32", A1, A1, A2, s(88, 2))
        e.V("v_and_b32", A2, 1, A0)
        e.V("v_cndmask_b32", A2, A2, 0, s(88, 2))
        e.V("v_lshlrev_b32", A2, 3, A2)
        e.V("v_cndmask_b32", A0, 0, 1, s(88, 2))
        e.V("v_lshl_add_u32", A3, Hh, 1, A0)
        e.V("v_lshl_add_u32", A3, A3, 2, A1)
        e.V("v_lshl_add_u32", A3, A3, 4, A2)
        e.V("v_add_u32", A3, ZT, A3)
        e.V("v_mul_u32_u24", T4, 20, Hh)
        e.V("v_add_u32", T4, T4, Ee)
        e.V("v_cmp_le_u32", s(100, 2), 32, T4)
        e.V("v_and_b32", T5, 1, T4)
        e.V("v_cndmask_b32", T5, T5, 2, s(100, 2))
        e.V("v_lshl_add_u32", A0, T5, 1, A0)
        e.V("v_lshrrev_b32", T5, 1, T4)
        e.V("v_subrev_u32", T4, 32, T4)
        e.V("v_cndmask_b32", T4, T5, T4, s(100, 2))
        e.V("v_lshl_add_u32", T4, A1, 4, T4)
        e.V("v_lshl_add_u32", T4, T4, 4, A2)
        e.V("v_lshl_add_u32", T4, A0, 10, T4)
        e.V("v_cndmask_b32", T4, T4, A3, VCC)
        e.V("v_cmp_gt_u32", VCC, 210, v(0))
        e.V("v_mov_b32", T5, DUMMY)
        e.V("v_cndmask_b32", vKvDst, T5, T4, VCC)
        e.V("v_cndmask_b32", vKvSrc, 0, vKvSrc, VCC)
        e.V("v_lshlrev_b32", T4, 4, v(0))
        e.V("v_mov_b32", T5, BIG)
        e.V("v_cndmask_b32", vT16, T5, T4, VCC)

    def late_loads(self):
        e = self.e
        T4, T5 = TMP[48], TMP[49]
        e.S("s_mul_i32", sB, sCG, 160)
        e.bload(RES[10:14], vOut, XIN, 0, 0)
        e.bload(RES[14:18], vOut, XIN, 0, 64)
        e.bload(RES[18:20], vOut4, XIN, 0, 128)
        e.V("v_lshl_add_u32", T4, vG, 4, sB)
        e.V("v_lshl_add_u32", T5, vG, 3, sB)
        e.bload(B2F[10:14], T4, SB2, 0, 0)
        e.bload(B2F[14:18], T4, SB2, 0, 64)
        e.bload(B2F[18:20], T5, SB2, 0, 128)
        skip = e.newlabel("noxid")
        e.S("s_cmp_lg_u32", sWave, 3)
        e.branch("s_cbranch_scc1", skip)
        e.cond_begin()
        e.S("s_lshl_b32", sA, sR, 8)
        e.S("s_add_u32", sA, sA, FLG_X)
        e.S("s_lshl_b32", sB, sC, 2)
        e.V("v_mov_b32", T4, sB)
        e.V("v_mov_b32", T5, sX1)
        e.S("s_mov_b64", EXEC, 1)
        e.bstore(T5, T4, WS, sA, 0, "sc1")
        e.S("s_mov_b64", EXEC, -1)
        e.cond_end()
        e.label(skip)

    def unpack(self, dst, pk):
        e = self.e
        for a_ in range(2):
            for j in range(4):
                e.V("v_lshlrev_b32", dst[8 * a_ + j], 16, pk[4 * a_ + j])
                e.V("v_and_b32", dst[8 * a_ + 4 + j], "0xffff0000", pk[4 * a_ + j])
        for j in range(2):
            e.V("v_lshlrev_b32", dst[16 + 2 * j], 16, pk[8 + j])
            e.V("v_and_b32", dst[16 + 2 * j + 1], "0xffff0000", pk[8 + j])

    class ALoad:
        def __init__(self, m, vaddr, terms, nks):
            self.m, self.vaddr, self.terms, self.nks = m, vaddr, terms, nks
            self.n = 0
            self.based = -1
            self.done = False

        def step(self):
            e = self.m.e
            ks, u = divmod(self.n, 2)
            if ks // 4 != self.based:
                self.based = ks // 4
                e.S("s_add_u32", sLd, self.terms[0], self.terms[1] + (ks // 4) * 4 * KB)
                return False
            e.bload(a(self.n * 4, 4), self.vaddr[u], WS, sLd, (ks % 4) * KB, self.m.opt.get("amod", "sc1"), cls=(self.m.opt.get("latA", 600), 76, 33 if self.nks == 27 else 16))
            self.n += 1
            self.done = self.n >= 2 * self.nks
            return True

        def upto(self, ks):
            while self.n < 2 * min(ks + 1, self.nks):
                self.step()

    def stats_loads(self, ver):
        e = self.e
        e.S("s_add_u32", sA, sSTr, STB[ver])
        for u in range(2):
            for k in range(2):
                e.bload(TMP[4 * u + 2 * k:4 * u + 2 * k + 2], vSt, WS, sA, k * 1024 + u * 128, "sc1", cls=(600, 20, 0))

    def stats_gen(self, need_T, have=False):
        e = self.e
        for u in range(2):
            sm, sq, t0, t1 = TMP[4 * u], TMP[4 * u + 1], TMP[4 * u + 2], TMP[4 * u + 3]
            if not have:
                e.V("v_add_f32", sm, sm, t0); yield
                e.V("v_add_f32", sq, sq, t1); yield
            for op in () if have else ("v_permlane32_swap_b32", "v_permlane16_swap_b32"):
                e.V("v_mov_b32", t0, sm); yield
                e.V("v_mov_b32", t1, sq); yield
                e.V(op, sm, t0); yield
                e.V(op, sq, t1); yield
                e.V("v_add_f32", sm, sm, t0); yield
                e.V("v_add_f32", sq, sq, t1); yield
            e.V("v_mul_f32", sm, lit(1.0 / D), sm); yield
            e.V("v_mul_f32", t0, sm, sm); yield
            e.V("v_fma_f32", sq, sq, self.cInvD, Neg(t0)); yield
            e.V("v_max_f32", sq, 0, sq); yield
            e.V("v_add_f32", sq, lit(1e-5), sq); yield
            e.V("v_rsq_f32", t0, sq); yield
            e.V("v_cvt_pk_bf16_f32", XE[u][0], sm, sm); yield
            e.V("v_mul_f32", sq, sq, t0); yield
            e.ds_write(vRW, t0, 64 * u); yield
            c2 = vC2 if u == 0 else vC2b
            e.V("v_mul_f32", c2[0], lit(LOG2E), t0); yield
            e.V("v_lshlrev_b32", t1, 16, XE[u][0]); yield
            e.V("v_sub_f32", sm, sm, t1); yield
            e.V("v_cvt_pk_bf16_f32", XE[u][1], sm, sq); yield
            e.V("v_and_b32", t1, "0xffff0000", XE[u][1]); yield
            e.V("v_sub_f32", t1, sq, t1); yield
            e.V("v_cvt_pk_bf16_f32", XE[u][3], sm, t1); yield
            e.V("v_mov_b32", XE[u][2], XE[u][0]); yield
        if need_T:
            for u in range(2):
                e.ds_read(RT[4 * u:4 * u + 4], vRT, 64 * u); yield

    def phi_pair(self, src, c2, bcast, t):
        e = self.e
        m = "op_sel_hi:[1,0]" if bcast else ""
        e.V("v_pk_mul_f32", t[0:2], src, c2, mods=m)
        e.V("v_exp_f32_e64", t[2], t[0], mods="clamp")
        e.V("v_exp_f32_e64", t[3], t[1], mods="clamp")
        e.V("v_max_f32", t[0], 0, t[0])
        e.V("v_max_f32", t[1], 0, t[1])
        e.V("v_pk_add_f32", t[2:4], t[2:4], vEps, mods="op_sel_hi:[1,0]")
        e.V("v_pk_fma_f32", t[0:2], t[0:2], vLn2, t[2:4], mods="op_sel_hi:[1,0,1]")

    def scratch(self, nblk, endpos):
        st = endpos - nblk
        if (st % RB) + nblk > RB:
            st = endpos - (endpos % RB) - nblk
        return st, self.ldsaddr(st)

    def bg_on(self, tail):
        e = self.e
        st = {"next": 0}
        t_end = e.T + tail
        self.deadline = lambda: t_end

        def f():
            if e.T >= st["next"] and self.dma_ok():
                n0 = len(e.vm)
                while len(e.vm) == n0:
                    next(self.dmaf)
                st["next"] = e.T + self.opt.get("vgap", 24)
        self.e.bg = f

    def bg_off(self):
        self.e.bg = None

    def gstore(self, lst, cold=False):
        e = self.e
        mode = self.opt.get("mode", "dual")
        if cold:
            mode = "safe"
        if mode != "dual":
            return [e.bstore(d, vo, WS, so, off, "sc1" if mode == "safe" else "") for d, vo, so, off in lst]
        ls, le = e.newlabel("st_safe"), e.newlabel("st_end")
        regs = []
        for d, vo, so, off in lst:
            regs += d.regs() + vo.regs()
        e.wait_ops(e._pending(regs))
        e.S("s_cmp_eq_u32", sLocal, 0)
        need = e._need("vmem", regs, [])
        if need > 1:
            e.nop(need - 1)
        e.branch("s_cbranch_scc1", ls)
        n0 = len(e.lines)
        ops = [e.bstore(d, vo, WS, so, off, "") for d, vo, so, off in lst]
        body = e.lines[n0:]
        assert len(body) == len(lst), body
        e.raw(f"  s_branch {le}")
        e.label(ls)
        for l in body:
            e.raw(l + " sc1")
        e.label(le)
        return ops

    def touch_gen(self, lst, cold=False):
        e = self.e
        if cold or not self.opt.get("touch", 0):
            return
        for _ in range(self.opt.get("touch_delay", 60)):
            yield "idle"
        for vo, sb, add, off in lst:
            e.S("s_add_u32", sE, sb, add); yield
            e.touch(vDum, vo, WS, sE, off); yield

    def local_gen(self):
        e = self.e
        e.S("s_lshl_b32", sE, sR, 8); yield
        e.S("s_add_u32", sE, sE, FLG_X); yield
        e.bload(TMP[52], vFl, WS, sE, 0, "sc1"); yield
        for _ in range(40):
            yield "idle"
        e.V("v_cmp_ne_u32", VCC, sX1, TMP[52]); yield
        e.S("s_cmp_eq_u64", VCC, 0)
        e.S("s_cselect_b32", sLocal, 1, 0); yield

    def poll(self, kind, val):
        e = self.e
        skip = e.newlabel("nopoll")
        loop = e.newlabel("poll")
        e.S("s_cmp_lg_u32", sWave, 0)
        e.branch("s_cbranch_scc1", skip)
        e.cond_begin()
        t = TMP[55]
        e.S("s_mov_b32", sCnt, 0)
        e.S("s_mov_b64", sOk, 0)
        e.S("s_add_u32", sB, sBase, val)
        va, vb, sa, sb = vFl, vFl, sFRL, sFRG
        if kind == "both":
            va, vb, sa, sb = TMP[53], TMP[54], 0, 0
            e.V("v_cmp_gt_u32", VCC, 2, vG)
            e.V("v_mov_b32", va, sFC)
            e.V("v_mov_b32", vb, sFRL)
            e.V("v_cndmask_b32", va, vb, va, VCC)
            e.V("v_add_u32", va, va, vFl)
            e.V("v_mov_b32", vb, FLG_RG - FLG_RL)
            e.V("v_cndmask_b32", vb, vb, 0, VCC)
            e.V("v_add_u32", vb, va, vb)
        e.label(loop)

        def chk():
            e.misc("s_waitcnt vmcnt(0)")
            e.misc(f"v_subrev_u32 {t}, {sB}, {t}")
            e.misc(f"v_cmp_ge_u32 vcc, {8 - val}, {t}")
            e.misc(f"s_or_b64 {sOk}, {sOk}, vcc")
            e.misc(f"s_cmp_eq_u64 {sOk}, -1")
            e.misc(f"s_cbranch_scc1 {skip}")
        e.misc(f"buffer_load_dword {t}, {va}, {WS}, {sa} offen sc1")
        e.misc("s_add_u32 %s, %s, 1" % (sCnt, sCnt))
        chk()
        if kind == "both":
            e.misc("s_sleep 3")
        e.misc(f"s_and_b32 {sA}, {sCnt}, 3")
        e.misc(f"s_cbranch_scc1 {loop}")
        e.misc(f"buffer_load_dword {t}, {vb}, {WS}, {sb} offen sc1")
        chk()
        e.misc(f"s_cmp_lt_u32 {sCnt}, 0x40000")
        e.misc(f"s_cbranch_scc1 {loop}")
        e.cond_end()
        e.label(skip)

    def flag(self, kind, val):
        e = self.e
        lst = [(1, sFRG, "sc1", sC), (2, sFRL, "", sC)] if kind != "col" else []
        if kind != "row":
            lst.append((3, sFC, "sc1", sR))
        for w, sb, m, sidx in lst:
            skip = e.newlabel("noflag")
            e.S("s_cmp_lg_u32", sWave, w)
            e.branch("s_cbranch_scc1", skip)
            e.cond_begin()
            e.S("s_lshl_b32", sA, sidx, 2)
            e.V("v_mov_b32", TMP[54], sA)
            e.S("s_add_u32", sA, sBase, val)
            e.V("v_mov_b32", TMP[55], sA)
            e.S("s_mov_b64", EXEC, 1)
            e.bstore(TMP[55], TMP[54], WS, sb, 0, m)
            e.S("s_mov_b64", EXEC, -1)
            e.cond_end()
            e.label(skip)

    def handoff(self, val, ops, shadow=None, touch=()):
        e = self.e
        t_st = e.T
        self.deadline = lambda: t_st + self.opt.get("topup", 2600)
        self.own_end = 0
        while self.dma_ok():
            next(self.dmaf)
        e.wait_all_lg()
        self.ring_barrier(self.cons + FI + self.opt.get("ahead", 16), ops)
        self.hold = None
        self.flag("row", val)
        self.stamp("flag")
        t_flag = e.T
        if self.opt.get("post_touch", 0):
            for k, (vo, sb, add, off) in enumerate(touch):
                sr = sE if k % 2 else sD
                e.S("s_add_u32", sr, sb, add)
                e.touch(vDum, vo, WS, sr, off, "sc1", cls=(750, 66, 30))
        self.deadline = lambda: t_flag + self.opt.get("topup2", 1800)
        while self.dma_ok():
            next(self.dmaf)
        self.prime()
        if shadow:
            shadow()
        self.poll("row", val)
        e.T = max(e.T, t_flag + 1000)
        e.barrier()
        self.stamp("go")

    def phaseA(self, p):
        e = self.e
        opt = self.opt
        xv = 2 * p
        acc = lambda T, u: ACC[(T * 2 + u) * 4:(T * 2 + u) * 4 + 4]
        xf = lambda ks, u: a((ks * 2 + u) * 4, 4) if ks < 20 else XE[u]
        if p == 0:
            for _ in range(opt.get("first_groups", 3)):
                for _ in self.dma_group():
                    pass
        self.stats_loads(xv)
        al = self.ALoad(self, vAx, (sXr, XB[xv]), 20)
        al.upto(opt.get("adist", 4) - 1)
        fl0 = [self.stats_gen(True)]
        if p == 0:
            e.wait_all_lg()
            self.ring_barrier(FI + 8, self.ops2)
            self.flag("col", 2)
            self.prime()
            self.stamp("start")
            fl0.append(self.w2_gen())
        i0 = self.seqstart[("A1", p)]
        fb = 102
        sst, sad = self.scratch(28, self.seq[i0 + fb][0])
        self.hold = sst

        def mf(t, W, u):
            ks, T = divmod(t, 5)
            e.mfma(acc(T, u), xf(ks, u), W, acc(T, u) if ks else 0)
        self.run_pass(105, mf, 5, xf, fl0, chunk=(8 if p == 0 else 24), stop_reads=self.seqstart[("A4", p)], aload=al,
                      force_bar=fb, tail=6000,
                      late=None)
        assert sst + 28 <= self.freed
        self.stamp("A1")
        self.bg_on(5000)
        C2T = TMP[8:16] if p else ACC[40:48]
        for j in range(8):
            e.V("v_mul_f32", C2T[j], lit(LOG2E), RT[j])
        KF = [TMP[16:20], TMP[20:24], TMP[24:28]]
        VF = {3: TMP[28:32], 4: TMP[32:36], 2: TMP[36:40]}
        tt = [TMP[40:44], TMP[44:48]]
        TA0, TA1 = TMP[48], TMP[49]
        if p == 0:
            KF = [RES[0:4], RES[4:8], B2F[0:4]]
            VF = {3: B2F[4:8], 4: ACC[56:60], 2: ACC[60:64]}
            tt = [ACC[48:52], ACC[52:56]]
        n = 0
        for T in range(3):
            for u in range(2):
                for h in range(2):
                    t = tt[n % 2]
                    n += 1
                    self.phi_pair(acc(T, u)[2 * h:2 * h + 2], C2T[4 * u + 2 * h:4 * u + 2 * h + 2], False, t)
                    e.V("v_cvt_pk_bf16_f32", KF[T][2 * u + h], t[0], t[1])
        for T in (3, 4, 2):
            for u in range(2):
                for h in range(2):
                    x = acc(T, u)[2 * h:2 * h + 2]
                    e.V("v_pk_mul_f32", x, x, RT[4 * u + 2 * h:4 * u + 2 * h + 2])
            for u in range(2):
                for h in range(2):
                    x = acc(T, u)[2 * h:2 * h + 2]
                    e.V("v_cvt_pk_bf16_f32", VF[T][2 * u + h], x[0], x[1])
        for j in range(4):
            e.V("v_cndmask_b32", VF[2][j], VF[2][j], vOne, sMaskV)
        PR = [ACC[4 * i:4 * i + 4] for i in range(7)]
        prods = [(0, 3), (0, 2), (1, 4), (1, 2), (2, 3), (2, 4), (2, 2)]
        for i, (kt, vt) in enumerate(prods):
            e.mfma(PR[i], KF[kt], VF[vt], 0)
        e.S("s_mul_i32", sA, sWave, 7168)
        e.S("s_add_u32", sA, sA, sad)
        e.V("v_add_u32", TA0, sA, vL16)
        e.V("v_add_u32", TA1, sad, vKvSrc)
        for i in range(7):
            e.ds_write(TA0, PR[i], i * 1024)
        e.wait_all_lg()
        e.barrier()
        RD = [ACC[4 * w:4 * w + 4] for w in range(4)]
        for w in range(4):
            e.ds_read(RD[w], TA1, w * 7168)
        for h in range(2):
            e.V("v_pk_add_f32", RD[0][2 * h:2 * h + 2], RD[0][2 * h:2 * h + 2], RD[1][2 * h:2 * h + 2])
            e.V("v_pk_add_f32", RD[2][2 * h:2 * h + 2], RD[2][2 * h:2 * h + 2], RD[3][2 * h:2 * h + 2])
        for h in range(2):
            e.V("v_pk_add_f32", RD[0][2 * h:2 * h + 2], RD[0][2 * h:2 * h + 2], RD[2][2 * h:2 * h + 2])
        e.S("s_mul_i32", sA, sR, KVSZ)
        e.S("s_add_u32", sA, sA, sKv)
        e.S("s_add_u32", sA, sA, KVB[p])
        kvst = e.bstore(RD[0], vT16, WS, sA, 0, "sc1")
        self.bg_off()
        self.stamp("kvpub")
        PL = [ACC[4 * i:4 * i + 4] for i in range(10)] + [TMP[24 + 4 * i:28 + 4 * i] for i in range(6)]

        st2 = {}

        def barhook(t):
            def rel():
                self.hold = None

            def relflag():
                self.hold = None
                self.flag("col", 2)
            return [], rel

        def kvloads():
            for i in range(16):
                if i % 2 == 0:
                    e.S("s_add_u32", sB, sKv, KVB[p] + i * KVSZ); yield
                e.bload(PL[i], vT16, WS, sB, (i % 2) * KVSZ, "sc1", cls=(800, 80, 130)); yield

        def kvsum():
            for st in (1, 2, 4, 8):
                for i in range(0, 16, 2 * st):
                    for h in range(2):
                        e.V("v_pk_add_f32", PL[i][2 * h:2 * h + 2], PL[i][2 * h:2 * h + 2], PL[i + st][2 * h:2 * h + 2])
            e.V("v_cmp_u_f32", VCC, PL[0][0], PL[0][1])
            e.V("v_cmp_u_f32", sNan, PL[0][2], PL[0][3])
            e.S("s_or_b64", VCC, VCC, sNan)

        def mfq(t, W, u):
            ks, T = divmod(t, 3)
            e.mfma(acc(5 + T, u), W, xf(ks, u), acc(5 + T, u) if ks else 0)
        self.lastbar = self.rd - 8
        fl = [self.touch_gen([(vAx[0], sOo, OB[p], 0), (vAx[1], sOo, OB[p], 0), (vOh, sOoh, OB[p], 0), (vOh, sOoh, OB[p] + 20 * KB, 0)], p == 0)]
        if p == 0:
            fl = [self.local_gen()]
        self.run_pass(63, mfq, 3, xf, fl, stop_reads=self.seqstart[("A4", p)], hooks={"bar": barhook},
                      late=(opt.get("kvload_at", 30), kvloads()), see_all=True, force_bar=61, tail=1600 + self.opt.get("slack", 2400))
        self.stamp("A2")
        self.bg_on(1600 + self.opt.get("slack", 2400))
        PQ0 = [TMP[0:4], TMP[4:8]]
        PQ1 = [TMP[8:12], TMP[12:16]]
        tq = [TMP[16:20], TMP[20:24]]
        for u in range(2):
            c2 = vC2 if u == 0 else vC2b
            for h in range(2):
                self.phi_pair(acc(5, u)[2 * h:2 * h + 2], c2, True, tq[0])
                self.phi_pair(acc(6, u)[2 * h:2 * h + 2], c2, True, tq[1])
                e.V("v_cvt_pk_bf16_f32", PQ0[u][2 * h], tq[0][0], tq[1][0])
                e.V("v_cvt_pk_bf16_f32", PQ0[u][2 * h + 1], tq[0][1], tq[1][1])
            for h in range(2):
                self.phi_pair(acc(7, u)[2 * h:2 * h + 2], c2, True, tq[h])
                e.V("v_cvt_pk_bf16_f32", PQ1[u][h], tq[h][0], tq[h][1])
            e.V("v_mov_b32", PQ1[u][2], 0)
            e.V("v_mov_b32", PQ1[u][3], 0)
        self.bg_off()
        self.stamp("qepi")
        kvsum()
        lok, lre = e.newlabel("kvok"), e.newlabel("kvretry")
        e.branch("s_cbranch_scc0", lok)
        e.cond_begin()
        e.S("s_mov_b32", sCnt, 0)
        e.label(lre)
        e.misc("s_sleep 4")
        for _ in kvloads():
            pass
        kvsum()
        e.branch("s_cbranch_scc0", lok)
        e.S("s_add_u32", sCnt, sCnt, 1)
        e.S("s_cmp_lt_u32", sCnt, 0x10000)
        e.branch("s_cbranch_scc1", lre)
        e.cond_end()
        e.label(lok)
        self.stamp("kvgo")

        self.bg_on(900 + self.opt.get("slack", 2400))
        e.V("v_cvt_pk_bf16_f32", TMP[16], PL[0][0], PL[0][1])
        e.V("v_cvt_pk_bf16_f32", TMP[17], PL[0][2], PL[0][3])
        e.ds_write(vKvDst, TMP[16:18])
        e.wait_all_lg()
        e.barrier()
        FR = [TMP[16 + 4 * i:20 + 4 * i] for i in range(10)]
        for T in range(3):
            for ks in range(2):
                e.ds_read(FR[T * 2 + ks], vL16, IMG + (T * 2 + ks) * KB)
        for ks in range(2):
            e.ds_read(FR[6 + ks], vZ01, ks * 64)
            e.ds_read(FR[8 + ks], vZ2, ks * 64)
        oa = lambda T, u: ACC[(T * 2 + u) * 4:(T * 2 + u) * 4 + 4]
        for T in (3, 4, 0, 1, 2):
            for u in range(2):
                e.mfma(oa(T, u), FR[2 * T], PQ0[u], 0)
        for T in (3, 4, 0, 1, 2):
            for u in range(2):
                e.mfma(oa(T, u), FR[2 * T + 1], PQ1[u], oa(T, u))
        e.S("s_add_u32", sA, sOo, OB[p])
        e.S("s_add_u32", sB, sOoh, OB[p])
        e.S("s_add_u32", sD, sOoh, OB[p] + 20 * KB)
        ops = []
        for u in range(2):
            for x in (oa(3, u)[0], oa(3, u)[2], oa(4, u)[0]):
                e.V("v_add_f32", x, vEps[0], x)
        for u in range(2):
            for x in (oa(3, u)[0], oa(3, u)[2], oa(4, u)[0]):
                e.V("v_rcp_f32", x, x)
        for u in range(2):
            for T in range(3):
                for h in range(2):
                    x = oa(T, u)[2 * h:2 * h + 2]
                    dn = oa(3, u)[2 * h:2 * h + 2] if T < 2 else oa(4, u)[0:2]
                    e.V("v_pk_mul_f32", x, x, dn, mods="op_sel_hi:[1,0]")
            o4 = TMP[16 + 8 * u:20 + 8 * u]
            o2 = TMP[20 + 8 * u:22 + 8 * u]
            for j in range(4):
                e.V("v_cvt_pk_bf16_f32", o4[j], oa(0, u)[j], oa(1, u)[j])
            for h in range(2):
                e.V("v_cvt_pk_bf16_f32", o2[h], oa(2, u)[2 * h], oa(2, u)[2 * h + 1])
            if u == 0:
                ops += self.gstore([(o4, vAx[u], sA, 0), (o2, vOh, sB, 0)], p == 0)
            else:
                ops += self.gstore([(o4, vAx[u], sA, 0), (o2, vOh, sD, 0)], p == 0)
        self.bg_off()
        self.stamp("A3")
        def shadow():
            if p == 0:
                self.unpack(RES, RES[10:20])
                self.unpack(B2F, B2F[10:20])
        self.handoff(4 * p + 2, ops, shadow, [(vAx[0], sOo, OB[p], 0), (vAx[1], sOo, OB[p], 0), (vOh, sOoh, OB[p], 0), (vOh, sOoh, OB[p] + 20 * KB, 0)])

    def phase64(self, p, kind):
        e = self.e
        opt = self.opt
        nks = 10 if kind == "O" else 27
        name = "A4" if kind == "O" else "B2"
        acc = lambda T, u: ACC[(u * 5 + T) * 4:(u * 5 + T) * 4 + 4]
        if kind == "O":
            al = self.ALoad(self, vAo, (sXr, OB[p]), nks)
        else:
            al = self.ALoad(self, vAh, (sHr, HB[p]), nks)
        al.upto(opt.get("adist", 4) - 1)
        xf = lambda ks, u: a((ks * 2 + u) * 4, 4)
        if kind == "C":
            e.ds_read(TMP[50], vRF)
        i0 = self.seqstart[(name, p)]
        fb = 5 * nks - 3
        sst, sad = self.scratch(20, self.seq[i0 + fb][0])
        self.hold = sst
        stop = i0 + 5 * nks

        def mf(t, W, u):
            ks, T = divmod(t, 5)
            e.mfma(acc(T, u), W, xf(ks, u), acc(T, u) if ks else 0)
        last = kind == "C" and p == 1
        xv = 2 * p + (1 if kind == "O" else 2)
        fl = [] if last else [self.touch_gen([(vXs, sOx, XB[xv], 0), (vXs, sOx, XB[xv], 1024), (vXh, sOxh, XB[xv], 0), (vStW, sOst, STB[xv], 0)])]
        self.run_pass(5 * nks, mf, 5, xf, fl, force_bar=fb, chunk=(12 if kind == "O" else opt.get("chunkC", 8)), stop_reads=stop, aload=al,
                      amix=(1, 0) if kind == "O" else tuple(opt.get("amixC", (3, 2))), tail=900 + self.opt.get("slack", 2400))
        self.stamp(name)
        self.bg_on(900 + self.opt.get("slack", 2400))
        e.V("v_add_u32", TMP[0], sad, vXch)
        e.S("s_xor_b32", sA, sWave, 1)
        e.S("s_mul_i32", sA, sA, 5120)
        e.S("s_add_u32", sA, sA, sad)
        e.V("v_add_u32", TMP[1], sA, vL16)
        assert sst + 20 <= self.freed
        for T in range(5):
            e.ds_write(TMP[0], acc(T, 1), T * KB)
        e.wait_all_lg()
        e.barrier()
        PT = TMP[4:24]
        for T in range(5):
            e.ds_read(PT[4 * T:4 * T + 4], TMP[1], T * KB)
        own = ACC[0:20]
        if kind == "C":
            e.V("v_mul_f32", TMP[50], TMP[50], TMP[50])
        for h in range(10):
            x = own[2 * h:2 * h + 2]
            e.V("v_pk_add_f32", x, x, PT[2 * h:2 * h + 2])
            if kind == "O":
                e.V("v_pk_add_f32", x, x, RES[2 * h:2 * h + 2])
            else:
                e.V("v_pk_fma_f32", x, x, TMP[50:52], RES[2 * h:2 * h + 2], mods="op_sel_hi:[1,0,1]")
        PK = TMP[24:34]
        for a_ in range(2):
            for j in range(4):
                e.V("v_cvt_pk_bf16_f32", PK[4 * a_ + j], own[8 * a_ + j], own[8 * a_ + 4 + j])
        for h in range(2):
            e.V("v_cvt_pk_bf16_f32", PK[8 + h], own[16 + 2 * h], own[16 + 2 * h + 1])
        self.bg_off()
        if last:
            om = self.opt.get("outmod", "")
            e.bstore(PK[0:4], vOut, OUT, 0, 0, om)
            e.bstore(PK[4:8], vOut, OUT, 0, 64, om)
            e.bstore(PK[8:10], vOut4, OUT, 0, 128, om)
            self.stamp("end")
            return
        xv = 2 * p + (1 if kind == "O" else 2)
        ops = []
        e.S("s_add_u32", sA, sOx, XB[xv])
        e.S("s_add_u32", sB, sOxh, XB[xv])
        e.S("s_add_u32", sD, sOst, STB[xv])
        ops += self.gstore([(PK[0:4], vXs, sA, 0), (PK[4:8], vXs, sA, 1024), (PK[8:10], vXh, sB, 0)])
        sm, sq, t0 = TMP[36], TMP[37], TMP[38]
        e.V("v_mov_b32", sm, 0)
        e.V("v_mov_b32", sq, 0)
        for j in range(10):
            e.V("v_dot2c_f32_bf16", sm, PK[j], vOne)
            e.V("v_dot2c_f32_bf16", sq, PK[j], PK[j])
        e.V("v_permlane32_swap_b32", sm, sq)
        e.V("v_add_f32", sm, sm, sq)
        e.V("v_mov_b32", t0, sm)
        e.V("v_permlane16_swap_b32", sm, t0)
        e.V("v_add_f32", sm, sm, t0)
        ops += self.gstore([(sm, vStW, sD, 0)])
        self.stamp(name + "epi")

        def shadow():
            self.unpack(RES, PK)
            if kind == "O":
                for h in range(10):
                    x = RES[2 * h:2 * h + 2]
                    e.V("v_pk_add_f32", x, x, B2F[2 * h:2 * h + 2])
        self.handoff(4 * p + (3 if kind == "O" else 5), ops, shadow,
                     [(vStW, sOst, STB[xv], 0), (vXs, sOx, XB[xv], 0), (vXs, sOx, XB[xv], 1024), (vXh, sOxh, XB[xv], 0)])

    def phaseB1(self, p):
        e = self.e
        opt = self.opt
        xv = 2 * p + 1
        acc = lambda T, u: ACC[(T * 2 + u) * 4:(T * 2 + u) * 4 + 4]
        xf = lambda ks, u: a((ks * 2 + u) * 4, 4) if ks < 20 else XE[u]
        self.stats_loads(xv)
        al = self.ALoad(self, vAx, (sXr, XB[xv]), 20)
        al.upto(opt.get("adist", 4) - 1)
        stop = self.seqstart[("B2", p)]

        def mf(t, W, u):
            ks, T = divmod(t, 4)
            e.mfma(acc(T, u), W, xf(ks, u), acc(T, u) if ks else 0)
        tl = [(vHs, sOh, HB[p] + u * 54 * KB, a_ * KB) for a_ in range(3) for u in range(2)] + [(vHh, sOhh, HB[p] + u * 54 * KB, 0) for u in range(2)]
        self.run_pass(84, mf, 4, xf, [self.stats_gen(False), self.touch_gen(tl, p == 0)], stop_reads=stop, aload=al, tail=2100 + 300 + self.opt.get("slack", 2400))
        self.stamp("B1a")
        ops = []

        def epi(pairs, single):
            n = 0
            for u in range(2):
                sb = sD if u == 0 else sE
                e.S("s_add_u32", sb, sOh, HB[p] + u * 54 * KB); yield
                for a_ in pairs:
                    o = TMP[16 + 4 * (n % 4):20 + 4 * (n % 4)]
                    n += 1
                    for j in range(4):
                        x, y = acc(2 * a_, u)[j], acc(2 * a_ + 1, u)[j]
                        e.V("v_mul_f32_e64", x, x, f"|{x}|"); yield
                        e.V("v_mul_f32_e64", y, y, f"|{y}|"); yield
                        e.V("v_cvt_pk_bf16_f32", o[j], x, y); yield
                        e.V("v_pk_max_i16", o[j], o[j], 0); yield
                    ops.extend(self.gstore([(o, vHs, sb, a_ * KB)], p == 0)); yield
            if single:
                for u in range(2):
                    o = TMP[32 + 2 * u:34 + 2 * u]
                    for j in range(4):
                        x = acc(6, u)[j]
                        e.V("v_mul_f32_e64", x, x, f"|{x}|"); yield
                    for h in range(2):
                        e.V("v_cvt_pk_bf16_f32", o[h], acc(6, u)[2 * h], acc(6, u)[2 * h + 1]); yield
                        e.V("v_pk_max_i16", o[h], o[h], 0); yield
                e.S("s_add_u32", sA, sOhh, HB[p])
                e.S("s_add_u32", sB, sOhh, HB[p] + 54 * KB)
                ops.extend(self.gstore([(TMP[32:34], vHh, sA, 0), (TMP[34:36], vHh, sB, 0)], p == 0))
                yield

        def mf2(t, W, u):
            ks, T = divmod(t, 3)
            e.mfma(acc(4 + T, u), W, xf(ks, u), acc(4 + T, u) if ks else 0)
        self.run_pass(63, mf2, 3, xf, [epi([0, 1], False)], stop_reads=stop, force_bar=61, chunk=opt.get("chunkB", 16), tail=300 + self.opt.get("slack", 2400))
        self.stamp("B1b")
        for _ in epi([2], True):
            pass
        self.stamp("B1epi")
        self.handoff(4 * p + 4, ops, None, tl)

    def gen(self):
        e = self.e
        e.reset_state()
        self.cInvD = s(63)
        self.dmaf = self.dma_filler()
        self.prologue()
        self.stamp("entry")
        if self.opt.get("stamps"):
            e.memtime(sTm, True)
            e.V("v_writelane_b32", v(53), sTm[0], 62)
        self.startup()
        stop = self.opt.get("stop", 99)
        n = 0
        for p in range(2):
            for f in (lambda: self.phaseA(p), lambda: self.phase64(p, "O"), lambda: self.phaseB1(p), lambda: self.phase64(p, "C")):
                if n < stop:
                    f()
                n += 1
        if self.opt.get("stamps"):
            e.wait_all_vm()
            e.memtime(sTm, True)
            e.V("v_writelane_b32", v(53), sTm[0], 63)
            e.S("s_lshl_b32", sA, s(2), 2)
            e.S("s_add_u32", sA, sA, sWave)
            e.S("s_lshl_b32", sA, sA, 8)
            e.S("s_add_u32", sA, sA, STAMP)
            e.V("v_lshlrev_b32", TMP[1], 2, vLane)
            e.bstore(v(53), TMP[1], WS, sA)
        if self.opt.get("spin"):
            e.wait_all_vm()
            e.V("v_readfirstlane_b32", s(86), v(51))
            e.label("spin_loop")
            e.misc("s_memrealtime s[88:89]")
            e.misc("s_waitcnt lgkmcnt(0)")
            e.misc("s_sub_u32 s88, s88, s86")
            e.misc(f"s_cmp_lt_u32 s88, {self.opt['spin']}")
            e.misc("s_cbranch_scc1 spin_loop")
        e.S("s_add_u32", sA, s(2), sWave)
        e.S("s_cmp_lg_u32", sA, 0)
        e.branch("s_cbranch_scc1", "main_end")
        e.S("s_add_u32", sA, sBase, 16)
        e.V("v_mov_b32", TMP[0], sA)
        e.V("v_mov_b32", TMP[1], EPOCH)
        e.S("s_mov_b64", EXEC, 1)
        e.bstore(TMP[0], TMP[1], WS, 0)
        e.label("main_end")
        e.misc("s_endpgm")
```

```python
from asmgen import *
from layout import *
from gen_prep import mk_srd, allreduce_g
import math

BIG = 0x40000000
LOG2E = 1.4426950408889634
LN2 = 0.6931471805599453

IMG = 0
ZT = 6144
RST = 6400
DUMMY = 6912
RING = 8192
RB = 152
LDS_BYTES = RING + RB * KB
FI = 8

WS, OUT, XIN, SB2 = s(8, 4), s(12, 4), s(16, 4), s(20, 4)
sWave, sR, sC, sCG, sRH, sKH, sW2048 = [s(24 + i) for i in range(7)]
sSeg = {"A": s(31), "O": s(32), "B": s(33), "C": s(34)}
sXr, sHr, sSTr, sFRL, sFRG, sFC = [s(35 + i) for i in range(6)]
sA, sB, sD, sE, sDm, sLd = [s(41 + i) for i in range(6)]
sMaskV = s(48, 2)
sCnt = s(50)
sTT = s(51)
sTm = s(52, 2)
sOx, sOxh, sOst, sOo, sOoh, sOh, sOhh, sKv = [s(54 + i) for i in range(8)]
sLocal, sX1 = s(47), s(62)
sNan = s(90, 2)
sBase = s(92)
sOk = s(94, 2)
SR1, SR2 = s(84, 4), s(96, 4)
PP = s(64, 16)
pOut, pWs = s(80, 2), s(82, 2)
vDum = v(49)

vLane, vN, vG, vL16 = v(1), v(2), v(3), v(4)
vW = [v(5), v(6), v(7)]
vK = [v(8), v(9), v(10)]
vDma = v(11)
vAx = [v(12), v(13)]
vAo = [v(14), v(15)]
vAh = [v(16), v(17)]
vSt, vStW, vKvSrc, vKvDst, vT16, vZ01, vZ2, vRT, vRW, vRF, vOut, vOut4, vOne = [v(18 + i) for i in range(13)]
vOh, vXs, vXh, vHs, vHh, vFl, vPollR, vPollC, vXch = [v(31 + i) for i in range(9)]
XE = [v(40, 4), v(44, 4)]
vC2 = v(48, 2)
vC2b = v(50, 2)
vLn2 = v(52, 2)
vEps = v(54, 2)
RT = v(56, 8)
ACC = v(64, 64)
FIFO = v(128, 4 * FI)
RES = v(160, 20)
B2F = v(180, 20)
TMP = v(200, 56)


class Main:
    def __init__(self, e, opt):
        self.e = e
        self.opt = opt
        self.kname = opt["kname"]
        self.nstamp = 0
        self.segs = []
        pos = 0
        for p in range(2):
            for k, n in (("A", NA), ("O", NO), ("B", NB), ("C", NC)):
                self.segs.append((k, pos, n))
                pos += n
        self.total = pos
        self.ngroups = pos // 8
        self.issued = 0
        self.dmaop = {}
        self.freed = 0
        self.hold = None
        self.visible = 0
        self.seq = []
        self.seqstart = {}
        for p in range(2):
            b = self.segs[4 * p + 0][1]
            self.seqstart[("A1", p)] = len(self.seq)
            self.seq += [(b + i, "W") for i in range(105)]
            self.seqstart[("A2", p)] = len(self.seq)
            self.seq += [(b + 105 + i, "W") for i in range(63)]
            b = self.segs[4 * p + 1][1]
            self.seqstart[("A4", p)] = len(self.seq)
            self.seq += [(b + 2 * i, "K") for i in range(50)]
            b = self.segs[4 * p + 2][1]
            self.seqstart[("B1a", p)] = len(self.seq)
            self.seq += [(b + i, "W") for i in range(84)]
            self.seqstart[("B1b", p)] = len(self.seq)
            self.seq += [(b + 84 + i, "W") for i in range(63)]
            b = self.segs[4 * p + 3][1]
            self.seqstart[("B2", p)] = len(self.seq)
            self.seq += [(b + 2 * i, "K") for i in range(135)]
        self.rd = 0
        self.cons = 0
        self.lastbar = 0
        self.gate = NA // 8
        self.warn = []
        self.model = []
        self.own_end = 0
        self.deadline = lambda: 1 << 30

    def stamp(self, name):
        self.model.append((name, self.e.T))
        if not self.opt.get("stamps"):
            return
        e = self.e
        e.wait_all_lg()
        e.memtime(sTm)
        e.V("v_writelane_b32", v(53), sTm[0], self.nstamp)
        self.opt.setdefault("stampnames", []).append(name)
        self.nstamp += 1
        assert self.nstamp <= 62

    def endpos(self, i):
        p, k = self.seq[i]
        return p + (2 if k == "K" else 1)

    def ldsaddr(self, pos):
        return RING + (pos % RB) * KB

    def can_issue(self):
        if self.issued >= min(self.ngroups, self.gate):
            return False
        lim = self.freed if self.hold is None else min(self.freed, self.hold)
        return 8 * (self.issued + 1) <= lim + RB

    def dma_group(self):
        e = self.e
        g = self.issued
        self.issued += 1
        pos = 8 * g
        for k, b, n in self.segs:
            if b <= pos < b + n:
                break
        e.S("s_add_u32", M0, sW2048, self.ldsaddr(pos))
        yield
        e.S("s_add_u32", sDm, sSeg[k], (pos - b) * KB)
        yield
        md = "nt" if k in self.opt.get("ntseg", "") else ""
        e.dma(vDma, WS, sDm, 0, md, cls=self.dcls(k))
        yield
        self.dmaop[g] = e.dma(vDma, WS, sDm, 1024, md, cls=self.dcls(k))
        yield

    def dcls(self, k):
        return (750, 80, self.opt.get("svcAB", 150)) if k in "AB" else (750, self.opt.get("svcOC", 92), 75)

    def dma_ok(self):
        e = self.e
        if self.mid_group():
            g = self.issued - 1
        elif self.can_issue():
            g = self.issued
        else:
            return False
        if e.outstanding() >= self.opt.get("qmax", 13):
            return False
        if self.mid_group() or 8 * g < self.own_end:
            return True
        c = self.dcls(self.segof(8 * g))
        return e.predict(c) + c[2] <= self.deadline()

    def dma_filler(self):
        while True:
            if self.can_issue():
                for _ in self.dma_group():
                    yield True
            else:
                yield False

    def flush_dma_partial(self):
        while self.issued > 0 and (self.issued - 1) not in self.dmaop:
            next(self.dmaf)

    def dma_all(self):
        self.flush_dma_partial()
        while self.can_issue():
            for _ in self.dma_group():
                pass

    def ring_barrier(self, need_idx, extra_ops=(), free_all=False):
        e = self.e
        need_idx = min(need_idx, len(self.seq))
        upto = self.endpos(need_idx - 1) if need_idx > 0 else 0
        g = (upto + 7) // 8
        self.flush_dma_partial()
        while self.issued < g:
            assert self.can_issue(), ("ring deadlock", self.issued, g, self.freed, self.hold)
            self.warn.append(f"forced dma group {self.issued} at seq {self.rd}")
            for _ in self.dma_group():
                pass
        ops = list(extra_ops)
        for gg in range(self.visible // 8, g):
            ops.append(self.dmaop[gg])
        e.wait_ops(ops)
        e.barrier()
        self.visible = max(self.visible, 8 * g)
        self.freed = self.seq[self.cons][0] if self.cons < len(self.seq) else self.total
        self.lastbar = self.rd

    def issue_read(self):
        e = self.e
        i = self.rd
        if i >= len(self.seq):
            return
        pos, k = self.seq[i]
        assert self.endpos(i) <= self.visible, ("read of invisible block", i, pos, self.visible)
        ad = self.ldsaddr(pos)
        base = (vW if k == "W" else vK)[ad >> 16]
        slot = i % FI
        e.ds_read(FIFO[4 * slot:4 * slot + 4], base, ad & 0xffff)
        self.rd += 1

    def prime(self):
        while self.rd < self.cons + FI and self.rd < len(self.seq) and self.endpos(self.rd) <= self.visible:
            self.issue_read()

    def run_pass(self, n, mf, ntile, xf, fillers=(), chunk=24, stop_reads=None, hooks=None,
                 aload=None, vrate=0.5, amix=(1, 0), over=0, force_bar=None, late=None, see_all=False, tail=2000):
        e = self.e
        fillers = list(fillers)
        lim = stop_reads if stop_reads is not None else len(self.seq)
        st = {"next": 0, "k": 0, "t": 0}
        self.own_end = self.endpos(lim - 1)
        self.deadline = lambda: e.T + (n - st["t"]) * 33 + tail

        i_first = self.cons

        def dma_need():
            g = self.issued - 1 if self.mid_group() else self.issued
            for i in range(self.cons, lim):
                if self.endpos(i) > 8 * g:
                    return i - i_first - FI - chunk
            return 1 << 20

        def one_vmem():
            na, nd = amix
            n0 = len(e.vm)
            if st.get("late"):
                if e.T < st["next"]:
                    return False
                try:
                    next(st["late"])
                except StopIteration:
                    st["late"] = None
                    return False
            else:
                na_ = (aload.n // 2) * ntile if (aload is not None and not aload.done) else 1 << 21
                nd_ = dma_need() if (self.mid_group() or self.can_issue()) else 1 << 22
                urgent = min(na_, nd_) - st["t"] <= self.opt.get("horizon", 24)
                if e.T < st["next"] and not urgent:
                    return False
                if na_ <= nd_:
                    if na_ >= 1 << 21 or (e.outstanding() >= self.opt.get("qmax", 13) and not urgent):
                        return False
                    aload.step()
                elif urgent or self.dma_ok():
                    next(self.dmaf)
                else:
                    return False
            if len(e.vm) > n0:
                st["k"] += 1
                st["next"] = e.T + self.opt.get("vgap", 24)
            return True

        def fill(budget):
            while budget > 0:
                n0 = e.ninst
                did = one_vmem()
                if not did:
                    for f in list(fillers):
                        try:
                            if next(f) == "idle":
                                continue
                            did = True
                            break
                        except StopIteration:
                            fillers.remove(f)
                if not did:
                    return
                budget -= e.ninst - n0

        def waits_for(t):
            regs = []
            for tt in (t, t + 1):
                if tt < n:
                    ks = tt // ntile
                    if aload is not None:
                        aload.upto(ks)
                    idx = self.cons + (tt - t)
                    if idx < self.rd:
                        regs += FIFO[4 * (idx % FI):4 * (idx % FI) + 4].regs()
                    regs += xf(ks, 0).regs() + xf(ks, 1).regs()
            return e._pending(regs)

        e.wait_ops(waits_for(0))
        if aload is not None:
            self.stamp("1st")
            self.warn.append(f"fill {8 * self.issued - self.seq[self.cons][0]}")
        for t in range(n):
            if aload is not None and self.opt.get("midstamp") and t == n // 2:
                self.stamp("half")
            i = self.cons
            assert self.rd > i, ("fifo underrun", i)
            W = FIFO[4 * (i % FI):4 * (i % FI) + 4]
            st["t"] = t
            if hooks and hooks.get("add"):
                g_ = hooks["add"](t)
                if g_:
                    fillers.append(g_)
            ov = over if fillers else 0
            mf(t, W, 0)
            bar = self.rd < lim and (self.endpos(self.rd) > self.visible or self.rd - self.lastbar >= chunk)
            bar = bar or t == force_bar
            if late and t >= late[0] and not st.get("lateon") and (aload is None or aload.done) and 8 * self.issued >= min(self.own_end, self.endpos(min(i_first + n + FI, lim) - 1)) and not self.mid_group():
                st["late"] = late[1]
                st["lateon"] = True
                self.warn.append(f"late at {t}")
            if bar:
                ex, after = [], None
                if hooks and hooks.get("bar"):
                    ex, after = hooks["bar"](t)
                self.ring_barrier(lim if see_all else min(self.rd + chunk, lim), ex)
                if after:
                    after()
            else:
                fill(2 + ov)
            mf(t, W, 1)
            self.cons += 1
            used = 0
            if self.rd < lim:
                self.issue_read()
                used = 1
            pend = waits_for(t + 1) if (t % 2 == 1 and t + 1 < n) else []
            fill(2 + ov - used - (1 if pend else 0))
            if pend:
                e.wait_ops(waits_for(t + 1))
        if late and not st.get("lateon"):
            st["late"] = late[1]
        for f in fillers + ([st["late"]] if st.get("late") else []):
            for _ in f:
                pass

    def segof(self, pos):
        for k, b, n in self.segs:
            if b <= pos < b + n:
                return k
        return "O"

    def mid_group(self):
        return self.issued > 0 and (self.issued - 1) not in self.dmaop

    def dma_burst(self, maxgroups=99):
        e = self.e
        self.flush_dma_partial()
        gs = []
        while self.can_issue() and len(gs) < maxgroups:
            gs.append(self.issued)
            self.issued += 1
        for w in (1, 2, 3):
            mine = gs[w - 1::3]
            if not mine:
                continue
            skip = e.newlabel("noburst")
            e.S("s_cmp_lg_u32", sWave, w)
            e.branch("s_cbranch_scc1", skip)
            e.cond_begin()
            for g in mine:
                pos = 8 * g
                for k, b, n in self.segs:
                    if b <= pos < b + n:
                        break
                for h in range(2):
                    e.S("s_mov_b32", M0, self.ldsaddr(pos) + h * 4096)
                    e.S("s_add_u32", sDm, sSeg[k], (pos - b) * KB + h * 4096)
                    for q in range(4):
                        self.dmaop[g] = e.dma(vL16, WS, sDm, q * 1024)
            e.cond_end()
            e.label(skip)

    def prologue(self):
        e = self.e
        e.S("s_cmp_ge_u32", s(2), 256)
        e.branch("s_cbranch_scc1", "main_end")
        if self.opt.get("stamps"):
            e.V("v_mov_b32", v(53), 0)
        self.stamp("t0")
        if self.opt.get("spin"):
            e.memtime(sTm, True)
            e.V("v_mov_b32", v(51), sTm[0])
        e.sload(PP, s(0, 2), 0)
        e.sload(pOut, s(0, 2), 64)
        e.sload(pWs, s(0, 2), 80)
        T0, T1, T2, T3 = TMP[48], TMP[49], TMP[50], TMP[51]
        e.S("s_getpc_b64", s(88, 2))
        e.label("main_pc")
        e.V("v_lshlrev_b32", T2, 5, v(0))
        e.S("s_sub_u32", s(88), s(88), "main_pc-" + self.kname)
        e.S("s_subb_u32", s(89), s(89), 0)
        e.misc(f"global_load_dword {vDum}, {T2}, s[88:89]")
        e._vm([], (2000, 30, 0))
        e.V("v_lshrrev_b32", T0, 6, v(0))
        e.V("v_and_b32", vLane, 63, v(0))
        e.V("v_readfirstlane_b32", sWave, T0)
        e.S("s_lshr_b32", sB, s(2), 3)
        e.S("s_mul_i32", sB, sB, 1792)
        e.S("s_add_u32", sB, sB, 8192)
        e.V("v_lshl_add_u32", T2, v(0), 3, sB)
        e.V("v_min_u32", T2, self.opt.get("code_bytes", 32768) - 4, T2)
        e.misc(f"global_load_dword {vDum}, {T2}, s[88:89]")
        e._vm([], (2000, 30, 0))
        e.V("v_lshlrev_b32", vL16, 4, vLane)
        e.V("v_and_b32", vN, 15, vLane)
        e.V("v_lshrrev_b32", vG, 4, vLane)
        self.vBig = TMP[52]
        e.V("v_mov_b32", self.vBig, BIG)
        e.S("s_and_b32", sA, s(2), 7)
        e.S("s_lshl_b32", sA, sA, 1)
        e.S("s_lshr_b32", sB, s(2), 7)
        e.S("s_add_u32", sR, sA, sB)
        e.S("s_bfe_u32", sC, s(2), (4 << 16) | 3)

    def gather(self, raw, srd, sstride, vaddr, srow, n=8):
        e = self.e
        e.S("s_mul_i32", sLd, srow, sstride)
        for i in range(n):
            e.bload(raw[i], vaddr, srd, sLd, 0, w="ushort", cls=(2500, 32, 0))
            if i < n - 1:
                e.S("s_add_u32", sLd, sLd, sstride)

    def pack(self, raw, n=4):
        for i in range(n):
            self.e.V("v_lshl_or_b32", raw[i], raw[2 * i + 1], 16, raw[2 * i])

    def colsum(self, regs, ex, vs, vt):
        e = self.e
        e.V("v_mov_b32", vs, 0)
        for r_ in regs:
            e.V("v_dot2c_f32_bf16", vs, r_, vOne)
        allreduce_g(e, vs, vt)
        e.V("v_sub_f32", vs, 0, vs)
        e.V("v_cvt_pk_bf16_f32", vt, vs, vs)
        e.V("v_lshlrev_b32", vt, 16, vt)
        e.V("v_sub_f32", vt, vs, vt)
        e.V("v_cvt_pk_bf16_f32", ex[0], vs, vt)
        e.V("v_and_b32", ex[1], "0xffff", ex[0])

    def startup(self):
        e = self.e
        vBig = self.vBig
        RAW1, EX = ACC[0:20], ACC[20:24]
        RAW2 = TMP[8:40]
        vCol, vReg, vLeft, vT0, vT1, vSum, vLd = [FIFO[i] for i in range(7)]
        vA0, vA1, vA2, vSt2, vBias = RES[8], RES[9], B2F[8], B2F[9], TMP[50]
        sT, sP = s(54), s(55)
        sStr = s(56)
        XJ = [RES[0:4], RES[4:8], B2F[0:4]]
        XD, XA, XB_ = B2F[4], ACC[32], ACC[33]
        XM = [s(57), s(58), s(59)]
        T0, T1, T2, T3 = TMP[48], TMP[49], TMP[50], TMP[51]
        e.V("v_lshrrev_b32", T1, 3, vLane)
        e.V("v_and_b32", T3, 7, vLane)
        e.V("v_mul_u32_u24", T0, 1280, T3)
        e.V("v_lshl_add_u32", XA, T1, 4, T0)
        e.V("v_lshrrev_b32", T2, 4, vLane)
        e.V("v_lshl_add_u32", XB_, T2, 7, XA)
        e.V("v_lshlrev_b32", XD, 8, T1)
        e.V("v_lshl_add_u32", XD, T3, 4, XD)
        e.S("s_lshl_b32", sE, sR, 4)
        e.S("s_add_u32", sE, sE, sC)
        e.S("s_mul_i32", sE, sE, 8 * 1280)
        e.S("s_mul_i32", sD, sWave, 3)
        mk_srd(e, XIN, PP[0:2], XSZ)
        for k in range(3):
            e.S("s_add_u32", XM[k], sD, k)
            e.S("s_cmp_ge_u32", XM[k], 8)
            e.S("s_cselect_b64", VCC, -1, 0)
            e.S("s_cselect_b32", sA, 40, 10)
            e.S("s_cselect_b32", sB, 8 - 8 * 40, 0)
            e.V("v_cndmask_b32", T0 if k != 1 else T1, XA, XB_, VCC)
            e.S("s_mul_i32", sA, sA, XM[k])
            e.S("s_add_u32", sA, sA, sB)
            e.S("s_lshl_b32", sA, sA, 4)
            e.S("s_add_u32", sA, sA, sE)
            e.S("s_cmp_ge_u32", XM[k], 10)
            e.S("s_cselect_b32", sA, BIG, sA)
            e.S("s_cselect_b32", XM[k], BIG // 2048, XM[k])
            e.bload(XJ[k], T0 if k != 1 else T1, XIN, sA, 0, cls=(2000, 100, 0))
        self.stamp("issx")
        e.S("s_lshr_b32", sP, sR, 1)
        e.S("s_and_b32", sT, sR, 1)
        e.S("s_lshl_b32", sT, sT, 2)
        e.S("s_add_u32", sT, sT, sWave)
        e.S("s_mov_b32", s(4), (656 << 20) | (660 << 10) | 640)
        e.S("s_mov_b32", s(5), 0)
        e.S("s_mul_i32", sA, sT, 10)
        e.S("s_lshr_b32", sA, s(4), sA)
        e.S("s_and_b32", sA, sA, 1023)
        for t, val in ((3, 1280), (4, 1300), (5, 0), (6, 1), (7, 32)):
            e.S("s_cmp_eq_u32", sT, t)
            e.S("s_cselect_b32", sA, val, sA)
        e.S("s_mul_i32", sB, sC, 40)
        e.S("s_add_u32", sA, sA, sB)
        e.V("v_add_u32", vCol, sA, vN)
        e.V("v_add_u32", vT0, vCol, vN)
        e.S("s_sub_u32", sB, sT, 5)
        e.S("s_cmp_lt_u32", sB, 2)
        e.S("s_cselect_b64", VCC, -1, 0)
        e.V("v_cndmask_b32", vCol, vCol, vT0, VCC)
        e.V("v_lshrrev_b32", vT0, 3, vN)
        e.V("v_mul_u32_u24", vT0, 632 - 32, vT0)
        e.V("v_lshrrev_b32", vT1, 2, vN)
        e.V("v_lshl_add_u32", vT0, vT1, 4, vT0)
        e.V("v_add3_u32", vT0, vT0, vN, sA)
        e.S("s_cmp_eq_u32", sT, 2)
        e.S("s_cselect_b64", VCC, -1, 0)
        e.V("v_cndmask_b32", vCol, vCol, vT0, VCC)
        e.V("v_lshlrev_b32", vCol, 1, vCol)
        e.S("s_cmp_eq_u32", sT, 7)
        e.S("s_cselect_b32", sB, 8, 16)
        e.V("v_cmp_le_u32", VCC, sB, vN)
        e.S("s_mov_b32", sStr, 3840)
        e.V("v_cndmask_b32", vCol, vCol, vBig, VCC)
        e.S("s_mov_b32", sD, 8 * 3840)
        e.V("v_mad_u32_u24", vReg, vG, sD, vCol)
        e.V("v_and_b32", vT0, 1, vG)
        e.V("v_lshrrev_b32", vT1, 1, vG)
        e.V("v_lshl_add_u32", vLd, vT0, 1, vT1)
        e.S("s_mov_b32", sD, 4 * 3840)
        e.V("v_mad_u32_u24", vLeft, vLd, sD, vCol)
        mk_srd(e, SR1, PP[2:4], D * 3 * D * 2)
        e.S("s_mul_i32", sB, sP, 80)
        self.gather(RAW1[0:8], SR1, sStr, vReg, sB)
        e.S("s_add_u32", sA, sB, 32)
        self.gather(RAW1[8:16], SR1, sStr, vReg, sA)
        e.S("s_add_u32", sA, sB, 64)
        self.gather(RAW1[16:20], SR1, sStr, vLeft, sA, 4)
        self.stamp("iss1")
        def r2touch():
            e.S("s_lshl_b32", sA, s(2), 2)
            e.S("s_add_u32", sA, sA, sWave)
            e.V("v_min_u32", T0, 17, vLane)
            e.V("v_lshlrev_b32", T0, 7, T0)
            e.S("s_mul_i32", sB, sA, 2160)
            mk_srd(e, SR2, PP[8:10], F * D * 2)
            e.touch(vDum, T0, SR2, sB, 0, cls=(2000, 30, 0))
            mk_srd(e, SR2, PP[12:14], F * D * 2)
            e.touch(vDum, T0, SR2, sB, 0, cls=(2000, 30, 0))
            e.V("v_min_u32", T0, 7 * 128, T0)
            mk_srd(e, SR2, PP[4:6], D * D * 2)
            e.S("s_mul_i32", sB, sA, 800)
            e.touch(vDum, T0, SR2, sB, 0, cls=(2000, 30, 0))
        if self.opt.get("r2touch", 3) == 1:
            r2touch()
        if self.opt.get("wsoff"):
            e.S("s_add_u32", pWs[0], pWs[0], self.opt["wsoff"] << 20)
            e.S("s_addc_u32", pWs[1], pWs[1], 0)
        mk_srd(e, WS, pWs, WS_USED)
        e.sload(sBase, pWs, EPOCH)
        e.S("s_mov_b32", sA, "0x3f803f80")
        e.V("v_mov_b32", vOne, sA)
        ops1 = []
        e.S("s_lshr_b32", sA, sC, 1)
        e.S("s_lshl_b32", sB, sR, 3)
        e.S("s_add_u32", sA, sA, sB)
        e.S("s_mul_i32", sA, sA, 20 * KB)
        e.S("s_and_b32", sB, sC, 1)
        e.S("s_lshl_b32", sB, sB, 7)
        e.S("s_add_u32", sA, sA, sB)
        e.S("s_add_u32", sA, sA, XB[0])
        for k in range(3):
            e.S("s_lshl_b32", sB, XM[k], 11)
            e.S("s_add_u32", sB, sB, sA)
            ops1.append(e.bstore(XJ[k], XD, WS, sB, 0, "sc1", cls=(1000, 70, 0)))
        xs = ACC[26:28]
        xz = ACC[24:26]
        MK = ACC[28:32]
        for r_ in (xs[0], xs[1], xz[0], xz[1]):
            e.V("v_mov_b32", r_, 0)
        for k in range(3):
            for i in range(4):
                e.V("v_dot2c_f32_bf16", xs[0], XJ[k][i], vOne)
                e.V("v_dot2c_f32_bf16", xs[1], XJ[k][i], XJ[k][i])
        for h in range(2):
            e.V("v_add_f32_dpp", xs[h], xs[h], xs[h], mods="row_ror:8 row_mask:0xf bank_mask:0xf")
            allreduce_g(e, xs[h], vT0)
        e.S("s_lshl_b32", sA, sR, 3)
        e.S("s_add_u32", sA, sA, sWave)
        e.S("s_lshl_b32", sA, sA, 10)
        e.S("s_lshl_b32", sB, sC, 6)
        e.S("s_add_u32", sA, sA, sB)
        e.S("s_add_u32", sA, sA, STB[0])
        e.S("s_add_u32", sB, sA, 4096)
        e.V("v_lshlrev_b32", vT0, 3, vLane)
        e.S("s_mov_b64", EXEC, "0xff")
        ops1.append(e.bstore(xs, vT0, WS, sA, 0, "sc1", cls=(1000, 20, 0)))
        ops1.append(e.bstore(xz, vT0, WS, sB, 0, "sc1", cls=(1000, 20, 0)))
        e.S("s_mov_b64", EXEC, -1)
        self.stamp("xst")
        e.S("s_cmp_lt_u32", sT, 5)
        e.S("s_cselect_b32", sE, 5, 3)
        e.S("s_cselect_b32", sA, 0, 100)
        e.S("s_add_u32", sA, sA, sT)
        e.S("s_mul_i32", sB, sC, NA)
        e.S("s_add_u32", sA, sA, sB)
        e.S("s_add_u32", sA, sA, WA // KB)
        e.S("s_lshl_b32", sA, sA, 10)
        e.S("s_lshl_b32", sE, sE, 10)
        e.S("s_mul_i32", sB, sP, sE)
        e.S("s_lshl_b32", sB, sB, 1)
        e.S("s_add_u32", sB, sB, sA)
        self.pack(RAW1[0:8])
        ops1.append(e.bstore(RAW1[0:4], vL16, WS, sB, 0, "sc1", cls=(1000, 70, 0)))
        e.S("s_add_u32", sB, sB, sE)
        self.pack(RAW1[8:16])
        ops1.append(e.bstore(RAW1[8:12], vL16, WS, sB, 0, "sc1", cls=(1000, 70, 0)))
        e.S("s_lshr_b32", sB, sP, 1)
        e.S("s_add_u32", sB, sB, 16)
        e.S("s_mul_i32", sB, sB, sE)
        e.S("s_add_u32", sB, sB, sA)
        e.S("s_and_b32", sD, sP, 1)
        e.S("s_lshl_b32", s(4), sD, 9)
        e.S("s_add_u32", sB, sB, s(4))
        e.V("v_lshlrev_b32", vT0, 8, vG)
        e.V("v_and_b32", vT0, 256, vT0)
        e.V("v_lshl_add_u32", vT0, vN, 4, vT0)
        e.V("v_lshrrev_b32", vT1, 1, vG)
        e.V("v_lshl_add_u32", vLd, vT1, 3, vT0)
        self.pack(RAW1[16:20], 2)
        ops1.append(e.bstore(RAW1[16:18], vLd, WS, sB, 0, "sc1", cls=(1000, 40, 0)))
        self.colsum([RAW1[i] for i in (0, 1, 2, 3, 8, 9, 10, 11, 16, 17)], EX, vSum, vT0)
        e.S("s_mul_i32", sB, sE, 20)
        e.S("s_add_u32", sB, sB, sA)
        e.S("s_lshr_b32", sA, sP, 1)
        e.S("s_lshl_b32", sA, sA, 8)
        e.S("s_add_u32", sB, sB, sA)
        e.S("s_lshl_b32", sD, sD, 3)
        e.S("s_add_u32", sB, sB, sD)
        e.S("s_mov_b64", EXEC, "0xffff")
        ops1.append(e.bstore(EX[0:2], vL16, WS, sB, 0, "sc1", cls=(1000, 20, 0)))
        e.S("s_mov_b64", EXEC, -1)
        self.stamp("r1")
        if self.opt.get("r2touch", 3) == 2:
            r2touch()
        for i in range(4):
            e.V("v_mov_b32", MK[i], -1)
        e.S("s_lshl_b32", sA, sC, 4)
        e.S("s_add_u32", sA, sA, sR)
        e.S("s_mul_i32", sA, sA, KVSZ)
        e.S("s_mul_i32", sB, sWave, 896)
        e.S("s_min_u32", sB, sB, KVSZ - 1024)
        e.S("s_add_u32", sA, sA, sB)
        e.S("s_add_u32", sA, sA, KVB[0])
        ops1.append(e.bstore(MK, vL16, WS, sA, 0, "sc1", cls=(1000, 70, 0)))
        self.stamp("xjob")
        e.S("s_and_b32", sCG, sC, 7)
        e.S("s_lshr_b32", sRH, sC, 3)
        if self.opt.get("r2touch", 3) == 3:
            r2touch()
        mk_srd(e, SB2, PP[14:16], D * 2)
        self.prologue2()
        self.stamp("pro2")
        sU, sP, sStr, sJ = s(88), s(89), s(100), s(101)
        rows = [s(3 + i) for i in range(4)]
        D2 = [s(64), s(65), s(66), s(67)]
        sDB, sDX = s(70), s(71)
        vSel0, vSel1 = vA1, vA2
        mk_srd(e, SR1, PP[10:12], F * 2)
        e.S("s_lshl_b32", sJ, sRH, 4)
        e.S("s_add_u32", sJ, sJ, sR)
        e.S("s_lshl_b32", sJ, sJ, 2)
        e.S("s_add_u32", sJ, sJ, sWave)
        e.V("v_lshrrev_b32", vT0, 1, vG)
        e.V("v_and_b32", vT1, 1, vG)
        e.V("v_mov_b32", vSt2, vL16)
        e.S("s_mov_b32", sDX, BIG)
        lo, lc, lj = e.newlabel("job_wo"), e.newlabel("job_w2"), e.newlabel("job_go")

        def unit(sbase, nu, stride, ca, cb, nreg, dB):
            e.S("s_lshl_b32", sA, sU, 5)
            e.S("s_add_u32", sA, sA, sbase)
            e.S("s_lshl_b32", sA, sA, 1)
            e.S("s_mov_b32", sDB, dB)
            e.S("s_cmp_lt_u32", sU, nu)
            e.S("s_cselect_b64", VCC, -1, 0)
            e.S("s_cselect_b32", sDB, sDB, BIG)
            e.V("v_lshlrev_b32", vCol, 2, vN)
            e.V("v_and_b32", vReg, 14, vN)
            e.V("v_lshlrev_b32", vReg, 1, vReg)
            e.V("v_cndmask_b32", vCol, vReg, vCol, VCC)
            e.V("v_add_u32", vCol, sA, vCol)
            e.V("v_and_b32", vReg, 1, vN)
            e.V("v_cndmask_b32", vReg, vReg, 0, VCC)
            e.S("s_mov_b32", sA, "0x02020202")
            e.V("v_mul_lo_u32", vReg, vReg, sA)
            e.V("v_add_u32", vSel0, "0x05040100", vReg)
            e.S("s_mov_b32", sStr, stride)
            e.S("s_mov_b32", sD, 8 * stride)
            e.V("v_mul_u32_u24", vReg, sD, vG)
            e.S("s_mov_b32", sD, ca * stride)
            e.V("v_mul_u32_u24", vLeft, sD, vT0)
            e.S("s_mov_b32", sD, cb * stride)
            e.V("v_mad_u32_u24", vLeft, vT1, sD, vLeft)
            e.S("s_cmp_lt_u32", sP, nreg)
            e.S("s_cselect_b64", VCC, -1, 0)
            e.V("v_cndmask_b32", vA0, vLeft, vReg, VCC)

        def split_dests(half):
            for b in range(4):
                e.S("s_lshl_b32", sA, sP, 2)
                e.S("s_add_u32", sA, sA, b)
                e.S("s_mul_i32", sD, sA, 10)
                e.S("s_cmp_ge_u32", sA, half)
                e.S("s_cselect_b32", sB, 10 * half - 1, 0)
                e.S("s_sub_u32", sD, sD, sB)
                e.S("s_add_u32", sD, sD, sE)
                e.S("s_lshl_b32", D2[b], sD, 10)
                if half == 27 and b >= 2:
                    e.S("s_cmp_ge_u32", sA, 54)
                    e.S("s_cselect_b32", D2[b], BIG, D2[b])

        def div3(dq, dr, src):
            e.S("s_mul_i32", dq, src, 43691)
            e.S("s_lshr_b32", dq, dq, 17)
            e.S("s_mul_i32", sA, dq, 3)
            e.S("s_sub_u32", dr, src, sA)

        e.S("s_cmp_ge_u32", sJ, 55)
        e.branch("s_cbranch_scc1", lc)
        e.S("s_cmp_ge_u32", sJ, 40)
        e.branch("s_cbranch_scc1", lo)
        e.cond_begin()
        mk_srd(e, SR2, PP[8:10], D * F * 2)
        e.S("s_and_b32", sU, sJ, 3)
        e.S("s_lshr_b32", sP, sJ, 2)
        e.S("s_cmp_ge_u32", sP, 5)
        e.S("s_cselect_b32", sA, 5, 0)
        e.S("s_cselect_b32", sJ, 8, 0)
        e.S("s_sub_u32", sP, sP, sA)
        e.S("s_add_u32", sJ, sJ, sCG)
        e.S("s_mul_i32", sE, sJ, 112)
        e.S("s_max_u32", sB, sJ, 12)
        e.S("s_sub_u32", sB, sB, 12)
        e.S("s_lshl_b32", sB, sB, 4)
        e.S("s_sub_u32", sE, sE, sB)
        unit(sE, 3, 3456, 80, 8, 4, 1024)
        e.S("s_lshl_b32", sA, sU, 4)
        e.S("s_add_u32", sA, sA, sJ)
        e.S("s_cmp_ge_u32", sA, 3 * 16 + 12)
        e.S("s_cselect_b64", VCC, -1, 0)
        e.V("v_cndmask_b32", vCol, vCol, vBig, VCC)
        for b in range(4):
            e.S("s_mul_i32", sA, sP, 160)
            e.S("s_add_u32", sA, sA, 80 * (b >> 1) + 32 * (b & 1))
            e.S("s_cmp_eq_u32", sP, 4)
            e.S("s_cselect_b32", rows[b], 160 * b + 64, sA)
        e.S("s_cmp_lt_u32", sU, 2)
        e.S("s_cselect_b32", s(79), 4, 3)
        e.S("s_cselect_b32", sE, 0, 80)
        e.S("s_lshl_b32", sA, sU, 1)
        e.S("s_add_u32", sE, sE, sA)
        e.S("s_mul_i32", sB, sJ, NB)
        e.S("s_add_u32", sE, sE, sB)
        e.S("s_add_u32", sE, sE, WB // KB)
        for b in range(4):
            e.S("s_lshl_b32", sA, sP, 2)
            e.S("s_add_u32", sA, sA, b)
            e.S("s_mul_i32", sA, sA, s(79))
            e.S("s_add_u32", sA, sA, sE)
            e.S("s_lshl_b32", D2[b], sA, 10)
        e.S("s_mul_i32", sD, s(79), 20)
        e.S("s_add_u32", sD, sD, sE)
        e.S("s_lshl_b32", sDX, sD, 10)
        e.branch("s_branch", lj)
        e.cond_end()
        e.label(lo)
        e.cond_begin()
        mk_srd(e, SR2, PP[4:6], D * D * 2)
        e.S("s_sub_u32", sJ, sJ, 40)
        div3(sP, sU, sJ)
        e.S("s_mul_i32", sE, sCG, 80)
        unit(sE, 2, 1280, 80, 40, 4, 2048)
        for b in range(4):
            e.S("s_mul_i32", sA, sP, 160)
            e.S("s_add_u32", sA, sA, 40 * b)
            e.S("s_cmp_eq_u32", sP, 4)
            e.S("s_cselect_b32", rows[b], 160 * b + 32, sA)
        e.S("s_mul_i32", sE, sCG, NO)
        e.S("s_add_u32", sE, sE, WO // KB)
        e.S("s_lshl_b32", sA, sU, 2)
        e.S("s_add_u32", sE, sE, sA)
        split_dests(10)
        e.branch("s_branch", lj)
        e.cond_end()
        e.label(lc)
        e.cond_begin()
        mk_srd(e, SR2, PP[12:14], F * D * 2)
        e.S("s_sub_u32", sJ, sJ, 55)
        div3(sP, sU, sJ)
        e.S("s_mul_i32", sE, sCG, 80)
        unit(sE, 2, 1280, 112, 8, 12, 2048)
        e.S("s_cmp_ge_u32", sP, 14)
        e.S("s_cselect_b64", VCC, -1, 0)
        e.V("v_cndmask_b32", vCol, vCol, vBig, VCC)
        e.V("v_cndmask_b32", vSt2, vSt2, vBig, VCC)
        e.S("s_min_u32", sP, sP, 13)
        for b in range(4):
            e.S("s_lshl_b32", sD, sP, 2)
            e.S("s_add_u32", sD, sD, b)
            e.S("s_mul_i32", sA, sD, 43691)
            e.S("s_lshr_b32", sA, sA, 17)
            e.S("s_lshl_b32", sA, sA, 4)
            e.S("s_min_u32", sA, sA, 192)
            e.S("s_lshl_b32", sB, sD, 5)
            e.S("s_add_u32", sA, sA, sB)
            e.S("s_mul_i32", sB, sD, 224)
            e.S("s_sub_u32", sB, sB, 224 * 48 - 96)
            e.S("s_cmp_ge_u32", sD, 48)
            e.S("s_cselect_b32", rows[b], sB, sA)
        e.S("s_mul_i32", sE, sCG, NC)
        e.S("s_add_u32", sE, sE, WC // KB)
        e.S("s_lshl_b32", sA, sU, 2)
        e.S("s_add_u32", sE, sE, sA)
        split_dests(27)
        e.cond_end()
        e.label(lj)
        e.V("v_add_u32", vA0, vA0, vCol)
        e.S("s_cmp_lt_u32", sP, 2)
        e.S("s_cselect_b64", VCC, -1, 0)
        e.V("v_cndmask_b32", vBias, vBig, vCol, VCC)
        e.V("v_mov_b32", vSel1, "0x07060302")
        e.V("v_add_u32", vT0, sP, vG)
        e.V("v_lshrrev_b32", vT1, 1, vT0)
        e.V("v_lshlrev_b32", vLd, 4, vN)
        e.V("v_lshl_add_u32", vLd, vT1, 8, vLd)
        e.V("v_and_b32", vT0, 1, vT0)
        e.V("v_lshl_add_u32", vLd, vT0, 3, vLd)
        e.S("s_cmp_eq_u32", sP, 4)
        e.S("s_cselect_b32", sA, 4, 1)
        e.V("v_cmp_gt_u32", VCC, sA, vG)
        e.V("v_cndmask_b32", vLd, vBig, vLd, VCC)
        e.S("s_lshl_b32", sA, sC, 4)
        e.S("s_add_u32", sA, sA, sR)
        e.S("s_mul_i32", sA, sA, KVSZ)
        e.S("s_mul_i32", sB, sWave, 896)
        e.S("s_min_u32", sB, sB, KVSZ - 1024)
        e.S("s_add_u32", sA, sA, sB)
        e.S("s_add_u32", s(79), sA, KVB[1])
        self.stamp("dec2")
        e.wait_ops(ops1)
        e.barrier()
        self.flag("both", 1)
        self.stamp("w1flag")
        self.ops2 = []

        def r2_loads():
            for b in range(4):
                e.S("s_mul_i32", sE, rows[b], sStr); yield
                for i in range(8):
                    e.bload(RAW2[8 * b + i], vA0, SR2, sE, 0, cls=(1500, 32, 0)); yield
                    if i < 7:
                        e.S("s_add_u32", sE, sE, sStr); yield
            e.bload(vBias, vBias, SR1, 0, 0, cls=(1500, 10, 0)); yield

        vs, vt, MK = TMP[48], TMP[49], TMP[40:44]
        EV = ACC[40:56]

        def r2_pack():
            for b in range(4):
                raw = RAW2[8 * b:8 * b + 8]
                for i in range(4):
                    e.V("v_perm_b32", EV[4 * b + i], raw[2 * i + 1], raw[2 * i], vSel0)
                for i in range(4):
                    e.V("v_perm_b32", raw[i], raw[2 * i + 1], raw[2 * i], vSel1)
            for i in range(4):
                e.V("v_mov_b32", MK[i], -1)
            e.V("v_cmp_eq_u32", sNan, 0, vG)
            for h in range(2):
                ex = TMP[44 + 2 * h:46 + 2 * h]
                self.colsum([EV[i] for i in range(16)] if h == 0 else [RAW2[8 * b + i] for b in range(4) for i in range(4)], ex, vs, vt)
                e.V("v_perm_b32", vt, vBias, vBias, vSel0 if h == 0 else vSel1)
                e.V("v_and_b32", vt, "0xffff0000", vt)
                e.V("v_or_b32", ex[1], ex[1], vt)
                e.V("v_cndmask_b32", ex[0], 0, ex[0], sNan)
                e.V("v_cndmask_b32", ex[1], 0, ex[1], sNan)
            e.V("v_mov_b32", vSel0, vLd)
            yield

        def r2_stores():
            for b in range(4):
                self.ops2.append(e.bstore(EV[4 * b:4 * b + 4], vSt2, WS, D2[b], 0, "sc1", cls=(1000, 70, 0)))
                e.S("s_add_u32", sA, D2[b], sDB)
                self.ops2.append(e.bstore(RAW2[8 * b:8 * b + 4], vSt2, WS, sA, 0, "sc1", cls=(1000, 70, 0)))
            self.ops2.append(e.bstore(MK, vL16, WS, s(79), 0, "sc1", cls=(1000, 70, 0)))
            for h in range(2):
                if h:
                    e.S("s_add_u32", sDX, sDX, sDB)
                self.ops2.append(e.bstore(TMP[44 + 2 * h:46 + 2 * h], vSel0, WS, sDX, 0, "sc1", cls=(1000, 20, 0)))
        self.r2_stores = r2_stores
        self.r2_loads, self.r2_pack = r2_loads(), r2_pack()
        for _ in self.r2_loads:
            pass
        self.stamp("iss2")
        for _ in self.r2_pack:
            pass
        if self.opt.get("r2st", 2) == 2:
            r2_stores()
            self.late_loads()
        self.stamp("r2")
        self.poll("both", 1)
        e.barrier()
        self.stamp("w1go")

    def w2_gen(self):
        e = self.e
        t = RES[0]
        e.V("v_bfe_u32", t, vLane, 4, 1); yield
        e.V("v_lshl_add_u32", t, t, 11, vFl); yield
        e.S("s_lshl_b32", sE, sCG, 8); yield
        e.S("s_add_u32", sE, sE, FLG_C); yield
        e.bload(RES[1], t, WS, sE, 0, "sc1", cls=(900, 10, 0)); yield
        for _ in range(50):
            yield "idle"
        e.S("s_add_u32", sD, sBase, 2); yield
        lok, lre = e.newlabel("w2ok"), e.newlabel("w2retry")
        e.V("v_cmp_ne_u32", VCC, sD, RES[1])
        e.S("s_cmp_eq_u64", VCC, 0)
        e.branch("s_cbranch_scc1", lok)
        e.cond_begin()
        e.S("s_mov_b32", sCnt, 0)
        e.label(lre)
        e.misc("s_sleep 4")
        e.bload(RES[1], t, WS, sE, 0, "sc1")
        e.V("v_cmp_ne_u32", VCC, sD, RES[1])
        e.S("s_cmp_eq_u64", VCC, 0)
        e.branch("s_cbranch_scc1", lok)
        e.S("s_add_u32", sCnt, sCnt, 1)
        e.S("s_cmp_lt_u32", sCnt, 0x20000)
        e.branch("s_cbranch_scc1", lre)
        e.cond_end()
        e.label(lok)
        self.gate = 1 << 20
        yield

    def prologue2(self):
        e = self.e
        T0, T1, T2, T3, T4, T5 = [TMP[40 + i] for i in range(6)]
        mk_srd(e, OUT, pOut, XSZ)
        e.S("s_and_b32", sKH, sWave, 1)
        e.S("s_lshl_b32", sW2048, sWave, 11)
        e.S("s_mul_i32", sA, sC, NA * KB)
        e.S("s_add_u32", sSeg["A"], sA, WA)
        e.S("s_mul_i32", sA, sCG, NO * KB)
        e.S("s_add_u32", sSeg["O"], sA, WO)
        e.S("s_mul_i32", sA, sC, NB * KB)
        e.S("s_add_u32", sSeg["B"], sA, WB)
        e.S("s_mul_i32", sA, sCG, NC * KB)
        e.S("s_add_u32", sSeg["C"], sA, WC)
        e.V("v_add_u32", vDma, sW2048, vL16)
        e.S("s_mul_i32", sXr, sR, 160 * KB)
        e.S("s_mul_i32", sHr, sR, 432 * KB)
        e.S("s_lshl_b32", sSTr, sR, 13)
        e.S("s_mul_i32", sA, sWave, 40 * KB)
        e.V("v_add_u32", vAx[0], sA, vL16)
        e.V("v_add_u32", vAx[1], 20 * KB, vAx[0])
        e.V("v_lshlrev_b32", T0, 11, vG)
        e.V("v_lshl_add_u32", T0, vN, 3, T0)
        e.S("s_lshl_b32", sA, sWave, 8)
        e.V("v_add_u32", vSt, sA, T0)
        e.S("s_mov_b32", self.cInvD, lit(1.0 / D))
        for j in range(3):
            if j == 0:
                e.V("v_mov_b32", vW[0], vL16)
            else:
                e.V("v_add_u32", vW[j], j * 65536, vL16)
        e.S("s_lshl_b32", sA, sKH, 10)
        for j in range(3):
            e.V("v_add_u32", vK[j], sA, vW[j])
        e.V("v_lshlrev_b32", T4, 4, v(0))
        Z = TMP[44:48]
        Z = TMP[48:52]
        for j in range(4):
            e.V("v_mov_b32", Z[j], 0)
        e.ds_write(T4, Z, 0)
        e.ds_write(T4, Z, 4096)
        e.S("s_lshl_b32", sTT, sRH, 2)
        e.S("s_add_u32", sTT, sTT, sWave)
        e.S("s_xor_b32", sB, sTT, 1)
        for u, st in ((0, sTT), (1, sB)):
            e.S("s_mul_i32", sA, st, 20 * KB)
            e.S("s_mul_i32", sD, sKH, 10 * KB)
            e.S("s_add_u32", sA, sA, sD)
            e.V("v_add_u32", vAo[u], sA, vL16)
            e.S("s_mul_i32", sA, st, 54 * KB)
            e.S("s_mul_i32", sD, sKH, 27 * KB)
            e.S("s_add_u32", sA, sA, sD)
            e.V("v_add_u32", vAh[u], sA, vL16)
        e.V("v_lshrrev_b32", T0, 1, vG)
        e.V("v_and_b32", T1, 1, vG)
        e.V("v_lshlrev_b32", T2, 4, vN)
        e.V("v_lshl_add_u32", T3, T0, 8, T2)
        e.V("v_lshl_add_u32", T3, T1, 3, T3)
        e.S("s_mul_i32", sA, sTT, 20 * KB)
        e.V("v_add_u32", vXs, sA, vL16)
        e.V("v_add_u32", vXh, sA, T3)
        e.S("s_mul_i32", sA, sWave, 108 * KB)
        e.V("v_add_u32", vHs, sA, vL16)
        e.S("s_cmp_ge_u32", sC, 12)
        e.S("s_cselect_b32", sA, BIG, sA)
        e.V("v_add_u32", vHh, sA, T3)
        e.S("s_mul_i32", sA, sWave, 40 * KB)
        e.V("v_lshl_add_u32", T3, vG, 3, T2)
        e.V("v_add_u32", vOh, sA, T3)
        e.V("v_cmp_gt_u32", VCC, 2, vG)
        e.V("v_mov_b32", T3, BIG)
        e.V("v_cndmask_b32", vOh, T3, vOh, VCC)
        e.S("s_lshl_b32", sA, sTT, 7)
        e.V("v_lshl_add_u32", T3, vN, 3, sA)
        e.V("v_lshl_add_u32", vStW, T0, 2, T3)
        e.S("s_lshl_b32", sA, sWave, 7)
        e.S("s_add_u32", sA, sA, RST)
        e.V("v_lshl_add_u32", vRT, vG, 4, sA)
        e.V("v_lshl_add_u32", vRW, vN, 2, sA)
        e.S("s_lshl_b32", sA, sTT, 6)
        e.S("s_add_u32", sA, sA, RST)
        e.V("v_lshl_add_u32", vRF, vN, 2, sA)
        e.V("v_lshlrev_b32", T3, 4, vG)
        e.V("v_add_u32", vZ2, ZT + 128, T3)
        e.V("v_cmp_gt_u32", VCC, 10, vN)
        e.V("v_add_u32", T3, ZT, T3)
        e.V("v_cndmask_b32", vZ01, vZ2, T3, VCC)
        e.S("s_lshl_b32", sA, sR, 3)
        e.S("s_add_u32", sA, sA, sTT)
        e.S("s_mul_i32", sA, sA, 16 * 1280)
        e.S("s_mul_i32", sB, sCG, 160)
        e.S("s_add_u32", sA, sA, sB)
        e.V("v_mul_u32_u24", T3, 1280, vN)
        e.V("v_add_u32", T3, sA, T3)
        e.V("v_lshl_add_u32", vOut, vG, 4, T3)
        e.V("v_lshl_add_u32", vOut4, vG, 3, T3)
        e.S("s_mul_i32", sA, sWave, 5120)
        e.V("v_add_u32", vXch, sA, vL16)
        e.V("v_lshlrev_b32", vFl, 2, vN)
        e.V("v_mov_b32", vLn2[0], lit(LN2))
        e.V("v_mov_b32", vEps[0], lit(1e-6))
        e.S("s_mov_b32", sMaskV[0], "0x00ff00ff")
        e.S("s_mov_b32", sMaskV[1], "0x00ff00ff")
        e.S("s_lshl_b32", sA, sR, 8)
        e.S("s_add_u32", sFRL, sA, FLG_RL)
        e.S("s_add_u32", sFRG, sA, FLG_RG)
        e.S("s_lshl_b32", sA, sC, 8)
        e.S("s_add_u32", sFC, sA, FLG_C)
        e.S("s_lshl_b32", sA, sCG, 11)
        e.S("s_add_u32", sOx, sXr, sA)
        e.S("s_lshr_b32", sA, sCG, 1)
        e.S("s_lshl_b32", sA, sA, 10)
        e.S("s_and_b32", sB, sCG, 1)
        e.S("s_lshl_b32", sB, sB, 9)
        e.S("s_add_u32", sA, sA, sB)
        e.S("s_add_u32", sA, sA, 16 * KB)
        e.S("s_add_u32", sOxh, sXr, sA)
        e.S("s_lshl_b32", sA, sCG, 10)
        e.S("s_add_u32", sOst, sSTr, sA)
        e.S("s_lshl_b32", sA, sC, 10)
        e.S("s_add_u32", sOo, sXr, sA)
        e.S("s_lshl_b32", sA, sC, 8)
        e.S("s_add_u32", sA, sA, 16 * KB)
        e.S("s_add_u32", sOoh, sXr, sA)
        e.S("s_mul_i32", sA, sC, 3 * KB)
        e.S("s_add_u32", sOh, sHr, sA)
        e.S("s_lshl_b32", sA, sC, 9)
        e.S("s_add_u32", sA, sA, 48 * KB)
        e.S("s_add_u32", sOhh, sHr, sA)
        e.S("s_mul_i32", sKv, sC, 16 * KVSZ)
        e.misc(f"s_getreg_b32 {sX1}, hwreg(HW_REG_XCC_ID, 0, 4)")
        e.S("s_and_b32", sX1, sX1, 7)
        e.S("s_add_u32", sX1, sX1, 8)
        e.S("s_add_u32", sX1, sX1, sBase)
        e.S("s_mov_b32", sLocal, 0)
        U, Hh, Ee, Dq = T0, T1, T2, T3
        e.S("s_mov_b32", sA, 52429)
        e.V("v_mul_u32_u24", U, sA, v(0))
        e.V("v_lshrrev_b32", U, 18, U)
        e.V("v_mul_u32_u24", Dq, 5, U)
        e.V("v_sub_u32", Dq, v(0), Dq)
        e.V("v_cmp_le_u32", VCC, 21, U)
        e.V("v_cndmask_b32", Hh, 0, 1, VCC)
        e.V("v_mul_u32_u24", Ee, 21, Hh)
        e.V("v_sub_u32", Ee, U, Ee)
        A0, A1, A2, A3 = TMP[46], TMP[47], TMP[38], TMP[39]
        e.V("v_cmp_le_u32", s(100, 2), 16, Ee)
        e.V("v_cmp_eq_u32", s(88, 2), 4, Dq)
        e.V("v_cndmask_b32", A0, 0, 1, s(100, 2))
        e.V("v_lshl_add_u32", A0, Hh, 1, A0)
        e.V("v_add_u32", A1, 4, Hh)
        e.V("v_cndmask_b32", A1, A1, 6, s(100, 2))
        e.V("v_cndmask_b32", A0, A0, A1, s(88, 2))
        e.V("v_cndmask_b32", A1, Dq, Hh, s(88, 2))
        e.V("v_lshl_add_u32", A2, Hh, 2, Ee)
        e.V("v_subrev_u32", A2, 8, A2)
        e.V("v_cndmask_b32", A2, Ee, A2, s(100, 2))
        e.V("v_cmp_eq_u32", VCC, 20, Ee)
        e.V("v_cndmask_b32", A2, A2, 0, VCC)
        e.V("v_lshl_add_u32", A1, A1, 4, A2)
        e.V("v_lshlrev_b32", A1, 4, A1)
        e.V("v_lshl_add_u32", vKvSrc, A0, 10, A1)
        e.V("v_mul_u32_u24", A0, 5, Hh)
        e.V("v_add_u32", A0, A0, Dq)
        e.V("v_cmp_le_u32", s(88, 2), 8, A0)
        e.V("v_lshrrev_b32", A1, 1, A0)
        e.V("v_subrev_u32", A2, 8, A0)
        e.V("v_cndmask_b32", A1, A1, A2, s(88, 2))
        e.V("v_and_b32", A2, 1, A0)
        e.V("v_cndmask_b32", A2, A2, 0, s(88, 2))
        e.V("v_lshlrev_b32", A2, 3, A2)
        e.V("v_cndmask_b32", A0, 0, 1, s(88, 2))
        e.V("v_lshl_add_u32", A3, Hh, 1, A0)
        e.V("v_lshl_add_u32", A3, A3, 2, A1)
        e.V("v_lshl_add_u32", A3, A3, 4, A2)
        e.V("v_add_u32", A3, ZT, A3)
        e.V("v_mul_u32_u24", T4, 20, Hh)
        e.V("v_add_u32", T4, T4, Ee)
        e.V("v_cmp_le_u32", s(100, 2), 32, T4)
        e.V("v_and_b32", T5, 1, T4)
        e.V("v_cndmask_b32", T5, T5, 2, s(100, 2))
        e.V("v_lshl_add_u32", A0, T5, 1, A0)
        e.V("v_lshrrev_b32", T5, 1, T4)
        e.V("v_subrev_u32", T4, 32, T4)
        e.V("v_cndmask_b32", T4, T5, T4, s(100, 2))
        e.V("v_lshl_add_u32", T4, A1, 4, T4)
        e.V("v_lshl_add_u32", T4, T4, 4, A2)
        e.V("v_lshl_add_u32", T4, A0, 10, T4)
        e.V("v_cndmask_b32", T4, T4, A3, VCC)
        e.V("v_cmp_gt_u32", VCC, 210, v(0))
        e.V("v_mov_b32", T5, DUMMY)
        e.V("v_cndmask_b32", vKvDst, T5, T4, VCC)
        e.V("v_cndmask_b32", vKvSrc, 0, vKvSrc, VCC)
        e.V("v_lshlrev_b32", T4, 4, v(0))
        e.V("v_mov_b32", T5, BIG)
        e.V("v_cndmask_b32", vT16, T5, T4, VCC)

    def late_loads(self):
        e = self.e
        T4, T5 = TMP[48], TMP[49]
        e.S("s_mul_i32", sB, sCG, 160)
        e.bload(RES[10:14], vOut, XIN, 0, 0)
        e.bload(RES[14:18], vOut, XIN, 0, 64)
        e.bload(RES[18:20], vOut4, XIN, 0, 128)
        e.V("v_lshl_add_u32", T4, vG, 4, sB)
        e.V("v_lshl_add_u32", T5, vG, 3, sB)
        e.bload(B2F[10:14], T4, SB2, 0, 0)
        e.bload(B2F[14:18], T4, SB2, 0, 64)
        e.bload(B2F[18:20], T5, SB2, 0, 128)
        skip = e.newlabel("noxid")
        e.S("s_cmp_lg_u32", sWave, 3)
        e.branch("s_cbranch_scc1", skip)
        e.cond_begin()
        e.S("s_lshl_b32", sA, sR, 8)
        e.S("s_add_u32", sA, sA, FLG_X)
        e.S("s_lshl_b32", sB, sC, 2)
        e.V("v_mov_b32", T4, sB)
        e.V("v_mov_b32", T5, sX1)
        e.S("s_mov_b64", EXEC, 1)
        e.bstore(T5, T4, WS, sA, 0, "sc1")
        e.S("s_mov_b64", EXEC, -1)
        e.cond_end()
        e.label(skip)

    def unpack(self, dst, pk):
        e = self.e
        for a_ in range(2):
            for j in range(4):
                e.V("v_lshlrev_b32", dst[8 * a_ + j], 16, pk[4 * a_ + j])
                e.V("v_and_b32", dst[8 * a_ + 4 + j], "0xffff0000", pk[4 * a_ + j])
        for j in range(2):
            e.V("v_lshlrev_b32", dst[16 + 2 * j], 16, pk[8 + j])
            e.V("v_and_b32", dst[16 + 2 * j + 1], "0xffff0000", pk[8 + j])

    class ALoad:
        def __init__(self, m, vaddr, terms, nks):
            self.m, self.vaddr, self.terms, self.nks = m, vaddr, terms, nks
            self.n = 0
            self.based = -1
            self.done = False

        def step(self):
            e = self.m.e
            ks, u = divmod(self.n, 2)
            if ks // 4 != self.based:
                self.based = ks // 4
                e.S("s_add_u32", sLd, self.terms[0], self.terms[1] + (ks // 4) * 4 * KB)
                return False
            e.bload(a(self.n * 4, 4), self.vaddr[u], WS, sLd, (ks % 4) * KB, self.m.opt.get("amod", "sc1"), cls=(self.m.opt.get("latA", 600), 76, 33 if self.nks == 27 else 16))
            self.n += 1
            self.done = self.n >= 2 * self.nks
            return True

        def upto(self, ks):
            while self.n < 2 * min(ks + 1, self.nks):
                self.step()

    def stats_loads(self, ver):
        e = self.e
        e.S("s_add_u32", sA, sSTr, STB[ver])
        for u in range(2):
            for k in range(2):
                e.bload(TMP[4 * u + 2 * k:4 * u + 2 * k + 2], vSt, WS, sA, k * 1024 + u * 128, "sc1", cls=(600, 20, 0))

    def stats_gen(self, need_T, have=False):
        e = self.e
        for u in range(2):
            sm, sq, t0, t1 = TMP[4 * u], TMP[4 * u + 1], TMP[4 * u + 2], TMP[4 * u + 3]
            if not have:
                e.V("v_add_f32", sm, sm, t0); yield
                e.V("v_add_f32", sq, sq, t1); yield
            for op in () if have else ("v_permlane32_swap_b32", "v_permlane16_swap_b32"):
                e.V("v_mov_b32", t0, sm); yield
                e.V("v_mov_b32", t1, sq); yield
                e.V(op, sm, t0); yield
                e.V(op, sq, t1); yield
                e.V("v_add_f32", sm, sm, t0); yield
                e.V("v_add_f32", sq, sq, t1); yield
            e.V("v_mul_f32", sm, lit(1.0 / D), sm); yield
            e.V("v_mul_f32", t0, sm, sm); yield
            e.V("v_fma_f32", sq, sq, self.cInvD, Neg(t0)); yield
            e.V("v_max_f32", sq, 0, sq); yield
            e.V("v_add_f32", sq, lit(1e-5), sq); yield
            e.V("v_rsq_f32", t0, sq); yield
            e.V("v_cvt_pk_bf16_f32", XE[u][0], sm, sm); yield
            e.V("v_mul_f32", sq, sq, t0); yield
            e.ds_write(vRW, t0, 64 * u); yield
            c2 = vC2 if u == 0 else vC2b
            e.V("v_mul_f32", c2[0], lit(LOG2E), t0); yield
            e.V("v_lshlrev_b32", t1, 16, XE[u][0]); yield
            e.V("v_sub_f32", sm, sm, t1); yield
            e.V("v_cvt_pk_bf16_f32", XE[u][1], sm, sq); yield
            e.V("v_and_b32", t1, "0xffff0000", XE[u][1]); yield
            e.V("v_sub_f32", t1, sq, t1); yield
            e.V("v_cvt_pk_bf16_f32", XE[u][3], sm, t1); yield
            e.V("v_mov_b32", XE[u][2], XE[u][0]); yield
        if need_T:
            for u in range(2):
                e.ds_read(RT[4 * u:4 * u + 4], vRT, 64 * u); yield

    def phi_pair(self, src, c2, bcast, t):
        e = self.e
        m = "op_sel_hi:[1,0]" if bcast else ""
        e.V("v_pk_mul_f32", t[0:2], src, c2, mods=m)
        e.V("v_exp_f32_e64", t[2], t[0], mods="clamp")
        e.V("v_exp_f32_e64", t[3], t[1], mods="clamp")
        e.V("v_max_f32", t[0], 0, t[0])
        e.V("v_max_f32", t[1], 0, t[1])
        e.V("v_pk_add_f32", t[2:4], t[2:4], vEps, mods="op_sel_hi:[1,0]")
        e.V("v_pk_fma_f32", t[0:2], t[0:2], vLn2, t[2:4], mods="op_sel_hi:[1,0,1]")

    def scratch(self, nblk, endpos):
        st = endpos - nblk
        if (st % RB) + nblk > RB:
            st = endpos - (endpos % RB) - nblk
        return st, self.ldsaddr(st)

    def bg_on(self, tail):
        e = self.e
        st = {"next": 0}
        t_end = e.T + tail
        self.deadline = lambda: t_end

        def f():
            if e.T >= st["next"] and self.dma_ok():
                n0 = len(e.vm)
                while len(e.vm) == n0:
                    next(self.dmaf)
                st["next"] = e.T + self.opt.get("vgap", 24)
        self.e.bg = f

    def bg_off(self):
        self.e.bg = None

    def gstore(self, lst, cold=False):
        e = self.e
        mode = self.opt.get("mode", "dual")
        if cold:
            mode = "safe"
        if mode != "dual":
            return [e.bstore(d, vo, WS, so, off, "sc1" if mode == "safe" else "") for d, vo, so, off in lst]
        ls, le = e.newlabel("st_safe"), e.newlabel("st_end")
        regs = []
        for d, vo, so, off in lst:
            regs += d.regs() + vo.regs()
        e.wait_ops(e._pending(regs))
        e.S("s_cmp_eq_u32", sLocal, 0)
        need = e._need("vmem", regs, [])
        if need > 1:
            e.nop(need - 1)
        e.branch("s_cbranch_scc1", ls)
        n0 = len(e.lines)
        ops = [e.bstore(d, vo, WS, so, off, "") for d, vo, so, off in lst]
        body = e.lines[n0:]
        assert len(body) == len(lst), body
        e.raw(f"  s_branch {le}")
        e.label(ls)
        for l in body:
            e.raw(l + " sc1")
        e.label(le)
        return ops

    def touch_gen(self, lst, cold=False):
        e = self.e
        if cold or not self.opt.get("touch", 0):
            return
        for _ in range(self.opt.get("touch_delay", 60)):
            yield "idle"
        for vo, sb, add, off in lst:
            e.S("s_add_u32", sE, sb, add); yield
            e.touch(vDum, vo, WS, sE, off); yield

    def local_gen(self):
        e = self.e
        e.S("s_lshl_b32", sE, sR, 8); yield
        e.S("s_add_u32", sE, sE, FLG_X); yield
        e.bload(TMP[52], vFl, WS, sE, 0, "sc1"); yield
        for _ in range(40):
            yield "idle"
        e.V("v_cmp_ne_u32", VCC, sX1, TMP[52]); yield
        e.S("s_cmp_eq_u64", VCC, 0)
        e.S("s_cselect_b32", sLocal, 1, 0); yield

    def poll(self, kind, val):
        e = self.e
        skip = e.newlabel("nopoll")
        loop = e.newlabel("poll")
        e.S("s_cmp_lg_u32", sWave, 0)
        e.branch("s_cbranch_scc1", skip)
        e.cond_begin()
        t = TMP[55]
        e.S("s_mov_b32", sCnt, 0)
        e.S("s_mov_b64", sOk, 0)
        e.S("s_add_u32", sB, sBase, val)
        va, vb, sa, sb = vFl, vFl, sFRL, sFRG
        if kind == "both":
            va, vb, sa, sb = TMP[53], TMP[54], 0, 0
            e.V("v_cmp_gt_u32", VCC, 2, vG)
            e.V("v_mov_b32", va, sFC)
            e.V("v_mov_b32", vb, sFRL)
            e.V("v_cndmask_b32", va, vb, va, VCC)
            e.V("v_add_u32", va, va, vFl)
            e.V("v_mov_b32", vb, FLG_RG - FLG_RL)
            e.V("v_cndmask_b32", vb, vb, 0, VCC)
            e.V("v_add_u32", vb, va, vb)
        e.label(loop)

        def chk():
            e.misc("s_waitcnt vmcnt(0)")
            e.misc(f"v_subrev_u32 {t}, {sB}, {t}")
            e.misc(f"v_cmp_ge_u32 vcc, {8 - val}, {t}")
            e.misc(f"s_or_b64 {sOk}, {sOk}, vcc")
            e.misc(f"s_cmp_eq_u64 {sOk}, -1")
            e.misc(f"s_cbranch_scc1 {skip}")
        e.misc(f"buffer_load_dword {t}, {va}, {WS}, {sa} offen sc1")
        e.misc("s_add_u32 %s, %s, 1" % (sCnt, sCnt))
        chk()
        if kind == "both":
            e.misc("s_sleep 3")
        e.misc(f"s_and_b32 {sA}, {sCnt}, 3")
        e.misc(f"s_cbranch_scc1 {loop}")
        e.misc(f"buffer_load_dword {t}, {vb}, {WS}, {sb} offen sc1")
        chk()
        e.misc(f"s_cmp_lt_u32 {sCnt}, 0x40000")
        e.misc(f"s_cbranch_scc1 {loop}")
        e.cond_end()
        e.label(skip)

    def flag(self, kind, val):
        e = self.e
        lst = [(1, sFRG, "sc1", sC), (2, sFRL, "", sC)] if kind != "col" else []
        if kind != "row":
            lst.append((3, sFC, "sc1", sR))
        for w, sb, m, sidx in lst:
            skip = e.newlabel("noflag")
            e.S("s_cmp_lg_u32", sWave, w)
            e.branch("s_cbranch_scc1", skip)
            e.cond_begin()
            e.S("s_lshl_b32", sA, sidx, 2)
            e.V("v_mov_b32", TMP[54], sA)
            e.S("s_add_u32", sA, sBase, val)
            e.V("v_mov_b32", TMP[55], sA)
            e.S("s_mov_b64", EXEC, 1)
            e.bstore(TMP[55], TMP[54], WS, sb, 0, m)
            e.S("s_mov_b64", EXEC, -1)
            e.cond_end()
            e.label(skip)

    def handoff(self, val, ops, shadow=None, touch=()):
        e = self.e
        t_st = e.T
        self.deadline = lambda: t_st + self.opt.get("topup", 2600)
        self.own_end = 0
        while self.dma_ok():
            next(self.dmaf)
        e.wait_all_lg()
        self.ring_barrier(self.cons + FI + self.opt.get("ahead", 16), ops)
        self.hold = None
        self.flag("row", val)
        self.stamp("flag")
        t_flag = e.T
        if self.opt.get("post_touch", 0):
            for k, (vo, sb, add, off) in enumerate(touch):
                sr = sE if k % 2 else sD
                e.S("s_add_u32", sr, sb, add)
                e.touch(vDum, vo, WS, sr, off, "sc1", cls=(750, 66, 30))
        self.deadline = lambda: t_flag + self.opt.get("topup2", 1800)
        while self.dma_ok():
            next(self.dmaf)
        self.prime()
        if shadow:
            shadow()
        self.poll("row", val)
        e.T = max(e.T, t_flag + 1000)
        e.barrier()
        self.stamp("go")

    def phaseA(self, p):
        e = self.e
        opt = self.opt
        xv = 2 * p
        acc = lambda T, u: ACC[(T * 2 + u) * 4:(T * 2 + u) * 4 + 4]
        xf = lambda ks, u: a((ks * 2 + u) * 4, 4) if ks < 20 else XE[u]
        if p == 0:
            for _ in range(opt.get("first_groups", 3)):
                for _ in self.dma_group():
                    pass
        self.stats_loads(xv)
        al = self.ALoad(self, vAx, (sXr, XB[xv]), 20)
        al.upto(opt.get("adist", 4) - 1)
        fl0 = [self.stats_gen(True)]
        if p == 0:
            if opt.get("r2st", 2) == 0:
                self.r2_stores()
                self.late_loads()
            e.wait_all_lg()
            if opt.get("r2st", 2) == 2:
                self.ring_barrier(FI + 8, self.ops2)
                self.flag("col", 2)
                fl0.append(self.w2_gen())
            else:
                self.ring_barrier(FI + 8)
            self.prime()
            self.stamp("start")
        st1 = {}

        def hook1(t):
            if t >= opt.get("w2flag_at", 30) and not st1.get("done"):
                st1["done"] = t
                return self.ops2, (lambda: self.flag("col", 2))
            return [], None

        def add1(t):
            if st1.get("done") and t >= opt.get("w2chk_at", 70) and not st1.get("chk"):
                st1["chk"] = True
                return self.w2_gen()
        i0 = self.seqstart[("A1", p)]
        fb = 102
        sst, sad = self.scratch(28, self.seq[i0 + fb][0])
        self.hold = sst

        def mf(t, W, u):
            ks, T = divmod(t, 5)
            e.mfma(acc(T, u), xf(ks, u), W, acc(T, u) if ks else 0)
        self.run_pass(105, mf, 5, xf, fl0, chunk=(8 if p == 0 else 24), stop_reads=self.seqstart[("A4", p)], aload=al,
                      force_bar=fb, tail=6000, hooks={"bar": hook1, "add": add1} if (p == 0 and opt.get("r2st", 2) == 0) else None)
        if p == 0 and opt.get("r2st", 2) == 1:
            self.dma_all()
            self.r2_stores()
            self.late_loads()
        assert sst + 28 <= self.freed
        self.stamp("A1")
        self.bg_on(5000)
        C2T = TMP[8:16] if p else ACC[40:48]
        for j in range(8):
            e.V("v_mul_f32", C2T[j], lit(LOG2E), RT[j])
        KF = [TMP[16:20], TMP[20:24], TMP[24:28]]
        VF = {3: TMP[28:32], 4: TMP[32:36], 2: TMP[36:40]}
        tt = [TMP[40:44], TMP[44:48]]
        TA0, TA1 = TMP[48], TMP[49]
        if p == 0:
            KF = [RES[0:4], RES[4:8], B2F[0:4]]
            VF = {3: B2F[4:8], 4: ACC[56:60], 2: ACC[60:64]}
            tt = [ACC[48:52], ACC[52:56]]
        n = 0
        for T in range(3):
            for u in range(2):
                for h in range(2):
                    t = tt[n % 2]
                    n += 1
                    self.phi_pair(acc(T, u)[2 * h:2 * h + 2], C2T[4 * u + 2 * h:4 * u + 2 * h + 2], False, t)
                    e.V("v_cvt_pk_bf16_f32", KF[T][2 * u + h], t[0], t[1])
        for T in (3, 4, 2):
            for u in range(2):
                for h in range(2):
                    x = acc(T, u)[2 * h:2 * h + 2]
                    e.V("v_pk_mul_f32", x, x, RT[4 * u + 2 * h:4 * u + 2 * h + 2])
            for u in range(2):
                for h in range(2):
                    x = acc(T, u)[2 * h:2 * h + 2]
                    e.V("v_cvt_pk_bf16_f32", VF[T][2 * u + h], x[0], x[1])
        for j in range(4):
            e.V("v_cndmask_b32", VF[2][j], VF[2][j], vOne, sMaskV)
        PR = [ACC[4 * i:4 * i + 4] for i in range(7)]
        prods = [(0, 3), (0, 2), (1, 4), (1, 2), (2, 3), (2, 4), (2, 2)]
        for i, (kt, vt) in enumerate(prods):
            e.mfma(PR[i], KF[kt], VF[vt], 0)
        e.S("s_mul_i32", sA, sWave, 7168)
        e.S("s_add_u32", sA, sA, sad)
        e.V("v_add_u32", TA0, sA, vL16)
        e.V("v_add_u32", TA1, sad, vKvSrc)
        for i in range(7):
            e.ds_write(TA0, PR[i], i * 1024)
        e.wait_all_lg()
        e.barrier()
        RD = [ACC[4 * w:4 * w + 4] for w in range(4)]
        for w in range(4):
            e.ds_read(RD[w], TA1, w * 7168)
        for h in range(2):
            e.V("v_pk_add_f32", RD[0][2 * h:2 * h + 2], RD[0][2 * h:2 * h + 2], RD[1][2 * h:2 * h + 2])
            e.V("v_pk_add_f32", RD[2][2 * h:2 * h + 2], RD[2][2 * h:2 * h + 2], RD[3][2 * h:2 * h + 2])
        for h in range(2):
            e.V("v_pk_add_f32", RD[0][2 * h:2 * h + 2], RD[0][2 * h:2 * h + 2], RD[2][2 * h:2 * h + 2])
        e.S("s_mul_i32", sA, sR, KVSZ)
        e.S("s_add_u32", sA, sA, sKv)
        e.S("s_add_u32", sA, sA, KVB[p])
        kvst = e.bstore(RD[0], vT16, WS, sA, 0, "sc1")
        self.bg_off()
        self.stamp("kvpub")
        PL = [ACC[4 * i:4 * i + 4] for i in range(10)] + [TMP[24 + 4 * i:28 + 4 * i] for i in range(6)]

        st2 = {}

        def barhook(t):
            def rel():
                self.hold = None

            def relflag():
                self.hold = None
                self.flag("col", 2)
            if p == 0 and opt.get("r2st", 2) == 1 and not st2.get("done") and t >= opt.get("w2flag2_at", 12):
                st2["done"] = True
                return self.ops2, relflag
            return [], rel

        def kvloads():
            for i in range(16):
                if i % 2 == 0:
                    e.S("s_add_u32", sB, sKv, KVB[p] + i * KVSZ); yield
                e.bload(PL[i], vT16, WS, sB, (i % 2) * KVSZ, "sc1", cls=(800, 80, 130)); yield

        def kvsum():
            for st in (1, 2, 4, 8):
                for i in range(0, 16, 2 * st):
                    for h in range(2):
                        e.V("v_pk_add_f32", PL[i][2 * h:2 * h + 2], PL[i][2 * h:2 * h + 2], PL[i + st][2 * h:2 * h + 2])
            e.V("v_cmp_u_f32", VCC, PL[0][0], PL[0][1])
            e.V("v_cmp_u_f32", sNan, PL[0][2], PL[0][3])
            e.S("s_or_b64", VCC, VCC, sNan)

        def mfq(t, W, u):
            ks, T = divmod(t, 3)
            e.mfma(acc(5 + T, u), W, xf(ks, u), acc(5 + T, u) if ks else 0)
        self.lastbar = self.rd - 8
        fl = [self.touch_gen([(vAx[0], sOo, OB[p], 0), (vAx[1], sOo, OB[p], 0), (vOh, sOoh, OB[p], 0), (vOh, sOoh, OB[p] + 20 * KB, 0)], p == 0)]
        if p == 0:
            fl = [self.local_gen()]
        self.run_pass(63, mfq, 3, xf, fl, stop_reads=self.seqstart[("A4", p)], hooks={"bar": barhook},
                      late=(opt.get("kvload_at", 30), kvloads()), see_all=True, force_bar=61, tail=1600 + self.opt.get("slack", 2400))
        self.stamp("A2")
        if p == 0 and opt.get("r2st", 2) == 1:
            assert st2.get("done")
            w2 = self.w2_gen()
            while next(w2) != "idle":
                pass
        self.bg_on(1600 + self.opt.get("slack", 2400))
        PQ0 = [TMP[0:4], TMP[4:8]]
        PQ1 = [TMP[8:12], TMP[12:16]]
        tq = [TMP[16:20], TMP[20:24]]
        for u in range(2):
            c2 = vC2 if u == 0 else vC2b
            for h in range(2):
                self.phi_pair(acc(5, u)[2 * h:2 * h + 2], c2, True, tq[0])
                self.phi_pair(acc(6, u)[2 * h:2 * h + 2], c2, True, tq[1])
                e.V("v_cvt_pk_bf16_f32", PQ0[u][2 * h], tq[0][0], tq[1][0])
                e.V("v_cvt_pk_bf16_f32", PQ0[u][2 * h + 1], tq[0][1], tq[1][1])
            for h in range(2):
                self.phi_pair(acc(7, u)[2 * h:2 * h + 2], c2, True, tq[h])
                e.V("v_cvt_pk_bf16_f32", PQ1[u][h], tq[h][0], tq[h][1])
            e.V("v_mov_b32", PQ1[u][2], 0)
            e.V("v_mov_b32", PQ1[u][3], 0)
        self.bg_off()
        self.stamp("qepi")
        kvsum()
        lok, lre = e.newlabel("kvok"), e.newlabel("kvretry")
        e.branch("s_cbranch_scc0", lok)
        e.cond_begin()
        e.S("s_mov_b32", sCnt, 0)
        e.label(lre)
        e.misc("s_sleep 4")
        for _ in kvloads():
            pass
        kvsum()
        e.branch("s_cbranch_scc0", lok)
        e.S("s_add_u32", sCnt, sCnt, 1)
        e.S("s_cmp_lt_u32", sCnt, 0x10000)
        e.branch("s_cbranch_scc1", lre)
        e.cond_end()
        e.label(lok)
        self.stamp("kvgo")
        if p == 0 and opt.get("r2st", 2) == 1:
            for _ in w2:
                pass

        self.bg_on(900 + self.opt.get("slack", 2400))
        e.V("v_cvt_pk_bf16_f32", TMP[16], PL[0][0], PL[0][1])
        e.V("v_cvt_pk_bf16_f32", TMP[17], PL[0][2], PL[0][3])
        e.ds_write(vKvDst, TMP[16:18])
        e.wait_all_lg()
        e.barrier()
        FR = [TMP[16 + 4 * i:20 + 4 * i] for i in range(10)]
        for T in range(3):
            for ks in range(2):
                e.ds_read(FR[T * 2 + ks], vL16, IMG + (T * 2 + ks) * KB)
        for ks in range(2):
            e.ds_read(FR[6 + ks], vZ01, ks * 64)
            e.ds_read(FR[8 + ks], vZ2, ks * 64)
        oa = lambda T, u: ACC[(T * 2 + u) * 4:(T * 2 + u) * 4 + 4]
        for T in (3, 4, 0, 1, 2):
            for u in range(2):
                e.mfma(oa(T, u), FR[2 * T], PQ0[u], 0)
        for T in (3, 4, 0, 1, 2):
            for u in range(2):
                e.mfma(oa(T, u), FR[2 * T + 1], PQ1[u], oa(T, u))
        e.S("s_add_u32", sA, sOo, OB[p])
        e.S("s_add_u32", sB, sOoh, OB[p])
        e.S("s_add_u32", sD, sOoh, OB[p] + 20 * KB)
        ops = []
        for u in range(2):
            for x in (oa(3, u)[0], oa(3, u)[2], oa(4, u)[0]):
                e.V("v_add_f32", x, vEps[0], x)
        for u in range(2):
            for x in (oa(3, u)[0], oa(3, u)[2], oa(4, u)[0]):
                e.V("v_rcp_f32", x, x)
        for u in range(2):
            for T in range(3):
                for h in range(2):
                    x = oa(T, u)[2 * h:2 * h + 2]
                    dn = oa(3, u)[2 * h:2 * h + 2] if T < 2 else oa(4, u)[0:2]
                    e.V("v_pk_mul_f32", x, x, dn, mods="op_sel_hi:[1,0]")
            o4 = TMP[16 + 8 * u:20 + 8 * u]
            o2 = TMP[20 + 8 * u:22 + 8 * u]
            for j in range(4):
                e.V("v_cvt_pk_bf16_f32", o4[j], oa(0, u)[j], oa(1, u)[j])
            for h in range(2):
                e.V("v_cvt_pk_bf16_f32", o2[h], oa(2, u)[2 * h], oa(2, u)[2 * h + 1])
            if u == 0:
                ops += self.gstore([(o4, vAx[u], sA, 0), (o2, vOh, sB, 0)], p == 0)
            else:
                ops += self.gstore([(o4, vAx[u], sA, 0), (o2, vOh, sD, 0)], p == 0)
        self.bg_off()
        self.stamp("A3")
        def shadow():
            if p == 0:
                self.unpack(RES, RES[10:20])
                self.unpack(B2F, B2F[10:20])
        self.handoff(4 * p + 2, ops, shadow, [(vAx[0], sOo, OB[p], 0), (vAx[1], sOo, OB[p], 0), (vOh, sOoh, OB[p], 0), (vOh, sOoh, OB[p] + 20 * KB, 0)])

    def phase64(self, p, kind):
        e = self.e
        opt = self.opt
        nks = 10 if kind == "O" else 27
        name = "A4" if kind == "O" else "B2"
        acc = lambda T, u: ACC[(u * 5 + T) * 4:(u * 5 + T) * 4 + 4]
        if kind == "O":
            al = self.ALoad(self, vAo, (sXr, OB[p]), nks)
        else:
            al = self.ALoad(self, vAh, (sHr, HB[p]), nks)
        al.upto(opt.get("adist", 4) - 1)
        xf = lambda ks, u: a((ks * 2 + u) * 4, 4)
        if kind == "C":
            e.ds_read(TMP[50], vRF)
        i0 = self.seqstart[(name, p)]
        fb = 5 * nks - 3
        sst, sad = self.scratch(20, self.seq[i0 + fb][0])
        self.hold = sst
        stop = i0 + 5 * nks

        def mf(t, W, u):
            ks, T = divmod(t, 5)
            e.mfma(acc(T, u), W, xf(ks, u), acc(T, u) if ks else 0)
        last = kind == "C" and p == 1
        xv = 2 * p + (1 if kind == "O" else 2)
        fl = [] if last else [self.touch_gen([(vXs, sOx, XB[xv], 0), (vXs, sOx, XB[xv], 1024), (vXh, sOxh, XB[xv], 0), (vStW, sOst, STB[xv], 0)])]
        self.run_pass(5 * nks, mf, 5, xf, fl, force_bar=fb, chunk=(12 if kind == "O" else opt.get("chunkC", 8)), stop_reads=stop, aload=al,
                      amix=(1, 0) if kind == "O" else tuple(opt.get("amixC", (3, 2))), tail=900 + self.opt.get("slack", 2400))
        self.stamp(name)
        self.bg_on(900 + self.opt.get("slack", 2400))
        e.V("v_add_u32", TMP[0], sad, vXch)
        e.S("s_xor_b32", sA, sWave, 1)
        e.S("s_mul_i32", sA, sA, 5120)
        e.S("s_add_u32", sA, sA, sad)
        e.V("v_add_u32", TMP[1], sA, vL16)
        assert sst + 20 <= self.freed
        for T in range(5):
            e.ds_write(TMP[0], acc(T, 1), T * KB)
        e.wait_all_lg()
        e.barrier()
        PT = TMP[4:24]
        for T in range(5):
            e.ds_read(PT[4 * T:4 * T + 4], TMP[1], T * KB)
        own = ACC[0:20]
        if kind == "C":
            e.V("v_mul_f32", TMP[50], TMP[50], TMP[50])
        for h in range(10):
            x = own[2 * h:2 * h + 2]
            e.V("v_pk_add_f32", x, x, PT[2 * h:2 * h + 2])
            if kind == "O":
                e.V("v_pk_add_f32", x, x, RES[2 * h:2 * h + 2])
            else:
                e.V("v_pk_fma_f32", x, x, TMP[50:52], RES[2 * h:2 * h + 2], mods="op_sel_hi:[1,0,1]")
        PK = TMP[24:34]
        for a_ in range(2):
            for j in range(4):
                e.V("v_cvt_pk_bf16_f32", PK[4 * a_ + j], own[8 * a_ + j], own[8 * a_ + 4 + j])
        for h in range(2):
            e.V("v_cvt_pk_bf16_f32", PK[8 + h], own[16 + 2 * h], own[16 + 2 * h + 1])
        self.bg_off()
        if last:
            om = self.opt.get("outmod", "")
            e.bstore(PK[0:4], vOut, OUT, 0, 0, om)
            e.bstore(PK[4:8], vOut, OUT, 0, 64, om)
            e.bstore(PK[8:10], vOut4, OUT, 0, 128, om)
            self.stamp("end")
            return
        xv = 2 * p + (1 if kind == "O" else 2)
        ops = []
        e.S("s_add_u32", sA, sOx, XB[xv])
        e.S("s_add_u32", sB, sOxh, XB[xv])
        e.S("s_add_u32", sD, sOst, STB[xv])
        ops += self.gstore([(PK[0:4], vXs, sA, 0), (PK[4:8], vXs, sA, 1024), (PK[8:10], vXh, sB, 0)])
        sm, sq, t0 = TMP[36], TMP[37], TMP[38]
        e.V("v_mov_b32", sm, 0)
        e.V("v_mov_b32", sq, 0)
        for j in range(10):
            e.V("v_dot2c_f32_bf16", sm, PK[j], vOne)
            e.V("v_dot2c_f32_bf16", sq, PK[j], PK[j])
        e.V("v_permlane32_swap_b32", sm, sq)
        e.V("v_add_f32", sm, sm, sq)
        e.V("v_mov_b32", t0, sm)
        e.V("v_permlane16_swap_b32", sm, t0)
        e.V("v_add_f32", sm, sm, t0)
        ops += self.gstore([(sm, vStW, sD, 0)])
        self.stamp(name + "epi")

        def shadow():
            self.unpack(RES, PK)
            if kind == "O":
                for h in range(10):
                    x = RES[2 * h:2 * h + 2]
                    e.V("v_pk_add_f32", x, x, B2F[2 * h:2 * h + 2])
        self.handoff(4 * p + (3 if kind == "O" else 5), ops, shadow,
                     [(vStW, sOst, STB[xv], 0), (vXs, sOx, XB[xv], 0), (vXs, sOx, XB[xv], 1024), (vXh, sOxh, XB[xv], 0)])

    def phaseB1(self, p):
        e = self.e
        opt = self.opt
        xv = 2 * p + 1
        acc = lambda T, u: ACC[(T * 2 + u) * 4:(T * 2 + u) * 4 + 4]
        xf = lambda ks, u: a((ks * 2 + u) * 4, 4) if ks < 20 else XE[u]
        self.stats_loads(xv)
        al = self.ALoad(self, vAx, (sXr, XB[xv]), 20)
        al.upto(opt.get("adist", 4) - 1)
        stop = self.seqstart[("B2", p)]

        def mf(t, W, u):
            ks, T = divmod(t, 4)
            e.mfma(acc(T, u), W, xf(ks, u), acc(T, u) if ks else 0)
        tl = [(vHs, sOh, HB[p] + u * 54 * KB, a_ * KB) for a_ in range(3) for u in range(2)] + [(vHh, sOhh, HB[p] + u * 54 * KB, 0) for u in range(2)]
        self.run_pass(84, mf, 4, xf, [self.stats_gen(False), self.touch_gen(tl, p == 0)], stop_reads=stop, aload=al, tail=2100 + 300 + self.opt.get("slack", 2400))
        self.stamp("B1a")
        ops = []

        def epi(pairs, single):
            n = 0
            for u in range(2):
                sb = sD if u == 0 else sE
                e.S("s_add_u32", sb, sOh, HB[p] + u * 54 * KB); yield
                for a_ in pairs:
                    o = TMP[16 + 4 * (n % 4):20 + 4 * (n % 4)]
                    n += 1
                    for j in range(4):
                        x, y = acc(2 * a_, u)[j], acc(2 * a_ + 1, u)[j]
                        e.V("v_mul_f32_e64", x, x, f"|{x}|"); yield
                        e.V("v_mul_f32_e64", y, y, f"|{y}|"); yield
                        e.V("v_cvt_pk_bf16_f32", o[j], x, y); yield
                        e.V("v_pk_max_i16", o[j], o[j], 0); yield
                    ops.extend(self.gstore([(o, vHs, sb, a_ * KB)], p == 0)); yield
            if single:
                for u in range(2):
                    o = TMP[32 + 2 * u:34 + 2 * u]
                    for j in range(4):
                        x = acc(6, u)[j]
                        e.V("v_mul_f32_e64", x, x, f"|{x}|"); yield
                    for h in range(2):
                        e.V("v_cvt_pk_bf16_f32", o[h], acc(6, u)[2 * h], acc(6, u)[2 * h + 1]); yield
                        e.V("v_pk_max_i16", o[h], o[h], 0); yield
                e.S("s_add_u32", sA, sOhh, HB[p])
                e.S("s_add_u32", sB, sOhh, HB[p] + 54 * KB)
                ops.extend(self.gstore([(TMP[32:34], vHh, sA, 0), (TMP[34:36], vHh, sB, 0)], p == 0))
                yield

        def mf2(t, W, u):
            ks, T = divmod(t, 3)
            e.mfma(acc(4 + T, u), W, xf(ks, u), acc(4 + T, u) if ks else 0)
        self.run_pass(63, mf2, 3, xf, [epi([0, 1], False)], stop_reads=stop, force_bar=61, chunk=opt.get("chunkB", 16), tail=300 + self.opt.get("slack", 2400))
        self.stamp("B1b")
        for _ in epi([2], True):
            pass
        self.stamp("B1epi")
        self.handoff(4 * p + 4, ops, None, tl)

    def gen(self):
        e = self.e
        e.reset_state()
        self.cInvD = s(63)
        self.dmaf = self.dma_filler()
        self.prologue()
        if self.opt.get("stamps"):
            e.memtime(sTm, True)
            e.V("v_writelane_b32", v(53), sTm[0], 62)
        self.startup()
        stop = self.opt.get("stop", 99)
        n = 0
        for p in range(2):
            for f in (lambda: self.phaseA(p), lambda: self.phase64(p, "O"), lambda: self.phaseB1(p), lambda: self.phase64(p, "C")):
                if n < stop:
                    f()
                n += 1
        if self.opt.get("stamps"):
            e.wait_all_vm()
            e.memtime(sTm, True)
            e.V("v_writelane_b32", v(53), sTm[0], 63)
            e.S("s_lshl_b32", sA, s(2), 2)
            e.S("s_add_u32", sA, sA, sWave)
            e.S("s_lshl_b32", sA, sA, 8)
            e.S("s_add_u32", sA, sA, STAMP)
            e.V("v_lshlrev_b32", TMP[1], 2, vLane)
            e.bstore(v(53), TMP[1], WS, sA)
        if self.opt.get("spin"):
            e.wait_all_vm()
            e.V("v_readfirstlane_b32", s(86), v(51))
            e.label("spin_loop")
            e.misc("s_memrealtime s[88:89]")
            e.misc("s_waitcnt lgkmcnt(0)")
            e.misc("s_sub_u32 s88, s88, s86")
            e.misc(f"s_cmp_lt_u32 s88, {self.opt['spin']}")
            e.misc("s_cbranch_scc1 spin_loop")
        e.S("s_add_u32", sA, s(2), sWave)
        e.S("s_cmp_lg_u32", sA, 0)
        e.branch("s_cbranch_scc1", "main_end")
        e.S("s_add_u32", sA, sBase, 16)
        e.V("v_mov_b32", TMP[0], sA)
        e.V("v_mov_b32", TMP[1], EPOCH)
        e.S("s_mov_b64", EXEC, 1)
        e.bstore(TMP[0], TMP[1], WS, 0)
        e.label("main_end")
        e.misc("s_endpgm")
```

```python
from asmgen import *
from layout import *
from gen_prep import mk_srd, allreduce_g
import math

BIG = 0x40000000
LOG2E = 1.4426950408889634
LN2 = 0.6931471805599453

IMG = 0
ZT = 6144
RST = 6400
DUMMY = 6912
RING = 8192
RB = 152
LDS_BYTES = RING + RB * KB
FI = 8

WS, OUT, XIN, SB2 = s(8, 4), s(12, 4), s(16, 4), s(20, 4)
sWave, sR, sC, sCG, sRH, sKH, sW2048 = [s(24 + i) for i in range(7)]
sSeg = {"A": s(31), "O": s(32), "B": s(33), "C": s(34)}
sXr, sHr, sSTr, sFRL, sFRG, sFC = [s(35 + i) for i in range(6)]
sA, sB, sD, sE, sDm, sLd = [s(41 + i) for i in range(6)]
sMaskV = s(48, 2)
sCnt = s(50)
sTT = s(51)
sTm = s(52, 2)
sOx, sOxh, sOst, sOo, sOoh, sOh, sOhh, sKv = [s(54 + i) for i in range(8)]
sLocal, sX1 = s(47), s(62)
sNan = s(90, 2)
sBase = s(92)
sOk = s(94, 2)
SR1, SR2 = s(84, 4), s(96, 4)
PP = s(64, 16)
pOut, pWs = s(80, 2), s(82, 2)
vDum = v(49)

vLane, vN, vG, vL16 = v(1), v(2), v(3), v(4)
vW = [v(5), v(6), v(7)]
vK = [v(8), v(9), v(10)]
vDma = v(11)
vAx = [v(12), v(13)]
vAo = [v(14), v(15)]
vAh = [v(16), v(17)]
vSt, vStW, vKvSrc, vKvDst, vT16, vZ01, vZ2, vRT, vRW, vRF, vOut, vOut4, vOne = [v(18 + i) for i in range(13)]
vOh, vXs, vXh, vHs, vHh, vFl, vPollR, vPollC, vXch = [v(31 + i) for i in range(9)]
XE = [v(40, 4), v(44, 4)]
vC2 = v(48, 2)
vC2b = v(50, 2)
vLn2 = v(52, 2)
vEps = v(54, 2)
RT = v(56, 8)
ACC = v(64, 64)
FIFO = v(128, 4 * FI)
RES = v(160, 20)
B2F = v(180, 20)
TMP = v(200, 56)


class Main:
    def __init__(self, e, opt):
        self.e = e
        self.opt = opt
        self.kname = opt["kname"]
        self.nstamp = 0
        self.segs = []
        pos = 0
        for p in range(2):
            for k, n in (("A", NA), ("O", NO), ("B", NB), ("C", NC)):
                self.segs.append((k, pos, n))
                pos += n
        self.total = pos
        self.ngroups = pos // 8
        self.issued = 0
        self.dmaop = {}
        self.freed = 0
        self.hold = None
        self.visible = 0
        self.seq = []
        self.seqstart = {}
        for p in range(2):
            b = self.segs[4 * p + 0][1]
            self.seqstart[("A1", p)] = len(self.seq)
            self.seq += [(b + i, "W") for i in range(105)]
            self.seqstart[("A2", p)] = len(self.seq)
            self.seq += [(b + 105 + i, "W") for i in range(63)]
            b = self.segs[4 * p + 1][1]
            self.seqstart[("A4", p)] = len(self.seq)
            self.seq += [(b + 2 * i, "K") for i in range(50)]
            b = self.segs[4 * p + 2][1]
            self.seqstart[("B1a", p)] = len(self.seq)
            self.seq += [(b + i, "W") for i in range(84)]
            self.seqstart[("B1b", p)] = len(self.seq)
            self.seq += [(b + 84 + i, "W") for i in range(63)]
            b = self.segs[4 * p + 3][1]
            self.seqstart[("B2", p)] = len(self.seq)
            self.seq += [(b + 2 * i, "K") for i in range(135)]
        self.rd = 0
        self.cons = 0
        self.lastbar = 0
        self.gate = NA // 8
        self.warn = []
        self.model = []
        self.own_end = 0
        self.deadline = lambda: 1 << 30

    def stamp(self, name):
        self.model.append((name, self.e.T))
        if not self.opt.get("stamps"):
            return
        e = self.e
        e.wait_all_lg()
        e.memtime(sTm)
        e.V("v_writelane_b32", v(53), sTm[0], self.nstamp)
        self.opt.setdefault("stampnames", []).append(name)
        self.nstamp += 1
        assert self.nstamp <= 62

    def endpos(self, i):
        p, k = self.seq[i]
        return p + (2 if k == "K" else 1)

    def ldsaddr(self, pos):
        return RING + (pos % RB) * KB

    def can_issue(self):
        if self.issued >= min(self.ngroups, self.gate):
            return False
        lim = self.freed if self.hold is None else min(self.freed, self.hold)
        return 8 * (self.issued + 1) <= lim + RB

    def dma_group(self):
        e = self.e
        g = self.issued
        self.issued += 1
        pos = 8 * g
        for k, b, n in self.segs:
            if b <= pos < b + n:
                break
        e.S("s_add_u32", M0, sW2048, self.ldsaddr(pos))
        yield
        e.S("s_add_u32", sDm, sSeg[k], (pos - b) * KB)
        yield
        md = "nt" if k in self.opt.get("ntseg", "") else ""
        e.dma(vDma, WS, sDm, 0, md, cls=self.dcls(k))
        yield
        self.dmaop[g] = e.dma(vDma, WS, sDm, 1024, md, cls=self.dcls(k))
        yield

    def dcls(self, k):
        return (750, 80, self.opt.get("svcAB", 150)) if k in "AB" else (750, self.opt.get("svcOC", 92), 75)

    def dma_ok(self):
        e = self.e
        if self.mid_group():
            g = self.issued - 1
        elif self.can_issue():
            g = self.issued
        else:
            return False
        if e.outstanding() >= self.opt.get("qmax", 13):
            return False
        if self.mid_group() or 8 * g < self.own_end:
            return True
        c = self.dcls(self.segof(8 * g))
        return e.predict(c) + c[2] <= self.deadline()

    def dma_filler(self):
        while True:
            if self.can_issue():
                for _ in self.dma_group():
                    yield True
            else:
                yield False

    def flush_dma_partial(self):
        while self.issued > 0 and (self.issued - 1) not in self.dmaop:
            next(self.dmaf)

    def dma_all(self):
        self.flush_dma_partial()
        while self.can_issue():
            for _ in self.dma_group():
                pass

    def ring_barrier(self, need_idx, extra_ops=(), free_all=False):
        e = self.e
        need_idx = min(need_idx, len(self.seq))
        upto = self.endpos(need_idx - 1) if need_idx > 0 else 0
        g = (upto + 7) // 8
        self.flush_dma_partial()
        while self.issued < g:
            assert self.can_issue(), ("ring deadlock", self.issued, g, self.freed, self.hold)
            self.warn.append(f"forced dma group {self.issued} at seq {self.rd}")
            for _ in self.dma_group():
                pass
        ops = list(extra_ops)
        for gg in range(self.visible // 8, g):
            ops.append(self.dmaop[gg])
        e.wait_ops(ops)
        e.barrier()
        self.visible = max(self.visible, 8 * g)
        self.freed = self.seq[self.cons][0] if self.cons < len(self.seq) else self.total
        self.lastbar = self.rd

    def issue_read(self):
        e = self.e
        i = self.rd
        if i >= len(self.seq):
            return
        pos, k = self.seq[i]
        assert self.endpos(i) <= self.visible, ("read of invisible block", i, pos, self.visible)
        ad = self.ldsaddr(pos)
        base = (vW if k == "W" else vK)[ad >> 16]
        slot = i % FI
        e.ds_read(FIFO[4 * slot:4 * slot + 4], base, ad & 0xffff)
        self.rd += 1

    def prime(self):
        while self.rd < self.cons + FI and self.rd < len(self.seq) and self.endpos(self.rd) <= self.visible:
            self.issue_read()

    def run_pass(self, n, mf, ntile, xf, fillers=(), chunk=24, stop_reads=None, hooks=None,
                 aload=None, vrate=0.5, amix=(1, 0), over=0, force_bar=None, late=None, see_all=False, tail=2000):
        e = self.e
        fillers = list(fillers)
        lim = stop_reads if stop_reads is not None else len(self.seq)
        st = {"next": 0, "k": 0, "t": 0}
        self.own_end = self.endpos(lim - 1)
        self.deadline = lambda: e.T + (n - st["t"]) * 33 + tail

        i_first = self.cons

        def dma_need():
            g = self.issued - 1 if self.mid_group() else self.issued
            for i in range(self.cons, lim):
                if self.endpos(i) > 8 * g:
                    return i - i_first - FI - chunk
            return 1 << 20

        def one_vmem():
            na, nd = amix
            n0 = len(e.vm)
            if st.get("late"):
                if e.T < st["next"]:
                    return False
                try:
                    next(st["late"])
                except StopIteration:
                    st["late"] = None
                    return False
            else:
                na_ = (aload.n // 2) * ntile if (aload is not None and not aload.done) else 1 << 21
                nd_ = dma_need() if (self.mid_group() or self.can_issue()) else 1 << 22
                urgent = min(na_, nd_) - st["t"] <= self.opt.get("horizon", 24)
                if e.T < st["next"] and not urgent:
                    return False
                if na_ <= nd_:
                    if na_ >= 1 << 21 or (e.outstanding() >= self.opt.get("qmax", 13) and not urgent):
                        return False
                    aload.step()
                elif urgent or self.dma_ok():
                    next(self.dmaf)
                else:
                    return False
            if len(e.vm) > n0:
                st["k"] += 1
                st["next"] = e.T + self.opt.get("vgap", 24)
            return True

        def fill(budget):
            while budget > 0:
                n0 = e.ninst
                did = one_vmem()
                if not did:
                    for f in list(fillers):
                        try:
                            if next(f) == "idle":
                                continue
                            did = True
                            break
                        except StopIteration:
                            fillers.remove(f)
                if not did:
                    return
                budget -= e.ninst - n0

        def waits_for(t):
            regs = []
            for tt in (t, t + 1):
                if tt < n:
                    ks = tt // ntile
                    if aload is not None:
                        aload.upto(ks)
                    idx = self.cons + (tt - t)
                    if idx < self.rd:
                        regs += FIFO[4 * (idx % FI):4 * (idx % FI) + 4].regs()
                    regs += xf(ks, 0).regs() + xf(ks, 1).regs()
            return e._pending(regs)

        e.wait_ops(waits_for(0))
        if aload is not None:
            self.stamp("1st")
            self.warn.append(f"fill {8 * self.issued - self.seq[self.cons][0]}")
        for t in range(n):
            if aload is not None and self.opt.get("midstamp") and t == n // 2:
                self.stamp("half")
            i = self.cons
            assert self.rd > i, ("fifo underrun", i)
            W = FIFO[4 * (i % FI):4 * (i % FI) + 4]
            st["t"] = t
            if hooks and hooks.get("add"):
                g_ = hooks["add"](t)
                if g_:
                    fillers.append(g_)
            ov = over if fillers else 0
            mf(t, W, 0)
            bar = self.rd < lim and (self.endpos(self.rd) > self.visible or self.rd - self.lastbar >= chunk)
            bar = bar or t == force_bar
            if late and t >= late[0] and not st.get("lateon") and (aload is None or aload.done) and 8 * self.issued >= min(self.own_end, self.endpos(min(i_first + n + FI, lim) - 1)) and not self.mid_group():
                st["late"] = late[1]
                st["lateon"] = True
                self.warn.append(f"late at {t}")
            if bar:
                ex, after = [], None
                if hooks and hooks.get("bar"):
                    ex, after = hooks["bar"](t)
                self.ring_barrier(lim if see_all else min(self.rd + chunk, lim), ex)
                if after:
                    after()
            else:
                fill(2 + ov)
            mf(t, W, 1)
            self.cons += 1
            used = 0
            if self.rd < lim:
                self.issue_read()
                used = 1
            pend = waits_for(t + 1) if (t % 2 == 1 and t + 1 < n) else []
            fill(2 + ov - used - (1 if pend else 0))
            if pend:
                e.wait_ops(waits_for(t + 1))
        if late and not st.get("lateon"):
            st["late"] = late[1]
        for f in fillers + ([st["late"]] if st.get("late") else []):
            for _ in f:
                pass

    def segof(self, pos):
        for k, b, n in self.segs:
            if b <= pos < b + n:
                return k
        return "O"

    def mid_group(self):
        return self.issued > 0 and (self.issued - 1) not in self.dmaop

    def dma_burst(self, maxgroups=99):
        e = self.e
        self.flush_dma_partial()
        gs = []
        while self.can_issue() and len(gs) < maxgroups:
            gs.append(self.issued)
            self.issued += 1
        for w in (1, 2, 3):
            mine = gs[w - 1::3]
            if not mine:
                continue
            skip = e.newlabel("noburst")
            e.S("s_cmp_lg_u32", sWave, w)
            e.branch("s_cbranch_scc1", skip)
            e.cond_begin()
            for g in mine:
                pos = 8 * g
                for k, b, n in self.segs:
                    if b <= pos < b + n:
                        break
                for h in range(2):
                    e.S("s_mov_b32", M0, self.ldsaddr(pos) + h * 4096)
                    e.S("s_add_u32", sDm, sSeg[k], (pos - b) * KB + h * 4096)
                    for q in range(4):
                        self.dmaop[g] = e.dma(vL16, WS, sDm, q * 1024)
            e.cond_end()
            e.label(skip)

    def prologue(self):
        e = self.e
        e.S("s_cmp_ge_u32", s(2), 256)
        e.branch("s_cbranch_scc1", "main_end")
        if self.opt.get("stamps"):
            e.V("v_mov_b32", v(53), 0)
        self.stamp("t0")
        if self.opt.get("spin"):
            e.memtime(sTm, True)
            e.V("v_mov_b32", v(51), sTm[0])
        e.sload(PP, s(0, 2), 0)
        e.sload(pOut, s(0, 2), 64)
        e.sload(pWs, s(0, 2), 80)
        T0, T1, T2, T3 = TMP[48], TMP[49], TMP[50], TMP[51]
        e.S("s_getpc_b64", s(88, 2))
        e.label("main_pc")
        e.V("v_lshlrev_b32", T2, 5, v(0))
        e.S("s_sub_u32", s(88), s(88), "main_pc-" + self.kname)
        e.S("s_subb_u32", s(89), s(89), 0)
        e.misc(f"global_load_dword {vDum}, {T2}, s[88:89]")
        e._vm([], (2000, 30, 0))
        e.V("v_lshrrev_b32", T0, 6, v(0))
        e.V("v_and_b32", vLane, 63, v(0))
        e.V("v_readfirstlane_b32", sWave, T0)
        e.S("s_lshr_b32", sB, s(2), 3)
        e.S("s_mul_i32", sB, sB, 1792)
        e.S("s_add_u32", sB, sB, 8192)
        e.V("v_lshl_add_u32", T2, v(0), 3, sB)
        e.V("v_min_u32", T2, self.opt.get("code_bytes", 32768) - 4, T2)
        e.misc(f"global_load_dword {vDum}, {T2}, s[88:89]")
        e._vm([], (2000, 30, 0))
        e.V("v_lshlrev_b32", vL16, 4, vLane)
        e.V("v_and_b32", vN, 15, vLane)
        e.V("v_lshrrev_b32", vG, 4, vLane)
        self.vBig = TMP[52]
        e.V("v_mov_b32", self.vBig, BIG)
        e.S("s_and_b32", sA, s(2), 7)
        e.S("s_lshl_b32", sA, sA, 1)
        e.S("s_lshr_b32", sB, s(2), 7)
        e.S("s_add_u32", sR, sA, sB)
        e.S("s_bfe_u32", sC, s(2), (4 << 16) | 3)

    def gather(self, raw, srd, sstride, vaddr, srow, n=8):
        e = self.e
        e.S("s_mul_i32", sLd, srow, sstride)
        for i in range(n):
            e.bload(raw[i], vaddr, srd, sLd, 0, w="ushort", cls=(2500, 32, 0))
            if i < n - 1:
                e.S("s_add_u32", sLd, sLd, sstride)

    def pack(self, raw, n=4):
        for i in range(n):
            self.e.V("v_lshl_or_b32", raw[i], raw[2 * i + 1], 16, raw[2 * i])

    def colsum(self, regs, ex, vs, vt):
        e = self.e
        e.V("v_mov_b32", vs, 0)
        for r_ in regs:
            e.V("v_dot2c_f32_bf16", vs, r_, vOne)
        allreduce_g(e, vs, vt)
        e.V("v_sub_f32", vs, 0, vs)
        e.V("v_cvt_pk_bf16_f32", vt, vs, vs)
        e.V("v_lshlrev_b32", vt, 16, vt)
        e.V("v_sub_f32", vt, vs, vt)
        e.V("v_cvt_pk_bf16_f32", ex[0], vs, vt)
        e.V("v_and_b32", ex[1], "0xffff", ex[0])

    def startup(self):
        e = self.e
        vBig = self.vBig
        RAW1, EX = ACC[0:20], ACC[20:24]
        RAW2 = TMP[8:40]
        vCol, vReg, vLeft, vT0, vT1, vSum, vLd = [FIFO[i] for i in range(7)]
        vA0, vA1, vA2, vSt2, vBias = RES[8], RES[9], B2F[8], B2F[9], TMP[50]
        sT, sP = s(54), s(55)
        sStr = s(56)
        XJ = [RES[0:4], RES[4:8], B2F[0:4]]
        XD, XA, XB_ = B2F[4], ACC[32], ACC[33]
        XM = [s(57), s(58), s(59)]
        T0, T1, T2, T3 = TMP[48], TMP[49], TMP[50], TMP[51]
        e.V("v_lshrrev_b32", T1, 3, vLane)
        e.V("v_and_b32", T3, 7, vLane)
        e.V("v_mul_u32_u24", T0, 1280, T3)
        e.V("v_lshl_add_u32", XA, T1, 4, T0)
        e.V("v_lshrrev_b32", T2, 4, vLane)
        e.V("v_lshl_add_u32", XB_, T2, 7, XA)
        e.V("v_lshlrev_b32", XD, 8, T1)
        e.V("v_lshl_add_u32", XD, T3, 4, XD)
        e.S("s_lshl_b32", sE, sR, 4)
        e.S("s_add_u32", sE, sE, sC)
        e.S("s_mul_i32", sE, sE, 8 * 1280)
        e.S("s_mul_i32", sD, sWave, 3)
        mk_srd(e, XIN, PP[0:2], XSZ)
        for k in range(3):
            e.S("s_add_u32", XM[k], sD, k)
            e.S("s_cmp_ge_u32", XM[k], 8)
            e.S("s_cselect_b64", VCC, -1, 0)
            e.S("s_cselect_b32", sA, 40, 10)
            e.S("s_cselect_b32", sB, 8 - 8 * 40, 0)
            e.V("v_cndmask_b32", T0 if k != 1 else T1, XA, XB_, VCC)
            e.S("s_mul_i32", sA, sA, XM[k])
            e.S("s_add_u32", sA, sA, sB)
            e.S("s_lshl_b32", sA, sA, 4)
            e.S("s_add_u32", sA, sA, sE)
            e.S("s_cmp_ge_u32", XM[k], 10)
            e.S("s_cselect_b32", sA, BIG, sA)
            e.S("s_cselect_b32", XM[k], BIG // 2048, XM[k])
            e.bload(XJ[k], T0 if k != 1 else T1, XIN, sA, 0, cls=(2000, 100, 0))
        self.stamp("issx")
        e.S("s_lshr_b32", sP, sR, 1)
        e.S("s_and_b32", sT, sR, 1)
        e.S("s_lshl_b32", sT, sT, 2)
        e.S("s_add_u32", sT, sT, sWave)
        e.S("s_mov_b32", s(4), (656 << 20) | (660 << 10) | 640)
        e.S("s_mov_b32", s(5), 0)
        e.S("s_mul_i32", sA, sT, 10)
        e.S("s_lshr_b32", sA, s(4), sA)
        e.S("s_and_b32", sA, sA, 1023)
        for t, val in ((3, 1280), (4, 1300), (5, 0), (6, 1), (7, 32)):
            e.S("s_cmp_eq_u32", sT, t)
            e.S("s_cselect_b32", sA, val, sA)
        e.S("s_mul_i32", sB, sC, 40)
        e.S("s_add_u32", sA, sA, sB)
        e.V("v_add_u32", vCol, sA, vN)
        e.V("v_add_u32", vT0, vCol, vN)
        e.S("s_sub_u32", sB, sT, 5)
        e.S("s_cmp_lt_u32", sB, 2)
        e.S("s_cselect_b64", VCC, -1, 0)
        e.V("v_cndmask_b32", vCol, vCol, vT0, VCC)
        e.V("v_lshrrev_b32", vT0, 3, vN)
        e.V("v_mul_u32_u24", vT0, 632 - 32, vT0)
        e.V("v_lshrrev_b32", vT1, 2, vN)
        e.V("v_lshl_add_u32", vT0, vT1, 4, vT0)
        e.V("v_add3_u32", vT0, vT0, vN, sA)
        e.S("s_cmp_eq_u32", sT, 2)
        e.S("s_cselect_b64", VCC, -1, 0)
        e.V("v_cndmask_b32", vCol, vCol, vT0, VCC)
        e.V("v_lshlrev_b32", vCol, 1, vCol)
        e.S("s_cmp_eq_u32", sT, 7)
        e.S("s_cselect_b32", sB, 8, 16)
        e.V("v_cmp_le_u32", VCC, sB, vN)
        e.S("s_mov_b32", sStr, 3840)
        e.V("v_cndmask_b32", vCol, vCol, vBig, VCC)
        e.S("s_mov_b32", sD, 8 * 3840)
        e.V("v_mad_u32_u24", vReg, vG, sD, vCol)
        e.V("v_and_b32", vT0, 1, vG)
        e.V("v_lshrrev_b32", vT1, 1, vG)
        e.V("v_lshl_add_u32", vLd, vT0, 1, vT1)
        e.S("s_mov_b32", sD, 4 * 3840)
        e.V("v_mad_u32_u24", vLeft, vLd, sD, vCol)
        mk_srd(e, SR1, PP[2:4], D * 3 * D * 2)
        e.S("s_mul_i32", sB, sP, 80)
        self.gather(RAW1[0:8], SR1, sStr, vReg, sB)
        e.S("s_add_u32", sA, sB, 32)
        self.gather(RAW1[8:16], SR1, sStr, vReg, sA)
        e.S("s_add_u32", sA, sB, 64)
        self.gather(RAW1[16:20], SR1, sStr, vLeft, sA, 4)
        self.stamp("iss1")
        def r2touch():
            e.S("s_lshl_b32", sA, s(2), 2)
            e.S("s_add_u32", sA, sA, sWave)
            e.V("v_min_u32", T0, 17, vLane)
            e.V("v_lshlrev_b32", T0, 7, T0)
            e.S("s_mul_i32", sB, sA, 2160)
            mk_srd(e, SR2, PP[8:10], F * D * 2)
            e.touch(vDum, T0, SR2, sB, 0, cls=(2000, 30, 0))
            mk_srd(e, SR2, PP[12:14], F * D * 2)
            e.touch(vDum, T0, SR2, sB, 0, cls=(2000, 30, 0))
            e.V("v_min_u32", T0, 7 * 128, T0)
            mk_srd(e, SR2, PP[4:6], D * D * 2)
            e.S("s_mul_i32", sB, sA, 800)
            e.touch(vDum, T0, SR2, sB, 0, cls=(2000, 30, 0))
        if self.opt.get("r2touch", 3) == 1:
            r2touch()
        if self.opt.get("wsoff"):
            e.S("s_add_u32", pWs[0], pWs[0], self.opt["wsoff"] << 20)
            e.S("s_addc_u32", pWs[1], pWs[1], 0)
        mk_srd(e, WS, pWs, WS_USED)
        e.sload(sBase, pWs, EPOCH)
        e.S("s_mov_b32", sA, "0x3f803f80")
        e.V("v_mov_b32", vOne, sA)
        ops1 = []
        e.S("s_lshr_b32", sA, sC, 1)
        e.S("s_lshl_b32", sB, sR, 3)
        e.S("s_add_u32", sA, sA, sB)
        e.S("s_mul_i32", sA, sA, 20 * KB)
        e.S("s_and_b32", sB, sC, 1)
        e.S("s_lshl_b32", sB, sB, 7)
        e.S("s_add_u32", sA, sA, sB)
        e.S("s_add_u32", sA, sA, XB[0])
        for k in range(3):
            e.S("s_lshl_b32", sB, XM[k], 11)
            e.S("s_add_u32", sB, sB, sA)
            ops1.append(e.bstore(XJ[k], XD, WS, sB, 0, "sc1", cls=(1000, 70, 0)))
        xs = ACC[26:28]
        xz = ACC[24:26]
        MK = ACC[28:32]
        for r_ in (xs[0], xs[1], xz[0], xz[1]):
            e.V("v_mov_b32", r_, 0)
        for k in range(3):
            for i in range(4):
                e.V("v_dot2c_f32_bf16", xs[0], XJ[k][i], vOne)
                e.V("v_dot2c_f32_bf16", xs[1], XJ[k][i], XJ[k][i])
        for h in range(2):
            e.V("v_add_f32_dpp", xs[h], xs[h], xs[h], mods="row_ror:8 row_mask:0xf bank_mask:0xf")
            allreduce_g(e, xs[h], vT0)
        e.S("s_lshl_b32", sA, sR, 3)
        e.S("s_add_u32", sA, sA, sWave)
        e.S("s_lshl_b32", sA, sA, 10)
        e.S("s_lshl_b32", sB, sC, 6)
        e.S("s_add_u32", sA, sA, sB)
        e.S("s_add_u32", sA, sA, STB[0])
        e.S("s_add_u32", sB, sA, 4096)
        e.V("v_lshlrev_b32", vT0, 3, vLane)
        e.S("s_mov_b64", EXEC, "0xff")
        ops1.append(e.bstore(xs, vT0, WS, sA, 0, "sc1", cls=(1000, 20, 0)))
        ops1.append(e.bstore(xz, vT0, WS, sB, 0, "sc1", cls=(1000, 20, 0)))
        e.S("s_mov_b64", EXEC, -1)
        self.stamp("xst")
        e.S("s_cmp_lt_u32", sT, 5)
        e.S("s_cselect_b32", sE, 5, 3)
        e.S("s_cselect_b32", sA, 0, 100)
        e.S("s_add_u32", sA, sA, sT)
        e.S("s_mul_i32", sB, sC, NA)
        e.S("s_add_u32", sA, sA, sB)
        e.S("s_add_u32", sA, sA, WA // KB)
        e.S("s_lshl_b32", sA, sA, 10)
        e.S("s_lshl_b32", sE, sE, 10)
        e.S("s_mul_i32", sB, sP, sE)
        e.S("s_lshl_b32", sB, sB, 1)
        e.S("s_add_u32", sB, sB, sA)
        self.pack(RAW1[0:8])
        ops1.append(e.bstore(RAW1[0:4], vL16, WS, sB, 0, "sc1", cls=(1000, 70, 0)))
        e.S("s_add_u32", sB, sB, sE)
        self.pack(RAW1[8:16])
        ops1.append(e.bstore(RAW1[8:12], vL16, WS, sB, 0, "sc1", cls=(1000, 70, 0)))
        e.S("s_lshr_b32", sB, sP, 1)
        e.S("s_add_u32", sB, sB, 16)
        e.S("s_mul_i32", sB, sB, sE)
        e.S("s_add_u32", sB, sB, sA)
        e.S("s_and_b32", sD, sP, 1)
        e.S("s_lshl_b32", s(4), sD, 9)
        e.S("s_add_u32", sB, sB, s(4))
        e.V("v_lshlrev_b32", vT0, 8, vG)
        e.V("v_and_b32", vT0, 256, vT0)
        e.V("v_lshl_add_u32", vT0, vN, 4, vT0)
        e.V("v_lshrrev_b32", vT1, 1, vG)
        e.V("v_lshl_add_u32", vLd, vT1, 3, vT0)
        self.pack(RAW1[16:20], 2)
        ops1.append(e.bstore(RAW1[16:18], vLd, WS, sB, 0, "sc1", cls=(1000, 40, 0)))
        self.colsum([RAW1[i] for i in (0, 1, 2, 3, 8, 9, 10, 11, 16, 17)], EX, vSum, vT0)
        e.S("s_mul_i32", sB, sE, 20)
        e.S("s_add_u32", sB, sB, sA)
        e.S("s_lshr_b32", sA, sP, 1)
        e.S("s_lshl_b32", sA, sA, 8)
        e.S("s_add_u32", sB, sB, sA)
        e.S("s_lshl_b32", sD, sD, 3)
        e.S("s_add_u32", sB, sB, sD)
        e.S("s_mov_b64", EXEC, "0xffff")
        ops1.append(e.bstore(EX[0:2], vL16, WS, sB, 0, "sc1", cls=(1000, 20, 0)))
        e.S("s_mov_b64", EXEC, -1)
        self.stamp("r1")
        if self.opt.get("r2touch", 3) == 2:
            r2touch()
        for i in range(4):
            e.V("v_mov_b32", MK[i], -1)
        e.S("s_lshl_b32", sA, sC, 4)
        e.S("s_add_u32", sA, sA, sR)
        e.S("s_mul_i32", sA, sA, KVSZ)
        e.S("s_mul_i32", sB, sWave, 896)
        e.S("s_min_u32", sB, sB, KVSZ - 1024)
        e.S("s_add_u32", sA, sA, sB)
        e.S("s_add_u32", sA, sA, KVB[0])
        ops1.append(e.bstore(MK, vL16, WS, sA, 0, "sc1", cls=(1000, 70, 0)))
        self.stamp("xjob")
        e.S("s_and_b32", sCG, sC, 7)
        e.S("s_lshr_b32", sRH, sC, 3)
        if self.opt.get("r2touch", 3) == 3:
            r2touch()
        mk_srd(e, SB2, PP[14:16], D * 2)
        self.prologue2()
        self.stamp("pro2")
        sU, sP, sStr, sJ = s(88), s(89), s(100), s(101)
        rows = [s(3 + i) for i in range(4)]
        D2 = [s(64), s(65), s(66), s(67)]
        sDB, sDX = s(70), s(71)
        vSel0, vSel1 = vA1, vA2
        mk_srd(e, SR1, PP[10:12], F * 2)
        e.S("s_lshl_b32", sJ, sRH, 4)
        e.S("s_add_u32", sJ, sJ, sR)
        e.S("s_lshl_b32", sJ, sJ, 2)
        e.S("s_add_u32", sJ, sJ, sWave)
        e.V("v_lshrrev_b32", vT0, 1, vG)
        e.V("v_and_b32", vT1, 1, vG)
        e.V("v_mov_b32", vSt2, vL16)
        e.S("s_mov_b32", sDX, BIG)
        lo, lc, lj = e.newlabel("job_wo"), e.newlabel("job_w2"), e.newlabel("job_go")

        def unit(sbase, nu, stride, ca, cb, nreg, dB):
            e.S("s_lshl_b32", sA, sU, 5)
            e.S("s_add_u32", sA, sA, sbase)
            e.S("s_lshl_b32", sA, sA, 1)
            e.S("s_mov_b32", sDB, dB)
            e.S("s_cmp_lt_u32", sU, nu)
            e.S("s_cselect_b64", VCC, -1, 0)
            e.S("s_cselect_b32", sDB, sDB, BIG)
            e.V("v_lshlrev_b32", vCol, 2, vN)
            e.V("v_and_b32", vReg, 14, vN)
            e.V("v_lshlrev_b32", vReg, 1, vReg)
            e.V("v_cndmask_b32", vCol, vReg, vCol, VCC)
            e.V("v_add_u32", vCol, sA, vCol)
            e.V("v_and_b32", vReg, 1, vN)
            e.V("v_cndmask_b32", vReg, vReg, 0, VCC)
            e.S("s_mov_b32", sA, "0x02020202")
            e.V("v_mul_lo_u32", vReg, vReg, sA)
            e.V("v_add_u32", vSel0, "0x05040100", vReg)
            e.S("s_mov_b32", sStr, stride)
            e.S("s_mov_b32", sD, 8 * stride)
            e.V("v_mul_u32_u24", vReg, sD, vG)
            e.S("s_mov_b32", sD, ca * stride)
            e.V("v_mul_u32_u24", vLeft, sD, vT0)
            e.S("s_mov_b32", sD, cb * stride)
            e.V("v_mad_u32_u24", vLeft, vT1, sD, vLeft)
            e.S("s_cmp_lt_u32", sP, nreg)
            e.S("s_cselect_b64", VCC, -1, 0)
            e.V("v_cndmask_b32", vA0, vLeft, vReg, VCC)

        def split_dests(half):
            for b in range(4):
                e.S("s_lshl_b32", sA, sP, 2)
                e.S("s_add_u32", sA, sA, b)
                e.S("s_mul_i32", sD, sA, 10)
                e.S("s_cmp_ge_u32", sA, half)
                e.S("s_cselect_b32", sB, 10 * half - 1, 0)
                e.S("s_sub_u32", sD, sD, sB)
                e.S("s_add_u32", sD, sD, sE)
                e.S("s_lshl_b32", D2[b], sD, 10)
                if half == 27 and b >= 2:
                    e.S("s_cmp_ge_u32", sA, 54)
                    e.S("s_cselect_b32", D2[b], BIG, D2[b])

        def div3(dq, dr, src):
            e.S("s_mul_i32", dq, src, 43691)
            e.S("s_lshr_b32", dq, dq, 17)
            e.S("s_mul_i32", sA, dq, 3)
            e.S("s_sub_u32", dr, src, sA)

        e.S("s_cmp_ge_u32", sJ, 55)
        e.branch("s_cbranch_scc1", lc)
        e.S("s_cmp_ge_u32", sJ, 40)
        e.branch("s_cbranch_scc1", lo)
        e.cond_begin()
        mk_srd(e, SR2, PP[8:10], D * F * 2)
        e.S("s_and_b32", sU, sJ, 3)
        e.S("s_lshr_b32", sP, sJ, 2)
        e.S("s_cmp_ge_u32", sP, 5)
        e.S("s_cselect_b32", sA, 5, 0)
        e.S("s_cselect_b32", sJ, 8, 0)
        e.S("s_sub_u32", sP, sP, sA)
        e.S("s_add_u32", sJ, sJ, sCG)
        e.S("s_mul_i32", sE, sJ, 112)
        e.S("s_max_u32", sB, sJ, 12)
        e.S("s_sub_u32", sB, sB, 12)
        e.S("s_lshl_b32", sB, sB, 4)
        e.S("s_sub_u32", sE, sE, sB)
        unit(sE, 3, 3456, 80, 8, 4, 1024)
        e.S("s_lshl_b32", sA, sU, 4)
        e.S("s_add_u32", sA, sA, sJ)
        e.S("s_cmp_ge_u32", sA, 3 * 16 + 12)
        e.S("s_cselect_b64", VCC, -1, 0)
        e.V("v_cndmask_b32", vCol, vCol, vBig, VCC)
        for b in range(4):
            e.S("s_mul_i32", sA, sP, 160)
            e.S("s_add_u32", sA, sA, 80 * (b >> 1) + 32 * (b & 1))
            e.S("s_cmp_eq_u32", sP, 4)
            e.S("s_cselect_b32", rows[b], 160 * b + 64, sA)
        e.S("s_cmp_lt_u32", sU, 2)
        e.S("s_cselect_b32", s(79), 4, 3)
        e.S("s_cselect_b32", sE, 0, 80)
        e.S("s_lshl_b32", sA, sU, 1)
        e.S("s_add_u32", sE, sE, sA)
        e.S("s_mul_i32", sB, sJ, NB)
        e.S("s_add_u32", sE, sE, sB)
        e.S("s_add_u32", sE, sE, WB // KB)
        for b in range(4):
            e.S("s_lshl_b32", sA, sP, 2)
            e.S("s_add_u32", sA, sA, b)
            e.S("s_mul_i32", sA, sA, s(79))
            e.S("s_add_u32", sA, sA, sE)
            e.S("s_lshl_b32", D2[b], sA, 10)
        e.S("s_mul_i32", sD, s(79), 20)
        e.S("s_add_u32", sD, sD, sE)
        e.S("s_lshl_b32", sDX, sD, 10)
        e.branch("s_branch", lj)
        e.cond_end()
        e.label(lo)
        e.cond_begin()
        mk_srd(e, SR2, PP[4:6], D * D * 2)
        e.S("s_sub_u32", sJ, sJ, 40)
        div3(sP, sU, sJ)
        e.S("s_mul_i32", sE, sCG, 80)
        unit(sE, 2, 1280, 80, 40, 4, 2048)
        for b in range(4):
            e.S("s_mul_i32", sA, sP, 160)
            e.S("s_add_u32", sA, sA, 40 * b)
            e.S("s_cmp_eq_u32", sP, 4)
            e.S("s_cselect_b32", rows[b], 160 * b + 32, sA)
        e.S("s_mul_i32", sE, sCG, NO)
        e.S("s_add_u32", sE, sE, WO // KB)
        e.S("s_lshl_b32", sA, sU, 2)
        e.S("s_add_u32", sE, sE, sA)
        split_dests(10)
        e.branch("s_branch", lj)
        e.cond_end()
        e.label(lc)
        e.cond_begin()
        mk_srd(e, SR2, PP[12:14], F * D * 2)
        e.S("s_sub_u32", sJ, sJ, 55)
        div3(sP, sU, sJ)
        e.S("s_mul_i32", sE, sCG, 80)
        unit(sE, 2, 1280, 112, 8, 12, 2048)
        e.S("s_cmp_ge_u32", sP, 14)
        e.S("s_cselect_b64", VCC, -1, 0)
        e.V("v_cndmask_b32", vCol, vCol, vBig, VCC)
        e.V("v_cndmask_b32", vSt2, vSt2, vBig, VCC)
        e.S("s_min_u32", sP, sP, 13)
        for b in range(4):
            e.S("s_lshl_b32", sD, sP, 2)
            e.S("s_add_u32", sD, sD, b)
            e.S("s_mul_i32", sA, sD, 43691)
            e.S("s_lshr_b32", sA, sA, 17)
            e.S("s_lshl_b32", sA, sA, 4)
            e.S("s_min_u32", sA, sA, 192)
            e.S("s_lshl_b32", sB, sD, 5)
            e.S("s_add_u32", sA, sA, sB)
            e.S("s_mul_i32", sB, sD, 224)
            e.S("s_sub_u32", sB, sB, 224 * 48 - 96)
            e.S("s_cmp_ge_u32", sD, 48)
            e.S("s_cselect_b32", rows[b], sB, sA)
        e.S("s_mul_i32", sE, sCG, NC)
        e.S("s_add_u32", sE, sE, WC // KB)
        e.S("s_lshl_b32", sA, sU, 2)
        e.S("s_add_u32", sE, sE, sA)
        split_dests(27)
        e.cond_end()
        e.label(lj)
        e.V("v_add_u32", vA0, vA0, vCol)
        e.S("s_cmp_lt_u32", sP, 2)
        e.S("s_cselect_b64", VCC, -1, 0)
        e.V("v_cndmask_b32", vBias, vBig, vCol, VCC)
        e.V("v_mov_b32", vSel1, "0x07060302")
        e.V("v_add_u32", vT0, sP, vG)
        e.V("v_lshrrev_b32", vT1, 1, vT0)
        e.V("v_lshlrev_b32", vLd, 4, vN)
        e.V("v_lshl_add_u32", vLd, vT1, 8, vLd)
        e.V("v_and_b32", vT0, 1, vT0)
        e.V("v_lshl_add_u32", vLd, vT0, 3, vLd)
        e.S("s_cmp_eq_u32", sP, 4)
        e.S("s_cselect_b32", sA, 4, 1)
        e.V("v_cmp_gt_u32", VCC, sA, vG)
        e.V("v_cndmask_b32", vLd, vBig, vLd, VCC)
        e.S("s_lshl_b32", sA, sC, 4)
        e.S("s_add_u32", sA, sA, sR)
        e.S("s_mul_i32", sA, sA, KVSZ)
        e.S("s_mul_i32", sB, sWave, 896)
        e.S("s_min_u32", sB, sB, KVSZ - 1024)
        e.S("s_add_u32", sA, sA, sB)
        e.S("s_add_u32", s(79), sA, KVB[1])
        self.stamp("dec2")
        e.wait_ops(ops1)
        e.barrier()
        self.flag("both", 1)
        self.stamp("w1flag")
        self.ops2 = []

        def r2_loads():
            for b in range(4):
                e.S("s_mul_i32", sE, rows[b], sStr); yield
                for i in range(8):
                    e.bload(RAW2[8 * b + i], vA0, SR2, sE, 0, cls=(1500, 32, 0)); yield
                    if i < 7:
                        e.S("s_add_u32", sE, sE, sStr); yield
            e.bload(vBias, vBias, SR1, 0, 0, cls=(1500, 10, 0)); yield

        vs, vt, MK = TMP[48], TMP[49], TMP[40:44]
        EV = ACC[40:56]

        def r2_pack():
            for b in range(4):
                raw = RAW2[8 * b:8 * b + 8]
                for i in range(4):
                    e.V("v_perm_b32", EV[4 * b + i], raw[2 * i + 1], raw[2 * i], vSel0)
                for i in range(4):
                    e.V("v_perm_b32", raw[i], raw[2 * i + 1], raw[2 * i], vSel1)
            for i in range(4):
                e.V("v_mov_b32", MK[i], -1)
            e.V("v_cmp_eq_u32", sNan, 0, vG)
            for h in range(2):
                ex = TMP[44 + 2 * h:46 + 2 * h]
                self.colsum([EV[i] for i in range(16)] if h == 0 else [RAW2[8 * b + i] for b in range(4) for i in range(4)], ex, vs, vt)
                e.V("v_perm_b32", vt, vBias, vBias, vSel0 if h == 0 else vSel1)
                e.V("v_and_b32", vt, "0xffff0000", vt)
                e.V("v_or_b32", ex[1], ex[1], vt)
                e.V("v_cndmask_b32", ex[0], 0, ex[0], sNan)
                e.V("v_cndmask_b32", ex[1], 0, ex[1], sNan)
            e.V("v_mov_b32", vSel0, vLd)
            yield

        def r2_stores():
            for b in range(4):
                self.ops2.append(e.bstore(EV[4 * b:4 * b + 4], vSt2, WS, D2[b], 0, "sc1", cls=(1000, 70, 0)))
                e.S("s_add_u32", sA, D2[b], sDB)
                self.ops2.append(e.bstore(RAW2[8 * b:8 * b + 4], vSt2, WS, sA, 0, "sc1", cls=(1000, 70, 0)))
            self.ops2.append(e.bstore(MK, vL16, WS, s(79), 0, "sc1", cls=(1000, 70, 0)))
            for h in range(2):
                if h:
                    e.S("s_add_u32", sDX, sDX, sDB)
                self.ops2.append(e.bstore(TMP[44 + 2 * h:46 + 2 * h], vSel0, WS, sDX, 0, "sc1", cls=(1000, 20, 0)))
        self.r2_stores = r2_stores
        self.r2_loads, self.r2_pack = r2_loads(), r2_pack()
        for _ in self.r2_loads:
            pass
        self.stamp("iss2")
        for _ in self.r2_pack:
            pass
        if self.opt.get("r2st", 2) == 2:
            r2_stores()
            self.late_loads()
        self.stamp("r2")
        self.poll("both", 1)
        e.barrier()
        self.stamp("w1go")

    def w2_gen(self):
        e = self.e
        t = RES[0]
        e.V("v_bfe_u32", t, vLane, 4, 1); yield
        e.V("v_lshl_add_u32", t, t, 11, vFl); yield
        e.S("s_lshl_b32", sE, sCG, 8); yield
        e.S("s_add_u32", sE, sE, FLG_C); yield
        e.bload(RES[1], t, WS, sE, 0, "sc1", cls=(900, 10, 0)); yield
        for _ in range(50):
            yield "idle"
        e.S("s_add_u32", sD, sBase, 2); yield
        lok, lre = e.newlabel("w2ok"), e.newlabel("w2retry")
        e.V("v_cmp_ne_u32", VCC, sD, RES[1])
        e.S("s_cmp_eq_u64", VCC, 0)
        e.branch("s_cbranch_scc1", lok)
        e.cond_begin()
        e.S("s_mov_b32", sCnt, 0)
        e.label(lre)
        e.misc("s_sleep 4")
        e.bload(RES[1], t, WS, sE, 0, "sc1")
        e.V("v_cmp_ne_u32", VCC, sD, RES[1])
        e.S("s_cmp_eq_u64", VCC, 0)
        e.branch("s_cbranch_scc1", lok)
        e.S("s_add_u32", sCnt, sCnt, 1)
        e.S("s_cmp_lt_u32", sCnt, 0x20000)
        e.branch("s_cbranch_scc1", lre)
        e.cond_end()
        e.label(lok)
        self.gate = 1 << 20
        yield

    def prologue2(self):
        e = self.e
        T0, T1, T2, T3, T4, T5 = [TMP[40 + i] for i in range(6)]
        mk_srd(e, OUT, pOut, XSZ)
        e.S("s_and_b32", sKH, sWave, 1)
        e.S("s_lshl_b32", sW2048, sWave, 11)
        e.S("s_mul_i32", sA, sC, NA * KB)
        e.S("s_add_u32", sSeg["A"], sA, WA)
        e.S("s_mul_i32", sA, sCG, NO * KB)
        e.S("s_add_u32", sSeg["O"], sA, WO)
        e.S("s_mul_i32", sA, sC, NB * KB)
        e.S("s_add_u32", sSeg["B"], sA, WB)
        e.S("s_mul_i32", sA, sCG, NC * KB)
        e.S("s_add_u32", sSeg["C"], sA, WC)
        e.V("v_add_u32", vDma, sW2048, vL16)
        e.S("s_mul_i32", sXr, sR, 160 * KB)
        e.S("s_mul_i32", sHr, sR, 432 * KB)
        e.S("s_lshl_b32", sSTr, sR, 13)
        e.S("s_mul_i32", sA, sWave, 40 * KB)
        e.V("v_add_u32", vAx[0], sA, vL16)
        e.V("v_add_u32", vAx[1], 20 * KB, vAx[0])
        e.V("v_lshlrev_b32", T0, 11, vG)
        e.V("v_lshl_add_u32", T0, vN, 3, T0)
        e.S("s_lshl_b32", sA, sWave, 8)
        e.V("v_add_u32", vSt, sA, T0)
        e.S("s_mov_b32", self.cInvD, lit(1.0 / D))
        for j in range(3):
            if j == 0:
                e.V("v_mov_b32", vW[0], vL16)
            else:
                e.V("v_add_u32", vW[j], j * 65536, vL16)
        e.S("s_lshl_b32", sA, sKH, 10)
        for j in range(3):
            e.V("v_add_u32", vK[j], sA, vW[j])
        e.V("v_lshlrev_b32", T4, 4, v(0))
        Z = TMP[44:48]
        Z = TMP[48:52]
        for j in range(4):
            e.V("v_mov_b32", Z[j], 0)
        e.ds_write(T4, Z, 0)
        e.ds_write(T4, Z, 4096)
        e.S("s_lshl_b32", sTT, sRH, 2)
        e.S("s_add_u32", sTT, sTT, sWave)
        e.S("s_xor_b32", sB, sTT, 1)
        for u, st in ((0, sTT), (1, sB)):
            e.S("s_mul_i32", sA, st, 20 * KB)
            e.S("s_mul_i32", sD, sKH, 10 * KB)
            e.S("s_add_u32", sA, sA, sD)
            e.V("v_add_u32", vAo[u], sA, vL16)
            e.S("s_mul_i32", sA, st, 54 * KB)
            e.S("s_mul_i32", sD, sKH, 27 * KB)
            e.S("s_add_u32", sA, sA, sD)
            e.V("v_add_u32", vAh[u], sA, vL16)
        e.V("v_lshrrev_b32", T0, 1, vG)
        e.V("v_and_b32", T1, 1, vG)
        e.V("v_lshlrev_b32", T2, 4, vN)
        e.V("v_lshl_add_u32", T3, T0, 8, T2)
        e.V("v_lshl_add_u32", T3, T1, 3, T3)
        e.S("s_mul_i32", sA, sTT, 20 * KB)
        e.V("v_add_u32", vXs, sA, vL16)
        e.V("v_add_u32", vXh, sA, T3)
        e.S("s_mul_i32", sA, sWave, 108 * KB)
        e.V("v_add_u32", vHs, sA, vL16)
        e.S("s_cmp_ge_u32", sC, 12)
        e.S("s_cselect_b32", sA, BIG, sA)
        e.V("v_add_u32", vHh, sA, T3)
        e.S("s_mul_i32", sA, sWave, 40 * KB)
        e.V("v_lshl_add_u32", T3, vG, 3, T2)
        e.V("v_add_u32", vOh, sA, T3)
        e.V("v_cmp_gt_u32", VCC, 2, vG)
        e.V("v_mov_b32", T3, BIG)
        e.V("v_cndmask_b32", vOh, T3, vOh, VCC)
        e.S("s_lshl_b32", sA, sTT, 7)
        e.V("v_lshl_add_u32", T3, vN, 3, sA)
        e.V("v_lshl_add_u32", vStW, T0, 2, T3)
        e.S("s_lshl_b32", sA, sWave, 7)
        e.S("s_add_u32", sA, sA, RST)
        e.V("v_lshl_add_u32", vRT, vG, 4, sA)
        e.V("v_lshl_add_u32", vRW, vN, 2, sA)
        e.S("s_lshl_b32", sA, sTT, 6)
        e.S("s_add_u32", sA, sA, RST)
        e.V("v_lshl_add_u32", vRF, vN, 2, sA)
        e.V("v_lshlrev_b32", T3, 4, vG)
        e.V("v_add_u32", vZ2, ZT + 128, T3)
        e.V("v_cmp_gt_u32", VCC, 10, vN)
        e.V("v_add_u32", T3, ZT, T3)
        e.V("v_cndmask_b32", vZ01, vZ2, T3, VCC)
        e.S("s_lshl_b32", sA, sR, 3)
        e.S("s_add_u32", sA, sA, sTT)
        e.S("s_mul_i32", sA, sA, 16 * 1280)
        e.S("s_mul_i32", sB, sCG, 160)
        e.S("s_add_u32", sA, sA, sB)
        e.V("v_mul_u32_u24", T3, 1280, vN)
        e.V("v_add_u32", T3, sA, T3)
        e.V("v_lshl_add_u32", vOut, vG, 4, T3)
        e.V("v_lshl_add_u32", vOut4, vG, 3, T3)
        e.S("s_mul_i32", sA, sWave, 5120)
        e.V("v_add_u32", vXch, sA, vL16)
        e.V("v_lshlrev_b32", vFl, 2, vN)
        e.V("v_mov_b32", vLn2[0], lit(LN2))
        e.V("v_mov_b32", vEps[0], lit(1e-6))
        e.S("s_mov_b32", sMaskV[0], "0x00ff00ff")
        e.S("s_mov_b32", sMaskV[1], "0x00ff00ff")
        e.S("s_lshl_b32", sA, sR, 8)
        e.S("s_add_u32", sFRL, sA, FLG_RL)
        e.S("s_add_u32", sFRG, sA, FLG_RG)
        e.S("s_lshl_b32", sA, sC, 8)
        e.S("s_add_u32", sFC, sA, FLG_C)
        e.S("s_lshl_b32", sA, sCG, 11)
        e.S("s_add_u32", sOx, sXr, sA)
        e.S("s_lshr_b32", sA, sCG, 1)
        e.S("s_lshl_b32", sA, sA, 10)
        e.S("s_and_b32", sB, sCG, 1)
        e.S("s_lshl_b32", sB, sB, 9)
        e.S("s_add_u32", sA, sA, sB)
        e.S("s_add_u32", sA, sA, 16 * KB)
        e.S("s_add_u32", sOxh, sXr, sA)
        e.S("s_lshl_b32", sA, sCG, 10)
        e.S("s_add_u32", sOst, sSTr, sA)
        e.S("s_lshl_b32", sA, sC, 10)
        e.S("s_add_u32", sOo, sXr, sA)
        e.S("s_lshl_b32", sA, sC, 8)
        e.S("s_add_u32", sA, sA, 16 * KB)
        e.S("s_add_u32", sOoh, sXr, sA)
        e.S("s_mul_i32", sA, sC, 3 * KB)
        e.S("s_add_u32", sOh, sHr, sA)
        e.S("s_lshl_b32", sA, sC, 9)
        e.S("s_add_u32", sA, sA, 48 * KB)
        e.S("s_add_u32", sOhh, sHr, sA)
        e.S("s_mul_i32", sKv, sC, 16 * KVSZ)
        e.misc(f"s_getreg_b32 {sX1}, hwreg(HW_REG_XCC_ID, 0, 4)")
        e.S("s_and_b32", sX1, sX1, 7)
        e.S("s_add_u32", sX1, sX1, 8)
        e.S("s_add_u32", sX1, sX1, sBase)
        e.S("s_mov_b32", sLocal, 0)
        U, Hh, Ee, Dq = T0, T1, T2, T3
        e.S("s_mov_b32", sA, 52429)
        e.V("v_mul_u32_u24", U, sA, v(0))
        e.V("v_lshrrev_b32", U, 18, U)
        e.V("v_mul_u32_u24", Dq, 5, U)
        e.V("v_sub_u32", Dq, v(0), Dq)
        e.V("v_cmp_le_u32", VCC, 21, U)
        e.V("v_cndmask_b32", Hh, 0, 1, VCC)
        e.V("v_mul_u32_u24", Ee, 21, Hh)
        e.V("v_sub_u32", Ee, U, Ee)
        A0, A1, A2, A3 = TMP[46], TMP[47], TMP[38], TMP[39]
        e.V("v_cmp_le_u32", s(100, 2), 16, Ee)
        e.V("v_cmp_eq_u32", s(88, 2), 4, Dq)
        e.V("v_cndmask_b32", A0, 0, 1, s(100, 2))
        e.V("v_lshl_add_u32", A0, Hh, 1, A0)
        e.V("v_add_u32", A1, 4, Hh)
        e.V("v_cndmask_b32", A1, A1, 6, s(100, 2))
        e.V("v_cndmask_b32", A0, A0, A1, s(88, 2))
        e.V("v_cndmask_b32", A1, Dq, Hh, s(88, 2))
        e.V("v_lshl_add_u32", A2, Hh, 2, Ee)
        e.V("v_subrev_u32", A2, 8, A2)
        e.V("v_cndmask_b32", A2, Ee, A2, s(100, 2))
        e.V("v_cmp_eq_u32", VCC, 20, Ee)
        e.V("v_cndmask_b32", A2, A2, 0, VCC)
        e.V("v_lshl_add_u32", A1, A1, 4, A2)
        e.V("v_lshlrev_b32", A1, 4, A1)
        e.V("v_lshl_add_u32", vKvSrc, A0, 10, A1)
        e.V("v_mul_u32_u24", A0, 5, Hh)
        e.V("v_add_u32", A0, A0, Dq)
        e.V("v_cmp_le_u32", s(88, 2), 8, A0)
        e.V("v_lshrrev_b32", A1, 1, A0)
        e.V("v_subrev_u32", A2, 8, A0)
        e.V("v_cndmask_b32", A1, A1, A2, s(88, 2))
        e.V("v_and_b32", A2, 1, A0)
        e.V("v_cndmask_b32", A2, A2, 0, s(88, 2))
        e.V("v_lshlrev_b32", A2, 3, A2)
        e.V("v_cndmask_b32", A0, 0, 1, s(88, 2))
        e.V("v_lshl_add_u32", A3, Hh, 1, A0)
        e.V("v_lshl_add_u32", A3, A3, 2, A1)
        e.V("v_lshl_add_u32", A3, A3, 4, A2)
        e.V("v_add_u32", A3, ZT, A3)
        e.V("v_mul_u32_u24", T4, 20, Hh)
        e.V("v_add_u32", T4, T4, Ee)
        e.V("v_cmp_le_u32", s(100, 2), 32, T4)
        e.V("v_and_b32", T5, 1, T4)
        e.V("v_cndmask_b32", T5, T5, 2, s(100, 2))
        e.V("v_lshl_add_u32", A0, T5, 1, A0)
        e.V("v_lshrrev_b32", T5, 1, T4)
        e.V("v_subrev_u32", T4, 32, T4)
        e.V("v_cndmask_b32", T4, T5, T4, s(100, 2))
        e.V("v_lshl_add_u32", T4, A1, 4, T4)
        e.V("v_lshl_add_u32", T4, T4, 4, A2)
        e.V("v_lshl_add_u32", T4, A0, 10, T4)
        e.V("v_cndmask_b32", T4, T4, A3, VCC)
        e.V("v_cmp_gt_u32", VCC, 210, v(0))
        e.V("v_mov_b32", T5, DUMMY)
        e.V("v_cndmask_b32", vKvDst, T5, T4, VCC)
        e.V("v_cndmask_b32", vKvSrc, 0, vKvSrc, VCC)
        e.V("v_lshlrev_b32", T4, 4, v(0))
        e.V("v_mov_b32", T5, BIG)
        e.V("v_cndmask_b32", vT16, T5, T4, VCC)

    def late_loads(self):
        e = self.e
        T4, T5 = TMP[48], TMP[49]
        e.S("s_mul_i32", sB, sCG, 160)
        e.bload(RES[10:14], vOut, XIN, 0, 0)
        e.bload(RES[14:18], vOut, XIN, 0, 64)
        e.bload(RES[18:20], vOut4, XIN, 0, 128)
        e.V("v_lshl_add_u32", T4, vG, 4, sB)
        e.V("v_lshl_add_u32", T5, vG, 3, sB)
        e.bload(B2F[10:14], T4, SB2, 0, 0)
        e.bload(B2F[14:18], T4, SB2, 0, 64)
        e.bload(B2F[18:20], T5, SB2, 0, 128)
        skip = e.newlabel("noxid")
        e.S("s_cmp_lg_u32", sWave, 3)
        e.branch("s_cbranch_scc1", skip)
        e.cond_begin()
        e.S("s_lshl_b32", sA, sR, 8)
        e.S("s_add_u32", sA, sA, FLG_X)
        e.S("s_lshl_b32", sB, sC, 2)
        e.V("v_mov_b32", T4, sB)
        e.V("v_mov_b32", T5, sX1)
        e.S("s_mov_b64", EXEC, 1)
        e.bstore(T5, T4, WS, sA, 0, "sc1")
        e.S("s_mov_b64", EXEC, -1)
        e.cond_end()
        e.label(skip)

    def unpack(self, dst, pk):
        e = self.e
        for a_ in range(2):
            for j in range(4):
                e.V("v_lshlrev_b32", dst[8 * a_ + j], 16, pk[4 * a_ + j])
                e.V("v_and_b32", dst[8 * a_ + 4 + j], "0xffff0000", pk[4 * a_ + j])
        for j in range(2):
            e.V("v_lshlrev_b32", dst[16 + 2 * j], 16, pk[8 + j])
            e.V("v_and_b32", dst[16 + 2 * j + 1], "0xffff0000", pk[8 + j])

    class ALoad:
        def __init__(self, m, vaddr, terms, nks):
            self.m, self.vaddr, self.terms, self.nks = m, vaddr, terms, nks
            self.n = 0
            self.based = -1
            self.done = False

        def step(self):
            e = self.m.e
            ks, u = divmod(self.n, 2)
            if ks // 4 != self.based:
                self.based = ks // 4
                e.S("s_add_u32", sLd, self.terms[0], self.terms[1] + (ks // 4) * 4 * KB)
                return False
            e.bload(a(self.n * 4, 4), self.vaddr[u], WS, sLd, (ks % 4) * KB, self.m.opt.get("amod", "sc1"), cls=(self.m.opt.get("latA", 600), 76, 33 if self.nks == 27 else 16))
            self.n += 1
            self.done = self.n >= 2 * self.nks
            return True

        def upto(self, ks):
            while self.n < 2 * min(ks + 1, self.nks):
                self.step()

    def stats_loads(self, ver):
        e = self.e
        e.S("s_add_u32", sA, sSTr, STB[ver])
        for u in range(2):
            for k in range(2):
                e.bload(TMP[4 * u + 2 * k:4 * u + 2 * k + 2], vSt, WS, sA, k * 1024 + u * 128, "sc1", cls=(600, 20, 0))

    def stats_gen(self, need_T, have=False):
        e = self.e
        for u in range(2):
            sm, sq, t0, t1 = TMP[4 * u], TMP[4 * u + 1], TMP[4 * u + 2], TMP[4 * u + 3]
            if not have:
                e.V("v_add_f32", sm, sm, t0); yield
                e.V("v_add_f32", sq, sq, t1); yield
            for op in () if have else ("v_permlane32_swap_b32", "v_permlane16_swap_b32"):
                e.V("v_mov_b32", t0, sm); yield
                e.V("v_mov_b32", t1, sq); yield
                e.V(op, sm, t0); yield
                e.V(op, sq, t1); yield
                e.V("v_add_f32", sm, sm, t0); yield
                e.V("v_add_f32", sq, sq, t1); yield
            e.V("v_mul_f32", sm, lit(1.0 / D), sm); yield
            e.V("v_mul_f32", t0, sm, sm); yield
            e.V("v_fma_f32", sq, sq, self.cInvD, Neg(t0)); yield
            e.V("v_max_f32", sq, 0, sq); yield
            e.V("v_add_f32", sq, lit(1e-5), sq); yield
            e.V("v_rsq_f32", t0, sq); yield
            e.V("v_cvt_pk_bf16_f32", XE[u][0], sm, sm); yield
            e.V("v_mul_f32", sq, sq, t0); yield
            e.ds_write(vRW, t0, 64 * u); yield
            c2 = vC2 if u == 0 else vC2b
            e.V("v_mul_f32", c2[0], lit(LOG2E), t0); yield
            e.V("v_lshlrev_b32", t1, 16, XE[u][0]); yield
            e.V("v_sub_f32", sm, sm, t1); yield
            e.V("v_cvt_pk_bf16_f32", XE[u][1], sm, sq); yield
            e.V("v_and_b32", t1, "0xffff0000", XE[u][1]); yield
            e.V("v_sub_f32", t1, sq, t1); yield
            e.V("v_cvt_pk_bf16_f32", XE[u][3], sm, t1); yield
            e.V("v_mov_b32", XE[u][2], XE[u][0]); yield
        if need_T:
            for u in range(2):
                e.ds_read(RT[4 * u:4 * u + 4], vRT, 64 * u); yield

    def phi_pair(self, src, c2, bcast, t):
        e = self.e
        m = "op_sel_hi:[1,0]" if bcast else ""
        e.V("v_pk_mul_f32", t[0:2], src, c2, mods=m)
        e.V("v_exp_f32_e64", t[2], t[0], mods="clamp")
        e.V("v_exp_f32_e64", t[3], t[1], mods="clamp")
        e.V("v_max_f32", t[0], 0, t[0])
        e.V("v_max_f32", t[1], 0, t[1])
        e.V("v_pk_add_f32", t[2:4], t[2:4], vEps, mods="op_sel_hi:[1,0]")
        e.V("v_pk_fma_f32", t[0:2], t[0:2], vLn2, t[2:4], mods="op_sel_hi:[1,0,1]")

    def scratch(self, nblk, endpos):
        st = endpos - nblk
        if (st % RB) + nblk > RB:
            st = endpos - (endpos % RB) - nblk
        return st, self.ldsaddr(st)

    def bg_on(self, tail):
        e = self.e
        st = {"next": 0}
        t_end = e.T + tail
        self.deadline = lambda: t_end

        def f():
            if e.T >= st["next"] and self.dma_ok():
                n0 = len(e.vm)
                while len(e.vm) == n0:
                    next(self.dmaf)
                st["next"] = e.T + self.opt.get("vgap", 24)
        self.e.bg = f

    def bg_off(self):
        self.e.bg = None

    def gstore(self, lst, cold=False):
        e = self.e
        mode = self.opt.get("mode", "dual")
        if cold:
            mode = "safe"
        if mode != "dual":
            return [e.bstore(d, vo, WS, so, off, "sc1" if mode == "safe" else "") for d, vo, so, off in lst]
        ls, le = e.newlabel("st_safe"), e.newlabel("st_end")
        regs = []
        for d, vo, so, off in lst:
            regs += d.regs() + vo.regs()
        e.wait_ops(e._pending(regs))
        e.S("s_cmp_eq_u32", sLocal, 0)
        need = e._need("vmem", regs, [])
        if need > 1:
            e.nop(need - 1)
        e.branch("s_cbranch_scc1", ls)
        n0 = len(e.lines)
        ops = [e.bstore(d, vo, WS, so, off, "") for d, vo, so, off in lst]
        body = e.lines[n0:]
        assert len(body) == len(lst), body
        e.raw(f"  s_branch {le}")
        e.label(ls)
        for l in body:
            e.raw(l + " sc1")
        e.label(le)
        return ops

    def touch_gen(self, lst, cold=False):
        e = self.e
        if cold or not self.opt.get("touch", 0):
            return
        for _ in range(self.opt.get("touch_delay", 60)):
            yield "idle"
        for vo, sb, add, off in lst:
            e.S("s_add_u32", sE, sb, add); yield
            e.touch(vDum, vo, WS, sE, off); yield

    def local_gen(self):
        e = self.e
        e.S("s_lshl_b32", sE, sR, 8); yield
        e.S("s_add_u32", sE, sE, FLG_X); yield
        e.bload(TMP[52], vFl, WS, sE, 0, "sc1"); yield
        for _ in range(40):
            yield "idle"
        e.V("v_cmp_ne_u32", VCC, sX1, TMP[52]); yield
        e.S("s_cmp_eq_u64", VCC, 0)
        e.S("s_cselect_b32", sLocal, 1, 0); yield

    def poll(self, kind, val):
        e = self.e
        skip = e.newlabel("nopoll")
        loop = e.newlabel("poll")
        e.S("s_cmp_lg_u32", sWave, 0)
        e.branch("s_cbranch_scc1", skip)
        e.cond_begin()
        t = TMP[55]
        e.S("s_mov_b32", sCnt, 0)
        e.S("s_mov_b64", sOk, 0)
        e.S("s_add_u32", sB, sBase, val)
        va, vb, sa, sb = vFl, vFl, sFRL, sFRG
        if kind == "both":
            va, vb, sa, sb = TMP[53], TMP[54], 0, 0
            e.V("v_cmp_gt_u32", VCC, 2, vG)
            e.V("v_mov_b32", va, sFC)
            e.V("v_mov_b32", vb, sFRL)
            e.V("v_cndmask_b32", va, vb, va, VCC)
            e.V("v_add_u32", va, va, vFl)
            e.V("v_mov_b32", vb, FLG_RG - FLG_RL)
            e.V("v_cndmask_b32", vb, vb, 0, VCC)
            e.V("v_add_u32", vb, va, vb)
        e.label(loop)

        def chk():
            e.misc("s_waitcnt vmcnt(0)")
            e.misc(f"v_subrev_u32 {t}, {sB}, {t}")
            e.misc(f"v_cmp_ge_u32 vcc, {8 - val}, {t}")
            e.misc(f"s_or_b64 {sOk}, {sOk}, vcc")
            e.misc(f"s_cmp_eq_u64 {sOk}, -1")
            e.misc(f"s_cbranch_scc1 {skip}")
        e.misc(f"buffer_load_dword {t}, {va}, {WS}, {sa} offen sc1")
        e.misc("s_add_u32 %s, %s, 1" % (sCnt, sCnt))
        chk()
        if kind == "both":
            e.misc("s_sleep 3")
        e.misc(f"s_and_b32 {sA}, {sCnt}, 3")
        e.misc(f"s_cbranch_scc1 {loop}")
        e.misc(f"buffer_load_dword {t}, {vb}, {WS}, {sb} offen sc1")
        chk()
        e.misc(f"s_cmp_lt_u32 {sCnt}, 0x40000")
        e.misc(f"s_cbranch_scc1 {loop}")
        e.cond_end()
        e.label(skip)

    def flag(self, kind, val):
        e = self.e
        lst = [(1, sFRG, "sc1", sC), (2, sFRL, "", sC)] if kind != "col" else []
        if kind != "row":
            lst.append((3, sFC, "sc1", sR))
        for w, sb, m, sidx in lst:
            skip = e.newlabel("noflag")
            e.S("s_cmp_lg_u32", sWave, w)
            e.branch("s_cbranch_scc1", skip)
            e.cond_begin()
            e.S("s_lshl_b32", sA, sidx, 2)
            e.V("v_mov_b32", TMP[54], sA)
            e.S("s_add_u32", sA, sBase, val)
            e.V("v_mov_b32", TMP[55], sA)
            e.S("s_mov_b64", EXEC, 1)
            e.bstore(TMP[55], TMP[54], WS, sb, 0, m)
            e.S("s_mov_b64", EXEC, -1)
            e.cond_end()
            e.label(skip)

    def handoff(self, val, ops, shadow=None, touch=()):
        e = self.e
        t_st = e.T
        self.deadline = lambda: t_st + self.opt.get("topup", 2600)
        self.own_end = 0
        while self.dma_ok():
            next(self.dmaf)
        e.wait_all_lg()
        self.ring_barrier(self.cons + FI + self.opt.get("ahead", 16), ops)
        self.hold = None
        self.flag("row", val)
        self.stamp("flag")
        t_flag = e.T
        if self.opt.get("post_touch", 0):
            for k, (vo, sb, add, off) in enumerate(touch):
                sr = sE if k % 2 else sD
                e.S("s_add_u32", sr, sb, add)
                e.touch(vDum, vo, WS, sr, off, "sc1", cls=(750, 66, 30))
        self.deadline = lambda: t_flag + self.opt.get("topup2", 1800)
        while self.dma_ok():
            next(self.dmaf)
        self.prime()
        if shadow:
            shadow()
        self.poll("row", val)
        e.T = max(e.T, t_flag + 1000)
        e.barrier()
        self.stamp("go")

    def phaseA(self, p):
        e = self.e
        opt = self.opt
        xv = 2 * p
        acc = lambda T, u: ACC[(T * 2 + u) * 4:(T * 2 + u) * 4 + 4]
        xf = lambda ks, u: a((ks * 2 + u) * 4, 4) if ks < 20 else XE[u]
        if p == 0:
            for _ in range(opt.get("first_groups", 3)):
                for _ in self.dma_group():
                    pass
        self.stats_loads(xv)
        al = self.ALoad(self, vAx, (sXr, XB[xv]), 20)
        al.upto(opt.get("adist", 4) - 1)
        fl0 = [self.stats_gen(True)]
        if p == 0:
            if opt.get("r2st", 2) == 0:
                self.r2_stores()
                self.late_loads()
            e.wait_all_lg()
            if opt.get("r2st", 2) == 2:
                self.ring_barrier(FI + 8, self.ops2)
                self.flag("col", 2)
                fl0.append(self.w2_gen())
            else:
                self.ring_barrier(FI + 8)
            self.prime()
            self.stamp("start")
        st1 = {}

        def hook1(t):
            if t >= opt.get("w2flag_at", 30) and not st1.get("done"):
                st1["done"] = t
                return self.ops2, (lambda: self.flag("col", 2))
            return [], None

        def add1(t):
            if st1.get("done") and t >= opt.get("w2chk_at", 70) and not st1.get("chk"):
                st1["chk"] = True
                return self.w2_gen()
        i0 = self.seqstart[("A1", p)]
        fb = 102
        sst, sad = self.scratch(28, self.seq[i0 + fb][0])
        self.hold = sst

        def mf(t, W, u):
            ks, T = divmod(t, 5)
            e.mfma(acc(T, u), xf(ks, u), W, acc(T, u) if ks else 0)
        self.run_pass(105, mf, 5, xf, fl0, chunk=(8 if p == 0 else 24), stop_reads=self.seqstart[("A4", p)], aload=al,
                      force_bar=fb, tail=6000, hooks={"bar": hook1, "add": add1} if (p == 0 and opt.get("r2st", 2) == 0) else None)
        if p == 0 and opt.get("r2st", 2) == 1:
            self.dma_all()
            self.r2_stores()
            self.late_loads()
        assert sst + 28 <= self.freed
        self.stamp("A1")
        self.bg_on(5000)
        C2T = TMP[8:16] if p else ACC[40:48]
        for j in range(8):
            e.V("v_mul_f32", C2T[j], lit(LOG2E), RT[j])
        KF = [TMP[16:20], TMP[20:24], TMP[24:28]]
        VF = {3: TMP[28:32], 4: TMP[32:36], 2: TMP[36:40]}
        tt = [TMP[40:44], TMP[44:48]]
        TA0, TA1 = TMP[48], TMP[49]
        if p == 0:
            KF = [RES[0:4], RES[4:8], B2F[0:4]]
            VF = {3: B2F[4:8], 4: ACC[56:60], 2: ACC[60:64]}
            tt = [ACC[48:52], ACC[52:56]]
        n = 0
        for T in range(3):
            for u in range(2):
                for h in range(2):
                    t = tt[n % 2]
                    n += 1
                    self.phi_pair(acc(T, u)[2 * h:2 * h + 2], C2T[4 * u + 2 * h:4 * u + 2 * h + 2], False, t)
                    e.V("v_cvt_pk_bf16_f32", KF[T][2 * u + h], t[0], t[1])
        for T in (3, 4, 2):
            for u in range(2):
                for h in range(2):
                    x = acc(T, u)[2 * h:2 * h + 2]
                    e.V("v_pk_mul_f32", x, x, RT[4 * u + 2 * h:4 * u + 2 * h + 2])
            for u in range(2):
                for h in range(2):
                    x = acc(T, u)[2 * h:2 * h + 2]
                    e.V("v_cvt_pk_bf16_f32", VF[T][2 * u + h], x[0], x[1])
        for j in range(4):
            e.V("v_cndmask_b32", VF[2][j], VF[2][j], vOne, sMaskV)
        PR = [ACC[4 * i:4 * i + 4] for i in range(7)]
        prods = [(0, 3), (0, 2), (1, 4), (1, 2), (2, 3), (2, 4), (2, 2)]
        for i, (kt, vt) in enumerate(prods):
            e.mfma(PR[i], KF[kt], VF[vt], 0)
        e.S("s_mul_i32", sA, sWave, 7168)
        e.S("s_add_u32", sA, sA, sad)
        e.V("v_add_u32", TA0, sA, vL16)
        e.V("v_add_u32", TA1, sad, vKvSrc)
        for i in range(7):
            e.ds_write(TA0, PR[i], i * 1024)
        e.wait_all_lg()
        e.barrier()
        RD = [ACC[4 * w:4 * w + 4] for w in range(4)]
        for w in range(4):
            e.ds_read(RD[w], TA1, w * 7168)
        for h in range(2):
            e.V("v_pk_add_f32", RD[0][2 * h:2 * h + 2], RD[0][2 * h:2 * h + 2], RD[1][2 * h:2 * h + 2])
            e.V("v_pk_add_f32", RD[2][2 * h:2 * h + 2], RD[2][2 * h:2 * h + 2], RD[3][2 * h:2 * h + 2])
        for h in range(2):
            e.V("v_pk_add_f32", RD[0][2 * h:2 * h + 2], RD[0][2 * h:2 * h + 2], RD[2][2 * h:2 * h + 2])
        e.S("s_mul_i32", sA, sR, KVSZ)
        e.S("s_add_u32", sA, sA, sKv)
        e.S("s_add_u32", sA, sA, KVB[p])
        kvst = e.bstore(RD[0], vT16, WS, sA, 0, "sc1")
        self.bg_off()
        self.stamp("kvpub")
        PL = [ACC[4 * i:4 * i + 4] for i in range(10)] + [TMP[24 + 4 * i:28 + 4 * i] for i in range(6)]

        st2 = {}

        def barhook(t):
            def rel():
                self.hold = None

            def relflag():
                self.hold = None
                self.flag("col", 2)
            if p == 0 and opt.get("r2st", 2) == 1 and not st2.get("done") and t >= opt.get("w2flag2_at", 12):
                st2["done"] = True
                return self.ops2, relflag
            return [], rel

        def kvloads():
            for i in range(16):
                if i % 2 == 0:
                    e.S("s_add_u32", sB, sKv, KVB[p] + i * KVSZ); yield
                e.bload(PL[i], vT16, WS, sB, (i % 2) * KVSZ, "sc1", cls=(800, 80, 130)); yield

        def kvsum():
            for st in (1, 2, 4, 8):
                for i in range(0, 16, 2 * st):
                    for h in range(2):
                        e.V("v_pk_add_f32", PL[i][2 * h:2 * h + 2], PL[i][2 * h:2 * h + 2], PL[i + st][2 * h:2 * h + 2])
            e.V("v_cmp_u_f32", VCC, PL[0][0], PL[0][1])
            e.V("v_cmp_u_f32", sNan, PL[0][2], PL[0][3])
            e.S("s_or_b64", VCC, VCC, sNan)

        def mfq(t, W, u):
            ks, T = divmod(t, 3)
            e.mfma(acc(5 + T, u), W, xf(ks, u), acc(5 + T, u) if ks else 0)
        self.lastbar = self.rd - 8
        fl = [self.touch_gen([(vAx[0], sOo, OB[p], 0), (vAx[1], sOo, OB[p], 0), (vOh, sOoh, OB[p], 0), (vOh, sOoh, OB[p] + 20 * KB, 0)], p == 0)]
        if p == 0:
            fl = [self.local_gen()]
        self.run_pass(63, mfq, 3, xf, fl, stop_reads=self.seqstart[("A4", p)], hooks={"bar": barhook},
                      late=(opt.get("kvload_at", 30), kvloads()), see_all=True, force_bar=61, tail=1600 + self.opt.get("slack", 2400))
        self.stamp("A2")
        if p == 0 and opt.get("r2st", 2) == 1:
            assert st2.get("done")
            w2 = self.w2_gen()
            while next(w2) != "idle":
                pass
        self.bg_on(1600 + self.opt.get("slack", 2400))
        PQ0 = [TMP[0:4], TMP[4:8]]
        PQ1 = [TMP[8:12], TMP[12:16]]
        tq = [TMP[16:20], TMP[20:24]]
        for u in range(2):
            c2 = vC2 if u == 0 else vC2b
            for h in range(2):
                self.phi_pair(acc(5, u)[2 * h:2 * h + 2], c2, True, tq[0])
                self.phi_pair(acc(6, u)[2 * h:2 * h + 2], c2, True, tq[1])
                e.V("v_cvt_pk_bf16_f32", PQ0[u][2 * h], tq[0][0], tq[1][0])
                e.V("v_cvt_pk_bf16_f32", PQ0[u][2 * h + 1], tq[0][1], tq[1][1])
            for h in range(2):
                self.phi_pair(acc(7, u)[2 * h:2 * h + 2], c2, True, tq[h])
                e.V("v_cvt_pk_bf16_f32", PQ1[u][h], tq[h][0], tq[h][1])
            e.V("v_mov_b32", PQ1[u][2], 0)
            e.V("v_mov_b32", PQ1[u][3], 0)
        self.bg_off()
        self.stamp("qepi")
        kvsum()
        lok, lre = e.newlabel("kvok"), e.newlabel("kvretry")
        e.branch("s_cbranch_scc0", lok)
        e.cond_begin()
        e.S("s_mov_b32", sCnt, 0)
        e.label(lre)
        e.misc("s_sleep 4")
        for _ in kvloads():
            pass
        kvsum()
        e.branch("s_cbranch_scc0", lok)
        e.S("s_add_u32", sCnt, sCnt, 1)
        e.S("s_cmp_lt_u32", sCnt, 0x10000)
        e.branch("s_cbranch_scc1", lre)
        e.cond_end()
        e.label(lok)
        self.stamp("kvgo")
        if p == 0 and opt.get("r2st", 2) == 1:
            for _ in w2:
                pass

        self.bg_on(900 + self.opt.get("slack", 2400))
        e.V("v_cvt_pk_bf16_f32", TMP[16], PL[0][0], PL[0][1])
        e.V("v_cvt_pk_bf16_f32", TMP[17], PL[0][2], PL[0][3])
        e.ds_write(vKvDst, TMP[16:18])
        e.wait_all_lg()
        e.barrier()
        FR = [TMP[16 + 4 * i:20 + 4 * i] for i in range(10)]
        for T in range(3):
            for ks in range(2):
                e.ds_read(FR[T * 2 + ks], vL16, IMG + (T * 2 + ks) * KB)
        for ks in range(2):
            e.ds_read(FR[6 + ks], vZ01, ks * 64)
            e.ds_read(FR[8 + ks], vZ2, ks * 64)
        oa = lambda T, u: ACC[(T * 2 + u) * 4:(T * 2 + u) * 4 + 4]
        for T in (3, 4, 0, 1, 2):
            for u in range(2):
                e.mfma(oa(T, u), FR[2 * T], PQ0[u], 0)
        for T in (3, 4, 0, 1, 2):
            for u in range(2):
                e.mfma(oa(T, u), FR[2 * T + 1], PQ1[u], oa(T, u))
        e.S("s_add_u32", sA, sOo, OB[p])
        e.S("s_add_u32", sB, sOoh, OB[p])
        e.S("s_add_u32", sD, sOoh, OB[p] + 20 * KB)
        ops = []
        for u in range(2):
            for x in (oa(3, u)[0], oa(3, u)[2], oa(4, u)[0]):
                e.V("v_add_f32", x, vEps[0], x)
        for u in range(2):
            for x in (oa(3, u)[0], oa(3, u)[2], oa(4, u)[0]):
                e.V("v_rcp_f32", x, x)
        for u in range(2):
            for T in range(3):
                for h in range(2):
                    x = oa(T, u)[2 * h:2 * h + 2]
                    dn = oa(3, u)[2 * h:2 * h + 2] if T < 2 else oa(4, u)[0:2]
                    e.V("v_pk_mul_f32", x, x, dn, mods="op_sel_hi:[1,0]")
            o4 = TMP[16 + 8 * u:20 + 8 * u]
            o2 = TMP[20 + 8 * u:22 + 8 * u]
            for j in range(4):
                e.V("v_cvt_pk_bf16_f32", o4[j], oa(0, u)[j], oa(1, u)[j])
            for h in range(2):
                e.V("v_cvt_pk_bf16_f32", o2[h], oa(2, u)[2 * h], oa(2, u)[2 * h + 1])
            if u == 0:
                ops += self.gstore([(o4, vAx[u], sA, 0), (o2, vOh, sB, 0)], p == 0)
            else:
                ops += self.gstore([(o4, vAx[u], sA, 0), (o2, vOh, sD, 0)], p == 0)
        self.bg_off()
        self.stamp("A3")
        def shadow():
            if p == 0:
                self.unpack(RES, RES[10:20])
                self.unpack(B2F, B2F[10:20])
        self.handoff(4 * p + 2, ops, shadow, [(vAx[0], sOo, OB[p], 0), (vAx[1], sOo, OB[p], 0), (vOh, sOoh, OB[p], 0), (vOh, sOoh, OB[p] + 20 * KB, 0)])

    def phase64(self, p, kind):
        e = self.e
        opt = self.opt
        nks = 10 if kind == "O" else 27
        name = "A4" if kind == "O" else "B2"
        acc = lambda T, u: ACC[(u * 5 + T) * 4:(u * 5 + T) * 4 + 4]
        if kind == "O":
            al = self.ALoad(self, vAo, (sXr, OB[p]), nks)
        else:
            al = self.ALoad(self, vAh, (sHr, HB[p]), nks)
        al.upto(opt.get("adist", 4) - 1)
        xf = lambda ks, u: a((ks * 2 + u) * 4, 4)
        if kind == "C":
            e.ds_read(TMP[50], vRF)
        i0 = self.seqstart[(name, p)]
        fb = 5 * nks - 3
        sst, sad = self.scratch(20, self.seq[i0 + fb][0])
        self.hold = sst
        stop = i0 + 5 * nks

        def mf(t, W, u):
            ks, T = divmod(t, 5)
            e.mfma(acc(T, u), W, xf(ks, u), acc(T, u) if ks else 0)
        last = kind == "C" and p == 1
        xv = 2 * p + (1 if kind == "O" else 2)
        fl = [] if last else [self.touch_gen([(vXs, sOx, XB[xv], 0), (vXs, sOx, XB[xv], 1024), (vXh, sOxh, XB[xv], 0), (vStW, sOst, STB[xv], 0)])]
        self.run_pass(5 * nks, mf, 5, xf, fl, force_bar=fb, chunk=(12 if kind == "O" else opt.get("chunkC", 8)), stop_reads=stop, aload=al,
                      amix=(1, 0) if kind == "O" else tuple(opt.get("amixC", (3, 2))), tail=900 + self.opt.get("slack", 2400))
        self.stamp(name)
        self.bg_on(900 + self.opt.get("slack", 2400))
        e.V("v_add_u32", TMP[0], sad, vXch)
        e.S("s_xor_b32", sA, sWave, 1)
        e.S("s_mul_i32", sA, sA, 5120)
        e.S("s_add_u32", sA, sA, sad)
        e.V("v_add_u32", TMP[1], sA, vL16)
        assert sst + 20 <= self.freed
        for T in range(5):
            e.ds_write(TMP[0], acc(T, 1), T * KB)
        e.wait_all_lg()
        e.barrier()
        PT = TMP[4:24]
        for T in range(5):
            e.ds_read(PT[4 * T:4 * T + 4], TMP[1], T * KB)
        own = ACC[0:20]
        if kind == "C":
            e.V("v_mul_f32", TMP[50], TMP[50], TMP[50])
        for h in range(10):
            x = own[2 * h:2 * h + 2]
            e.V("v_pk_add_f32", x, x, PT[2 * h:2 * h + 2])
            if kind == "O":
                e.V("v_pk_add_f32", x, x, RES[2 * h:2 * h + 2])
            else:
                e.V("v_pk_fma_f32", x, x, TMP[50:52], RES[2 * h:2 * h + 2], mods="op_sel_hi:[1,0,1]")
        PK = TMP[24:34]
        for a_ in range(2):
            for j in range(4):
                e.V("v_cvt_pk_bf16_f32", PK[4 * a_ + j], own[8 * a_ + j], own[8 * a_ + 4 + j])
        for h in range(2):
            e.V("v_cvt_pk_bf16_f32", PK[8 + h], own[16 + 2 * h], own[16 + 2 * h + 1])
        self.bg_off()
        if last:
            om = self.opt.get("outmod", "")
            e.bstore(PK[0:4], vOut, OUT, 0, 0, om)
            e.bstore(PK[4:8], vOut, OUT, 0, 64, om)
            e.bstore(PK[8:10], vOut4, OUT, 0, 128, om)
            self.stamp("end")
            return
        xv = 2 * p + (1 if kind == "O" else 2)
        ops = []
        e.S("s_add_u32", sA, sOx, XB[xv])
        e.S("s_add_u32", sB, sOxh, XB[xv])
        e.S("s_add_u32", sD, sOst, STB[xv])
        ops += self.gstore([(PK[0:4], vXs, sA, 0), (PK[4:8], vXs, sA, 1024), (PK[8:10], vXh, sB, 0)])
        sm, sq, t0 = TMP[36], TMP[37], TMP[38]
        e.V("v_mov_b32", sm, 0)
        e.V("v_mov_b32", sq, 0)
        for j in range(10):
            e.V("v_dot2c_f32_bf16", sm, PK[j], vOne)
            e.V("v_dot2c_f32_bf16", sq, PK[j], PK[j])
        e.V("v_permlane32_swap_b32", sm, sq)
        e.V("v_add_f32", sm, sm, sq)
        e.V("v_mov_b32", t0, sm)
        e.V("v_permlane16_swap_b32", sm, t0)
        e.V("v_add_f32", sm, sm, t0)
        ops += self.gstore([(sm, vStW, sD, 0)])
        self.stamp(name + "epi")

        def shadow():
            self.unpack(RES, PK)
            if kind == "O":
                for h in range(10):
                    x = RES[2 * h:2 * h + 2]
                    e.V("v_pk_add_f32", x, x, B2F[2 * h:2 * h + 2])
        self.handoff(4 * p + (3 if kind == "O" else 5), ops, shadow,
                     [(vStW, sOst, STB[xv], 0), (vXs, sOx, XB[xv], 0), (vXs, sOx, XB[xv], 1024), (vXh, sOxh, XB[xv], 0)])

    def phaseB1(self, p):
        e = self.e
        opt = self.opt
        xv = 2 * p + 1
        acc = lambda T, u: ACC[(T * 2 + u) * 4:(T * 2 + u) * 4 + 4]
        xf = lambda ks, u: a((ks * 2 + u) * 4, 4) if ks < 20 else XE[u]
        self.stats_loads(xv)
        al = self.ALoad(self, vAx, (sXr, XB[xv]), 20)
        al.upto(opt.get("adist", 4) - 1)
        stop = self.seqstart[("B2", p)]

        def mf(t, W, u):
            ks, T = divmod(t, 4)
            e.mfma(acc(T, u), W, xf(ks, u), acc(T, u) if ks else 0)
        tl = [(vHs, sOh, HB[p] + u * 54 * KB, a_ * KB) for a_ in range(3) for u in range(2)] + [(vHh, sOhh, HB[p] + u * 54 * KB, 0) for u in range(2)]
        self.run_pass(84, mf, 4, xf, [self.stats_gen(False), self.touch_gen(tl, p == 0)], stop_reads=stop, aload=al, tail=2100 + 300 + self.opt.get("slack", 2400))
        self.stamp("B1a")
        ops = []

        def epi(pairs, single):
            n = 0
            for u in range(2):
                sb = sD if u == 0 else sE
                e.S("s_add_u32", sb, sOh, HB[p] + u * 54 * KB); yield
                for a_ in pairs:
                    o = TMP[16 + 4 * (n % 4):20 + 4 * (n % 4)]
                    n += 1
                    for j in range(4):
                        x, y = acc(2 * a_, u)[j], acc(2 * a_ + 1, u)[j]
                        e.V("v_mul_f32_e64", x, x, f"|{x}|"); yield
                        e.V("v_mul_f32_e64", y, y, f"|{y}|"); yield
                        e.V("v_cvt_pk_bf16_f32", o[j], x, y); yield
                        e.V("v_pk_max_i16", o[j], o[j], 0); yield
                    ops.extend(self.gstore([(o, vHs, sb, a_ * KB)], p == 0)); yield
            if single:
                for u in range(2):
                    o = TMP[32 + 2 * u:34 + 2 * u]
                    for j in range(4):
                        x = acc(6, u)[j]
                        e.V("v_mul_f32_e64", x, x, f"|{x}|"); yield
                    for h in range(2):
                        e.V("v_cvt_pk_bf16_f32", o[h], acc(6, u)[2 * h], acc(6, u)[2 * h + 1]); yield
                        e.V("v_pk_max_i16", o[h], o[h], 0); yield
                e.S("s_add_u32", sA, sOhh, HB[p])
                e.S("s_add_u32", sB, sOhh, HB[p] + 54 * KB)
                ops.extend(self.gstore([(TMP[32:34], vHh, sA, 0), (TMP[34:36], vHh, sB, 0)], p == 0))
                yield

        def mf2(t, W, u):
            ks, T = divmod(t, 3)
            e.mfma(acc(4 + T, u), W, xf(ks, u), acc(4 + T, u) if ks else 0)
        self.run_pass(63, mf2, 3, xf, [epi([0, 1], False)], stop_reads=stop, force_bar=61, chunk=opt.get("chunkB", 16), tail=300 + self.opt.get("slack", 2400))
        self.stamp("B1b")
        for _ in epi([2], True):
            pass
        self.stamp("B1epi")
        self.handoff(4 * p + 4, ops, None, tl)

    def gen(self):
        e = self.e
        e.reset_state()
        self.cInvD = s(63)
        self.dmaf = self.dma_filler()
        self.prologue()
        if self.opt.get("stamps"):
            e.memtime(sTm, True)
            e.V("v_writelane_b32", v(53), sTm[0], 62)
        self.startup()
        stop = self.opt.get("stop", 99)
        n = 0
        for p in range(2):
            for f in (lambda: self.phaseA(p), lambda: self.phase64(p, "O"), lambda: self.phaseB1(p), lambda: self.phase64(p, "C")):
                if n < stop:
                    f()
                n += 1
        if self.opt.get("stamps"):
            e.wait_all_vm()
            e.memtime(sTm, True)
            e.V("v_writelane_b32", v(53), sTm[0], 63)
            e.S("s_lshl_b32", sA, s(2), 2)
            e.S("s_add_u32", sA, sA, sWave)
            e.S("s_lshl_b32", sA, sA, 8)
            e.S("s_add_u32", sA, sA, STAMP)
            e.V("v_lshlrev_b32", TMP[1], 2, vLane)
            e.bstore(v(53), TMP[1], WS, sA)
        if self.opt.get("dbgst") is not None:
            skip = e.newlabel("nodbg")
            e.S("s_lshl_b32", sA, s(2), 2)
            e.S("s_add_u32", sA, sA, sWave)
            e.S("s_cmp_lg_u32", sA, 4 * self.opt.get("dbgwg", 77))
            e.branch("s_cbranch_scc1", skip)
            e.sload(s(84, 2), s(0, 2), 72)
            e.V("v_readlane_b32", sB, v(53), 0)
            e.V("v_subrev_u32", TMP[0], sB, v(53))
            e.V("v_subrev_u32", TMP[1], self.opt["dbgst"], vLane)
            e.V("v_cmp_gt_u32", VCC, 64 - self.opt["dbgst"], TMP[1])
            e.V("v_lshlrev_b32", TMP[1], 2, TMP[1])
            e.wait_all_lg()
            e.S("s_and_saveexec_b64", s(86, 2), VCC)
            e.misc(f"global_store_dword {TMP[1]}, {TMP[0]}, s[84:85]")
            e.S("s_mov_b64", EXEC, -1)
            e.label(skip)
        if self.opt.get("spin"):
            e.wait_all_vm()
            e.V("v_readfirstlane_b32", s(86), v(51))
            e.label("spin_loop")
            e.misc("s_memrealtime s[88:89]")
            e.misc("s_waitcnt lgkmcnt(0)")
            e.misc("s_sub_u32 s88, s88, s86")
            e.misc(f"s_cmp_lt_u32 s88, {self.opt['spin']}")
            e.misc("s_cbranch_scc1 spin_loop")
        e.S("s_add_u32", sA, s(2), sWave)
        e.S("s_cmp_lg_u32", sA, 0)
        e.branch("s_cbranch_scc1", "main_end")
        e.S("s_add_u32", sA, sBase, 16)
        e.V("v_mov_b32", TMP[0], sA)
        e.V("v_mov_b32", TMP[1], EPOCH)
        e.S("s_mov_b64", EXEC, 1)
        e.bstore(TMP[0], TMP[1], WS, 0)
        e.label("main_end")
        e.misc("s_endpgm")
```

```python
from asmgen import *
from layout import *
from gen_prep import mk_srd, allreduce_g
import math

BIG = 0x40000000
LOG2E = 1.4426950408889634
LN2 = 0.6931471805599453

IMG = 0
ZT = 6144
RST = 6400
DUMMY = 6912
RING = 8192
RB = 152
LDS_BYTES = RING + RB * KB
FI = 8

WS, OUT, XIN, SB2 = s(8, 4), s(12, 4), s(16, 4), s(20, 4)
sWave, sR, sC, sCG, sRH, sKH, sW2048 = [s(24 + i) for i in range(7)]
sSeg = {"A": s(31), "O": s(32), "B": s(33), "C": s(34)}
sXr, sHr, sSTr, sFRL, sFRG, sFC = [s(35 + i) for i in range(6)]
sA, sB, sD, sE, sDm, sLd = [s(41 + i) for i in range(6)]
sMaskV = s(48, 2)
sCnt = s(50)
sTT = s(51)
sTm = s(52, 2)
sOx, sOxh, sOst, sOo, sOoh, sOh, sOhh, sKv = [s(54 + i) for i in range(8)]
sLocal, sX1 = s(47), s(62)
sStg = s(3)
vStg = v(55)
sNan = s(90, 2)
sBase = s(92)
sOk = s(94, 2)
SR1, SR2 = s(84, 4), s(96, 4)
PP = s(64, 16)
pOut, pWs = s(80, 2), s(82, 2)
vDum = v(49)

vLane, vN, vG, vL16 = v(1), v(2), v(3), v(4)
vW = [v(5), v(6), v(7)]
vK = [v(8), v(9), v(10)]
vDma = v(11)
vAx = [v(12), v(13)]
vAo = [v(14), v(15)]
vAh = [v(16), v(17)]
vSt, vStW, vKvSrc, vKvDst, vT16, vZ01, vZ2, vRT, vRW, vRF, vOut, vOut4, vOne = [v(18 + i) for i in range(13)]
vOh, vXs, vXh, vHs, vHh, vFl, vPollR, vPollC, vXch = [v(31 + i) for i in range(9)]
XE = [v(40, 4), v(44, 4)]
vC2 = v(48, 2)
vC2b = v(50, 2)
vLn2 = v(52, 2)
vEps = v(54, 2)
RT = v(56, 8)
ACC = v(64, 64)
FIFO = v(128, 4 * FI)
RES = v(160, 20)
B2F = v(180, 20)
TMP = v(200, 56)


class Main:
    def __init__(self, e, opt):
        self.e = e
        self.opt = opt
        self.kname = opt["kname"]
        self.nstamp = 0
        self.segs = []
        pos = 0
        for p in range(2):
            for k, n in (("A", NA), ("O", NO), ("B", NB), ("C", NC)):
                self.segs.append((k, pos, n))
                pos += n
        self.total = pos
        self.ngroups = pos // 8
        self.issued = 0
        self.dmaop = {}
        self.freed = 0
        self.hold = None
        self.visible = 0
        self.seq = []
        self.seqstart = {}
        for p in range(2):
            b = self.segs[4 * p + 0][1]
            self.seqstart[("A1", p)] = len(self.seq)
            self.seq += [(b + i, "W") for i in range(105)]
            self.seqstart[("A2", p)] = len(self.seq)
            self.seq += [(b + 105 + i, "W") for i in range(63)]
            b = self.segs[4 * p + 1][1]
            self.seqstart[("A4", p)] = len(self.seq)
            self.seq += [(b + 2 * i, "K") for i in range(50)]
            b = self.segs[4 * p + 2][1]
            self.seqstart[("B1a", p)] = len(self.seq)
            self.seq += [(b + i, "W") for i in range(21 * B1N)]
            self.seqstart[("B1b", p)] = len(self.seq)
            self.seq += [(b + 21 * B1N + i, "W") for i in range(147 - 21 * B1N)]
            b = self.segs[4 * p + 3][1]
            self.seqstart[("B2", p)] = len(self.seq)
            self.seq += [(b + 2 * i, "K") for i in range(135)]
        self.rd = 0
        self.cons = 0
        self.lastbar = 0
        self.gate = NA // 8
        self.stage_plan = []
        self.staged = {}
        self.stage_mid = None
        self.cap_hold = 1 << 20
        self.deferred = []
        self.own_end_phase = 0
        self.cap_ops = []
        self.cap_next = 1 << 20
        self.warn = []
        self.model = []
        self.own_end = 0
        self.deadline = lambda: 1 << 30

    def stamp(self, name):
        self.model.append((name, self.e.T))
        if not self.opt.get("stamps"):
            return
        e = self.e
        e.wait_all_lg()
        e.memtime(sTm)
        e.V("v_writelane_b32", v(53), sTm[0], self.nstamp)
        self.opt.setdefault("stampnames", []).append(name)
        self.nstamp += 1
        assert self.nstamp <= 62

    def endpos(self, i):
        p, k = self.seq[i]
        return p + (2 if k == "K" else 1)

    def ldsaddr(self, pos):
        return RING + (pos % RB) * KB

    def can_issue(self):
        if self.issued >= min(self.ngroups, self.gate):
            return False
        lim = self.freed if self.hold is None else min(self.freed, self.hold)
        lim = min(lim, self.cap_hold)
        return 8 * (self.issued + 1) <= lim + RB

    def dma_group(self):
        e = self.e
        g = self.issued
        self.issued += 1
        pos = 8 * g
        if g in self.stage_plan:
            self.stage_plan = []
        if g in self.staged and self.opt.get("defer", 1) and 8 * g >= self.own_end_phase:
            self.deferred.append(g)
            self.dmaop[g] = None
            yield
            return
        if g in self.staged:
            self.finish_stage()
            k = self.staged[g]
            ad = self.ldsaddr(pos)
            e.V("v_add_u32", vStg, ad, vDma)
            yield
            e.ds_write(vStg, a(160 + 8 * k, 4), 0)
            yield
            self.dmaop[g] = e.ds_write(vStg, a(164 + 8 * k, 4), 1024)
            yield
            return
        for k, b, n in self.segs:
            if b <= pos < b + n:
                break
        e.S("s_add_u32", M0, sW2048, self.ldsaddr(pos))
        yield
        e.S("s_add_u32", sDm, sSeg[k], (pos - b) * KB)
        yield
        md = "nt" if k in self.opt.get("ntseg", "") else ""
        e.dma(vDma, WS, sDm, 0, md, cls=self.dcls(k))
        yield
        self.dmaop[g] = e.dma(vDma, WS, sDm, 1024, md, cls=self.dcls(k))
        yield

    def capture_gen(self, first, n):
        e = self.e
        self.cap_hold = self.cap_next = 8 * first
        g1 = self.segs[4][1] // 8
        for k in range(n):
            g = first + k
            spins = 0
            while self.visible < 8 * (g + 1):
                spins += 1
                assert spins < 100000
                yield "idle"
            e.V("v_add_u32", vStg, self.ldsaddr(8 * g), vDma); yield
            e.ds_read(a(160 + 8 * k, 4), vStg, 0); yield
            self.cap_ops.append(e.ds_read(a(164 + 8 * k, 4), vStg, 1024))
            self.staged[g1 + g] = k
            self.cap_next = 8 * (g + 1) if k < n - 1 else 1 << 20
            yield

    def stage_group(self):
        e = self.e
        g = self.stage_plan.pop(0)
        k = len(self.staged) % 12
        self.staged[g] = k
        for sk, b, n in self.segs:
            if b <= 8 * g < b + n:
                break
        e.S("s_add_u32", sStg, sSeg[sk], (8 * g - b) * KB)
        yield
        e.bload(a(160 + 8 * k, 4), vDma, WS, sStg, 0, cls=self.dcls(sk))
        yield
        e.bload(a(164 + 8 * k, 4), vDma, WS, sStg, 1024, cls=self.dcls(sk))
        self.stage_mid = None
        yield

    def restore(self, n):
        e = self.e
        for g in self.deferred[:n]:
            k = self.staged[g]
            e.V("v_add_u32", vStg, self.ldsaddr(8 * g), vDma)
            e.ds_write(vStg, a(160 + 8 * k, 4), 0)
            self.dmaop[g] = e.ds_write(vStg, a(164 + 8 * k, 4), 1024)
        self.deferred = self.deferred[n:]

    def finish_stage(self):
        while self.stage_mid:
            next(self.stage_mid)

    def stage_step(self):
        e = self.e
        if e.outstanding() >= self.opt.get("qmax", 13):
            return False
        if not self.stage_mid:
            if not self.stage_plan or self.can_issue() or self.mid_group():
                return False
            c = self.dcls("C")
            if e.predict(c) + c[2] > self.deadline():
                return False
            self.stage_mid = self.stage_group()
        next(self.stage_mid)
        return True

    def dcls(self, k):
        return (750, 80, self.opt.get("svcAB", 150)) if k in "AB" else (750, self.opt.get("svcOC", 92), 75)

    def dma_ok(self):
        e = self.e
        if self.mid_group():
            g = self.issued - 1
        elif self.can_issue():
            g = self.issued
        else:
            return False
        if g in self.staged:
            return True
        if e.outstanding() >= self.opt.get("qmax", 13):
            return False
        if self.mid_group() or 8 * g < self.own_end:
            return True
        c = self.dcls(self.segof(8 * g))
        return e.predict(c) + c[2] <= self.deadline()

    def dma_filler(self):
        while True:
            if self.can_issue():
                for _ in self.dma_group():
                    yield True
            else:
                yield False

    def flush_dma_partial(self):
        while self.issued > 0 and (self.issued - 1) not in self.dmaop:
            next(self.dmaf)

    def dma_all(self):
        self.flush_dma_partial()
        while self.can_issue():
            for _ in self.dma_group():
                pass

    def ring_barrier(self, need_idx, extra_ops=(), free_all=False):
        e = self.e
        need_idx = min(need_idx, len(self.seq))
        upto = self.endpos(need_idx - 1) if need_idx > 0 else 0
        g = (upto + 7) // 8
        self.flush_dma_partial()
        while self.issued < g:
            assert self.can_issue(), ("ring deadlock", self.issued, g, self.freed, self.hold)
            self.warn.append(f"forced dma group {self.issued} at seq {self.rd}")
            for _ in self.dma_group():
                pass
        ops = list(extra_ops)
        for gg in range(self.visible // 8, g):
            assert gg not in self.deferred, gg
            ops.append(self.dmaop[gg])
        e.wait_ops(ops + self.cap_ops)
        self.cap_ops = []
        e.barrier()
        self.cap_hold = self.cap_next
        self.visible = max(self.visible, 8 * g)
        self.freed = self.seq[self.cons][0] if self.cons < len(self.seq) else self.total
        self.lastbar = self.rd

    def issue_read(self):
        e = self.e
        i = self.rd
        if i >= len(self.seq):
            return
        pos, k = self.seq[i]
        assert self.endpos(i) <= self.visible, ("read of invisible block", i, pos, self.visible)
        ad = self.ldsaddr(pos)
        base = (vW if k == "W" else vK)[ad >> 16]
        slot = i % FI
        e.ds_read(FIFO[4 * slot:4 * slot + 4], base, ad & 0xffff)
        self.rd += 1

    def prime(self):
        while self.rd < self.cons + FI and self.rd < len(self.seq) and self.endpos(self.rd) <= self.visible:
            self.issue_read()

    def run_pass(self, n, mf, ntile, xf, fillers=(), chunk=24, stop_reads=None, hooks=None,
                 aload=None, vrate=0.5, amix=(1, 0), over=0, force_bar=None, late=None, see_all=False, tail=2000, mix=0, must=None):
        e = self.e
        fillers = list(fillers)
        lim = stop_reads if stop_reads is not None else len(self.seq)
        st = {"next": 0, "k": 0, "t": 0}
        self.own_end = self.own_end_phase = self.endpos(lim - 1)
        self.deadline = lambda: e.T + (n - st["t"]) * 33 + tail

        i_first = self.cons

        def dma_need():
            g = self.issued - 1 if self.mid_group() else self.issued
            for i in range(self.cons, lim):
                if self.endpos(i) > 8 * g:
                    return i - i_first - FI - chunk
            return 1 << 20

        def one_vmem():
            na, nd = amix
            n0 = len(e.vm)
            if st.get("late"):
                if e.T < st["next"]:
                    return False
                try:
                    next(st["late"])
                except StopIteration:
                    st["late"] = None
                    return False
            else:
                na_ = (aload.n // 2) * ntile if (aload is not None and not aload.done) else 1 << 21
                nd_ = dma_need() if (self.mid_group() or self.can_issue()) else 1 << 22
                urgent = min(na_, nd_) - st["t"] <= self.opt.get("horizon", 24)
                if e.T < st["next"] and not urgent:
                    return False
                if mix and na_ < 1 << 21 and st["k"] % mix == mix - 1 and na_ - st["t"] > self.opt.get("mixh", 10) and self.dma_ok():
                    next(self.dmaf)
                elif na_ <= nd_ and na_ < 1 << 21:
                    if e.outstanding() >= self.opt.get("qmax", 13) and not urgent:
                        return False
                    if aload.n // 2 >= st["t"] // ntile + aload.win - 1:
                        return False
                    aload.step()
                elif nd_ < 1 << 22 and (urgent or self.dma_ok()):
                    next(self.dmaf)
                elif not self.stage_step():
                    return False
            if len(e.vm) > n0:
                st["k"] += 1
                st["next"] = e.T + self.opt.get("vgap", 24)
            return True

        def fill(budget):
            while budget > 0:
                n0 = e.ninst
                did = one_vmem()
                if not did:
                    for f in list(fillers):
                        try:
                            if next(f) == "idle":
                                continue
                            did = True
                            break
                        except StopIteration:
                            fillers.remove(f)
                if not did:
                    return
                budget -= e.ninst - n0

        def waits_for(t):
            regs = []
            for tt in (t, t + 1):
                if tt < n:
                    ks = tt // ntile
                    if aload is not None:
                        aload.upto(ks)
                    idx = self.cons + (tt - t)
                    if idx < self.rd:
                        regs += FIFO[4 * (idx % FI):4 * (idx % FI) + 4].regs()
                    regs += xf(ks, 0).regs() + xf(ks, 1).regs()
            return e._pending(regs)

        e.wait_ops(waits_for(0))
        if aload is not None:
            self.stamp("1st")
            self.warn.append(f"fill {8 * self.issued - self.seq[self.cons][0]}")
        for t in range(n):
            if aload is not None and self.opt.get("midstamp") and t == n // 2:
                self.stamp("half")
            i = self.cons
            assert self.rd > i, ("fifo underrun", i)
            W = FIFO[4 * (i % FI):4 * (i % FI) + 4]
            st["t"] = t
            if must is not None and t == n - ntile - 2:
                for _ in must:
                    self.warn.append("must drained late")
            if t == int(n * self.opt.get("cfrac", 0.8)) and n > 30:
                fillers.insert(0, self.code_touch_gen())
            if hooks and hooks.get("add"):
                g_ = hooks["add"](t)
                if g_:
                    fillers.append(g_)
            ov = over if fillers else 0
            mf(t, W, 0)
            bar = self.rd < lim and (self.endpos(self.rd) > self.visible or self.rd - self.lastbar >= chunk)
            bar = bar or t == force_bar
            if late and t >= late[0] and not st.get("lateon") and (aload is None or aload.done) and 8 * self.issued >= min(self.own_end, self.endpos(min(i_first + n + FI, lim) - 1)) and not self.mid_group():
                st["late"] = late[1]
                st["lateon"] = True
                self.warn.append(f"late at {t}")
            if bar:
                ex, after = [], None
                if hooks and hooks.get("bar"):
                    ex, after = hooks["bar"](t)
                self.ring_barrier(lim if see_all else min(self.rd + chunk, lim), ex)
                if after:
                    after()
            else:
                fill(2 + ov)
            mf(t, W, 1)
            self.cons += 1
            used = 0
            if self.rd < lim:
                self.issue_read()
                used = 1
            pend = waits_for(t + 1) if (t % 2 == 1 and t + 1 < n) else []
            fill(2 + ov - used - (1 if pend else 0))
            if pend:
                e.wait_ops(waits_for(t + 1))
        if late and not st.get("lateon"):
            st["late"] = late[1]
        for f in fillers + ([st["late"]] if st.get("late") else []):
            for _ in f:
                pass

    def segof(self, pos):
        for k, b, n in self.segs:
            if b <= pos < b + n:
                return k
        return "O"

    def mid_group(self):
        return self.issued > 0 and (self.issued - 1) not in self.dmaop

    def dma_burst(self, maxgroups=99):
        e = self.e
        self.flush_dma_partial()
        gs = []
        while self.can_issue() and len(gs) < maxgroups:
            gs.append(self.issued)
            self.issued += 1
        for w in (1, 2, 3):
            mine = gs[w - 1::3]
            if not mine:
                continue
            skip = e.newlabel("noburst")
            e.S("s_cmp_lg_u32", sWave, w)
            e.branch("s_cbranch_scc1", skip)
            e.cond_begin()
            for g in mine:
                pos = 8 * g
                for k, b, n in self.segs:
                    if b <= pos < b + n:
                        break
                for h in range(2):
                    e.S("s_mov_b32", M0, self.ldsaddr(pos) + h * 4096)
                    e.S("s_add_u32", sDm, sSeg[k], (pos - b) * KB + h * 4096)
                    for q in range(4):
                        self.dmaop[g] = e.dma(vL16, WS, sDm, q * 1024)
            e.cond_end()
            e.label(skip)

    def prologue(self):
        e = self.e
        e.S("s_cmp_ge_u32", s(2), 256)
        e.branch("s_cbranch_scc1", "main_end")
        if self.opt.get("stamps"):
            e.V("v_mov_b32", v(53), 0)
        self.stamp("t0")
        if self.opt.get("spin"):
            e.memtime(sTm, True)
            e.V("v_mov_b32", v(53), sTm[0])
        e.sload(PP, s(0, 2), 0)
        e.sload(pOut, s(0, 2), 64)
        e.sload(pWs, s(0, 2), 80)
        T0, T1, T2, T3 = TMP[48], TMP[49], TMP[50], TMP[51]
        e.S("s_getpc_b64", s(88, 2))
        e.label("main_pc")
        e.V("v_lshlrev_b32", T2, 5, v(0))
        e.S("s_sub_u32", s(88), s(88), "main_pc-" + self.kname)
        e.S("s_subb_u32", s(89), s(89), 0)
        e.misc(f"global_load_dword {vDum}, {T2}, s[88:89]")
        e._vm([], (2000, 30, 0))
        e.V("v_lshrrev_b32", T0, 6, v(0))
        e.V("v_and_b32", vLane, 63, v(0))
        e.V("v_readfirstlane_b32", sWave, T0)
        e.S("s_lshr_b32", sB, s(2), 3)
        e.S("s_mul_i32", sB, sB, 1792)
        e.S("s_add_u32", sB, sB, 8192)
        e.V("v_lshl_add_u32", T2, v(0), 3, sB)
        e.V("v_min_u32", T2, self.opt.get("code_bytes", 32768) - 4, T2)
        e.misc(f"global_load_dword {vDum}, {T2}, s[88:89]")
        e._vm([], (2000, 30, 0))
        e.V("v_lshlrev_b32", vL16, 4, vLane)
        e.V("v_and_b32", vN, 15, vLane)
        e.V("v_lshrrev_b32", vG, 4, vLane)
        self.vBig = TMP[52]
        e.V("v_mov_b32", self.vBig, BIG)
        e.S("s_and_b32", sA, s(2), 7)
        e.S("s_lshl_b32", sA, sA, 1)
        e.S("s_lshr_b32", sB, s(2), 7)
        e.S("s_add_u32", sR, sA, sB)
        e.S("s_bfe_u32", sC, s(2), (4 << 16) | 3)

    def gather(self, raw, srd, sstride, vaddr, srow, n=8):
        e = self.e
        e.S("s_mul_i32", sLd, srow, sstride)
        for i in range(n):
            e.bload(raw[i], vaddr, srd, sLd, 0, w="ushort", cls=(2500, 32, 0))
            if i < n - 1:
                e.S("s_add_u32", sLd, sLd, sstride)

    def pack(self, raw, n=4):
        for i in range(n):
            self.e.V("v_lshl_or_b32", raw[i], raw[2 * i + 1], 16, raw[2 * i])

    def colsum(self, regs, ex, vs, vt):
        e = self.e
        e.V("v_mov_b32", vs, 0)
        for r_ in regs:
            e.V("v_dot2c_f32_bf16", vs, r_, vOne)
        allreduce_g(e, vs, vt)
        e.V("v_sub_f32", vs, 0, vs)
        e.V("v_cvt_pk_bf16_f32", vt, vs, vs)
        e.V("v_lshlrev_b32", vt, 16, vt)
        e.V("v_sub_f32", vt, vs, vt)
        e.V("v_cvt_pk_bf16_f32", ex[0], vs, vt)
        e.V("v_and_b32", ex[1], "0xffff", ex[0])

    def startup(self):
        e = self.e
        vBig = self.vBig
        RAW1, EX = ACC[0:20], ACC[20:24]
        RAW2 = TMP[8:40]
        vCol, vReg, vLeft, vT0, vT1, vSum, vLd = [FIFO[i] for i in range(7)]
        vA0, vA1, vA2, vSt2, vBias = RES[8], RES[9], B2F[8], B2F[9], TMP[50]
        sT, sP = s(54), s(55)
        sStr = s(56)
        XJ = [RES[0:4], RES[4:8], B2F[0:4]]
        XD, XA, XB_ = B2F[4], ACC[32], ACC[33]
        XM = [s(57), s(58), s(59)]
        T0, T1, T2, T3 = TMP[48], TMP[49], TMP[50], TMP[51]
        e.V("v_lshrrev_b32", T1, 3, vLane)
        e.V("v_and_b32", T3, 7, vLane)
        e.V("v_mul_u32_u24", T0, 1280, T3)
        e.V("v_lshl_add_u32", XA, T1, 4, T0)
        e.V("v_lshrrev_b32", T2, 4, vLane)
        e.V("v_lshl_add_u32", XB_, T2, 7, XA)
        e.V("v_lshlrev_b32", XD, 8, T1)
        e.V("v_lshl_add_u32", XD, T3, 4, XD)
        e.S("s_lshl_b32", sE, sR, 4)
        e.S("s_add_u32", sE, sE, sC)
        e.S("s_mul_i32", sE, sE, 8 * 1280)
        e.S("s_mul_i32", sD, sWave, 3)
        mk_srd(e, XIN, PP[0:2], XSZ)
        for k in range(3):
            e.S("s_add_u32", XM[k], sD, k)
            e.S("s_cmp_ge_u32", XM[k], 8)
            e.S("s_cselect_b64", VCC, -1, 0)
            e.S("s_cselect_b32", sA, 40, 10)
            e.S("s_cselect_b32", sB, 8 - 8 * 40, 0)
            e.V("v_cndmask_b32", T0 if k != 1 else T1, XA, XB_, VCC)
            e.S("s_mul_i32", sA, sA, XM[k])
            e.S("s_add_u32", sA, sA, sB)
            e.S("s_lshl_b32", sA, sA, 4)
            e.S("s_add_u32", sA, sA, sE)
            e.S("s_cmp_ge_u32", XM[k], 10)
            e.S("s_cselect_b32", sA, BIG, sA)
            e.S("s_cselect_b32", XM[k], BIG // 2048, XM[k])
            e.bload(XJ[k], T0 if k != 1 else T1, XIN, sA, 0, cls=(2000, 100, 0))
        self.stamp("issx")
        e.S("s_lshr_b32", sP, sR, 1)
        e.S("s_and_b32", sT, sR, 1)
        e.S("s_lshl_b32", sT, sT, 2)
        e.S("s_add_u32", sT, sT, sWave)
        e.S("s_mov_b32", s(4), (656 << 20) | (660 << 10) | 640)
        e.S("s_mov_b32", s(5), 0)
        e.S("s_mul_i32", sA, sT, 10)
        e.S("s_lshr_b32", sA, s(4), sA)
        e.S("s_and_b32", sA, sA, 1023)
        for t, val in ((3, 1280), (4, 1300), (5, 0), (6, 1), (7, 32)):
            e.S("s_cmp_eq_u32", sT, t)
            e.S("s_cselect_b32", sA, val, sA)
        e.S("s_mul_i32", sB, sC, 40)
        e.S("s_add_u32", sA, sA, sB)
        e.V("v_add_u32", vCol, sA, vN)
        e.V("v_add_u32", vT0, vCol, vN)
        e.S("s_sub_u32", sB, sT, 5)
        e.S("s_cmp_lt_u32", sB, 2)
        e.S("s_cselect_b64", VCC, -1, 0)
        e.V("v_cndmask_b32", vCol, vCol, vT0, VCC)
        e.V("v_lshrrev_b32", vT0, 3, vN)
        e.V("v_mul_u32_u24", vT0, 632 - 32, vT0)
        e.V("v_lshrrev_b32", vT1, 2, vN)
        e.V("v_lshl_add_u32", vT0, vT1, 4, vT0)
        e.V("v_add3_u32", vT0, vT0, vN, sA)
        e.S("s_cmp_eq_u32", sT, 2)
        e.S("s_cselect_b64", VCC, -1, 0)
        e.V("v_cndmask_b32", vCol, vCol, vT0, VCC)
        e.V("v_lshlrev_b32", vCol, 1, vCol)
        e.S("s_cmp_eq_u32", sT, 7)
        e.S("s_cselect_b32", sB, 8, 16)
        e.V("v_cmp_le_u32", VCC, sB, vN)
        e.S("s_mov_b32", sStr, 3840)
        e.V("v_cndmask_b32", vCol, vCol, vBig, VCC)
        e.S("s_mov_b32", sD, 8 * 3840)
        e.V("v_mad_u32_u24", vReg, vG, sD, vCol)
        e.V("v_and_b32", vT0, 1, vG)
        e.V("v_lshrrev_b32", vT1, 1, vG)
        e.V("v_lshl_add_u32", vLd, vT0, 1, vT1)
        e.S("s_mov_b32", sD, 4 * 3840)
        e.V("v_mad_u32_u24", vLeft, vLd, sD, vCol)
        mk_srd(e, SR1, PP[2:4], D * 3 * D * 2)
        e.S("s_mul_i32", sB, sP, 80)
        self.gather(RAW1[0:8], SR1, sStr, vReg, sB)
        e.S("s_add_u32", sA, sB, 32)
        self.gather(RAW1[8:16], SR1, sStr, vReg, sA)
        e.S("s_add_u32", sA, sB, 64)
        self.gather(RAW1[16:20], SR1, sStr, vLeft, sA, 4)
        self.stamp("iss1")
        def r2touch():
            e.S("s_lshl_b32", sA, s(2), 2)
            e.S("s_add_u32", sA, sA, sWave)
            e.V("v_min_u32", T0, 17, vLane)
            e.V("v_lshlrev_b32", T0, 7, T0)
            e.S("s_mul_i32", sB, sA, 2160)
            mk_srd(e, SR2, PP[8:10], F * D * 2)
            e.touch(vDum, T0, SR2, sB, 0, cls=(2000, 30, 0))
            mk_srd(e, SR2, PP[12:14], F * D * 2)
            e.touch(vDum, T0, SR2, sB, 0, cls=(2000, 30, 0))
            e.V("v_min_u32", T0, 7 * 128, T0)
            mk_srd(e, SR2, PP[4:6], D * D * 2)
            e.S("s_mul_i32", sB, sA, 800)
            e.touch(vDum, T0, SR2, sB, 0, cls=(2000, 30, 0))
        if self.opt.get("r2touch", 3) == 1:
            r2touch()
        if self.opt.get("wsoff"):
            e.S("s_add_u32", pWs[0], pWs[0], self.opt["wsoff"] << 20)
            e.S("s_addc_u32", pWs[1], pWs[1], 0)
        mk_srd(e, WS, pWs, WS_USED)
        e.sload(sBase, pWs, EPOCH)
        e.S("s_mov_b32", sA, "0x3f803f80")
        e.V("v_mov_b32", vOne, sA)
        ops1 = []
        e.S("s_lshr_b32", sA, sC, 1)
        e.S("s_lshl_b32", sB, sR, 3)
        e.S("s_add_u32", sA, sA, sB)
        e.S("s_mul_i32", sA, sA, 20 * KB)
        e.S("s_and_b32", sB, sC, 1)
        e.S("s_lshl_b32", sB, sB, 7)
        e.S("s_add_u32", sA, sA, sB)
        e.S("s_add_u32", sA, sA, XB[0])
        for k in range(3):
            e.S("s_lshl_b32", sB, XM[k], 11)
            e.S("s_add_u32", sB, sB, sA)
            ops1.append(e.bstore(XJ[k], XD, WS, sB, 0, "sc1", cls=(1000, 70, 0)))
        xs = ACC[26:28]
        xz = ACC[24:26]
        MK = ACC[28:32]
        for r_ in (xs[0], xs[1], xz[0], xz[1]):
            e.V("v_mov_b32", r_, 0)
        for k in range(3):
            for i in range(4):
                e.V("v_dot2c_f32_bf16", xs[0], XJ[k][i], vOne)
                e.V("v_dot2c_f32_bf16", xs[1], XJ[k][i], XJ[k][i])
        for h in range(2):
            e.V("v_add_f32_dpp", xs[h], xs[h], xs[h], mods="row_ror:8 row_mask:0xf bank_mask:0xf")
            allreduce_g(e, xs[h], vT0)
        e.S("s_lshl_b32", sA, sR, 3)
        e.S("s_add_u32", sA, sA, sWave)
        e.S("s_lshl_b32", sA, sA, 10)
        e.S("s_lshl_b32", sB, sC, 6)
        e.S("s_add_u32", sA, sA, sB)
        e.S("s_add_u32", sA, sA, STB[0])
        e.S("s_add_u32", sB, sA, 4096)
        e.V("v_lshlrev_b32", vT0, 3, vLane)
        e.S("s_mov_b64", EXEC, "0xff")
        ops1.append(e.bstore(xs, vT0, WS, sA, 0, "sc1", cls=(1000, 20, 0)))
        ops1.append(e.bstore(xz, vT0, WS, sB, 0, "sc1", cls=(1000, 20, 0)))
        e.S("s_mov_b64", EXEC, -1)
        self.stamp("xst")
        e.S("s_cmp_lt_u32", sT, 5)
        e.S("s_cselect_b32", sE, 5, 3)
        e.S("s_cselect_b32", sA, 0, 100)
        e.S("s_add_u32", sA, sA, sT)
        e.S("s_mul_i32", sB, sC, NA)
        e.S("s_add_u32", sA, sA, sB)
        e.S("s_add_u32", sA, sA, WA // KB)
        e.S("s_lshl_b32", sA, sA, 10)
        e.S("s_lshl_b32", sE, sE, 10)
        e.S("s_mul_i32", sB, sP, sE)
        e.S("s_lshl_b32", sB, sB, 1)
        e.S("s_add_u32", sB, sB, sA)
        self.pack(RAW1[0:8])
        ops1.append(e.bstore(RAW1[0:4], vL16, WS, sB, 0, "sc1", cls=(1000, 70, 0)))
        e.S("s_add_u32", sB, sB, sE)
        self.pack(RAW1[8:16])
        ops1.append(e.bstore(RAW1[8:12], vL16, WS, sB, 0, "sc1", cls=(1000, 70, 0)))
        e.S("s_lshr_b32", sB, sP, 1)
        e.S("s_add_u32", sB, sB, 16)
        e.S("s_mul_i32", sB, sB, sE)
        e.S("s_add_u32", sB, sB, sA)
        e.S("s_and_b32", sD, sP, 1)
        e.S("s_lshl_b32", s(4), sD, 9)
        e.S("s_add_u32", sB, sB, s(4))
        e.V("v_lshlrev_b32", vT0, 8, vG)
        e.V("v_and_b32", vT0, 256, vT0)
        e.V("v_lshl_add_u32", vT0, vN, 4, vT0)
        e.V("v_lshrrev_b32", vT1, 1, vG)
        e.V("v_lshl_add_u32", vLd, vT1, 3, vT0)
        self.pack(RAW1[16:20], 2)
        ops1.append(e.bstore(RAW1[16:18], vLd, WS, sB, 0, "sc1", cls=(1000, 40, 0)))
        self.colsum([RAW1[i] for i in (0, 1, 2, 3, 8, 9, 10, 11, 16, 17)], EX, vSum, vT0)
        e.S("s_mul_i32", sB, sE, 20)
        e.S("s_add_u32", sB, sB, sA)
        e.S("s_lshr_b32", sA, sP, 1)
        e.S("s_lshl_b32", sA, sA, 8)
        e.S("s_add_u32", sB, sB, sA)
        e.S("s_lshl_b32", sD, sD, 3)
        e.S("s_add_u32", sB, sB, sD)
        e.S("s_mov_b64", EXEC, "0xffff")
        ops1.append(e.bstore(EX[0:2], vL16, WS, sB, 0, "sc1", cls=(1000, 20, 0)))
        e.S("s_mov_b64", EXEC, -1)
        self.stamp("r1")
        if self.opt.get("r2touch", 3) == 2:
            r2touch()
        for i in range(4):
            e.V("v_mov_b32", MK[i], -1)
        e.S("s_lshl_b32", sA, sC, 4)
        e.S("s_add_u32", sA, sA, sR)
        e.S("s_mul_i32", sA, sA, KVSZ)
        e.S("s_mul_i32", sB, sWave, 896)
        e.S("s_min_u32", sB, sB, KVSZ - 1024)
        e.S("s_add_u32", sA, sA, sB)
        e.S("s_add_u32", sA, sA, KVB[0])
        ops1.append(e.bstore(MK, vL16, WS, sA, 0, "sc1", cls=(1000, 70, 0)))
        self.stamp("xjob")
        e.S("s_and_b32", sCG, sC, 7)
        e.S("s_lshr_b32", sRH, sC, 3)
        if self.opt.get("r2touch", 3) == 3:
            r2touch()
        mk_srd(e, SB2, PP[14:16], D * 2)
        self.prologue2()
        self.stamp("pro2")
        sU, sP, sStr, sJ = s(88), s(89), s(100), s(101)
        rows = [s(3 + i) for i in range(4)]
        D2 = [s(64), s(65), s(66), s(67)]
        sDB, sDX = s(70), s(71)
        vSel0, vSel1 = vA1, vA2
        mk_srd(e, SR1, PP[10:12], F * 2)
        e.S("s_lshl_b32", sJ, sRH, 4)
        e.S("s_add_u32", sJ, sJ, sR)
        e.S("s_lshl_b32", sJ, sJ, 2)
        e.S("s_add_u32", sJ, sJ, sWave)
        e.V("v_lshrrev_b32", vT0, 1, vG)
        e.V("v_and_b32", vT1, 1, vG)
        e.V("v_mov_b32", vSt2, vL16)
        e.S("s_mov_b32", sDX, BIG)
        lo, lc, lj = e.newlabel("job_wo"), e.newlabel("job_w2"), e.newlabel("job_go")

        def unit(sbase, nu, stride, ca, cb, nreg, dB):
            e.S("s_lshl_b32", sA, sU, 5)
            e.S("s_add_u32", sA, sA, sbase)
            e.S("s_lshl_b32", sA, sA, 1)
            e.S("s_mov_b32", sDB, dB)
            e.S("s_cmp_lt_u32", sU, nu)
            e.S("s_cselect_b64", VCC, -1, 0)
            e.S("s_cselect_b32", sDB, sDB, BIG)
            e.V("v_lshlrev_b32", vCol, 2, vN)
            e.V("v_and_b32", vReg, 14, vN)
            e.V("v_lshlrev_b32", vReg, 1, vReg)
            e.V("v_cndmask_b32", vCol, vReg, vCol, VCC)
            e.V("v_add_u32", vCol, sA, vCol)
            e.V("v_and_b32", vReg, 1, vN)
            e.V("v_cndmask_b32", vReg, vReg, 0, VCC)
            e.S("s_mov_b32", sA, "0x02020202")
            e.V("v_mul_lo_u32", vReg, vReg, sA)
            e.V("v_add_u32", vSel0, "0x05040100", vReg)
            e.S("s_mov_b32", sStr, stride)
            e.S("s_mov_b32", sD, 8 * stride)
            e.V("v_mul_u32_u24", vReg, sD, vG)
            e.S("s_mov_b32", sD, ca * stride)
            e.V("v_mul_u32_u24", vLeft, sD, vT0)
            e.S("s_mov_b32", sD, cb * stride)
            e.V("v_mad_u32_u24", vLeft, vT1, sD, vLeft)
            e.S("s_cmp_lt_u32", sP, nreg)
            e.S("s_cselect_b64", VCC, -1, 0)
            e.V("v_cndmask_b32", vA0, vLeft, vReg, VCC)

        def split_dests(half):
            for b in range(4):
                e.S("s_lshl_b32", sA, sP, 2)
                e.S("s_add_u32", sA, sA, b)
                e.S("s_mul_i32", sD, sA, 10)
                e.S("s_cmp_ge_u32", sA, half)
                e.S("s_cselect_b32", sB, 10 * half - 1, 0)
                e.S("s_sub_u32", sD, sD, sB)
                e.S("s_add_u32", sD, sD, sE)
                e.S("s_lshl_b32", D2[b], sD, 10)
                if half == 27 and b >= 2:
                    e.S("s_cmp_ge_u32", sA, 54)
                    e.S("s_cselect_b32", D2[b], BIG, D2[b])

        def div3(dq, dr, src):
            e.S("s_mul_i32", dq, src, 43691)
            e.S("s_lshr_b32", dq, dq, 17)
            e.S("s_mul_i32", sA, dq, 3)
            e.S("s_sub_u32", dr, src, sA)

        e.S("s_cmp_ge_u32", sJ, 55)
        e.branch("s_cbranch_scc1", lc)
        e.S("s_cmp_ge_u32", sJ, 40)
        e.branch("s_cbranch_scc1", lo)
        e.cond_begin()
        mk_srd(e, SR2, PP[8:10], D * F * 2)
        e.S("s_and_b32", sU, sJ, 3)
        e.S("s_lshr_b32", sP, sJ, 2)
        e.S("s_cmp_ge_u32", sP, 5)
        e.S("s_cselect_b32", sA, 5, 0)
        e.S("s_cselect_b32", sJ, 8, 0)
        e.S("s_sub_u32", sP, sP, sA)
        e.S("s_add_u32", sJ, sJ, sCG)
        e.S("s_mul_i32", sE, sJ, 112)
        e.S("s_max_u32", sB, sJ, 12)
        e.S("s_sub_u32", sB, sB, 12)
        e.S("s_lshl_b32", sB, sB, 4)
        e.S("s_sub_u32", sE, sE, sB)
        unit(sE, 3, 3456, 80, 8, 4, 1024)
        e.S("s_lshl_b32", sA, sU, 4)
        e.S("s_add_u32", sA, sA, sJ)
        e.S("s_cmp_ge_u32", sA, 3 * 16 + 12)
        e.S("s_cselect_b64", VCC, -1, 0)
        e.V("v_cndmask_b32", vCol, vCol, vBig, VCC)
        for b in range(4):
            e.S("s_mul_i32", sA, sP, 160)
            e.S("s_add_u32", sA, sA, 80 * (b >> 1) + 32 * (b & 1))
            e.S("s_cmp_eq_u32", sP, 4)
            e.S("s_cselect_b32", rows[b], 160 * b + 64, sA)
        e.S("s_cmp_lt_u32", sU, B1N // 2)
        e.S("s_cselect_b32", s(79), B1N, 7 - B1N)
        e.S("s_cselect_b32", sE, 0, 20 * B1N)
        e.S("s_lshl_b32", sA, sU, 1)
        e.S("s_add_u32", sE, sE, sA)
        e.S("s_mul_i32", sB, sJ, NB)
        e.S("s_add_u32", sE, sE, sB)
        e.S("s_add_u32", sE, sE, WB // KB)
        for b in range(4):
            e.S("s_lshl_b32", sA, sP, 2)
            e.S("s_add_u32", sA, sA, b)
            e.S("s_mul_i32", sA, sA, s(79))
            e.S("s_add_u32", sA, sA, sE)
            e.S("s_lshl_b32", D2[b], sA, 10)
        e.S("s_mul_i32", sD, s(79), 20)
        e.S("s_add_u32", sD, sD, sE)
        e.S("s_lshl_b32", sDX, sD, 10)
        e.branch("s_branch", lj)
        e.cond_end()
        e.label(lo)
        e.cond_begin()
        mk_srd(e, SR2, PP[4:6], D * D * 2)
        e.S("s_sub_u32", sJ, sJ, 40)
        div3(sP, sU, sJ)
        e.S("s_mul_i32", sE, sCG, 80)
        unit(sE, 2, 1280, 80, 40, 4, 2048)
        for b in range(4):
            e.S("s_mul_i32", sA, sP, 160)
            e.S("s_add_u32", sA, sA, 40 * b)
            e.S("s_cmp_eq_u32", sP, 4)
            e.S("s_cselect_b32", rows[b], 160 * b + 32, sA)
        e.S("s_mul_i32", sE, sCG, NO)
        e.S("s_add_u32", sE, sE, WO // KB)
        e.S("s_lshl_b32", sA, sU, 2)
        e.S("s_add_u32", sE, sE, sA)
        split_dests(10)
        e.branch("s_branch", lj)
        e.cond_end()
        e.label(lc)
        e.cond_begin()
        mk_srd(e, SR2, PP[12:14], F * D * 2)
        e.S("s_sub_u32", sJ, sJ, 55)
        div3(sP, sU, sJ)
        e.S("s_mul_i32", sE, sCG, 80)
        unit(sE, 2, 1280, 112, 8, 12, 2048)
        e.S("s_cmp_ge_u32", sP, 14)
        e.S("s_cselect_b64", VCC, -1, 0)
        e.V("v_cndmask_b32", vCol, vCol, vBig, VCC)
        e.V("v_cndmask_b32", vSt2, vSt2, vBig, VCC)
        e.S("s_min_u32", sP, sP, 13)
        for b in range(4):
            e.S("s_lshl_b32", sD, sP, 2)
            e.S("s_add_u32", sD, sD, b)
            e.S("s_mul_i32", sA, sD, 43691)
            e.S("s_lshr_b32", sA, sA, 17)
            e.S("s_lshl_b32", sA, sA, 4)
            e.S("s_min_u32", sA, sA, 192)
            e.S("s_lshl_b32", sB, sD, 5)
            e.S("s_add_u32", sA, sA, sB)
            e.S("s_mul_i32", sB, sD, 224)
            e.S("s_sub_u32", sB, sB, 224 * 48 - 96)
            e.S("s_cmp_ge_u32", sD, 48)
            e.S("s_cselect_b32", rows[b], sB, sA)
        e.S("s_mul_i32", sE, sCG, NC)
        e.S("s_add_u32", sE, sE, WC // KB)
        e.S("s_lshl_b32", sA, sU, 2)
        e.S("s_add_u32", sE, sE, sA)
        split_dests(27)
        e.cond_end()
        e.label(lj)
        e.V("v_add_u32", vA0, vA0, vCol)
        e.S("s_cmp_lt_u32", sP, 2)
        e.S("s_cselect_b64", VCC, -1, 0)
        e.V("v_cndmask_b32", vBias, vBig, vCol, VCC)
        e.V("v_mov_b32", vSel1, "0x07060302")
        e.V("v_add_u32", vT0, sP, vG)
        e.V("v_lshrrev_b32", vT1, 1, vT0)
        e.V("v_lshlrev_b32", vLd, 4, vN)
        e.V("v_lshl_add_u32", vLd, vT1, 8, vLd)
        e.V("v_and_b32", vT0, 1, vT0)
        e.V("v_lshl_add_u32", vLd, vT0, 3, vLd)
        e.S("s_cmp_eq_u32", sP, 4)
        e.S("s_cselect_b32", sA, 4, 1)
        e.V("v_cmp_gt_u32", VCC, sA, vG)
        e.V("v_cndmask_b32", vLd, vBig, vLd, VCC)
        e.S("s_lshl_b32", sA, sC, 4)
        e.S("s_add_u32", sA, sA, sR)
        e.S("s_mul_i32", sA, sA, KVSZ)
        e.S("s_mul_i32", sB, sWave, 896)
        e.S("s_min_u32", sB, sB, KVSZ - 1024)
        e.S("s_add_u32", sA, sA, sB)
        e.S("s_add_u32", s(79), sA, KVB[1])
        self.stamp("dec2")
        e.wait_ops(ops1)
        e.barrier()
        self.flag("both", 1)
        self.stamp("w1flag")
        self.ops2 = []

        def r2_loads():
            for b in range(4):
                e.S("s_mul_i32", sE, rows[b], sStr); yield
                for i in range(8):
                    e.bload(RAW2[8 * b + i], vA0, SR2, sE, 0, cls=(1500, 32, 0)); yield
                    if i < 7:
                        e.S("s_add_u32", sE, sE, sStr); yield
            e.bload(vBias, vBias, SR1, 0, 0, cls=(1500, 10, 0)); yield

        vs, vt, MK = TMP[48], TMP[49], TMP[40:44]
        EV = ACC[40:56]

        def r2_pack():
            for b in range(4):
                raw = RAW2[8 * b:8 * b + 8]
                for i in range(4):
                    e.V("v_perm_b32", EV[4 * b + i], raw[2 * i + 1], raw[2 * i], vSel0)
                for i in range(4):
                    e.V("v_perm_b32", raw[i], raw[2 * i + 1], raw[2 * i], vSel1)
            for i in range(4):
                e.V("v_mov_b32", MK[i], -1)
            e.V("v_cmp_eq_u32", sNan, 0, vG)
            for h in range(2):
                ex = TMP[44 + 2 * h:46 + 2 * h]
                self.colsum([EV[i] for i in range(16)] if h == 0 else [RAW2[8 * b + i] for b in range(4) for i in range(4)], ex, vs, vt)
                e.V("v_perm_b32", vt, vBias, vBias, vSel0 if h == 0 else vSel1)
                e.V("v_and_b32", vt, "0xffff0000", vt)
                e.V("v_or_b32", ex[1], ex[1], vt)
                e.V("v_cndmask_b32", ex[0], 0, ex[0], sNan)
                e.V("v_cndmask_b32", ex[1], 0, ex[1], sNan)
            e.V("v_mov_b32", vSel0, vLd)
            yield

        def r2_stores():
            for b in range(4):
                self.ops2.append(e.bstore(EV[4 * b:4 * b + 4], vSt2, WS, D2[b], 0, "sc1", cls=(1000, 70, 0)))
                e.S("s_add_u32", sA, D2[b], sDB)
                self.ops2.append(e.bstore(RAW2[8 * b:8 * b + 4], vSt2, WS, sA, 0, "sc1", cls=(1000, 70, 0)))
            self.ops2.append(e.bstore(MK, vL16, WS, s(79), 0, "sc1", cls=(1000, 70, 0)))
            for h in range(2):
                if h:
                    e.S("s_add_u32", sDX, sDX, sDB)
                self.ops2.append(e.bstore(TMP[44 + 2 * h:46 + 2 * h], vSel0, WS, sDX, 0, "sc1", cls=(1000, 20, 0)))
        self.r2_stores = r2_stores
        self.r2_loads, self.r2_pack = r2_loads(), r2_pack()
        for _ in self.r2_loads:
            pass
        self.stamp("iss2")
        for _ in self.r2_pack:
            pass
        if self.opt.get("r2st", 2) == 2:
            r2_stores()
            self.late_loads()
        self.stamp("r2")
        self.poll("both", 1)
        e.barrier()
        self.stamp("w1go")

    def w2_gen(self):
        e = self.e
        t = RES[0]
        e.V("v_bfe_u32", t, vLane, 4, 1); yield
        e.V("v_lshl_add_u32", t, t, 11, vFl); yield
        e.S("s_lshl_b32", sE, sCG, 8); yield
        e.S("s_add_u32", sE, sE, FLG_C); yield
        e.bload(RES[1], t, WS, sE, 0, "sc1", cls=(900, 10, 0)); yield
        for _ in range(50):
            yield "idle"
        e.S("s_add_u32", sD, sBase, 2); yield
        lok, lre = e.newlabel("w2ok"), e.newlabel("w2retry")
        e.V("v_cmp_ne_u32", VCC, sD, RES[1])
        e.S("s_cmp_eq_u64", VCC, 0)
        e.branch("s_cbranch_scc1", lok)
        e.cond_begin()
        e.S("s_mov_b32", sCnt, 0)
        e.label(lre)
        e.misc("s_sleep 4")
        e.bload(RES[1], t, WS, sE, 0, "sc1")
        e.V("v_cmp_ne_u32", VCC, sD, RES[1])
        e.S("s_cmp_eq_u64", VCC, 0)
        e.branch("s_cbranch_scc1", lok)
        e.S("s_add_u32", sCnt, sCnt, 1)
        e.S("s_cmp_lt_u32", sCnt, 0x20000)
        e.branch("s_cbranch_scc1", lre)
        e.cond_end()
        e.label(lok)
        self.gate = 1 << 20
        yield

    def prologue2(self):
        e = self.e
        T0, T1, T2, T3, T4, T5 = [TMP[40 + i] for i in range(6)]
        mk_srd(e, OUT, pOut, XSZ)
        e.S("s_and_b32", sKH, sWave, 1)
        e.S("s_lshl_b32", sW2048, sWave, 11)
        e.S("s_mul_i32", sA, sC, NA * KB)
        e.S("s_add_u32", sSeg["A"], sA, WA)
        e.S("s_mul_i32", sA, sCG, NO * KB)
        e.S("s_add_u32", sSeg["O"], sA, WO)
        e.S("s_mul_i32", sA, sC, NB * KB)
        e.S("s_add_u32", sSeg["B"], sA, WB)
        e.S("s_mul_i32", sA, sCG, NC * KB)
        e.S("s_add_u32", sSeg["C"], sA, WC)
        e.V("v_add_u32", vDma, sW2048, vL16)
        e.S("s_mul_i32", sXr, sR, 160 * KB)
        e.S("s_mul_i32", sHr, sR, 432 * KB)
        e.S("s_lshl_b32", sSTr, sR, 13)
        e.S("s_mul_i32", sA, sWave, 40 * KB)
        e.V("v_add_u32", vAx[0], sA, vL16)
        e.V("v_add_u32", vAx[1], 20 * KB, vAx[0])
        e.V("v_lshlrev_b32", T0, 11, vG)
        e.V("v_lshl_add_u32", T0, vN, 3, T0)
        e.S("s_lshl_b32", sA, sWave, 8)
        e.V("v_add_u32", vSt, sA, T0)
        e.S("s_mov_b32", self.cInvD, lit(1.0 / D))
        for j in range(3):
            if j == 0:
                e.V("v_mov_b32", vW[0], vL16)
            else:
                e.V("v_add_u32", vW[j], j * 65536, vL16)
        e.S("s_lshl_b32", sA, sKH, 10)
        for j in range(3):
            e.V("v_add_u32", vK[j], sA, vW[j])
        e.V("v_lshlrev_b32", T4, 4, v(0))
        Z = TMP[44:48]
        Z = TMP[48:52]
        for j in range(4):
            e.V("v_mov_b32", Z[j], 0)
        e.ds_write(T4, Z, 0)
        e.ds_write(T4, Z, 4096)
        e.S("s_lshl_b32", sTT, sRH, 2)
        e.S("s_add_u32", sTT, sTT, sWave)
        e.S("s_xor_b32", sB, sTT, 1)
        for u, st in ((0, sTT), (1, sB)):
            e.S("s_mul_i32", sA, st, 20 * KB)
            e.S("s_mul_i32", sD, sKH, 10 * KB)
            e.S("s_add_u32", sA, sA, sD)
            e.V("v_add_u32", vAo[u], sA, vL16)
            e.S("s_mul_i32", sA, st, 54 * KB)
            e.S("s_mul_i32", sD, sKH, 27 * KB)
            e.S("s_add_u32", sA, sA, sD)
            e.V("v_add_u32", vAh[u], sA, vL16)
        e.V("v_lshrrev_b32", T0, 1, vG)
        e.V("v_and_b32", T1, 1, vG)
        e.V("v_lshlrev_b32", T2, 4, vN)
        e.V("v_lshl_add_u32", T3, T0, 8, T2)
        e.V("v_lshl_add_u32", T3, T1, 3, T3)
        e.S("s_mul_i32", sA, sTT, 20 * KB)
        e.V("v_add_u32", vXs, sA, vL16)
        e.V("v_add_u32", vXh, sA, T3)
        e.S("s_mul_i32", sA, sWave, 108 * KB)
        e.V("v_add_u32", vHs, sA, vL16)
        e.S("s_cmp_ge_u32", sC, 12)
        e.S("s_cselect_b32", sA, BIG, sA)
        e.V("v_add_u32", vHh, sA, T3)
        e.S("s_mul_i32", sA, sWave, 40 * KB)
        e.V("v_lshl_add_u32", T3, vG, 3, T2)
        e.V("v_add_u32", vOh, sA, T3)
        e.V("v_cmp_gt_u32", VCC, 2, vG)
        e.V("v_mov_b32", T3, BIG)
        e.V("v_cndmask_b32", vOh, T3, vOh, VCC)
        e.S("s_lshl_b32", sA, sTT, 7)
        e.V("v_lshl_add_u32", T3, vN, 3, sA)
        e.V("v_lshl_add_u32", vStW, T0, 2, T3)
        e.S("s_lshl_b32", sA, sWave, 7)
        e.S("s_add_u32", sA, sA, RST)
        e.V("v_lshl_add_u32", vRT, vG, 4, sA)
        e.V("v_lshl_add_u32", vRW, vN, 2, sA)
        e.S("s_lshl_b32", sA, sTT, 6)
        e.S("s_add_u32", sA, sA, RST)
        e.V("v_lshl_add_u32", vRF, vN, 2, sA)
        e.V("v_lshlrev_b32", T3, 4, vG)
        e.V("v_add_u32", vZ2, ZT + 128, T3)
        e.V("v_cmp_gt_u32", VCC, 10, vN)
        e.V("v_add_u32", T3, ZT, T3)
        e.V("v_cndmask_b32", vZ01, vZ2, T3, VCC)
        e.S("s_lshl_b32", sA, sR, 3)
        e.S("s_add_u32", sA, sA, sTT)
        e.S("s_mul_i32", sA, sA, 16 * 1280)
        e.S("s_mul_i32", sB, sCG, 160)
        e.S("s_add_u32", sA, sA, sB)
        e.V("v_mul_u32_u24", T3, 1280, vN)
        e.V("v_add_u32", T3, sA, T3)
        e.V("v_lshl_add_u32", vOut, vG, 4, T3)
        e.V("v_lshl_add_u32", vOut4, vG, 3, T3)
        e.S("s_mul_i32", sA, sWave, 5120)
        e.V("v_add_u32", vXch, sA, vL16)
        e.V("v_lshlrev_b32", vFl, 2, vN)
        e.V("v_mov_b32", vLn2[0], lit(LN2))
        e.V("v_mov_b32", vEps[0], lit(1e-6))
        e.S("s_mov_b32", sMaskV[0], "0x00ff00ff")
        e.S("s_mov_b32", sMaskV[1], "0x00ff00ff")
        e.S("s_lshl_b32", sA, sR, 8)
        e.S("s_add_u32", sFRL, sA, FLG_RL)
        e.S("s_add_u32", sFRG, sA, FLG_RG)
        e.S("s_lshl_b32", sA, sC, 8)
        e.S("s_add_u32", sFC, sA, FLG_C)
        e.S("s_lshl_b32", sA, sCG, 11)
        e.S("s_add_u32", sOx, sXr, sA)
        e.S("s_lshr_b32", sA, sCG, 1)
        e.S("s_lshl_b32", sA, sA, 10)
        e.S("s_and_b32", sB, sCG, 1)
        e.S("s_lshl_b32", sB, sB, 9)
        e.S("s_add_u32", sA, sA, sB)
        e.S("s_add_u32", sA, sA, 16 * KB)
        e.S("s_add_u32", sOxh, sXr, sA)
        e.S("s_lshl_b32", sA, sCG, 10)
        e.S("s_add_u32", sOst, sSTr, sA)
        e.S("s_lshl_b32", sA, sC, 10)
        e.S("s_add_u32", sOo, sXr, sA)
        e.S("s_lshl_b32", sA, sC, 8)
        e.S("s_add_u32", sA, sA, 16 * KB)
        e.S("s_add_u32", sOoh, sXr, sA)
        e.S("s_mul_i32", sA, sC, 3 * KB)
        e.S("s_add_u32", sOh, sHr, sA)
        e.S("s_lshl_b32", sA, sC, 9)
        e.S("s_add_u32", sA, sA, 48 * KB)
        e.S("s_add_u32", sOhh, sHr, sA)
        e.S("s_mul_i32", sKv, sC, 16 * KVSZ)
        e.misc(f"s_getreg_b32 {sX1}, hwreg(HW_REG_XCC_ID, 0, 4)")
        e.S("s_and_b32", sX1, sX1, 7)
        e.S("s_add_u32", sX1, sX1, 8)
        e.S("s_add_u32", sX1, sX1, sBase)
        e.S("s_mov_b32", sLocal, 0)
        U, Hh, Ee, Dq = T0, T1, T2, T3
        e.S("s_mov_b32", sA, 52429)
        e.V("v_mul_u32_u24", U, sA, v(0))
        e.V("v_lshrrev_b32", U, 18, U)
        e.V("v_mul_u32_u24", Dq, 5, U)
        e.V("v_sub_u32", Dq, v(0), Dq)
        e.V("v_cmp_le_u32", VCC, 21, U)
        e.V("v_cndmask_b32", Hh, 0, 1, VCC)
        e.V("v_mul_u32_u24", Ee, 21, Hh)
        e.V("v_sub_u32", Ee, U, Ee)
        A0, A1, A2, A3 = TMP[46], TMP[47], TMP[38], TMP[39]
        e.V("v_cmp_le_u32", s(100, 2), 16, Ee)
        e.V("v_cmp_eq_u32", s(88, 2), 4, Dq)
        e.V("v_cndmask_b32", A0, 0, 1, s(100, 2))
        e.V("v_lshl_add_u32", A0, Hh, 1, A0)
        e.V("v_add_u32", A1, 4, Hh)
        e.V("v_cndmask_b32", A1, A1, 6, s(100, 2))
        e.V("v_cndmask_b32", A0, A0, A1, s(88, 2))
        e.V("v_cndmask_b32", A1, Dq, Hh, s(88, 2))
        e.V("v_lshl_add_u32", A2, Hh, 2, Ee)
        e.V("v_subrev_u32", A2, 8, A2)
        e.V("v_cndmask_b32", A2, Ee, A2, s(100, 2))
        e.V("v_cmp_eq_u32", VCC, 20, Ee)
        e.V("v_cndmask_b32", A2, A2, 0, VCC)
        e.V("v_lshl_add_u32", A1, A1, 4, A2)
        e.V("v_lshlrev_b32", A1, 4, A1)
        e.V("v_lshl_add_u32", vKvSrc, A0, 10, A1)
        e.V("v_mul_u32_u24", A0, 5, Hh)
        e.V("v_add_u32", A0, A0, Dq)
        e.V("v_cmp_le_u32", s(88, 2), 8, A0)
        e.V("v_lshrrev_b32", A1, 1, A0)
        e.V("v_subrev_u32", A2, 8, A0)
        e.V("v_cndmask_b32", A1, A1, A2, s(88, 2))
        e.V("v_and_b32", A2, 1, A0)
        e.V("v_cndmask_b32", A2, A2, 0, s(88, 2))
        e.V("v_lshlrev_b32", A2, 3, A2)
        e.V("v_cndmask_b32", A0, 0, 1, s(88, 2))
        e.V("v_lshl_add_u32", A3, Hh, 1, A0)
        e.V("v_lshl_add_u32", A3, A3, 2, A1)
        e.V("v_lshl_add_u32", A3, A3, 4, A2)
        e.V("v_add_u32", A3, ZT, A3)
        e.V("v_mul_u32_u24", T4, 20, Hh)
        e.V("v_add_u32", T4, T4, Ee)
        e.V("v_cmp_le_u32", s(100, 2), 32, T4)
        e.V("v_and_b32", T5, 1, T4)
        e.V("v_cndmask_b32", T5, T5, 2, s(100, 2))
        e.V("v_lshl_add_u32", A0, T5, 1, A0)
        e.V("v_lshrrev_b32", T5, 1, T4)
        e.V("v_subrev_u32", T4, 32, T4)
        e.V("v_cndmask_b32", T4, T5, T4, s(100, 2))
        e.V("v_lshl_add_u32", T4, A1, 4, T4)
        e.V("v_lshl_add_u32", T4, T4, 4, A2)
        e.V("v_lshl_add_u32", T4, A0, 10, T4)
        e.V("v_cndmask_b32", T4, T4, A3, VCC)
        e.V("v_cmp_gt_u32", VCC, 210, v(0))
        e.V("v_mov_b32", T5, DUMMY)
        e.V("v_cndmask_b32", vKvDst, T5, T4, VCC)
        e.V("v_cndmask_b32", vKvSrc, 0, vKvSrc, VCC)
        e.V("v_lshlrev_b32", T4, 4, v(0))
        e.V("v_mov_b32", T5, BIG)
        e.V("v_cndmask_b32", vT16, T5, T4, VCC)

    def late_loads(self):
        e = self.e
        T4, T5 = TMP[48], TMP[49]
        e.S("s_mul_i32", sB, sCG, 160)
        e.bload(RES[10:14], vOut, XIN, 0, 0)
        e.bload(RES[14:18], vOut, XIN, 0, 64)
        e.bload(RES[18:20], vOut4, XIN, 0, 128)
        e.V("v_lshl_add_u32", T4, vG, 4, sB)
        e.V("v_lshl_add_u32", T5, vG, 3, sB)
        e.bload(B2F[10:14], T4, SB2, 0, 0)
        e.bload(B2F[14:18], T4, SB2, 0, 64)
        e.bload(B2F[18:20], T5, SB2, 0, 128)
        skip = e.newlabel("noxid")
        e.S("s_cmp_lg_u32", sWave, 3)
        e.branch("s_cbranch_scc1", skip)
        e.cond_begin()
        e.S("s_lshl_b32", sA, sR, 8)
        e.S("s_add_u32", sA, sA, FLG_X)
        e.S("s_lshl_b32", sB, sC, 2)
        e.V("v_mov_b32", T4, sB)
        e.V("v_mov_b32", T5, sX1)
        e.S("s_mov_b64", EXEC, 1)
        e.bstore(T5, T4, WS, sA, 0, "sc1")
        e.S("s_mov_b64", EXEC, -1)
        e.cond_end()
        e.label(skip)

    def unpack(self, dst, pk):
        e = self.e
        for a_ in range(2):
            for j in range(4):
                e.V("v_lshlrev_b32", dst[8 * a_ + j], 16, pk[4 * a_ + j])
                e.V("v_and_b32", dst[8 * a_ + 4 + j], "0xffff0000", pk[4 * a_ + j])
        for j in range(2):
            e.V("v_lshlrev_b32", dst[16 + 2 * j], 16, pk[8 + j])
            e.V("v_and_b32", dst[16 + 2 * j + 1], "0xffff0000", pk[8 + j])

    class ALoad:
        def __init__(self, m, vaddr, terms, nks):
            self.m, self.vaddr, self.terms, self.nks = m, vaddr, terms, nks
            self.n = 0
            self.based = -1
            self.done = False
            self.win = 20

        def step(self):
            e = self.m.e
            ks, u = divmod(self.n, 2)
            if ks // 4 != self.based:
                self.based = ks // 4
                e.S("s_add_u32", sLd, self.terms[0], self.terms[1] + (ks // 4) * 4 * KB)
                return False
            e.bload(a((self.n % 40) * 4, 4), self.vaddr[u], WS, sLd, (ks % 4) * KB, self.m.opt.get("amod", "sc1"), cls=(self.m.opt.get("latA", 600), 76, 33 if self.nks == 27 else 16))
            self.n += 1
            self.done = self.n >= 2 * self.nks
            return True

        def upto(self, ks):
            while self.n < 2 * min(ks + 1, self.nks):
                self.step()

    def stats_loads(self, ver):
        e = self.e
        e.S("s_add_u32", sA, sSTr, STB[ver])
        for u in range(2):
            for k in range(2):
                e.bload(TMP[4 * u + 2 * k:4 * u + 2 * k + 2], vSt, WS, sA, k * 1024 + u * 128, "sc1", cls=(600, 20, 0))

    def stats_gen(self, need_T, have=False):
        e = self.e
        for u in range(2):
            sm, sq, t0, t1 = TMP[4 * u], TMP[4 * u + 1], TMP[4 * u + 2], TMP[4 * u + 3]
            if not have:
                e.V("v_add_f32", sm, sm, t0); yield
                e.V("v_add_f32", sq, sq, t1); yield
            for op in () if have else ("v_permlane32_swap_b32", "v_permlane16_swap_b32"):
                e.V("v_mov_b32", t0, sm); yield
                e.V("v_mov_b32", t1, sq); yield
                e.V(op, sm, t0); yield
                e.V(op, sq, t1); yield
                e.V("v_add_f32", sm, sm, t0); yield
                e.V("v_add_f32", sq, sq, t1); yield
            e.V("v_mul_f32", sm, lit(1.0 / D), sm); yield
            e.V("v_mul_f32", t0, sm, sm); yield
            e.V("v_fma_f32", sq, sq, self.cInvD, Neg(t0)); yield
            e.V("v_max_f32", sq, 0, sq); yield
            e.V("v_add_f32", sq, lit(1e-5), sq); yield
            e.V("v_rsq_f32", t0, sq); yield
            e.V("v_cvt_pk_bf16_f32", XE[u][0], sm, sm); yield
            e.V("v_mul_f32", sq, sq, t0); yield
            e.ds_write(vRW, t0, 64 * u); yield
            c2 = vC2 if u == 0 else vC2b
            e.V("v_mul_f32", c2[0], lit(LOG2E), t0); yield
            e.V("v_lshlrev_b32", t1, 16, XE[u][0]); yield
            e.V("v_sub_f32", sm, sm, t1); yield
            e.V("v_cvt_pk_bf16_f32", XE[u][1], sm, sq); yield
            e.V("v_and_b32", t1, "0xffff0000", XE[u][1]); yield
            e.V("v_sub_f32", t1, sq, t1); yield
            e.V("v_cvt_pk_bf16_f32", XE[u][3], sm, t1); yield
            e.V("v_mov_b32", XE[u][2], XE[u][0]); yield
        if need_T:
            for u in range(2):
                e.ds_read(RT[4 * u:4 * u + 4], vRT, 64 * u); yield

    def phi_pair(self, src, c2, bcast, t):
        e = self.e
        m = "op_sel_hi:[1,0]" if bcast else ""
        e.V("v_pk_mul_f32", t[0:2], src, c2, mods=m)
        e.V("v_exp_f32_e64", t[2], t[0], mods="clamp")
        e.V("v_exp_f32_e64", t[3], t[1], mods="clamp")
        e.V("v_max_f32", t[0], 0, t[0])
        e.V("v_max_f32", t[1], 0, t[1])
        e.V("v_pk_add_f32", t[2:4], t[2:4], vEps, mods="op_sel_hi:[1,0]")
        e.V("v_pk_fma_f32", t[0:2], t[0:2], vLn2, t[2:4], mods="op_sel_hi:[1,0,1]")

    def scratch(self, nblk, endpos):
        st = endpos - nblk
        if (st % RB) + nblk > RB:
            st = endpos - (endpos % RB) - nblk
        return st, self.ldsaddr(st)

    def bg_on(self, tail):
        e = self.e
        st = {"next": 0}
        t_end = e.T + tail
        self.deadline = lambda: t_end

        def f():
            if e.T >= st["next"] and self.dma_ok():
                n0 = len(e.vm) + len(e.lg) + len(self.deferred)
                while len(e.vm) + len(e.lg) + len(self.deferred) == n0:
                    next(self.dmaf)
                st["next"] = e.T + self.opt.get("vgap", 24)
        self.e.bg = f

    def code_touch(self, ahead=None):
        e = self.e
        if not self.opt.get("ctouch", 1):
            return
        lab = e.newlabel("here")
        e.label(lab)
        ahead = self.opt.get("cahead", 2048) if ahead is None else ahead
        e.V("v_lshlrev_b32", v(51), 5, v(0))
        e.V("v_add_u32", v(51), f"{lab}-{self.kname}+{ahead}", v(51))
        e.V("v_min_u32", v(51), self.opt.get("code_bytes", 32768) - 4, v(51))
        e.misc(f"global_load_dword {vDum}, {v(51)}, s[96:97]")
        e._vm([], (800, 30, 10))

    def delay(self, n, gen):
        for _ in range(n):
            yield "idle"
        yield from gen

    def code_touch_gen(self):
        self.code_touch(self.opt.get("cahead", 512))
        yield

    def bg_off(self):
        self.e.bg = None

    def gstore(self, lst, cold=False):
        e = self.e
        mode = self.opt.get("mode", "dual")
        if cold:
            mode = "safe"
        if mode != "dual":
            return [e.bstore(d, vo, WS, so, off, "sc1" if mode == "safe" else "") for d, vo, so, off in lst]
        ls, le = e.newlabel("st_safe"), e.newlabel("st_end")
        regs = []
        for d, vo, so, off in lst:
            regs += d.regs() + vo.regs()
        e.wait_ops(e._pending(regs))
        e.S("s_cmp_eq_u32", sLocal, 0)
        need = e._need("vmem", regs, [])
        if need > 1:
            e.nop(need - 1)
        e.branch("s_cbranch_scc1", ls)
        n0 = len(e.lines)
        ops = [e.bstore(d, vo, WS, so, off, "") for d, vo, so, off in lst]
        body = e.lines[n0:]
        assert len(body) == len(lst), body
        e.raw(f"  s_branch {le}")
        e.label(ls)
        for l in body:
            e.raw(l + " sc1")
        e.label(le)
        return ops

    def touch_gen(self, lst, cold=False):
        e = self.e
        if cold or not self.opt.get("touch", 0):
            return
        for _ in range(self.opt.get("touch_delay", 60)):
            yield "idle"
        for vo, sb, add, off in lst:
            e.S("s_add_u32", sE, sb, add); yield
            e.touch(vDum, vo, WS, sE, off); yield

    def local_gen(self):
        e = self.e
        e.S("s_lshl_b32", sE, sR, 8); yield
        e.S("s_add_u32", sE, sE, FLG_X); yield
        e.bload(TMP[52], vFl, WS, sE, 0, "sc1"); yield
        for _ in range(40):
            yield "idle"
        e.V("v_cmp_ne_u32", VCC, sX1, TMP[52]); yield
        e.S("s_cmp_eq_u64", VCC, 0)
        e.S("s_cselect_b32", sLocal, 1, 0); yield

    def poll(self, kind, val):
        e = self.e
        skip = e.newlabel("nopoll")
        loop = e.newlabel("poll")
        e.S("s_cmp_lg_u32", sWave, 0)
        e.branch("s_cbranch_scc1", skip)
        e.cond_begin()
        t = TMP[55]
        e.S("s_mov_b32", sCnt, 0)
        e.S("s_mov_b64", sOk, 0)
        e.S("s_add_u32", sB, sBase, val)
        va, vb, sa, sb = vFl, vFl, sFRL, sFRG
        if kind == "both":
            va, vb, sa, sb = TMP[53], TMP[54], 0, 0
            e.V("v_cmp_gt_u32", VCC, 2, vG)
            e.V("v_mov_b32", va, sFC)
            e.V("v_mov_b32", vb, sFRL)
            e.V("v_cndmask_b32", va, vb, va, VCC)
            e.V("v_add_u32", va, va, vFl)
            e.V("v_mov_b32", vb, FLG_RG - FLG_RL)
            e.V("v_cndmask_b32", vb, vb, 0, VCC)
            e.V("v_add_u32", vb, va, vb)
        e.label(loop)

        def chk():
            e.misc("s_waitcnt vmcnt(0)")
            e.misc(f"v_subrev_u32 {t}, {sB}, {t}")
            e.misc(f"v_cmp_ge_u32 vcc, {8 - val}, {t}")
            e.misc(f"s_or_b64 {sOk}, {sOk}, vcc")
            e.misc(f"s_cmp_eq_u64 {sOk}, -1")
            e.misc(f"s_cbranch_scc1 {skip}")
        e.misc(f"buffer_load_dword {t}, {va}, {WS}, {sa} offen sc1")
        e.misc("s_add_u32 %s, %s, 1" % (sCnt, sCnt))
        chk()
        if kind == "both":
            e.misc("s_sleep 3")
        e.misc(f"s_and_b32 {sA}, {sCnt}, 3")
        e.misc(f"s_cbranch_scc1 {loop}")
        e.misc(f"buffer_load_dword {t}, {vb}, {WS}, {sb} offen sc1")
        chk()
        e.misc(f"s_cmp_lt_u32 {sCnt}, 0x40000")
        e.misc(f"s_cbranch_scc1 {loop}")
        e.cond_end()
        e.label(skip)

    def flag(self, kind, val):
        e = self.e
        lst = [(1, sFRG, "sc1", sC), (2, sFRL, "", sC)] if kind != "col" else []
        if kind != "row":
            lst.append((3, sFC, "sc1", sR))
        for w, sb, m, sidx in lst:
            skip = e.newlabel("noflag")
            e.S("s_cmp_lg_u32", sWave, w)
            e.branch("s_cbranch_scc1", skip)
            e.cond_begin()
            e.S("s_lshl_b32", sA, sidx, 2)
            e.V("v_mov_b32", TMP[54], sA)
            e.S("s_add_u32", sA, sBase, val)
            e.V("v_mov_b32", TMP[55], sA)
            e.S("s_mov_b64", EXEC, 1)
            e.bstore(TMP[55], TMP[54], WS, sb, 0, m)
            e.S("s_mov_b64", EXEC, -1)
            e.cond_end()
            e.label(skip)

    def handoff(self, val, ops, shadow=None, touch=()):
        e = self.e
        t_st = e.T
        self.deadline = lambda: t_st + self.opt.get("topup", 2600)
        self.own_end = 0
        while self.dma_ok():
            next(self.dmaf)
        while self.stage_step():
            pass
        self.finish_stage()
        self.restore(self.opt.get("rest1", 4))
        e.wait_all_lg()
        self.ring_barrier(self.cons + FI + self.opt.get("ahead", 16), ops)
        self.hold = None
        self.flag("row", val)
        self.stamp("flag")
        t_flag = e.T
        if self.opt.get("post_touch", 0):
            for k, (vo, sb, add, off) in enumerate(touch):
                sr = sE if k % 2 else sD
                e.S("s_add_u32", sr, sb, add)
                e.touch(vDum, vo, WS, sr, off, "sc1", cls=(750, 66, 30))
        self.deadline = lambda: t_flag + self.opt.get("topup2", 1800)
        while self.dma_ok():
            next(self.dmaf)
        while self.stage_step():
            pass
        self.finish_stage()
        self.warn.append(f"staged {len(self.staged)}")
        self.stage_plan = []
        self.prime()
        self.restore(99)
        if shadow:
            shadow()
        self.poll("row", val)
        e.T = max(e.T, t_flag + 1000)
        e.barrier()
        self.stamp("go")

    def phaseA(self, p):
        e = self.e
        opt = self.opt
        xv = 2 * p
        acc = lambda T, u: ACC[(T * 2 + u) * 4:(T * 2 + u) * 4 + 4]
        xf = lambda ks, u: a((ks * 2 + u) * 4, 4) if ks < 20 else XE[u]
        if p == 0:
            e.S("s_getpc_b64", s(96, 2))
            e.label("main_pc2")
            e.S("s_sub_u32", s(96), s(96), "main_pc2-" + self.kname)
            e.S("s_subb_u32", s(97), s(97), 0)
            for _ in range(opt.get("first_groups", 3)):
                for _ in self.dma_group():
                    pass
        al = self.ALoad(self, vAx, (sXr, XB[xv]), 20)
        al.upto(opt.get("adist", 3) - 1)
        self.stats_loads(xv)
        fl0 = [self.delay(opt.get("stdelay", 24), self.stats_gen(True))]
        if p == 0:
            if opt.get("r2st", 2) == 0:
                self.r2_stores()
                self.late_loads()
            e.wait_all_lg()
            if opt.get("r2st", 2) == 2:
                self.ring_barrier(FI + 8, self.ops2)
                self.flag("col", 2)
                fl0.append(self.w2_gen())
            else:
                self.ring_barrier(FI + 8)
            self.prime()
            self.stamp("start")
            if opt.get("keep", 12):
                cg_ = self.capture_gen(opt.get("keep0", 3), opt.get("keep", 12))
                next(cg_)
                fl0.append(cg_)
        st1 = {}

        def hook1(t):
            if t >= opt.get("w2flag_at", 30) and not st1.get("done"):
                st1["done"] = t
                return self.ops2, (lambda: self.flag("col", 2))
            return [], None

        def add1(t):
            if st1.get("done") and t >= opt.get("w2chk_at", 70) and not st1.get("chk"):
                st1["chk"] = True
                return self.w2_gen()
        i0 = self.seqstart[("A1", p)]
        fb = 102
        sst, sad = self.scratch(28, self.seq[i0 + fb][0])
        self.hold = sst

        def mf(t, W, u):
            ks, T = divmod(t, 5)
            e.mfma(acc(T, u), xf(ks, u), W, acc(T, u) if ks else 0)
        self.run_pass(105, mf, 5, xf, fl0, must=fl0[0], chunk=(8 if p == 0 else 24), stop_reads=self.seqstart[("A4", p)], aload=al,
                      force_bar=fb, tail=6000, mix=opt.get("mixA", 0) if p else 0, hooks={"bar": hook1, "add": add1} if (p == 0 and opt.get("r2st", 2) == 0) else None)
        if p == 0 and opt.get("r2st", 2) == 1:
            self.dma_all()
            self.r2_stores()
            self.late_loads()
        assert sst + 28 <= self.freed
        self.stamp("A1")
        self.bg_on(5000)
        C2T = TMP[8:16] if p else ACC[40:48]
        for j in range(8):
            e.V("v_mul_f32", C2T[j], lit(LOG2E), RT[j])
        KF = [TMP[16:20], TMP[20:24], TMP[24:28]]
        VF = {3: TMP[28:32], 4: TMP[32:36], 2: TMP[36:40]}
        tt = [TMP[40:44], TMP[44:48]]
        TA0, TA1 = TMP[48], TMP[49]
        if p == 0:
            KF = [RES[0:4], RES[4:8], B2F[0:4]]
            VF = {3: B2F[4:8], 4: ACC[56:60], 2: ACC[60:64]}
            tt = [ACC[48:52], ACC[52:56]]
        n = 0
        for T in range(3):
            for u in range(2):
                for h in range(2):
                    t = tt[n % 2]
                    n += 1
                    self.phi_pair(acc(T, u)[2 * h:2 * h + 2], C2T[4 * u + 2 * h:4 * u + 2 * h + 2], False, t)
                    e.V("v_cvt_pk_bf16_f32", KF[T][2 * u + h], t[0], t[1])
        for T in (3, 4, 2):
            for u in range(2):
                for h in range(2):
                    x = acc(T, u)[2 * h:2 * h + 2]
                    e.V("v_pk_mul_f32", x, x, RT[4 * u + 2 * h:4 * u + 2 * h + 2])
            for u in range(2):
                for h in range(2):
                    x = acc(T, u)[2 * h:2 * h + 2]
                    e.V("v_cvt_pk_bf16_f32", VF[T][2 * u + h], x[0], x[1])
        for j in range(4):
            e.V("v_cndmask_b32", VF[2][j], VF[2][j], vOne, sMaskV)
        PR = [ACC[4 * i:4 * i + 4] for i in range(7)]
        prods = [(0, 3), (0, 2), (1, 4), (1, 2), (2, 3), (2, 4), (2, 2)]
        for i, (kt, vt) in enumerate(prods):
            e.mfma(PR[i], KF[kt], VF[vt], 0)
        e.S("s_mul_i32", sA, sWave, 7168)
        e.S("s_add_u32", sA, sA, sad)
        e.V("v_add_u32", TA0, sA, vL16)
        e.V("v_add_u32", TA1, sad, vKvSrc)
        for i in range(7):
            e.ds_write(TA0, PR[i], i * 1024)
        e.wait_all_lg()
        e.barrier()
        RD = [ACC[4 * w:4 * w + 4] for w in range(4)]
        for w in range(4):
            e.ds_read(RD[w], TA1, w * 7168)
        for h in range(2):
            e.V("v_pk_add_f32", RD[0][2 * h:2 * h + 2], RD[0][2 * h:2 * h + 2], RD[1][2 * h:2 * h + 2])
            e.V("v_pk_add_f32", RD[2][2 * h:2 * h + 2], RD[2][2 * h:2 * h + 2], RD[3][2 * h:2 * h + 2])
        for h in range(2):
            e.V("v_pk_add_f32", RD[0][2 * h:2 * h + 2], RD[0][2 * h:2 * h + 2], RD[2][2 * h:2 * h + 2])
        e.S("s_mul_i32", sA, sR, KVSZ)
        e.S("s_add_u32", sA, sA, sKv)
        e.S("s_add_u32", sA, sA, KVB[p])
        kvst = e.bstore(RD[0], vT16, WS, sA, 0, "sc1")
        self.bg_off()
        self.stamp("kvpub")
        PL = [ACC[4 * i:4 * i + 4] for i in range(10)] + [TMP[24 + 4 * i:28 + 4 * i] for i in range(6)]

        st2 = {}

        def barhook(t):
            def rel():
                self.hold = None

            def relflag():
                self.hold = None
                self.flag("col", 2)
            if p == 0 and opt.get("r2st", 2) == 1 and not st2.get("done") and t >= opt.get("w2flag2_at", 12):
                st2["done"] = True
                return self.ops2, relflag
            return [], rel

        def kvloads():
            for i in range(16):
                if i % 2 == 0:
                    e.S("s_add_u32", sB, sKv, KVB[p] + i * KVSZ); yield
                e.bload(PL[i], vT16, WS, sB, (i % 2) * KVSZ, "sc1", cls=(opt.get('kvlat', 800), 80, opt.get('kvsvc', 130))); yield

        def kvsum():
            for st in (1, 2, 4, 8):
                for i in range(0, 16, 2 * st):
                    for h in range(2):
                        e.V("v_pk_add_f32", PL[i][2 * h:2 * h + 2], PL[i][2 * h:2 * h + 2], PL[i + st][2 * h:2 * h + 2])
            e.V("v_cmp_u_f32", VCC, PL[0][0], PL[0][1])
            e.V("v_cmp_u_f32", sNan, PL[0][2], PL[0][3])
            e.S("s_or_b64", VCC, VCC, sNan)

        def mfq(t, W, u):
            ks, T = divmod(t, 3)
            e.mfma(acc(5 + T, u), W, xf(ks, u), acc(5 + T, u) if ks else 0)
        self.lastbar = self.rd - 8
        fl = [self.touch_gen([(vAx[0], sOo, OB[p], 0), (vAx[1], sOo, OB[p], 0), (vOh, sOoh, OB[p], 0), (vOh, sOoh, OB[p] + 20 * KB, 0)], p == 0)]
        if p == 0:
            fl = [self.local_gen()]
        self.run_pass(63, mfq, 3, xf, fl, stop_reads=self.seqstart[("A4", p)], hooks={"bar": barhook},
                      late=(opt.get("kvload_at", 30), kvloads()), see_all=True, force_bar=61, tail=1600 + self.opt.get("slack", 2400))
        self.stamp("A2")
        if p == 0 and opt.get("r2st", 2) == 1:
            assert st2.get("done")
            w2 = self.w2_gen()
            while next(w2) != "idle":
                pass
        if opt.get("qbg", 1):
            self.bg_on(1600 + self.opt.get("slack", 2400))
        PQ0 = [TMP[0:4], TMP[4:8]]
        PQ1 = [TMP[8:12], TMP[12:16]]
        tq = [TMP[16:20], TMP[20:24]]
        for u in range(2):
            c2 = vC2 if u == 0 else vC2b
            for h in range(2):
                self.phi_pair(acc(5, u)[2 * h:2 * h + 2], c2, True, tq[0])
                self.phi_pair(acc(6, u)[2 * h:2 * h + 2], c2, True, tq[1])
                e.V("v_cvt_pk_bf16_f32", PQ0[u][2 * h], tq[0][0], tq[1][0])
                e.V("v_cvt_pk_bf16_f32", PQ0[u][2 * h + 1], tq[0][1], tq[1][1])
            for h in range(2):
                self.phi_pair(acc(7, u)[2 * h:2 * h + 2], c2, True, tq[h])
                e.V("v_cvt_pk_bf16_f32", PQ1[u][h], tq[h][0], tq[h][1])
            e.V("v_mov_b32", PQ1[u][2], 0)
            e.V("v_mov_b32", PQ1[u][3], 0)
        self.bg_off()
        self.stamp("qepi")
        kvsum()
        lok, lre = e.newlabel("kvok"), e.newlabel("kvretry")
        e.branch("s_cbranch_scc0", lok)
        e.cond_begin()
        e.S("s_mov_b32", sCnt, 0)
        e.label(lre)
        e.misc("s_sleep 4")
        for _ in kvloads():
            pass
        kvsum()
        e.branch("s_cbranch_scc0", lok)
        e.S("s_add_u32", sCnt, sCnt, 1)
        e.S("s_cmp_lt_u32", sCnt, 0x10000)
        e.branch("s_cbranch_scc1", lre)
        e.cond_end()
        e.label(lok)
        self.stamp("kvgo")
        if p == 0 and opt.get("r2st", 2) == 1:
            for _ in w2:
                pass

        self.bg_on(900 + self.opt.get("slack", 2400))
        e.V("v_cvt_pk_bf16_f32", TMP[16], PL[0][0], PL[0][1])
        e.V("v_cvt_pk_bf16_f32", TMP[17], PL[0][2], PL[0][3])
        e.ds_write(vKvDst, TMP[16:18])
        e.wait_all_lg()
        e.barrier()
        FR = [TMP[16 + 4 * i:20 + 4 * i] for i in range(10)]
        for T in range(3):
            for ks in range(2):
                e.ds_read(FR[T * 2 + ks], vL16, IMG + (T * 2 + ks) * KB)
        for ks in range(2):
            e.ds_read(FR[6 + ks], vZ01, ks * 64)
            e.ds_read(FR[8 + ks], vZ2, ks * 64)
        oa = lambda T, u: ACC[(T * 2 + u) * 4:(T * 2 + u) * 4 + 4]
        for T in (3, 4, 0, 1, 2):
            for u in range(2):
                e.mfma(oa(T, u), FR[2 * T], PQ0[u], 0)
        for T in (3, 4, 0, 1, 2):
            for u in range(2):
                e.mfma(oa(T, u), FR[2 * T + 1], PQ1[u], oa(T, u))
        e.S("s_add_u32", sA, sOo, OB[p])
        e.S("s_add_u32", sB, sOoh, OB[p])
        e.S("s_add_u32", sD, sOoh, OB[p] + 20 * KB)
        ops = []
        for u in range(2):
            for x in (oa(3, u)[0], oa(3, u)[2], oa(4, u)[0]):
                e.V("v_add_f32", x, vEps[0], x)
        for u in range(2):
            for x in (oa(3, u)[0], oa(3, u)[2], oa(4, u)[0]):
                e.V("v_rcp_f32", x, x)
        for u in range(2):
            for T in range(3):
                for h in range(2):
                    x = oa(T, u)[2 * h:2 * h + 2]
                    dn = oa(3, u)[2 * h:2 * h + 2] if T < 2 else oa(4, u)[0:2]
                    e.V("v_pk_mul_f32", x, x, dn, mods="op_sel_hi:[1,0]")
            o4 = TMP[16 + 8 * u:20 + 8 * u]
            o2 = TMP[20 + 8 * u:22 + 8 * u]
            for j in range(4):
                e.V("v_cvt_pk_bf16_f32", o4[j], oa(0, u)[j], oa(1, u)[j])
            for h in range(2):
                e.V("v_cvt_pk_bf16_f32", o2[h], oa(2, u)[2 * h], oa(2, u)[2 * h + 1])
            if u == 0:
                ops += self.gstore([(o4, vAx[u], sA, 0), (o2, vOh, sB, 0)], p == 0)
            else:
                ops += self.gstore([(o4, vAx[u], sA, 0), (o2, vOh, sD, 0)], p == 0)
        self.bg_off()
        self.stamp("A3")
        def shadow():
            if p == 0:
                self.unpack(RES, RES[10:20])
                self.unpack(B2F, B2F[10:20])
        self.handoff(4 * p + 2, ops, shadow, [(vAx[0], sOo, OB[p], 0), (vAx[1], sOo, OB[p], 0), (vOh, sOoh, OB[p], 0), (vOh, sOoh, OB[p] + 20 * KB, 0)])

    def phase64(self, p, kind):
        e = self.e
        opt = self.opt
        nks = 10 if kind == "O" else 27
        name = "A4" if kind == "O" else "B2"
        acc = lambda T, u: ACC[(u * 5 + T) * 4:(u * 5 + T) * 4 + 4]
        if kind == "O":
            al = self.ALoad(self, vAo, (sXr, OB[p]), nks)
        else:
            al = self.ALoad(self, vAh, (sHr, HB[p]), nks)
        al.upto(opt.get("adist", 3) - 1)
        xf = lambda ks, u: a(((ks % 20) * 2 + u) * 4, 4)
        if kind == "C":
            e.ds_read(TMP[50], vRF)
        i0 = self.seqstart[(name, p)]
        fb = 5 * nks - 3
        sst, sad = self.scratch(20, self.seq[i0 + fb][0])
        self.hold = sst
        stop = i0 + 5 * nks

        def mf(t, W, u):
            ks, T = divmod(t, 5)
            u = 1 - u
            c0 = RES[4 * T:4 * T + 4] if (kind == "O" and u == 0) else 0
            e.mfma(acc(T, u), W, xf(ks, u), acc(T, u) if ks else c0)

        def addr_gen():
            e.V("v_add_u32", TMP[0], sad, vXch); yield
            e.S("s_xor_b32", sA, sWave, 1); yield
            e.S("s_mul_i32", sA, sA, 5120); yield
            e.S("s_add_u32", sA, sA, sad); yield
            e.V("v_add_u32", TMP[1], sA, vL16); yield
            if kind == "C":
                e.V("v_mul_f32", TMP[50], TMP[50], TMP[50]); yield
            if not last:
                e.S("s_add_u32", sA, sOx, XB[xv]); yield
                e.S("s_add_u32", sB, sOxh, XB[xv]); yield
                e.S("s_add_u32", sD, sOst, STB[xv]); yield
        last = kind == "C" and p == 1
        xv = 2 * p + (1 if kind == "O" else 2)
        fl = [] if last else [self.touch_gen([(vXs, sOx, XB[xv], 0), (vXs, sOx, XB[xv], 1024), (vXh, sOxh, XB[xv], 0), (vStW, sOst, STB[xv], 0)])]
        fl = [self.delay(20, addr_gen())]
        self.run_pass(5 * nks, mf, 5, xf, fl, force_bar=fb, chunk=(opt.get("chunkO", 12) if kind == "O" else opt.get("chunkC", 8)), stop_reads=stop, aload=al,
                      mix=opt.get("mixO", 0) if kind == "O" else 0, tail=900 + self.opt.get("slack", 2400))
        self.stamp(name)
        self.bg_on(900 + self.opt.get("slack", 2400))
        assert sst + 20 <= self.freed
        for T in range(5):
            e.ds_write(TMP[0], acc(T, 1), T * KB)
        e.wait_all_lg()
        e.barrier()
        PT = TMP[4:24]
        for T in range(5):
            e.ds_read(PT[4 * T:4 * T + 4], TMP[1], T * KB)
        own = ACC[0:20]
        for h in range(10):
            x = own[2 * h:2 * h + 2]
            e.V("v_pk_add_f32", x, x, PT[2 * h:2 * h + 2])
            if kind == "C":
                e.V("v_pk_fma_f32", x, x, TMP[50:52], RES[2 * h:2 * h + 2], mods="op_sel_hi:[1,0,1]")
        PK = TMP[24:34]
        for a_ in range(2):
            for j in range(4):
                e.V("v_cvt_pk_bf16_f32", PK[4 * a_ + j], own[8 * a_ + j], own[8 * a_ + 4 + j])
        for h in range(2):
            e.V("v_cvt_pk_bf16_f32", PK[8 + h], own[16 + 2 * h], own[16 + 2 * h + 1])
        self.bg_off()
        if last:
            om = self.opt.get("outmod", "")
            e.bstore(PK[0:4], vOut, OUT, 0, 0, om)
            e.bstore(PK[4:8], vOut, OUT, 0, 64, om)
            e.bstore(PK[8:10], vOut4, OUT, 0, 128, om)
            self.stamp("end")
            return
        xv = 2 * p + (1 if kind == "O" else 2)
        ops = []
        ops += self.gstore([(PK[0:4], vXs, sA, 0), (PK[4:8], vXs, sA, 1024), (PK[8:10], vXh, sB, 0)])
        sm, sq, t0 = TMP[36], TMP[37], TMP[38]
        e.V("v_mov_b32", sm, 0)
        e.V("v_mov_b32", sq, 0)
        for j in range(10):
            e.V("v_dot2c_f32_bf16", sm, PK[j], vOne)
            e.V("v_dot2c_f32_bf16", sq, PK[j], PK[j])
        e.V("v_permlane32_swap_b32", sm, sq)
        e.V("v_add_f32", sm, sm, sq)
        e.V("v_mov_b32", t0, sm)
        e.V("v_permlane16_swap_b32", sm, t0)
        e.V("v_add_f32", sm, sm, t0)
        ops += self.gstore([(sm, vStW, sD, 0)])
        self.stamp(name + "epi")

        def shadow():
            self.unpack(RES, PK)
            if kind == "O":
                for h in range(10):
                    x = RES[2 * h:2 * h + 2]
                    e.V("v_pk_add_f32", x, x, B2F[2 * h:2 * h + 2])
        self.handoff(4 * p + (3 if kind == "O" else 5), ops, shadow,
                     [(vStW, sOst, STB[xv], 0), (vXs, sOx, XB[xv], 0), (vXs, sOx, XB[xv], 1024), (vXh, sOxh, XB[xv], 0)])

    def phaseB1(self, p):
        e = self.e
        opt = self.opt
        xv = 2 * p + 1
        acc = lambda T, u: ACC[(T * 2 + u) * 4:(T * 2 + u) * 4 + 4]
        xf = lambda ks, u: a((ks * 2 + u) * 4, 4) if ks < 20 else XE[u]
        al = self.ALoad(self, vAx, (sXr, XB[xv]), 20)
        al.upto(opt.get("adist", 3) - 1)
        self.stats_loads(xv)
        stop = self.seqstart[("B2", p)]
        g0 = self.seq[stop][0] // 8 + RB // 8
        self.stage_plan = list(range(g0, g0 + opt.get("nstage", 0)))

        def mf(t, W, u):
            ks, T = divmod(t, B1N)
            e.mfma(acc(T, u), W, xf(ks, u), acc(T, u) if ks else 0)
        tl = [(vHs, sOh, HB[p] + u * 54 * KB, a_ * KB) for a_ in range(3) for u in range(2)] + [(vHh, sOhh, HB[p] + u * 54 * KB, 0) for u in range(2)]
        sg = self.delay(opt.get("stdelay", 24), self.stats_gen(False))
        self.run_pass(21 * B1N, mf, B1N, xf, [sg, self.touch_gen(tl, p == 0)], stop_reads=stop, aload=al, must=sg, mix=opt.get("mixB", 0), tail=700 * (7 - B1N) + 300 + self.opt.get("slack", 2400))
        self.stamp("B1a")
        ops = []

        def epi(pairs, single):
            n = 0
            for u in range(2):
                sb = sD if u == 0 else sE
                e.S("s_add_u32", sb, sOh, HB[p] + u * 54 * KB); yield
                for a_ in pairs:
                    o = TMP[16 + 4 * (n % 4):20 + 4 * (n % 4)]
                    n += 1
                    for j in range(4):
                        x, y = acc(2 * a_, u)[j], acc(2 * a_ + 1, u)[j]
                        e.V("v_mul_f32_e64", x, x, f"|{x}|"); yield
                        e.V("v_mul_f32_e64", y, y, f"|{y}|"); yield
                        e.V("v_cvt_pk_bf16_f32", o[j], x, y); yield
                        e.V("v_pk_max_i16", o[j], o[j], 0); yield
                    ops.extend(self.gstore([(o, vHs, sb, a_ * KB)], p == 0)); yield
            if single:
                for u in range(2):
                    o = TMP[32 + 2 * u:34 + 2 * u]
                    for j in range(4):
                        x = acc(6, u)[j]
                        e.V("v_mul_f32_e64", x, x, f"|{x}|"); yield
                    for h in range(2):
                        e.V("v_cvt_pk_bf16_f32", o[h], acc(6, u)[2 * h], acc(6, u)[2 * h + 1]); yield
                        e.V("v_pk_max_i16", o[h], o[h], 0); yield
                e.S("s_add_u32", sA, sOhh, HB[p])
                e.S("s_add_u32", sB, sOhh, HB[p] + 54 * KB)
                ops.extend(self.gstore([(TMP[32:34], vHh, sA, 0), (TMP[34:36], vHh, sB, 0)], p == 0))
                yield

        def mf2(t, W, u):
            ks, T = divmod(t, 7 - B1N)
            e.mfma(acc(B1N + T, u), W, xf(ks, u), acc(B1N + T, u) if ks else 0)
        self.run_pass(21 * (7 - B1N), mf2, 7 - B1N, xf, [epi(list(range(B1N // 2)), False)], stop_reads=stop, force_bar=21 * (7 - B1N) - 2, over=opt.get("b1over", 0), chunk=opt.get("chunkB", 16), tail=300 + self.opt.get("slack", 2400))
        self.stamp("B1b")
        for _ in epi(list(range(B1N // 2, 3)), True):
            pass
        self.stamp("B1epi")
        self.handoff(4 * p + 4, ops, None, tl)

    def gen(self):
        e = self.e
        e.reset_state()
        self.cInvD = s(63)
        self.dmaf = self.dma_filler()
        self.prologue()
        if self.opt.get("stamps"):
            e.memtime(sTm, True)
            e.V("v_writelane_b32", v(53), sTm[0], 62)
        self.startup()
        stop = self.opt.get("stop", 99)
        n = 0
        for p in range(2):
            for f in (lambda: self.phaseA(p), lambda: self.phase64(p, "O"), lambda: self.phaseB1(p), lambda: self.phase64(p, "C")):
                if n < stop:
                    f()
                n += 1
        if self.opt.get("stamps"):
            e.wait_all_vm()
            e.memtime(sTm, True)
            e.V("v_writelane_b32", v(53), sTm[0], 63)
            e.S("s_lshl_b32", sA, s(2), 2)
            e.S("s_add_u32", sA, sA, sWave)
            e.S("s_lshl_b32", sA, sA, 8)
            e.S("s_add_u32", sA, sA, STAMP)
            e.V("v_lshlrev_b32", TMP[1], 2, vLane)
            e.bstore(v(53), TMP[1], WS, sA)
        if self.opt.get("dbgst") is not None:
            skip = e.newlabel("nodbg")
            e.S("s_lshl_b32", sA, s(2), 2)
            e.S("s_add_u32", sA, sA, sWave)
            e.S("s_cmp_lg_u32", sA, 4 * self.opt.get("dbgwg", 77))
            e.branch("s_cbranch_scc1", skip)
            e.sload(s(84, 2), s(0, 2), 72)
            e.V("v_readlane_b32", sB, v(53), 0)
            e.V("v_subrev_u32", TMP[0], sB, v(53))
            e.V("v_subrev_u32", TMP[1], self.opt["dbgst"], vLane)
            e.V("v_cmp_gt_u32", VCC, 64 - self.opt["dbgst"], TMP[1])
            e.V("v_lshlrev_b32", TMP[1], 2, TMP[1])
            e.wait_all_lg()
            e.S("s_and_saveexec_b64", s(86, 2), VCC)
            e.misc(f"global_store_dword {TMP[1]}, {TMP[0]}, s[84:85]")
            e.S("s_mov_b64", EXEC, -1)
            e.label(skip)
        if self.opt.get("spin"):
            e.wait_all_vm()
            e.V("v_readfirstlane_b32", s(86), v(53))
            e.label("spin_loop")
            e.misc("s_memrealtime s[88:89]")
            e.misc("s_waitcnt lgkmcnt(0)")
            e.misc("s_sub_u32 s88, s88, s86")
            e.misc(f"s_cmp_lt_u32 s88, {self.opt['spin']}")
            e.misc("s_cbranch_scc1 spin_loop")
        e.S("s_add_u32", sA, s(2), sWave)
        e.S("s_cmp_lg_u32", sA, 0)
        e.branch("s_cbranch_scc1", "main_end")
        e.S("s_add_u32", sA, sBase, 16)
        e.V("v_mov_b32", TMP[0], sA)
        e.V("v_mov_b32", TMP[1], EPOCH)
        e.S("s_mov_b64", EXEC, 1)
        e.bstore(TMP[0], TMP[1], WS, 0)
        e.label("main_end")
        e.misc("s_endpgm")
```

```python
import os
REUSE = int(os.environ.get('REUSE', '1'))
S, D, F, H = 2048, 640, 1728, 32
KB = 1024

FLG = 0
FLG_RL, FLG_RG, FLG_C, FLG_X = 0, 4096, 8192, 12288
EPOCH = 16384
FLG_BYTES = 16384
NA, NO, NB, NC = 168, 104, 152, 272
WA = 65536
WO = WA + 16 * NA * KB
WB = WO + 8 * NO * KB
WC = WB + 16 * NB * KB
XSZ = S * D * 2
X0 = WC + 8 * NC * KB
XB = [X0 + (0 if REUSE else i) * XSZ for i in range(4)]
STSZ = 16 * 8192
ST0 = X0 + (1 if REUSE else 4) * XSZ
STB = [ST0 + (0 if REUSE else i) * STSZ for i in range(4)]
O0 = ST0 + (1 if REUSE else 4) * STSZ
OB = [O0 + (0 if REUSE else i) * XSZ for i in range(2)]
HSZ = S * F * 2
H0 = O0 + (1 if REUSE else 2) * XSZ
HB = [H0 + (0 if REUSE else i) * HSZ for i in range(2)]
KVSZ = 1792
KV0 = H0 + (1 if REUSE else 2) * HSZ
KVB = [KV0 + i * 256 * KVSZ for i in range(2)]
STAMP = KV0 + 2 * 256 * KVSZ
STAMPSZ = 1024 * 256
PSTAMP = STAMP + STAMPSZ
WS_USED = PSTAMP + 32768


def f0(c):
    return 112 * c - 16 * max(0, c - 12)


def xrow(ks, g, i):
    if ks < 16:
        return 80 * (ks >> 1) + 32 * (ks & 1) + 8 * g + i
    q = ks - 16
    return 160 * q + 64 + 80 * (g >> 1) + 8 * (g & 1) + i


def orow(ks, g, i):
    if ks < 16:
        return 40 * ks + 8 * g + i
    q = ks - 16
    return 160 * q + 32 + 40 * g + i


def hrow(ks, g, i):
    if ks < 48:
        return f0(ks // 3) + 32 * (ks % 3) + 8 * g + i
    q = ks - 48
    return 224 * q + 96 + 112 * (g >> 1) + 8 * (g & 1) + i


def acol(c, T, n):
    if T == 0:
        return 640 + 40 * c + n
    if T == 1:
        return 640 + 40 * c + 20 + n
    if T == 2:
        return 40 * c + (640 if n < 8 else 1280) + 16 + ((n >> 2) & 1) * 20 + (n & 3)
    if T == 3:
        return 1280 + 40 * c + n
    if T == 4:
        return 1280 + 40 * c + 20 + n
    if T in (5, 6):
        return 40 * c + 2 * n + (T - 5)
    return 40 * c + 32 + n if n < 8 else None


def bcol(c, T, n):
    if T < 6:
        return f0(c) + 32 * (T >> 1) + (T & 1) + 2 * n
    return f0(c) + 96 + n if c < 12 else None


def ocol(cg, T, n):
    if T < 4:
        return 80 * cg + 32 * (T >> 1) + (T & 1) + 2 * n
    return 80 * cg + 64 + n


def ablk(ks, T):
    return ks * 5 + T if T < 5 else 105 + ks * 3 + (T - 5)


B1N = int(os.environ.get('B1N', '4'))


def bblk(ks, T):
    return ks * B1N + T if T < B1N else 21 * B1N + ks * (7 - B1N) + (T - B1N)


def oblk(ks, T):
    return 2 * (5 * (ks % 10) + T) + ks // 10


def cblk(ks, T):
    return 2 * (5 * (ks % 27) + T) + ks // 27


if __name__ == "__main__":
    print(hex(WA), hex(WO), hex(WB), hex(WC), hex(X0), hex(ST0), hex(O0), hex(H0), hex(KV0), hex(STAMP), WS_USED)
    assert sorted(xrow(k, g, i) for k in range(20) for g in range(4) for i in range(8)) == list(range(640))
    assert sorted(orow(k, g, i) for k in range(20) for g in range(4) for i in range(8)) == list(range(640))
    assert sorted(hrow(k, g, i) for k in range(54) for g in range(4) for i in range(8)) == list(range(1728))
    assert sorted(x for c in range(16) for T in range(8) for n in range(16) for x in [acol(c, T, n)] if x is not None) == list(range(1920))
    assert sorted(x for c in range(16) for T in range(7) for n in range(16) for x in [bcol(c, T, n)] if x is not None) == list(range(1728))
    assert sorted(ocol(c, T, n) for c in range(8) for T in range(5) for n in range(16)) == list(range(640))
    print("ok")
```

```python
from asmgen import *
from layout import *
from gen_prep import mk_srd, allreduce_g
import math

BIG = 0x40000000
LOG2E = 1.4426950408889634
LN2 = 0.6931471805599453

IMG = 0
ZT = 6144
RST = 6400
DUMMY = 6912
RING = 8192
RB = 152
LDS_BYTES = RING + RB * KB
FI = 8

WS, OUT, XIN, SB2 = s(8, 4), s(12, 4), s(16, 4), s(20, 4)
sWave, sR, sC, sCG, sRH, sKH, sW2048 = [s(24 + i) for i in range(7)]
sSeg = {"A": s(31), "O": s(32), "B": s(33), "C": s(34)}
sXr, sHr, sSTr, sFRL, sFRG, sFC = [s(35 + i) for i in range(6)]
sA, sB, sD, sE, sDm, sLd = [s(41 + i) for i in range(6)]
sMaskV = s(48, 2)
sCnt = s(50)
sTT = s(51)
sTm = s(52, 2)
sOx, sOxh, sOst, sOo, sOoh, sOh, sOhh, sKv = [s(54 + i) for i in range(8)]
sLocal, sX1 = s(47), s(62)
sStg = s(3)
vStg = v(55)
sNan = s(90, 2)
sBase = s(92)
sOk = s(94, 2)
SR1, SR2 = s(84, 4), s(96, 4)
PP = s(64, 16)
pOut, pWs = s(80, 2), s(82, 2)
vDum = v(49)

vLane, vN, vG, vL16 = v(1), v(2), v(3), v(4)
vW = [v(5), v(6), v(7)]
vK = [v(8), v(9), v(10)]
vDma = v(11)
vAx = [v(12), v(13)]
vAo = [v(14), v(15)]
vAh = [v(16), v(17)]
vSt, vStW, vKvSrc, vKvDst, vT16, vZ01, vZ2, vRT, vRW, vRF, vOut, vOut4, vOne = [v(18 + i) for i in range(13)]
vOh, vXs, vXh, vHs, vHh, vFl, vPollR, vPollC, vXch = [v(31 + i) for i in range(9)]
XE = [v(40, 4), v(44, 4)]
vC2 = v(48, 2)
vC2b = v(50, 2)
vLn2 = v(52, 2)
vEps = v(54, 2)
RT = v(56, 8)
ACC = v(64, 64)
FIFO = v(128, 4 * FI)
RES = v(160, 20)
B2F = v(180, 20)
TMP = v(200, 56)


class Main:
    def __init__(self, e, opt):
        self.e = e
        self.opt = opt
        self.kname = opt["kname"]
        self.nstamp = 0
        self.segs = []
        pos = 0
        for p in range(2):
            for k, n in (("A", NA), ("O", NO), ("B", NB), ("C", NC)):
                self.segs.append((k, pos, n))
                pos += n
        self.total = pos
        self.ngroups = pos // 8
        self.issued = 0
        self.dmaop = {}
        self.freed = 0
        self.hold = None
        self.visible = 0
        self.seq = []
        self.seqstart = {}
        for p in range(2):
            b = self.segs[4 * p + 0][1]
            self.seqstart[("A1", p)] = len(self.seq)
            self.seq += [(b + i, "W") for i in range(105)]
            self.seqstart[("A2", p)] = len(self.seq)
            self.seq += [(b + 105 + i, "W") for i in range(63)]
            b = self.segs[4 * p + 1][1]
            self.seqstart[("A4", p)] = len(self.seq)
            self.seq += [(b + 2 * i, "K") for i in range(50)]
            b = self.segs[4 * p + 2][1]
            self.seqstart[("B1a", p)] = len(self.seq)
            self.seq += [(b + i, "W") for i in range(21 * B1N)]
            self.seqstart[("B1b", p)] = len(self.seq)
            self.seq += [(b + 21 * B1N + i, "W") for i in range(147 - 21 * B1N)]
            b = self.segs[4 * p + 3][1]
            self.seqstart[("B2", p)] = len(self.seq)
            self.seq += [(b + 2 * i, "K") for i in range(135)]
        self.rd = 0
        self.cons = 0
        self.lastbar = 0
        self.gate = NA // 8
        self.stage_plan = []
        self.staged = {}
        self.stage_mid = None
        self.cap_hold = 1 << 20
        self.deferred = []
        self.own_end_phase = 0
        self.cap_ops = []
        self.cap_next = 1 << 20
        self.warn = []
        self.model = []
        self.own_end = 0
        self.deadline = lambda: 1 << 30

    def stamp(self, name):
        self.model.append((name, self.e.T))
        if not self.opt.get("stamps"):
            return
        e = self.e
        e.wait_all_lg()
        e.memtime(sTm)
        e.V("v_writelane_b32", v(53), sTm[0], self.nstamp)
        self.opt.setdefault("stampnames", []).append(name)
        self.nstamp += 1
        assert self.nstamp <= 62

    def endpos(self, i):
        p, k = self.seq[i]
        return p + (2 if k == "K" else 1)

    def ldsaddr(self, pos):
        return RING + (pos % RB) * KB

    def can_issue(self):
        if self.issued >= min(self.ngroups, self.gate):
            return False
        lim = self.freed if self.hold is None else min(self.freed, self.hold)
        lim = min(lim, self.cap_hold)
        return 8 * (self.issued + 1) <= lim + RB

    def dma_group(self):
        e = self.e
        g = self.issued
        self.issued += 1
        pos = 8 * g
        if g in self.stage_plan:
            self.stage_plan = []
        if g in self.staged and self.opt.get("defer", 1) and 8 * g >= self.own_end_phase:
            self.deferred.append(g)
            self.dmaop[g] = None
            yield
            return
        if g in self.staged:
            self.finish_stage()
            k = self.staged[g]
            ad = self.ldsaddr(pos)
            e.V("v_add_u32", vStg, ad, vDma)
            yield
            e.ds_write(vStg, a(160 + 8 * k, 4), 0)
            yield
            self.dmaop[g] = e.ds_write(vStg, a(164 + 8 * k, 4), 1024)
            yield
            return
        for k, b, n in self.segs:
            if b <= pos < b + n:
                break
        e.S("s_add_u32", M0, sW2048, self.ldsaddr(pos))
        yield
        e.S("s_add_u32", sDm, sSeg[k], (pos - b) * KB)
        yield
        md = "nt" if k in self.opt.get("ntseg", "") else ""
        e.dma(vDma, WS, sDm, 0, md, cls=self.dcls(k))
        yield
        self.dmaop[g] = e.dma(vDma, WS, sDm, 1024, md, cls=self.dcls(k))
        yield

    def capture_gen(self, first, n):
        e = self.e
        self.cap_hold = self.cap_next = 8 * first
        g1 = self.segs[4][1] // 8
        for k in range(n):
            g = first + k
            spins = 0
            while self.visible < 8 * (g + 1):
                spins += 1
                assert spins < 100000
                yield "idle"
            e.V("v_add_u32", vStg, self.ldsaddr(8 * g), vDma); yield
            e.ds_read(a(160 + 8 * k, 4), vStg, 0); yield
            self.cap_ops.append(e.ds_read(a(164 + 8 * k, 4), vStg, 1024))
            self.staged[g1 + g] = k
            self.cap_next = 8 * (g + 1) if k < n - 1 else 1 << 20
            yield

    def stage_group(self):
        e = self.e
        g = self.stage_plan.pop(0)
        k = len(self.staged) % 12
        self.staged[g] = k
        for sk, b, n in self.segs:
            if b <= 8 * g < b + n:
                break
        e.S("s_add_u32", sStg, sSeg[sk], (8 * g - b) * KB)
        yield
        e.bload(a(160 + 8 * k, 4), vDma, WS, sStg, 0, cls=self.dcls(sk))
        yield
        e.bload(a(164 + 8 * k, 4), vDma, WS, sStg, 1024, cls=self.dcls(sk))
        self.stage_mid = None
        yield

    def restore(self, n):
        e = self.e
        for g in self.deferred[:n]:
            k = self.staged[g]
            e.V("v_add_u32", vStg, self.ldsaddr(8 * g), vDma)
            e.ds_write(vStg, a(160 + 8 * k, 4), 0)
            self.dmaop[g] = e.ds_write(vStg, a(164 + 8 * k, 4), 1024)
        self.deferred = self.deferred[n:]

    def finish_stage(self):
        while self.stage_mid:
            next(self.stage_mid)

    def stage_step(self):
        e = self.e
        if e.outstanding() >= self.opt.get("qmax", 13):
            return False
        if not self.stage_mid:
            if not self.stage_plan or self.can_issue() or self.mid_group():
                return False
            c = self.dcls("C")
            if e.predict(c) + c[2] > self.deadline():
                return False
            self.stage_mid = self.stage_group()
        next(self.stage_mid)
        return True

    def dcls(self, k):
        return (750, 80, self.opt.get("svcAB", 150)) if k in "AB" else (750, self.opt.get("svcOC", 92), 75)

    def dma_ok(self):
        e = self.e
        if self.mid_group():
            g = self.issued - 1
        elif self.can_issue():
            g = self.issued
        else:
            return False
        if g in self.staged:
            return True
        if e.outstanding() >= self.opt.get("qmax", 13):
            return False
        if self.mid_group() or 8 * g < self.own_end:
            return True
        c = self.dcls(self.segof(8 * g))
        return e.predict(c) + c[2] <= self.deadline()

    def dma_filler(self):
        while True:
            if self.can_issue():
                for _ in self.dma_group():
                    yield True
            else:
                yield False

    def flush_dma_partial(self):
        while self.issued > 0 and (self.issued - 1) not in self.dmaop:
            next(self.dmaf)

    def dma_all(self):
        self.flush_dma_partial()
        while self.can_issue():
            for _ in self.dma_group():
                pass

    def ring_barrier(self, need_idx, extra_ops=(), free_all=False):
        e = self.e
        need_idx = min(need_idx, len(self.seq))
        upto = self.endpos(need_idx - 1) if need_idx > 0 else 0
        g = (upto + 7) // 8
        self.flush_dma_partial()
        while self.issued < g:
            assert self.can_issue(), ("ring deadlock", self.issued, g, self.freed, self.hold)
            self.warn.append(f"forced dma group {self.issued} at seq {self.rd}")
            for _ in self.dma_group():
                pass
        ops = list(extra_ops)
        for gg in range(self.visible // 8, g):
            assert gg not in self.deferred, gg
            ops.append(self.dmaop[gg])
        e.wait_ops(ops + self.cap_ops)
        self.cap_ops = []
        e.barrier()
        self.cap_hold = self.cap_next
        self.visible = max(self.visible, 8 * g)
        self.freed = self.seq[self.cons][0] if self.cons < len(self.seq) else self.total
        self.lastbar = self.rd

    def issue_read(self):
        e = self.e
        i = self.rd
        if i >= len(self.seq):
            return
        pos, k = self.seq[i]
        assert self.endpos(i) <= self.visible, ("read of invisible block", i, pos, self.visible)
        ad = self.ldsaddr(pos)
        base = (vW if k == "W" else vK)[ad >> 16]
        slot = i % FI
        e.ds_read(FIFO[4 * slot:4 * slot + 4], base, ad & 0xffff)
        self.rd += 1

    def prime(self):
        while self.rd < self.cons + FI and self.rd < len(self.seq) and self.endpos(self.rd) <= self.visible:
            self.issue_read()

    def run_pass(self, n, mf, ntile, xf, fillers=(), chunk=24, stop_reads=None, hooks=None,
                 aload=None, vrate=0.5, amix=(1, 0), over=0, force_bar=None, late=None, see_all=False, tail=2000, mix=0, must=None):
        e = self.e
        fillers = list(fillers)
        lim = stop_reads if stop_reads is not None else len(self.seq)
        st = {"next": 0, "k": 0, "t": 0}
        self.own_end = self.own_end_phase = self.endpos(lim - 1)
        self.deadline = lambda: e.T + (n - st["t"]) * 33 + tail

        i_first = self.cons

        def dma_need():
            g = self.issued - 1 if self.mid_group() else self.issued
            for i in range(self.cons, lim):
                if self.endpos(i) > 8 * g:
                    return i - i_first - FI - chunk
            return 1 << 20

        def one_vmem():
            na, nd = amix
            n0 = len(e.vm)
            if st.get("late"):
                if e.T < st["next"]:
                    return False
                try:
                    next(st["late"])
                except StopIteration:
                    st["late"] = None
                    return False
            else:
                na_ = (aload.n // 2) * ntile if (aload is not None and not aload.done) else 1 << 21
                nd_ = dma_need() if (self.mid_group() or self.can_issue()) else 1 << 22
                run = self.opt.get("run", 0)
                if run and na_ < 1 << 21 and nd_ < 1 << 20:
                    if st.get("cur") == "a" and na_ - run <= nd_:
                        nd_ = max(nd_, na_)
                    elif st.get("cur") == "d" and nd_ - run < na_:
                        na_ = max(na_, nd_ + 1)
                    st["cur"] = "a" if na_ <= nd_ else "d"
                urgent = min(na_, nd_) - st["t"] <= self.opt.get("horizon", 24) + run
                if e.T < st["next"] and not urgent:
                    return False
                if mix and na_ < 1 << 21 and st["k"] % mix == mix - 1 and na_ - st["t"] > self.opt.get("mixh", 10) and self.dma_ok():
                    next(self.dmaf)
                elif na_ <= nd_ and na_ < 1 << 21:
                    if e.outstanding() >= self.opt.get("qmax", 13) and not urgent:
                        return False
                    if aload.n // 2 >= st["t"] // ntile + aload.win - 1:
                        return False
                    aload.step()
                elif nd_ < 1 << 22 and (urgent or self.dma_ok()):
                    next(self.dmaf)
                elif not self.stage_step():
                    return False
            if len(e.vm) > n0:
                st["k"] += 1
                st["next"] = e.T + self.opt.get("vgap", 24)
            return True

        def fill(budget):
            while budget > 0:
                n0 = e.ninst
                did = one_vmem()
                if not did:
                    for f in list(fillers):
                        try:
                            if next(f) == "idle":
                                continue
                            did = True
                            break
                        except StopIteration:
                            fillers.remove(f)
                if not did:
                    return
                budget -= e.ninst - n0

        def waits_for(t):
            regs = []
            for tt in (t, t + 1):
                if tt < n:
                    ks = tt // ntile
                    if aload is not None:
                        aload.upto(ks)
                    idx = self.cons + (tt - t)
                    if idx < self.rd:
                        regs += FIFO[4 * (idx % FI):4 * (idx % FI) + 4].regs()
                    regs += xf(ks, 0).regs() + xf(ks, 1).regs()
            return e._pending(regs)

        e.wait_ops(waits_for(0))
        if aload is not None:
            self.stamp("1st")
            self.warn.append(f"fill {8 * self.issued - self.seq[self.cons][0]}")
        for t in range(n):
            if aload is not None and self.opt.get("midstamp") and t == n // 2:
                self.stamp("half")
            i = self.cons
            assert self.rd > i, ("fifo underrun", i)
            W = FIFO[4 * (i % FI):4 * (i % FI) + 4]
            st["t"] = t
            if must is not None and t == n - ntile - 2:
                for _ in must:
                    self.warn.append("must drained late")
            if t == int(n * self.opt.get("cfrac", 0.8)) and n > 30:
                fillers.insert(0, self.code_touch_gen())
            if hooks and hooks.get("add"):
                g_ = hooks["add"](t)
                if g_:
                    fillers.append(g_)
            ov = over if fillers else 0
            mf(t, W, 0)
            bar = self.rd < lim and (self.endpos(self.rd) > self.visible or self.rd - self.lastbar >= chunk)
            bar = bar or t == force_bar
            if late and t >= late[0] and not st.get("lateon") and (aload is None or aload.done) and 8 * self.issued >= min(self.own_end, self.endpos(min(i_first + n + FI, lim) - 1)) and not self.mid_group():
                st["late"] = late[1]
                st["lateon"] = True
                self.warn.append(f"late at {t}")
            if bar:
                ex, after = [], None
                if hooks and hooks.get("bar"):
                    ex, after = hooks["bar"](t)
                self.ring_barrier(lim if see_all else min(self.rd + chunk, lim), ex)
                if after:
                    after()
            else:
                fill(2 + ov)
            mf(t, W, 1)
            self.cons += 1
            used = 0
            if self.rd < lim:
                self.issue_read()
                used = 1
            pend = waits_for(t + 1) if (t % 2 == 1 and t + 1 < n) else []
            fill(2 + ov - used - (1 if pend else 0))
            if pend:
                e.wait_ops(waits_for(t + 1))
        if late and not st.get("lateon"):
            st["late"] = late[1]
        for f in fillers + ([st["late"]] if st.get("late") else []):
            for _ in f:
                pass

    def segof(self, pos):
        for k, b, n in self.segs:
            if b <= pos < b + n:
                return k
        return "O"

    def mid_group(self):
        return self.issued > 0 and (self.issued - 1) not in self.dmaop

    def dma_burst(self, maxgroups=99):
        e = self.e
        self.flush_dma_partial()
        gs = []
        while self.can_issue() and len(gs) < maxgroups:
            gs.append(self.issued)
            self.issued += 1
        for w in (1, 2, 3):
            mine = gs[w - 1::3]
            if not mine:
                continue
            skip = e.newlabel("noburst")
            e.S("s_cmp_lg_u32", sWave, w)
            e.branch("s_cbranch_scc1", skip)
            e.cond_begin()
            for g in mine:
                pos = 8 * g
                for k, b, n in self.segs:
                    if b <= pos < b + n:
                        break
                for h in range(2):
                    e.S("s_mov_b32", M0, self.ldsaddr(pos) + h * 4096)
                    e.S("s_add_u32", sDm, sSeg[k], (pos - b) * KB + h * 4096)
                    for q in range(4):
                        self.dmaop[g] = e.dma(vL16, WS, sDm, q * 1024)
            e.cond_end()
            e.label(skip)

    def prologue(self):
        e = self.e
        e.S("s_cmp_ge_u32", s(2), 256)
        e.branch("s_cbranch_scc1", "main_end")
        if self.opt.get("stamps"):
            e.V("v_mov_b32", v(53), 0)
        self.stamp("t0")
        if self.opt.get("spin"):
            e.memtime(sTm, True)
            e.V("v_mov_b32", v(53), sTm[0])
        e.sload(PP, s(0, 2), 0)
        e.sload(pOut, s(0, 2), 64)
        e.sload(pWs, s(0, 2), 80)
        T0, T1, T2, T3 = TMP[48], TMP[49], TMP[50], TMP[51]
        e.S("s_getpc_b64", s(88, 2))
        e.label("main_pc")
        e.V("v_lshlrev_b32", T2, 5, v(0))
        e.S("s_sub_u32", s(88), s(88), "main_pc-" + self.kname)
        e.S("s_subb_u32", s(89), s(89), 0)
        e.misc(f"global_load_dword {vDum}, {T2}, s[88:89]")
        e._vm([], (2000, 30, 0))
        e.V("v_lshrrev_b32", T0, 6, v(0))
        e.V("v_and_b32", vLane, 63, v(0))
        e.V("v_readfirstlane_b32", sWave, T0)
        e.S("s_lshr_b32", sB, s(2), 3)
        e.S("s_mul_i32", sB, sB, 1792)
        e.S("s_add_u32", sB, sB, 8192)
        e.V("v_lshl_add_u32", T2, v(0), 3, sB)
        e.V("v_min_u32", T2, self.opt.get("code_bytes", 32768) - 4, T2)
        e.misc(f"global_load_dword {vDum}, {T2}, s[88:89]")
        e._vm([], (2000, 30, 0))
        e.V("v_lshlrev_b32", vL16, 4, vLane)
        e.V("v_and_b32", vN, 15, vLane)
        e.V("v_lshrrev_b32", vG, 4, vLane)
        self.vBig = TMP[52]
        e.V("v_mov_b32", self.vBig, BIG)
        e.S("s_and_b32", sA, s(2), 7)
        e.S("s_lshl_b32", sA, sA, 1)
        e.S("s_lshr_b32", sB, s(2), 7)
        e.S("s_add_u32", sR, sA, sB)
        e.S("s_bfe_u32", sC, s(2), (4 << 16) | 3)

    def gather(self, raw, srd, sstride, vaddr, srow, n=8):
        e = self.e
        e.S("s_mul_i32", sLd, srow, sstride)
        for i in range(n):
            e.bload(raw[i], vaddr, srd, sLd, 0, w="ushort", cls=(2500, 32, 0))
            if i < n - 1:
                e.S("s_add_u32", sLd, sLd, sstride)

    def pack(self, raw, n=4):
        for i in range(n):
            self.e.V("v_lshl_or_b32", raw[i], raw[2 * i + 1], 16, raw[2 * i])

    def colsum(self, regs, ex, vs, vt):
        e = self.e
        e.V("v_mov_b32", vs, 0)
        for r_ in regs:
            e.V("v_dot2c_f32_bf16", vs, r_, vOne)
        allreduce_g(e, vs, vt)
        e.V("v_sub_f32", vs, 0, vs)
        e.V("v_cvt_pk_bf16_f32", vt, vs, vs)
        e.V("v_lshlrev_b32", vt, 16, vt)
        e.V("v_sub_f32", vt, vs, vt)
        e.V("v_cvt_pk_bf16_f32", ex[0], vs, vt)
        e.V("v_and_b32", ex[1], "0xffff", ex[0])

    def startup(self):
        e = self.e
        vBig = self.vBig
        RAW1, EX = ACC[0:20], ACC[20:24]
        RAW2 = TMP[8:40]
        vCol, vReg, vLeft, vT0, vT1, vSum, vLd = [FIFO[i] for i in range(7)]
        vA0, vA1, vA2, vSt2, vBias = RES[8], RES[9], B2F[8], B2F[9], TMP[50]
        sT, sP = s(54), s(55)
        sStr = s(56)
        XJ = [RES[0:4], RES[4:8], B2F[0:4]]
        XD, XA, XB_ = B2F[4], ACC[32], ACC[33]
        XM = [s(57), s(58), s(59)]
        T0, T1, T2, T3 = TMP[48], TMP[49], TMP[50], TMP[51]
        e.V("v_lshrrev_b32", T1, 3, vLane)
        e.V("v_and_b32", T3, 7, vLane)
        e.V("v_mul_u32_u24", T0, 1280, T3)
        e.V("v_lshl_add_u32", XA, T1, 4, T0)
        e.V("v_lshrrev_b32", T2, 4, vLane)
        e.V("v_lshl_add_u32", XB_, T2, 7, XA)
        e.V("v_lshlrev_b32", XD, 8, T1)
        e.V("v_lshl_add_u32", XD, T3, 4, XD)
        e.S("s_lshl_b32", sE, sR, 4)
        e.S("s_add_u32", sE, sE, sC)
        e.S("s_mul_i32", sE, sE, 8 * 1280)
        e.S("s_mul_i32", sD, sWave, 3)
        mk_srd(e, XIN, PP[0:2], XSZ)
        for k in range(3):
            e.S("s_add_u32", XM[k], sD, k)
            e.S("s_cmp_ge_u32", XM[k], 8)
            e.S("s_cselect_b64", VCC, -1, 0)
            e.S("s_cselect_b32", sA, 40, 10)
            e.S("s_cselect_b32", sB, 8 - 8 * 40, 0)
            e.V("v_cndmask_b32", T0 if k != 1 else T1, XA, XB_, VCC)
            e.S("s_mul_i32", sA, sA, XM[k])
            e.S("s_add_u32", sA, sA, sB)
            e.S("s_lshl_b32", sA, sA, 4)
            e.S("s_add_u32", sA, sA, sE)
            e.S("s_cmp_ge_u32", XM[k], 10)
            e.S("s_cselect_b32", sA, BIG, sA)
            e.S("s_cselect_b32", XM[k], BIG // 2048, XM[k])
            e.bload(XJ[k], T0 if k != 1 else T1, XIN, sA, 0, cls=(2000, 100, 0))
        self.stamp("issx")
        e.S("s_lshr_b32", sP, sR, 1)
        e.S("s_and_b32", sT, sR, 1)
        e.S("s_lshl_b32", sT, sT, 2)
        e.S("s_add_u32", sT, sT, sWave)
        e.S("s_mov_b32", s(4), (656 << 20) | (660 << 10) | 640)
        e.S("s_mov_b32", s(5), 0)
        e.S("s_mul_i32", sA, sT, 10)
        e.S("s_lshr_b32", sA, s(4), sA)
        e.S("s_and_b32", sA, sA, 1023)
        for t, val in ((3, 1280), (4, 1300), (5, 0), (6, 1), (7, 32)):
            e.S("s_cmp_eq_u32", sT, t)
            e.S("s_cselect_b32", sA, val, sA)
        e.S("s_mul_i32", sB, sC, 40)
        e.S("s_add_u32", sA, sA, sB)
        e.V("v_add_u32", vCol, sA, vN)
        e.V("v_add_u32", vT0, vCol, vN)
        e.S("s_sub_u32", sB, sT, 5)
        e.S("s_cmp_lt_u32", sB, 2)
        e.S("s_cselect_b64", VCC, -1, 0)
        e.V("v_cndmask_b32", vCol, vCol, vT0, VCC)
        e.V("v_lshrrev_b32", vT0, 3, vN)
        e.V("v_mul_u32_u24", vT0, 632 - 32, vT0)
        e.V("v_lshrrev_b32", vT1, 2, vN)
        e.V("v_lshl_add_u32", vT0, vT1, 4, vT0)
        e.V("v_add3_u32", vT0, vT0, vN, sA)
        e.S("s_cmp_eq_u32", sT, 2)
        e.S("s_cselect_b64", VCC, -1, 0)
        e.V("v_cndmask_b32", vCol, vCol, vT0, VCC)
        e.V("v_lshlrev_b32", vCol, 1, vCol)
        e.S("s_cmp_eq_u32", sT, 7)
        e.S("s_cselect_b32", sB, 8, 16)
        e.V("v_cmp_le_u32", VCC, sB, vN)
        e.S("s_mov_b32", sStr, 3840)
        e.V("v_cndmask_b32", vCol, vCol, vBig, VCC)
        e.S("s_mov_b32", sD, 8 * 3840)
        e.V("v_mad_u32_u24", vReg, vG, sD, vCol)
        e.V("v_and_b32", vT0, 1, vG)
        e.V("v_lshrrev_b32", vT1, 1, vG)
        e.V("v_lshl_add_u32", vLd, vT0, 1, vT1)
        e.S("s_mov_b32", sD, 4 * 3840)
        e.V("v_mad_u32_u24", vLeft, vLd, sD, vCol)
        mk_srd(e, SR1, PP[2:4], D * 3 * D * 2)
        e.S("s_mul_i32", sB, sP, 80)
        self.gather(RAW1[0:8], SR1, sStr, vReg, sB)
        e.S("s_add_u32", sA, sB, 32)
        self.gather(RAW1[8:16], SR1, sStr, vReg, sA)
        e.S("s_add_u32", sA, sB, 64)
        self.gather(RAW1[16:20], SR1, sStr, vLeft, sA, 4)
        self.stamp("iss1")
        def r2touch():
            e.S("s_lshl_b32", sA, s(2), 2)
            e.S("s_add_u32", sA, sA, sWave)
            e.V("v_min_u32", T0, 17, vLane)
            e.V("v_lshlrev_b32", T0, 7, T0)
            e.S("s_mul_i32", sB, sA, 2160)
            mk_srd(e, SR2, PP[8:10], F * D * 2)
            e.touch(vDum, T0, SR2, sB, 0, cls=(2000, 30, 0))
            mk_srd(e, SR2, PP[12:14], F * D * 2)
            e.touch(vDum, T0, SR2, sB, 0, cls=(2000, 30, 0))
            e.V("v_min_u32", T0, 7 * 128, T0)
            mk_srd(e, SR2, PP[4:6], D * D * 2)
            e.S("s_mul_i32", sB, sA, 800)
            e.touch(vDum, T0, SR2, sB, 0, cls=(2000, 30, 0))
        if self.opt.get("r2touch", 3) == 1:
            r2touch()
        if self.opt.get("wsoff"):
            e.S("s_add_u32", pWs[0], pWs[0], self.opt["wsoff"] << 20)
            e.S("s_addc_u32", pWs[1], pWs[1], 0)
        mk_srd(e, WS, pWs, WS_USED)
        e.sload(sBase, pWs, EPOCH)
        e.S("s_mov_b32", sA, "0x3f803f80")
        e.V("v_mov_b32", vOne, sA)
        ops1 = []
        e.S("s_lshr_b32", sA, sC, 1)
        e.S("s_lshl_b32", sB, sR, 3)
        e.S("s_add_u32", sA, sA, sB)
        e.S("s_mul_i32", sA, sA, 20 * KB)
        e.S("s_and_b32", sB, sC, 1)
        e.S("s_lshl_b32", sB, sB, 7)
        e.S("s_add_u32", sA, sA, sB)
        e.S("s_add_u32", sA, sA, XB[0])
        for k in range(3):
            e.S("s_lshl_b32", sB, XM[k], 11)
            e.S("s_add_u32", sB, sB, sA)
            ops1.append(e.bstore(XJ[k], XD, WS, sB, 0, "sc1", cls=(1000, 70, 0)))
        xs = ACC[26:28]
        xz = ACC[24:26]
        MK = ACC[28:32]
        for r_ in (xs[0], xs[1], xz[0], xz[1]):
            e.V("v_mov_b32", r_, 0)
        for k in range(3):
            for i in range(4):
                e.V("v_dot2c_f32_bf16", xs[0], XJ[k][i], vOne)
                e.V("v_dot2c_f32_bf16", xs[1], XJ[k][i], XJ[k][i])
        for h in range(2):
            e.V("v_add_f32_dpp", xs[h], xs[h], xs[h], mods="row_ror:8 row_mask:0xf bank_mask:0xf")
            allreduce_g(e, xs[h], vT0)
        e.S("s_lshl_b32", sA, sR, 3)
        e.S("s_add_u32", sA, sA, sWave)
        e.S("s_lshl_b32", sA, sA, 10)
        e.S("s_lshl_b32", sB, sC, 6)
        e.S("s_add_u32", sA, sA, sB)
        e.S("s_add_u32", sA, sA, STB[0])
        e.S("s_add_u32", sB, sA, 4096)
        e.V("v_lshlrev_b32", vT0, 3, vLane)
        e.S("s_mov_b64", EXEC, "0xff")
        ops1.append(e.bstore(xs, vT0, WS, sA, 0, "sc1", cls=(1000, 20, 0)))
        ops1.append(e.bstore(xz, vT0, WS, sB, 0, "sc1", cls=(1000, 20, 0)))
        e.S("s_mov_b64", EXEC, -1)
        self.stamp("xst")
        e.S("s_cmp_lt_u32", sT, 5)
        e.S("s_cselect_b32", sE, 5, 3)
        e.S("s_cselect_b32", sA, 0, 100)
        e.S("s_add_u32", sA, sA, sT)
        e.S("s_mul_i32", sB, sC, NA)
        e.S("s_add_u32", sA, sA, sB)
        e.S("s_add_u32", sA, sA, WA // KB)
        e.S("s_lshl_b32", sA, sA, 10)
        e.S("s_lshl_b32", sE, sE, 10)
        e.S("s_mul_i32", sB, sP, sE)
        e.S("s_lshl_b32", sB, sB, 1)
        e.S("s_add_u32", sB, sB, sA)
        self.pack(RAW1[0:8])
        ops1.append(e.bstore(RAW1[0:4], vL16, WS, sB, 0, "sc1", cls=(1000, 70, 0)))
        e.S("s_add_u32", sB, sB, sE)
        self.pack(RAW1[8:16])
        ops1.append(e.bstore(RAW1[8:12], vL16, WS, sB, 0, "sc1", cls=(1000, 70, 0)))
        e.S("s_lshr_b32", sB, sP, 1)
        e.S("s_add_u32", sB, sB, 16)
        e.S("s_mul_i32", sB, sB, sE)
        e.S("s_add_u32", sB, sB, sA)
        e.S("s_and_b32", sD, sP, 1)
        e.S("s_lshl_b32", s(4), sD, 9)
        e.S("s_add_u32", sB, sB, s(4))
        e.V("v_lshlrev_b32", vT0, 8, vG)
        e.V("v_and_b32", vT0, 256, vT0)
        e.V("v_lshl_add_u32", vT0, vN, 4, vT0)
        e.V("v_lshrrev_b32", vT1, 1, vG)
        e.V("v_lshl_add_u32", vLd, vT1, 3, vT0)
        self.pack(RAW1[16:20], 2)
        ops1.append(e.bstore(RAW1[16:18], vLd, WS, sB, 0, "sc1", cls=(1000, 40, 0)))
        self.colsum([RAW1[i] for i in (0, 1, 2, 3, 8, 9, 10, 11, 16, 17)], EX, vSum, vT0)
        e.S("s_mul_i32", sB, sE, 20)
        e.S("s_add_u32", sB, sB, sA)
        e.S("s_lshr_b32", sA, sP, 1)
        e.S("s_lshl_b32", sA, sA, 8)
        e.S("s_add_u32", sB, sB, sA)
        e.S("s_lshl_b32", sD, sD, 3)
        e.S("s_add_u32", sB, sB, sD)
        e.S("s_mov_b64", EXEC, "0xffff")
        ops1.append(e.bstore(EX[0:2], vL16, WS, sB, 0, "sc1", cls=(1000, 20, 0)))
        e.S("s_mov_b64", EXEC, -1)
        self.stamp("r1")
        if self.opt.get("r2touch", 3) == 2:
            r2touch()
        for i in range(4):
            e.V("v_mov_b32", MK[i], -1)
        e.S("s_lshl_b32", sA, sC, 4)
        e.S("s_add_u32", sA, sA, sR)
        e.S("s_mul_i32", sA, sA, KVSZ)
        e.S("s_mul_i32", sB, sWave, 896)
        e.S("s_min_u32", sB, sB, KVSZ - 1024)
        e.S("s_add_u32", sA, sA, sB)
        e.S("s_add_u32", sA, sA, KVB[0])
        ops1.append(e.bstore(MK, vL16, WS, sA, 0, "sc1", cls=(1000, 70, 0)))
        self.stamp("xjob")
        e.S("s_and_b32", sCG, sC, 7)
        e.S("s_lshr_b32", sRH, sC, 3)
        if self.opt.get("r2touch", 3) == 3:
            r2touch()
        mk_srd(e, SB2, PP[14:16], D * 2)
        self.prologue2()
        self.stamp("pro2")
        sU, sP, sStr, sJ = s(88), s(89), s(100), s(101)
        rows = [s(3 + i) for i in range(4)]
        D2 = [s(64), s(65), s(66), s(67)]
        sDB, sDX = s(70), s(71)
        vSel0, vSel1 = vA1, vA2
        mk_srd(e, SR1, PP[10:12], F * 2)
        e.S("s_lshl_b32", sJ, sRH, 4)
        e.S("s_add_u32", sJ, sJ, sR)
        e.S("s_lshl_b32", sJ, sJ, 2)
        e.S("s_add_u32", sJ, sJ, sWave)
        e.V("v_lshrrev_b32", vT0, 1, vG)
        e.V("v_and_b32", vT1, 1, vG)
        e.V("v_mov_b32", vSt2, vL16)
        e.S("s_mov_b32", sDX, BIG)
        lo, lc, lj = e.newlabel("job_wo"), e.newlabel("job_w2"), e.newlabel("job_go")

        def unit(sbase, nu, stride, ca, cb, nreg, dB):
            e.S("s_lshl_b32", sA, sU, 5)
            e.S("s_add_u32", sA, sA, sbase)
            e.S("s_lshl_b32", sA, sA, 1)
            e.S("s_mov_b32", sDB, dB)
            e.S("s_cmp_lt_u32", sU, nu)
            e.S("s_cselect_b64", VCC, -1, 0)
            e.S("s_cselect_b32", sDB, sDB, BIG)
            e.V("v_lshlrev_b32", vCol, 2, vN)
            e.V("v_and_b32", vReg, 14, vN)
            e.V("v_lshlrev_b32", vReg, 1, vReg)
            e.V("v_cndmask_b32", vCol, vReg, vCol, VCC)
            e.V("v_add_u32", vCol, sA, vCol)
            e.V("v_and_b32", vReg, 1, vN)
            e.V("v_cndmask_b32", vReg, vReg, 0, VCC)
            e.S("s_mov_b32", sA, "0x02020202")
            e.V("v_mul_lo_u32", vReg, vReg, sA)
            e.V("v_add_u32", vSel0, "0x05040100", vReg)
            e.S("s_mov_b32", sStr, stride)
            e.S("s_mov_b32", sD, 8 * stride)
            e.V("v_mul_u32_u24", vReg, sD, vG)
            e.S("s_mov_b32", sD, ca * stride)
            e.V("v_mul_u32_u24", vLeft, sD, vT0)
            e.S("s_mov_b32", sD, cb * stride)
            e.V("v_mad_u32_u24", vLeft, vT1, sD, vLeft)
            e.S("s_cmp_lt_u32", sP, nreg)
            e.S("s_cselect_b64", VCC, -1, 0)
            e.V("v_cndmask_b32", vA0, vLeft, vReg, VCC)

        def split_dests(half):
            for b in range(4):
                e.S("s_lshl_b32", sA, sP, 2)
                e.S("s_add_u32", sA, sA, b)
                e.S("s_mul_i32", sD, sA, 10)
                e.S("s_cmp_ge_u32", sA, half)
                e.S("s_cselect_b32", sB, 10 * half - 1, 0)
                e.S("s_sub_u32", sD, sD, sB)
                e.S("s_add_u32", sD, sD, sE)
                e.S("s_lshl_b32", D2[b], sD, 10)
                if half == 27 and b >= 2:
                    e.S("s_cmp_ge_u32", sA, 54)
                    e.S("s_cselect_b32", D2[b], BIG, D2[b])

        def div3(dq, dr, src):
            e.S("s_mul_i32", dq, src, 43691)
            e.S("s_lshr_b32", dq, dq, 17)
            e.S("s_mul_i32", sA, dq, 3)
            e.S("s_sub_u32", dr, src, sA)

        e.S("s_cmp_ge_u32", sJ, 55)
        e.branch("s_cbranch_scc1", lc)
        e.S("s_cmp_ge_u32", sJ, 40)
        e.branch("s_cbranch_scc1", lo)
        e.cond_begin()
        mk_srd(e, SR2, PP[8:10], D * F * 2)
        e.S("s_and_b32", sU, sJ, 3)
        e.S("s_lshr_b32", sP, sJ, 2)
        e.S("s_cmp_ge_u32", sP, 5)
        e.S("s_cselect_b32", sA, 5, 0)
        e.S("s_cselect_b32", sJ, 8, 0)
        e.S("s_sub_u32", sP, sP, sA)
        e.S("s_add_u32", sJ, sJ, sCG)
        e.S("s_mul_i32", sE, sJ, 112)
        e.S("s_max_u32", sB, sJ, 12)
        e.S("s_sub_u32", sB, sB, 12)
        e.S("s_lshl_b32", sB, sB, 4)
        e.S("s_sub_u32", sE, sE, sB)
        unit(sE, 3, 3456, 80, 8, 4, 1024)
        e.S("s_lshl_b32", sA, sU, 4)
        e.S("s_add_u32", sA, sA, sJ)
        e.S("s_cmp_ge_u32", sA, 3 * 16 + 12)
        e.S("s_cselect_b64", VCC, -1, 0)
        e.V("v_cndmask_b32", vCol, vCol, vBig, VCC)
        for b in range(4):
            e.S("s_mul_i32", sA, sP, 160)
            e.S("s_add_u32", sA, sA, 80 * (b >> 1) + 32 * (b & 1))
            e.S("s_cmp_eq_u32", sP, 4)
            e.S("s_cselect_b32", rows[b], 160 * b + 64, sA)
        e.S("s_cmp_lt_u32", sU, B1N // 2)
        e.S("s_cselect_b32", s(79), B1N, 7 - B1N)
        e.S("s_cselect_b32", sE, 0, 20 * B1N)
        e.S("s_lshl_b32", sA, sU, 1)
        e.S("s_add_u32", sE, sE, sA)
        e.S("s_mul_i32", sB, sJ, NB)
        e.S("s_add_u32", sE, sE, sB)
        e.S("s_add_u32", sE, sE, WB // KB)
        for b in range(4):
            e.S("s_lshl_b32", sA, sP, 2)
            e.S("s_add_u32", sA, sA, b)
            e.S("s_mul_i32", sA, sA, s(79))
            e.S("s_add_u32", sA, sA, sE)
            e.S("s_lshl_b32", D2[b], sA, 10)
        e.S("s_mul_i32", sD, s(79), 20)
        e.S("s_add_u32", sD, sD, sE)
        e.S("s_lshl_b32", sDX, sD, 10)
        e.branch("s_branch", lj)
        e.cond_end()
        e.label(lo)
        e.cond_begin()
        mk_srd(e, SR2, PP[4:6], D * D * 2)
        e.S("s_sub_u32", sJ, sJ, 40)
        div3(sP, sU, sJ)
        e.S("s_mul_i32", sE, sCG, 80)
        unit(sE, 2, 1280, 80, 40, 4, 2048)
        for b in range(4):
            e.S("s_mul_i32", sA, sP, 160)
            e.S("s_add_u32", sA, sA, 40 * b)
            e.S("s_cmp_eq_u32", sP, 4)
            e.S("s_cselect_b32", rows[b], 160 * b + 32, sA)
        e.S("s_mul_i32", sE, sCG, NO)
        e.S("s_add_u32", sE, sE, WO // KB)
        e.S("s_lshl_b32", sA, sU, 2)
        e.S("s_add_u32", sE, sE, sA)
        split_dests(10)
        e.branch("s_branch", lj)
        e.cond_end()
        e.label(lc)
        e.cond_begin()
        mk_srd(e, SR2, PP[12:14], F * D * 2)
        e.S("s_sub_u32", sJ, sJ, 55)
        div3(sP, sU, sJ)
        e.S("s_mul_i32", sE, sCG, 80)
        unit(sE, 2, 1280, 112, 8, 12, 2048)
        e.S("s_cmp_ge_u32", sP, 14)
        e.S("s_cselect_b64", VCC, -1, 0)
        e.V("v_cndmask_b32", vCol, vCol, vBig, VCC)
        e.V("v_cndmask_b32", vSt2, vSt2, vBig, VCC)
        e.S("s_min_u32", sP, sP, 13)
        for b in range(4):
            e.S("s_lshl_b32", sD, sP, 2)
            e.S("s_add_u32", sD, sD, b)
            e.S("s_mul_i32", sA, sD, 43691)
            e.S("s_lshr_b32", sA, sA, 17)
            e.S("s_lshl_b32", sA, sA, 4)
            e.S("s_min_u32", sA, sA, 192)
            e.S("s_lshl_b32", sB, sD, 5)
            e.S("s_add_u32", sA, sA, sB)
            e.S("s_mul_i32", sB, sD, 224)
            e.S("s_sub_u32", sB, sB, 224 * 48 - 96)
            e.S("s_cmp_ge_u32", sD, 48)
            e.S("s_cselect_b32", rows[b], sB, sA)
        e.S("s_mul_i32", sE, sCG, NC)
        e.S("s_add_u32", sE, sE, WC // KB)
        e.S("s_lshl_b32", sA, sU, 2)
        e.S("s_add_u32", sE, sE, sA)
        split_dests(27)
        e.cond_end()
        e.label(lj)
        e.V("v_add_u32", vA0, vA0, vCol)
        e.S("s_cmp_lt_u32", sP, 2)
        e.S("s_cselect_b64", VCC, -1, 0)
        e.V("v_cndmask_b32", vBias, vBig, vCol, VCC)
        e.V("v_mov_b32", vSel1, "0x07060302")
        e.V("v_add_u32", vT0, sP, vG)
        e.V("v_lshrrev_b32", vT1, 1, vT0)
        e.V("v_lshlrev_b32", vLd, 4, vN)
        e.V("v_lshl_add_u32", vLd, vT1, 8, vLd)
        e.V("v_and_b32", vT0, 1, vT0)
        e.V("v_lshl_add_u32", vLd, vT0, 3, vLd)
        e.S("s_cmp_eq_u32", sP, 4)
        e.S("s_cselect_b32", sA, 4, 1)
        e.V("v_cmp_gt_u32", VCC, sA, vG)
        e.V("v_cndmask_b32", vLd, vBig, vLd, VCC)
        e.S("s_lshl_b32", sA, sC, 4)
        e.S("s_add_u32", sA, sA, sR)
        e.S("s_mul_i32", sA, sA, KVSZ)
        e.S("s_mul_i32", sB, sWave, 896)
        e.S("s_min_u32", sB, sB, KVSZ - 1024)
        e.S("s_add_u32", sA, sA, sB)
        e.S("s_add_u32", s(79), sA, KVB[1])
        self.stamp("dec2")
        e.wait_ops(ops1)
        e.barrier()
        self.flag("both", 1)
        self.stamp("w1flag")
        self.ops2 = []

        def r2_loads():
            for b in range(4):
                e.S("s_mul_i32", sE, rows[b], sStr); yield
                for i in range(8):
                    e.bload(RAW2[8 * b + i], vA0, SR2, sE, 0, cls=(1500, 32, 0)); yield
                    if i < 7:
                        e.S("s_add_u32", sE, sE, sStr); yield
            e.bload(vBias, vBias, SR1, 0, 0, cls=(1500, 10, 0)); yield

        vs, vt, MK = TMP[48], TMP[49], TMP[40:44]
        EV = ACC[40:56]

        def r2_pack():
            for b in range(4):
                raw = RAW2[8 * b:8 * b + 8]
                for i in range(4):
                    e.V("v_perm_b32", EV[4 * b + i], raw[2 * i + 1], raw[2 * i], vSel0)
                for i in range(4):
                    e.V("v_perm_b32", raw[i], raw[2 * i + 1], raw[2 * i], vSel1)
            for i in range(4):
                e.V("v_mov_b32", MK[i], -1)
            e.V("v_cmp_eq_u32", sNan, 0, vG)
            for h in range(2):
                ex = TMP[44 + 2 * h:46 + 2 * h]
                self.colsum([EV[i] for i in range(16)] if h == 0 else [RAW2[8 * b + i] for b in range(4) for i in range(4)], ex, vs, vt)
                e.V("v_perm_b32", vt, vBias, vBias, vSel0 if h == 0 else vSel1)
                e.V("v_and_b32", vt, "0xffff0000", vt)
                e.V("v_or_b32", ex[1], ex[1], vt)
                e.V("v_cndmask_b32", ex[0], 0, ex[0], sNan)
                e.V("v_cndmask_b32", ex[1], 0, ex[1], sNan)
            e.V("v_mov_b32", vSel0, vLd)
            yield

        def r2_stores():
            for b in range(4):
                self.ops2.append(e.bstore(EV[4 * b:4 * b + 4], vSt2, WS, D2[b], 0, "sc1", cls=(1000, 70, 0)))
                e.S("s_add_u32", sA, D2[b], sDB)
                self.ops2.append(e.bstore(RAW2[8 * b:8 * b + 4], vSt2, WS, sA, 0, "sc1", cls=(1000, 70, 0)))
            self.ops2.append(e.bstore(MK, vL16, WS, s(79), 0, "sc1", cls=(1000, 70, 0)))
            for h in range(2):
                if h:
                    e.S("s_add_u32", sDX, sDX, sDB)
                self.ops2.append(e.bstore(TMP[44 + 2 * h:46 + 2 * h], vSel0, WS, sDX, 0, "sc1", cls=(1000, 20, 0)))
        self.r2_stores = r2_stores
        self.r2_loads, self.r2_pack = r2_loads(), r2_pack()
        for _ in self.r2_loads:
            pass
        self.stamp("iss2")
        for _ in self.r2_pack:
            pass
        if self.opt.get("r2st", 2) == 2:
            r2_stores()
            self.late_loads()
        self.stamp("r2")
        self.poll("both", 1)
        e.barrier()
        self.stamp("w1go")

    def w2_gen(self):
        e = self.e
        t = RES[0]
        e.V("v_bfe_u32", t, vLane, 4, 1); yield
        e.V("v_lshl_add_u32", t, t, 11, vFl); yield
        e.S("s_lshl_b32", s(4), sCG, 8); yield
        e.S("s_add_u32", s(4), s(4), FLG_C); yield
        e.bload(RES[1], t, WS, s(4), 0, "sc1", cls=(900, 10, 0)); yield
        for _ in range(50):
            yield "idle"
        e.S("s_add_u32", s(5), sBase, 2); yield
        lok, lre = e.newlabel("w2ok"), e.newlabel("w2retry")
        e.V("v_cmp_ne_u32", VCC, s(5), RES[1])
        e.S("s_cmp_eq_u64", VCC, 0)
        e.branch("s_cbranch_scc1", lok)
        e.cond_begin()
        e.S("s_mov_b32", sCnt, 0)
        e.label(lre)
        e.misc("s_sleep 4")
        e.bload(RES[1], t, WS, s(4), 0, "sc1")
        e.V("v_cmp_ne_u32", VCC, s(5), RES[1])
        e.S("s_cmp_eq_u64", VCC, 0)
        e.branch("s_cbranch_scc1", lok)
        e.S("s_add_u32", sCnt, sCnt, 1)
        e.S("s_cmp_lt_u32", sCnt, 0x20000)
        e.branch("s_cbranch_scc1", lre)
        e.cond_end()
        e.label(lok)
        self.gate = 1 << 20
        yield

    def prologue2(self):
        e = self.e
        T0, T1, T2, T3, T4, T5 = [TMP[40 + i] for i in range(6)]
        mk_srd(e, OUT, pOut, XSZ)
        e.S("s_and_b32", sKH, sWave, 1)
        e.S("s_lshl_b32", sW2048, sWave, 11)
        e.S("s_mul_i32", sA, sC, NA * KB)
        e.S("s_add_u32", sSeg["A"], sA, WA)
        e.S("s_mul_i32", sA, sCG, NO * KB)
        e.S("s_add_u32", sSeg["O"], sA, WO)
        e.S("s_mul_i32", sA, sC, NB * KB)
        e.S("s_add_u32", sSeg["B"], sA, WB)
        e.S("s_mul_i32", sA, sCG, NC * KB)
        e.S("s_add_u32", sSeg["C"], sA, WC)
        e.V("v_add_u32", vDma, sW2048, vL16)
        e.S("s_mul_i32", sXr, sR, 160 * KB)
        e.S("s_mul_i32", sHr, sR, 432 * KB)
        e.S("s_lshl_b32", sSTr, sR, 13)
        e.S("s_mul_i32", sA, sWave, 40 * KB)
        e.V("v_add_u32", vAx[0], sA, vL16)
        e.V("v_add_u32", vAx[1], 20 * KB, vAx[0])
        e.V("v_lshlrev_b32", T0, 11, vG)
        e.V("v_lshl_add_u32", T0, vN, 3, T0)
        e.S("s_lshl_b32", sA, sWave, 8)
        e.V("v_add_u32", vSt, sA, T0)
        e.S("s_mov_b32", self.cInvD, lit(1.0 / D))
        for j in range(3):
            if j == 0:
                e.V("v_mov_b32", vW[0], vL16)
            else:
                e.V("v_add_u32", vW[j], j * 65536, vL16)
        e.S("s_lshl_b32", sA, sKH, 10)
        for j in range(3):
            e.V("v_add_u32", vK[j], sA, vW[j])
        e.V("v_lshlrev_b32", T4, 4, v(0))
        Z = TMP[44:48]
        Z = TMP[48:52]
        for j in range(4):
            e.V("v_mov_b32", Z[j], 0)
        e.ds_write(T4, Z, 0)
        e.ds_write(T4, Z, 4096)
        e.S("s_lshl_b32", sTT, sRH, 2)
        e.S("s_add_u32", sTT, sTT, sWave)
        e.S("s_xor_b32", sB, sTT, 1)
        for u, st in ((0, sTT), (1, sB)):
            e.S("s_mul_i32", sA, st, 20 * KB)
            e.S("s_mul_i32", sD, sKH, 10 * KB)
            e.S("s_add_u32", sA, sA, sD)
            e.V("v_add_u32", vAo[u], sA, vL16)
            e.S("s_mul_i32", sA, st, 54 * KB)
            e.S("s_mul_i32", sD, sKH, 27 * KB)
            e.S("s_add_u32", sA, sA, sD)
            e.V("v_add_u32", vAh[u], sA, vL16)
        e.V("v_lshrrev_b32", T0, 1, vG)
        e.V("v_and_b32", T1, 1, vG)
        e.V("v_lshlrev_b32", T2, 4, vN)
        e.V("v_lshl_add_u32", T3, T0, 8, T2)
        e.V("v_lshl_add_u32", T3, T1, 3, T3)
        e.S("s_mul_i32", sA, sTT, 20 * KB)
        e.V("v_add_u32", vXs, sA, vL16)
        e.V("v_add_u32", vXh, sA, T3)
        e.S("s_mul_i32", sA, sWave, 108 * KB)
        e.V("v_add_u32", vHs, sA, vL16)
        e.S("s_cmp_ge_u32", sC, 12)
        e.S("s_cselect_b32", sA, BIG, sA)
        e.V("v_add_u32", vHh, sA, T3)
        e.S("s_mul_i32", sA, sWave, 40 * KB)
        e.V("v_lshl_add_u32", T3, vG, 3, T2)
        e.V("v_add_u32", vOh, sA, T3)
        e.V("v_cmp_gt_u32", VCC, 2, vG)
        e.V("v_mov_b32", T3, BIG)
        e.V("v_cndmask_b32", vOh, T3, vOh, VCC)
        e.S("s_lshl_b32", sA, sTT, 7)
        e.V("v_lshl_add_u32", T3, vN, 3, sA)
        e.V("v_lshl_add_u32", vStW, T0, 2, T3)
        e.S("s_lshl_b32", sA, sWave, 7)
        e.S("s_add_u32", sA, sA, RST)
        e.V("v_lshl_add_u32", vRT, vG, 4, sA)
        e.V("v_lshl_add_u32", vRW, vN, 2, sA)
        e.S("s_lshl_b32", sA, sTT, 6)
        e.S("s_add_u32", sA, sA, RST)
        e.V("v_lshl_add_u32", vRF, vN, 2, sA)
        e.V("v_lshlrev_b32", T3, 4, vG)
        e.V("v_add_u32", vZ2, ZT + 128, T3)
        e.V("v_cmp_gt_u32", VCC, 10, vN)
        e.V("v_add_u32", T3, ZT, T3)
        e.V("v_cndmask_b32", vZ01, vZ2, T3, VCC)
        e.S("s_lshl_b32", sA, sR, 3)
        e.S("s_add_u32", sA, sA, sTT)
        e.S("s_mul_i32", sA, sA, 16 * 1280)
        e.S("s_mul_i32", sB, sCG, 160)
        e.S("s_add_u32", sA, sA, sB)
        e.V("v_mul_u32_u24", T3, 1280, vN)
        e.V("v_add_u32", T3, sA, T3)
        e.V("v_lshl_add_u32", vOut, vG, 4, T3)
        e.V("v_lshl_add_u32", vOut4, vG, 3, T3)
        e.S("s_mul_i32", sA, sWave, 5120)
        e.V("v_add_u32", vXch, sA, vL16)
        e.V("v_lshlrev_b32", vFl, 2, vN)
        e.V("v_mov_b32", vLn2[0], lit(LN2))
        e.V("v_mov_b32", vEps[0], lit(1e-6))
        e.S("s_mov_b32", sMaskV[0], "0x00ff00ff")
        e.S("s_mov_b32", sMaskV[1], "0x00ff00ff")
        e.S("s_lshl_b32", sA, sR, 8)
        e.S("s_add_u32", sFRL, sA, FLG_RL)
        e.S("s_add_u32", sFRG, sA, FLG_RG)
        e.S("s_lshl_b32", sA, sC, 8)
        e.S("s_add_u32", sFC, sA, FLG_C)
        e.S("s_lshl_b32", sA, sCG, 11)
        e.S("s_add_u32", sOx, sXr, sA)
        e.S("s_lshr_b32", sA, sCG, 1)
        e.S("s_lshl_b32", sA, sA, 10)
        e.S("s_and_b32", sB, sCG, 1)
        e.S("s_lshl_b32", sB, sB, 9)
        e.S("s_add_u32", sA, sA, sB)
        e.S("s_add_u32", sA, sA, 16 * KB)
        e.S("s_add_u32", sOxh, sXr, sA)
        e.S("s_lshl_b32", sA, sCG, 10)
        e.S("s_add_u32", sOst, sSTr, sA)
        e.S("s_lshl_b32", sA, sC, 10)
        e.S("s_add_u32", sOo, sXr, sA)
        e.S("s_lshl_b32", sA, sC, 8)
        e.S("s_add_u32", sA, sA, 16 * KB)
        e.S("s_add_u32", sOoh, sXr, sA)
        e.S("s_mul_i32", sA, sC, 3 * KB)
        e.S("s_add_u32", sOh, sHr, sA)
        e.S("s_lshl_b32", sA, sC, 9)
        e.S("s_add_u32", sA, sA, 48 * KB)
        e.S("s_add_u32", sOhh, sHr, sA)
        e.S("s_mul_i32", sKv, sC, 16 * KVSZ)
        e.misc(f"s_getreg_b32 {sX1}, hwreg(HW_REG_XCC_ID, 0, 4)")
        e.S("s_and_b32", sX1, sX1, 7)
        e.S("s_add_u32", sX1, sX1, 8)
        e.S("s_add_u32", sX1, sX1, sBase)
        e.S("s_mov_b32", sLocal, 0)
        U, Hh, Ee, Dq = T0, T1, T2, T3
        e.S("s_mov_b32", sA, 52429)
        e.V("v_mul_u32_u24", U, sA, v(0))
        e.V("v_lshrrev_b32", U, 18, U)
        e.V("v_mul_u32_u24", Dq, 5, U)
        e.V("v_sub_u32", Dq, v(0), Dq)
        e.V("v_cmp_le_u32", VCC, 21, U)
        e.V("v_cndmask_b32", Hh, 0, 1, VCC)
        e.V("v_mul_u32_u24", Ee, 21, Hh)
        e.V("v_sub_u32", Ee, U, Ee)
        A0, A1, A2, A3 = TMP[46], TMP[47], TMP[38], TMP[39]
        e.V("v_cmp_le_u32", s(100, 2), 16, Ee)
        e.V("v_cmp_eq_u32", s(88, 2), 4, Dq)
        e.V("v_cndmask_b32", A0, 0, 1, s(100, 2))
        e.V("v_lshl_add_u32", A0, Hh, 1, A0)
        e.V("v_add_u32", A1, 4, Hh)
        e.V("v_cndmask_b32", A1, A1, 6, s(100, 2))
        e.V("v_cndmask_b32", A0, A0, A1, s(88, 2))
        e.V("v_cndmask_b32", A1, Dq, Hh, s(88, 2))
        e.V("v_lshl_add_u32", A2, Hh, 2, Ee)
        e.V("v_subrev_u32", A2, 8, A2)
        e.V("v_cndmask_b32", A2, Ee, A2, s(100, 2))
        e.V("v_cmp_eq_u32", VCC, 20, Ee)
        e.V("v_cndmask_b32", A2, A2, 0, VCC)
        e.V("v_lshl_add_u32", A1, A1, 4, A2)
        e.V("v_lshlrev_b32", A1, 4, A1)
        e.V("v_lshl_add_u32", vKvSrc, A0, 10, A1)
        e.V("v_mul_u32_u24", A0, 5, Hh)
        e.V("v_add_u32", A0, A0, Dq)
        e.V("v_cmp_le_u32", s(88, 2), 8, A0)
        e.V("v_lshrrev_b32", A1, 1, A0)
        e.V("v_subrev_u32", A2, 8, A0)
        e.V("v_cndmask_b32", A1, A1, A2, s(88, 2))
        e.V("v_and_b32", A2, 1, A0)
        e.V("v_cndmask_b32", A2, A2, 0, s(88, 2))
        e.V("v_lshlrev_b32", A2, 3, A2)
        e.V("v_cndmask_b32", A0, 0, 1, s(88, 2))
        e.V("v_lshl_add_u32", A3, Hh, 1, A0)
        e.V("v_lshl_add_u32", A3, A3, 2, A1)
        e.V("v_lshl_add_u32", A3, A3, 4, A2)
        e.V("v_add_u32", A3, ZT, A3)
        e.V("v_mul_u32_u24", T4, 20, Hh)
        e.V("v_add_u32", T4, T4, Ee)
        e.V("v_cmp_le_u32", s(100, 2), 32, T4)
        e.V("v_and_b32", T5, 1, T4)
        e.V("v_cndmask_b32", T5, T5, 2, s(100, 2))
        e.V("v_lshl_add_u32", A0, T5, 1, A0)
        e.V("v_lshrrev_b32", T5, 1, T4)
        e.V("v_subrev_u32", T4, 32, T4)
        e.V("v_cndmask_b32", T4, T5, T4, s(100, 2))
        e.V("v_lshl_add_u32", T4, A1, 4, T4)
        e.V("v_lshl_add_u32", T4, T4, 4, A2)
        e.V("v_lshl_add_u32", T4, A0, 10, T4)
        e.V("v_cndmask_b32", T4, T4, A3, VCC)
        e.V("v_cmp_gt_u32", VCC, 210, v(0))
        e.V("v_mov_b32", T5, DUMMY)
        e.V("v_cndmask_b32", vKvDst, T5, T4, VCC)
        e.V("v_cndmask_b32", vKvSrc, 0, vKvSrc, VCC)
        e.V("v_lshlrev_b32", T4, 4, v(0))
        e.V("v_mov_b32", T5, BIG)
        e.V("v_cndmask_b32", vT16, T5, T4, VCC)

    def late_loads(self):
        e = self.e
        T4, T5 = TMP[48], TMP[49]
        e.S("s_mul_i32", sB, sCG, 160)
        e.bload(RES[10:14], vOut, XIN, 0, 0)
        e.bload(RES[14:18], vOut, XIN, 0, 64)
        e.bload(RES[18:20], vOut4, XIN, 0, 128)
        e.V("v_lshl_add_u32", T4, vG, 4, sB)
        e.V("v_lshl_add_u32", T5, vG, 3, sB)
        e.bload(B2F[10:14], T4, SB2, 0, 0)
        e.bload(B2F[14:18], T4, SB2, 0, 64)
        e.bload(B2F[18:20], T5, SB2, 0, 128)
        skip = e.newlabel("noxid")
        e.S("s_cmp_lg_u32", sWave, 3)
        e.branch("s_cbranch_scc1", skip)
        e.cond_begin()
        e.S("s_lshl_b32", sA, sR, 8)
        e.S("s_add_u32", sA, sA, FLG_X)
        e.S("s_lshl_b32", sB, sC, 2)
        e.V("v_mov_b32", T4, sB)
        e.V("v_mov_b32", T5, sX1)
        e.S("s_mov_b64", EXEC, 1)
        e.bstore(T5, T4, WS, sA, 0, "sc1")
        e.S("s_mov_b64", EXEC, -1)
        e.cond_end()
        e.label(skip)

    def unpack(self, dst, pk):
        e = self.e
        for a_ in range(2):
            for j in range(4):
                e.V("v_lshlrev_b32", dst[8 * a_ + j], 16, pk[4 * a_ + j])
                e.V("v_and_b32", dst[8 * a_ + 4 + j], "0xffff0000", pk[4 * a_ + j])
        for j in range(2):
            e.V("v_lshlrev_b32", dst[16 + 2 * j], 16, pk[8 + j])
            e.V("v_and_b32", dst[16 + 2 * j + 1], "0xffff0000", pk[8 + j])

    class ALoad:
        def __init__(self, m, vaddr, terms, nks):
            self.m, self.vaddr, self.terms, self.nks = m, vaddr, terms, nks
            self.n = 0
            self.based = -1
            self.done = False
            self.win = 20

        def step(self):
            e = self.m.e
            ks, u = divmod(self.n, 2)
            if ks // 4 != self.based:
                self.based = ks // 4
                e.S("s_add_u32", sLd, self.terms[0], self.terms[1] + (ks // 4) * 4 * KB)
                return False
            e.bload(a((self.n % 40) * 4, 4), self.vaddr[u], WS, sLd, (ks % 4) * KB, self.m.opt.get("amod", "sc1"), cls=(self.m.opt.get("latA", 600), 76, 33 if self.nks == 27 else 16))
            self.n += 1
            self.done = self.n >= 2 * self.nks
            return True

        def upto(self, ks):
            while self.n < 2 * min(ks + 1, self.nks):
                self.step()

    def stats_loads(self, ver):
        e = self.e
        e.S("s_add_u32", sA, sSTr, STB[ver])
        for u in range(2):
            for k in range(2):
                e.bload(TMP[4 * u + 2 * k:4 * u + 2 * k + 2], vSt, WS, sA, k * 1024 + u * 128, "sc1", cls=(600, 20, 0))

    def stats_gen(self, need_T, have=False):
        e = self.e
        for u in range(2):
            sm, sq, t0, t1 = TMP[4 * u], TMP[4 * u + 1], TMP[4 * u + 2], TMP[4 * u + 3]
            if not have:
                e.V("v_add_f32", sm, sm, t0); yield
                e.V("v_add_f32", sq, sq, t1); yield
            for op in () if have else ("v_permlane32_swap_b32", "v_permlane16_swap_b32"):
                e.V("v_mov_b32", t0, sm); yield
                e.V("v_mov_b32", t1, sq); yield
                e.V(op, sm, t0); yield
                e.V(op, sq, t1); yield
                e.V("v_add_f32", sm, sm, t0); yield
                e.V("v_add_f32", sq, sq, t1); yield
            e.V("v_mul_f32", sm, lit(1.0 / D), sm); yield
            e.V("v_mul_f32", t0, sm, sm); yield
            e.V("v_fma_f32", sq, sq, self.cInvD, Neg(t0)); yield
            e.V("v_max_f32", sq, 0, sq); yield
            e.V("v_add_f32", sq, lit(1e-5), sq); yield
            e.V("v_rsq_f32", t0, sq); yield
            e.V("v_cvt_pk_bf16_f32", XE[u][0], sm, sm); yield
            e.V("v_mul_f32", sq, sq, t0); yield
            e.ds_write(vRW, t0, 64 * u); yield
            c2 = vC2 if u == 0 else vC2b
            e.V("v_mul_f32", c2[0], lit(LOG2E), t0); yield
            e.V("v_lshlrev_b32", t1, 16, XE[u][0]); yield
            e.V("v_sub_f32", sm, sm, t1); yield
            e.V("v_cvt_pk_bf16_f32", XE[u][1], sm, sq); yield
            e.V("v_and_b32", t1, "0xffff0000", XE[u][1]); yield
            e.V("v_sub_f32", t1, sq, t1); yield
            e.V("v_cvt_pk_bf16_f32", XE[u][3], sm, t1); yield
            e.V("v_mov_b32", XE[u][2], XE[u][0]); yield
        if need_T:
            for u in range(2):
                e.ds_read(RT[4 * u:4 * u + 4], vRT, 64 * u); yield

    def phi_pair(self, src, c2, bcast, t):
        e = self.e
        m = "op_sel_hi:[1,0]" if bcast else ""
        e.V("v_pk_mul_f32", t[0:2], src, c2, mods=m)
        e.V("v_exp_f32_e64", t[2], t[0], mods="clamp")
        e.V("v_exp_f32_e64", t[3], t[1], mods="clamp")
        e.V("v_max_f32", t[0], 0, t[0])
        e.V("v_max_f32", t[1], 0, t[1])
        e.V("v_pk_add_f32", t[2:4], t[2:4], vEps, mods="op_sel_hi:[1,0]")
        e.V("v_pk_fma_f32", t[0:2], t[0:2], vLn2, t[2:4], mods="op_sel_hi:[1,0,1]")

    def scratch(self, nblk, endpos):
        st = endpos - nblk
        if (st % RB) + nblk > RB:
            st = endpos - (endpos % RB) - nblk
        return st, self.ldsaddr(st)

    def bg_on(self, tail):
        e = self.e
        st = {"next": 0}
        t_end = e.T + tail
        self.deadline = lambda: t_end

        def f():
            if e.T >= st["next"] and self.dma_ok():
                n0 = len(e.vm) + len(e.lg) + len(self.deferred)
                while len(e.vm) + len(e.lg) + len(self.deferred) == n0:
                    next(self.dmaf)
                st["next"] = e.T + self.opt.get("vgap", 24)
        self.e.bg = f

    def code_touch(self, ahead=None):
        e = self.e
        if not self.opt.get("ctouch", 1):
            return
        lab = e.newlabel("here")
        e.label(lab)
        ahead = self.opt.get("cahead", 2048) if ahead is None else ahead
        e.V("v_lshlrev_b32", v(51), 5, v(0))
        e.V("v_add_u32", v(51), f"{lab}-{self.kname}+{ahead}", v(51))
        e.V("v_min_u32", v(51), self.opt.get("code_bytes", 32768) - 4, v(51))
        e.misc(f"global_load_dword {vDum}, {v(51)}, s[96:97]")
        e._vm([], (800, 30, 10))

    def delay(self, n, gen):
        for _ in range(n):
            yield "idle"
        yield from gen

    def code_touch_gen(self):
        self.code_touch(self.opt.get("cahead", 512))
        yield

    def bg_off(self):
        self.e.bg = None

    def gstore(self, lst, cold=False):
        e = self.e
        mode = self.opt.get("mode", "dual")
        if cold and not self.opt.get("touchcold", 0):
            mode = "safe"
        if mode != "dual":
            return [e.bstore(d, vo, WS, so, off, "sc1" if mode == "safe" else "") for d, vo, so, off in lst]
        ls, le = e.newlabel("st_safe"), e.newlabel("st_end")
        regs = []
        for d, vo, so, off in lst:
            regs += d.regs() + vo.regs()
        e.wait_ops(e._pending(regs))
        e.S("s_cmp_eq_u32", sLocal, 0)
        need = e._need("vmem", regs, [])
        if need > 1:
            e.nop(need - 1)
        e.branch("s_cbranch_scc1", ls)
        n0 = len(e.lines)
        ops = [e.bstore(d, vo, WS, so, off, "") for d, vo, so, off in lst]
        body = e.lines[n0:]
        assert len(body) == len(lst), body
        e.raw(f"  s_branch {le}")
        e.label(ls)
        for l in body:
            e.raw(l + " sc1")
        e.label(le)
        return ops

    def touch_gen(self, lst, cold=False):
        e = self.e
        if (cold and not self.opt.get("touchcold", 0)) or not self.opt.get("touch", 0):
            return
        for vo, sb, add, off in lst:
            e.S("s_add_u32", sE, sb, add); yield
            e.touch(vDum, vo, WS, sE, off, cls=(750, 80, 30)); yield

    def local_gen(self):
        e = self.e
        e.S("s_lshl_b32", s(6), sR, 8); yield
        e.S("s_add_u32", s(6), s(6), FLG_X); yield
        e.bload(TMP[52], vFl, WS, s(6), 0, "sc1"); yield
        for _ in range(40):
            yield "idle"
        e.V("v_cmp_ne_u32", VCC, sX1, TMP[52]); yield
        e.S("s_cmp_eq_u64", VCC, 0)
        e.S("s_cselect_b32", sLocal, 1, 0); yield

    def poll(self, kind, val):
        e = self.e
        skip = e.newlabel("nopoll")
        loop = e.newlabel("poll")
        e.S("s_cmp_lg_u32", sWave, 0)
        e.branch("s_cbranch_scc1", skip)
        e.cond_begin()
        t = TMP[55]
        e.S("s_mov_b32", sCnt, 0)
        e.S("s_mov_b64", sOk, 0)
        e.S("s_add_u32", sB, sBase, val)
        va, vb, sa, sb = vFl, vFl, sFRL, sFRG
        if kind == "both":
            va, vb, sa, sb = TMP[53], TMP[54], 0, 0
            e.V("v_cmp_gt_u32", VCC, 2, vG)
            e.V("v_mov_b32", va, sFC)
            e.V("v_mov_b32", vb, sFRL)
            e.V("v_cndmask_b32", va, vb, va, VCC)
            e.V("v_add_u32", va, va, vFl)
            e.V("v_mov_b32", vb, FLG_RG - FLG_RL)
            e.V("v_cndmask_b32", vb, vb, 0, VCC)
            e.V("v_add_u32", vb, va, vb)
        e.label(loop)

        def chk():
            e.misc("s_waitcnt vmcnt(0)")
            e.misc(f"v_subrev_u32 {t}, {sB}, {t}")
            e.misc(f"v_cmp_ge_u32 vcc, {8 - val}, {t}")
            e.misc(f"s_or_b64 {sOk}, {sOk}, vcc")
            e.misc(f"s_cmp_eq_u64 {sOk}, -1")
            e.misc(f"s_cbranch_scc1 {skip}")
        e.misc(f"buffer_load_dword {t}, {va}, {WS}, {sa} offen sc1")
        e.misc("s_add_u32 %s, %s, 1" % (sCnt, sCnt))
        chk()
        if kind == "both":
            e.misc("s_sleep 3")
        e.misc(f"s_and_b32 {sA}, {sCnt}, 3")
        e.misc(f"s_cbranch_scc1 {loop}")
        e.misc(f"buffer_load_dword {t}, {vb}, {WS}, {sb} offen sc1")
        chk()
        e.misc(f"s_cmp_lt_u32 {sCnt}, 0x40000")
        e.misc(f"s_cbranch_scc1 {loop}")
        e.cond_end()
        e.label(skip)

    def flag(self, kind, val):
        e = self.e
        lst = [(1, sFRG, "sc1", sC), (2, sFRL, "", sC)] if kind != "col" else []
        if kind != "row":
            lst.append((3, sFC, "sc1", sR))
        for w, sb, m, sidx in lst:
            skip = e.newlabel("noflag")
            e.S("s_cmp_lg_u32", sWave, w)
            e.branch("s_cbranch_scc1", skip)
            e.cond_begin()
            e.S("s_lshl_b32", sA, sidx, 2)
            e.V("v_mov_b32", TMP[54], sA)
            e.S("s_add_u32", sA, sBase, val)
            e.V("v_mov_b32", TMP[55], sA)
            e.S("s_mov_b64", EXEC, 1)
            e.bstore(TMP[55], TMP[54], WS, sb, 0, m)
            e.S("s_mov_b64", EXEC, -1)
            e.cond_end()
            e.label(skip)

    def handoff(self, val, ops, shadow=None, touch=()):
        e = self.e
        t_st = e.T
        hk = (val - 2) % 4
        pick = lambda name, d: self.opt[name + "s"][hk] if name + "s" in self.opt else self.opt.get(name, d)
        self.deadline = lambda: t_st + pick("topup", 2600)
        self.own_end = 0
        while self.dma_ok():
            next(self.dmaf)
        while self.stage_step():
            pass
        self.finish_stage()
        self.restore(self.opt.get("rest1", 4))
        e.wait_all_lg()
        self.ring_barrier(self.cons + FI + self.opt.get("ahead", 16), ops)
        self.hold = None
        self.flag("row", val)
        self.stamp("flag")
        t_flag = e.T
        if self.opt.get("post_touch", 0):
            for k, (vo, sb, add, off) in enumerate(touch):
                sr = sE if k % 2 else sD
                e.S("s_add_u32", sr, sb, add)
                e.touch(vDum, vo, WS, sr, off, "sc1", cls=(750, 66, 30))
        self.deadline = lambda: t_flag + pick("topup2", 1800)
        while self.dma_ok():
            next(self.dmaf)
        while self.stage_step():
            pass
        self.finish_stage()
        self.warn.append(f"staged {len(self.staged)}")
        self.stage_plan = []
        self.prime()
        self.restore(99)
        if shadow:
            shadow()
        self.poll("row", val)
        e.T = max(e.T, t_flag + 1000)
        e.barrier()
        self.stamp("go")

    def phaseA(self, p):
        e = self.e
        opt = self.opt
        xv = 2 * p
        acc = lambda T, u: ACC[(T * 2 + u) * 4:(T * 2 + u) * 4 + 4]
        xf = lambda ks, u: a((ks * 2 + u) * 4, 4) if ks < 20 else XE[u]
        if p == 0:
            e.S("s_getpc_b64", s(96, 2))
            e.label("main_pc2")
            e.S("s_sub_u32", s(96), s(96), "main_pc2-" + self.kname)
            e.S("s_subb_u32", s(97), s(97), 0)
            for _ in range(opt.get("first_groups", 3)):
                for _ in self.dma_group():
                    pass
        al = self.ALoad(self, vAx, (sXr, XB[xv]), 20)
        al.upto(opt.get("adist", 3) - 1)
        self.stats_loads(xv)
        fl0 = [self.delay(opt.get("stdelay", 24), self.stats_gen(True))]
        if p == 0:
            if opt.get("r2st", 2) == 0:
                self.r2_stores()
                self.late_loads()
            e.wait_all_lg()
            if opt.get("r2st", 2) == 2:
                self.ring_barrier(FI + 8, self.ops2)
                self.flag("col", 2)
                fl0.append(self.w2_gen())
            else:
                self.ring_barrier(FI + 8)
            self.prime()
            self.stamp("start")
            if opt.get("keep", 12):
                cg_ = self.capture_gen(opt.get("keep0", 3), opt.get("keep", 12))
                next(cg_)
                fl0.append(cg_)
        st1 = {}

        def hook1(t):
            if t >= opt.get("w2flag_at", 30) and not st1.get("done"):
                st1["done"] = t
                return self.ops2, (lambda: self.flag("col", 2))
            return [], None

        def add1(t):
            if st1.get("done") and t >= opt.get("w2chk_at", 70) and not st1.get("chk"):
                st1["chk"] = True
                return self.w2_gen()
        i0 = self.seqstart[("A1", p)]
        fb = 102
        sst, sad = self.scratch(28, self.seq[i0 + fb][0])
        self.hold = sst

        def mf(t, W, u):
            ks, T = divmod(t, 5)
            e.mfma(acc(T, u), xf(ks, u), W, acc(T, u) if ks else 0)
        self.run_pass(105, mf, 5, xf, fl0, must=fl0[0], chunk=(8 if p == 0 else 24), stop_reads=self.seqstart[("A4", p)], aload=al,
                      force_bar=fb, tail=6000, mix=opt.get("mixA", 0) if p else 0,
                      late=(60, self.touch_gen([(vAx[0], sOo, OB[p], 0), (vAx[1], sOo, OB[p], 0), (vOh, sOoh, OB[p], 0), (vOh, sOoh, OB[p] + 20 * KB, 0)], p == 0)), hooks={"bar": hook1, "add": add1} if (p == 0 and opt.get("r2st", 2) == 0) else None)
        if p == 0 and opt.get("r2st", 2) == 1:
            self.dma_all()
            self.r2_stores()
            self.late_loads()
        assert sst + 28 <= self.freed
        self.stamp("A1")
        self.bg_on(5000)
        C2T = TMP[8:16] if p else ACC[40:48]
        for j in range(8):
            e.V("v_mul_f32", C2T[j], lit(LOG2E), RT[j])
        KF = [TMP[16:20], TMP[20:24], TMP[24:28]]
        VF = {3: TMP[28:32], 4: TMP[32:36], 2: TMP[36:40]}
        tt = [TMP[40:44], TMP[44:48]]
        TA0, TA1 = TMP[48], TMP[49]
        if p == 0:
            KF = [RES[0:4], RES[4:8], B2F[0:4]]
            VF = {3: B2F[4:8], 4: ACC[56:60], 2: ACC[60:64]}
            tt = [ACC[48:52], ACC[52:56]]
        n = 0
        for T in range(3):
            for u in range(2):
                for h in range(2):
                    t = tt[n % 2]
                    n += 1
                    self.phi_pair(acc(T, u)[2 * h:2 * h + 2], C2T[4 * u + 2 * h:4 * u + 2 * h + 2], False, t)
                    e.V("v_cvt_pk_bf16_f32", KF[T][2 * u + h], t[0], t[1])
        for T in (3, 4, 2):
            for u in range(2):
                for h in range(2):
                    x = acc(T, u)[2 * h:2 * h + 2]
                    e.V("v_pk_mul_f32", x, x, RT[4 * u + 2 * h:4 * u + 2 * h + 2])
            for u in range(2):
                for h in range(2):
                    x = acc(T, u)[2 * h:2 * h + 2]
                    e.V("v_cvt_pk_bf16_f32", VF[T][2 * u + h], x[0], x[1])
        for j in range(4):
            e.V("v_cndmask_b32", VF[2][j], VF[2][j], vOne, sMaskV)
        PR = [ACC[4 * i:4 * i + 4] for i in range(7)]
        prods = [(0, 3), (0, 2), (1, 4), (1, 2), (2, 3), (2, 4), (2, 2)]
        for i, (kt, vt) in enumerate(prods):
            e.mfma(PR[i], KF[kt], VF[vt], 0)
        e.S("s_mul_i32", sA, sWave, 7168)
        e.S("s_add_u32", sA, sA, sad)
        e.V("v_add_u32", TA0, sA, vL16)
        e.V("v_add_u32", TA1, sad, vKvSrc)
        for i in range(7):
            e.ds_write(TA0, PR[i], i * 1024)
        e.wait_all_lg()
        e.barrier()
        RD = [ACC[4 * w:4 * w + 4] for w in range(4)]
        for w in range(4):
            e.ds_read(RD[w], TA1, w * 7168)
        for h in range(2):
            e.V("v_pk_add_f32", RD[0][2 * h:2 * h + 2], RD[0][2 * h:2 * h + 2], RD[1][2 * h:2 * h + 2])
            e.V("v_pk_add_f32", RD[2][2 * h:2 * h + 2], RD[2][2 * h:2 * h + 2], RD[3][2 * h:2 * h + 2])
        for h in range(2):
            e.V("v_pk_add_f32", RD[0][2 * h:2 * h + 2], RD[0][2 * h:2 * h + 2], RD[2][2 * h:2 * h + 2])
        e.S("s_mul_i32", sA, sR, KVSZ)
        e.S("s_add_u32", sA, sA, sKv)
        e.S("s_add_u32", sA, sA, KVB[p])
        kvst = e.bstore(RD[0], vT16, WS, sA, 0, "sc1")
        self.bg_off()
        self.stamp("kvpub")
        PL = [ACC[4 * i:4 * i + 4] for i in range(10)] + [TMP[24 + 4 * i:28 + 4 * i] for i in range(6)]

        st2 = {}

        def barhook(t):
            def rel():
                self.hold = None

            def relflag():
                self.hold = None
                self.flag("col", 2)
            if p == 0 and opt.get("r2st", 2) == 1 and not st2.get("done") and t >= opt.get("w2flag2_at", 12):
                st2["done"] = True
                return self.ops2, relflag
            return [], rel

        def kvloads():
            for i in range(16):
                if i % 2 == 0:
                    e.S("s_add_u32", sB, sKv, KVB[p] + i * KVSZ); yield
                e.bload(PL[i], vT16, WS, sB, (i % 2) * KVSZ, "sc1", cls=(opt.get('kvlat', 800), 80, opt.get('kvsvc', 130))); yield

        def kvsum():
            for st in (1, 2, 4, 8):
                for i in range(0, 16, 2 * st):
                    for h in range(2):
                        e.V("v_pk_add_f32", PL[i][2 * h:2 * h + 2], PL[i][2 * h:2 * h + 2], PL[i + st][2 * h:2 * h + 2])
            e.V("v_cmp_u_f32", VCC, PL[0][0], PL[0][1])
            e.V("v_cmp_u_f32", sNan, PL[0][2], PL[0][3])
            e.S("s_or_b64", VCC, VCC, sNan)

        def mfq(t, W, u):
            ks, T = divmod(t, 3)
            e.mfma(acc(5 + T, u), W, xf(ks, u), acc(5 + T, u) if ks else 0)
        self.lastbar = self.rd - 8
        fl = []
        if p == 0:
            fl = [self.local_gen()]
        self.run_pass(63, mfq, 3, xf, fl, stop_reads=self.seqstart[("A4", p)], hooks={"bar": barhook},
                      late=(opt.get("kvload_at", 30), kvloads()), see_all=True, force_bar=61, tail=1600 + self.opt.get("slack", 2400))
        self.stamp("A2")
        if p == 0 and opt.get("r2st", 2) == 1:
            assert st2.get("done")
            w2 = self.w2_gen()
            while next(w2) != "idle":
                pass
        if opt.get("qbg", 1):
            self.bg_on(1600 + self.opt.get("slack", 2400))
        PQ0 = [TMP[0:4], TMP[4:8]]
        PQ1 = [TMP[8:12], TMP[12:16]]
        tq = [TMP[16:20], TMP[20:24]]
        for u in range(2):
            c2 = vC2 if u == 0 else vC2b
            for h in range(2):
                self.phi_pair(acc(5, u)[2 * h:2 * h + 2], c2, True, tq[0])
                self.phi_pair(acc(6, u)[2 * h:2 * h + 2], c2, True, tq[1])
                e.V("v_cvt_pk_bf16_f32", PQ0[u][2 * h], tq[0][0], tq[1][0])
                e.V("v_cvt_pk_bf16_f32", PQ0[u][2 * h + 1], tq[0][1], tq[1][1])
            for h in range(2):
                self.phi_pair(acc(7, u)[2 * h:2 * h + 2], c2, True, tq[h])
                e.V("v_cvt_pk_bf16_f32", PQ1[u][h], tq[h][0], tq[h][1])
            e.V("v_mov_b32", PQ1[u][2], 0)
            e.V("v_mov_b32", PQ1[u][3], 0)
        self.bg_off()
        self.stamp("qepi")
        kvsum()
        lok, lre = e.newlabel("kvok"), e.newlabel("kvretry")
        e.branch("s_cbranch_scc0", lok)
        e.cond_begin()
        e.S("s_mov_b32", sCnt, 0)
        e.label(lre)
        e.misc("s_sleep 4")
        for _ in kvloads():
            pass
        kvsum()
        e.branch("s_cbranch_scc0", lok)
        e.S("s_add_u32", sCnt, sCnt, 1)
        e.S("s_cmp_lt_u32", sCnt, 0x10000)
        e.branch("s_cbranch_scc1", lre)
        e.cond_end()
        e.label(lok)
        self.stamp("kvgo")
        if p == 0 and opt.get("r2st", 2) == 1:
            for _ in w2:
                pass

        self.bg_on(900 + self.opt.get("slack", 2400))
        e.V("v_cvt_pk_bf16_f32", TMP[16], PL[0][0], PL[0][1])
        e.V("v_cvt_pk_bf16_f32", TMP[17], PL[0][2], PL[0][3])
        e.ds_write(vKvDst, TMP[16:18])
        e.wait_all_lg()
        e.barrier()
        FR = [TMP[16 + 4 * i:20 + 4 * i] for i in range(10)]
        for T in range(3):
            for ks in range(2):
                e.ds_read(FR[T * 2 + ks], vL16, IMG + (T * 2 + ks) * KB)
        for ks in range(2):
            e.ds_read(FR[6 + ks], vZ01, ks * 64)
            e.ds_read(FR[8 + ks], vZ2, ks * 64)
        oa = lambda T, u: ACC[(T * 2 + u) * 4:(T * 2 + u) * 4 + 4]
        for T in (3, 4, 0, 1, 2):
            for u in range(2):
                e.mfma(oa(T, u), FR[2 * T], PQ0[u], 0)
        for T in (3, 4, 0, 1, 2):
            for u in range(2):
                e.mfma(oa(T, u), FR[2 * T + 1], PQ1[u], oa(T, u))
        e.S("s_add_u32", sA, sOo, OB[p])
        e.S("s_add_u32", sB, sOoh, OB[p])
        e.S("s_add_u32", sD, sOoh, OB[p] + 20 * KB)
        ops = []
        for u in range(2):
            for x in (oa(3, u)[0], oa(3, u)[2], oa(4, u)[0]):
                e.V("v_add_f32", x, vEps[0], x)
        for u in range(2):
            for x in (oa(3, u)[0], oa(3, u)[2], oa(4, u)[0]):
                e.V("v_rcp_f32", x, x)
        for u in range(2):
            for T in range(3):
                for h in range(2):
                    x = oa(T, u)[2 * h:2 * h + 2]
                    dn = oa(3, u)[2 * h:2 * h + 2] if T < 2 else oa(4, u)[0:2]
                    e.V("v_pk_mul_f32", x, x, dn, mods="op_sel_hi:[1,0]")
            o4 = TMP[16 + 8 * u:20 + 8 * u]
            o2 = TMP[20 + 8 * u:22 + 8 * u]
            for j in range(4):
                e.V("v_cvt_pk_bf16_f32", o4[j], oa(0, u)[j], oa(1, u)[j])
            for h in range(2):
                e.V("v_cvt_pk_bf16_f32", o2[h], oa(2, u)[2 * h], oa(2, u)[2 * h + 1])
            if u == 0:
                ops += self.gstore([(o4, vAx[u], sA, 0), (o2, vOh, sB, 0)], p == 0)
            else:
                ops += self.gstore([(o4, vAx[u], sA, 0), (o2, vOh, sD, 0)], p == 0)
        self.bg_off()
        self.stamp("A3")
        def shadow():
            if p == 0:
                self.unpack(RES, RES[10:20])
                self.unpack(B2F, B2F[10:20])
        self.handoff(4 * p + 2, ops, shadow, [(vAx[0], sOo, OB[p], 0), (vAx[1], sOo, OB[p], 0), (vOh, sOoh, OB[p], 0), (vOh, sOoh, OB[p] + 20 * KB, 0)])

    def phase64(self, p, kind):
        e = self.e
        opt = self.opt
        nks = 10 if kind == "O" else 27
        name = "A4" if kind == "O" else "B2"
        acc = lambda T, u: ACC[(u * 5 + T) * 4:(u * 5 + T) * 4 + 4]
        if kind == "O":
            al = self.ALoad(self, vAo, (sXr, OB[p]), nks)
        else:
            al = self.ALoad(self, vAh, (sHr, HB[p]), nks)
        al.upto(opt.get("adist", 3) - 1)
        xf = lambda ks, u: a(((ks % 20) * 2 + u) * 4, 4)
        if kind == "C":
            e.ds_read(TMP[50], vRF)
        i0 = self.seqstart[(name, p)]
        fb = 5 * nks - 3
        sst, sad = self.scratch(20, self.seq[i0 + fb][0])
        self.hold = sst
        stop = i0 + 5 * nks

        def mf(t, W, u):
            ks, T = divmod(t, 5)
            u = 1 - u
            c0 = RES[4 * T:4 * T + 4] if (kind == "O" and u == 0) else 0
            e.mfma(acc(T, u), W, xf(ks, u), acc(T, u) if ks else c0)

        def addr_gen():
            e.V("v_add_u32", TMP[0], sad, vXch); yield
            e.S("s_xor_b32", sA, sWave, 1); yield
            e.S("s_mul_i32", sA, sA, 5120); yield
            e.S("s_add_u32", sA, sA, sad); yield
            e.V("v_add_u32", TMP[1], sA, vL16); yield
            if kind == "C":
                e.V("v_mul_f32", TMP[50], TMP[50], TMP[50]); yield
            if not last:
                e.S("s_add_u32", sA, sOx, XB[xv]); yield
                e.S("s_add_u32", sB, sOxh, XB[xv]); yield
                e.S("s_add_u32", sD, sOst, STB[xv]); yield
        last = kind == "C" and p == 1
        xv = 2 * p + (1 if kind == "O" else 2)
        tg = None if last else (0, self.touch_gen([(vXs, sOx, XB[xv], 0), (vXs, sOx, XB[xv], 1024), (vXh, sOxh, XB[xv], 0), (vStW, sOst, STB[xv], 0)]))
        fl = [self.delay(20, addr_gen())]
        self.run_pass(5 * nks, mf, 5, xf, fl, late=tg, force_bar=fb, chunk=(opt.get("chunkO", 12) if kind == "O" else opt.get("chunkC", 8)), stop_reads=stop, aload=al,
                      mix=opt.get("mixO", 0) if kind == "O" else 0, tail=900 + self.opt.get("slack", 2400))
        self.stamp(name)
        self.bg_on(900 + self.opt.get("slack", 2400))
        assert sst + 20 <= self.freed
        for T in range(5):
            e.ds_write(TMP[0], acc(T, 1), T * KB)
        e.wait_all_lg()
        e.barrier()
        PT = TMP[4:24]
        for T in range(5):
            e.ds_read(PT[4 * T:4 * T + 4], TMP[1], T * KB)
        own = ACC[0:20]
        for h in range(10):
            x = own[2 * h:2 * h + 2]
            e.V("v_pk_add_f32", x, x, PT[2 * h:2 * h + 2])
            if kind == "C":
                e.V("v_pk_fma_f32", x, x, TMP[50:52], RES[2 * h:2 * h + 2], mods="op_sel_hi:[1,0,1]")
        PK = TMP[24:34]
        for a_ in range(2):
            for j in range(4):
                e.V("v_cvt_pk_bf16_f32", PK[4 * a_ + j], own[8 * a_ + j], own[8 * a_ + 4 + j])
        for h in range(2):
            e.V("v_cvt_pk_bf16_f32", PK[8 + h], own[16 + 2 * h], own[16 + 2 * h + 1])
        self.bg_off()
        if last:
            om = self.opt.get("outmod", "")
            e.bstore(PK[0:4], vOut, OUT, 0, 0, om)
            e.bstore(PK[4:8], vOut, OUT, 0, 64, om)
            e.bstore(PK[8:10], vOut4, OUT, 0, 128, om)
            self.stamp("end")
            return
        xv = 2 * p + (1 if kind == "O" else 2)
        ops = []
        ops += self.gstore([(PK[0:4], vXs, sA, 0), (PK[4:8], vXs, sA, 1024), (PK[8:10], vXh, sB, 0)])
        sm, sq, t0 = TMP[36], TMP[37], TMP[38]
        e.V("v_mov_b32", sm, 0)
        e.V("v_mov_b32", sq, 0)
        for j in range(10):
            e.V("v_dot2c_f32_bf16", sm, PK[j], vOne)
            e.V("v_dot2c_f32_bf16", sq, PK[j], PK[j])
        e.V("v_permlane32_swap_b32", sm, sq)
        e.V("v_add_f32", sm, sm, sq)
        e.V("v_mov_b32", t0, sm)
        e.V("v_permlane16_swap_b32", sm, t0)
        e.V("v_add_f32", sm, sm, t0)
        ops += self.gstore([(sm, vStW, sD, 0)])
        self.stamp(name + "epi")

        def shadow():
            self.unpack(RES, PK)
            if kind == "O":
                for h in range(10):
                    x = RES[2 * h:2 * h + 2]
                    e.V("v_pk_add_f32", x, x, B2F[2 * h:2 * h + 2])
        self.handoff(4 * p + (3 if kind == "O" else 5), ops, shadow,
                     [(vStW, sOst, STB[xv], 0), (vXs, sOx, XB[xv], 0), (vXs, sOx, XB[xv], 1024), (vXh, sOxh, XB[xv], 0)])

    def phaseB1(self, p):
        e = self.e
        opt = self.opt
        xv = 2 * p + 1
        acc = lambda T, u: ACC[(T * 2 + u) * 4:(T * 2 + u) * 4 + 4]
        xf = lambda ks, u: a((ks * 2 + u) * 4, 4) if ks < 20 else XE[u]
        al = self.ALoad(self, vAx, (sXr, XB[xv]), 20)
        al.upto(opt.get("adist", 3) - 1)
        self.stats_loads(xv)
        stop = self.seqstart[("B2", p)]
        g0 = self.seq[stop][0] // 8 + RB // 8
        self.stage_plan = list(range(g0, g0 + opt.get("nstage", 0)))

        def mf(t, W, u):
            ks, T = divmod(t, B1N)
            e.mfma(acc(T, u), W, xf(ks, u), acc(T, u) if ks else 0)
        tl = [(vHs, sOh, HB[p] + u * 54 * KB, a_ * KB) for a_ in range(3) for u in range(2)] + [(vHh, sOhh, HB[p] + u * 54 * KB, 0) for u in range(2)]
        sg = self.delay(opt.get("stdelay", 24), self.stats_gen(False))
        self.run_pass(21 * B1N, mf, B1N, xf, [sg], late=(0, self.touch_gen(tl, p == 0)), stop_reads=stop, aload=al, must=sg, mix=opt.get("mixB", 0), tail=700 * (7 - B1N) + 300 + self.opt.get("slack", 2400))
        self.stamp("B1a")
        ops = []

        def epi(pairs, single):
            n = 0
            for u in range(2):
                sb = sD if u == 0 else sE
                e.S("s_add_u32", sb, sOh, HB[p] + u * 54 * KB); yield
                for a_ in pairs:
                    o = TMP[16 + 4 * (n % 4):20 + 4 * (n % 4)]
                    n += 1
                    for j in range(4):
                        x, y = acc(2 * a_, u)[j], acc(2 * a_ + 1, u)[j]
                        e.V("v_mul_f32_e64", x, x, f"|{x}|"); yield
                        e.V("v_mul_f32_e64", y, y, f"|{y}|"); yield
                        e.V("v_cvt_pk_bf16_f32", o[j], x, y); yield
                        e.V("v_pk_max_i16", o[j], o[j], 0); yield
                    ops.extend(self.gstore([(o, vHs, sb, a_ * KB)], p == 0)); yield
            if single:
                for u in range(2):
                    o = TMP[32 + 2 * u:34 + 2 * u]
                    for j in range(4):
                        x = acc(6, u)[j]
                        e.V("v_mul_f32_e64", x, x, f"|{x}|"); yield
                    for h in range(2):
                        e.V("v_cvt_pk_bf16_f32", o[h], acc(6, u)[2 * h], acc(6, u)[2 * h + 1]); yield
                        e.V("v_pk_max_i16", o[h], o[h], 0); yield
                e.S("s_add_u32", sA, sOhh, HB[p])
                e.S("s_add_u32", sB, sOhh, HB[p] + 54 * KB)
                ops.extend(self.gstore([(TMP[32:34], vHh, sA, 0), (TMP[34:36], vHh, sB, 0)], p == 0))
                yield

        def mf2(t, W, u):
            ks, T = divmod(t, 7 - B1N)
            e.mfma(acc(B1N + T, u), W, xf(ks, u), acc(B1N + T, u) if ks else 0)
        self.run_pass(21 * (7 - B1N), mf2, 7 - B1N, xf, [epi(list(range(B1N // 2)), False)], stop_reads=stop, force_bar=21 * (7 - B1N) - 2, over=opt.get("b1over", 0), chunk=opt.get("chunkB", 16), tail=300 + self.opt.get("slack", 2400))
        self.stamp("B1b")
        for _ in epi(list(range(B1N // 2, 3)), True):
            pass
        self.stamp("B1epi")
        self.handoff(4 * p + 4, ops, None, tl)

    def gen(self):
        e = self.e
        e.reset_state()
        self.cInvD = s(63)
        self.dmaf = self.dma_filler()
        self.prologue()
        if self.opt.get("stamps"):
            e.memtime(sTm, True)
            e.V("v_writelane_b32", v(53), sTm[0], 62)
        self.startup()
        stop = self.opt.get("stop", 99)
        n = 0
        for p in range(2):
            for f in (lambda: self.phaseA(p), lambda: self.phase64(p, "O"), lambda: self.phaseB1(p), lambda: self.phase64(p, "C")):
                if n < stop:
                    f()
                n += 1
        if self.opt.get("stamps"):
            e.wait_all_vm()
            e.memtime(sTm, True)
            e.V("v_writelane_b32", v(53), sTm[0], 63)
            e.S("s_lshl_b32", sA, s(2), 2)
            e.S("s_add_u32", sA, sA, sWave)
            e.S("s_lshl_b32", sA, sA, 8)
            e.S("s_add_u32", sA, sA, STAMP)
            e.V("v_lshlrev_b32", TMP[1], 2, vLane)
            e.bstore(v(53), TMP[1], WS, sA)
        if self.opt.get("dbgst") is not None:
            skip = e.newlabel("nodbg")
            e.S("s_lshl_b32", sA, s(2), 2)
            e.S("s_add_u32", sA, sA, sWave)
            e.S("s_cmp_lg_u32", sA, 4 * self.opt.get("dbgwg", 77))
            e.branch("s_cbranch_scc1", skip)
            e.sload(s(84, 2), s(0, 2), 72)
            e.V("v_readlane_b32", sB, v(53), 0)
            e.V("v_subrev_u32", TMP[0], sB, v(53))
            e.V("v_subrev_u32", TMP[1], self.opt["dbgst"], vLane)
            e.V("v_cmp_gt_u32", VCC, 64 - self.opt["dbgst"], TMP[1])
            e.V("v_lshlrev_b32", TMP[1], 2, TMP[1])
            e.wait_all_lg()
            e.S("s_and_saveexec_b64", s(86, 2), VCC)
            e.misc(f"global_store_dword {TMP[1]}, {TMP[0]}, s[84:85]")
            e.S("s_mov_b64", EXEC, -1)
            e.label(skip)
        if self.opt.get("spin"):
            e.wait_all_vm()
            e.V("v_readfirstlane_b32", s(86), v(53))
            e.label("spin_loop")
            e.misc("s_memrealtime s[88:89]")
            e.misc("s_waitcnt lgkmcnt(0)")
            e.misc("s_sub_u32 s88, s88, s86")
            e.misc(f"s_cmp_lt_u32 s88, {self.opt['spin']}")
            e.misc("s_cbranch_scc1 spin_loop")
        e.S("s_add_u32", sA, s(2), sWave)
        e.S("s_cmp_lg_u32", sA, 0)
        e.branch("s_cbranch_scc1", "main_end")
        e.S("s_add_u32", sA, sBase, 16)
        e.V("v_mov_b32", TMP[0], sA)
        e.V("v_mov_b32", TMP[1], EPOCH)
        e.S("s_mov_b64", EXEC, 1)
        e.bstore(TMP[0], TMP[1], WS, 0)
        e.label("main_end")
        e.misc("s_endpgm")
```

```python
from asmgen import *
from layout import *
from gen_prep import mk_srd, allreduce_g
import math

BIG = 0x40000000
LOG2E = 1.4426950408889634
LN2 = 0.6931471805599453

IMG = 0
ZT = 6144
RST = 6400
DUMMY = 6912
RING = 8192
RB = 152
LDS_BYTES = RING + RB * KB
FI = 8

WS, OUT, XIN, SB2 = s(8, 4), s(12, 4), s(16, 4), s(20, 4)
sWave, sR, sC, sCG, sRH, sKH, sW2048 = [s(24 + i) for i in range(7)]
sSeg = {"A": s(31), "O": s(32), "B": s(33), "C": s(34)}
sXr, sHr, sSTr, sFRL, sFRG, sFC = [s(35 + i) for i in range(6)]
sA, sB, sD, sE, sDm, sLd = [s(41 + i) for i in range(6)]
sMaskV = s(48, 2)
sCnt = s(50)
sTT = s(51)
sTm = s(52, 2)
sOx, sOxh, sOst, sOo, sOoh, sOh, sOhh, sKv = [s(54 + i) for i in range(8)]
sLocal, sX1 = s(47), s(62)
sStg = s(3)
sSel = [s(84), s(85)]
sOdd = s(86, 2)
vT16L = v(37)
vStg = v(55)
sNan = s(90, 2)
sBase = s(92)
sOk = s(94, 2)
SR1, SR2 = s(84, 4), s(96, 4)
PP = s(64, 16)
pOut, pWs = s(80, 2), s(82, 2)
vDum = v(49)

vLane, vN, vG, vL16 = v(1), v(2), v(3), v(4)
vW = [v(5), v(6), v(7)]
vK = [v(8), v(9), v(10)]
vDma = v(11)
vAx = [v(12), v(13)]
vAo = [v(14), v(15)]
vAh = [v(16), v(17)]
vSt, vStW, vKvSrc, vKvDst, vT16, vZ01, vZ2, vRT, vRW, vRF, vOut, vOut4, vOne = [v(18 + i) for i in range(13)]
vOh, vXs, vXh, vHs, vHh, vFl, vPollR, vPollC, vXch = [v(31 + i) for i in range(9)]
XE = [v(40, 4), v(44, 4)]
vC2 = v(48, 2)
vC2b = v(50, 2)
vLn2 = v(52, 2)
vEps = v(54, 2)
RT = v(56, 8)
ACC = v(64, 64)
FIFO = v(128, 4 * FI)
RES = v(160, 20)
B2F = v(180, 20)
TMP = v(200, 56)


class Main:
    def __init__(self, e, opt):
        self.e = e
        self.opt = opt
        self.kname = opt["kname"]
        self.nstamp = 0
        self.segs = []
        pos = 0
        for p in range(2):
            for k, n in (("A", NA), ("O", NO), ("B", NB), ("C", NC)):
                self.segs.append((k, pos, n))
                pos += n
        self.total = pos
        self.ngroups = pos // 8
        self.issued = 0
        self.dmaop = {}
        self.freed = 0
        self.hold = None
        self.visible = 0
        self.seq = []
        self.seqstart = {}
        for p in range(2):
            b = self.segs[4 * p + 0][1]
            self.seqstart[("A1", p)] = len(self.seq)
            self.seq += [(b + i, "W") for i in range(105)]
            self.seqstart[("A2", p)] = len(self.seq)
            self.seq += [(b + 105 + i, "W") for i in range(63)]
            b = self.segs[4 * p + 1][1]
            self.seqstart[("A4", p)] = len(self.seq)
            self.seq += [(b + 2 * i, "K") for i in range(50)]
            b = self.segs[4 * p + 2][1]
            self.seqstart[("B1a", p)] = len(self.seq)
            self.seq += [(b + i, "W") for i in range(21 * B1N)]
            self.seqstart[("B1b", p)] = len(self.seq)
            self.seq += [(b + 21 * B1N + i, "W") for i in range(147 - 21 * B1N)]
            b = self.segs[4 * p + 3][1]
            self.seqstart[("B2", p)] = len(self.seq)
            self.seq += [(b + 2 * i, "K") for i in range(135)]
        self.rd = 0
        self.cons = 0
        self.lastbar = 0
        self.gate = NA // 8
        self.stage_plan = []
        self.staged = {}
        self.stage_mid = None
        self.cap_hold = 1 << 20
        self.deferred = []
        self.own_end_phase = 0
        self.cap_ops = []
        self.cap_next = 1 << 20
        self.warn = []
        self.model = []
        self.own_end = 0
        self.deadline = lambda: 1 << 30

    def stamp(self, name):
        self.model.append((name, self.e.T))
        if not self.opt.get("stamps"):
            return
        e = self.e
        e.wait_all_lg()
        e.memtime(sTm)
        e.V("v_writelane_b32", v(53), sTm[0], self.nstamp)
        self.opt.setdefault("stampnames", []).append(name)
        self.nstamp += 1
        assert self.nstamp <= 62

    def endpos(self, i):
        p, k = self.seq[i]
        return p + (2 if k == "K" else 1)

    def ldsaddr(self, pos):
        return RING + (pos % RB) * KB

    def can_issue(self):
        if self.issued >= min(self.ngroups, self.gate):
            return False
        lim = self.freed if self.hold is None else min(self.freed, self.hold)
        lim = min(lim, self.cap_hold)
        return 8 * (self.issued + 1) <= lim + RB

    def dma_group(self):
        e = self.e
        g = self.issued
        self.issued += 1
        pos = 8 * g
        if g in self.stage_plan:
            self.stage_plan = []
        if g in self.staged and self.opt.get("defer", 1) and 8 * g >= self.own_end_phase:
            self.deferred.append(g)
            self.dmaop[g] = None
            yield
            return
        if g in self.staged:
            self.finish_stage()
            k = self.staged[g]
            ad = self.ldsaddr(pos)
            e.V("v_add_u32", vStg, ad, vDma)
            yield
            e.ds_write(vStg, a(160 + 8 * k, 4), 0)
            yield
            self.dmaop[g] = e.ds_write(vStg, a(164 + 8 * k, 4), 1024)
            yield
            return
        for k, b, n in self.segs:
            if b <= pos < b + n:
                break
        e.S("s_add_u32", M0, sW2048, self.ldsaddr(pos))
        yield
        e.S("s_add_u32", sDm, sSeg[k], (pos - b) * KB)
        yield
        md = "nt" if k in self.opt.get("ntseg", "") else ""
        e.dma(vDma, WS, sDm, 0, md, cls=self.dcls(k))
        yield
        self.dmaop[g] = e.dma(vDma, WS, sDm, 1024, md, cls=self.dcls(k))
        yield

    def capture_gen(self, first, n):
        e = self.e
        self.cap_hold = self.cap_next = 8 * first
        g1 = self.segs[4][1] // 8
        for k in range(n):
            g = first + k
            spins = 0
            while self.visible < 8 * (g + 1):
                spins += 1
                assert spins < 100000
                yield "idle"
            e.V("v_add_u32", vStg, self.ldsaddr(8 * g), vDma); yield
            e.ds_read(a(160 + 8 * k, 4), vStg, 0); yield
            self.cap_ops.append(e.ds_read(a(164 + 8 * k, 4), vStg, 1024))
            self.staged[g1 + g] = k
            self.cap_next = 8 * (g + 1) if k < n - 1 else 1 << 20
            yield

    def stage_group(self):
        e = self.e
        g = self.stage_plan.pop(0)
        k = len(self.staged) % 12
        self.staged[g] = k
        for sk, b, n in self.segs:
            if b <= 8 * g < b + n:
                break
        e.S("s_add_u32", sStg, sSeg[sk], (8 * g - b) * KB)
        yield
        e.bload(a(160 + 8 * k, 4), vDma, WS, sStg, 0, cls=self.dcls(sk))
        yield
        e.bload(a(164 + 8 * k, 4), vDma, WS, sStg, 1024, cls=self.dcls(sk))
        self.stage_mid = None
        yield

    def restore(self, n):
        e = self.e
        for g in self.deferred[:n]:
            k = self.staged[g]
            e.V("v_add_u32", vStg, self.ldsaddr(8 * g), vDma)
            e.ds_write(vStg, a(160 + 8 * k, 4), 0)
            self.dmaop[g] = e.ds_write(vStg, a(164 + 8 * k, 4), 1024)
        self.deferred = self.deferred[n:]

    def finish_stage(self):
        while self.stage_mid:
            next(self.stage_mid)

    def stage_step(self):
        e = self.e
        if e.outstanding() >= self.opt.get("qmax", 13):
            return False
        if not self.stage_mid:
            if not self.stage_plan or self.can_issue() or self.mid_group():
                return False
            c = self.dcls("C")
            if e.predict(c) + c[2] > self.deadline():
                return False
            self.stage_mid = self.stage_group()
        next(self.stage_mid)
        return True

    def dcls(self, k):
        return (750, 80, self.opt.get("svcAB", 150)) if k in "AB" else (750, self.opt.get("svcOC", 92), 75)

    def dma_ok(self):
        e = self.e
        if self.mid_group():
            g = self.issued - 1
        elif self.can_issue():
            g = self.issued
        else:
            return False
        if g in self.staged:
            return True
        if e.outstanding() >= self.opt.get("qmax", 13):
            return False
        if self.mid_group() or 8 * g < self.own_end:
            return True
        c = self.dcls(self.segof(8 * g))
        return e.predict(c) + c[2] <= self.deadline()

    def dma_filler(self):
        while True:
            if self.can_issue():
                for _ in self.dma_group():
                    yield True
            else:
                yield False

    def flush_dma_partial(self):
        while self.issued > 0 and (self.issued - 1) not in self.dmaop:
            next(self.dmaf)

    def dma_all(self):
        self.flush_dma_partial()
        while self.can_issue():
            for _ in self.dma_group():
                pass

    def ring_barrier(self, need_idx, extra_ops=(), free_all=False):
        e = self.e
        need_idx = min(need_idx, len(self.seq))
        upto = self.endpos(need_idx - 1) if need_idx > 0 else 0
        g = (upto + 7) // 8
        self.flush_dma_partial()
        while self.issued < g:
            assert self.can_issue(), ("ring deadlock", self.issued, g, self.freed, self.hold)
            self.warn.append(f"forced dma group {self.issued} at seq {self.rd}")
            for _ in self.dma_group():
                pass
        ops = list(extra_ops)
        for gg in range(self.visible // 8, g):
            assert gg not in self.deferred, gg
            ops.append(self.dmaop[gg])
        e.wait_ops(ops + self.cap_ops)
        self.cap_ops = []
        e.barrier()
        self.cap_hold = self.cap_next
        self.visible = max(self.visible, 8 * g)
        self.freed = self.seq[self.cons][0] if self.cons < len(self.seq) else self.total
        self.lastbar = self.rd

    def issue_read(self):
        e = self.e
        i = self.rd
        if i >= len(self.seq):
            return
        pos, k = self.seq[i]
        assert self.endpos(i) <= self.visible, ("read of invisible block", i, pos, self.visible)
        ad = self.ldsaddr(pos)
        base = (vW if k == "W" else vK)[ad >> 16]
        slot = i % FI
        e.ds_read(FIFO[4 * slot:4 * slot + 4], base, ad & 0xffff)
        self.rd += 1

    def prime(self):
        while self.rd < self.cons + FI and self.rd < len(self.seq) and self.endpos(self.rd) <= self.visible:
            self.issue_read()

    def run_pass(self, n, mf, ntile, xf, fillers=(), chunk=24, stop_reads=None, hooks=None,
                 aload=None, vrate=0.5, amix=(1, 0), over=0, force_bar=None, late=None, see_all=False, tail=2000, mix=0, must=None):
        e = self.e
        fillers = list(fillers)
        lim = stop_reads if stop_reads is not None else len(self.seq)
        st = {"next": 0, "k": 0, "t": 0}
        self.own_end = self.own_end_phase = self.endpos(lim - 1)
        self.deadline = lambda: e.T + (n - st["t"]) * 33 + tail

        i_first = self.cons

        def dma_need():
            g = self.issued - 1 if self.mid_group() else self.issued
            for i in range(self.cons, lim):
                if self.endpos(i) > 8 * g:
                    return i - i_first - FI - chunk
            return 1 << 20

        def one_vmem():
            na, nd = amix
            n0 = len(e.vm)
            if st.get("late"):
                if e.T < st["next"]:
                    return False
                try:
                    next(st["late"])
                except StopIteration:
                    st["late"] = None
                    return False
            else:
                na_ = (aload.n // 2) * ntile if (aload is not None and not aload.done) else 1 << 21
                nd_ = dma_need() if (self.mid_group() or self.can_issue()) else 1 << 22
                run = self.opt.get("run", 0)
                if run and na_ < 1 << 21 and nd_ < 1 << 20:
                    if st.get("cur") == "a" and na_ - run <= nd_:
                        nd_ = max(nd_, na_)
                    elif st.get("cur") == "d" and nd_ - run < na_:
                        na_ = max(na_, nd_ + 1)
                    st["cur"] = "a" if na_ <= nd_ else "d"
                urgent = min(na_, nd_) - st["t"] <= self.opt.get("horizon", 30) + run
                if e.T < st["next"] and not urgent:
                    return False
                if mix and na_ < 1 << 21 and st["k"] % mix == mix - 1 and na_ - st["t"] > self.opt.get("mixh", 10) and self.dma_ok():
                    next(self.dmaf)
                elif na_ <= nd_ and na_ < 1 << 21:
                    if e.outstanding() >= self.opt.get("qmax", 13) and not urgent:
                        return False
                    if aload.n // 2 >= st["t"] // ntile + aload.win - 1:
                        return False
                    aload.step()
                elif nd_ < 1 << 22 and (urgent or self.dma_ok()):
                    next(self.dmaf)
                elif not self.stage_step():
                    return False
            if len(e.vm) > n0:
                st["k"] += 1
                st["next"] = e.T + self.opt.get("vgap", 24)
            return True

        def fill(budget):
            while budget > 0:
                n0 = e.ninst
                did = one_vmem()
                if not did:
                    for f in list(fillers):
                        try:
                            if next(f) == "idle":
                                continue
                            did = True
                            break
                        except StopIteration:
                            fillers.remove(f)
                if not did:
                    return
                budget -= e.ninst - n0

        def waits_for(t):
            regs = []
            for tt in (t, t + 1):
                if tt < n:
                    ks = tt // ntile
                    if aload is not None:
                        aload.upto(ks)
                    idx = self.cons + (tt - t)
                    if idx < self.rd:
                        regs += FIFO[4 * (idx % FI):4 * (idx % FI) + 4].regs()
                    regs += xf(ks, 0).regs() + xf(ks, 1).regs()
            return e._pending(regs)

        e.wait_ops(waits_for(0))
        if aload is not None:
            self.stamp("1st")
            self.warn.append(f"fill {8 * self.issued - self.seq[self.cons][0]}")
        for t in range(n):
            if aload is not None and self.opt.get("midstamp") and t == n // 2:
                self.stamp("half")
            i = self.cons
            assert self.rd > i, ("fifo underrun", i)
            W = FIFO[4 * (i % FI):4 * (i % FI) + 4]
            st["t"] = t
            if must is not None and t == n - ntile - 2:
                for _ in must:
                    self.warn.append("must drained late")
            if t == int(n * self.opt.get("cfrac", 0.8)) and n > 30:
                fillers.insert(0, self.code_touch_gen())
            if hooks and hooks.get("add"):
                g_ = hooks["add"](t)
                if g_:
                    fillers.append(g_)
            ov = over if fillers else 0
            mf(t, W, 0)
            bar = self.rd < lim and (self.endpos(self.rd) > self.visible or self.rd - self.lastbar >= chunk)
            bar = bar or t == force_bar
            if late and t >= late[0] and not st.get("lateon") and (aload is None or aload.done) and 8 * self.issued >= min(self.own_end, self.endpos(min(i_first + n + FI, lim) - 1)) and not self.mid_group():
                st["late"] = late[1]
                st["lateon"] = True
                self.warn.append(f"late at {t}")
            if bar:
                ex, after = [], None
                if hooks and hooks.get("bar"):
                    ex, after = hooks["bar"](t)
                self.ring_barrier(lim if see_all else min(self.rd + chunk, lim), ex)
                if after:
                    after()
            else:
                fill(2 + ov)
            mf(t, W, 1)
            self.cons += 1
            used = 0
            if self.rd < lim:
                self.issue_read()
                used = 1
            pend = waits_for(t + 1) if (t % 2 == 1 and t + 1 < n) else []
            fill(2 + ov - used - (1 if pend else 0))
            if pend:
                e.wait_ops(waits_for(t + 1))
        if late and not st.get("lateon"):
            st["late"] = late[1]
        for f in fillers + ([st["late"]] if st.get("late") else []):
            for _ in f:
                pass

    def segof(self, pos):
        for k, b, n in self.segs:
            if b <= pos < b + n:
                return k
        return "O"

    def mid_group(self):
        return self.issued > 0 and (self.issued - 1) not in self.dmaop

    def dma_burst(self, maxgroups=99):
        e = self.e
        self.flush_dma_partial()
        gs = []
        while self.can_issue() and len(gs) < maxgroups:
            gs.append(self.issued)
            self.issued += 1
        for w in (1, 2, 3):
            mine = gs[w - 1::3]
            if not mine:
                continue
            skip = e.newlabel("noburst")
            e.S("s_cmp_lg_u32", sWave, w)
            e.branch("s_cbranch_scc1", skip)
            e.cond_begin()
            for g in mine:
                pos = 8 * g
                for k, b, n in self.segs:
                    if b <= pos < b + n:
                        break
                for h in range(2):
                    e.S("s_mov_b32", M0, self.ldsaddr(pos) + h * 4096)
                    e.S("s_add_u32", sDm, sSeg[k], (pos - b) * KB + h * 4096)
                    for q in range(4):
                        self.dmaop[g] = e.dma(vL16, WS, sDm, q * 1024)
            e.cond_end()
            e.label(skip)

    def prologue(self):
        e = self.e
        e.S("s_cmp_ge_u32", s(2), 256)
        e.branch("s_cbranch_scc1", "main_end")
        if self.opt.get("stamps"):
            e.V("v_mov_b32", v(53), 0)
        self.stamp("t0")
        if self.opt.get("spin"):
            e.memtime(sTm, True)
            e.V("v_mov_b32", v(53), sTm[0])
        e.sload(PP, s(0, 2), 0)
        e.sload(pOut, s(0, 2), 64)
        e.sload(pWs, s(0, 2), 80)
        T0, T1, T2, T3 = TMP[48], TMP[49], TMP[50], TMP[51]
        e.S("s_getpc_b64", s(88, 2))
        e.label("main_pc")
        e.V("v_lshlrev_b32", T2, 5, v(0))
        e.S("s_sub_u32", s(88), s(88), "main_pc-" + self.kname)
        e.S("s_subb_u32", s(89), s(89), 0)
        e.misc(f"global_load_dword {vDum}, {T2}, s[88:89]")
        e._vm([], (2000, 30, 0))
        e.V("v_lshrrev_b32", T0, 6, v(0))
        e.V("v_and_b32", vLane, 63, v(0))
        e.V("v_readfirstlane_b32", sWave, T0)
        e.S("s_lshr_b32", sB, s(2), 3)
        e.S("s_mul_i32", sB, sB, 1792)
        e.S("s_add_u32", sB, sB, 8192)
        e.V("v_lshl_add_u32", T2, v(0), 3, sB)
        e.V("v_min_u32", T2, self.opt.get("code_bytes", 32768) - 4, T2)
        e.misc(f"global_load_dword {vDum}, {T2}, s[88:89]")
        e._vm([], (2000, 30, 0))
        e.V("v_lshlrev_b32", vL16, 4, vLane)
        e.V("v_and_b32", vN, 15, vLane)
        e.V("v_lshrrev_b32", vG, 4, vLane)
        self.vBig = TMP[52]
        e.V("v_mov_b32", self.vBig, BIG)
        e.S("s_and_b32", sA, s(2), 7)
        e.S("s_lshl_b32", sA, sA, 1)
        e.S("s_lshr_b32", sB, s(2), 7)
        e.S("s_add_u32", sR, sA, sB)
        e.S("s_bfe_u32", sC, s(2), (4 << 16) | 3)

    def gather(self, raw, srd, sstride, vaddr, srow, n=8):
        e = self.e
        e.S("s_mul_i32", sLd, srow, sstride)
        for i in range(n):
            e.bload(raw[i], vaddr, srd, sLd, 0, w="ushort", cls=(2500, 32, 0))
            if i < n - 1:
                e.S("s_add_u32", sLd, sLd, sstride)

    def pack(self, raw, n=4):
        for i in range(n):
            self.e.V("v_lshl_or_b32", raw[i], raw[2 * i + 1], 16, raw[2 * i])

    def colsum(self, regs, ex, vs, vt):
        e = self.e
        e.V("v_mov_b32", vs, 0)
        for r_ in regs:
            e.V("v_dot2c_f32_bf16", vs, r_, vOne)
        allreduce_g(e, vs, vt)
        e.V("v_sub_f32", vs, 0, vs)
        e.V("v_cvt_pk_bf16_f32", vt, vs, vs)
        e.V("v_lshlrev_b32", vt, 16, vt)
        e.V("v_sub_f32", vt, vs, vt)
        e.V("v_cvt_pk_bf16_f32", ex[0], vs, vt)
        e.V("v_and_b32", ex[1], "0xffff", ex[0])

    def startup(self):
        e = self.e
        vBig = self.vBig
        RAW1, EX = ACC[0:20], ACC[20:24]
        RAW2 = TMP[8:40]
        vCol, vReg, vLeft, vT0, vT1, vSum, vLd = [FIFO[i] for i in range(7)]
        vA0, vA1, vA2, vSt2, vBias = RES[8], RES[9], B2F[8], B2F[9], TMP[50]
        sT, sP = s(54), s(55)
        sStr = s(56)
        XJ = [RES[0:4], RES[4:8], B2F[0:4]]
        XD, XA, XB_ = B2F[4], ACC[32], ACC[33]
        XM = [s(57), s(58), s(59)]
        T0, T1, T2, T3 = TMP[48], TMP[49], TMP[50], TMP[51]
        e.V("v_lshrrev_b32", T1, 3, vLane)
        e.V("v_and_b32", T3, 7, vLane)
        e.V("v_mul_u32_u24", T0, 1280, T3)
        e.V("v_lshl_add_u32", XA, T1, 4, T0)
        e.V("v_lshrrev_b32", T2, 4, vLane)
        e.V("v_lshl_add_u32", XB_, T2, 7, XA)
        e.V("v_lshlrev_b32", XD, 8, T1)
        e.V("v_lshl_add_u32", XD, T3, 4, XD)
        e.S("s_lshl_b32", sE, sR, 4)
        e.S("s_add_u32", sE, sE, sC)
        e.S("s_mul_i32", sE, sE, 8 * 1280)
        e.S("s_mul_i32", sD, sWave, 3)
        mk_srd(e, XIN, PP[0:2], XSZ)
        for k in range(3):
            e.S("s_add_u32", XM[k], sD, k)
            e.S("s_cmp_ge_u32", XM[k], 8)
            e.S("s_cselect_b64", VCC, -1, 0)
            e.S("s_cselect_b32", sA, 40, 10)
            e.S("s_cselect_b32", sB, 8 - 8 * 40, 0)
            e.V("v_cndmask_b32", T0 if k != 1 else T1, XA, XB_, VCC)
            e.S("s_mul_i32", sA, sA, XM[k])
            e.S("s_add_u32", sA, sA, sB)
            e.S("s_lshl_b32", sA, sA, 4)
            e.S("s_add_u32", sA, sA, sE)
            e.S("s_cmp_ge_u32", XM[k], 10)
            e.S("s_cselect_b32", sA, BIG, sA)
            e.S("s_cselect_b32", XM[k], BIG // 2048, XM[k])
            e.bload(XJ[k], T0 if k != 1 else T1, XIN, sA, 0, cls=(2000, 100, 0))
        self.stamp("issx")
        e.S("s_lshr_b32", sP, sR, 1)
        e.S("s_and_b32", sT, sR, 1)
        e.S("s_lshl_b32", sT, sT, 2)
        e.S("s_add_u32", sT, sT, sWave)
        e.S("s_mov_b32", s(4), (656 << 20) | (660 << 10) | 640)
        e.S("s_mov_b32", s(5), 0)
        e.S("s_mul_i32", sA, sT, 10)
        e.S("s_lshr_b32", sA, s(4), sA)
        e.S("s_and_b32", sA, sA, 1023)
        for t, val in ((3, 1280), (4, 1300), (5, 0), (6, 1), (7, 32)):
            e.S("s_cmp_eq_u32", sT, t)
            e.S("s_cselect_b32", sA, val, sA)
        e.S("s_mul_i32", sB, sC, 40)
        e.S("s_add_u32", sA, sA, sB)
        e.V("v_add_u32", vCol, sA, vN)
        e.V("v_add_u32", vT0, vCol, vN)
        e.S("s_sub_u32", sB, sT, 5)
        e.S("s_cmp_lt_u32", sB, 2)
        e.S("s_cselect_b64", VCC, -1, 0)
        e.V("v_cndmask_b32", vCol, vCol, vT0, VCC)
        e.V("v_lshrrev_b32", vT0, 3, vN)
        e.V("v_mul_u32_u24", vT0, 632 - 32, vT0)
        e.V("v_lshrrev_b32", vT1, 2, vN)
        e.V("v_lshl_add_u32", vT0, vT1, 4, vT0)
        e.V("v_add3_u32", vT0, vT0, vN, sA)
        e.S("s_cmp_eq_u32", sT, 2)
        e.S("s_cselect_b64", VCC, -1, 0)
        e.V("v_cndmask_b32", vCol, vCol, vT0, VCC)
        e.V("v_lshlrev_b32", vCol, 1, vCol)
        e.S("s_cmp_eq_u32", sT, 7)
        e.S("s_cselect_b32", sB, 8, 16)
        e.V("v_cmp_le_u32", VCC, sB, vN)
        e.S("s_mov_b32", sStr, 3840)
        e.V("v_cndmask_b32", vCol, vCol, vBig, VCC)
        e.S("s_mov_b32", sD, 8 * 3840)
        e.V("v_mad_u32_u24", vReg, vG, sD, vCol)
        e.V("v_and_b32", vT0, 1, vG)
        e.V("v_lshrrev_b32", vT1, 1, vG)
        e.V("v_lshl_add_u32", vLd, vT0, 1, vT1)
        e.S("s_mov_b32", sD, 4 * 3840)
        e.V("v_mad_u32_u24", vLeft, vLd, sD, vCol)
        mk_srd(e, SR1, PP[2:4], D * 3 * D * 2)
        e.S("s_mul_i32", sB, sP, 80)
        self.gather(RAW1[0:8], SR1, sStr, vReg, sB)
        e.S("s_add_u32", sA, sB, 32)
        self.gather(RAW1[8:16], SR1, sStr, vReg, sA)
        e.S("s_add_u32", sA, sB, 64)
        self.gather(RAW1[16:20], SR1, sStr, vLeft, sA, 4)
        self.stamp("iss1")
        def r2touch():
            e.S("s_lshl_b32", sA, s(2), 2)
            e.S("s_add_u32", sA, sA, sWave)
            e.V("v_min_u32", T0, 17, vLane)
            e.V("v_lshlrev_b32", T0, 7, T0)
            e.S("s_mul_i32", sB, sA, 2160)
            mk_srd(e, SR2, PP[8:10], F * D * 2)
            e.touch(vDum, T0, SR2, sB, 0, cls=(2000, 30, 0))
            mk_srd(e, SR2, PP[12:14], F * D * 2)
            e.touch(vDum, T0, SR2, sB, 0, cls=(2000, 30, 0))
            e.V("v_min_u32", T0, 7 * 128, T0)
            mk_srd(e, SR2, PP[4:6], D * D * 2)
            e.S("s_mul_i32", sB, sA, 800)
            e.touch(vDum, T0, SR2, sB, 0, cls=(2000, 30, 0))
        if self.opt.get("r2touch", 3) == 1:
            r2touch()
        if self.opt.get("wsoff"):
            e.S("s_add_u32", pWs[0], pWs[0], self.opt["wsoff"] << 20)
            e.S("s_addc_u32", pWs[1], pWs[1], 0)
        mk_srd(e, WS, pWs, WS_USED)
        e.sload(sBase, pWs, EPOCH)
        e.S("s_mov_b32", sA, "0x3f803f80")
        e.V("v_mov_b32", vOne, sA)
        ops1 = []
        e.S("s_lshr_b32", sA, sC, 1)
        e.S("s_lshl_b32", sB, sR, 3)
        e.S("s_add_u32", sA, sA, sB)
        e.S("s_mul_i32", sA, sA, 20 * KB)
        e.S("s_and_b32", sB, sC, 1)
        e.S("s_lshl_b32", sB, sB, 7)
        e.S("s_add_u32", sA, sA, sB)
        e.S("s_add_u32", sA, sA, XB[0])
        for k in range(3):
            e.S("s_lshl_b32", sB, XM[k], 11)
            e.S("s_add_u32", sB, sB, sA)
            ops1.append(e.bstore(XJ[k], XD, WS, sB, 0, "sc1", cls=(1000, 70, 0)))
        xs = ACC[26:28]
        xz = ACC[24:26]
        MK = ACC[28:32]
        for r_ in (xs[0], xs[1], xz[0], xz[1]):
            e.V("v_mov_b32", r_, 0)
        for k in range(3):
            for i in range(4):
                e.V("v_dot2c_f32_bf16", xs[0], XJ[k][i], vOne)
                e.V("v_dot2c_f32_bf16", xs[1], XJ[k][i], XJ[k][i])
        for h in range(2):
            e.V("v_add_f32_dpp", xs[h], xs[h], xs[h], mods="row_ror:8 row_mask:0xf bank_mask:0xf")
            allreduce_g(e, xs[h], vT0)
        e.S("s_lshl_b32", sA, sR, 3)
        e.S("s_add_u32", sA, sA, sWave)
        e.S("s_lshl_b32", sA, sA, 10)
        e.S("s_lshl_b32", sB, sC, 6)
        e.S("s_add_u32", sA, sA, sB)
        e.S("s_add_u32", sA, sA, STB[0])
        e.S("s_add_u32", sB, sA, 4096)
        e.V("v_lshlrev_b32", vT0, 3, vLane)
        e.S("s_mov_b64", EXEC, "0xff")
        ops1.append(e.bstore(xs, vT0, WS, sA, 0, "sc1", cls=(1000, 20, 0)))
        ops1.append(e.bstore(xz, vT0, WS, sB, 0, "sc1", cls=(1000, 20, 0)))
        e.S("s_mov_b64", EXEC, -1)
        self.stamp("xst")
        e.S("s_cmp_lt_u32", sT, 5)
        e.S("s_cselect_b32", sE, 5, 3)
        e.S("s_cselect_b32", sA, 0, 100)
        e.S("s_add_u32", sA, sA, sT)
        e.S("s_mul_i32", sB, sC, NA)
        e.S("s_add_u32", sA, sA, sB)
        e.S("s_add_u32", sA, sA, WA // KB)
        e.S("s_lshl_b32", sA, sA, 10)
        e.S("s_lshl_b32", sE, sE, 10)
        e.S("s_mul_i32", sB, sP, sE)
        e.S("s_lshl_b32", sB, sB, 1)
        e.S("s_add_u32", sB, sB, sA)
        self.pack(RAW1[0:8])
        ops1.append(e.bstore(RAW1[0:4], vL16, WS, sB, 0, "sc1", cls=(1000, 70, 0)))
        e.S("s_add_u32", sB, sB, sE)
        self.pack(RAW1[8:16])
        ops1.append(e.bstore(RAW1[8:12], vL16, WS, sB, 0, "sc1", cls=(1000, 70, 0)))
        e.S("s_lshr_b32", sB, sP, 1)
        e.S("s_add_u32", sB, sB, 16)
        e.S("s_mul_i32", sB, sB, sE)
        e.S("s_add_u32", sB, sB, sA)
        e.S("s_and_b32", sD, sP, 1)
        e.S("s_lshl_b32", s(4), sD, 9)
        e.S("s_add_u32", sB, sB, s(4))
        e.V("v_lshlrev_b32", vT0, 8, vG)
        e.V("v_and_b32", vT0, 256, vT0)
        e.V("v_lshl_add_u32", vT0, vN, 4, vT0)
        e.V("v_lshrrev_b32", vT1, 1, vG)
        e.V("v_lshl_add_u32", vLd, vT1, 3, vT0)
        self.pack(RAW1[16:20], 2)
        ops1.append(e.bstore(RAW1[16:18], vLd, WS, sB, 0, "sc1", cls=(1000, 40, 0)))
        self.colsum([RAW1[i] for i in (0, 1, 2, 3, 8, 9, 10, 11, 16, 17)], EX, vSum, vT0)
        e.S("s_mul_i32", sB, sE, 20)
        e.S("s_add_u32", sB, sB, sA)
        e.S("s_lshr_b32", sA, sP, 1)
        e.S("s_lshl_b32", sA, sA, 8)
        e.S("s_add_u32", sB, sB, sA)
        e.S("s_lshl_b32", sD, sD, 3)
        e.S("s_add_u32", sB, sB, sD)
        e.S("s_mov_b64", EXEC, "0xffff")
        ops1.append(e.bstore(EX[0:2], vL16, WS, sB, 0, "sc1", cls=(1000, 20, 0)))
        e.S("s_mov_b64", EXEC, -1)
        self.stamp("r1")
        if self.opt.get("r2touch", 3) == 2:
            r2touch()
        for i in range(4):
            e.V("v_mov_b32", MK[i], -1)
        e.S("s_lshl_b32", sA, sC, 4)
        e.S("s_add_u32", sA, sA, sR)
        e.S("s_mul_i32", sA, sA, KVSZ)
        e.S("s_mul_i32", sB, sWave, KVSZ // 4)
        e.S("s_add_u32", sA, sA, sB)
        e.S("s_add_u32", sA, sA, KVB[0])
        e.S("s_mov_b64", EXEC, "0xfffffff")
        ops1.append(e.bstore(MK, vL16, WS, sA, 0, "sc1", cls=(1000, 40, 0)))
        e.S("s_mov_b64", EXEC, -1)
        self.stamp("xjob")
        e.S("s_and_b32", sCG, sC, 7)
        e.S("s_lshr_b32", sRH, sC, 3)
        if self.opt.get("r2touch", 3) == 3:
            r2touch()
        mk_srd(e, SB2, PP[14:16], D * 2)
        self.prologue2()
        self.stamp("pro2")
        sU, sP, sStr, sJ = s(88), s(89), s(100), s(101)
        rows = [s(3 + i) for i in range(4)]
        D2 = [s(64), s(65), s(66), s(67)]
        sDB, sDX = s(70), s(71)
        vSel0, vSel1 = vA1, vA2
        mk_srd(e, SR1, PP[10:12], F * 2)
        e.S("s_lshl_b32", sJ, sRH, 4)
        e.S("s_add_u32", sJ, sJ, sR)
        e.S("s_lshl_b32", sJ, sJ, 2)
        e.S("s_add_u32", sJ, sJ, sWave)
        e.V("v_lshrrev_b32", vT0, 1, vG)
        e.V("v_and_b32", vT1, 1, vG)
        e.V("v_mov_b32", vSt2, vL16)
        e.S("s_mov_b32", sDX, BIG)
        lo, lc, lj = e.newlabel("job_wo"), e.newlabel("job_w2"), e.newlabel("job_go")

        def unit(sbase, nu, stride, ca, cb, nreg, dB):
            e.S("s_lshl_b32", sA, sU, 5)
            e.S("s_add_u32", sA, sA, sbase)
            e.S("s_lshl_b32", sA, sA, 1)
            e.S("s_mov_b32", sDB, dB)
            e.S("s_cmp_lt_u32", sU, nu)
            e.S("s_cselect_b64", VCC, -1, 0)
            e.S("s_cselect_b32", sDB, sDB, BIG)
            e.V("v_lshlrev_b32", vCol, 2, vN)
            e.V("v_and_b32", vReg, 14, vN)
            e.V("v_lshlrev_b32", vReg, 1, vReg)
            e.V("v_cndmask_b32", vCol, vReg, vCol, VCC)
            e.V("v_add_u32", vCol, sA, vCol)
            e.V("v_and_b32", vReg, 1, vN)
            e.V("v_cndmask_b32", vReg, vReg, 0, VCC)
            e.S("s_mov_b32", sA, "0x02020202")
            e.V("v_mul_lo_u32", vReg, vReg, sA)
            e.V("v_add_u32", vSel0, "0x05040100", vReg)
            e.S("s_mov_b32", sStr, stride)
            e.S("s_mov_b32", sD, 8 * stride)
            e.V("v_mul_u32_u24", vReg, sD, vG)
            e.S("s_mov_b32", sD, ca * stride)
            e.V("v_mul_u32_u24", vLeft, sD, vT0)
            e.S("s_mov_b32", sD, cb * stride)
            e.V("v_mad_u32_u24", vLeft, vT1, sD, vLeft)
            e.S("s_cmp_lt_u32", sP, nreg)
            e.S("s_cselect_b64", VCC, -1, 0)
            e.V("v_cndmask_b32", vA0, vLeft, vReg, VCC)

        def split_dests(half):
            for b in range(4):
                e.S("s_lshl_b32", sA, sP, 2)
                e.S("s_add_u32", sA, sA, b)
                e.S("s_mul_i32", sD, sA, 10)
                e.S("s_cmp_ge_u32", sA, half)
                e.S("s_cselect_b32", sB, 10 * half - 1, 0)
                e.S("s_sub_u32", sD, sD, sB)
                e.S("s_add_u32", sD, sD, sE)
                e.S("s_lshl_b32", D2[b], sD, 10)
                if half == 27 and b >= 2:
                    e.S("s_cmp_ge_u32", sA, 54)
                    e.S("s_cselect_b32", D2[b], BIG, D2[b])

        def div3(dq, dr, src):
            e.S("s_mul_i32", dq, src, 43691)
            e.S("s_lshr_b32", dq, dq, 17)
            e.S("s_mul_i32", sA, dq, 3)
            e.S("s_sub_u32", dr, src, sA)

        e.S("s_cmp_ge_u32", sJ, 55)
        e.branch("s_cbranch_scc1", lc)
        e.S("s_cmp_ge_u32", sJ, 40)
        e.branch("s_cbranch_scc1", lo)
        e.cond_begin()
        mk_srd(e, SR2, PP[8:10], D * F * 2)
        e.S("s_and_b32", sU, sJ, 3)
        e.S("s_lshr_b32", sP, sJ, 2)
        e.S("s_cmp_ge_u32", sP, 5)
        e.S("s_cselect_b32", sA, 5, 0)
        e.S("s_cselect_b32", sJ, 8, 0)
        e.S("s_sub_u32", sP, sP, sA)
        e.S("s_add_u32", sJ, sJ, sCG)
        e.S("s_mul_i32", sE, sJ, 112)
        e.S("s_max_u32", sB, sJ, 12)
        e.S("s_sub_u32", sB, sB, 12)
        e.S("s_lshl_b32", sB, sB, 4)
        e.S("s_sub_u32", sE, sE, sB)
        unit(sE, 3, 3456, 80, 8, 4, 1024)
        e.S("s_lshl_b32", sA, sU, 4)
        e.S("s_add_u32", sA, sA, sJ)
        e.S("s_cmp_ge_u32", sA, 3 * 16 + 12)
        e.S("s_cselect_b64", VCC, -1, 0)
        e.V("v_cndmask_b32", vCol, vCol, vBig, VCC)
        for b in range(4):
            e.S("s_mul_i32", sA, sP, 160)
            e.S("s_add_u32", sA, sA, 80 * (b >> 1) + 32 * (b & 1))
            e.S("s_cmp_eq_u32", sP, 4)
            e.S("s_cselect_b32", rows[b], 160 * b + 64, sA)
        e.S("s_cmp_lt_u32", sU, B1N // 2)
        e.S("s_cselect_b32", s(79), B1N, 7 - B1N)
        e.S("s_cselect_b32", sE, 0, 20 * B1N)
        e.S("s_lshl_b32", sA, sU, 1)
        e.S("s_add_u32", sE, sE, sA)
        e.S("s_mul_i32", sB, sJ, NB)
        e.S("s_add_u32", sE, sE, sB)
        e.S("s_add_u32", sE, sE, WB // KB)
        for b in range(4):
            e.S("s_lshl_b32", sA, sP, 2)
            e.S("s_add_u32", sA, sA, b)
            e.S("s_mul_i32", sA, sA, s(79))
            e.S("s_add_u32", sA, sA, sE)
            e.S("s_lshl_b32", D2[b], sA, 10)
        e.S("s_mul_i32", sD, s(79), 20)
        e.S("s_add_u32", sD, sD, sE)
        e.S("s_lshl_b32", sDX, sD, 10)
        e.branch("s_branch", lj)
        e.cond_end()
        e.label(lo)
        e.cond_begin()
        mk_srd(e, SR2, PP[4:6], D * D * 2)
        e.S("s_sub_u32", sJ, sJ, 40)
        div3(sP, sU, sJ)
        e.S("s_mul_i32", sE, sCG, 80)
        unit(sE, 2, 1280, 80, 40, 4, 2048)
        for b in range(4):
            e.S("s_mul_i32", sA, sP, 160)
            e.S("s_add_u32", sA, sA, 40 * b)
            e.S("s_cmp_eq_u32", sP, 4)
            e.S("s_cselect_b32", rows[b], 160 * b + 32, sA)
        e.S("s_mul_i32", sE, sCG, NO)
        e.S("s_add_u32", sE, sE, WO // KB)
        e.S("s_lshl_b32", sA, sU, 2)
        e.S("s_add_u32", sE, sE, sA)
        split_dests(10)
        e.branch("s_branch", lj)
        e.cond_end()
        e.label(lc)
        e.cond_begin()
        mk_srd(e, SR2, PP[12:14], F * D * 2)
        e.S("s_sub_u32", sJ, sJ, 55)
        div3(sP, sU, sJ)
        e.S("s_mul_i32", sE, sCG, 80)
        unit(sE, 2, 1280, 112, 8, 12, 2048)
        e.S("s_cmp_ge_u32", sP, 14)
        e.S("s_cselect_b64", VCC, -1, 0)
        e.V("v_cndmask_b32", vCol, vCol, vBig, VCC)
        e.V("v_cndmask_b32", vSt2, vSt2, vBig, VCC)
        e.S("s_min_u32", sP, sP, 13)
        for b in range(4):
            e.S("s_lshl_b32", sD, sP, 2)
            e.S("s_add_u32", sD, sD, b)
            e.S("s_mul_i32", sA, sD, 43691)
            e.S("s_lshr_b32", sA, sA, 17)
            e.S("s_lshl_b32", sA, sA, 4)
            e.S("s_min_u32", sA, sA, 192)
            e.S("s_lshl_b32", sB, sD, 5)
            e.S("s_add_u32", sA, sA, sB)
            e.S("s_mul_i32", sB, sD, 224)
            e.S("s_sub_u32", sB, sB, 224 * 48 - 96)
            e.S("s_cmp_ge_u32", sD, 48)
            e.S("s_cselect_b32", rows[b], sB, sA)
        e.S("s_mul_i32", sE, sCG, NC)
        e.S("s_add_u32", sE, sE, WC // KB)
        e.S("s_lshl_b32", sA, sU, 2)
        e.S("s_add_u32", sE, sE, sA)
        split_dests(27)
        e.cond_end()
        e.label(lj)
        e.V("v_add_u32", vA0, vA0, vCol)
        e.S("s_cmp_lt_u32", sP, 2)
        e.S("s_cselect_b64", VCC, -1, 0)
        e.V("v_cndmask_b32", vBias, vBig, vCol, VCC)
        e.V("v_mov_b32", vSel1, "0x07060302")
        e.V("v_add_u32", vT0, sP, vG)
        e.V("v_lshrrev_b32", vT1, 1, vT0)
        e.V("v_lshlrev_b32", vLd, 4, vN)
        e.V("v_lshl_add_u32", vLd, vT1, 8, vLd)
        e.V("v_and_b32", vT0, 1, vT0)
        e.V("v_lshl_add_u32", vLd, vT0, 3, vLd)
        e.S("s_cmp_eq_u32", sP, 4)
        e.S("s_cselect_b32", sA, 4, 1)
        e.V("v_cmp_gt_u32", VCC, sA, vG)
        e.V("v_cndmask_b32", vLd, vBig, vLd, VCC)
        e.S("s_lshl_b32", sA, sC, 4)
        e.S("s_add_u32", sA, sA, sR)
        e.S("s_mul_i32", sA, sA, KVSZ)
        e.S("s_mul_i32", sB, sWave, KVSZ // 4)
        e.S("s_add_u32", sA, sA, sB)
        e.S("s_add_u32", s(79), sA, KVB[1])
        self.stamp("dec2")
        e.wait_ops(ops1)
        e.barrier()
        self.flag("both", 1)
        self.stamp("w1flag")
        self.ops2 = []

        def r2_loads():
            for b in range(4):
                e.S("s_mul_i32", sE, rows[b], sStr); yield
                for i in range(8):
                    e.bload(RAW2[8 * b + i], vA0, SR2, sE, 0, cls=(1500, 32, 0)); yield
                    if i < 7:
                        e.S("s_add_u32", sE, sE, sStr); yield
            e.bload(vBias, vBias, SR1, 0, 0, cls=(1500, 10, 0)); yield

        vs, vt, MK = TMP[48], TMP[49], TMP[40:44]
        EV = ACC[40:56]

        def r2_pack():
            for b in range(4):
                raw = RAW2[8 * b:8 * b + 8]
                for i in range(4):
                    e.V("v_perm_b32", EV[4 * b + i], raw[2 * i + 1], raw[2 * i], vSel0)
                for i in range(4):
                    e.V("v_perm_b32", raw[i], raw[2 * i + 1], raw[2 * i], vSel1)
            for i in range(4):
                e.V("v_mov_b32", MK[i], -1)
            e.V("v_cmp_eq_u32", sNan, 0, vG)
            for h in range(2):
                ex = TMP[44 + 2 * h:46 + 2 * h]
                self.colsum([EV[i] for i in range(16)] if h == 0 else [RAW2[8 * b + i] for b in range(4) for i in range(4)], ex, vs, vt)
                e.V("v_perm_b32", vt, vBias, vBias, vSel0 if h == 0 else vSel1)
                e.V("v_and_b32", vt, "0xffff0000", vt)
                e.V("v_or_b32", ex[1], ex[1], vt)
                e.V("v_cndmask_b32", ex[0], 0, ex[0], sNan)
                e.V("v_cndmask_b32", ex[1], 0, ex[1], sNan)
            e.V("v_mov_b32", vSel0, vLd)
            yield

        def r2_stores():
            for b in range(4):
                self.ops2.append(e.bstore(EV[4 * b:4 * b + 4], vSt2, WS, D2[b], 0, "sc1", cls=(1000, 70, 0)))
                e.S("s_add_u32", sA, D2[b], sDB)
                self.ops2.append(e.bstore(RAW2[8 * b:8 * b + 4], vSt2, WS, sA, 0, "sc1", cls=(1000, 70, 0)))
            e.S("s_mov_b64", EXEC, "0xfffffff")
            self.ops2.append(e.bstore(MK, vL16, WS, s(79), 0, "sc1", cls=(1000, 40, 0)))
            e.S("s_mov_b64", EXEC, -1)
            for h in range(2):
                if h:
                    e.S("s_add_u32", sDX, sDX, sDB)
                self.ops2.append(e.bstore(TMP[44 + 2 * h:46 + 2 * h], vSel0, WS, sDX, 0, "sc1", cls=(1000, 20, 0)))
        self.r2_stores = r2_stores
        self.r2_loads, self.r2_pack = r2_loads(), r2_pack()
        for _ in self.r2_loads:
            pass
        self.stamp("iss2")
        for _ in self.r2_pack:
            pass
        if self.opt.get("r2st", 2) == 2:
            r2_stores()
            self.late_loads()
        self.stamp("r2")
        self.poll("both", 1)
        e.barrier()
        self.stamp("w1go")

    def w2_gen(self):
        e = self.e
        t = RES[0]
        e.V("v_bfe_u32", t, vLane, 4, 1); yield
        e.V("v_lshl_add_u32", t, t, 11, vFl); yield
        e.S("s_lshl_b32", s(4), sCG, 8); yield
        e.S("s_add_u32", s(4), s(4), FLG_C); yield
        e.bload(RES[1], t, WS, s(4), 0, "sc1", cls=(900, 10, 0)); yield
        for _ in range(50):
            yield "idle"
        e.S("s_add_u32", s(5), sBase, 2); yield
        lok, lre = e.newlabel("w2ok"), e.newlabel("w2retry")
        e.V("v_cmp_ne_u32", VCC, s(5), RES[1])
        e.S("s_cmp_eq_u64", VCC, 0)
        e.branch("s_cbranch_scc1", lok)
        e.cond_begin()
        e.S("s_mov_b32", sCnt, 0)
        e.label(lre)
        e.misc("s_sleep 4")
        e.bload(RES[1], t, WS, s(4), 0, "sc1")
        e.V("v_cmp_ne_u32", VCC, s(5), RES[1])
        e.S("s_cmp_eq_u64", VCC, 0)
        e.branch("s_cbranch_scc1", lok)
        e.S("s_add_u32", sCnt, sCnt, 1)
        e.S("s_cmp_lt_u32", sCnt, 0x20000)
        e.branch("s_cbranch_scc1", lre)
        e.cond_end()
        e.label(lok)
        self.gate = 1 << 20
        yield

    def prologue2(self):
        e = self.e
        T0, T1, T2, T3, T4, T5 = [TMP[40 + i] for i in range(6)]
        mk_srd(e, OUT, pOut, XSZ)
        e.S("s_and_b32", sKH, sWave, 1)
        e.S("s_lshl_b32", sW2048, sWave, 11)
        e.S("s_mul_i32", sA, sC, NA * KB)
        e.S("s_add_u32", sSeg["A"], sA, WA)
        e.S("s_mul_i32", sA, sCG, NO * KB)
        e.S("s_add_u32", sSeg["O"], sA, WO)
        e.S("s_mul_i32", sA, sC, NB * KB)
        e.S("s_add_u32", sSeg["B"], sA, WB)
        e.S("s_mul_i32", sA, sCG, NC * KB)
        e.S("s_add_u32", sSeg["C"], sA, WC)
        e.V("v_add_u32", vDma, sW2048, vL16)
        e.S("s_mul_i32", sXr, sR, 160 * KB)
        e.S("s_mul_i32", sHr, sR, 432 * KB)
        e.S("s_lshl_b32", sSTr, sR, 13)
        e.S("s_mul_i32", sA, sWave, 40 * KB)
        e.V("v_add_u32", vAx[0], sA, vL16)
        e.V("v_add_u32", vAx[1], 20 * KB, vAx[0])
        e.V("v_lshlrev_b32", T0, 11, vG)
        e.V("v_lshl_add_u32", T0, vN, 3, T0)
        e.S("s_lshl_b32", sA, sWave, 8)
        e.V("v_add_u32", vSt, sA, T0)
        e.S("s_mov_b32", self.cInvD, lit(1.0 / D))
        for j in range(3):
            if j == 0:
                e.V("v_mov_b32", vW[0], vL16)
            else:
                e.V("v_add_u32", vW[j], j * 65536, vL16)
        e.S("s_lshl_b32", sA, sKH, 10)
        for j in range(3):
            e.V("v_add_u32", vK[j], sA, vW[j])
        e.V("v_lshlrev_b32", T4, 4, v(0))
        Z = TMP[44:48]
        Z = TMP[48:52]
        for j in range(4):
            e.V("v_mov_b32", Z[j], 0)
        e.ds_write(T4, Z, 0)
        e.ds_write(T4, Z, 4096)
        e.S("s_lshl_b32", sTT, sRH, 2)
        e.S("s_add_u32", sTT, sTT, sWave)
        e.S("s_xor_b32", sB, sTT, 1)
        for u, st in ((0, sTT), (1, sB)):
            e.S("s_mul_i32", sA, st, 20 * KB)
            e.S("s_mul_i32", sD, sKH, 10 * KB)
            e.S("s_add_u32", sA, sA, sD)
            e.V("v_add_u32", vAo[u], sA, vL16)
            e.S("s_mul_i32", sA, st, 54 * KB)
            e.S("s_mul_i32", sD, sKH, 27 * KB)
            e.S("s_add_u32", sA, sA, sD)
            e.V("v_add_u32", vAh[u], sA, vL16)
        e.V("v_lshrrev_b32", T0, 1, vG)
        e.V("v_and_b32", T1, 1, vG)
        e.V("v_lshlrev_b32", T2, 4, vN)
        e.V("v_lshl_add_u32", T3, T0, 8, T2)
        e.V("v_lshl_add_u32", T3, T1, 3, T3)
        e.S("s_mul_i32", sA, sTT, 20 * KB)
        e.V("v_add_u32", vXs, sA, vL16)
        e.V("v_add_u32", vXh, sA, T3)
        e.S("s_mul_i32", sA, sWave, 108 * KB)
        e.V("v_add_u32", vHs, sA, vL16)
        e.S("s_cmp_ge_u32", sC, 12)
        e.S("s_cselect_b32", sA, BIG, sA)
        e.V("v_add_u32", vHh, sA, T3)
        e.S("s_mul_i32", sA, sWave, 40 * KB)
        e.V("v_lshl_add_u32", T3, vG, 3, T2)
        e.V("v_add_u32", vOh, sA, T3)
        e.V("v_cmp_gt_u32", VCC, 2, vG)
        e.V("v_mov_b32", T3, BIG)
        e.V("v_cndmask_b32", vOh, T3, vOh, VCC)
        e.S("s_lshl_b32", sA, sTT, 7)
        e.V("v_lshl_add_u32", T3, vN, 3, sA)
        e.V("v_lshl_add_u32", vStW, T0, 2, T3)
        e.S("s_lshl_b32", sA, sWave, 7)
        e.S("s_add_u32", sA, sA, RST)
        e.V("v_lshl_add_u32", vRT, vG, 4, sA)
        e.V("v_lshl_add_u32", vRW, vN, 2, sA)
        e.S("s_lshl_b32", sA, sTT, 6)
        e.S("s_add_u32", sA, sA, RST)
        e.V("v_lshl_add_u32", vRF, vN, 2, sA)
        e.V("v_lshlrev_b32", T3, 4, vG)
        e.V("v_add_u32", vZ2, ZT + 128, T3)
        e.V("v_cmp_gt_u32", VCC, 10, vN)
        e.V("v_add_u32", T3, ZT, T3)
        e.V("v_cndmask_b32", vZ01, vZ2, T3, VCC)
        e.S("s_lshl_b32", sA, sR, 3)
        e.S("s_add_u32", sA, sA, sTT)
        e.S("s_mul_i32", sA, sA, 16 * 1280)
        e.S("s_mul_i32", sB, sCG, 160)
        e.S("s_add_u32", sA, sA, sB)
        e.V("v_mul_u32_u24", T3, 1280, vN)
        e.V("v_add_u32", T3, sA, T3)
        e.V("v_lshl_add_u32", vOut, vG, 4, T3)
        e.V("v_lshl_add_u32", vOut4, vG, 3, T3)
        e.S("s_mul_i32", sA, sWave, 5120)
        e.V("v_add_u32", vXch, sA, vL16)
        e.V("v_lshlrev_b32", vFl, 2, vN)
        e.V("v_mov_b32", vLn2[0], lit(LN2))
        e.V("v_mov_b32", vEps[0], lit(1e-6))
        e.S("s_mov_b32", sMaskV[0], "0x00ff00ff")
        e.S("s_mov_b32", sMaskV[1], "0x00ff00ff")
        e.S("s_lshl_b32", sA, sR, 8)
        e.S("s_add_u32", sFRL, sA, FLG_RL)
        e.S("s_add_u32", sFRG, sA, FLG_RG)
        e.S("s_lshl_b32", sA, sC, 8)
        e.S("s_add_u32", sFC, sA, FLG_C)
        e.S("s_lshl_b32", sA, sCG, 11)
        e.S("s_add_u32", sOx, sXr, sA)
        e.S("s_lshr_b32", sA, sCG, 1)
        e.S("s_lshl_b32", sA, sA, 10)
        e.S("s_and_b32", sB, sCG, 1)
        e.S("s_lshl_b32", sB, sB, 9)
        e.S("s_add_u32", sA, sA, sB)
        e.S("s_add_u32", sA, sA, 16 * KB)
        e.S("s_add_u32", sOxh, sXr, sA)
        e.S("s_lshl_b32", sA, sCG, 10)
        e.S("s_add_u32", sOst, sSTr, sA)
        e.S("s_lshl_b32", sA, sC, 10)
        e.S("s_add_u32", sOo, sXr, sA)
        e.S("s_lshl_b32", sA, sC, 8)
        e.S("s_add_u32", sA, sA, 16 * KB)
        e.S("s_add_u32", sOoh, sXr, sA)
        e.S("s_mul_i32", sA, sC, 3 * KB)
        e.S("s_add_u32", sOh, sHr, sA)
        e.S("s_lshl_b32", sA, sC, 9)
        e.S("s_add_u32", sA, sA, 48 * KB)
        e.S("s_add_u32", sOhh, sHr, sA)
        e.S("s_mul_i32", sKv, sC, 16 * KVSZ)
        e.misc(f"s_getreg_b32 {sX1}, hwreg(HW_REG_XCC_ID, 0, 4)")
        e.S("s_and_b32", sX1, sX1, 7)
        e.S("s_add_u32", sX1, sX1, 8)
        e.S("s_add_u32", sX1, sX1, sBase)
        e.S("s_mov_b32", sLocal, 0)
        U, Hh, Ee, Dq = T0, T1, T2, T3
        e.S("s_mov_b32", sA, 52429)
        e.V("v_mul_u32_u24", U, sA, v(0))
        e.V("v_lshrrev_b32", U, 18, U)
        e.V("v_mul_u32_u24", Dq, 5, U)
        e.V("v_sub_u32", Dq, v(0), Dq)
        e.V("v_cmp_le_u32", VCC, 21, U)
        e.V("v_cndmask_b32", Hh, 0, 1, VCC)
        e.V("v_mul_u32_u24", Ee, 21, Hh)
        e.V("v_sub_u32", Ee, U, Ee)
        A0, A1, A2, A3 = TMP[46], TMP[47], TMP[38], TMP[39]
        e.V("v_cmp_le_u32", s(100, 2), 16, Ee)
        e.V("v_cmp_eq_u32", s(88, 2), 4, Dq)
        e.V("v_cndmask_b32", A0, 0, 1, s(100, 2))
        e.V("v_lshl_add_u32", A0, Hh, 1, A0)
        e.V("v_add_u32", A1, 4, Hh)
        e.V("v_cndmask_b32", A1, A1, 6, s(100, 2))
        e.V("v_cndmask_b32", A0, A0, A1, s(88, 2))
        e.V("v_cndmask_b32", A1, Dq, Hh, s(88, 2))
        e.V("v_lshl_add_u32", A2, Hh, 2, Ee)
        e.V("v_subrev_u32", A2, 8, A2)
        e.V("v_cndmask_b32", A2, Ee, A2, s(100, 2))
        e.V("v_cmp_eq_u32", VCC, 20, Ee)
        e.V("v_cndmask_b32", A2, A2, 0, VCC)
        e.V("v_lshl_add_u32", A1, A1, 4, A2)
        e.V("v_lshlrev_b32", A1, 4, A1)
        e.V("v_lshl_add_u32", vKvSrc, A0, 10, A1)
        e.V("v_mul_u32_u24", A0, 5, Hh)
        e.V("v_add_u32", A0, A0, Dq)
        e.V("v_cmp_le_u32", s(88, 2), 8, A0)
        e.V("v_lshrrev_b32", A1, 1, A0)
        e.V("v_subrev_u32", A2, 8, A0)
        e.V("v_cndmask_b32", A1, A1, A2, s(88, 2))
        e.V("v_and_b32", A2, 1, A0)
        e.V("v_cndmask_b32", A2, A2, 0, s(88, 2))
        e.V("v_lshlrev_b32", A2, 3, A2)
        e.V("v_cndmask_b32", A0, 0, 1, s(88, 2))
        e.V("v_lshl_add_u32", A3, Hh, 1, A0)
        e.V("v_lshl_add_u32", A3, A3, 2, A1)
        e.V("v_lshl_add_u32", A3, A3, 4, A2)
        e.V("v_add_u32", A3, ZT, A3)
        e.V("v_mul_u32_u24", T4, 20, Hh)
        e.V("v_add_u32", T4, T4, Ee)
        e.V("v_cmp_le_u32", s(100, 2), 32, T4)
        e.V("v_and_b32", T5, 1, T4)
        e.V("v_cndmask_b32", T5, T5, 2, s(100, 2))
        e.V("v_lshl_add_u32", A0, T5, 1, A0)
        e.V("v_lshrrev_b32", T5, 1, T4)
        e.V("v_subrev_u32", T4, 32, T4)
        e.V("v_cndmask_b32", T4, T5, T4, s(100, 2))
        e.V("v_lshl_add_u32", T4, A1, 4, T4)
        e.V("v_lshl_add_u32", T4, T4, 4, A2)
        e.V("v_lshl_add_u32", T4, A0, 10, T4)
        e.V("v_cndmask_b32", T4, T4, A3, VCC)
        e.V("v_cmp_gt_u32", VCC, 210, v(0))
        e.V("v_mov_b32", T5, DUMMY)
        e.V("v_cndmask_b32", vKvDst, T5, T4, VCC)
        e.V("v_cndmask_b32", vKvSrc, 0, vKvSrc, VCC)
        e.V("v_lshlrev_b32", T4, 3, v(0))
        e.V("v_mov_b32", T5, BIG)
        e.V("v_cndmask_b32", vT16, T5, T4, VCC)
        e.V("v_and_b32", T4, -16, T4)
        e.V("v_and_b32", T0, 1, v(0))
        e.V("v_mul_u32_u24", T0, 8 * KVSZ, T0)
        e.V("v_add_u32", T4, T4, T0)
        e.V("v_cndmask_b32", vT16L, T5, T4, VCC)

    def late_loads(self):
        e = self.e
        T4, T5 = TMP[48], TMP[49]
        e.S("s_mul_i32", sB, sCG, 160)
        e.bload(RES[10:14], vOut, XIN, 0, 0)
        e.bload(RES[14:18], vOut, XIN, 0, 64)
        e.bload(RES[18:20], vOut4, XIN, 0, 128)
        e.V("v_lshl_add_u32", T4, vG, 4, sB)
        e.V("v_lshl_add_u32", T5, vG, 3, sB)
        e.bload(B2F[10:14], T4, SB2, 0, 0)
        e.bload(B2F[14:18], T4, SB2, 0, 64)
        e.bload(B2F[18:20], T5, SB2, 0, 128)
        skip = e.newlabel("noxid")
        e.S("s_cmp_lg_u32", sWave, 3)
        e.branch("s_cbranch_scc1", skip)
        e.cond_begin()
        e.S("s_lshl_b32", sA, sR, 8)
        e.S("s_add_u32", sA, sA, FLG_X)
        e.S("s_lshl_b32", sB, sC, 2)
        e.V("v_mov_b32", T4, sB)
        e.V("v_mov_b32", T5, sX1)
        e.S("s_mov_b64", EXEC, 1)
        e.bstore(T5, T4, WS, sA, 0, "sc1")
        e.S("s_mov_b64", EXEC, -1)
        e.cond_end()
        e.label(skip)

    def unpack(self, dst, pk):
        e = self.e
        for a_ in range(2):
            for j in range(4):
                e.V("v_lshlrev_b32", dst[8 * a_ + j], 16, pk[4 * a_ + j])
                e.V("v_and_b32", dst[8 * a_ + 4 + j], "0xffff0000", pk[4 * a_ + j])
        for j in range(2):
            e.V("v_lshlrev_b32", dst[16 + 2 * j], 16, pk[8 + j])
            e.V("v_and_b32", dst[16 + 2 * j + 1], "0xffff0000", pk[8 + j])

    class ALoad:
        def __init__(self, m, vaddr, terms, nks):
            self.m, self.vaddr, self.terms, self.nks = m, vaddr, terms, nks
            self.n = 0
            self.based = -1
            self.done = False
            self.win = 20

        def step(self):
            e = self.m.e
            ks, u = divmod(self.n, 2)
            if ks // 4 != self.based:
                self.based = ks // 4
                e.S("s_add_u32", sLd, self.terms[0], self.terms[1] + (ks // 4) * 4 * KB)
                return False
            e.bload(a((self.n % 40) * 4, 4), self.vaddr[u], WS, sLd, (ks % 4) * KB, self.m.opt.get("amod", "sc1"), cls=(self.m.opt.get("latA", 600), 76, 33 if self.nks == 27 else 16))
            self.n += 1
            self.done = self.n >= 2 * self.nks
            return True

        def upto(self, ks):
            while self.n < 2 * min(ks + 1, self.nks):
                self.step()

    def stats_loads(self, ver):
        e = self.e
        e.S("s_add_u32", sA, sSTr, STB[ver])
        for u in range(2):
            for k in range(2):
                e.bload(TMP[4 * u + 2 * k:4 * u + 2 * k + 2], vSt, WS, sA, k * 1024 + u * 128, "sc1", cls=(600, 20, 0))

    def stats_gen(self, need_T, have=False):
        e = self.e
        for u in range(2):
            sm, sq, t0, t1 = TMP[4 * u], TMP[4 * u + 1], TMP[4 * u + 2], TMP[4 * u + 3]
            if not have:
                e.V("v_add_f32", sm, sm, t0); yield
                e.V("v_add_f32", sq, sq, t1); yield
            for op in () if have else ("v_permlane32_swap_b32", "v_permlane16_swap_b32"):
                e.V("v_mov_b32", t0, sm); yield
                e.V("v_mov_b32", t1, sq); yield
                e.V(op, sm, t0); yield
                e.V(op, sq, t1); yield
                e.V("v_add_f32", sm, sm, t0); yield
                e.V("v_add_f32", sq, sq, t1); yield
            e.V("v_mul_f32", sm, lit(1.0 / D), sm); yield
            e.V("v_mul_f32", t0, sm, sm); yield
            e.V("v_fma_f32", sq, sq, self.cInvD, Neg(t0)); yield
            e.V("v_max_f32", sq, 0, sq); yield
            e.V("v_add_f32", sq, lit(1e-5), sq); yield
            e.V("v_rsq_f32", t0, sq); yield
            e.V("v_cvt_pk_bf16_f32", XE[u][0], sm, sm); yield
            e.V("v_mul_f32", sq, sq, t0); yield
            e.ds_write(vRW, t0, 64 * u); yield
            c2 = vC2 if u == 0 else vC2b
            e.V("v_mul_f32", c2[0], lit(LOG2E), t0); yield
            e.V("v_lshlrev_b32", t1, 16, XE[u][0]); yield
            e.V("v_sub_f32", sm, sm, t1); yield
            e.V("v_cvt_pk_bf16_f32", XE[u][1], sm, sq); yield
            e.V("v_and_b32", t1, "0xffff0000", XE[u][1]); yield
            e.V("v_sub_f32", t1, sq, t1); yield
            e.V("v_cvt_pk_bf16_f32", XE[u][3], sm, t1); yield
            e.V("v_mov_b32", XE[u][2], XE[u][0]); yield
        if need_T:
            for u in range(2):
                e.ds_read(RT[4 * u:4 * u + 4], vRT, 64 * u); yield

    def phi_pair(self, src, c2, bcast, t):
        e = self.e
        m = "op_sel_hi:[1,0]" if bcast else ""
        e.V("v_pk_mul_f32", t[0:2], src, c2, mods=m)
        e.V("v_exp_f32_e64", t[2], t[0], mods="clamp")
        e.V("v_exp_f32_e64", t[3], t[1], mods="clamp")
        e.V("v_max_f32", t[0], 0, t[0])
        e.V("v_max_f32", t[1], 0, t[1])
        e.V("v_pk_add_f32", t[2:4], t[2:4], vEps, mods="op_sel_hi:[1,0]")
        e.V("v_pk_fma_f32", t[0:2], t[0:2], vLn2, t[2:4], mods="op_sel_hi:[1,0,1]")

    def scratch(self, nblk, endpos):
        st = endpos - nblk
        if (st % RB) + nblk > RB:
            st = endpos - (endpos % RB) - nblk
        return st, self.ldsaddr(st)

    def bg_on(self, tail):
        e = self.e
        st = {"next": 0}
        t_end = e.T + tail
        self.deadline = lambda: t_end

        def f():
            if e.T >= st["next"] and self.dma_ok():
                n0 = len(e.vm) + len(e.lg) + len(self.deferred)
                while len(e.vm) + len(e.lg) + len(self.deferred) == n0:
                    next(self.dmaf)
                st["next"] = e.T + self.opt.get("vgap", 24)
        self.e.bg = f

    def code_touch(self, ahead=None):
        e = self.e
        if not self.opt.get("ctouch", 1):
            return
        lab = e.newlabel("here")
        e.label(lab)
        ahead = self.opt.get("cahead", 2048) if ahead is None else ahead
        e.V("v_lshlrev_b32", v(51), 5, v(0))
        e.V("v_add_u32", v(51), f"{lab}-{self.kname}+{ahead}", v(51))
        e.V("v_min_u32", v(51), self.opt.get("code_bytes", 32768) - 4, v(51))
        e.misc(f"global_load_dword {vDum}, {v(51)}, s[96:97]")
        e._vm([], (800, 30, 10))

    def delay(self, n, gen):
        for _ in range(n):
            yield "idle"
        yield from gen

    def code_touch_gen(self):
        self.code_touch(self.opt.get("cahead", 512))
        yield

    def bg_off(self):
        self.e.bg = None

    def gstore(self, lst, cold=False):
        e = self.e
        mode = self.opt.get("mode", "dual")
        if cold and not self.opt.get("touchcold", 0):
            mode = "safe"
        if mode != "dual":
            return [e.bstore(d, vo, WS, so, off, "sc1" if mode == "safe" else "") for d, vo, so, off in lst]
        ls, le = e.newlabel("st_safe"), e.newlabel("st_end")
        regs = []
        for d, vo, so, off in lst:
            regs += d.regs() + vo.regs()
        e.wait_ops(e._pending(regs))
        e.S("s_cmp_eq_u32", sLocal, 0)
        need = e._need("vmem", regs, [])
        if need > 1:
            e.nop(need - 1)
        e.branch("s_cbranch_scc1", ls)
        n0 = len(e.lines)
        ops = [e.bstore(d, vo, WS, so, off, "") for d, vo, so, off in lst]
        body = e.lines[n0:]
        assert len(body) == len(lst), body
        e.raw(f"  s_branch {le}")
        e.label(ls)
        for l in body:
            e.raw(l + " sc1")
        e.label(le)
        return ops

    def touch_gen(self, lst, cold=False):
        e = self.e
        if (cold and not self.opt.get("touchcold", 0)) or not self.opt.get("touch", 0):
            return
        for vo, sb, add, off in lst:
            e.S("s_add_u32", sE, sb, add); yield
            e.touch(vDum, vo, WS, sE, off, cls=(750, 80, 30)); yield

    def local_gen(self):
        e = self.e
        e.S("s_lshl_b32", s(6), sR, 8); yield
        e.S("s_add_u32", s(6), s(6), FLG_X); yield
        e.bload(TMP[52], vFl, WS, s(6), 0, "sc1"); yield
        for _ in range(40):
            yield "idle"
        e.V("v_cmp_ne_u32", VCC, sX1, TMP[52]); yield
        e.S("s_cmp_eq_u64", VCC, 0)
        e.S("s_cselect_b32", sLocal, 1, 0); yield

    def poll(self, kind, val):
        e = self.e
        skip = e.newlabel("nopoll")
        loop = e.newlabel("poll")
        e.S("s_cmp_lg_u32", sWave, 0)
        e.branch("s_cbranch_scc1", skip)
        e.cond_begin()
        t = TMP[55]
        e.S("s_mov_b32", sCnt, 0)
        e.S("s_mov_b64", sOk, 0)
        e.S("s_add_u32", sB, sBase, val)
        va, vb, sa, sb = vFl, vFl, sFRL, sFRG
        if kind == "both":
            va, vb, sa, sb = TMP[53], TMP[54], 0, 0
            e.V("v_cmp_gt_u32", VCC, 2, vG)
            e.V("v_mov_b32", va, sFC)
            e.V("v_mov_b32", vb, sFRL)
            e.V("v_cndmask_b32", va, vb, va, VCC)
            e.V("v_add_u32", va, va, vFl)
            e.V("v_mov_b32", vb, FLG_RG - FLG_RL)
            e.V("v_cndmask_b32", vb, vb, 0, VCC)
            e.V("v_add_u32", vb, va, vb)
        e.label(loop)

        def chk():
            e.misc("s_waitcnt vmcnt(0)")
            e.misc(f"v_subrev_u32 {t}, {sB}, {t}")
            e.misc(f"v_cmp_ge_u32 vcc, {8 - val}, {t}")
            e.misc(f"s_or_b64 {sOk}, {sOk}, vcc")
            e.misc(f"s_cmp_eq_u64 {sOk}, -1")
            e.misc(f"s_cbranch_scc1 {skip}")
        e.misc(f"buffer_load_dword {t}, {va}, {WS}, {sa} offen sc1")
        e.misc("s_add_u32 %s, %s, 1" % (sCnt, sCnt))
        chk()
        if kind == "both":
            e.misc("s_sleep 3")
        e.misc(f"s_and_b32 {sA}, {sCnt}, 3")
        e.misc(f"s_cbranch_scc1 {loop}")
        e.misc(f"buffer_load_dword {t}, {vb}, {WS}, {sb} offen sc1")
        chk()
        e.misc(f"s_cmp_lt_u32 {sCnt}, 0x40000")
        e.misc(f"s_cbranch_scc1 {loop}")
        e.cond_end()
        e.label(skip)

    def flag(self, kind, val):
        e = self.e
        lst = [(1, sFRG, "sc1", sC), (2, sFRL, "", sC)] if kind != "col" else []
        if kind != "row":
            lst.append((3, sFC, "sc1", sR))
        for w, sb, m, sidx in lst:
            skip = e.newlabel("noflag")
            e.S("s_cmp_lg_u32", sWave, w)
            e.branch("s_cbranch_scc1", skip)
            e.cond_begin()
            e.S("s_lshl_b32", sA, sidx, 2)
            e.V("v_mov_b32", TMP[54], sA)
            e.S("s_add_u32", sA, sBase, val)
            e.V("v_mov_b32", TMP[55], sA)
            e.S("s_mov_b64", EXEC, 1)
            e.bstore(TMP[55], TMP[54], WS, sb, 0, m)
            e.S("s_mov_b64", EXEC, -1)
            e.cond_end()
            e.label(skip)

    def handoff(self, val, ops, shadow=None, touch=()):
        e = self.e
        t_st = e.T
        hk = (val - 2) % 4
        pick = lambda name, d: self.opt[name + "s"][hk] if name + "s" in self.opt else self.opt.get(name, d)
        self.deadline = lambda: t_st + pick("topup", 2600)
        self.own_end = 0
        while self.dma_ok():
            next(self.dmaf)
        while self.stage_step():
            pass
        self.finish_stage()
        self.restore(self.opt.get("rest1", 4))
        e.wait_all_lg()
        self.ring_barrier(self.cons + FI + self.opt.get("ahead", 16), ops)
        self.hold = None
        self.flag("row", val)
        self.stamp("flag")
        t_flag = e.T
        if self.opt.get("post_touch", 0):
            for k, (vo, sb, add, off) in enumerate(touch):
                sr = sE if k % 2 else sD
                e.S("s_add_u32", sr, sb, add)
                e.touch(vDum, vo, WS, sr, off, "sc1", cls=(750, 66, 30))
        self.deadline = lambda: t_flag + pick("topup2", 1800)
        while self.dma_ok():
            next(self.dmaf)
        while self.stage_step():
            pass
        self.finish_stage()
        self.warn.append(f"staged {len(self.staged)}")
        self.stage_plan = []
        self.prime()
        self.restore(99)
        if shadow:
            shadow()
        self.poll("row", val)
        e.T = max(e.T, t_flag + 1000)
        e.barrier()
        self.stamp("go")

    def phaseA(self, p):
        e = self.e
        opt = self.opt
        xv = 2 * p
        acc = lambda T, u: ACC[(T * 2 + u) * 4:(T * 2 + u) * 4 + 4]
        xf = lambda ks, u: a((ks * 2 + u) * 4, 4) if ks < 20 else XE[u]
        if p == 0:
            e.S("s_mov_b32", sSel[0], "0x00003f80")
            e.S("s_mov_b32", sSel[1], "0x3f800000")
            e.S("s_mov_b32", sOdd[0], "0xaaaaaaaa")
            e.S("s_mov_b32", sOdd[1], "0xaaaaaaaa")
            e.S("s_getpc_b64", s(96, 2))
            e.label("main_pc2")
            e.S("s_sub_u32", s(96), s(96), "main_pc2-" + self.kname)
            e.S("s_subb_u32", s(97), s(97), 0)
            for _ in range(opt.get("first_groups", 3)):
                for _ in self.dma_group():
                    pass
        al = self.ALoad(self, vAx, (sXr, XB[xv]), 20)
        al.upto(opt.get("adist", 4) - 1)
        self.stats_loads(xv)
        fl0 = [self.delay(opt.get("stdelay", 24), self.stats_gen(True))]
        if p == 0:
            if opt.get("r2st", 2) == 0:
                self.r2_stores()
                self.late_loads()
            e.wait_all_lg()
            if opt.get("r2st", 2) == 2:
                self.ring_barrier(FI + 8, self.ops2)
                self.flag("col", 2)
                fl0.append(self.w2_gen())
            else:
                self.ring_barrier(FI + 8)
            self.prime()
            self.stamp("start")
            if opt.get("keep", 12):
                cg_ = self.capture_gen(opt.get("keep0", 3), opt.get("keep", 12))
                next(cg_)
                fl0.append(cg_)
        st1 = {}

        def hook1(t):
            if t >= opt.get("w2flag_at", 30) and not st1.get("done"):
                st1["done"] = t
                return self.ops2, (lambda: self.flag("col", 2))
            return [], None

        def add1(t):
            if st1.get("done") and t >= opt.get("w2chk_at", 70) and not st1.get("chk"):
                st1["chk"] = True
                return self.w2_gen()
        i0 = self.seqstart[("A1", p)]
        fb = 102
        sst, sad = self.scratch(28, self.seq[i0 + fb][0])
        self.hold = sst

        def mf(t, W, u):
            ks, T = divmod(t, 5)
            e.mfma(acc(T, u), xf(ks, u), W, acc(T, u) if ks else 0)
        self.run_pass(105, mf, 5, xf, fl0, must=fl0[0], chunk=(8 if p == 0 else 24), stop_reads=self.seqstart[("A4", p)], aload=al,
                      force_bar=fb, tail=6000, mix=opt.get("mixA", 0) if p else 0,
                      late=(60, self.touch_gen([(vAx[0], sOo, OB[p], 0), (vAx[1], sOo, OB[p], 0), (vOh, sOoh, OB[p], 0), (vOh, sOoh, OB[p] + 20 * KB, 0)], p == 0)), hooks={"bar": hook1, "add": add1} if (p == 0 and opt.get("r2st", 2) == 0) else None)
        if p == 0 and opt.get("r2st", 2) == 1:
            self.dma_all()
            self.r2_stores()
            self.late_loads()
        assert sst + 28 <= self.freed
        self.stamp("A1")
        self.bg_on(5000)
        C2T = TMP[8:16] if p else ACC[40:48]
        for j in range(8):
            e.V("v_mul_f32", C2T[j], lit(LOG2E), RT[j])
        KF = [TMP[16:20], TMP[20:24], TMP[24:28]]
        VF = {3: TMP[28:32], 4: TMP[32:36], 2: TMP[36:40]}
        tt = [TMP[40:44], TMP[44:48]]
        TA0, TA1 = TMP[48], TMP[49]
        if p == 0:
            KF = [RES[0:4], RES[4:8], B2F[0:4]]
            VF = {3: B2F[4:8], 4: ACC[56:60], 2: ACC[60:64]}
            tt = [ACC[48:52], ACC[52:56]]
        n = 0
        for T in range(3):
            for u in range(2):
                for h in range(2):
                    t = tt[n % 2]
                    n += 1
                    self.phi_pair(acc(T, u)[2 * h:2 * h + 2], C2T[4 * u + 2 * h:4 * u + 2 * h + 2], False, t)
                    e.V("v_cvt_pk_bf16_f32", KF[T][2 * u + h], t[0], t[1])
        for T in (3, 4, 2):
            for u in range(2):
                for h in range(2):
                    x = acc(T, u)[2 * h:2 * h + 2]
                    e.V("v_pk_mul_f32", x, x, RT[4 * u + 2 * h:4 * u + 2 * h + 2])
            for u in range(2):
                for h in range(2):
                    x = acc(T, u)[2 * h:2 * h + 2]
                    e.V("v_cvt_pk_bf16_f32", VF[T][2 * u + h], x[0], x[1])
        for j in range(4):
            e.V("v_cndmask_b32", VF[2][j], VF[2][j], vOne, sMaskV)
        PR = [ACC[4 * i:4 * i + 4] for i in range(7)]
        prods = [(0, 3), (0, 2), (1, 4), (1, 2), (2, 3), (2, 4), (2, 2)]
        for i, (kt, vt) in enumerate(prods):
            e.mfma(PR[i], KF[kt], VF[vt], 0)
        e.S("s_mul_i32", sA, sWave, 7168)
        e.S("s_add_u32", sA, sA, sad)
        e.V("v_add_u32", TA0, sA, vL16)
        e.V("v_add_u32", TA1, sad, vKvSrc)
        for i in range(7):
            e.ds_write(TA0, PR[i], i * 1024)
        e.wait_all_lg()
        e.barrier()
        RD = [ACC[4 * w:4 * w + 4] for w in range(4)]
        for w in range(4):
            e.ds_read(RD[w], TA1, w * 7168)
        for h in range(2):
            e.V("v_pk_add_f32", RD[0][2 * h:2 * h + 2], RD[0][2 * h:2 * h + 2], RD[1][2 * h:2 * h + 2])
            e.V("v_pk_add_f32", RD[2][2 * h:2 * h + 2], RD[2][2 * h:2 * h + 2], RD[3][2 * h:2 * h + 2])
        for h in range(2):
            e.V("v_pk_add_f32", RD[0][2 * h:2 * h + 2], RD[0][2 * h:2 * h + 2], RD[2][2 * h:2 * h + 2])
        e.S("s_mul_i32", sA, sR, KVSZ)
        e.S("s_add_u32", sA, sA, sKv)
        e.S("s_add_u32", sA, sA, KVB[p])
        e.V("v_cvt_pk_bf16_f32", RD[1][0], RD[0][0], RD[0][1])
        e.V("v_cvt_pk_bf16_f32", RD[1][1], RD[0][2], RD[0][3])
        kvst = e.bstore(RD[1][0:2], vT16, WS, sA, 0, "sc1")
        self.bg_off()
        self.stamp("kvpub")
        PL = [ACC[4 * i:4 * i + 4] for i in range(10)] + [TMP[24 + 4 * i:28 + 4 * i] for i in range(6)]

        st2 = {}

        def barhook(t):
            def rel():
                self.hold = None

            def relflag():
                self.hold = None
                self.flag("col", 2)
            if p == 0 and opt.get("r2st", 2) == 1 and not st2.get("done") and t >= opt.get("w2flag2_at", 12):
                st2["done"] = True
                return self.ops2, relflag
            return [], rel

        def kvloads():
            for i in range(8):
                if i % 2 == 0:
                    e.S("s_add_u32", sB, sKv, KVB[p] + i * KVSZ); yield
                e.bload(PL[i], vT16L, WS, sB, (i % 2) * KVSZ, "sc1", cls=(opt.get('kvlat', 800), 80, opt.get('kvsvc', 130))); yield

        def kvsum():
            SM = PL[8:10]
            for i in range(8):
                for d in range(4):
                    for h in range(2):
                        x = SM[d >> 1][2 * (d & 1) + h]
                        if i == 0:
                            e.V("v_dot2_f32_bf16", x, PL[i][d], sSel[h], 0)
                        else:
                            e.V("v_dot2c_f32_bf16", x, sSel[h], PL[i][d])
            for d in range(8):
                x = SM[d >> 2][d & 3]
                e.V("v_add_f32_dpp", x, x, x, mods="quad_perm:[1,0,3,2] row_mask:0xf bank_mask:0xf")
            for d in range(4):
                e.V("v_cndmask_b32", PL[0][d], SM[0][d], SM[1][d], sOdd)
            e.V("v_cmp_u_f32", VCC, PL[0][0], PL[0][1])
            e.V("v_cmp_u_f32", sNan, PL[0][2], PL[0][3])
            e.S("s_or_b64", VCC, VCC, sNan)

        def mfq(t, W, u):
            ks, T = divmod(t, 3)
            e.mfma(acc(5 + T, u), W, xf(ks, u), acc(5 + T, u) if ks else 0)
        self.lastbar = self.rd - 8
        fl = []
        if p == 0:
            fl = [self.local_gen()]
        self.run_pass(63, mfq, 3, xf, fl, stop_reads=self.seqstart[("A4", p)], hooks={"bar": barhook},
                      late=(opt.get("kvload_at", 40), kvloads()), see_all=True, force_bar=61, tail=1600 + self.opt.get("slack", 2400))
        self.stamp("A2")
        if p == 0 and opt.get("r2st", 2) == 1:
            assert st2.get("done")
            w2 = self.w2_gen()
            while next(w2) != "idle":
                pass
        if opt.get("qbg", 1):
            self.bg_on(1600 + self.opt.get("slack", 2400))
        PQ0 = [TMP[0:4], TMP[4:8]]
        PQ1 = [TMP[8:12], TMP[12:16]]
        tq = [TMP[16:20], TMP[20:24]]
        for u in range(2):
            c2 = vC2 if u == 0 else vC2b
            for h in range(2):
                self.phi_pair(acc(5, u)[2 * h:2 * h + 2], c2, True, tq[0])
                self.phi_pair(acc(6, u)[2 * h:2 * h + 2], c2, True, tq[1])
                e.V("v_cvt_pk_bf16_f32", PQ0[u][2 * h], tq[0][0], tq[1][0])
                e.V("v_cvt_pk_bf16_f32", PQ0[u][2 * h + 1], tq[0][1], tq[1][1])
            for h in range(2):
                self.phi_pair(acc(7, u)[2 * h:2 * h + 2], c2, True, tq[h])
                e.V("v_cvt_pk_bf16_f32", PQ1[u][h], tq[h][0], tq[h][1])
            e.V("v_mov_b32", PQ1[u][2], 0)
            e.V("v_mov_b32", PQ1[u][3], 0)
        self.bg_off()
        self.stamp("qepi")
        kvsum()
        lok, lre = e.newlabel("kvok"), e.newlabel("kvretry")
        e.branch("s_cbranch_scc0", lok)
        e.cond_begin()
        e.S("s_mov_b32", sCnt, 0)
        e.label(lre)
        e.misc("s_sleep 4")
        for _ in kvloads():
            pass
        kvsum()
        e.branch("s_cbranch_scc0", lok)
        e.S("s_add_u32", sCnt, sCnt, 1)
        e.S("s_cmp_lt_u32", sCnt, 0x10000)
        e.branch("s_cbranch_scc1", lre)
        e.cond_end()
        e.label(lok)
        self.stamp("kvgo")
        if p == 0 and opt.get("r2st", 2) == 1:
            for _ in w2:
                pass

        self.bg_on(900 + self.opt.get("slack", 2400))
        e.V("v_cvt_pk_bf16_f32", TMP[16], PL[0][0], PL[0][1])
        e.V("v_cvt_pk_bf16_f32", TMP[17], PL[0][2], PL[0][3])
        e.ds_write(vKvDst, TMP[16:18])
        e.wait_all_lg()
        e.barrier()
        FR = [TMP[16 + 4 * i:20 + 4 * i] for i in range(10)]
        for T in range(3):
            for ks in range(2):
                e.ds_read(FR[T * 2 + ks], vL16, IMG + (T * 2 + ks) * KB)
        for ks in range(2):
            e.ds_read(FR[6 + ks], vZ01, ks * 64)
            e.ds_read(FR[8 + ks], vZ2, ks * 64)
        oa = lambda T, u: ACC[(T * 2 + u) * 4:(T * 2 + u) * 4 + 4]
        for T in (3, 4, 0, 1, 2):
            for u in range(2):
                e.mfma(oa(T, u), FR[2 * T], PQ0[u], 0)
        for T in (3, 4, 0, 1, 2):
            for u in range(2):
                e.mfma(oa(T, u), FR[2 * T + 1], PQ1[u], oa(T, u))
        e.S("s_add_u32", sA, sOo, OB[p])
        e.S("s_add_u32", sB, sOoh, OB[p])
        e.S("s_add_u32", sD, sOoh, OB[p] + 20 * KB)
        ops = []
        for u in range(2):
            for x in (oa(3, u)[0], oa(3, u)[2], oa(4, u)[0]):
                e.V("v_add_f32", x, vEps[0], x)
        for u in range(2):
            for x in (oa(3, u)[0], oa(3, u)[2], oa(4, u)[0]):
                e.V("v_rcp_f32", x, x)
        for u in range(2):
            for T in range(3):
                for h in range(2):
                    x = oa(T, u)[2 * h:2 * h + 2]
                    dn = oa(3, u)[2 * h:2 * h + 2] if T < 2 else oa(4, u)[0:2]
                    e.V("v_pk_mul_f32", x, x, dn, mods="op_sel_hi:[1,0]")
            o4 = TMP[16 + 8 * u:20 + 8 * u]
            o2 = TMP[20 + 8 * u:22 + 8 * u]
            for j in range(4):
                e.V("v_cvt_pk_bf16_f32", o4[j], oa(0, u)[j], oa(1, u)[j])
            for h in range(2):
                e.V("v_cvt_pk_bf16_f32", o2[h], oa(2, u)[2 * h], oa(2, u)[2 * h + 1])
            if u == 0:
                ops += self.gstore([(o4, vAx[u], sA, 0), (o2, vOh, sB, 0)], p == 0 or opt.get("osafe"))
            else:
                ops += self.gstore([(o4, vAx[u], sA, 0), (o2, vOh, sD, 0)], p == 0 or opt.get("osafe"))
        self.bg_off()
        self.stamp("A3")
        def shadow():
            if p == 0:
                self.unpack(RES, RES[10:20])
                self.unpack(B2F, B2F[10:20])
        self.handoff(4 * p + 2, ops, shadow, [(vAx[0], sOo, OB[p], 0), (vAx[1], sOo, OB[p], 0), (vOh, sOoh, OB[p], 0), (vOh, sOoh, OB[p] + 20 * KB, 0)])

    def phase64(self, p, kind):
        e = self.e
        opt = self.opt
        nks = 10 if kind == "O" else 27
        name = "A4" if kind == "O" else "B2"
        acc = lambda T, u: ACC[(u * 5 + T) * 4:(u * 5 + T) * 4 + 4]
        if kind == "O":
            al = self.ALoad(self, vAo, (sXr, OB[p]), nks)
        else:
            al = self.ALoad(self, vAh, (sHr, HB[p]), nks)
        al.upto(opt.get("adist", 4) - 1)
        xf = lambda ks, u: a(((ks % 20) * 2 + u) * 4, 4)
        if kind == "C":
            e.ds_read(TMP[50], vRF)
        i0 = self.seqstart[(name, p)]
        fb = 5 * nks - 3
        sst, sad = self.scratch(20, self.seq[i0 + fb][0])
        self.hold = sst
        stop = i0 + 5 * nks

        def mf(t, W, u):
            ks, T = divmod(t, 5)
            u = 1 - u
            c0 = RES[4 * T:4 * T + 4] if (kind == "O" and u == 0) else 0
            e.mfma(acc(T, u), W, xf(ks, u), acc(T, u) if ks else c0)

        def addr_gen():
            e.V("v_add_u32", TMP[0], sad, vXch); yield
            e.S("s_xor_b32", sA, sWave, 1); yield
            e.S("s_mul_i32", sA, sA, 5120); yield
            e.S("s_add_u32", sA, sA, sad); yield
            e.V("v_add_u32", TMP[1], sA, vL16); yield
            if kind == "C":
                e.V("v_mul_f32", TMP[50], TMP[50], TMP[50]); yield
            if not last:
                e.S("s_add_u32", sA, sOx, XB[xv]); yield
                e.S("s_add_u32", sB, sOxh, XB[xv]); yield
                e.S("s_add_u32", sD, sOst, STB[xv]); yield
        last = kind == "C" and p == 1
        xv = 2 * p + (1 if kind == "O" else 2)
        tg = None if last else (0, self.touch_gen([(vXs, sOx, XB[xv], 0), (vXs, sOx, XB[xv], 1024), (vXh, sOxh, XB[xv], 0), (vStW, sOst, STB[xv], 0)]))
        fl = [self.delay(20, addr_gen())]
        self.run_pass(5 * nks, mf, 5, xf, fl, late=tg, force_bar=fb, chunk=(opt.get("chunkO", 12) if kind == "O" else opt.get("chunkC", 12)), stop_reads=stop, aload=al,
                      mix=opt.get("mixO", 0) if kind == "O" else 0, tail=900 + self.opt.get("slack", 2400))
        self.stamp(name)
        self.bg_on(900 + self.opt.get("slack", 2400))
        assert sst + 20 <= self.freed
        for T in range(5):
            e.ds_write(TMP[0], acc(T, 1), T * KB)
        e.wait_all_lg()
        e.barrier()
        PT = TMP[4:24]
        for T in range(5):
            e.ds_read(PT[4 * T:4 * T + 4], TMP[1], T * KB)
        own = ACC[0:20]
        for h in range(10):
            x = own[2 * h:2 * h + 2]
            e.V("v_pk_add_f32", x, x, PT[2 * h:2 * h + 2])
            if kind == "C":
                e.V("v_pk_fma_f32", x, x, TMP[50:52], RES[2 * h:2 * h + 2], mods="op_sel_hi:[1,0,1]")
        PK = TMP[24:34]
        for a_ in range(2):
            for j in range(4):
                e.V("v_cvt_pk_bf16_f32", PK[4 * a_ + j], own[8 * a_ + j], own[8 * a_ + 4 + j])
        for h in range(2):
            e.V("v_cvt_pk_bf16_f32", PK[8 + h], own[16 + 2 * h], own[16 + 2 * h + 1])
        self.bg_off()
        if last:
            om = self.opt.get("outmod", "")
            e.bstore(PK[0:4], vOut, OUT, 0, 0, om)
            e.bstore(PK[4:8], vOut, OUT, 0, 64, om)
            e.bstore(PK[8:10], vOut4, OUT, 0, 128, om)
            self.stamp("end")
            return
        xv = 2 * p + (1 if kind == "O" else 2)
        ops = []
        ops += self.gstore([(PK[0:4], vXs, sA, 0), (PK[4:8], vXs, sA, 1024), (PK[8:10], vXh, sB, 0)])
        sm, sq, t0 = TMP[36], TMP[37], TMP[38]
        e.V("v_mov_b32", sm, 0)
        e.V("v_mov_b32", sq, 0)
        for j in range(10):
            e.V("v_dot2c_f32_bf16", sm, PK[j], vOne)
            e.V("v_dot2c_f32_bf16", sq, PK[j], PK[j])
        e.V("v_permlane32_swap_b32", sm, sq)
        e.V("v_add_f32", sm, sm, sq)
        e.V("v_mov_b32", t0, sm)
        e.V("v_permlane16_swap_b32", sm, t0)
        e.V("v_add_f32", sm, sm, t0)
        ops += self.gstore([(sm, vStW, sD, 0)])
        self.stamp(name + "epi")

        def shadow():
            self.unpack(RES, PK)
            if kind == "O":
                for h in range(10):
                    x = RES[2 * h:2 * h + 2]
                    e.V("v_pk_add_f32", x, x, B2F[2 * h:2 * h + 2])
        self.handoff(4 * p + (3 if kind == "O" else 5), ops, shadow,
                     [(vStW, sOst, STB[xv], 0), (vXs, sOx, XB[xv], 0), (vXs, sOx, XB[xv], 1024), (vXh, sOxh, XB[xv], 0)])

    def phaseB1(self, p):
        e = self.e
        opt = self.opt
        xv = 2 * p + 1
        acc = lambda T, u: ACC[(T * 2 + u) * 4:(T * 2 + u) * 4 + 4]
        xf = lambda ks, u: a((ks * 2 + u) * 4, 4) if ks < 20 else XE[u]
        al = self.ALoad(self, vAx, (sXr, XB[xv]), 20)
        al.upto(opt.get("adist", 4) - 1)
        self.stats_loads(xv)
        stop = self.seqstart[("B2", p)]
        g0 = self.seq[stop][0] // 8 + RB // 8
        self.stage_plan = list(range(g0, g0 + opt.get("nstage", 0)))

        def mf(t, W, u):
            ks, T = divmod(t, B1N)
            e.mfma(acc(T, u), W, xf(ks, u), acc(T, u) if ks else 0)
        tl = [(vHs, sOh, HB[p] + u * 54 * KB, a_ * KB) for a_ in range(3) for u in range(2)] + [(vHh, sOhh, HB[p] + u * 54 * KB, 0) for u in range(2)]
        sg = self.delay(opt.get("stdelay", 24), self.stats_gen(False))
        self.run_pass(21 * B1N, mf, B1N, xf, [sg], late=(0, self.touch_gen(tl, p == 0)), stop_reads=stop, aload=al, must=sg, mix=opt.get("mixB", 0), tail=700 * (7 - B1N) + 300 + self.opt.get("slack", 2400))
        self.stamp("B1a")
        ops = []

        def epi(pairs, single):
            n = 0
            for u in range(2):
                sb = sD if u == 0 else sE
                e.S("s_add_u32", sb, sOh, HB[p] + u * 54 * KB); yield
                for a_ in pairs:
                    o = TMP[16 + 4 * (n % 4):20 + 4 * (n % 4)]
                    n += 1
                    for j in range(4):
                        x, y = acc(2 * a_, u)[j], acc(2 * a_ + 1, u)[j]
                        e.V("v_mul_f32_e64", x, x, f"|{x}|"); yield
                        e.V("v_mul_f32_e64", y, y, f"|{y}|"); yield
                        e.V("v_cvt_pk_bf16_f32", o[j], x, y); yield
                        e.V("v_pk_max_i16", o[j], o[j], 0); yield
                    ops.extend(self.gstore([(o, vHs, sb, a_ * KB)], p == 0 or opt.get("hsafe") == 1 or (opt.get("hsafe") == 2 and not single))); yield
            if single:
                for u in range(2):
                    o = TMP[32 + 2 * u:34 + 2 * u]
                    for j in range(4):
                        x = acc(6, u)[j]
                        e.V("v_mul_f32_e64", x, x, f"|{x}|"); yield
                    for h in range(2):
                        e.V("v_cvt_pk_bf16_f32", o[h], acc(6, u)[2 * h], acc(6, u)[2 * h + 1]); yield
                        e.V("v_pk_max_i16", o[h], o[h], 0); yield
                e.S("s_add_u32", sA, sOhh, HB[p])
                e.S("s_add_u32", sB, sOhh, HB[p] + 54 * KB)
                ops.extend(self.gstore([(TMP[32:34], vHh, sA, 0), (TMP[34:36], vHh, sB, 0)], p == 0 or opt.get("hsafe") == 1))
                yield

        def mf2(t, W, u):
            ks, T = divmod(t, 7 - B1N)
            e.mfma(acc(B1N + T, u), W, xf(ks, u), acc(B1N + T, u) if ks else 0)
        self.run_pass(21 * (7 - B1N), mf2, 7 - B1N, xf, [epi(list(range(B1N // 2)), False)], stop_reads=stop, force_bar=21 * (7 - B1N) - 2, over=opt.get("b1over", 0), chunk=opt.get("chunkB", 24), tail=300 + self.opt.get("slack", 2400))
        self.stamp("B1b")
        for _ in epi(list(range(B1N // 2, 3)), True):
            pass
        self.stamp("B1epi")
        self.handoff(4 * p + 4, ops, None, tl)

    def gen(self):
        e = self.e
        e.reset_state()
        self.cInvD = s(63)
        self.dmaf = self.dma_filler()
        self.prologue()
        if self.opt.get("stamps"):
            e.memtime(sTm, True)
            e.V("v_writelane_b32", v(53), sTm[0], 62)
        self.startup()
        stop = self.opt.get("stop", 99)
        n = 0
        for p in range(2):
            for f in (lambda: self.phaseA(p), lambda: self.phase64(p, "O"), lambda: self.phaseB1(p), lambda: self.phase64(p, "C")):
                if n < stop:
                    f()
                n += 1
        if self.opt.get("stamps"):
            e.wait_all_vm()
            e.memtime(sTm, True)
            e.V("v_writelane_b32", v(53), sTm[0], 63)
            e.S("s_lshl_b32", sA, s(2), 2)
            e.S("s_add_u32", sA, sA, sWave)
            e.S("s_lshl_b32", sA, sA, 8)
            e.S("s_add_u32", sA, sA, STAMP)
            e.V("v_lshlrev_b32", TMP[1], 2, vLane)
            e.bstore(v(53), TMP[1], WS, sA)
        if self.opt.get("dbgst") is not None:
            skip = e.newlabel("nodbg")
            e.S("s_lshl_b32", sA, s(2), 2)
            e.S("s_add_u32", sA, sA, sWave)
            e.S("s_cmp_lg_u32", sA, 4 * self.opt.get("dbgwg", 77))
            e.branch("s_cbranch_scc1", skip)
            e.sload(s(84, 2), s(0, 2), 72)
            e.V("v_readlane_b32", sB, v(53), 0)
            e.V("v_subrev_u32", TMP[0], sB, v(53))
            e.V("v_subrev_u32", TMP[1], self.opt["dbgst"], vLane)
            e.V("v_cmp_gt_u32", VCC, 64 - self.opt["dbgst"], TMP[1])
            e.V("v_lshlrev_b32", TMP[1], 2, TMP[1])
            e.wait_all_lg()
            e.S("s_and_saveexec_b64", s(86, 2), VCC)
            e.misc(f"global_store_dword {TMP[1]}, {TMP[0]}, s[84:85]")
            e.S("s_mov_b64", EXEC, -1)
            e.label(skip)
        if self.opt.get("spin"):
            e.wait_all_vm()
            e.V("v_readfirstlane_b32", s(86), v(53))
            e.label("spin_loop")
            e.misc("s_memrealtime s[88:89]")
            e.misc("s_waitcnt lgkmcnt(0)")
            e.misc("s_sub_u32 s88, s88, s86")
            e.misc(f"s_cmp_lt_u32 s88, {self.opt['spin']}")
            e.misc("s_cbranch_scc1 spin_loop")
        e.S("s_add_u32", sA, s(2), sWave)
        e.S("s_cmp_lg_u32", sA, 0)
        e.branch("s_cbranch_scc1", "main_end")
        e.S("s_add_u32", sA, sBase, 16)
        e.V("v_mov_b32", TMP[0], sA)
        e.V("v_mov_b32", TMP[1], EPOCH)
        e.S("s_mov_b64", EXEC, 1)
        e.bstore(TMP[0], TMP[1], WS, 0)
        e.label("main_end")
        e.misc("s_endpgm")
```

```python
from asmgen import *
from layout import *
from gen_prep import mk_srd, allreduce_g
import math

BIG = 0x40000000
LOG2E = 1.4426950408889634
LN2 = 0.6931471805599453

IMG = 0
ZT = 6144
RST = 6400
DUMMY = 6912
RING = 8192
RB = 152
LDS_BYTES = RING + RB * KB
FI = 8

WS, OUT, XIN, SB2 = s(8, 4), s(12, 4), s(16, 4), s(20, 4)
sWave, sR, sC, sCG, sRH, sKH, sW2048 = [s(24 + i) for i in range(7)]
sSeg = {"A": s(31), "O": s(32), "B": s(33), "C": s(34)}
sXr, sHr, sSTr, sFRL, sFRG, sFC = [s(35 + i) for i in range(6)]
sA, sB, sD, sE, sDm, sLd = [s(41 + i) for i in range(6)]
sMaskV = s(48, 2)
sCnt = s(50)
sTT = s(51)
sTm = s(52, 2)
sOx, sOxh, sOst, sOo, sOoh, sOh, sOhh, sKv = [s(54 + i) for i in range(8)]
sLocal, sX1 = s(47), s(62)
sStg = s(3)
sSel = [s(84), s(85)]
sOdd = s(86, 2)
vT16L = v(37)
vStg = v(55)
sNan = s(90, 2)
sBase = s(92)
sOk = s(94, 2)
SR1, SR2 = s(84, 4), s(96, 4)
PP = s(64, 16)
pOut, pWs = s(80, 2), s(82, 2)
vDum = v(49)

vLane, vN, vG, vL16 = v(1), v(2), v(3), v(4)
vW = [v(5), v(6), v(7)]
vK = [v(8), v(9), v(10)]
vDma = v(11)
vAx = [v(12), v(13)]
vAo = [v(14), v(15)]
vAh = [v(16), v(17)]
vSt, vStW, vKvSrc, vKvDst, vT16, vZ01, vZ2, vRT, vRW, vRF, vOut, vOut4, vOne = [v(18 + i) for i in range(13)]
vOh, vXs, vXh, vHs, vHh, vFl, vPollR, vPollC, vXch = [v(31 + i) for i in range(9)]
XE = [v(40, 4), v(44, 4)]
vC2 = v(48, 2)
vC2b = v(50, 2)
vLn2 = v(52, 2)
vEps = v(54, 2)
RT = v(56, 8)
ACC = v(64, 64)
FIFO = v(128, 4 * FI)
RES = v(160, 20)
B2F = v(180, 20)
TMP = v(200, 56)


class Main:
    def __init__(self, e, opt):
        self.e = e
        self.opt = opt
        self.kname = opt["kname"]
        self.nstamp = 0
        self.segs = []
        pos = 0
        for p in range(2):
            for k, n in (("A", NA), ("O", NO), ("B", NB), ("C", NC)):
                self.segs.append((k, pos, n))
                pos += n
        self.total = pos
        self.ngroups = pos // 8
        self.issued = 0
        self.dmaop = {}
        self.freed = 0
        self.hold = None
        self.visible = 0
        self.seq = []
        self.seqstart = {}
        for p in range(2):
            b = self.segs[4 * p + 0][1]
            self.seqstart[("A1", p)] = len(self.seq)
            self.seq += [(b + i, "W") for i in range(105)]
            self.seqstart[("A2", p)] = len(self.seq)
            self.seq += [(b + 105 + i, "W") for i in range(63)]
            b = self.segs[4 * p + 1][1]
            self.seqstart[("A4", p)] = len(self.seq)
            self.seq += [(b + 2 * i, "K") for i in range(50)]
            b = self.segs[4 * p + 2][1]
            self.seqstart[("B1a", p)] = len(self.seq)
            self.seq += [(b + i, "W") for i in range(21 * B1N)]
            self.seqstart[("B1b", p)] = len(self.seq)
            self.seq += [(b + 21 * B1N + i, "W") for i in range(147 - 21 * B1N)]
            b = self.segs[4 * p + 3][1]
            self.seqstart[("B2", p)] = len(self.seq)
            self.seq += [(b + 2 * i, "K") for i in range(135)]
        self.rd = 0
        self.cons = 0
        self.lastbar = 0
        self.gate = NA // 8
        self.stage_plan = []
        self.staged = {}
        self.stage_mid = None
        self.cap_hold = 1 << 20
        self.deferred = []
        self.own_end_phase = 0
        self.cap_ops = []
        self.cap_next = 1 << 20
        self.warn = []
        self.model = []
        self.own_end = 0
        self.deadline = lambda: 1 << 30

    def stamp(self, name):
        self.model.append((name, self.e.T))
        if not self.opt.get("stamps"):
            return
        e = self.e
        e.wait_all_lg()
        e.memtime(sTm)
        e.V("v_writelane_b32", v(53), sTm[0], self.nstamp)
        self.opt.setdefault("stampnames", []).append(name)
        self.nstamp += 1
        assert self.nstamp <= 62

    def endpos(self, i):
        p, k = self.seq[i]
        return p + (2 if k == "K" else 1)

    def ldsaddr(self, pos):
        return RING + (pos % RB) * KB

    def can_issue(self):
        if self.issued >= min(self.ngroups, self.gate):
            return False
        lim = self.freed if self.hold is None else min(self.freed, self.hold)
        lim = min(lim, self.cap_hold)
        return 8 * (self.issued + 1) <= lim + RB

    def dma_group(self):
        e = self.e
        g = self.issued
        self.issued += 1
        pos = 8 * g
        if g in self.stage_plan:
            self.stage_plan = []
        if g in self.staged and self.opt.get("defer", 1) and 8 * g >= self.own_end_phase:
            self.deferred.append(g)
            self.dmaop[g] = None
            yield
            return
        if g in self.staged:
            self.finish_stage()
            k = self.staged[g]
            ad = self.ldsaddr(pos)
            e.V("v_add_u32", vStg, ad, vDma)
            yield
            e.ds_write(vStg, a(160 + 8 * k, 4), 0)
            yield
            self.dmaop[g] = e.ds_write(vStg, a(164 + 8 * k, 4), 1024)
            yield
            return
        for k, b, n in self.segs:
            if b <= pos < b + n:
                break
        e.S("s_add_u32", M0, sW2048, self.ldsaddr(pos))
        yield
        e.S("s_add_u32", sDm, sSeg[k], (pos - b) * KB)
        yield
        md = "nt" if k in self.opt.get("ntseg", "") else ""
        nvalid = min(8, {"A": 168, "O": 100, "B": 147, "C": 270}[k] - (pos - b)) if self.opt.get("skippad", 0) else 8
        for j in range(2):
            nw = (nvalid - j + 1) // 2
            if nw < 4:
                skip = e.newlabel("nopad")
                e.S("s_cmp_ge_u32", sWave, nw)
                e.branch("s_cbranch_scc1", skip)
                e.cond_begin()
            op = e.dma(vDma, WS, sDm, 1024 * j, md, cls=self.dcls(k))
            if nw < 4:
                e.cond_end()
                e.label(skip)
            if j:
                self.dmaop[g] = op
            yield

    def capture_gen(self, first, n):
        e = self.e
        self.cap_hold = self.cap_next = 8 * first
        g1 = self.segs[4][1] // 8
        for k in range(n):
            g = first + k
            spins = 0
            while self.visible < 8 * (g + 1):
                spins += 1
                assert spins < 100000
                yield "idle"
            e.V("v_add_u32", vStg, self.ldsaddr(8 * g), vDma); yield
            e.ds_read(a(160 + 8 * k, 4), vStg, 0); yield
            self.cap_ops.append(e.ds_read(a(164 + 8 * k, 4), vStg, 1024))
            self.staged[g1 + g] = k
            self.cap_next = 8 * (g + 1) if k < n - 1 else 1 << 20
            yield

    def stage_group(self):
        e = self.e
        g = self.stage_plan.pop(0)
        k = len(self.staged) % 12
        self.staged[g] = k
        for sk, b, n in self.segs:
            if b <= 8 * g < b + n:
                break
        e.S("s_add_u32", sStg, sSeg[sk], (8 * g - b) * KB)
        yield
        e.bload(a(160 + 8 * k, 4), vDma, WS, sStg, 0, cls=self.dcls(sk))
        yield
        e.bload(a(164 + 8 * k, 4), vDma, WS, sStg, 1024, cls=self.dcls(sk))
        self.stage_mid = None
        yield

    def restore(self, n):
        e = self.e
        for g in self.deferred[:n]:
            k = self.staged[g]
            e.V("v_add_u32", vStg, self.ldsaddr(8 * g), vDma)
            e.ds_write(vStg, a(160 + 8 * k, 4), 0)
            self.dmaop[g] = e.ds_write(vStg, a(164 + 8 * k, 4), 1024)
        self.deferred = self.deferred[n:]

    def finish_stage(self):
        while self.stage_mid:
            next(self.stage_mid)

    def stage_step(self):
        e = self.e
        if e.outstanding() >= self.opt.get("qmax", 13):
            return False
        if not self.stage_mid:
            if not self.stage_plan or self.can_issue() or self.mid_group():
                return False
            c = self.dcls("C")
            if e.predict(c) + c[2] > self.deadline():
                return False
            self.stage_mid = self.stage_group()
        next(self.stage_mid)
        return True

    def dcls(self, k):
        return (750, 80, self.opt.get("svcAB", 150)) if k in "AB" else (750, self.opt.get("svcOC", 92), 75)

    def dma_ok(self):
        e = self.e
        if self.mid_group():
            g = self.issued - 1
        elif self.can_issue():
            g = self.issued
        else:
            return False
        if g in self.staged:
            return True
        if e.outstanding() >= self.opt.get("qmax", 13):
            return False
        if self.mid_group() or 8 * g < self.own_end:
            return True
        c = self.dcls(self.segof(8 * g))
        return e.predict(c) + c[2] <= self.deadline()

    def dma_filler(self):
        while True:
            if self.can_issue():
                for _ in self.dma_group():
                    yield True
            else:
                yield False

    def flush_dma_partial(self):
        while self.issued > 0 and (self.issued - 1) not in self.dmaop:
            next(self.dmaf)

    def dma_all(self):
        self.flush_dma_partial()
        while self.can_issue():
            for _ in self.dma_group():
                pass

    def ring_barrier(self, need_idx, extra_ops=(), free_all=False):
        e = self.e
        need_idx = min(need_idx, len(self.seq))
        upto = self.endpos(need_idx - 1) if need_idx > 0 else 0
        g = (upto + 7) // 8
        self.flush_dma_partial()
        while self.issued < g:
            assert self.can_issue(), ("ring deadlock", self.issued, g, self.freed, self.hold)
            self.warn.append(f"forced dma group {self.issued} at seq {self.rd}")
            for _ in self.dma_group():
                pass
        ops = list(extra_ops)
        for gg in range(self.visible // 8, g):
            assert gg not in self.deferred, gg
            ops.append(self.dmaop[gg])
        e.wait_ops(ops + self.cap_ops)
        self.cap_ops = []
        e.barrier()
        self.cap_hold = self.cap_next
        self.visible = max(self.visible, 8 * g)
        self.freed = self.seq[self.cons][0] if self.cons < len(self.seq) else self.total
        self.lastbar = self.rd

    def issue_read(self):
        e = self.e
        i = self.rd
        if i >= len(self.seq):
            return
        pos, k = self.seq[i]
        assert self.endpos(i) <= self.visible, ("read of invisible block", i, pos, self.visible)
        ad = self.ldsaddr(pos)
        base = (vW if k == "W" else vK)[ad >> 16]
        slot = i % FI
        e.ds_read(FIFO[4 * slot:4 * slot + 4], base, ad & 0xffff)
        self.rd += 1

    def prime(self):
        while self.rd < self.cons + FI and self.rd < len(self.seq) and self.endpos(self.rd) <= self.visible:
            self.issue_read()

    def run_pass(self, n, mf, ntile, xf, fillers=(), chunk=24, stop_reads=None, hooks=None,
                 aload=None, vrate=0.5, amix=(1, 0), over=0, force_bar=None, late=None, see_all=False, tail=2000, mix=0, must=None):
        e = self.e
        fillers = list(fillers)
        lim = stop_reads if stop_reads is not None else len(self.seq)
        st = {"next": 0, "k": 0, "t": 0}
        self.own_end = self.own_end_phase = self.endpos(lim - 1)
        self.deadline = lambda: e.T + (n - st["t"]) * 33 + tail

        i_first = self.cons

        def dma_need():
            g = self.issued - 1 if self.mid_group() else self.issued
            for i in range(self.cons, lim):
                if self.endpos(i) > 8 * g:
                    return i - i_first - FI - chunk
            return 1 << 20

        def one_vmem():
            na, nd = amix
            n0 = len(e.vm)
            if st.get("late"):
                if e.T < st["next"]:
                    return False
                try:
                    next(st["late"])
                except StopIteration:
                    st["late"] = None
                    return False
            else:
                na_ = (aload.n // 2) * ntile if (aload is not None and not aload.done) else 1 << 21
                nd_ = dma_need() if (self.mid_group() or self.can_issue()) else 1 << 22
                run = self.opt.get("run", 0)
                if run and na_ < 1 << 21 and nd_ < 1 << 20:
                    if st.get("cur") == "a" and na_ - run <= nd_:
                        nd_ = max(nd_, na_)
                    elif st.get("cur") == "d" and nd_ - run < na_:
                        na_ = max(na_, nd_ + 1)
                    st["cur"] = "a" if na_ <= nd_ else "d"
                urgent = min(na_, nd_) - st["t"] <= self.opt.get("horizon", 30) + run
                if e.T < st["next"] and not urgent:
                    return False
                if mix and na_ < 1 << 21 and st["k"] % mix == mix - 1 and na_ - st["t"] > self.opt.get("mixh", 10) and self.dma_ok():
                    next(self.dmaf)
                elif na_ <= nd_ and na_ < 1 << 21:
                    if e.outstanding() >= self.opt.get("qmax", 13) and not urgent:
                        return False
                    if aload.n // 2 >= st["t"] // ntile + aload.win - 1:
                        return False
                    aload.step()
                elif nd_ < 1 << 22 and (urgent or self.dma_ok()):
                    next(self.dmaf)
                elif not self.stage_step():
                    return False
            if len(e.vm) > n0:
                st["k"] += 1
                st["next"] = e.T + self.opt.get("vgap", 24)
            return True

        def fill(budget):
            while budget > 0:
                n0 = e.ninst
                did = one_vmem()
                if not did:
                    for f in list(fillers):
                        try:
                            if next(f) == "idle":
                                continue
                            did = True
                            break
                        except StopIteration:
                            fillers.remove(f)
                if not did:
                    return
                budget -= e.ninst - n0

        def waits_for(t):
            regs = []
            for tt in (t, t + 1):
                if tt < n:
                    ks = tt // ntile
                    if aload is not None:
                        aload.upto(ks)
                    idx = self.cons + (tt - t)
                    if idx < self.rd:
                        regs += FIFO[4 * (idx % FI):4 * (idx % FI) + 4].regs()
                    regs += xf(ks, 0).regs() + xf(ks, 1).regs()
            return e._pending(regs)

        e.wait_ops(waits_for(0))
        if aload is not None:
            self.stamp("1st")
            self.warn.append(f"fill {8 * self.issued - self.seq[self.cons][0]}")
        for t in range(n):
            if aload is not None and self.opt.get("midstamp") and t == n // 2:
                self.stamp("half")
            i = self.cons
            assert self.rd > i, ("fifo underrun", i)
            W = FIFO[4 * (i % FI):4 * (i % FI) + 4]
            st["t"] = t
            if must is not None and t == n - ntile - 2:
                for _ in must:
                    self.warn.append("must drained late")
            if t == int(n * self.opt.get("cfrac", 0.8)) and n > 30:
                fillers.insert(0, self.code_touch_gen())
            if hooks and hooks.get("add"):
                g_ = hooks["add"](t)
                if g_:
                    fillers.append(g_)
            ov = over if fillers else 0
            mf(t, W, 0)
            bar = self.rd < lim and (self.endpos(self.rd) > self.visible or self.rd - self.lastbar >= chunk)
            bar = bar or t == force_bar
            if late and t >= late[0] and not st.get("lateon") and (aload is None or aload.done) and 8 * self.issued >= min(self.own_end, self.endpos(min(i_first + n + FI, lim) - 1)) and not self.mid_group():
                st["late"] = late[1]
                st["lateon"] = True
                self.warn.append(f"late at {t}")
            if bar:
                ex, after = [], None
                if hooks and hooks.get("bar"):
                    ex, after = hooks["bar"](t)
                self.ring_barrier(lim if see_all else min(self.rd + chunk, lim), ex)
                if after:
                    after()
            else:
                fill(2 + ov)
            mf(t, W, 1)
            self.cons += 1
            used = 0
            if self.rd < lim:
                self.issue_read()
                used = 1
            pend = waits_for(t + 1) if (t % 2 == 1 and t + 1 < n) else []
            fill(2 + ov - used - (1 if pend else 0))
            if pend:
                e.wait_ops(waits_for(t + 1))
        if late and not st.get("lateon"):
            st["late"] = late[1]
        for f in fillers + ([st["late"]] if st.get("late") else []):
            for _ in f:
                pass

    def segof(self, pos):
        for k, b, n in self.segs:
            if b <= pos < b + n:
                return k
        return "O"

    def mid_group(self):
        return self.issued > 0 and (self.issued - 1) not in self.dmaop

    def dma_burst(self, maxgroups=99):
        e = self.e
        self.flush_dma_partial()
        gs = []
        while self.can_issue() and len(gs) < maxgroups:
            gs.append(self.issued)
            self.issued += 1
        for w in (1, 2, 3):
            mine = gs[w - 1::3]
            if not mine:
                continue
            skip = e.newlabel("noburst")
            e.S("s_cmp_lg_u32", sWave, w)
            e.branch("s_cbranch_scc1", skip)
            e.cond_begin()
            for g in mine:
                pos = 8 * g
                for k, b, n in self.segs:
                    if b <= pos < b + n:
                        break
                for h in range(2):
                    e.S("s_mov_b32", M0, self.ldsaddr(pos) + h * 4096)
                    e.S("s_add_u32", sDm, sSeg[k], (pos - b) * KB + h * 4096)
                    for q in range(4):
                        self.dmaop[g] = e.dma(vL16, WS, sDm, q * 1024)
            e.cond_end()
            e.label(skip)

    def prologue(self):
        e = self.e
        e.S("s_cmp_ge_u32", s(2), 256)
        e.branch("s_cbranch_scc1", "main_end")
        if self.opt.get("stamps"):
            e.V("v_mov_b32", v(53), 0)
        self.stamp("t0")
        if self.opt.get("spin"):
            e.memtime(sTm, True)
            e.V("v_mov_b32", v(53), sTm[0])
        e.sload(PP, s(0, 2), 0)
        e.sload(pOut, s(0, 2), 64)
        e.sload(pWs, s(0, 2), 80)
        T0, T1, T2, T3 = TMP[48], TMP[49], TMP[50], TMP[51]
        e.S("s_getpc_b64", s(88, 2))
        e.label("main_pc")
        e.V("v_lshlrev_b32", T2, 5, v(0))
        e.S("s_sub_u32", s(88), s(88), "main_pc-" + self.kname)
        e.S("s_subb_u32", s(89), s(89), 0)
        e.misc(f"global_load_dword {vDum}, {T2}, s[88:89]")
        e._vm([], (2000, 30, 0))
        e.V("v_lshrrev_b32", T0, 6, v(0))
        e.V("v_and_b32", vLane, 63, v(0))
        e.V("v_readfirstlane_b32", sWave, T0)
        e.S("s_lshr_b32", sB, s(2), 3)
        e.S("s_mul_i32", sB, sB, 1792)
        e.S("s_add_u32", sB, sB, 8192)
        e.V("v_lshl_add_u32", T2, v(0), 3, sB)
        e.V("v_min_u32", T2, self.opt.get("code_bytes", 32768) - 4, T2)
        e.misc(f"global_load_dword {vDum}, {T2}, s[88:89]")
        e._vm([], (2000, 30, 0))
        e.V("v_lshlrev_b32", vL16, 4, vLane)
        e.V("v_and_b32", vN, 15, vLane)
        e.V("v_lshrrev_b32", vG, 4, vLane)
        self.vBig = TMP[52]
        e.V("v_mov_b32", self.vBig, BIG)
        e.S("s_and_b32", sA, s(2), 7)
        e.S("s_lshl_b32", sA, sA, 1)
        e.S("s_lshr_b32", sB, s(2), 7)
        e.S("s_add_u32", sR, sA, sB)
        e.S("s_bfe_u32", sC, s(2), (4 << 16) | 3)

    def gather(self, raw, srd, sstride, vaddr, srow, n=8):
        e = self.e
        e.S("s_mul_i32", sLd, srow, sstride)
        for i in range(n):
            e.bload(raw[i], vaddr, srd, sLd, 0, w="ushort", cls=(2500, 32, 0))
            if i < n - 1:
                e.S("s_add_u32", sLd, sLd, sstride)

    def pack(self, raw, n=4):
        for i in range(n):
            self.e.V("v_lshl_or_b32", raw[i], raw[2 * i + 1], 16, raw[2 * i])

    def colsum(self, regs, ex, vs, vt):
        e = self.e
        e.V("v_mov_b32", vs, 0)
        for r_ in regs:
            e.V("v_dot2c_f32_bf16", vs, r_, vOne)
        allreduce_g(e, vs, vt)
        e.V("v_sub_f32", vs, 0, vs)
        e.V("v_cvt_pk_bf16_f32", vt, vs, vs)
        e.V("v_lshlrev_b32", vt, 16, vt)
        e.V("v_sub_f32", vt, vs, vt)
        e.V("v_cvt_pk_bf16_f32", ex[0], vs, vt)
        e.V("v_and_b32", ex[1], "0xffff", ex[0])

    def startup(self):
        e = self.e
        vBig = self.vBig
        RAW1, EX = ACC[0:20], ACC[20:24]
        RAW2 = TMP[8:40]
        vCol, vReg, vLeft, vT0, vT1, vSum, vLd = [FIFO[i] for i in range(7)]
        vA0, vA1, vA2, vSt2, vBias = RES[8], RES[9], B2F[8], B2F[9], TMP[50]
        sT, sP = s(54), s(55)
        sStr = s(56)
        XJ = [RES[0:4], RES[4:8], B2F[0:4]]
        XD, XA, XB_ = B2F[4], ACC[32], ACC[33]
        XM = [s(57), s(58), s(59)]
        T0, T1, T2, T3 = TMP[48], TMP[49], TMP[50], TMP[51]
        e.V("v_lshrrev_b32", T1, 3, vLane)
        e.V("v_and_b32", T3, 7, vLane)
        e.V("v_mul_u32_u24", T0, 1280, T3)
        e.V("v_lshl_add_u32", XA, T1, 4, T0)
        e.V("v_lshrrev_b32", T2, 4, vLane)
        e.V("v_lshl_add_u32", XB_, T2, 7, XA)
        e.V("v_lshlrev_b32", XD, 8, T1)
        e.V("v_lshl_add_u32", XD, T3, 4, XD)
        e.S("s_lshl_b32", sE, sR, 4)
        e.S("s_add_u32", sE, sE, sC)
        e.S("s_mul_i32", sE, sE, 8 * 1280)
        e.S("s_mul_i32", sD, sWave, 3)
        mk_srd(e, XIN, PP[0:2], XSZ)
        for k in range(3):
            e.S("s_add_u32", XM[k], sD, k)
            e.S("s_cmp_ge_u32", XM[k], 8)
            e.S("s_cselect_b64", VCC, -1, 0)
            e.S("s_cselect_b32", sA, 40, 10)
            e.S("s_cselect_b32", sB, 8 - 8 * 40, 0)
            e.V("v_cndmask_b32", T0 if k != 1 else T1, XA, XB_, VCC)
            e.S("s_mul_i32", sA, sA, XM[k])
            e.S("s_add_u32", sA, sA, sB)
            e.S("s_lshl_b32", sA, sA, 4)
            e.S("s_add_u32", sA, sA, sE)
            e.S("s_cmp_ge_u32", XM[k], 10)
            e.S("s_cselect_b32", sA, BIG, sA)
            e.S("s_cselect_b32", XM[k], BIG // 2048, XM[k])
            e.bload(XJ[k], T0 if k != 1 else T1, XIN, sA, 0, cls=(2000, 100, 0))
        self.stamp("issx")
        e.S("s_lshr_b32", sP, sR, 1)
        e.S("s_and_b32", sT, sR, 1)
        e.S("s_lshl_b32", sT, sT, 2)
        e.S("s_add_u32", sT, sT, sWave)
        e.S("s_mov_b32", s(4), (656 << 20) | (660 << 10) | 640)
        e.S("s_mov_b32", s(5), 0)
        e.S("s_mul_i32", sA, sT, 10)
        e.S("s_lshr_b32", sA, s(4), sA)
        e.S("s_and_b32", sA, sA, 1023)
        for t, val in ((3, 1280), (4, 1300), (5, 0), (6, 1), (7, 32)):
            e.S("s_cmp_eq_u32", sT, t)
            e.S("s_cselect_b32", sA, val, sA)
        e.S("s_mul_i32", sB, sC, 40)
        e.S("s_add_u32", sA, sA, sB)
        e.V("v_add_u32", vCol, sA, vN)
        e.V("v_add_u32", vT0, vCol, vN)
        e.S("s_sub_u32", sB, sT, 5)
        e.S("s_cmp_lt_u32", sB, 2)
        e.S("s_cselect_b64", VCC, -1, 0)
        e.V("v_cndmask_b32", vCol, vCol, vT0, VCC)
        e.V("v_lshrrev_b32", vT0, 3, vN)
        e.V("v_mul_u32_u24", vT0, 632 - 32, vT0)
        e.V("v_lshrrev_b32", vT1, 2, vN)
        e.V("v_lshl_add_u32", vT0, vT1, 4, vT0)
        e.V("v_add3_u32", vT0, vT0, vN, sA)
        e.S("s_cmp_eq_u32", sT, 2)
        e.S("s_cselect_b64", VCC, -1, 0)
        e.V("v_cndmask_b32", vCol, vCol, vT0, VCC)
        e.V("v_lshlrev_b32", vCol, 1, vCol)
        e.S("s_cmp_eq_u32", sT, 7)
        e.S("s_cselect_b32", sB, 8, 16)
        e.V("v_cmp_le_u32", VCC, sB, vN)
        e.S("s_mov_b32", sStr, 3840)
        e.V("v_cndmask_b32", vCol, vCol, vBig, VCC)
        e.S("s_mov_b32", sD, 8 * 3840)
        e.V("v_mad_u32_u24", vReg, vG, sD, vCol)
        e.V("v_and_b32", vT0, 1, vG)
        e.V("v_lshrrev_b32", vT1, 1, vG)
        e.V("v_lshl_add_u32", vLd, vT0, 1, vT1)
        e.S("s_mov_b32", sD, 4 * 3840)
        e.V("v_mad_u32_u24", vLeft, vLd, sD, vCol)
        mk_srd(e, SR1, PP[2:4], D * 3 * D * 2)
        e.S("s_mul_i32", sB, sP, 80)
        self.gather(RAW1[0:8], SR1, sStr, vReg, sB)
        e.S("s_add_u32", sA, sB, 32)
        self.gather(RAW1[8:16], SR1, sStr, vReg, sA)
        e.S("s_add_u32", sA, sB, 64)
        self.gather(RAW1[16:20], SR1, sStr, vLeft, sA, 4)
        self.stamp("iss1")
        def r2touch():
            e.S("s_lshl_b32", sA, s(2), 2)
            e.S("s_add_u32", sA, sA, sWave)
            e.V("v_min_u32", T0, 17, vLane)
            e.V("v_lshlrev_b32", T0, 7, T0)
            e.S("s_mul_i32", sB, sA, 2160)
            mk_srd(e, SR2, PP[8:10], F * D * 2)
            e.touch(vDum, T0, SR2, sB, 0, cls=(2000, 30, 0))
            mk_srd(e, SR2, PP[12:14], F * D * 2)
            e.touch(vDum, T0, SR2, sB, 0, cls=(2000, 30, 0))
            e.V("v_min_u32", T0, 7 * 128, T0)
            mk_srd(e, SR2, PP[4:6], D * D * 2)
            e.S("s_mul_i32", sB, sA, 800)
            e.touch(vDum, T0, SR2, sB, 0, cls=(2000, 30, 0))
        if self.opt.get("r2touch", 3) == 1:
            r2touch()
        if self.opt.get("wsoff"):
            e.S("s_add_u32", pWs[0], pWs[0], self.opt["wsoff"] << 20)
            e.S("s_addc_u32", pWs[1], pWs[1], 0)
        mk_srd(e, WS, pWs, WS_USED)
        e.sload(sBase, pWs, EPOCH)
        e.S("s_mov_b32", sA, "0x3f803f80")
        e.V("v_mov_b32", vOne, sA)
        ops1 = []
        e.S("s_lshr_b32", sA, sC, 1)
        e.S("s_lshl_b32", sB, sR, 3)
        e.S("s_add_u32", sA, sA, sB)
        e.S("s_mul_i32", sA, sA, 20 * KB)
        e.S("s_and_b32", sB, sC, 1)
        e.S("s_lshl_b32", sB, sB, 7)
        e.S("s_add_u32", sA, sA, sB)
        e.S("s_add_u32", sA, sA, XB[0])
        for k in range(3):
            e.S("s_lshl_b32", sB, XM[k], 11)
            e.S("s_add_u32", sB, sB, sA)
            ops1.append(e.bstore(XJ[k], XD, WS, sB, 0, "sc1", cls=(1000, 70, 0)))
        xs = ACC[26:28]
        xz = ACC[24:26]
        MK = ACC[28:32]
        for r_ in (xs[0], xs[1], xz[0], xz[1]):
            e.V("v_mov_b32", r_, 0)
        for k in range(3):
            for i in range(4):
                e.V("v_dot2c_f32_bf16", xs[0], XJ[k][i], vOne)
                e.V("v_dot2c_f32_bf16", xs[1], XJ[k][i], XJ[k][i])
        for h in range(2):
            e.V("v_add_f32_dpp", xs[h], xs[h], xs[h], mods="row_ror:8 row_mask:0xf bank_mask:0xf")
            allreduce_g(e, xs[h], vT0)
        e.S("s_lshl_b32", sA, sR, 3)
        e.S("s_add_u32", sA, sA, sWave)
        e.S("s_lshl_b32", sA, sA, 10)
        e.S("s_lshl_b32", sB, sC, 6)
        e.S("s_add_u32", sA, sA, sB)
        e.S("s_add_u32", sA, sA, STB[0])
        e.S("s_add_u32", sB, sA, 4096)
        e.V("v_lshlrev_b32", vT0, 3, vLane)
        e.S("s_mov_b64", EXEC, "0xff")
        ops1.append(e.bstore(xs, vT0, WS, sA, 0, "sc1", cls=(1000, 20, 0)))
        ops1.append(e.bstore(xz, vT0, WS, sB, 0, "sc1", cls=(1000, 20, 0)))
        e.S("s_mov_b64", EXEC, -1)
        self.stamp("xst")
        e.S("s_cmp_lt_u32", sT, 5)
        e.S("s_cselect_b32", sE, 5, 3)
        e.S("s_cselect_b32", sA, 0, 100)
        e.S("s_add_u32", sA, sA, sT)
        e.S("s_mul_i32", sB, sC, NA)
        e.S("s_add_u32", sA, sA, sB)
        e.S("s_add_u32", sA, sA, WA // KB)
        e.S("s_lshl_b32", sA, sA, 10)
        e.S("s_lshl_b32", sE, sE, 10)
        e.S("s_mul_i32", sB, sP, sE)
        e.S("s_lshl_b32", sB, sB, 1)
        e.S("s_add_u32", sB, sB, sA)
        self.pack(RAW1[0:8])
        ops1.append(e.bstore(RAW1[0:4], vL16, WS, sB, 0, "sc1", cls=(1000, 70, 0)))
        e.S("s_add_u32", sB, sB, sE)
        self.pack(RAW1[8:16])
        ops1.append(e.bstore(RAW1[8:12], vL16, WS, sB, 0, "sc1", cls=(1000, 70, 0)))
        e.S("s_lshr_b32", sB, sP, 1)
        e.S("s_add_u32", sB, sB, 16)
        e.S("s_mul_i32", sB, sB, sE)
        e.S("s_add_u32", sB, sB, sA)
        e.S("s_and_b32", sD, sP, 1)
        e.S("s_lshl_b32", s(4), sD, 9)
        e.S("s_add_u32", sB, sB, s(4))
        e.V("v_lshlrev_b32", vT0, 8, vG)
        e.V("v_and_b32", vT0, 256, vT0)
        e.V("v_lshl_add_u32", vT0, vN, 4, vT0)
        e.V("v_lshrrev_b32", vT1, 1, vG)
        e.V("v_lshl_add_u32", vLd, vT1, 3, vT0)
        self.pack(RAW1[16:20], 2)
        ops1.append(e.bstore(RAW1[16:18], vLd, WS, sB, 0, "sc1", cls=(1000, 40, 0)))
        self.colsum([RAW1[i] for i in (0, 1, 2, 3, 8, 9, 10, 11, 16, 17)], EX, vSum, vT0)
        e.S("s_mul_i32", sB, sE, 20)
        e.S("s_add_u32", sB, sB, sA)
        e.S("s_lshr_b32", sA, sP, 1)
        e.S("s_lshl_b32", sA, sA, 8)
        e.S("s_add_u32", sB, sB, sA)
        e.S("s_lshl_b32", sD, sD, 3)
        e.S("s_add_u32", sB, sB, sD)
        e.S("s_mov_b64", EXEC, "0xffff")
        ops1.append(e.bstore(EX[0:2], vL16, WS, sB, 0, "sc1", cls=(1000, 20, 0)))
        e.S("s_mov_b64", EXEC, -1)
        self.stamp("r1")
        if self.opt.get("r2touch", 3) == 2:
            r2touch()
        for i in range(4):
            e.V("v_mov_b32", MK[i], -1)
        e.S("s_lshl_b32", sA, sC, 4)
        e.S("s_add_u32", sA, sA, sR)
        e.S("s_mul_i32", sA, sA, KVSZ)
        e.S("s_mul_i32", sB, sWave, KVSZ // 4)
        e.S("s_add_u32", sA, sA, sB)
        e.S("s_add_u32", sA, sA, KVB[0])
        e.S("s_mov_b64", EXEC, "0xfffffff")
        ops1.append(e.bstore(MK, vL16, WS, sA, 0, "sc1", cls=(1000, 40, 0)))
        e.S("s_mov_b64", EXEC, -1)
        self.stamp("xjob")
        e.S("s_and_b32", sCG, sC, 7)
        e.S("s_lshr_b32", sRH, sC, 3)
        if self.opt.get("r2touch", 3) == 3:
            r2touch()
        mk_srd(e, SB2, PP[14:16], D * 2)
        self.prologue2()
        self.stamp("pro2")
        sU, sP, sStr, sJ = s(88), s(89), s(100), s(101)
        rows = [s(3 + i) for i in range(4)]
        D2 = [s(64), s(65), s(66), s(67)]
        sDB, sDX = s(70), s(71)
        vSel0, vSel1 = vA1, vA2
        mk_srd(e, SR1, PP[10:12], F * 2)
        e.S("s_lshl_b32", sJ, sRH, 4)
        e.S("s_add_u32", sJ, sJ, sR)
        e.S("s_lshl_b32", sJ, sJ, 2)
        e.S("s_add_u32", sJ, sJ, sWave)
        e.V("v_lshrrev_b32", vT0, 1, vG)
        e.V("v_and_b32", vT1, 1, vG)
        e.V("v_mov_b32", vSt2, vL16)
        e.S("s_mov_b32", sDX, BIG)
        lo, lc, lj = e.newlabel("job_wo"), e.newlabel("job_w2"), e.newlabel("job_go")

        def unit(sbase, nu, stride, ca, cb, nreg, dB):
            e.S("s_lshl_b32", sA, sU, 5)
            e.S("s_add_u32", sA, sA, sbase)
            e.S("s_lshl_b32", sA, sA, 1)
            e.S("s_mov_b32", sDB, dB)
            e.S("s_cmp_lt_u32", sU, nu)
            e.S("s_cselect_b64", VCC, -1, 0)
            e.S("s_cselect_b32", sDB, sDB, BIG)
            e.V("v_lshlrev_b32", vCol, 2, vN)
            e.V("v_and_b32", vReg, 14, vN)
            e.V("v_lshlrev_b32", vReg, 1, vReg)
            e.V("v_cndmask_b32", vCol, vReg, vCol, VCC)
            e.V("v_add_u32", vCol, sA, vCol)
            e.V("v_and_b32", vReg, 1, vN)
            e.V("v_cndmask_b32", vReg, vReg, 0, VCC)
            e.S("s_mov_b32", sA, "0x02020202")
            e.V("v_mul_lo_u32", vReg, vReg, sA)
            e.V("v_add_u32", vSel0, "0x05040100", vReg)
            e.S("s_mov_b32", sStr, stride)
            e.S("s_mov_b32", sD, 8 * stride)
            e.V("v_mul_u32_u24", vReg, sD, vG)
            e.S("s_mov_b32", sD, ca * stride)
            e.V("v_mul_u32_u24", vLeft, sD, vT0)
            e.S("s_mov_b32", sD, cb * stride)
            e.V("v_mad_u32_u24", vLeft, vT1, sD, vLeft)
            e.S("s_cmp_lt_u32", sP, nreg)
            e.S("s_cselect_b64", VCC, -1, 0)
            e.V("v_cndmask_b32", vA0, vLeft, vReg, VCC)

        def split_dests(half):
            for b in range(4):
                e.S("s_lshl_b32", sA, sP, 2)
                e.S("s_add_u32", sA, sA, b)
                e.S("s_mul_i32", sD, sA, 10)
                e.S("s_cmp_ge_u32", sA, half)
                e.S("s_cselect_b32", sB, 10 * half - 1, 0)
                e.S("s_sub_u32", sD, sD, sB)
                e.S("s_add_u32", sD, sD, sE)
                e.S("s_lshl_b32", D2[b], sD, 10)
                if half == 27 and b >= 2:
                    e.S("s_cmp_ge_u32", sA, 54)
                    e.S("s_cselect_b32", D2[b], BIG, D2[b])

        def div3(dq, dr, src):
            e.S("s_mul_i32", dq, src, 43691)
            e.S("s_lshr_b32", dq, dq, 17)
            e.S("s_mul_i32", sA, dq, 3)
            e.S("s_sub_u32", dr, src, sA)

        e.S("s_cmp_ge_u32", sJ, 55)
        e.branch("s_cbranch_scc1", lc)
        e.S("s_cmp_ge_u32", sJ, 40)
        e.branch("s_cbranch_scc1", lo)
        e.cond_begin()
        mk_srd(e, SR2, PP[8:10], D * F * 2)
        e.S("s_and_b32", sU, sJ, 3)
        e.S("s_lshr_b32", sP, sJ, 2)
        e.S("s_cmp_ge_u32", sP, 5)
        e.S("s_cselect_b32", sA, 5, 0)
        e.S("s_cselect_b32", sJ, 8, 0)
        e.S("s_sub_u32", sP, sP, sA)
        e.S("s_add_u32", sJ, sJ, sCG)
        e.S("s_mul_i32", sE, sJ, 112)
        e.S("s_max_u32", sB, sJ, 12)
        e.S("s_sub_u32", sB, sB, 12)
        e.S("s_lshl_b32", sB, sB, 4)
        e.S("s_sub_u32", sE, sE, sB)
        unit(sE, 3, 3456, 80, 8, 4, 1024)
        e.S("s_lshl_b32", sA, sU, 4)
        e.S("s_add_u32", sA, sA, sJ)
        e.S("s_cmp_ge_u32", sA, 3 * 16 + 12)
        e.S("s_cselect_b64", VCC, -1, 0)
        e.V("v_cndmask_b32", vCol, vCol, vBig, VCC)
        for b in range(4):
            e.S("s_mul_i32", sA, sP, 160)
            e.S("s_add_u32", sA, sA, 80 * (b >> 1) + 32 * (b & 1))
            e.S("s_cmp_eq_u32", sP, 4)
            e.S("s_cselect_b32", rows[b], 160 * b + 64, sA)
        e.S("s_cmp_lt_u32", sU, B1N // 2)
        e.S("s_cselect_b32", s(79), B1N, 7 - B1N)
        e.S("s_cselect_b32", sE, 0, 20 * B1N)
        e.S("s_lshl_b32", sA, sU, 1)
        e.S("s_add_u32", sE, sE, sA)
        e.S("s_mul_i32", sB, sJ, NB)
        e.S("s_add_u32", sE, sE, sB)
        e.S("s_add_u32", sE, sE, WB // KB)
        for b in range(4):
            e.S("s_lshl_b32", sA, sP, 2)
            e.S("s_add_u32", sA, sA, b)
            e.S("s_mul_i32", sA, sA, s(79))
            e.S("s_add_u32", sA, sA, sE)
            e.S("s_lshl_b32", D2[b], sA, 10)
        e.S("s_mul_i32", sD, s(79), 20)
        e.S("s_add_u32", sD, sD, sE)
        e.S("s_lshl_b32", sDX, sD, 10)
        e.branch("s_branch", lj)
        e.cond_end()
        e.label(lo)
        e.cond_begin()
        mk_srd(e, SR2, PP[4:6], D * D * 2)
        e.S("s_sub_u32", sJ, sJ, 40)
        div3(sP, sU, sJ)
        e.S("s_mul_i32", sE, sCG, 80)
        unit(sE, 2, 1280, 80, 40, 4, 2048)
        for b in range(4):
            e.S("s_mul_i32", sA, sP, 160)
            e.S("s_add_u32", sA, sA, 40 * b)
            e.S("s_cmp_eq_u32", sP, 4)
            e.S("s_cselect_b32", rows[b], 160 * b + 32, sA)
        e.S("s_mul_i32", sE, sCG, NO)
        e.S("s_add_u32", sE, sE, WO // KB)
        e.S("s_lshl_b32", sA, sU, 2)
        e.S("s_add_u32", sE, sE, sA)
        split_dests(10)
        e.branch("s_branch", lj)
        e.cond_end()
        e.label(lc)
        e.cond_begin()
        mk_srd(e, SR2, PP[12:14], F * D * 2)
        e.S("s_sub_u32", sJ, sJ, 55)
        div3(sP, sU, sJ)
        e.S("s_mul_i32", sE, sCG, 80)
        unit(sE, 2, 1280, 112, 8, 12, 2048)
        e.S("s_cmp_ge_u32", sP, 14)
        e.S("s_cselect_b64", VCC, -1, 0)
        e.V("v_cndmask_b32", vCol, vCol, vBig, VCC)
        e.V("v_cndmask_b32", vSt2, vSt2, vBig, VCC)
        e.S("s_min_u32", sP, sP, 13)
        for b in range(4):
            e.S("s_lshl_b32", sD, sP, 2)
            e.S("s_add_u32", sD, sD, b)
            e.S("s_mul_i32", sA, sD, 43691)
            e.S("s_lshr_b32", sA, sA, 17)
            e.S("s_lshl_b32", sA, sA, 4)
            e.S("s_min_u32", sA, sA, 192)
            e.S("s_lshl_b32", sB, sD, 5)
            e.S("s_add_u32", sA, sA, sB)
            e.S("s_mul_i32", sB, sD, 224)
            e.S("s_sub_u32", sB, sB, 224 * 48 - 96)
            e.S("s_cmp_ge_u32", sD, 48)
            e.S("s_cselect_b32", rows[b], sB, sA)
        e.S("s_mul_i32", sE, sCG, NC)
        e.S("s_add_u32", sE, sE, WC // KB)
        e.S("s_lshl_b32", sA, sU, 2)
        e.S("s_add_u32", sE, sE, sA)
        split_dests(27)
        e.cond_end()
        e.label(lj)
        e.V("v_add_u32", vA0, vA0, vCol)
        e.S("s_cmp_lt_u32", sP, 2)
        e.S("s_cselect_b64", VCC, -1, 0)
        e.V("v_cndmask_b32", vBias, vBig, vCol, VCC)
        e.V("v_mov_b32", vSel1, "0x07060302")
        e.V("v_add_u32", vT0, sP, vG)
        e.V("v_lshrrev_b32", vT1, 1, vT0)
        e.V("v_lshlrev_b32", vLd, 4, vN)
        e.V("v_lshl_add_u32", vLd, vT1, 8, vLd)
        e.V("v_and_b32", vT0, 1, vT0)
        e.V("v_lshl_add_u32", vLd, vT0, 3, vLd)
        e.S("s_cmp_eq_u32", sP, 4)
        e.S("s_cselect_b32", sA, 4, 1)
        e.V("v_cmp_gt_u32", VCC, sA, vG)
        e.V("v_cndmask_b32", vLd, vBig, vLd, VCC)
        e.S("s_lshl_b32", sA, sC, 4)
        e.S("s_add_u32", sA, sA, sR)
        e.S("s_mul_i32", sA, sA, KVSZ)
        e.S("s_mul_i32", sB, sWave, KVSZ // 4)
        e.S("s_add_u32", sA, sA, sB)
        e.S("s_add_u32", s(79), sA, KVB[1])
        self.stamp("dec2")
        e.wait_ops(ops1)
        e.barrier()
        self.flag("both", 1)
        self.stamp("w1flag")
        self.ops2 = []

        def r2_loads():
            for b in range(4):
                e.S("s_mul_i32", sE, rows[b], sStr); yield
                for i in range(8):
                    e.bload(RAW2[8 * b + i], vA0, SR2, sE, 0, cls=(1500, 32, 0)); yield
                    if i < 7:
                        e.S("s_add_u32", sE, sE, sStr); yield
            e.bload(vBias, vBias, SR1, 0, 0, cls=(1500, 10, 0)); yield

        vs, vt, MK = TMP[48], TMP[49], TMP[40:44]
        EV = ACC[40:56]

        def r2_pack():
            for b in range(4):
                raw = RAW2[8 * b:8 * b + 8]
                for i in range(4):
                    e.V("v_perm_b32", EV[4 * b + i], raw[2 * i + 1], raw[2 * i], vSel0)
                for i in range(4):
                    e.V("v_perm_b32", raw[i], raw[2 * i + 1], raw[2 * i], vSel1)
            for i in range(4):
                e.V("v_mov_b32", MK[i], -1)
            e.V("v_cmp_eq_u32", sNan, 0, vG)
            for h in range(2):
                ex = TMP[44 + 2 * h:46 + 2 * h]
                self.colsum([EV[i] for i in range(16)] if h == 0 else [RAW2[8 * b + i] for b in range(4) for i in range(4)], ex, vs, vt)
                e.V("v_perm_b32", vt, vBias, vBias, vSel0 if h == 0 else vSel1)
                e.V("v_and_b32", vt, "0xffff0000", vt)
                e.V("v_or_b32", ex[1], ex[1], vt)
                e.V("v_cndmask_b32", ex[0], 0, ex[0], sNan)
                e.V("v_cndmask_b32", ex[1], 0, ex[1], sNan)
            e.V("v_mov_b32", vSel0, vLd)
            yield

        def r2_stores():
            for b in range(4):
                self.ops2.append(e.bstore(EV[4 * b:4 * b + 4], vSt2, WS, D2[b], 0, "sc1", cls=(1000, 70, 0)))
                e.S("s_add_u32", sA, D2[b], sDB)
                self.ops2.append(e.bstore(RAW2[8 * b:8 * b + 4], vSt2, WS, sA, 0, "sc1", cls=(1000, 70, 0)))
            e.S("s_mov_b64", EXEC, "0xfffffff")
            self.ops2.append(e.bstore(MK, vL16, WS, s(79), 0, "sc1", cls=(1000, 40, 0)))
            e.S("s_mov_b64", EXEC, -1)
            for h in range(2):
                if h:
                    e.S("s_add_u32", sDX, sDX, sDB)
                self.ops2.append(e.bstore(TMP[44 + 2 * h:46 + 2 * h], vSel0, WS, sDX, 0, "sc1", cls=(1000, 20, 0)))
        self.r2_stores = r2_stores
        self.r2_loads, self.r2_pack = r2_loads(), r2_pack()
        for _ in self.r2_loads:
            pass
        self.stamp("iss2")
        for _ in self.r2_pack:
            pass
        if self.opt.get("r2st", 2) == 2:
            r2_stores()
            self.late_loads()
        self.stamp("r2")
        self.poll("both", 1)
        e.barrier()
        self.stamp("w1go")

    def w2_gen(self):
        e = self.e
        t = RES[0]
        e.V("v_bfe_u32", t, vLane, 4, 1); yield
        e.V("v_lshl_add_u32", t, t, 11, vFl); yield
        e.S("s_lshl_b32", s(4), sCG, 8); yield
        e.S("s_add_u32", s(4), s(4), FLG_C); yield
        e.bload(RES[1], t, WS, s(4), 0, "sc1", cls=(900, 10, 0)); yield
        for _ in range(50):
            yield "idle"
        e.S("s_add_u32", s(5), sBase, 2); yield
        lok, lre = e.newlabel("w2ok"), e.newlabel("w2retry")
        e.V("v_cmp_ne_u32", VCC, s(5), RES[1])
        e.S("s_cmp_eq_u64", VCC, 0)
        e.branch("s_cbranch_scc1", lok)
        e.cond_begin()
        e.S("s_mov_b32", sCnt, 0)
        e.label(lre)
        e.misc("s_sleep 4")
        e.bload(RES[1], t, WS, s(4), 0, "sc1")
        e.V("v_cmp_ne_u32", VCC, s(5), RES[1])
        e.S("s_cmp_eq_u64", VCC, 0)
        e.branch("s_cbranch_scc1", lok)
        e.S("s_add_u32", sCnt, sCnt, 1)
        e.S("s_cmp_lt_u32", sCnt, 0x20000)
        e.branch("s_cbranch_scc1", lre)
        e.cond_end()
        e.label(lok)
        self.gate = 1 << 20
        yield

    def prologue2(self):
        e = self.e
        T0, T1, T2, T3, T4, T5 = [TMP[40 + i] for i in range(6)]
        mk_srd(e, OUT, pOut, XSZ)
        e.S("s_and_b32", sKH, sWave, 1)
        e.S("s_lshl_b32", sW2048, sWave, 11)
        e.S("s_mul_i32", sA, sC, NA * KB)
        e.S("s_add_u32", sSeg["A"], sA, WA)
        e.S("s_mul_i32", sA, sCG, NO * KB)
        e.S("s_add_u32", sSeg["O"], sA, WO)
        e.S("s_mul_i32", sA, sC, NB * KB)
        e.S("s_add_u32", sSeg["B"], sA, WB)
        e.S("s_mul_i32", sA, sCG, NC * KB)
        e.S("s_add_u32", sSeg["C"], sA, WC)
        e.V("v_add_u32", vDma, sW2048, vL16)
        e.S("s_mul_i32", sXr, sR, 160 * KB)
        e.S("s_mul_i32", sHr, sR, 432 * KB)
        e.S("s_lshl_b32", sSTr, sR, 13)
        e.S("s_mul_i32", sA, sWave, 40 * KB)
        e.V("v_add_u32", vAx[0], sA, vL16)
        e.V("v_add_u32", vAx[1], 20 * KB, vAx[0])
        e.V("v_lshlrev_b32", T0, 11, vG)
        e.V("v_lshl_add_u32", T0, vN, 3, T0)
        e.S("s_lshl_b32", sA, sWave, 8)
        e.V("v_add_u32", vSt, sA, T0)
        e.S("s_mov_b32", self.cInvD, lit(1.0 / D))
        for j in range(3):
            if j == 0:
                e.V("v_mov_b32", vW[0], vL16)
            else:
                e.V("v_add_u32", vW[j], j * 65536, vL16)
        e.S("s_lshl_b32", sA, sKH, 10)
        for j in range(3):
            e.V("v_add_u32", vK[j], sA, vW[j])
        e.V("v_lshlrev_b32", T4, 4, v(0))
        Z = TMP[44:48]
        Z = TMP[48:52]
        for j in range(4):
            e.V("v_mov_b32", Z[j], 0)
        e.ds_write(T4, Z, 0)
        e.ds_write(T4, Z, 4096)
        e.S("s_lshl_b32", sTT, sRH, 2)
        e.S("s_add_u32", sTT, sTT, sWave)
        e.S("s_xor_b32", sB, sTT, 1)
        for u, st in ((0, sTT), (1, sB)):
            e.S("s_mul_i32", sA, st, 20 * KB)
            e.S("s_mul_i32", sD, sKH, 10 * KB)
            e.S("s_add_u32", sA, sA, sD)
            e.V("v_add_u32", vAo[u], sA, vL16)
            e.S("s_mul_i32", sA, st, 54 * KB)
            e.S("s_mul_i32", sD, sKH, 27 * KB)
            e.S("s_add_u32", sA, sA, sD)
            e.V("v_add_u32", vAh[u], sA, vL16)
        e.V("v_lshrrev_b32", T0, 1, vG)
        e.V("v_and_b32", T1, 1, vG)
        e.V("v_lshlrev_b32", T2, 4, vN)
        e.V("v_lshl_add_u32", T3, T0, 8, T2)
        e.V("v_lshl_add_u32", T3, T1, 3, T3)
        e.S("s_mul_i32", sA, sTT, 20 * KB)
        e.V("v_add_u32", vXs, sA, vL16)
        e.V("v_add_u32", vXh, sA, T3)
        e.S("s_mul_i32", sA, sWave, 108 * KB)
        e.V("v_add_u32", vHs, sA, vL16)
        e.S("s_cmp_ge_u32", sC, 12)
        e.S("s_cselect_b32", sA, BIG, sA)
        e.V("v_add_u32", vHh, sA, T3)
        e.S("s_mul_i32", sA, sWave, 40 * KB)
        e.V("v_lshl_add_u32", T3, vG, 3, T2)
        e.V("v_add_u32", vOh, sA, T3)
        e.V("v_cmp_gt_u32", VCC, 2, vG)
        e.V("v_mov_b32", T3, BIG)
        e.V("v_cndmask_b32", vOh, T3, vOh, VCC)
        e.S("s_lshl_b32", sA, sTT, 7)
        e.V("v_lshl_add_u32", T3, vN, 3, sA)
        e.V("v_lshl_add_u32", vStW, T0, 2, T3)
        e.S("s_lshl_b32", sA, sWave, 7)
        e.S("s_add_u32", sA, sA, RST)
        e.V("v_lshl_add_u32", vRT, vG, 4, sA)
        e.V("v_lshl_add_u32", vRW, vN, 2, sA)
        e.S("s_lshl_b32", sA, sTT, 6)
        e.S("s_add_u32", sA, sA, RST)
        e.V("v_lshl_add_u32", vRF, vN, 2, sA)
        e.V("v_lshlrev_b32", T3, 4, vG)
        e.V("v_add_u32", vZ2, ZT + 128, T3)
        e.V("v_cmp_gt_u32", VCC, 10, vN)
        e.V("v_add_u32", T3, ZT, T3)
        e.V("v_cndmask_b32", vZ01, vZ2, T3, VCC)
        e.S("s_lshl_b32", sA, sR, 3)
        e.S("s_add_u32", sA, sA, sTT)
        e.S("s_mul_i32", sA, sA, 16 * 1280)
        e.S("s_mul_i32", sB, sCG, 160)
        e.S("s_add_u32", sA, sA, sB)
        e.V("v_mul_u32_u24", T3, 1280, vN)
        e.V("v_add_u32", T3, sA, T3)
        e.V("v_lshl_add_u32", vOut, vG, 4, T3)
        e.V("v_lshl_add_u32", vOut4, vG, 3, T3)
        e.S("s_mul_i32", sA, sWave, 5120)
        e.V("v_add_u32", vXch, sA, vL16)
        e.V("v_lshlrev_b32", vFl, 2, vN)
        e.V("v_mov_b32", vLn2[0], lit(LN2))
        e.V("v_mov_b32", vEps[0], lit(1e-6))
        e.S("s_mov_b32", sMaskV[0], "0x00ff00ff")
        e.S("s_mov_b32", sMaskV[1], "0x00ff00ff")
        e.S("s_lshl_b32", sA, sR, 8)
        e.S("s_add_u32", sFRL, sA, FLG_RL)
        e.S("s_add_u32", sFRG, sA, FLG_RG)
        e.S("s_lshl_b32", sA, sC, 8)
        e.S("s_add_u32", sFC, sA, FLG_C)
        e.S("s_lshl_b32", sA, sCG, 11)
        e.S("s_add_u32", sOx, sXr, sA)
        e.S("s_lshr_b32", sA, sCG, 1)
        e.S("s_lshl_b32", sA, sA, 10)
        e.S("s_and_b32", sB, sCG, 1)
        e.S("s_lshl_b32", sB, sB, 9)
        e.S("s_add_u32", sA, sA, sB)
        e.S("s_add_u32", sA, sA, 16 * KB)
        e.S("s_add_u32", sOxh, sXr, sA)
        e.S("s_lshl_b32", sA, sCG, 10)
        e.S("s_add_u32", sOst, sSTr, sA)
        e.S("s_lshl_b32", sA, sC, 10)
        e.S("s_add_u32", sOo, sXr, sA)
        e.S("s_lshl_b32", sA, sC, 8)
        e.S("s_add_u32", sA, sA, 16 * KB)
        e.S("s_add_u32", sOoh, sXr, sA)
        e.S("s_mul_i32", sA, sC, 3 * KB)
        e.S("s_add_u32", sOh, sHr, sA)
        e.S("s_lshl_b32", sA, sC, 9)
        e.S("s_add_u32", sA, sA, 48 * KB)
        e.S("s_add_u32", sOhh, sHr, sA)
        e.S("s_mul_i32", sKv, sC, 16 * KVSZ)
        e.misc(f"s_getreg_b32 {sX1}, hwreg(HW_REG_XCC_ID, 0, 4)")
        e.S("s_and_b32", sX1, sX1, 7)
        e.S("s_add_u32", sX1, sX1, 8)
        e.S("s_add_u32", sX1, sX1, sBase)
        e.S("s_mov_b32", sLocal, 0)
        U, Hh, Ee, Dq = T0, T1, T2, T3
        e.S("s_mov_b32", sA, 52429)
        e.V("v_mul_u32_u24", U, sA, v(0))
        e.V("v_lshrrev_b32", U, 18, U)
        e.V("v_mul_u32_u24", Dq, 5, U)
        e.V("v_sub_u32", Dq, v(0), Dq)
        e.V("v_cmp_le_u32", VCC, 21, U)
        e.V("v_cndmask_b32", Hh, 0, 1, VCC)
        e.V("v_mul_u32_u24", Ee, 21, Hh)
        e.V("v_sub_u32", Ee, U, Ee)
        A0, A1, A2, A3 = TMP[46], TMP[47], TMP[38], TMP[39]
        e.V("v_cmp_le_u32", s(100, 2), 16, Ee)
        e.V("v_cmp_eq_u32", s(88, 2), 4, Dq)
        e.V("v_cndmask_b32", A0, 0, 1, s(100, 2))
        e.V("v_lshl_add_u32", A0, Hh, 1, A0)
        e.V("v_add_u32", A1, 4, Hh)
        e.V("v_cndmask_b32", A1, A1, 6, s(100, 2))
        e.V("v_cndmask_b32", A0, A0, A1, s(88, 2))
        e.V("v_cndmask_b32", A1, Dq, Hh, s(88, 2))
        e.V("v_lshl_add_u32", A2, Hh, 2, Ee)
        e.V("v_subrev_u32", A2, 8, A2)
        e.V("v_cndmask_b32", A2, Ee, A2, s(100, 2))
        e.V("v_cmp_eq_u32", VCC, 20, Ee)
        e.V("v_cndmask_b32", A2, A2, 0, VCC)
        e.V("v_lshl_add_u32", A1, A1, 4, A2)
        e.V("v_lshlrev_b32", A1, 4, A1)
        e.V("v_lshl_add_u32", vKvSrc, A0, 10, A1)
        e.V("v_mul_u32_u24", A0, 5, Hh)
        e.V("v_add_u32", A0, A0, Dq)
        e.V("v_cmp_le_u32", s(88, 2), 8, A0)
        e.V("v_lshrrev_b32", A1, 1, A0)
        e.V("v_subrev_u32", A2, 8, A0)
        e.V("v_cndmask_b32", A1, A1, A2, s(88, 2))
        e.V("v_and_b32", A2, 1, A0)
        e.V("v_cndmask_b32", A2, A2, 0, s(88, 2))
        e.V("v_lshlrev_b32", A2, 3, A2)
        e.V("v_cndmask_b32", A0, 0, 1, s(88, 2))
        e.V("v_lshl_add_u32", A3, Hh, 1, A0)
        e.V("v_lshl_add_u32", A3, A3, 2, A1)
        e.V("v_lshl_add_u32", A3, A3, 4, A2)
        e.V("v_add_u32", A3, ZT, A3)
        e.V("v_mul_u32_u24", T4, 20, Hh)
        e.V("v_add_u32", T4, T4, Ee)
        e.V("v_cmp_le_u32", s(100, 2), 32, T4)
        e.V("v_and_b32", T5, 1, T4)
        e.V("v_cndmask_b32", T5, T5, 2, s(100, 2))
        e.V("v_lshl_add_u32", A0, T5, 1, A0)
        e.V("v_lshrrev_b32", T5, 1, T4)
        e.V("v_subrev_u32", T4, 32, T4)
        e.V("v_cndmask_b32", T4, T5, T4, s(100, 2))
        e.V("v_lshl_add_u32", T4, A1, 4, T4)
        e.V("v_lshl_add_u32", T4, T4, 4, A2)
        e.V("v_lshl_add_u32", T4, A0, 10, T4)
        e.V("v_cndmask_b32", T4, T4, A3, VCC)
        e.V("v_cmp_gt_u32", VCC, 210, v(0))
        e.V("v_mov_b32", T5, DUMMY)
        e.V("v_cndmask_b32", vKvDst, T5, T4, VCC)
        e.V("v_cndmask_b32", vKvSrc, 0, vKvSrc, VCC)
        e.V("v_lshlrev_b32", T4, 3, v(0))
        e.V("v_mov_b32", T5, BIG)
        e.V("v_cndmask_b32", vT16, T5, T4, VCC)
        e.V("v_and_b32", T4, -16, T4)
        e.V("v_and_b32", T0, 1, v(0))
        e.V("v_mul_u32_u24", T0, 8 * KVSZ, T0)
        e.V("v_add_u32", T4, T4, T0)
        e.V("v_cndmask_b32", vT16L, T5, T4, VCC)

    def late_loads(self):
        e = self.e
        T4, T5 = TMP[48], TMP[49]
        e.S("s_mul_i32", sB, sCG, 160)
        e.bload(RES[10:14], vOut, XIN, 0, 0)
        e.bload(RES[14:18], vOut, XIN, 0, 64)
        e.bload(RES[18:20], vOut4, XIN, 0, 128)
        e.V("v_lshl_add_u32", T4, vG, 4, sB)
        e.V("v_lshl_add_u32", T5, vG, 3, sB)
        e.bload(B2F[10:14], T4, SB2, 0, 0)
        e.bload(B2F[14:18], T4, SB2, 0, 64)
        e.bload(B2F[18:20], T5, SB2, 0, 128)
        skip = e.newlabel("noxid")
        e.S("s_cmp_lg_u32", sWave, 3)
        e.branch("s_cbranch_scc1", skip)
        e.cond_begin()
        e.S("s_lshl_b32", sA, sR, 8)
        e.S("s_add_u32", sA, sA, FLG_X)
        e.S("s_lshl_b32", sB, sC, 2)
        e.V("v_mov_b32", T4, sB)
        e.V("v_mov_b32", T5, sX1)
        e.S("s_mov_b64", EXEC, 1)
        e.bstore(T5, T4, WS, sA, 0, "sc1")
        e.S("s_mov_b64", EXEC, -1)
        e.cond_end()
        e.label(skip)

    def unpack(self, dst, pk):
        e = self.e
        for a_ in range(2):
            for j in range(4):
                e.V("v_lshlrev_b32", dst[8 * a_ + j], 16, pk[4 * a_ + j])
                e.V("v_and_b32", dst[8 * a_ + 4 + j], "0xffff0000", pk[4 * a_ + j])
        for j in range(2):
            e.V("v_lshlrev_b32", dst[16 + 2 * j], 16, pk[8 + j])
            e.V("v_and_b32", dst[16 + 2 * j + 1], "0xffff0000", pk[8 + j])

    class ALoad:
        def __init__(self, m, vaddr, terms, nks):
            self.m, self.vaddr, self.terms, self.nks = m, vaddr, terms, nks
            self.n = 0
            self.based = -1
            self.done = False
            self.win = 20

        def step(self):
            e = self.m.e
            ks, u = divmod(self.n, 2)
            if ks // 4 != self.based:
                self.based = ks // 4
                e.S("s_add_u32", sLd, self.terms[0], self.terms[1] + (ks // 4) * 4 * KB)
                return False
            e.bload(a((self.n % 40) * 4, 4), self.vaddr[u], WS, sLd, (ks % 4) * KB, self.m.opt.get("amod", "sc1"), cls=(self.m.opt.get("latA", 600), 76, 33 if self.nks == 27 else 16))
            self.n += 1
            self.done = self.n >= 2 * self.nks
            return True

        def upto(self, ks):
            while self.n < 2 * min(ks + 1, self.nks):
                self.step()

    def stats_loads(self, ver):
        e = self.e
        e.S("s_add_u32", sA, sSTr, STB[ver])
        for u in range(2):
            for k in range(2):
                e.bload(TMP[4 * u + 2 * k:4 * u + 2 * k + 2], vSt, WS, sA, k * 1024 + u * 128, "sc1", cls=(600, 20, 0))

    def stats_gen(self, need_T, have=False):
        e = self.e
        for u in range(2):
            sm, sq, t0, t1 = TMP[4 * u], TMP[4 * u + 1], TMP[4 * u + 2], TMP[4 * u + 3]
            if not have:
                e.V("v_add_f32", sm, sm, t0); yield
                e.V("v_add_f32", sq, sq, t1); yield
            for op in () if have else ("v_permlane32_swap_b32", "v_permlane16_swap_b32"):
                e.V("v_mov_b32", t0, sm); yield
                e.V("v_mov_b32", t1, sq); yield
                e.V(op, sm, t0); yield
                e.V(op, sq, t1); yield
                e.V("v_add_f32", sm, sm, t0); yield
                e.V("v_add_f32", sq, sq, t1); yield
            e.V("v_mul_f32", sm, lit(1.0 / D), sm); yield
            e.V("v_mul_f32", t0, sm, sm); yield
            e.V("v_fma_f32", sq, sq, self.cInvD, Neg(t0)); yield
            e.V("v_max_f32", sq, 0, sq); yield
            e.V("v_add_f32", sq, lit(1e-5), sq); yield
            e.V("v_rsq_f32", t0, sq); yield
            e.V("v_cvt_pk_bf16_f32", XE[u][0], sm, sm); yield
            e.V("v_mul_f32", sq, sq, t0); yield
            e.ds_write(vRW, t0, 64 * u); yield
            c2 = vC2 if u == 0 else vC2b
            e.V("v_mul_f32", c2[0], lit(LOG2E), t0); yield
            e.V("v_lshlrev_b32", t1, 16, XE[u][0]); yield
            e.V("v_sub_f32", sm, sm, t1); yield
            e.V("v_cvt_pk_bf16_f32", XE[u][1], sm, sq); yield
            e.V("v_and_b32", t1, "0xffff0000", XE[u][1]); yield
            e.V("v_sub_f32", t1, sq, t1); yield
            e.V("v_cvt_pk_bf16_f32", XE[u][3], sm, t1); yield
            e.V("v_mov_b32", XE[u][2], XE[u][0]); yield
        if need_T:
            for u in range(2):
                e.ds_read(RT[4 * u:4 * u + 4], vRT, 64 * u); yield

    def phi_pair(self, src, c2, bcast, t):
        e = self.e
        m = "op_sel_hi:[1,0]" if bcast else ""
        e.V("v_pk_mul_f32", t[0:2], src, c2, mods=m)
        e.V("v_exp_f32_e64", t[2], t[0], mods="clamp")
        e.V("v_exp_f32_e64", t[3], t[1], mods="clamp")
        e.V("v_max_f32", t[0], 0, t[0])
        e.V("v_max_f32", t[1], 0, t[1])
        e.V("v_pk_add_f32", t[2:4], t[2:4], vEps, mods="op_sel_hi:[1,0]")
        e.V("v_pk_fma_f32", t[0:2], t[0:2], vLn2, t[2:4], mods="op_sel_hi:[1,0,1]")

    def scratch(self, nblk, endpos):
        st = endpos - nblk
        if (st % RB) + nblk > RB:
            st = endpos - (endpos % RB) - nblk
        return st, self.ldsaddr(st)

    def bg_on(self, tail):
        e = self.e
        st = {"next": 0}
        t_end = e.T + tail
        self.deadline = lambda: t_end

        def f():
            if e.T >= st["next"] and self.dma_ok():
                n0 = len(e.vm) + len(e.lg) + len(self.deferred)
                while len(e.vm) + len(e.lg) + len(self.deferred) == n0:
                    next(self.dmaf)
                st["next"] = e.T + self.opt.get("vgap", 24)
        self.e.bg = f

    def code_touch(self, ahead=None):
        e = self.e
        if not self.opt.get("ctouch", 1):
            return
        lab = e.newlabel("here")
        e.label(lab)
        ahead = self.opt.get("cahead", 2048) if ahead is None else ahead
        e.V("v_lshlrev_b32", v(51), 5, v(0))
        e.V("v_add_u32", v(51), f"{lab}-{self.kname}+{ahead}", v(51))
        e.V("v_min_u32", v(51), self.opt.get("code_bytes", 32768) - 4, v(51))
        e.misc(f"global_load_dword {vDum}, {v(51)}, s[96:97]")
        e._vm([], (800, 30, 10))

    def delay(self, n, gen):
        for _ in range(n):
            yield "idle"
        yield from gen

    def code_touch_gen(self):
        self.code_touch(self.opt.get("cahead", 512))
        yield

    def bg_off(self):
        self.e.bg = None

    def gstore(self, lst, cold=False):
        e = self.e
        mode = self.opt.get("mode", "dual")
        if cold and not self.opt.get("touchcold", 0):
            mode = "safe"
        if mode != "dual":
            return [e.bstore(d, vo, WS, so, off, "sc1" if mode == "safe" else "") for d, vo, so, off in lst]
        ls, le = e.newlabel("st_safe"), e.newlabel("st_end")
        regs = []
        for d, vo, so, off in lst:
            regs += d.regs() + vo.regs()
        e.wait_ops(e._pending(regs))
        e.S("s_cmp_eq_u32", sLocal, 0)
        need = e._need("vmem", regs, [])
        if need > 1:
            e.nop(need - 1)
        e.branch("s_cbranch_scc1", ls)
        n0 = len(e.lines)
        ops = [e.bstore(d, vo, WS, so, off, "") for d, vo, so, off in lst]
        body = e.lines[n0:]
        assert len(body) == len(lst), body
        e.raw(f"  s_branch {le}")
        e.label(ls)
        for l in body:
            e.raw(l + " sc1")
        e.label(le)
        return ops

    def touch_gen(self, lst, cold=False):
        e = self.e
        if (cold and not self.opt.get("touchcold", 0)) or not self.opt.get("touch", 0):
            return
        for vo, sb, add, off in lst:
            e.S("s_add_u32", sE, sb, add); yield
            e.touch(vDum, vo, WS, sE, off, cls=(750, 80, 30)); yield

    def local_gen(self):
        e = self.e
        e.S("s_lshl_b32", s(6), sR, 8); yield
        e.S("s_add_u32", s(6), s(6), FLG_X); yield
        e.bload(TMP[52], vFl, WS, s(6), 0, "sc1"); yield
        for _ in range(40):
            yield "idle"
        e.V("v_cmp_ne_u32", VCC, sX1, TMP[52]); yield
        e.S("s_cmp_eq_u64", VCC, 0)
        e.S("s_cselect_b32", sLocal, 1, 0); yield

    def poll(self, kind, val):
        e = self.e
        skip = e.newlabel("nopoll")
        loop = e.newlabel("poll")
        e.S("s_cmp_lg_u32", sWave, 0)
        e.branch("s_cbranch_scc1", skip)
        e.cond_begin()
        t = TMP[55]
        e.S("s_mov_b32", sCnt, 0)
        e.S("s_mov_b64", sOk, 0)
        e.S("s_add_u32", sB, sBase, val)
        va, vb, sa, sb = vFl, vFl, sFRL, sFRG
        if kind == "both":
            va, vb, sa, sb = TMP[53], TMP[54], 0, 0
            e.V("v_cmp_gt_u32", VCC, 2, vG)
            e.V("v_mov_b32", va, sFC)
            e.V("v_mov_b32", vb, sFRL)
            e.V("v_cndmask_b32", va, vb, va, VCC)
            e.V("v_add_u32", va, va, vFl)
            e.V("v_mov_b32", vb, FLG_RG - FLG_RL)
            e.V("v_cndmask_b32", vb, vb, 0, VCC)
            e.V("v_add_u32", vb, va, vb)
        e.label(loop)

        def chk():
            e.misc("s_waitcnt vmcnt(0)")
            e.misc(f"v_subrev_u32 {t}, {sB}, {t}")
            e.misc(f"v_cmp_ge_u32 vcc, 1, {t}")
            e.misc(f"s_or_b64 {sOk}, {sOk}, vcc")
            e.misc(f"s_cmp_eq_u64 {sOk}, -1")
            e.misc(f"s_cbranch_scc1 {skip}")
        e.misc(f"buffer_load_dword {t}, {va}, {WS}, {sa} offen sc1")
        e.misc("s_add_u32 %s, %s, 1" % (sCnt, sCnt))
        chk()
        if kind == "both":
            e.misc("s_sleep 3")
        e.misc(f"s_and_b32 {sA}, {sCnt}, 3")
        e.misc(f"s_cbranch_scc1 {loop}")
        e.misc(f"buffer_load_dword {t}, {vb}, {WS}, {sb} offen sc1")
        chk()
        e.misc(f"s_cmp_lt_u32 {sCnt}, 0x40000")
        e.misc(f"s_cbranch_scc1 {loop}")
        e.cond_end()
        e.label(skip)

    def flag(self, kind, val):
        e = self.e
        lst = [(1, sFRG, "sc1", sC), (2, sFRL, "", sC)] if kind != "col" else []
        if kind != "row":
            lst.append((3, sFC, "sc1", sR))
        for w, sb, m, sidx in lst:
            skip = e.newlabel("noflag")
            e.S("s_cmp_lg_u32", sWave, w)
            e.branch("s_cbranch_scc1", skip)
            e.cond_begin()
            e.S("s_lshl_b32", sA, sidx, 2)
            e.V("v_mov_b32", TMP[54], sA)
            e.S("s_add_u32", sA, sBase, val)
            e.V("v_mov_b32", TMP[55], sA)
            e.S("s_mov_b64", EXEC, 1)
            e.bstore(TMP[55], TMP[54], WS, sb, 0, m)
            e.S("s_mov_b64", EXEC, -1)
            e.cond_end()
            e.label(skip)

    def handoff(self, val, ops, shadow=None, touch=()):
        e = self.e
        t_st = e.T
        hk = (val - 2) % 4
        pick = lambda name, d: self.opt[name + "s"][hk] if name + "s" in self.opt else self.opt.get(name, d)
        self.deadline = lambda: t_st + pick("topup", 2600)
        self.own_end = 0
        while self.dma_ok():
            next(self.dmaf)
        while self.stage_step():
            pass
        self.finish_stage()
        self.restore(self.opt.get("rest1", 4))
        e.wait_all_lg()
        self.ring_barrier(self.cons + FI + self.opt.get("ahead", 16), ops)
        self.hold = None
        self.flag("row", val)
        self.stamp("flag")
        t_flag = e.T
        if self.opt.get("post_touch", 0):
            for k, (vo, sb, add, off) in enumerate(touch):
                sr = sE if k % 2 else sD
                e.S("s_add_u32", sr, sb, add)
                e.touch(vDum, vo, WS, sr, off, "sc1", cls=(750, 66, 30))
        self.deadline = lambda: t_flag + pick("topup2", 1800)
        while self.dma_ok():
            next(self.dmaf)
        while self.stage_step():
            pass
        self.finish_stage()
        self.warn.append(f"staged {len(self.staged)}")
        self.stage_plan = []
        self.prime()
        self.restore(99)
        if shadow:
            shadow()
        self.poll("row", val)
        e.T = max(e.T, t_flag + 1000)
        e.barrier()
        self.stamp("go")

    def phaseA(self, p):
        e = self.e
        opt = self.opt
        xv = 2 * p
        acc = lambda T, u: ACC[(T * 2 + u) * 4:(T * 2 + u) * 4 + 4]
        xf = lambda ks, u: a((ks * 2 + u) * 4, 4) if ks < 20 else XE[u]
        if p == 0:
            e.S("s_mov_b32", sSel[0], "0x00003f80")
            e.S("s_mov_b32", sSel[1], "0x3f800000")
            e.S("s_mov_b32", sOdd[0], "0xaaaaaaaa")
            e.S("s_mov_b32", sOdd[1], "0xaaaaaaaa")
            e.S("s_getpc_b64", s(96, 2))
            e.label("main_pc2")
            e.S("s_sub_u32", s(96), s(96), "main_pc2-" + self.kname)
            e.S("s_subb_u32", s(97), s(97), 0)
            for _ in range(opt.get("first_groups", 3)):
                for _ in self.dma_group():
                    pass
        al = self.ALoad(self, vAx, (sXr, XB[xv]), 20)
        al.upto(opt.get("adist", 4) - 1)
        self.stats_loads(xv)
        fl0 = [self.delay(opt.get("stdelay", 24), self.stats_gen(True))]
        if p == 0:
            if opt.get("r2st", 2) == 0:
                self.r2_stores()
                self.late_loads()
            e.wait_all_lg()
            if opt.get("r2st", 2) == 2:
                self.ring_barrier(FI + 8, self.ops2)
                self.flag("col", 2)
                fl0.append(self.w2_gen())
            else:
                self.ring_barrier(FI + 8)
            self.prime()
            self.stamp("start")
            if opt.get("keep", 12):
                cg_ = self.capture_gen(opt.get("keep0", 3), opt.get("keep", 12))
                next(cg_)
                fl0.append(cg_)
        st1 = {}

        def hook1(t):
            if t >= opt.get("w2flag_at", 30) and not st1.get("done"):
                st1["done"] = t
                return self.ops2, (lambda: self.flag("col", 2))
            return [], None

        def add1(t):
            if st1.get("done") and t >= opt.get("w2chk_at", 70) and not st1.get("chk"):
                st1["chk"] = True
                return self.w2_gen()
        i0 = self.seqstart[("A1", p)]
        fb = 102
        sst, sad = self.scratch(28, self.seq[i0 + fb][0])
        self.hold = sst

        def mf(t, W, u):
            ks, T = divmod(t, 5)
            e.mfma(acc(T, u), xf(ks, u), W, acc(T, u) if ks else 0)
        self.run_pass(105, mf, 5, xf, fl0, must=fl0[0], chunk=(8 if p == 0 else 24), stop_reads=self.seqstart[("A4", p)], aload=al,
                      force_bar=fb, tail=6000, mix=opt.get("mixA", 0) if p else 0,
                      late=(60, self.touch_gen([(vAx[0], sOo, OB[p], 0), (vAx[1], sOo, OB[p], 0), (vOh, sOoh, OB[p], 0), (vOh, sOoh, OB[p] + 20 * KB, 0)], p == 0)), hooks={"bar": hook1, "add": add1} if (p == 0 and opt.get("r2st", 2) == 0) else None)
        if p == 0 and opt.get("r2st", 2) == 1:
            self.dma_all()
            self.r2_stores()
            self.late_loads()
        assert sst + 28 <= self.freed
        self.stamp("A1")
        self.bg_on(5000)
        C2T = TMP[8:16] if p else ACC[40:48]
        for j in range(8):
            e.V("v_mul_f32", C2T[j], lit(LOG2E), RT[j])
        KF = [TMP[16:20], TMP[20:24], TMP[24:28]]
        VF = {3: TMP[28:32], 4: TMP[32:36], 2: TMP[36:40]}
        tt = [TMP[40:44], TMP[44:48]]
        TA0, TA1 = TMP[48], TMP[49]
        if p == 0:
            KF = [RES[0:4], RES[4:8], B2F[0:4]]
            VF = {3: B2F[4:8], 4: ACC[56:60], 2: ACC[60:64]}
            tt = [ACC[48:52], ACC[52:56]]
        n = 0
        for T in range(3):
            for u in range(2):
                for h in range(2):
                    t = tt[n % 2]
                    n += 1
                    self.phi_pair(acc(T, u)[2 * h:2 * h + 2], C2T[4 * u + 2 * h:4 * u + 2 * h + 2], False, t)
                    e.V("v_cvt_pk_bf16_f32", KF[T][2 * u + h], t[0], t[1])
        for T in (3, 4, 2):
            for u in range(2):
                for h in range(2):
                    x = acc(T, u)[2 * h:2 * h + 2]
                    e.V("v_pk_mul_f32", x, x, RT[4 * u + 2 * h:4 * u + 2 * h + 2])
            for u in range(2):
                for h in range(2):
                    x = acc(T, u)[2 * h:2 * h + 2]
                    e.V("v_cvt_pk_bf16_f32", VF[T][2 * u + h], x[0], x[1])
        for j in range(4):
            e.V("v_cndmask_b32", VF[2][j], VF[2][j], vOne, sMaskV)
        PR = [ACC[4 * i:4 * i + 4] for i in range(7)]
        prods = [(0, 3), (0, 2), (1, 4), (1, 2), (2, 3), (2, 4), (2, 2)]
        for i, (kt, vt) in enumerate(prods):
            e.mfma(PR[i], KF[kt], VF[vt], 0)
        e.S("s_mul_i32", sA, sWave, 7168)
        e.S("s_add_u32", sA, sA, sad)
        e.V("v_add_u32", TA0, sA, vL16)
        e.V("v_add_u32", TA1, sad, vKvSrc)
        for i in range(7):
            e.ds_write(TA0, PR[i], i * 1024)
        e.wait_all_lg()
        e.barrier()
        RD = [ACC[4 * w:4 * w + 4] for w in range(4)]
        for w in range(4):
            e.ds_read(RD[w], TA1, w * 7168)
        for h in range(2):
            e.V("v_pk_add_f32", RD[0][2 * h:2 * h + 2], RD[0][2 * h:2 * h + 2], RD[1][2 * h:2 * h + 2])
            e.V("v_pk_add_f32", RD[2][2 * h:2 * h + 2], RD[2][2 * h:2 * h + 2], RD[3][2 * h:2 * h + 2])
        for h in range(2):
            e.V("v_pk_add_f32", RD[0][2 * h:2 * h + 2], RD[0][2 * h:2 * h + 2], RD[2][2 * h:2 * h + 2])
        e.S("s_mul_i32", sA, sR, KVSZ)
        e.S("s_add_u32", sA, sA, sKv)
        e.S("s_add_u32", sA, sA, KVB[p])
        e.V("v_cvt_pk_bf16_f32", RD[1][0], RD[0][0], RD[0][1])
        e.V("v_cvt_pk_bf16_f32", RD[1][1], RD[0][2], RD[0][3])
        kvst = e.bstore(RD[1][0:2], vT16, WS, sA, 0, "sc1")
        self.bg_off()
        self.stamp("kvpub")
        PL = [ACC[4 * i:4 * i + 4] for i in range(10)] + [TMP[24 + 4 * i:28 + 4 * i] for i in range(6)]

        st2 = {}

        def barhook(t):
            def rel():
                self.hold = None

            def relflag():
                self.hold = None
                self.flag("col", 2)
            if p == 0 and opt.get("r2st", 2) == 1 and not st2.get("done") and t >= opt.get("w2flag2_at", 12):
                st2["done"] = True
                return self.ops2, relflag
            return [], rel

        def kvloads():
            for i in range(8):
                if i % 2 == 0:
                    e.S("s_add_u32", sB, sKv, KVB[p] + i * KVSZ); yield
                e.bload(PL[i], vT16L, WS, sB, (i % 2) * KVSZ, "sc1", cls=(opt.get('kvlat', 800), 80, opt.get('kvsvc', 130))); yield

        def kvsum():
            SM = PL[8:10]
            for i in range(8):
                for d in range(4):
                    for h in range(2):
                        x = SM[d >> 1][2 * (d & 1) + h]
                        if i == 0:
                            e.V("v_dot2_f32_bf16", x, PL[i][d], sSel[h], 0)
                        else:
                            e.V("v_dot2c_f32_bf16", x, sSel[h], PL[i][d])
            for d in range(8):
                x = SM[d >> 2][d & 3]
                e.V("v_add_f32_dpp", x, x, x, mods="quad_perm:[1,0,3,2] row_mask:0xf bank_mask:0xf")
            for d in range(4):
                e.V("v_cndmask_b32", PL[0][d], SM[0][d], SM[1][d], sOdd)
            e.V("v_cmp_u_f32", VCC, PL[0][0], PL[0][1])
            e.V("v_cmp_u_f32", sNan, PL[0][2], PL[0][3])
            e.S("s_or_b64", VCC, VCC, sNan)

        def mfq(t, W, u):
            ks, T = divmod(t, 3)
            e.mfma(acc(5 + T, u), W, xf(ks, u), acc(5 + T, u) if ks else 0)
        self.lastbar = self.rd - 8
        fl = []
        if p == 0:
            fl = [self.local_gen()]
        self.run_pass(63, mfq, 3, xf, fl, stop_reads=self.seqstart[("A4", p)], hooks={"bar": barhook},
                      late=(opt.get("kvload_at", 40), kvloads()), see_all=True, force_bar=61, tail=1600 + self.opt.get("slack", 2400))
        self.stamp("A2")
        if p == 0 and opt.get("r2st", 2) == 1:
            assert st2.get("done")
            w2 = self.w2_gen()
            while next(w2) != "idle":
                pass
        if opt.get("qbg", 1):
            self.bg_on(1600 + self.opt.get("slack", 2400))
        PQ0 = [TMP[0:4], TMP[4:8]]
        PQ1 = [TMP[8:12], TMP[12:16]]
        tq = [TMP[16:20], TMP[20:24]]
        for u in range(2):
            c2 = vC2 if u == 0 else vC2b
            for h in range(2):
                self.phi_pair(acc(5, u)[2 * h:2 * h + 2], c2, True, tq[0])
                self.phi_pair(acc(6, u)[2 * h:2 * h + 2], c2, True, tq[1])
                e.V("v_cvt_pk_bf16_f32", PQ0[u][2 * h], tq[0][0], tq[1][0])
                e.V("v_cvt_pk_bf16_f32", PQ0[u][2 * h + 1], tq[0][1], tq[1][1])
            for h in range(2):
                self.phi_pair(acc(7, u)[2 * h:2 * h + 2], c2, True, tq[h])
                e.V("v_cvt_pk_bf16_f32", PQ1[u][h], tq[h][0], tq[h][1])
            e.V("v_mov_b32", PQ1[u][2], 0)
            e.V("v_mov_b32", PQ1[u][3], 0)
        self.bg_off()
        self.stamp("qepi")
        kvsum()
        lok, lre = e.newlabel("kvok"), e.newlabel("kvretry")
        e.branch("s_cbranch_scc0", lok)
        e.cond_begin()
        e.S("s_mov_b32", sCnt, 0)
        e.label(lre)
        e.misc("s_sleep 4")
        for _ in kvloads():
            pass
        kvsum()
        e.branch("s_cbranch_scc0", lok)
        e.S("s_add_u32", sCnt, sCnt, 1)
        e.S("s_cmp_lt_u32", sCnt, 0x10000)
        e.branch("s_cbranch_scc1", lre)
        e.cond_end()
        e.label(lok)
        self.stamp("kvgo")
        if p == 0 and opt.get("r2st", 2) == 1:
            for _ in w2:
                pass

        self.bg_on(900 + self.opt.get("slack", 2400))
        e.V("v_cvt_pk_bf16_f32", TMP[16], PL[0][0], PL[0][1])
        e.V("v_cvt_pk_bf16_f32", TMP[17], PL[0][2], PL[0][3])
        e.ds_write(vKvDst, TMP[16:18])
        e.wait_all_lg()
        e.barrier()
        FR = [TMP[16 + 4 * i:20 + 4 * i] for i in range(10)]
        for T in range(3):
            for ks in range(2):
                e.ds_read(FR[T * 2 + ks], vL16, IMG + (T * 2 + ks) * KB)
        for ks in range(2):
            e.ds_read(FR[6 + ks], vZ01, ks * 64)
            e.ds_read(FR[8 + ks], vZ2, ks * 64)
        oa = lambda T, u: ACC[(T * 2 + u) * 4:(T * 2 + u) * 4 + 4]
        for T in (3, 4, 0, 1, 2):
            for u in range(2):
                e.mfma(oa(T, u), FR[2 * T], PQ0[u], 0)
        for T in (3, 4, 0, 1, 2):
            for u in range(2):
                e.mfma(oa(T, u), FR[2 * T + 1], PQ1[u], oa(T, u))
        e.S("s_add_u32", sA, sOo, OB[p])
        e.S("s_add_u32", sB, sOoh, OB[p])
        e.S("s_add_u32", sD, sOoh, OB[p] + 20 * KB)
        ops = []
        for u in range(2):
            for x in (oa(3, u)[0], oa(3, u)[2], oa(4, u)[0]):
                e.V("v_add_f32", x, vEps[0], x)
        for u in range(2):
            for x in (oa(3, u)[0], oa(3, u)[2], oa(4, u)[0]):
                e.V("v_rcp_f32", x, x)
        for u in range(2):
            for T in range(3):
                for h in range(2):
                    x = oa(T, u)[2 * h:2 * h + 2]
                    dn = oa(3, u)[2 * h:2 * h + 2] if T < 2 else oa(4, u)[0:2]
                    e.V("v_pk_mul_f32", x, x, dn, mods="op_sel_hi:[1,0]")
            o4 = TMP[16 + 8 * u:20 + 8 * u]
            o2 = TMP[20 + 8 * u:22 + 8 * u]
            for j in range(4):
                e.V("v_cvt_pk_bf16_f32", o4[j], oa(0, u)[j], oa(1, u)[j])
            for h in range(2):
                e.V("v_cvt_pk_bf16_f32", o2[h], oa(2, u)[2 * h], oa(2, u)[2 * h + 1])
            if u == 0:
                ops += self.gstore([(o4, vAx[u], sA, 0), (o2, vOh, sB, 0)], p == 0 or opt.get("osafe"))
            else:
                ops += self.gstore([(o4, vAx[u], sA, 0), (o2, vOh, sD, 0)], p == 0 or opt.get("osafe"))
        self.bg_off()
        self.stamp("A3")
        def shadow():
            if p == 0:
                self.unpack(RES, RES[10:20])
                self.unpack(B2F, B2F[10:20])
        self.handoff(4 * p + 2, ops, shadow, [(vAx[0], sOo, OB[p], 0), (vAx[1], sOo, OB[p], 0), (vOh, sOoh, OB[p], 0), (vOh, sOoh, OB[p] + 20 * KB, 0)])

    def phase64(self, p, kind):
        e = self.e
        opt = self.opt
        nks = 10 if kind == "O" else 27
        name = "A4" if kind == "O" else "B2"
        acc = lambda T, u: ACC[(u * 5 + T) * 4:(u * 5 + T) * 4 + 4]
        if kind == "O":
            al = self.ALoad(self, vAo, (sXr, OB[p]), nks)
        else:
            al = self.ALoad(self, vAh, (sHr, HB[p]), nks)
        al.upto(opt.get("adist", 4) - 1)
        xf = lambda ks, u: a(((ks % 20) * 2 + u) * 4, 4)
        if kind == "C":
            e.ds_read(TMP[50], vRF)
        i0 = self.seqstart[(name, p)]
        fb = 5 * nks - 3
        sst, sad = self.scratch(20, self.seq[i0 + fb][0])
        self.hold = sst
        stop = i0 + 5 * nks

        def mf(t, W, u):
            ks, T = divmod(t, 5)
            u = 1 - u
            c0 = RES[4 * T:4 * T + 4] if (kind == "O" and u == 0) else 0
            e.mfma(acc(T, u), W, xf(ks, u), acc(T, u) if ks else c0)

        def addr_gen():
            e.V("v_add_u32", TMP[0], sad, vXch); yield
            e.S("s_xor_b32", sA, sWave, 1); yield
            e.S("s_mul_i32", sA, sA, 5120); yield
            e.S("s_add_u32", sA, sA, sad); yield
            e.V("v_add_u32", TMP[1], sA, vL16); yield
            if kind == "C":
                e.V("v_mul_f32", TMP[50], TMP[50], TMP[50]); yield
            if not last:
                e.S("s_add_u32", sA, sOx, XB[xv]); yield
                e.S("s_add_u32", sB, sOxh, XB[xv]); yield
                e.S("s_add_u32", sD, sOst, STB[xv]); yield
        last = kind == "C" and p == 1
        xv = 2 * p + (1 if kind == "O" else 2)
        tg = None if last else (0, self.touch_gen([(vXs, sOx, XB[xv], 0), (vXs, sOx, XB[xv], 1024), (vXh, sOxh, XB[xv], 0), (vStW, sOst, STB[xv], 0)]))
        fl = [self.delay(20, addr_gen())]
        self.run_pass(5 * nks, mf, 5, xf, fl, late=tg, force_bar=fb, chunk=(opt.get("chunkO", 12) if kind == "O" else opt.get("chunkC", 12)), stop_reads=stop, aload=al,
                      mix=opt.get("mixO", 0) if kind == "O" else 0, tail=900 + self.opt.get("slack", 2400))
        self.stamp(name)
        self.bg_on(900 + self.opt.get("slack", 2400))
        assert sst + 20 <= self.freed
        for T in range(5):
            e.ds_write(TMP[0], acc(T, 1), T * KB)
        e.wait_all_lg()
        e.barrier()
        PT = TMP[4:24]
        for T in range(5):
            e.ds_read(PT[4 * T:4 * T + 4], TMP[1], T * KB)
        own = ACC[0:20]
        for h in range(10):
            x = own[2 * h:2 * h + 2]
            e.V("v_pk_add_f32", x, x, PT[2 * h:2 * h + 2])
            if kind == "C":
                e.V("v_pk_fma_f32", x, x, TMP[50:52], RES[2 * h:2 * h + 2], mods="op_sel_hi:[1,0,1]")
        PK = TMP[24:34]
        for a_ in range(2):
            for j in range(4):
                e.V("v_cvt_pk_bf16_f32", PK[4 * a_ + j], own[8 * a_ + j], own[8 * a_ + 4 + j])
        for h in range(2):
            e.V("v_cvt_pk_bf16_f32", PK[8 + h], own[16 + 2 * h], own[16 + 2 * h + 1])
        self.bg_off()
        if last:
            om = self.opt.get("outmod", "")
            e.bstore(PK[0:4], vOut, OUT, 0, 0, om)
            e.bstore(PK[4:8], vOut, OUT, 0, 64, om)
            e.bstore(PK[8:10], vOut4, OUT, 0, 128, om)
            self.stamp("end")
            return
        xv = 2 * p + (1 if kind == "O" else 2)
        ops = []
        ops += self.gstore([(PK[0:4], vXs, sA, 0), (PK[4:8], vXs, sA, 1024), (PK[8:10], vXh, sB, 0)])
        sm, sq, t0 = TMP[36], TMP[37], TMP[38]
        e.V("v_mov_b32", sm, 0)
        e.V("v_mov_b32", sq, 0)
        for j in range(10):
            e.V("v_dot2c_f32_bf16", sm, PK[j], vOne)
            e.V("v_dot2c_f32_bf16", sq, PK[j], PK[j])
        e.V("v_permlane32_swap_b32", sm, sq)
        e.V("v_add_f32", sm, sm, sq)
        e.V("v_mov_b32", t0, sm)
        e.V("v_permlane16_swap_b32", sm, t0)
        e.V("v_add_f32", sm, sm, t0)
        ops += self.gstore([(sm, vStW, sD, 0)])
        self.stamp(name + "epi")

        def shadow():
            self.unpack(RES, PK)
            if kind == "O":
                for h in range(10):
                    x = RES[2 * h:2 * h + 2]
                    e.V("v_pk_add_f32", x, x, B2F[2 * h:2 * h + 2])
        self.handoff(4 * p + (3 if kind == "O" else 5), ops, shadow,
                     [(vStW, sOst, STB[xv], 0), (vXs, sOx, XB[xv], 0), (vXs, sOx, XB[xv], 1024), (vXh, sOxh, XB[xv], 0)])

    def phaseB1(self, p):
        e = self.e
        opt = self.opt
        xv = 2 * p + 1
        acc = lambda T, u: ACC[(T * 2 + u) * 4:(T * 2 + u) * 4 + 4]
        xf = lambda ks, u: a((ks * 2 + u) * 4, 4) if ks < 20 else XE[u]
        al = self.ALoad(self, vAx, (sXr, XB[xv]), 20)
        al.upto(opt.get("adist", 4) - 1)
        self.stats_loads(xv)
        stop = self.seqstart[("B2", p)]
        g0 = self.seq[stop][0] // 8 + RB // 8
        self.stage_plan = list(range(g0, g0 + (opt.get("nstage", 0) if p else 0)))

        def mf(t, W, u):
            ks, T = divmod(t, B1N)
            e.mfma(acc(T, u), W, xf(ks, u), acc(T, u) if ks else 0)
        tl = [(vHs, sOh, HB[p] + u * 54 * KB, a_ * KB) for a_ in range(3) for u in range(2)] + [(vHh, sOhh, HB[p] + u * 54 * KB, 0) for u in range(2)]
        sg = self.delay(opt.get("stdelay", 24), self.stats_gen(False))
        self.run_pass(21 * B1N, mf, B1N, xf, [sg], late=(0, self.touch_gen(tl, p == 0)), stop_reads=stop, aload=al, must=sg, mix=opt.get("mixB", 0), tail=700 * (7 - B1N) + 300 + self.opt.get("slack", 2400))
        self.stamp("B1a")
        ops = []

        def epi(pairs, single):
            n = 0
            for u in range(2):
                sb = sD if u == 0 else sE
                e.S("s_add_u32", sb, sOh, HB[p] + u * 54 * KB); yield
                for a_ in pairs:
                    o = TMP[16 + 4 * (n % 4):20 + 4 * (n % 4)]
                    n += 1
                    for j in range(4):
                        x, y = acc(2 * a_, u)[j], acc(2 * a_ + 1, u)[j]
                        e.V("v_mul_f32_e64", x, x, f"|{x}|"); yield
                        e.V("v_mul_f32_e64", y, y, f"|{y}|"); yield
                        e.V("v_cvt_pk_bf16_f32", o[j], x, y); yield
                        e.V("v_pk_max_i16", o[j], o[j], 0); yield
                    ops.extend(self.gstore([(o, vHs, sb, a_ * KB)], p == 0 or opt.get("hsafe", 2) == 1 or (opt.get("hsafe", 2) == 2 and not single))); yield
            if single:
                for u in range(2):
                    o = TMP[32 + 2 * u:34 + 2 * u]
                    for j in range(4):
                        x = acc(6, u)[j]
                        e.V("v_mul_f32_e64", x, x, f"|{x}|"); yield
                    for h in range(2):
                        e.V("v_cvt_pk_bf16_f32", o[h], acc(6, u)[2 * h], acc(6, u)[2 * h + 1]); yield
                        e.V("v_pk_max_i16", o[h], o[h], 0); yield
                e.S("s_add_u32", sA, sOhh, HB[p])
                e.S("s_add_u32", sB, sOhh, HB[p] + 54 * KB)
                ops.extend(self.gstore([(TMP[32:34], vHh, sA, 0), (TMP[34:36], vHh, sB, 0)], p == 0 or opt.get("hsafe", 2) == 1))
                yield

        def mf2(t, W, u):
            ks, T = divmod(t, 7 - B1N)
            e.mfma(acc(B1N + T, u), W, xf(ks, u), acc(B1N + T, u) if ks else 0)
        self.run_pass(21 * (7 - B1N), mf2, 7 - B1N, xf, [epi(list(range(B1N // 2)), False)], stop_reads=stop, force_bar=21 * (7 - B1N) - 2, over=opt.get("b1over", 0), chunk=opt.get("chunkB", 24), tail=300 + self.opt.get("slack", 2400))
        self.stamp("B1b")
        for _ in epi(list(range(B1N // 2, 3)), True):
            pass
        self.stamp("B1epi")
        self.handoff(4 * p + 4, ops, None, tl)

    def gen(self):
        e = self.e
        e.reset_state()
        self.cInvD = s(63)
        self.dmaf = self.dma_filler()
        self.prologue()
        if self.opt.get("stamps"):
            e.memtime(sTm, True)
            e.V("v_writelane_b32", v(53), sTm[0], 62)
        self.startup()
        stop = self.opt.get("stop", 99)
        n = 0
        for p in range(2):
            for f in (lambda: self.phaseA(p), lambda: self.phase64(p, "O"), lambda: self.phaseB1(p), lambda: self.phase64(p, "C")):
                if n < stop:
                    f()
                n += 1
        if self.opt.get("stamps"):
            e.wait_all_vm()
            e.memtime(sTm, True)
            e.V("v_writelane_b32", v(53), sTm[0], 63)
            e.S("s_lshl_b32", sA, s(2), 2)
            e.S("s_add_u32", sA, sA, sWave)
            e.S("s_lshl_b32", sA, sA, 8)
            e.S("s_add_u32", sA, sA, STAMP)
            e.V("v_lshlrev_b32", TMP[1], 2, vLane)
            e.bstore(v(53), TMP[1], WS, sA)
        if self.opt.get("dbgst") is not None:
            skip = e.newlabel("nodbg")
            e.S("s_lshl_b32", sA, s(2), 2)
            e.S("s_add_u32", sA, sA, sWave)
            e.S("s_cmp_lg_u32", sA, 4 * self.opt.get("dbgwg", 77))
            e.branch("s_cbranch_scc1", skip)
            e.sload(s(84, 2), s(0, 2), 72)
            e.V("v_readlane_b32", sB, v(53), 0)
            e.V("v_subrev_u32", TMP[0], sB, v(53))
            e.V("v_subrev_u32", TMP[1], self.opt["dbgst"], vLane)
            e.V("v_cmp_gt_u32", VCC, 64 - self.opt["dbgst"], TMP[1])
            e.V("v_lshlrev_b32", TMP[1], 2, TMP[1])
            e.wait_all_lg()
            e.S("s_and_saveexec_b64", s(86, 2), VCC)
            e.misc(f"global_store_dword {TMP[1]}, {TMP[0]}, s[84:85]")
            e.S("s_mov_b64", EXEC, -1)
            e.label(skip)
        if self.opt.get("spin"):
            e.wait_all_vm()
            e.V("v_readfirstlane_b32", s(86), v(53))
            e.label("spin_loop")
            e.misc("s_memrealtime s[88:89]")
            e.misc("s_waitcnt lgkmcnt(0)")
            e.misc("s_sub_u32 s88, s88, s86")
            e.misc(f"s_cmp_lt_u32 s88, {self.opt['spin']}")
            e.misc("s_cbranch_scc1 spin_loop")
        e.S("s_add_u32", sA, s(2), sWave)
        e.S("s_cmp_lg_u32", sA, 0)
        e.branch("s_cbranch_scc1", "main_end")
        e.S("s_add_u32", sA, sBase, 16)
        e.V("v_mov_b32", TMP[0], sA)
        e.V("v_mov_b32", TMP[1], EPOCH)
        e.S("s_mov_b64", EXEC, 1)
        e.bstore(TMP[0], TMP[1], WS, 0)
        e.label("main_end")
        e.misc("s_endpgm")
```

```python
from asmgen import *
from layout import *
from gen_prep import mk_srd, allreduce_g
import math

BIG = 0x40000000
LOG2E = 1.4426950408889634
LN2 = 0.6931471805599453

IMG = 0
ZT = 6144
RST = 6400
DUMMY = 6912
RING = 8192
RB = 152
LDS_BYTES = RING + RB * KB
FI = 8

WS, OUT, XIN, SB2 = s(8, 4), s(12, 4), s(16, 4), s(20, 4)
sWave, sR, sC, sCG, sRH, sKH, sW2048 = [s(24 + i) for i in range(7)]
sSeg = {"A": s(31), "O": s(32), "B": s(33), "C": s(34)}
sXr, sHr, sSTr, sFRL, sFRG, sFC = [s(35 + i) for i in range(6)]
sA, sB, sD, sE, sDm, sLd = [s(41 + i) for i in range(6)]
sMaskV = s(48, 2)
sCnt = s(50)
sTT = s(51)
sTm = s(52, 2)
sOx, sOxh, sOst, sOo, sOoh, sOh, sOhh, sKv = [s(54 + i) for i in range(8)]
sLocal, sX1 = s(47), s(62)
sStg = s(3)
sSel = [s(84), s(85)]
sOdd = s(86, 2)
vT16L = v(37)
vStg = v(55)
sNan = s(90, 2)
sBase = s(92)
sOk = s(94, 2)
SR1, SR2 = s(84, 4), s(96, 4)
PP = s(64, 16)
pOut, pWs = s(80, 2), s(82, 2)
vDum = v(49)

vLane, vN, vG, vL16 = v(1), v(2), v(3), v(4)
vW = [v(5), v(6), v(7)]
vK = [v(8), v(9), v(10)]
vDma = v(11)
vAx = [v(12), v(13)]
vAo = [v(14), v(15)]
vAh = [v(16), v(17)]
vSt, vStW, vKvSrc, vKvDst, vT16, vZ01, vZ2, vRT, vRW, vRF, vOut, vOut4, vOne = [v(18 + i) for i in range(13)]
vOh, vXs, vXh, vHs, vHh, vFl, vPollR, vPollC, vXch = [v(31 + i) for i in range(9)]
XE = [v(40, 4), v(44, 4)]
vC2 = v(48, 2)
vC2b = v(50, 2)
vLn2 = v(52, 2)
vEps = v(54, 2)
RT = v(56, 8)
ACC = v(64, 64)
FIFO = v(128, 4 * FI)
RES = v(160, 20)
B2F = v(180, 20)
TMP = v(200, 56)


def keepreg(k, h):
    if k < 12:
        return a(160 + 8 * k + 4 * h, 4)
    t = 2 * (k - 12) + h
    return B2F[4 * t:4 * t + 4] if t < 5 else TMP[40 + 4 * (t - 5):44 + 4 * (t - 5)]


class Main:
    def __init__(self, e, opt):
        self.e = e
        self.opt = opt
        self.kname = opt["kname"]
        self.nstamp = 0
        self.segs = []
        pos = 0
        for p in range(2):
            for k, n in (("A", NA), ("O", NO), ("B", NB), ("C", NC)):
                self.segs.append((k, pos, n))
                pos += n
        self.total = pos
        self.ngroups = pos // 8
        self.issued = 0
        self.dmaop = {}
        self.freed = 0
        self.hold = None
        self.visible = 0
        self.seq = []
        self.seqstart = {}
        for p in range(2):
            b = self.segs[4 * p + 0][1]
            self.seqstart[("A1", p)] = len(self.seq)
            self.seq += [(b + i, "W") for i in range(105)]
            self.seqstart[("A2", p)] = len(self.seq)
            self.seq += [(b + 105 + i, "W") for i in range(63)]
            b = self.segs[4 * p + 1][1]
            self.seqstart[("A4", p)] = len(self.seq)
            self.seq += [(b + 2 * i, "K") for i in range(50)]
            b = self.segs[4 * p + 2][1]
            self.seqstart[("B1a", p)] = len(self.seq)
            self.seq += [(b + i, "W") for i in range(21 * B1N)]
            self.seqstart[("B1b", p)] = len(self.seq)
            self.seq += [(b + 21 * B1N + i, "W") for i in range(147 - 21 * B1N)]
            b = self.segs[4 * p + 3][1]
            self.seqstart[("B2", p)] = len(self.seq)
            self.seq += [(b + 2 * i, "K") for i in range(135)]
        self.rd = 0
        self.cons = 0
        self.lastbar = 0
        self.gate = NA // 8
        self.stage_plan = []
        self.staged = {}
        self.stage_mid = None
        self.cap_hold = 1 << 20
        self.deferred = []
        self.spares = []
        self.last_scratch = (0, 0)
        self.restg = None
        self.capg = None
        self.own_end_phase = 0
        self.cap_ops = []
        self.cap_next = 1 << 20
        self.warn = []
        self.model = []
        self.own_end = 0
        self.deadline = lambda: 1 << 30

    def stamp(self, name):
        self.model.append((name, self.e.T))
        if not self.opt.get("stamps"):
            return
        e = self.e
        e.wait_all_lg()
        e.memtime(sTm)
        e.V("v_writelane_b32", v(53), sTm[0], self.nstamp)
        self.opt.setdefault("stampnames", []).append(name)
        self.nstamp += 1
        assert self.nstamp <= 62

    def endpos(self, i):
        p, k = self.seq[i]
        return p + (2 if k == "K" else 1)

    def ldsaddr(self, pos):
        return RING + (pos % RB) * KB

    def can_issue(self):
        if self.issued >= min(self.ngroups, self.gate):
            return False
        lim = self.freed if self.hold is None else min(self.freed, self.hold)
        lim = min(lim, self.cap_hold)
        return 8 * (self.issued + 1) <= lim + RB

    def dma_group(self):
        e = self.e
        g = self.issued
        self.issued += 1
        pos = 8 * g
        if g in self.stage_plan:
            self.stage_plan = []
        if g in self.staged and self.opt.get("defer", 1) and 8 * g >= self.own_end_phase:
            self.deferred.append(g)
            self.dmaop[g] = None
            yield
            return
        if g in self.staged:
            self.finish_stage()
            k = self.staged[g]
            ad = self.ldsaddr(pos)
            e.V("v_add_u32", vStg, ad, vDma)
            yield
            e.ds_write(vStg, keepreg(k, 0), 0)
            yield
            self.dmaop[g] = e.ds_write(vStg, keepreg(k, 1), 1024)
            yield
            return
        for k, b, n in self.segs:
            if b <= pos < b + n:
                break
        e.S("s_add_u32", M0, sW2048, self.ldsaddr(pos))
        yield
        e.S("s_add_u32", sDm, sSeg[k], (pos - b) * KB)
        yield
        md = "nt" if k in self.opt.get("ntseg", "") else ""
        nvalid = min(8, {"A": 168, "O": 100, "B": 147, "C": 270}[k] - (pos - b)) if self.opt.get("skippad", 0) else 8
        for j in range(2):
            nw = (nvalid - j + 1) // 2
            if nw < 4:
                skip = e.newlabel("nopad")
                e.S("s_cmp_ge_u32", sWave, nw)
                e.branch("s_cbranch_scc1", skip)
                e.cond_begin()
            op = e.dma(vDma, WS, sDm, 1024 * j, md, cls=self.dcls(k))
            if nw < 4:
                e.cond_end()
                e.label(skip)
            if j:
                self.dmaop[g] = op
            yield

    def capture_gen(self, first, n, k0=0):
        e = self.e
        self.cap_hold = self.cap_next = 8 * first
        g1 = self.segs[4][1] // 8
        for k in range(k0, k0 + n):
            g = first + k - k0
            while self.visible < 8 * (g + 1):
                yield "idle"
            e.V("v_add_u32", vStg, self.ldsaddr(8 * g), vDma); yield
            e.ds_read(keepreg(k, 0), vStg, 0); yield
            self.cap_ops.append(e.ds_read(keepreg(k, 1), vStg, 1024))
            self.staged[g1 + g] = k
            self.cap_next = 8 * (g + 1) if k < k0 + n - 1 else 1 << 20
            yield

    def stage_group(self):
        e = self.e
        g = self.stage_plan.pop(0)
        k = len(self.staged) % 12
        self.staged[g] = k
        for sk, b, n in self.segs:
            if b <= 8 * g < b + n:
                break
        e.S("s_add_u32", sStg, sSeg[sk], (8 * g - b) * KB)
        yield
        e.bload(keepreg(k, 0), vDma, WS, sStg, 0, cls=self.dcls(sk))
        yield
        e.bload(keepreg(k, 1), vDma, WS, sStg, 1024, cls=self.dcls(sk))
        self.stage_mid = None
        yield

    def restore_gen(self, n):
        e = self.e
        while n > 0 and self.deferred:
            n -= 1
            g = self.deferred[0]
            k = self.staged[g]
            e.V("v_add_u32", vStg, self.ldsaddr(8 * g), vDma); yield
            old = 8 * g - RB
            clean = old + 8 <= self.last_scratch[0] or old >= self.last_scratch[1]
            if self.spares and self.opt.get("swap", 1) and clean and self.segof(8 * g) == "A":
                sp = self.spares.pop(0)
                e.ds_read(keepreg(sp, 0), vStg, 0); yield
                e.ds_read(keepreg(sp, 1), vStg, 1024); yield
                g2 = g - RB // 8 + self.segs[4][1] // 8
                assert self.segof(8 * g2) == "C"
                self.staged[g2] = sp
            e.ds_write(vStg, keepreg(k, 0), 0); yield
            self.dmaop[g] = e.ds_write(vStg, keepreg(k, 1), 1024)
            self.spares.append(k)
            self.deferred.pop(0)
            yield

    def restore(self, n):
        for _ in self.restore_gen(n):
            pass

    def finish_stage(self):
        while self.stage_mid:
            next(self.stage_mid)

    def stage_step(self):
        e = self.e
        if e.outstanding() >= self.opt.get("qmax", 13):
            return False
        if not self.stage_mid:
            if not self.stage_plan or self.can_issue() or self.mid_group():
                return False
            c = self.dcls("C")
            if e.predict(c) + c[2] > self.deadline():
                return False
            self.stage_mid = self.stage_group()
        next(self.stage_mid)
        return True

    def dcls(self, k):
        return (750, 80, self.opt.get("svcAB", 150)) if k in "AB" else (750, self.opt.get("svcOC", 92), 75)

    def dma_ok(self):
        e = self.e
        if self.mid_group():
            g = self.issued - 1
        elif self.can_issue():
            g = self.issued
        else:
            return False
        if g in self.staged:
            return True
        if e.outstanding() >= self.opt.get("qmax", 13):
            return False
        if self.mid_group() or 8 * g < self.own_end:
            return True
        c = self.dcls(self.segof(8 * g))
        return e.predict(c) + c[2] <= self.deadline()

    def dma_filler(self):
        while True:
            if self.can_issue():
                for _ in self.dma_group():
                    yield True
            else:
                yield False

    def flush_dma_partial(self):
        while self.issued > 0 and (self.issued - 1) not in self.dmaop:
            next(self.dmaf)

    def dma_all(self):
        self.flush_dma_partial()
        while self.can_issue():
            for _ in self.dma_group():
                pass

    def ring_barrier(self, need_idx, extra_ops=(), free_all=False):
        e = self.e
        need_idx = min(need_idx, len(self.seq))
        upto = self.endpos(need_idx - 1) if need_idx > 0 else 0
        g = (upto + 7) // 8
        self.flush_dma_partial()
        while self.issued < g:
            assert self.can_issue(), ("ring deadlock", self.issued, g, self.freed, self.hold)
            self.warn.append(f"forced dma group {self.issued} at seq {self.rd}")
            for _ in self.dma_group():
                pass
        ops = list(extra_ops)
        while self.deferred and self.deferred[0] < g:
            self.warn.append(f"forced restore {self.deferred[0]}")
            next(self.restg)
        for gg in range(self.visible // 8, g):
            assert gg not in self.deferred, gg
            ops.append(self.dmaop[gg])
        e.wait_ops(ops + self.cap_ops)
        self.cap_ops = []
        e.barrier()
        self.cap_hold = self.cap_next
        self.visible = max(self.visible, 8 * g)
        self.freed = self.seq[self.cons][0] if self.cons < len(self.seq) else self.total
        self.lastbar = self.rd

    def issue_read(self):
        e = self.e
        i = self.rd
        if i >= len(self.seq):
            return
        pos, k = self.seq[i]
        assert self.endpos(i) <= self.visible, ("read of invisible block", i, pos, self.visible)
        ad = self.ldsaddr(pos)
        base = (vW if k == "W" else vK)[ad >> 16]
        slot = i % FI
        e.ds_read(FIFO[4 * slot:4 * slot + 4], base, ad & 0xffff)
        self.rd += 1

    def prime(self):
        while self.rd < self.cons + FI and self.rd < len(self.seq) and self.endpos(self.rd) <= self.visible:
            self.issue_read()

    def run_pass(self, n, mf, ntile, xf, fillers=(), chunk=24, stop_reads=None, hooks=None,
                 aload=None, vrate=0.5, amix=(1, 0), over=0, force_bar=None, late=None, see_all=False, tail=2000, mix=0, must=None):
        e = self.e
        fillers = list(fillers)
        lim = stop_reads if stop_reads is not None else len(self.seq)
        st = {"next": 0, "k": 0, "t": 0}
        self.own_end = self.own_end_phase = self.endpos(lim - 1)
        self.deadline = lambda: e.T + (n - st["t"]) * 33 + tail

        i_first = self.cons

        def dma_need():
            g = self.issued - 1 if self.mid_group() else self.issued
            for i in range(self.cons, lim):
                if self.endpos(i) > 8 * g:
                    return i - i_first - FI - chunk
            return 1 << 20

        def one_vmem():
            na, nd = amix
            n0 = len(e.vm)
            if st.get("late"):
                if e.T < st["next"]:
                    return False
                try:
                    next(st["late"])
                except StopIteration:
                    st["late"] = None
                    return False
            else:
                na_ = (aload.n // 2) * ntile if (aload is not None and not aload.done) else 1 << 21
                nd_ = dma_need() if (self.mid_group() or self.can_issue()) else 1 << 22
                run = self.opt.get("run", 0)
                if run and na_ < 1 << 21 and nd_ < 1 << 20:
                    if st.get("cur") == "a" and na_ - run <= nd_:
                        nd_ = max(nd_, na_)
                    elif st.get("cur") == "d" and nd_ - run < na_:
                        na_ = max(na_, nd_ + 1)
                    st["cur"] = "a" if na_ <= nd_ else "d"
                urgent = min(na_, nd_) - st["t"] <= self.opt.get("horizon", 30) + run
                if e.T < st["next"] and not urgent:
                    return False
                if mix and na_ < 1 << 21 and st["k"] % mix == mix - 1 and na_ - st["t"] > self.opt.get("mixh", 10) and self.dma_ok():
                    next(self.dmaf)
                elif na_ <= nd_ and na_ < 1 << 21:
                    if e.outstanding() >= self.opt.get("qmax", 13) and not urgent:
                        return False
                    if aload.n // 2 >= st["t"] // ntile + aload.win - 1:
                        return False
                    aload.step()
                elif nd_ < 1 << 22 and (urgent or self.dma_ok()):
                    next(self.dmaf)
                elif not self.stage_step():
                    return False
            if len(e.vm) > n0:
                st["k"] += 1
                st["next"] = e.T + self.opt.get("vgap", 24)
            return True

        def fill(budget):
            while budget > 0:
                n0 = e.ninst
                did = one_vmem()
                if not did:
                    for f in list(fillers):
                        try:
                            if next(f) == "idle":
                                continue
                            did = True
                            break
                        except StopIteration:
                            fillers.remove(f)
                if not did:
                    return
                budget -= e.ninst - n0

        def waits_for(t):
            regs = []
            for tt in (t, t + 1):
                if tt < n:
                    ks = tt // ntile
                    if aload is not None:
                        aload.upto(ks)
                    idx = self.cons + (tt - t)
                    if idx < self.rd:
                        regs += FIFO[4 * (idx % FI):4 * (idx % FI) + 4].regs()
                    regs += xf(ks, 0).regs() + xf(ks, 1).regs()
            return e._pending(regs)

        e.wait_ops(waits_for(0))
        if aload is not None:
            self.stamp("1st")
            self.warn.append(f"fill {8 * self.issued - self.seq[self.cons][0]}")
        for t in range(n):
            if aload is not None and self.opt.get("midstamp") and t == n // 2:
                self.stamp("half")
            i = self.cons
            assert self.rd > i, ("fifo underrun", i)
            W = FIFO[4 * (i % FI):4 * (i % FI) + 4]
            st["t"] = t
            if must is not None and t == n - ntile - 2:
                for _ in must:
                    self.warn.append("must drained late")
            if t == int(n * self.opt.get("cfrac", 0.8)) and n > 30:
                fillers.insert(0, self.code_touch_gen())
            if hooks and hooks.get("add"):
                g_ = hooks["add"](t)
                if g_:
                    fillers.append(g_)
            ov = over if fillers else 0
            mf(t, W, 0)
            bar = self.rd < lim and (self.endpos(self.rd) > self.visible or self.rd - self.lastbar >= chunk)
            bar = bar or t == force_bar
            if late and t >= late[0] and not st.get("lateon") and (aload is None or aload.done) and 8 * self.issued >= min(self.own_end, self.endpos(min(i_first + n + FI, lim) - 1)) and not self.mid_group():
                st["late"] = late[1]
                st["lateon"] = True
                self.warn.append(f"late at {t}")
            if bar:
                ex, after = [], None
                if hooks and hooks.get("bar"):
                    ex, after = hooks["bar"](t)
                self.ring_barrier(lim if see_all else min(self.rd + chunk, lim), ex)
                if after:
                    after()
            else:
                fill(2 + ov)
            mf(t, W, 1)
            self.cons += 1
            used = 0
            if self.rd < lim:
                self.issue_read()
                used = 1
            pend = waits_for(t + 1) if (t % 2 == 1 and t + 1 < n) else []
            fill(2 + ov - used - (1 if pend else 0))
            if pend:
                e.wait_ops(waits_for(t + 1))
        if late and not st.get("lateon"):
            st["late"] = late[1]
        for f in fillers + ([st["late"]] if st.get("late") else []):
            if f is not self.capg:
                for _ in f:
                    pass

    def segof(self, pos):
        for k, b, n in self.segs:
            if b <= pos < b + n:
                return k
        return "O"

    def mid_group(self):
        return self.issued > 0 and (self.issued - 1) not in self.dmaop

    def dma_burst(self, maxgroups=99):
        e = self.e
        self.flush_dma_partial()
        gs = []
        while self.can_issue() and len(gs) < maxgroups:
            gs.append(self.issued)
            self.issued += 1
        for w in (1, 2, 3):
            mine = gs[w - 1::3]
            if not mine:
                continue
            skip = e.newlabel("noburst")
            e.S("s_cmp_lg_u32", sWave, w)
            e.branch("s_cbranch_scc1", skip)
            e.cond_begin()
            for g in mine:
                pos = 8 * g
                for k, b, n in self.segs:
                    if b <= pos < b + n:
                        break
                for h in range(2):
                    e.S("s_mov_b32", M0, self.ldsaddr(pos) + h * 4096)
                    e.S("s_add_u32", sDm, sSeg[k], (pos - b) * KB + h * 4096)
                    for q in range(4):
                        self.dmaop[g] = e.dma(vL16, WS, sDm, q * 1024)
            e.cond_end()
            e.label(skip)

    def prologue(self):
        e = self.e
        e.S("s_cmp_ge_u32", s(2), 256)
        e.branch("s_cbranch_scc1", "main_end")
        if self.opt.get("stamps"):
            e.V("v_mov_b32", v(53), 0)
        self.stamp("t0")
        if self.opt.get("spin"):
            e.memtime(sTm, True)
            e.V("v_mov_b32", v(53), sTm[0])
        e.sload(PP, s(0, 2), 0)
        e.sload(pOut, s(0, 2), 64)
        e.sload(pWs, s(0, 2), 80)
        T0, T1, T2, T3 = TMP[48], TMP[49], TMP[50], TMP[51]
        e.S("s_getpc_b64", s(88, 2))
        e.label("main_pc")
        e.V("v_lshlrev_b32", T2, 5, v(0))
        e.S("s_sub_u32", s(88), s(88), "main_pc-" + self.kname)
        e.S("s_subb_u32", s(89), s(89), 0)
        e.misc(f"global_load_dword {vDum}, {T2}, s[88:89]")
        e._vm([], (2000, 30, 0))
        e.V("v_lshrrev_b32", T0, 6, v(0))
        e.V("v_and_b32", vLane, 63, v(0))
        e.V("v_readfirstlane_b32", sWave, T0)
        e.S("s_lshr_b32", sB, s(2), 3)
        e.S("s_mul_i32", sB, sB, 1792)
        e.S("s_add_u32", sB, sB, 8192)
        e.V("v_lshl_add_u32", T2, v(0), 3, sB)
        e.V("v_min_u32", T2, self.opt.get("code_bytes", 32768) - 4, T2)
        e.misc(f"global_load_dword {vDum}, {T2}, s[88:89]")
        e._vm([], (2000, 30, 0))
        e.V("v_lshlrev_b32", vL16, 4, vLane)
        e.V("v_and_b32", vN, 15, vLane)
        e.V("v_lshrrev_b32", vG, 4, vLane)
        self.vBig = TMP[52]
        e.V("v_mov_b32", self.vBig, BIG)
        e.S("s_and_b32", sA, s(2), 7)
        e.S("s_lshl_b32", sA, sA, 1)
        e.S("s_lshr_b32", sB, s(2), 7)
        e.S("s_add_u32", sR, sA, sB)
        e.S("s_bfe_u32", sC, s(2), (4 << 16) | 3)

    def gather(self, raw, srd, sstride, vaddr, srow, n=8):
        e = self.e
        e.S("s_mul_i32", sLd, srow, sstride)
        for i in range(n):
            e.bload(raw[i], vaddr, srd, sLd, 0, w="ushort", cls=(2500, 32, 0))
            if i < n - 1:
                e.S("s_add_u32", sLd, sLd, sstride)

    def pack(self, raw, n=4):
        for i in range(n):
            self.e.V("v_lshl_or_b32", raw[i], raw[2 * i + 1], 16, raw[2 * i])

    def colsum(self, regs, ex, vs, vt):
        e = self.e
        e.V("v_mov_b32", vs, 0)
        for r_ in regs:
            e.V("v_dot2c_f32_bf16", vs, r_, vOne)
        allreduce_g(e, vs, vt)
        e.V("v_sub_f32", vs, 0, vs)
        e.V("v_cvt_pk_bf16_f32", vt, vs, vs)
        e.V("v_lshlrev_b32", vt, 16, vt)
        e.V("v_sub_f32", vt, vs, vt)
        e.V("v_cvt_pk_bf16_f32", ex[0], vs, vt)
        e.V("v_and_b32", ex[1], "0xffff", ex[0])

    def startup(self):
        e = self.e
        vBig = self.vBig
        RAW1, EX = ACC[0:20], ACC[20:24]
        RAW2 = TMP[8:40]
        vCol, vReg, vLeft, vT0, vT1, vSum, vLd = [FIFO[i] for i in range(7)]
        vA0, vA1, vA2, vSt2, vBias = RES[8], RES[9], B2F[8], B2F[9], TMP[50]
        sT, sP = s(54), s(55)
        sStr = s(56)
        XJ = [RES[0:4], RES[4:8], B2F[0:4]]
        XD, XA, XB_ = B2F[4], ACC[32], ACC[33]
        XM = [s(57), s(58), s(59)]
        T0, T1, T2, T3 = TMP[48], TMP[49], TMP[50], TMP[51]
        e.V("v_lshrrev_b32", T1, 3, vLane)
        e.V("v_and_b32", T3, 7, vLane)
        e.V("v_mul_u32_u24", T0, 1280, T3)
        e.V("v_lshl_add_u32", XA, T1, 4, T0)
        e.V("v_lshrrev_b32", T2, 4, vLane)
        e.V("v_lshl_add_u32", XB_, T2, 7, XA)
        e.V("v_lshlrev_b32", XD, 8, T1)
        e.V("v_lshl_add_u32", XD, T3, 4, XD)
        e.S("s_lshl_b32", sE, sR, 4)
        e.S("s_add_u32", sE, sE, sC)
        e.S("s_mul_i32", sE, sE, 8 * 1280)
        e.S("s_mul_i32", sD, sWave, 3)
        mk_srd(e, XIN, PP[0:2], XSZ)
        for k in range(3):
            e.S("s_add_u32", XM[k], sD, k)
            e.S("s_cmp_ge_u32", XM[k], 8)
            e.S("s_cselect_b64", VCC, -1, 0)
            e.S("s_cselect_b32", sA, 40, 10)
            e.S("s_cselect_b32", sB, 8 - 8 * 40, 0)
            e.V("v_cndmask_b32", T0 if k != 1 else T1, XA, XB_, VCC)
            e.S("s_mul_i32", sA, sA, XM[k])
            e.S("s_add_u32", sA, sA, sB)
            e.S("s_lshl_b32", sA, sA, 4)
            e.S("s_add_u32", sA, sA, sE)
            e.S("s_cmp_ge_u32", XM[k], 10)
            e.S("s_cselect_b32", sA, BIG, sA)
            e.S("s_cselect_b32", XM[k], BIG // 2048, XM[k])
            e.bload(XJ[k], T0 if k != 1 else T1, XIN, sA, 0, cls=(2000, 100, 0))
        self.stamp("issx")
        e.S("s_lshr_b32", sP, sR, 1)
        e.S("s_and_b32", sT, sR, 1)
        e.S("s_lshl_b32", sT, sT, 2)
        e.S("s_add_u32", sT, sT, sWave)
        e.S("s_mov_b32", s(4), (656 << 20) | (660 << 10) | 640)
        e.S("s_mov_b32", s(5), 0)
        e.S("s_mul_i32", sA, sT, 10)
        e.S("s_lshr_b32", sA, s(4), sA)
        e.S("s_and_b32", sA, sA, 1023)
        for t, val in ((3, 1280), (4, 1300), (5, 0), (6, 1), (7, 32)):
            e.S("s_cmp_eq_u32", sT, t)
            e.S("s_cselect_b32", sA, val, sA)
        e.S("s_mul_i32", sB, sC, 40)
        e.S("s_add_u32", sA, sA, sB)
        e.V("v_add_u32", vCol, sA, vN)
        e.V("v_add_u32", vT0, vCol, vN)
        e.S("s_sub_u32", sB, sT, 5)
        e.S("s_cmp_lt_u32", sB, 2)
        e.S("s_cselect_b64", VCC, -1, 0)
        e.V("v_cndmask_b32", vCol, vCol, vT0, VCC)
        e.V("v_lshrrev_b32", vT0, 3, vN)
        e.V("v_mul_u32_u24", vT0, 632 - 32, vT0)
        e.V("v_lshrrev_b32", vT1, 2, vN)
        e.V("v_lshl_add_u32", vT0, vT1, 4, vT0)
        e.V("v_add3_u32", vT0, vT0, vN, sA)
        e.S("s_cmp_eq_u32", sT, 2)
        e.S("s_cselect_b64", VCC, -1, 0)
        e.V("v_cndmask_b32", vCol, vCol, vT0, VCC)
        e.V("v_lshlrev_b32", vCol, 1, vCol)
        e.S("s_cmp_eq_u32", sT, 7)
        e.S("s_cselect_b32", sB, 8, 16)
        e.V("v_cmp_le_u32", VCC, sB, vN)
        e.S("s_mov_b32", sStr, 3840)
        e.V("v_cndmask_b32", vCol, vCol, vBig, VCC)
        e.S("s_mov_b32", sD, 8 * 3840)
        e.V("v_mad_u32_u24", vReg, vG, sD, vCol)
        e.V("v_and_b32", vT0, 1, vG)
        e.V("v_lshrrev_b32", vT1, 1, vG)
        e.V("v_lshl_add_u32", vLd, vT0, 1, vT1)
        e.S("s_mov_b32", sD, 4 * 3840)
        e.V("v_mad_u32_u24", vLeft, vLd, sD, vCol)
        mk_srd(e, SR1, PP[2:4], D * 3 * D * 2)
        e.S("s_mul_i32", sB, sP, 80)
        self.gather(RAW1[0:8], SR1, sStr, vReg, sB)
        e.S("s_add_u32", sA, sB, 32)
        self.gather(RAW1[8:16], SR1, sStr, vReg, sA)
        e.S("s_add_u32", sA, sB, 64)
        self.gather(RAW1[16:20], SR1, sStr, vLeft, sA, 4)
        self.stamp("iss1")
        def r2touch():
            e.S("s_lshl_b32", sA, s(2), 2)
            e.S("s_add_u32", sA, sA, sWave)
            e.V("v_min_u32", T0, 17, vLane)
            e.V("v_lshlrev_b32", T0, 7, T0)
            e.S("s_mul_i32", sB, sA, 2160)
            mk_srd(e, SR2, PP[8:10], F * D * 2)
            e.touch(vDum, T0, SR2, sB, 0, cls=(2000, 30, 0))
            mk_srd(e, SR2, PP[12:14], F * D * 2)
            e.touch(vDum, T0, SR2, sB, 0, cls=(2000, 30, 0))
            e.V("v_min_u32", T0, 7 * 128, T0)
            mk_srd(e, SR2, PP[4:6], D * D * 2)
            e.S("s_mul_i32", sB, sA, 800)
            e.touch(vDum, T0, SR2, sB, 0, cls=(2000, 30, 0))
        if self.opt.get("r2touch", 3) == 1:
            r2touch()
        if self.opt.get("wsoff"):
            e.S("s_add_u32", pWs[0], pWs[0], self.opt["wsoff"] << 20)
            e.S("s_addc_u32", pWs[1], pWs[1], 0)
        mk_srd(e, WS, pWs, WS_USED)
        e.sload(sBase, pWs, EPOCH)
        e.S("s_mov_b32", sA, "0x3f803f80")
        e.V("v_mov_b32", vOne, sA)
        ops1 = []
        e.S("s_lshr_b32", sA, sC, 1)
        e.S("s_lshl_b32", sB, sR, 3)
        e.S("s_add_u32", sA, sA, sB)
        e.S("s_mul_i32", sA, sA, 20 * KB)
        e.S("s_and_b32", sB, sC, 1)
        e.S("s_lshl_b32", sB, sB, 7)
        e.S("s_add_u32", sA, sA, sB)
        e.S("s_add_u32", sA, sA, XB[0])
        for k in range(3):
            e.S("s_lshl_b32", sB, XM[k], 11)
            e.S("s_add_u32", sB, sB, sA)
            ops1.append(e.bstore(XJ[k], XD, WS, sB, 0, "sc1", cls=(1000, 70, 0)))
        xs = ACC[26:28]
        xz = ACC[24:26]
        MK = ACC[28:32]
        for r_ in (xs[0], xs[1], xz[0], xz[1]):
            e.V("v_mov_b32", r_, 0)
        for k in range(3):
            for i in range(4):
                e.V("v_dot2c_f32_bf16", xs[0], XJ[k][i], vOne)
                e.V("v_dot2c_f32_bf16", xs[1], XJ[k][i], XJ[k][i])
        for h in range(2):
            e.V("v_add_f32_dpp", xs[h], xs[h], xs[h], mods="row_ror:8 row_mask:0xf bank_mask:0xf")
            allreduce_g(e, xs[h], vT0)
        e.S("s_lshl_b32", sA, sR, 3)
        e.S("s_add_u32", sA, sA, sWave)
        e.S("s_lshl_b32", sA, sA, 10)
        e.S("s_lshl_b32", sB, sC, 6)
        e.S("s_add_u32", sA, sA, sB)
        e.S("s_add_u32", sA, sA, STB[0])
        e.S("s_add_u32", sB, sA, 4096)
        e.V("v_lshlrev_b32", vT0, 3, vLane)
        e.S("s_mov_b64", EXEC, "0xff")
        ops1.append(e.bstore(xs, vT0, WS, sA, 0, "sc1", cls=(1000, 20, 0)))
        ops1.append(e.bstore(xz, vT0, WS, sB, 0, "sc1", cls=(1000, 20, 0)))
        e.S("s_mov_b64", EXEC, -1)
        self.stamp("xst")
        e.S("s_cmp_lt_u32", sT, 5)
        e.S("s_cselect_b32", sE, 5, 3)
        e.S("s_cselect_b32", sA, 0, 100)
        e.S("s_add_u32", sA, sA, sT)
        e.S("s_mul_i32", sB, sC, NA)
        e.S("s_add_u32", sA, sA, sB)
        e.S("s_add_u32", sA, sA, WA // KB)
        e.S("s_lshl_b32", sA, sA, 10)
        e.S("s_lshl_b32", sE, sE, 10)
        e.S("s_mul_i32", sB, sP, sE)
        e.S("s_lshl_b32", sB, sB, 1)
        e.S("s_add_u32", sB, sB, sA)
        self.pack(RAW1[0:8])
        ops1.append(e.bstore(RAW1[0:4], vL16, WS, sB, 0, "sc1", cls=(1000, 70, 0)))
        e.S("s_add_u32", sB, sB, sE)
        self.pack(RAW1[8:16])
        ops1.append(e.bstore(RAW1[8:12], vL16, WS, sB, 0, "sc1", cls=(1000, 70, 0)))
        e.S("s_lshr_b32", sB, sP, 1)
        e.S("s_add_u32", sB, sB, 16)
        e.S("s_mul_i32", sB, sB, sE)
        e.S("s_add_u32", sB, sB, sA)
        e.S("s_and_b32", sD, sP, 1)
        e.S("s_lshl_b32", s(4), sD, 9)
        e.S("s_add_u32", sB, sB, s(4))
        e.V("v_lshlrev_b32", vT0, 8, vG)
        e.V("v_and_b32", vT0, 256, vT0)
        e.V("v_lshl_add_u32", vT0, vN, 4, vT0)
        e.V("v_lshrrev_b32", vT1, 1, vG)
        e.V("v_lshl_add_u32", vLd, vT1, 3, vT0)
        self.pack(RAW1[16:20], 2)
        ops1.append(e.bstore(RAW1[16:18], vLd, WS, sB, 0, "sc1", cls=(1000, 40, 0)))
        self.colsum([RAW1[i] for i in (0, 1, 2, 3, 8, 9, 10, 11, 16, 17)], EX, vSum, vT0)
        e.S("s_mul_i32", sB, sE, 20)
        e.S("s_add_u32", sB, sB, sA)
        e.S("s_lshr_b32", sA, sP, 1)
        e.S("s_lshl_b32", sA, sA, 8)
        e.S("s_add_u32", sB, sB, sA)
        e.S("s_lshl_b32", sD, sD, 3)
        e.S("s_add_u32", sB, sB, sD)
        e.S("s_mov_b64", EXEC, "0xffff")
        ops1.append(e.bstore(EX[0:2], vL16, WS, sB, 0, "sc1", cls=(1000, 20, 0)))
        e.S("s_mov_b64", EXEC, -1)
        self.stamp("r1")
        if self.opt.get("r2touch", 3) == 2:
            r2touch()
        for i in range(4):
            e.V("v_mov_b32", MK[i], -1)
        e.S("s_lshl_b32", sA, sC, 4)
        e.S("s_add_u32", sA, sA, sR)
        e.S("s_mul_i32", sA, sA, KVSZ)
        e.S("s_mul_i32", sB, sWave, KVSZ // 4)
        e.S("s_add_u32", sA, sA, sB)
        e.S("s_add_u32", sA, sA, KVB[0])
        e.S("s_mov_b64", EXEC, "0xfffffff")
        ops1.append(e.bstore(MK, vL16, WS, sA, 0, "sc1", cls=(1000, 40, 0)))
        e.S("s_mov_b64", EXEC, -1)
        self.stamp("xjob")
        e.S("s_and_b32", sCG, sC, 7)
        e.S("s_lshr_b32", sRH, sC, 3)
        if self.opt.get("r2touch", 3) == 3:
            r2touch()
        mk_srd(e, SB2, PP[14:16], D * 2)
        self.prologue2()
        self.stamp("pro2")
        sU, sP, sStr, sJ = s(88), s(89), s(100), s(101)
        rows = [s(3 + i) for i in range(4)]
        D2 = [s(64), s(65), s(66), s(67)]
        sDB, sDX = s(70), s(71)
        vSel0, vSel1 = vA1, vA2
        mk_srd(e, SR1, PP[10:12], F * 2)
        e.S("s_lshl_b32", sJ, sRH, 4)
        e.S("s_add_u32", sJ, sJ, sR)
        e.S("s_lshl_b32", sJ, sJ, 2)
        e.S("s_add_u32", sJ, sJ, sWave)
        e.V("v_lshrrev_b32", vT0, 1, vG)
        e.V("v_and_b32", vT1, 1, vG)
        e.V("v_mov_b32", vSt2, vL16)
        e.S("s_mov_b32", sDX, BIG)
        lo, lc, lj = e.newlabel("job_wo"), e.newlabel("job_w2"), e.newlabel("job_go")

        def unit(sbase, nu, stride, ca, cb, nreg, dB):
            e.S("s_lshl_b32", sA, sU, 5)
            e.S("s_add_u32", sA, sA, sbase)
            e.S("s_lshl_b32", sA, sA, 1)
            e.S("s_mov_b32", sDB, dB)
            e.S("s_cmp_lt_u32", sU, nu)
            e.S("s_cselect_b64", VCC, -1, 0)
            e.S("s_cselect_b32", sDB, sDB, BIG)
            e.V("v_lshlrev_b32", vCol, 2, vN)
            e.V("v_and_b32", vReg, 14, vN)
            e.V("v_lshlrev_b32", vReg, 1, vReg)
            e.V("v_cndmask_b32", vCol, vReg, vCol, VCC)
            e.V("v_add_u32", vCol, sA, vCol)
            e.V("v_and_b32", vReg, 1, vN)
            e.V("v_cndmask_b32", vReg, vReg, 0, VCC)
            e.S("s_mov_b32", sA, "0x02020202")
            e.V("v_mul_lo_u32", vReg, vReg, sA)
            e.V("v_add_u32", vSel0, "0x05040100", vReg)
            e.S("s_mov_b32", sStr, stride)
            e.S("s_mov_b32", sD, 8 * stride)
            e.V("v_mul_u32_u24", vReg, sD, vG)
            e.S("s_mov_b32", sD, ca * stride)
            e.V("v_mul_u32_u24", vLeft, sD, vT0)
            e.S("s_mov_b32", sD, cb * stride)
            e.V("v_mad_u32_u24", vLeft, vT1, sD, vLeft)
            e.S("s_cmp_lt_u32", sP, nreg)
            e.S("s_cselect_b64", VCC, -1, 0)
            e.V("v_cndmask_b32", vA0, vLeft, vReg, VCC)

        def split_dests(half):
            for b in range(4):
                e.S("s_lshl_b32", sA, sP, 2)
                e.S("s_add_u32", sA, sA, b)
                e.S("s_mul_i32", sD, sA, 10)
                e.S("s_cmp_ge_u32", sA, half)
                e.S("s_cselect_b32", sB, 10 * half - 1, 0)
                e.S("s_sub_u32", sD, sD, sB)
                e.S("s_add_u32", sD, sD, sE)
                e.S("s_lshl_b32", D2[b], sD, 10)
                if half == 27 and b >= 2:
                    e.S("s_cmp_ge_u32", sA, 54)
                    e.S("s_cselect_b32", D2[b], BIG, D2[b])

        def div3(dq, dr, src):
            e.S("s_mul_i32", dq, src, 43691)
            e.S("s_lshr_b32", dq, dq, 17)
            e.S("s_mul_i32", sA, dq, 3)
            e.S("s_sub_u32", dr, src, sA)

        e.S("s_cmp_ge_u32", sJ, 55)
        e.branch("s_cbranch_scc1", lc)
        e.S("s_cmp_ge_u32", sJ, 40)
        e.branch("s_cbranch_scc1", lo)
        e.cond_begin()
        mk_srd(e, SR2, PP[8:10], D * F * 2)
        e.S("s_and_b32", sU, sJ, 3)
        e.S("s_lshr_b32", sP, sJ, 2)
        e.S("s_cmp_ge_u32", sP, 5)
        e.S("s_cselect_b32", sA, 5, 0)
        e.S("s_cselect_b32", sJ, 8, 0)
        e.S("s_sub_u32", sP, sP, sA)
        e.S("s_add_u32", sJ, sJ, sCG)
        e.S("s_mul_i32", sE, sJ, 112)
        e.S("s_max_u32", sB, sJ, 12)
        e.S("s_sub_u32", sB, sB, 12)
        e.S("s_lshl_b32", sB, sB, 4)
        e.S("s_sub_u32", sE, sE, sB)
        unit(sE, 3, 3456, 80, 8, 4, 1024)
        e.S("s_lshl_b32", sA, sU, 4)
        e.S("s_add_u32", sA, sA, sJ)
        e.S("s_cmp_ge_u32", sA, 3 * 16 + 12)
        e.S("s_cselect_b64", VCC, -1, 0)
        e.V("v_cndmask_b32", vCol, vCol, vBig, VCC)
        for b in range(4):
            e.S("s_mul_i32", sA, sP, 160)
            e.S("s_add_u32", sA, sA, 80 * (b >> 1) + 32 * (b & 1))
            e.S("s_cmp_eq_u32", sP, 4)
            e.S("s_cselect_b32", rows[b], 160 * b + 64, sA)
        e.S("s_cmp_lt_u32", sU, B1N // 2)
        e.S("s_cselect_b32", s(79), B1N, 7 - B1N)
        e.S("s_cselect_b32", sE, 0, 20 * B1N)
        e.S("s_lshl_b32", sA, sU, 1)
        e.S("s_add_u32", sE, sE, sA)
        e.S("s_mul_i32", sB, sJ, NB)
        e.S("s_add_u32", sE, sE, sB)
        e.S("s_add_u32", sE, sE, WB // KB)
        for b in range(4):
            e.S("s_lshl_b32", sA, sP, 2)
            e.S("s_add_u32", sA, sA, b)
            e.S("s_mul_i32", sA, sA, s(79))
            e.S("s_add_u32", sA, sA, sE)
            e.S("s_lshl_b32", D2[b], sA, 10)
        e.S("s_mul_i32", sD, s(79), 20)
        e.S("s_add_u32", sD, sD, sE)
        e.S("s_lshl_b32", sDX, sD, 10)
        e.branch("s_branch", lj)
        e.cond_end()
        e.label(lo)
        e.cond_begin()
        mk_srd(e, SR2, PP[4:6], D * D * 2)
        e.S("s_sub_u32", sJ, sJ, 40)
        div3(sP, sU, sJ)
        e.S("s_mul_i32", sE, sCG, 80)
        unit(sE, 2, 1280, 80, 40, 4, 2048)
        for b in range(4):
            e.S("s_mul_i32", sA, sP, 160)
            e.S("s_add_u32", sA, sA, 40 * b)
            e.S("s_cmp_eq_u32", sP, 4)
            e.S("s_cselect_b32", rows[b], 160 * b + 32, sA)
        e.S("s_mul_i32", sE, sCG, NO)
        e.S("s_add_u32", sE, sE, WO // KB)
        e.S("s_lshl_b32", sA, sU, 2)
        e.S("s_add_u32", sE, sE, sA)
        split_dests(10)
        e.branch("s_branch", lj)
        e.cond_end()
        e.label(lc)
        e.cond_begin()
        mk_srd(e, SR2, PP[12:14], F * D * 2)
        e.S("s_sub_u32", sJ, sJ, 55)
        div3(sP, sU, sJ)
        e.S("s_mul_i32", sE, sCG, 80)
        unit(sE, 2, 1280, 112, 8, 12, 2048)
        e.S("s_cmp_ge_u32", sP, 14)
        e.S("s_cselect_b64", VCC, -1, 0)
        e.V("v_cndmask_b32", vCol, vCol, vBig, VCC)
        e.V("v_cndmask_b32", vSt2, vSt2, vBig, VCC)
        e.S("s_min_u32", sP, sP, 13)
        for b in range(4):
            e.S("s_lshl_b32", sD, sP, 2)
            e.S("s_add_u32", sD, sD, b)
            e.S("s_mul_i32", sA, sD, 43691)
            e.S("s_lshr_b32", sA, sA, 17)
            e.S("s_lshl_b32", sA, sA, 4)
            e.S("s_min_u32", sA, sA, 192)
            e.S("s_lshl_b32", sB, sD, 5)
            e.S("s_add_u32", sA, sA, sB)
            e.S("s_mul_i32", sB, sD, 224)
            e.S("s_sub_u32", sB, sB, 224 * 48 - 96)
            e.S("s_cmp_ge_u32", sD, 48)
            e.S("s_cselect_b32", rows[b], sB, sA)
        e.S("s_mul_i32", sE, sCG, NC)
        e.S("s_add_u32", sE, sE, WC // KB)
        e.S("s_lshl_b32", sA, sU, 2)
        e.S("s_add_u32", sE, sE, sA)
        split_dests(27)
        e.cond_end()
        e.label(lj)
        e.V("v_add_u32", vA0, vA0, vCol)
        e.S("s_cmp_lt_u32", sP, 2)
        e.S("s_cselect_b64", VCC, -1, 0)
        e.V("v_cndmask_b32", vBias, vBig, vCol, VCC)
        e.V("v_mov_b32", vSel1, "0x07060302")
        e.V("v_add_u32", vT0, sP, vG)
        e.V("v_lshrrev_b32", vT1, 1, vT0)
        e.V("v_lshlrev_b32", vLd, 4, vN)
        e.V("v_lshl_add_u32", vLd, vT1, 8, vLd)
        e.V("v_and_b32", vT0, 1, vT0)
        e.V("v_lshl_add_u32", vLd, vT0, 3, vLd)
        e.S("s_cmp_eq_u32", sP, 4)
        e.S("s_cselect_b32", sA, 4, 1)
        e.V("v_cmp_gt_u32", VCC, sA, vG)
        e.V("v_cndmask_b32", vLd, vBig, vLd, VCC)
        e.S("s_lshl_b32", sA, sC, 4)
        e.S("s_add_u32", sA, sA, sR)
        e.S("s_mul_i32", sA, sA, KVSZ)
        e.S("s_mul_i32", sB, sWave, KVSZ // 4)
        e.S("s_add_u32", sA, sA, sB)
        e.S("s_add_u32", s(79), sA, KVB[1])
        self.stamp("dec2")
        e.wait_ops(ops1)
        e.barrier()
        self.flag("both", 1)
        self.stamp("w1flag")
        self.ops2 = []

        def r2_loads():
            for b in range(4):
                e.S("s_mul_i32", sE, rows[b], sStr); yield
                for i in range(8):
                    e.bload(RAW2[8 * b + i], vA0, SR2, sE, 0, cls=(1500, 32, 0)); yield
                    if i < 7:
                        e.S("s_add_u32", sE, sE, sStr); yield
            e.bload(vBias, vBias, SR1, 0, 0, cls=(1500, 10, 0)); yield

        vs, vt, MK = TMP[48], TMP[49], TMP[40:44]
        EV = ACC[40:56]

        def r2_pack():
            for b in range(4):
                raw = RAW2[8 * b:8 * b + 8]
                for i in range(4):
                    e.V("v_perm_b32", EV[4 * b + i], raw[2 * i + 1], raw[2 * i], vSel0)
                for i in range(4):
                    e.V("v_perm_b32", raw[i], raw[2 * i + 1], raw[2 * i], vSel1)
            for i in range(4):
                e.V("v_mov_b32", MK[i], -1)
            e.V("v_cmp_eq_u32", sNan, 0, vG)
            for h in range(2):
                ex = TMP[44 + 2 * h:46 + 2 * h]
                self.colsum([EV[i] for i in range(16)] if h == 0 else [RAW2[8 * b + i] for b in range(4) for i in range(4)], ex, vs, vt)
                e.V("v_perm_b32", vt, vBias, vBias, vSel0 if h == 0 else vSel1)
                e.V("v_and_b32", vt, "0xffff0000", vt)
                e.V("v_or_b32", ex[1], ex[1], vt)
                e.V("v_cndmask_b32", ex[0], 0, ex[0], sNan)
                e.V("v_cndmask_b32", ex[1], 0, ex[1], sNan)
            e.V("v_mov_b32", vSel0, vLd)
            yield

        def r2_stores():
            for b in range(4):
                self.ops2.append(e.bstore(EV[4 * b:4 * b + 4], vSt2, WS, D2[b], 0, "sc1", cls=(1000, 70, 0)))
                e.S("s_add_u32", sA, D2[b], sDB)
                self.ops2.append(e.bstore(RAW2[8 * b:8 * b + 4], vSt2, WS, sA, 0, "sc1", cls=(1000, 70, 0)))
            e.S("s_mov_b64", EXEC, "0xfffffff")
            self.ops2.append(e.bstore(MK, vL16, WS, s(79), 0, "sc1", cls=(1000, 40, 0)))
            e.S("s_mov_b64", EXEC, -1)
            for h in range(2):
                if h:
                    e.S("s_add_u32", sDX, sDX, sDB)
                self.ops2.append(e.bstore(TMP[44 + 2 * h:46 + 2 * h], vSel0, WS, sDX, 0, "sc1", cls=(1000, 20, 0)))
        self.r2_stores = r2_stores
        self.r2_loads, self.r2_pack = r2_loads(), r2_pack()
        for _ in self.r2_loads:
            pass
        self.stamp("iss2")
        for _ in self.r2_pack:
            pass
        if self.opt.get("r2st", 2) == 2:
            r2_stores()
            self.late_loads()
        self.stamp("r2")
        self.poll("both", 1)
        e.barrier()
        self.stamp("w1go")

    def w2_gen(self):
        e = self.e
        t = RES[0]
        e.V("v_bfe_u32", t, vLane, 4, 1); yield
        e.V("v_lshl_add_u32", t, t, 11, vFl); yield
        e.S("s_lshl_b32", s(4), sCG, 8); yield
        e.S("s_add_u32", s(4), s(4), FLG_C); yield
        e.bload(RES[1], t, WS, s(4), 0, "sc1", cls=(900, 10, 0)); yield
        for _ in range(50):
            yield "idle"
        e.S("s_add_u32", s(5), sBase, 2); yield
        lok, lre = e.newlabel("w2ok"), e.newlabel("w2retry")
        e.V("v_cmp_ne_u32", VCC, s(5), RES[1])
        e.S("s_cmp_eq_u64", VCC, 0)
        e.branch("s_cbranch_scc1", lok)
        e.cond_begin()
        e.S("s_mov_b32", sCnt, 0)
        e.label(lre)
        e.misc("s_sleep 4")
        e.bload(RES[1], t, WS, s(4), 0, "sc1")
        e.V("v_cmp_ne_u32", VCC, s(5), RES[1])
        e.S("s_cmp_eq_u64", VCC, 0)
        e.branch("s_cbranch_scc1", lok)
        e.S("s_add_u32", sCnt, sCnt, 1)
        e.S("s_cmp_lt_u32", sCnt, 0x20000)
        e.branch("s_cbranch_scc1", lre)
        e.cond_end()
        e.label(lok)
        self.gate = 1 << 20
        yield

    def prologue2(self):
        e = self.e
        T0, T1, T2, T3, T4, T5 = [TMP[40 + i] for i in range(6)]
        mk_srd(e, OUT, pOut, XSZ)
        e.S("s_and_b32", sKH, sWave, 1)
        e.S("s_lshl_b32", sW2048, sWave, 11)
        e.S("s_mul_i32", sA, sC, NA * KB)
        e.S("s_add_u32", sSeg["A"], sA, WA)
        e.S("s_mul_i32", sA, sCG, NO * KB)
        e.S("s_add_u32", sSeg["O"], sA, WO)
        e.S("s_mul_i32", sA, sC, NB * KB)
        e.S("s_add_u32", sSeg["B"], sA, WB)
        e.S("s_mul_i32", sA, sCG, NC * KB)
        e.S("s_add_u32", sSeg["C"], sA, WC)
        e.V("v_add_u32", vDma, sW2048, vL16)
        e.S("s_mul_i32", sXr, sR, 160 * KB)
        e.S("s_mul_i32", sHr, sR, 432 * KB)
        e.S("s_lshl_b32", sSTr, sR, 13)
        e.S("s_mul_i32", sA, sWave, 40 * KB)
        e.V("v_add_u32", vAx[0], sA, vL16)
        e.V("v_add_u32", vAx[1], 20 * KB, vAx[0])
        e.V("v_lshlrev_b32", T0, 11, vG)
        e.V("v_lshl_add_u32", T0, vN, 3, T0)
        e.S("s_lshl_b32", sA, sWave, 8)
        e.V("v_add_u32", vSt, sA, T0)
        e.S("s_mov_b32", self.cInvD, lit(1.0 / D))
        for j in range(3):
            if j == 0:
                e.V("v_mov_b32", vW[0], vL16)
            else:
                e.V("v_add_u32", vW[j], j * 65536, vL16)
        e.S("s_lshl_b32", sA, sKH, 10)
        for j in range(3):
            e.V("v_add_u32", vK[j], sA, vW[j])
        e.V("v_lshlrev_b32", T4, 4, v(0))
        Z = TMP[44:48]
        Z = TMP[48:52]
        for j in range(4):
            e.V("v_mov_b32", Z[j], 0)
        e.ds_write(T4, Z, 0)
        e.ds_write(T4, Z, 4096)
        e.S("s_lshl_b32", sTT, sRH, 2)
        e.S("s_add_u32", sTT, sTT, sWave)
        e.S("s_xor_b32", sB, sTT, 1)
        for u, st in ((0, sTT), (1, sB)):
            e.S("s_mul_i32", sA, st, 20 * KB)
            e.S("s_mul_i32", sD, sKH, 10 * KB)
            e.S("s_add_u32", sA, sA, sD)
            e.V("v_add_u32", vAo[u], sA, vL16)
            e.S("s_mul_i32", sA, st, 54 * KB)
            e.S("s_mul_i32", sD, sKH, 27 * KB)
            e.S("s_add_u32", sA, sA, sD)
            e.V("v_add_u32", vAh[u], sA, vL16)
        e.V("v_lshrrev_b32", T0, 1, vG)
        e.V("v_and_b32", T1, 1, vG)
        e.V("v_lshlrev_b32", T2, 4, vN)
        e.V("v_lshl_add_u32", T3, T0, 8, T2)
        e.V("v_lshl_add_u32", T3, T1, 3, T3)
        e.S("s_mul_i32", sA, sTT, 20 * KB)
        e.V("v_add_u32", vXs, sA, vL16)
        e.V("v_add_u32", vXh, sA, T3)
        e.S("s_mul_i32", sA, sWave, 108 * KB)
        e.V("v_add_u32", vHs, sA, vL16)
        e.S("s_cmp_ge_u32", sC, 12)
        e.S("s_cselect_b32", sA, BIG, sA)
        e.V("v_add_u32", vHh, sA, T3)
        e.S("s_mul_i32", sA, sWave, 40 * KB)
        e.V("v_lshl_add_u32", T3, vG, 3, T2)
        e.V("v_add_u32", vOh, sA, T3)
        e.V("v_cmp_gt_u32", VCC, 2, vG)
        e.V("v_mov_b32", T3, BIG)
        e.V("v_cndmask_b32", vOh, T3, vOh, VCC)
        e.S("s_lshl_b32", sA, sTT, 7)
        e.V("v_lshl_add_u32", T3, vN, 3, sA)
        e.V("v_lshl_add_u32", vStW, T0, 2, T3)
        e.S("s_lshl_b32", sA, sWave, 7)
        e.S("s_add_u32", sA, sA, RST)
        e.V("v_lshl_add_u32", vRT, vG, 4, sA)
        e.V("v_lshl_add_u32", vRW, vN, 2, sA)
        e.S("s_lshl_b32", sA, sTT, 6)
        e.S("s_add_u32", sA, sA, RST)
        e.V("v_lshl_add_u32", vRF, vN, 2, sA)
        e.V("v_lshlrev_b32", T3, 4, vG)
        e.V("v_add_u32", vZ2, ZT + 128, T3)
        e.V("v_cmp_gt_u32", VCC, 10, vN)
        e.V("v_add_u32", T3, ZT, T3)
        e.V("v_cndmask_b32", vZ01, vZ2, T3, VCC)
        e.S("s_lshl_b32", sA, sR, 3)
        e.S("s_add_u32", sA, sA, sTT)
        e.S("s_mul_i32", sA, sA, 16 * 1280)
        e.S("s_mul_i32", sB, sCG, 160)
        e.S("s_add_u32", sA, sA, sB)
        e.V("v_mul_u32_u24", T3, 1280, vN)
        e.V("v_add_u32", T3, sA, T3)
        e.V("v_lshl_add_u32", vOut, vG, 4, T3)
        e.V("v_lshl_add_u32", vOut4, vG, 3, T3)
        e.S("s_mul_i32", sA, sWave, 5120)
        e.V("v_add_u32", vXch, sA, vL16)
        e.V("v_lshlrev_b32", vFl, 2, vN)
        e.V("v_mov_b32", vLn2[0], lit(LN2))
        e.V("v_mov_b32", vEps[0], lit(1e-6))
        e.S("s_mov_b32", sMaskV[0], "0x00ff00ff")
        e.S("s_mov_b32", sMaskV[1], "0x00ff00ff")
        e.S("s_lshl_b32", sA, sR, 8)
        e.S("s_add_u32", sFRL, sA, FLG_RL)
        e.S("s_add_u32", sFRG, sA, FLG_RG)
        e.S("s_lshl_b32", sA, sC, 8)
        e.S("s_add_u32", sFC, sA, FLG_C)
        e.S("s_lshl_b32", sA, sCG, 11)
        e.S("s_add_u32", sOx, sXr, sA)
        e.S("s_lshr_b32", sA, sCG, 1)
        e.S("s_lshl_b32", sA, sA, 10)
        e.S("s_and_b32", sB, sCG, 1)
        e.S("s_lshl_b32", sB, sB, 9)
        e.S("s_add_u32", sA, sA, sB)
        e.S("s_add_u32", sA, sA, 16 * KB)
        e.S("s_add_u32", sOxh, sXr, sA)
        e.S("s_lshl_b32", sA, sCG, 10)
        e.S("s_add_u32", sOst, sSTr, sA)
        e.S("s_lshl_b32", sA, sC, 10)
        e.S("s_add_u32", sOo, sXr, sA)
        e.S("s_lshl_b32", sA, sC, 8)
        e.S("s_add_u32", sA, sA, 16 * KB)
        e.S("s_add_u32", sOoh, sXr, sA)
        e.S("s_mul_i32", sA, sC, 3 * KB)
        e.S("s_add_u32", sOh, sHr, sA)
        e.S("s_lshl_b32", sA, sC, 9)
        e.S("s_add_u32", sA, sA, 48 * KB)
        e.S("s_add_u32", sOhh, sHr, sA)
        e.S("s_mul_i32", sKv, sC, 16 * KVSZ)
        e.misc(f"s_getreg_b32 {sX1}, hwreg(HW_REG_XCC_ID, 0, 4)")
        e.S("s_and_b32", sX1, sX1, 7)
        e.S("s_add_u32", sX1, sX1, 8)
        e.S("s_add_u32", sX1, sX1, sBase)
        e.S("s_mov_b32", sLocal, 0)
        U, Hh, Ee, Dq = T0, T1, T2, T3
        e.S("s_mov_b32", sA, 52429)
        e.V("v_mul_u32_u24", U, sA, v(0))
        e.V("v_lshrrev_b32", U, 18, U)
        e.V("v_mul_u32_u24", Dq, 5, U)
        e.V("v_sub_u32", Dq, v(0), Dq)
        e.V("v_cmp_le_u32", VCC, 21, U)
        e.V("v_cndmask_b32", Hh, 0, 1, VCC)
        e.V("v_mul_u32_u24", Ee, 21, Hh)
        e.V("v_sub_u32", Ee, U, Ee)
        A0, A1, A2, A3 = TMP[46], TMP[47], TMP[38], TMP[39]
        e.V("v_cmp_le_u32", s(100, 2), 16, Ee)
        e.V("v_cmp_eq_u32", s(88, 2), 4, Dq)
        e.V("v_cndmask_b32", A0, 0, 1, s(100, 2))
        e.V("v_lshl_add_u32", A0, Hh, 1, A0)
        e.V("v_add_u32", A1, 4, Hh)
        e.V("v_cndmask_b32", A1, A1, 6, s(100, 2))
        e.V("v_cndmask_b32", A0, A0, A1, s(88, 2))
        e.V("v_cndmask_b32", A1, Dq, Hh, s(88, 2))
        e.V("v_lshl_add_u32", A2, Hh, 2, Ee)
        e.V("v_subrev_u32", A2, 8, A2)
        e.V("v_cndmask_b32", A2, Ee, A2, s(100, 2))
        e.V("v_cmp_eq_u32", VCC, 20, Ee)
        e.V("v_cndmask_b32", A2, A2, 0, VCC)
        e.V("v_lshl_add_u32", A1, A1, 4, A2)
        e.V("v_lshlrev_b32", A1, 4, A1)
        e.V("v_lshl_add_u32", vKvSrc, A0, 10, A1)
        e.V("v_mul_u32_u24", A0, 5, Hh)
        e.V("v_add_u32", A0, A0, Dq)
        e.V("v_cmp_le_u32", s(88, 2), 8, A0)
        e.V("v_lshrrev_b32", A1, 1, A0)
        e.V("v_subrev_u32", A2, 8, A0)
        e.V("v_cndmask_b32", A1, A1, A2, s(88, 2))
        e.V("v_and_b32", A2, 1, A0)
        e.V("v_cndmask_b32", A2, A2, 0, s(88, 2))
        e.V("v_lshlrev_b32", A2, 3, A2)
        e.V("v_cndmask_b32", A0, 0, 1, s(88, 2))
        e.V("v_lshl_add_u32", A3, Hh, 1, A0)
        e.V("v_lshl_add_u32", A3, A3, 2, A1)
        e.V("v_lshl_add_u32", A3, A3, 4, A2)
        e.V("v_add_u32", A3, ZT, A3)
        e.V("v_mul_u32_u24", T4, 20, Hh)
        e.V("v_add_u32", T4, T4, Ee)
        e.V("v_cmp_le_u32", s(100, 2), 32, T4)
        e.V("v_and_b32", T5, 1, T4)
        e.V("v_cndmask_b32", T5, T5, 2, s(100, 2))
        e.V("v_lshl_add_u32", A0, T5, 1, A0)
        e.V("v_lshrrev_b32", T5, 1, T4)
        e.V("v_subrev_u32", T4, 32, T4)
        e.V("v_cndmask_b32", T4, T5, T4, s(100, 2))
        e.V("v_lshl_add_u32", T4, A1, 4, T4)
        e.V("v_lshl_add_u32", T4, T4, 4, A2)
        e.V("v_lshl_add_u32", T4, A0, 10, T4)
        e.V("v_cndmask_b32", T4, T4, A3, VCC)
        e.V("v_cmp_gt_u32", VCC, 210, v(0))
        e.V("v_mov_b32", T5, DUMMY)
        e.V("v_cndmask_b32", vKvDst, T5, T4, VCC)
        e.V("v_cndmask_b32", vKvSrc, 0, vKvSrc, VCC)
        e.V("v_lshlrev_b32", T4, 3, v(0))
        e.V("v_mov_b32", T5, BIG)
        e.V("v_cndmask_b32", vT16, T5, T4, VCC)
        e.V("v_and_b32", T4, -16, T4)
        e.V("v_and_b32", T0, 1, v(0))
        e.V("v_mul_u32_u24", T0, 8 * KVSZ, T0)
        e.V("v_add_u32", T4, T4, T0)
        e.V("v_cndmask_b32", vT16L, T5, T4, VCC)

    def late_loads(self):
        e = self.e
        T4, T5 = TMP[48], TMP[49]
        e.S("s_mul_i32", sB, sCG, 160)
        e.bload(RES[10:14], vOut, XIN, 0, 0)
        e.bload(RES[14:18], vOut, XIN, 0, 64)
        e.bload(RES[18:20], vOut4, XIN, 0, 128)
        skip = e.newlabel("noxid")
        e.S("s_cmp_lg_u32", sWave, 3)
        e.branch("s_cbranch_scc1", skip)
        e.cond_begin()
        e.S("s_lshl_b32", sA, sR, 8)
        e.S("s_add_u32", sA, sA, FLG_X)
        e.S("s_lshl_b32", sB, sC, 2)
        e.V("v_mov_b32", T4, sB)
        e.V("v_mov_b32", T5, sX1)
        e.S("s_mov_b64", EXEC, 1)
        e.bstore(T5, T4, WS, sA, 0, "sc1")
        e.S("s_mov_b64", EXEC, -1)
        e.cond_end()
        e.label(skip)

    def unpack(self, dst, pk):
        e = self.e
        for a_ in range(2):
            for j in range(4):
                e.V("v_lshlrev_b32", dst[8 * a_ + j], 16, pk[4 * a_ + j])
                e.V("v_and_b32", dst[8 * a_ + 4 + j], "0xffff0000", pk[4 * a_ + j])
        for j in range(2):
            e.V("v_lshlrev_b32", dst[16 + 2 * j], 16, pk[8 + j])
            e.V("v_and_b32", dst[16 + 2 * j + 1], "0xffff0000", pk[8 + j])

    class ALoad:
        def __init__(self, m, vaddr, terms, nks):
            self.m, self.vaddr, self.terms, self.nks = m, vaddr, terms, nks
            self.n = 0
            self.based = -1
            self.done = False
            self.win = 20

        def step(self):
            e = self.m.e
            ks, u = divmod(self.n, 2)
            if ks // 4 != self.based:
                self.based = ks // 4
                e.S("s_add_u32", sLd, self.terms[0], self.terms[1] + (ks // 4) * 4 * KB)
                return False
            e.bload(a((self.n % 40) * 4, 4), self.vaddr[u], WS, sLd, (ks % 4) * KB, self.m.opt.get("amod", "sc1"), cls=(self.m.opt.get("latA", 600), 76, 33 if self.nks == 27 else 16))
            self.n += 1
            self.done = self.n >= 2 * self.nks
            return True

        def upto(self, ks):
            while self.n < 2 * min(ks + 1, self.nks):
                self.step()

    def stats_loads(self, ver):
        e = self.e
        e.S("s_add_u32", sA, sSTr, STB[ver])
        for u in range(2):
            for k in range(2):
                e.bload(TMP[4 * u + 2 * k:4 * u + 2 * k + 2], vSt, WS, sA, k * 1024 + u * 128, "sc1", cls=(600, 20, 0))

    def stats_gen(self, need_T, have=False):
        e = self.e
        for u in range(2):
            sm, sq, t0, t1 = TMP[4 * u], TMP[4 * u + 1], TMP[4 * u + 2], TMP[4 * u + 3]
            if not have:
                e.V("v_add_f32", sm, sm, t0); yield
                e.V("v_add_f32", sq, sq, t1); yield
            for op in () if have else ("v_permlane32_swap_b32", "v_permlane16_swap_b32"):
                e.V("v_mov_b32", t0, sm); yield
                e.V("v_mov_b32", t1, sq); yield
                e.V(op, sm, t0); yield
                e.V(op, sq, t1); yield
                e.V("v_add_f32", sm, sm, t0); yield
                e.V("v_add_f32", sq, sq, t1); yield
            e.V("v_mul_f32", sm, lit(1.0 / D), sm); yield
            e.V("v_mul_f32", t0, sm, sm); yield
            e.V("v_fma_f32", sq, sq, self.cInvD, Neg(t0)); yield
            e.V("v_max_f32", sq, 0, sq); yield
            e.V("v_add_f32", sq, lit(1e-5), sq); yield
            e.V("v_rsq_f32", t0, sq); yield
            e.V("v_cvt_pk_bf16_f32", XE[u][0], sm, sm); yield
            e.V("v_mul_f32", sq, sq, t0); yield
            e.ds_write(vRW, t0, 64 * u); yield
            c2 = vC2 if u == 0 else vC2b
            e.V("v_mul_f32", c2[0], lit(LOG2E), t0); yield
            e.V("v_lshlrev_b32", t1, 16, XE[u][0]); yield
            e.V("v_sub_f32", sm, sm, t1); yield
            e.V("v_cvt_pk_bf16_f32", XE[u][1], sm, sq); yield
            e.V("v_and_b32", t1, "0xffff0000", XE[u][1]); yield
            e.V("v_sub_f32", t1, sq, t1); yield
            e.V("v_cvt_pk_bf16_f32", XE[u][3], sm, t1); yield
            e.V("v_mov_b32", XE[u][2], XE[u][0]); yield
        if need_T:
            for u in range(2):
                e.ds_read(RT[4 * u:4 * u + 4], vRT, 64 * u); yield

    def phi_pair(self, src, c2, bcast, t):
        e = self.e
        m = "op_sel_hi:[1,0]" if bcast else ""
        e.V("v_pk_mul_f32", t[0:2], src, c2, mods=m)
        e.V("v_exp_f32_e64", t[2], t[0], mods="clamp")
        e.V("v_exp_f32_e64", t[3], t[1], mods="clamp")
        e.V("v_max_f32", t[0], 0, t[0])
        e.V("v_max_f32", t[1], 0, t[1])
        e.V("v_pk_add_f32", t[2:4], t[2:4], vEps, mods="op_sel_hi:[1,0]")
        e.V("v_pk_fma_f32", t[0:2], t[0:2], vLn2, t[2:4], mods="op_sel_hi:[1,0,1]")

    def scratch(self, nblk, endpos):
        st = endpos - nblk
        if (st % RB) + nblk > RB:
            st = endpos - (endpos % RB) - nblk
        self.last_scratch = (st, st + nblk)
        return st, self.ldsaddr(st)

    def bg_on(self, tail):
        e = self.e
        st = {"next": 0}
        t_end = e.T + tail
        self.deadline = lambda: t_end

        def f():
            if e.T >= st["next"] and self.dma_ok():
                n0 = len(e.vm) + len(e.lg) + len(self.deferred)
                while len(e.vm) + len(e.lg) + len(self.deferred) == n0:
                    next(self.dmaf)
                st["next"] = e.T + self.opt.get("vgap", 24)
        self.e.bg = f

    def code_touch(self, ahead=None):
        e = self.e
        if not self.opt.get("ctouch", 1):
            return
        lab = e.newlabel("here")
        e.label(lab)
        ahead = self.opt.get("cahead", 2048) if ahead is None else ahead
        e.V("v_lshlrev_b32", v(51), 5, v(0))
        e.V("v_add_u32", v(51), f"{lab}-{self.kname}+{ahead}", v(51))
        e.V("v_min_u32", v(51), self.opt.get("code_bytes", 32768) - 4, v(51))
        e.misc(f"global_load_dword {vDum}, {v(51)}, s[96:97]")
        e._vm([], (800, 30, 10))

    def delay(self, n, gen):
        for _ in range(n):
            yield "idle"
        yield from gen

    def code_touch_gen(self):
        self.code_touch(self.opt.get("cahead", 512))
        yield

    def bg_off(self):
        self.e.bg = None

    def gstore(self, lst, cold=False):
        e = self.e
        mode = self.opt.get("mode", "dual")
        if cold and not self.opt.get("touchcold", 0):
            mode = "safe"
        if mode != "dual":
            return [e.bstore(d, vo, WS, so, off, "sc1" if mode == "safe" else "") for d, vo, so, off in lst]
        ls, le = e.newlabel("st_safe"), e.newlabel("st_end")
        regs = []
        for d, vo, so, off in lst:
            regs += d.regs() + vo.regs()
        e.wait_ops(e._pending(regs))
        e.S("s_cmp_eq_u32", sLocal, 0)
        need = e._need("vmem", regs, [])
        if need > 1:
            e.nop(need - 1)
        e.branch("s_cbranch_scc1", ls)
        n0 = len(e.lines)
        ops = [e.bstore(d, vo, WS, so, off, "") for d, vo, so, off in lst]
        body = e.lines[n0:]
        assert len(body) == len(lst), body
        e.raw(f"  s_branch {le}")
        e.label(ls)
        for l in body:
            e.raw(l + " sc1")
        e.label(le)
        return ops

    def touch_gen(self, lst, cold=False):
        e = self.e
        if (cold and not self.opt.get("touchcold", 0)) or not self.opt.get("touch", 0):
            return
        for vo, sb, add, off in lst:
            e.S("s_add_u32", sE, sb, add); yield
            e.touch(vDum, vo, WS, sE, off, cls=(750, 80, 30)); yield

    def local_gen(self):
        e = self.e
        e.S("s_lshl_b32", s(6), sR, 8); yield
        e.S("s_add_u32", s(6), s(6), FLG_X); yield
        e.bload(TMP[39], vFl, WS, s(6), 0, "sc1"); yield
        for _ in range(40):
            yield "idle"
        e.V("v_cmp_ne_u32", VCC, sX1, TMP[39]); yield
        e.S("s_cmp_eq_u64", VCC, 0)
        e.S("s_cselect_b32", sLocal, 1, 0); yield

    def poll(self, kind, val):
        e = self.e
        skip = e.newlabel("nopoll")
        loop = e.newlabel("poll")
        e.S("s_cmp_lg_u32", sWave, 0)
        e.branch("s_cbranch_scc1", skip)
        e.cond_begin()
        t = TMP[38]
        e.S("s_mov_b32", sCnt, 0)
        e.S("s_mov_b64", sOk, 0)
        e.S("s_add_u32", sB, sBase, val)
        va, vb, sa, sb = vFl, vFl, sFRL, sFRG
        if kind == "both":
            va, vb, sa, sb = TMP[36], TMP[37], 0, 0
            e.V("v_cmp_gt_u32", VCC, 2, vG)
            e.V("v_mov_b32", va, sFC)
            e.V("v_mov_b32", vb, sFRL)
            e.V("v_cndmask_b32", va, vb, va, VCC)
            e.V("v_add_u32", va, va, vFl)
            e.V("v_mov_b32", vb, FLG_RG - FLG_RL)
            e.V("v_cndmask_b32", vb, vb, 0, VCC)
            e.V("v_add_u32", vb, va, vb)
        e.label(loop)

        def chk():
            e.misc("s_waitcnt vmcnt(0)")
            e.misc(f"v_subrev_u32 {t}, {sB}, {t}")
            e.misc(f"v_cmp_ge_u32 vcc, 1, {t}")
            e.misc(f"s_or_b64 {sOk}, {sOk}, vcc")
            e.misc(f"s_cmp_eq_u64 {sOk}, -1")
            e.misc(f"s_cbranch_scc1 {skip}")
        e.misc(f"buffer_load_dword {t}, {va}, {WS}, {sa} offen sc1")
        e.misc("s_add_u32 %s, %s, 1" % (sCnt, sCnt))
        chk()
        if kind == "both":
            e.misc("s_sleep 3")
        e.misc(f"s_and_b32 {sA}, {sCnt}, 3")
        e.misc(f"s_cbranch_scc1 {loop}")
        e.misc(f"buffer_load_dword {t}, {vb}, {WS}, {sb} offen sc1")
        chk()
        e.misc(f"s_cmp_lt_u32 {sCnt}, 0x40000")
        e.misc(f"s_cbranch_scc1 {loop}")
        e.cond_end()
        e.label(skip)

    def flag(self, kind, val):
        e = self.e
        lst = [(1, sFRG, "sc1", sC), (2, sFRL, "", sC)] if kind != "col" else []
        if kind != "row":
            lst.append((3, sFC, "sc1", sR))
        for w, sb, m, sidx in lst:
            skip = e.newlabel("noflag")
            e.S("s_cmp_lg_u32", sWave, w)
            e.branch("s_cbranch_scc1", skip)
            e.cond_begin()
            e.S("s_lshl_b32", sA, sidx, 2)
            e.V("v_mov_b32", TMP[37], sA)
            e.S("s_add_u32", sA, sBase, val)
            e.V("v_mov_b32", TMP[38], sA)
            e.S("s_mov_b64", EXEC, 1)
            e.bstore(TMP[38], TMP[37], WS, sb, 0, m)
            e.S("s_mov_b64", EXEC, -1)
            e.cond_end()
            e.label(skip)

    def handoff(self, val, ops, shadow=None, touch=()):
        e = self.e
        t_st = e.T
        hk = (val - 2) % 4
        pick = lambda name, d: self.opt[name + "s"][hk] if name + "s" in self.opt else self.opt.get(name, d)
        self.deadline = lambda: t_st + pick("topup", 2600)
        self.own_end = 0
        while self.dma_ok():
            next(self.dmaf)
        while self.stage_step():
            pass
        self.finish_stage()
        self.restore(self.opt.get("rest1", 4))
        e.wait_all_lg()
        self.ring_barrier(self.cons + FI + self.opt.get("ahead", 16), ops)
        self.hold = None
        self.flag("row", val)
        self.stamp("flag")
        t_flag = e.T
        if self.opt.get("post_touch", 0):
            for k, (vo, sb, add, off) in enumerate(touch):
                sr = sE if k % 2 else sD
                e.S("s_add_u32", sr, sb, add)
                e.touch(vDum, vo, WS, sr, off, "sc1", cls=(750, 66, 30))
        self.deadline = lambda: t_flag + pick("topup2", 1800)
        while self.dma_ok():
            next(self.dmaf)
        while self.stage_step():
            pass
        self.finish_stage()
        self.warn.append(f"staged {len(self.staged)}")
        self.stage_plan = []
        self.prime()
        self.restore(self.opt.get("rest2", 6) if hk == 3 else 99)
        self.restg = self.restore_gen(99)
        if shadow:
            shadow()
        self.poll("row", val)
        e.T = max(e.T, t_flag + 1000)
        e.barrier()
        self.stamp("go")

    def phaseA(self, p):
        e = self.e
        opt = self.opt
        xv = 2 * p
        acc = lambda T, u: ACC[(T * 2 + u) * 4:(T * 2 + u) * 4 + 4]
        xf = lambda ks, u: a((ks * 2 + u) * 4, 4) if ks < 20 else XE[u]
        if p == 0:
            e.S("s_mov_b32", sSel[0], "0x00003f80")
            e.S("s_mov_b32", sSel[1], "0x3f800000")
            e.S("s_mov_b32", sOdd[0], "0xaaaaaaaa")
            e.S("s_mov_b32", sOdd[1], "0xaaaaaaaa")
            e.S("s_getpc_b64", s(96, 2))
            e.label("main_pc2")
            e.S("s_sub_u32", s(96), s(96), "main_pc2-" + self.kname)
            e.S("s_subb_u32", s(97), s(97), 0)
            for _ in range(opt.get("first_groups", 3)):
                for _ in self.dma_group():
                    pass
        al = self.ALoad(self, vAx, (sXr, XB[xv]), 20)
        al.upto(opt.get("adist", 4) - 1)
        self.stats_loads(xv)
        fl0 = [self.delay(opt.get("stdelay", 24), self.stats_gen(True))]
        sc_keep = self.last_scratch
        if p:
            fl0.append(self.restg)
        if p == 0:
            if opt.get("r2st", 2) == 0:
                self.r2_stores()
                self.late_loads()
            e.wait_all_lg()
            if opt.get("r2st", 2) == 2:
                self.ring_barrier(FI + 8, self.ops2)
                self.flag("col", 2)
                fl0.append(self.w2_gen())
            else:
                self.ring_barrier(FI + 8)
            self.prime()
            self.stamp("start")
            if opt.get("keep", 12):
                self.capg = self.capture_gen(opt.get("keep0", 3), opt.get("keep", 12))
                next(self.capg)
                fl0.append(self.capg)
        st1 = {}

        def hook1(t):
            if t >= opt.get("w2flag_at", 30) and not st1.get("done"):
                st1["done"] = t
                return self.ops2, (lambda: self.flag("col", 2))
            return [], None

        def add1(t):
            if st1.get("done") and t >= opt.get("w2chk_at", 70) and not st1.get("chk"):
                st1["chk"] = True
                return self.w2_gen()
        i0 = self.seqstart[("A1", p)]
        fb = 102
        sst, sad = self.scratch(28, self.seq[i0 + fb][0])
        self.last_scratch = sc_keep
        self.hold = sst

        def mf(t, W, u):
            ks, T = divmod(t, 5)
            e.mfma(acc(T, u), xf(ks, u), W, acc(T, u) if ks else 0)
        self.run_pass(105, mf, 5, xf, fl0, must=fl0[0], chunk=(8 if p == 0 else 24), stop_reads=self.seqstart[("A4", p)], aload=al,
                      force_bar=fb, tail=6000, mix=opt.get("mixA", 0) if p else 0,
                      late=(60, self.touch_gen([(vAx[0], sOo, OB[p], 0), (vAx[1], sOo, OB[p], 0), (vOh, sOoh, OB[p], 0), (vOh, sOoh, OB[p] + 20 * KB, 0)], p == 0)), hooks={"bar": hook1, "add": add1} if (p == 0 and opt.get("r2st", 2) == 0) else None)
        if p == 0 and opt.get("r2st", 2) == 1:
            self.dma_all()
            self.r2_stores()
            self.late_loads()
        assert sst + 28 <= self.freed and sst + 28 <= self.cap_hold, (sst, self.cap_hold)
        self.stamp("A1")
        self.bg_on(5000)
        C2T = ACC[40:48]
        for j in range(8):
            e.V("v_mul_f32", C2T[j], lit(LOG2E), RT[j])
        KF = [TMP[8:12], TMP[12:16], TMP[16:20]]
        VF = {3: TMP[20:24], 4: ACC[56:60], 2: ACC[60:64]}
        tt = [ACC[48:52], ACC[52:56]]
        TA0, TA1 = TMP[24], TMP[25]
        n = 0
        for T in range(3):
            for u in range(2):
                for h in range(2):
                    t = tt[n % 2]
                    n += 1
                    self.phi_pair(acc(T, u)[2 * h:2 * h + 2], C2T[4 * u + 2 * h:4 * u + 2 * h + 2], False, t)
                    e.V("v_cvt_pk_bf16_f32", KF[T][2 * u + h], t[0], t[1])
        for T in (3, 4, 2):
            for u in range(2):
                for h in range(2):
                    x = acc(T, u)[2 * h:2 * h + 2]
                    e.V("v_pk_mul_f32", x, x, RT[4 * u + 2 * h:4 * u + 2 * h + 2])
            for u in range(2):
                for h in range(2):
                    x = acc(T, u)[2 * h:2 * h + 2]
                    e.V("v_cvt_pk_bf16_f32", VF[T][2 * u + h], x[0], x[1])
        for j in range(4):
            e.V("v_cndmask_b32", VF[2][j], VF[2][j], vOne, sMaskV)
        PR = [ACC[4 * i:4 * i + 4] for i in range(7)]
        prods = [(0, 3), (0, 2), (1, 4), (1, 2), (2, 3), (2, 4), (2, 2)]
        for i, (kt, vt) in enumerate(prods):
            e.mfma(PR[i], KF[kt], VF[vt], 0)
        e.S("s_mul_i32", sA, sWave, 7168)
        e.S("s_add_u32", sA, sA, sad)
        e.V("v_add_u32", TA0, sA, vL16)
        e.V("v_add_u32", TA1, sad, vKvSrc)
        for i in range(7):
            e.ds_write(TA0, PR[i], i * 1024)
        e.wait_all_lg()
        e.barrier()
        RD = [ACC[4 * w:4 * w + 4] for w in range(4)]
        for w in range(4):
            e.ds_read(RD[w], TA1, w * 7168)
        for h in range(2):
            e.V("v_pk_add_f32", RD[0][2 * h:2 * h + 2], RD[0][2 * h:2 * h + 2], RD[1][2 * h:2 * h + 2])
            e.V("v_pk_add_f32", RD[2][2 * h:2 * h + 2], RD[2][2 * h:2 * h + 2], RD[3][2 * h:2 * h + 2])
        for h in range(2):
            e.V("v_pk_add_f32", RD[0][2 * h:2 * h + 2], RD[0][2 * h:2 * h + 2], RD[2][2 * h:2 * h + 2])
        e.S("s_mul_i32", sA, sR, KVSZ)
        e.S("s_add_u32", sA, sA, sKv)
        e.S("s_add_u32", sA, sA, KVB[p])
        e.V("v_cvt_pk_bf16_f32", RD[1][0], RD[0][0], RD[0][1])
        e.V("v_cvt_pk_bf16_f32", RD[1][1], RD[0][2], RD[0][3])
        kvst = e.bstore(RD[1][0:2], vT16, WS, sA, 0, "sc1")
        self.bg_off()
        self.stamp("kvpub")
        PL = [ACC[4 * i:4 * i + 4] for i in range(10)]

        st2 = {}

        def barhook(t):
            def rel():
                self.hold = None

            def relflag():
                self.hold = None
                self.flag("col", 2)
            if p == 0 and opt.get("r2st", 2) == 1 and not st2.get("done") and t >= opt.get("w2flag2_at", 12):
                st2["done"] = True
                return self.ops2, relflag
            return [], rel

        def kvloads():
            for i in range(8):
                if i % 2 == 0:
                    e.S("s_add_u32", sB, sKv, KVB[p] + i * KVSZ); yield
                e.bload(PL[i], vT16L, WS, sB, (i % 2) * KVSZ, "sc1", cls=(opt.get('kvlat', 800), 80, opt.get('kvsvc', 130))); yield

        def kvsum():
            SM = PL[8:10]
            for i in range(8):
                for d in range(4):
                    for h in range(2):
                        x = SM[d >> 1][2 * (d & 1) + h]
                        if i == 0:
                            e.V("v_dot2_f32_bf16", x, PL[i][d], sSel[h], 0)
                        else:
                            e.V("v_dot2c_f32_bf16", x, sSel[h], PL[i][d])
            for d in range(8):
                x = SM[d >> 2][d & 3]
                e.V("v_add_f32_dpp", x, x, x, mods="quad_perm:[1,0,3,2] row_mask:0xf bank_mask:0xf")
            for d in range(4):
                e.V("v_cndmask_b32", PL[0][d], SM[0][d], SM[1][d], sOdd)
            e.V("v_cmp_u_f32", VCC, PL[0][0], PL[0][1])
            e.V("v_cmp_u_f32", sNan, PL[0][2], PL[0][3])
            e.S("s_or_b64", VCC, VCC, sNan)

        def mfq(t, W, u):
            ks, T = divmod(t, 3)
            e.mfma(acc(5 + T, u), W, xf(ks, u), acc(5 + T, u) if ks else 0)
        self.lastbar = self.rd - 8
        fl = []
        if p == 0:
            fl = [self.local_gen()] + ([self.capg] if self.capg else [])
        self.run_pass(63, mfq, 3, xf, fl, stop_reads=self.seqstart[("A4", p)], hooks={"bar": barhook},
                      late=(opt.get("kvload_at", 40), kvloads()), see_all=True, force_bar=61, tail=1600 + self.opt.get("slack", 2400))
        if self.capg:
            n_ = 0
            for _ in self.capg:
                n_ += 1
                assert n_ < 1000
            self.capg = None
        self.stamp("A2")
        if p == 0 and opt.get("r2st", 2) == 1:
            assert st2.get("done")
            w2 = self.w2_gen()
            while next(w2) != "idle":
                pass
        if opt.get("qbg", 1):
            self.bg_on(1600 + self.opt.get("slack", 2400))
        PQ0 = [TMP[0:4], TMP[4:8]]
        PQ1 = [TMP[8:12], TMP[12:16]]
        tq = [TMP[16:20], TMP[20:24]]
        for u in range(2):
            c2 = vC2 if u == 0 else vC2b
            for h in range(2):
                self.phi_pair(acc(5, u)[2 * h:2 * h + 2], c2, True, tq[0])
                self.phi_pair(acc(6, u)[2 * h:2 * h + 2], c2, True, tq[1])
                e.V("v_cvt_pk_bf16_f32", PQ0[u][2 * h], tq[0][0], tq[1][0])
                e.V("v_cvt_pk_bf16_f32", PQ0[u][2 * h + 1], tq[0][1], tq[1][1])
            for h in range(2):
                self.phi_pair(acc(7, u)[2 * h:2 * h + 2], c2, True, tq[h])
                e.V("v_cvt_pk_bf16_f32", PQ1[u][h], tq[h][0], tq[h][1])
            e.V("v_mov_b32", PQ1[u][2], 0)
            e.V("v_mov_b32", PQ1[u][3], 0)
        self.bg_off()
        self.stamp("qepi")
        kvsum()
        lok, lre = e.newlabel("kvok"), e.newlabel("kvretry")
        e.branch("s_cbranch_scc0", lok)
        e.cond_begin()
        e.S("s_mov_b32", sCnt, 0)
        e.label(lre)
        e.misc("s_sleep 4")
        for _ in kvloads():
            pass
        kvsum()
        e.branch("s_cbranch_scc0", lok)
        e.S("s_add_u32", sCnt, sCnt, 1)
        e.S("s_cmp_lt_u32", sCnt, 0x10000)
        e.branch("s_cbranch_scc1", lre)
        e.cond_end()
        e.label(lok)
        self.stamp("kvgo")
        if p == 0 and opt.get("r2st", 2) == 1:
            for _ in w2:
                pass

        self.bg_on(900 + self.opt.get("slack", 2400))
        e.V("v_cvt_pk_bf16_f32", TMP[16], PL[0][0], PL[0][1])
        e.V("v_cvt_pk_bf16_f32", TMP[17], PL[0][2], PL[0][3])
        e.ds_write(vKvDst, TMP[16:18])
        e.wait_all_lg()
        e.barrier()
        FR = [ACC[40 + 4 * i:44 + 4 * i] for i in range(6)] + [TMP[16 + 4 * i:20 + 4 * i] for i in range(4)]
        for T in range(3):
            for ks in range(2):
                e.ds_read(FR[T * 2 + ks], vL16, IMG + (T * 2 + ks) * KB)
        for ks in range(2):
            e.ds_read(FR[6 + ks], vZ01, ks * 64)
            e.ds_read(FR[8 + ks], vZ2, ks * 64)
        oa = lambda T, u: ACC[(T * 2 + u) * 4:(T * 2 + u) * 4 + 4]
        for T in (3, 4, 0, 1, 2):
            for u in range(2):
                e.mfma(oa(T, u), FR[2 * T], PQ0[u], 0)
        for T in (3, 4, 0, 1, 2):
            for u in range(2):
                e.mfma(oa(T, u), FR[2 * T + 1], PQ1[u], oa(T, u))
        e.S("s_add_u32", sA, sOo, OB[p])
        e.S("s_add_u32", sB, sOoh, OB[p])
        e.S("s_add_u32", sD, sOoh, OB[p] + 20 * KB)
        ops = []
        for u in range(2):
            for x in (oa(3, u)[0], oa(3, u)[2], oa(4, u)[0]):
                e.V("v_add_f32", x, vEps[0], x)
        for u in range(2):
            for x in (oa(3, u)[0], oa(3, u)[2], oa(4, u)[0]):
                e.V("v_rcp_f32", x, x)
        for u in range(2):
            for T in range(3):
                for h in range(2):
                    x = oa(T, u)[2 * h:2 * h + 2]
                    dn = oa(3, u)[2 * h:2 * h + 2] if T < 2 else oa(4, u)[0:2]
                    e.V("v_pk_mul_f32", x, x, dn, mods="op_sel_hi:[1,0]")
            o4 = TMP[16 + 8 * u:20 + 8 * u]
            o2 = TMP[20 + 8 * u:22 + 8 * u]
            for j in range(4):
                e.V("v_cvt_pk_bf16_f32", o4[j], oa(0, u)[j], oa(1, u)[j])
            for h in range(2):
                e.V("v_cvt_pk_bf16_f32", o2[h], oa(2, u)[2 * h], oa(2, u)[2 * h + 1])
            if u == 0:
                ops += self.gstore([(o4, vAx[u], sA, 0), (o2, vOh, sB, 0)], p == 0 or opt.get("osafe"))
            else:
                ops += self.gstore([(o4, vAx[u], sA, 0), (o2, vOh, sD, 0)], p == 0 or opt.get("osafe"))
        self.bg_off()
        self.stamp("A3")
        def shadow():
            e.S("s_mul_i32", sB, sCG, 160)
            e.V("v_lshl_add_u32", TMP[2], vG, 4, sB)
            e.V("v_lshl_add_u32", TMP[3], vG, 3, sB)
            e.bload(ACC[40:44], TMP[2], SB2, 0, 0, cls=(800, 20, 0))
            e.bload(ACC[44:48], TMP[2], SB2, 0, 64, cls=(800, 20, 0))
            e.bload(ACC[48:50], TMP[3], SB2, 0, 128, cls=(800, 20, 0))
            if p == 0:
                self.unpack(RES, RES[10:20])
        self.handoff(4 * p + 2, ops, shadow, [(vAx[0], sOo, OB[p], 0), (vAx[1], sOo, OB[p], 0), (vOh, sOoh, OB[p], 0), (vOh, sOoh, OB[p] + 20 * KB, 0)])

    def phase64(self, p, kind):
        e = self.e
        opt = self.opt
        nks = 10 if kind == "O" else 27
        name = "A4" if kind == "O" else "B2"
        acc = lambda T, u: ACC[(u * 5 + T) * 4:(u * 5 + T) * 4 + 4]
        if kind == "O":
            al = self.ALoad(self, vAo, (sXr, OB[p]), nks)
        else:
            al = self.ALoad(self, vAh, (sHr, HB[p]), nks)
        al.upto(opt.get("adist", 4) - 1)
        xf = lambda ks, u: a(((ks % 20) * 2 + u) * 4, 4)
        if kind == "C":
            e.ds_read(TMP[2], vRF)
        i0 = self.seqstart[(name, p)]
        fb = 5 * nks - 3
        sst, sad = self.scratch(20, self.seq[i0 + fb][0])
        self.hold = sst
        stop = i0 + 5 * nks

        def mf(t, W, u):
            ks, T = divmod(t, 5)
            u = 1 - u
            c0 = RES[4 * T:4 * T + 4] if (kind == "O" and u == 0) else 0
            e.mfma(acc(T, u), W, xf(ks, u), acc(T, u) if ks else c0)

        def addr_gen():
            e.V("v_add_u32", TMP[0], sad, vXch); yield
            e.S("s_xor_b32", sA, sWave, 1); yield
            e.S("s_mul_i32", sA, sA, 5120); yield
            e.S("s_add_u32", sA, sA, sad); yield
            e.V("v_add_u32", TMP[1], sA, vL16); yield
            if kind == "C":
                e.V("v_mul_f32", TMP[2], TMP[2], TMP[2]); yield
            if not last:
                e.S("s_add_u32", sA, sOx, XB[xv]); yield
                e.S("s_add_u32", sB, sOxh, XB[xv]); yield
                e.S("s_add_u32", sD, sOst, STB[xv]); yield
        last = kind == "C" and p == 1
        xv = 2 * p + (1 if kind == "O" else 2)
        tg = None if last else (0, self.touch_gen([(vXs, sOx, XB[xv], 0), (vXs, sOx, XB[xv], 1024), (vXh, sOxh, XB[xv], 0), (vStW, sOst, STB[xv], 0)]))
        fl = [self.delay(20, addr_gen())]
        self.run_pass(5 * nks, mf, 5, xf, fl, late=tg, force_bar=fb, chunk=(opt.get("chunkO", 12) if kind == "O" else opt.get("chunkC", 12)), stop_reads=stop, aload=al,
                      mix=opt.get("mixO", 0) if kind == "O" else 0, tail=900 + self.opt.get("slack", 2400))
        self.stamp(name)
        self.bg_on(900 + self.opt.get("slack", 2400))
        assert sst + 20 <= self.freed
        for T in range(5):
            e.ds_write(TMP[0], acc(T, 1), T * KB)
        e.wait_all_lg()
        e.barrier()
        PT = TMP[4:24]
        for T in range(5):
            e.ds_read(PT[4 * T:4 * T + 4], TMP[1], T * KB)
        own = ACC[0:20]
        for h in range(10):
            x = own[2 * h:2 * h + 2]
            e.V("v_pk_add_f32", x, x, PT[2 * h:2 * h + 2])
            if kind == "C":
                e.V("v_pk_fma_f32", x, x, TMP[2:4], RES[2 * h:2 * h + 2], mods="op_sel_hi:[1,0,1]")
        PK = TMP[24:34]
        for a_ in range(2):
            for j in range(4):
                e.V("v_cvt_pk_bf16_f32", PK[4 * a_ + j], own[8 * a_ + j], own[8 * a_ + 4 + j])
        for h in range(2):
            e.V("v_cvt_pk_bf16_f32", PK[8 + h], own[16 + 2 * h], own[16 + 2 * h + 1])
        self.bg_off()
        if last:
            om = self.opt.get("outmod", "")
            e.bstore(PK[0:4], vOut, OUT, 0, 0, om)
            e.bstore(PK[4:8], vOut, OUT, 0, 64, om)
            e.bstore(PK[8:10], vOut4, OUT, 0, 128, om)
            self.stamp("end")
            return
        xv = 2 * p + (1 if kind == "O" else 2)
        ops = []
        ops += self.gstore([(PK[0:4], vXs, sA, 0), (PK[4:8], vXs, sA, 1024), (PK[8:10], vXh, sB, 0)])
        sm, sq, t0 = TMP[36], TMP[37], TMP[38]
        e.V("v_mov_b32", sm, 0)
        e.V("v_mov_b32", sq, 0)
        for j in range(10):
            e.V("v_dot2c_f32_bf16", sm, PK[j], vOne)
            e.V("v_dot2c_f32_bf16", sq, PK[j], PK[j])
        e.V("v_permlane32_swap_b32", sm, sq)
        e.V("v_add_f32", sm, sm, sq)
        e.V("v_mov_b32", t0, sm)
        e.V("v_permlane16_swap_b32", sm, t0)
        e.V("v_add_f32", sm, sm, t0)
        ops += self.gstore([(sm, vStW, sD, 0)])
        self.stamp(name + "epi")

        def shadow():
            self.unpack(RES, PK)
            if kind == "O":
                self.unpack(ACC[20:40], ACC[40:50])
                for h in range(10):
                    x = RES[2 * h:2 * h + 2]
                    e.V("v_pk_add_f32", x, x, ACC[20 + 2 * h:22 + 2 * h])
        self.handoff(4 * p + (3 if kind == "O" else 5), ops, shadow,
                     [(vStW, sOst, STB[xv], 0), (vXs, sOx, XB[xv], 0), (vXs, sOx, XB[xv], 1024), (vXh, sOxh, XB[xv], 0)])

    def phaseB1(self, p):
        e = self.e
        opt = self.opt
        xv = 2 * p + 1
        acc = lambda T, u: ACC[(T * 2 + u) * 4:(T * 2 + u) * 4 + 4]
        xf = lambda ks, u: a((ks * 2 + u) * 4, 4) if ks < 20 else XE[u]
        al = self.ALoad(self, vAx, (sXr, XB[xv]), 20)
        al.upto(opt.get("adist", 4) - 1)
        self.stats_loads(xv)
        stop = self.seqstart[("B2", p)]
        g0 = self.seq[stop][0] // 8 + RB // 8
        self.stage_plan = list(range(g0, g0 + (opt.get("nstage", 0) if p else 0)))

        def mf(t, W, u):
            ks, T = divmod(t, B1N)
            e.mfma(acc(T, u), W, xf(ks, u), acc(T, u) if ks else 0)
        tl = [(vHs, sOh, HB[p] + u * 54 * KB, a_ * KB) for a_ in range(3) for u in range(2)] + [(vHh, sOhh, HB[p] + u * 54 * KB, 0) for u in range(2)]
        sg = self.delay(opt.get("stdelay", 24), self.stats_gen(False))
        flb = [sg]
        if p == 0 and opt.get("keepb", 4):
            gb = self.capture_gen(self.segs[2][1] // 8 + opt.get("keepb0", 6), opt.get("keepb", 4), 12)
            next(gb)
            flb.append(gb)
        self.run_pass(21 * B1N, mf, B1N, xf, flb, late=(0, self.touch_gen(tl, p == 0)), stop_reads=stop, aload=al, must=sg, mix=opt.get("mixB", 0), tail=700 * (7 - B1N) + 300 + self.opt.get("slack", 2400))
        self.stamp("B1a")
        ops = []

        def epi(pairs, single):
            n = 0
            for u in range(2):
                sb = sD if u == 0 else sE
                e.S("s_add_u32", sb, sOh, HB[p] + u * 54 * KB); yield
                for a_ in pairs:
                    o = TMP[16 + 4 * (n % 4):20 + 4 * (n % 4)]
                    n += 1
                    for j in range(4):
                        x, y = acc(2 * a_, u)[j], acc(2 * a_ + 1, u)[j]
                        e.V("v_mul_f32_e64", x, x, f"|{x}|"); yield
                        e.V("v_mul_f32_e64", y, y, f"|{y}|"); yield
                        e.V("v_cvt_pk_bf16_f32", o[j], x, y); yield
                        e.V("v_pk_max_i16", o[j], o[j], 0); yield
                    ops.extend(self.gstore([(o, vHs, sb, a_ * KB)], p == 0 or opt.get("hsafe", 2) == 1 or (opt.get("hsafe", 2) == 2 and not single))); yield
            if single:
                for u in range(2):
                    o = TMP[32 + 2 * u:34 + 2 * u]
                    for j in range(4):
                        x = acc(6, u)[j]
                        e.V("v_mul_f32_e64", x, x, f"|{x}|"); yield
                    for h in range(2):
                        e.V("v_cvt_pk_bf16_f32", o[h], acc(6, u)[2 * h], acc(6, u)[2 * h + 1]); yield
                        e.V("v_pk_max_i16", o[h], o[h], 0); yield
                e.S("s_add_u32", sA, sOhh, HB[p])
                e.S("s_add_u32", sB, sOhh, HB[p] + 54 * KB)
                ops.extend(self.gstore([(TMP[32:34], vHh, sA, 0), (TMP[34:36], vHh, sB, 0)], p == 0 or opt.get("hsafe", 2) == 1))
                yield

        def mf2(t, W, u):
            ks, T = divmod(t, 7 - B1N)
            e.mfma(acc(B1N + T, u), W, xf(ks, u), acc(B1N + T, u) if ks else 0)
        self.run_pass(21 * (7 - B1N), mf2, 7 - B1N, xf, [epi(list(range(B1N // 2)), False)], stop_reads=stop, force_bar=21 * (7 - B1N) - 2, over=opt.get("b1over", 0), chunk=opt.get("chunkB", 24), tail=300 + self.opt.get("slack", 2400))
        self.stamp("B1b")
        for _ in epi(list(range(B1N // 2, 3)), True):
            pass
        self.stamp("B1epi")
        self.handoff(4 * p + 4, ops, None, tl)

    def gen(self):
        e = self.e
        e.reset_state()
        self.cInvD = s(63)
        self.dmaf = self.dma_filler()
        self.prologue()
        if self.opt.get("stamps"):
            e.memtime(sTm, True)
            e.V("v_writelane_b32", v(53), sTm[0], 62)
        self.startup()
        stop = self.opt.get("stop", 99)
        n = 0
        for p in range(2):
            for f in (lambda: self.phaseA(p), lambda: self.phase64(p, "O"), lambda: self.phaseB1(p), lambda: self.phase64(p, "C")):
                if n < stop:
                    f()
                n += 1
        if self.opt.get("stamps"):
            e.wait_all_vm()
            e.memtime(sTm, True)
            e.V("v_writelane_b32", v(53), sTm[0], 63)
            e.S("s_lshl_b32", sA, s(2), 2)
            e.S("s_add_u32", sA, sA, sWave)
            e.S("s_lshl_b32", sA, sA, 8)
            e.S("s_add_u32", sA, sA, STAMP)
            e.V("v_lshlrev_b32", TMP[1], 2, vLane)
            e.bstore(v(53), TMP[1], WS, sA)
        if self.opt.get("dbgst") is not None:
            skip = e.newlabel("nodbg")
            e.S("s_lshl_b32", sA, s(2), 2)
            e.S("s_add_u32", sA, sA, sWave)
            e.S("s_cmp_lg_u32", sA, 4 * self.opt.get("dbgwg", 77))
            e.branch("s_cbranch_scc1", skip)
            e.sload(s(84, 2), s(0, 2), 72)
            e.V("v_readlane_b32", sB, v(53), 0)
            e.V("v_subrev_u32", TMP[0], sB, v(53))
            e.V("v_subrev_u32", TMP[1], self.opt["dbgst"], vLane)
            e.V("v_cmp_gt_u32", VCC, 64 - self.opt["dbgst"], TMP[1])
            e.V("v_lshlrev_b32", TMP[1], 2, TMP[1])
            e.wait_all_lg()
            e.S("s_and_saveexec_b64", s(86, 2), VCC)
            e.misc(f"global_store_dword {TMP[1]}, {TMP[0]}, s[84:85]")
            e.S("s_mov_b64", EXEC, -1)
            e.label(skip)
        if self.opt.get("spin"):
            e.wait_all_vm()
            e.V("v_readfirstlane_b32", s(86), v(53))
            e.label("spin_loop")
            e.misc("s_memrealtime s[88:89]")
            e.misc("s_waitcnt lgkmcnt(0)")
            e.misc("s_sub_u32 s88, s88, s86")
            e.misc(f"s_cmp_lt_u32 s88, {self.opt['spin']}")
            e.misc("s_cbranch_scc1 spin_loop")
        e.S("s_add_u32", sA, s(2), sWave)
        e.S("s_cmp_lg_u32", sA, 0)
        e.branch("s_cbranch_scc1", "main_end")
        e.S("s_add_u32", sA, sBase, 16)
        e.V("v_mov_b32", TMP[0], sA)
        e.V("v_mov_b32", TMP[1], EPOCH)
        e.S("s_mov_b64", EXEC, 1)
        e.bstore(TMP[0], TMP[1], WS, 0)
        e.label("main_end")
        e.misc("s_endpgm")
```

```python
from asmgen import *
from layout import *
from gen_prep import mk_srd, allreduce_g
import math

BIG = 0x40000000
LOG2E = 1.4426950408889634
LN2 = 0.6931471805599453

IMG = 0
ZT = 6144
RST = 6400
DUMMY = 6912
RING = 8192
RB = 152
LDS_BYTES = RING + RB * KB
FI = 8

WS, OUT, XIN, SB2 = s(8, 4), s(12, 4), s(16, 4), s(20, 4)
sWave, sR, sC, sCG, sRH, sKH, sW2048 = [s(24 + i) for i in range(7)]
sSeg = {"A": s(31), "O": s(32), "B": s(33), "C": s(34)}
sXr, sHr, sSTr, sFRL, sFRG, sFC = [s(35 + i) for i in range(6)]
sA, sB, sD, sE, sDm, sLd = [s(41 + i) for i in range(6)]
sMaskV = s(48, 2)
sCnt = s(50)
sTT = s(51)
sTm = s(52, 2)
sOx, sOxh, sOst, sOo, sOoh, sOh, sOhh, sKv = [s(54 + i) for i in range(8)]
sLocal, sX1 = s(47), s(62)
sStg = s(3)
sSel = [s(84), s(85)]
sOdd = s(86, 2)
vT16L = v(37)
vStg = v(55)
sNan = s(90, 2)
sBase = s(92)
sOk = s(94, 2)
SR1, SR2 = s(84, 4), s(96, 4)
PP = s(64, 16)
pOut, pWs = s(80, 2), s(82, 2)
vDum = v(49)

vLane, vN, vG, vL16 = v(1), v(2), v(3), v(4)
vW = [v(5), v(6), v(7)]
vK = [v(8), v(9), v(10)]
vDma = v(11)
vAx = [v(12), v(13)]
vAo = [v(14), v(15)]
vAh = [v(16), v(17)]
vSt, vStW, vKvSrc, vKvDst, vT16, vZ01, vZ2, vRT, vRW, vRF, vOut, vOut4, vOne = [v(18 + i) for i in range(13)]
vOh, vXs, vXh, vHs, vHh, vFl, vPollR, vPollC, vXch = [v(31 + i) for i in range(9)]
XE = [v(40, 4), v(44, 4)]
vC2 = v(48, 2)
vC2b = v(50, 2)
vLn2 = v(52, 2)
vEps = v(54, 2)
RT = v(56, 8)
ACC = v(64, 64)
FIFO = v(128, 4 * FI)
RES = v(160, 20)
B2F = v(180, 20)
TMP = v(200, 56)


def keepreg(k, h):
    if k < 12:
        return a(160 + 8 * k + 4 * h, 4)
    t = 2 * (k - 12) + h
    return B2F[4 * t:4 * t + 4] if t < 5 else TMP[40 + 4 * (t - 5):44 + 4 * (t - 5)]


class Main:
    def __init__(self, e, opt):
        self.e = e
        self.opt = opt
        self.kname = opt["kname"]
        self.nstamp = 0
        self.segs = []
        pos = 0
        for p in range(2):
            for k, n in (("A", NA), ("O", NO), ("B", NB), ("C", NC)):
                self.segs.append((k, pos, n))
                pos += n
        self.total = pos
        self.ngroups = pos // 8
        self.issued = 0
        self.dmaop = {}
        self.freed = 0
        self.hold = None
        self.visible = 0
        self.seq = []
        self.seqstart = {}
        for p in range(2):
            b = self.segs[4 * p + 0][1]
            self.seqstart[("A1", p)] = len(self.seq)
            self.seq += [(b + i, "W") for i in range(105)]
            self.seqstart[("A2", p)] = len(self.seq)
            self.seq += [(b + 105 + i, "W") for i in range(63)]
            b = self.segs[4 * p + 1][1]
            self.seqstart[("A4", p)] = len(self.seq)
            self.seq += [(b + 2 * i, "K") for i in range(50)]
            b = self.segs[4 * p + 2][1]
            self.seqstart[("B1a", p)] = len(self.seq)
            self.seq += [(b + i, "W") for i in range(21 * B1N)]
            self.seqstart[("B1b", p)] = len(self.seq)
            self.seq += [(b + 21 * B1N + i, "W") for i in range(147 - 21 * B1N)]
            b = self.segs[4 * p + 3][1]
            self.seqstart[("B2", p)] = len(self.seq)
            self.seq += [(b + 2 * i, "K") for i in range(135)]
        self.rd = 0
        self.cons = 0
        self.lastbar = 0
        self.gate = NA // 8
        self.stage_plan = []
        self.staged = {}
        self.stage_mid = None
        self.cap_hold = 1 << 20
        self.deferred = []
        self.spares = []
        self.last_scratch = (0, 0)
        self.restg = None
        self.capg = None
        self.own_end_phase = 0
        self.cap_ops = []
        self.cap_next = 1 << 20
        self.warn = []
        self.model = []
        self.own_end = 0
        self.deadline = lambda: 1 << 30

    def stamp(self, name):
        self.model.append((name, self.e.T))
        if not self.opt.get("stamps"):
            return
        e = self.e
        e.wait_all_lg()
        e.memtime(sTm)
        e.V("v_writelane_b32", v(53), sTm[0], self.nstamp)
        self.opt.setdefault("stampnames", []).append(name)
        self.nstamp += 1
        assert self.nstamp <= 62

    def endpos(self, i):
        p, k = self.seq[i]
        return p + (2 if k == "K" else 1)

    def ldsaddr(self, pos):
        return RING + (pos % RB) * KB

    def can_issue(self):
        if self.issued >= min(self.ngroups, self.gate):
            return False
        lim = self.freed if self.hold is None else min(self.freed, self.hold)
        lim = min(lim, self.cap_hold)
        return 8 * (self.issued + 1) <= lim + RB

    def dma_group(self):
        e = self.e
        g = self.issued
        self.issued += 1
        pos = 8 * g
        if g in self.stage_plan:
            self.stage_plan = []
        if g in self.staged and self.opt.get("defer", 1) and 8 * g >= self.own_end_phase:
            self.deferred.append(g)
            self.dmaop[g] = None
            yield
            return
        if g in self.staged:
            self.finish_stage()
            k = self.staged[g]
            ad = self.ldsaddr(pos)
            e.V("v_add_u32", vStg, ad, vDma)
            yield
            e.ds_write(vStg, keepreg(k, 0), 0)
            yield
            self.dmaop[g] = e.ds_write(vStg, keepreg(k, 1), 1024)
            yield
            return
        for k, b, n in self.segs:
            if b <= pos < b + n:
                break
        e.S("s_add_u32", M0, sW2048, self.ldsaddr(pos))
        yield
        e.S("s_add_u32", sDm, sSeg[k], (pos - b) * KB)
        yield
        md = "nt" if k in self.opt.get("ntseg", "") else ""
        nvalid = min(8, {"A": 168, "O": 100, "B": 147, "C": 270}[k] - (pos - b)) if self.opt.get("skippad", 0) else 8
        for j in range(2):
            nw = (nvalid - j + 1) // 2
            if nw < 4:
                skip = e.newlabel("nopad")
                e.S("s_cmp_ge_u32", sWave, nw)
                e.branch("s_cbranch_scc1", skip)
                e.cond_begin()
            op = e.dma(vDma, WS, sDm, 1024 * j, md, cls=self.dcls(k))
            if nw < 4:
                e.cond_end()
                e.label(skip)
            if j:
                self.dmaop[g] = op
            yield

    def capture_gen(self, first, n, k0=0):
        e = self.e
        self.cap_hold = self.cap_next = 8 * first
        g1 = self.segs[4][1] // 8
        for k in range(k0, k0 + n):
            g = first + k - k0
            while self.visible < 8 * (g + 1):
                yield "idle"
            e.V("v_add_u32", vStg, self.ldsaddr(8 * g), vDma); yield
            e.ds_read(keepreg(k, 0), vStg, 0); yield
            self.cap_ops.append(e.ds_read(keepreg(k, 1), vStg, 1024))
            self.staged[g1 + g] = k
            self.cap_next = 8 * (g + 1) if k < k0 + n - 1 else 1 << 20
            yield

    def stage_group(self):
        e = self.e
        g = self.stage_plan.pop(0)
        k = len(self.staged) % 12
        self.staged[g] = k
        for sk, b, n in self.segs:
            if b <= 8 * g < b + n:
                break
        e.S("s_add_u32", sStg, sSeg[sk], (8 * g - b) * KB)
        yield
        e.bload(keepreg(k, 0), vDma, WS, sStg, 0, cls=self.dcls(sk))
        yield
        e.bload(keepreg(k, 1), vDma, WS, sStg, 1024, cls=self.dcls(sk))
        self.stage_mid = None
        yield

    def restore_gen(self, n):
        e = self.e
        while n > 0 and self.deferred:
            n -= 1
            g = self.deferred[0]
            k = self.staged[g]
            e.V("v_add_u32", vStg, self.ldsaddr(8 * g), vDma); yield
            old = 8 * g - RB
            clean = old + 8 <= self.last_scratch[0] or old >= self.last_scratch[1]
            if self.spares and self.opt.get("swap", 1) and clean and self.segof(8 * g) == "A":
                sp = self.spares.pop(0)
                e.ds_read(keepreg(sp, 0), vStg, 0); yield
                e.ds_read(keepreg(sp, 1), vStg, 1024); yield
                g2 = g - RB // 8 + self.segs[4][1] // 8
                assert self.segof(8 * g2) == "C"
                self.staged[g2] = sp
            e.ds_write(vStg, keepreg(k, 0), 0); yield
            self.dmaop[g] = e.ds_write(vStg, keepreg(k, 1), 1024)
            self.spares.append(k)
            self.deferred.pop(0)
            yield

    def restore(self, n):
        for _ in self.restore_gen(n):
            pass

    def finish_stage(self):
        while self.stage_mid:
            next(self.stage_mid)

    def stage_step(self):
        e = self.e
        if e.outstanding() >= self.opt.get("qmax", 13):
            return False
        if not self.stage_mid:
            if not self.stage_plan or self.can_issue() or self.mid_group():
                return False
            c = self.dcls("C")
            if e.predict(c) + c[2] > self.deadline():
                return False
            self.stage_mid = self.stage_group()
        next(self.stage_mid)
        return True

    def dcls(self, k):
        return (750, 80, self.opt.get("svcAB", 150)) if k in "AB" else (750, self.opt.get("svcOC", 92), 75)

    def dma_ok(self):
        e = self.e
        if self.mid_group():
            g = self.issued - 1
        elif self.can_issue():
            g = self.issued
        else:
            return False
        if g in self.staged:
            return True
        if e.outstanding() >= self.opt.get("qmax", 13):
            return False
        if self.mid_group() or 8 * g < self.own_end:
            return True
        c = self.dcls(self.segof(8 * g))
        return e.predict(c) + c[2] <= self.deadline()

    def dma_filler(self):
        while True:
            if self.can_issue():
                for _ in self.dma_group():
                    yield True
            else:
                yield False

    def flush_dma_partial(self):
        while self.issued > 0 and (self.issued - 1) not in self.dmaop:
            next(self.dmaf)

    def dma_all(self):
        self.flush_dma_partial()
        while self.can_issue():
            for _ in self.dma_group():
                pass

    def ring_barrier(self, need_idx, extra_ops=(), free_all=False):
        e = self.e
        need_idx = min(need_idx, len(self.seq))
        upto = self.endpos(need_idx - 1) if need_idx > 0 else 0
        g = (upto + 7) // 8
        self.flush_dma_partial()
        while self.issued < g:
            assert self.can_issue(), ("ring deadlock", self.issued, g, self.freed, self.hold)
            self.warn.append(f"forced dma group {self.issued} at seq {self.rd}")
            for _ in self.dma_group():
                pass
        ops = list(extra_ops)
        while self.deferred and self.deferred[0] < g:
            self.warn.append(f"forced restore {self.deferred[0]}")
            next(self.restg)
        for gg in range(self.visible // 8, g):
            assert gg not in self.deferred, gg
            ops.append(self.dmaop[gg])
        e.wait_ops(ops + self.cap_ops)
        self.cap_ops = []
        e.barrier()
        self.cap_hold = self.cap_next
        self.visible = max(self.visible, 8 * g)
        self.freed = self.seq[self.cons][0] if self.cons < len(self.seq) else self.total
        self.lastbar = self.rd

    def issue_read(self):
        e = self.e
        i = self.rd
        if i >= len(self.seq):
            return
        pos, k = self.seq[i]
        assert self.endpos(i) <= self.visible, ("read of invisible block", i, pos, self.visible)
        ad = self.ldsaddr(pos)
        base = (vW if k == "W" else vK)[ad >> 16]
        slot = i % FI
        e.ds_read(FIFO[4 * slot:4 * slot + 4], base, ad & 0xffff)
        self.rd += 1

    def prime(self):
        while self.rd < self.cons + FI and self.rd < len(self.seq) and self.endpos(self.rd) <= self.visible:
            self.issue_read()

    def run_pass(self, n, mf, ntile, xf, fillers=(), chunk=24, stop_reads=None, hooks=None,
                 aload=None, vrate=0.5, amix=(1, 0), over=0, force_bar=None, late=None, see_all=False, tail=2000, mix=0, must=None):
        e = self.e
        fillers = list(fillers)
        lim = stop_reads if stop_reads is not None else len(self.seq)
        st = {"next": 0, "k": 0, "t": 0}
        self.own_end = self.own_end_phase = self.endpos(lim - 1)
        self.deadline = lambda: e.T + (n - st["t"]) * 33 + tail

        i_first = self.cons

        def dma_need():
            g = self.issued - 1 if self.mid_group() else self.issued
            for i in range(self.cons, lim):
                if self.endpos(i) > 8 * g:
                    return i - i_first - FI - chunk
            return 1 << 20

        def one_vmem():
            na, nd = amix
            n0 = len(e.vm)
            if st.get("late"):
                if e.T < st["next"]:
                    return False
                try:
                    next(st["late"])
                except StopIteration:
                    st["late"] = None
                    return False
            else:
                na_ = (aload.n // 2) * ntile if (aload is not None and not aload.done) else 1 << 21
                nd_ = dma_need() if (self.mid_group() or self.can_issue()) else 1 << 22
                run = self.opt.get("run", 0)
                if run and na_ < 1 << 21 and nd_ < 1 << 20:
                    if st.get("cur") == "a" and na_ - run <= nd_:
                        nd_ = max(nd_, na_)
                    elif st.get("cur") == "d" and nd_ - run < na_:
                        na_ = max(na_, nd_ + 1)
                    st["cur"] = "a" if na_ <= nd_ else "d"
                urgent = min(na_, nd_) - st["t"] <= self.opt.get("horizon", 30) + run
                if e.T < st["next"] and not urgent:
                    return False
                if mix and na_ < 1 << 21 and st["k"] % mix == mix - 1 and na_ - st["t"] > self.opt.get("mixh", 10) and self.dma_ok():
                    next(self.dmaf)
                elif na_ <= nd_ and na_ < 1 << 21:
                    if e.outstanding() >= self.opt.get("qmax", 13) and not urgent:
                        return False
                    if aload.n // 2 >= st["t"] // ntile + aload.win - 1:
                        return False
                    aload.step()
                elif nd_ < 1 << 22 and (urgent or self.dma_ok()):
                    next(self.dmaf)
                elif not self.stage_step():
                    return False
            if len(e.vm) > n0:
                st["k"] += 1
                st["next"] = e.T + self.opt.get("vgap", 24)
            return True

        def fill(budget):
            while budget > 0:
                n0 = e.ninst
                did = one_vmem()
                if not did:
                    for f in list(fillers):
                        try:
                            if next(f) == "idle":
                                continue
                            did = True
                            break
                        except StopIteration:
                            fillers.remove(f)
                if not did:
                    return
                budget -= e.ninst - n0

        def waits_for(t):
            regs = []
            for tt in (t, t + 1):
                if tt < n:
                    ks = tt // ntile
                    if aload is not None:
                        aload.upto(ks)
                    idx = self.cons + (tt - t)
                    if idx < self.rd:
                        regs += FIFO[4 * (idx % FI):4 * (idx % FI) + 4].regs()
                    regs += xf(ks, 0).regs() + xf(ks, 1).regs()
            return e._pending(regs)

        e.wait_ops(waits_for(0))
        if aload is not None:
            self.stamp("1st")
            self.warn.append(f"fill {8 * self.issued - self.seq[self.cons][0]}")
        for t in range(n):
            if aload is not None and self.opt.get("midstamp") and t == n // 2:
                self.stamp("half")
            i = self.cons
            assert self.rd > i, ("fifo underrun", i)
            W = FIFO[4 * (i % FI):4 * (i % FI) + 4]
            st["t"] = t
            if must is not None and t == n - ntile - 2:
                for _ in must:
                    self.warn.append("must drained late")
            if t == int(n * self.opt.get("cfrac", 0.8)) and n > 30:
                fillers.insert(0, self.code_touch_gen())
            if hooks and hooks.get("add"):
                g_ = hooks["add"](t)
                if g_:
                    fillers.append(g_)
            ov = over if fillers else 0
            mf(t, W, 0)
            bar = self.rd < lim and (self.endpos(self.rd) > self.visible or self.rd - self.lastbar >= chunk)
            bar = bar or t == force_bar
            if late and t >= late[0] and not st.get("lateon") and (aload is None or aload.done) and 8 * self.issued >= min(self.own_end, self.endpos(min(i_first + n + FI, lim) - 1)) and not self.mid_group():
                st["late"] = late[1]
                st["lateon"] = True
                self.warn.append(f"late at {t}")
            if bar:
                ex, after = [], None
                if hooks and hooks.get("bar"):
                    ex, after = hooks["bar"](t)
                self.ring_barrier(lim if see_all else min(self.rd + chunk, lim), ex)
                if after:
                    after()
            else:
                fill(2 + ov)
            mf(t, W, 1)
            self.cons += 1
            used = 0
            if self.rd < lim:
                self.issue_read()
                used = 1
            pend = waits_for(t + 1) if (t % 2 == 1 and t + 1 < n) else []
            fill(2 + ov - used - (1 if pend else 0))
            if pend:
                e.wait_ops(waits_for(t + 1))
        if late and not st.get("lateon"):
            st["late"] = late[1]
        for f in fillers + ([st["late"]] if st.get("late") else []):
            if f is not self.capg:
                for _ in f:
                    pass

    def segof(self, pos):
        for k, b, n in self.segs:
            if b <= pos < b + n:
                return k
        return "O"

    def mid_group(self):
        return self.issued > 0 and (self.issued - 1) not in self.dmaop

    def dma_burst(self, maxgroups=99):
        e = self.e
        self.flush_dma_partial()
        gs = []
        while self.can_issue() and len(gs) < maxgroups:
            gs.append(self.issued)
            self.issued += 1
        for w in (1, 2, 3):
            mine = gs[w - 1::3]
            if not mine:
                continue
            skip = e.newlabel("noburst")
            e.S("s_cmp_lg_u32", sWave, w)
            e.branch("s_cbranch_scc1", skip)
            e.cond_begin()
            for g in mine:
                pos = 8 * g
                for k, b, n in self.segs:
                    if b <= pos < b + n:
                        break
                for h in range(2):
                    e.S("s_mov_b32", M0, self.ldsaddr(pos) + h * 4096)
                    e.S("s_add_u32", sDm, sSeg[k], (pos - b) * KB + h * 4096)
                    for q in range(4):
                        self.dmaop[g] = e.dma(vL16, WS, sDm, q * 1024)
            e.cond_end()
            e.label(skip)

    def prologue(self):
        e = self.e
        e.S("s_cmp_ge_u32", s(2), 256)
        e.branch("s_cbranch_scc1", "main_end")
        if self.opt.get("stamps"):
            e.V("v_mov_b32", v(53), 0)
        self.stamp("t0")
        if self.opt.get("spin"):
            e.memtime(sTm, True)
            e.V("v_mov_b32", v(53), sTm[0])
        e.sload(PP, s(0, 2), 0)
        e.sload(pOut, s(0, 2), 64)
        e.sload(pWs, s(0, 2), 80)
        T0, T1, T2, T3 = TMP[48], TMP[49], TMP[50], TMP[51]
        e.S("s_getpc_b64", s(88, 2))
        e.label("main_pc")
        e.V("v_lshlrev_b32", T2, 5, v(0))
        e.S("s_sub_u32", s(88), s(88), "main_pc-" + self.kname)
        e.S("s_subb_u32", s(89), s(89), 0)
        e.misc(f"global_load_dword {vDum}, {T2}, s[88:89]")
        e._vm([], (2000, 30, 0))
        e.V("v_lshrrev_b32", T0, 6, v(0))
        e.V("v_and_b32", vLane, 63, v(0))
        e.V("v_readfirstlane_b32", sWave, T0)
        e.S("s_lshr_b32", sB, s(2), 3)
        e.S("s_mul_i32", sB, sB, 1792)
        e.S("s_add_u32", sB, sB, 8192)
        e.V("v_lshl_add_u32", T2, v(0), 3, sB)
        e.V("v_min_u32", T2, self.opt.get("code_bytes", 32768) - 4, T2)
        e.misc(f"global_load_dword {vDum}, {T2}, s[88:89]")
        e._vm([], (2000, 30, 0))
        e.V("v_lshlrev_b32", vL16, 4, vLane)
        e.V("v_and_b32", vN, 15, vLane)
        e.V("v_lshrrev_b32", vG, 4, vLane)
        self.vBig = TMP[52]
        e.V("v_mov_b32", self.vBig, BIG)
        e.S("s_and_b32", sA, s(2), 7)
        e.S("s_lshl_b32", sA, sA, 1)
        e.S("s_lshr_b32", sB, s(2), 7)
        e.S("s_add_u32", sR, sA, sB)
        e.S("s_bfe_u32", sC, s(2), (4 << 16) | 3)

    def gather(self, raw, srd, sstride, vaddr, srow, n=8):
        e = self.e
        e.S("s_mul_i32", sLd, srow, sstride)
        for i in range(n):
            e.bload(raw[i], vaddr, srd, sLd, 0, w="ushort", cls=(2500, 32, 0))
            if i < n - 1:
                e.S("s_add_u32", sLd, sLd, sstride)

    def pack(self, raw, n=4):
        for i in range(n):
            self.e.V("v_lshl_or_b32", raw[i], raw[2 * i + 1], 16, raw[2 * i])

    def colsum(self, regs, ex, vs, vt):
        e = self.e
        e.V("v_mov_b32", vs, 0)
        for r_ in regs:
            e.V("v_dot2c_f32_bf16", vs, r_, vOne)
        allreduce_g(e, vs, vt)
        e.V("v_sub_f32", vs, 0, vs)
        e.V("v_cvt_pk_bf16_f32", vt, vs, vs)
        e.V("v_lshlrev_b32", vt, 16, vt)
        e.V("v_sub_f32", vt, vs, vt)
        e.V("v_cvt_pk_bf16_f32", ex[0], vs, vt)
        e.V("v_and_b32", ex[1], "0xffff", ex[0])

    def startup(self):
        e = self.e
        vBig = self.vBig
        RAW1, EX = ACC[0:20], ACC[20:24]
        RAW2 = TMP[8:40]
        vCol, vReg, vLeft, vT0, vT1, vSum, vLd = [FIFO[i] for i in range(7)]
        vA0, vA1, vA2, vSt2, vBias = RES[8], RES[9], B2F[8], B2F[9], TMP[50]
        sT, sP = s(54), s(55)
        sStr = s(56)
        XJ = [RES[0:4], RES[4:8], B2F[0:4]]
        XD, XA, XB_ = B2F[4], ACC[32], ACC[33]
        XM = [s(57), s(58), s(59)]
        T0, T1, T2, T3 = TMP[48], TMP[49], TMP[50], TMP[51]
        e.V("v_lshrrev_b32", T1, 3, vLane)
        e.V("v_and_b32", T3, 7, vLane)
        e.V("v_mul_u32_u24", T0, 1280, T3)
        e.V("v_lshl_add_u32", XA, T1, 4, T0)
        e.V("v_lshrrev_b32", T2, 4, vLane)
        e.V("v_lshl_add_u32", XB_, T2, 7, XA)
        e.V("v_lshlrev_b32", XD, 8, T1)
        e.V("v_lshl_add_u32", XD, T3, 4, XD)
        e.S("s_lshl_b32", sE, sR, 4)
        e.S("s_add_u32", sE, sE, sC)
        e.S("s_mul_i32", sE, sE, 8 * 1280)
        e.S("s_mul_i32", sD, sWave, 3)
        mk_srd(e, XIN, PP[0:2], XSZ)
        for k in range(3):
            e.S("s_add_u32", XM[k], sD, k)
            e.S("s_cmp_ge_u32", XM[k], 8)
            e.S("s_cselect_b64", VCC, -1, 0)
            e.S("s_cselect_b32", sA, 40, 10)
            e.S("s_cselect_b32", sB, 8 - 8 * 40, 0)
            e.V("v_cndmask_b32", T0 if k != 1 else T1, XA, XB_, VCC)
            e.S("s_mul_i32", sA, sA, XM[k])
            e.S("s_add_u32", sA, sA, sB)
            e.S("s_lshl_b32", sA, sA, 4)
            e.S("s_add_u32", sA, sA, sE)
            e.S("s_cmp_ge_u32", XM[k], 10)
            e.S("s_cselect_b32", sA, BIG, sA)
            e.S("s_cselect_b32", XM[k], BIG // 2048, XM[k])
            e.bload(XJ[k], T0 if k != 1 else T1, XIN, sA, 0, cls=(2000, 100, 0))
        self.stamp("issx")
        e.S("s_lshr_b32", sP, sR, 1)
        e.S("s_and_b32", sT, sR, 1)
        e.S("s_lshl_b32", sT, sT, 2)
        e.S("s_add_u32", sT, sT, sWave)
        e.S("s_mov_b32", s(4), (656 << 20) | (660 << 10) | 640)
        e.S("s_mov_b32", s(5), 0)
        e.S("s_mul_i32", sA, sT, 10)
        e.S("s_lshr_b32", sA, s(4), sA)
        e.S("s_and_b32", sA, sA, 1023)
        for t, val in ((3, 1280), (4, 1300), (5, 0), (6, 1), (7, 32)):
            e.S("s_cmp_eq_u32", sT, t)
            e.S("s_cselect_b32", sA, val, sA)
        e.S("s_mul_i32", sB, sC, 40)
        e.S("s_add_u32", sA, sA, sB)
        e.V("v_add_u32", vCol, sA, vN)
        e.V("v_add_u32", vT0, vCol, vN)
        e.S("s_sub_u32", sB, sT, 5)
        e.S("s_cmp_lt_u32", sB, 2)
        e.S("s_cselect_b64", VCC, -1, 0)
        e.V("v_cndmask_b32", vCol, vCol, vT0, VCC)
        e.V("v_lshrrev_b32", vT0, 3, vN)
        e.V("v_mul_u32_u24", vT0, 632 - 32, vT0)
        e.V("v_lshrrev_b32", vT1, 2, vN)
        e.V("v_lshl_add_u32", vT0, vT1, 4, vT0)
        e.V("v_add3_u32", vT0, vT0, vN, sA)
        e.S("s_cmp_eq_u32", sT, 2)
        e.S("s_cselect_b64", VCC, -1, 0)
        e.V("v_cndmask_b32", vCol, vCol, vT0, VCC)
        e.V("v_lshlrev_b32", vCol, 1, vCol)
        e.S("s_cmp_eq_u32", sT, 7)
        e.S("s_cselect_b32", sB, 8, 16)
        e.V("v_cmp_le_u32", VCC, sB, vN)
        e.S("s_mov_b32", sStr, 3840)
        e.V("v_cndmask_b32", vCol, vCol, vBig, VCC)
        e.S("s_mov_b32", sD, 8 * 3840)
        e.V("v_mad_u32_u24", vReg, vG, sD, vCol)
        e.V("v_and_b32", vT0, 1, vG)
        e.V("v_lshrrev_b32", vT1, 1, vG)
        e.V("v_lshl_add_u32", vLd, vT0, 1, vT1)
        e.S("s_mov_b32", sD, 4 * 3840)
        e.V("v_mad_u32_u24", vLeft, vLd, sD, vCol)
        mk_srd(e, SR1, PP[2:4], D * 3 * D * 2)
        e.S("s_mul_i32", sB, sP, 80)
        self.gather(RAW1[0:8], SR1, sStr, vReg, sB)
        e.S("s_add_u32", sA, sB, 32)
        self.gather(RAW1[8:16], SR1, sStr, vReg, sA)
        e.S("s_add_u32", sA, sB, 64)
        self.gather(RAW1[16:20], SR1, sStr, vLeft, sA, 4)
        self.stamp("iss1")
        def r2touch():
            e.S("s_lshl_b32", sA, s(2), 2)
            e.S("s_add_u32", sA, sA, sWave)
            e.V("v_min_u32", T0, 17, vLane)
            e.V("v_lshlrev_b32", T0, 7, T0)
            e.S("s_mul_i32", sB, sA, 2160)
            mk_srd(e, SR2, PP[8:10], F * D * 2)
            e.touch(vDum, T0, SR2, sB, 0, cls=(2000, 30, 0))
            mk_srd(e, SR2, PP[12:14], F * D * 2)
            e.touch(vDum, T0, SR2, sB, 0, cls=(2000, 30, 0))
            e.V("v_min_u32", T0, 7 * 128, T0)
            mk_srd(e, SR2, PP[4:6], D * D * 2)
            e.S("s_mul_i32", sB, sA, 800)
            e.touch(vDum, T0, SR2, sB, 0, cls=(2000, 30, 0))
        if self.opt.get("r2touch", 3) == 1:
            r2touch()
        if self.opt.get("wsoff"):
            e.S("s_add_u32", pWs[0], pWs[0], self.opt["wsoff"] << 20)
            e.S("s_addc_u32", pWs[1], pWs[1], 0)
        mk_srd(e, WS, pWs, WS_USED)
        e.sload(sBase, pWs, EPOCH)
        e.S("s_mov_b32", sA, "0x3f803f80")
        e.V("v_mov_b32", vOne, sA)
        ops1 = []
        e.S("s_lshr_b32", sA, sC, 1)
        e.S("s_lshl_b32", sB, sR, 3)
        e.S("s_add_u32", sA, sA, sB)
        e.S("s_mul_i32", sA, sA, 20 * KB)
        e.S("s_and_b32", sB, sC, 1)
        e.S("s_lshl_b32", sB, sB, 7)
        e.S("s_add_u32", sA, sA, sB)
        e.S("s_add_u32", sA, sA, XB[0])
        for k in range(3):
            e.S("s_lshl_b32", sB, XM[k], 11)
            e.S("s_add_u32", sB, sB, sA)
            ops1.append(e.bstore(XJ[k], XD, WS, sB, 0, "sc1", cls=(1000, 70, 0)))
        xs = ACC[26:28]
        xz = ACC[24:26]
        MK = ACC[28:32]
        for r_ in (xs[0], xs[1], xz[0], xz[1]):
            e.V("v_mov_b32", r_, 0)
        for k in range(3):
            for i in range(4):
                e.V("v_dot2c_f32_bf16", xs[0], XJ[k][i], vOne)
                e.V("v_dot2c_f32_bf16", xs[1], XJ[k][i], XJ[k][i])
        for h in range(2):
            e.V("v_add_f32_dpp", xs[h], xs[h], xs[h], mods="row_ror:8 row_mask:0xf bank_mask:0xf")
            allreduce_g(e, xs[h], vT0)
        e.S("s_lshl_b32", sA, sR, 3)
        e.S("s_add_u32", sA, sA, sWave)
        e.S("s_lshl_b32", sA, sA, 10)
        e.S("s_lshl_b32", sB, sC, 6)
        e.S("s_add_u32", sA, sA, sB)
        e.S("s_add_u32", sA, sA, STB[0])
        e.S("s_add_u32", sB, sA, 4096)
        e.V("v_lshlrev_b32", vT0, 3, vLane)
        e.S("s_mov_b64", EXEC, "0xff")
        ops1.append(e.bstore(xs, vT0, WS, sA, 0, "sc1", cls=(1000, 20, 0)))
        ops1.append(e.bstore(xz, vT0, WS, sB, 0, "sc1", cls=(1000, 20, 0)))
        e.S("s_mov_b64", EXEC, -1)
        self.stamp("xst")
        e.S("s_cmp_lt_u32", sT, 5)
        e.S("s_cselect_b32", sE, 5, 3)
        e.S("s_cselect_b32", sA, 0, 100)
        e.S("s_add_u32", sA, sA, sT)
        e.S("s_mul_i32", sB, sC, NA)
        e.S("s_add_u32", sA, sA, sB)
        e.S("s_add_u32", sA, sA, WA // KB)
        e.S("s_lshl_b32", sA, sA, 10)
        e.S("s_lshl_b32", sE, sE, 10)
        e.S("s_mul_i32", sB, sP, sE)
        e.S("s_lshl_b32", sB, sB, 1)
        e.S("s_add_u32", sB, sB, sA)
        self.pack(RAW1[0:8])
        ops1.append(e.bstore(RAW1[0:4], vL16, WS, sB, 0, "sc1", cls=(1000, 70, 0)))
        e.S("s_add_u32", sB, sB, sE)
        self.pack(RAW1[8:16])
        ops1.append(e.bstore(RAW1[8:12], vL16, WS, sB, 0, "sc1", cls=(1000, 70, 0)))
        e.S("s_lshr_b32", sB, sP, 1)
        e.S("s_add_u32", sB, sB, 16)
        e.S("s_mul_i32", sB, sB, sE)
        e.S("s_add_u32", sB, sB, sA)
        e.S("s_and_b32", sD, sP, 1)
        e.S("s_lshl_b32", s(4), sD, 9)
        e.S("s_add_u32", sB, sB, s(4))
        e.V("v_lshlrev_b32", vT0, 8, vG)
        e.V("v_and_b32", vT0, 256, vT0)
        e.V("v_lshl_add_u32", vT0, vN, 4, vT0)
        e.V("v_lshrrev_b32", vT1, 1, vG)
        e.V("v_lshl_add_u32", vLd, vT1, 3, vT0)
        self.pack(RAW1[16:20], 2)
        ops1.append(e.bstore(RAW1[16:18], vLd, WS, sB, 0, "sc1", cls=(1000, 40, 0)))
        self.colsum([RAW1[i] for i in (0, 1, 2, 3, 8, 9, 10, 11, 16, 17)], EX, vSum, vT0)
        e.S("s_mul_i32", sB, sE, 20)
        e.S("s_add_u32", sB, sB, sA)
        e.S("s_lshr_b32", sA, sP, 1)
        e.S("s_lshl_b32", sA, sA, 8)
        e.S("s_add_u32", sB, sB, sA)
        e.S("s_lshl_b32", sD, sD, 3)
        e.S("s_add_u32", sB, sB, sD)
        e.S("s_mov_b64", EXEC, "0xffff")
        ops1.append(e.bstore(EX[0:2], vL16, WS, sB, 0, "sc1", cls=(1000, 20, 0)))
        e.S("s_mov_b64", EXEC, -1)
        self.stamp("r1")
        if self.opt.get("r2touch", 3) == 2:
            r2touch()
        for i in range(4):
            e.V("v_mov_b32", MK[i], -1)
        e.S("s_lshl_b32", sA, sC, 4)
        e.S("s_add_u32", sA, sA, sR)
        e.S("s_mul_i32", sA, sA, KVSZ)
        e.S("s_mul_i32", sB, sWave, KVSZ // 4)
        e.S("s_add_u32", sA, sA, sB)
        e.S("s_add_u32", sA, sA, KVB[0])
        e.S("s_mov_b64", EXEC, "0xfffffff")
        ops1.append(e.bstore(MK, vL16, WS, sA, 0, "sc1", cls=(1000, 40, 0)))
        e.S("s_mov_b64", EXEC, -1)
        self.stamp("xjob")
        e.S("s_and_b32", sCG, sC, 7)
        e.S("s_lshr_b32", sRH, sC, 3)
        if self.opt.get("r2touch", 3) == 3:
            r2touch()
        mk_srd(e, SB2, PP[14:16], D * 2)
        self.prologue2()
        self.stamp("pro2")
        sU, sP, sStr, sJ = s(88), s(89), s(100), s(101)
        rows = [s(3 + i) for i in range(4)]
        D2 = [s(64), s(65), s(66), s(67)]
        sDB, sDX = s(70), s(71)
        vSel0, vSel1 = vA1, vA2
        mk_srd(e, SR1, PP[10:12], F * 2)
        e.S("s_lshl_b32", sJ, sRH, 4)
        e.S("s_add_u32", sJ, sJ, sR)
        e.S("s_lshl_b32", sJ, sJ, 2)
        e.S("s_add_u32", sJ, sJ, sWave)
        e.V("v_lshrrev_b32", vT0, 1, vG)
        e.V("v_and_b32", vT1, 1, vG)
        e.V("v_mov_b32", vSt2, vL16)
        e.S("s_mov_b32", sDX, BIG)
        lo, lc, lj = e.newlabel("job_wo"), e.newlabel("job_w2"), e.newlabel("job_go")

        def unit(sbase, nu, stride, ca, cb, nreg, dB):
            e.S("s_lshl_b32", sA, sU, 5)
            e.S("s_add_u32", sA, sA, sbase)
            e.S("s_lshl_b32", sA, sA, 1)
            e.S("s_mov_b32", sDB, dB)
            e.S("s_cmp_lt_u32", sU, nu)
            e.S("s_cselect_b64", VCC, -1, 0)
            e.S("s_cselect_b32", sDB, sDB, BIG)
            e.V("v_lshlrev_b32", vCol, 2, vN)
            e.V("v_and_b32", vReg, 14, vN)
            e.V("v_lshlrev_b32", vReg, 1, vReg)
            e.V("v_cndmask_b32", vCol, vReg, vCol, VCC)
            e.V("v_add_u32", vCol, sA, vCol)
            e.V("v_and_b32", vReg, 1, vN)
            e.V("v_cndmask_b32", vReg, vReg, 0, VCC)
            e.S("s_mov_b32", sA, "0x02020202")
            e.V("v_mul_lo_u32", vReg, vReg, sA)
            e.V("v_add_u32", vSel0, "0x05040100", vReg)
            e.S("s_mov_b32", sStr, stride)
            e.S("s_mov_b32", sD, 8 * stride)
            e.V("v_mul_u32_u24", vReg, sD, vG)
            e.S("s_mov_b32", sD, ca * stride)
            e.V("v_mul_u32_u24", vLeft, sD, vT0)
            e.S("s_mov_b32", sD, cb * stride)
            e.V("v_mad_u32_u24", vLeft, vT1, sD, vLeft)
            e.S("s_cmp_lt_u32", sP, nreg)
            e.S("s_cselect_b64", VCC, -1, 0)
            e.V("v_cndmask_b32", vA0, vLeft, vReg, VCC)

        def split_dests(half):
            for b in range(4):
                e.S("s_lshl_b32", sA, sP, 2)
                e.S("s_add_u32", sA, sA, b)
                e.S("s_mul_i32", sD, sA, 10)
                e.S("s_cmp_ge_u32", sA, half)
                e.S("s_cselect_b32", sB, 10 * half - 1, 0)
                e.S("s_sub_u32", sD, sD, sB)
                e.S("s_add_u32", sD, sD, sE)
                e.S("s_lshl_b32", D2[b], sD, 10)
                if half == 27 and b >= 2:
                    e.S("s_cmp_ge_u32", sA, 54)
                    e.S("s_cselect_b32", D2[b], BIG, D2[b])

        def div3(dq, dr, src):
            e.S("s_mul_i32", dq, src, 43691)
            e.S("s_lshr_b32", dq, dq, 17)
            e.S("s_mul_i32", sA, dq, 3)
            e.S("s_sub_u32", dr, src, sA)

        e.S("s_cmp_ge_u32", sJ, 55)
        e.branch("s_cbranch_scc1", lc)
        e.S("s_cmp_ge_u32", sJ, 40)
        e.branch("s_cbranch_scc1", lo)
        e.cond_begin()
        mk_srd(e, SR2, PP[8:10], D * F * 2)
        e.S("s_and_b32", sU, sJ, 3)
        e.S("s_lshr_b32", sP, sJ, 2)
        e.S("s_cmp_ge_u32", sP, 5)
        e.S("s_cselect_b32", sA, 5, 0)
        e.S("s_cselect_b32", sJ, 8, 0)
        e.S("s_sub_u32", sP, sP, sA)
        e.S("s_add_u32", sJ, sJ, sCG)
        e.S("s_mul_i32", sE, sJ, 112)
        e.S("s_max_u32", sB, sJ, 12)
        e.S("s_sub_u32", sB, sB, 12)
        e.S("s_lshl_b32", sB, sB, 4)
        e.S("s_sub_u32", sE, sE, sB)
        unit(sE, 3, 3456, 80, 8, 4, 1024)
        e.S("s_lshl_b32", sA, sU, 4)
        e.S("s_add_u32", sA, sA, sJ)
        e.S("s_cmp_ge_u32", sA, 3 * 16 + 12)
        e.S("s_cselect_b64", VCC, -1, 0)
        e.V("v_cndmask_b32", vCol, vCol, vBig, VCC)
        for b in range(4):
            e.S("s_mul_i32", sA, sP, 160)
            e.S("s_add_u32", sA, sA, 80 * (b >> 1) + 32 * (b & 1))
            e.S("s_cmp_eq_u32", sP, 4)
            e.S("s_cselect_b32", rows[b], 160 * b + 64, sA)
        e.S("s_cmp_lt_u32", sU, B1N // 2)
        e.S("s_cselect_b32", s(79), B1N, 7 - B1N)
        e.S("s_cselect_b32", sE, 0, 20 * B1N)
        e.S("s_lshl_b32", sA, sU, 1)
        e.S("s_add_u32", sE, sE, sA)
        e.S("s_mul_i32", sB, sJ, NB)
        e.S("s_add_u32", sE, sE, sB)
        e.S("s_add_u32", sE, sE, WB // KB)
        for b in range(4):
            e.S("s_lshl_b32", sA, sP, 2)
            e.S("s_add_u32", sA, sA, b)
            e.S("s_mul_i32", sA, sA, s(79))
            e.S("s_add_u32", sA, sA, sE)
            e.S("s_lshl_b32", D2[b], sA, 10)
        e.S("s_mul_i32", sD, s(79), 20)
        e.S("s_add_u32", sD, sD, sE)
        e.S("s_lshl_b32", sDX, sD, 10)
        e.branch("s_branch", lj)
        e.cond_end()
        e.label(lo)
        e.cond_begin()
        mk_srd(e, SR2, PP[4:6], D * D * 2)
        e.S("s_sub_u32", sJ, sJ, 40)
        div3(sP, sU, sJ)
        e.S("s_mul_i32", sE, sCG, 80)
        unit(sE, 2, 1280, 80, 40, 4, 2048)
        for b in range(4):
            e.S("s_mul_i32", sA, sP, 160)
            e.S("s_add_u32", sA, sA, 40 * b)
            e.S("s_cmp_eq_u32", sP, 4)
            e.S("s_cselect_b32", rows[b], 160 * b + 32, sA)
        e.S("s_mul_i32", sE, sCG, NO)
        e.S("s_add_u32", sE, sE, WO // KB)
        e.S("s_lshl_b32", sA, sU, 2)
        e.S("s_add_u32", sE, sE, sA)
        split_dests(10)
        e.branch("s_branch", lj)
        e.cond_end()
        e.label(lc)
        e.cond_begin()
        mk_srd(e, SR2, PP[12:14], F * D * 2)
        e.S("s_sub_u32", sJ, sJ, 55)
        div3(sP, sU, sJ)
        e.S("s_mul_i32", sE, sCG, 80)
        unit(sE, 2, 1280, 112, 8, 12, 2048)
        e.S("s_cmp_ge_u32", sP, 14)
        e.S("s_cselect_b64", VCC, -1, 0)
        e.V("v_cndmask_b32", vCol, vCol, vBig, VCC)
        e.V("v_cndmask_b32", vSt2, vSt2, vBig, VCC)
        e.S("s_min_u32", sP, sP, 13)
        for b in range(4):
            e.S("s_lshl_b32", sD, sP, 2)
            e.S("s_add_u32", sD, sD, b)
            e.S("s_mul_i32", sA, sD, 43691)
            e.S("s_lshr_b32", sA, sA, 17)
            e.S("s_lshl_b32", sA, sA, 4)
            e.S("s_min_u32", sA, sA, 192)
            e.S("s_lshl_b32", sB, sD, 5)
            e.S("s_add_u32", sA, sA, sB)
            e.S("s_mul_i32", sB, sD, 224)
            e.S("s_sub_u32", sB, sB, 224 * 48 - 96)
            e.S("s_cmp_ge_u32", sD, 48)
            e.S("s_cselect_b32", rows[b], sB, sA)
        e.S("s_mul_i32", sE, sCG, NC)
        e.S("s_add_u32", sE, sE, WC // KB)
        e.S("s_lshl_b32", sA, sU, 2)
        e.S("s_add_u32", sE, sE, sA)
        split_dests(27)
        e.cond_end()
        e.label(lj)
        e.V("v_add_u32", vA0, vA0, vCol)
        e.S("s_cmp_lt_u32", sP, 2)
        e.S("s_cselect_b64", VCC, -1, 0)
        e.V("v_cndmask_b32", vBias, vBig, vCol, VCC)
        e.V("v_mov_b32", vSel1, "0x07060302")
        e.V("v_add_u32", vT0, sP, vG)
        e.V("v_lshrrev_b32", vT1, 1, vT0)
        e.V("v_lshlrev_b32", vLd, 4, vN)
        e.V("v_lshl_add_u32", vLd, vT1, 8, vLd)
        e.V("v_and_b32", vT0, 1, vT0)
        e.V("v_lshl_add_u32", vLd, vT0, 3, vLd)
        e.S("s_cmp_eq_u32", sP, 4)
        e.S("s_cselect_b32", sA, 4, 1)
        e.V("v_cmp_gt_u32", VCC, sA, vG)
        e.V("v_cndmask_b32", vLd, vBig, vLd, VCC)
        e.S("s_lshl_b32", sA, sC, 4)
        e.S("s_add_u32", sA, sA, sR)
        e.S("s_mul_i32", sA, sA, KVSZ)
        e.S("s_mul_i32", sB, sWave, KVSZ // 4)
        e.S("s_add_u32", sA, sA, sB)
        e.S("s_add_u32", s(79), sA, KVB[1])
        self.stamp("dec2")
        e.wait_ops(ops1)
        e.barrier()
        self.flag("both", 1)
        self.stamp("w1flag")
        self.ops2 = []

        def r2_loads():
            for b in range(4):
                e.S("s_mul_i32", sE, rows[b], sStr); yield
                for i in range(8):
                    e.bload(RAW2[8 * b + i], vA0, SR2, sE, 0, cls=(1500, 32, 0)); yield
                    if i < 7:
                        e.S("s_add_u32", sE, sE, sStr); yield
            e.bload(vBias, vBias, SR1, 0, 0, cls=(1500, 10, 0)); yield

        vs, vt, MK = TMP[48], TMP[49], TMP[40:44]
        EV = ACC[40:56]

        def r2_pack():
            for b in range(4):
                raw = RAW2[8 * b:8 * b + 8]
                for i in range(4):
                    e.V("v_perm_b32", EV[4 * b + i], raw[2 * i + 1], raw[2 * i], vSel0)
                for i in range(4):
                    e.V("v_perm_b32", raw[i], raw[2 * i + 1], raw[2 * i], vSel1)
            for i in range(4):
                e.V("v_mov_b32", MK[i], -1)
            e.V("v_cmp_eq_u32", sNan, 0, vG)
            for h in range(2):
                ex = TMP[44 + 2 * h:46 + 2 * h]
                self.colsum([EV[i] for i in range(16)] if h == 0 else [RAW2[8 * b + i] for b in range(4) for i in range(4)], ex, vs, vt)
                e.V("v_perm_b32", vt, vBias, vBias, vSel0 if h == 0 else vSel1)
                e.V("v_and_b32", vt, "0xffff0000", vt)
                e.V("v_or_b32", ex[1], ex[1], vt)
                e.V("v_cndmask_b32", ex[0], 0, ex[0], sNan)
                e.V("v_cndmask_b32", ex[1], 0, ex[1], sNan)
            e.V("v_mov_b32", vSel0, vLd)
            yield

        def r2_stores():
            for b in range(4):
                self.ops2.append(e.bstore(EV[4 * b:4 * b + 4], vSt2, WS, D2[b], 0, "sc1", cls=(1000, 70, 0)))
                e.S("s_add_u32", sA, D2[b], sDB)
                self.ops2.append(e.bstore(RAW2[8 * b:8 * b + 4], vSt2, WS, sA, 0, "sc1", cls=(1000, 70, 0)))
            e.S("s_mov_b64", EXEC, "0xfffffff")
            self.ops2.append(e.bstore(MK, vL16, WS, s(79), 0, "sc1", cls=(1000, 40, 0)))
            e.S("s_mov_b64", EXEC, -1)
            for h in range(2):
                if h:
                    e.S("s_add_u32", sDX, sDX, sDB)
                self.ops2.append(e.bstore(TMP[44 + 2 * h:46 + 2 * h], vSel0, WS, sDX, 0, "sc1", cls=(1000, 20, 0)))
        self.r2_stores = r2_stores
        self.r2_loads, self.r2_pack = r2_loads(), r2_pack()
        for _ in self.r2_loads:
            pass
        self.stamp("iss2")
        for _ in self.r2_pack:
            pass
        self.al0 = None
        if self.opt.get("early_a", 0):
            self.poll("row", 1)
            e.barrier()
        if self.opt.get("r2st", 2) == 2:
            r2_stores()
            self.late_loads()
        self.stamp("r2")
        if self.opt.get("early_a", 0):
            self.stats_loads(0)
            self.al0 = self.ALoad(self, vAx, (sXr, XB[0]), 20)
            self.al0.upto(19)
        self.poll("col" if self.al0 else "both", 1)
        e.barrier()
        self.stamp("w1go")

    def w2_gen(self):
        e = self.e
        t = RES[0]
        e.V("v_bfe_u32", t, vLane, 4, 1); yield
        e.V("v_lshl_add_u32", t, t, 11, vFl); yield
        e.S("s_lshl_b32", s(4), sCG, 8); yield
        e.S("s_add_u32", s(4), s(4), FLG_C); yield
        e.bload(RES[1], t, WS, s(4), 0, "sc1", cls=(900, 10, 0)); yield
        for _ in range(self.opt.get("w2wait", 50)):
            yield "idle"
        e.S("s_add_u32", s(5), sBase, 2); yield
        lok, lre = e.newlabel("w2ok"), e.newlabel("w2retry")
        e.V("v_cmp_ne_u32", VCC, s(5), RES[1])
        e.S("s_cmp_eq_u64", VCC, 0)
        e.branch("s_cbranch_scc1", lok)
        e.cond_begin()
        e.S("s_mov_b32", sCnt, 0)
        e.label(lre)
        e.misc("s_sleep 4")
        e.bload(RES[1], t, WS, s(4), 0, "sc1")
        e.V("v_cmp_ne_u32", VCC, s(5), RES[1])
        e.S("s_cmp_eq_u64", VCC, 0)
        e.branch("s_cbranch_scc1", lok)
        e.S("s_add_u32", sCnt, sCnt, 1)
        e.S("s_cmp_lt_u32", sCnt, 0x20000)
        e.branch("s_cbranch_scc1", lre)
        e.cond_end()
        e.label(lok)
        self.gate = 1 << 20
        yield

    def prologue2(self):
        e = self.e
        T0, T1, T2, T3, T4, T5 = [TMP[40 + i] for i in range(6)]
        mk_srd(e, OUT, pOut, XSZ)
        e.S("s_and_b32", sKH, sWave, 1)
        e.S("s_lshl_b32", sW2048, sWave, 11)
        e.S("s_mul_i32", sA, sC, NA * KB)
        e.S("s_add_u32", sSeg["A"], sA, WA)
        e.S("s_mul_i32", sA, sCG, NO * KB)
        e.S("s_add_u32", sSeg["O"], sA, WO)
        e.S("s_mul_i32", sA, sC, NB * KB)
        e.S("s_add_u32", sSeg["B"], sA, WB)
        e.S("s_mul_i32", sA, sCG, NC * KB)
        e.S("s_add_u32", sSeg["C"], sA, WC)
        e.V("v_add_u32", vDma, sW2048, vL16)
        e.S("s_mul_i32", sXr, sR, 160 * KB)
        e.S("s_mul_i32", sHr, sR, 432 * KB)
        e.S("s_lshl_b32", sSTr, sR, 13)
        e.S("s_mul_i32", sA, sWave, 40 * KB)
        e.V("v_add_u32", vAx[0], sA, vL16)
        e.V("v_add_u32", vAx[1], 20 * KB, vAx[0])
        e.V("v_lshlrev_b32", T0, 11, vG)
        e.V("v_lshl_add_u32", T0, vN, 3, T0)
        e.S("s_lshl_b32", sA, sWave, 8)
        e.V("v_add_u32", vSt, sA, T0)
        e.S("s_mov_b32", self.cInvD, lit(1.0 / D))
        for j in range(3):
            if j == 0:
                e.V("v_mov_b32", vW[0], vL16)
            else:
                e.V("v_add_u32", vW[j], j * 65536, vL16)
        e.S("s_lshl_b32", sA, sKH, 10)
        for j in range(3):
            e.V("v_add_u32", vK[j], sA, vW[j])
        e.V("v_lshlrev_b32", T4, 4, v(0))
        Z = TMP[44:48]
        Z = TMP[48:52]
        for j in range(4):
            e.V("v_mov_b32", Z[j], 0)
        e.ds_write(T4, Z, 0)
        e.ds_write(T4, Z, 4096)
        e.S("s_lshl_b32", sTT, sRH, 2)
        e.S("s_add_u32", sTT, sTT, sWave)
        e.S("s_xor_b32", sB, sTT, 1)
        for u, st in ((0, sTT), (1, sB)):
            e.S("s_mul_i32", sA, st, 20 * KB)
            e.S("s_mul_i32", sD, sKH, 10 * KB)
            e.S("s_add_u32", sA, sA, sD)
            e.V("v_add_u32", vAo[u], sA, vL16)
            e.S("s_mul_i32", sA, st, 54 * KB)
            e.S("s_mul_i32", sD, sKH, 27 * KB)
            e.S("s_add_u32", sA, sA, sD)
            e.V("v_add_u32", vAh[u], sA, vL16)
        e.V("v_lshrrev_b32", T0, 1, vG)
        e.V("v_and_b32", T1, 1, vG)
        e.V("v_lshlrev_b32", T2, 4, vN)
        e.V("v_lshl_add_u32", T3, T0, 8, T2)
        e.V("v_lshl_add_u32", T3, T1, 3, T3)
        e.S("s_mul_i32", sA, sTT, 20 * KB)
        e.V("v_add_u32", vXs, sA, vL16)
        e.V("v_add_u32", vXh, sA, T3)
        e.S("s_mul_i32", sA, sWave, 108 * KB)
        e.V("v_add_u32", vHs, sA, vL16)
        e.S("s_cmp_ge_u32", sC, 12)
        e.S("s_cselect_b32", sA, BIG, sA)
        e.V("v_add_u32", vHh, sA, T3)
        e.S("s_mul_i32", sA, sWave, 40 * KB)
        e.V("v_lshl_add_u32", T3, vG, 3, T2)
        e.V("v_add_u32", vOh, sA, T3)
        e.V("v_cmp_gt_u32", VCC, 2, vG)
        e.V("v_mov_b32", T3, BIG)
        e.V("v_cndmask_b32", vOh, T3, vOh, VCC)
        e.S("s_lshl_b32", sA, sTT, 7)
        e.V("v_lshl_add_u32", T3, vN, 3, sA)
        e.V("v_lshl_add_u32", vStW, T0, 2, T3)
        e.S("s_lshl_b32", sA, sWave, 7)
        e.S("s_add_u32", sA, sA, RST)
        e.V("v_lshl_add_u32", vRT, vG, 4, sA)
        e.V("v_lshl_add_u32", vRW, vN, 2, sA)
        e.S("s_lshl_b32", sA, sTT, 6)
        e.S("s_add_u32", sA, sA, RST)
        e.V("v_lshl_add_u32", vRF, vN, 2, sA)
        e.V("v_lshlrev_b32", T3, 4, vG)
        e.V("v_add_u32", vZ2, ZT + 128, T3)
        e.V("v_cmp_gt_u32", VCC, 10, vN)
        e.V("v_add_u32", T3, ZT, T3)
        e.V("v_cndmask_b32", vZ01, vZ2, T3, VCC)
        e.S("s_lshl_b32", sA, sR, 3)
        e.S("s_add_u32", sA, sA, sTT)
        e.S("s_mul_i32", sA, sA, 16 * 1280)
        e.S("s_mul_i32", sB, sCG, 160)
        e.S("s_add_u32", sA, sA, sB)
        e.V("v_mul_u32_u24", T3, 1280, vN)
        e.V("v_add_u32", T3, sA, T3)
        e.V("v_lshl_add_u32", vOut, vG, 4, T3)
        e.V("v_lshl_add_u32", vOut4, vG, 3, T3)
        e.S("s_mul_i32", sA, sWave, 5120)
        e.V("v_add_u32", vXch, sA, vL16)
        e.V("v_lshlrev_b32", vFl, 2, vN)
        e.V("v_mov_b32", vLn2[0], lit(LN2))
        e.V("v_mov_b32", vEps[0], lit(1e-6))
        e.S("s_mov_b32", sMaskV[0], "0x00ff00ff")
        e.S("s_mov_b32", sMaskV[1], "0x00ff00ff")
        e.S("s_lshl_b32", sA, sR, 8)
        e.S("s_add_u32", sFRL, sA, FLG_RL)
        e.S("s_add_u32", sFRG, sA, FLG_RG)
        e.S("s_lshl_b32", sA, sC, 8)
        e.S("s_add_u32", sFC, sA, FLG_C)
        e.S("s_lshl_b32", sA, sCG, 11)
        e.S("s_add_u32", sOx, sXr, sA)
        e.S("s_lshr_b32", sA, sCG, 1)
        e.S("s_lshl_b32", sA, sA, 10)
        e.S("s_and_b32", sB, sCG, 1)
        e.S("s_lshl_b32", sB, sB, 9)
        e.S("s_add_u32", sA, sA, sB)
        e.S("s_add_u32", sA, sA, 16 * KB)
        e.S("s_add_u32", sOxh, sXr, sA)
        e.S("s_lshl_b32", sA, sCG, 10)
        e.S("s_add_u32", sOst, sSTr, sA)
        e.S("s_lshl_b32", sA, sC, 10)
        e.S("s_add_u32", sOo, sXr, sA)
        e.S("s_lshl_b32", sA, sC, 8)
        e.S("s_add_u32", sA, sA, 16 * KB)
        e.S("s_add_u32", sOoh, sXr, sA)
        e.S("s_mul_i32", sA, sC, 3 * KB)
        e.S("s_add_u32", sOh, sHr, sA)
        e.S("s_lshl_b32", sA, sC, 9)
        e.S("s_add_u32", sA, sA, 48 * KB)
        e.S("s_add_u32", sOhh, sHr, sA)
        e.S("s_mul_i32", sKv, sC, 16 * KVSZ)
        e.misc(f"s_getreg_b32 {sX1}, hwreg(HW_REG_XCC_ID, 0, 4)")
        e.S("s_and_b32", sX1, sX1, 7)
        e.S("s_add_u32", sX1, sX1, 8)
        e.S("s_add_u32", sX1, sX1, sBase)
        e.S("s_mov_b32", sLocal, 0)
        U, Hh, Ee, Dq = T0, T1, T2, T3
        e.S("s_mov_b32", sA, 52429)
        e.V("v_mul_u32_u24", U, sA, v(0))
        e.V("v_lshrrev_b32", U, 18, U)
        e.V("v_mul_u32_u24", Dq, 5, U)
        e.V("v_sub_u32", Dq, v(0), Dq)
        e.V("v_cmp_le_u32", VCC, 21, U)
        e.V("v_cndmask_b32", Hh, 0, 1, VCC)
        e.V("v_mul_u32_u24", Ee, 21, Hh)
        e.V("v_sub_u32", Ee, U, Ee)
        A0, A1, A2, A3 = TMP[46], TMP[47], TMP[38], TMP[39]
        e.V("v_cmp_le_u32", s(100, 2), 16, Ee)
        e.V("v_cmp_eq_u32", s(88, 2), 4, Dq)
        e.V("v_cndmask_b32", A0, 0, 1, s(100, 2))
        e.V("v_lshl_add_u32", A0, Hh, 1, A0)
        e.V("v_add_u32", A1, 4, Hh)
        e.V("v_cndmask_b32", A1, A1, 6, s(100, 2))
        e.V("v_cndmask_b32", A0, A0, A1, s(88, 2))
        e.V("v_cndmask_b32", A1, Dq, Hh, s(88, 2))
        e.V("v_lshl_add_u32", A2, Hh, 2, Ee)
        e.V("v_subrev_u32", A2, 8, A2)
        e.V("v_cndmask_b32", A2, Ee, A2, s(100, 2))
        e.V("v_cmp_eq_u32", VCC, 20, Ee)
        e.V("v_cndmask_b32", A2, A2, 0, VCC)
        e.V("v_lshl_add_u32", A1, A1, 4, A2)
        e.V("v_lshlrev_b32", A1, 4, A1)
        e.V("v_lshl_add_u32", vKvSrc, A0, 10, A1)
        e.V("v_mul_u32_u24", A0, 5, Hh)
        e.V("v_add_u32", A0, A0, Dq)
        e.V("v_cmp_le_u32", s(88, 2), 8, A0)
        e.V("v_lshrrev_b32", A1, 1, A0)
        e.V("v_subrev_u32", A2, 8, A0)
        e.V("v_cndmask_b32", A1, A1, A2, s(88, 2))
        e.V("v_and_b32", A2, 1, A0)
        e.V("v_cndmask_b32", A2, A2, 0, s(88, 2))
        e.V("v_lshlrev_b32", A2, 3, A2)
        e.V("v_cndmask_b32", A0, 0, 1, s(88, 2))
        e.V("v_lshl_add_u32", A3, Hh, 1, A0)
        e.V("v_lshl_add_u32", A3, A3, 2, A1)
        e.V("v_lshl_add_u32", A3, A3, 4, A2)
        e.V("v_add_u32", A3, ZT, A3)
        e.V("v_mul_u32_u24", T4, 20, Hh)
        e.V("v_add_u32", T4, T4, Ee)
        e.V("v_cmp_le_u32", s(100, 2), 32, T4)
        e.V("v_and_b32", T5, 1, T4)
        e.V("v_cndmask_b32", T5, T5, 2, s(100, 2))
        e.V("v_lshl_add_u32", A0, T5, 1, A0)
        e.V("v_lshrrev_b32", T5, 1, T4)
        e.V("v_subrev_u32", T4, 32, T4)
        e.V("v_cndmask_b32", T4, T5, T4, s(100, 2))
        e.V("v_lshl_add_u32", T4, A1, 4, T4)
        e.V("v_lshl_add_u32", T4, T4, 4, A2)
        e.V("v_lshl_add_u32", T4, A0, 10, T4)
        e.V("v_cndmask_b32", T4, T4, A3, VCC)
        e.V("v_cmp_gt_u32", VCC, 210, v(0))
        e.V("v_mov_b32", T5, DUMMY)
        e.V("v_cndmask_b32", vKvDst, T5, T4, VCC)
        e.V("v_cndmask_b32", vKvSrc, 0, vKvSrc, VCC)
        e.V("v_lshlrev_b32", T4, 3, v(0))
        e.V("v_mov_b32", T5, BIG)
        e.V("v_cndmask_b32", vT16, T5, T4, VCC)
        e.V("v_and_b32", T4, -16, T4)
        e.V("v_and_b32", T0, 1, v(0))
        e.V("v_mul_u32_u24", T0, 8 * KVSZ, T0)
        e.V("v_add_u32", T4, T4, T0)
        e.V("v_cndmask_b32", vT16L, T5, T4, VCC)

    def late_loads(self):
        e = self.e
        T4, T5 = TMP[48], TMP[49]
        e.S("s_mul_i32", sB, sCG, 160)
        e.bload(RES[10:14], vOut, XIN, 0, 0)
        e.bload(RES[14:18], vOut, XIN, 0, 64)
        e.bload(RES[18:20], vOut4, XIN, 0, 128)
        skip = e.newlabel("noxid")
        e.S("s_cmp_lg_u32", sWave, 3)
        e.branch("s_cbranch_scc1", skip)
        e.cond_begin()
        e.S("s_lshl_b32", sA, sR, 8)
        e.S("s_add_u32", sA, sA, FLG_X)
        e.S("s_lshl_b32", sB, sC, 2)
        e.V("v_mov_b32", T4, sB)
        e.V("v_mov_b32", T5, sX1)
        e.S("s_mov_b64", EXEC, 1)
        e.bstore(T5, T4, WS, sA, 0, "sc1")
        e.S("s_mov_b64", EXEC, -1)
        e.cond_end()
        e.label(skip)

    def unpack(self, dst, pk):
        e = self.e
        for a_ in range(2):
            for j in range(4):
                e.V("v_lshlrev_b32", dst[8 * a_ + j], 16, pk[4 * a_ + j])
                e.V("v_and_b32", dst[8 * a_ + 4 + j], "0xffff0000", pk[4 * a_ + j])
        for j in range(2):
            e.V("v_lshlrev_b32", dst[16 + 2 * j], 16, pk[8 + j])
            e.V("v_and_b32", dst[16 + 2 * j + 1], "0xffff0000", pk[8 + j])

    class ALoad:
        def __init__(self, m, vaddr, terms, nks):
            self.m, self.vaddr, self.terms, self.nks = m, vaddr, terms, nks
            self.n = 0
            self.based = -1
            self.done = False
            self.win = 20

        def step(self):
            e = self.m.e
            ks, u = divmod(self.n, 2)
            if ks // 4 != self.based:
                self.based = ks // 4
                e.S("s_add_u32", sLd, self.terms[0], self.terms[1] + (ks // 4) * 4 * KB)
                return False
            e.bload(a((self.n % 40) * 4, 4), self.vaddr[u], WS, sLd, (ks % 4) * KB, self.m.opt.get("amod", "sc1"), cls=(self.m.opt.get("latA", 600), 76, 33 if self.nks == 27 else 16))
            self.n += 1
            self.done = self.n >= 2 * self.nks
            return True

        def upto(self, ks):
            while self.n < 2 * min(ks + 1, self.nks):
                self.step()

    def stats_loads(self, ver):
        e = self.e
        e.S("s_add_u32", sA, sSTr, STB[ver])
        for u in range(2):
            for k in range(2):
                e.bload(TMP[4 * u + 2 * k:4 * u + 2 * k + 2], vSt, WS, sA, k * 1024 + u * 128, "sc1", cls=(600, 20, 0))

    def stats_gen(self, need_T, have=False):
        e = self.e
        for u in range(2):
            sm, sq, t0, t1 = TMP[4 * u], TMP[4 * u + 1], TMP[4 * u + 2], TMP[4 * u + 3]
            if not have:
                e.V("v_add_f32", sm, sm, t0); yield
                e.V("v_add_f32", sq, sq, t1); yield
            for op in () if have else ("v_permlane32_swap_b32", "v_permlane16_swap_b32"):
                e.V("v_mov_b32", t0, sm); yield
                e.V("v_mov_b32", t1, sq); yield
                e.V(op, sm, t0); yield
                e.V(op, sq, t1); yield
                e.V("v_add_f32", sm, sm, t0); yield
                e.V("v_add_f32", sq, sq, t1); yield
            e.V("v_mul_f32", sm, lit(1.0 / D), sm); yield
            e.V("v_mul_f32", t0, sm, sm); yield
            e.V("v_fma_f32", sq, sq, self.cInvD, Neg(t0)); yield
            e.V("v_max_f32", sq, 0, sq); yield
            e.V("v_add_f32", sq, lit(1e-5), sq); yield
            e.V("v_rsq_f32", t0, sq); yield
            e.V("v_cvt_pk_bf16_f32", XE[u][0], sm, sm); yield
            e.V("v_mul_f32", sq, sq, t0); yield
            e.ds_write(vRW, t0, 64 * u); yield
            c2 = vC2 if u == 0 else vC2b
            e.V("v_mul_f32", c2[0], lit(LOG2E), t0); yield
            e.V("v_lshlrev_b32", t1, 16, XE[u][0]); yield
            e.V("v_sub_f32", sm, sm, t1); yield
            e.V("v_cvt_pk_bf16_f32", XE[u][1], sm, sq); yield
            e.V("v_and_b32", t1, "0xffff0000", XE[u][1]); yield
            e.V("v_sub_f32", t1, sq, t1); yield
            e.V("v_cvt_pk_bf16_f32", XE[u][3], sm, t1); yield
            e.V("v_mov_b32", XE[u][2], XE[u][0]); yield
        if need_T:
            for u in range(2):
                e.ds_read(RT[4 * u:4 * u + 4], vRT, 64 * u); yield

    def phi_pair(self, src, c2, bcast, t):
        e = self.e
        m = "op_sel_hi:[1,0]" if bcast else ""
        e.V("v_pk_mul_f32", t[0:2], src, c2, mods=m)
        e.V("v_exp_f32_e64", t[2], t[0], mods="clamp")
        e.V("v_exp_f32_e64", t[3], t[1], mods="clamp")
        e.V("v_max_f32", t[0], 0, t[0])
        e.V("v_max_f32", t[1], 0, t[1])
        e.V("v_pk_add_f32", t[2:4], t[2:4], vEps, mods="op_sel_hi:[1,0]")
        e.V("v_pk_fma_f32", t[0:2], t[0:2], vLn2, t[2:4], mods="op_sel_hi:[1,0,1]")

    def scratch(self, nblk, endpos):
        st = endpos - nblk
        if (st % RB) + nblk > RB:
            st = endpos - (endpos % RB) - nblk
        self.last_scratch = (st, st + nblk)
        return st, self.ldsaddr(st)

    def bg_on(self, tail):
        e = self.e
        st = {"next": 0}
        t_end = e.T + tail
        self.deadline = lambda: t_end

        def f():
            if e.T >= st["next"] and self.dma_ok():
                n0 = len(e.vm) + len(e.lg) + len(self.deferred)
                while len(e.vm) + len(e.lg) + len(self.deferred) == n0:
                    next(self.dmaf)
                st["next"] = e.T + self.opt.get("vgap", 24)
        self.e.bg = f

    def code_touch(self, ahead=None):
        e = self.e
        if not self.opt.get("ctouch", 1):
            return
        lab = e.newlabel("here")
        e.label(lab)
        ahead = self.opt.get("cahead", 2048) if ahead is None else ahead
        e.V("v_lshlrev_b32", v(51), 5, v(0))
        e.V("v_add_u32", v(51), f"{lab}-{self.kname}+{ahead}", v(51))
        e.V("v_min_u32", v(51), self.opt.get("code_bytes", 32768) - 4, v(51))
        e.misc(f"global_load_dword {vDum}, {v(51)}, s[96:97]")
        e._vm([], (800, 30, 10))

    def at_block(self, t, gen):
        i0 = self.cons
        while self.cons < i0 + t:
            yield "idle"
        yield from gen

    def delay(self, n, gen):
        for _ in range(n):
            yield "idle"
        yield from gen

    def code_touch_gen(self):
        self.code_touch(self.opt.get("cahead", 512))
        yield

    def bg_off(self):
        self.e.bg = None

    def gstore(self, lst, cold=False):
        e = self.e
        mode = self.opt.get("mode", "dual")
        if cold and not self.opt.get("touchcold", 0):
            mode = "safe"
        if mode != "dual":
            return [e.bstore(d, vo, WS, so, off, "sc1" if mode == "safe" else "") for d, vo, so, off in lst]
        ls, le = e.newlabel("st_safe"), e.newlabel("st_end")
        regs = []
        for d, vo, so, off in lst:
            regs += d.regs() + vo.regs()
        e.wait_ops(e._pending(regs))
        e.S("s_cmp_eq_u32", sLocal, 0)
        need = e._need("vmem", regs, [])
        if need > 1:
            e.nop(need - 1)
        e.branch("s_cbranch_scc1", ls)
        n0 = len(e.lines)
        ops = [e.bstore(d, vo, WS, so, off, "") for d, vo, so, off in lst]
        body = e.lines[n0:]
        assert len(body) == len(lst), body
        e.raw(f"  s_branch {le}")
        e.label(ls)
        for l in body:
            e.raw(l + " sc1")
        e.label(le)
        return ops

    def touch_gen(self, lst, cold=False):
        e = self.e
        if (cold and not self.opt.get("touchcold", 0)) or not self.opt.get("touch", 0):
            return
        for vo, sb, add, off in lst:
            e.S("s_add_u32", sE, sb, add); yield
            e.touch(vDum, vo, WS, sE, off, cls=(750, 80, 30)); yield

    def local_gen(self):
        e = self.e
        e.S("s_lshl_b32", s(6), sR, 8); yield
        e.S("s_add_u32", s(6), s(6), FLG_X); yield
        e.bload(TMP[39], vFl, WS, s(6), 0, "sc1"); yield
        for _ in range(40):
            yield "idle"
        e.V("v_cmp_ne_u32", VCC, sX1, TMP[39]); yield
        e.S("s_cmp_eq_u64", VCC, 0)
        e.S("s_cselect_b32", sLocal, 1, 0); yield

    def poll(self, kind, val):
        e = self.e
        skip = e.newlabel("nopoll")
        loop = e.newlabel("poll")
        e.S("s_cmp_lg_u32", sWave, 0)
        e.branch("s_cbranch_scc1", skip)
        e.cond_begin()
        t = TMP[38]
        e.S("s_mov_b32", sCnt, 0)
        e.S("s_mov_b64", sOk, 0)
        e.S("s_add_u32", sB, sBase, val)
        va, vb, sa, sb = (vFl, vFl, sFRL, sFRG) if kind != "col" else (vFl, vFl, sFC, sFC)
        if kind == "both":
            va, vb, sa, sb = TMP[36], TMP[37], 0, 0
            e.V("v_cmp_gt_u32", VCC, 2, vG)
            e.V("v_mov_b32", va, sFC)
            e.V("v_mov_b32", vb, sFRL)
            e.V("v_cndmask_b32", va, vb, va, VCC)
            e.V("v_add_u32", va, va, vFl)
            e.V("v_mov_b32", vb, FLG_RG - FLG_RL)
            e.V("v_cndmask_b32", vb, vb, 0, VCC)
            e.V("v_add_u32", vb, va, vb)
        one = kind == "row" and self.opt.get("onepoll", 1)
        if one:
            e.S("s_cmp_eq_u32", sLocal, 0)
            e.S("s_cselect_b32", sA, sFRG, sFRL)
            sa = sA
        e.label(loop)

        def chk():
            e.misc("s_waitcnt vmcnt(0)")
            e.misc(f"v_subrev_u32 {t}, {sB}, {t}")
            e.misc(f"v_cmp_ge_u32 vcc, 1, {t}")
            e.misc(f"s_or_b64 {sOk}, {sOk}, vcc")
            e.misc(f"s_cmp_eq_u64 {sOk}, -1")
            e.misc(f"s_cbranch_scc1 {skip}")
        e.misc(f"buffer_load_dword {t}, {va}, {WS}, {sa} offen sc1")
        e.misc("s_add_u32 %s, %s, 1" % (sCnt, sCnt))
        chk()
        if kind != "row":
            e.misc("s_sleep 3")
        if not one:
            e.misc(f"s_and_b32 {sA}, {sCnt}, 3")
            e.misc(f"s_cbranch_scc1 {loop}")
            e.misc(f"buffer_load_dword {t}, {vb}, {WS}, {sb} offen sc1")
            chk()
        e.misc(f"s_cmp_lt_u32 {sCnt}, 0x80000")
        e.misc(f"s_cbranch_scc1 {loop}")
        e.cond_end()
        e.label(skip)

    def flag(self, kind, val):
        e = self.e
        lst = [(1, sFRG, "sc1", sC), (2, sFRL, "", sC)] if kind != "col" else []
        if kind != "row":
            lst.append((3, sFC, "sc1", sR))
        for w, sb, m, sidx in lst:
            skip = e.newlabel("noflag")
            e.S("s_cmp_lg_u32", sWave, w)
            e.branch("s_cbranch_scc1", skip)
            e.cond_begin()
            e.S("s_lshl_b32", sA, sidx, 2)
            e.V("v_mov_b32", TMP[37], sA)
            e.S("s_add_u32", sA, sBase, val)
            e.V("v_mov_b32", TMP[38], sA)
            e.S("s_mov_b64", EXEC, 1)
            e.bstore(TMP[38], TMP[37], WS, sb, 0, m)
            e.S("s_mov_b64", EXEC, -1)
            e.cond_end()
            e.label(skip)

    def handoff(self, val, ops, shadow=None, touch=()):
        e = self.e
        t_st = e.T
        hk = (val - 2) % 4
        pick = lambda name, d: self.opt[name + "s"][hk] if name + "s" in self.opt else self.opt.get(name, d)
        self.deadline = lambda: t_st + pick("topup", 2600)
        self.own_end = 0
        while self.dma_ok():
            next(self.dmaf)
        while self.stage_step():
            pass
        self.finish_stage()
        self.restore(self.opt.get("rest1", 4))
        e.wait_all_lg()
        self.ring_barrier(self.cons + FI + self.opt.get("ahead", 16), ops)
        self.hold = None
        self.flag("row", val)
        self.stamp("flag")
        t_flag = e.T
        if self.opt.get("post_touch", 0):
            for k, (vo, sb, add, off) in enumerate(touch):
                sr = sE if k % 2 else sD
                e.S("s_add_u32", sr, sb, add)
                e.touch(vDum, vo, WS, sr, off, "sc1", cls=(750, 66, 30))
        self.deadline = lambda: t_flag + pick("topup2", 1800)
        while self.dma_ok():
            next(self.dmaf)
        while self.stage_step():
            pass
        self.finish_stage()
        self.warn.append(f"staged {len(self.staged)}")
        self.stage_plan = []
        self.prime()
        self.restore(self.opt.get("rest2", 6) if hk == 3 else 99)
        self.restg = self.restore_gen(99)
        if shadow:
            shadow()
        self.poll("row", val)
        e.T = max(e.T, t_flag + 1000)
        e.barrier()
        self.stamp("go")

    def phaseA(self, p):
        e = self.e
        opt = self.opt
        xv = 2 * p
        acc = lambda T, u: ACC[(T * 2 + u) * 4:(T * 2 + u) * 4 + 4]
        xf = lambda ks, u: a((ks * 2 + u) * 4, 4) if ks < 20 else XE[u]
        if p == 0:
            e.S("s_mov_b32", sSel[0], "0x00003f80")
            e.S("s_mov_b32", sSel[1], "0x3f800000")
            e.S("s_mov_b32", sOdd[0], "0xaaaaaaaa")
            e.S("s_mov_b32", sOdd[1], "0xaaaaaaaa")
            e.S("s_getpc_b64", s(96, 2))
            e.label("main_pc2")
            e.S("s_sub_u32", s(96), s(96), "main_pc2-" + self.kname)
            e.S("s_subb_u32", s(97), s(97), 0)
            for _ in range(opt.get("first_groups", 6 if self.al0 else 3)):
                for _ in self.dma_group():
                    pass
        if p == 0 and self.al0:
            al = None
            for _ in self.stats_gen(True):
                pass
            fl0 = [iter(())]
        else:
            al = self.ALoad(self, vAx, (sXr, XB[xv]), 20)
            al.upto(opt.get("adist", 4) - 1)
            self.stats_loads(xv)
            fl0 = [self.delay(opt.get("stdelay", 24), self.stats_gen(True))]
        sc_keep = self.last_scratch
        if p:
            fl0.append(self.restg)
        if p == 0:
            if opt.get("r2st", 2) == 0:
                self.r2_stores()
                self.late_loads()
            e.wait_all_lg()
            if opt.get("r2st", 2) == 2:
                self.ring_barrier(FI + 8, self.ops2)
                self.flag("col", 2)
                fl0.append(self.at_block(opt.get("w2at", 60), self.w2_gen()))
            else:
                self.ring_barrier(FI + 8)
            self.prime()
            self.stamp("start")
            if opt.get("keep", 12):
                self.capg = self.capture_gen(opt.get("keep0", 3), opt.get("keep", 12))
                next(self.capg)
                fl0.append(self.capg)
        st1 = {}

        def hook1(t):
            if t >= opt.get("w2flag_at", 30) and not st1.get("done"):
                st1["done"] = t
                return self.ops2, (lambda: self.flag("col", 2))
            return [], None

        def add1(t):
            if st1.get("done") and t >= opt.get("w2chk_at", 70) and not st1.get("chk"):
                st1["chk"] = True
                return self.w2_gen()
        i0 = self.seqstart[("A1", p)]
        fb = 102
        sst, sad = self.scratch(28, self.seq[i0 + fb][0])
        self.last_scratch = sc_keep
        self.hold = sst

        C2T = ACC[40:48]

        def pre_gen(first):
            while first.gi_frame is not None:
                yield "idle"
            e.S("s_mul_i32", s(7), sWave, 7168); yield
            e.S("s_add_u32", s(7), s(7), sad); yield
            e.V("v_add_u32", TMP[24], s(7), vL16); yield
            e.V("v_add_u32", TMP[25], sad, vKvSrc); yield
            e.S("s_mul_i32", s(7), sR, KVSZ); yield
            e.S("s_add_u32", s(7), s(7), sKv); yield
            e.S("s_add_u32", s(7), s(7), KVB[p]); yield
            for _ in range(8):
                yield "idle"
            for j in range(8):
                e.V("v_mul_f32", C2T[j], lit(LOG2E), RT[j]); yield
        fl0.append(pre_gen(fl0[0]))

        def must_gen():
            yield from fl0[0]
            yield from fl0[-1]
            while self.capg and self.cap_next < sst + 28:
                next(self.capg)
                yield

        def mf(t, W, u):
            ks, T = divmod(t, 5)
            e.mfma(acc(T, u), xf(ks, u), W, acc(T, u) if ks else 0)
        self.run_pass(105, mf, 5, xf, fl0, must=must_gen(), chunk=(8 if p == 0 else 24), stop_reads=self.seqstart[("A4", p)], aload=al,
                      force_bar=fb, tail=6000, mix=opt.get("mixA", 0) if p else 0,
                      late=(60, self.touch_gen([(vAx[0], sOo, OB[p], 0), (vAx[1], sOo, OB[p], 0), (vOh, sOoh, OB[p], 0), (vOh, sOoh, OB[p] + 20 * KB, 0)], p == 0)), hooks={"bar": hook1, "add": add1} if (p == 0 and opt.get("r2st", 2) == 0) else None)
        if p == 0 and opt.get("r2st", 2) == 1:
            self.dma_all()
            self.r2_stores()
            self.late_loads()
        assert sst + 28 <= self.freed and sst + 28 <= self.cap_hold, (sst, self.cap_hold)
        self.stamp("A1")
        self.bg_on(5000)
        KF = [TMP[8:12], TMP[12:16], TMP[16:20]]
        VF = {3: TMP[20:24], 4: ACC[56:60], 2: ACC[60:64]}
        tt = [ACC[48:52], ACC[52:56]]
        TA0, TA1 = TMP[24], TMP[25]
        n = 0
        for T in range(3):
            for u in range(2):
                for h in range(2):
                    t = tt[n % 2]
                    n += 1
                    self.phi_pair(acc(T, u)[2 * h:2 * h + 2], C2T[4 * u + 2 * h:4 * u + 2 * h + 2], False, t)
                    e.V("v_cvt_pk_bf16_f32", KF[T][2 * u + h], t[0], t[1])
        for T in (3, 4, 2):
            for u in range(2):
                for h in range(2):
                    x = acc(T, u)[2 * h:2 * h + 2]
                    e.V("v_pk_mul_f32", x, x, RT[4 * u + 2 * h:4 * u + 2 * h + 2])
            for u in range(2):
                for h in range(2):
                    x = acc(T, u)[2 * h:2 * h + 2]
                    e.V("v_cvt_pk_bf16_f32", VF[T][2 * u + h], x[0], x[1])
        for j in range(4):
            e.V("v_cndmask_b32", VF[2][j], VF[2][j], vOne, sMaskV)
        PR = [ACC[4 * i:4 * i + 4] for i in range(7)]
        prods = [(0, 3), (0, 2), (1, 4), (1, 2), (2, 3), (2, 4), (2, 2)]
        for i, (kt, vt) in enumerate(prods):
            e.mfma(PR[i], KF[kt], VF[vt], 0)
        for i in range(7):
            e.ds_write(TA0, PR[i], i * 1024)
        e.wait_all_lg()
        e.barrier()
        RD = [ACC[4 * w:4 * w + 4] for w in range(4)]
        for w in range(4):
            e.ds_read(RD[w], TA1, w * 7168)
        for h in range(2):
            e.V("v_pk_add_f32", RD[0][2 * h:2 * h + 2], RD[0][2 * h:2 * h + 2], RD[1][2 * h:2 * h + 2])
            e.V("v_pk_add_f32", RD[2][2 * h:2 * h + 2], RD[2][2 * h:2 * h + 2], RD[3][2 * h:2 * h + 2])
        for h in range(2):
            e.V("v_pk_add_f32", RD[0][2 * h:2 * h + 2], RD[0][2 * h:2 * h + 2], RD[2][2 * h:2 * h + 2])
        e.V("v_cvt_pk_bf16_f32", RD[1][0], RD[0][0], RD[0][1])
        e.V("v_cvt_pk_bf16_f32", RD[1][1], RD[0][2], RD[0][3])
        kvst = e.bstore(RD[1][0:2], vT16, WS, s(7), 0, "sc1")
        self.bg_off()
        self.stamp("kvpub")
        PL = [ACC[4 * i:4 * i + 4] for i in range(10)]

        st2 = {}

        def barhook(t):
            def rel():
                self.hold = None

            def relflag():
                self.hold = None
                self.flag("col", 2)
            if p == 0 and opt.get("r2st", 2) == 1 and not st2.get("done") and t >= opt.get("w2flag2_at", 12):
                st2["done"] = True
                return self.ops2, relflag
            return [], rel

        def kvloads():
            for i in range(8):
                if i % 2 == 0:
                    e.S("s_add_u32", sB, sKv, KVB[p] + i * KVSZ); yield
                e.bload(PL[i], vT16L, WS, sB, (i % 2) * KVSZ, "sc1", cls=(opt.get('kvlat', 800), 80, opt.get('kvsvc', 130))); yield

        def kvsum():
            SM = PL[8:10]
            for i in range(8):
                for d in range(4):
                    for h in range(2):
                        x = SM[d >> 1][2 * (d & 1) + h]
                        if i == 0:
                            e.V("v_dot2_f32_bf16", x, PL[i][d], sSel[h], 0)
                        else:
                            e.V("v_dot2c_f32_bf16", x, sSel[h], PL[i][d])
            for d in range(8):
                x = SM[d >> 2][d & 3]
                e.V("v_add_f32_dpp", x, x, x, mods="quad_perm:[1,0,3,2] row_mask:0xf bank_mask:0xf")
            for d in range(4):
                e.V("v_cndmask_b32", PL[0][d], SM[0][d], SM[1][d], sOdd)
            e.V("v_cmp_u_f32", VCC, PL[0][0], PL[0][1])
            e.V("v_cmp_u_f32", sNan, PL[0][2], PL[0][3])
            e.S("s_or_b64", VCC, VCC, sNan)

        def mfq(t, W, u):
            ks, T = divmod(t, 3)
            e.mfma(acc(5 + T, u), W, xf(ks, u), acc(5 + T, u) if ks else 0)
        self.lastbar = self.rd - 8
        fl = []
        if p == 0:
            fl = [self.local_gen()] + ([self.capg] if self.capg else [])
        self.run_pass(63, mfq, 3, xf, fl, stop_reads=self.seqstart[("A4", p)], hooks={"bar": barhook},
                      late=(opt.get("kvload_at", 40), kvloads()), see_all=True, force_bar=61, tail=1600 + self.opt.get("slack", 2400))
        if self.capg:
            n_ = 0
            for _ in self.capg:
                n_ += 1
                assert n_ < 1000
            self.capg = None
        self.stamp("A2")
        if p == 0 and opt.get("r2st", 2) == 1:
            assert st2.get("done")
            w2 = self.w2_gen()
            while next(w2) != "idle":
                pass
        if opt.get("qbg", 1):
            self.bg_on(1600 + self.opt.get("slack", 2400))
        PQ0 = [TMP[0:4], TMP[4:8]]
        PQ1 = [TMP[8:12], TMP[12:16]]
        tq = [TMP[16:20], TMP[20:24]]
        for u in range(2):
            c2 = vC2 if u == 0 else vC2b
            for h in range(2):
                self.phi_pair(acc(5, u)[2 * h:2 * h + 2], c2, True, tq[0])
                self.phi_pair(acc(6, u)[2 * h:2 * h + 2], c2, True, tq[1])
                e.V("v_cvt_pk_bf16_f32", PQ0[u][2 * h], tq[0][0], tq[1][0])
                e.V("v_cvt_pk_bf16_f32", PQ0[u][2 * h + 1], tq[0][1], tq[1][1])
            for h in range(2):
                self.phi_pair(acc(7, u)[2 * h:2 * h + 2], c2, True, tq[h])
                e.V("v_cvt_pk_bf16_f32", PQ1[u][h], tq[h][0], tq[h][1])
            e.V("v_mov_b32", PQ1[u][2], 0)
            e.V("v_mov_b32", PQ1[u][3], 0)
        self.bg_off()
        self.stamp("qepi")
        kvsum()
        lok, lre = e.newlabel("kvok"), e.newlabel("kvretry")
        e.branch("s_cbranch_scc0", lok)
        e.cond_begin()
        e.S("s_mov_b32", sCnt, 0)
        e.label(lre)
        e.misc("s_sleep 4")
        for _ in kvloads():
            pass
        kvsum()
        e.branch("s_cbranch_scc0", lok)
        e.S("s_add_u32", sCnt, sCnt, 1)
        e.S("s_cmp_lt_u32", sCnt, 0x10000)
        e.branch("s_cbranch_scc1", lre)
        e.cond_end()
        e.label(lok)
        self.stamp("kvgo")
        if p == 0 and opt.get("r2st", 2) == 1:
            for _ in w2:
                pass

        self.bg_on(900 + self.opt.get("slack", 2400))
        e.V("v_cvt_pk_bf16_f32", TMP[16], PL[0][0], PL[0][1])
        e.V("v_cvt_pk_bf16_f32", TMP[17], PL[0][2], PL[0][3])
        e.ds_write(vKvDst, TMP[16:18])
        e.wait_all_lg()
        e.barrier()
        FR = [ACC[40 + 4 * i:44 + 4 * i] for i in range(6)] + [TMP[16 + 4 * i:20 + 4 * i] for i in range(4)]
        for T in range(3):
            for ks in range(2):
                e.ds_read(FR[T * 2 + ks], vL16, IMG + (T * 2 + ks) * KB)
        for ks in range(2):
            e.ds_read(FR[6 + ks], vZ01, ks * 64)
            e.ds_read(FR[8 + ks], vZ2, ks * 64)
        oa = lambda T, u: ACC[(T * 2 + u) * 4:(T * 2 + u) * 4 + 4]
        ops = []

        def norm(u, packed):
            den = (oa(3, u)[0], oa(3, u)[2], oa(4, u)[0])
            for x in den:
                e.V("v_add_f32", x, vEps[0], x); yield
            for x in den:
                e.V("v_rcp_f32", x, x); yield
            for T in range(3):
                for h in range(2):
                    x = oa(T, u)[2 * h:2 * h + 2]
                    dn = oa(3, u)[2 * h:2 * h + 2] if T < 2 else oa(4, u)[0:2]
                    if packed:
                        e.V("v_pk_mul_f32", x, x, dn, mods="op_sel_hi:[1,0]"); yield
                    else:
                        e.V("v_mul_f32", x[0], x[0], dn[0]); yield
                        e.V("v_mul_f32", x[1], x[1], dn[0]); yield
            o4 = TMP[8 * u:8 * u + 4] if False else RT[4 * u:4 * u + 4]
            o2 = XE[u][0:2]
            for j in range(4):
                e.V("v_cvt_pk_bf16_f32", o4[j], oa(0, u)[j], oa(1, u)[j]); yield
            for h in range(2):
                e.V("v_cvt_pk_bf16_f32", o2[h], oa(2, u)[2 * h], oa(2, u)[2 * h + 1]); yield
            ops.extend(self.gstore([(o4, vAx[u], sA, 0), (o2, vOh, sB if u == 0 else sD, 0)], p == 0 or opt.get("osafe")))
            yield
        bg, e.bg = e.bg, None
        order = [(T, k) for k in range(2) for T in (3, 4, 0, 1, 2)]
        for T, k in order:
            e.mfma(oa(T, 0), FR[2 * T + k], (PQ0, PQ1)[k][0], oa(T, 0) if k else 0)
        e.S("s_add_u32", sA, sOo, OB[p])
        e.S("s_add_u32", sB, sOoh, OB[p])
        g0 = norm(0, False)
        for n_, (T, k) in enumerate(order):
            e.mfma(oa(T, 1), FR[2 * T + k], (PQ0, PQ1)[k][1], oa(T, 1) if k else 0)
            if n_ == 0:
                e.S("s_add_u32", sD, sOoh, OB[p] + 20 * KB)
            elif n_ < 9:
                next(g0)
                if n_ not in (2, 3):
                    next(g0)
        e.bg = bg
        for _ in g0:
            pass
        for _ in norm(1, True):
            pass
        self.bg_off()
        self.stamp("A3")
        def shadow():
            e.S("s_mul_i32", sB, sCG, 160)
            e.V("v_lshl_add_u32", TMP[2], vG, 4, sB)
            e.V("v_lshl_add_u32", TMP[3], vG, 3, sB)
            e.bload(ACC[40:44], TMP[2], SB2, 0, 0, cls=(800, 20, 0))
            e.bload(ACC[44:48], TMP[2], SB2, 0, 64, cls=(800, 20, 0))
            e.bload(ACC[48:50], TMP[3], SB2, 0, 128, cls=(800, 20, 0))
            if p == 0:
                self.unpack(RES, RES[10:20])
        self.handoff(4 * p + 2, ops, shadow, [(vAx[0], sOo, OB[p], 0), (vAx[1], sOo, OB[p], 0), (vOh, sOoh, OB[p], 0), (vOh, sOoh, OB[p] + 20 * KB, 0)])

    def phase64(self, p, kind):
        e = self.e
        opt = self.opt
        nks = 10 if kind == "O" else 27
        name = "A4" if kind == "O" else "B2"
        acc = lambda T, u: ACC[(u * 5 + T) * 4:(u * 5 + T) * 4 + 4]
        if kind == "O":
            al = self.ALoad(self, vAo, (sXr, OB[p]), nks)
        else:
            al = self.ALoad(self, vAh, (sHr, HB[p]), nks)
        al.upto(opt.get("adist", 4) - 1)
        xf = lambda ks, u: a(((ks % 20) * 2 + u) * 4, 4)
        if kind == "C":
            e.ds_read(TMP[2], vRF)
        i0 = self.seqstart[(name, p)]
        fb = 5 * nks - 3
        sst, sad = self.scratch(20, self.seq[i0 + fb][0])
        self.hold = sst
        stop = i0 + 5 * nks

        def mf(t, W, u):
            ks, T = divmod(t, 5)
            u = 1 - u
            c0 = RES[4 * T:4 * T + 4] if (kind == "O" and u == 0) else 0
            e.mfma(acc(T, u), W, xf(ks, u), acc(T, u) if ks else c0)

        def addr_gen():
            e.V("v_add_u32", TMP[0], sad, vXch); yield
            e.S("s_xor_b32", sA, sWave, 1); yield
            e.S("s_mul_i32", sA, sA, 5120); yield
            e.S("s_add_u32", sA, sA, sad); yield
            e.V("v_add_u32", TMP[1], sA, vL16); yield
            if kind == "C":
                e.V("v_mul_f32", TMP[2], TMP[2], TMP[2]); yield
            if not last:
                e.S("s_add_u32", sA, sOx, XB[xv]); yield
                e.S("s_add_u32", sB, sOxh, XB[xv]); yield
                e.S("s_add_u32", sD, sOst, STB[xv]); yield
        last = kind == "C" and p == 1
        xv = 2 * p + (1 if kind == "O" else 2)
        tg = None if last else (0, self.touch_gen([(vXs, sOx, XB[xv], 0), (vXs, sOx, XB[xv], 1024), (vXh, sOxh, XB[xv], 0), (vStW, sOst, STB[xv], 0)]))
        fl = [self.delay(20, addr_gen())]
        self.run_pass(5 * nks, mf, 5, xf, fl, late=tg, force_bar=fb, chunk=(opt.get("chunkO", 12) if kind == "O" else opt.get("chunkC", 12)), stop_reads=stop, aload=al,
                      mix=opt.get("mixO", 0) if kind == "O" else 0, tail=900 + self.opt.get("slack", 2400))
        self.stamp(name)
        self.bg_on(900 + self.opt.get("slack", 2400))
        assert sst + 20 <= self.freed
        for T in range(5):
            e.ds_write(TMP[0], acc(T, 1), T * KB)
        e.wait_all_lg()
        e.barrier()
        PT = TMP[4:24]
        for T in range(5):
            e.ds_read(PT[4 * T:4 * T + 4], TMP[1], T * KB)
        own = ACC[0:20]
        for h in range(10):
            x = own[2 * h:2 * h + 2]
            e.V("v_pk_add_f32", x, x, PT[2 * h:2 * h + 2])
            if kind == "C":
                e.V("v_pk_fma_f32", x, x, TMP[2:4], RES[2 * h:2 * h + 2], mods="op_sel_hi:[1,0,1]")
        PK = TMP[24:34]
        for a_ in range(2):
            for j in range(4):
                e.V("v_cvt_pk_bf16_f32", PK[4 * a_ + j], own[8 * a_ + j], own[8 * a_ + 4 + j])
        for h in range(2):
            e.V("v_cvt_pk_bf16_f32", PK[8 + h], own[16 + 2 * h], own[16 + 2 * h + 1])
        self.bg_off()
        if last:
            om = self.opt.get("outmod", "")
            e.bstore(PK[0:4], vOut, OUT, 0, 0, om)
            e.bstore(PK[4:8], vOut, OUT, 0, 64, om)
            e.bstore(PK[8:10], vOut4, OUT, 0, 128, om)
            self.stamp("end")
            return
        xv = 2 * p + (1 if kind == "O" else 2)
        ops = []
        ops += self.gstore([(PK[0:4], vXs, sA, 0), (PK[4:8], vXs, sA, 1024), (PK[8:10], vXh, sB, 0)])
        sm, sq, t0 = TMP[36], TMP[37], TMP[38]
        e.V("v_mov_b32", sm, 0)
        e.V("v_mov_b32", sq, 0)
        for j in range(10):
            e.V("v_dot2c_f32_bf16", sm, PK[j], vOne)
            e.V("v_dot2c_f32_bf16", sq, PK[j], PK[j])
        e.V("v_permlane32_swap_b32", sm, sq)
        e.V("v_add_f32", sm, sm, sq)
        e.V("v_mov_b32", t0, sm)
        e.V("v_permlane16_swap_b32", sm, t0)
        e.V("v_add_f32", sm, sm, t0)
        ops += self.gstore([(sm, vStW, sD, 0)])
        self.stamp(name + "epi")

        def shadow():
            self.unpack(RES, PK)
            if kind == "O":
                self.unpack(ACC[20:40], ACC[40:50])
                for h in range(10):
                    x = RES[2 * h:2 * h + 2]
                    e.V("v_pk_add_f32", x, x, ACC[20 + 2 * h:22 + 2 * h])
        self.handoff(4 * p + (3 if kind == "O" else 5), ops, shadow,
                     [(vStW, sOst, STB[xv], 0), (vXs, sOx, XB[xv], 0), (vXs, sOx, XB[xv], 1024), (vXh, sOxh, XB[xv], 0)])

    def phaseB1(self, p):
        e = self.e
        opt = self.opt
        xv = 2 * p + 1
        acc = lambda T, u: ACC[(T * 2 + u) * 4:(T * 2 + u) * 4 + 4]
        xf = lambda ks, u: a((ks * 2 + u) * 4, 4) if ks < 20 else XE[u]
        al = self.ALoad(self, vAx, (sXr, XB[xv]), 20)
        al.upto(opt.get("adist", 4) - 1)
        self.stats_loads(xv)
        stop = self.seqstart[("B2", p)]
        g0 = self.seq[stop][0] // 8 + RB // 8
        self.stage_plan = list(range(g0, g0 + (opt.get("nstage", 0) if p else 0)))

        def mf(t, W, u):
            ks, T = divmod(t, B1N)
            e.mfma(acc(T, u), W, xf(ks, u), acc(T, u) if ks else 0)
        tl = [(vHs, sOh, HB[p] + u * 54 * KB, a_ * KB) for a_ in range(3) for u in range(2)] + [(vHh, sOhh, HB[p] + u * 54 * KB, 0) for u in range(2)]
        sg = self.delay(opt.get("stdelay", 24), self.stats_gen(False))
        flb = [sg]
        if p == 0 and opt.get("keepb", 4):
            gb = self.capture_gen(self.segs[2][1] // 8 + opt.get("keepb0", 6), opt.get("keepb", 4), 12)
            next(gb)
            flb.append(gb)
        self.run_pass(21 * B1N, mf, B1N, xf, flb, late=(0, self.touch_gen(tl, p == 0)), stop_reads=stop, aload=al, must=sg, mix=opt.get("mixB", 0), tail=700 * (7 - B1N) + 300 + self.opt.get("slack", 2400))
        self.stamp("B1a")
        ops = []

        def epi(pairs, single):
            n = 0
            for u in range(2):
                sb = sD if u == 0 else sE
                e.S("s_add_u32", sb, sOh, HB[p] + u * 54 * KB); yield
                for a_ in pairs:
                    o = TMP[16 + 4 * (n % 4):20 + 4 * (n % 4)]
                    n += 1
                    for j in range(4):
                        x, y = acc(2 * a_, u)[j], acc(2 * a_ + 1, u)[j]
                        e.V("v_mul_f32_e64", x, x, f"|{x}|"); yield
                        e.V("v_mul_f32_e64", y, y, f"|{y}|"); yield
                        e.V("v_cvt_pk_bf16_f32", o[j], x, y); yield
                        e.V("v_pk_max_i16", o[j], o[j], 0); yield
                    ops.extend(self.gstore([(o, vHs, sb, a_ * KB)], p == 0 or opt.get("hsafe", 2) == 1 or (opt.get("hsafe", 2) == 2 and not single))); yield
            if single:
                for u in range(2):
                    o = TMP[32 + 2 * u:34 + 2 * u]
                    for j in range(4):
                        x = acc(6, u)[j]
                        e.V("v_mul_f32_e64", x, x, f"|{x}|"); yield
                    for h in range(2):
                        e.V("v_cvt_pk_bf16_f32", o[h], acc(6, u)[2 * h], acc(6, u)[2 * h + 1]); yield
                        e.V("v_pk_max_i16", o[h], o[h], 0); yield
                e.S("s_add_u32", sA, sOhh, HB[p])
                e.S("s_add_u32", sB, sOhh, HB[p] + 54 * KB)
                ops.extend(self.gstore([(TMP[32:34], vHh, sA, 0), (TMP[34:36], vHh, sB, 0)], p == 0 or opt.get("hsafe", 2) == 1))
                yield

        def mf2(t, W, u):
            ks, T = divmod(t, 7 - B1N)
            e.mfma(acc(B1N + T, u), W, xf(ks, u), acc(B1N + T, u) if ks else 0)
        self.run_pass(21 * (7 - B1N), mf2, 7 - B1N, xf, [epi(list(range(B1N // 2)), False)], stop_reads=stop, force_bar=21 * (7 - B1N) - 2, over=opt.get("b1over", 0), chunk=opt.get("chunkB", 24), tail=300 + self.opt.get("slack", 2400))
        self.stamp("B1b")
        for _ in epi(list(range(B1N // 2, 3)), True):
            pass
        self.stamp("B1epi")
        self.handoff(4 * p + 4, ops, None, tl)

    def gen(self):
        e = self.e
        e.reset_state()
        self.cInvD = s(63)
        self.dmaf = self.dma_filler()
        self.prologue()
        if self.opt.get("stamps"):
            e.memtime(sTm, True)
            e.V("v_writelane_b32", v(53), sTm[0], 62)
        self.startup()
        stop = self.opt.get("stop", 99)
        n = 0
        for p in range(2):
            for f in (lambda: self.phaseA(p), lambda: self.phase64(p, "O"), lambda: self.phaseB1(p), lambda: self.phase64(p, "C")):
                if n < stop:
                    f()
                n += 1
        if self.opt.get("stamps"):
            e.wait_all_vm()
            e.memtime(sTm, True)
            e.V("v_writelane_b32", v(53), sTm[0], 63)
            e.S("s_lshl_b32", sA, s(2), 2)
            e.S("s_add_u32", sA, sA, sWave)
            e.S("s_lshl_b32", sA, sA, 8)
            e.S("s_add_u32", sA, sA, STAMP)
            e.V("v_lshlrev_b32", TMP[1], 2, vLane)
            e.bstore(v(53), TMP[1], WS, sA)
        if self.opt.get("dbgst") is not None:
            skip = e.newlabel("nodbg")
            e.S("s_lshl_b32", sA, s(2), 2)
            e.S("s_add_u32", sA, sA, sWave)
            e.S("s_cmp_lg_u32", sA, 4 * self.opt.get("dbgwg", 77))
            e.branch("s_cbranch_scc1", skip)
            e.sload(s(84, 2), s(0, 2), 72)
            e.V("v_readlane_b32", sB, v(53), 0)
            e.V("v_subrev_u32", TMP[0], sB, v(53))
            e.V("v_subrev_u32", TMP[1], self.opt["dbgst"], vLane)
            e.V("v_cmp_gt_u32", VCC, 64 - self.opt["dbgst"], TMP[1])
            e.V("v_lshlrev_b32", TMP[1], 2, TMP[1])
            e.wait_all_lg()
            e.S("s_and_saveexec_b64", s(86, 2), VCC)
            e.misc(f"global_store_dword {TMP[1]}, {TMP[0]}, s[84:85]")
            e.S("s_mov_b64", EXEC, -1)
            e.label(skip)
        if self.opt.get("spin"):
            e.wait_all_vm()
            e.V("v_readfirstlane_b32", s(86), v(53))
            e.label("spin_loop")
            e.misc("s_memrealtime s[88:89]")
            e.misc("s_waitcnt lgkmcnt(0)")
            e.misc("s_sub_u32 s88, s88, s86")
            e.misc(f"s_cmp_lt_u32 s88, {self.opt['spin']}")
            e.misc("s_cbranch_scc1 spin_loop")
        e.S("s_add_u32", sA, s(2), sWave)
        e.S("s_cmp_lg_u32", sA, 0)
        e.branch("s_cbranch_scc1", "main_end")
        e.S("s_add_u32", sA, sBase, 16)
        e.V("v_mov_b32", TMP[0], sA)
        e.V("v_mov_b32", TMP[1], EPOCH)
        e.S("s_mov_b64", EXEC, 1)
        e.bstore(TMP[0], TMP[1], WS, 0)
        e.label("main_end")
        e.misc("s_endpgm")
```

```python
import os
REUSE = int(os.environ.get('REUSE', '1'))
S, D, F, H = 2048, 640, 1728, 32
KB = 1024

FLG = 0
FLG_RL, FLG_RG, FLG_C, FLG_X = 0, 4096, 8192, 12288
EPOCH = 16384
FLG_BYTES = 16384
NA, NO, NB, NC = 168, 104, 152, 272
WA = 65536
WO = WA + 16 * NA * KB
WB = WO + 8 * NO * KB
WC = WB + 16 * NB * KB
XSZ = S * D * 2
X0 = WC + 8 * NC * KB
XB = [X0 + (0 if REUSE else i) * XSZ for i in range(4)]
STSZ = 16 * 8192
ST0 = X0 + (1 if REUSE else 4) * XSZ
STB = [ST0 + (0 if REUSE else i) * STSZ for i in range(4)]
O0 = ST0 + (1 if REUSE else 4) * STSZ
OB = [O0 + (0 if REUSE else i) * XSZ for i in range(2)]
HSZ = S * F * 2
H0 = O0 + (1 if REUSE else 2) * XSZ
HB = [H0 + (0 if REUSE else i) * HSZ for i in range(2)]
KVSZ = 1792
KV0 = H0 + (1 if REUSE else 2) * HSZ
KVB = [KV0 + i * 256 * KVSZ for i in range(2)]
STAMP = KV0 + 2 * 256 * KVSZ
STAMPSZ = 1024 * 256
PSTAMP = STAMP + STAMPSZ
WS_USED = PSTAMP + 32768


def f0(c):
    return 112 * c - 16 * max(0, c - 12)


def xrow(ks, g, i):
    if ks < 16:
        return 80 * (ks >> 1) + 32 * (ks & 1) + 8 * g + i
    q = ks - 16
    return 160 * q + 64 + 80 * (g >> 1) + 8 * (g & 1) + i


def orow(ks, g, i):
    if ks < 16:
        return 40 * ks + 8 * g + i
    q = ks - 16
    return 160 * q + 32 + 40 * g + i


def hrow(ks, g, i):
    if ks < 48:
        return f0(ks // 3) + 32 * (ks % 3) + 8 * g + i
    q = ks - 48
    return 224 * q + 96 + 112 * (g >> 1) + 8 * (g & 1) + i


def acol(c, T, n):
    if T == 0:
        return 640 + 40 * c + n
    if T == 1:
        return 640 + 40 * c + 20 + n
    if T == 2:
        return 40 * c + (640 if n < 8 else 1280) + 16 + ((n >> 2) & 1) * 20 + (n & 3)
    if T == 3:
        return 1280 + 40 * c + n
    if T == 4:
        return 1280 + 40 * c + 20 + n
    if T in (5, 6):
        return 40 * c + 2 * n + (T - 5)
    return 40 * c + 32 + n if n < 8 else None


def bcol(c, T, n):
    if T < 6:
        return f0(c) + 32 * (T >> 1) + (T & 1) + 2 * n
    return f0(c) + 96 + n if c < 12 else None


def ocol(cg, T, n):
    if T < 4:
        return 80 * cg + 32 * (T >> 1) + (T & 1) + 2 * n
    return 80 * cg + 64 + n


ROT = int(os.environ.get('ROT', '0'))


def rotx(ks, c):
    return ks if ks == 20 else (ks - 4 * ROT * (c % 5)) % 20


def ablk(ks, T, c):
    ks = rotx(ks, c)
    return ks * 5 + T if T < 5 else 105 + ks * 3 + (T - 5)


B1N = int(os.environ.get('B1N', '4'))


def bblk(ks, T, c):
    ks = rotx(ks, c)
    return ks * B1N + T if T < B1N else 21 * B1N + ks * (7 - B1N) + (T - B1N)


def oblk(ks, T, cg):
    return 2 * (5 * ((ks - 2 * ROT * (cg % 5)) % 10) + T) + ks // 10


def cblk(ks, T, cg):
    return 2 * (5 * ((ks - 3 * ROT * cg) % 27) + T) + ks // 27


if __name__ == "__main__":
    print(hex(WA), hex(WO), hex(WB), hex(WC), hex(X0), hex(ST0), hex(O0), hex(H0), hex(KV0), hex(STAMP), WS_USED)
    assert sorted(xrow(k, g, i) for k in range(20) for g in range(4) for i in range(8)) == list(range(640))
    assert sorted(orow(k, g, i) for k in range(20) for g in range(4) for i in range(8)) == list(range(640))
    assert sorted(hrow(k, g, i) for k in range(54) for g in range(4) for i in range(8)) == list(range(1728))
    assert sorted(x for c in range(16) for T in range(8) for n in range(16) for x in [acol(c, T, n)] if x is not None) == list(range(1920))
    assert sorted(x for c in range(16) for T in range(7) for n in range(16) for x in [bcol(c, T, n)] if x is not None) == list(range(1728))
    assert sorted(ocol(c, T, n) for c in range(8) for T in range(5) for n in range(16)) == list(range(640))
    print("ok")
```

```python
from asmgen import *
from layout import *
from gen_prep import mk_srd, allreduce_g
import math

BIG = 0x40000000
LOG2E = 1.4426950408889634
LN2 = 0.6931471805599453

IMG = 0
ZT = 6144
RST = 6400
DUMMY = 6912
RING = 8192
RB = 152
LDS_BYTES = RING + RB * KB
FI = 8

WS, OUT, XIN, SB2 = s(8, 4), s(12, 4), s(16, 4), s(20, 4)
sWave, sR, sC, sCG, sRH, sKH, sW2048 = [s(24 + i) for i in range(7)]
sSeg = {"A": s(31), "O": s(32), "B": s(33), "C": s(34)}
sXr, sHr, sSTr, sFRL, sFRG, sFC = [s(35 + i) for i in range(6)]
sA, sB, sD, sE, sDm, sLd = [s(41 + i) for i in range(6)]
sMaskV = s(48, 2)
sCnt = s(50)
sTT = s(51)
sTm = s(52, 2)
sOx, sOxh, sOst, sOo, sOoh, sOh, sOhh, sKv = [s(54 + i) for i in range(8)]
sLocal, sX1 = s(47), s(62)
sStg = s(3)
sSel = [s(84), s(85)]
sOdd = s(86, 2)
vT16L = v(37)
vStg = v(55)
sNan = s(90, 2)
sBase = s(92)
sOk = s(94, 2)
SR1, SR2 = s(84, 4), s(96, 4)
PP = s(64, 16)
pOut, pWs = s(80, 2), s(82, 2)
vDum = v(49)

vLane, vN, vG, vL16 = v(1), v(2), v(3), v(4)
vW = [v(5), v(6), v(7)]
vK = [v(8), v(9), v(10)]
vDma = v(11)
vAx = [v(12), v(13)]
vAo = [v(14), v(15)]
vAh = [v(16), v(17)]
vSt, vStW, vKvSrc, vKvDst, vT16, vZ01, vZ2, vRT, vRW, vRF, vOut, vOut4, vOne = [v(18 + i) for i in range(13)]
vOh, vXs, vXh, vHs, vHh, vFl, vPollR, vPollC, vXch = [v(31 + i) for i in range(9)]
XE = [v(40, 4), v(44, 4)]
vC2 = v(48, 2)
vC2b = v(50, 2)
vLn2 = v(52, 2)
vEps = v(54, 2)
RT = v(56, 8)
ACC = v(64, 64)
FIFO = v(128, 4 * FI)
RES = v(160, 20)
B2F = v(180, 20)
TMP = v(200, 56)


def keepreg(k, h):
    if k < 12:
        return a(160 + 8 * k + 4 * h, 4)
    t = 2 * (k - 12) + h
    return B2F[4 * t:4 * t + 4] if t < 5 else TMP[40 + 4 * (t - 5):44 + 4 * (t - 5)]


class Main:
    def __init__(self, e, opt):
        self.e = e
        self.opt = opt
        self.kname = opt["kname"]
        self.nstamp = 0
        self.segs = []
        pos = 0
        for p in range(2):
            for k, n in (("A", NA), ("O", NO), ("B", NB), ("C", NC)):
                self.segs.append((k, pos, n))
                pos += n
        self.total = pos
        self.ngroups = pos // 8
        self.issued = 0
        self.dmaop = {}
        self.freed = 0
        self.hold = None
        self.visible = 0
        self.seq = []
        self.seqstart = {}
        for p in range(2):
            b = self.segs[4 * p + 0][1]
            self.seqstart[("A1", p)] = len(self.seq)
            self.seq += [(b + i, "W") for i in range(105)]
            self.seqstart[("A2", p)] = len(self.seq)
            self.seq += [(b + 105 + i, "W") for i in range(63)]
            b = self.segs[4 * p + 1][1]
            self.seqstart[("A4", p)] = len(self.seq)
            self.seq += [(b + 2 * i, "K") for i in range(50)]
            b = self.segs[4 * p + 2][1]
            self.seqstart[("B1a", p)] = len(self.seq)
            self.seq += [(b + i, "W") for i in range(21 * B1N)]
            self.seqstart[("B1b", p)] = len(self.seq)
            self.seq += [(b + 21 * B1N + i, "W") for i in range(147 - 21 * B1N)]
            b = self.segs[4 * p + 3][1]
            self.seqstart[("B2", p)] = len(self.seq)
            self.seq += [(b + 2 * i, "K") for i in range(135)]
        self.rd = 0
        self.cons = 0
        self.lastbar = 0
        self.gate = NA // 8
        self.stage_plan = []
        self.staged = {}
        self.stage_mid = None
        self.cap_hold = 1 << 20
        self.deferred = []
        self.spares = []
        self.last_scratch = (0, 0)
        self.restg = None
        self.capg = None
        self.own_end_phase = 0
        self.cap_ops = []
        self.cap_next = 1 << 20
        self.warn = []
        self.model = []
        self.own_end = 0
        self.deadline = lambda: 1 << 30

    def stamp(self, name):
        self.model.append((name, self.e.T))
        if not self.opt.get("stamps"):
            return
        e = self.e
        e.wait_all_lg()
        e.memtime(sTm)
        e.V("v_writelane_b32", v(53), sTm[0], self.nstamp)
        self.opt.setdefault("stampnames", []).append(name)
        self.nstamp += 1
        assert self.nstamp <= 62

    def endpos(self, i):
        p, k = self.seq[i]
        return p + (2 if k == "K" else 1)

    def ldsaddr(self, pos):
        return RING + (pos % RB) * KB

    def can_issue(self):
        if self.issued >= min(self.ngroups, self.gate):
            return False
        lim = self.freed if self.hold is None else min(self.freed, self.hold)
        lim = min(lim, self.cap_hold)
        return 8 * (self.issued + 1) <= lim + RB

    def dma_group(self):
        e = self.e
        g = self.issued
        self.issued += 1
        pos = 8 * g
        if g in self.stage_plan:
            self.stage_plan = []
        if g in self.staged and self.opt.get("defer", 1) and 8 * g >= self.own_end_phase:
            self.deferred.append(g)
            self.dmaop[g] = None
            yield
            return
        if g in self.staged:
            self.finish_stage()
            k = self.staged[g]
            ad = self.ldsaddr(pos)
            e.V("v_add_u32", vStg, ad, vDma)
            yield
            e.ds_write(vStg, keepreg(k, 0), 0)
            yield
            self.dmaop[g] = e.ds_write(vStg, keepreg(k, 1), 1024)
            yield
            return
        for k, b, n in self.segs:
            if b <= pos < b + n:
                break
        e.S("s_add_u32", M0, sW2048, self.ldsaddr(pos))
        yield
        e.S("s_add_u32", sDm, sSeg[k], (pos - b) * KB)
        yield
        md = "nt" if k in self.opt.get("ntseg", "") else ""
        nvalid = min(8, {"A": 168, "O": 100, "B": 147, "C": 270}[k] - (pos - b)) if self.opt.get("skippad", 0) else 8
        for j in range(2):
            nw = (nvalid - j + 1) // 2
            if nw < 4:
                skip = e.newlabel("nopad")
                e.S("s_cmp_ge_u32", sWave, nw)
                e.branch("s_cbranch_scc1", skip)
                e.cond_begin()
            op = e.dma(vDma, WS, sDm, 1024 * j, md, cls=self.dcls(k))
            if nw < 4:
                e.cond_end()
                e.label(skip)
            if j:
                self.dmaop[g] = op
            yield

    def capture_gen(self, first, n, k0=0):
        e = self.e
        self.cap_hold = self.cap_next = 8 * first
        g1 = self.segs[4][1] // 8
        for k in range(k0, k0 + n):
            g = first + k - k0
            while self.visible < 8 * (g + 1):
                yield "idle"
            e.V("v_add_u32", vStg, self.ldsaddr(8 * g), vDma); yield
            e.ds_read(keepreg(k, 0), vStg, 0); yield
            self.cap_ops.append(e.ds_read(keepreg(k, 1), vStg, 1024))
            self.staged[g1 + g] = k
            self.cap_next = 8 * (g + 1) if k < k0 + n - 1 else 1 << 20
            yield

    def stage_group(self):
        e = self.e
        g = self.stage_plan.pop(0)
        k = len(self.staged) % 12
        self.staged[g] = k
        for sk, b, n in self.segs:
            if b <= 8 * g < b + n:
                break
        e.S("s_add_u32", sStg, sSeg[sk], (8 * g - b) * KB)
        yield
        e.bload(keepreg(k, 0), vDma, WS, sStg, 0, cls=self.dcls(sk))
        yield
        e.bload(keepreg(k, 1), vDma, WS, sStg, 1024, cls=self.dcls(sk))
        self.stage_mid = None
        yield

    def restore_gen(self, n):
        e = self.e
        while n > 0 and self.deferred:
            n -= 1
            g = self.deferred[0]
            k = self.staged[g]
            e.V("v_add_u32", vStg, self.ldsaddr(8 * g), vDma); yield
            old = 8 * g - RB
            clean = old + 8 <= self.last_scratch[0] or old >= self.last_scratch[1]
            if self.spares and self.opt.get("swap", 1) and clean and self.segof(8 * g) == "A":
                sp = self.spares.pop(0)
                e.ds_read(keepreg(sp, 0), vStg, 0); yield
                e.ds_read(keepreg(sp, 1), vStg, 1024); yield
                g2 = g - RB // 8 + self.segs[4][1] // 8
                assert self.segof(8 * g2) == "C"
                self.staged[g2] = sp
            e.ds_write(vStg, keepreg(k, 0), 0); yield
            self.dmaop[g] = e.ds_write(vStg, keepreg(k, 1), 1024)
            self.spares.append(k)
            self.deferred.pop(0)
            yield

    def restore(self, n):
        for _ in self.restore_gen(n):
            pass

    def finish_stage(self):
        while self.stage_mid:
            next(self.stage_mid)

    def stage_step(self):
        e = self.e
        if e.outstanding() >= self.opt.get("qmax", 13):
            return False
        if not self.stage_mid:
            if not self.stage_plan or self.can_issue() or self.mid_group():
                return False
            c = self.dcls("C")
            if e.predict(c) + c[2] > self.deadline():
                return False
            self.stage_mid = self.stage_group()
        next(self.stage_mid)
        return True

    def dcls(self, k):
        return (750, 80, self.opt.get("svcAB", 150)) if k in "AB" else (750, self.opt.get("svcOC", 92), 75)

    def dma_ok(self):
        e = self.e
        if self.mid_group():
            g = self.issued - 1
        elif self.can_issue():
            g = self.issued
        else:
            return False
        if g in self.staged:
            return True
        if e.outstanding() >= self.opt.get("qmax", 13):
            return False
        if self.mid_group() or 8 * g < self.own_end:
            return True
        c = self.dcls(self.segof(8 * g))
        return e.predict(c) + c[2] <= self.deadline()

    def dma_filler(self):
        while True:
            if self.can_issue():
                for _ in self.dma_group():
                    yield True
            else:
                yield False

    def flush_dma_partial(self):
        while self.issued > 0 and (self.issued - 1) not in self.dmaop:
            next(self.dmaf)

    def dma_all(self):
        self.flush_dma_partial()
        while self.can_issue():
            for _ in self.dma_group():
                pass

    def ring_barrier(self, need_idx, extra_ops=(), free_all=False):
        e = self.e
        need_idx = min(need_idx, len(self.seq))
        upto = self.endpos(need_idx - 1) if need_idx > 0 else 0
        g = (upto + 7) // 8
        self.flush_dma_partial()
        while self.issued < g:
            assert self.can_issue(), ("ring deadlock", self.issued, g, self.freed, self.hold)
            self.warn.append(f"forced dma group {self.issued} at seq {self.rd}")
            for _ in self.dma_group():
                pass
        ops = list(extra_ops)
        while self.deferred and self.deferred[0] < g:
            self.warn.append(f"forced restore {self.deferred[0]}")
            next(self.restg)
        for gg in range(self.visible // 8, g):
            assert gg not in self.deferred, gg
            ops.append(self.dmaop[gg])
        e.wait_ops(ops + self.cap_ops)
        self.cap_ops = []
        e.barrier()
        self.cap_hold = self.cap_next
        self.visible = max(self.visible, 8 * g)
        self.freed = self.seq[self.cons][0] if self.cons < len(self.seq) else self.total
        self.lastbar = self.rd

    def issue_read(self):
        e = self.e
        i = self.rd
        if i >= len(self.seq):
            return
        pos, k = self.seq[i]
        assert self.endpos(i) <= self.visible, ("read of invisible block", i, pos, self.visible)
        ad = self.ldsaddr(pos)
        base = (vW if k == "W" else vK)[ad >> 16]
        slot = i % FI
        e.ds_read(FIFO[4 * slot:4 * slot + 4], base, ad & 0xffff)
        self.rd += 1

    def prime(self):
        while self.rd < self.cons + FI and self.rd < len(self.seq) and self.endpos(self.rd) <= self.visible:
            self.issue_read()

    def run_pass(self, n, mf, ntile, xf, fillers=(), chunk=24, stop_reads=None, hooks=None,
                 aload=None, vrate=0.5, amix=(1, 0), over=0, force_bar=None, late=None, see_all=False, tail=2000, mix=0, must=None):
        e = self.e
        fillers = list(fillers)
        lim = stop_reads if stop_reads is not None else len(self.seq)
        st = {"next": 0, "k": 0, "t": 0}
        self.own_end = self.own_end_phase = self.endpos(lim - 1)
        self.deadline = lambda: e.T + (n - st["t"]) * 33 + tail

        i_first = self.cons

        def dma_need():
            g = self.issued - 1 if self.mid_group() else self.issued
            for i in range(self.cons, lim):
                if self.endpos(i) > 8 * g:
                    return i - i_first - FI - chunk
            return 1 << 20

        def one_vmem():
            na, nd = amix
            n0 = len(e.vm)
            if st.get("late"):
                if e.T < st["next"]:
                    return False
                try:
                    next(st["late"])
                except StopIteration:
                    st["late"] = None
                    return False
            else:
                na_ = (aload.n // 2) * ntile if (aload is not None and not aload.done) else 1 << 21
                nd_ = dma_need() if (self.mid_group() or self.can_issue()) else 1 << 22
                run = self.opt.get("run", 0)
                if run and na_ < 1 << 21 and nd_ < 1 << 20:
                    if st.get("cur") == "a" and na_ - run <= nd_:
                        nd_ = max(nd_, na_)
                    elif st.get("cur") == "d" and nd_ - run < na_:
                        na_ = max(na_, nd_ + 1)
                    st["cur"] = "a" if na_ <= nd_ else "d"
                urgent = min(na_, nd_) - st["t"] <= self.opt.get("horizon", 30) + run
                if e.T < st["next"] and not urgent:
                    return False
                if mix and na_ < 1 << 21 and st["k"] % mix == mix - 1 and na_ - st["t"] > self.opt.get("mixh", 10) and self.dma_ok():
                    next(self.dmaf)
                elif na_ <= nd_ and na_ < 1 << 21:
                    if e.outstanding() >= self.opt.get("qmax", 13) and not urgent:
                        return False
                    if aload.n // 2 >= st["t"] // ntile + aload.win - 1:
                        return False
                    aload.step()
                elif nd_ < 1 << 22 and (urgent or self.dma_ok()):
                    next(self.dmaf)
                elif not self.stage_step():
                    return False
            if len(e.vm) > n0:
                st["k"] += 1
                st["next"] = e.T + self.opt.get("vgap", 24)
            return True

        def fill(budget):
            while budget > 0:
                n0 = e.ninst
                did = one_vmem()
                if not did:
                    for f in list(fillers):
                        try:
                            if next(f) == "idle":
                                continue
                            did = True
                            break
                        except StopIteration:
                            fillers.remove(f)
                if not did:
                    return
                budget -= e.ninst - n0

        def waits_for(t):
            regs = []
            for tt in (t, t + 1):
                if tt < n:
                    ks = tt // ntile
                    if aload is not None:
                        aload.upto(ks)
                    idx = self.cons + (tt - t)
                    if idx < self.rd:
                        regs += FIFO[4 * (idx % FI):4 * (idx % FI) + 4].regs()
                    regs += xf(ks, 0).regs() + xf(ks, 1).regs()
            return e._pending(regs)

        e.wait_ops(waits_for(0))
        if aload is not None:
            self.stamp("1st")
            self.warn.append(f"fill {8 * self.issued - self.seq[self.cons][0]}")
        for t in range(n):
            if aload is not None and self.opt.get("midstamp") and t == n // 2:
                self.stamp("half")
            i = self.cons
            assert self.rd > i, ("fifo underrun", i)
            W = FIFO[4 * (i % FI):4 * (i % FI) + 4]
            st["t"] = t
            if must is not None and t == n - ntile - 2:
                for _ in must:
                    self.warn.append("must drained late")
            if t == int(n * self.opt.get("cfrac", 0.8)) and n > 30:
                fillers.insert(0, self.code_touch_gen())
            if hooks and hooks.get("add"):
                g_ = hooks["add"](t)
                if g_:
                    fillers.append(g_)
            ov = over if fillers else 0
            mf(t, W, 0)
            bar = self.rd < lim and (self.endpos(self.rd) > self.visible or self.rd - self.lastbar >= chunk)
            bar = bar or t == force_bar
            if late and t >= late[0] and not st.get("lateon") and (aload is None or aload.done) and 8 * self.issued >= min(self.own_end, self.endpos(min(i_first + n + FI, lim) - 1)) and not self.mid_group():
                st["late"] = late[1]
                st["lateon"] = True
                self.warn.append(f"late at {t}")
            if bar:
                ex, after = [], None
                if hooks and hooks.get("bar"):
                    ex, after = hooks["bar"](t)
                self.ring_barrier(lim if see_all else min(self.rd + chunk, lim), ex)
                if after:
                    after()
            else:
                fill(2 + ov)
            mf(t, W, 1)
            self.cons += 1
            used = 0
            if self.rd < lim:
                self.issue_read()
                used = 1
            pend = waits_for(t + 1) if (t % 2 == 1 and t + 1 < n) else []
            fill(2 + ov - used - (1 if pend else 0))
            if pend:
                e.wait_ops(waits_for(t + 1))
        if late and not st.get("lateon"):
            st["late"] = late[1]
        for f in fillers + ([st["late"]] if st.get("late") else []):
            if f is not self.capg:
                for _ in f:
                    pass

    def segof(self, pos):
        for k, b, n in self.segs:
            if b <= pos < b + n:
                return k
        return "O"

    def mid_group(self):
        return self.issued > 0 and (self.issued - 1) not in self.dmaop

    def dma_burst(self, maxgroups=99):
        e = self.e
        self.flush_dma_partial()
        gs = []
        while self.can_issue() and len(gs) < maxgroups:
            gs.append(self.issued)
            self.issued += 1
        for w in (1, 2, 3):
            mine = gs[w - 1::3]
            if not mine:
                continue
            skip = e.newlabel("noburst")
            e.S("s_cmp_lg_u32", sWave, w)
            e.branch("s_cbranch_scc1", skip)
            e.cond_begin()
            for g in mine:
                pos = 8 * g
                for k, b, n in self.segs:
                    if b <= pos < b + n:
                        break
                for h in range(2):
                    e.S("s_mov_b32", M0, self.ldsaddr(pos) + h * 4096)
                    e.S("s_add_u32", sDm, sSeg[k], (pos - b) * KB + h * 4096)
                    for q in range(4):
                        self.dmaop[g] = e.dma(vL16, WS, sDm, q * 1024)
            e.cond_end()
            e.label(skip)

    def prologue(self):
        e = self.e
        e.S("s_cmp_ge_u32", s(2), 256)
        e.branch("s_cbranch_scc1", "main_end")
        if self.opt.get("stamps"):
            e.V("v_mov_b32", v(53), 0)
        self.stamp("t0")
        if self.opt.get("spin"):
            e.memtime(sTm, True)
            e.V("v_mov_b32", v(53), sTm[0])
        e.sload(PP, s(0, 2), 0)
        e.sload(pOut, s(0, 2), 64)
        e.sload(pWs, s(0, 2), 80)
        T0, T1, T2, T3 = TMP[48], TMP[49], TMP[50], TMP[51]
        e.S("s_getpc_b64", s(88, 2))
        e.label("main_pc")
        e.V("v_lshlrev_b32", T2, 5, v(0))
        e.S("s_sub_u32", s(88), s(88), "main_pc-" + self.kname)
        e.S("s_subb_u32", s(89), s(89), 0)
        e.misc(f"global_load_dword {vDum}, {T2}, s[88:89]")
        e._vm([], (2000, 30, 0))
        e.V("v_lshrrev_b32", T0, 6, v(0))
        e.V("v_and_b32", vLane, 63, v(0))
        e.V("v_readfirstlane_b32", sWave, T0)
        e.S("s_lshr_b32", sB, s(2), 3)
        e.S("s_mul_i32", sB, sB, 1792)
        e.S("s_add_u32", sB, sB, 8192)
        e.V("v_lshl_add_u32", T2, v(0), 3, sB)
        e.V("v_min_u32", T2, self.opt.get("code_bytes", 32768) - 4, T2)
        e.misc(f"global_load_dword {vDum}, {T2}, s[88:89]")
        e._vm([], (2000, 30, 0))
        e.V("v_lshlrev_b32", vL16, 4, vLane)
        e.V("v_and_b32", vN, 15, vLane)
        e.V("v_lshrrev_b32", vG, 4, vLane)
        self.vBig = TMP[52]
        e.V("v_mov_b32", self.vBig, BIG)
        e.S("s_and_b32", sA, s(2), 7)
        e.S("s_lshl_b32", sA, sA, 1)
        e.S("s_lshr_b32", sB, s(2), 7)
        e.S("s_add_u32", sR, sA, sB)
        e.S("s_bfe_u32", sC, s(2), (4 << 16) | 3)

    def gather(self, raw, srd, sstride, vaddr, srow, n=8):
        e = self.e
        e.S("s_mul_i32", sLd, srow, sstride)
        for i in range(n):
            e.bload(raw[i], vaddr, srd, sLd, 0, w="ushort", cls=(2500, 32, 0))
            if i < n - 1:
                e.S("s_add_u32", sLd, sLd, sstride)

    def pack(self, raw, n=4):
        for i in range(n):
            self.e.V("v_lshl_or_b32", raw[i], raw[2 * i + 1], 16, raw[2 * i])

    def colsum(self, regs, ex, vs, vt):
        e = self.e
        e.V("v_mov_b32", vs, 0)
        for r_ in regs:
            e.V("v_dot2c_f32_bf16", vs, r_, vOne)
        allreduce_g(e, vs, vt)
        e.V("v_sub_f32", vs, 0, vs)
        e.V("v_cvt_pk_bf16_f32", vt, vs, vs)
        e.V("v_lshlrev_b32", vt, 16, vt)
        e.V("v_sub_f32", vt, vs, vt)
        e.V("v_cvt_pk_bf16_f32", ex[0], vs, vt)
        e.V("v_and_b32", ex[1], "0xffff", ex[0])

    def startup(self):
        e = self.e
        vBig = self.vBig
        RAW1, EX = ACC[0:20], ACC[20:24]
        RAW2 = TMP[8:40]
        vCol, vReg, vLeft, vT0, vT1, vSum, vLd = [FIFO[i] for i in range(7)]
        vA0, vA1, vA2, vSt2, vBias = RES[8], RES[9], B2F[8], B2F[9], TMP[50]
        sT, sP = s(7), s(93)
        sStr = s(56)
        XJ = [RES[0:4], RES[4:8], B2F[0:4]]
        XD, XA, XB_ = B2F[4], ACC[32], ACC[33]
        XM = [s(90), s(91), s(94)]
        T0, T1, T2, T3 = TMP[48], TMP[49], TMP[50], TMP[51]
        e.V("v_lshrrev_b32", T1, 3, vLane)
        e.V("v_and_b32", T3, 7, vLane)
        e.V("v_mul_u32_u24", T0, 1280, T3)
        e.V("v_lshl_add_u32", XA, T1, 4, T0)
        e.V("v_lshrrev_b32", T2, 4, vLane)
        e.V("v_lshl_add_u32", XB_, T2, 7, XA)
        e.V("v_lshlrev_b32", XD, 8, T1)
        e.V("v_lshl_add_u32", XD, T3, 4, XD)
        e.S("s_lshl_b32", sE, sR, 4)
        e.S("s_add_u32", sE, sE, sC)
        e.S("s_mul_i32", sE, sE, 8 * 1280)
        e.S("s_mul_i32", sD, sWave, 3)
        mk_srd(e, XIN, PP[0:2], XSZ)
        for k in range(3):
            e.S("s_add_u32", XM[k], sD, k)
            e.S("s_cmp_ge_u32", XM[k], 8)
            e.S("s_cselect_b64", VCC, -1, 0)
            e.S("s_cselect_b32", sA, 40, 10)
            e.S("s_cselect_b32", sB, 8 - 8 * 40, 0)
            e.V("v_cndmask_b32", T0 if k != 1 else T1, XA, XB_, VCC)
            e.S("s_mul_i32", sA, sA, XM[k])
            e.S("s_add_u32", sA, sA, sB)
            e.S("s_lshl_b32", sA, sA, 4)
            e.S("s_add_u32", sA, sA, sE)
            e.S("s_cmp_ge_u32", XM[k], 10)
            e.S("s_cselect_b32", sA, BIG, sA)
            e.S("s_cselect_b32", XM[k], BIG // 2048, XM[k])
            e.bload(XJ[k], T0 if k != 1 else T1, XIN, sA, 0, cls=(2000, 100, 0))
        self.stamp("issx")
        e.S("s_lshr_b32", sP, sR, 1)
        e.S("s_and_b32", sT, sR, 1)
        e.S("s_lshl_b32", sT, sT, 2)
        e.S("s_add_u32", sT, sT, sWave)
        e.S("s_mov_b32", s(4), (656 << 20) | (660 << 10) | 640)
        e.S("s_mov_b32", s(5), 0)
        e.S("s_mul_i32", sA, sT, 10)
        e.S("s_lshr_b32", sA, s(4), sA)
        e.S("s_and_b32", sA, sA, 1023)
        for t, val in ((3, 1280), (4, 1300), (5, 0), (6, 1), (7, 32)):
            e.S("s_cmp_eq_u32", sT, t)
            e.S("s_cselect_b32", sA, val, sA)
        e.S("s_mul_i32", sB, sC, 40)
        e.S("s_add_u32", sA, sA, sB)
        e.V("v_add_u32", vCol, sA, vN)
        e.V("v_add_u32", vT0, vCol, vN)
        e.S("s_sub_u32", sB, sT, 5)
        e.S("s_cmp_lt_u32", sB, 2)
        e.S("s_cselect_b64", VCC, -1, 0)
        e.V("v_cndmask_b32", vCol, vCol, vT0, VCC)
        e.V("v_lshrrev_b32", vT0, 3, vN)
        e.V("v_mul_u32_u24", vT0, 632 - 32, vT0)
        e.V("v_lshrrev_b32", vT1, 2, vN)
        e.V("v_lshl_add_u32", vT0, vT1, 4, vT0)
        e.V("v_add3_u32", vT0, vT0, vN, sA)
        e.S("s_cmp_eq_u32", sT, 2)
        e.S("s_cselect_b64", VCC, -1, 0)
        e.V("v_cndmask_b32", vCol, vCol, vT0, VCC)
        e.V("v_lshlrev_b32", vCol, 1, vCol)
        e.S("s_cmp_eq_u32", sT, 7)
        e.S("s_cselect_b32", sB, 8, 16)
        e.V("v_cmp_le_u32", VCC, sB, vN)
        e.S("s_mov_b32", sStr, 3840)
        e.V("v_cndmask_b32", vCol, vCol, vBig, VCC)
        e.S("s_mov_b32", sD, 8 * 3840)
        e.V("v_mad_u32_u24", vReg, vG, sD, vCol)
        e.V("v_and_b32", vT0, 1, vG)
        e.V("v_lshrrev_b32", vT1, 1, vG)
        e.V("v_lshl_add_u32", vLd, vT0, 1, vT1)
        e.S("s_mov_b32", sD, 4 * 3840)
        e.V("v_mad_u32_u24", vLeft, vLd, sD, vCol)
        mk_srd(e, SR1, PP[2:4], D * 3 * D * 2)
        e.S("s_mul_i32", sB, sP, 80)
        self.gather(RAW1[0:8], SR1, sStr, vReg, sB)
        e.S("s_add_u32", sA, sB, 32)
        self.gather(RAW1[8:16], SR1, sStr, vReg, sA)
        e.S("s_add_u32", sA, sB, 64)
        self.gather(RAW1[16:20], SR1, sStr, vLeft, sA, 4)
        self.stamp("iss1")
        def r2touch():
            e.S("s_lshl_b32", sA, s(2), 2)
            e.S("s_add_u32", sA, sA, sWave)
            e.V("v_min_u32", T0, 17, vLane)
            e.V("v_lshlrev_b32", T0, 7, T0)
            e.S("s_mul_i32", sB, sA, 2160)
            mk_srd(e, SR2, PP[8:10], F * D * 2)
            e.touch(vDum, T0, SR2, sB, 0, cls=(2000, 30, 0))
            mk_srd(e, SR2, PP[12:14], F * D * 2)
            e.touch(vDum, T0, SR2, sB, 0, cls=(2000, 30, 0))
            e.V("v_min_u32", T0, 7 * 128, T0)
            mk_srd(e, SR2, PP[4:6], D * D * 2)
            e.S("s_mul_i32", sB, sA, 800)
            e.touch(vDum, T0, SR2, sB, 0, cls=(2000, 30, 0))
        if self.opt.get("r2touch", 3) == 1:
            r2touch()
        if self.opt.get("wsoff"):
            e.S("s_add_u32", pWs[0], pWs[0], self.opt["wsoff"] << 20)
            e.S("s_addc_u32", pWs[1], pWs[1], 0)
        mk_srd(e, WS, pWs, WS_USED)
        e.sload(sBase, pWs, EPOCH)
        e.S("s_mov_b32", sA, "0x3f803f80")
        e.V("v_mov_b32", vOne, sA)
        e.S("s_and_b32", sCG, sC, 7)
        e.S("s_lshr_b32", sRH, sC, 3)
        if self.opt.get("r2touch", 0) == 3:
            r2touch()
        mk_srd(e, SB2, PP[14:16], D * 2)
        self.prologue2()
        self.stamp("pro2")
        sU, sP, sStr, sJ = s(88), s(89), s(100), s(101)
        rows = [s(3 + i) for i in range(4)]
        D2 = [s(64), s(65), s(66), s(67)]
        sDB, sDX = s(70), s(71)
        vSel0, vSel1 = vA1, vA2
        mk_srd(e, SR1, PP[10:12], F * 2)
        e.S("s_lshl_b32", sJ, sRH, 4)
        e.S("s_add_u32", sJ, sJ, sR)
        e.S("s_lshl_b32", sJ, sJ, 2)
        e.S("s_add_u32", sJ, sJ, sWave)
        e.V("v_lshrrev_b32", vT0, 1, vG)
        e.V("v_and_b32", vT1, 1, vG)
        e.V("v_mov_b32", vSt2, vL16)
        e.S("s_mov_b32", sDX, BIG)
        lo, lc, lj = e.newlabel("job_wo"), e.newlabel("job_w2"), e.newlabel("job_go")

        def unit(sbase, nu, stride, ca, cb, nreg, dB):
            e.S("s_lshl_b32", sA, sU, 5)
            e.S("s_add_u32", sA, sA, sbase)
            e.S("s_lshl_b32", sA, sA, 1)
            e.S("s_mov_b32", sDB, dB)
            e.S("s_cmp_lt_u32", sU, nu)
            e.S("s_cselect_b64", VCC, -1, 0)
            e.S("s_cselect_b32", sDB, sDB, BIG)
            e.V("v_lshlrev_b32", vCol, 2, vN)
            e.V("v_and_b32", vReg, 14, vN)
            e.V("v_lshlrev_b32", vReg, 1, vReg)
            e.V("v_cndmask_b32", vCol, vReg, vCol, VCC)
            e.V("v_add_u32", vCol, sA, vCol)
            e.V("v_and_b32", vReg, 1, vN)
            e.V("v_cndmask_b32", vReg, vReg, 0, VCC)
            e.S("s_mov_b32", sA, "0x02020202")
            e.V("v_mul_lo_u32", vReg, vReg, sA)
            e.V("v_add_u32", vSel0, "0x05040100", vReg)
            e.S("s_mov_b32", sStr, stride)
            e.S("s_mov_b32", sD, 8 * stride)
            e.V("v_mul_u32_u24", vReg, sD, vG)
            e.S("s_mov_b32", sD, ca * stride)
            e.V("v_mul_u32_u24", vLeft, sD, vT0)
            e.S("s_mov_b32", sD, cb * stride)
            e.V("v_mad_u32_u24", vLeft, vT1, sD, vLeft)
            e.S("s_cmp_lt_u32", sP, nreg)
            e.S("s_cselect_b64", VCC, -1, 0)
            e.V("v_cndmask_b32", vA0, vLeft, vReg, VCC)

        def split_dests(half):
            for b in range(4):
                e.S("s_lshl_b32", sA, sP, 2)
                e.S("s_add_u32", sA, sA, b)
                e.S("s_mul_i32", sD, sA, 10)
                e.S("s_cmp_ge_u32", sA, half)
                e.S("s_cselect_b32", sB, 10 * half - 1, 0)
                e.S("s_sub_u32", sD, sD, sB)
                e.S("s_add_u32", sD, sD, sE)
                e.S("s_lshl_b32", D2[b], sD, 10)
                if half == 27 and b >= 2:
                    e.S("s_cmp_ge_u32", sA, 54)
                    e.S("s_cselect_b32", D2[b], BIG, D2[b])

        def div3(dq, dr, src):
            e.S("s_mul_i32", dq, src, 43691)
            e.S("s_lshr_b32", dq, dq, 17)
            e.S("s_mul_i32", sA, dq, 3)
            e.S("s_sub_u32", dr, src, sA)

        e.S("s_cmp_ge_u32", sJ, 55)
        e.branch("s_cbranch_scc1", lc)
        e.S("s_cmp_ge_u32", sJ, 40)
        e.branch("s_cbranch_scc1", lo)
        e.cond_begin()
        mk_srd(e, SR2, PP[8:10], D * F * 2)
        e.S("s_and_b32", sU, sJ, 3)
        e.S("s_lshr_b32", sP, sJ, 2)
        e.S("s_cmp_ge_u32", sP, 5)
        e.S("s_cselect_b32", sA, 5, 0)
        e.S("s_cselect_b32", sJ, 8, 0)
        e.S("s_sub_u32", sP, sP, sA)
        e.S("s_add_u32", sJ, sJ, sCG)
        e.S("s_mul_i32", sE, sJ, 112)
        e.S("s_max_u32", sB, sJ, 12)
        e.S("s_sub_u32", sB, sB, 12)
        e.S("s_lshl_b32", sB, sB, 4)
        e.S("s_sub_u32", sE, sE, sB)
        unit(sE, 3, 3456, 80, 8, 4, 1024)
        e.S("s_lshl_b32", sA, sU, 4)
        e.S("s_add_u32", sA, sA, sJ)
        e.S("s_cmp_ge_u32", sA, 3 * 16 + 12)
        e.S("s_cselect_b64", VCC, -1, 0)
        e.V("v_cndmask_b32", vCol, vCol, vBig, VCC)
        for b in range(4):
            e.S("s_mul_i32", sA, sP, 160)
            e.S("s_add_u32", sA, sA, 80 * (b >> 1) + 32 * (b & 1))
            e.S("s_cmp_eq_u32", sP, 4)
            e.S("s_cselect_b32", rows[b], 160 * b + 64, sA)
        e.S("s_cmp_lt_u32", sU, B1N // 2)
        e.S("s_cselect_b32", s(79), B1N, 7 - B1N)
        e.S("s_cselect_b32", sE, 0, 20 * B1N)
        e.S("s_lshl_b32", sA, sU, 1)
        e.S("s_add_u32", sE, sE, sA)
        e.S("s_mul_i32", sB, sJ, NB)
        e.S("s_add_u32", sE, sE, sB)
        e.S("s_add_u32", sE, sE, WB // KB)
        for b in range(4):
            e.S("s_lshl_b32", sA, sP, 2)
            e.S("s_add_u32", sA, sA, b)
            e.S("s_mul_i32", sA, sA, s(79))
            e.S("s_add_u32", sA, sA, sE)
            e.S("s_lshl_b32", D2[b], sA, 10)
        e.S("s_mul_i32", sD, s(79), 20)
        e.S("s_add_u32", sD, sD, sE)
        e.S("s_lshl_b32", sDX, sD, 10)
        e.branch("s_branch", lj)
        e.cond_end()
        e.label(lo)
        e.cond_begin()
        mk_srd(e, SR2, PP[4:6], D * D * 2)
        e.S("s_sub_u32", sJ, sJ, 40)
        div3(sP, sU, sJ)
        e.S("s_mul_i32", sE, sCG, 80)
        unit(sE, 2, 1280, 80, 40, 4, 2048)
        for b in range(4):
            e.S("s_mul_i32", sA, sP, 160)
            e.S("s_add_u32", sA, sA, 40 * b)
            e.S("s_cmp_eq_u32", sP, 4)
            e.S("s_cselect_b32", rows[b], 160 * b + 32, sA)
        e.S("s_mul_i32", sE, sCG, NO)
        e.S("s_add_u32", sE, sE, WO // KB)
        e.S("s_lshl_b32", sA, sU, 2)
        e.S("s_add_u32", sE, sE, sA)
        split_dests(10)
        e.branch("s_branch", lj)
        e.cond_end()
        e.label(lc)
        e.cond_begin()
        mk_srd(e, SR2, PP[12:14], F * D * 2)
        e.S("s_sub_u32", sJ, sJ, 55)
        div3(sP, sU, sJ)
        e.S("s_mul_i32", sE, sCG, 80)
        unit(sE, 2, 1280, 112, 8, 12, 2048)
        e.S("s_cmp_ge_u32", sP, 14)
        e.S("s_cselect_b64", VCC, -1, 0)
        e.V("v_cndmask_b32", vCol, vCol, vBig, VCC)
        e.V("v_cndmask_b32", vSt2, vSt2, vBig, VCC)
        e.S("s_min_u32", sP, sP, 13)
        for b in range(4):
            e.S("s_lshl_b32", sD, sP, 2)
            e.S("s_add_u32", sD, sD, b)
            e.S("s_mul_i32", sA, sD, 43691)
            e.S("s_lshr_b32", sA, sA, 17)
            e.S("s_lshl_b32", sA, sA, 4)
            e.S("s_min_u32", sA, sA, 192)
            e.S("s_lshl_b32", sB, sD, 5)
            e.S("s_add_u32", sA, sA, sB)
            e.S("s_mul_i32", sB, sD, 224)
            e.S("s_sub_u32", sB, sB, 224 * 48 - 96)
            e.S("s_cmp_ge_u32", sD, 48)
            e.S("s_cselect_b32", rows[b], sB, sA)
        e.S("s_mul_i32", sE, sCG, NC)
        e.S("s_add_u32", sE, sE, WC // KB)
        e.S("s_lshl_b32", sA, sU, 2)
        e.S("s_add_u32", sE, sE, sA)
        split_dests(27)
        e.cond_end()
        e.label(lj)
        e.V("v_add_u32", vA0, vA0, vCol)
        e.S("s_cmp_lt_u32", sP, 2)
        e.S("s_cselect_b64", VCC, -1, 0)
        e.V("v_cndmask_b32", vBias, vBig, vCol, VCC)
        e.V("v_mov_b32", vSel1, "0x07060302")
        e.V("v_add_u32", vT0, sP, vG)
        e.V("v_lshrrev_b32", vT1, 1, vT0)
        e.V("v_lshlrev_b32", vLd, 4, vN)
        e.V("v_lshl_add_u32", vLd, vT1, 8, vLd)
        e.V("v_and_b32", vT0, 1, vT0)
        e.V("v_lshl_add_u32", vLd, vT0, 3, vLd)
        e.S("s_cmp_eq_u32", sP, 4)
        e.S("s_cselect_b32", sA, 4, 1)
        e.V("v_cmp_gt_u32", VCC, sA, vG)
        e.V("v_cndmask_b32", vLd, vBig, vLd, VCC)
        e.S("s_lshl_b32", sA, sC, 4)
        e.S("s_add_u32", sA, sA, sR)
        e.S("s_mul_i32", sA, sA, KVSZ)
        e.S("s_mul_i32", sB, sWave, KVSZ // 4)
        e.S("s_add_u32", sA, sA, sB)
        e.S("s_add_u32", s(79), sA, KVB[1])
        self.stamp("dec2")
        sP2 = sP
        wT0, wT1, wLd, wSum = FIFO[8], FIFO[9], FIFO[10], FIFO[11]
        sT, sP = s(7), s(93)
        ops1 = []
        e.S("s_lshr_b32", sA, sC, 1)
        e.S("s_lshl_b32", sB, sR, 3)
        e.S("s_add_u32", sA, sA, sB)
        e.S("s_mul_i32", sA, sA, 20 * KB)
        e.S("s_and_b32", sB, sC, 1)
        e.S("s_lshl_b32", sB, sB, 7)
        e.S("s_add_u32", sA, sA, sB)
        e.S("s_add_u32", sA, sA, XB[0])
        for k in range(3):
            e.S("s_lshl_b32", sB, XM[k], 11)
            e.S("s_add_u32", sB, sB, sA)
            ops1.append(e.bstore(XJ[k], XD, WS, sB, 0, "sc1", cls=(1000, 70, 0)))
        xs = ACC[26:28]
        xz = ACC[24:26]
        MK = ACC[28:32]
        for r_ in (xs[0], xs[1], xz[0], xz[1]):
            e.V("v_mov_b32", r_, 0)
        for k in range(3):
            for i in range(4):
                e.V("v_dot2c_f32_bf16", xs[0], XJ[k][i], vOne)
                e.V("v_dot2c_f32_bf16", xs[1], XJ[k][i], XJ[k][i])
        for h in range(2):
            e.V("v_add_f32_dpp", xs[h], xs[h], xs[h], mods="row_ror:8 row_mask:0xf bank_mask:0xf")
            allreduce_g(e, xs[h], wT0)
        e.S("s_lshl_b32", sA, sR, 3)
        e.S("s_add_u32", sA, sA, sWave)
        e.S("s_lshl_b32", sA, sA, 10)
        e.S("s_lshl_b32", sB, sC, 6)
        e.S("s_add_u32", sA, sA, sB)
        e.S("s_add_u32", sA, sA, STB[0])
        e.S("s_add_u32", sB, sA, 4096)
        e.V("v_lshlrev_b32", wT0, 3, vLane)
        e.S("s_mov_b64", EXEC, "0xff")
        ops1.append(e.bstore(xs, wT0, WS, sA, 0, "sc1", cls=(1000, 20, 0)))
        ops1.append(e.bstore(xz, wT0, WS, sB, 0, "sc1", cls=(1000, 20, 0)))
        e.S("s_mov_b64", EXEC, -1)
        self.stamp("xst")
        e.S("s_cmp_lt_u32", sT, 5)
        e.S("s_cselect_b32", sE, 5, 3)
        e.S("s_cselect_b32", sA, 0, 100)
        e.S("s_add_u32", sA, sA, sT)
        e.S("s_mul_i32", sB, sC, NA)
        e.S("s_add_u32", sA, sA, sB)
        e.S("s_add_u32", sA, sA, WA // KB)
        e.S("s_lshl_b32", sA, sA, 10)
        e.S("s_lshl_b32", sE, sE, 10)
        e.S("s_mul_i32", sB, sP, sE)
        e.S("s_lshl_b32", sB, sB, 1)
        e.S("s_add_u32", sB, sB, sA)
        self.pack(RAW1[0:8])
        ops1.append(e.bstore(RAW1[0:4], vL16, WS, sB, 0, "sc1", cls=(1000, 70, 0)))
        e.S("s_add_u32", sB, sB, sE)
        self.pack(RAW1[8:16])
        ops1.append(e.bstore(RAW1[8:12], vL16, WS, sB, 0, "sc1", cls=(1000, 70, 0)))
        e.S("s_lshr_b32", sB, sP, 1)
        e.S("s_add_u32", sB, sB, 16)
        e.S("s_mul_i32", sB, sB, sE)
        e.S("s_add_u32", sB, sB, sA)
        e.S("s_and_b32", sD, sP, 1)
        e.S("s_lshl_b32", s(95), sD, 9)
        e.S("s_add_u32", sB, sB, s(95))
        e.V("v_lshlrev_b32", wT0, 8, vG)
        e.V("v_and_b32", wT0, 256, wT0)
        e.V("v_lshl_add_u32", wT0, vN, 4, wT0)
        e.V("v_lshrrev_b32", wT1, 1, vG)
        e.V("v_lshl_add_u32", wLd, wT1, 3, wT0)
        self.pack(RAW1[16:20], 2)
        ops1.append(e.bstore(RAW1[16:18], wLd, WS, sB, 0, "sc1", cls=(1000, 40, 0)))
        self.colsum([RAW1[i] for i in (0, 1, 2, 3, 8, 9, 10, 11, 16, 17)], EX, wSum, wT0)
        e.S("s_mul_i32", sB, sE, 20)
        e.S("s_add_u32", sB, sB, sA)
        e.S("s_lshr_b32", sA, sP, 1)
        e.S("s_lshl_b32", sA, sA, 8)
        e.S("s_add_u32", sB, sB, sA)
        e.S("s_lshl_b32", sD, sD, 3)
        e.S("s_add_u32", sB, sB, sD)
        e.S("s_mov_b64", EXEC, "0xffff")
        ops1.append(e.bstore(EX[0:2], vL16, WS, sB, 0, "sc1", cls=(1000, 20, 0)))
        e.S("s_mov_b64", EXEC, -1)
        self.stamp("r1")
        if self.opt.get("r2touch", 3) == 2:
            r2touch()
        for i in range(4):
            e.V("v_mov_b32", MK[i], -1)
        e.S("s_lshl_b32", sA, sC, 4)
        e.S("s_add_u32", sA, sA, sR)
        e.S("s_mul_i32", sA, sA, KVSZ)
        e.S("s_mul_i32", sB, sWave, KVSZ // 4)
        e.S("s_add_u32", sA, sA, sB)
        e.S("s_add_u32", sA, sA, KVB[0])
        e.S("s_mov_b64", EXEC, "0xfffffff")
        ops1.append(e.bstore(MK, vL16, WS, sA, 0, "sc1", cls=(1000, 40, 0)))
        e.S("s_mov_b64", EXEC, -1)
        self.stamp("xjob")
        sP = sP2
        self.ops2 = []

        def r2_loads():
            for b in range(4):
                e.S("s_mul_i32", sE, rows[b], sStr); yield
                for i in range(8):
                    e.bload(RAW2[8 * b + i], vA0, SR2, sE, 0, cls=(1500, 32, 0)); yield
                    if i < 7:
                        e.S("s_add_u32", sE, sE, sStr); yield
            e.bload(vBias, vBias, SR1, 0, 0, cls=(1500, 10, 0)); yield

        vs, vt, MK = TMP[48], TMP[49], TMP[40:44]
        EV = ACC[40:56]

        def r2_pack():
            for b in range(4):
                raw = RAW2[8 * b:8 * b + 8]
                for i in range(4):
                    e.V("v_perm_b32", EV[4 * b + i], raw[2 * i + 1], raw[2 * i], vSel0)
                for i in range(4):
                    e.V("v_perm_b32", raw[i], raw[2 * i + 1], raw[2 * i], vSel1)
            for i in range(4):
                e.V("v_mov_b32", MK[i], -1)
            e.V("v_cmp_eq_u32", sNan, 0, vG)
            for h in range(2):
                ex = TMP[44 + 2 * h:46 + 2 * h]
                self.colsum([EV[i] for i in range(16)] if h == 0 else [RAW2[8 * b + i] for b in range(4) for i in range(4)], ex, vs, vt)
                e.V("v_perm_b32", vt, vBias, vBias, vSel0 if h == 0 else vSel1)
                e.V("v_and_b32", vt, "0xffff0000", vt)
                e.V("v_or_b32", ex[1], ex[1], vt)
                e.V("v_cndmask_b32", ex[0], 0, ex[0], sNan)
                e.V("v_cndmask_b32", ex[1], 0, ex[1], sNan)
            e.V("v_mov_b32", vSel0, vLd)
            yield

        def r2_stores():
            for b in range(4):
                self.ops2.append(e.bstore(EV[4 * b:4 * b + 4], vSt2, WS, D2[b], 0, "sc1", cls=(1000, 70, 0)))
                e.S("s_add_u32", sA, D2[b], sDB)
                self.ops2.append(e.bstore(RAW2[8 * b:8 * b + 4], vSt2, WS, sA, 0, "sc1", cls=(1000, 70, 0)))
            e.S("s_mov_b64", EXEC, "0xfffffff")
            self.ops2.append(e.bstore(MK, vL16, WS, s(79), 0, "sc1", cls=(1000, 40, 0)))
            e.S("s_mov_b64", EXEC, -1)
            for h in range(2):
                if h:
                    e.S("s_add_u32", sDX, sDX, sDB)
                self.ops2.append(e.bstore(TMP[44 + 2 * h:46 + 2 * h], vSel0, WS, sDX, 0, "sc1", cls=(1000, 20, 0)))
        self.r2_stores = r2_stores
        self.r2_loads, self.r2_pack = r2_loads(), r2_pack()
        npre = self.opt.get("r2pre", 99)
        for _ in self.r2_loads:
            npre -= 1
            if npre <= 0:
                break
        self.stamp("iss2")
        e.wait_ops(ops1)
        e.barrier()
        self.flag("both", 1, ACC[34], ACC[35])
        self.stamp("w1flag")
        for _ in self.r2_loads:
            pass
        for _ in self.r2_pack:
            pass
        self.al0 = None
        if self.opt.get("early_a", 0):
            self.poll("row", 1)
            e.barrier()
        if self.opt.get("r2st", 2) == 2:
            r2_stores()
            self.late_loads()
        self.stamp("r2")
        if self.opt.get("early_a", 0):
            self.stats_loads(0)
            self.al0 = self.ALoad(self, vAx, (sXr, XB[0]), 20)
            self.al0.upto(19)
        self.poll("col" if self.al0 else "both", 1)
        e.barrier()
        self.stamp("w1go")

    def w2_gen(self):
        e = self.e
        t = RES[0]
        e.V("v_bfe_u32", t, vLane, 4, 1); yield
        e.V("v_lshl_add_u32", t, t, 11, vFl); yield
        e.S("s_lshl_b32", s(4), sCG, 8); yield
        e.S("s_add_u32", s(4), s(4), FLG_C); yield
        e.bload(RES[1], t, WS, s(4), 0, "sc1", cls=(900, 10, 0)); yield
        for _ in range(self.opt.get("w2wait", 50)):
            yield "idle"
        e.S("s_add_u32", s(5), sBase, 2); yield
        lok, lre = e.newlabel("w2ok"), e.newlabel("w2retry")
        e.V("v_cmp_ne_u32", VCC, s(5), RES[1])
        e.S("s_cmp_eq_u64", VCC, 0)
        e.branch("s_cbranch_scc1", lok)
        e.cond_begin()
        e.S("s_mov_b32", sCnt, 0)
        e.label(lre)
        e.misc("s_sleep 4")
        e.bload(RES[1], t, WS, s(4), 0, "sc1")
        e.V("v_cmp_ne_u32", VCC, s(5), RES[1])
        e.S("s_cmp_eq_u64", VCC, 0)
        e.branch("s_cbranch_scc1", lok)
        e.S("s_add_u32", sCnt, sCnt, 1)
        e.S("s_cmp_lt_u32", sCnt, 0x20000)
        e.branch("s_cbranch_scc1", lre)
        e.cond_end()
        e.label(lok)
        self.gate = 1 << 20
        yield

    def prologue2(self):
        e = self.e
        T0, T1, T2, T3, T4, T5 = [TMP[40 + i] for i in range(6)]
        mk_srd(e, OUT, pOut, XSZ)
        e.S("s_and_b32", sKH, sWave, 1)
        e.S("s_lshl_b32", sW2048, sWave, 11)
        e.S("s_mul_i32", sA, sC, NA * KB)
        e.S("s_add_u32", sSeg["A"], sA, WA)
        e.S("s_mul_i32", sA, sCG, NO * KB)
        e.S("s_add_u32", sSeg["O"], sA, WO)
        e.S("s_mul_i32", sA, sC, NB * KB)
        e.S("s_add_u32", sSeg["B"], sA, WB)
        e.S("s_mul_i32", sA, sCG, NC * KB)
        e.S("s_add_u32", sSeg["C"], sA, WC)
        e.V("v_add_u32", vDma, sW2048, vL16)
        e.S("s_mul_i32", sXr, sR, 160 * KB)
        e.S("s_mul_i32", sHr, sR, 432 * KB)
        e.S("s_lshl_b32", sSTr, sR, 13)
        e.S("s_mul_i32", sA, sWave, 40 * KB)
        e.V("v_add_u32", vAx[0], sA, vL16)
        e.V("v_add_u32", vAx[1], 20 * KB, vAx[0])
        e.V("v_lshlrev_b32", T0, 11, vG)
        e.V("v_lshl_add_u32", T0, vN, 3, T0)
        e.S("s_lshl_b32", sA, sWave, 8)
        e.V("v_add_u32", vSt, sA, T0)
        e.S("s_mov_b32", self.cInvD, lit(1.0 / D))
        for j in range(3):
            if j == 0:
                e.V("v_mov_b32", vW[0], vL16)
            else:
                e.V("v_add_u32", vW[j], j * 65536, vL16)
        e.S("s_lshl_b32", sA, sKH, 10)
        for j in range(3):
            e.V("v_add_u32", vK[j], sA, vW[j])
        e.V("v_lshlrev_b32", T4, 4, v(0))
        Z = TMP[44:48]
        Z = TMP[48:52]
        for j in range(4):
            e.V("v_mov_b32", Z[j], 0)
        e.ds_write(T4, Z, 0)
        e.ds_write(T4, Z, 4096)
        e.S("s_lshl_b32", sTT, sRH, 2)
        e.S("s_add_u32", sTT, sTT, sWave)
        e.S("s_xor_b32", sB, sTT, 1)
        for u, st in ((0, sTT), (1, sB)):
            e.S("s_mul_i32", sA, st, 20 * KB)
            e.S("s_mul_i32", sD, sKH, 10 * KB)
            e.S("s_add_u32", sA, sA, sD)
            e.V("v_add_u32", vAo[u], sA, vL16)
            e.S("s_mul_i32", sA, st, 54 * KB)
            e.S("s_mul_i32", sD, sKH, 27 * KB)
            e.S("s_add_u32", sA, sA, sD)
            e.V("v_add_u32", vAh[u], sA, vL16)
        e.V("v_lshrrev_b32", T0, 1, vG)
        e.V("v_and_b32", T1, 1, vG)
        e.V("v_lshlrev_b32", T2, 4, vN)
        e.V("v_lshl_add_u32", T3, T0, 8, T2)
        e.V("v_lshl_add_u32", T3, T1, 3, T3)
        e.S("s_mul_i32", sA, sTT, 20 * KB)
        e.V("v_add_u32", vXs, sA, vL16)
        e.V("v_add_u32", vXh, sA, T3)
        e.S("s_mul_i32", sA, sWave, 108 * KB)
        e.V("v_add_u32", vHs, sA, vL16)
        e.S("s_cmp_ge_u32", sC, 12)
        e.S("s_cselect_b32", sA, BIG, sA)
        e.V("v_add_u32", vHh, sA, T3)
        e.S("s_mul_i32", sA, sWave, 40 * KB)
        e.V("v_lshl_add_u32", T3, vG, 3, T2)
        e.V("v_add_u32", vOh, sA, T3)
        e.V("v_cmp_gt_u32", VCC, 2, vG)
        e.V("v_mov_b32", T3, BIG)
        e.V("v_cndmask_b32", vOh, T3, vOh, VCC)
        e.S("s_lshl_b32", sA, sTT, 7)
        e.V("v_lshl_add_u32", T3, vN, 3, sA)
        e.V("v_lshl_add_u32", vStW, T0, 2, T3)
        e.S("s_lshl_b32", sA, sWave, 7)
        e.S("s_add_u32", sA, sA, RST)
        e.V("v_lshl_add_u32", vRT, vG, 4, sA)
        e.V("v_lshl_add_u32", vRW, vN, 2, sA)
        e.S("s_lshl_b32", sA, sTT, 6)
        e.S("s_add_u32", sA, sA, RST)
        e.V("v_lshl_add_u32", vRF, vN, 2, sA)
        e.V("v_lshlrev_b32", T3, 4, vG)
        e.V("v_add_u32", vZ2, ZT + 128, T3)
        e.V("v_cmp_gt_u32", VCC, 10, vN)
        e.V("v_add_u32", T3, ZT, T3)
        e.V("v_cndmask_b32", vZ01, vZ2, T3, VCC)
        e.S("s_lshl_b32", sA, sR, 3)
        e.S("s_add_u32", sA, sA, sTT)
        e.S("s_mul_i32", sA, sA, 16 * 1280)
        e.S("s_mul_i32", sB, sCG, 160)
        e.S("s_add_u32", sA, sA, sB)
        e.V("v_mul_u32_u24", T3, 1280, vN)
        e.V("v_add_u32", T3, sA, T3)
        e.V("v_lshl_add_u32", vOut, vG, 4, T3)
        e.V("v_lshl_add_u32", vOut4, vG, 3, T3)
        e.S("s_mul_i32", sA, sWave, 5120)
        e.V("v_add_u32", vXch, sA, vL16)
        e.V("v_lshlrev_b32", vFl, 2, vN)
        e.V("v_mov_b32", vLn2[0], lit(LN2))
        e.V("v_mov_b32", vEps[0], lit(1e-6))
        e.S("s_mov_b32", sMaskV[0], "0x00ff00ff")
        e.S("s_mov_b32", sMaskV[1], "0x00ff00ff")
        e.S("s_lshl_b32", sA, sR, 8)
        e.S("s_add_u32", sFRL, sA, FLG_RL)
        e.S("s_add_u32", sFRG, sA, FLG_RG)
        e.S("s_lshl_b32", sA, sC, 8)
        e.S("s_add_u32", sFC, sA, FLG_C)
        e.S("s_lshl_b32", sA, sCG, 11)
        e.S("s_add_u32", sOx, sXr, sA)
        e.S("s_lshr_b32", sA, sCG, 1)
        e.S("s_lshl_b32", sA, sA, 10)
        e.S("s_and_b32", sB, sCG, 1)
        e.S("s_lshl_b32", sB, sB, 9)
        e.S("s_add_u32", sA, sA, sB)
        e.S("s_add_u32", sA, sA, 16 * KB)
        e.S("s_add_u32", sOxh, sXr, sA)
        e.S("s_lshl_b32", sA, sCG, 10)
        e.S("s_add_u32", sOst, sSTr, sA)
        e.S("s_lshl_b32", sA, sC, 10)
        e.S("s_add_u32", sOo, sXr, sA)
        e.S("s_lshl_b32", sA, sC, 8)
        e.S("s_add_u32", sA, sA, 16 * KB)
        e.S("s_add_u32", sOoh, sXr, sA)
        e.S("s_mul_i32", sA, sC, 3 * KB)
        e.S("s_add_u32", sOh, sHr, sA)
        e.S("s_lshl_b32", sA, sC, 9)
        e.S("s_add_u32", sA, sA, 48 * KB)
        e.S("s_add_u32", sOhh, sHr, sA)
        e.S("s_mul_i32", sKv, sC, 16 * KVSZ)
        e.misc(f"s_getreg_b32 {sX1}, hwreg(HW_REG_XCC_ID, 0, 4)")
        e.S("s_and_b32", sX1, sX1, 7)
        e.S("s_add_u32", sX1, sX1, 8)
        e.S("s_add_u32", sX1, sX1, sBase)
        e.S("s_mov_b32", sLocal, 0)
        U, Hh, Ee, Dq = T0, T1, T2, T3
        e.S("s_mov_b32", sA, 52429)
        e.V("v_mul_u32_u24", U, sA, v(0))
        e.V("v_lshrrev_b32", U, 18, U)
        e.V("v_mul_u32_u24", Dq, 5, U)
        e.V("v_sub_u32", Dq, v(0), Dq)
        e.V("v_cmp_le_u32", VCC, 21, U)
        e.V("v_cndmask_b32", Hh, 0, 1, VCC)
        e.V("v_mul_u32_u24", Ee, 21, Hh)
        e.V("v_sub_u32", Ee, U, Ee)
        A0, A1, A2, A3 = TMP[46], TMP[47], TMP[38], TMP[39]
        e.V("v_cmp_le_u32", s(100, 2), 16, Ee)
        e.V("v_cmp_eq_u32", s(88, 2), 4, Dq)
        e.V("v_cndmask_b32", A0, 0, 1, s(100, 2))
        e.V("v_lshl_add_u32", A0, Hh, 1, A0)
        e.V("v_add_u32", A1, 4, Hh)
        e.V("v_cndmask_b32", A1, A1, 6, s(100, 2))
        e.V("v_cndmask_b32", A0, A0, A1, s(88, 2))
        e.V("v_cndmask_b32", A1, Dq, Hh, s(88, 2))
        e.V("v_lshl_add_u32", A2, Hh, 2, Ee)
        e.V("v_subrev_u32", A2, 8, A2)
        e.V("v_cndmask_b32", A2, Ee, A2, s(100, 2))
        e.V("v_cmp_eq_u32", VCC, 20, Ee)
        e.V("v_cndmask_b32", A2, A2, 0, VCC)
        e.V("v_lshl_add_u32", A1, A1, 4, A2)
        e.V("v_lshlrev_b32", A1, 4, A1)
        e.V("v_lshl_add_u32", vKvSrc, A0, 10, A1)
        e.V("v_mul_u32_u24", A0, 5, Hh)
        e.V("v_add_u32", A0, A0, Dq)
        e.V("v_cmp_le_u32", s(88, 2), 8, A0)
        e.V("v_lshrrev_b32", A1, 1, A0)
        e.V("v_subrev_u32", A2, 8, A0)
        e.V("v_cndmask_b32", A1, A1, A2, s(88, 2))
        e.V("v_and_b32", A2, 1, A0)
        e.V("v_cndmask_b32", A2, A2, 0, s(88, 2))
        e.V("v_lshlrev_b32", A2, 3, A2)
        e.V("v_cndmask_b32", A0, 0, 1, s(88, 2))
        e.V("v_lshl_add_u32", A3, Hh, 1, A0)
        e.V("v_lshl_add_u32", A3, A3, 2, A1)
        e.V("v_lshl_add_u32", A3, A3, 4, A2)
        e.V("v_add_u32", A3, ZT, A3)
        e.V("v_mul_u32_u24", T4, 20, Hh)
        e.V("v_add_u32", T4, T4, Ee)
        e.V("v_cmp_le_u32", s(100, 2), 32, T4)
        e.V("v_and_b32", T5, 1, T4)
        e.V("v_cndmask_b32", T5, T5, 2, s(100, 2))
        e.V("v_lshl_add_u32", A0, T5, 1, A0)
        e.V("v_lshrrev_b32", T5, 1, T4)
        e.V("v_subrev_u32", T4, 32, T4)
        e.V("v_cndmask_b32", T4, T5, T4, s(100, 2))
        e.V("v_lshl_add_u32", T4, A1, 4, T4)
        e.V("v_lshl_add_u32", T4, T4, 4, A2)
        e.V("v_lshl_add_u32", T4, A0, 10, T4)
        e.V("v_cndmask_b32", T4, T4, A3, VCC)
        e.V("v_cmp_gt_u32", VCC, 210, v(0))
        e.V("v_mov_b32", T5, DUMMY)
        e.V("v_cndmask_b32", vKvDst, T5, T4, VCC)
        e.V("v_cndmask_b32", vKvSrc, 0, vKvSrc, VCC)
        e.V("v_lshlrev_b32", T4, 3, v(0))
        e.V("v_mov_b32", T5, BIG)
        e.V("v_cndmask_b32", vT16, T5, T4, VCC)
        e.V("v_and_b32", T4, -16, T4)
        e.V("v_and_b32", T0, 1, v(0))
        e.V("v_mul_u32_u24", T0, 8 * KVSZ, T0)
        e.V("v_add_u32", T4, T4, T0)
        e.V("v_cndmask_b32", vT16L, T5, T4, VCC)

    def late_loads(self):
        e = self.e
        T4, T5 = TMP[48], TMP[49]
        e.S("s_mul_i32", sB, sCG, 160)
        e.bload(RES[10:14], vOut, XIN, 0, 0)
        e.bload(RES[14:18], vOut, XIN, 0, 64)
        e.bload(RES[18:20], vOut4, XIN, 0, 128)
        skip = e.newlabel("noxid")
        e.S("s_cmp_lg_u32", sWave, 3)
        e.branch("s_cbranch_scc1", skip)
        e.cond_begin()
        e.S("s_lshl_b32", sA, sR, 8)
        e.S("s_add_u32", sA, sA, FLG_X)
        e.S("s_lshl_b32", sB, sC, 2)
        e.V("v_mov_b32", T4, sB)
        e.V("v_mov_b32", T5, sX1)
        e.S("s_mov_b64", EXEC, 1)
        e.bstore(T5, T4, WS, sA, 0, "sc1")
        e.S("s_mov_b64", EXEC, -1)
        e.cond_end()
        e.label(skip)

    def unpack(self, dst, pk):
        e = self.e
        for a_ in range(2):
            for j in range(4):
                e.V("v_lshlrev_b32", dst[8 * a_ + j], 16, pk[4 * a_ + j])
                e.V("v_and_b32", dst[8 * a_ + 4 + j], "0xffff0000", pk[4 * a_ + j])
        for j in range(2):
            e.V("v_lshlrev_b32", dst[16 + 2 * j], 16, pk[8 + j])
            e.V("v_and_b32", dst[16 + 2 * j + 1], "0xffff0000", pk[8 + j])

    class ALoad:
        def __init__(self, m, vaddr, terms, nks):
            self.m, self.vaddr, self.terms, self.nks = m, vaddr, terms, nks
            self.n = 0
            self.based = -1
            self.done = False
            self.win = 20

        def step(self):
            e = self.m.e
            ks, u = divmod(self.n, 2)
            if ks // 4 != self.based:
                self.based = ks // 4
                e.S("s_add_u32", sLd, self.terms[0], self.terms[1] + (ks // 4) * 4 * KB)
                return False
            e.bload(a((self.n % 40) * 4, 4), self.vaddr[u], WS, sLd, (ks % 4) * KB, self.m.opt.get("amod", "sc1"), cls=(self.m.opt.get("latA", 600), 76, 33 if self.nks == 27 else 16))
            self.n += 1
            self.done = self.n >= 2 * self.nks
            return True

        def upto(self, ks):
            while self.n < 2 * min(ks + 1, self.nks):
                self.step()

    def stats_loads(self, ver):
        e = self.e
        e.S("s_add_u32", sA, sSTr, STB[ver])
        for u in range(2):
            for k in range(2):
                e.bload(TMP[4 * u + 2 * k:4 * u + 2 * k + 2], vSt, WS, sA, k * 1024 + u * 128, "sc1", cls=(600, 20, 0))

    def stats_gen(self, need_T, have=False):
        e = self.e
        for u in range(2):
            sm, sq, t0, t1 = TMP[4 * u], TMP[4 * u + 1], TMP[4 * u + 2], TMP[4 * u + 3]
            if not have:
                e.V("v_add_f32", sm, sm, t0); yield
                e.V("v_add_f32", sq, sq, t1); yield
            for op in () if have else ("v_permlane32_swap_b32", "v_permlane16_swap_b32"):
                e.V("v_mov_b32", t0, sm); yield
                e.V("v_mov_b32", t1, sq); yield
                e.V(op, sm, t0); yield
                e.V(op, sq, t1); yield
                e.V("v_add_f32", sm, sm, t0); yield
                e.V("v_add_f32", sq, sq, t1); yield
            e.V("v_mul_f32", sm, lit(1.0 / D), sm); yield
            e.V("v_mul_f32", t0, sm, sm); yield
            e.V("v_fma_f32", sq, sq, self.cInvD, Neg(t0)); yield
            e.V("v_max_f32", sq, 0, sq); yield
            e.V("v_add_f32", sq, lit(1e-5), sq); yield
            e.V("v_rsq_f32", t0, sq); yield
            e.V("v_cvt_pk_bf16_f32", XE[u][0], sm, sm); yield
            e.V("v_mul_f32", sq, sq, t0); yield
            e.ds_write(vRW, t0, 64 * u); yield
            c2 = vC2 if u == 0 else vC2b
            e.V("v_mul_f32", c2[0], lit(LOG2E), t0); yield
            e.V("v_lshlrev_b32", t1, 16, XE[u][0]); yield
            e.V("v_sub_f32", sm, sm, t1); yield
            e.V("v_cvt_pk_bf16_f32", XE[u][1], sm, sq); yield
            e.V("v_and_b32", t1, "0xffff0000", XE[u][1]); yield
            e.V("v_sub_f32", t1, sq, t1); yield
            e.V("v_cvt_pk_bf16_f32", XE[u][3], sm, t1); yield
            e.V("v_mov_b32", XE[u][2], XE[u][0]); yield
        if need_T:
            for u in range(2):
                e.ds_read(RT[4 * u:4 * u + 4], vRT, 64 * u); yield

    def phi_pair(self, src, c2, bcast, t):
        e = self.e
        m = "op_sel_hi:[1,0]" if bcast else ""
        e.V("v_pk_mul_f32", t[0:2], src, c2, mods=m)
        e.V("v_exp_f32_e64", t[2], t[0], mods="clamp")
        e.V("v_exp_f32_e64", t[3], t[1], mods="clamp")
        e.V("v_max_f32", t[0], 0, t[0])
        e.V("v_max_f32", t[1], 0, t[1])
        e.V("v_pk_add_f32", t[2:4], t[2:4], vEps, mods="op_sel_hi:[1,0]")
        e.V("v_pk_fma_f32", t[0:2], t[0:2], vLn2, t[2:4], mods="op_sel_hi:[1,0,1]")

    def scratch(self, nblk, endpos):
        st = endpos - nblk
        if (st % RB) + nblk > RB:
            st = endpos - (endpos % RB) - nblk
        self.last_scratch = (st, st + nblk)
        return st, self.ldsaddr(st)

    def bg_on(self, tail):
        e = self.e
        st = {"next": 0}
        t_end = e.T + tail
        self.deadline = lambda: t_end

        def f():
            if e.T >= st["next"] and self.dma_ok():
                n0 = len(e.vm) + len(e.lg) + len(self.deferred)
                while len(e.vm) + len(e.lg) + len(self.deferred) == n0:
                    next(self.dmaf)
                st["next"] = e.T + self.opt.get("vgap", 24)
        self.e.bg = f

    def code_touch(self, ahead=None):
        e = self.e
        if not self.opt.get("ctouch", 1):
            return
        lab = e.newlabel("here")
        e.label(lab)
        ahead = self.opt.get("cahead", 2048) if ahead is None else ahead
        e.V("v_lshlrev_b32", v(51), 5, v(0))
        e.V("v_add_u32", v(51), f"{lab}-{self.kname}+{ahead}", v(51))
        e.V("v_min_u32", v(51), self.opt.get("code_bytes", 32768) - 4, v(51))
        e.misc(f"global_load_dword {vDum}, {v(51)}, s[96:97]")
        e._vm([], (800, 30, 10))

    def at_block(self, t, gen):
        i0 = self.cons
        while self.cons < i0 + t:
            yield "idle"
        yield from gen

    def delay(self, n, gen):
        for _ in range(n):
            yield "idle"
        yield from gen

    def code_touch_gen(self):
        self.code_touch(self.opt.get("cahead", 512))
        yield

    def bg_off(self):
        self.e.bg = None

    def gstore(self, lst, cold=False):
        e = self.e
        mode = self.opt.get("mode", "dual")
        if cold and not self.opt.get("touchcold", 0):
            mode = "safe"
        if mode != "dual":
            return [e.bstore(d, vo, WS, so, off, "sc1" if mode == "safe" else "") for d, vo, so, off in lst]
        ls, le = e.newlabel("st_safe"), e.newlabel("st_end")
        regs = []
        for d, vo, so, off in lst:
            regs += d.regs() + vo.regs()
        e.wait_ops(e._pending(regs))
        e.S("s_cmp_eq_u32", sLocal, 0)
        need = e._need("vmem", regs, [])
        if need > 1:
            e.nop(need - 1)
        e.branch("s_cbranch_scc1", ls)
        n0 = len(e.lines)
        ops = [e.bstore(d, vo, WS, so, off, "") for d, vo, so, off in lst]
        body = e.lines[n0:]
        assert len(body) == len(lst), body
        e.raw(f"  s_branch {le}")
        e.label(ls)
        for l in body:
            e.raw(l + " sc1")
        e.label(le)
        return ops

    def touch_gen(self, lst, cold=False):
        e = self.e
        if (cold and not self.opt.get("touchcold", 0)) or not self.opt.get("touch", 0):
            return
        for vo, sb, add, off in lst:
            e.S("s_add_u32", sE, sb, add); yield
            e.touch(vDum, vo, WS, sE, off, cls=(750, 80, 30)); yield

    def local_gen(self):
        e = self.e
        e.S("s_lshl_b32", s(6), sR, 8); yield
        e.S("s_add_u32", s(6), s(6), FLG_X); yield
        e.bload(TMP[39], vFl, WS, s(6), 0, "sc1"); yield
        for _ in range(40):
            yield "idle"
        e.V("v_cmp_ne_u32", VCC, sX1, TMP[39]); yield
        e.S("s_cmp_eq_u64", VCC, 0)
        e.S("s_cselect_b32", sLocal, 1, 0); yield

    def poll(self, kind, val):
        e = self.e
        skip = e.newlabel("nopoll")
        loop = e.newlabel("poll")
        e.S("s_cmp_lg_u32", sWave, 0)
        e.branch("s_cbranch_scc1", skip)
        e.cond_begin()
        t = TMP[38]
        e.S("s_mov_b32", sCnt, 0)
        e.S("s_mov_b64", sOk, 0)
        e.S("s_add_u32", sB, sBase, val)
        va, vb, sa, sb = (vFl, vFl, sFRL, sFRG) if kind != "col" else (vFl, vFl, sFC, sFC)
        if kind == "both":
            va, vb, sa, sb = TMP[36], TMP[37], 0, 0
            e.V("v_cmp_gt_u32", VCC, 2, vG)
            e.V("v_mov_b32", va, sFC)
            e.V("v_mov_b32", vb, sFRL)
            e.V("v_cndmask_b32", va, vb, va, VCC)
            e.V("v_add_u32", va, va, vFl)
            e.V("v_mov_b32", vb, FLG_RG - FLG_RL)
            e.V("v_cndmask_b32", vb, vb, 0, VCC)
            e.V("v_add_u32", vb, va, vb)
        one = kind == "row" and self.opt.get("onepoll", 1)
        if one:
            e.S("s_cmp_eq_u32", sLocal, 0)
            e.S("s_cselect_b32", sA, sFRG, sFRL)
            sa = sA
        e.label(loop)

        def chk():
            e.misc("s_waitcnt vmcnt(0)")
            e.misc(f"v_subrev_u32 {t}, {sB}, {t}")
            e.misc(f"v_cmp_ge_u32 vcc, 1, {t}")
            e.misc(f"s_or_b64 {sOk}, {sOk}, vcc")
            e.misc(f"s_cmp_eq_u64 {sOk}, -1")
            e.misc(f"s_cbranch_scc1 {skip}")
        e.misc(f"buffer_load_dword {t}, {va}, {WS}, {sa} offen sc1")
        e.misc("s_add_u32 %s, %s, 1" % (sCnt, sCnt))
        chk()
        if kind != "row":
            e.misc("s_sleep 3")
        if not one:
            e.misc(f"s_and_b32 {sA}, {sCnt}, 3")
            e.misc(f"s_cbranch_scc1 {loop}")
            e.misc(f"buffer_load_dword {t}, {vb}, {WS}, {sb} offen sc1")
            chk()
        e.misc(f"s_cmp_lt_u32 {sCnt}, 0x80000")
        e.misc(f"s_cbranch_scc1 {loop}")
        e.cond_end()
        e.label(skip)

    def flag(self, kind, val, t0=TMP[37], t1=TMP[38]):
        e = self.e
        lst = [(1, sFRG, "sc1", sC), (2, sFRL, "", sC)] if kind != "col" else []
        if kind != "row":
            lst.append((3, sFC, "sc1", sR))
        for w, sb, m, sidx in lst:
            skip = e.newlabel("noflag")
            e.S("s_cmp_lg_u32", sWave, w)
            e.branch("s_cbranch_scc1", skip)
            e.cond_begin()
            e.S("s_lshl_b32", sA, sidx, 2)
            e.V("v_mov_b32", t0, sA)
            e.S("s_add_u32", sA, sBase, val)
            e.V("v_mov_b32", t1, sA)
            e.S("s_mov_b64", EXEC, 1)
            e.bstore(t1, t0, WS, sb, 0, m)
            e.S("s_mov_b64", EXEC, -1)
            e.cond_end()
            e.label(skip)

    def handoff(self, val, ops, shadow=None, touch=()):
        e = self.e
        t_st = e.T
        hk = (val - 2) % 4
        pick = lambda name, d: self.opt[name + "s"][hk] if name + "s" in self.opt else self.opt.get(name, d)
        self.deadline = lambda: t_st + pick("topup", 2600)
        self.own_end = 0
        while self.dma_ok():
            next(self.dmaf)
        while self.stage_step():
            pass
        self.finish_stage()
        self.restore(self.opt.get("rest1", 2))
        e.wait_all_lg()
        self.ring_barrier(self.cons + FI + self.opt.get("ahead", 16), ops)
        self.hold = None
        self.flag("row", val)
        self.stamp("flag")
        t_flag = e.T
        if self.opt.get("post_touch", 0):
            for k, (vo, sb, add, off) in enumerate(touch):
                sr = sE if k % 2 else sD
                e.S("s_add_u32", sr, sb, add)
                e.touch(vDum, vo, WS, sr, off, "sc1", cls=(750, 66, 30))
        self.deadline = lambda: t_flag + pick("topup2", 1800)
        while self.dma_ok():
            next(self.dmaf)
        while self.stage_step():
            pass
        self.finish_stage()
        self.warn.append(f"staged {len(self.staged)}")
        self.stage_plan = []
        self.prime()
        self.restore(self.opt.get("rest2", 8) if hk == 3 else 99)
        self.restg = self.restore_gen(99)
        if shadow:
            shadow()
        self.poll("row", val)
        e.T = max(e.T, t_flag + 1000)
        e.barrier()
        self.stamp("go")

    def phaseA(self, p):
        e = self.e
        opt = self.opt
        xv = 2 * p
        acc = lambda T, u: ACC[(T * 2 + u) * 4:(T * 2 + u) * 4 + 4]
        xf = lambda ks, u: a((ks * 2 + u) * 4, 4) if ks < 20 else XE[u]
        if p == 0:
            e.S("s_mov_b32", sSel[0], "0x00003f80")
            e.S("s_mov_b32", sSel[1], "0x3f800000")
            e.S("s_mov_b32", sOdd[0], "0xaaaaaaaa")
            e.S("s_mov_b32", sOdd[1], "0xaaaaaaaa")
            e.S("s_getpc_b64", s(96, 2))
            e.label("main_pc2")
            e.S("s_sub_u32", s(96), s(96), "main_pc2-" + self.kname)
            e.S("s_subb_u32", s(97), s(97), 0)
            for _ in range(opt.get("first_groups", 6 if self.al0 else 3)):
                for _ in self.dma_group():
                    pass
        if p == 0 and self.al0:
            al = None
            for _ in self.stats_gen(True):
                pass
            fl0 = [iter(())]
        else:
            al = self.ALoad(self, vAx, (sXr, XB[xv]), 20)
            al.upto(opt.get("adist", 4) - 1)
            self.stats_loads(xv)
            fl0 = [self.delay(opt.get("stdelay", 24), self.stats_gen(True))]
        sc_keep = self.last_scratch
        if p:
            fl0.append(self.restg)
        if p == 0:
            if opt.get("r2st", 2) == 0:
                self.r2_stores()
                self.late_loads()
            e.wait_all_lg()
            if opt.get("r2st", 2) == 2:
                self.ring_barrier(FI + 8, self.ops2)
                self.flag("col", 2)
                fl0.append(self.at_block(opt.get("w2at", 60), self.w2_gen()))
            else:
                self.ring_barrier(FI + 8)
            self.prime()
            self.stamp("start")
            if opt.get("keep", 12):
                self.capg = self.capture_gen(opt.get("keep0", 3), opt.get("keep", 12))
                next(self.capg)
                fl0.append(self.capg)
        st1 = {}

        def hook1(t):
            if t >= opt.get("w2flag_at", 30) and not st1.get("done"):
                st1["done"] = t
                return self.ops2, (lambda: self.flag("col", 2))
            return [], None

        def add1(t):
            if st1.get("done") and t >= opt.get("w2chk_at", 70) and not st1.get("chk"):
                st1["chk"] = True
                return self.w2_gen()
        i0 = self.seqstart[("A1", p)]
        fb = 102
        sst, sad = self.scratch(28, self.seq[i0 + fb][0])
        self.last_scratch = sc_keep
        self.hold = sst

        C2T = ACC[40:48]

        def pre_gen(first):
            while first.gi_frame is not None:
                yield "idle"
            e.S("s_mul_i32", s(7), sWave, 7168); yield
            e.S("s_add_u32", s(7), s(7), sad); yield
            e.V("v_add_u32", TMP[24], s(7), vL16); yield
            e.V("v_add_u32", TMP[25], sad, vKvSrc); yield
            e.S("s_mul_i32", s(7), sR, KVSZ); yield
            e.S("s_add_u32", s(7), s(7), sKv); yield
            e.S("s_add_u32", s(7), s(7), KVB[p]); yield
            for _ in range(8):
                yield "idle"
            for j in range(8):
                e.V("v_mul_f32", C2T[j], lit(LOG2E), RT[j]); yield
        fl0.append(pre_gen(fl0[0]))

        def must_gen():
            yield from fl0[0]
            yield from fl0[-1]
            while self.capg and self.cap_next < sst + 28:
                next(self.capg)
                yield

        def mf(t, W, u):
            ks, T = divmod(t, 5)
            e.mfma(acc(T, u), xf(ks, u), W, acc(T, u) if ks else 0)
        self.run_pass(105, mf, 5, xf, fl0, must=must_gen(), chunk=(8 if p == 0 else 24), stop_reads=self.seqstart[("A4", p)], aload=al,
                      force_bar=fb, tail=6000, mix=opt.get("mixA", 0) if p else 0,
                      late=(60, self.touch_gen([(vAx[0], sOo, OB[p], 0), (vAx[1], sOo, OB[p], 0), (vOh, sOoh, OB[p], 0), (vOh, sOoh, OB[p] + 20 * KB, 0)], p == 0)), hooks={"bar": hook1, "add": add1} if (p == 0 and opt.get("r2st", 2) == 0) else None)
        if p == 0 and opt.get("r2st", 2) == 1:
            self.dma_all()
            self.r2_stores()
            self.late_loads()
        assert sst + 28 <= self.freed and sst + 28 <= self.cap_hold, (sst, self.cap_hold)
        self.stamp("A1")
        self.bg_on(5000)
        KF = [TMP[8:12], TMP[12:16], TMP[16:20]]
        VF = {3: TMP[20:24], 4: ACC[56:60], 2: ACC[60:64]}
        tt = [ACC[48:52], ACC[52:56]]
        TA0, TA1 = TMP[24], TMP[25]
        n = 0
        for T in range(3):
            for u in range(2):
                for h in range(2):
                    t = tt[n % 2]
                    n += 1
                    self.phi_pair(acc(T, u)[2 * h:2 * h + 2], C2T[4 * u + 2 * h:4 * u + 2 * h + 2], False, t)
                    e.V("v_cvt_pk_bf16_f32", KF[T][2 * u + h], t[0], t[1])
        for T in (3, 4, 2):
            for u in range(2):
                for h in range(2):
                    x = acc(T, u)[2 * h:2 * h + 2]
                    e.V("v_pk_mul_f32", x, x, RT[4 * u + 2 * h:4 * u + 2 * h + 2])
            for u in range(2):
                for h in range(2):
                    x = acc(T, u)[2 * h:2 * h + 2]
                    e.V("v_cvt_pk_bf16_f32", VF[T][2 * u + h], x[0], x[1])
        for j in range(4):
            e.V("v_cndmask_b32", VF[2][j], VF[2][j], vOne, sMaskV)
        PR = [ACC[4 * i:4 * i + 4] for i in range(7)]
        prods = [(0, 3), (0, 2), (1, 4), (1, 2), (2, 3), (2, 4), (2, 2)]
        for i, (kt, vt) in enumerate(prods):
            e.mfma(PR[i], KF[kt], VF[vt], 0)
        for i in range(7):
            e.ds_write(TA0, PR[i], i * 1024)
        e.wait_all_lg()
        e.barrier()
        RD = [ACC[4 * w:4 * w + 4] for w in range(4)]
        for w in range(4):
            e.ds_read(RD[w], TA1, w * 7168)
        for h in range(2):
            e.V("v_pk_add_f32", RD[0][2 * h:2 * h + 2], RD[0][2 * h:2 * h + 2], RD[1][2 * h:2 * h + 2])
            e.V("v_pk_add_f32", RD[2][2 * h:2 * h + 2], RD[2][2 * h:2 * h + 2], RD[3][2 * h:2 * h + 2])
        for h in range(2):
            e.V("v_pk_add_f32", RD[0][2 * h:2 * h + 2], RD[0][2 * h:2 * h + 2], RD[2][2 * h:2 * h + 2])
        e.V("v_cvt_pk_bf16_f32", RD[1][0], RD[0][0], RD[0][1])
        e.V("v_cvt_pk_bf16_f32", RD[1][1], RD[0][2], RD[0][3])
        kvst = e.bstore(RD[1][0:2], vT16, WS, s(7), 0, "sc1")
        self.bg_off()
        self.stamp("kvpub")
        PL = [ACC[4 * i:4 * i + 4] for i in range(10)]

        st2 = {}

        def barhook(t):
            def rel():
                self.hold = None

            def relflag():
                self.hold = None
                self.flag("col", 2)
            if p == 0 and opt.get("r2st", 2) == 1 and not st2.get("done") and t >= opt.get("w2flag2_at", 12):
                st2["done"] = True
                return self.ops2, relflag
            return [], rel

        def kvloads():
            for i in range(8):
                if i % 2 == 0:
                    e.S("s_add_u32", sB, sKv, KVB[p] + i * KVSZ); yield
                e.bload(PL[i], vT16L, WS, sB, (i % 2) * KVSZ, "sc1", cls=(opt.get('kvlat', 800), 80, opt.get('kvsvc', 130))); yield

        def kvsum():
            SM = PL[8:10]
            for i in range(8):
                for d in range(4):
                    for h in range(2):
                        x = SM[d >> 1][2 * (d & 1) + h]
                        if i == 0:
                            e.V("v_dot2_f32_bf16", x, PL[i][d], sSel[h], 0)
                        else:
                            e.V("v_dot2c_f32_bf16", x, sSel[h], PL[i][d])
            for d in range(8):
                x = SM[d >> 2][d & 3]
                e.V("v_add_f32_dpp", x, x, x, mods="quad_perm:[1,0,3,2] row_mask:0xf bank_mask:0xf")
            for d in range(4):
                e.V("v_cndmask_b32", PL[0][d], SM[0][d], SM[1][d], sOdd)
            e.V("v_cmp_u_f32", VCC, PL[0][0], PL[0][1])
            e.V("v_cmp_u_f32", sNan, PL[0][2], PL[0][3])
            e.S("s_or_b64", VCC, VCC, sNan)

        def mfq(t, W, u):
            ks, T = divmod(t, 3)
            e.mfma(acc(5 + T, u), W, xf(ks, u), acc(5 + T, u) if ks else 0)
        self.lastbar = self.rd - 8
        fl = []
        if p == 0:
            fl = [self.local_gen()] + ([self.capg] if self.capg else [])
        self.run_pass(63, mfq, 3, xf, fl, stop_reads=self.seqstart[("A4", p)], hooks={"bar": barhook},
                      late=(opt.get("kvload_at", 40), kvloads()), see_all=True, force_bar=61, tail=1600 + self.opt.get("slack", 2400))
        if self.capg:
            n_ = 0
            for _ in self.capg:
                n_ += 1
                assert n_ < 1000
            self.capg = None
        self.stamp("A2")
        if p == 0 and opt.get("r2st", 2) == 1:
            assert st2.get("done")
            w2 = self.w2_gen()
            while next(w2) != "idle":
                pass
        if opt.get("qbg", 1):
            self.bg_on(1600 + self.opt.get("slack", 2400))
        PQ0 = [TMP[0:4], TMP[4:8]]
        PQ1 = [TMP[8:12], TMP[12:16]]
        tq = [TMP[16:20], TMP[20:24]]
        for u in range(2):
            c2 = vC2 if u == 0 else vC2b
            for h in range(2):
                self.phi_pair(acc(5, u)[2 * h:2 * h + 2], c2, True, tq[0])
                self.phi_pair(acc(6, u)[2 * h:2 * h + 2], c2, True, tq[1])
                e.V("v_cvt_pk_bf16_f32", PQ0[u][2 * h], tq[0][0], tq[1][0])
                e.V("v_cvt_pk_bf16_f32", PQ0[u][2 * h + 1], tq[0][1], tq[1][1])
            for h in range(2):
                self.phi_pair(acc(7, u)[2 * h:2 * h + 2], c2, True, tq[h])
                e.V("v_cvt_pk_bf16_f32", PQ1[u][h], tq[h][0], tq[h][1])
            e.V("v_mov_b32", PQ1[u][2], 0)
            e.V("v_mov_b32", PQ1[u][3], 0)
        self.bg_off()
        self.stamp("qepi")
        kvsum()
        lok, lre = e.newlabel("kvok"), e.newlabel("kvretry")
        e.branch("s_cbranch_scc0", lok)
        e.cond_begin()
        e.S("s_mov_b32", sCnt, 0)
        e.label(lre)
        e.misc("s_sleep 4")
        for _ in kvloads():
            pass
        kvsum()
        e.branch("s_cbranch_scc0", lok)
        e.S("s_add_u32", sCnt, sCnt, 1)
        e.S("s_cmp_lt_u32", sCnt, 0x10000)
        e.branch("s_cbranch_scc1", lre)
        e.cond_end()
        e.label(lok)
        self.stamp("kvgo")
        if p == 0 and opt.get("r2st", 2) == 1:
            for _ in w2:
                pass

        self.bg_on(900 + self.opt.get("slack", 2400))
        e.V("v_cvt_pk_bf16_f32", TMP[16], PL[0][0], PL[0][1])
        e.V("v_cvt_pk_bf16_f32", TMP[17], PL[0][2], PL[0][3])
        e.ds_write(vKvDst, TMP[16:18])
        e.wait_all_lg()
        e.barrier()
        FR = [ACC[40 + 4 * i:44 + 4 * i] for i in range(6)] + [TMP[16 + 4 * i:20 + 4 * i] for i in range(4)]
        for T in range(3):
            for ks in range(2):
                e.ds_read(FR[T * 2 + ks], vL16, IMG + (T * 2 + ks) * KB)
        for ks in range(2):
            e.ds_read(FR[6 + ks], vZ01, ks * 64)
            e.ds_read(FR[8 + ks], vZ2, ks * 64)
        oa = lambda T, u: ACC[(T * 2 + u) * 4:(T * 2 + u) * 4 + 4]
        ops = []

        def norm(u, packed):
            den = (oa(3, u)[0], oa(3, u)[2], oa(4, u)[0])
            for x in den:
                e.V("v_add_f32", x, vEps[0], x); yield
            for x in den:
                e.V("v_rcp_f32", x, x); yield
            for T in range(3):
                for h in range(2):
                    x = oa(T, u)[2 * h:2 * h + 2]
                    dn = oa(3, u)[2 * h:2 * h + 2] if T < 2 else oa(4, u)[0:2]
                    if packed:
                        e.V("v_pk_mul_f32", x, x, dn, mods="op_sel_hi:[1,0]"); yield
                    else:
                        e.V("v_mul_f32", x[0], x[0], dn[0]); yield
                        e.V("v_mul_f32", x[1], x[1], dn[0]); yield
            o4 = TMP[8 * u:8 * u + 4] if False else RT[4 * u:4 * u + 4]
            o2 = XE[u][0:2]
            for j in range(4):
                e.V("v_cvt_pk_bf16_f32", o4[j], oa(0, u)[j], oa(1, u)[j]); yield
            for h in range(2):
                e.V("v_cvt_pk_bf16_f32", o2[h], oa(2, u)[2 * h], oa(2, u)[2 * h + 1]); yield
            ops.extend(self.gstore([(o4, vAx[u], sA, 0), (o2, vOh, sB if u == 0 else sD, 0)], p == 0 or opt.get("osafe")))
            yield
        bg, e.bg = e.bg, None
        order = [(T, k) for k in range(2) for T in (3, 4, 0, 1, 2)]
        for T, k in order:
            e.mfma(oa(T, 0), FR[2 * T + k], (PQ0, PQ1)[k][0], oa(T, 0) if k else 0)
        e.S("s_add_u32", sA, sOo, OB[p])
        e.S("s_add_u32", sB, sOoh, OB[p])
        g0 = norm(0, False)
        for n_, (T, k) in enumerate(order):
            e.mfma(oa(T, 1), FR[2 * T + k], (PQ0, PQ1)[k][1], oa(T, 1) if k else 0)
            if n_ == 0:
                e.S("s_add_u32", sD, sOoh, OB[p] + 20 * KB)
            elif n_ < 9:
                next(g0)
                if n_ not in (2, 3):
                    next(g0)
        e.bg = bg
        for _ in g0:
            pass
        for _ in norm(1, True):
            pass
        self.bg_off()
        self.stamp("A3")
        def shadow():
            e.S("s_mul_i32", sB, sCG, 160)
            e.V("v_lshl_add_u32", TMP[2], vG, 4, sB)
            e.V("v_lshl_add_u32", TMP[3], vG, 3, sB)
            e.bload(ACC[40:44], TMP[2], SB2, 0, 0, cls=(800, 20, 0))
            e.bload(ACC[44:48], TMP[2], SB2, 0, 64, cls=(800, 20, 0))
            e.bload(ACC[48:50], TMP[3], SB2, 0, 128, cls=(800, 20, 0))
            if p == 0:
                self.unpack(RES, RES[10:20])
        self.handoff(4 * p + 2, ops, shadow, [(vAx[0], sOo, OB[p], 0), (vAx[1], sOo, OB[p], 0), (vOh, sOoh, OB[p], 0), (vOh, sOoh, OB[p] + 20 * KB, 0)])

    def phase64(self, p, kind):
        e = self.e
        opt = self.opt
        nks = 10 if kind == "O" else 27
        name = "A4" if kind == "O" else "B2"
        acc = lambda T, u: ACC[(u * 5 + T) * 4:(u * 5 + T) * 4 + 4]
        if kind == "O":
            al = self.ALoad(self, vAo, (sXr, OB[p]), nks)
        else:
            al = self.ALoad(self, vAh, (sHr, HB[p]), nks)
        al.upto(opt.get("adist", 4) - 1)
        xf = lambda ks, u: a(((ks % 20) * 2 + u) * 4, 4)
        if kind == "C":
            e.ds_read(TMP[2], vRF)
        i0 = self.seqstart[(name, p)]
        fb = 5 * nks - 3
        sst, sad = self.scratch(20, self.seq[i0 + fb][0])
        self.hold = sst
        stop = i0 + 5 * nks

        def mf(t, W, u):
            ks, T = divmod(t, 5)
            u = 1 - u
            c0 = RES[4 * T:4 * T + 4] if (kind == "O" and u == 0) else 0
            e.mfma(acc(T, u), W, xf(ks, u), acc(T, u) if ks else c0)

        def addr_gen():
            e.V("v_add_u32", TMP[0], sad, vXch); yield
            e.S("s_xor_b32", sA, sWave, 1); yield
            e.S("s_mul_i32", sA, sA, 5120); yield
            e.S("s_add_u32", sA, sA, sad); yield
            e.V("v_add_u32", TMP[1], sA, vL16); yield
            if kind == "C":
                e.V("v_mul_f32", TMP[2], TMP[2], TMP[2]); yield
            if not last:
                e.S("s_add_u32", sA, sOx, XB[xv]); yield
                e.S("s_add_u32", sB, sOxh, XB[xv]); yield
                e.S("s_add_u32", sD, sOst, STB[xv]); yield
        last = kind == "C" and p == 1
        xv = 2 * p + (1 if kind == "O" else 2)
        tg = None if last else (0, self.touch_gen([(vXs, sOx, XB[xv], 0), (vXs, sOx, XB[xv], 1024), (vXh, sOxh, XB[xv], 0), (vStW, sOst, STB[xv], 0)]))
        fl = [self.delay(20, addr_gen())]
        self.run_pass(5 * nks, mf, 5, xf, fl, late=tg, force_bar=fb, chunk=(opt.get("chunkO", 12) if kind == "O" else opt.get("chunkC", 12)), stop_reads=stop, aload=al,
                      mix=opt.get("mixO", 0) if kind == "O" else 0, tail=900 + self.opt.get("slack", 2400))
        self.stamp(name)
        self.bg_on(900 + self.opt.get("slack", 2400))
        assert sst + 20 <= self.freed
        for T in range(5):
            e.ds_write(TMP[0], acc(T, 1), T * KB)
        e.wait_all_lg()
        e.barrier()
        PT = TMP[4:24]
        for T in range(5):
            e.ds_read(PT[4 * T:4 * T + 4], TMP[1], T * KB)
        own = ACC[0:20]
        for h in range(10):
            x = own[2 * h:2 * h + 2]
            e.V("v_pk_add_f32", x, x, PT[2 * h:2 * h + 2])
            if kind == "C":
                e.V("v_pk_fma_f32", x, x, TMP[2:4], RES[2 * h:2 * h + 2], mods="op_sel_hi:[1,0,1]")
        PK = TMP[24:34]
        for a_ in range(2):
            for j in range(4):
                e.V("v_cvt_pk_bf16_f32", PK[4 * a_ + j], own[8 * a_ + j], own[8 * a_ + 4 + j])
        for h in range(2):
            e.V("v_cvt_pk_bf16_f32", PK[8 + h], own[16 + 2 * h], own[16 + 2 * h + 1])
        self.bg_off()
        if last:
            om = self.opt.get("outmod", "")
            e.bstore(PK[0:4], vOut, OUT, 0, 0, om)
            e.bstore(PK[4:8], vOut, OUT, 0, 64, om)
            e.bstore(PK[8:10], vOut4, OUT, 0, 128, om)
            self.stamp("end")
            return
        xv = 2 * p + (1 if kind == "O" else 2)
        ops = []
        ops += self.gstore([(PK[0:4], vXs, sA, 0), (PK[4:8], vXs, sA, 1024), (PK[8:10], vXh, sB, 0)])
        sm, sq, t0 = TMP[36], TMP[37], TMP[38]
        e.V("v_mov_b32", sm, 0)
        e.V("v_mov_b32", sq, 0)
        for j in range(10):
            e.V("v_dot2c_f32_bf16", sm, PK[j], vOne)
            e.V("v_dot2c_f32_bf16", sq, PK[j], PK[j])
        e.V("v_permlane32_swap_b32", sm, sq)
        e.V("v_add_f32", sm, sm, sq)
        e.V("v_mov_b32", t0, sm)
        e.V("v_permlane16_swap_b32", sm, t0)
        e.V("v_add_f32", sm, sm, t0)
        ops += self.gstore([(sm, vStW, sD, 0)])
        self.stamp(name + "epi")

        def shadow():
            self.unpack(RES, PK)
            if kind == "O":
                self.unpack(ACC[20:40], ACC[40:50])
                for h in range(10):
                    x = RES[2 * h:2 * h + 2]
                    e.V("v_pk_add_f32", x, x, ACC[20 + 2 * h:22 + 2 * h])
        self.handoff(4 * p + (3 if kind == "O" else 5), ops, shadow,
                     [(vStW, sOst, STB[xv], 0), (vXs, sOx, XB[xv], 0), (vXs, sOx, XB[xv], 1024), (vXh, sOxh, XB[xv], 0)])

    def phaseB1(self, p):
        e = self.e
        opt = self.opt
        xv = 2 * p + 1
        acc = lambda T, u: ACC[(T * 2 + u) * 4:(T * 2 + u) * 4 + 4]
        xf = lambda ks, u: a((ks * 2 + u) * 4, 4) if ks < 20 else XE[u]
        al = self.ALoad(self, vAx, (sXr, XB[xv]), 20)
        al.upto(opt.get("adist", 4) - 1)
        self.stats_loads(xv)
        stop = self.seqstart[("B2", p)]
        g0 = self.seq[stop][0] // 8 + RB // 8
        self.stage_plan = list(range(g0, g0 + (opt.get("nstage", 0) if p else 0)))

        def mf(t, W, u):
            ks, T = divmod(t, B1N)
            e.mfma(acc(T, u), W, xf(ks, u), acc(T, u) if ks else 0)
        tl = [(vHs, sOh, HB[p] + u * 54 * KB, a_ * KB) for a_ in range(3) for u in range(2)] + [(vHh, sOhh, HB[p] + u * 54 * KB, 0) for u in range(2)]
        sg = self.delay(opt.get("stdelay", 24), self.stats_gen(False))
        flb = [sg]
        if p == 0 and opt.get("keepb", 4):
            gb = self.capture_gen(self.segs[2][1] // 8 + opt.get("keepb0", 8), opt.get("keepb", 4), 12)
            next(gb)
            flb.append(gb)
        self.run_pass(21 * B1N, mf, B1N, xf, flb, late=(0, self.touch_gen(tl, p == 0)), stop_reads=stop, aload=al, must=sg, mix=opt.get("mixB", 0), tail=700 * (7 - B1N) + 300 + self.opt.get("slack", 2400))
        self.stamp("B1a")
        ops = []

        def epi(pairs, single):
            n = 0
            for u in range(2):
                sb = sD if u == 0 else sE
                e.S("s_add_u32", sb, sOh, HB[p] + u * 54 * KB); yield
                for a_ in pairs:
                    o = TMP[16 + 4 * (n % 4):20 + 4 * (n % 4)]
                    n += 1
                    for j in range(4):
                        x, y = acc(2 * a_, u)[j], acc(2 * a_ + 1, u)[j]
                        e.V("v_mul_f32_e64", x, x, f"|{x}|"); yield
                        e.V("v_mul_f32_e64", y, y, f"|{y}|"); yield
                        e.V("v_cvt_pk_bf16_f32", o[j], x, y); yield
                        e.V("v_pk_max_i16", o[j], o[j], 0); yield
                    ops.extend(self.gstore([(o, vHs, sb, a_ * KB)], p == 0 or opt.get("hsafe", 2) == 1 or (opt.get("hsafe", 2) == 2 and not single))); yield
            if single:
                for u in range(2):
                    o = TMP[32 + 2 * u:34 + 2 * u]
                    for j in range(4):
                        x = acc(6, u)[j]
                        e.V("v_mul_f32_e64", x, x, f"|{x}|"); yield
                    for h in range(2):
                        e.V("v_cvt_pk_bf16_f32", o[h], acc(6, u)[2 * h], acc(6, u)[2 * h + 1]); yield
                        e.V("v_pk_max_i16", o[h], o[h], 0); yield
                e.S("s_add_u32", sA, sOhh, HB[p])
                e.S("s_add_u32", sB, sOhh, HB[p] + 54 * KB)
                ops.extend(self.gstore([(TMP[32:34], vHh, sA, 0), (TMP[34:36], vHh, sB, 0)], p == 0 or opt.get("hsafe", 2) == 1))
                yield

        def mf2(t, W, u):
            ks, T = divmod(t, 7 - B1N)
            e.mfma(acc(B1N + T, u), W, xf(ks, u), acc(B1N + T, u) if ks else 0)
        self.run_pass(21 * (7 - B1N), mf2, 7 - B1N, xf, [epi(list(range(B1N // 2)), False)], stop_reads=stop, force_bar=21 * (7 - B1N) - 2, over=opt.get("b1over", 0), chunk=opt.get("chunkB", 24), tail=300 + self.opt.get("slack", 2400))
        self.stamp("B1b")
        for _ in epi(list(range(B1N // 2, 3)), True):
            pass
        self.stamp("B1epi")
        self.handoff(4 * p + 4, ops, None, tl)

    def gen(self):
        e = self.e
        e.reset_state()
        self.cInvD = s(63)
        self.dmaf = self.dma_filler()
        self.prologue()
        if self.opt.get("stamps"):
            e.memtime(sTm, True)
            e.V("v_writelane_b32", v(53), sTm[0], 62)
        self.startup()
        stop = self.opt.get("stop", 99)
        n = 0
        for p in range(2):
            for f in (lambda: self.phaseA(p), lambda: self.phase64(p, "O"), lambda: self.phaseB1(p), lambda: self.phase64(p, "C")):
                if n < stop:
                    f()
                n += 1
        if self.opt.get("stamps"):
            e.wait_all_vm()
            e.memtime(sTm, True)
            e.V("v_writelane_b32", v(53), sTm[0], 63)
            e.S("s_lshl_b32", sA, s(2), 2)
            e.S("s_add_u32", sA, sA, sWave)
            e.S("s_lshl_b32", sA, sA, 8)
            e.S("s_add_u32", sA, sA, STAMP)
            e.V("v_lshlrev_b32", TMP[1], 2, vLane)
            e.bstore(v(53), TMP[1], WS, sA)
        if self.opt.get("dbgst") is not None:
            skip = e.newlabel("nodbg")
            e.S("s_lshl_b32", sA, s(2), 2)
            e.S("s_add_u32", sA, sA, sWave)
            e.S("s_cmp_lg_u32", sA, 4 * self.opt.get("dbgwg", 77))
            e.branch("s_cbranch_scc1", skip)
            e.sload(s(84, 2), s(0, 2), 72)
            e.V("v_readlane_b32", sB, v(53), 0)
            e.V("v_subrev_u32", TMP[0], sB, v(53))
            e.V("v_subrev_u32", TMP[1], self.opt["dbgst"], vLane)
            e.V("v_cmp_gt_u32", VCC, 64 - self.opt["dbgst"], TMP[1])
            e.V("v_lshlrev_b32", TMP[1], 2, TMP[1])
            e.wait_all_lg()
            e.S("s_and_saveexec_b64", s(86, 2), VCC)
            e.misc(f"global_store_dword {TMP[1]}, {TMP[0]}, s[84:85]")
            e.S("s_mov_b64", EXEC, -1)
            e.label(skip)
        if self.opt.get("spin"):
            e.wait_all_vm()
            e.V("v_readfirstlane_b32", s(86), v(53))
            e.label("spin_loop")
            e.misc("s_memrealtime s[88:89]")
            e.misc("s_waitcnt lgkmcnt(0)")
            e.misc("s_sub_u32 s88, s88, s86")
            e.misc(f"s_cmp_lt_u32 s88, {self.opt['spin']}")
            e.misc("s_cbranch_scc1 spin_loop")
        e.S("s_add_u32", sA, s(2), sWave)
        e.S("s_cmp_lg_u32", sA, 0)
        e.branch("s_cbranch_scc1", "main_end")
        e.S("s_add_u32", sA, sBase, 16)
        e.V("v_mov_b32", TMP[0], sA)
        e.V("v_mov_b32", TMP[1], EPOCH)
        e.S("s_mov_b64", EXEC, 1)
        e.bstore(TMP[0], TMP[1], WS, 0)
        e.label("main_end")
        e.misc("s_endpgm")
```

```python
from asmgen import *
from layout import *
from gen_prep import mk_srd, allreduce_g
import math

BIG = 0x40000000
LOG2E = 1.4426950408889634
LN2 = 0.6931471805599453

IMG = 0
ZT = 6144
RST = 6400
DUMMY = 6912
RING = 8192
RB = 152
LDS_BYTES = RING + RB * KB
FI = 8

WS, OUT, XIN, SB2 = s(8, 4), s(12, 4), s(16, 4), s(20, 4)
sWave, sR, sC, sCG, sRH, sKH, sW2048 = [s(24 + i) for i in range(7)]
sSeg = {"A": s(31), "O": s(32), "B": s(33), "C": s(34)}
sXr, sHr, sSTr, sFRL, sFRG, sFC = [s(35 + i) for i in range(6)]
sA, sB, sD, sE, sDm, sLd = [s(41 + i) for i in range(6)]
sMaskV = s(48, 2)
sCnt = s(50)
sTT = s(51)
sTm = s(52, 2)
sOx, sOxh, sOst, sOo, sOoh, sOh, sOhh, sKv = [s(54 + i) for i in range(8)]
sLocal, sX1 = s(47), s(62)
sStg = s(3)
sSel = [s(84), s(85)]
sOdd = s(86, 2)
vT16L = v(37)
vStg = v(55)
sNan = s(90, 2)
sBase = s(92)
sOk = s(94, 2)
SR1, SR2 = s(84, 4), s(96, 4)
PP = s(64, 16)
pOut, pWs = s(80, 2), s(82, 2)
vDum = v(49)

vLane, vN, vG, vL16 = v(1), v(2), v(3), v(4)
vW = [v(5), v(6), v(7)]
vK = [v(8), v(9), v(10)]
vDma = v(11)
vAx = [v(12), v(13)]
vAo = [v(14), v(15)]
vAh = [v(16), v(17)]
vSt, vStW, vKvSrc, vKvDst, vT16, vZ01, vZ2, vRT, vRW, vRF, vOut, vOut4, vOne = [v(18 + i) for i in range(13)]
vOh, vXs, vXh, vHs, vHh, vFl, vPollR, vPollC, vXch = [v(31 + i) for i in range(9)]
XE = [v(40, 4), v(44, 4)]
vC2 = v(48, 2)
vC2b = v(50, 2)
vLn2 = v(52, 2)
vEps = v(54, 2)
RT = v(56, 8)
ACC = v(64, 64)
FIFO = v(128, 4 * FI)
RES = v(160, 20)
B2F = v(180, 20)
TMP = v(200, 56)


def keepreg(k, h):
    if k < 12:
        return a(160 + 8 * k + 4 * h, 4)
    t = 2 * (k - 12) + h
    return B2F[4 * t:4 * t + 4] if t < 5 else TMP[40 + 4 * (t - 5):44 + 4 * (t - 5)]


class Main:
    def __init__(self, e, opt):
        self.e = e
        self.opt = opt
        self.kname = opt["kname"]
        self.nstamp = 0
        self.segs = []
        pos = 0
        for p in range(2):
            for k, n in (("A", NA), ("O", NO), ("B", NB), ("C", NC)):
                self.segs.append((k, pos, n))
                pos += n
        self.total = pos
        self.ngroups = pos // 8
        self.issued = 0
        self.dmaop = {}
        self.freed = 0
        self.hold = None
        self.visible = 0
        self.seq = []
        self.seqstart = {}
        for p in range(2):
            b = self.segs[4 * p + 0][1]
            self.seqstart[("A1", p)] = len(self.seq)
            self.seq += [(b + i, "W") for i in range(105)]
            self.seqstart[("A2", p)] = len(self.seq)
            self.seq += [(b + 105 + i, "W") for i in range(63)]
            b = self.segs[4 * p + 1][1]
            self.seqstart[("A4", p)] = len(self.seq)
            self.seq += [(b + 2 * i, "K") for i in range(50)]
            b = self.segs[4 * p + 2][1]
            self.seqstart[("B1a", p)] = len(self.seq)
            self.seq += [(b + i, "W") for i in range(21 * B1N)]
            self.seqstart[("B1b", p)] = len(self.seq)
            self.seq += [(b + 21 * B1N + i, "W") for i in range(147 - 21 * B1N)]
            b = self.segs[4 * p + 3][1]
            self.seqstart[("B2", p)] = len(self.seq)
            self.seq += [(b + 2 * i, "K") for i in range(135)]
        self.rd = 0
        self.cons = 0
        self.lastbar = 0
        self.gate = NA // 8
        self.stage_plan = []
        self.staged = {}
        self.stage_mid = None
        self.cap_hold = 1 << 20
        self.deferred = []
        self.spares = []
        self.last_scratch = (0, 0)
        self.restg = None
        self.capg = None
        self.own_end_phase = 0
        self.cap_ops = []
        self.cap_next = 1 << 20
        self.warn = []
        self.model = []
        self.own_end = 0
        self.deadline = lambda: 1 << 30

    def stamp(self, name):
        self.model.append((name, self.e.T))
        if not self.opt.get("stamps"):
            return
        e = self.e
        e.wait_all_lg()
        e.memtime(sTm)
        e.V("v_writelane_b32", v(53), sTm[0], self.nstamp)
        self.opt.setdefault("stampnames", []).append(name)
        self.nstamp += 1
        assert self.nstamp <= 62

    def endpos(self, i):
        p, k = self.seq[i]
        return p + (2 if k == "K" else 1)

    def ldsaddr(self, pos):
        return RING + (pos % RB) * KB

    def can_issue(self):
        if self.issued >= min(self.ngroups, self.gate):
            return False
        lim = self.freed if self.hold is None else min(self.freed, self.hold)
        lim = min(lim, self.cap_hold)
        return 8 * (self.issued + 1) <= lim + RB

    def dma_group(self):
        e = self.e
        g = self.issued
        self.issued += 1
        pos = 8 * g
        if g in self.stage_plan:
            self.stage_plan = []
        if g in self.staged and self.opt.get("defer", 1) and 8 * g >= self.own_end_phase:
            self.deferred.append(g)
            self.dmaop[g] = None
            yield
            return
        if g in self.staged:
            self.finish_stage()
            k = self.staged[g]
            ad = self.ldsaddr(pos)
            e.V("v_add_u32", vStg, ad, vDma)
            yield
            e.ds_write(vStg, keepreg(k, 0), 0)
            yield
            self.dmaop[g] = e.ds_write(vStg, keepreg(k, 1), 1024)
            yield
            return
        for k, b, n in self.segs:
            if b <= pos < b + n:
                break
        e.S("s_add_u32", M0, sW2048, self.ldsaddr(pos))
        yield
        e.S("s_add_u32", sDm, sSeg[k], (pos - b) * KB)
        yield
        md = "nt" if k in self.opt.get("ntseg", "") else ""
        nvalid = min(8, {"A": 168, "O": 100, "B": 147, "C": 270}[k] - (pos - b)) if self.opt.get("skippad", 0) else 8
        for j in range(2):
            nw = (nvalid - j + 1) // 2
            if nw < 4:
                skip = e.newlabel("nopad")
                e.S("s_cmp_ge_u32", sWave, nw)
                e.branch("s_cbranch_scc1", skip)
                e.cond_begin()
            op = e.dma(vDma, WS, sDm, 1024 * j, md, cls=self.dcls(k))
            if nw < 4:
                e.cond_end()
                e.label(skip)
            if j:
                self.dmaop[g] = op
            yield

    def capture_gen(self, first, n, k0=0):
        e = self.e
        self.cap_hold = self.cap_next = 8 * first
        g1 = self.segs[4][1] // 8
        for k in range(k0, k0 + n):
            g = first + k - k0
            while self.visible < 8 * (g + 1):
                yield "idle"
            e.V("v_add_u32", vStg, self.ldsaddr(8 * g), vDma); yield
            e.ds_read(keepreg(k, 0), vStg, 0); yield
            self.cap_ops.append(e.ds_read(keepreg(k, 1), vStg, 1024))
            self.staged[g1 + g] = k
            self.cap_next = 8 * (g + 1) if k < k0 + n - 1 else 1 << 20
            yield

    def stage_group(self):
        e = self.e
        g = self.stage_plan.pop(0)
        k = len(self.staged) % 12
        self.staged[g] = k
        for sk, b, n in self.segs:
            if b <= 8 * g < b + n:
                break
        e.S("s_add_u32", sStg, sSeg[sk], (8 * g - b) * KB)
        yield
        e.bload(keepreg(k, 0), vDma, WS, sStg, 0, cls=self.dcls(sk))
        yield
        e.bload(keepreg(k, 1), vDma, WS, sStg, 1024, cls=self.dcls(sk))
        self.stage_mid = None
        yield

    def restore_gen(self, n):
        e = self.e
        while n > 0 and self.deferred:
            n -= 1
            g = self.deferred[0]
            k = self.staged[g]
            e.V("v_add_u32", vStg, self.ldsaddr(8 * g), vDma); yield
            old = 8 * g - RB
            clean = old + 8 <= self.last_scratch[0] or old >= self.last_scratch[1]
            if self.spares and self.opt.get("swap", 1) and clean and self.segof(8 * g) == "A":
                sp = self.spares.pop(0)
                e.ds_read(keepreg(sp, 0), vStg, 0); yield
                e.ds_read(keepreg(sp, 1), vStg, 1024); yield
                g2 = g - RB // 8 + self.segs[4][1] // 8
                assert self.segof(8 * g2) == "C"
                self.staged[g2] = sp
            e.ds_write(vStg, keepreg(k, 0), 0); yield
            self.dmaop[g] = e.ds_write(vStg, keepreg(k, 1), 1024)
            self.spares.append(k)
            self.deferred.pop(0)
            yield

    def restore(self, n):
        for _ in self.restore_gen(n):
            pass

    def finish_stage(self):
        while self.stage_mid:
            next(self.stage_mid)

    def stage_step(self):
        e = self.e
        if e.outstanding() >= self.opt.get("qmax", 13):
            return False
        if not self.stage_mid:
            if not self.stage_plan or self.can_issue() or self.mid_group():
                return False
            c = self.dcls("C")
            if e.predict(c) + c[2] > self.deadline():
                return False
            self.stage_mid = self.stage_group()
        next(self.stage_mid)
        return True

    def dcls(self, k):
        return (750, 80, self.opt.get("svcAB", 150)) if k in "AB" else (750, self.opt.get("svcOC", 92), 75)

    def dma_ok(self):
        e = self.e
        if self.mid_group():
            g = self.issued - 1
        elif self.can_issue():
            g = self.issued
        else:
            return False
        if g in self.staged:
            return True
        if e.outstanding() >= self.opt.get("qmax", 13):
            return False
        if self.mid_group() or 8 * g < self.own_end:
            return True
        c = self.dcls(self.segof(8 * g))
        return e.predict(c) + c[2] <= self.deadline()

    def dma_filler(self):
        while True:
            if self.can_issue():
                for _ in self.dma_group():
                    yield True
            else:
                yield False

    def flush_dma_partial(self):
        while self.issued > 0 and (self.issued - 1) not in self.dmaop:
            next(self.dmaf)

    def dma_all(self):
        self.flush_dma_partial()
        while self.can_issue():
            for _ in self.dma_group():
                pass

    def ring_barrier(self, need_idx, extra_ops=(), free_all=False):
        e = self.e
        need_idx = min(need_idx, len(self.seq))
        upto = self.endpos(need_idx - 1) if need_idx > 0 else 0
        g = (upto + 7) // 8
        self.flush_dma_partial()
        while self.issued < g:
            assert self.can_issue(), ("ring deadlock", self.issued, g, self.freed, self.hold)
            self.warn.append(f"forced dma group {self.issued} at seq {self.rd}")
            for _ in self.dma_group():
                pass
        ops = list(extra_ops)
        while self.deferred and self.deferred[0] < g:
            self.warn.append(f"forced restore {self.deferred[0]}")
            next(self.restg)
        for gg in range(self.visible // 8, g):
            assert gg not in self.deferred, gg
            ops.append(self.dmaop[gg])
        e.wait_ops(ops + self.cap_ops)
        self.cap_ops = []
        e.barrier()
        self.cap_hold = self.cap_next
        self.visible = max(self.visible, 8 * g)
        self.freed = self.seq[self.cons][0] if self.cons < len(self.seq) else self.total
        self.lastbar = self.rd

    def issue_read(self):
        e = self.e
        i = self.rd
        if i >= len(self.seq):
            return
        pos, k = self.seq[i]
        assert self.endpos(i) <= self.visible, ("read of invisible block", i, pos, self.visible)
        ad = self.ldsaddr(pos)
        base = (vW if k == "W" else vK)[ad >> 16]
        slot = i % FI
        e.ds_read(FIFO[4 * slot:4 * slot + 4], base, ad & 0xffff)
        self.rd += 1

    def prime(self):
        while self.rd < self.cons + FI and self.rd < len(self.seq) and self.endpos(self.rd) <= self.visible:
            self.issue_read()

    def run_pass(self, n, mf, ntile, xf, fillers=(), chunk=24, stop_reads=None, hooks=None,
                 aload=None, vrate=0.5, amix=(1, 0), over=0, force_bar=None, late=None, see_all=False, tail=2000, mix=0, must=None):
        e = self.e
        fillers = list(fillers)
        lim = stop_reads if stop_reads is not None else len(self.seq)
        st = {"next": 0, "k": 0, "t": 0}
        self.own_end = self.own_end_phase = self.endpos(lim - 1)
        self.deadline = lambda: e.T + (n - st["t"]) * 33 + tail

        i_first = self.cons

        def dma_need():
            g = self.issued - 1 if self.mid_group() else self.issued
            for i in range(self.cons, lim):
                if self.endpos(i) > 8 * g:
                    return i - i_first - FI - chunk
            return 1 << 20

        def one_vmem():
            na, nd = amix
            n0 = len(e.vm)
            if st.get("late"):
                if e.T < st["next"]:
                    return False
                try:
                    next(st["late"])
                except StopIteration:
                    st["late"] = None
                    return False
            else:
                na_ = (aload.n // 2) * ntile if (aload is not None and not aload.done) else 1 << 21
                nd_ = dma_need() if (self.mid_group() or self.can_issue()) else 1 << 22
                run = self.opt.get("run", 0)
                if run and na_ < 1 << 21 and nd_ < 1 << 20:
                    if st.get("cur") == "a" and na_ - run <= nd_:
                        nd_ = max(nd_, na_)
                    elif st.get("cur") == "d" and nd_ - run < na_:
                        na_ = max(na_, nd_ + 1)
                    st["cur"] = "a" if na_ <= nd_ else "d"
                urgent = min(na_, nd_) - st["t"] <= self.opt.get("horizon", 30) + run
                if e.T < st["next"] and not urgent:
                    return False
                if mix and na_ < 1 << 21 and st["k"] % mix == mix - 1 and na_ - st["t"] > self.opt.get("mixh", 10) and self.dma_ok():
                    next(self.dmaf)
                elif na_ <= nd_ and na_ < 1 << 21:
                    if e.outstanding() >= self.opt.get("qmax", 13) and not urgent:
                        return False
                    if aload.n // 2 >= st["t"] // ntile + aload.win - 1:
                        return False
                    aload.step()
                elif nd_ < 1 << 22 and (urgent or self.dma_ok()):
                    next(self.dmaf)
                elif not self.stage_step():
                    return False
            if len(e.vm) > n0:
                st["k"] += 1
                st["next"] = e.T + self.opt.get("vgap", 24)
            return True

        def fill(budget):
            while budget > 0:
                n0 = e.ninst
                did = one_vmem()
                if not did:
                    for f in list(fillers):
                        try:
                            if next(f) == "idle":
                                continue
                            did = True
                            break
                        except StopIteration:
                            fillers.remove(f)
                if not did:
                    return
                budget -= e.ninst - n0

        def waits_for(t):
            regs = []
            for tt in (t, t + 1):
                if tt < n:
                    ks = tt // ntile
                    if aload is not None:
                        aload.upto(ks)
                    idx = self.cons + (tt - t)
                    if idx < self.rd:
                        regs += FIFO[4 * (idx % FI):4 * (idx % FI) + 4].regs()
                    regs += xf(ks, 0).regs() + xf(ks, 1).regs()
            return e._pending(regs)

        e.wait_ops(waits_for(0))
        if aload is not None:
            self.stamp("1st")
            self.warn.append(f"fill {8 * self.issued - self.seq[self.cons][0]}")
        for t in range(n):
            if aload is not None and self.opt.get("midstamp") and t == n // 2:
                self.stamp("half")
            i = self.cons
            assert self.rd > i, ("fifo underrun", i)
            W = FIFO[4 * (i % FI):4 * (i % FI) + 4]
            st["t"] = t
            if must is not None and t == n - ntile - 2:
                for _ in must:
                    self.warn.append("must drained late")
            if t == int(n * self.opt.get("cfrac", 0.8)) and n > 30:
                fillers.insert(0, self.code_touch_gen())
            if hooks and hooks.get("add"):
                g_ = hooks["add"](t)
                if g_:
                    fillers.append(g_)
            ov = over if fillers else 0
            mf(t, W, 0)
            bar = self.rd < lim and (self.endpos(self.rd) > self.visible or self.rd - self.lastbar >= chunk)
            bar = bar or t == force_bar
            if late and t >= late[0] and not st.get("lateon") and (aload is None or aload.done) and 8 * self.issued >= min(self.own_end, self.endpos(min(i_first + n + FI, lim) - 1)) and not self.mid_group():
                st["late"] = late[1]
                st["lateon"] = True
                self.warn.append(f"late at {t}")
            if bar:
                ex, after = [], None
                if hooks and hooks.get("bar"):
                    ex, after = hooks["bar"](t)
                self.ring_barrier(lim if see_all else min(self.rd + chunk, lim), ex)
                if after:
                    after()
            else:
                fill(2 + ov)
            mf(t, W, 1)
            self.cons += 1
            used = 0
            if self.rd < lim:
                self.issue_read()
                used = 1
            pend = waits_for(t + 1) if (t % 2 == 1 and t + 1 < n) else []
            fill(2 + ov - used - (1 if pend else 0))
            if pend:
                e.wait_ops(waits_for(t + 1))
        if late and not st.get("lateon"):
            st["late"] = late[1]
        for f in fillers + ([st["late"]] if st.get("late") else []):
            if f is not self.capg:
                for _ in f:
                    pass

    def segof(self, pos):
        for k, b, n in self.segs:
            if b <= pos < b + n:
                return k
        return "O"

    def mid_group(self):
        return self.issued > 0 and (self.issued - 1) not in self.dmaop

    def dma_burst(self, maxgroups=99):
        e = self.e
        self.flush_dma_partial()
        gs = []
        while self.can_issue() and len(gs) < maxgroups:
            gs.append(self.issued)
            self.issued += 1
        for w in (1, 2, 3):
            mine = gs[w - 1::3]
            if not mine:
                continue
            skip = e.newlabel("noburst")
            e.S("s_cmp_lg_u32", sWave, w)
            e.branch("s_cbranch_scc1", skip)
            e.cond_begin()
            for g in mine:
                pos = 8 * g
                for k, b, n in self.segs:
                    if b <= pos < b + n:
                        break
                for h in range(2):
                    e.S("s_mov_b32", M0, self.ldsaddr(pos) + h * 4096)
                    e.S("s_add_u32", sDm, sSeg[k], (pos - b) * KB + h * 4096)
                    for q in range(4):
                        self.dmaop[g] = e.dma(vL16, WS, sDm, q * 1024)
            e.cond_end()
            e.label(skip)

    def prologue(self):
        e = self.e
        e.S("s_cmp_ge_u32", s(2), 256)
        e.branch("s_cbranch_scc1", "main_end")
        if self.opt.get("stamps"):
            e.V("v_mov_b32", v(53), 0)
        self.stamp("t0")
        if self.opt.get("spin"):
            e.memtime(sTm, True)
            e.V("v_mov_b32", v(53), sTm[0])
        e.sload(PP, s(0, 2), 0)
        e.sload(pOut, s(0, 2), 64)
        e.sload(pWs, s(0, 2), 80)
        T0, T1, T2, T3 = TMP[48], TMP[49], TMP[50], TMP[51]
        e.S("s_getpc_b64", s(88, 2))
        e.label("main_pc")
        e.V("v_lshlrev_b32", T2, 5, v(0))
        e.S("s_sub_u32", s(88), s(88), "main_pc-" + self.kname)
        e.S("s_subb_u32", s(89), s(89), 0)
        e.misc(f"global_load_dword {vDum}, {T2}, s[88:89]")
        e._vm([], (2000, 30, 0))
        e.V("v_lshrrev_b32", T0, 6, v(0))
        e.V("v_and_b32", vLane, 63, v(0))
        e.V("v_readfirstlane_b32", sWave, T0)
        e.S("s_lshr_b32", sB, s(2), 3)
        e.S("s_mul_i32", sB, sB, 1792)
        e.S("s_add_u32", sB, sB, 8192)
        e.V("v_lshl_add_u32", T2, v(0), 3, sB)
        e.V("v_min_u32", T2, self.opt.get("code_bytes", 32768) - 4, T2)
        e.misc(f"global_load_dword {vDum}, {T2}, s[88:89]")
        e._vm([], (2000, 30, 0))
        e.V("v_lshlrev_b32", vL16, 4, vLane)
        e.V("v_and_b32", vN, 15, vLane)
        e.V("v_lshrrev_b32", vG, 4, vLane)
        self.vBig = TMP[52]
        e.V("v_mov_b32", self.vBig, BIG)
        e.S("s_and_b32", sA, s(2), 7)
        e.S("s_lshl_b32", sA, sA, 1)
        e.S("s_lshr_b32", sB, s(2), 7)
        e.S("s_add_u32", sR, sA, sB)
        e.S("s_bfe_u32", sC, s(2), (4 << 16) | 3)

    def gather(self, raw, srd, sstride, vaddr, srow, n=8):
        e = self.e
        e.S("s_mul_i32", sLd, srow, sstride)
        for i in range(n):
            e.bload(raw[i], vaddr, srd, sLd, 0, w="ushort", cls=(2500, 32, 0))
            if i < n - 1:
                e.S("s_add_u32", sLd, sLd, sstride)

    def pack(self, raw, n=4):
        for i in range(n):
            self.e.V("v_lshl_or_b32", raw[i], raw[2 * i + 1], 16, raw[2 * i])

    def colsum(self, regs, ex, vs, vt):
        e = self.e
        e.V("v_mov_b32", vs, 0)
        for r_ in regs:
            e.V("v_dot2c_f32_bf16", vs, r_, vOne)
        allreduce_g(e, vs, vt)
        e.V("v_sub_f32", vs, 0, vs)
        e.V("v_cvt_pk_bf16_f32", vt, vs, vs)
        e.V("v_lshlrev_b32", vt, 16, vt)
        e.V("v_sub_f32", vt, vs, vt)
        e.V("v_cvt_pk_bf16_f32", ex[0], vs, vt)
        e.V("v_and_b32", ex[1], "0xffff", ex[0])

    def startup(self):
        e = self.e
        vBig = self.vBig
        RAW1, EX = ACC[0:20], ACC[20:24]
        RAW2 = TMP[8:40]
        vCol, vReg, vLeft, vT0, vT1, vSum, vLd = [FIFO[i] for i in range(7)]
        vA0, vA1, vA2, vSt2, vBias = RES[8], RES[9], B2F[8], B2F[9], TMP[50]
        sT, sP = s(7), s(93)
        sStr = s(56)
        XJ = [RES[0:4], RES[4:8], B2F[0:4]]
        XD, XA, XB_ = B2F[4], ACC[32], ACC[33]
        XM = [s(90), s(91), s(94)]
        T0, T1, T2, T3 = TMP[48], TMP[49], TMP[50], TMP[51]
        e.V("v_lshrrev_b32", T1, 3, vLane)
        e.V("v_and_b32", T3, 7, vLane)
        e.V("v_mul_u32_u24", T0, 1280, T3)
        e.V("v_lshl_add_u32", XA, T1, 4, T0)
        e.V("v_lshrrev_b32", T2, 4, vLane)
        e.V("v_lshl_add_u32", XB_, T2, 7, XA)
        e.V("v_lshlrev_b32", XD, 8, T1)
        e.V("v_lshl_add_u32", XD, T3, 4, XD)
        e.S("s_lshl_b32", sE, sR, 4)
        e.S("s_add_u32", sE, sE, sC)
        e.S("s_mul_i32", sE, sE, 8 * 1280)
        e.S("s_mul_i32", sD, sWave, 3)
        mk_srd(e, XIN, PP[0:2], XSZ)
        for k in range(3):
            e.S("s_add_u32", XM[k], sD, k)
            e.S("s_cmp_ge_u32", XM[k], 8)
            e.S("s_cselect_b64", VCC, -1, 0)
            e.S("s_cselect_b32", sA, 40, 10)
            e.S("s_cselect_b32", sB, 8 - 8 * 40, 0)
            e.V("v_cndmask_b32", T0 if k != 1 else T1, XA, XB_, VCC)
            e.S("s_mul_i32", sA, sA, XM[k])
            e.S("s_add_u32", sA, sA, sB)
            e.S("s_lshl_b32", sA, sA, 4)
            e.S("s_add_u32", sA, sA, sE)
            e.S("s_cmp_ge_u32", XM[k], 10)
            e.S("s_cselect_b32", sA, BIG, sA)
            e.S("s_cselect_b32", XM[k], BIG // 2048, XM[k])
            e.bload(XJ[k], T0 if k != 1 else T1, XIN, sA, 0, cls=(2000, 100, 0))
        self.stamp("issx")
        e.S("s_lshr_b32", sP, sR, 1)
        e.S("s_and_b32", sT, sR, 1)
        e.S("s_lshl_b32", sT, sT, 2)
        e.S("s_add_u32", sT, sT, sWave)
        e.S("s_mov_b32", s(4), (656 << 20) | (660 << 10) | 640)
        e.S("s_mov_b32", s(5), 0)
        e.S("s_mul_i32", sA, sT, 10)
        e.S("s_lshr_b32", sA, s(4), sA)
        e.S("s_and_b32", sA, sA, 1023)
        for t, val in ((3, 1280), (4, 1300), (5, 0), (6, 1), (7, 32)):
            e.S("s_cmp_eq_u32", sT, t)
            e.S("s_cselect_b32", sA, val, sA)
        e.S("s_mul_i32", sB, sC, 40)
        e.S("s_add_u32", sA, sA, sB)
        e.V("v_add_u32", vCol, sA, vN)
        e.V("v_add_u32", vT0, vCol, vN)
        e.S("s_sub_u32", sB, sT, 5)
        e.S("s_cmp_lt_u32", sB, 2)
        e.S("s_cselect_b64", VCC, -1, 0)
        e.V("v_cndmask_b32", vCol, vCol, vT0, VCC)
        e.V("v_lshrrev_b32", vT0, 3, vN)
        e.V("v_mul_u32_u24", vT0, 632 - 32, vT0)
        e.V("v_lshrrev_b32", vT1, 2, vN)
        e.V("v_lshl_add_u32", vT0, vT1, 4, vT0)
        e.V("v_add3_u32", vT0, vT0, vN, sA)
        e.S("s_cmp_eq_u32", sT, 2)
        e.S("s_cselect_b64", VCC, -1, 0)
        e.V("v_cndmask_b32", vCol, vCol, vT0, VCC)
        e.V("v_lshlrev_b32", vCol, 1, vCol)
        e.S("s_cmp_eq_u32", sT, 7)
        e.S("s_cselect_b32", sB, 8, 16)
        e.V("v_cmp_le_u32", VCC, sB, vN)
        e.S("s_mov_b32", sStr, 3840)
        e.V("v_cndmask_b32", vCol, vCol, vBig, VCC)
        e.S("s_mov_b32", sD, 8 * 3840)
        e.V("v_mad_u32_u24", vReg, vG, sD, vCol)
        e.V("v_and_b32", vT0, 1, vG)
        e.V("v_lshrrev_b32", vT1, 1, vG)
        e.V("v_lshl_add_u32", vLd, vT0, 1, vT1)
        e.S("s_mov_b32", sD, 4 * 3840)
        e.V("v_mad_u32_u24", vLeft, vLd, sD, vCol)
        mk_srd(e, SR1, PP[2:4], D * 3 * D * 2)
        e.S("s_mul_i32", sB, sP, 80)
        self.gather(RAW1[0:8], SR1, sStr, vReg, sB)
        e.S("s_add_u32", sA, sB, 32)
        self.gather(RAW1[8:16], SR1, sStr, vReg, sA)
        e.S("s_add_u32", sA, sB, 64)
        self.gather(RAW1[16:20], SR1, sStr, vLeft, sA, 4)
        self.stamp("iss1")
        def r2touch():
            e.S("s_lshl_b32", sA, s(2), 2)
            e.S("s_add_u32", sA, sA, sWave)
            e.V("v_min_u32", T0, 17, vLane)
            e.V("v_lshlrev_b32", T0, 7, T0)
            e.S("s_mul_i32", sB, sA, 2160)
            mk_srd(e, SR2, PP[8:10], F * D * 2)
            e.touch(vDum, T0, SR2, sB, 0, cls=(2000, 30, 0))
            mk_srd(e, SR2, PP[12:14], F * D * 2)
            e.touch(vDum, T0, SR2, sB, 0, cls=(2000, 30, 0))
            e.V("v_min_u32", T0, 7 * 128, T0)
            mk_srd(e, SR2, PP[4:6], D * D * 2)
            e.S("s_mul_i32", sB, sA, 800)
            e.touch(vDum, T0, SR2, sB, 0, cls=(2000, 30, 0))
        if self.opt.get("r2touch", 3) == 1:
            r2touch()
        if self.opt.get("wsoff"):
            e.S("s_add_u32", pWs[0], pWs[0], self.opt["wsoff"] << 20)
            e.S("s_addc_u32", pWs[1], pWs[1], 0)
        mk_srd(e, WS, pWs, WS_USED)
        e.sload(sBase, pWs, EPOCH)
        e.S("s_mov_b32", sA, "0x3f803f80")
        e.V("v_mov_b32", vOne, sA)
        e.S("s_and_b32", sCG, sC, 7)
        e.S("s_lshr_b32", sRH, sC, 3)
        if self.opt.get("r2touch", 0) == 3:
            r2touch()
        mk_srd(e, SB2, PP[14:16], D * 2)
        self.prologue2()
        self.stamp("pro2")
        sU, sP, sStr, sJ = s(88), s(89), s(100), s(101)
        rows = [s(3 + i) for i in range(4)]
        D2 = [s(64), s(65), s(66), s(67)]
        sDB, sDX = s(70), s(71)
        vSel0, vSel1 = vA1, vA2
        mk_srd(e, SR1, PP[10:12], F * 2)
        e.S("s_lshl_b32", sJ, sRH, 4)
        e.S("s_add_u32", sJ, sJ, sR)
        if self.opt.get("bal", 1):
            e.S("s_cmp_eq_u32", sJ, 15)
            e.S("s_cselect_b32", sA, 39, 127)
            e.S("s_mul_i32", sJ, sJ, 3)
            e.S("s_add_u32", sJ, sJ, sWave)
            e.S("s_add_u32", sJ, sJ, 39)
            e.S("s_cmp_ge_u32", sJ, 97)
            e.S("s_cselect_b32", sB, 97, 0)
            e.S("s_sub_u32", sJ, sJ, sB)
            e.S("s_cmp_eq_u32", sWave, 0)
            e.S("s_cselect_b32", sJ, sA, sJ)
        else:
            e.S("s_lshl_b32", sJ, sJ, 2)
            e.S("s_add_u32", sJ, sJ, sWave)
        e.V("v_lshrrev_b32", vT0, 1, vG)
        e.V("v_and_b32", vT1, 1, vG)
        e.V("v_mov_b32", vSt2, vL16)
        e.S("s_mov_b32", sDX, BIG)
        lo, lc, lj = e.newlabel("job_wo"), e.newlabel("job_w2"), e.newlabel("job_go")

        def unit(sbase, nu, stride, ca, cb, nreg, dB):
            e.S("s_lshl_b32", sA, sU, 5)
            e.S("s_add_u32", sA, sA, sbase)
            e.S("s_lshl_b32", sA, sA, 1)
            e.S("s_mov_b32", sDB, dB)
            e.S("s_cmp_lt_u32", sU, nu)
            e.S("s_cselect_b64", VCC, -1, 0)
            e.S("s_cselect_b32", sDB, sDB, BIG)
            e.V("v_lshlrev_b32", vCol, 2, vN)
            e.V("v_and_b32", vReg, 14, vN)
            e.V("v_lshlrev_b32", vReg, 1, vReg)
            e.V("v_cndmask_b32", vCol, vReg, vCol, VCC)
            e.V("v_add_u32", vCol, sA, vCol)
            e.V("v_and_b32", vReg, 1, vN)
            e.V("v_cndmask_b32", vReg, vReg, 0, VCC)
            e.S("s_mov_b32", sA, "0x02020202")
            e.V("v_mul_lo_u32", vReg, vReg, sA)
            e.V("v_add_u32", vSel0, "0x05040100", vReg)
            e.S("s_mov_b32", sStr, stride)
            e.S("s_mov_b32", sD, 8 * stride)
            e.V("v_mul_u32_u24", vReg, sD, vG)
            e.S("s_mov_b32", sD, ca * stride)
            e.V("v_mul_u32_u24", vLeft, sD, vT0)
            e.S("s_mov_b32", sD, cb * stride)
            e.V("v_mad_u32_u24", vLeft, vT1, sD, vLeft)
            e.S("s_cmp_lt_u32", sP, nreg)
            e.S("s_cselect_b64", VCC, -1, 0)
            e.V("v_cndmask_b32", vA0, vLeft, vReg, VCC)

        def split_dests(half):
            for b in range(4):
                e.S("s_lshl_b32", sA, sP, 2)
                e.S("s_add_u32", sA, sA, b)
                e.S("s_mul_i32", sD, sA, 10)
                e.S("s_cmp_ge_u32", sA, half)
                e.S("s_cselect_b32", sB, 10 * half - 1, 0)
                e.S("s_sub_u32", sD, sD, sB)
                e.S("s_add_u32", sD, sD, sE)
                e.S("s_lshl_b32", D2[b], sD, 10)
                if half == 27 and b >= 2:
                    e.S("s_cmp_ge_u32", sA, 54)
                    e.S("s_cselect_b32", D2[b], BIG, D2[b])

        def div3(dq, dr, src):
            e.S("s_mul_i32", dq, src, 43691)
            e.S("s_lshr_b32", dq, dq, 17)
            e.S("s_mul_i32", sA, dq, 3)
            e.S("s_sub_u32", dr, src, sA)

        e.S("s_cmp_ge_u32", sJ, 55)
        e.branch("s_cbranch_scc1", lc)
        e.S("s_cmp_ge_u32", sJ, 40)
        e.branch("s_cbranch_scc1", lo)
        e.cond_begin()
        mk_srd(e, SR2, PP[8:10], D * F * 2)
        e.S("s_and_b32", sU, sJ, 3)
        e.S("s_lshr_b32", sP, sJ, 2)
        e.S("s_cmp_ge_u32", sP, 5)
        e.S("s_cselect_b32", sA, 5, 0)
        e.S("s_cselect_b32", sJ, 8, 0)
        e.S("s_sub_u32", sP, sP, sA)
        e.S("s_add_u32", sJ, sJ, sCG)
        e.S("s_mul_i32", sE, sJ, 112)
        e.S("s_max_u32", sB, sJ, 12)
        e.S("s_sub_u32", sB, sB, 12)
        e.S("s_lshl_b32", sB, sB, 4)
        e.S("s_sub_u32", sE, sE, sB)
        unit(sE, 3, 3456, 80, 8, 4, 1024)
        e.S("s_lshl_b32", sA, sU, 4)
        e.S("s_add_u32", sA, sA, sJ)
        e.S("s_cmp_ge_u32", sA, 3 * 16 + 12)
        e.S("s_cselect_b64", VCC, -1, 0)
        e.V("v_cndmask_b32", vCol, vCol, vBig, VCC)
        for b in range(4):
            e.S("s_mul_i32", sA, sP, 160)
            e.S("s_add_u32", sA, sA, 80 * (b >> 1) + 32 * (b & 1))
            e.S("s_cmp_eq_u32", sP, 4)
            e.S("s_cselect_b32", rows[b], 160 * b + 64, sA)
        e.S("s_cmp_lt_u32", sU, B1N // 2)
        e.S("s_cselect_b32", s(79), B1N, 7 - B1N)
        e.S("s_cselect_b32", sE, 0, 20 * B1N)
        e.S("s_lshl_b32", sA, sU, 1)
        e.S("s_add_u32", sE, sE, sA)
        e.S("s_mul_i32", sB, sJ, NB)
        e.S("s_add_u32", sE, sE, sB)
        e.S("s_add_u32", sE, sE, WB // KB)
        for b in range(4):
            e.S("s_lshl_b32", sA, sP, 2)
            e.S("s_add_u32", sA, sA, b)
            e.S("s_mul_i32", sA, sA, s(79))
            e.S("s_add_u32", sA, sA, sE)
            e.S("s_lshl_b32", D2[b], sA, 10)
        e.S("s_mul_i32", sD, s(79), 20)
        e.S("s_add_u32", sD, sD, sE)
        e.S("s_lshl_b32", sDX, sD, 10)
        e.branch("s_branch", lj)
        e.cond_end()
        e.label(lo)
        e.cond_begin()
        mk_srd(e, SR2, PP[4:6], D * D * 2)
        e.S("s_sub_u32", sJ, sJ, 40)
        div3(sP, sU, sJ)
        e.S("s_mul_i32", sE, sCG, 80)
        unit(sE, 2, 1280, 80, 40, 4, 2048)
        for b in range(4):
            e.S("s_mul_i32", sA, sP, 160)
            e.S("s_add_u32", sA, sA, 40 * b)
            e.S("s_cmp_eq_u32", sP, 4)
            e.S("s_cselect_b32", rows[b], 160 * b + 32, sA)
        e.S("s_mul_i32", sE, sCG, NO)
        e.S("s_add_u32", sE, sE, WO // KB)
        e.S("s_lshl_b32", sA, sU, 2)
        e.S("s_add_u32", sE, sE, sA)
        split_dests(10)
        e.branch("s_branch", lj)
        e.cond_end()
        e.label(lc)
        e.cond_begin()
        mk_srd(e, SR2, PP[12:14], F * D * 2)
        e.S("s_sub_u32", sJ, sJ, 55)
        div3(sP, sU, sJ)
        e.S("s_mul_i32", sE, sCG, 80)
        unit(sE, 2, 1280, 112, 8, 12, 2048)
        e.S("s_cmp_ge_u32", sP, 14)
        e.S("s_cselect_b64", VCC, -1, 0)
        e.V("v_cndmask_b32", vCol, vCol, vBig, VCC)
        e.V("v_cndmask_b32", vSt2, vSt2, vBig, VCC)
        e.S("s_min_u32", sP, sP, 13)
        for b in range(4):
            e.S("s_lshl_b32", sD, sP, 2)
            e.S("s_add_u32", sD, sD, b)
            e.S("s_mul_i32", sA, sD, 43691)
            e.S("s_lshr_b32", sA, sA, 17)
            e.S("s_lshl_b32", sA, sA, 4)
            e.S("s_min_u32", sA, sA, 192)
            e.S("s_lshl_b32", sB, sD, 5)
            e.S("s_add_u32", sA, sA, sB)
            e.S("s_mul_i32", sB, sD, 224)
            e.S("s_sub_u32", sB, sB, 224 * 48 - 96)
            e.S("s_cmp_ge_u32", sD, 48)
            e.S("s_cselect_b32", rows[b], sB, sA)
        e.S("s_mul_i32", sE, sCG, NC)
        e.S("s_add_u32", sE, sE, WC // KB)
        e.S("s_lshl_b32", sA, sU, 2)
        e.S("s_add_u32", sE, sE, sA)
        split_dests(27)
        e.cond_end()
        e.label(lj)
        e.V("v_add_u32", vA0, vA0, vCol)
        e.S("s_cmp_lt_u32", sP, 2)
        e.S("s_cselect_b64", VCC, -1, 0)
        e.V("v_cndmask_b32", vBias, vBig, vCol, VCC)
        e.V("v_mov_b32", vSel1, "0x07060302")
        e.V("v_add_u32", vT0, sP, vG)
        e.V("v_lshrrev_b32", vT1, 1, vT0)
        e.V("v_lshlrev_b32", vLd, 4, vN)
        e.V("v_lshl_add_u32", vLd, vT1, 8, vLd)
        e.V("v_and_b32", vT0, 1, vT0)
        e.V("v_lshl_add_u32", vLd, vT0, 3, vLd)
        e.S("s_cmp_eq_u32", sP, 4)
        e.S("s_cselect_b32", sA, 4, 1)
        e.V("v_cmp_gt_u32", VCC, sA, vG)
        e.V("v_cndmask_b32", vLd, vBig, vLd, VCC)
        e.S("s_lshl_b32", sA, sC, 4)
        e.S("s_add_u32", sA, sA, sR)
        e.S("s_mul_i32", sA, sA, KVSZ)
        e.S("s_mul_i32", sB, sWave, KVSZ // 4)
        e.S("s_add_u32", sA, sA, sB)
        e.S("s_add_u32", s(79), sA, KVB[1])
        self.stamp("dec2")
        sP2 = sP
        wT0, wT1, wLd, wSum = FIFO[8], FIFO[9], FIFO[10], FIFO[11]
        sT, sP = s(7), s(93)
        ops1 = []
        e.S("s_lshr_b32", sA, sC, 1)
        e.S("s_lshl_b32", sB, sR, 3)
        e.S("s_add_u32", sA, sA, sB)
        e.S("s_mul_i32", sA, sA, 20 * KB)
        e.S("s_and_b32", sB, sC, 1)
        e.S("s_lshl_b32", sB, sB, 7)
        e.S("s_add_u32", sA, sA, sB)
        e.S("s_add_u32", sA, sA, XB[0])
        for k in range(3):
            e.S("s_lshl_b32", sB, XM[k], 11)
            e.S("s_add_u32", sB, sB, sA)
            ops1.append(e.bstore(XJ[k], XD, WS, sB, 0, "sc1", cls=(1000, 70, 0)))
        xs = ACC[26:28]
        xz = ACC[24:26]
        MK = ACC[28:32]
        for r_ in (xs[0], xs[1], xz[0], xz[1]):
            e.V("v_mov_b32", r_, 0)
        for k in range(3):
            for i in range(4):
                e.V("v_dot2c_f32_bf16", xs[0], XJ[k][i], vOne)
                e.V("v_dot2c_f32_bf16", xs[1], XJ[k][i], XJ[k][i])
        for h in range(2):
            e.V("v_add_f32_dpp", xs[h], xs[h], xs[h], mods="row_ror:8 row_mask:0xf bank_mask:0xf")
            allreduce_g(e, xs[h], wT0)
        e.S("s_lshl_b32", sA, sR, 3)
        e.S("s_add_u32", sA, sA, sWave)
        e.S("s_lshl_b32", sA, sA, 10)
        e.S("s_lshl_b32", sB, sC, 6)
        e.S("s_add_u32", sA, sA, sB)
        e.S("s_add_u32", sA, sA, STB[0])
        e.S("s_add_u32", sB, sA, 4096)
        e.V("v_lshlrev_b32", wT0, 3, vLane)
        e.S("s_mov_b64", EXEC, "0xff")
        ops1.append(e.bstore(xs, wT0, WS, sA, 0, "sc1", cls=(1000, 20, 0)))
        ops1.append(e.bstore(xz, wT0, WS, sB, 0, "sc1", cls=(1000, 20, 0)))
        e.S("s_mov_b64", EXEC, -1)
        self.stamp("xst")
        e.S("s_cmp_lt_u32", sT, 5)
        e.S("s_cselect_b32", sE, 5, 3)
        e.S("s_cselect_b32", sA, 0, 100)
        e.S("s_add_u32", sA, sA, sT)
        e.S("s_mul_i32", sB, sC, NA)
        e.S("s_add_u32", sA, sA, sB)
        e.S("s_add_u32", sA, sA, WA // KB)
        e.S("s_lshl_b32", sA, sA, 10)
        e.S("s_lshl_b32", sE, sE, 10)
        e.S("s_mul_i32", sB, sP, sE)
        e.S("s_lshl_b32", sB, sB, 1)
        e.S("s_add_u32", sB, sB, sA)
        self.pack(RAW1[0:8])
        ops1.append(e.bstore(RAW1[0:4], vL16, WS, sB, 0, "sc1", cls=(1000, 70, 0)))
        e.S("s_add_u32", sB, sB, sE)
        self.pack(RAW1[8:16])
        ops1.append(e.bstore(RAW1[8:12], vL16, WS, sB, 0, "sc1", cls=(1000, 70, 0)))
        e.S("s_lshr_b32", sB, sP, 1)
        e.S("s_add_u32", sB, sB, 16)
        e.S("s_mul_i32", sB, sB, sE)
        e.S("s_add_u32", sB, sB, sA)
        e.S("s_and_b32", sD, sP, 1)
        e.S("s_lshl_b32", s(95), sD, 9)
        e.S("s_add_u32", sB, sB, s(95))
        e.V("v_lshlrev_b32", wT0, 8, vG)
        e.V("v_and_b32", wT0, 256, wT0)
        e.V("v_lshl_add_u32", wT0, vN, 4, wT0)
        e.V("v_lshrrev_b32", wT1, 1, vG)
        e.V("v_lshl_add_u32", wLd, wT1, 3, wT0)
        self.pack(RAW1[16:20], 2)
        ops1.append(e.bstore(RAW1[16:18], wLd, WS, sB, 0, "sc1", cls=(1000, 40, 0)))
        self.colsum([RAW1[i] for i in (0, 1, 2, 3, 8, 9, 10, 11, 16, 17)], EX, wSum, wT0)
        e.S("s_mul_i32", sB, sE, 20)
        e.S("s_add_u32", sB, sB, sA)
        e.S("s_lshr_b32", sA, sP, 1)
        e.S("s_lshl_b32", sA, sA, 8)
        e.S("s_add_u32", sB, sB, sA)
        e.S("s_lshl_b32", sD, sD, 3)
        e.S("s_add_u32", sB, sB, sD)
        e.S("s_mov_b64", EXEC, "0xffff")
        ops1.append(e.bstore(EX[0:2], vL16, WS, sB, 0, "sc1", cls=(1000, 20, 0)))
        e.S("s_mov_b64", EXEC, -1)
        self.stamp("r1")
        if self.opt.get("r2touch", 3) == 2:
            r2touch()
        for i in range(4):
            e.V("v_mov_b32", MK[i], -1)
        e.S("s_lshl_b32", sA, sC, 4)
        e.S("s_add_u32", sA, sA, sR)
        e.S("s_mul_i32", sA, sA, KVSZ)
        e.S("s_mul_i32", sB, sWave, KVSZ // 4)
        e.S("s_add_u32", sA, sA, sB)
        e.S("s_add_u32", sA, sA, KVB[0])
        e.S("s_mov_b64", EXEC, "0xfffffff")
        ops1.append(e.bstore(MK, vL16, WS, sA, 0, "sc1", cls=(1000, 40, 0)))
        e.S("s_mov_b64", EXEC, -1)
        self.stamp("xjob")
        sP = sP2
        self.ops2 = []

        def r2_loads():
            for b in range(4):
                e.S("s_mul_i32", sE, rows[b], sStr); yield
                for i in range(8):
                    e.bload(RAW2[8 * b + i], vA0, SR2, sE, 0, cls=(1500, 32, 0)); yield
                    if i < 7:
                        e.S("s_add_u32", sE, sE, sStr); yield
            e.bload(vBias, vBias, SR1, 0, 0, cls=(1500, 10, 0)); yield

        vs, vt, MK = TMP[48], TMP[49], TMP[40:44]
        EV = ACC[40:56]

        def r2_pack():
            for b in range(4):
                raw = RAW2[8 * b:8 * b + 8]
                for i in range(4):
                    e.V("v_perm_b32", EV[4 * b + i], raw[2 * i + 1], raw[2 * i], vSel0)
                for i in range(4):
                    e.V("v_perm_b32", raw[i], raw[2 * i + 1], raw[2 * i], vSel1)
            for i in range(4):
                e.V("v_mov_b32", MK[i], -1)
            e.V("v_cmp_eq_u32", sNan, 0, vG)
            for h in range(2):
                ex = TMP[44 + 2 * h:46 + 2 * h]
                self.colsum([EV[i] for i in range(16)] if h == 0 else [RAW2[8 * b + i] for b in range(4) for i in range(4)], ex, vs, vt)
                e.V("v_perm_b32", vt, vBias, vBias, vSel0 if h == 0 else vSel1)
                e.V("v_and_b32", vt, "0xffff0000", vt)
                e.V("v_or_b32", ex[1], ex[1], vt)
                e.V("v_cndmask_b32", ex[0], 0, ex[0], sNan)
                e.V("v_cndmask_b32", ex[1], 0, ex[1], sNan)
            e.V("v_mov_b32", vSel0, vLd)
            yield

        def r2_stores():
            for b in range(4):
                self.ops2.append(e.bstore(EV[4 * b:4 * b + 4], vSt2, WS, D2[b], 0, self.opt.get("r2mod", "sc1"), cls=(1000, 70, 0)))
                e.S("s_add_u32", sA, D2[b], sDB)
                self.ops2.append(e.bstore(RAW2[8 * b:8 * b + 4], vSt2, WS, sA, 0, self.opt.get("r2mod", "sc1"), cls=(1000, 70, 0)))
            e.S("s_mov_b64", EXEC, "0xfffffff")
            self.ops2.append(e.bstore(MK, vL16, WS, s(79), 0, "sc1", cls=(1000, 40, 0)))
            e.S("s_mov_b64", EXEC, -1)
            for h in range(2):
                if h:
                    e.S("s_add_u32", sDX, sDX, sDB)
                self.ops2.append(e.bstore(TMP[44 + 2 * h:46 + 2 * h], vSel0, WS, sDX, 0, "sc1", cls=(1000, 20, 0)))
        self.r2_stores = r2_stores
        self.r2_loads, self.r2_pack = r2_loads(), r2_pack()
        npre = self.opt.get("r2pre", 50)
        for _ in self.r2_loads:
            npre -= 1
            if npre <= 0:
                break
        self.stamp("iss2")
        e.wait_ops(ops1)
        e.barrier()
        self.flag("both", 1, ACC[34], ACC[35])
        self.stamp("w1flag")
        for _ in self.r2_loads:
            pass
        for _ in self.r2_pack:
            pass
        self.al0 = None
        if self.opt.get("early_a", 0):
            self.poll("row", 1)
            e.barrier()
        if self.opt.get("r2st", 2) == 2:
            r2_stores()
            self.late_loads()
        self.stamp("r2")
        if self.opt.get("early_a", 0):
            self.stats_loads(0)
            self.al0 = self.ALoad(self, vAx, (sXr, XB[0]), 20)
            self.al0.upto(19)
        self.poll("col" if self.al0 else "both", 1)
        e.barrier()
        self.stamp("w1go")

    def w2_gen(self):
        e = self.e
        t = RES[0]
        e.V("v_bfe_u32", t, vLane, 4, 1); yield
        e.V("v_lshl_add_u32", t, t, 11, vFl); yield
        e.S("s_lshl_b32", s(4), sCG, 8); yield
        e.S("s_add_u32", s(4), s(4), FLG_C); yield
        e.bload(RES[1], t, WS, s(4), 0, "sc1", cls=(900, 10, 0)); yield
        for _ in range(self.opt.get("w2wait", 50)):
            yield "idle"
        e.S("s_add_u32", s(5), sBase, 2); yield
        lok, lre = e.newlabel("w2ok"), e.newlabel("w2retry")
        e.V("v_cmp_ne_u32", VCC, s(5), RES[1])
        e.S("s_cmp_eq_u64", VCC, 0)
        e.branch("s_cbranch_scc1", lok)
        e.cond_begin()
        e.S("s_mov_b32", sCnt, 0)
        e.label(lre)
        e.misc("s_sleep 4")
        e.bload(RES[1], t, WS, s(4), 0, "sc1")
        e.V("v_cmp_ne_u32", VCC, s(5), RES[1])
        e.S("s_cmp_eq_u64", VCC, 0)
        e.branch("s_cbranch_scc1", lok)
        e.S("s_add_u32", sCnt, sCnt, 1)
        e.S("s_cmp_lt_u32", sCnt, 0x20000)
        e.branch("s_cbranch_scc1", lre)
        e.cond_end()
        e.label(lok)
        self.gate = 1 << 20
        yield

    def prologue2(self):
        e = self.e
        T0, T1, T2, T3, T4, T5 = [TMP[40 + i] for i in range(6)]
        mk_srd(e, OUT, pOut, XSZ)
        e.S("s_and_b32", sKH, sWave, 1)
        e.S("s_lshl_b32", sW2048, sWave, 11)
        e.S("s_mul_i32", sA, sC, NA * KB)
        e.S("s_add_u32", sSeg["A"], sA, WA)
        e.S("s_mul_i32", sA, sCG, NO * KB)
        e.S("s_add_u32", sSeg["O"], sA, WO)
        e.S("s_mul_i32", sA, sC, NB * KB)
        e.S("s_add_u32", sSeg["B"], sA, WB)
        e.S("s_mul_i32", sA, sCG, NC * KB)
        e.S("s_add_u32", sSeg["C"], sA, WC)
        e.V("v_add_u32", vDma, sW2048, vL16)
        e.S("s_mul_i32", sXr, sR, 160 * KB)
        e.S("s_mul_i32", sHr, sR, 432 * KB)
        e.S("s_lshl_b32", sSTr, sR, 13)
        e.S("s_mul_i32", sA, sWave, 40 * KB)
        e.V("v_add_u32", vAx[0], sA, vL16)
        e.V("v_add_u32", vAx[1], 20 * KB, vAx[0])
        e.V("v_lshlrev_b32", T0, 11, vG)
        e.V("v_lshl_add_u32", T0, vN, 3, T0)
        e.S("s_lshl_b32", sA, sWave, 8)
        e.V("v_add_u32", vSt, sA, T0)
        e.S("s_mov_b32", self.cInvD, lit(1.0 / D))
        for j in range(3):
            if j == 0:
                e.V("v_mov_b32", vW[0], vL16)
            else:
                e.V("v_add_u32", vW[j], j * 65536, vL16)
        e.S("s_lshl_b32", sA, sKH, 10)
        for j in range(3):
            e.V("v_add_u32", vK[j], sA, vW[j])
        e.V("v_lshlrev_b32", T4, 4, v(0))
        Z = TMP[44:48]
        Z = TMP[48:52]
        for j in range(4):
            e.V("v_mov_b32", Z[j], 0)
        e.ds_write(T4, Z, 0)
        e.ds_write(T4, Z, 4096)
        e.S("s_lshl_b32", sTT, sRH, 2)
        e.S("s_add_u32", sTT, sTT, sWave)
        e.S("s_xor_b32", sB, sTT, 1)
        for u, st in ((0, sTT), (1, sB)):
            e.S("s_mul_i32", sA, st, 20 * KB)
            e.S("s_mul_i32", sD, sKH, 10 * KB)
            e.S("s_add_u32", sA, sA, sD)
            e.V("v_add_u32", vAo[u], sA, vL16)
            e.S("s_mul_i32", sA, st, 54 * KB)
            e.S("s_mul_i32", sD, sKH, 27 * KB)
            e.S("s_add_u32", sA, sA, sD)
            e.V("v_add_u32", vAh[u], sA, vL16)
        e.V("v_lshrrev_b32", T0, 1, vG)
        e.V("v_and_b32", T1, 1, vG)
        e.V("v_lshlrev_b32", T2, 4, vN)
        e.V("v_lshl_add_u32", T3, T0, 8, T2)
        e.V("v_lshl_add_u32", T3, T1, 3, T3)
        e.S("s_mul_i32", sA, sTT, 20 * KB)
        e.V("v_add_u32", vXs, sA, vL16)
        e.V("v_add_u32", vXh, sA, T3)
        e.S("s_mul_i32", sA, sWave, 108 * KB)
        e.V("v_add_u32", vHs, sA, vL16)
        e.S("s_cmp_ge_u32", sC, 12)
        e.S("s_cselect_b32", sA, BIG, sA)
        e.V("v_add_u32", vHh, sA, T3)
        e.S("s_mul_i32", sA, sWave, 40 * KB)
        e.V("v_lshl_add_u32", T3, vG, 3, T2)
        e.V("v_add_u32", vOh, sA, T3)
        e.V("v_cmp_gt_u32", VCC, 2, vG)
        e.V("v_mov_b32", T3, BIG)
        e.V("v_cndmask_b32", vOh, T3, vOh, VCC)
        e.S("s_lshl_b32", sA, sTT, 7)
        e.V("v_lshl_add_u32", T3, vN, 3, sA)
        e.V("v_lshl_add_u32", vStW, T0, 2, T3)
        e.S("s_lshl_b32", sA, sWave, 7)
        e.S("s_add_u32", sA, sA, RST)
        e.V("v_lshl_add_u32", vRT, vG, 4, sA)
        e.V("v_lshl_add_u32", vRW, vN, 2, sA)
        e.S("s_lshl_b32", sA, sTT, 6)
        e.S("s_add_u32", sA, sA, RST)
        e.V("v_lshl_add_u32", vRF, vN, 2, sA)
        e.V("v_lshlrev_b32", T3, 4, vG)
        e.V("v_add_u32", vZ2, ZT + 128, T3)
        e.V("v_cmp_gt_u32", VCC, 10, vN)
        e.V("v_add_u32", T3, ZT, T3)
        e.V("v_cndmask_b32", vZ01, vZ2, T3, VCC)
        e.S("s_lshl_b32", sA, sR, 3)
        e.S("s_add_u32", sA, sA, sTT)
        e.S("s_mul_i32", sA, sA, 16 * 1280)
        e.S("s_mul_i32", sB, sCG, 160)
        e.S("s_add_u32", sA, sA, sB)
        e.V("v_mul_u32_u24", T3, 1280, vN)
        e.V("v_add_u32", T3, sA, T3)
        e.V("v_lshl_add_u32", vOut, vG, 4, T3)
        e.V("v_lshl_add_u32", vOut4, vG, 3, T3)
        e.S("s_mul_i32", sA, sWave, 5120)
        e.V("v_add_u32", vXch, sA, vL16)
        e.V("v_lshlrev_b32", vFl, 2, vN)
        e.V("v_mov_b32", vLn2[0], lit(LN2))
        e.V("v_mov_b32", vEps[0], lit(1e-6))
        e.S("s_mov_b32", sMaskV[0], "0x00ff00ff")
        e.S("s_mov_b32", sMaskV[1], "0x00ff00ff")
        e.S("s_lshl_b32", sA, sR, 8)
        e.S("s_add_u32", sFRL, sA, FLG_RL)
        e.S("s_add_u32", sFRG, sA, FLG_RG)
        e.S("s_lshl_b32", sA, sC, 8)
        e.S("s_add_u32", sFC, sA, FLG_C)
        e.S("s_lshl_b32", sA, sCG, 11)
        e.S("s_add_u32", sOx, sXr, sA)
        e.S("s_lshr_b32", sA, sCG, 1)
        e.S("s_lshl_b32", sA, sA, 10)
        e.S("s_and_b32", sB, sCG, 1)
        e.S("s_lshl_b32", sB, sB, 9)
        e.S("s_add_u32", sA, sA, sB)
        e.S("s_add_u32", sA, sA, 16 * KB)
        e.S("s_add_u32", sOxh, sXr, sA)
        e.S("s_lshl_b32", sA, sCG, 10)
        e.S("s_add_u32", sOst, sSTr, sA)
        e.S("s_lshl_b32", sA, sC, 10)
        e.S("s_add_u32", sOo, sXr, sA)
        e.S("s_lshl_b32", sA, sC, 8)
        e.S("s_add_u32", sA, sA, 16 * KB)
        e.S("s_add_u32", sOoh, sXr, sA)
        e.S("s_mul_i32", sA, sC, 3 * KB)
        e.S("s_add_u32", sOh, sHr, sA)
        e.S("s_lshl_b32", sA, sC, 9)
        e.S("s_add_u32", sA, sA, 48 * KB)
        e.S("s_add_u32", sOhh, sHr, sA)
        e.S("s_mul_i32", sKv, sC, 16 * KVSZ)
        e.misc(f"s_getreg_b32 {sX1}, hwreg(HW_REG_XCC_ID, 0, 4)")
        e.S("s_and_b32", sX1, sX1, 7)
        e.S("s_add_u32", sX1, sX1, 8)
        e.S("s_add_u32", sX1, sX1, sBase)
        e.S("s_mov_b32", sLocal, 0)
        U, Hh, Ee, Dq = T0, T1, T2, T3
        e.S("s_mov_b32", sA, 52429)
        e.V("v_mul_u32_u24", U, sA, v(0))
        e.V("v_lshrrev_b32", U, 18, U)
        e.V("v_mul_u32_u24", Dq, 5, U)
        e.V("v_sub_u32", Dq, v(0), Dq)
        e.V("v_cmp_le_u32", VCC, 21, U)
        e.V("v_cndmask_b32", Hh, 0, 1, VCC)
        e.V("v_mul_u32_u24", Ee, 21, Hh)
        e.V("v_sub_u32", Ee, U, Ee)
        A0, A1, A2, A3 = TMP[46], TMP[47], TMP[38], TMP[39]
        e.V("v_cmp_le_u32", s(100, 2), 16, Ee)
        e.V("v_cmp_eq_u32", s(88, 2), 4, Dq)
        e.V("v_cndmask_b32", A0, 0, 1, s(100, 2))
        e.V("v_lshl_add_u32", A0, Hh, 1, A0)
        e.V("v_add_u32", A1, 4, Hh)
        e.V("v_cndmask_b32", A1, A1, 6, s(100, 2))
        e.V("v_cndmask_b32", A0, A0, A1, s(88, 2))
        e.V("v_cndmask_b32", A1, Dq, Hh, s(88, 2))
        e.V("v_lshl_add_u32", A2, Hh, 2, Ee)
        e.V("v_subrev_u32", A2, 8, A2)
        e.V("v_cndmask_b32", A2, Ee, A2, s(100, 2))
        e.V("v_cmp_eq_u32", VCC, 20, Ee)
        e.V("v_cndmask_b32", A2, A2, 0, VCC)
        e.V("v_lshl_add_u32", A1, A1, 4, A2)
        e.V("v_lshlrev_b32", A1, 4, A1)
        e.V("v_lshl_add_u32", vKvSrc, A0, 10, A1)
        e.V("v_mul_u32_u24", A0, 5, Hh)
        e.V("v_add_u32", A0, A0, Dq)
        e.V("v_cmp_le_u32", s(88, 2), 8, A0)
        e.V("v_lshrrev_b32", A1, 1, A0)
        e.V("v_subrev_u32", A2, 8, A0)
        e.V("v_cndmask_b32", A1, A1, A2, s(88, 2))
        e.V("v_and_b32", A2, 1, A0)
        e.V("v_cndmask_b32", A2, A2, 0, s(88, 2))
        e.V("v_lshlrev_b32", A2, 3, A2)
        e.V("v_cndmask_b32", A0, 0, 1, s(88, 2))
        e.V("v_lshl_add_u32", A3, Hh, 1, A0)
        e.V("v_lshl_add_u32", A3, A3, 2, A1)
        e.V("v_lshl_add_u32", A3, A3, 4, A2)
        e.V("v_add_u32", A3, ZT, A3)
        e.V("v_mul_u32_u24", T4, 20, Hh)
        e.V("v_add_u32", T4, T4, Ee)
        e.V("v_cmp_le_u32", s(100, 2), 32, T4)
        e.V("v_and_b32", T5, 1, T4)
        e.V("v_cndmask_b32", T5, T5, 2, s(100, 2))
        e.V("v_lshl_add_u32", A0, T5, 1, A0)
        e.V("v_lshrrev_b32", T5, 1, T4)
        e.V("v_subrev_u32", T4, 32, T4)
        e.V("v_cndmask_b32", T4, T5, T4, s(100, 2))
        e.V("v_lshl_add_u32", T4, A1, 4, T4)
        e.V("v_lshl_add_u32", T4, T4, 4, A2)
        e.V("v_lshl_add_u32", T4, A0, 10, T4)
        e.V("v_cndmask_b32", T4, T4, A3, VCC)
        e.V("v_cmp_gt_u32", VCC, 210, v(0))
        e.V("v_mov_b32", T5, DUMMY)
        e.V("v_cndmask_b32", vKvDst, T5, T4, VCC)
        e.V("v_cndmask_b32", vKvSrc, 0, vKvSrc, VCC)
        e.V("v_lshlrev_b32", T4, 3, v(0))
        e.V("v_mov_b32", T5, BIG)
        e.V("v_cndmask_b32", vT16, T5, T4, VCC)
        e.V("v_and_b32", T4, -16, T4)
        e.V("v_and_b32", T0, 1, v(0))
        e.V("v_mul_u32_u24", T0, 8 * KVSZ, T0)
        e.V("v_add_u32", T4, T4, T0)
        e.V("v_cndmask_b32", vT16L, T5, T4, VCC)

    def late_loads(self):
        e = self.e
        T4, T5 = TMP[48], TMP[49]
        e.S("s_mul_i32", sB, sCG, 160)
        e.bload(RES[10:14], vOut, XIN, 0, 0)
        e.bload(RES[14:18], vOut, XIN, 0, 64)
        e.bload(RES[18:20], vOut4, XIN, 0, 128)
        skip = e.newlabel("noxid")
        e.S("s_cmp_lg_u32", sWave, 3)
        e.branch("s_cbranch_scc1", skip)
        e.cond_begin()
        e.S("s_lshl_b32", sA, sR, 8)
        e.S("s_add_u32", sA, sA, FLG_X)
        e.S("s_lshl_b32", sB, sC, 2)
        e.V("v_mov_b32", T4, sB)
        e.V("v_mov_b32", T5, sX1)
        e.S("s_mov_b64", EXEC, 1)
        e.bstore(T5, T4, WS, sA, 0, "sc1")
        e.S("s_mov_b64", EXEC, -1)
        e.cond_end()
        e.label(skip)

    def unpack(self, dst, pk):
        e = self.e
        for a_ in range(2):
            for j in range(4):
                e.V("v_lshlrev_b32", dst[8 * a_ + j], 16, pk[4 * a_ + j])
                e.V("v_and_b32", dst[8 * a_ + 4 + j], "0xffff0000", pk[4 * a_ + j])
        for j in range(2):
            e.V("v_lshlrev_b32", dst[16 + 2 * j], 16, pk[8 + j])
            e.V("v_and_b32", dst[16 + 2 * j + 1], "0xffff0000", pk[8 + j])

    class ALoad:
        def __init__(self, m, vaddr, terms, nks):
            self.m, self.vaddr, self.terms, self.nks = m, vaddr, terms, nks
            self.n = 0
            self.based = -1
            self.done = False
            self.win = 20

        def step(self):
            e = self.m.e
            ks, u = divmod(self.n, 2)
            if ks // 4 != self.based:
                self.based = ks // 4
                e.S("s_add_u32", sLd, self.terms[0], self.terms[1] + (ks // 4) * 4 * KB)
                return False
            e.bload(a((self.n % 40) * 4, 4), self.vaddr[u], WS, sLd, (ks % 4) * KB, self.m.opt.get("amod", "sc1"), cls=(self.m.opt.get("latA", 600), 76, 33 if self.nks == 27 else 16))
            self.n += 1
            self.done = self.n >= 2 * self.nks
            return True

        def upto(self, ks):
            while self.n < 2 * min(ks + 1, self.nks):
                self.step()

    def stats_loads(self, ver):
        e = self.e
        e.S("s_add_u32", sA, sSTr, STB[ver])
        for u in range(2):
            for k in range(2):
                e.bload(TMP[4 * u + 2 * k:4 * u + 2 * k + 2], vSt, WS, sA, k * 1024 + u * 128, "sc1", cls=(600, 20, 0))

    def stats_gen(self, need_T, have=False):
        e = self.e
        for u in range(2):
            sm, sq, t0, t1 = TMP[4 * u], TMP[4 * u + 1], TMP[4 * u + 2], TMP[4 * u + 3]
            if not have:
                e.V("v_add_f32", sm, sm, t0); yield
                e.V("v_add_f32", sq, sq, t1); yield
            for op in () if have else ("v_permlane32_swap_b32", "v_permlane16_swap_b32"):
                e.V("v_mov_b32", t0, sm); yield
                e.V("v_mov_b32", t1, sq); yield
                e.V(op, sm, t0); yield
                e.V(op, sq, t1); yield
                e.V("v_add_f32", sm, sm, t0); yield
                e.V("v_add_f32", sq, sq, t1); yield
            e.V("v_mul_f32", sm, lit(1.0 / D), sm); yield
            e.V("v_mul_f32", t0, sm, sm); yield
            e.V("v_fma_f32", sq, sq, self.cInvD, Neg(t0)); yield
            e.V("v_max_f32", sq, 0, sq); yield
            e.V("v_add_f32", sq, lit(1e-5), sq); yield
            e.V("v_rsq_f32", t0, sq); yield
            e.V("v_cvt_pk_bf16_f32", XE[u][0], sm, sm); yield
            e.V("v_mul_f32", sq, sq, t0); yield
            e.ds_write(vRW, t0, 64 * u); yield
            c2 = vC2 if u == 0 else vC2b
            e.V("v_mul_f32", c2[0], lit(LOG2E), t0); yield
            e.V("v_lshlrev_b32", t1, 16, XE[u][0]); yield
            e.V("v_sub_f32", sm, sm, t1); yield
            e.V("v_cvt_pk_bf16_f32", XE[u][1], sm, sq); yield
            e.V("v_and_b32", t1, "0xffff0000", XE[u][1]); yield
            e.V("v_sub_f32", t1, sq, t1); yield
            e.V("v_cvt_pk_bf16_f32", XE[u][3], sm, t1); yield
            e.V("v_mov_b32", XE[u][2], XE[u][0]); yield
        if need_T:
            for u in range(2):
                e.ds_read(RT[4 * u:4 * u + 4], vRT, 64 * u); yield

    def phi_pair(self, src, c2, bcast, t):
        e = self.e
        m = "op_sel_hi:[1,0]" if bcast else ""
        e.V("v_pk_mul_f32", t[0:2], src, c2, mods=m)
        e.V("v_exp_f32_e64", t[2], t[0], mods="clamp")
        e.V("v_exp_f32_e64", t[3], t[1], mods="clamp")
        e.V("v_max_f32", t[0], 0, t[0])
        e.V("v_max_f32", t[1], 0, t[1])
        e.V("v_pk_add_f32", t[2:4], t[2:4], vEps, mods="op_sel_hi:[1,0]")
        e.V("v_pk_fma_f32", t[0:2], t[0:2], vLn2, t[2:4], mods="op_sel_hi:[1,0,1]")

    def scratch(self, nblk, endpos):
        st = endpos - nblk
        if (st % RB) + nblk > RB:
            st = endpos - (endpos % RB) - nblk
        self.last_scratch = (st, st + nblk)
        return st, self.ldsaddr(st)

    def bg_on(self, tail):
        e = self.e
        st = {"next": 0}
        t_end = e.T + tail
        self.deadline = lambda: t_end

        def f():
            if e.T >= st["next"] and self.dma_ok():
                n0 = len(e.vm) + len(e.lg) + len(self.deferred)
                while len(e.vm) + len(e.lg) + len(self.deferred) == n0:
                    next(self.dmaf)
                st["next"] = e.T + self.opt.get("vgap", 24)
        self.e.bg = f

    def code_touch(self, ahead=None):
        e = self.e
        if not self.opt.get("ctouch", 1):
            return
        lab = e.newlabel("here")
        e.label(lab)
        ahead = self.opt.get("cahead", 2048) if ahead is None else ahead
        e.V("v_lshlrev_b32", v(51), 5, v(0))
        e.V("v_add_u32", v(51), f"{lab}-{self.kname}+{ahead}", v(51))
        e.V("v_min_u32", v(51), self.opt.get("code_bytes", 32768) - 4, v(51))
        e.misc(f"global_load_dword {vDum}, {v(51)}, s[96:97]")
        e._vm([], (800, 30, 10))

    def at_block(self, t, gen):
        i0 = self.cons
        while self.cons < i0 + t:
            yield "idle"
        yield from gen

    def delay(self, n, gen):
        for _ in range(n):
            yield "idle"
        yield from gen

    def code_touch_gen(self):
        self.code_touch(self.opt.get("cahead", 512))
        yield

    def bg_off(self):
        self.e.bg = None

    def gstore(self, lst, cold=False):
        e = self.e
        mode = self.opt.get("mode", "dual")
        if cold and not self.opt.get("touchcold", 0):
            mode = "safe"
        if mode != "dual":
            return [e.bstore(d, vo, WS, so, off, "sc1" if mode == "safe" else "") for d, vo, so, off in lst]
        ls, le = e.newlabel("st_safe"), e.newlabel("st_end")
        regs = []
        for d, vo, so, off in lst:
            regs += d.regs() + vo.regs()
        e.wait_ops(e._pending(regs))
        e.S("s_cmp_eq_u32", sLocal, 0)
        need = e._need("vmem", regs, [])
        if need > 1:
            e.nop(need - 1)
        e.branch("s_cbranch_scc1", ls)
        n0 = len(e.lines)
        ops = [e.bstore(d, vo, WS, so, off, "") for d, vo, so, off in lst]
        body = e.lines[n0:]
        assert len(body) == len(lst), body
        e.raw(f"  s_branch {le}")
        e.label(ls)
        for l in body:
            e.raw(l + " sc1")
        e.label(le)
        return ops

    def touch_gen(self, lst, cold=False):
        e = self.e
        if (cold and not self.opt.get("touchcold", 0)) or not self.opt.get("touch", 0):
            return
        for vo, sb, add, off in lst:
            e.S("s_add_u32", sE, sb, add); yield
            e.touch(vDum, vo, WS, sE, off, cls=(750, 80, 30)); yield

    def local_gen(self):
        e = self.e
        e.S("s_lshl_b32", s(6), sR, 8); yield
        e.S("s_add_u32", s(6), s(6), FLG_X); yield
        e.bload(TMP[39], vFl, WS, s(6), 0, "sc1"); yield
        for _ in range(40):
            yield "idle"
        e.V("v_cmp_ne_u32", VCC, sX1, TMP[39]); yield
        e.S("s_cmp_eq_u64", VCC, 0)
        e.S("s_cselect_b32", sLocal, 1, 0); yield

    def poll(self, kind, val):
        e = self.e
        skip = e.newlabel("nopoll")
        loop = e.newlabel("poll")
        e.S("s_cmp_lg_u32", sWave, 0)
        e.branch("s_cbranch_scc1", skip)
        e.cond_begin()
        t = TMP[38]
        e.S("s_mov_b32", sCnt, 0)
        e.S("s_mov_b64", sOk, 0)
        e.S("s_add_u32", sB, sBase, val)
        va, vb, sa, sb = (vFl, vFl, sFRL, sFRG) if kind != "col" else (vFl, vFl, sFC, sFC)
        if kind == "both":
            va, vb, sa, sb = TMP[36], TMP[37], 0, 0
            e.V("v_cmp_gt_u32", VCC, 2, vG)
            e.V("v_mov_b32", va, sFC)
            e.V("v_mov_b32", vb, sFRL)
            e.V("v_cndmask_b32", va, vb, va, VCC)
            e.V("v_add_u32", va, va, vFl)
            e.V("v_mov_b32", vb, FLG_RG - FLG_RL)
            e.V("v_cndmask_b32", vb, vb, 0, VCC)
            e.V("v_add_u32", vb, va, vb)
        if kind == "row":
            e.S("s_cmp_eq_u32", sLocal, 0)
            e.S("s_cselect_b32", sD, 3, -1)
        else:
            e.S("s_mov_b32", sD, 3)
        e.label(loop)

        def chk():
            e.misc("s_waitcnt vmcnt(0)")
            e.misc(f"v_subrev_u32 {t}, {sB}, {t}")
            e.misc(f"v_cmp_ge_u32 vcc, 1, {t}")
            e.misc(f"s_or_b64 {sOk}, {sOk}, vcc")
            e.misc(f"s_cmp_eq_u64 {sOk}, -1")
            e.misc(f"s_cbranch_scc1 {skip}")
        e.misc(f"buffer_load_dword {t}, {va}, {WS}, {sa} offen sc1")
        e.misc("s_add_u32 %s, %s, 1" % (sCnt, sCnt))
        chk()
        if kind != "row":
            e.misc("s_sleep 3")
        lnext = e.newlabel("pollnext")
        e.misc(f"s_and_b32 {sA}, {sCnt}, {sD}")
        e.misc(f"s_cbranch_scc1 {lnext}")
        e.misc(f"buffer_load_dword {t}, {vb}, {WS}, {sb} offen sc1")
        chk()
        e.label(lnext)
        e.misc(f"s_cmp_lt_u32 {sCnt}, 0x80000")
        e.misc(f"s_cbranch_scc1 {loop}")
        e.cond_end()
        e.label(skip)

    def flag(self, kind, val, t0=TMP[37], t1=TMP[38]):
        e = self.e
        lst = [(1, sFRG, "sc1", sC), (2, sFRL, "", sC)] if kind != "col" else []
        if kind != "row":
            lst.append((3, sFC, "sc1", sR))
        for w, sb, m, sidx in lst:
            skip = e.newlabel("noflag")
            if w == 1 and self.opt.get("skipg", 1):
                e.S("s_lshl_b32", sA, sLocal, 2)
                e.S("s_add_u32", sA, sA, sWave)
                e.S("s_cmp_lg_u32", sA, w)
            else:
                e.S("s_cmp_lg_u32", sWave, w)
            e.branch("s_cbranch_scc1", skip)
            e.cond_begin()
            e.S("s_lshl_b32", sA, sidx, 2)
            e.V("v_mov_b32", t0, sA)
            e.S("s_add_u32", sA, sBase, val)
            e.V("v_mov_b32", t1, sA)
            e.S("s_mov_b64", EXEC, 1)
            e.bstore(t1, t0, WS, sb, 0, m)
            e.S("s_mov_b64", EXEC, -1)
            e.cond_end()
            e.label(skip)

    def handoff(self, val, ops, shadow=None, touch=()):
        e = self.e
        t_st = e.T
        hk = (val - 2) % 4
        pick = lambda name, d: self.opt[name + "s"][hk] if name + "s" in self.opt else self.opt.get(name, d)
        self.deadline = lambda: t_st + pick("topup", 2600)
        self.own_end = 0
        while self.dma_ok():
            next(self.dmaf)
        while self.stage_step():
            pass
        self.finish_stage()
        self.restore(self.opt.get("rest1", 2))
        e.wait_all_lg()
        self.ring_barrier(self.cons + FI + self.opt.get("ahead", 16), ops)
        self.hold = None
        self.flag("row", val)
        self.stamp("flag")
        t_flag = e.T
        if self.opt.get("post_touch", 0):
            for k, (vo, sb, add, off) in enumerate(touch):
                sr = sE if k % 2 else sD
                e.S("s_add_u32", sr, sb, add)
                e.touch(vDum, vo, WS, sr, off, "sc1", cls=(750, 66, 30))
        self.deadline = lambda: t_flag + pick("topup2", 1800)
        while self.dma_ok():
            next(self.dmaf)
        while self.stage_step():
            pass
        self.finish_stage()
        self.warn.append(f"staged {len(self.staged)}")
        self.stage_plan = []
        self.prime()
        self.restore(self.opt.get("rest2", 8) if hk == 3 else 99)
        self.restg = self.restore_gen(99)
        if shadow:
            shadow()
        self.poll("row", val)
        e.T = max(e.T, t_flag + 1000)
        e.barrier()
        self.stamp("go")

    def phaseA(self, p):
        e = self.e
        opt = self.opt
        xv = 2 * p
        acc = lambda T, u: ACC[(T * 2 + u) * 4:(T * 2 + u) * 4 + 4]
        xf = lambda ks, u: a((ks * 2 + u) * 4, 4) if ks < 20 else XE[u]
        if p == 0:
            e.S("s_mov_b32", sSel[0], "0x00003f80")
            e.S("s_mov_b32", sSel[1], "0x3f800000")
            e.S("s_mov_b32", sOdd[0], "0xaaaaaaaa")
            e.S("s_mov_b32", sOdd[1], "0xaaaaaaaa")
            e.S("s_getpc_b64", s(96, 2))
            e.label("main_pc2")
            e.S("s_sub_u32", s(96), s(96), "main_pc2-" + self.kname)
            e.S("s_subb_u32", s(97), s(97), 0)
            for _ in range(opt.get("first_groups", 6 if self.al0 else 3)):
                for _ in self.dma_group():
                    pass
        if p == 0 and self.al0:
            al = None
            for _ in self.stats_gen(True):
                pass
            fl0 = [iter(())]
        else:
            al = self.ALoad(self, vAx, (sXr, XB[xv]), 20)
            al.upto(opt.get("adist", 4) - 1)
            self.stats_loads(xv)
            fl0 = [self.delay(opt.get("stdelay", 24), self.stats_gen(True))]
        sc_keep = self.last_scratch
        if p:
            fl0.append(self.restg)
        if p == 0:
            if opt.get("r2st", 2) == 0:
                self.r2_stores()
                self.late_loads()
            e.wait_all_lg()
            if opt.get("r2st", 2) == 2:
                self.ring_barrier(FI + 8, self.ops2)
                self.flag("col", 2)
                fl0.append(self.at_block(opt.get("w2at", 60), self.w2_gen()))
            else:
                self.ring_barrier(FI + 8)
            self.prime()
            self.stamp("start")
            if opt.get("keep", 12):
                self.capg = self.capture_gen(opt.get("keep0", 3), opt.get("keep", 12))
                next(self.capg)
                fl0.append(self.capg)
        st1 = {}

        def hook1(t):
            if t >= opt.get("w2flag_at", 30) and not st1.get("done"):
                st1["done"] = t
                return self.ops2, (lambda: self.flag("col", 2))
            return [], None

        def add1(t):
            if st1.get("done") and t >= opt.get("w2chk_at", 70) and not st1.get("chk"):
                st1["chk"] = True
                return self.w2_gen()
        i0 = self.seqstart[("A1", p)]
        fb = 102
        sst, sad = self.scratch(28, self.seq[i0 + fb][0])
        self.last_scratch = sc_keep
        self.hold = sst

        C2T = ACC[40:48]

        def pre_gen(first):
            while first.gi_frame is not None:
                yield "idle"
            e.S("s_mul_i32", s(7), sWave, 7168); yield
            e.S("s_add_u32", s(7), s(7), sad); yield
            e.V("v_add_u32", TMP[24], s(7), vL16); yield
            e.V("v_add_u32", TMP[25], sad, vKvSrc); yield
            e.S("s_mul_i32", s(7), sR, KVSZ); yield
            e.S("s_add_u32", s(7), s(7), sKv); yield
            e.S("s_add_u32", s(7), s(7), KVB[p]); yield
            for _ in range(8):
                yield "idle"
            for j in range(8):
                e.V("v_mul_f32", C2T[j], lit(LOG2E), RT[j]); yield
        fl0.append(pre_gen(fl0[0]))

        def must_gen():
            yield from fl0[0]
            yield from fl0[-1]
            while self.capg and self.cap_next < sst + 28:
                next(self.capg)
                yield

        def mf(t, W, u):
            ks, T = divmod(t, 5)
            e.mfma(acc(T, u), xf(ks, u), W, acc(T, u) if ks else 0)
        self.run_pass(105, mf, 5, xf, fl0, must=must_gen(), chunk=(8 if p == 0 else 24), stop_reads=self.seqstart[("A4", p)], aload=al,
                      force_bar=fb, tail=6000, mix=opt.get("mixA", 0) if p else 0,
                      late=(60, self.touch_gen([(vAx[0], sOo, OB[p], 0), (vAx[1], sOo, OB[p], 0), (vOh, sOoh, OB[p], 0), (vOh, sOoh, OB[p] + 20 * KB, 0)], p == 0)), hooks={"bar": hook1, "add": add1} if (p == 0 and opt.get("r2st", 2) == 0) else None)
        if p == 0 and opt.get("r2st", 2) == 1:
            self.dma_all()
            self.r2_stores()
            self.late_loads()
        assert sst + 28 <= self.freed and sst + 28 <= self.cap_hold, (sst, self.cap_hold)
        self.stamp("A1")
        self.bg_on(5000)
        KF = [TMP[8:12], TMP[12:16], TMP[16:20]]
        VF = {3: TMP[20:24], 4: ACC[56:60], 2: ACC[60:64]}
        tt = [ACC[48:52], ACC[52:56]]
        TA0, TA1 = TMP[24], TMP[25]
        n = 0
        for T in range(3):
            for u in range(2):
                for h in range(2):
                    t = tt[n % 2]
                    n += 1
                    self.phi_pair(acc(T, u)[2 * h:2 * h + 2], C2T[4 * u + 2 * h:4 * u + 2 * h + 2], False, t)
                    e.V("v_cvt_pk_bf16_f32", KF[T][2 * u + h], t[0], t[1])
        for T in (3, 4, 2):
            for u in range(2):
                for h in range(2):
                    x = acc(T, u)[2 * h:2 * h + 2]
                    e.V("v_pk_mul_f32", x, x, RT[4 * u + 2 * h:4 * u + 2 * h + 2])
            for u in range(2):
                for h in range(2):
                    x = acc(T, u)[2 * h:2 * h + 2]
                    e.V("v_cvt_pk_bf16_f32", VF[T][2 * u + h], x[0], x[1])
        for j in range(4):
            e.V("v_cndmask_b32", VF[2][j], VF[2][j], vOne, sMaskV)
        PR = [ACC[4 * i:4 * i + 4] for i in range(7)]
        prods = [(0, 3), (0, 2), (1, 4), (1, 2), (2, 3), (2, 4), (2, 2)]
        for i, (kt, vt) in enumerate(prods):
            e.mfma(PR[i], KF[kt], VF[vt], 0)
        for i in range(7):
            e.ds_write(TA0, PR[i], i * 1024)
        e.wait_all_lg()
        e.barrier()
        RD = [ACC[4 * w:4 * w + 4] for w in range(4)]
        for w in range(4):
            e.ds_read(RD[w], TA1, w * 7168)
        for h in range(2):
            e.V("v_pk_add_f32", RD[0][2 * h:2 * h + 2], RD[0][2 * h:2 * h + 2], RD[1][2 * h:2 * h + 2])
            e.V("v_pk_add_f32", RD[2][2 * h:2 * h + 2], RD[2][2 * h:2 * h + 2], RD[3][2 * h:2 * h + 2])
        for h in range(2):
            e.V("v_pk_add_f32", RD[0][2 * h:2 * h + 2], RD[0][2 * h:2 * h + 2], RD[2][2 * h:2 * h + 2])
        e.V("v_cvt_pk_bf16_f32", RD[1][0], RD[0][0], RD[0][1])
        e.V("v_cvt_pk_bf16_f32", RD[1][1], RD[0][2], RD[0][3])
        kvst = e.bstore(RD[1][0:2], vT16, WS, s(7), 0, "sc1")
        self.bg_off()
        self.stamp("kvpub")
        PL = [ACC[4 * i:4 * i + 4] for i in range(10)]

        st2 = {}

        def barhook(t):
            def rel():
                self.hold = None

            def relflag():
                self.hold = None
                self.flag("col", 2)
            if p == 0 and opt.get("r2st", 2) == 1 and not st2.get("done") and t >= opt.get("w2flag2_at", 12):
                st2["done"] = True
                return self.ops2, relflag
            return [], rel

        def kvloads():
            for i in range(8):
                if i % 2 == 0:
                    e.S("s_add_u32", sB, sKv, KVB[p] + i * KVSZ); yield
                e.bload(PL[i], vT16L, WS, sB, (i % 2) * KVSZ, "sc1", cls=(opt.get('kvlat', 800), 80, opt.get('kvsvc', 130))); yield

        def kvsum():
            SM = PL[8:10]
            for i in range(8):
                for d in range(4):
                    for h in range(2):
                        x = SM[d >> 1][2 * (d & 1) + h]
                        if i == 0:
                            e.V("v_dot2_f32_bf16", x, PL[i][d], sSel[h], 0)
                        else:
                            e.V("v_dot2c_f32_bf16", x, sSel[h], PL[i][d])
            for d in range(8):
                x = SM[d >> 2][d & 3]
                e.V("v_add_f32_dpp", x, x, x, mods="quad_perm:[1,0,3,2] row_mask:0xf bank_mask:0xf")
            for d in range(4):
                e.V("v_cndmask_b32", PL[0][d], SM[0][d], SM[1][d], sOdd)
            e.V("v_cmp_u_f32", VCC, PL[0][0], PL[0][1])
            e.V("v_cmp_u_f32", sNan, PL[0][2], PL[0][3])
            e.S("s_or_b64", VCC, VCC, sNan)

        def mfq(t, W, u):
            ks, T = divmod(t, 3)
            e.mfma(acc(5 + T, u), W, xf(ks, u), acc(5 + T, u) if ks else 0)
        self.lastbar = self.rd - 8
        fl = []
        if p == 0:
            fl = [self.local_gen()] + ([self.capg] if self.capg else [])
        self.run_pass(63, mfq, 3, xf, fl, stop_reads=self.seqstart[("A4", p)], hooks={"bar": barhook},
                      late=(opt.get("kvload_at", 40), kvloads()), see_all=True, force_bar=61, tail=1600 + self.opt.get("slack", 2400))
        if self.capg:
            n_ = 0
            for _ in self.capg:
                n_ += 1
                assert n_ < 1000
            self.capg = None
        self.stamp("A2")
        if p == 0 and opt.get("r2st", 2) == 1:
            assert st2.get("done")
            w2 = self.w2_gen()
            while next(w2) != "idle":
                pass
        if opt.get("qbg", 1):
            self.bg_on(1600 + self.opt.get("slack", 2400))
        PQ0 = [TMP[0:4], TMP[4:8]]
        PQ1 = [TMP[8:12], TMP[12:16]]
        tq = [TMP[16:20], TMP[20:24]]
        for u in range(2):
            c2 = vC2 if u == 0 else vC2b
            for h in range(2):
                self.phi_pair(acc(5, u)[2 * h:2 * h + 2], c2, True, tq[0])
                self.phi_pair(acc(6, u)[2 * h:2 * h + 2], c2, True, tq[1])
                e.V("v_cvt_pk_bf16_f32", PQ0[u][2 * h], tq[0][0], tq[1][0])
                e.V("v_cvt_pk_bf16_f32", PQ0[u][2 * h + 1], tq[0][1], tq[1][1])
            for h in range(2):
                self.phi_pair(acc(7, u)[2 * h:2 * h + 2], c2, True, tq[h])
                e.V("v_cvt_pk_bf16_f32", PQ1[u][h], tq[h][0], tq[h][1])
            e.V("v_mov_b32", PQ1[u][2], 0)
            e.V("v_mov_b32", PQ1[u][3], 0)
        self.bg_off()
        self.stamp("qepi")
        kvsum()
        lok, lre = e.newlabel("kvok"), e.newlabel("kvretry")
        e.branch("s_cbranch_scc0", lok)
        e.cond_begin()
        e.S("s_mov_b32", sCnt, 0)
        e.label(lre)
        e.misc("s_sleep 4")
        for _ in kvloads():
            pass
        kvsum()
        e.branch("s_cbranch_scc0", lok)
        e.S("s_add_u32", sCnt, sCnt, 1)
        e.S("s_cmp_lt_u32", sCnt, 0x10000)
        e.branch("s_cbranch_scc1", lre)
        e.cond_end()
        e.label(lok)
        self.stamp("kvgo")
        if p == 0 and opt.get("r2st", 2) == 1:
            for _ in w2:
                pass

        self.bg_on(900 + self.opt.get("slack", 2400))
        e.V("v_cvt_pk_bf16_f32", TMP[16], PL[0][0], PL[0][1])
        e.V("v_cvt_pk_bf16_f32", TMP[17], PL[0][2], PL[0][3])
        e.ds_write(vKvDst, TMP[16:18])
        e.wait_all_lg()
        e.barrier()
        FR = [ACC[40 + 4 * i:44 + 4 * i] for i in range(6)] + [TMP[16 + 4 * i:20 + 4 * i] for i in range(4)]
        for T in range(3):
            for ks in range(2):
                e.ds_read(FR[T * 2 + ks], vL16, IMG + (T * 2 + ks) * KB)
        for ks in range(2):
            e.ds_read(FR[6 + ks], vZ01, ks * 64)
            e.ds_read(FR[8 + ks], vZ2, ks * 64)
        oa = lambda T, u: ACC[(T * 2 + u) * 4:(T * 2 + u) * 4 + 4]
        ops = []

        def norm(u, packed):
            den = (oa(3, u)[0], oa(3, u)[2], oa(4, u)[0])
            for x in den:
                e.V("v_add_f32", x, vEps[0], x); yield
            for x in den:
                e.V("v_rcp_f32", x, x); yield
            for T in range(3):
                for h in range(2):
                    x = oa(T, u)[2 * h:2 * h + 2]
                    dn = oa(3, u)[2 * h:2 * h + 2] if T < 2 else oa(4, u)[0:2]
                    if packed:
                        e.V("v_pk_mul_f32", x, x, dn, mods="op_sel_hi:[1,0]"); yield
                    else:
                        e.V("v_mul_f32", x[0], x[0], dn[0]); yield
                        e.V("v_mul_f32", x[1], x[1], dn[0]); yield
            o4 = TMP[8 * u:8 * u + 4] if False else RT[4 * u:4 * u + 4]
            o2 = XE[u][0:2]
            for j in range(4):
                e.V("v_cvt_pk_bf16_f32", o4[j], oa(0, u)[j], oa(1, u)[j]); yield
            for h in range(2):
                e.V("v_cvt_pk_bf16_f32", o2[h], oa(2, u)[2 * h], oa(2, u)[2 * h + 1]); yield
            ops.extend(self.gstore([(o4, vAx[u], sA, 0), (o2, vOh, sB if u == 0 else sD, 0)], p == 0 or opt.get("osafe")))
            yield
        bg, e.bg = e.bg, None
        order = [(T, k) for k in range(2) for T in (3, 4, 0, 1, 2)]
        for T, k in order:
            e.mfma(oa(T, 0), FR[2 * T + k], (PQ0, PQ1)[k][0], oa(T, 0) if k else 0)
        e.S("s_add_u32", sA, sOo, OB[p])
        e.S("s_add_u32", sB, sOoh, OB[p])
        g0 = norm(0, False)
        for n_, (T, k) in enumerate(order):
            e.mfma(oa(T, 1), FR[2 * T + k], (PQ0, PQ1)[k][1], oa(T, 1) if k else 0)
            if n_ == 0:
                e.S("s_add_u32", sD, sOoh, OB[p] + 20 * KB)
            elif n_ < 9:
                next(g0)
                if n_ not in (2, 3):
                    next(g0)
        e.bg = bg
        for _ in g0:
            pass
        for _ in norm(1, True):
            pass
        self.bg_off()
        self.stamp("A3")
        def shadow():
            e.S("s_mul_i32", sB, sCG, 160)
            e.V("v_lshl_add_u32", TMP[2], vG, 4, sB)
            e.V("v_lshl_add_u32", TMP[3], vG, 3, sB)
            e.bload(ACC[40:44], TMP[2], SB2, 0, 0, cls=(800, 20, 0))
            e.bload(ACC[44:48], TMP[2], SB2, 0, 64, cls=(800, 20, 0))
            e.bload(ACC[48:50], TMP[3], SB2, 0, 128, cls=(800, 20, 0))
            if p == 0:
                self.unpack(RES, RES[10:20])
        self.handoff(4 * p + 2, ops, shadow, [(vAx[0], sOo, OB[p], 0), (vAx[1], sOo, OB[p], 0), (vOh, sOoh, OB[p], 0), (vOh, sOoh, OB[p] + 20 * KB, 0)])

    def phase64(self, p, kind):
        e = self.e
        opt = self.opt
        nks = 10 if kind == "O" else 27
        name = "A4" if kind == "O" else "B2"
        acc = lambda T, u: ACC[(u * 5 + T) * 4:(u * 5 + T) * 4 + 4]
        if kind == "O":
            al = self.ALoad(self, vAo, (sXr, OB[p]), nks)
        else:
            al = self.ALoad(self, vAh, (sHr, HB[p]), nks)
        al.upto(opt.get("adist", 4) - 1)
        xf = lambda ks, u: a(((ks % 20) * 2 + u) * 4, 4)
        if kind == "C":
            e.ds_read(TMP[2], vRF)
        i0 = self.seqstart[(name, p)]
        fb = 5 * nks - 3
        sst, sad = self.scratch(20, self.seq[i0 + fb][0])
        self.hold = sst
        stop = i0 + 5 * nks

        def mf(t, W, u):
            ks, T = divmod(t, 5)
            u = 1 - u
            c0 = RES[4 * T:4 * T + 4] if (kind == "O" and u == 0) else 0
            e.mfma(acc(T, u), W, xf(ks, u), acc(T, u) if ks else c0)

        def addr_gen():
            e.V("v_add_u32", TMP[0], sad, vXch); yield
            e.S("s_xor_b32", sA, sWave, 1); yield
            e.S("s_mul_i32", sA, sA, 5120); yield
            e.S("s_add_u32", sA, sA, sad); yield
            e.V("v_add_u32", TMP[1], sA, vL16); yield
            if kind == "C":
                e.V("v_mul_f32", TMP[2], TMP[2], TMP[2]); yield
            if not last:
                e.S("s_add_u32", sA, sOx, XB[xv]); yield
                e.S("s_add_u32", sB, sOxh, XB[xv]); yield
                e.S("s_add_u32", sD, sOst, STB[xv]); yield
        last = kind == "C" and p == 1
        xv = 2 * p + (1 if kind == "O" else 2)
        tg = None if last else (0, self.touch_gen([(vXs, sOx, XB[xv], 0), (vXs, sOx, XB[xv], 1024), (vXh, sOxh, XB[xv], 0), (vStW, sOst, STB[xv], 0)]))
        fl = [self.delay(20, addr_gen())]
        self.run_pass(5 * nks, mf, 5, xf, fl, late=tg, force_bar=fb, chunk=(opt.get("chunkO", 12) if kind == "O" else opt.get("chunkC", 12)), stop_reads=stop, aload=al,
                      mix=opt.get("mixO", 0) if kind == "O" else 0, tail=900 + self.opt.get("slack", 2400))
        self.stamp(name)
        self.bg_on(900 + self.opt.get("slack", 2400))
        assert sst + 20 <= self.freed
        for T in range(5):
            e.ds_write(TMP[0], acc(T, 1), T * KB)
        e.wait_all_lg()
        e.barrier()
        PT = TMP[4:24]
        for T in range(5):
            e.ds_read(PT[4 * T:4 * T + 4], TMP[1], T * KB)
        own = ACC[0:20]
        for h in range(10):
            x = own[2 * h:2 * h + 2]
            e.V("v_pk_add_f32", x, x, PT[2 * h:2 * h + 2])
            if kind == "C":
                e.V("v_pk_fma_f32", x, x, TMP[2:4], RES[2 * h:2 * h + 2], mods="op_sel_hi:[1,0,1]")
        PK = TMP[24:34]
        for a_ in range(2):
            for j in range(4):
                e.V("v_cvt_pk_bf16_f32", PK[4 * a_ + j], own[8 * a_ + j], own[8 * a_ + 4 + j])
        for h in range(2):
            e.V("v_cvt_pk_bf16_f32", PK[8 + h], own[16 + 2 * h], own[16 + 2 * h + 1])
        self.bg_off()
        if last:
            om = self.opt.get("outmod", "")
            e.bstore(PK[0:4], vOut, OUT, 0, 0, om)
            e.bstore(PK[4:8], vOut, OUT, 0, 64, om)
            e.bstore(PK[8:10], vOut4, OUT, 0, 128, om)
            self.stamp("end")
            return
        xv = 2 * p + (1 if kind == "O" else 2)
        ops = []
        ops += self.gstore([(PK[0:4], vXs, sA, 0), (PK[4:8], vXs, sA, 1024), (PK[8:10], vXh, sB, 0)])
        sm, sq, t0 = TMP[36], TMP[37], TMP[38]
        e.V("v_mov_b32", sm, 0)
        e.V("v_mov_b32", sq, 0)
        for j in range(10):
            e.V("v_dot2c_f32_bf16", sm, PK[j], vOne)
            e.V("v_dot2c_f32_bf16", sq, PK[j], PK[j])
        e.V("v_permlane32_swap_b32", sm, sq)
        e.V("v_add_f32", sm, sm, sq)
        e.V("v_mov_b32", t0, sm)
        e.V("v_permlane16_swap_b32", sm, t0)
        e.V("v_add_f32", sm, sm, t0)
        ops += self.gstore([(sm, vStW, sD, 0)])
        self.stamp(name + "epi")

        def shadow():
            self.unpack(RES, PK)
            if kind == "O":
                self.unpack(ACC[20:40], ACC[40:50])
                for h in range(10):
                    x = RES[2 * h:2 * h + 2]
                    e.V("v_pk_add_f32", x, x, ACC[20 + 2 * h:22 + 2 * h])
        self.handoff(4 * p + (3 if kind == "O" else 5), ops, shadow,
                     [(vStW, sOst, STB[xv], 0), (vXs, sOx, XB[xv], 0), (vXs, sOx, XB[xv], 1024), (vXh, sOxh, XB[xv], 0)])

    def phaseB1(self, p):
        e = self.e
        opt = self.opt
        xv = 2 * p + 1
        acc = lambda T, u: ACC[(T * 2 + u) * 4:(T * 2 + u) * 4 + 4]
        xf = lambda ks, u: a((ks * 2 + u) * 4, 4) if ks < 20 else XE[u]
        al = self.ALoad(self, vAx, (sXr, XB[xv]), 20)
        al.upto(opt.get("adist", 4) - 1)
        self.stats_loads(xv)
        stop = self.seqstart[("B2", p)]
        g0 = self.seq[stop][0] // 8 + RB // 8
        self.stage_plan = list(range(g0, g0 + (opt.get("nstage", 0) if p else 0)))

        def mf(t, W, u):
            ks, T = divmod(t, B1N)
            e.mfma(acc(T, u), W, xf(ks, u), acc(T, u) if ks else 0)
        tl = [(vHs, sOh, HB[p] + u * 54 * KB, a_ * KB) for a_ in range(3) for u in range(2)] + [(vHh, sOhh, HB[p] + u * 54 * KB, 0) for u in range(2)]
        sg = self.delay(opt.get("stdelay", 24), self.stats_gen(False))
        flb = [sg]
        if p == 0 and opt.get("keepb", 4):
            gb = self.capture_gen(self.segs[2][1] // 8 + opt.get("keepb0", 8), opt.get("keepb", 4), 12)
            next(gb)
            flb.append(gb)
        self.run_pass(21 * B1N, mf, B1N, xf, flb, late=(0, self.touch_gen(tl, p == 0)), stop_reads=stop, aload=al, must=sg, mix=opt.get("mixB", 0), tail=700 * (7 - B1N) + 300 + self.opt.get("slack", 2400))
        self.stamp("B1a")
        ops = []

        def epi(pairs, single):
            n = 0
            for u in range(2):
                sb = sD if u == 0 else sE
                e.S("s_add_u32", sb, sOh, HB[p] + u * 54 * KB); yield
                for a_ in pairs:
                    o = TMP[16 + 4 * (n % 4):20 + 4 * (n % 4)]
                    n += 1
                    for j in range(4):
                        x, y = acc(2 * a_, u)[j], acc(2 * a_ + 1, u)[j]
                        e.V("v_mul_f32_e64", x, x, f"|{x}|"); yield
                        e.V("v_mul_f32_e64", y, y, f"|{y}|"); yield
                        e.V("v_cvt_pk_bf16_f32", o[j], x, y); yield
                        e.V("v_pk_max_i16", o[j], o[j], 0); yield
                    ops.extend(self.gstore([(o, vHs, sb, a_ * KB)], p == 0 or opt.get("hsafe", 2) == 1 or (opt.get("hsafe", 2) == 2 and not single))); yield
            if single:
                for u in range(2):
                    o = TMP[32 + 2 * u:34 + 2 * u]
                    for j in range(4):
                        x = acc(6, u)[j]
                        e.V("v_mul_f32_e64", x, x, f"|{x}|"); yield
                    for h in range(2):
                        e.V("v_cvt_pk_bf16_f32", o[h], acc(6, u)[2 * h], acc(6, u)[2 * h + 1]); yield
                        e.V("v_pk_max_i16", o[h], o[h], 0); yield
                e.S("s_add_u32", sA, sOhh, HB[p])
                e.S("s_add_u32", sB, sOhh, HB[p] + 54 * KB)
                ops.extend(self.gstore([(TMP[32:34], vHh, sA, 0), (TMP[34:36], vHh, sB, 0)], p == 0 or opt.get("hsafe", 2) == 1))
                yield

        def mf2(t, W, u):
            ks, T = divmod(t, 7 - B1N)
            e.mfma(acc(B1N + T, u), W, xf(ks, u), acc(B1N + T, u) if ks else 0)
        self.run_pass(21 * (7 - B1N), mf2, 7 - B1N, xf, [epi(list(range(B1N // 2)), False)], stop_reads=stop, force_bar=21 * (7 - B1N) - 2, over=opt.get("b1over", 0), chunk=opt.get("chunkB", 24), tail=300 + self.opt.get("slack", 2400))
        self.stamp("B1b")
        for _ in epi(list(range(B1N // 2, 3)), True):
            pass
        self.stamp("B1epi")
        self.handoff(4 * p + 4, ops, None, tl)

    def gen(self):
        e = self.e
        e.reset_state()
        self.cInvD = s(63)
        self.dmaf = self.dma_filler()
        self.prologue()
        if self.opt.get("stamps"):
            e.memtime(sTm, True)
            e.V("v_writelane_b32", v(53), sTm[0], 62)
        self.startup()
        stop = self.opt.get("stop", 99)
        n = 0
        for p in range(2):
            for f in (lambda: self.phaseA(p), lambda: self.phase64(p, "O"), lambda: self.phaseB1(p), lambda: self.phase64(p, "C")):
                if n < stop:
                    f()
                n += 1
        if self.opt.get("stamps"):
            e.wait_all_vm()
            e.memtime(sTm, True)
            e.V("v_writelane_b32", v(53), sTm[0], 63)
            e.S("s_lshl_b32", sA, s(2), 2)
            e.S("s_add_u32", sA, sA, sWave)
            e.S("s_lshl_b32", sA, sA, 8)
            e.S("s_add_u32", sA, sA, STAMP)
            e.V("v_lshlrev_b32", TMP[1], 2, vLane)
            e.bstore(v(53), TMP[1], WS, sA)
        if self.opt.get("dbgst") is not None:
            skip = e.newlabel("nodbg")
            e.S("s_lshl_b32", sA, s(2), 2)
            e.S("s_add_u32", sA, sA, sWave)
            e.S("s_cmp_lg_u32", sA, 4 * self.opt.get("dbgwg", 77))
            e.branch("s_cbranch_scc1", skip)
            e.sload(s(84, 2), s(0, 2), 72)
            e.V("v_readlane_b32", sB, v(53), 0)
            e.V("v_subrev_u32", TMP[0], sB, v(53))
            e.V("v_subrev_u32", TMP[1], self.opt["dbgst"], vLane)
            e.V("v_cmp_gt_u32", VCC, 64 - self.opt["dbgst"], TMP[1])
            e.V("v_lshlrev_b32", TMP[1], 2, TMP[1])
            e.wait_all_lg()
            e.S("s_and_saveexec_b64", s(86, 2), VCC)
            e.misc(f"global_store_dword {TMP[1]}, {TMP[0]}, s[84:85]")
            e.S("s_mov_b64", EXEC, -1)
            e.label(skip)
        if self.opt.get("spin"):
            e.wait_all_vm()
            e.V("v_readfirstlane_b32", s(86), v(53))
            e.label("spin_loop")
            e.misc("s_memrealtime s[88:89]")
            e.misc("s_waitcnt lgkmcnt(0)")
            e.misc("s_sub_u32 s88, s88, s86")
            e.misc(f"s_cmp_lt_u32 s88, {self.opt['spin']}")
            e.misc("s_cbranch_scc1 spin_loop")
        e.S("s_add_u32", sA, s(2), sWave)
        e.S("s_cmp_lg_u32", sA, 0)
        e.branch("s_cbranch_scc1", "main_end")
        e.S("s_add_u32", sA, sBase, 16)
        e.V("v_mov_b32", TMP[0], sA)
        e.V("v_mov_b32", TMP[1], EPOCH)
        e.S("s_mov_b64", EXEC, 1)
        e.bstore(TMP[0], TMP[1], WS, 0)
        e.label("main_end")
        e.misc("s_endpgm")
```

```python
from asmgen import *
from layout import *
from gen_prep import mk_srd, allreduce_g
import math

BIG = 0x40000000
LOG2E = 1.4426950408889634
LN2 = 0.6931471805599453

IMG = 0
ZT = 6144
RST = 6400
DUMMY = 6912
RING = 8192
RB = 152
LDS_BYTES = RING + RB * KB
FI = 8

WS, OUT, XIN, SB2 = s(8, 4), s(12, 4), s(16, 4), s(20, 4)
sWave, sR, sC, sCG, sRH, sKH, sW2048 = [s(24 + i) for i in range(7)]
sSeg = {"A": s(31), "O": s(32), "B": s(33), "C": s(34)}
sXr, sHr, sSTr, sFRL, sFRG, sFC = [s(35 + i) for i in range(6)]
sA, sB, sD, sE, sDm, sLd = [s(41 + i) for i in range(6)]
sMaskV = s(48, 2)
sCnt = s(50)
sTT = s(51)
sTm = s(52, 2)
sOx, sOxh, sOst, sOo, sOoh, sOh, sOhh, sKv = [s(54 + i) for i in range(8)]
sLocal, sX1 = s(47), s(62)
sStg = s(3)
sSel = [s(84), s(85)]
sOdd = s(86, 2)
vT16L = v(37)
vStg = v(55)
sNan = s(90, 2)
sBase = s(92)
sOk = s(94, 2)
SR1, SR2 = s(84, 4), s(96, 4)
PP = s(64, 16)
pOut, pWs = s(80, 2), s(82, 2)
vDum = v(49)

vLane, vN, vG, vL16 = v(1), v(2), v(3), v(4)
vW = [v(5), v(6), v(7)]
vK = [v(8), v(9), v(10)]
vDma = v(11)
vAx = [v(12), v(13)]
vAo = [v(14), v(15)]
vAh = [v(16), v(17)]
vSt, vStW, vKvSrc, vKvDst, vT16, vZ01, vZ2, vRT, vRW, vRF, vOut, vOut4, vOne = [v(18 + i) for i in range(13)]
vOh, vXs, vXh, vHs, vHh, vFl, vPollR, vPollC, vXch = [v(31 + i) for i in range(9)]
XE = [v(40, 4), v(44, 4)]
vC2 = v(48, 2)
vC2b = v(50, 2)
vLn2 = v(52, 2)
vEps = v(54, 2)
RT = v(56, 8)
ACC = v(64, 64)
FIFO = v(128, 4 * FI)
RES = v(160, 20)
B2F = v(180, 20)
TMP = v(200, 56)


def keepreg(k, h):
    if k < 12:
        return a(160 + 8 * k + 4 * h, 4)
    t = 2 * (k - 12) + h
    return B2F[4 * t:4 * t + 4] if t < 5 else TMP[40 + 4 * (t - 5):44 + 4 * (t - 5)]


class Main:
    def __init__(self, e, opt):
        self.e = e
        self.opt = opt
        self.kname = opt["kname"]
        self.nstamp = 0
        self.segs = []
        pos = 0
        for p in range(2):
            for k, n in (("A", NA), ("O", NO), ("B", NB), ("C", NC)):
                self.segs.append((k, pos, n))
                pos += n
        self.total = pos
        self.ngroups = pos // 8
        self.issued = 0
        self.dmaop = {}
        self.freed = 0
        self.hold = None
        self.visible = 0
        self.seq = []
        self.seqstart = {}
        for p in range(2):
            b = self.segs[4 * p + 0][1]
            self.seqstart[("A1", p)] = len(self.seq)
            self.seq += [(b + i, "W") for i in range(105)]
            self.seqstart[("A2", p)] = len(self.seq)
            self.seq += [(b + 105 + i, "W") for i in range(63)]
            b = self.segs[4 * p + 1][1]
            self.seqstart[("A4", p)] = len(self.seq)
            self.seq += [(b + 2 * i, "K") for i in range(50)]
            b = self.segs[4 * p + 2][1]
            self.seqstart[("B1a", p)] = len(self.seq)
            self.seq += [(b + i, "W") for i in range(21 * B1N)]
            self.seqstart[("B1b", p)] = len(self.seq)
            self.seq += [(b + 21 * B1N + i, "W") for i in range(147 - 21 * B1N)]
            b = self.segs[4 * p + 3][1]
            self.seqstart[("B2", p)] = len(self.seq)
            self.seq += [(b + 2 * i, "K") for i in range(135)]
        self.rd = 0
        self.cons = 0
        self.lastbar = 0
        self.gate = NA // 8
        self.stage_plan = []
        self.staged = {}
        self.stage_mid = None
        self.cap_hold = 1 << 20
        self.deferred = []
        self.spares = []
        self.last_scratch = (0, 0)
        self.restg = None
        self.capg = None
        self.own_end_phase = 0
        self.cap_ops = []
        self.cap_next = 1 << 20
        self.warn = []
        self.model = []
        self.own_end = 0
        self.deadline = lambda: 1 << 30

    def stamp(self, name):
        self.model.append((name, self.e.T))
        if not self.opt.get("stamps"):
            return
        e = self.e
        e.wait_all_lg()
        e.memtime(sTm)
        e.V("v_writelane_b32", v(53), sTm[0], self.nstamp)
        self.opt.setdefault("stampnames", []).append(name)
        self.nstamp += 1
        assert self.nstamp <= 62

    def endpos(self, i):
        p, k = self.seq[i]
        return p + (2 if k == "K" else 1)

    def ldsaddr(self, pos):
        return RING + (pos % RB) * KB

    def can_issue(self):
        if self.issued >= min(self.ngroups, self.gate):
            return False
        lim = self.freed if self.hold is None else min(self.freed, self.hold)
        lim = min(lim, self.cap_hold)
        return 8 * (self.issued + 1) <= lim + RB

    def dma_group(self):
        e = self.e
        g = self.issued
        self.issued += 1
        pos = 8 * g
        if g in self.stage_plan:
            self.stage_plan = []
        if g in self.staged and self.opt.get("defer", 1) and 8 * g >= self.own_end_phase:
            self.deferred.append(g)
            self.dmaop[g] = None
            yield
            return
        if g in self.staged:
            self.finish_stage()
            k = self.staged[g]
            ad = self.ldsaddr(pos)
            e.V("v_add_u32", vStg, ad, vDma)
            yield
            e.ds_write(vStg, keepreg(k, 0), 0)
            yield
            self.dmaop[g] = e.ds_write(vStg, keepreg(k, 1), 1024)
            yield
            return
        for k, b, n in self.segs:
            if b <= pos < b + n:
                break
        e.S("s_add_u32", M0, sW2048, self.ldsaddr(pos))
        yield
        e.S("s_add_u32", sDm, sSeg[k], (pos - b) * KB)
        yield
        md = "nt" if k in self.opt.get("ntseg", "") else ""
        nvalid = min(8, {"A": 168, "O": 100, "B": 147, "C": 270}[k] - (pos - b)) if self.opt.get("skippad", 1) else 8
        for j in range(2):
            nw = (nvalid - j + 1) // 2
            if nw < 4:
                skip = e.newlabel("nopad")
                e.S("s_cmp_ge_u32", sWave, nw)
                e.branch("s_cbranch_scc1", skip)
                e.cond_begin()
            op = e.dma(vDma, WS, sDm, 1024 * j, md, cls=self.dcls(k))
            if nw < 4:
                e.cond_end()
                e.label(skip)
            if j:
                self.dmaop[g] = op
            yield

    def capture_gen(self, first, n, k0=0):
        e = self.e
        self.cap_hold = self.cap_next = 8 * first
        g1 = self.segs[4][1] // 8
        for k in range(k0, k0 + n):
            g = first + k - k0
            while self.visible < 8 * (g + 1):
                yield "idle"
            e.V("v_add_u32", vStg, self.ldsaddr(8 * g), vDma); yield
            e.ds_read(keepreg(k, 0), vStg, 0); yield
            self.cap_ops.append(e.ds_read(keepreg(k, 1), vStg, 1024))
            self.staged[g1 + g] = k
            self.cap_next = 8 * (g + 1) if k < k0 + n - 1 else 1 << 20
            yield

    def stage_group(self):
        e = self.e
        g = self.stage_plan.pop(0)
        k = len(self.staged) % 12
        self.staged[g] = k
        for sk, b, n in self.segs:
            if b <= 8 * g < b + n:
                break
        e.S("s_add_u32", sStg, sSeg[sk], (8 * g - b) * KB)
        yield
        e.bload(keepreg(k, 0), vDma, WS, sStg, 0, cls=self.dcls(sk))
        yield
        e.bload(keepreg(k, 1), vDma, WS, sStg, 1024, cls=self.dcls(sk))
        self.stage_mid = None
        yield

    def restore_gen(self, n):
        e = self.e
        while n > 0 and self.deferred:
            n -= 1
            g = self.deferred[0]
            k = self.staged[g]
            e.V("v_add_u32", vStg, self.ldsaddr(8 * g), vDma); yield
            old = 8 * g - RB
            clean = old + 8 <= self.last_scratch[0] or old >= self.last_scratch[1]
            if self.spares and self.opt.get("swap", 1) and clean and self.segof(8 * g) == "A":
                sp = self.spares.pop(0)
                e.ds_read(keepreg(sp, 0), vStg, 0); yield
                e.ds_read(keepreg(sp, 1), vStg, 1024); yield
                g2 = g - RB // 8 + self.segs[4][1] // 8
                assert self.segof(8 * g2) == "C"
                self.staged[g2] = sp
            e.ds_write(vStg, keepreg(k, 0), 0); yield
            self.dmaop[g] = e.ds_write(vStg, keepreg(k, 1), 1024)
            self.spares.append(k)
            self.deferred.pop(0)
            yield

    def restore(self, n):
        for _ in self.restore_gen(n):
            pass

    def finish_stage(self):
        while self.stage_mid:
            next(self.stage_mid)

    def stage_step(self):
        e = self.e
        if e.outstanding() >= self.opt.get("qmax", 13):
            return False
        if not self.stage_mid:
            if not self.stage_plan or self.can_issue() or self.mid_group():
                return False
            c = self.dcls("C")
            if e.predict(c) + c[2] > self.deadline():
                return False
            self.stage_mid = self.stage_group()
        next(self.stage_mid)
        return True

    def dcls(self, k):
        return (750, 80, self.opt.get("svcAB", 150)) if k in "AB" else (750, self.opt.get("svcOC", 92), 75)

    def dma_ok(self):
        e = self.e
        if self.mid_group():
            g = self.issued - 1
        elif self.can_issue():
            g = self.issued
        else:
            return False
        if g in self.staged:
            return True
        if e.outstanding() >= self.opt.get("qmax", 13):
            return False
        if self.mid_group() or 8 * g < self.own_end:
            return True
        c = self.dcls(self.segof(8 * g))
        return e.predict(c) + c[2] <= self.deadline()

    def dma_filler(self):
        while True:
            if self.can_issue():
                for _ in self.dma_group():
                    yield True
            else:
                yield False

    def flush_dma_partial(self):
        while self.issued > 0 and (self.issued - 1) not in self.dmaop:
            next(self.dmaf)

    def dma_all(self):
        self.flush_dma_partial()
        while self.can_issue():
            for _ in self.dma_group():
                pass

    def ring_barrier(self, need_idx, extra_ops=(), free_all=False):
        e = self.e
        need_idx = min(need_idx, len(self.seq))
        upto = self.endpos(need_idx - 1) if need_idx > 0 else 0
        g = (upto + 7) // 8
        self.flush_dma_partial()
        while self.issued < g:
            assert self.can_issue(), ("ring deadlock", self.issued, g, self.freed, self.hold)
            self.warn.append(f"forced dma group {self.issued} at seq {self.rd}")
            for _ in self.dma_group():
                pass
        ops = list(extra_ops)
        while self.deferred and self.deferred[0] < g:
            self.warn.append(f"forced restore {self.deferred[0]}")
            next(self.restg)
        for gg in range(self.visible // 8, g):
            assert gg not in self.deferred, gg
            ops.append(self.dmaop[gg])
        e.wait_ops(ops + self.cap_ops)
        self.cap_ops = []
        e.barrier()
        self.cap_hold = self.cap_next
        self.visible = max(self.visible, 8 * g)
        self.freed = self.seq[self.cons][0] if self.cons < len(self.seq) else self.total
        self.lastbar = self.rd

    def issue_read(self):
        e = self.e
        i = self.rd
        if i >= len(self.seq):
            return
        pos, k = self.seq[i]
        assert self.endpos(i) <= self.visible, ("read of invisible block", i, pos, self.visible)
        ad = self.ldsaddr(pos)
        base = (vW if k == "W" else vK)[ad >> 16]
        slot = i % FI
        e.ds_read(FIFO[4 * slot:4 * slot + 4], base, ad & 0xffff)
        self.rd += 1

    def prime(self):
        while self.rd < self.cons + FI and self.rd < len(self.seq) and self.endpos(self.rd) <= self.visible:
            self.issue_read()

    def run_pass(self, n, mf, ntile, xf, fillers=(), chunk=24, stop_reads=None, hooks=None,
                 aload=None, vrate=0.5, amix=(1, 0), over=0, force_bar=None, late=None, see_all=False, tail=2000, mix=0, must=None):
        e = self.e
        fillers = list(fillers)
        lim = stop_reads if stop_reads is not None else len(self.seq)
        st = {"next": 0, "k": 0, "t": 0}
        self.own_end = self.own_end_phase = self.endpos(lim - 1)
        self.deadline = lambda: e.T + (n - st["t"]) * 33 + tail

        i_first = self.cons

        def dma_need():
            g = self.issued - 1 if self.mid_group() else self.issued
            for i in range(self.cons, lim):
                if self.endpos(i) > 8 * g:
                    return i - i_first - FI - chunk
            return 1 << 20

        def one_vmem():
            na, nd = amix
            n0 = len(e.vm)
            if st.get("late"):
                if e.T < st["next"]:
                    return False
                try:
                    next(st["late"])
                except StopIteration:
                    st["late"] = None
                    return False
            else:
                na_ = (aload.n // 2) * ntile if (aload is not None and not aload.done) else 1 << 21
                nd_ = dma_need() if (self.mid_group() or self.can_issue()) else 1 << 22
                run = self.opt.get("run", 0)
                if run and na_ < 1 << 21 and nd_ < 1 << 20:
                    if st.get("cur") == "a" and na_ - run <= nd_:
                        nd_ = max(nd_, na_)
                    elif st.get("cur") == "d" and nd_ - run < na_:
                        na_ = max(na_, nd_ + 1)
                    st["cur"] = "a" if na_ <= nd_ else "d"
                urgent = min(na_, nd_) - st["t"] <= self.opt.get("horizon", 30) + run
                if e.T < st["next"] and not urgent:
                    return False
                if mix and na_ < 1 << 21 and st["k"] % mix == mix - 1 and na_ - st["t"] > self.opt.get("mixh", 10) and self.dma_ok():
                    next(self.dmaf)
                elif na_ <= nd_ and na_ < 1 << 21:
                    if e.outstanding() >= self.opt.get("qmax", 13) and not urgent:
                        return False
                    if aload.n // 2 >= st["t"] // ntile + aload.win - 1:
                        return False
                    aload.step()
                elif nd_ < 1 << 22 and (urgent or self.dma_ok()):
                    next(self.dmaf)
                elif not self.stage_step():
                    return False
            if len(e.vm) > n0:
                st["k"] += 1
                st["next"] = e.T + self.opt.get("vgap", 24)
            return True

        def fill(budget):
            while budget > 0:
                n0 = e.ninst
                did = one_vmem()
                if not did:
                    for f in list(fillers):
                        try:
                            if next(f) == "idle":
                                continue
                            did = True
                            break
                        except StopIteration:
                            fillers.remove(f)
                if not did:
                    return
                budget -= e.ninst - n0

        def waits_for(t):
            regs = []
            for tt in (t, t + 1):
                if tt < n:
                    ks = tt // ntile
                    if aload is not None:
                        aload.upto(ks)
                    idx = self.cons + (tt - t)
                    if idx < self.rd:
                        regs += FIFO[4 * (idx % FI):4 * (idx % FI) + 4].regs()
                    regs += xf(ks, 0).regs() + xf(ks, 1).regs()
            return e._pending(regs)

        e.wait_ops(waits_for(0))
        if aload is not None:
            self.stamp("1st")
            self.warn.append(f"fill {8 * self.issued - self.seq[self.cons][0]}")
        for t in range(n):
            if aload is not None and self.opt.get("midstamp") and t == n // 2:
                self.stamp("half")
            i = self.cons
            assert self.rd > i, ("fifo underrun", i)
            W = FIFO[4 * (i % FI):4 * (i % FI) + 4]
            st["t"] = t
            if must is not None and t == n - ntile - 2:
                for _ in must:
                    self.warn.append("must drained late")
            if t == int(n * self.opt.get("cfrac", 0.8)) and n > 30:
                fillers.insert(0, self.code_touch_gen())
            if hooks and hooks.get("add"):
                g_ = hooks["add"](t)
                if g_:
                    fillers.append(g_)
            ov = over if fillers else 0
            mf(t, W, 0)
            bar = self.rd < lim and (self.endpos(self.rd) > self.visible or self.rd - self.lastbar >= chunk)
            bar = bar or t == force_bar
            if late and t >= late[0] and not st.get("lateon") and (aload is None or aload.done) and 8 * self.issued >= min(self.own_end, self.endpos(min(i_first + n + FI, lim) - 1)) and not self.mid_group():
                st["late"] = late[1]
                st["lateon"] = True
                self.warn.append(f"late at {t}")
            if bar:
                ex, after = [], None
                if hooks and hooks.get("bar"):
                    ex, after = hooks["bar"](t)
                self.ring_barrier(lim if see_all else min(self.rd + chunk, lim), ex)
                if after:
                    after()
            else:
                fill(2 + ov)
            mf(t, W, 1)
            self.cons += 1
            used = 0
            if self.rd < lim:
                self.issue_read()
                used = 1
            pend = waits_for(t + 1) if (t % 2 == 1 and t + 1 < n) else []
            fill(2 + ov - used - (1 if pend else 0))
            if pend:
                e.wait_ops(waits_for(t + 1))
        if late and not st.get("lateon"):
            st["late"] = late[1]
        for f in fillers + ([st["late"]] if st.get("late") else []):
            if f is not self.capg:
                for _ in f:
                    pass

    def segof(self, pos):
        for k, b, n in self.segs:
            if b <= pos < b + n:
                return k
        return "O"

    def mid_group(self):
        return self.issued > 0 and (self.issued - 1) not in self.dmaop

    def dma_burst(self, maxgroups=99):
        e = self.e
        self.flush_dma_partial()
        gs = []
        while self.can_issue() and len(gs) < maxgroups:
            gs.append(self.issued)
            self.issued += 1
        for w in (1, 2, 3):
            mine = gs[w - 1::3]
            if not mine:
                continue
            skip = e.newlabel("noburst")
            e.S("s_cmp_lg_u32", sWave, w)
            e.branch("s_cbranch_scc1", skip)
            e.cond_begin()
            for g in mine:
                pos = 8 * g
                for k, b, n in self.segs:
                    if b <= pos < b + n:
                        break
                for h in range(2):
                    e.S("s_mov_b32", M0, self.ldsaddr(pos) + h * 4096)
                    e.S("s_add_u32", sDm, sSeg[k], (pos - b) * KB + h * 4096)
                    for q in range(4):
                        self.dmaop[g] = e.dma(vL16, WS, sDm, q * 1024)
            e.cond_end()
            e.label(skip)

    def prologue(self):
        e = self.e
        e.S("s_cmp_ge_u32", s(2), 256)
        e.branch("s_cbranch_scc1", "main_end")
        if self.opt.get("stamps"):
            e.V("v_mov_b32", v(53), 0)
        self.stamp("t0")
        if self.opt.get("spin"):
            e.memtime(sTm, True)
            e.V("v_mov_b32", v(53), sTm[0])
        e.sload(PP, s(0, 2), 0)
        e.sload(pOut, s(0, 2), 64)
        e.sload(pWs, s(0, 2), 80)
        T0, T1, T2, T3 = TMP[48], TMP[49], TMP[50], TMP[51]
        e.S("s_getpc_b64", s(88, 2))
        e.label("main_pc")
        e.V("v_lshlrev_b32", T2, 5, v(0))
        e.S("s_sub_u32", s(88), s(88), "main_pc-" + self.kname)
        e.S("s_subb_u32", s(89), s(89), 0)
        e.misc(f"global_load_dword {vDum}, {T2}, s[88:89]")
        e._vm([], (2000, 30, 0))
        e.V("v_lshrrev_b32", T0, 6, v(0))
        e.V("v_and_b32", vLane, 63, v(0))
        e.V("v_readfirstlane_b32", sWave, T0)
        e.S("s_lshr_b32", sB, s(2), 3)
        e.S("s_mul_i32", sB, sB, 1792)
        e.S("s_add_u32", sB, sB, 8192)
        e.V("v_lshl_add_u32", T2, v(0), 3, sB)
        e.V("v_min_u32", T2, self.opt.get("code_bytes", 32768) - 4, T2)
        e.misc(f"global_load_dword {vDum}, {T2}, s[88:89]")
        e._vm([], (2000, 30, 0))
        e.V("v_lshlrev_b32", vL16, 4, vLane)
        e.V("v_and_b32", vN, 15, vLane)
        e.V("v_lshrrev_b32", vG, 4, vLane)
        self.vBig = TMP[52]
        e.V("v_mov_b32", self.vBig, BIG)
        e.S("s_and_b32", sA, s(2), 7)
        e.S("s_lshl_b32", sA, sA, 1)
        e.S("s_lshr_b32", sB, s(2), 7)
        e.S("s_add_u32", sR, sA, sB)
        e.S("s_bfe_u32", sC, s(2), (4 << 16) | 3)

    def gather(self, raw, srd, sstride, vaddr, srow, n=8):
        e = self.e
        e.S("s_mul_i32", sLd, srow, sstride)
        for i in range(n):
            e.bload(raw[i], vaddr, srd, sLd, 0, w="ushort", cls=(2500, 32, 0))
            if i < n - 1:
                e.S("s_add_u32", sLd, sLd, sstride)

    def pack(self, raw, n=4):
        for i in range(n):
            self.e.V("v_lshl_or_b32", raw[i], raw[2 * i + 1], 16, raw[2 * i])

    def colsum(self, regs, ex, vs, vt):
        e = self.e
        e.V("v_mov_b32", vs, 0)
        for r_ in regs:
            e.V("v_dot2c_f32_bf16", vs, r_, vOne)
        allreduce_g(e, vs, vt)
        e.V("v_sub_f32", vs, 0, vs)
        e.V("v_cvt_pk_bf16_f32", vt, vs, vs)
        e.V("v_lshlrev_b32", vt, 16, vt)
        e.V("v_sub_f32", vt, vs, vt)
        e.V("v_cvt_pk_bf16_f32", ex[0], vs, vt)
        e.V("v_and_b32", ex[1], "0xffff", ex[0])

    def startup(self):
        e = self.e
        vBig = self.vBig
        RAW1, EX = ACC[0:20], ACC[20:24]
        RAW2 = TMP[8:40]
        vCol, vReg, vLeft, vT0, vT1, vSum, vLd = [FIFO[i] for i in range(7)]
        vA0, vA1, vA2, vSt2, vBias = RES[8], RES[9], B2F[8], B2F[9], TMP[50]
        sT, sP = s(7), s(93)
        sStr = s(56)
        XJ = [RES[0:4], RES[4:8], B2F[0:4]]
        XD, XA, XB_ = B2F[4], ACC[32], ACC[33]
        XM = [s(90), s(91), s(94)]
        T0, T1, T2, T3 = TMP[48], TMP[49], TMP[50], TMP[51]
        e.V("v_lshrrev_b32", T1, 3, vLane)
        e.V("v_and_b32", T3, 7, vLane)
        e.V("v_mul_u32_u24", T0, 1280, T3)
        e.V("v_lshl_add_u32", XA, T1, 4, T0)
        e.V("v_lshrrev_b32", T2, 4, vLane)
        e.V("v_lshl_add_u32", XB_, T2, 7, XA)
        e.V("v_lshlrev_b32", XD, 8, T1)
        e.V("v_lshl_add_u32", XD, T3, 4, XD)
        e.S("s_lshl_b32", sE, sR, 4)
        e.S("s_add_u32", sE, sE, sC)
        e.S("s_mul_i32", sE, sE, 8 * 1280)
        e.S("s_mul_i32", sD, sWave, 3)
        mk_srd(e, XIN, PP[0:2], XSZ)
        for k in range(3):
            e.S("s_add_u32", XM[k], sD, k)
            e.S("s_cmp_ge_u32", XM[k], 8)
            e.S("s_cselect_b64", VCC, -1, 0)
            e.S("s_cselect_b32", sA, 40, 10)
            e.S("s_cselect_b32", sB, 8 - 8 * 40, 0)
            e.V("v_cndmask_b32", T0 if k != 1 else T1, XA, XB_, VCC)
            e.S("s_mul_i32", sA, sA, XM[k])
            e.S("s_add_u32", sA, sA, sB)
            e.S("s_lshl_b32", sA, sA, 4)
            e.S("s_add_u32", sA, sA, sE)
            e.S("s_cmp_ge_u32", XM[k], 10)
            e.S("s_cselect_b32", sA, BIG, sA)
            e.S("s_cselect_b32", XM[k], BIG // 2048, XM[k])
            e.bload(XJ[k], T0 if k != 1 else T1, XIN, sA, 0, cls=(2000, 100, 0))
        self.stamp("issx")
        e.S("s_lshr_b32", sP, sR, 1)
        e.S("s_and_b32", sT, sR, 1)
        e.S("s_lshl_b32", sT, sT, 2)
        e.S("s_add_u32", sT, sT, sWave)
        e.S("s_mov_b32", s(4), (656 << 20) | (660 << 10) | 640)
        e.S("s_mov_b32", s(5), 0)
        e.S("s_mul_i32", sA, sT, 10)
        e.S("s_lshr_b32", sA, s(4), sA)
        e.S("s_and_b32", sA, sA, 1023)
        for t, val in ((3, 1280), (4, 1300), (5, 0), (6, 1), (7, 32)):
            e.S("s_cmp_eq_u32", sT, t)
            e.S("s_cselect_b32", sA, val, sA)
        e.S("s_mul_i32", sB, sC, 40)
        e.S("s_add_u32", sA, sA, sB)
        e.V("v_add_u32", vCol, sA, vN)
        e.V("v_add_u32", vT0, vCol, vN)
        e.S("s_sub_u32", sB, sT, 5)
        e.S("s_cmp_lt_u32", sB, 2)
        e.S("s_cselect_b64", VCC, -1, 0)
        e.V("v_cndmask_b32", vCol, vCol, vT0, VCC)
        e.V("v_lshrrev_b32", vT0, 3, vN)
        e.V("v_mul_u32_u24", vT0, 632 - 32, vT0)
        e.V("v_lshrrev_b32", vT1, 2, vN)
        e.V("v_lshl_add_u32", vT0, vT1, 4, vT0)
        e.V("v_add3_u32", vT0, vT0, vN, sA)
        e.S("s_cmp_eq_u32", sT, 2)
        e.S("s_cselect_b64", VCC, -1, 0)
        e.V("v_cndmask_b32", vCol, vCol, vT0, VCC)
        e.V("v_lshlrev_b32", vCol, 1, vCol)
        e.S("s_cmp_eq_u32", sT, 7)
        e.S("s_cselect_b32", sB, 8, 16)
        e.V("v_cmp_le_u32", VCC, sB, vN)
        e.S("s_mov_b32", sStr, 3840)
        e.V("v_cndmask_b32", vCol, vCol, vBig, VCC)
        e.S("s_mov_b32", sD, 8 * 3840)
        e.V("v_mad_u32_u24", vReg, vG, sD, vCol)
        e.V("v_and_b32", vT0, 1, vG)
        e.V("v_lshrrev_b32", vT1, 1, vG)
        e.V("v_lshl_add_u32", vLd, vT0, 1, vT1)
        e.S("s_mov_b32", sD, 4 * 3840)
        e.V("v_mad_u32_u24", vLeft, vLd, sD, vCol)
        mk_srd(e, SR1, PP[2:4], D * 3 * D * 2)
        e.S("s_mul_i32", sB, sP, 80)
        self.gather(RAW1[0:8], SR1, sStr, vReg, sB)
        e.S("s_add_u32", sA, sB, 32)
        self.gather(RAW1[8:16], SR1, sStr, vReg, sA)
        e.S("s_add_u32", sA, sB, 64)
        self.gather(RAW1[16:20], SR1, sStr, vLeft, sA, 4)
        self.stamp("iss1")
        def r2touch():
            e.S("s_lshl_b32", sA, s(2), 2)
            e.S("s_add_u32", sA, sA, sWave)
            e.V("v_min_u32", T0, 17, vLane)
            e.V("v_lshlrev_b32", T0, 7, T0)
            e.S("s_mul_i32", sB, sA, 2160)
            mk_srd(e, SR2, PP[8:10], F * D * 2)
            e.touch(vDum, T0, SR2, sB, 0, cls=(2000, 30, 0))
            mk_srd(e, SR2, PP[12:14], F * D * 2)
            e.touch(vDum, T0, SR2, sB, 0, cls=(2000, 30, 0))
            e.V("v_min_u32", T0, 7 * 128, T0)
            mk_srd(e, SR2, PP[4:6], D * D * 2)
            e.S("s_mul_i32", sB, sA, 800)
            e.touch(vDum, T0, SR2, sB, 0, cls=(2000, 30, 0))
        if self.opt.get("r2touch", 3) == 1:
            r2touch()
        if self.opt.get("wsoff"):
            e.S("s_add_u32", pWs[0], pWs[0], self.opt["wsoff"] << 20)
            e.S("s_addc_u32", pWs[1], pWs[1], 0)
        mk_srd(e, WS, pWs, WS_USED)
        e.sload(sBase, pWs, EPOCH)
        e.S("s_mov_b32", sA, "0x3f803f80")
        e.V("v_mov_b32", vOne, sA)
        e.S("s_and_b32", sCG, sC, 7)
        e.S("s_lshr_b32", sRH, sC, 3)
        if self.opt.get("r2touch", 0) == 3:
            r2touch()
        mk_srd(e, SB2, PP[14:16], D * 2)
        self.prologue2()
        self.stamp("pro2")
        sU, sP, sStr, sJ = s(88), s(89), s(100), s(101)
        rows = [s(3 + i) for i in range(4)]
        D2 = [s(64), s(65), s(66), s(67)]
        sDB, sDX = s(70), s(71)
        vSel0, vSel1 = vA1, vA2
        mk_srd(e, SR1, PP[10:12], F * 2)
        e.S("s_lshl_b32", sJ, sRH, 4)
        e.S("s_add_u32", sJ, sJ, sR)
        if self.opt.get("bal", 1):
            e.S("s_cmp_eq_u32", sJ, 15)
            e.S("s_cselect_b32", sA, 39, 127)
            e.S("s_mul_i32", sJ, sJ, 3)
            e.S("s_add_u32", sJ, sJ, sWave)
            e.S("s_add_u32", sJ, sJ, 39)
            e.S("s_cmp_ge_u32", sJ, 97)
            e.S("s_cselect_b32", sB, 97, 0)
            e.S("s_sub_u32", sJ, sJ, sB)
            e.S("s_cmp_eq_u32", sWave, 0)
            e.S("s_cselect_b32", sJ, sA, sJ)
        else:
            e.S("s_lshl_b32", sJ, sJ, 2)
            e.S("s_add_u32", sJ, sJ, sWave)
        e.V("v_lshrrev_b32", vT0, 1, vG)
        e.V("v_and_b32", vT1, 1, vG)
        e.V("v_mov_b32", vSt2, vL16)
        e.S("s_mov_b32", sDX, BIG)
        lo, lc, lj = e.newlabel("job_wo"), e.newlabel("job_w2"), e.newlabel("job_go")

        def unit(sbase, nu, stride, ca, cb, nreg, dB):
            e.S("s_lshl_b32", sA, sU, 5)
            e.S("s_add_u32", sA, sA, sbase)
            e.S("s_lshl_b32", sA, sA, 1)
            e.S("s_mov_b32", sDB, dB)
            e.S("s_cmp_lt_u32", sU, nu)
            e.S("s_cselect_b64", VCC, -1, 0)
            e.S("s_cselect_b32", sDB, sDB, BIG)
            e.V("v_lshlrev_b32", vCol, 2, vN)
            e.V("v_and_b32", vReg, 14, vN)
            e.V("v_lshlrev_b32", vReg, 1, vReg)
            e.V("v_cndmask_b32", vCol, vReg, vCol, VCC)
            e.V("v_add_u32", vCol, sA, vCol)
            e.V("v_and_b32", vReg, 1, vN)
            e.V("v_cndmask_b32", vReg, vReg, 0, VCC)
            e.S("s_mov_b32", sA, "0x02020202")
            e.V("v_mul_lo_u32", vReg, vReg, sA)
            e.V("v_add_u32", vSel0, "0x05040100", vReg)
            e.S("s_mov_b32", sStr, stride)
            e.S("s_mov_b32", sD, 8 * stride)
            e.V("v_mul_u32_u24", vReg, sD, vG)
            e.S("s_mov_b32", sD, ca * stride)
            e.V("v_mul_u32_u24", vLeft, sD, vT0)
            e.S("s_mov_b32", sD, cb * stride)
            e.V("v_mad_u32_u24", vLeft, vT1, sD, vLeft)
            e.S("s_cmp_lt_u32", sP, nreg)
            e.S("s_cselect_b64", VCC, -1, 0)
            e.V("v_cndmask_b32", vA0, vLeft, vReg, VCC)

        def split_dests(half):
            for b in range(4):
                e.S("s_lshl_b32", sA, sP, 2)
                e.S("s_add_u32", sA, sA, b)
                e.S("s_mul_i32", sD, sA, 10)
                e.S("s_cmp_ge_u32", sA, half)
                e.S("s_cselect_b32", sB, 10 * half - 1, 0)
                e.S("s_sub_u32", sD, sD, sB)
                e.S("s_add_u32", sD, sD, sE)
                e.S("s_lshl_b32", D2[b], sD, 10)
                if half == 27 and b >= 2:
                    e.S("s_cmp_ge_u32", sA, 54)
                    e.S("s_cselect_b32", D2[b], BIG, D2[b])

        def div3(dq, dr, src):
            e.S("s_mul_i32", dq, src, 43691)
            e.S("s_lshr_b32", dq, dq, 17)
            e.S("s_mul_i32", sA, dq, 3)
            e.S("s_sub_u32", dr, src, sA)

        e.S("s_cmp_ge_u32", sJ, 55)
        e.branch("s_cbranch_scc1", lc)
        e.S("s_cmp_ge_u32", sJ, 40)
        e.branch("s_cbranch_scc1", lo)
        e.cond_begin()
        mk_srd(e, SR2, PP[8:10], D * F * 2)
        e.S("s_and_b32", sU, sJ, 3)
        e.S("s_lshr_b32", sP, sJ, 2)
        e.S("s_cmp_ge_u32", sP, 5)
        e.S("s_cselect_b32", sA, 5, 0)
        e.S("s_cselect_b32", sJ, 8, 0)
        e.S("s_sub_u32", sP, sP, sA)
        e.S("s_add_u32", sJ, sJ, sCG)
        e.S("s_mul_i32", sE, sJ, 112)
        e.S("s_max_u32", sB, sJ, 12)
        e.S("s_sub_u32", sB, sB, 12)
        e.S("s_lshl_b32", sB, sB, 4)
        e.S("s_sub_u32", sE, sE, sB)
        unit(sE, 3, 3456, 80, 8, 4, 1024)
        e.S("s_lshl_b32", sA, sU, 4)
        e.S("s_add_u32", sA, sA, sJ)
        e.S("s_cmp_ge_u32", sA, 3 * 16 + 12)
        e.S("s_cselect_b64", VCC, -1, 0)
        e.V("v_cndmask_b32", vCol, vCol, vBig, VCC)
        for b in range(4):
            e.S("s_mul_i32", sA, sP, 160)
            e.S("s_add_u32", sA, sA, 80 * (b >> 1) + 32 * (b & 1))
            e.S("s_cmp_eq_u32", sP, 4)
            e.S("s_cselect_b32", rows[b], 160 * b + 64, sA)
        e.S("s_cmp_lt_u32", sU, B1N // 2)
        e.S("s_cselect_b32", s(79), B1N, 7 - B1N)
        e.S("s_cselect_b32", sE, 0, 20 * B1N)
        e.S("s_lshl_b32", sA, sU, 1)
        e.S("s_add_u32", sE, sE, sA)
        e.S("s_mul_i32", sB, sJ, NB)
        e.S("s_add_u32", sE, sE, sB)
        e.S("s_add_u32", sE, sE, WB // KB)
        for b in range(4):
            e.S("s_lshl_b32", sA, sP, 2)
            e.S("s_add_u32", sA, sA, b)
            e.S("s_mul_i32", sA, sA, s(79))
            e.S("s_add_u32", sA, sA, sE)
            e.S("s_lshl_b32", D2[b], sA, 10)
        e.S("s_mul_i32", sD, s(79), 20)
        e.S("s_add_u32", sD, sD, sE)
        e.S("s_lshl_b32", sDX, sD, 10)
        e.branch("s_branch", lj)
        e.cond_end()
        e.label(lo)
        e.cond_begin()
        mk_srd(e, SR2, PP[4:6], D * D * 2)
        e.S("s_sub_u32", sJ, sJ, 40)
        div3(sP, sU, sJ)
        e.S("s_mul_i32", sE, sCG, 80)
        unit(sE, 2, 1280, 80, 40, 4, 2048)
        for b in range(4):
            e.S("s_mul_i32", sA, sP, 160)
            e.S("s_add_u32", sA, sA, 40 * b)
            e.S("s_cmp_eq_u32", sP, 4)
            e.S("s_cselect_b32", rows[b], 160 * b + 32, sA)
        e.S("s_mul_i32", sE, sCG, NO)
        e.S("s_add_u32", sE, sE, WO // KB)
        e.S("s_lshl_b32", sA, sU, 2)
        e.S("s_add_u32", sE, sE, sA)
        split_dests(10)
        e.branch("s_branch", lj)
        e.cond_end()
        e.label(lc)
        e.cond_begin()
        mk_srd(e, SR2, PP[12:14], F * D * 2)
        e.S("s_sub_u32", sJ, sJ, 55)
        div3(sP, sU, sJ)
        e.S("s_mul_i32", sE, sCG, 80)
        unit(sE, 2, 1280, 112, 8, 12, 2048)
        e.S("s_cmp_ge_u32", sP, 14)
        e.S("s_cselect_b64", VCC, -1, 0)
        e.V("v_cndmask_b32", vCol, vCol, vBig, VCC)
        e.V("v_cndmask_b32", vSt2, vSt2, vBig, VCC)
        e.S("s_min_u32", sP, sP, 13)
        for b in range(4):
            e.S("s_lshl_b32", sD, sP, 2)
            e.S("s_add_u32", sD, sD, b)
            e.S("s_mul_i32", sA, sD, 43691)
            e.S("s_lshr_b32", sA, sA, 17)
            e.S("s_lshl_b32", sA, sA, 4)
            e.S("s_min_u32", sA, sA, 192)
            e.S("s_lshl_b32", sB, sD, 5)
            e.S("s_add_u32", sA, sA, sB)
            e.S("s_mul_i32", sB, sD, 224)
            e.S("s_sub_u32", sB, sB, 224 * 48 - 96)
            e.S("s_cmp_ge_u32", sD, 48)
            e.S("s_cselect_b32", rows[b], sB, sA)
        e.S("s_mul_i32", sE, sCG, NC)
        e.S("s_add_u32", sE, sE, WC // KB)
        e.S("s_lshl_b32", sA, sU, 2)
        e.S("s_add_u32", sE, sE, sA)
        split_dests(27)
        e.cond_end()
        e.label(lj)
        e.V("v_add_u32", vA0, vA0, vCol)
        e.S("s_cmp_lt_u32", sP, 2)
        e.S("s_cselect_b64", VCC, -1, 0)
        e.V("v_cndmask_b32", vBias, vBig, vCol, VCC)
        e.V("v_mov_b32", vSel1, "0x07060302")
        e.V("v_add_u32", vT0, sP, vG)
        e.V("v_lshrrev_b32", vT1, 1, vT0)
        e.V("v_lshlrev_b32", vLd, 4, vN)
        e.V("v_lshl_add_u32", vLd, vT1, 8, vLd)
        e.V("v_and_b32", vT0, 1, vT0)
        e.V("v_lshl_add_u32", vLd, vT0, 3, vLd)
        e.S("s_cmp_eq_u32", sP, 4)
        e.S("s_cselect_b32", sA, 4, 1)
        e.V("v_cmp_gt_u32", VCC, sA, vG)
        e.V("v_cndmask_b32", vLd, vBig, vLd, VCC)
        e.S("s_lshl_b32", sA, sC, 4)
        e.S("s_add_u32", sA, sA, sR)
        e.S("s_mul_i32", sA, sA, KVSZ)
        e.S("s_mul_i32", sB, sWave, KVSZ // 4)
        e.S("s_add_u32", sA, sA, sB)
        e.S("s_add_u32", s(79), sA, KVB[1])
        self.stamp("dec2")
        sP2 = sP
        wT0, wT1, wLd, wSum = FIFO[8], FIFO[9], FIFO[10], FIFO[11]
        sT, sP = s(7), s(93)
        ops1 = []
        e.S("s_lshr_b32", sA, sC, 1)
        e.S("s_lshl_b32", sB, sR, 3)
        e.S("s_add_u32", sA, sA, sB)
        e.S("s_mul_i32", sA, sA, 20 * KB)
        e.S("s_and_b32", sB, sC, 1)
        e.S("s_lshl_b32", sB, sB, 7)
        e.S("s_add_u32", sA, sA, sB)
        e.S("s_add_u32", sA, sA, XB[0])
        for k in range(3):
            e.S("s_lshl_b32", sB, XM[k], 11)
            e.S("s_add_u32", sB, sB, sA)
            ops1.append(e.bstore(XJ[k], XD, WS, sB, 0, "sc1", cls=(1000, 70, 0)))
        xs = ACC[26:28]
        xz = ACC[24:26]
        MK = ACC[28:32]
        for r_ in (xs[0], xs[1], xz[0], xz[1]):
            e.V("v_mov_b32", r_, 0)
        for k in range(3):
            for i in range(4):
                e.V("v_dot2c_f32_bf16", xs[0], XJ[k][i], vOne)
                e.V("v_dot2c_f32_bf16", xs[1], XJ[k][i], XJ[k][i])
        for h in range(2):
            e.V("v_add_f32_dpp", xs[h], xs[h], xs[h], mods="row_ror:8 row_mask:0xf bank_mask:0xf")
            allreduce_g(e, xs[h], wT0)
        e.S("s_lshl_b32", sA, sR, 3)
        e.S("s_add_u32", sA, sA, sWave)
        e.S("s_lshl_b32", sA, sA, 10)
        e.S("s_lshl_b32", sB, sC, 6)
        e.S("s_add_u32", sA, sA, sB)
        e.S("s_add_u32", sA, sA, STB[0])
        e.S("s_add_u32", sB, sA, 4096)
        e.V("v_lshlrev_b32", wT0, 3, vLane)
        e.S("s_mov_b64", EXEC, "0xff")
        ops1.append(e.bstore(xs, wT0, WS, sA, 0, "sc1", cls=(1000, 20, 0)))
        ops1.append(e.bstore(xz, wT0, WS, sB, 0, "sc1", cls=(1000, 20, 0)))
        e.S("s_mov_b64", EXEC, -1)
        self.stamp("xst")
        e.S("s_cmp_lt_u32", sT, 5)
        e.S("s_cselect_b32", sE, 5, 3)
        e.S("s_cselect_b32", sA, 0, 100)
        e.S("s_add_u32", sA, sA, sT)
        e.S("s_mul_i32", sB, sC, NA)
        e.S("s_add_u32", sA, sA, sB)
        e.S("s_add_u32", sA, sA, WA // KB)
        e.S("s_lshl_b32", sA, sA, 10)
        e.S("s_lshl_b32", sE, sE, 10)
        e.S("s_mul_i32", sB, sP, sE)
        e.S("s_lshl_b32", sB, sB, 1)
        e.S("s_add_u32", sB, sB, sA)
        self.pack(RAW1[0:8])
        ops1.append(e.bstore(RAW1[0:4], vL16, WS, sB, 0, "sc1", cls=(1000, 70, 0)))
        e.S("s_add_u32", sB, sB, sE)
        self.pack(RAW1[8:16])
        ops1.append(e.bstore(RAW1[8:12], vL16, WS, sB, 0, "sc1", cls=(1000, 70, 0)))
        e.S("s_lshr_b32", sB, sP, 1)
        e.S("s_add_u32", sB, sB, 16)
        e.S("s_mul_i32", sB, sB, sE)
        e.S("s_add_u32", sB, sB, sA)
        e.S("s_and_b32", sD, sP, 1)
        e.S("s_lshl_b32", s(95), sD, 9)
        e.S("s_add_u32", sB, sB, s(95))
        e.V("v_lshlrev_b32", wT0, 8, vG)
        e.V("v_and_b32", wT0, 256, wT0)
        e.V("v_lshl_add_u32", wT0, vN, 4, wT0)
        e.V("v_lshrrev_b32", wT1, 1, vG)
        e.V("v_lshl_add_u32", wLd, wT1, 3, wT0)
        self.pack(RAW1[16:20], 2)
        ops1.append(e.bstore(RAW1[16:18], wLd, WS, sB, 0, "sc1", cls=(1000, 40, 0)))
        self.colsum([RAW1[i] for i in (0, 1, 2, 3, 8, 9, 10, 11, 16, 17)], EX, wSum, wT0)
        e.S("s_mul_i32", sB, sE, 20)
        e.S("s_add_u32", sB, sB, sA)
        e.S("s_lshr_b32", sA, sP, 1)
        e.S("s_lshl_b32", sA, sA, 8)
        e.S("s_add_u32", sB, sB, sA)
        e.S("s_lshl_b32", sD, sD, 3)
        e.S("s_add_u32", sB, sB, sD)
        e.S("s_mov_b64", EXEC, "0xffff")
        ops1.append(e.bstore(EX[0:2], vL16, WS, sB, 0, "sc1", cls=(1000, 20, 0)))
        e.S("s_mov_b64", EXEC, -1)
        self.stamp("r1")
        if self.opt.get("r2touch", 3) == 2:
            r2touch()
        for i in range(4):
            e.V("v_mov_b32", MK[i], -1)
        e.S("s_lshl_b32", sA, sC, 4)
        e.S("s_add_u32", sA, sA, sR)
        e.S("s_mul_i32", sA, sA, KVSZ)
        e.S("s_mul_i32", sB, sWave, KVSZ // 4)
        e.S("s_add_u32", sA, sA, sB)
        e.S("s_add_u32", sA, sA, KVB[0])
        e.S("s_mov_b64", EXEC, "0xfffffff")
        ops1.append(e.bstore(MK, vL16, WS, sA, 0, "sc1", cls=(1000, 40, 0)))
        e.S("s_mov_b64", EXEC, -1)
        self.stamp("xjob")
        sP = sP2
        self.ops2 = []

        def r2_loads():
            for b in range(4):
                e.S("s_mul_i32", sE, rows[b], sStr); yield
                for i in range(8):
                    e.bload(RAW2[8 * b + i], vA0, SR2, sE, 0, cls=(1500, 32, 0)); yield
                    if i < 7:
                        e.S("s_add_u32", sE, sE, sStr); yield
            e.bload(vBias, vBias, SR1, 0, 0, cls=(1500, 10, 0)); yield

        vs, vt, MK = TMP[48], TMP[49], TMP[40:44]
        EV = ACC[40:56]

        def r2_pack():
            for b in range(4):
                raw = RAW2[8 * b:8 * b + 8]
                for i in range(4):
                    e.V("v_perm_b32", EV[4 * b + i], raw[2 * i + 1], raw[2 * i], vSel0)
                for i in range(4):
                    e.V("v_perm_b32", raw[i], raw[2 * i + 1], raw[2 * i], vSel1)
            for i in range(4):
                e.V("v_mov_b32", MK[i], -1)
            e.V("v_cmp_eq_u32", sNan, 0, vG)
            for h in range(2):
                ex = TMP[44 + 2 * h:46 + 2 * h]
                self.colsum([EV[i] for i in range(16)] if h == 0 else [RAW2[8 * b + i] for b in range(4) for i in range(4)], ex, vs, vt)
                e.V("v_perm_b32", vt, vBias, vBias, vSel0 if h == 0 else vSel1)
                e.V("v_and_b32", vt, "0xffff0000", vt)
                e.V("v_or_b32", ex[1], ex[1], vt)
                e.V("v_cndmask_b32", ex[0], 0, ex[0], sNan)
                e.V("v_cndmask_b32", ex[1], 0, ex[1], sNan)
            e.V("v_mov_b32", vSel0, vLd)
            yield

        def r2_stores():
            for b in range(4):
                self.ops2.append(e.bstore(EV[4 * b:4 * b + 4], vSt2, WS, D2[b], 0, self.opt.get("r2mod", "sc1"), cls=(1000, 70, 0)))
                e.S("s_add_u32", sA, D2[b], sDB)
                self.ops2.append(e.bstore(RAW2[8 * b:8 * b + 4], vSt2, WS, sA, 0, self.opt.get("r2mod", "sc1"), cls=(1000, 70, 0)))
            e.S("s_mov_b64", EXEC, "0xfffffff")
            self.ops2.append(e.bstore(MK, vL16, WS, s(79), 0, "sc1", cls=(1000, 40, 0)))
            e.S("s_mov_b64", EXEC, -1)
            for h in range(2):
                if h:
                    e.S("s_add_u32", sDX, sDX, sDB)
                self.ops2.append(e.bstore(TMP[44 + 2 * h:46 + 2 * h], vSel0, WS, sDX, 0, "sc1", cls=(1000, 20, 0)))
        self.r2_stores = r2_stores
        self.r2_loads, self.r2_pack = r2_loads(), r2_pack()
        npre = self.opt.get("r2pre", 50)
        for _ in self.r2_loads:
            npre -= 1
            if npre <= 0:
                break
        self.stamp("iss2")
        e.wait_ops(ops1)
        e.barrier()
        self.flag("both", 1, ACC[34], ACC[35])
        self.stamp("w1flag")
        for _ in self.r2_loads:
            pass
        for _ in self.r2_pack:
            pass
        self.al0 = None
        if self.opt.get("early_a", 0):
            self.poll("row", 1)
            e.barrier()
        if self.opt.get("r2st", 2) == 2:
            r2_stores()
            self.late_loads()
        self.stamp("r2")
        if self.opt.get("early_a", 0):
            self.stats_loads(0)
            self.al0 = self.ALoad(self, vAx, (sXr, XB[0]), 20)
            self.al0.upto(19)
        self.poll("col" if self.al0 else "both", 1)
        e.barrier()
        self.stamp("w1go")

    def w2_gen(self):
        e = self.e
        t = RES[0]
        e.V("v_bfe_u32", t, vLane, 4, 1); yield
        e.V("v_lshl_add_u32", t, t, 11, vFl); yield
        e.S("s_lshl_b32", s(4), sCG, 8); yield
        e.S("s_add_u32", s(4), s(4), FLG_C); yield
        e.bload(RES[1], t, WS, s(4), 0, "sc1", cls=(900, 10, 0)); yield
        for _ in range(self.opt.get("w2wait", 50)):
            yield "idle"
        e.S("s_add_u32", s(5), sBase, 2); yield
        lok, lre = e.newlabel("w2ok"), e.newlabel("w2retry")
        e.V("v_cmp_ne_u32", VCC, s(5), RES[1])
        e.S("s_cmp_eq_u64", VCC, 0)
        e.branch("s_cbranch_scc1", lok)
        e.cond_begin()
        e.S("s_mov_b32", sCnt, 0)
        e.label(lre)
        e.misc("s_sleep 4")
        e.bload(RES[1], t, WS, s(4), 0, "sc1")
        e.V("v_cmp_ne_u32", VCC, s(5), RES[1])
        e.S("s_cmp_eq_u64", VCC, 0)
        e.branch("s_cbranch_scc1", lok)
        e.S("s_add_u32", sCnt, sCnt, 1)
        e.S("s_cmp_lt_u32", sCnt, 0x20000)
        e.branch("s_cbranch_scc1", lre)
        e.cond_end()
        e.label(lok)
        self.gate = 1 << 20
        yield

    def prologue2(self):
        e = self.e
        T0, T1, T2, T3, T4, T5 = [TMP[40 + i] for i in range(6)]
        mk_srd(e, OUT, pOut, XSZ)
        e.S("s_and_b32", sKH, sWave, 1)
        e.S("s_lshl_b32", sW2048, sWave, 11)
        e.S("s_mul_i32", sA, sC, NA * KB)
        e.S("s_add_u32", sSeg["A"], sA, WA)
        e.S("s_mul_i32", sA, sCG, NO * KB)
        e.S("s_add_u32", sSeg["O"], sA, WO)
        e.S("s_mul_i32", sA, sC, NB * KB)
        e.S("s_add_u32", sSeg["B"], sA, WB)
        e.S("s_mul_i32", sA, sCG, NC * KB)
        e.S("s_add_u32", sSeg["C"], sA, WC)
        e.V("v_add_u32", vDma, sW2048, vL16)
        e.S("s_mul_i32", sXr, sR, 160 * KB)
        e.S("s_mul_i32", sHr, sR, 432 * KB)
        e.S("s_lshl_b32", sSTr, sR, 13)
        e.S("s_mul_i32", sA, sWave, 40 * KB)
        e.V("v_add_u32", vAx[0], sA, vL16)
        e.V("v_add_u32", vAx[1], 20 * KB, vAx[0])
        e.V("v_lshlrev_b32", T0, 11, vG)
        e.V("v_lshl_add_u32", T0, vN, 3, T0)
        e.S("s_lshl_b32", sA, sWave, 8)
        e.V("v_add_u32", vSt, sA, T0)
        e.S("s_mov_b32", self.cInvD, lit(1.0 / D))
        for j in range(3):
            if j == 0:
                e.V("v_mov_b32", vW[0], vL16)
            else:
                e.V("v_add_u32", vW[j], j * 65536, vL16)
        e.S("s_lshl_b32", sA, sKH, 10)
        for j in range(3):
            e.V("v_add_u32", vK[j], sA, vW[j])
        e.V("v_lshlrev_b32", T4, 4, v(0))
        Z = TMP[44:48]
        Z = TMP[48:52]
        for j in range(4):
            e.V("v_mov_b32", Z[j], 0)
        e.ds_write(T4, Z, 0)
        e.ds_write(T4, Z, 4096)
        e.S("s_lshl_b32", sTT, sRH, 2)
        e.S("s_add_u32", sTT, sTT, sWave)
        e.S("s_xor_b32", sB, sTT, 1)
        for u, st in ((0, sTT), (1, sB)):
            e.S("s_mul_i32", sA, st, 20 * KB)
            e.S("s_mul_i32", sD, sKH, 10 * KB)
            e.S("s_add_u32", sA, sA, sD)
            e.V("v_add_u32", vAo[u], sA, vL16)
            e.S("s_mul_i32", sA, st, 54 * KB)
            e.S("s_mul_i32", sD, sKH, 27 * KB)
            e.S("s_add_u32", sA, sA, sD)
            e.V("v_add_u32", vAh[u], sA, vL16)
        e.V("v_lshrrev_b32", T0, 1, vG)
        e.V("v_and_b32", T1, 1, vG)
        e.V("v_lshlrev_b32", T2, 4, vN)
        e.V("v_lshl_add_u32", T3, T0, 8, T2)
        e.V("v_lshl_add_u32", T3, T1, 3, T3)
        e.S("s_mul_i32", sA, sTT, 20 * KB)
        e.V("v_add_u32", vXs, sA, vL16)
        e.V("v_add_u32", vXh, sA, T3)
        e.S("s_mul_i32", sA, sWave, 108 * KB)
        e.V("v_add_u32", vHs, sA, vL16)
        e.S("s_cmp_ge_u32", sC, 12)
        e.S("s_cselect_b32", sA, BIG, sA)
        e.V("v_add_u32", vHh, sA, T3)
        e.S("s_mul_i32", sA, sWave, 40 * KB)
        e.V("v_lshl_add_u32", T3, vG, 3, T2)
        e.V("v_add_u32", vOh, sA, T3)
        e.V("v_cmp_gt_u32", VCC, 2, vG)
        e.V("v_mov_b32", T3, BIG)
        e.V("v_cndmask_b32", vOh, T3, vOh, VCC)
        e.S("s_lshl_b32", sA, sTT, 7)
        e.V("v_lshl_add_u32", T3, vN, 3, sA)
        e.V("v_lshl_add_u32", vStW, T0, 2, T3)
        e.S("s_lshl_b32", sA, sWave, 7)
        e.S("s_add_u32", sA, sA, RST)
        e.V("v_lshl_add_u32", vRT, vG, 4, sA)
        e.V("v_lshl_add_u32", vRW, vN, 2, sA)
        e.S("s_lshl_b32", sA, sTT, 6)
        e.S("s_add_u32", sA, sA, RST)
        e.V("v_lshl_add_u32", vRF, vN, 2, sA)
        e.V("v_lshlrev_b32", T3, 4, vG)
        e.V("v_add_u32", vZ2, ZT + 128, T3)
        e.V("v_cmp_gt_u32", VCC, 10, vN)
        e.V("v_add_u32", T3, ZT, T3)
        e.V("v_cndmask_b32", vZ01, vZ2, T3, VCC)
        e.S("s_lshl_b32", sA, sR, 3)
        e.S("s_add_u32", sA, sA, sTT)
        e.S("s_mul_i32", sA, sA, 16 * 1280)
        e.S("s_mul_i32", sB, sCG, 160)
        e.S("s_add_u32", sA, sA, sB)
        e.V("v_mul_u32_u24", T3, 1280, vN)
        e.V("v_add_u32", T3, sA, T3)
        e.V("v_lshl_add_u32", vOut, vG, 4, T3)
        e.V("v_lshl_add_u32", vOut4, vG, 3, T3)
        e.S("s_mul_i32", sA, sWave, 5120)
        e.V("v_add_u32", vXch, sA, vL16)
        e.V("v_lshlrev_b32", vFl, 2, vN)
        e.V("v_mov_b32", vLn2[0], lit(LN2))
        e.V("v_mov_b32", vEps[0], lit(1e-6))
        e.S("s_mov_b32", sMaskV[0], "0x00ff00ff")
        e.S("s_mov_b32", sMaskV[1], "0x00ff00ff")
        e.S("s_lshl_b32", sA, sR, 8)
        e.S("s_add_u32", sFRL, sA, FLG_RL)
        e.S("s_add_u32", sFRG, sA, FLG_RG)
        e.S("s_lshl_b32", sA, sC, 8)
        e.S("s_add_u32", sFC, sA, FLG_C)
        e.S("s_lshl_b32", sA, sCG, 11)
        e.S("s_add_u32", sOx, sXr, sA)
        e.S("s_lshr_b32", sA, sCG, 1)
        e.S("s_lshl_b32", sA, sA, 10)
        e.S("s_and_b32", sB, sCG, 1)
        e.S("s_lshl_b32", sB, sB, 9)
        e.S("s_add_u32", sA, sA, sB)
        e.S("s_add_u32", sA, sA, 16 * KB)
        e.S("s_add_u32", sOxh, sXr, sA)
        e.S("s_lshl_b32", sA, sCG, 10)
        e.S("s_add_u32", sOst, sSTr, sA)
        e.S("s_lshl_b32", sA, sC, 10)
        e.S("s_add_u32", sOo, sXr, sA)
        e.S("s_lshl_b32", sA, sC, 8)
        e.S("s_add_u32", sA, sA, 16 * KB)
        e.S("s_add_u32", sOoh, sXr, sA)
        e.S("s_mul_i32", sA, sC, 3 * KB)
        e.S("s_add_u32", sOh, sHr, sA)
        e.S("s_lshl_b32", sA, sC, 9)
        e.S("s_add_u32", sA, sA, 48 * KB)
        e.S("s_add_u32", sOhh, sHr, sA)
        e.S("s_mul_i32", sKv, sC, 16 * KVSZ)
        e.misc(f"s_getreg_b32 {sX1}, hwreg(HW_REG_XCC_ID, 0, 4)")
        e.S("s_and_b32", sX1, sX1, 7)
        e.S("s_add_u32", sX1, sX1, 8)
        e.S("s_add_u32", sX1, sX1, sBase)
        e.S("s_mov_b32", sLocal, 0)
        U, Hh, Ee, Dq = T0, T1, T2, T3
        e.S("s_mov_b32", sA, 52429)
        e.V("v_mul_u32_u24", U, sA, v(0))
        e.V("v_lshrrev_b32", U, 18, U)
        e.V("v_mul_u32_u24", Dq, 5, U)
        e.V("v_sub_u32", Dq, v(0), Dq)
        e.V("v_cmp_le_u32", VCC, 21, U)
        e.V("v_cndmask_b32", Hh, 0, 1, VCC)
        e.V("v_mul_u32_u24", Ee, 21, Hh)
        e.V("v_sub_u32", Ee, U, Ee)
        A0, A1, A2, A3 = TMP[46], TMP[47], TMP[38], TMP[39]
        e.V("v_cmp_le_u32", s(100, 2), 16, Ee)
        e.V("v_cmp_eq_u32", s(88, 2), 4, Dq)
        e.V("v_cndmask_b32", A0, 0, 1, s(100, 2))
        e.V("v_lshl_add_u32", A0, Hh, 1, A0)
        e.V("v_add_u32", A1, 4, Hh)
        e.V("v_cndmask_b32", A1, A1, 6, s(100, 2))
        e.V("v_cndmask_b32", A0, A0, A1, s(88, 2))
        e.V("v_cndmask_b32", A1, Dq, Hh, s(88, 2))
        e.V("v_lshl_add_u32", A2, Hh, 2, Ee)
        e.V("v_subrev_u32", A2, 8, A2)
        e.V("v_cndmask_b32", A2, Ee, A2, s(100, 2))
        e.V("v_cmp_eq_u32", VCC, 20, Ee)
        e.V("v_cndmask_b32", A2, A2, 0, VCC)
        e.V("v_lshl_add_u32", A1, A1, 4, A2)
        e.V("v_lshlrev_b32", A1, 4, A1)
        e.V("v_lshl_add_u32", vKvSrc, A0, 10, A1)
        e.V("v_mul_u32_u24", A0, 5, Hh)
        e.V("v_add_u32", A0, A0, Dq)
        e.V("v_cmp_le_u32", s(88, 2), 8, A0)
        e.V("v_lshrrev_b32", A1, 1, A0)
        e.V("v_subrev_u32", A2, 8, A0)
        e.V("v_cndmask_b32", A1, A1, A2, s(88, 2))
        e.V("v_and_b32", A2, 1, A0)
        e.V("v_cndmask_b32", A2, A2, 0, s(88, 2))
        e.V("v_lshlrev_b32", A2, 3, A2)
        e.V("v_cndmask_b32", A0, 0, 1, s(88, 2))
        e.V("v_lshl_add_u32", A3, Hh, 1, A0)
        e.V("v_lshl_add_u32", A3, A3, 2, A1)
        e.V("v_lshl_add_u32", A3, A3, 4, A2)
        e.V("v_add_u32", A3, ZT, A3)
        e.V("v_mul_u32_u24", T4, 20, Hh)
        e.V("v_add_u32", T4, T4, Ee)
        e.V("v_cmp_le_u32", s(100, 2), 32, T4)
        e.V("v_and_b32", T5, 1, T4)
        e.V("v_cndmask_b32", T5, T5, 2, s(100, 2))
        e.V("v_lshl_add_u32", A0, T5, 1, A0)
        e.V("v_lshrrev_b32", T5, 1, T4)
        e.V("v_subrev_u32", T4, 32, T4)
        e.V("v_cndmask_b32", T4, T5, T4, s(100, 2))
        e.V("v_lshl_add_u32", T4, A1, 4, T4)
        e.V("v_lshl_add_u32", T4, T4, 4, A2)
        e.V("v_lshl_add_u32", T4, A0, 10, T4)
        e.V("v_cndmask_b32", T4, T4, A3, VCC)
        e.V("v_cmp_gt_u32", VCC, 210, v(0))
        e.V("v_mov_b32", T5, DUMMY)
        e.V("v_cndmask_b32", vKvDst, T5, T4, VCC)
        e.V("v_cndmask_b32", vKvSrc, 0, vKvSrc, VCC)
        e.V("v_lshlrev_b32", T4, 3, v(0))
        e.V("v_mov_b32", T5, BIG)
        e.V("v_cndmask_b32", vT16, T5, T4, VCC)
        e.V("v_and_b32", T4, -16, T4)
        e.V("v_and_b32", T0, 1, v(0))
        e.V("v_mul_u32_u24", T0, 8 * KVSZ, T0)
        e.V("v_add_u32", T4, T4, T0)
        e.V("v_cndmask_b32", vT16L, T5, T4, VCC)

    def late_loads(self):
        e = self.e
        T4, T5 = TMP[48], TMP[49]
        e.S("s_mul_i32", sB, sCG, 160)
        e.bload(RES[10:14], vOut, XIN, 0, 0)
        e.bload(RES[14:18], vOut, XIN, 0, 64)
        e.bload(RES[18:20], vOut4, XIN, 0, 128)
        skip = e.newlabel("noxid")
        e.S("s_cmp_lg_u32", sWave, 3)
        e.branch("s_cbranch_scc1", skip)
        e.cond_begin()
        e.S("s_lshl_b32", sA, sR, 8)
        e.S("s_add_u32", sA, sA, FLG_X)
        e.S("s_lshl_b32", sB, sC, 2)
        e.V("v_mov_b32", T4, sB)
        e.V("v_mov_b32", T5, sX1)
        e.S("s_mov_b64", EXEC, 1)
        e.bstore(T5, T4, WS, sA, 0, "sc1")
        e.S("s_mov_b64", EXEC, -1)
        e.cond_end()
        e.label(skip)

    def unpack(self, dst, pk):
        e = self.e
        for a_ in range(2):
            for j in range(4):
                e.V("v_lshlrev_b32", dst[8 * a_ + j], 16, pk[4 * a_ + j])
                e.V("v_and_b32", dst[8 * a_ + 4 + j], "0xffff0000", pk[4 * a_ + j])
        for j in range(2):
            e.V("v_lshlrev_b32", dst[16 + 2 * j], 16, pk[8 + j])
            e.V("v_and_b32", dst[16 + 2 * j + 1], "0xffff0000", pk[8 + j])

    class ALoad:
        def __init__(self, m, vaddr, terms, nks):
            self.m, self.vaddr, self.terms, self.nks = m, vaddr, terms, nks
            self.n = 0
            self.based = -1
            self.done = False
            self.win = 20

        def step(self):
            e = self.m.e
            ks, u = divmod(self.n, 2)
            if ks // 4 != self.based:
                self.based = ks // 4
                e.S("s_add_u32", sLd, self.terms[0], self.terms[1] + (ks // 4) * 4 * KB)
                return False
            e.bload(a((self.n % 40) * 4, 4), self.vaddr[u], WS, sLd, (ks % 4) * KB, self.m.opt.get("amod", "sc1"), cls=(self.m.opt.get("latA", 600), 76, 33 if self.nks == 27 else 16))
            self.n += 1
            self.done = self.n >= 2 * self.nks
            return True

        def upto(self, ks):
            while self.n < 2 * min(ks + 1, self.nks):
                self.step()

    def stats_loads(self, ver):
        e = self.e
        e.S("s_add_u32", sA, sSTr, STB[ver])
        for u in range(2):
            for k in range(2):
                e.bload(TMP[4 * u + 2 * k:4 * u + 2 * k + 2], vSt, WS, sA, k * 1024 + u * 128, "sc1", cls=(600, 20, 0))

    def stats_gen(self, need_T, have=False):
        e = self.e
        for u in range(2):
            sm, sq, t0, t1 = TMP[4 * u], TMP[4 * u + 1], TMP[4 * u + 2], TMP[4 * u + 3]
            if not have:
                e.V("v_add_f32", sm, sm, t0); yield
                e.V("v_add_f32", sq, sq, t1); yield
            for op in () if have else ("v_permlane32_swap_b32", "v_permlane16_swap_b32"):
                e.V("v_mov_b32", t0, sm); yield
                e.V("v_mov_b32", t1, sq); yield
                e.V(op, sm, t0); yield
                e.V(op, sq, t1); yield
                e.V("v_add_f32", sm, sm, t0); yield
                e.V("v_add_f32", sq, sq, t1); yield
            e.V("v_mul_f32", sm, lit(1.0 / D), sm); yield
            e.V("v_mul_f32", t0, sm, sm); yield
            e.V("v_fma_f32", sq, sq, self.cInvD, Neg(t0)); yield
            e.V("v_max_f32", sq, 0, sq); yield
            e.V("v_add_f32", sq, lit(1e-5), sq); yield
            e.V("v_rsq_f32", t0, sq); yield
            e.V("v_cvt_pk_bf16_f32", XE[u][0], sm, sm); yield
            e.V("v_mul_f32", sq, sq, t0); yield
            e.ds_write(vRW, t0, 64 * u); yield
            c2 = vC2 if u == 0 else vC2b
            e.V("v_mul_f32", c2[0], lit(LOG2E), t0); yield
            e.V("v_lshlrev_b32", t1, 16, XE[u][0]); yield
            e.V("v_sub_f32", sm, sm, t1); yield
            e.V("v_cvt_pk_bf16_f32", XE[u][1], sm, sq); yield
            e.V("v_and_b32", t1, "0xffff0000", XE[u][1]); yield
            e.V("v_sub_f32", t1, sq, t1); yield
            e.V("v_cvt_pk_bf16_f32", XE[u][3], sm, t1); yield
            e.V("v_mov_b32", XE[u][2], XE[u][0]); yield
        if need_T:
            for u in range(2):
                e.ds_read(RT[4 * u:4 * u + 4], vRT, 64 * u); yield

    def phi_pair(self, src, c2, bcast, t):
        e = self.e
        m = "op_sel_hi:[1,0]" if bcast else ""
        e.V("v_pk_mul_f32", t[0:2], src, c2, mods=m)
        e.V("v_exp_f32_e64", t[2], t[0], mods="clamp")
        e.V("v_exp_f32_e64", t[3], t[1], mods="clamp")
        e.V("v_max_f32", t[0], 0, t[0])
        e.V("v_max_f32", t[1], 0, t[1])
        e.V("v_pk_add_f32", t[2:4], t[2:4], vEps, mods="op_sel_hi:[1,0]")
        e.V("v_pk_fma_f32", t[0:2], t[0:2], vLn2, t[2:4], mods="op_sel_hi:[1,0,1]")

    def scratch(self, nblk, endpos):
        st = endpos - nblk
        if (st % RB) + nblk > RB:
            st = endpos - (endpos % RB) - nblk
        self.last_scratch = (st, st + nblk)
        return st, self.ldsaddr(st)

    def bg_on(self, tail):
        e = self.e
        st = {"next": 0}
        t_end = e.T + tail
        self.deadline = lambda: t_end

        def f():
            if e.T >= st["next"] and self.dma_ok():
                n0 = len(e.vm) + len(e.lg) + len(self.deferred)
                while len(e.vm) + len(e.lg) + len(self.deferred) == n0:
                    next(self.dmaf)
                st["next"] = e.T + self.opt.get("vgap", 24)
        self.e.bg = f

    def code_touch(self, ahead=None):
        e = self.e
        if not self.opt.get("ctouch", 1):
            return
        lab = e.newlabel("here")
        e.label(lab)
        ahead = self.opt.get("cahead", 2048) if ahead is None else ahead
        e.V("v_lshlrev_b32", v(51), 5, v(0))
        e.V("v_add_u32", v(51), f"{lab}-{self.kname}+{ahead}", v(51))
        e.V("v_min_u32", v(51), self.opt.get("code_bytes", 32768) - 4, v(51))
        e.misc(f"global_load_dword {vDum}, {v(51)}, s[96:97]")
        e._vm([], (800, 30, 10))

    def at_block(self, t, gen):
        i0 = self.cons
        while self.cons < i0 + t:
            yield "idle"
        yield from gen

    def delay(self, n, gen):
        for _ in range(n):
            yield "idle"
        yield from gen

    def code_touch_gen(self):
        self.code_touch(self.opt.get("cahead", 512))
        yield

    def bg_off(self):
        self.e.bg = None

    def gstore(self, lst, cold=False):
        e = self.e
        mode = self.opt.get("mode", "dual")
        if cold and not self.opt.get("touchcold", 0):
            mode = "safe"
        if mode != "dual":
            return [e.bstore(d, vo, WS, so, off, "sc1" if mode == "safe" else "") for d, vo, so, off in lst]
        ls, le = e.newlabel("st_safe"), e.newlabel("st_end")
        regs = []
        for d, vo, so, off in lst:
            regs += d.regs() + vo.regs()
        e.wait_ops(e._pending(regs))
        e.S("s_cmp_eq_u32", sLocal, 0)
        need = e._need("vmem", regs, [])
        if need > 1:
            e.nop(need - 1)
        e.branch("s_cbranch_scc1", ls)
        n0 = len(e.lines)
        ops = [e.bstore(d, vo, WS, so, off, "") for d, vo, so, off in lst]
        body = e.lines[n0:]
        assert len(body) == len(lst), body
        e.raw(f"  s_branch {le}")
        e.label(ls)
        for l in body:
            e.raw(l + " sc1")
        e.label(le)
        return ops

    def touch_gen(self, lst, cold=False):
        e = self.e
        if (cold and not self.opt.get("touchcold", 0)) or not self.opt.get("touch", 0):
            return
        for vo, sb, add, off in lst:
            e.S("s_add_u32", sE, sb, add); yield
            e.touch(vDum, vo, WS, sE, off, cls=(750, 80, 30)); yield

    def local_gen(self):
        e = self.e
        e.S("s_lshl_b32", s(6), sR, 8); yield
        e.S("s_add_u32", s(6), s(6), FLG_X); yield
        e.bload(TMP[39], vFl, WS, s(6), 0, "sc1"); yield
        for _ in range(40):
            yield "idle"
        e.V("v_cmp_ne_u32", VCC, sX1, TMP[39]); yield
        e.S("s_cmp_eq_u64", VCC, 0)
        e.S("s_cselect_b32", sLocal, 1, 0); yield

    def poll(self, kind, val):
        e = self.e
        skip = e.newlabel("nopoll")
        loop = e.newlabel("poll")
        e.S("s_cmp_lg_u32", sWave, 0)
        e.branch("s_cbranch_scc1", skip)
        e.cond_begin()
        t = TMP[38]
        e.S("s_mov_b32", sCnt, 0)
        e.S("s_mov_b64", sOk, 0)
        e.S("s_add_u32", sB, sBase, val)
        va, vb, sa, sb = (vFl, vFl, sFRL, sFRG) if kind != "col" else (vFl, vFl, sFC, sFC)
        if kind == "both":
            va, vb, sa, sb = TMP[36], TMP[37], 0, 0
            e.V("v_cmp_gt_u32", VCC, 2, vG)
            e.V("v_mov_b32", va, sFC)
            e.V("v_mov_b32", vb, sFRL)
            e.V("v_cndmask_b32", va, vb, va, VCC)
            e.V("v_add_u32", va, va, vFl)
            e.V("v_mov_b32", vb, FLG_RG - FLG_RL)
            e.V("v_cndmask_b32", vb, vb, 0, VCC)
            e.V("v_add_u32", vb, va, vb)
        if kind == "row":
            e.S("s_cmp_eq_u32", sLocal, 0)
            e.S("s_cselect_b32", sD, 3, -1)
        else:
            e.S("s_mov_b32", sD, 3)
        e.label(loop)

        def chk():
            e.misc("s_waitcnt vmcnt(0)")
            e.misc(f"v_subrev_u32 {t}, {sB}, {t}")
            e.misc(f"v_cmp_ge_u32 vcc, 1, {t}")
            e.misc(f"s_or_b64 {sOk}, {sOk}, vcc")
            e.misc(f"s_cmp_eq_u64 {sOk}, -1")
            e.misc(f"s_cbranch_scc1 {skip}")
        e.misc(f"buffer_load_dword {t}, {va}, {WS}, {sa} offen sc1")
        e.misc("s_add_u32 %s, %s, 1" % (sCnt, sCnt))
        chk()
        if kind != "row":
            e.misc("s_sleep 3")
        lnext = e.newlabel("pollnext")
        e.misc(f"s_and_b32 {sA}, {sCnt}, {sD}")
        e.misc(f"s_cbranch_scc1 {lnext}")
        e.misc(f"buffer_load_dword {t}, {vb}, {WS}, {sb} offen sc1")
        chk()
        e.label(lnext)
        e.misc(f"s_cmp_lt_u32 {sCnt}, 0x80000")
        e.misc(f"s_cbranch_scc1 {loop}")
        e.cond_end()
        e.label(skip)

    def flag(self, kind, val, t0=TMP[37], t1=TMP[38]):
        e = self.e
        lst = [(1, sFRG, "sc1", sC), (2, sFRL, "", sC)] if kind != "col" else []
        if kind != "row":
            lst.append((3, sFC, "sc1", sR))
        for w, sb, m, sidx in lst:
            skip = e.newlabel("noflag")
            if w == 1 and self.opt.get("skipg", 1):
                e.S("s_lshl_b32", sA, sLocal, 2)
                e.S("s_add_u32", sA, sA, sWave)
                e.S("s_cmp_lg_u32", sA, w)
            else:
                e.S("s_cmp_lg_u32", sWave, w)
            e.branch("s_cbranch_scc1", skip)
            e.cond_begin()
            e.S("s_lshl_b32", sA, sidx, 2)
            e.V("v_mov_b32", t0, sA)
            e.S("s_add_u32", sA, sBase, val)
            e.V("v_mov_b32", t1, sA)
            e.S("s_mov_b64", EXEC, 1)
            e.bstore(t1, t0, WS, sb, 0, m)
            e.S("s_mov_b64", EXEC, -1)
            e.cond_end()
            e.label(skip)

    def handoff(self, val, ops, shadow=None, touch=()):
        e = self.e
        t_st = e.T
        hk = (val - 2) % 4
        pick = lambda name, d: self.opt[name + "s"][hk] if name + "s" in self.opt else self.opt.get(name, d)
        self.deadline = lambda: t_st + pick("topup", 2600)
        self.own_end = 0
        while self.dma_ok():
            next(self.dmaf)
        while self.stage_step():
            pass
        self.finish_stage()
        self.restore(self.opt.get("rest1", 2))
        e.wait_all_lg()
        self.ring_barrier(self.cons + FI + self.opt.get("ahead", 16), ops)
        self.hold = None
        self.flag("row", val)
        self.stamp("flag")
        t_flag = e.T
        if self.opt.get("post_touch", 0):
            for k, (vo, sb, add, off) in enumerate(touch):
                sr = sE if k % 2 else sD
                e.S("s_add_u32", sr, sb, add)
                e.touch(vDum, vo, WS, sr, off, "sc1", cls=(750, 66, 30))
        self.deadline = lambda: t_flag + pick("topup2", 1500)
        while self.dma_ok():
            next(self.dmaf)
        while self.stage_step():
            pass
        self.finish_stage()
        self.warn.append(f"staged {len(self.staged)}")
        self.stage_plan = []
        self.prime()
        self.restore(self.opt.get("rest2", 8) if hk == 3 else 99)
        self.restg = self.restore_gen(99)
        if shadow:
            shadow()
        self.poll("row", val)
        e.T = max(e.T, t_flag + 1000)
        e.barrier()
        self.stamp("go")

    def phaseA(self, p):
        e = self.e
        opt = self.opt
        xv = 2 * p
        acc = lambda T, u: ACC[(T * 2 + u) * 4:(T * 2 + u) * 4 + 4]
        xf = lambda ks, u: a((ks * 2 + u) * 4, 4) if ks < 20 else XE[u]
        if p == 0:
            e.S("s_mov_b32", sSel[0], "0x00003f80")
            e.S("s_mov_b32", sSel[1], "0x3f800000")
            e.S("s_mov_b32", sOdd[0], "0xaaaaaaaa")
            e.S("s_mov_b32", sOdd[1], "0xaaaaaaaa")
            e.S("s_getpc_b64", s(96, 2))
            e.label("main_pc2")
            e.S("s_sub_u32", s(96), s(96), "main_pc2-" + self.kname)
            e.S("s_subb_u32", s(97), s(97), 0)
            for _ in range(opt.get("first_groups", 6 if self.al0 else 3)):
                for _ in self.dma_group():
                    pass
        if p == 0 and self.al0:
            al = None
            for _ in self.stats_gen(True):
                pass
            fl0 = [iter(())]
        else:
            al = self.ALoad(self, vAx, (sXr, XB[xv]), 20)
            al.upto(opt.get("adist", 4) - 1)
            self.stats_loads(xv)
            fl0 = [self.delay(opt.get("stdelay", 24), self.stats_gen(True))]
        sc_keep = self.last_scratch
        if p:
            fl0.append(self.restg)
        if p == 0:
            if opt.get("r2st", 2) == 0:
                self.r2_stores()
                self.late_loads()
            e.wait_all_lg()
            if opt.get("r2st", 2) == 2:
                self.ring_barrier(FI + 8, self.ops2)
                self.flag("col", 2)
                fl0.append(self.at_block(opt.get("w2at", 60), self.w2_gen()))
            else:
                self.ring_barrier(FI + 8)
            self.prime()
            self.stamp("start")
            if opt.get("keep", 12):
                self.capg = self.capture_gen(opt.get("keep0", 3), opt.get("keep", 12))
                next(self.capg)
                fl0.append(self.capg)
        st1 = {}

        def hook1(t):
            if t >= opt.get("w2flag_at", 30) and not st1.get("done"):
                st1["done"] = t
                return self.ops2, (lambda: self.flag("col", 2))
            return [], None

        def add1(t):
            if st1.get("done") and t >= opt.get("w2chk_at", 70) and not st1.get("chk"):
                st1["chk"] = True
                return self.w2_gen()
        i0 = self.seqstart[("A1", p)]
        fb = 102
        sst, sad = self.scratch(28, self.seq[i0 + fb][0])
        self.last_scratch = sc_keep
        self.hold = sst

        C2T = ACC[40:48]

        def pre_gen(first):
            while first.gi_frame is not None:
                yield "idle"
            e.S("s_mul_i32", s(7), sWave, 7168); yield
            e.S("s_add_u32", s(7), s(7), sad); yield
            e.V("v_add_u32", TMP[24], s(7), vL16); yield
            e.V("v_add_u32", TMP[25], sad, vKvSrc); yield
            e.S("s_mul_i32", s(7), sR, KVSZ); yield
            e.S("s_add_u32", s(7), s(7), sKv); yield
            e.S("s_add_u32", s(7), s(7), KVB[p]); yield
            for _ in range(8):
                yield "idle"
            for j in range(8):
                e.V("v_mul_f32", C2T[j], lit(LOG2E), RT[j]); yield
        fl0.append(pre_gen(fl0[0]))

        def must_gen():
            yield from fl0[0]
            yield from fl0[-1]
            while self.capg and self.cap_next < sst + 28:
                next(self.capg)
                yield

        def mf(t, W, u):
            ks, T = divmod(t, 5)
            e.mfma(acc(T, u), xf(ks, u), W, acc(T, u) if ks else 0)
        self.run_pass(105, mf, 5, xf, fl0, must=must_gen(), chunk=(8 if p == 0 else 24), stop_reads=self.seqstart[("A4", p)], aload=al,
                      force_bar=fb, tail=6000, mix=opt.get("mixA", 0) if p else 0,
                      late=(60, self.touch_gen([(vAx[0], sOo, OB[p], 0), (vAx[1], sOo, OB[p], 0), (vOh, sOoh, OB[p], 0), (vOh, sOoh, OB[p] + 20 * KB, 0)], p == 0)), hooks={"bar": hook1, "add": add1} if (p == 0 and opt.get("r2st", 2) == 0) else None)
        if p == 0 and opt.get("r2st", 2) == 1:
            self.dma_all()
            self.r2_stores()
            self.late_loads()
        assert sst + 28 <= self.freed and sst + 28 <= self.cap_hold, (sst, self.cap_hold)
        self.stamp("A1")
        self.bg_on(5000)
        KF = [TMP[8:12], TMP[12:16], TMP[16:20]]
        VF = {3: TMP[20:24], 4: ACC[56:60], 2: ACC[60:64]}
        tt = [ACC[48:52], ACC[52:56]]
        TA0, TA1 = TMP[24], TMP[25]
        n = 0
        for T in range(3):
            for u in range(2):
                for h in range(2):
                    t = tt[n % 2]
                    n += 1
                    self.phi_pair(acc(T, u)[2 * h:2 * h + 2], C2T[4 * u + 2 * h:4 * u + 2 * h + 2], False, t)
                    e.V("v_cvt_pk_bf16_f32", KF[T][2 * u + h], t[0], t[1])
        for T in (3, 4, 2):
            for u in range(2):
                for h in range(2):
                    x = acc(T, u)[2 * h:2 * h + 2]
                    e.V("v_pk_mul_f32", x, x, RT[4 * u + 2 * h:4 * u + 2 * h + 2])
            for u in range(2):
                for h in range(2):
                    x = acc(T, u)[2 * h:2 * h + 2]
                    e.V("v_cvt_pk_bf16_f32", VF[T][2 * u + h], x[0], x[1])
        for j in range(4):
            e.V("v_cndmask_b32", VF[2][j], VF[2][j], vOne, sMaskV)
        PR = [ACC[4 * i:4 * i + 4] for i in range(7)]
        prods = [(0, 3), (0, 2), (1, 4), (1, 2), (2, 3), (2, 4), (2, 2)]
        for i, (kt, vt) in enumerate(prods):
            e.mfma(PR[i], KF[kt], VF[vt], 0)
        for i in range(7):
            e.ds_write(TA0, PR[i], i * 1024)
        e.wait_all_lg()
        e.barrier()
        RD = [ACC[4 * w:4 * w + 4] for w in range(4)]
        for w in range(4):
            e.ds_read(RD[w], TA1, w * 7168)
        for h in range(2):
            e.V("v_pk_add_f32", RD[0][2 * h:2 * h + 2], RD[0][2 * h:2 * h + 2], RD[1][2 * h:2 * h + 2])
            e.V("v_pk_add_f32", RD[2][2 * h:2 * h + 2], RD[2][2 * h:2 * h + 2], RD[3][2 * h:2 * h + 2])
        for h in range(2):
            e.V("v_pk_add_f32", RD[0][2 * h:2 * h + 2], RD[0][2 * h:2 * h + 2], RD[2][2 * h:2 * h + 2])
        e.V("v_cvt_pk_bf16_f32", RD[1][0], RD[0][0], RD[0][1])
        e.V("v_cvt_pk_bf16_f32", RD[1][1], RD[0][2], RD[0][3])
        kvst = e.bstore(RD[1][0:2], vT16, WS, s(7), 0, "sc1")
        self.bg_off()
        self.stamp("kvpub")
        PL = [ACC[4 * i:4 * i + 4] for i in range(10)]

        st2 = {}

        def barhook(t):
            def rel():
                self.hold = None

            def relflag():
                self.hold = None
                self.flag("col", 2)
            if p == 0 and opt.get("r2st", 2) == 1 and not st2.get("done") and t >= opt.get("w2flag2_at", 12):
                st2["done"] = True
                return self.ops2, relflag
            return [], rel

        def kvloads():
            for i in range(8):
                if i % 2 == 0:
                    e.S("s_add_u32", sB, sKv, KVB[p] + i * KVSZ); yield
                e.bload(PL[i], vT16L, WS, sB, (i % 2) * KVSZ, "sc1", cls=(opt.get('kvlat', 800), 80, opt.get('kvsvc', 130))); yield

        def kvsum():
            SM = PL[8:10]
            for i in range(8):
                for d in range(4):
                    for h in range(2):
                        x = SM[d >> 1][2 * (d & 1) + h]
                        if i == 0:
                            e.V("v_dot2_f32_bf16", x, PL[i][d], sSel[h], 0)
                        else:
                            e.V("v_dot2c_f32_bf16", x, sSel[h], PL[i][d])
            for d in range(8):
                x = SM[d >> 2][d & 3]
                e.V("v_add_f32_dpp", x, x, x, mods="quad_perm:[1,0,3,2] row_mask:0xf bank_mask:0xf")
            for d in range(4):
                e.V("v_cndmask_b32", PL[0][d], SM[0][d], SM[1][d], sOdd)
            e.V("v_cmp_u_f32", VCC, PL[0][0], PL[0][1])
            e.V("v_cmp_u_f32", sNan, PL[0][2], PL[0][3])
            e.S("s_or_b64", VCC, VCC, sNan)

        def mfq(t, W, u):
            ks, T = divmod(t, 3)
            e.mfma(acc(5 + T, u), W, xf(ks, u), acc(5 + T, u) if ks else 0)
        self.lastbar = self.rd - 8
        fl = []
        if p == 0:
            fl = [self.local_gen()] + ([self.capg] if self.capg else [])
        self.run_pass(63, mfq, 3, xf, fl, stop_reads=self.seqstart[("A4", p)], hooks={"bar": barhook},
                      late=(opt.get("kvload_at", 40), kvloads()), see_all=True, force_bar=61, tail=1600 + self.opt.get("slack", 2400))
        if self.capg:
            n_ = 0
            for _ in self.capg:
                n_ += 1
                assert n_ < 1000
            self.capg = None
        self.stamp("A2")
        if p == 0 and opt.get("r2st", 2) == 1:
            assert st2.get("done")
            w2 = self.w2_gen()
            while next(w2) != "idle":
                pass
        if opt.get("qbg", 1):
            self.bg_on(1600 + self.opt.get("slack", 2400))
        PQ0 = [TMP[0:4], TMP[4:8]]
        PQ1 = [TMP[8:12], TMP[12:16]]
        tq = [TMP[16:20], TMP[20:24]]
        for u in range(2):
            c2 = vC2 if u == 0 else vC2b
            for h in range(2):
                self.phi_pair(acc(5, u)[2 * h:2 * h + 2], c2, True, tq[0])
                self.phi_pair(acc(6, u)[2 * h:2 * h + 2], c2, True, tq[1])
                e.V("v_cvt_pk_bf16_f32", PQ0[u][2 * h], tq[0][0], tq[1][0])
                e.V("v_cvt_pk_bf16_f32", PQ0[u][2 * h + 1], tq[0][1], tq[1][1])
            for h in range(2):
                self.phi_pair(acc(7, u)[2 * h:2 * h + 2], c2, True, tq[h])
                e.V("v_cvt_pk_bf16_f32", PQ1[u][h], tq[h][0], tq[h][1])
            e.V("v_mov_b32", PQ1[u][2], 0)
            e.V("v_mov_b32", PQ1[u][3], 0)
        self.bg_off()
        self.stamp("qepi")
        kvsum()
        lok, lre = e.newlabel("kvok"), e.newlabel("kvretry")
        e.branch("s_cbranch_scc0", lok)
        e.cond_begin()
        e.S("s_mov_b32", sCnt, 0)
        e.label(lre)
        e.misc("s_sleep 4")
        for _ in kvloads():
            pass
        kvsum()
        e.branch("s_cbranch_scc0", lok)
        e.S("s_add_u32", sCnt, sCnt, 1)
        e.S("s_cmp_lt_u32", sCnt, 0x10000)
        e.branch("s_cbranch_scc1", lre)
        e.cond_end()
        e.label(lok)
        self.stamp("kvgo")
        if p == 0 and opt.get("r2st", 2) == 1:
            for _ in w2:
                pass

        self.bg_on(900 + self.opt.get("slack", 2400))
        e.V("v_cvt_pk_bf16_f32", TMP[16], PL[0][0], PL[0][1])
        e.V("v_cvt_pk_bf16_f32", TMP[17], PL[0][2], PL[0][3])
        e.ds_write(vKvDst, TMP[16:18])
        e.wait_all_lg()
        e.barrier()
        FR = [ACC[40 + 4 * i:44 + 4 * i] for i in range(6)] + [TMP[16 + 4 * i:20 + 4 * i] for i in range(4)]
        for T in range(3):
            for ks in range(2):
                e.ds_read(FR[T * 2 + ks], vL16, IMG + (T * 2 + ks) * KB)
        for ks in range(2):
            e.ds_read(FR[6 + ks], vZ01, ks * 64)
            e.ds_read(FR[8 + ks], vZ2, ks * 64)
        oa = lambda T, u: ACC[(T * 2 + u) * 4:(T * 2 + u) * 4 + 4]
        ops = []

        def norm(u, packed):
            den = (oa(3, u)[0], oa(3, u)[2], oa(4, u)[0])
            for x in den:
                e.V("v_add_f32", x, vEps[0], x); yield
            for x in den:
                e.V("v_rcp_f32", x, x); yield
            for T in range(3):
                for h in range(2):
                    x = oa(T, u)[2 * h:2 * h + 2]
                    dn = oa(3, u)[2 * h:2 * h + 2] if T < 2 else oa(4, u)[0:2]
                    if packed:
                        e.V("v_pk_mul_f32", x, x, dn, mods="op_sel_hi:[1,0]"); yield
                    else:
                        e.V("v_mul_f32", x[0], x[0], dn[0]); yield
                        e.V("v_mul_f32", x[1], x[1], dn[0]); yield
            o4 = TMP[8 * u:8 * u + 4] if False else RT[4 * u:4 * u + 4]
            o2 = XE[u][0:2]
            for j in range(4):
                e.V("v_cvt_pk_bf16_f32", o4[j], oa(0, u)[j], oa(1, u)[j]); yield
            for h in range(2):
                e.V("v_cvt_pk_bf16_f32", o2[h], oa(2, u)[2 * h], oa(2, u)[2 * h + 1]); yield
            ops.extend(self.gstore([(o4, vAx[u], sA, 0), (o2, vOh, sB if u == 0 else sD, 0)], p == 0 or opt.get("osafe")))
            yield
        bg, e.bg = e.bg, None
        order = [(T, k) for k in range(2) for T in (3, 4, 0, 1, 2)]
        for T, k in order:
            e.mfma(oa(T, 0), FR[2 * T + k], (PQ0, PQ1)[k][0], oa(T, 0) if k else 0)
        e.S("s_add_u32", sA, sOo, OB[p])
        e.S("s_add_u32", sB, sOoh, OB[p])
        g0 = norm(0, False)
        for n_, (T, k) in enumerate(order):
            e.mfma(oa(T, 1), FR[2 * T + k], (PQ0, PQ1)[k][1], oa(T, 1) if k else 0)
            if n_ == 0:
                e.S("s_add_u32", sD, sOoh, OB[p] + 20 * KB)
            elif n_ < 9:
                next(g0)
                if n_ not in (2, 3):
                    next(g0)
        e.bg = bg
        for _ in g0:
            pass
        for _ in norm(1, True):
            pass
        self.bg_off()
        self.stamp("A3")
        def shadow():
            e.S("s_mul_i32", sB, sCG, 160)
            e.V("v_lshl_add_u32", TMP[2], vG, 4, sB)
            e.V("v_lshl_add_u32", TMP[3], vG, 3, sB)
            e.bload(ACC[40:44], TMP[2], SB2, 0, 0, cls=(800, 20, 0))
            e.bload(ACC[44:48], TMP[2], SB2, 0, 64, cls=(800, 20, 0))
            e.bload(ACC[48:50], TMP[3], SB2, 0, 128, cls=(800, 20, 0))
            if p == 0:
                self.unpack(RES, RES[10:20])
        self.handoff(4 * p + 2, ops, shadow, [(vAx[0], sOo, OB[p], 0), (vAx[1], sOo, OB[p], 0), (vOh, sOoh, OB[p], 0), (vOh, sOoh, OB[p] + 20 * KB, 0)])

    def phase64(self, p, kind):
        e = self.e
        opt = self.opt
        nks = 10 if kind == "O" else 27
        name = "A4" if kind == "O" else "B2"
        acc = lambda T, u: ACC[(u * 5 + T) * 4:(u * 5 + T) * 4 + 4]
        if kind == "O":
            al = self.ALoad(self, vAo, (sXr, OB[p]), nks)
        else:
            al = self.ALoad(self, vAh, (sHr, HB[p]), nks)
        al.upto(opt.get("adist", 4) - 1)
        xf = lambda ks, u: a(((ks % 20) * 2 + u) * 4, 4)
        if kind == "C":
            e.ds_read(TMP[2], vRF)
        i0 = self.seqstart[(name, p)]
        fb = 5 * nks - 3
        sst, sad = self.scratch(20, self.seq[i0 + fb][0])
        self.hold = sst
        stop = i0 + 5 * nks

        def mf(t, W, u):
            ks, T = divmod(t, 5)
            u = 1 - u
            c0 = RES[4 * T:4 * T + 4] if (kind == "O" and u == 0) else 0
            e.mfma(acc(T, u), W, xf(ks, u), acc(T, u) if ks else c0)

        def addr_gen():
            e.V("v_add_u32", TMP[0], sad, vXch); yield
            e.S("s_xor_b32", sA, sWave, 1); yield
            e.S("s_mul_i32", sA, sA, 5120); yield
            e.S("s_add_u32", sA, sA, sad); yield
            e.V("v_add_u32", TMP[1], sA, vL16); yield
            if kind == "C":
                e.V("v_mul_f32", TMP[2], TMP[2], TMP[2]); yield
            if not last:
                e.S("s_add_u32", sA, sOx, XB[xv]); yield
                e.S("s_add_u32", sB, sOxh, XB[xv]); yield
                e.S("s_add_u32", sD, sOst, STB[xv]); yield
        last = kind == "C" and p == 1
        xv = 2 * p + (1 if kind == "O" else 2)
        tg = None if last else (0, self.touch_gen([(vXs, sOx, XB[xv], 0), (vXs, sOx, XB[xv], 1024), (vXh, sOxh, XB[xv], 0), (vStW, sOst, STB[xv], 0)]))
        fl = [self.delay(20, addr_gen())]
        self.run_pass(5 * nks, mf, 5, xf, fl, late=tg, force_bar=fb, chunk=(opt.get("chunkO", 12) if kind == "O" else opt.get("chunkC", 12)), stop_reads=stop, aload=al,
                      mix=opt.get("mixO", 0) if kind == "O" else 0, tail=900 + self.opt.get("slack", 2400))
        self.stamp(name)
        self.bg_on(900 + self.opt.get("slack", 2400))
        assert sst + 20 <= self.freed
        for T in range(5):
            e.ds_write(TMP[0], acc(T, 1), T * KB)
        e.wait_all_lg()
        e.barrier()
        PT = TMP[4:24]
        for T in range(5):
            e.ds_read(PT[4 * T:4 * T + 4], TMP[1], T * KB)
        own = ACC[0:20]
        for h in range(10):
            x = own[2 * h:2 * h + 2]
            e.V("v_pk_add_f32", x, x, PT[2 * h:2 * h + 2])
            if kind == "C":
                e.V("v_pk_fma_f32", x, x, TMP[2:4], RES[2 * h:2 * h + 2], mods="op_sel_hi:[1,0,1]")
        PK = TMP[24:34]
        for a_ in range(2):
            for j in range(4):
                e.V("v_cvt_pk_bf16_f32", PK[4 * a_ + j], own[8 * a_ + j], own[8 * a_ + 4 + j])
        for h in range(2):
            e.V("v_cvt_pk_bf16_f32", PK[8 + h], own[16 + 2 * h], own[16 + 2 * h + 1])
        self.bg_off()
        if last:
            om = self.opt.get("outmod", "")
            e.bstore(PK[0:4], vOut, OUT, 0, 0, om)
            e.bstore(PK[4:8], vOut, OUT, 0, 64, om)
            e.bstore(PK[8:10], vOut4, OUT, 0, 128, om)
            self.stamp("end")
            return
        xv = 2 * p + (1 if kind == "O" else 2)
        ops = []
        ops += self.gstore([(PK[0:4], vXs, sA, 0), (PK[4:8], vXs, sA, 1024), (PK[8:10], vXh, sB, 0)])
        sm, sq, t0 = TMP[36], TMP[37], TMP[38]
        e.V("v_mov_b32", sm, 0)
        e.V("v_mov_b32", sq, 0)
        for j in range(10):
            e.V("v_dot2c_f32_bf16", sm, PK[j], vOne)
            e.V("v_dot2c_f32_bf16", sq, PK[j], PK[j])
        e.V("v_permlane32_swap_b32", sm, sq)
        e.V("v_add_f32", sm, sm, sq)
        e.V("v_mov_b32", t0, sm)
        e.V("v_permlane16_swap_b32", sm, t0)
        e.V("v_add_f32", sm, sm, t0)
        ops += self.gstore([(sm, vStW, sD, 0)])
        self.stamp(name + "epi")

        def shadow():
            self.unpack(RES, PK)
            if kind == "O":
                self.unpack(ACC[20:40], ACC[40:50])
                for h in range(10):
                    x = RES[2 * h:2 * h + 2]
                    e.V("v_pk_add_f32", x, x, ACC[20 + 2 * h:22 + 2 * h])
        self.handoff(4 * p + (3 if kind == "O" else 5), ops, shadow,
                     [(vStW, sOst, STB[xv], 0), (vXs, sOx, XB[xv], 0), (vXs, sOx, XB[xv], 1024), (vXh, sOxh, XB[xv], 0)])

    def phaseB1(self, p):
        e = self.e
        opt = self.opt
        xv = 2 * p + 1
        acc = lambda T, u: ACC[(T * 2 + u) * 4:(T * 2 + u) * 4 + 4]
        xf = lambda ks, u: a((ks * 2 + u) * 4, 4) if ks < 20 else XE[u]
        al = self.ALoad(self, vAx, (sXr, XB[xv]), 20)
        al.upto(opt.get("adist", 4) - 1)
        self.stats_loads(xv)
        stop = self.seqstart[("B2", p)]
        g0 = self.seq[stop][0] // 8 + RB // 8
        self.stage_plan = list(range(g0, g0 + (opt.get("nstage", 0) if p else 0)))

        def mf(t, W, u):
            ks, T = divmod(t, B1N)
            e.mfma(acc(T, u), W, xf(ks, u), acc(T, u) if ks else 0)
        tl = [(vHs, sOh, HB[p] + u * 54 * KB, a_ * KB) for a_ in range(3) for u in range(2)] + [(vHh, sOhh, HB[p] + u * 54 * KB, 0) for u in range(2)]
        sg = self.delay(opt.get("stdelay", 24), self.stats_gen(False))
        flb = [sg]
        if p == 0 and opt.get("keepb", 4):
            gb = self.capture_gen(self.segs[2][1] // 8 + opt.get("keepb0", 8), opt.get("keepb", 4), 12)
            next(gb)
            flb.append(gb)
        self.run_pass(21 * B1N, mf, B1N, xf, flb, late=(0, self.touch_gen(tl, p == 0)), stop_reads=stop, aload=al, must=sg, mix=opt.get("mixB", 0), tail=700 * (7 - B1N) + 300 + self.opt.get("slack", 2400))
        self.stamp("B1a")
        ops = []

        def epi(pairs, single):
            n = 0
            for u in range(2):
                sb = sD if u == 0 else sE
                e.S("s_add_u32", sb, sOh, HB[p] + u * 54 * KB); yield
                for a_ in pairs:
                    o = TMP[16 + 4 * (n % 4):20 + 4 * (n % 4)]
                    n += 1
                    for j in range(4):
                        x, y = acc(2 * a_, u)[j], acc(2 * a_ + 1, u)[j]
                        e.V("v_mul_f32_e64", x, x, f"|{x}|"); yield
                        e.V("v_mul_f32_e64", y, y, f"|{y}|"); yield
                        e.V("v_cvt_pk_bf16_f32", o[j], x, y); yield
                        e.V("v_pk_max_i16", o[j], o[j], 0); yield
                    ops.extend(self.gstore([(o, vHs, sb, a_ * KB)], p == 0 or opt.get("hsafe", 1) == 1 or (opt.get("hsafe", 1) == 2 and not single))); yield
            if single:
                for u in range(2):
                    o = TMP[32 + 2 * u:34 + 2 * u]
                    for j in range(4):
                        x = acc(6, u)[j]
                        e.V("v_mul_f32_e64", x, x, f"|{x}|"); yield
                    for h in range(2):
                        e.V("v_cvt_pk_bf16_f32", o[h], acc(6, u)[2 * h], acc(6, u)[2 * h + 1]); yield
                        e.V("v_pk_max_i16", o[h], o[h], 0); yield
                e.S("s_add_u32", sA, sOhh, HB[p])
                e.S("s_add_u32", sB, sOhh, HB[p] + 54 * KB)
                ops.extend(self.gstore([(TMP[32:34], vHh, sA, 0), (TMP[34:36], vHh, sB, 0)], p == 0 or opt.get("hsafe", 1) == 1))
                yield

        def mf2(t, W, u):
            ks, T = divmod(t, 7 - B1N)
            e.mfma(acc(B1N + T, u), W, xf(ks, u), acc(B1N + T, u) if ks else 0)
        self.run_pass(21 * (7 - B1N), mf2, 7 - B1N, xf, [epi(list(range(B1N // 2)), False)], stop_reads=stop, force_bar=21 * (7 - B1N) - 2, over=opt.get("b1over", 0), chunk=opt.get("chunkB", 24), tail=300 + self.opt.get("slack", 2400))
        self.stamp("B1b")
        for _ in epi(list(range(B1N // 2, 3)), True):
            pass
        self.stamp("B1epi")
        self.handoff(4 * p + 4, ops, None, tl)

    def gen(self):
        e = self.e
        e.reset_state()
        self.cInvD = s(63)
        self.dmaf = self.dma_filler()
        self.prologue()
        if self.opt.get("stamps"):
            e.memtime(sTm, True)
            e.V("v_writelane_b32", v(53), sTm[0], 62)
        self.startup()
        stop = self.opt.get("stop", 99)
        n = 0
        for p in range(2):
            for f in (lambda: self.phaseA(p), lambda: self.phase64(p, "O"), lambda: self.phaseB1(p), lambda: self.phase64(p, "C")):
                if n < stop:
                    f()
                n += 1
        if self.opt.get("stamps"):
            e.wait_all_vm()
            e.memtime(sTm, True)
            e.V("v_writelane_b32", v(53), sTm[0], 63)
            e.S("s_lshl_b32", sA, s(2), 2)
            e.S("s_add_u32", sA, sA, sWave)
            e.S("s_lshl_b32", sA, sA, 8)
            e.S("s_add_u32", sA, sA, STAMP)
            e.V("v_lshlrev_b32", TMP[1], 2, vLane)
            e.bstore(v(53), TMP[1], WS, sA)
        if self.opt.get("dbgst") is not None:
            skip = e.newlabel("nodbg")
            e.S("s_lshl_b32", sA, s(2), 2)
            e.S("s_add_u32", sA, sA, sWave)
            e.S("s_cmp_lg_u32", sA, 4 * self.opt.get("dbgwg", 77))
            e.branch("s_cbranch_scc1", skip)
            e.sload(s(84, 2), s(0, 2), 72)
            e.V("v_readlane_b32", sB, v(53), 0)
            e.V("v_subrev_u32", TMP[0], sB, v(53))
            e.V("v_subrev_u32", TMP[1], self.opt["dbgst"], vLane)
            e.V("v_cmp_gt_u32", VCC, 64 - self.opt["dbgst"], TMP[1])
            e.V("v_lshlrev_b32", TMP[1], 2, TMP[1])
            e.wait_all_lg()
            e.S("s_and_saveexec_b64", s(86, 2), VCC)
            e.misc(f"global_store_dword {TMP[1]}, {TMP[0]}, s[84:85]")
            e.S("s_mov_b64", EXEC, -1)
            e.label(skip)
        if self.opt.get("spin"):
            e.wait_all_vm()
            e.V("v_readfirstlane_b32", s(86), v(53))
            e.label("spin_loop")
            e.misc("s_memrealtime s[88:89]")
            e.misc("s_waitcnt lgkmcnt(0)")
            e.misc("s_sub_u32 s88, s88, s86")
            e.misc(f"s_cmp_lt_u32 s88, {self.opt['spin']}")
            e.misc("s_cbranch_scc1 spin_loop")
        e.S("s_add_u32", sA, s(2), sWave)
        e.S("s_cmp_lg_u32", sA, 0)
        e.branch("s_cbranch_scc1", "main_end")
        e.S("s_add_u32", sA, sBase, 16)
        e.V("v_mov_b32", TMP[0], sA)
        e.V("v_mov_b32", TMP[1], EPOCH)
        e.S("s_mov_b64", EXEC, 1)
        e.bstore(TMP[0], TMP[1], WS, 0)
        e.label("main_end")
        e.misc("s_endpgm")
```

```python
from asmgen import *
from layout import *
from gen_prep import mk_srd, allreduce_g
import math

BIG = 0x40000000
LOG2E = 1.4426950408889634
LN2 = 0.6931471805599453

IMG = 0
ZT = 6144
RST = 6400
DUMMY = 6912
RING = 8192
RB = 152
LDS_BYTES = RING + RB * KB
FI = 8

WS, OUT, XIN, SB2 = s(8, 4), s(12, 4), s(16, 4), s(20, 4)
sWave, sR, sC, sCG, sRH, sKH, sW2048 = [s(24 + i) for i in range(7)]
sSeg = {"A": s(31), "O": s(32), "B": s(33), "C": s(34)}
sXr, sHr, sSTr, sFRL, sFRG, sFC = [s(35 + i) for i in range(6)]
sA, sB, sD, sE, sDm, sLd = [s(41 + i) for i in range(6)]
sMaskV = s(48, 2)
sCnt = s(50)
sTT = s(51)
sTm = s(52, 2)
sOx, sOxh, sOst, sOo, sOoh, sOh, sOhh, sKv = [s(54 + i) for i in range(8)]
sLocal, sX1 = s(47), s(62)
sStg = s(3)
sSel = [s(84), s(85)]
sOdd = s(86, 2)
vT16L = v(37)
vStg = v(55)
sNan = s(90, 2)
sBase = s(92)
sOk = s(94, 2)
SR1, SR2 = s(84, 4), s(96, 4)
PP = s(64, 16)
pOut, pWs = s(80, 2), s(82, 2)
vDum = v(49)

vLane, vN, vG, vL16 = v(1), v(2), v(3), v(4)
vW = [v(5), v(6), v(7)]
vK = [v(8), v(9), v(10)]
vDma = v(11)
vAx = [v(12), v(13)]
vAo = [v(14), v(15)]
vAh = [v(16), v(17)]
vSt, vStW, vKvSrc, vKvDst, vT16, vZ01, vZ2, vRT, vRW, vRF, vOut, vOut4, vOne = [v(18 + i) for i in range(13)]
vOh, vXs, vXh, vHs, vHh, vFl, vPollR, vPollC, vXch = [v(31 + i) for i in range(9)]
XE = [v(40, 4), v(44, 4)]
vC2 = v(48, 2)
vC2b = v(50, 2)
vLn2 = v(52, 2)
vEps = v(54, 2)
RT = v(56, 8)
ACC = v(64, 64)
FIFO = v(128, 4 * FI)
RES = v(160, 20)
B2F = v(180, 20)
TMP = v(200, 56)


def keepreg(k, h):
    if k < 12:
        return a(160 + 8 * k + 4 * h, 4)
    t = 2 * (k - 12) + h
    return B2F[4 * t:4 * t + 4] if t < 5 else TMP[40 + 4 * (t - 5):44 + 4 * (t - 5)]


class Main:
    def __init__(self, e, opt):
        self.e = e
        self.opt = opt
        self.kname = opt["kname"]
        self.nstamp = 0
        self.segs = []
        pos = 0
        for p in range(2):
            for k, n in (("A", NA), ("O", NO), ("B", NB), ("C", NC)):
                self.segs.append((k, pos, n))
                pos += n
        self.total = pos
        self.ngroups = pos // 8
        self.issued = 0
        self.dmaop = {}
        self.freed = 0
        self.hold = None
        self.visible = 0
        self.seq = []
        self.seqstart = {}
        for p in range(2):
            b = self.segs[4 * p + 0][1]
            self.seqstart[("A1", p)] = len(self.seq)
            self.seq += [(b + i, "W") for i in range(105)]
            self.seqstart[("A2", p)] = len(self.seq)
            self.seq += [(b + 105 + i, "W") for i in range(63)]
            b = self.segs[4 * p + 1][1]
            self.seqstart[("A4", p)] = len(self.seq)
            self.seq += [(b + 2 * i, "K") for i in range(50)]
            b = self.segs[4 * p + 2][1]
            self.seqstart[("B1a", p)] = len(self.seq)
            self.seq += [(b + i, "W") for i in range(21 * B1N)]
            self.seqstart[("B1b", p)] = len(self.seq)
            self.seq += [(b + 21 * B1N + i, "W") for i in range(147 - 21 * B1N)]
            b = self.segs[4 * p + 3][1]
            self.seqstart[("B2", p)] = len(self.seq)
            self.seq += [(b + 2 * i, "K") for i in range(135)]
        self.rd = 0
        self.cons = 0
        self.lastbar = 0
        self.gate = NA // 8
        self.stage_plan = []
        self.staged = {}
        self.stage_mid = None
        self.cap_hold = 1 << 20
        self.deferred = []
        self.spares = []
        self.last_scratch = (0, 0)
        self.restg = None
        self.capg = None
        self.own_end_phase = 0
        self.cap_ops = []
        self.cap_next = 1 << 20
        self.warn = []
        self.model = []
        self.own_end = 0
        self.deadline = lambda: 1 << 30

    def stamp(self, name):
        self.model.append((name, self.e.T))
        if not self.opt.get("stamps"):
            return
        e = self.e
        e.wait_all_lg()
        e.memtime(sTm)
        e.V("v_writelane_b32", v(53), sTm[0], self.nstamp)
        self.opt.setdefault("stampnames", []).append(name)
        self.nstamp += 1
        assert self.nstamp <= 62

    def endpos(self, i):
        p, k = self.seq[i]
        return p + (2 if k == "K" else 1)

    def ldsaddr(self, pos):
        return RING + (pos % RB) * KB

    def can_issue(self):
        if self.issued >= min(self.ngroups, self.gate):
            return False
        lim = self.freed if self.hold is None else min(self.freed, self.hold)
        lim = min(lim, self.cap_hold)
        return 8 * (self.issued + 1) <= lim + RB

    def dma_group(self):
        e = self.e
        g = self.issued
        self.issued += 1
        pos = 8 * g
        if g in self.stage_plan:
            self.stage_plan = []
        if g in self.staged and self.opt.get("defer", 1) and 8 * g >= self.own_end_phase:
            self.deferred.append(g)
            self.dmaop[g] = None
            yield
            return
        if g in self.staged:
            self.finish_stage()
            k = self.staged[g]
            ad = self.ldsaddr(pos)
            e.V("v_add_u32", vStg, ad, vDma)
            yield
            e.ds_write(vStg, keepreg(k, 0), 0)
            yield
            self.dmaop[g] = e.ds_write(vStg, keepreg(k, 1), 1024)
            yield
            return
        for k, b, n in self.segs:
            if b <= pos < b + n:
                break
        e.S("s_add_u32", M0, sW2048, self.ldsaddr(pos))
        yield
        e.S("s_add_u32", sDm, sSeg[k], (pos - b) * KB)
        yield
        md = "nt" if k in self.opt.get("ntseg", "") else ""
        nvalid = min(8, {"A": 168, "O": 100, "B": 147, "C": 270}[k] - (pos - b)) if self.opt.get("skippad", 1) else 8
        for j in range(2):
            nw = (nvalid - j + 1) // 2
            if nw < 4:
                skip = e.newlabel("nopad")
                e.S("s_cmp_ge_u32", sWave, nw)
                e.branch("s_cbranch_scc1", skip)
                e.cond_begin()
            op = e.dma(vDma, WS, sDm, 1024 * j, md, cls=self.dcls(k))
            if nw < 4:
                e.cond_end()
                e.label(skip)
            if j:
                self.dmaop[g] = op
            yield

    def capture_gen(self, first, n, k0=0):
        e = self.e
        self.cap_hold = self.cap_next = 8 * first
        g1 = self.segs[4][1] // 8
        for k in range(k0, k0 + n):
            g = first + k - k0
            while self.visible < 8 * (g + 1):
                yield "idle"
            e.V("v_add_u32", vStg, self.ldsaddr(8 * g), vDma); yield
            e.ds_read(keepreg(k, 0), vStg, 0); yield
            self.cap_ops.append(e.ds_read(keepreg(k, 1), vStg, 1024))
            self.staged[g1 + g] = k
            self.cap_next = 8 * (g + 1) if k < k0 + n - 1 else 1 << 20
            yield

    def stage_group(self):
        e = self.e
        g = self.stage_plan.pop(0)
        k = len(self.staged) % 12
        self.staged[g] = k
        for sk, b, n in self.segs:
            if b <= 8 * g < b + n:
                break
        e.S("s_add_u32", sStg, sSeg[sk], (8 * g - b) * KB)
        yield
        e.bload(keepreg(k, 0), vDma, WS, sStg, 0, cls=self.dcls(sk))
        yield
        e.bload(keepreg(k, 1), vDma, WS, sStg, 1024, cls=self.dcls(sk))
        self.stage_mid = None
        yield

    def restore_gen(self, n):
        e = self.e
        while n > 0 and self.deferred:
            n -= 1
            g = self.deferred[0]
            k = self.staged[g]
            e.V("v_add_u32", vStg, self.ldsaddr(8 * g), vDma); yield
            old = 8 * g - RB
            clean = old + 8 <= self.last_scratch[0] or old >= self.last_scratch[1]
            if self.spares and self.opt.get("swap", 1) and clean and self.segof(8 * g) == "A":
                sp = self.spares.pop(0)
                e.ds_read(keepreg(sp, 0), vStg, 0); yield
                e.ds_read(keepreg(sp, 1), vStg, 1024); yield
                g2 = g - RB // 8 + self.segs[4][1] // 8
                assert self.segof(8 * g2) == "C"
                self.staged[g2] = sp
            e.ds_write(vStg, keepreg(k, 0), 0); yield
            self.dmaop[g] = e.ds_write(vStg, keepreg(k, 1), 1024)
            self.spares.append(k)
            self.deferred.pop(0)
            yield

    def restore(self, n):
        for _ in self.restore_gen(n):
            pass

    def finish_stage(self):
        while self.stage_mid:
            next(self.stage_mid)

    def stage_step(self):
        e = self.e
        if e.outstanding() >= self.opt.get("qmax", 13):
            return False
        if not self.stage_mid:
            if not self.stage_plan or self.can_issue() or self.mid_group():
                return False
            c = self.dcls("C")
            if e.predict(c) + c[2] > self.deadline():
                return False
            self.stage_mid = self.stage_group()
        next(self.stage_mid)
        return True

    def dcls(self, k):
        return (750, 80, self.opt.get("svcAB", 150)) if k in "AB" else (750, self.opt.get("svcOC", 92), 75)

    def dma_ok(self):
        e = self.e
        if self.mid_group():
            g = self.issued - 1
        elif self.can_issue():
            g = self.issued
        else:
            return False
        if g in self.staged:
            return True
        if e.outstanding() >= self.opt.get("qmax", 13):
            return False
        if self.mid_group() or 8 * g < self.own_end:
            return True
        c = self.dcls(self.segof(8 * g))
        return e.predict(c) + c[2] <= self.deadline()

    def dma_filler(self):
        while True:
            if self.can_issue():
                for _ in self.dma_group():
                    yield True
            else:
                yield False

    def flush_dma_partial(self):
        while self.issued > 0 and (self.issued - 1) not in self.dmaop:
            next(self.dmaf)

    def dma_all(self):
        self.flush_dma_partial()
        while self.can_issue():
            for _ in self.dma_group():
                pass

    def ring_barrier(self, need_idx, extra_ops=(), free_all=False):
        e = self.e
        need_idx = min(need_idx, len(self.seq))
        upto = self.endpos(need_idx - 1) if need_idx > 0 else 0
        g = (upto + 7) // 8
        self.flush_dma_partial()
        while self.issued < g:
            assert self.can_issue(), ("ring deadlock", self.issued, g, self.freed, self.hold)
            self.warn.append(f"forced dma group {self.issued} at seq {self.rd}")
            for _ in self.dma_group():
                pass
        ops = list(extra_ops)
        while self.deferred and self.deferred[0] < g:
            self.warn.append(f"forced restore {self.deferred[0]}")
            next(self.restg)
        for gg in range(self.visible // 8, g):
            assert gg not in self.deferred, gg
            ops.append(self.dmaop[gg])
        e.wait_ops(ops + self.cap_ops)
        self.cap_ops = []
        e.barrier()
        self.cap_hold = self.cap_next
        self.visible = max(self.visible, 8 * g)
        self.freed = self.seq[self.cons][0] if self.cons < len(self.seq) else self.total
        self.lastbar = self.rd

    def issue_read(self):
        e = self.e
        i = self.rd
        if i >= len(self.seq):
            return
        pos, k = self.seq[i]
        assert self.endpos(i) <= self.visible, ("read of invisible block", i, pos, self.visible)
        ad = self.ldsaddr(pos)
        base = (vW if k == "W" else vK)[ad >> 16]
        slot = i % FI
        e.ds_read(FIFO[4 * slot:4 * slot + 4], base, ad & 0xffff)
        self.rd += 1

    def prime(self):
        while self.rd < self.cons + FI and self.rd < len(self.seq) and self.endpos(self.rd) <= self.visible:
            self.issue_read()

    def run_pass(self, n, mf, ntile, xf, fillers=(), chunk=24, stop_reads=None, hooks=None,
                 aload=None, vrate=0.5, amix=(1, 0), over=0, force_bar=None, late=None, see_all=False, tail=2000, mix=0, must=None):
        e = self.e
        fillers = list(fillers)
        lim = stop_reads if stop_reads is not None else len(self.seq)
        st = {"next": 0, "k": 0, "t": 0}
        self.own_end = self.own_end_phase = self.endpos(lim - 1)
        self.deadline = lambda: e.T + (n - st["t"]) * 33 + tail

        i_first = self.cons

        def dma_need():
            g = self.issued - 1 if self.mid_group() else self.issued
            for i in range(self.cons, lim):
                if self.endpos(i) > 8 * g:
                    return i - i_first - FI - chunk
            return 1 << 20

        def one_vmem():
            na, nd = amix
            n0 = len(e.vm)
            if st.get("late"):
                if e.T < st["next"]:
                    return False
                try:
                    next(st["late"])
                except StopIteration:
                    st["late"] = None
                    return False
            else:
                na_ = (aload.n // 2) * ntile if (aload is not None and not aload.done) else 1 << 21
                nd_ = dma_need() if (self.mid_group() or self.can_issue()) else 1 << 22
                run = self.opt.get("run", 0)
                if run and na_ < 1 << 21 and nd_ < 1 << 20:
                    if st.get("cur") == "a" and na_ - run <= nd_:
                        nd_ = max(nd_, na_)
                    elif st.get("cur") == "d" and nd_ - run < na_:
                        na_ = max(na_, nd_ + 1)
                    st["cur"] = "a" if na_ <= nd_ else "d"
                urgent = min(na_, nd_) - st["t"] <= self.opt.get("horizon", 30) + run
                if e.T < st["next"] and not urgent:
                    return False
                if mix and na_ < 1 << 21 and st["k"] % mix == mix - 1 and na_ - st["t"] > self.opt.get("mixh", 10) and self.dma_ok():
                    next(self.dmaf)
                elif na_ <= nd_ and na_ < 1 << 21:
                    if e.outstanding() >= self.opt.get("qmax", 13) and not urgent:
                        return False
                    if aload.n // 2 >= st["t"] // ntile + aload.win - 1:
                        return False
                    aload.step()
                elif nd_ < 1 << 22 and (urgent or self.dma_ok()):
                    next(self.dmaf)
                elif not self.stage_step():
                    return False
            if len(e.vm) > n0:
                st["k"] += 1
                st["next"] = e.T + self.opt.get("vgap", 24)
            return True

        def fill(budget):
            while budget > 0:
                n0 = e.ninst
                did = one_vmem()
                if not did:
                    for f in list(fillers):
                        try:
                            if next(f) == "idle":
                                continue
                            did = True
                            break
                        except StopIteration:
                            fillers.remove(f)
                if not did:
                    return
                budget -= e.ninst - n0

        def waits_for(t):
            regs = []
            for tt in (t, t + 1):
                if tt < n:
                    ks = tt // ntile
                    if aload is not None:
                        aload.upto(ks)
                    idx = self.cons + (tt - t)
                    if idx < self.rd:
                        regs += FIFO[4 * (idx % FI):4 * (idx % FI) + 4].regs()
                    regs += xf(ks, 0).regs() + xf(ks, 1).regs()
            return e._pending(regs)

        e.wait_ops(waits_for(0))
        if aload is not None:
            self.stamp("1st")
            self.warn.append(f"fill {8 * self.issued - self.seq[self.cons][0]}")
        for t in range(n):
            if aload is not None and self.opt.get("midstamp") and t == n // 2:
                self.stamp("half")
            i = self.cons
            assert self.rd > i, ("fifo underrun", i)
            W = FIFO[4 * (i % FI):4 * (i % FI) + 4]
            st["t"] = t
            if must is not None and t == n - ntile - 2:
                for _ in must:
                    self.warn.append("must drained late")
            if t == int(n * self.opt.get("cfrac", 0.8)) and n > 30:
                fillers.insert(0, self.code_touch_gen())
            if hooks and hooks.get("add"):
                g_ = hooks["add"](t)
                if g_:
                    fillers.append(g_)
            ov = over if fillers else 0
            mf(t, W, 0)
            bar = self.rd < lim and (self.endpos(self.rd) > self.visible or self.rd - self.lastbar >= chunk)
            bar = bar or t == force_bar
            if late and t >= late[0] and not st.get("lateon") and (aload is None or aload.done) and 8 * self.issued >= min(self.own_end, self.endpos(min(i_first + n + FI, lim) - 1)) and not self.mid_group():
                st["late"] = late[1]
                st["lateon"] = True
                self.warn.append(f"late at {t}")
            if bar:
                ex, after = [], None
                if hooks and hooks.get("bar"):
                    ex, after = hooks["bar"](t)
                self.ring_barrier(lim if see_all else min(self.rd + chunk, lim), ex)
                if after:
                    after()
            else:
                fill(2 + ov)
            mf(t, W, 1)
            self.cons += 1
            used = 0
            if self.rd < lim:
                self.issue_read()
                used = 1
            pend = waits_for(t + 1) if (t % 2 == 1 and t + 1 < n) else []
            fill(2 + ov - used - (1 if pend else 0))
            if pend:
                e.wait_ops(waits_for(t + 1))
        if late and not st.get("lateon"):
            st["late"] = late[1]
        for f in fillers + ([st["late"]] if st.get("late") else []):
            if f is not self.capg:
                for _ in f:
                    pass

    def segof(self, pos):
        for k, b, n in self.segs:
            if b <= pos < b + n:
                return k
        return "O"

    def mid_group(self):
        return self.issued > 0 and (self.issued - 1) not in self.dmaop

    def dma_burst(self, maxgroups=99):
        e = self.e
        self.flush_dma_partial()
        gs = []
        while self.can_issue() and len(gs) < maxgroups:
            gs.append(self.issued)
            self.issued += 1
        for w in (1, 2, 3):
            mine = gs[w - 1::3]
            if not mine:
                continue
            skip = e.newlabel("noburst")
            e.S("s_cmp_lg_u32", sWave, w)
            e.branch("s_cbranch_scc1", skip)
            e.cond_begin()
            for g in mine:
                pos = 8 * g
                for k, b, n in self.segs:
                    if b <= pos < b + n:
                        break
                for h in range(2):
                    e.S("s_mov_b32", M0, self.ldsaddr(pos) + h * 4096)
                    e.S("s_add_u32", sDm, sSeg[k], (pos - b) * KB + h * 4096)
                    for q in range(4):
                        self.dmaop[g] = e.dma(vL16, WS, sDm, q * 1024)
            e.cond_end()
            e.label(skip)

    def prologue(self):
        e = self.e
        e.S("s_cmp_ge_u32", s(2), 256)
        e.branch("s_cbranch_scc1", "main_end")
        if self.opt.get("stamps"):
            e.V("v_mov_b32", v(53), 0)
        self.stamp("t0")
        if self.opt.get("spin"):
            e.memtime(sTm, True)
            e.V("v_mov_b32", v(53), sTm[0])
        e.sload(PP, s(0, 2), 0)
        e.sload(pOut, s(0, 2), 64)
        e.sload(pWs, s(0, 2), 80)
        T0, T1, T2, T3 = TMP[48], TMP[49], TMP[50], TMP[51]
        e.S("s_getpc_b64", s(88, 2))
        e.label("main_pc")
        e.V("v_lshlrev_b32", T2, 5, v(0))
        e.S("s_sub_u32", s(88), s(88), "main_pc-" + self.kname)
        e.S("s_subb_u32", s(89), s(89), 0)
        e.misc(f"global_load_dword {vDum}, {T2}, s[88:89]")
        e._vm([], (2000, 30, 0))
        e.V("v_lshrrev_b32", T0, 6, v(0))
        e.V("v_and_b32", vLane, 63, v(0))
        e.V("v_readfirstlane_b32", sWave, T0)
        e.S("s_lshr_b32", sB, s(2), 3)
        e.S("s_mul_i32", sB, sB, 1792)
        e.S("s_add_u32", sB, sB, 8192)
        e.V("v_lshl_add_u32", T2, v(0), 3, sB)
        e.V("v_min_u32", T2, self.opt.get("code_bytes", 32768) - 4, T2)
        e.misc(f"global_load_dword {vDum}, {T2}, s[88:89]")
        e._vm([], (2000, 30, 0))
        e.V("v_lshlrev_b32", vL16, 4, vLane)
        e.V("v_and_b32", vN, 15, vLane)
        e.V("v_lshrrev_b32", vG, 4, vLane)
        self.vBig = TMP[52]
        e.V("v_mov_b32", self.vBig, BIG)
        e.S("s_and_b32", sA, s(2), 7)
        e.S("s_lshl_b32", sA, sA, 1)
        e.S("s_lshr_b32", sB, s(2), 7)
        e.S("s_add_u32", sR, sA, sB)
        e.S("s_bfe_u32", sC, s(2), (4 << 16) | 3)

    def gather(self, raw, srd, sstride, vaddr, srow, n=8):
        e = self.e
        e.S("s_mul_i32", sLd, srow, sstride)
        for i in range(n):
            e.bload(raw[i], vaddr, srd, sLd, 0, w="ushort", cls=(2500, 32, 0))
            if i < n - 1:
                e.S("s_add_u32", sLd, sLd, sstride)

    def pack(self, raw, n=4):
        for i in range(n):
            self.e.V("v_lshl_or_b32", raw[i], raw[2 * i + 1], 16, raw[2 * i])

    def colsum(self, regs, ex, vs, vt):
        e = self.e
        e.V("v_mov_b32", vs, 0)
        for r_ in regs:
            e.V("v_dot2c_f32_bf16", vs, r_, vOne)
        allreduce_g(e, vs, vt)
        e.V("v_sub_f32", vs, 0, vs)
        e.V("v_cvt_pk_bf16_f32", vt, vs, vs)
        e.V("v_lshlrev_b32", vt, 16, vt)
        e.V("v_sub_f32", vt, vs, vt)
        e.V("v_cvt_pk_bf16_f32", ex[0], vs, vt)
        e.V("v_and_b32", ex[1], "0xffff", ex[0])

    def x_dma(self):
        e = self.e
        V = [FIFO[12 + i] for i in range(10)]
        t0, t1 = FIFO[22], FIFO[23]
        e.S("s_mov_b32", sA, 52429)
        e.S("s_mov_b32", sB, 1280)
        for i in range(5):
            e.V("v_add_u32", t0, 64 * i, vLane)
            e.V("v_mul_u32_u24", t1, sA, t0)
            e.V("v_lshrrev_b32", t1, 22, t1)
            e.V("v_mul_u32_u24", V[i], 80, t1)
            e.V("v_sub_u32", t0, t0, V[i])
            e.V("v_lshlrev_b32", V[i], 1, t1)
            e.V("v_xor_b32", t0, t0, V[i])
            e.V("v_lshlrev_b32", t0, 4, t0)
            e.V("v_mad_u32_u24", V[i], t1, sB, t0)
            e.V("v_xor_b32", V[5 + i], 128, t0)
            e.V("v_mad_u32_u24", V[5 + i], t1, sB, V[5 + i])
            e.V("v_add_u32", V[5 + i], 4 * 1280, V[5 + i])
        sx, sl = s(90), s(95)
        e.S("s_lshl_b32", sx, sR, 2)
        e.S("s_add_u32", sx, sx, sWave)
        e.S("s_mul_i32", sx, sx, 32 * 1280)
        e.S("s_mul_i32", sl, sWave, 40 * KB)
        self.xops = []
        for q in range(4):
            for i in range(10):
                e.S("s_add_u32", M0, sl, (10 * q + i) * KB)
                if i == 0 and q:
                    e.S("s_add_u32", sx, sx, 8 * 1280)
                self.xops.append(e.dma(V[i], XIN, sx, 0, cls=(1000, 80, 16)))
                yield

    def x_frags(self, ops, side):
        e = self.e
        base, sg, gl, ad = FIFO[12], FIFO[13], FIFO[14], [FIFO[15], FIFO[16]]
        ONE = FIFO[24:28]
        SS, QQ = [ACC[0:4], ACC[4:8]], [ACC[8:12], ACC[12:16]]
        e.S("s_mul_i32", sB, sWave, 40 * KB)
        e.V("v_mul_u32_u24", base, 1280, vN)
        e.V("v_add_u32", base, sB, base)
        e.V("v_and_b32", sg, 7, vN)
        e.V("v_lshlrev_b32", sg, 1, sg)
        e.V("v_lshrrev_b32", gl, 1, vG)
        e.V("v_lshl_add_u32", gl, gl, 3, vG)
        for i in range(4):
            e.V("v_mov_b32", ONE[i], vOne)
        e.wait_ops(ops)
        for ks in range(20):
            t = ad[ks & 1]
            if ks < 16:
                e.V("v_add_u32", t, 10 * (ks >> 1) + 4 * (ks & 1), vG)
            else:
                e.V("v_add_u32", t, 20 * (ks - 16) + 8, gl)
            e.V("v_xor_b32", t, t, sg)
            e.V("v_lshl_add_u32", t, t, 4, base)
            for u in range(2):
                e.ds_read(a((ks * 2 + u) * 4, 4), t, u * 16 * 1280)
            next(side, None)
            if ks >= 3:
                for u in range(2):
                    x = a(((ks - 3) * 2 + u) * 4, 4)
                    e.mfma(SS[u], ONE, x, SS[u] if ks > 3 else 0)
                    e.mfma(QQ[u], x, x, QQ[u] if ks > 3 else 0)
        for ks in range(17, 20):
            for u in range(2):
                x = a((ks * 2 + u) * 4, 4)
                e.mfma(SS[u], ONE, x, SS[u])
                e.mfma(QQ[u], x, x, QQ[u])
        for _ in side:
            pass
        e.V("v_and_b32", ad[0], 3, vN)
        e.V("v_lshrrev_b32", ad[1], 2, vN)
        for u in range(2):
            sm, sq = TMP[4 * u], TMP[4 * u + 1]
            e.V("v_mov_b32", sq, QQ[u][0])
            for j in range(1, 4):
                e.V("v_cmp_eq_u32", VCC, j, ad[0])
                e.V("v_cndmask_b32", sq, sq, QQ[u][j], VCC)
            e.V("v_cmp_eq_u32", VCC, ad[1], vG)
            e.V("v_cndmask_b32", sq, 0, sq, VCC)
            e.V("v_mov_b32", sm, SS[u][0])
            allreduce_g(e, sq, TMP[4 * u + 2])

    def lds_init(self):
        e = self.e
        e.V("v_lshlrev_b32", FIFO[12], 4, v(0))
        Z = FIFO[24:28]
        for j in range(4):
            e.V("v_mov_b32", Z[j], 0)
        e.ds_write(FIFO[12], Z, 0)
        e.ds_write(FIFO[12], Z, 4096)

    def startup(self):
        e = self.e
        vBig = self.vBig
        RAW1, EX = ACC[0:20], ACC[20:24]
        RAW2 = TMP[8:40]
        vCol, vReg, vLeft, vT0, vT1, vSum, vLd = [FIFO[i] for i in range(7)]
        vA0, vA1, vA2, vSt2, vBias = RES[8], RES[9], B2F[8], B2F[9], ACC[38]
        sT, sP = s(7), s(93)
        sStr = s(56)
        T0, T1, T2, T3 = TMP[48], TMP[49], TMP[50], TMP[51]
        e.S("s_lshl_b32", sA, sR, 4)
        e.S("s_add_u32", sA, sA, sC)
        e.S("s_lshl_b32", sA, sA, 2)
        e.S("s_add_u32", sA, sA, sWave)
        e.S("s_mul_i32", sA, sA, 2560)
        e.V("v_min_u32", T1, 19, vLane)
        e.V("v_lshlrev_b32", T1, 7, T1)
        mk_srd(e, XIN, PP[0:2], XSZ)
        e.touch(vDum, T1, XIN, sA, 0, cls=(2000, 30, 0))
        self.stamp("issx")
        e.S("s_lshr_b32", sP, sR, 1)
        e.S("s_and_b32", sT, sR, 1)
        e.S("s_lshl_b32", sT, sT, 2)
        e.S("s_add_u32", sT, sT, sWave)
        e.S("s_mov_b32", s(4), (656 << 20) | (660 << 10) | 640)
        e.S("s_mov_b32", s(5), 0)
        e.S("s_mul_i32", sA, sT, 10)
        e.S("s_lshr_b32", sA, s(4), sA)
        e.S("s_and_b32", sA, sA, 1023)
        for t, val in ((3, 1280), (4, 1300), (5, 0), (6, 1), (7, 32)):
            e.S("s_cmp_eq_u32", sT, t)
            e.S("s_cselect_b32", sA, val, sA)
        e.S("s_mul_i32", sB, sC, 40)
        e.S("s_add_u32", sA, sA, sB)
        e.V("v_add_u32", vCol, sA, vN)
        e.V("v_add_u32", vT0, vCol, vN)
        e.S("s_sub_u32", sB, sT, 5)
        e.S("s_cmp_lt_u32", sB, 2)
        e.S("s_cselect_b64", VCC, -1, 0)
        e.V("v_cndmask_b32", vCol, vCol, vT0, VCC)
        e.V("v_lshrrev_b32", vT0, 3, vN)
        e.V("v_mul_u32_u24", vT0, 632 - 32, vT0)
        e.V("v_lshrrev_b32", vT1, 2, vN)
        e.V("v_lshl_add_u32", vT0, vT1, 4, vT0)
        e.V("v_add3_u32", vT0, vT0, vN, sA)
        e.S("s_cmp_eq_u32", sT, 2)
        e.S("s_cselect_b64", VCC, -1, 0)
        e.V("v_cndmask_b32", vCol, vCol, vT0, VCC)
        e.V("v_lshlrev_b32", vCol, 1, vCol)
        e.S("s_cmp_eq_u32", sT, 7)
        e.S("s_cselect_b32", sB, 8, 16)
        e.V("v_cmp_le_u32", VCC, sB, vN)
        e.S("s_mov_b32", sStr, 3840)
        e.V("v_cndmask_b32", vCol, vCol, vBig, VCC)
        e.S("s_mov_b32", sD, 8 * 3840)
        e.V("v_mad_u32_u24", vReg, vG, sD, vCol)
        e.V("v_and_b32", vT0, 1, vG)
        e.V("v_lshrrev_b32", vT1, 1, vG)
        e.V("v_lshl_add_u32", vLd, vT0, 1, vT1)
        e.S("s_mov_b32", sD, 4 * 3840)
        e.V("v_mad_u32_u24", vLeft, vLd, sD, vCol)
        mk_srd(e, SR1, PP[2:4], D * 3 * D * 2)
        e.S("s_mul_i32", sB, sP, 80)
        self.gather(RAW1[0:8], SR1, sStr, vReg, sB)
        e.S("s_add_u32", sA, sB, 32)
        self.gather(RAW1[8:16], SR1, sStr, vReg, sA)
        e.S("s_add_u32", sA, sB, 64)
        self.gather(RAW1[16:20], SR1, sStr, vLeft, sA, 4)
        self.stamp("iss1")
        def r2touch():
            e.S("s_lshl_b32", sA, s(2), 2)
            e.S("s_add_u32", sA, sA, sWave)
            e.V("v_min_u32", T0, 17, vLane)
            e.V("v_lshlrev_b32", T0, 7, T0)
            e.S("s_mul_i32", sB, sA, 2160)
            mk_srd(e, SR2, PP[8:10], F * D * 2)
            e.touch(vDum, T0, SR2, sB, 0, cls=(2000, 30, 0))
            mk_srd(e, SR2, PP[12:14], F * D * 2)
            e.touch(vDum, T0, SR2, sB, 0, cls=(2000, 30, 0))
            e.V("v_min_u32", T0, 7 * 128, T0)
            mk_srd(e, SR2, PP[4:6], D * D * 2)
            e.S("s_mul_i32", sB, sA, 800)
            e.touch(vDum, T0, SR2, sB, 0, cls=(2000, 30, 0))
        if self.opt.get("r2touch", 3) == 1:
            r2touch()
        if self.opt.get("wsoff"):
            e.S("s_add_u32", pWs[0], pWs[0], self.opt["wsoff"] << 20)
            e.S("s_addc_u32", pWs[1], pWs[1], 0)
        mk_srd(e, WS, pWs, WS_USED)
        e.sload(sBase, pWs, EPOCH)
        e.S("s_mov_b32", sA, "0x3f803f80")
        e.V("v_mov_b32", vOne, sA)
        e.S("s_and_b32", sCG, sC, 7)
        e.S("s_lshr_b32", sRH, sC, 3)
        if self.opt.get("r2touch", 0) == 3:
            r2touch()
        mk_srd(e, SB2, PP[14:16], D * 2)
        if not self.opt.get("l2first", 1):
            self.prologue2()
            self.stamp("pro2")
        sU, sP, sStr, sJ = s(88), s(89), s(100), s(101)
        rows = [s(3 + i) for i in range(4)]
        D2 = [s(64), s(65), s(66), s(67)]
        sDB, sDX = s(70), s(71)
        vSel0, vSel1 = vA1, vA2
        mk_srd(e, SR1, PP[10:12], F * 2)
        e.S("s_lshl_b32", sJ, sRH, 4)
        e.S("s_add_u32", sJ, sJ, sR)
        if self.opt.get("bal", 1):
            e.S("s_cmp_eq_u32", sJ, 15)
            e.S("s_cselect_b32", sA, 39, 127)
            e.S("s_mul_i32", sJ, sJ, 3)
            e.S("s_add_u32", sJ, sJ, sWave)
            e.S("s_add_u32", sJ, sJ, 39)
            e.S("s_cmp_ge_u32", sJ, 97)
            e.S("s_cselect_b32", sB, 97, 0)
            e.S("s_sub_u32", sJ, sJ, sB)
            e.S("s_cmp_eq_u32", sWave, 0)
            e.S("s_cselect_b32", sJ, sA, sJ)
        else:
            e.S("s_lshl_b32", sJ, sJ, 2)
            e.S("s_add_u32", sJ, sJ, sWave)
        e.V("v_lshrrev_b32", vT0, 1, vG)
        e.V("v_and_b32", vT1, 1, vG)
        e.V("v_mov_b32", vSt2, vL16)
        e.S("s_mov_b32", sDX, BIG)
        lo, lc, lj = e.newlabel("job_wo"), e.newlabel("job_w2"), e.newlabel("job_go")

        def unit(sbase, nu, stride, ca, cb, nreg, dB):
            e.S("s_lshl_b32", sA, sU, 5)
            e.S("s_add_u32", sA, sA, sbase)
            e.S("s_lshl_b32", sA, sA, 1)
            e.S("s_mov_b32", sDB, dB)
            e.S("s_cmp_lt_u32", sU, nu)
            e.S("s_cselect_b64", VCC, -1, 0)
            e.S("s_cselect_b32", sDB, sDB, BIG)
            e.V("v_lshlrev_b32", vCol, 2, vN)
            e.V("v_and_b32", vReg, 14, vN)
            e.V("v_lshlrev_b32", vReg, 1, vReg)
            e.V("v_cndmask_b32", vCol, vReg, vCol, VCC)
            e.V("v_add_u32", vCol, sA, vCol)
            e.V("v_and_b32", vReg, 1, vN)
            e.V("v_cndmask_b32", vReg, vReg, 0, VCC)
            e.S("s_mov_b32", sA, "0x02020202")
            e.V("v_mul_lo_u32", vReg, vReg, sA)
            e.V("v_add_u32", vSel0, "0x05040100", vReg)
            e.S("s_mov_b32", sStr, stride)
            e.S("s_mov_b32", sD, 8 * stride)
            e.V("v_mul_u32_u24", vReg, sD, vG)
            e.S("s_mov_b32", sD, ca * stride)
            e.V("v_mul_u32_u24", vLeft, sD, vT0)
            e.S("s_mov_b32", sD, cb * stride)
            e.V("v_mad_u32_u24", vLeft, vT1, sD, vLeft)
            e.S("s_cmp_lt_u32", sP, nreg)
            e.S("s_cselect_b64", VCC, -1, 0)
            e.V("v_cndmask_b32", vA0, vLeft, vReg, VCC)

        def split_dests(half):
            for b in range(4):
                e.S("s_lshl_b32", sA, sP, 2)
                e.S("s_add_u32", sA, sA, b)
                e.S("s_mul_i32", sD, sA, 10)
                e.S("s_cmp_ge_u32", sA, half)
                e.S("s_cselect_b32", sB, 10 * half - 1, 0)
                e.S("s_sub_u32", sD, sD, sB)
                e.S("s_add_u32", sD, sD, sE)
                e.S("s_lshl_b32", D2[b], sD, 10)
                if half == 27 and b >= 2:
                    e.S("s_cmp_ge_u32", sA, 54)
                    e.S("s_cselect_b32", D2[b], BIG, D2[b])

        def div3(dq, dr, src):
            e.S("s_mul_i32", dq, src, 43691)
            e.S("s_lshr_b32", dq, dq, 17)
            e.S("s_mul_i32", sA, dq, 3)
            e.S("s_sub_u32", dr, src, sA)

        e.S("s_cmp_ge_u32", sJ, 55)
        e.branch("s_cbranch_scc1", lc)
        e.S("s_cmp_ge_u32", sJ, 40)
        e.branch("s_cbranch_scc1", lo)
        e.cond_begin()
        mk_srd(e, SR2, PP[8:10], D * F * 2)
        e.S("s_and_b32", sU, sJ, 3)
        e.S("s_lshr_b32", sP, sJ, 2)
        e.S("s_cmp_ge_u32", sP, 5)
        e.S("s_cselect_b32", sA, 5, 0)
        e.S("s_cselect_b32", sJ, 8, 0)
        e.S("s_sub_u32", sP, sP, sA)
        e.S("s_add_u32", sJ, sJ, sCG)
        e.S("s_mul_i32", sE, sJ, 112)
        e.S("s_max_u32", sB, sJ, 12)
        e.S("s_sub_u32", sB, sB, 12)
        e.S("s_lshl_b32", sB, sB, 4)
        e.S("s_sub_u32", sE, sE, sB)
        unit(sE, 3, 3456, 80, 8, 4, 1024)
        e.S("s_lshl_b32", sA, sU, 4)
        e.S("s_add_u32", sA, sA, sJ)
        e.S("s_cmp_ge_u32", sA, 3 * 16 + 12)
        e.S("s_cselect_b64", VCC, -1, 0)
        e.V("v_cndmask_b32", vCol, vCol, vBig, VCC)
        for b in range(4):
            e.S("s_mul_i32", sA, sP, 160)
            e.S("s_add_u32", sA, sA, 80 * (b >> 1) + 32 * (b & 1))
            e.S("s_cmp_eq_u32", sP, 4)
            e.S("s_cselect_b32", rows[b], 160 * b + 64, sA)
        e.S("s_cmp_lt_u32", sU, B1N // 2)
        e.S("s_cselect_b32", s(79), B1N, 7 - B1N)
        e.S("s_cselect_b32", sE, 0, 20 * B1N)
        e.S("s_lshl_b32", sA, sU, 1)
        e.S("s_add_u32", sE, sE, sA)
        e.S("s_mul_i32", sB, sJ, NB)
        e.S("s_add_u32", sE, sE, sB)
        e.S("s_add_u32", sE, sE, WB // KB)
        for b in range(4):
            e.S("s_lshl_b32", sA, sP, 2)
            e.S("s_add_u32", sA, sA, b)
            e.S("s_mul_i32", sA, sA, s(79))
            e.S("s_add_u32", sA, sA, sE)
            e.S("s_lshl_b32", D2[b], sA, 10)
        e.S("s_mul_i32", sD, s(79), 20)
        e.S("s_add_u32", sD, sD, sE)
        e.S("s_lshl_b32", sDX, sD, 10)
        e.branch("s_branch", lj)
        e.cond_end()
        e.label(lo)
        e.cond_begin()
        mk_srd(e, SR2, PP[4:6], D * D * 2)
        e.S("s_sub_u32", sJ, sJ, 40)
        div3(sP, sU, sJ)
        e.S("s_mul_i32", sE, sCG, 80)
        unit(sE, 2, 1280, 80, 40, 4, 2048)
        for b in range(4):
            e.S("s_mul_i32", sA, sP, 160)
            e.S("s_add_u32", sA, sA, 40 * b)
            e.S("s_cmp_eq_u32", sP, 4)
            e.S("s_cselect_b32", rows[b], 160 * b + 32, sA)
        e.S("s_mul_i32", sE, sCG, NO)
        e.S("s_add_u32", sE, sE, WO // KB)
        e.S("s_lshl_b32", sA, sU, 2)
        e.S("s_add_u32", sE, sE, sA)
        split_dests(10)
        e.branch("s_branch", lj)
        e.cond_end()
        e.label(lc)
        e.cond_begin()
        mk_srd(e, SR2, PP[12:14], F * D * 2)
        e.S("s_sub_u32", sJ, sJ, 55)
        div3(sP, sU, sJ)
        e.S("s_mul_i32", sE, sCG, 80)
        unit(sE, 2, 1280, 112, 8, 12, 2048)
        e.S("s_cmp_ge_u32", sP, 14)
        e.S("s_cselect_b64", VCC, -1, 0)
        e.V("v_cndmask_b32", vCol, vCol, vBig, VCC)
        e.V("v_cndmask_b32", vSt2, vSt2, vBig, VCC)
        e.S("s_min_u32", sP, sP, 13)
        for b in range(4):
            e.S("s_lshl_b32", sD, sP, 2)
            e.S("s_add_u32", sD, sD, b)
            e.S("s_mul_i32", sA, sD, 43691)
            e.S("s_lshr_b32", sA, sA, 17)
            e.S("s_lshl_b32", sA, sA, 4)
            e.S("s_min_u32", sA, sA, 192)
            e.S("s_lshl_b32", sB, sD, 5)
            e.S("s_add_u32", sA, sA, sB)
            e.S("s_mul_i32", sB, sD, 224)
            e.S("s_sub_u32", sB, sB, 224 * 48 - 96)
            e.S("s_cmp_ge_u32", sD, 48)
            e.S("s_cselect_b32", rows[b], sB, sA)
        e.S("s_mul_i32", sE, sCG, NC)
        e.S("s_add_u32", sE, sE, WC // KB)
        e.S("s_lshl_b32", sA, sU, 2)
        e.S("s_add_u32", sE, sE, sA)
        split_dests(27)
        e.cond_end()
        e.label(lj)
        e.V("v_add_u32", vA0, vA0, vCol)
        e.S("s_cmp_lt_u32", sP, 2)
        e.S("s_cselect_b64", VCC, -1, 0)
        e.V("v_cndmask_b32", vBias, vBig, vCol, VCC)
        e.V("v_mov_b32", vSel1, "0x07060302")
        e.V("v_add_u32", vT0, sP, vG)
        e.V("v_lshrrev_b32", vT1, 1, vT0)
        e.V("v_lshlrev_b32", vLd, 4, vN)
        e.V("v_lshl_add_u32", vLd, vT1, 8, vLd)
        e.V("v_and_b32", vT0, 1, vT0)
        e.V("v_lshl_add_u32", vLd, vT0, 3, vLd)
        e.S("s_cmp_eq_u32", sP, 4)
        e.S("s_cselect_b32", sA, 4, 1)
        e.V("v_cmp_gt_u32", VCC, sA, vG)
        e.V("v_cndmask_b32", vLd, vBig, vLd, VCC)
        e.S("s_lshl_b32", sA, sC, 4)
        e.S("s_add_u32", sA, sA, sR)
        e.S("s_mul_i32", sA, sA, KVSZ)
        e.S("s_mul_i32", sB, sWave, KVSZ // 4)
        e.S("s_add_u32", sA, sA, sB)
        e.S("s_add_u32", s(79), sA, KVB[1])
        self.stamp("dec2")
        def r2_loads():
            for b in range(4):
                e.S("s_mul_i32", sE, rows[b], sStr); yield
                for i in range(8):
                    e.bload(RAW2[8 * b + i], vA0, SR2, sE, 0, cls=(1500, 32, 0)); yield
                    if i < 7:
                        e.S("s_add_u32", sE, sE, sStr); yield
            e.bload(vBias, vBias, SR1, 0, 0, cls=(1500, 10, 0)); yield

        self.r2_loads = r2_loads()
        if self.opt.get("l2first", 1):
            for _ in self.r2_loads:
                pass
            self.stamp("iss2a")
            self.prologue2()
            self.stamp("pro2")
        sP2 = sP
        wT0, wT1, wLd, wSum = FIFO[8], FIFO[9], FIFO[10], FIFO[11]
        sT, sP = s(7), s(93)
        ops1 = []
        MK = ACC[28:32]
        self.stamp("xst")
        e.S("s_cmp_lt_u32", sT, 5)
        e.S("s_cselect_b32", sE, 5, 3)
        e.S("s_cselect_b32", sA, 0, 100)
        e.S("s_add_u32", sA, sA, sT)
        e.S("s_mul_i32", sB, sC, NA)
        e.S("s_add_u32", sA, sA, sB)
        e.S("s_add_u32", sA, sA, WA // KB)
        e.S("s_lshl_b32", sA, sA, 10)
        e.S("s_lshl_b32", sE, sE, 10)
        e.S("s_mul_i32", sB, sP, sE)
        e.S("s_lshl_b32", sB, sB, 1)
        e.S("s_add_u32", sB, sB, sA)
        self.pack(RAW1[0:8])
        ops1.append(e.bstore(RAW1[0:4], vL16, WS, sB, 0, "sc1", cls=(1000, 70, 0)))
        e.S("s_add_u32", sB, sB, sE)
        self.pack(RAW1[8:16])
        ops1.append(e.bstore(RAW1[8:12], vL16, WS, sB, 0, "sc1", cls=(1000, 70, 0)))
        e.S("s_lshr_b32", sB, sP, 1)
        e.S("s_add_u32", sB, sB, 16)
        e.S("s_mul_i32", sB, sB, sE)
        e.S("s_add_u32", sB, sB, sA)
        e.S("s_and_b32", sD, sP, 1)
        e.S("s_lshl_b32", s(95), sD, 9)
        e.S("s_add_u32", sB, sB, s(95))
        e.V("v_lshlrev_b32", wT0, 8, vG)
        e.V("v_and_b32", wT0, 256, wT0)
        e.V("v_lshl_add_u32", wT0, vN, 4, wT0)
        e.V("v_lshrrev_b32", wT1, 1, vG)
        e.V("v_lshl_add_u32", wLd, wT1, 3, wT0)
        self.pack(RAW1[16:20], 2)
        ops1.append(e.bstore(RAW1[16:18], wLd, WS, sB, 0, "sc1", cls=(1000, 40, 0)))
        self.colsum([RAW1[i] for i in (0, 1, 2, 3, 8, 9, 10, 11, 16, 17)], EX, wSum, wT0)
        e.S("s_mul_i32", sB, sE, 20)
        e.S("s_add_u32", sB, sB, sA)
        e.S("s_lshr_b32", sA, sP, 1)
        e.S("s_lshl_b32", sA, sA, 8)
        e.S("s_add_u32", sB, sB, sA)
        e.S("s_lshl_b32", sD, sD, 3)
        e.S("s_add_u32", sB, sB, sD)
        e.S("s_mov_b64", EXEC, "0xffff")
        ops1.append(e.bstore(EX[0:2], vL16, WS, sB, 0, "sc1", cls=(1000, 20, 0)))
        e.S("s_mov_b64", EXEC, -1)
        self.stamp("r1")
        if self.opt.get("r2touch", 3) == 2:
            r2touch()
        for i in range(4):
            e.V("v_mov_b32", MK[i], -1)
        e.S("s_lshl_b32", sA, sC, 4)
        e.S("s_add_u32", sA, sA, sR)
        e.S("s_mul_i32", sA, sA, KVSZ)
        e.S("s_mul_i32", sB, sWave, KVSZ // 4)
        e.S("s_add_u32", sA, sA, sB)
        e.S("s_add_u32", sA, sA, KVB[0])
        e.S("s_mov_b64", EXEC, "0xfffffff")
        ops1.append(e.bstore(MK, vL16, WS, sA, 0, "sc1", cls=(1000, 40, 0)))
        e.S("s_mov_b64", EXEC, -1)
        sP = sP2
        self.ops2 = []

        vs, vt, MK = TMP[48], TMP[49], TMP[40:44]
        EV = ACC[40:56]

        def r2_pack():
            for b in range(4):
                raw = RAW2[8 * b:8 * b + 8]
                for i in range(4):
                    e.V("v_perm_b32", EV[4 * b + i], raw[2 * i + 1], raw[2 * i], vSel0)
                for i in range(4):
                    e.V("v_perm_b32", raw[i], raw[2 * i + 1], raw[2 * i], vSel1)
            for i in range(4):
                e.V("v_mov_b32", MK[i], -1)
            e.V("v_cmp_eq_u32", sNan, 0, vG)
            for h in range(2):
                ex = TMP[44 + 2 * h:46 + 2 * h]
                self.colsum([EV[i] for i in range(16)] if h == 0 else [RAW2[8 * b + i] for b in range(4) for i in range(4)], ex, vs, vt)
                e.V("v_perm_b32", vt, vBias, vBias, vSel0 if h == 0 else vSel1)
                e.V("v_and_b32", vt, "0xffff0000", vt)
                e.V("v_or_b32", ex[1], ex[1], vt)
                e.V("v_cndmask_b32", ex[0], 0, ex[0], sNan)
                e.V("v_cndmask_b32", ex[1], 0, ex[1], sNan)
            e.V("v_mov_b32", vSel0, vLd)
            yield

        def r2_stores():
            for b in range(4):
                self.ops2.append(e.bstore(EV[4 * b:4 * b + 4], vSt2, WS, D2[b], 0, self.opt.get("r2mod", "sc1"), cls=(1000, 70, 0)))
                yield
                e.S("s_add_u32", sA, D2[b], sDB)
                self.ops2.append(e.bstore(RAW2[8 * b:8 * b + 4], vSt2, WS, sA, 0, self.opt.get("r2mod", "sc1"), cls=(1000, 70, 0)))
                yield
            e.S("s_mov_b64", EXEC, "0xfffffff")
            self.ops2.append(e.bstore(MK, vL16, WS, s(79), 0, "sc1", cls=(1000, 40, 0)))
            e.S("s_mov_b64", EXEC, -1)
            yield
            for h in range(2):
                if h:
                    e.S("s_add_u32", sDX, sDX, sDB)
                self.ops2.append(e.bstore(TMP[44 + 2 * h:46 + 2 * h], vSel0, WS, sDX, 0, "sc1", cls=(1000, 20, 0)))
                yield
        self.r2_stores = r2_stores
        self.r2_pack = r2_pack()
        npre = self.opt.get("r2pre", 50)
        for _ in self.r2_loads:
            npre -= 1
            if npre <= 0:
                break
        for _ in self.r2_pack:
            pass
        xg = self.x_dma()
        for _ in range(self.opt.get("xpre", 8)):
            next(xg)
        self.stamp("iss2")
        e.wait_ops(ops1)
        e.barrier()
        self.flag("col", 1, ACC[34], ACC[35])
        self.stamp("w1flag")
        for _ in xg:
            pass
        sg_ = r2_stores()
        for _ in range(self.opt.get("s2pre", 0)):
            next(sg_, None)
        self.stamp("r2")
        self.x_frags(self.xops, sg_)
        self.late_loads()
        e.wait_all_lg()
        e.barrier()
        self.lds_init()
        e.wait_all_lg()
        self.al0 = True
        self.stamp("xfr")
        self.poll("col", 1)
        e.barrier()
        self.stamp("w1go")

    def w2_gen(self):
        e = self.e
        t = RES[0]
        e.V("v_bfe_u32", t, vLane, 4, 1); yield
        e.V("v_lshl_add_u32", t, t, 11, vFl); yield
        e.S("s_lshl_b32", s(4), sCG, 8); yield
        e.S("s_add_u32", s(4), s(4), FLG_C); yield
        e.bload(RES[1], t, WS, s(4), 0, "sc1", cls=(900, 10, 0)); yield
        for _ in range(self.opt.get("w2wait", 50)):
            yield "idle"
        e.S("s_add_u32", s(5), sBase, 2); yield
        lok, lre = e.newlabel("w2ok"), e.newlabel("w2retry")
        e.V("v_cmp_ne_u32", VCC, s(5), RES[1])
        e.S("s_cmp_eq_u64", VCC, 0)
        e.branch("s_cbranch_scc1", lok)
        e.cond_begin()
        e.S("s_mov_b32", sCnt, 0)
        e.label(lre)
        e.misc("s_sleep 4")
        e.bload(RES[1], t, WS, s(4), 0, "sc1")
        e.V("v_cmp_ne_u32", VCC, s(5), RES[1])
        e.S("s_cmp_eq_u64", VCC, 0)
        e.branch("s_cbranch_scc1", lok)
        e.S("s_add_u32", sCnt, sCnt, 1)
        e.S("s_cmp_lt_u32", sCnt, 0x20000)
        e.branch("s_cbranch_scc1", lre)
        e.cond_end()
        e.label(lok)
        self.gate = 1 << 20
        yield

    def prologue2(self):
        e = self.e
        T0, T1, T2, T3, T4, T5 = [TMP[40 + i] for i in range(6)]
        mk_srd(e, OUT, pOut, XSZ)
        e.S("s_and_b32", sKH, sWave, 1)
        e.S("s_lshl_b32", sW2048, sWave, 11)
        e.S("s_mul_i32", sA, sC, NA * KB)
        e.S("s_add_u32", sSeg["A"], sA, WA)
        e.S("s_mul_i32", sA, sCG, NO * KB)
        e.S("s_add_u32", sSeg["O"], sA, WO)
        e.S("s_mul_i32", sA, sC, NB * KB)
        e.S("s_add_u32", sSeg["B"], sA, WB)
        e.S("s_mul_i32", sA, sCG, NC * KB)
        e.S("s_add_u32", sSeg["C"], sA, WC)
        e.V("v_add_u32", vDma, sW2048, vL16)
        e.S("s_mul_i32", sXr, sR, 160 * KB)
        e.S("s_mul_i32", sHr, sR, 432 * KB)
        e.S("s_lshl_b32", sSTr, sR, 13)
        e.S("s_mul_i32", sA, sWave, 40 * KB)
        e.V("v_add_u32", vAx[0], sA, vL16)
        e.V("v_add_u32", vAx[1], 20 * KB, vAx[0])
        e.V("v_lshlrev_b32", T0, 11, vG)
        e.V("v_lshl_add_u32", T0, vN, 3, T0)
        e.S("s_lshl_b32", sA, sWave, 8)
        e.V("v_add_u32", vSt, sA, T0)
        e.S("s_mov_b32", self.cInvD, lit(1.0 / D))
        for j in range(3):
            if j == 0:
                e.V("v_mov_b32", vW[0], vL16)
            else:
                e.V("v_add_u32", vW[j], j * 65536, vL16)
        e.S("s_lshl_b32", sA, sKH, 10)
        for j in range(3):
            e.V("v_add_u32", vK[j], sA, vW[j])
        e.S("s_lshl_b32", sTT, sRH, 2)
        e.S("s_add_u32", sTT, sTT, sWave)
        e.S("s_xor_b32", sB, sTT, 1)
        for u, st in ((0, sTT), (1, sB)):
            e.S("s_mul_i32", sA, st, 20 * KB)
            e.S("s_mul_i32", sD, sKH, 10 * KB)
            e.S("s_add_u32", sA, sA, sD)
            e.V("v_add_u32", vAo[u], sA, vL16)
            e.S("s_mul_i32", sA, st, 54 * KB)
            e.S("s_mul_i32", sD, sKH, 27 * KB)
            e.S("s_add_u32", sA, sA, sD)
            e.V("v_add_u32", vAh[u], sA, vL16)
        e.V("v_lshrrev_b32", T0, 1, vG)
        e.V("v_and_b32", T1, 1, vG)
        e.V("v_lshlrev_b32", T2, 4, vN)
        e.V("v_lshl_add_u32", T3, T0, 8, T2)
        e.V("v_lshl_add_u32", T3, T1, 3, T3)
        e.S("s_mul_i32", sA, sTT, 20 * KB)
        e.V("v_add_u32", vXs, sA, vL16)
        e.V("v_add_u32", vXh, sA, T3)
        e.S("s_mul_i32", sA, sWave, 108 * KB)
        e.V("v_add_u32", vHs, sA, vL16)
        e.S("s_cmp_ge_u32", sC, 12)
        e.S("s_cselect_b32", sA, BIG, sA)
        e.V("v_add_u32", vHh, sA, T3)
        e.S("s_mul_i32", sA, sWave, 40 * KB)
        e.V("v_lshl_add_u32", T3, vG, 3, T2)
        e.V("v_add_u32", vOh, sA, T3)
        e.V("v_cmp_gt_u32", VCC, 2, vG)
        e.V("v_mov_b32", T3, BIG)
        e.V("v_cndmask_b32", vOh, T3, vOh, VCC)
        e.S("s_lshl_b32", sA, sTT, 7)
        e.V("v_lshl_add_u32", T3, vN, 3, sA)
        e.V("v_lshl_add_u32", vStW, T0, 2, T3)
        e.S("s_lshl_b32", sA, sWave, 7)
        e.S("s_add_u32", sA, sA, RST)
        e.V("v_lshl_add_u32", vRT, vG, 4, sA)
        e.V("v_lshl_add_u32", vRW, vN, 2, sA)
        e.S("s_lshl_b32", sA, sTT, 6)
        e.S("s_add_u32", sA, sA, RST)
        e.V("v_lshl_add_u32", vRF, vN, 2, sA)
        e.V("v_lshlrev_b32", T3, 4, vG)
        e.V("v_add_u32", vZ2, ZT + 128, T3)
        e.V("v_cmp_gt_u32", VCC, 10, vN)
        e.V("v_add_u32", T3, ZT, T3)
        e.V("v_cndmask_b32", vZ01, vZ2, T3, VCC)
        e.S("s_lshl_b32", sA, sR, 3)
        e.S("s_add_u32", sA, sA, sTT)
        e.S("s_mul_i32", sA, sA, 16 * 1280)
        e.S("s_mul_i32", sB, sCG, 160)
        e.S("s_add_u32", sA, sA, sB)
        e.V("v_mul_u32_u24", T3, 1280, vN)
        e.V("v_add_u32", T3, sA, T3)
        e.V("v_lshl_add_u32", vOut, vG, 4, T3)
        e.V("v_lshl_add_u32", vOut4, vG, 3, T3)
        e.S("s_mul_i32", sA, sWave, 5120)
        e.V("v_add_u32", vXch, sA, vL16)
        e.V("v_lshlrev_b32", vFl, 2, vN)
        e.V("v_mov_b32", vLn2[0], lit(LN2))
        e.V("v_mov_b32", vEps[0], lit(1e-6))
        e.S("s_mov_b32", sMaskV[0], "0x00ff00ff")
        e.S("s_mov_b32", sMaskV[1], "0x00ff00ff")
        e.S("s_lshl_b32", sA, sR, 8)
        e.S("s_add_u32", sFRL, sA, FLG_RL)
        e.S("s_add_u32", sFRG, sA, FLG_RG)
        e.S("s_lshl_b32", sA, sC, 8)
        e.S("s_add_u32", sFC, sA, FLG_C)
        e.S("s_lshl_b32", sA, sCG, 11)
        e.S("s_add_u32", sOx, sXr, sA)
        e.S("s_lshr_b32", sA, sCG, 1)
        e.S("s_lshl_b32", sA, sA, 10)
        e.S("s_and_b32", sB, sCG, 1)
        e.S("s_lshl_b32", sB, sB, 9)
        e.S("s_add_u32", sA, sA, sB)
        e.S("s_add_u32", sA, sA, 16 * KB)
        e.S("s_add_u32", sOxh, sXr, sA)
        e.S("s_lshl_b32", sA, sCG, 10)
        e.S("s_add_u32", sOst, sSTr, sA)
        e.S("s_lshl_b32", sA, sC, 10)
        e.S("s_add_u32", sOo, sXr, sA)
        e.S("s_lshl_b32", sA, sC, 8)
        e.S("s_add_u32", sA, sA, 16 * KB)
        e.S("s_add_u32", sOoh, sXr, sA)
        e.S("s_mul_i32", sA, sC, 3 * KB)
        e.S("s_add_u32", sOh, sHr, sA)
        e.S("s_lshl_b32", sA, sC, 9)
        e.S("s_add_u32", sA, sA, 48 * KB)
        e.S("s_add_u32", sOhh, sHr, sA)
        e.S("s_mul_i32", sKv, sC, 16 * KVSZ)
        e.misc(f"s_getreg_b32 {sX1}, hwreg(HW_REG_XCC_ID, 0, 4)")
        e.S("s_and_b32", sX1, sX1, 7)
        e.S("s_add_u32", sX1, sX1, 8)
        e.S("s_add_u32", sX1, sX1, sBase)
        e.S("s_mov_b32", sLocal, 0)
        U, Hh, Ee, Dq = T0, T1, T2, T3
        e.S("s_mov_b32", sA, 52429)
        e.V("v_mul_u32_u24", U, sA, v(0))
        e.V("v_lshrrev_b32", U, 18, U)
        e.V("v_mul_u32_u24", Dq, 5, U)
        e.V("v_sub_u32", Dq, v(0), Dq)
        e.V("v_cmp_le_u32", VCC, 21, U)
        e.V("v_cndmask_b32", Hh, 0, 1, VCC)
        e.V("v_mul_u32_u24", Ee, 21, Hh)
        e.V("v_sub_u32", Ee, U, Ee)
        A0, A1, A2, A3 = TMP[46], TMP[47], ACC[36], ACC[37]
        e.V("v_cmp_le_u32", s(100, 2), 16, Ee)
        e.V("v_cmp_eq_u32", s(88, 2), 4, Dq)
        e.V("v_cndmask_b32", A0, 0, 1, s(100, 2))
        e.V("v_lshl_add_u32", A0, Hh, 1, A0)
        e.V("v_add_u32", A1, 4, Hh)
        e.V("v_cndmask_b32", A1, A1, 6, s(100, 2))
        e.V("v_cndmask_b32", A0, A0, A1, s(88, 2))
        e.V("v_cndmask_b32", A1, Dq, Hh, s(88, 2))
        e.V("v_lshl_add_u32", A2, Hh, 2, Ee)
        e.V("v_subrev_u32", A2, 8, A2)
        e.V("v_cndmask_b32", A2, Ee, A2, s(100, 2))
        e.V("v_cmp_eq_u32", VCC, 20, Ee)
        e.V("v_cndmask_b32", A2, A2, 0, VCC)
        e.V("v_lshl_add_u32", A1, A1, 4, A2)
        e.V("v_lshlrev_b32", A1, 4, A1)
        e.V("v_lshl_add_u32", vKvSrc, A0, 10, A1)
        e.V("v_mul_u32_u24", A0, 5, Hh)
        e.V("v_add_u32", A0, A0, Dq)
        e.V("v_cmp_le_u32", s(88, 2), 8, A0)
        e.V("v_lshrrev_b32", A1, 1, A0)
        e.V("v_subrev_u32", A2, 8, A0)
        e.V("v_cndmask_b32", A1, A1, A2, s(88, 2))
        e.V("v_and_b32", A2, 1, A0)
        e.V("v_cndmask_b32", A2, A2, 0, s(88, 2))
        e.V("v_lshlrev_b32", A2, 3, A2)
        e.V("v_cndmask_b32", A0, 0, 1, s(88, 2))
        e.V("v_lshl_add_u32", A3, Hh, 1, A0)
        e.V("v_lshl_add_u32", A3, A3, 2, A1)
        e.V("v_lshl_add_u32", A3, A3, 4, A2)
        e.V("v_add_u32", A3, ZT, A3)
        e.V("v_mul_u32_u24", T4, 20, Hh)
        e.V("v_add_u32", T4, T4, Ee)
        e.V("v_cmp_le_u32", s(100, 2), 32, T4)
        e.V("v_and_b32", T5, 1, T4)
        e.V("v_cndmask_b32", T5, T5, 2, s(100, 2))
        e.V("v_lshl_add_u32", A0, T5, 1, A0)
        e.V("v_lshrrev_b32", T5, 1, T4)
        e.V("v_subrev_u32", T4, 32, T4)
        e.V("v_cndmask_b32", T4, T5, T4, s(100, 2))
        e.V("v_lshl_add_u32", T4, A1, 4, T4)
        e.V("v_lshl_add_u32", T4, T4, 4, A2)
        e.V("v_lshl_add_u32", T4, A0, 10, T4)
        e.V("v_cndmask_b32", T4, T4, A3, VCC)
        e.V("v_cmp_gt_u32", VCC, 210, v(0))
        e.V("v_mov_b32", T5, DUMMY)
        e.V("v_cndmask_b32", vKvDst, T5, T4, VCC)
        e.V("v_cndmask_b32", vKvSrc, 0, vKvSrc, VCC)
        e.V("v_lshlrev_b32", T4, 3, v(0))
        e.V("v_mov_b32", T5, BIG)
        e.V("v_cndmask_b32", vT16, T5, T4, VCC)
        e.V("v_and_b32", T4, -16, T4)
        e.V("v_and_b32", T0, 1, v(0))
        e.V("v_mul_u32_u24", T0, 8 * KVSZ, T0)
        e.V("v_add_u32", T4, T4, T0)
        e.V("v_cndmask_b32", vT16L, T5, T4, VCC)

    def late_loads(self):
        e = self.e
        T4, T5 = TMP[48], TMP[49]
        e.S("s_mul_i32", sB, sCG, 160)
        e.bload(RES[10:14], vOut, XIN, 0, 0)
        e.bload(RES[14:18], vOut, XIN, 0, 64)
        e.bload(RES[18:20], vOut4, XIN, 0, 128)
        skip = e.newlabel("noxid")
        e.S("s_cmp_lg_u32", sWave, 3)
        e.branch("s_cbranch_scc1", skip)
        e.cond_begin()
        e.S("s_lshl_b32", sA, sR, 8)
        e.S("s_add_u32", sA, sA, FLG_X)
        e.S("s_lshl_b32", sB, sC, 2)
        e.V("v_mov_b32", T4, sB)
        e.V("v_mov_b32", T5, sX1)
        e.S("s_mov_b64", EXEC, 1)
        e.bstore(T5, T4, WS, sA, 0, "sc1")
        e.S("s_mov_b64", EXEC, -1)
        e.cond_end()
        e.label(skip)

    def unpack(self, dst, pk):
        e = self.e
        for a_ in range(2):
            for j in range(4):
                e.V("v_lshlrev_b32", dst[8 * a_ + j], 16, pk[4 * a_ + j])
                e.V("v_and_b32", dst[8 * a_ + 4 + j], "0xffff0000", pk[4 * a_ + j])
        for j in range(2):
            e.V("v_lshlrev_b32", dst[16 + 2 * j], 16, pk[8 + j])
            e.V("v_and_b32", dst[16 + 2 * j + 1], "0xffff0000", pk[8 + j])

    class ALoad:
        def __init__(self, m, vaddr, terms, nks):
            self.m, self.vaddr, self.terms, self.nks = m, vaddr, terms, nks
            self.n = 0
            self.based = -1
            self.done = False
            self.win = 20

        def step(self):
            e = self.m.e
            ks, u = divmod(self.n, 2)
            if ks // 4 != self.based:
                self.based = ks // 4
                e.S("s_add_u32", sLd, self.terms[0], self.terms[1] + (ks // 4) * 4 * KB)
                return False
            e.bload(a((self.n % 40) * 4, 4), self.vaddr[u], WS, sLd, (ks % 4) * KB, self.m.opt.get("amod", "sc1"), cls=(self.m.opt.get("latA", 600), 76, 33 if self.nks == 27 else 16))
            self.n += 1
            self.done = self.n >= 2 * self.nks
            return True

        def upto(self, ks):
            while self.n < 2 * min(ks + 1, self.nks):
                self.step()

    def stats_loads(self, ver):
        e = self.e
        e.S("s_add_u32", sA, sSTr, STB[ver])
        for u in range(2):
            for k in range(2):
                e.bload(TMP[4 * u + 2 * k:4 * u + 2 * k + 2], vSt, WS, sA, k * 1024 + u * 128, "sc1", cls=(600, 20, 0))

    def stats_gen(self, need_T, have=False):
        e = self.e
        for u in range(2):
            sm, sq, t0, t1 = TMP[4 * u], TMP[4 * u + 1], TMP[4 * u + 2], TMP[4 * u + 3]
            if not have:
                e.V("v_add_f32", sm, sm, t0); yield
                e.V("v_add_f32", sq, sq, t1); yield
            for op in () if have else ("v_permlane32_swap_b32", "v_permlane16_swap_b32"):
                e.V("v_mov_b32", t0, sm); yield
                e.V("v_mov_b32", t1, sq); yield
                e.V(op, sm, t0); yield
                e.V(op, sq, t1); yield
                e.V("v_add_f32", sm, sm, t0); yield
                e.V("v_add_f32", sq, sq, t1); yield
            e.V("v_mul_f32", sm, lit(1.0 / D), sm); yield
            e.V("v_mul_f32", t0, sm, sm); yield
            e.V("v_fma_f32", sq, sq, self.cInvD, Neg(t0)); yield
            e.V("v_max_f32", sq, 0, sq); yield
            e.V("v_add_f32", sq, lit(1e-5), sq); yield
            e.V("v_rsq_f32", t0, sq); yield
            e.V("v_cvt_pk_bf16_f32", XE[u][0], sm, sm); yield
            e.V("v_mul_f32", sq, sq, t0); yield
            e.ds_write(vRW, t0, 64 * u); yield
            c2 = vC2 if u == 0 else vC2b
            e.V("v_mul_f32", c2[0], lit(LOG2E), t0); yield
            e.V("v_lshlrev_b32", t1, 16, XE[u][0]); yield
            e.V("v_sub_f32", sm, sm, t1); yield
            e.V("v_cvt_pk_bf16_f32", XE[u][1], sm, sq); yield
            e.V("v_and_b32", t1, "0xffff0000", XE[u][1]); yield
            e.V("v_sub_f32", t1, sq, t1); yield
            e.V("v_cvt_pk_bf16_f32", XE[u][3], sm, t1); yield
            e.V("v_mov_b32", XE[u][2], XE[u][0]); yield
        if need_T:
            for u in range(2):
                e.ds_read(RT[4 * u:4 * u + 4], vRT, 64 * u); yield

    def phi_pair(self, src, c2, bcast, t):
        e = self.e
        m = "op_sel_hi:[1,0]" if bcast else ""
        e.V("v_pk_mul_f32", t[0:2], src, c2, mods=m)
        e.V("v_exp_f32_e64", t[2], t[0], mods="clamp")
        e.V("v_exp_f32_e64", t[3], t[1], mods="clamp")
        e.V("v_max_f32", t[0], 0, t[0])
        e.V("v_max_f32", t[1], 0, t[1])
        e.V("v_pk_add_f32", t[2:4], t[2:4], vEps, mods="op_sel_hi:[1,0]")
        e.V("v_pk_fma_f32", t[0:2], t[0:2], vLn2, t[2:4], mods="op_sel_hi:[1,0,1]")

    def scratch(self, nblk, endpos):
        st = endpos - nblk
        if (st % RB) + nblk > RB:
            st = endpos - (endpos % RB) - nblk
        self.last_scratch = (st, st + nblk)
        return st, self.ldsaddr(st)

    def bg_on(self, tail):
        e = self.e
        st = {"next": 0}
        t_end = e.T + tail
        self.deadline = lambda: t_end

        def f():
            if e.T >= st["next"] and self.dma_ok():
                n0 = len(e.vm) + len(e.lg) + len(self.deferred)
                while len(e.vm) + len(e.lg) + len(self.deferred) == n0:
                    next(self.dmaf)
                st["next"] = e.T + self.opt.get("vgap", 24)
        self.e.bg = f

    def code_touch(self, ahead=None):
        e = self.e
        if not self.opt.get("ctouch", 1):
            return
        lab = e.newlabel("here")
        e.label(lab)
        ahead = self.opt.get("cahead", 2048) if ahead is None else ahead
        e.V("v_lshlrev_b32", v(51), 5, v(0))
        e.V("v_add_u32", v(51), f"{lab}-{self.kname}+{ahead}", v(51))
        e.V("v_min_u32", v(51), self.opt.get("code_bytes", 32768) - 4, v(51))
        e.misc(f"global_load_dword {vDum}, {v(51)}, s[96:97]")
        e._vm([], (800, 30, 10))

    def at_block(self, t, gen):
        i0 = self.cons
        while self.cons < i0 + t:
            yield "idle"
        yield from gen

    def delay(self, n, gen):
        for _ in range(n):
            yield "idle"
        yield from gen

    def code_touch_gen(self):
        self.code_touch(self.opt.get("cahead", 512))
        yield

    def bg_off(self):
        self.e.bg = None

    def gstore(self, lst, cold=False):
        e = self.e
        mode = self.opt.get("mode", "dual")
        if cold and not self.opt.get("touchcold", 0):
            mode = "safe"
        if mode != "dual":
            return [e.bstore(d, vo, WS, so, off, "sc1" if mode == "safe" else "") for d, vo, so, off in lst]
        ls, le = e.newlabel("st_safe"), e.newlabel("st_end")
        regs = []
        for d, vo, so, off in lst:
            regs += d.regs() + vo.regs()
        e.wait_ops(e._pending(regs))
        e.S("s_cmp_eq_u32", sLocal, 0)
        need = e._need("vmem", regs, [])
        if need > 1:
            e.nop(need - 1)
        e.branch("s_cbranch_scc1", ls)
        n0 = len(e.lines)
        ops = [e.bstore(d, vo, WS, so, off, "") for d, vo, so, off in lst]
        body = e.lines[n0:]
        assert len(body) == len(lst), body
        e.raw(f"  s_branch {le}")
        e.label(ls)
        for l in body:
            e.raw(l + " sc1")
        e.label(le)
        return ops

    def touch_gen(self, lst, cold=False):
        e = self.e
        if (cold and not self.opt.get("touchcold", 0)) or not self.opt.get("touch", 0):
            return
        for vo, sb, add, off in lst:
            e.S("s_add_u32", sE, sb, add); yield
            e.touch(vDum, vo, WS, sE, off, cls=(750, 80, 30)); yield

    def local_gen(self):
        e = self.e
        e.S("s_lshl_b32", s(6), sR, 8); yield
        e.S("s_add_u32", s(6), s(6), FLG_X); yield
        e.bload(TMP[39], vFl, WS, s(6), 0, "sc1"); yield
        for _ in range(40):
            yield "idle"
        e.V("v_cmp_ne_u32", VCC, sX1, TMP[39]); yield
        e.S("s_cmp_eq_u64", VCC, 0)
        e.S("s_cselect_b32", sLocal, 1, 0); yield

    def poll(self, kind, val):
        e = self.e
        skip = e.newlabel("nopoll")
        loop = e.newlabel("poll")
        e.S("s_cmp_lg_u32", sWave, 0)
        e.branch("s_cbranch_scc1", skip)
        e.cond_begin()
        t = TMP[38]
        e.S("s_mov_b32", sCnt, 0)
        e.S("s_mov_b64", sOk, 0)
        e.S("s_add_u32", sB, sBase, val)
        va, vb, sa, sb = (vFl, vFl, sFRL, sFRG) if kind != "col" else (vFl, vFl, sFC, sFC)
        if kind == "both":
            va, vb, sa, sb = TMP[36], TMP[37], 0, 0
            e.V("v_cmp_gt_u32", VCC, 2, vG)
            e.V("v_mov_b32", va, sFC)
            e.V("v_mov_b32", vb, sFRL)
            e.V("v_cndmask_b32", va, vb, va, VCC)
            e.V("v_add_u32", va, va, vFl)
            e.V("v_mov_b32", vb, FLG_RG - FLG_RL)
            e.V("v_cndmask_b32", vb, vb, 0, VCC)
            e.V("v_add_u32", vb, va, vb)
        if kind == "row":
            e.S("s_cmp_eq_u32", sLocal, 0)
            e.S("s_cselect_b32", sD, 3, -1)
        else:
            e.S("s_mov_b32", sD, 3)
        e.label(loop)

        def chk():
            e.misc("s_waitcnt vmcnt(0)")
            e.misc(f"v_subrev_u32 {t}, {sB}, {t}")
            e.misc(f"v_cmp_ge_u32 vcc, 1, {t}")
            e.misc(f"s_or_b64 {sOk}, {sOk}, vcc")
            e.misc(f"s_cmp_eq_u64 {sOk}, -1")
            e.misc(f"s_cbranch_scc1 {skip}")
        e.misc(f"buffer_load_dword {t}, {va}, {WS}, {sa} offen sc1")
        e.misc("s_add_u32 %s, %s, 1" % (sCnt, sCnt))
        chk()
        if kind != "row":
            e.misc("s_sleep 3")
        lnext = e.newlabel("pollnext")
        e.misc(f"s_and_b32 {sA}, {sCnt}, {sD}")
        e.misc(f"s_cbranch_scc1 {lnext}")
        e.misc(f"buffer_load_dword {t}, {vb}, {WS}, {sb} offen sc1")
        chk()
        e.label(lnext)
        e.misc(f"s_cmp_lt_u32 {sCnt}, 0x80000")
        e.misc(f"s_cbranch_scc1 {loop}")
        e.cond_end()
        e.label(skip)

    def flag(self, kind, val, t0=TMP[37], t1=TMP[38]):
        e = self.e
        lst = [(1, sFRG, "sc1", sC), (2, sFRL, "", sC)] if kind != "col" else []
        if kind != "row":
            lst.append((3, sFC, "sc1", sR))
        for w, sb, m, sidx in lst:
            skip = e.newlabel("noflag")
            if w == 1 and self.opt.get("skipg", 1):
                e.S("s_lshl_b32", sA, sLocal, 2)
                e.S("s_add_u32", sA, sA, sWave)
                e.S("s_cmp_lg_u32", sA, w)
            else:
                e.S("s_cmp_lg_u32", sWave, w)
            e.branch("s_cbranch_scc1", skip)
            e.cond_begin()
            e.S("s_lshl_b32", sA, sidx, 2)
            e.V("v_mov_b32", t0, sA)
            e.S("s_add_u32", sA, sBase, val)
            e.V("v_mov_b32", t1, sA)
            e.S("s_mov_b64", EXEC, 1)
            e.bstore(t1, t0, WS, sb, 0, m)
            e.S("s_mov_b64", EXEC, -1)
            e.cond_end()
            e.label(skip)

    def handoff(self, val, ops, shadow=None, touch=()):
        e = self.e
        t_st = e.T
        hk = (val - 2) % 4
        pick = lambda name, d: self.opt[name + "s"][hk] if name + "s" in self.opt else self.opt.get(name, d)
        self.deadline = lambda: t_st + pick("topup", 2600)
        self.own_end = 0
        while self.dma_ok():
            next(self.dmaf)
        while self.stage_step():
            pass
        self.finish_stage()
        self.restore(self.opt.get("rest1", 2))
        e.wait_all_lg()
        self.ring_barrier(self.cons + FI + self.opt.get("ahead", 16), ops)
        self.hold = None
        self.flag("row", val)
        self.stamp("flag")
        t_flag = e.T
        if self.opt.get("post_touch", 0):
            for k, (vo, sb, add, off) in enumerate(touch):
                sr = sE if k % 2 else sD
                e.S("s_add_u32", sr, sb, add)
                e.touch(vDum, vo, WS, sr, off, "sc1", cls=(750, 66, 30))
        self.deadline = lambda: t_flag + pick("topup2", 1500)
        while self.dma_ok():
            next(self.dmaf)
        while self.stage_step():
            pass
        self.finish_stage()
        self.warn.append(f"staged {len(self.staged)}")
        self.stage_plan = []
        self.prime()
        self.restore(self.opt.get("rest2", 8) if hk == 3 else 99)
        self.restg = self.restore_gen(99)
        if shadow:
            shadow()
        self.poll("row", val)
        e.T = max(e.T, t_flag + 1000)
        e.barrier()
        self.stamp("go")

    def phaseA(self, p):
        e = self.e
        opt = self.opt
        xv = 2 * p
        acc = lambda T, u: ACC[(T * 2 + u) * 4:(T * 2 + u) * 4 + 4]
        xf = lambda ks, u: a((ks * 2 + u) * 4, 4) if ks < 20 else XE[u]
        if p == 0:
            e.S("s_mov_b32", sSel[0], "0x00003f80")
            e.S("s_mov_b32", sSel[1], "0x3f800000")
            e.S("s_mov_b32", sOdd[0], "0xaaaaaaaa")
            e.S("s_mov_b32", sOdd[1], "0xaaaaaaaa")
            e.S("s_getpc_b64", s(96, 2))
            e.label("main_pc2")
            e.S("s_sub_u32", s(96), s(96), "main_pc2-" + self.kname)
            e.S("s_subb_u32", s(97), s(97), 0)
            for _ in range(opt.get("first_groups", 6 if self.al0 else 3)):
                for _ in self.dma_group():
                    pass
        if p == 0 and self.al0:
            al = None
            for _ in self.stats_gen(True, True):
                pass
            fl0 = [(x for x in ())]
            next(fl0[0], None)
        else:
            al = self.ALoad(self, vAx, (sXr, XB[xv]), 20)
            al.upto(opt.get("adist", 4) - 1)
            self.stats_loads(xv)
            fl0 = [self.delay(opt.get("stdelay", 24), self.stats_gen(True))]
        sc_keep = self.last_scratch
        if p:
            fl0.append(self.restg)
        if p == 0:
            if opt.get("r2st", 2) == 0:
                self.r2_stores()
                self.late_loads()
            e.wait_all_lg()
            if opt.get("r2st", 2) == 2:
                self.ring_barrier(FI + 8, self.ops2)
                self.flag("col", 2)
                fl0.append(self.at_block(opt.get("w2at", 72), self.w2_gen()))
            else:
                self.ring_barrier(FI + 8)
            self.prime()
            self.stamp("start")
            if opt.get("keep", 12):
                self.capg = self.capture_gen(opt.get("keep0", 3), opt.get("keep", 12))
                next(self.capg)
                fl0.append(self.capg)
        st1 = {}

        def hook1(t):
            if t >= opt.get("w2flag_at", 30) and not st1.get("done"):
                st1["done"] = t
                return self.ops2, (lambda: self.flag("col", 2))
            return [], None

        def add1(t):
            if st1.get("done") and t >= opt.get("w2chk_at", 70) and not st1.get("chk"):
                st1["chk"] = True
                return self.w2_gen()
        i0 = self.seqstart[("A1", p)]
        fb = 102
        sst, sad = self.scratch(28, self.seq[i0 + fb][0])
        self.last_scratch = sc_keep
        self.hold = sst

        C2T = ACC[40:48]

        def pre_gen(first):
            while first.gi_frame is not None:
                yield "idle"
            e.S("s_mul_i32", s(7), sWave, 7168); yield
            e.S("s_add_u32", s(7), s(7), sad); yield
            e.V("v_add_u32", TMP[24], s(7), vL16); yield
            e.V("v_add_u32", TMP[25], sad, vKvSrc); yield
            e.S("s_mul_i32", s(7), sR, KVSZ); yield
            e.S("s_add_u32", s(7), s(7), sKv); yield
            e.S("s_add_u32", s(7), s(7), KVB[p]); yield
            for _ in range(8):
                yield "idle"
            for j in range(8):
                e.V("v_mul_f32", C2T[j], lit(LOG2E), RT[j]); yield
        fl0.append(pre_gen(fl0[0]))

        def must_gen():
            yield from fl0[0]
            yield from fl0[-1]
            while self.capg and self.cap_next < sst + 28:
                next(self.capg)
                yield

        def mf(t, W, u):
            ks, T = divmod(t, 5)
            e.mfma(acc(T, u), xf(ks, u), W, acc(T, u) if ks else 0)
        self.run_pass(105, mf, 5, xf, fl0, must=must_gen(), chunk=(8 if p == 0 else 24), stop_reads=self.seqstart[("A4", p)], aload=al,
                      force_bar=fb, tail=6000, mix=opt.get("mixA", 0) if p else 0,
                      late=(60, self.touch_gen([(vAx[0], sOo, OB[p], 0), (vAx[1], sOo, OB[p], 0), (vOh, sOoh, OB[p], 0), (vOh, sOoh, OB[p] + 20 * KB, 0)], p == 0)), hooks={"bar": hook1, "add": add1} if (p == 0 and opt.get("r2st", 2) == 0) else None)
        if p == 0 and opt.get("r2st", 2) == 1:
            self.dma_all()
            self.r2_stores()
            self.late_loads()
        assert sst + 28 <= self.freed and sst + 28 <= self.cap_hold, (sst, self.cap_hold)
        self.stamp("A1")
        self.bg_on(5000)
        KF = [TMP[8:12], TMP[12:16], TMP[16:20]]
        VF = {3: TMP[20:24], 4: ACC[56:60], 2: ACC[60:64]}
        tt = [ACC[48:52], ACC[52:56]]
        TA0, TA1 = TMP[24], TMP[25]
        n = 0
        for T in range(3):
            for u in range(2):
                for h in range(2):
                    t = tt[n % 2]
                    n += 1
                    self.phi_pair(acc(T, u)[2 * h:2 * h + 2], C2T[4 * u + 2 * h:4 * u + 2 * h + 2], False, t)
                    e.V("v_cvt_pk_bf16_f32", KF[T][2 * u + h], t[0], t[1])
        for T in (3, 4, 2):
            for u in range(2):
                for h in range(2):
                    x = acc(T, u)[2 * h:2 * h + 2]
                    e.V("v_pk_mul_f32", x, x, RT[4 * u + 2 * h:4 * u + 2 * h + 2])
            for u in range(2):
                for h in range(2):
                    x = acc(T, u)[2 * h:2 * h + 2]
                    e.V("v_cvt_pk_bf16_f32", VF[T][2 * u + h], x[0], x[1])
        for j in range(4):
            e.V("v_cndmask_b32", VF[2][j], VF[2][j], vOne, sMaskV)
        PR = [ACC[4 * i:4 * i + 4] for i in range(7)]
        prods = [(0, 3), (0, 2), (1, 4), (1, 2), (2, 3), (2, 4), (2, 2)]
        for i, (kt, vt) in enumerate(prods):
            e.mfma(PR[i], KF[kt], VF[vt], 0)
        for i in range(7):
            e.ds_write(TA0, PR[i], i * 1024)
        e.wait_all_lg()
        e.barrier()
        RD = [ACC[4 * w:4 * w + 4] for w in range(4)]
        for w in range(4):
            e.ds_read(RD[w], TA1, w * 7168)
        for h in range(2):
            e.V("v_pk_add_f32", RD[0][2 * h:2 * h + 2], RD[0][2 * h:2 * h + 2], RD[1][2 * h:2 * h + 2])
            e.V("v_pk_add_f32", RD[2][2 * h:2 * h + 2], RD[2][2 * h:2 * h + 2], RD[3][2 * h:2 * h + 2])
        for h in range(2):
            e.V("v_pk_add_f32", RD[0][2 * h:2 * h + 2], RD[0][2 * h:2 * h + 2], RD[2][2 * h:2 * h + 2])
        e.V("v_cvt_pk_bf16_f32", RD[1][0], RD[0][0], RD[0][1])
        e.V("v_cvt_pk_bf16_f32", RD[1][1], RD[0][2], RD[0][3])
        kvst = e.bstore(RD[1][0:2], vT16, WS, s(7), 0, "sc1")
        self.bg_off()
        self.stamp("kvpub")
        PL = [ACC[4 * i:4 * i + 4] for i in range(10)]

        st2 = {}

        def barhook(t):
            def rel():
                self.hold = None

            def relflag():
                self.hold = None
                self.flag("col", 2)
            if p == 0 and opt.get("r2st", 2) == 1 and not st2.get("done") and t >= opt.get("w2flag2_at", 12):
                st2["done"] = True
                return self.ops2, relflag
            return [], rel

        def kvloads():
            for i in range(8):
                if i % 2 == 0:
                    e.S("s_add_u32", sB, sKv, KVB[p] + i * KVSZ); yield
                e.bload(PL[i], vT16L, WS, sB, (i % 2) * KVSZ, "sc1", cls=(opt.get('kvlat', 800), 80, opt.get('kvsvc', 130))); yield

        def kvsum():
            SM = PL[8:10]
            for i in range(8):
                for d in range(4):
                    for h in range(2):
                        x = SM[d >> 1][2 * (d & 1) + h]
                        if i == 0:
                            e.V("v_dot2_f32_bf16", x, PL[i][d], sSel[h], 0)
                        else:
                            e.V("v_dot2c_f32_bf16", x, sSel[h], PL[i][d])
            for d in range(8):
                x = SM[d >> 2][d & 3]
                e.V("v_add_f32_dpp", x, x, x, mods="quad_perm:[1,0,3,2] row_mask:0xf bank_mask:0xf")
            for d in range(4):
                e.V("v_cndmask_b32", PL[0][d], SM[0][d], SM[1][d], sOdd)
            e.V("v_cmp_u_f32", VCC, PL[0][0], PL[0][1])
            e.V("v_cmp_u_f32", sNan, PL[0][2], PL[0][3])
            e.S("s_or_b64", VCC, VCC, sNan)

        def mfq(t, W, u):
            ks, T = divmod(t, 3)
            e.mfma(acc(5 + T, u), W, xf(ks, u), acc(5 + T, u) if ks else 0)
        self.lastbar = self.rd - 8
        fl = []
        if p == 0:
            fl = [self.local_gen()] + ([self.capg] if self.capg else [])
        self.run_pass(63, mfq, 3, xf, fl, stop_reads=self.seqstart[("A4", p)], hooks={"bar": barhook},
                      late=(opt.get("kvload_at", 40), kvloads()), see_all=True, force_bar=61, tail=1600 + self.opt.get("slack", 2400))
        if self.capg:
            n_ = 0
            for _ in self.capg:
                n_ += 1
                assert n_ < 1000
            self.capg = None
        self.stamp("A2")
        if p == 0 and opt.get("r2st", 2) == 1:
            assert st2.get("done")
            w2 = self.w2_gen()
            while next(w2) != "idle":
                pass
        if opt.get("qbg", 1):
            self.bg_on(1600 + self.opt.get("slack", 2400))
        PQ0 = [TMP[0:4], TMP[4:8]]
        PQ1 = [TMP[8:12], TMP[12:16]]
        tq = [TMP[16:20], TMP[20:24]]
        for u in range(2):
            c2 = vC2 if u == 0 else vC2b
            for h in range(2):
                self.phi_pair(acc(5, u)[2 * h:2 * h + 2], c2, True, tq[0])
                self.phi_pair(acc(6, u)[2 * h:2 * h + 2], c2, True, tq[1])
                e.V("v_cvt_pk_bf16_f32", PQ0[u][2 * h], tq[0][0], tq[1][0])
                e.V("v_cvt_pk_bf16_f32", PQ0[u][2 * h + 1], tq[0][1], tq[1][1])
            for h in range(2):
                self.phi_pair(acc(7, u)[2 * h:2 * h + 2], c2, True, tq[h])
                e.V("v_cvt_pk_bf16_f32", PQ1[u][h], tq[h][0], tq[h][1])
            e.V("v_mov_b32", PQ1[u][2], 0)
            e.V("v_mov_b32", PQ1[u][3], 0)
        self.bg_off()
        self.stamp("qepi")
        kvsum()
        lok, lre = e.newlabel("kvok"), e.newlabel("kvretry")
        e.branch("s_cbranch_scc0", lok)
        e.cond_begin()
        e.S("s_mov_b32", sCnt, 0)
        e.label(lre)
        e.misc("s_sleep 4")
        for _ in kvloads():
            pass
        kvsum()
        e.branch("s_cbranch_scc0", lok)
        e.S("s_add_u32", sCnt, sCnt, 1)
        e.S("s_cmp_lt_u32", sCnt, 0x10000)
        e.branch("s_cbranch_scc1", lre)
        e.cond_end()
        e.label(lok)
        self.stamp("kvgo")
        if p == 0 and opt.get("r2st", 2) == 1:
            for _ in w2:
                pass

        self.bg_on(900 + self.opt.get("slack", 2400))
        e.V("v_cvt_pk_bf16_f32", TMP[16], PL[0][0], PL[0][1])
        e.V("v_cvt_pk_bf16_f32", TMP[17], PL[0][2], PL[0][3])
        e.ds_write(vKvDst, TMP[16:18])
        e.wait_all_lg()
        e.barrier()
        FR = [ACC[40 + 4 * i:44 + 4 * i] for i in range(6)] + [TMP[16 + 4 * i:20 + 4 * i] for i in range(4)]
        for T in range(3):
            for ks in range(2):
                e.ds_read(FR[T * 2 + ks], vL16, IMG + (T * 2 + ks) * KB)
        for ks in range(2):
            e.ds_read(FR[6 + ks], vZ01, ks * 64)
            e.ds_read(FR[8 + ks], vZ2, ks * 64)
        oa = lambda T, u: ACC[(T * 2 + u) * 4:(T * 2 + u) * 4 + 4]
        ops = []

        def norm(u, packed):
            den = (oa(3, u)[0], oa(3, u)[2], oa(4, u)[0])
            for x in den:
                e.V("v_add_f32", x, vEps[0], x); yield
            for x in den:
                e.V("v_rcp_f32", x, x); yield
            for T in range(3):
                for h in range(2):
                    x = oa(T, u)[2 * h:2 * h + 2]
                    dn = oa(3, u)[2 * h:2 * h + 2] if T < 2 else oa(4, u)[0:2]
                    if packed:
                        e.V("v_pk_mul_f32", x, x, dn, mods="op_sel_hi:[1,0]"); yield
                    else:
                        e.V("v_mul_f32", x[0], x[0], dn[0]); yield
                        e.V("v_mul_f32", x[1], x[1], dn[0]); yield
            o4 = TMP[8 * u:8 * u + 4] if False else RT[4 * u:4 * u + 4]
            o2 = XE[u][0:2]
            for j in range(4):
                e.V("v_cvt_pk_bf16_f32", o4[j], oa(0, u)[j], oa(1, u)[j]); yield
            for h in range(2):
                e.V("v_cvt_pk_bf16_f32", o2[h], oa(2, u)[2 * h], oa(2, u)[2 * h + 1]); yield
            ops.extend(self.gstore([(o4, vAx[u], sA, 0), (o2, vOh, sB if u == 0 else sD, 0)], p == 0 or opt.get("osafe")))
            yield
        bg, e.bg = e.bg, None
        order = [(T, k) for k in range(2) for T in (3, 4, 0, 1, 2)]
        for T, k in order:
            e.mfma(oa(T, 0), FR[2 * T + k], (PQ0, PQ1)[k][0], oa(T, 0) if k else 0)
        e.S("s_add_u32", sA, sOo, OB[p])
        e.S("s_add_u32", sB, sOoh, OB[p])
        g0 = norm(0, False)
        for n_, (T, k) in enumerate(order):
            e.mfma(oa(T, 1), FR[2 * T + k], (PQ0, PQ1)[k][1], oa(T, 1) if k else 0)
            if n_ == 0:
                e.S("s_add_u32", sD, sOoh, OB[p] + 20 * KB)
            elif n_ < 9:
                next(g0)
                if n_ not in (2, 3):
                    next(g0)
        e.bg = bg
        for _ in g0:
            pass
        for _ in norm(1, True):
            pass
        self.bg_off()
        self.stamp("A3")
        def shadow():
            e.S("s_mul_i32", sB, sCG, 160)
            e.V("v_lshl_add_u32", TMP[2], vG, 4, sB)
            e.V("v_lshl_add_u32", TMP[3], vG, 3, sB)
            e.bload(ACC[40:44], TMP[2], SB2, 0, 0, cls=(800, 20, 0))
            e.bload(ACC[44:48], TMP[2], SB2, 0, 64, cls=(800, 20, 0))
            e.bload(ACC[48:50], TMP[3], SB2, 0, 128, cls=(800, 20, 0))
            if p == 0:
                self.unpack(RES, RES[10:20])
        self.handoff(4 * p + 2, ops, shadow, [(vAx[0], sOo, OB[p], 0), (vAx[1], sOo, OB[p], 0), (vOh, sOoh, OB[p], 0), (vOh, sOoh, OB[p] + 20 * KB, 0)])

    def phase64(self, p, kind):
        e = self.e
        opt = self.opt
        nks = 10 if kind == "O" else 27
        name = "A4" if kind == "O" else "B2"
        acc = lambda T, u: ACC[(u * 5 + T) * 4:(u * 5 + T) * 4 + 4]
        if kind == "O":
            al = self.ALoad(self, vAo, (sXr, OB[p]), nks)
        else:
            al = self.ALoad(self, vAh, (sHr, HB[p]), nks)
        al.upto(opt.get("adist", 4) - 1)
        xf = lambda ks, u: a(((ks % 20) * 2 + u) * 4, 4)
        if kind == "C":
            e.ds_read(TMP[2], vRF)
        i0 = self.seqstart[(name, p)]
        fb = 5 * nks - 3
        sst, sad = self.scratch(20, self.seq[i0 + fb][0])
        self.hold = sst
        stop = i0 + 5 * nks

        def mf(t, W, u):
            ks, T = divmod(t, 5)
            u = 1 - u
            c0 = RES[4 * T:4 * T + 4] if (kind == "O" and u == 0) else 0
            e.mfma(acc(T, u), W, xf(ks, u), acc(T, u) if ks else c0)

        def addr_gen():
            e.V("v_add_u32", TMP[0], sad, vXch); yield
            e.S("s_xor_b32", sA, sWave, 1); yield
            e.S("s_mul_i32", sA, sA, 5120); yield
            e.S("s_add_u32", sA, sA, sad); yield
            e.V("v_add_u32", TMP[1], sA, vL16); yield
            if kind == "C":
                e.V("v_mul_f32", TMP[2], TMP[2], TMP[2]); yield
            if not last:
                e.S("s_add_u32", sA, sOx, XB[xv]); yield
                e.S("s_add_u32", sB, sOxh, XB[xv]); yield
                e.S("s_add_u32", sD, sOst, STB[xv]); yield
        last = kind == "C" and p == 1
        xv = 2 * p + (1 if kind == "O" else 2)
        tg = None if last else (0, self.touch_gen([(vXs, sOx, XB[xv], 0), (vXs, sOx, XB[xv], 1024), (vXh, sOxh, XB[xv], 0), (vStW, sOst, STB[xv], 0)]))
        fl = [self.delay(20, addr_gen())]
        self.run_pass(5 * nks, mf, 5, xf, fl, late=tg, force_bar=fb, chunk=(opt.get("chunkO", 12) if kind == "O" else opt.get("chunkC", 12)), stop_reads=stop, aload=al,
                      mix=opt.get("mixO", 0) if kind == "O" else 0, tail=900 + self.opt.get("slack", 2400))
        self.stamp(name)
        self.bg_on(900 + self.opt.get("slack", 2400))
        assert sst + 20 <= self.freed
        for T in range(5):
            e.ds_write(TMP[0], acc(T, 1), T * KB)
        e.wait_all_lg()
        e.barrier()
        PT = TMP[4:24]
        for T in range(5):
            e.ds_read(PT[4 * T:4 * T + 4], TMP[1], T * KB)
        own = ACC[0:20]
        for h in range(10):
            x = own[2 * h:2 * h + 2]
            e.V("v_pk_add_f32", x, x, PT[2 * h:2 * h + 2])
            if kind == "C":
                e.V("v_pk_fma_f32", x, x, TMP[2:4], RES[2 * h:2 * h + 2], mods="op_sel_hi:[1,0,1]")
        PK = TMP[24:34]
        for a_ in range(2):
            for j in range(4):
                e.V("v_cvt_pk_bf16_f32", PK[4 * a_ + j], own[8 * a_ + j], own[8 * a_ + 4 + j])
        for h in range(2):
            e.V("v_cvt_pk_bf16_f32", PK[8 + h], own[16 + 2 * h], own[16 + 2 * h + 1])
        self.bg_off()
        if last:
            om = self.opt.get("outmod", "")
            e.bstore(PK[0:4], vOut, OUT, 0, 0, om)
            e.bstore(PK[4:8], vOut, OUT, 0, 64, om)
            e.bstore(PK[8:10], vOut4, OUT, 0, 128, om)
            self.stamp("end")
            return
        xv = 2 * p + (1 if kind == "O" else 2)
        ops = []
        ops += self.gstore([(PK[0:4], vXs, sA, 0), (PK[4:8], vXs, sA, 1024), (PK[8:10], vXh, sB, 0)], xv == 1)
        sm, sq, t0 = TMP[36], TMP[37], TMP[38]
        e.V("v_mov_b32", sm, 0)
        e.V("v_mov_b32", sq, 0)
        for j in range(10):
            e.V("v_dot2c_f32_bf16", sm, PK[j], vOne)
            e.V("v_dot2c_f32_bf16", sq, PK[j], PK[j])
        e.V("v_permlane32_swap_b32", sm, sq)
        e.V("v_add_f32", sm, sm, sq)
        e.V("v_mov_b32", t0, sm)
        e.V("v_permlane16_swap_b32", sm, t0)
        e.V("v_add_f32", sm, sm, t0)
        ops += self.gstore([(sm, vStW, sD, 0)], xv == 1)
        self.stamp(name + "epi")

        def shadow():
            self.unpack(RES, PK)
            if kind == "O":
                self.unpack(ACC[20:40], ACC[40:50])
                for h in range(10):
                    x = RES[2 * h:2 * h + 2]
                    e.V("v_pk_add_f32", x, x, ACC[20 + 2 * h:22 + 2 * h])
        self.handoff(4 * p + (3 if kind == "O" else 5), ops, shadow,
                     [(vStW, sOst, STB[xv], 0), (vXs, sOx, XB[xv], 0), (vXs, sOx, XB[xv], 1024), (vXh, sOxh, XB[xv], 0)])

    def phaseB1(self, p):
        e = self.e
        opt = self.opt
        xv = 2 * p + 1
        acc = lambda T, u: ACC[(T * 2 + u) * 4:(T * 2 + u) * 4 + 4]
        xf = lambda ks, u: a((ks * 2 + u) * 4, 4) if ks < 20 else XE[u]
        al = self.ALoad(self, vAx, (sXr, XB[xv]), 20)
        al.upto(opt.get("adist", 4) - 1)
        self.stats_loads(xv)
        stop = self.seqstart[("B2", p)]
        g0 = self.seq[stop][0] // 8 + RB // 8
        self.stage_plan = list(range(g0, g0 + (opt.get("nstage", 0) if p else 0)))

        def mf(t, W, u):
            ks, T = divmod(t, B1N)
            e.mfma(acc(T, u), W, xf(ks, u), acc(T, u) if ks else 0)
        tl = [(vHs, sOh, HB[p] + u * 54 * KB, a_ * KB) for a_ in range(3) for u in range(2)] + [(vHh, sOhh, HB[p] + u * 54 * KB, 0) for u in range(2)]
        sg = self.delay(opt.get("stdelay", 24), self.stats_gen(False))
        flb = [sg]
        if p == 0 and opt.get("keepb", 4):
            gb = self.capture_gen(self.segs[2][1] // 8 + opt.get("keepb0", 8), opt.get("keepb", 4), 12)
            next(gb)
            flb.append(gb)
        self.run_pass(21 * B1N, mf, B1N, xf, flb, late=(0, self.touch_gen(tl, p == 0)), stop_reads=stop, aload=al, must=sg, mix=opt.get("mixB", 0), tail=700 * (7 - B1N) + 300 + self.opt.get("slack", 2400))
        self.stamp("B1a")
        ops = []

        def epi(pairs, single):
            n = 0
            for u in range(2):
                sb = sD if u == 0 else sE
                e.S("s_add_u32", sb, sOh, HB[p] + u * 54 * KB); yield
                for a_ in pairs:
                    o = TMP[16 + 4 * (n % 4):20 + 4 * (n % 4)]
                    n += 1
                    for j in range(4):
                        x, y = acc(2 * a_, u)[j], acc(2 * a_ + 1, u)[j]
                        e.V("v_mul_f32_e64", x, x, f"|{x}|"); yield
                        e.V("v_mul_f32_e64", y, y, f"|{y}|"); yield
                        e.V("v_cvt_pk_bf16_f32", o[j], x, y); yield
                        e.V("v_pk_max_i16", o[j], o[j], 0); yield
                    ops.extend(self.gstore([(o, vHs, sb, a_ * KB)], p == 0 or opt.get("hsafe", 1) == 1 or (opt.get("hsafe", 1) == 2 and not single))); yield
            if single:
                for u in range(2):
                    o = TMP[32 + 2 * u:34 + 2 * u]
                    for j in range(4):
                        x = acc(6, u)[j]
                        e.V("v_mul_f32_e64", x, x, f"|{x}|"); yield
                    for h in range(2):
                        e.V("v_cvt_pk_bf16_f32", o[h], acc(6, u)[2 * h], acc(6, u)[2 * h + 1]); yield
                        e.V("v_pk_max_i16", o[h], o[h], 0); yield
                e.S("s_add_u32", sA, sOhh, HB[p])
                e.S("s_add_u32", sB, sOhh, HB[p] + 54 * KB)
                ops.extend(self.gstore([(TMP[32:34], vHh, sA, 0), (TMP[34:36], vHh, sB, 0)], p == 0 or opt.get("hsafe", 1) == 1))
                yield

        def mf2(t, W, u):
            ks, T = divmod(t, 7 - B1N)
            e.mfma(acc(B1N + T, u), W, xf(ks, u), acc(B1N + T, u) if ks else 0)
        self.run_pass(21 * (7 - B1N), mf2, 7 - B1N, xf, [epi(list(range(B1N // 2)), False)], stop_reads=stop, force_bar=21 * (7 - B1N) - 2, over=opt.get("b1over", 0), chunk=opt.get("chunkB", 24), tail=300 + self.opt.get("slack", 2400))
        self.stamp("B1b")
        for _ in epi(list(range(B1N // 2, 3)), True):
            pass
        self.stamp("B1epi")
        self.handoff(4 * p + 4, ops, None, tl)

    def gen(self):
        e = self.e
        e.reset_state()
        self.cInvD = s(63)
        self.dmaf = self.dma_filler()
        self.prologue()
        if self.opt.get("stamps"):
            e.memtime(sTm, True)
            e.V("v_writelane_b32", v(53), sTm[0], 62)
        self.startup()
        stop = self.opt.get("stop", 99)
        n = 0
        for p in range(2):
            for f in (lambda: self.phaseA(p), lambda: self.phase64(p, "O"), lambda: self.phaseB1(p), lambda: self.phase64(p, "C")):
                if n < stop:
                    f()
                n += 1
        if self.opt.get("stamps"):
            e.wait_all_vm()
            e.memtime(sTm, True)
            e.V("v_writelane_b32", v(53), sTm[0], 63)
            e.S("s_lshl_b32", sA, s(2), 2)
            e.S("s_add_u32", sA, sA, sWave)
            e.S("s_lshl_b32", sA, sA, 8)
            e.S("s_add_u32", sA, sA, STAMP)
            e.V("v_lshlrev_b32", TMP[1], 2, vLane)
            e.bstore(v(53), TMP[1], WS, sA)
        if self.opt.get("dbgst") is not None:
            skip = e.newlabel("nodbg")
            e.S("s_lshl_b32", sA, s(2), 2)
            e.S("s_add_u32", sA, sA, sWave)
            e.S("s_cmp_lg_u32", sA, 4 * self.opt.get("dbgwg", 77))
            e.branch("s_cbranch_scc1", skip)
            e.sload(s(84, 2), s(0, 2), 72)
            e.V("v_readlane_b32", sB, v(53), 0)
            e.V("v_subrev_u32", TMP[0], sB, v(53))
            e.V("v_subrev_u32", TMP[1], self.opt["dbgst"], vLane)
            e.V("v_cmp_gt_u32", VCC, 64 - self.opt["dbgst"], TMP[1])
            e.V("v_lshlrev_b32", TMP[1], 2, TMP[1])
            e.wait_all_lg()
            e.S("s_and_saveexec_b64", s(86, 2), VCC)
            e.misc(f"global_store_dword {TMP[1]}, {TMP[0]}, s[84:85]")
            e.S("s_mov_b64", EXEC, -1)
            e.label(skip)
        if self.opt.get("spin"):
            e.wait_all_vm()
            e.V("v_readfirstlane_b32", s(86), v(53))
            e.label("spin_loop")
            e.misc("s_memrealtime s[88:89]")
            e.misc("s_waitcnt lgkmcnt(0)")
            e.misc("s_sub_u32 s88, s88, s86")
            e.misc(f"s_cmp_lt_u32 s88, {self.opt['spin']}")
            e.misc("s_cbranch_scc1 spin_loop")
        e.S("s_add_u32", sA, s(2), sWave)
        e.S("s_cmp_lg_u32", sA, 0)
        e.branch("s_cbranch_scc1", "main_end")
        e.S("s_add_u32", sA, sBase, 16)
        e.V("v_mov_b32", TMP[0], sA)
        e.V("v_mov_b32", TMP[1], EPOCH)
        e.S("s_mov_b64", EXEC, 1)
        e.bstore(TMP[0], TMP[1], WS, 0, 0, "sc1")
        e.label("main_end")
        e.misc("s_endpgm")
```

```python
from asmgen import *
from layout import *
from gen_prep import mk_srd, allreduce_g
import math

BIG = 0x40000000
LOG2E = 1.4426950408889634
LN2 = 0.6931471805599453

IMG = 0
ZT = 6144
RST = 6400
DUMMY = 6912
RING = 8192
RB = 152
LDS_BYTES = RING + RB * KB
FI = 8

WS, OUT, XIN, SB2 = s(8, 4), s(12, 4), s(16, 4), s(20, 4)
sWave, sR, sC, sCG, sRH, sKH, sW2048 = [s(24 + i) for i in range(7)]
sSeg = {"A": s(31), "O": s(32), "B": s(33), "C": s(34)}
sXr, sHr, sSTr, sFRL, sFRG, sFC = [s(35 + i) for i in range(6)]
sA, sB, sD, sE, sDm, sLd = [s(41 + i) for i in range(6)]
sMaskV = s(48, 2)
sCnt = s(50)
sTT = s(51)
sTm = s(52, 2)
sOx, sOxh, sOst, sOo, sOoh, sOh, sOhh, sKv = [s(54 + i) for i in range(8)]
sLocal, sX1 = s(47), s(62)
sStg = s(3)
sSel = [s(84), s(85)]
sOdd = s(86, 2)
vT16L = v(37)
vStg = v(55)
sNan = s(90, 2)
sBase = s(92)
sOk = s(94, 2)
SR1, SR2 = s(84, 4), s(96, 4)
PP = s(64, 16)
pOut, pWs = s(80, 2), s(82, 2)
vDum = v(49)

vLane, vN, vG, vL16 = v(1), v(2), v(3), v(4)
vW = [v(5), v(6), v(7)]
vK = [v(8), v(9), v(10)]
vDma = v(11)
vAx = [v(12), v(13)]
vAo = [v(14), v(15)]
vAh = [v(16), v(17)]
vSt, vStW, vKvSrc, vKvDst, vT16, vZ01, vZ2, vRT, vRW, vRF, vOut, vOut4, vOne = [v(18 + i) for i in range(13)]
vOh, vXs, vXh, vHs, vHh, vFl, vPollR, vPollC, vXch = [v(31 + i) for i in range(9)]
XE = [v(40, 4), v(44, 4)]
vC2 = v(48, 2)
vC2b = v(50, 2)
vLn2 = v(52, 2)
vEps = v(54, 2)
RT = v(56, 8)
ACC = v(64, 64)
FIFO = v(128, 4 * FI)
RES = v(160, 20)
B2F = v(180, 20)
TMP = v(200, 56)


def keepreg(k, h):
    if k < 12:
        return a(160 + 8 * k + 4 * h, 4)
    t = 2 * (k - 12) + h
    return B2F[4 * t:4 * t + 4] if t < 5 else TMP[40 + 4 * (t - 5):44 + 4 * (t - 5)]


class Main:
    def __init__(self, e, opt):
        self.e = e
        self.opt = opt
        self.kname = opt["kname"]
        self.nstamp = 0
        self.segs = []
        pos = 0
        for p in range(2):
            for k, n in (("A", NA), ("O", NO), ("B", NB), ("C", NC)):
                self.segs.append((k, pos, n))
                pos += n
        self.total = pos
        self.ngroups = pos // 8
        self.issued = 0
        self.dmaop = {}
        self.freed = 0
        self.hold = None
        self.visible = 0
        self.seq = []
        self.seqstart = {}
        for p in range(2):
            b = self.segs[4 * p + 0][1]
            self.seqstart[("A1", p)] = len(self.seq)
            self.seq += [(b + i, "W") for i in range(105)]
            self.seqstart[("A2", p)] = len(self.seq)
            self.seq += [(b + 105 + i, "W") for i in range(63)]
            b = self.segs[4 * p + 1][1]
            self.seqstart[("A4", p)] = len(self.seq)
            self.seq += [(b + 2 * i, "K") for i in range(50)]
            b = self.segs[4 * p + 2][1]
            self.seqstart[("B1a", p)] = len(self.seq)
            self.seq += [(b + i, "W") for i in range(21 * B1N)]
            self.seqstart[("B1b", p)] = len(self.seq)
            self.seq += [(b + 21 * B1N + i, "W") for i in range(147 - 21 * B1N)]
            b = self.segs[4 * p + 3][1]
            self.seqstart[("B2", p)] = len(self.seq)
            self.seq += [(b + 2 * i, "K") for i in range(135)]
        self.rd = 0
        self.cons = 0
        self.lastbar = 0
        self.gate = NA // 8
        self.stage_plan = []
        self.staged = {}
        self.stage_mid = None
        self.cap_hold = 1 << 20
        self.deferred = []
        self.spares = []
        self.last_scratch = (0, 0)
        self.restg = None
        self.capg = None
        self.own_end_phase = 0
        self.cap_ops = []
        self.cap_next = 1 << 20
        self.warn = []
        self.model = []
        self.own_end = 0
        self.deadline = lambda: 1 << 30

    def stamp(self, name):
        self.model.append((name, self.e.T))
        if not self.opt.get("stamps"):
            return
        e = self.e
        e.wait_all_lg()
        e.memtime(sTm)
        e.V("v_writelane_b32", v(53), sTm[0], self.nstamp)
        self.opt.setdefault("stampnames", []).append(name)
        self.nstamp += 1
        assert self.nstamp <= 62

    def endpos(self, i):
        p, k = self.seq[i]
        return p + (2 if k == "K" else 1)

    def ldsaddr(self, pos):
        return RING + (pos % RB) * KB

    def can_issue(self):
        if self.issued >= min(self.ngroups, self.gate):
            return False
        lim = self.freed if self.hold is None else min(self.freed, self.hold)
        lim = min(lim, self.cap_hold)
        return 8 * (self.issued + 1) <= lim + RB

    def dma_group(self):
        e = self.e
        g = self.issued
        self.issued += 1
        pos = 8 * g
        if g in self.stage_plan:
            self.stage_plan = []
        if g in self.staged and self.opt.get("defer", 1) and 8 * g >= self.own_end_phase:
            self.deferred.append(g)
            self.dmaop[g] = None
            yield
            return
        if g in self.staged:
            self.finish_stage()
            k = self.staged[g]
            ad = self.ldsaddr(pos)
            e.V("v_add_u32", vStg, ad, vDma)
            yield
            e.ds_write(vStg, keepreg(k, 0), 0)
            yield
            self.dmaop[g] = e.ds_write(vStg, keepreg(k, 1), 1024)
            yield
            return
        for k, b, n in self.segs:
            if b <= pos < b + n:
                break
        e.S("s_add_u32", M0, sW2048, self.ldsaddr(pos))
        yield
        e.S("s_add_u32", sDm, sSeg[k], (pos - b) * KB)
        yield
        md = "nt" if k in self.opt.get("ntseg", "") else ""
        nvalid = min(8, {"A": 168, "O": 100, "B": 147, "C": 270}[k] - (pos - b)) if self.opt.get("skippad", 1) else 8
        for j in range(2):
            nw = (nvalid - j + 1) // 2
            if nw < 4:
                skip = e.newlabel("nopad")
                e.S("s_cmp_ge_u32", sWave, nw)
                e.branch("s_cbranch_scc1", skip)
                e.cond_begin()
            op = e.dma(vDma, WS, sDm, 1024 * j, md, cls=self.dcls(k))
            if nw < 4:
                e.cond_end()
                e.label(skip)
            if j:
                self.dmaop[g] = op
            yield

    def capture_gen(self, first, n, k0=0):
        e = self.e
        self.cap_hold = self.cap_next = 8 * first
        g1 = self.segs[4][1] // 8
        for k in range(k0, k0 + n):
            g = first + k - k0
            while self.visible < 8 * (g + 1):
                yield "idle"
            e.V("v_add_u32", vStg, self.ldsaddr(8 * g), vDma); yield
            e.ds_read(keepreg(k, 0), vStg, 0); yield
            self.cap_ops.append(e.ds_read(keepreg(k, 1), vStg, 1024))
            self.staged[g1 + g] = k
            self.cap_next = 8 * (g + 1) if k < k0 + n - 1 else 1 << 20
            yield

    def stage_group(self):
        e = self.e
        g = self.stage_plan.pop(0)
        k = len(self.staged) % 12
        self.staged[g] = k
        for sk, b, n in self.segs:
            if b <= 8 * g < b + n:
                break
        e.S("s_add_u32", sStg, sSeg[sk], (8 * g - b) * KB)
        yield
        e.bload(keepreg(k, 0), vDma, WS, sStg, 0, cls=self.dcls(sk))
        yield
        e.bload(keepreg(k, 1), vDma, WS, sStg, 1024, cls=self.dcls(sk))
        self.stage_mid = None
        yield

    def restore_gen(self, n):
        e = self.e
        while n > 0 and self.deferred:
            n -= 1
            g = self.deferred[0]
            k = self.staged[g]
            e.V("v_add_u32", vStg, self.ldsaddr(8 * g), vDma); yield
            old = 8 * g - RB
            clean = old + 8 <= self.last_scratch[0] or old >= self.last_scratch[1]
            if self.spares and self.opt.get("swap", 1) and clean and self.segof(8 * g) == "A":
                sp = self.spares.pop(0)
                e.ds_read(keepreg(sp, 0), vStg, 0); yield
                e.ds_read(keepreg(sp, 1), vStg, 1024); yield
                g2 = g - RB // 8 + self.segs[4][1] // 8
                assert self.segof(8 * g2) == "C"
                self.staged[g2] = sp
            e.ds_write(vStg, keepreg(k, 0), 0); yield
            self.dmaop[g] = e.ds_write(vStg, keepreg(k, 1), 1024)
            self.spares.append(k)
            self.deferred.pop(0)
            yield

    def restore(self, n):
        for _ in self.restore_gen(n):
            pass

    def finish_stage(self):
        while self.stage_mid:
            next(self.stage_mid)

    def stage_step(self):
        e = self.e
        if e.outstanding() >= self.opt.get("qmax", 13):
            return False
        if not self.stage_mid:
            if not self.stage_plan or self.can_issue() or self.mid_group():
                return False
            c = self.dcls("C")
            if e.predict(c) + c[2] > self.deadline():
                return False
            self.stage_mid = self.stage_group()
        next(self.stage_mid)
        return True

    def dcls(self, k):
        return (750, 80, self.opt.get("svcAB", 150)) if k in "AB" else (750, self.opt.get("svcOC", 92), 75)

    def dma_ok(self):
        e = self.e
        if self.mid_group():
            g = self.issued - 1
        elif self.can_issue():
            g = self.issued
        else:
            return False
        if g in self.staged:
            return True
        if e.outstanding() >= self.opt.get("qmax", 13):
            return False
        if self.mid_group() or 8 * g < self.own_end:
            return True
        c = self.dcls(self.segof(8 * g))
        return e.predict(c) + c[2] <= self.deadline()

    def dma_filler(self):
        while True:
            if self.can_issue():
                for _ in self.dma_group():
                    yield True
            else:
                yield False

    def flush_dma_partial(self):
        while self.issued > 0 and (self.issued - 1) not in self.dmaop:
            next(self.dmaf)

    def dma_all(self):
        self.flush_dma_partial()
        while self.can_issue():
            for _ in self.dma_group():
                pass

    def ring_barrier(self, need_idx, extra_ops=(), free_all=False):
        e = self.e
        need_idx = min(need_idx, len(self.seq))
        upto = self.endpos(need_idx - 1) if need_idx > 0 else 0
        g = (upto + 7) // 8
        self.flush_dma_partial()
        while self.issued < g:
            assert self.can_issue(), ("ring deadlock", self.issued, g, self.freed, self.hold)
            self.warn.append(f"forced dma group {self.issued} at seq {self.rd}")
            for _ in self.dma_group():
                pass
        ops = list(extra_ops)
        while self.deferred and self.deferred[0] < g:
            self.warn.append(f"forced restore {self.deferred[0]}")
            next(self.restg)
        for gg in range(self.visible // 8, g):
            assert gg not in self.deferred, gg
            ops.append(self.dmaop[gg])
        e.wait_ops(ops + self.cap_ops)
        self.cap_ops = []
        e.barrier()
        self.cap_hold = self.cap_next
        self.visible = max(self.visible, 8 * g)
        self.freed = self.seq[self.cons][0] if self.cons < len(self.seq) else self.total
        self.lastbar = self.rd

    def issue_read(self):
        e = self.e
        i = self.rd
        if i >= len(self.seq):
            return
        pos, k = self.seq[i]
        assert self.endpos(i) <= self.visible, ("read of invisible block", i, pos, self.visible)
        ad = self.ldsaddr(pos)
        base = (vW if k == "W" else vK)[ad >> 16]
        slot = i % FI
        e.ds_read(FIFO[4 * slot:4 * slot + 4], base, ad & 0xffff)
        self.rd += 1

    def prime(self):
        while self.rd < self.cons + FI and self.rd < len(self.seq) and self.endpos(self.rd) <= self.visible:
            self.issue_read()

    def run_pass(self, n, mf, ntile, xf, fillers=(), chunk=24, stop_reads=None, hooks=None,
                 aload=None, vrate=0.5, amix=(1, 0), over=0, force_bar=None, late=None, see_all=False, tail=2000, mix=0, must=None):
        e = self.e
        fillers = list(fillers)
        lim = stop_reads if stop_reads is not None else len(self.seq)
        st = {"next": 0, "k": 0, "t": 0}
        self.own_end = self.own_end_phase = self.endpos(lim - 1)
        self.deadline = lambda: e.T + (n - st["t"]) * 33 + tail

        i_first = self.cons

        def dma_need():
            g = self.issued - 1 if self.mid_group() else self.issued
            for i in range(self.cons, lim):
                if self.endpos(i) > 8 * g:
                    return i - i_first - FI - chunk
            return 1 << 20

        def one_vmem():
            na, nd = amix
            n0 = len(e.vm)
            if st.get("late"):
                if e.T < st["next"]:
                    return False
                try:
                    next(st["late"])
                except StopIteration:
                    st["late"] = None
                    return False
            else:
                na_ = (aload.n // 2) * ntile if (aload is not None and not aload.done) else 1 << 21
                nd_ = dma_need() if (self.mid_group() or self.can_issue()) else 1 << 22
                run = self.opt.get("run", 0)
                if run and na_ < 1 << 21 and nd_ < 1 << 20:
                    if st.get("cur") == "a" and na_ - run <= nd_:
                        nd_ = max(nd_, na_)
                    elif st.get("cur") == "d" and nd_ - run < na_:
                        na_ = max(na_, nd_ + 1)
                    st["cur"] = "a" if na_ <= nd_ else "d"
                urgent = min(na_, nd_) - st["t"] <= self.opt.get("horizon", 30) + run
                if e.T < st["next"] and not urgent:
                    return False
                if mix and na_ < 1 << 21 and st["k"] % mix == mix - 1 and na_ - st["t"] > self.opt.get("mixh", 10) and self.dma_ok():
                    next(self.dmaf)
                elif na_ <= nd_ and na_ < 1 << 21:
                    if e.outstanding() >= self.opt.get("qmax", 13) and not urgent:
                        return False
                    if aload.n // 2 >= st["t"] // ntile + aload.win - 1:
                        return False
                    aload.step()
                elif nd_ < 1 << 22 and (urgent or self.dma_ok()):
                    next(self.dmaf)
                elif not self.stage_step():
                    return False
            if len(e.vm) > n0:
                st["k"] += 1
                st["next"] = e.T + self.opt.get("vgap", 24)
            return True

        def fill(budget):
            while budget > 0:
                n0 = e.ninst
                did = one_vmem()
                if not did:
                    for f in list(fillers):
                        try:
                            if next(f) == "idle":
                                continue
                            did = True
                            break
                        except StopIteration:
                            fillers.remove(f)
                if not did:
                    return
                budget -= e.ninst - n0

        def waits_for(t):
            regs = []
            for tt in (t, t + 1):
                if tt < n:
                    ks = tt // ntile
                    if aload is not None:
                        aload.upto(ks)
                    idx = self.cons + (tt - t)
                    if idx < self.rd:
                        regs += FIFO[4 * (idx % FI):4 * (idx % FI) + 4].regs()
                    regs += xf(ks, 0).regs() + xf(ks, 1).regs()
            return e._pending(regs)

        e.wait_ops(waits_for(0))
        if aload is not None:
            self.stamp("1st")
            self.warn.append(f"fill {8 * self.issued - self.seq[self.cons][0]}")
        for t in range(n):
            if aload is not None and self.opt.get("midstamp") and t == n // 2:
                self.stamp("half")
            i = self.cons
            assert self.rd > i, ("fifo underrun", i)
            W = FIFO[4 * (i % FI):4 * (i % FI) + 4]
            st["t"] = t
            if must is not None and t == n - ntile - 2:
                for _ in must:
                    self.warn.append("must drained late")
            if t == int(n * self.opt.get("cfrac", 0.8)) and n > 30:
                fillers.insert(0, self.code_touch_gen())
            if hooks and hooks.get("add"):
                g_ = hooks["add"](t)
                if g_:
                    fillers.append(g_)
            ov = over if fillers else 0
            mf(t, W, 0)
            bar = self.rd < lim and (self.endpos(self.rd) > self.visible or self.rd - self.lastbar >= chunk)
            bar = bar or t == force_bar
            if late and t >= late[0] and not st.get("lateon") and (aload is None or aload.done) and 8 * self.issued >= min(self.own_end, self.endpos(min(i_first + n + FI, lim) - 1)) and not self.mid_group():
                st["late"] = late[1]
                st["lateon"] = True
                self.warn.append(f"late at {t}")
            if bar:
                ex, after = [], None
                if hooks and hooks.get("bar"):
                    ex, after = hooks["bar"](t)
                self.ring_barrier(lim if see_all else min(self.rd + chunk, lim), ex)
                if after:
                    after()
            else:
                fill(2 + ov)
            mf(t, W, 1)
            self.cons += 1
            used = 0
            if self.rd < lim:
                self.issue_read()
                used = 1
            pend = waits_for(t + 1) if (t % 2 == 1 and t + 1 < n) else []
            fill(2 + ov - used - (1 if pend else 0))
            if pend:
                e.wait_ops(waits_for(t + 1))
        if late and not st.get("lateon"):
            st["late"] = late[1]
        for f in fillers + ([st["late"]] if st.get("late") else []):
            if f is not self.capg:
                for _ in f:
                    pass

    def segof(self, pos):
        for k, b, n in self.segs:
            if b <= pos < b + n:
                return k
        return "O"

    def mid_group(self):
        return self.issued > 0 and (self.issued - 1) not in self.dmaop

    def dma_burst(self, maxgroups=99):
        e = self.e
        self.flush_dma_partial()
        gs = []
        while self.can_issue() and len(gs) < maxgroups:
            gs.append(self.issued)
            self.issued += 1
        for w in (1, 2, 3):
            mine = gs[w - 1::3]
            if not mine:
                continue
            skip = e.newlabel("noburst")
            e.S("s_cmp_lg_u32", sWave, w)
            e.branch("s_cbranch_scc1", skip)
            e.cond_begin()
            for g in mine:
                pos = 8 * g
                for k, b, n in self.segs:
                    if b <= pos < b + n:
                        break
                for h in range(2):
                    e.S("s_mov_b32", M0, self.ldsaddr(pos) + h * 4096)
                    e.S("s_add_u32", sDm, sSeg[k], (pos - b) * KB + h * 4096)
                    for q in range(4):
                        self.dmaop[g] = e.dma(vL16, WS, sDm, q * 1024)
            e.cond_end()
            e.label(skip)

    def prologue(self):
        e = self.e
        e.S("s_cmp_ge_u32", s(2), 256)
        e.branch("s_cbranch_scc1", "main_end")
        if self.opt.get("stamps"):
            e.V("v_mov_b32", v(53), 0)
        self.stamp("t0")
        if self.opt.get("spin"):
            e.memtime(sTm, True)
            e.V("v_mov_b32", v(53), sTm[0])
        e.sload(PP, s(0, 2), 0)
        e.sload(pOut, s(0, 2), 64)
        e.sload(pWs, s(0, 2), 80)
        T0, T1, T2, T3 = TMP[48], TMP[49], TMP[50], TMP[51]
        e.S("s_getpc_b64", s(88, 2))
        e.label("main_pc")
        e.V("v_lshlrev_b32", T2, 5, v(0))
        e.S("s_sub_u32", s(88), s(88), "main_pc-" + self.kname)
        e.S("s_subb_u32", s(89), s(89), 0)
        e.misc(f"global_load_dword {vDum}, {T2}, s[88:89]")
        e._vm([], (2000, 30, 0))
        e.V("v_lshrrev_b32", T0, 6, v(0))
        e.V("v_and_b32", vLane, 63, v(0))
        e.V("v_readfirstlane_b32", sWave, T0)
        e.S("s_lshr_b32", sB, s(2), 3)
        e.S("s_mul_i32", sB, sB, 1792)
        e.S("s_add_u32", sB, sB, 8192)
        e.V("v_lshl_add_u32", T2, v(0), 3, sB)
        e.V("v_min_u32", T2, self.opt.get("code_bytes", 32768) - 4, T2)
        e.misc(f"global_load_dword {vDum}, {T2}, s[88:89]")
        e._vm([], (2000, 30, 0))
        e.V("v_lshlrev_b32", vL16, 4, vLane)
        e.V("v_and_b32", vN, 15, vLane)
        e.V("v_lshrrev_b32", vG, 4, vLane)
        self.vBig = TMP[52]
        e.V("v_mov_b32", self.vBig, BIG)
        e.S("s_and_b32", sA, s(2), 7)
        e.S("s_lshl_b32", sA, sA, 1)
        e.S("s_lshr_b32", sB, s(2), 7)
        e.S("s_add_u32", sR, sA, sB)
        e.S("s_bfe_u32", sC, s(2), (4 << 16) | 3)

    def gather(self, raw, srd, sstride, vaddr, srow, n=8):
        e = self.e
        e.S("s_mul_i32", sLd, srow, sstride)
        for i in range(n):
            e.bload(raw[i], vaddr, srd, sLd, 0, w="ushort", cls=(2500, 32, 0))
            if i < n - 1:
                e.S("s_add_u32", sLd, sLd, sstride)

    def pack(self, raw, n=4):
        for i in range(n):
            self.e.V("v_lshl_or_b32", raw[i], raw[2 * i + 1], 16, raw[2 * i])

    def colsum(self, regs, ex, vs, vt):
        e = self.e
        e.V("v_mov_b32", vs, 0)
        for r_ in regs:
            e.V("v_dot2c_f32_bf16", vs, r_, vOne)
        allreduce_g(e, vs, vt)
        e.V("v_sub_f32", vs, 0, vs)
        e.V("v_cvt_pk_bf16_f32", vt, vs, vs)
        e.V("v_lshlrev_b32", vt, 16, vt)
        e.V("v_sub_f32", vt, vs, vt)
        e.V("v_cvt_pk_bf16_f32", ex[0], vs, vt)
        e.V("v_and_b32", ex[1], "0xffff", ex[0])

    def startup(self):
        e = self.e
        vBig = self.vBig
        RAW1, EX = ACC[0:20], ACC[20:24]
        RAW2 = TMP[8:40]
        vCol, vReg, vLeft, vT0, vT1, vSum, vLd = [FIFO[i] for i in range(7)]
        vA0, vA1, vA2, vSt2, vBias = RES[8], RES[9], B2F[8], B2F[9], ACC[38]
        sT, sP = s(7), s(93)
        sStr = s(56)
        XJ = [RES[0:4], RES[4:8], B2F[0:4]]
        XD, XA, XB_ = B2F[4], ACC[32], ACC[33]
        XM = [s(90), s(91), s(94)]
        T0, T1, T2, T3 = TMP[48], TMP[49], TMP[50], TMP[51]
        e.V("v_lshrrev_b32", T1, 3, vLane)
        e.V("v_and_b32", T3, 7, vLane)
        e.V("v_mul_u32_u24", T0, 1280, T3)
        e.V("v_lshl_add_u32", XA, T1, 4, T0)
        e.V("v_lshrrev_b32", T2, 4, vLane)
        e.V("v_lshl_add_u32", XB_, T2, 7, XA)
        e.V("v_lshlrev_b32", XD, 8, T1)
        e.V("v_lshl_add_u32", XD, T3, 4, XD)
        e.S("s_lshl_b32", sE, sR, 4)
        e.S("s_add_u32", sE, sE, sC)
        e.S("s_mul_i32", sE, sE, 8 * 1280)
        e.S("s_mul_i32", sD, sWave, 3)
        mk_srd(e, XIN, PP[0:2], XSZ)
        for k in range(3):
            e.S("s_add_u32", XM[k], sD, k)
            e.S("s_cmp_ge_u32", XM[k], 8)
            e.S("s_cselect_b64", VCC, -1, 0)
            e.S("s_cselect_b32", sA, 40, 10)
            e.S("s_cselect_b32", sB, 8 - 8 * 40, 0)
            e.V("v_cndmask_b32", T0 if k != 1 else T1, XA, XB_, VCC)
            e.S("s_mul_i32", sA, sA, XM[k])
            e.S("s_add_u32", sA, sA, sB)
            e.S("s_lshl_b32", sA, sA, 4)
            e.S("s_add_u32", sA, sA, sE)
            e.S("s_cmp_ge_u32", XM[k], 10)
            e.S("s_cselect_b32", sA, BIG, sA)
            e.S("s_cselect_b32", XM[k], BIG // 2048, XM[k])
            e.bload(XJ[k], T0 if k != 1 else T1, XIN, sA, 0, cls=(2000, 100, 0))
        self.stamp("issx")
        e.S("s_lshr_b32", sP, sR, 1)
        e.S("s_and_b32", sT, sR, 1)
        e.S("s_lshl_b32", sT, sT, 2)
        e.S("s_add_u32", sT, sT, sWave)
        e.S("s_mov_b32", s(4), (656 << 20) | (660 << 10) | 640)
        e.S("s_mov_b32", s(5), 0)
        e.S("s_mul_i32", sA, sT, 10)
        e.S("s_lshr_b32", sA, s(4), sA)
        e.S("s_and_b32", sA, sA, 1023)
        for t, val in ((3, 1280), (4, 1300), (5, 0), (6, 1), (7, 32)):
            e.S("s_cmp_eq_u32", sT, t)
            e.S("s_cselect_b32", sA, val, sA)
        e.S("s_mul_i32", sB, sC, 40)
        e.S("s_add_u32", sA, sA, sB)
        e.V("v_add_u32", vCol, sA, vN)
        e.V("v_add_u32", vT0, vCol, vN)
        e.S("s_sub_u32", sB, sT, 5)
        e.S("s_cmp_lt_u32", sB, 2)
        e.S("s_cselect_b64", VCC, -1, 0)
        e.V("v_cndmask_b32", vCol, vCol, vT0, VCC)
        e.V("v_lshrrev_b32", vT0, 3, vN)
        e.V("v_mul_u32_u24", vT0, 632 - 32, vT0)
        e.V("v_lshrrev_b32", vT1, 2, vN)
        e.V("v_lshl_add_u32", vT0, vT1, 4, vT0)
        e.V("v_add3_u32", vT0, vT0, vN, sA)
        e.S("s_cmp_eq_u32", sT, 2)
        e.S("s_cselect_b64", VCC, -1, 0)
        e.V("v_cndmask_b32", vCol, vCol, vT0, VCC)
        e.V("v_lshlrev_b32", vCol, 1, vCol)
        e.S("s_cmp_eq_u32", sT, 7)
        e.S("s_cselect_b32", sB, 8, 16)
        e.V("v_cmp_le_u32", VCC, sB, vN)
        e.S("s_mov_b32", sStr, 3840)
        e.V("v_cndmask_b32", vCol, vCol, vBig, VCC)
        e.S("s_mov_b32", sD, 8 * 3840)
        e.V("v_mad_u32_u24", vReg, vG, sD, vCol)
        e.V("v_and_b32", vT0, 1, vG)
        e.V("v_lshrrev_b32", vT1, 1, vG)
        e.V("v_lshl_add_u32", vLd, vT0, 1, vT1)
        e.S("s_mov_b32", sD, 4 * 3840)
        e.V("v_mad_u32_u24", vLeft, vLd, sD, vCol)
        mk_srd(e, SR1, PP[2:4], D * 3 * D * 2)
        e.S("s_mul_i32", sB, sP, 80)
        self.gather(RAW1[0:8], SR1, sStr, vReg, sB)
        e.S("s_add_u32", sA, sB, 32)
        self.gather(RAW1[8:16], SR1, sStr, vReg, sA)
        e.S("s_add_u32", sA, sB, 64)
        self.gather(RAW1[16:20], SR1, sStr, vLeft, sA, 4)
        self.stamp("iss1")
        def r2touch():
            e.S("s_lshl_b32", sA, s(2), 2)
            e.S("s_add_u32", sA, sA, sWave)
            e.V("v_min_u32", T0, 17, vLane)
            e.V("v_lshlrev_b32", T0, 7, T0)
            e.S("s_mul_i32", sB, sA, 2160)
            mk_srd(e, SR2, PP[8:10], F * D * 2)
            e.touch(vDum, T0, SR2, sB, 0, cls=(2000, 30, 0))
            mk_srd(e, SR2, PP[12:14], F * D * 2)
            e.touch(vDum, T0, SR2, sB, 0, cls=(2000, 30, 0))
            e.V("v_min_u32", T0, 7 * 128, T0)
            mk_srd(e, SR2, PP[4:6], D * D * 2)
            e.S("s_mul_i32", sB, sA, 800)
            e.touch(vDum, T0, SR2, sB, 0, cls=(2000, 30, 0))
        if self.opt.get("r2touch", 3) == 1:
            r2touch()
        if self.opt.get("wsoff"):
            e.S("s_add_u32", pWs[0], pWs[0], self.opt["wsoff"] << 20)
            e.S("s_addc_u32", pWs[1], pWs[1], 0)
        mk_srd(e, WS, pWs, WS_USED)
        e.sload(sBase, pWs, EPOCH)
        e.S("s_mov_b32", sA, "0x3f803f80")
        e.V("v_mov_b32", vOne, sA)
        e.S("s_and_b32", sCG, sC, 7)
        e.S("s_lshr_b32", sRH, sC, 3)
        if self.opt.get("r2touch", 0) == 3:
            r2touch()
        mk_srd(e, SB2, PP[14:16], D * 2)
        if not self.opt.get("l2first", 1):
            self.prologue2()
            self.stamp("pro2")
        sU, sP, sStr, sJ = s(88), s(89), s(100), s(101)
        rows = [s(3 + i) for i in range(4)]
        D2 = [s(64), s(65), s(66), s(67)]
        sDB, sDX = s(70), s(71)
        vSel0, vSel1 = vA1, vA2
        mk_srd(e, SR1, PP[10:12], F * 2)
        e.S("s_lshl_b32", sJ, sRH, 4)
        e.S("s_add_u32", sJ, sJ, sR)
        if self.opt.get("bal", 1):
            e.S("s_cmp_eq_u32", sJ, 15)
            e.S("s_cselect_b32", sA, 39, 127)
            e.S("s_mul_i32", sJ, sJ, 3)
            e.S("s_add_u32", sJ, sJ, sWave)
            e.S("s_add_u32", sJ, sJ, 39)
            e.S("s_cmp_ge_u32", sJ, 97)
            e.S("s_cselect_b32", sB, 97, 0)
            e.S("s_sub_u32", sJ, sJ, sB)
            e.S("s_cmp_eq_u32", sWave, 0)
            e.S("s_cselect_b32", sJ, sA, sJ)
        else:
            e.S("s_lshl_b32", sJ, sJ, 2)
            e.S("s_add_u32", sJ, sJ, sWave)
        e.V("v_lshrrev_b32", vT0, 1, vG)
        e.V("v_and_b32", vT1, 1, vG)
        e.V("v_mov_b32", vSt2, vL16)
        e.S("s_mov_b32", sDX, BIG)
        lo, lc, lj = e.newlabel("job_wo"), e.newlabel("job_w2"), e.newlabel("job_go")

        def unit(sbase, nu, stride, ca, cb, nreg, dB):
            e.S("s_lshl_b32", sA, sU, 5)
            e.S("s_add_u32", sA, sA, sbase)
            e.S("s_lshl_b32", sA, sA, 1)
            e.S("s_mov_b32", sDB, dB)
            e.S("s_cmp_lt_u32", sU, nu)
            e.S("s_cselect_b64", VCC, -1, 0)
            e.S("s_cselect_b32", sDB, sDB, BIG)
            e.V("v_lshlrev_b32", vCol, 2, vN)
            e.V("v_and_b32", vReg, 14, vN)
            e.V("v_lshlrev_b32", vReg, 1, vReg)
            e.V("v_cndmask_b32", vCol, vReg, vCol, VCC)
            e.V("v_add_u32", vCol, sA, vCol)
            e.V("v_and_b32", vReg, 1, vN)
            e.V("v_cndmask_b32", vReg, vReg, 0, VCC)
            e.S("s_mov_b32", sA, "0x02020202")
            e.V("v_mul_lo_u32", vReg, vReg, sA)
            e.V("v_add_u32", vSel0, "0x05040100", vReg)
            e.S("s_mov_b32", sStr, stride)
            e.S("s_mov_b32", sD, 8 * stride)
            e.V("v_mul_u32_u24", vReg, sD, vG)
            e.S("s_mov_b32", sD, ca * stride)
            e.V("v_mul_u32_u24", vLeft, sD, vT0)
            e.S("s_mov_b32", sD, cb * stride)
            e.V("v_mad_u32_u24", vLeft, vT1, sD, vLeft)
            e.S("s_cmp_lt_u32", sP, nreg)
            e.S("s_cselect_b64", VCC, -1, 0)
            e.V("v_cndmask_b32", vA0, vLeft, vReg, VCC)

        def split_dests(half):
            for b in range(4):
                e.S("s_lshl_b32", sA, sP, 2)
                e.S("s_add_u32", sA, sA, b)
                e.S("s_mul_i32", sD, sA, 10)
                e.S("s_cmp_ge_u32", sA, half)
                e.S("s_cselect_b32", sB, 10 * half - 1, 0)
                e.S("s_sub_u32", sD, sD, sB)
                e.S("s_add_u32", sD, sD, sE)
                e.S("s_lshl_b32", D2[b], sD, 10)
                if half == 27 and b >= 2:
                    e.S("s_cmp_ge_u32", sA, 54)
                    e.S("s_cselect_b32", D2[b], BIG, D2[b])

        def div3(dq, dr, src):
            e.S("s_mul_i32", dq, src, 43691)
            e.S("s_lshr_b32", dq, dq, 17)
            e.S("s_mul_i32", sA, dq, 3)
            e.S("s_sub_u32", dr, src, sA)

        e.S("s_cmp_ge_u32", sJ, 55)
        e.branch("s_cbranch_scc1", lc)
        e.S("s_cmp_ge_u32", sJ, 40)
        e.branch("s_cbranch_scc1", lo)
        e.cond_begin()
        mk_srd(e, SR2, PP[8:10], D * F * 2)
        e.S("s_and_b32", sU, sJ, 3)
        e.S("s_lshr_b32", sP, sJ, 2)
        e.S("s_cmp_ge_u32", sP, 5)
        e.S("s_cselect_b32", sA, 5, 0)
        e.S("s_cselect_b32", sJ, 8, 0)
        e.S("s_sub_u32", sP, sP, sA)
        e.S("s_add_u32", sJ, sJ, sCG)
        e.S("s_mul_i32", sE, sJ, 112)
        e.S("s_max_u32", sB, sJ, 12)
        e.S("s_sub_u32", sB, sB, 12)
        e.S("s_lshl_b32", sB, sB, 4)
        e.S("s_sub_u32", sE, sE, sB)
        unit(sE, 3, 3456, 80, 8, 4, 1024)
        e.S("s_lshl_b32", sA, sU, 4)
        e.S("s_add_u32", sA, sA, sJ)
        e.S("s_cmp_ge_u32", sA, 3 * 16 + 12)
        e.S("s_cselect_b64", VCC, -1, 0)
        e.V("v_cndmask_b32", vCol, vCol, vBig, VCC)
        for b in range(4):
            e.S("s_mul_i32", sA, sP, 160)
            e.S("s_add_u32", sA, sA, 80 * (b >> 1) + 32 * (b & 1))
            e.S("s_cmp_eq_u32", sP, 4)
            e.S("s_cselect_b32", rows[b], 160 * b + 64, sA)
        e.S("s_cmp_lt_u32", sU, B1N // 2)
        e.S("s_cselect_b32", s(79), B1N, 7 - B1N)
        e.S("s_cselect_b32", sE, 0, 20 * B1N)
        e.S("s_lshl_b32", sA, sU, 1)
        e.S("s_add_u32", sE, sE, sA)
        e.S("s_mul_i32", sB, sJ, NB)
        e.S("s_add_u32", sE, sE, sB)
        e.S("s_add_u32", sE, sE, WB // KB)
        for b in range(4):
            e.S("s_lshl_b32", sA, sP, 2)
            e.S("s_add_u32", sA, sA, b)
            e.S("s_mul_i32", sA, sA, s(79))
            e.S("s_add_u32", sA, sA, sE)
            e.S("s_lshl_b32", D2[b], sA, 10)
        e.S("s_mul_i32", sD, s(79), 20)
        e.S("s_add_u32", sD, sD, sE)
        e.S("s_lshl_b32", sDX, sD, 10)
        e.branch("s_branch", lj)
        e.cond_end()
        e.label(lo)
        e.cond_begin()
        mk_srd(e, SR2, PP[4:6], D * D * 2)
        e.S("s_sub_u32", sJ, sJ, 40)
        div3(sP, sU, sJ)
        e.S("s_mul_i32", sE, sCG, 80)
        unit(sE, 2, 1280, 80, 40, 4, 2048)
        for b in range(4):
            e.S("s_mul_i32", sA, sP, 160)
            e.S("s_add_u32", sA, sA, 40 * b)
            e.S("s_cmp_eq_u32", sP, 4)
            e.S("s_cselect_b32", rows[b], 160 * b + 32, sA)
        e.S("s_mul_i32", sE, sCG, NO)
        e.S("s_add_u32", sE, sE, WO // KB)
        e.S("s_lshl_b32", sA, sU, 2)
        e.S("s_add_u32", sE, sE, sA)
        split_dests(10)
        e.branch("s_branch", lj)
        e.cond_end()
        e.label(lc)
        e.cond_begin()
        mk_srd(e, SR2, PP[12:14], F * D * 2)
        e.S("s_sub_u32", sJ, sJ, 55)
        div3(sP, sU, sJ)
        e.S("s_mul_i32", sE, sCG, 80)
        unit(sE, 2, 1280, 112, 8, 12, 2048)
        e.S("s_cmp_ge_u32", sP, 14)
        e.S("s_cselect_b64", VCC, -1, 0)
        e.V("v_cndmask_b32", vCol, vCol, vBig, VCC)
        e.V("v_cndmask_b32", vSt2, vSt2, vBig, VCC)
        e.S("s_min_u32", sP, sP, 13)
        for b in range(4):
            e.S("s_lshl_b32", sD, sP, 2)
            e.S("s_add_u32", sD, sD, b)
            e.S("s_mul_i32", sA, sD, 43691)
            e.S("s_lshr_b32", sA, sA, 17)
            e.S("s_lshl_b32", sA, sA, 4)
            e.S("s_min_u32", sA, sA, 192)
            e.S("s_lshl_b32", sB, sD, 5)
            e.S("s_add_u32", sA, sA, sB)
            e.S("s_mul_i32", sB, sD, 224)
            e.S("s_sub_u32", sB, sB, 224 * 48 - 96)
            e.S("s_cmp_ge_u32", sD, 48)
            e.S("s_cselect_b32", rows[b], sB, sA)
        e.S("s_mul_i32", sE, sCG, NC)
        e.S("s_add_u32", sE, sE, WC // KB)
        e.S("s_lshl_b32", sA, sU, 2)
        e.S("s_add_u32", sE, sE, sA)
        split_dests(27)
        e.cond_end()
        e.label(lj)
        e.V("v_add_u32", vA0, vA0, vCol)
        e.S("s_cmp_lt_u32", sP, 2)
        e.S("s_cselect_b64", VCC, -1, 0)
        e.V("v_cndmask_b32", vBias, vBig, vCol, VCC)
        e.V("v_mov_b32", vSel1, "0x07060302")
        e.V("v_add_u32", vT0, sP, vG)
        e.V("v_lshrrev_b32", vT1, 1, vT0)
        e.V("v_lshlrev_b32", vLd, 4, vN)
        e.V("v_lshl_add_u32", vLd, vT1, 8, vLd)
        e.V("v_and_b32", vT0, 1, vT0)
        e.V("v_lshl_add_u32", vLd, vT0, 3, vLd)
        e.S("s_cmp_eq_u32", sP, 4)
        e.S("s_cselect_b32", sA, 4, 1)
        e.V("v_cmp_gt_u32", VCC, sA, vG)
        e.V("v_cndmask_b32", vLd, vBig, vLd, VCC)
        e.S("s_lshl_b32", sA, sC, 4)
        e.S("s_add_u32", sA, sA, sR)
        e.S("s_mul_i32", sA, sA, KVSZ)
        e.S("s_mul_i32", sB, sWave, KVSZ // 4)
        e.S("s_add_u32", sA, sA, sB)
        e.S("s_add_u32", s(79), sA, KVB[1])
        self.stamp("dec2")
        def r2_loads():
            for b in range(4):
                e.S("s_mul_i32", sE, rows[b], sStr); yield
                for i in range(8):
                    e.bload(RAW2[8 * b + i], vA0, SR2, sE, 0, cls=(1500, 32, 0)); yield
                    if i < 7:
                        e.S("s_add_u32", sE, sE, sStr); yield
            e.bload(vBias, vBias, SR1, 0, 0, cls=(1500, 10, 0)); yield

        self.r2_loads = r2_loads()
        if self.opt.get("l2first", 1):
            for _ in self.r2_loads:
                pass
            self.stamp("iss2a")
            self.prologue2()
            self.stamp("pro2")
        sP2 = sP
        wT0, wT1, wLd, wSum = FIFO[8], FIFO[9], FIFO[10], FIFO[11]
        sT, sP = s(7), s(93)
        ops1 = []
        e.S("s_lshr_b32", sA, sC, 1)
        e.S("s_lshl_b32", sB, sR, 3)
        e.S("s_add_u32", sA, sA, sB)
        e.S("s_mul_i32", sA, sA, 20 * KB)
        e.S("s_and_b32", sB, sC, 1)
        e.S("s_lshl_b32", sB, sB, 7)
        e.S("s_add_u32", sA, sA, sB)
        e.S("s_add_u32", sA, sA, XB[0])
        for k in range(3):
            e.S("s_lshl_b32", sB, XM[k], 11)
            e.S("s_add_u32", sB, sB, sA)
            ops1.append(e.bstore(XJ[k], XD, WS, sB, 0, "sc1", cls=(1000, 70, 0)))
        xs = ACC[26:28]
        xz = ACC[24:26]
        MK = ACC[28:32]
        for r_ in (xs[0], xs[1], xz[0], xz[1]):
            e.V("v_mov_b32", r_, 0)
        for k in range(3):
            for i in range(4):
                e.V("v_dot2c_f32_bf16", xs[0], XJ[k][i], vOne)
                e.V("v_dot2c_f32_bf16", xs[1], XJ[k][i], XJ[k][i])
        for h in range(2):
            e.V("v_add_f32_dpp", xs[h], xs[h], xs[h], mods="row_ror:8 row_mask:0xf bank_mask:0xf")
            allreduce_g(e, xs[h], wT0)
        e.S("s_lshl_b32", sA, sR, 3)
        e.S("s_add_u32", sA, sA, sWave)
        e.S("s_lshl_b32", sA, sA, 10)
        e.S("s_lshl_b32", sB, sC, 6)
        e.S("s_add_u32", sA, sA, sB)
        e.S("s_add_u32", sA, sA, STB[0])
        e.S("s_add_u32", sB, sA, 4096)
        e.V("v_lshlrev_b32", wT0, 3, vLane)
        e.S("s_mov_b64", EXEC, "0xff")
        ops1.append(e.bstore(xs, wT0, WS, sA, 0, "sc1", cls=(1000, 20, 0)))
        ops1.append(e.bstore(xz, wT0, WS, sB, 0, "sc1", cls=(1000, 20, 0)))
        e.S("s_mov_b64", EXEC, -1)
        self.stamp("xst")
        e.S("s_cmp_lt_u32", sT, 5)
        e.S("s_cselect_b32", sE, 5, 3)
        e.S("s_cselect_b32", sA, 0, 100)
        e.S("s_add_u32", sA, sA, sT)
        e.S("s_mul_i32", sB, sC, NA)
        e.S("s_add_u32", sA, sA, sB)
        e.S("s_add_u32", sA, sA, WA // KB)
        e.S("s_lshl_b32", sA, sA, 10)
        e.S("s_lshl_b32", sE, sE, 10)
        e.S("s_mul_i32", sB, sP, sE)
        e.S("s_lshl_b32", sB, sB, 1)
        e.S("s_add_u32", sB, sB, sA)
        self.pack(RAW1[0:8])
        ops1.append(e.bstore(RAW1[0:4], vL16, WS, sB, 0, "sc1", cls=(1000, 70, 0)))
        e.S("s_add_u32", sB, sB, sE)
        self.pack(RAW1[8:16])
        ops1.append(e.bstore(RAW1[8:12], vL16, WS, sB, 0, "sc1", cls=(1000, 70, 0)))
        e.S("s_lshr_b32", sB, sP, 1)
        e.S("s_add_u32", sB, sB, 16)
        e.S("s_mul_i32", sB, sB, sE)
        e.S("s_add_u32", sB, sB, sA)
        e.S("s_and_b32", sD, sP, 1)
        e.S("s_lshl_b32", s(95), sD, 9)
        e.S("s_add_u32", sB, sB, s(95))
        e.V("v_lshlrev_b32", wT0, 8, vG)
        e.V("v_and_b32", wT0, 256, wT0)
        e.V("v_lshl_add_u32", wT0, vN, 4, wT0)
        e.V("v_lshrrev_b32", wT1, 1, vG)
        e.V("v_lshl_add_u32", wLd, wT1, 3, wT0)
        self.pack(RAW1[16:20], 2)
        ops1.append(e.bstore(RAW1[16:18], wLd, WS, sB, 0, "sc1", cls=(1000, 40, 0)))
        self.colsum([RAW1[i] for i in (0, 1, 2, 3, 8, 9, 10, 11, 16, 17)], EX, wSum, wT0)
        e.S("s_mul_i32", sB, sE, 20)
        e.S("s_add_u32", sB, sB, sA)
        e.S("s_lshr_b32", sA, sP, 1)
        e.S("s_lshl_b32", sA, sA, 8)
        e.S("s_add_u32", sB, sB, sA)
        e.S("s_lshl_b32", sD, sD, 3)
        e.S("s_add_u32", sB, sB, sD)
        e.S("s_mov_b64", EXEC, "0xffff")
        ops1.append(e.bstore(EX[0:2], vL16, WS, sB, 0, "sc1", cls=(1000, 20, 0)))
        e.S("s_mov_b64", EXEC, -1)
        self.stamp("r1")
        if self.opt.get("r2touch", 3) == 2:
            r2touch()
        for i in range(4):
            e.V("v_mov_b32", MK[i], -1)
        e.S("s_lshl_b32", sA, sC, 4)
        e.S("s_add_u32", sA, sA, sR)
        e.S("s_mul_i32", sA, sA, KVSZ)
        e.S("s_mul_i32", sB, sWave, KVSZ // 4)
        e.S("s_add_u32", sA, sA, sB)
        e.S("s_add_u32", sA, sA, KVB[0])
        e.S("s_mov_b64", EXEC, "0xfffffff")
        ops1.append(e.bstore(MK, vL16, WS, sA, 0, "sc1", cls=(1000, 40, 0)))
        e.S("s_mov_b64", EXEC, -1)
        sP = sP2
        self.ops2 = []

        vs, vt, MK = TMP[48], TMP[49], TMP[40:44]
        EV = ACC[40:56]

        def r2_pack():
            for b in range(4):
                raw = RAW2[8 * b:8 * b + 8]
                for i in range(4):
                    e.V("v_perm_b32", EV[4 * b + i], raw[2 * i + 1], raw[2 * i], vSel0)
                for i in range(4):
                    e.V("v_perm_b32", raw[i], raw[2 * i + 1], raw[2 * i], vSel1)
            for i in range(4):
                e.V("v_mov_b32", MK[i], -1)
            e.V("v_cmp_eq_u32", sNan, 0, vG)
            for h in range(2):
                ex = TMP[44 + 2 * h:46 + 2 * h]
                self.colsum([EV[i] for i in range(16)] if h == 0 else [RAW2[8 * b + i] for b in range(4) for i in range(4)], ex, vs, vt)
                e.V("v_perm_b32", vt, vBias, vBias, vSel0 if h == 0 else vSel1)
                e.V("v_and_b32", vt, "0xffff0000", vt)
                e.V("v_or_b32", ex[1], ex[1], vt)
                e.V("v_cndmask_b32", ex[0], 0, ex[0], sNan)
                e.V("v_cndmask_b32", ex[1], 0, ex[1], sNan)
            e.V("v_mov_b32", vSel0, vLd)
            yield

        def r2_stores():
            for b in range(4):
                self.ops2.append(e.bstore(EV[4 * b:4 * b + 4], vSt2, WS, D2[b], 0, self.opt.get("r2mod", "sc1"), cls=(1000, 70, 0)))
                e.S("s_add_u32", sA, D2[b], sDB)
                self.ops2.append(e.bstore(RAW2[8 * b:8 * b + 4], vSt2, WS, sA, 0, self.opt.get("r2mod", "sc1"), cls=(1000, 70, 0)))
            e.S("s_mov_b64", EXEC, "0xfffffff")
            self.ops2.append(e.bstore(MK, vL16, WS, s(79), 0, "sc1", cls=(1000, 40, 0)))
            e.S("s_mov_b64", EXEC, -1)
            for h in range(2):
                if h:
                    e.S("s_add_u32", sDX, sDX, sDB)
                self.ops2.append(e.bstore(TMP[44 + 2 * h:46 + 2 * h], vSel0, WS, sDX, 0, "sc1", cls=(1000, 20, 0)))
        self.r2_stores = r2_stores
        self.r2_pack = r2_pack()
        npre = self.opt.get("r2pre", 50)
        for _ in self.r2_loads:
            npre -= 1
            if npre <= 0:
                break
        if self.opt.get("l2first", 1):
            for _ in self.r2_pack:
                pass
        self.stamp("iss2")
        e.wait_ops(ops1)
        e.barrier()
        self.flag("both", 1, ACC[34], ACC[35])
        self.stamp("w1flag")
        for _ in self.r2_loads:
            pass
        for _ in self.r2_pack:
            pass
        self.al0 = None
        if self.opt.get("early_a", 0):
            self.poll("row", 1)
            e.barrier()
        if self.opt.get("r2st", 2) == 2:
            r2_stores()
            self.late_loads()
        self.stamp("r2")
        if self.opt.get("early_a", 0):
            self.stats_loads(0)
            self.al0 = self.ALoad(self, vAx, (sXr, XB[0]), 20)
            self.al0.upto(19)
        self.poll("col" if self.al0 else "both", 1)
        e.barrier()
        self.stamp("w1go")

    def w2_gen(self):
        e = self.e
        t = RES[0]
        e.V("v_bfe_u32", t, vLane, 4, 1); yield
        e.V("v_lshl_add_u32", t, t, 11, vFl); yield
        e.S("s_lshl_b32", s(4), sCG, 8); yield
        e.S("s_add_u32", s(4), s(4), FLG_C); yield
        e.bload(RES[1], t, WS, s(4), 0, "sc1", cls=(900, 10, 0)); yield
        for _ in range(self.opt.get("w2wait", 50)):
            yield "idle"
        e.S("s_add_u32", s(5), sBase, 2); yield
        lok, lre = e.newlabel("w2ok"), e.newlabel("w2retry")
        e.V("v_cmp_ne_u32", VCC, s(5), RES[1])
        e.S("s_cmp_eq_u64", VCC, 0)
        e.branch("s_cbranch_scc1", lok)
        e.cond_begin()
        e.S("s_mov_b32", sCnt, 0)
        e.label(lre)
        e.misc("s_sleep 4")
        e.bload(RES[1], t, WS, s(4), 0, "sc1")
        e.V("v_cmp_ne_u32", VCC, s(5), RES[1])
        e.S("s_cmp_eq_u64", VCC, 0)
        e.branch("s_cbranch_scc1", lok)
        e.S("s_add_u32", sCnt, sCnt, 1)
        e.S("s_cmp_lt_u32", sCnt, 0x20000)
        e.branch("s_cbranch_scc1", lre)
        e.cond_end()
        e.label(lok)
        self.gate = 1 << 20
        yield

    def prologue2(self):
        e = self.e
        T0, T1, T2, T3, T4, T5 = [TMP[40 + i] for i in range(6)]
        mk_srd(e, OUT, pOut, XSZ)
        e.S("s_and_b32", sKH, sWave, 1)
        e.S("s_lshl_b32", sW2048, sWave, 11)
        e.S("s_mul_i32", sA, sC, NA * KB)
        e.S("s_add_u32", sSeg["A"], sA, WA)
        e.S("s_mul_i32", sA, sCG, NO * KB)
        e.S("s_add_u32", sSeg["O"], sA, WO)
        e.S("s_mul_i32", sA, sC, NB * KB)
        e.S("s_add_u32", sSeg["B"], sA, WB)
        e.S("s_mul_i32", sA, sCG, NC * KB)
        e.S("s_add_u32", sSeg["C"], sA, WC)
        e.V("v_add_u32", vDma, sW2048, vL16)
        e.S("s_mul_i32", sXr, sR, 160 * KB)
        e.S("s_mul_i32", sHr, sR, 432 * KB)
        e.S("s_lshl_b32", sSTr, sR, 13)
        e.S("s_mul_i32", sA, sWave, 40 * KB)
        e.V("v_add_u32", vAx[0], sA, vL16)
        e.V("v_add_u32", vAx[1], 20 * KB, vAx[0])
        e.V("v_lshlrev_b32", T0, 11, vG)
        e.V("v_lshl_add_u32", T0, vN, 3, T0)
        e.S("s_lshl_b32", sA, sWave, 8)
        e.V("v_add_u32", vSt, sA, T0)
        e.S("s_mov_b32", self.cInvD, lit(1.0 / D))
        for j in range(3):
            if j == 0:
                e.V("v_mov_b32", vW[0], vL16)
            else:
                e.V("v_add_u32", vW[j], j * 65536, vL16)
        e.S("s_lshl_b32", sA, sKH, 10)
        for j in range(3):
            e.V("v_add_u32", vK[j], sA, vW[j])
        e.V("v_lshlrev_b32", T4, 4, v(0))
        Z = TMP[44:48]
        Z = TMP[48:52]
        for j in range(4):
            e.V("v_mov_b32", Z[j], 0)
        e.ds_write(T4, Z, 0)
        e.ds_write(T4, Z, 4096)
        e.S("s_lshl_b32", sTT, sRH, 2)
        e.S("s_add_u32", sTT, sTT, sWave)
        e.S("s_xor_b32", sB, sTT, 1)
        for u, st in ((0, sTT), (1, sB)):
            e.S("s_mul_i32", sA, st, 20 * KB)
            e.S("s_mul_i32", sD, sKH, 10 * KB)
            e.S("s_add_u32", sA, sA, sD)
            e.V("v_add_u32", vAo[u], sA, vL16)
            e.S("s_mul_i32", sA, st, 54 * KB)
            e.S("s_mul_i32", sD, sKH, 27 * KB)
            e.S("s_add_u32", sA, sA, sD)
            e.V("v_add_u32", vAh[u], sA, vL16)
        e.V("v_lshrrev_b32", T0, 1, vG)
        e.V("v_and_b32", T1, 1, vG)
        e.V("v_lshlrev_b32", T2, 4, vN)
        e.V("v_lshl_add_u32", T3, T0, 8, T2)
        e.V("v_lshl_add_u32", T3, T1, 3, T3)
        e.S("s_mul_i32", sA, sTT, 20 * KB)
        e.V("v_add_u32", vXs, sA, vL16)
        e.V("v_add_u32", vXh, sA, T3)
        e.S("s_mul_i32", sA, sWave, 108 * KB)
        e.V("v_add_u32", vHs, sA, vL16)
        e.S("s_cmp_ge_u32", sC, 12)
        e.S("s_cselect_b32", sA, BIG, sA)
        e.V("v_add_u32", vHh, sA, T3)
        e.S("s_mul_i32", sA, sWave, 40 * KB)
        e.V("v_lshl_add_u32", T3, vG, 3, T2)
        e.V("v_add_u32", vOh, sA, T3)
        e.V("v_cmp_gt_u32", VCC, 2, vG)
        e.V("v_mov_b32", T3, BIG)
        e.V("v_cndmask_b32", vOh, T3, vOh, VCC)
        e.S("s_lshl_b32", sA, sTT, 7)
        e.V("v_lshl_add_u32", T3, vN, 3, sA)
        e.V("v_lshl_add_u32", vStW, T0, 2, T3)
        e.S("s_lshl_b32", sA, sWave, 7)
        e.S("s_add_u32", sA, sA, RST)
        e.V("v_lshl_add_u32", vRT, vG, 4, sA)
        e.V("v_lshl_add_u32", vRW, vN, 2, sA)
        e.S("s_lshl_b32", sA, sTT, 6)
        e.S("s_add_u32", sA, sA, RST)
        e.V("v_lshl_add_u32", vRF, vN, 2, sA)
        e.V("v_lshlrev_b32", T3, 4, vG)
        e.V("v_add_u32", vZ2, ZT + 128, T3)
        e.V("v_cmp_gt_u32", VCC, 10, vN)
        e.V("v_add_u32", T3, ZT, T3)
        e.V("v_cndmask_b32", vZ01, vZ2, T3, VCC)
        e.S("s_lshl_b32", sA, sR, 3)
        e.S("s_add_u32", sA, sA, sTT)
        e.S("s_mul_i32", sA, sA, 16 * 1280)
        e.S("s_mul_i32", sB, sCG, 160)
        e.S("s_add_u32", sA, sA, sB)
        e.V("v_mul_u32_u24", T3, 1280, vN)
        e.V("v_add_u32", T3, sA, T3)
        e.V("v_lshl_add_u32", vOut, vG, 4, T3)
        e.V("v_lshl_add_u32", vOut4, vG, 3, T3)
        e.S("s_mul_i32", sA, sWave, 5120)
        e.V("v_add_u32", vXch, sA, vL16)
        e.V("v_lshlrev_b32", vFl, 2, vN)
        e.V("v_mov_b32", vLn2[0], lit(LN2))
        e.V("v_mov_b32", vEps[0], lit(1e-6))
        e.S("s_mov_b32", sMaskV[0], "0x00ff00ff")
        e.S("s_mov_b32", sMaskV[1], "0x00ff00ff")
        e.S("s_lshl_b32", sA, sR, 8)
        e.S("s_add_u32", sFRL, sA, FLG_RL)
        e.S("s_add_u32", sFRG, sA, FLG_RG)
        e.S("s_lshl_b32", sA, sC, 8)
        e.S("s_add_u32", sFC, sA, FLG_C)
        e.S("s_lshl_b32", sA, sCG, 11)
        e.S("s_add_u32", sOx, sXr, sA)
        e.S("s_lshr_b32", sA, sCG, 1)
        e.S("s_lshl_b32", sA, sA, 10)
        e.S("s_and_b32", sB, sCG, 1)
        e.S("s_lshl_b32", sB, sB, 9)
        e.S("s_add_u32", sA, sA, sB)
        e.S("s_add_u32", sA, sA, 16 * KB)
        e.S("s_add_u32", sOxh, sXr, sA)
        e.S("s_lshl_b32", sA, sCG, 10)
        e.S("s_add_u32", sOst, sSTr, sA)
        e.S("s_lshl_b32", sA, sC, 10)
        e.S("s_add_u32", sOo, sXr, sA)
        e.S("s_lshl_b32", sA, sC, 8)
        e.S("s_add_u32", sA, sA, 16 * KB)
        e.S("s_add_u32", sOoh, sXr, sA)
        e.S("s_mul_i32", sA, sC, 3 * KB)
        e.S("s_add_u32", sOh, sHr, sA)
        e.S("s_lshl_b32", sA, sC, 9)
        e.S("s_add_u32", sA, sA, 48 * KB)
        e.S("s_add_u32", sOhh, sHr, sA)
        e.S("s_mul_i32", sKv, sC, 16 * KVSZ)
        e.misc(f"s_getreg_b32 {sX1}, hwreg(HW_REG_XCC_ID, 0, 4)")
        e.S("s_and_b32", sX1, sX1, 7)
        e.S("s_add_u32", sX1, sX1, 8)
        e.S("s_add_u32", sX1, sX1, sBase)
        e.S("s_mov_b32", sLocal, 0)
        U, Hh, Ee, Dq = T0, T1, T2, T3
        e.S("s_mov_b32", sA, 52429)
        e.V("v_mul_u32_u24", U, sA, v(0))
        e.V("v_lshrrev_b32", U, 18, U)
        e.V("v_mul_u32_u24", Dq, 5, U)
        e.V("v_sub_u32", Dq, v(0), Dq)
        e.V("v_cmp_le_u32", VCC, 21, U)
        e.V("v_cndmask_b32", Hh, 0, 1, VCC)
        e.V("v_mul_u32_u24", Ee, 21, Hh)
        e.V("v_sub_u32", Ee, U, Ee)
        A0, A1, A2, A3 = TMP[46], TMP[47], ACC[36], ACC[37]
        e.V("v_cmp_le_u32", s(100, 2), 16, Ee)
        e.V("v_cmp_eq_u32", s(88, 2), 4, Dq)
        e.V("v_cndmask_b32", A0, 0, 1, s(100, 2))
        e.V("v_lshl_add_u32", A0, Hh, 1, A0)
        e.V("v_add_u32", A1, 4, Hh)
        e.V("v_cndmask_b32", A1, A1, 6, s(100, 2))
        e.V("v_cndmask_b32", A0, A0, A1, s(88, 2))
        e.V("v_cndmask_b32", A1, Dq, Hh, s(88, 2))
        e.V("v_lshl_add_u32", A2, Hh, 2, Ee)
        e.V("v_subrev_u32", A2, 8, A2)
        e.V("v_cndmask_b32", A2, Ee, A2, s(100, 2))
        e.V("v_cmp_eq_u32", VCC, 20, Ee)
        e.V("v_cndmask_b32", A2, A2, 0, VCC)
        e.V("v_lshl_add_u32", A1, A1, 4, A2)
        e.V("v_lshlrev_b32", A1, 4, A1)
        e.V("v_lshl_add_u32", vKvSrc, A0, 10, A1)
        e.V("v_mul_u32_u24", A0, 5, Hh)
        e.V("v_add_u32", A0, A0, Dq)
        e.V("v_cmp_le_u32", s(88, 2), 8, A0)
        e.V("v_lshrrev_b32", A1, 1, A0)
        e.V("v_subrev_u32", A2, 8, A0)
        e.V("v_cndmask_b32", A1, A1, A2, s(88, 2))
        e.V("v_and_b32", A2, 1, A0)
        e.V("v_cndmask_b32", A2, A2, 0, s(88, 2))
        e.V("v_lshlrev_b32", A2, 3, A2)
        e.V("v_cndmask_b32", A0, 0, 1, s(88, 2))
        e.V("v_lshl_add_u32", A3, Hh, 1, A0)
        e.V("v_lshl_add_u32", A3, A3, 2, A1)
        e.V("v_lshl_add_u32", A3, A3, 4, A2)
        e.V("v_add_u32", A3, ZT, A3)
        e.V("v_mul_u32_u24", T4, 20, Hh)
        e.V("v_add_u32", T4, T4, Ee)
        e.V("v_cmp_le_u32", s(100, 2), 32, T4)
        e.V("v_and_b32", T5, 1, T4)
        e.V("v_cndmask_b32", T5, T5, 2, s(100, 2))
        e.V("v_lshl_add_u32", A0, T5, 1, A0)
        e.V("v_lshrrev_b32", T5, 1, T4)
        e.V("v_subrev_u32", T4, 32, T4)
        e.V("v_cndmask_b32", T4, T5, T4, s(100, 2))
        e.V("v_lshl_add_u32", T4, A1, 4, T4)
        e.V("v_lshl_add_u32", T4, T4, 4, A2)
        e.V("v_lshl_add_u32", T4, A0, 10, T4)
        e.V("v_cndmask_b32", T4, T4, A3, VCC)
        e.V("v_cmp_gt_u32", VCC, 210, v(0))
        e.V("v_mov_b32", T5, DUMMY)
        e.V("v_cndmask_b32", vKvDst, T5, T4, VCC)
        e.V("v_cndmask_b32", vKvSrc, 0, vKvSrc, VCC)
        e.V("v_lshlrev_b32", T4, 3, v(0))
        e.V("v_mov_b32", T5, BIG)
        e.V("v_cndmask_b32", vT16, T5, T4, VCC)
        e.V("v_and_b32", T4, -16, T4)
        e.V("v_and_b32", T0, 1, v(0))
        e.V("v_mul_u32_u24", T0, 8 * KVSZ, T0)
        e.V("v_add_u32", T4, T4, T0)
        e.V("v_cndmask_b32", vT16L, T5, T4, VCC)

    def late_loads(self):
        e = self.e
        T4, T5 = TMP[48], TMP[49]
        e.S("s_mul_i32", sB, sCG, 160)
        e.bload(RES[10:14], vOut, XIN, 0, 0)
        e.bload(RES[14:18], vOut, XIN, 0, 64)
        e.bload(RES[18:20], vOut4, XIN, 0, 128)
        skip = e.newlabel("noxid")
        e.S("s_cmp_lg_u32", sWave, 3)
        e.branch("s_cbranch_scc1", skip)
        e.cond_begin()
        e.S("s_lshl_b32", sA, sR, 8)
        e.S("s_add_u32", sA, sA, FLG_X)
        e.S("s_lshl_b32", sB, sC, 2)
        e.V("v_mov_b32", T4, sB)
        e.V("v_mov_b32", T5, sX1)
        e.S("s_mov_b64", EXEC, 1)
        e.bstore(T5, T4, WS, sA, 0, "sc1")
        e.S("s_mov_b64", EXEC, -1)
        e.cond_end()
        e.label(skip)

    def unpack(self, dst, pk):
        e = self.e
        for a_ in range(2):
            for j in range(4):
                e.V("v_lshlrev_b32", dst[8 * a_ + j], 16, pk[4 * a_ + j])
                e.V("v_and_b32", dst[8 * a_ + 4 + j], "0xffff0000", pk[4 * a_ + j])
        for j in range(2):
            e.V("v_lshlrev_b32", dst[16 + 2 * j], 16, pk[8 + j])
            e.V("v_and_b32", dst[16 + 2 * j + 1], "0xffff0000", pk[8 + j])

    class ALoad:
        def __init__(self, m, vaddr, terms, nks):
            self.m, self.vaddr, self.terms, self.nks = m, vaddr, terms, nks
            self.n = 0
            self.based = -1
            self.done = False
            self.win = 20

        def step(self):
            e = self.m.e
            ks, u = divmod(self.n, 2)
            if ks // 4 != self.based:
                self.based = ks // 4
                e.S("s_add_u32", sLd, self.terms[0], self.terms[1] + (ks // 4) * 4 * KB)
                return False
            e.bload(a((self.n % 40) * 4, 4), self.vaddr[u], WS, sLd, (ks % 4) * KB, self.m.opt.get("amod", "sc1"), cls=(self.m.opt.get("latA", 600), 76, 33 if self.nks == 27 else 16))
            self.n += 1
            self.done = self.n >= 2 * self.nks
            return True

        def upto(self, ks):
            while self.n < 2 * min(ks + 1, self.nks):
                self.step()

    def stats_loads(self, ver):
        e = self.e
        e.S("s_add_u32", sA, sSTr, STB[ver])
        for u in range(2):
            for k in range(2):
                e.bload(TMP[4 * u + 2 * k:4 * u + 2 * k + 2], vSt, WS, sA, k * 1024 + u * 128, "sc1", cls=(600, 20, 0))

    def stats_gen(self, need_T, have=False):
        e = self.e
        for u in range(2):
            sm, sq, t0, t1 = TMP[4 * u], TMP[4 * u + 1], TMP[4 * u + 2], TMP[4 * u + 3]
            if not have:
                e.V("v_add_f32", sm, sm, t0); yield
                e.V("v_add_f32", sq, sq, t1); yield
            for op in () if have else ("v_permlane32_swap_b32", "v_permlane16_swap_b32"):
                e.V("v_mov_b32", t0, sm); yield
                e.V("v_mov_b32", t1, sq); yield
                e.V(op, sm, t0); yield
                e.V(op, sq, t1); yield
                e.V("v_add_f32", sm, sm, t0); yield
                e.V("v_add_f32", sq, sq, t1); yield
            e.V("v_mul_f32", sm, lit(1.0 / D), sm); yield
            e.V("v_mul_f32", t0, sm, sm); yield
            e.V("v_fma_f32", sq, sq, self.cInvD, Neg(t0)); yield
            e.V("v_max_f32", sq, 0, sq); yield
            e.V("v_add_f32", sq, lit(1e-5), sq); yield
            e.V("v_rsq_f32", t0, sq); yield
            e.V("v_cvt_pk_bf16_f32", XE[u][0], sm, sm); yield
            e.V("v_mul_f32", sq, sq, t0); yield
            e.ds_write(vRW, t0, 64 * u); yield
            c2 = vC2 if u == 0 else vC2b
            e.V("v_mul_f32", c2[0], lit(LOG2E), t0); yield
            e.V("v_lshlrev_b32", t1, 16, XE[u][0]); yield
            e.V("v_sub_f32", sm, sm, t1); yield
            e.V("v_cvt_pk_bf16_f32", XE[u][1], sm, sq); yield
            e.V("v_and_b32", t1, "0xffff0000", XE[u][1]); yield
            e.V("v_sub_f32", t1, sq, t1); yield
            e.V("v_cvt_pk_bf16_f32", XE[u][3], sm, t1); yield
            e.V("v_mov_b32", XE[u][2], XE[u][0]); yield
        if need_T:
            for u in range(2):
                e.ds_read(RT[4 * u:4 * u + 4], vRT, 64 * u); yield

    def phi_pair(self, src, c2, bcast, t):
        e = self.e
        m = "op_sel_hi:[1,0]" if bcast else ""
        e.V("v_pk_mul_f32", t[0:2], src, c2, mods=m)
        e.V("v_exp_f32_e64", t[2], t[0], mods="clamp")
        e.V("v_exp_f32_e64", t[3], t[1], mods="clamp")
        e.V("v_max_f32", t[0], 0, t[0])
        e.V("v_max_f32", t[1], 0, t[1])
        e.V("v_pk_add_f32", t[2:4], t[2:4], vEps, mods="op_sel_hi:[1,0]")
        e.V("v_pk_fma_f32", t[0:2], t[0:2], vLn2, t[2:4], mods="op_sel_hi:[1,0,1]")

    def scratch(self, nblk, endpos):
        st = endpos - nblk
        if (st % RB) + nblk > RB:
            st = endpos - (endpos % RB) - nblk
        self.last_scratch = (st, st + nblk)
        return st, self.ldsaddr(st)

    def bg_on(self, tail):
        e = self.e
        st = {"next": 0}
        t_end = e.T + tail
        self.deadline = lambda: t_end

        def f():
            if e.T >= st["next"] and self.dma_ok():
                n0 = len(e.vm) + len(e.lg) + len(self.deferred)
                while len(e.vm) + len(e.lg) + len(self.deferred) == n0:
                    next(self.dmaf)
                st["next"] = e.T + self.opt.get("vgap", 24)
        self.e.bg = f

    def code_touch(self, ahead=None):
        e = self.e
        if not self.opt.get("ctouch", 1):
            return
        lab = e.newlabel("here")
        e.label(lab)
        ahead = self.opt.get("cahead", 2048) if ahead is None else ahead
        e.V("v_lshlrev_b32", v(51), 5, v(0))
        e.V("v_add_u32", v(51), f"{lab}-{self.kname}+{ahead}", v(51))
        e.V("v_min_u32", v(51), self.opt.get("code_bytes", 32768) - 4, v(51))
        e.misc(f"global_load_dword {vDum}, {v(51)}, s[96:97]")
        e._vm([], (800, 30, 10))

    def at_block(self, t, gen):
        i0 = self.cons
        while self.cons < i0 + t:
            yield "idle"
        yield from gen

    def delay(self, n, gen):
        for _ in range(n):
            yield "idle"
        yield from gen

    def code_touch_gen(self):
        self.code_touch(self.opt.get("cahead", 512))
        yield

    def bg_off(self):
        self.e.bg = None

    def gstore(self, lst, cold=False):
        e = self.e
        mode = self.opt.get("mode", "dual")
        if cold and not self.opt.get("touchcold", 0):
            mode = "safe"
        if mode != "dual":
            return [e.bstore(d, vo, WS, so, off, "sc1" if mode == "safe" else "") for d, vo, so, off in lst]
        ls, le = e.newlabel("st_safe"), e.newlabel("st_end")
        regs = []
        for d, vo, so, off in lst:
            regs += d.regs() + vo.regs()
        e.wait_ops(e._pending(regs))
        e.S("s_cmp_eq_u32", sLocal, 0)
        need = e._need("vmem", regs, [])
        if need > 1:
            e.nop(need - 1)
        e.branch("s_cbranch_scc1", ls)
        n0 = len(e.lines)
        ops = [e.bstore(d, vo, WS, so, off, "") for d, vo, so, off in lst]
        body = e.lines[n0:]
        assert len(body) == len(lst), body
        e.raw(f"  s_branch {le}")
        e.label(ls)
        for l in body:
            e.raw(l + " sc1")
        e.label(le)
        return ops

    def touch_gen(self, lst, cold=False):
        e = self.e
        if (cold and not self.opt.get("touchcold", 0)) or not self.opt.get("touch", 0):
            return
        for vo, sb, add, off in lst:
            e.S("s_add_u32", sE, sb, add); yield
            e.touch(vDum, vo, WS, sE, off, cls=(750, 80, 30)); yield

    def local_gen(self):
        e = self.e
        e.S("s_lshl_b32", s(6), sR, 8); yield
        e.S("s_add_u32", s(6), s(6), FLG_X); yield
        e.bload(TMP[39], vFl, WS, s(6), 0, "sc1"); yield
        for _ in range(40):
            yield "idle"
        e.V("v_cmp_ne_u32", VCC, sX1, TMP[39]); yield
        e.S("s_cmp_eq_u64", VCC, 0)
        e.S("s_cselect_b32", sLocal, 1, 0); yield

    def poll(self, kind, val):
        e = self.e
        skip = e.newlabel("nopoll")
        loop = e.newlabel("poll")
        e.S("s_cmp_lg_u32", sWave, 0)
        e.branch("s_cbranch_scc1", skip)
        e.cond_begin()
        t = TMP[38]
        e.S("s_mov_b32", sCnt, 0)
        e.S("s_mov_b64", sOk, 0)
        e.S("s_add_u32", sB, sBase, val)
        va, vb, sa, sb = (vFl, vFl, sFRL, sFRG) if kind != "col" else (vFl, vFl, sFC, sFC)
        if kind == "both":
            va, vb, sa, sb = TMP[36], TMP[37], 0, 0
            e.V("v_cmp_gt_u32", VCC, 2, vG)
            e.V("v_mov_b32", va, sFC)
            e.V("v_mov_b32", vb, sFRL)
            e.V("v_cndmask_b32", va, vb, va, VCC)
            e.V("v_add_u32", va, va, vFl)
            e.V("v_mov_b32", vb, FLG_RG - FLG_RL)
            e.V("v_cndmask_b32", vb, vb, 0, VCC)
            e.V("v_add_u32", vb, va, vb)
        if kind == "row":
            e.S("s_cmp_eq_u32", sLocal, 0)
            e.S("s_cselect_b32", sD, 3, -1)
        else:
            e.S("s_mov_b32", sD, 3)
        e.label(loop)

        def chk():
            e.misc("s_waitcnt vmcnt(0)")
            e.misc(f"v_subrev_u32 {t}, {sB}, {t}")
            e.misc(f"v_cmp_ge_u32 vcc, 1, {t}")
            e.misc(f"s_or_b64 {sOk}, {sOk}, vcc")
            e.misc(f"s_cmp_eq_u64 {sOk}, -1")
            e.misc(f"s_cbranch_scc1 {skip}")
        e.misc(f"buffer_load_dword {t}, {va}, {WS}, {sa} offen sc1")
        e.misc("s_add_u32 %s, %s, 1" % (sCnt, sCnt))
        chk()
        if kind != "row":
            e.misc("s_sleep 3")
        lnext = e.newlabel("pollnext")
        e.misc(f"s_and_b32 {sA}, {sCnt}, {sD}")
        e.misc(f"s_cbranch_scc1 {lnext}")
        e.misc(f"buffer_load_dword {t}, {vb}, {WS}, {sb} offen sc1")
        chk()
        e.label(lnext)
        e.misc(f"s_cmp_lt_u32 {sCnt}, 0x80000")
        e.misc(f"s_cbranch_scc1 {loop}")
        e.cond_end()
        e.label(skip)

    def flag(self, kind, val, t0=TMP[37], t1=TMP[38]):
        e = self.e
        lst = [(1, sFRG, "sc1", sC), (2, sFRL, "", sC)] if kind != "col" else []
        if kind != "row":
            lst.append((3, sFC, "sc1", sR))
        for w, sb, m, sidx in lst:
            skip = e.newlabel("noflag")
            if w == 1 and self.opt.get("skipg", 1):
                e.S("s_lshl_b32", sA, sLocal, 2)
                e.S("s_add_u32", sA, sA, sWave)
                e.S("s_cmp_lg_u32", sA, w)
            else:
                e.S("s_cmp_lg_u32", sWave, w)
            e.branch("s_cbranch_scc1", skip)
            e.cond_begin()
            e.S("s_lshl_b32", sA, sidx, 2)
            e.V("v_mov_b32", t0, sA)
            e.S("s_add_u32", sA, sBase, val)
            e.V("v_mov_b32", t1, sA)
            e.S("s_mov_b64", EXEC, 1)
            e.bstore(t1, t0, WS, sb, 0, m)
            e.S("s_mov_b64", EXEC, -1)
            e.cond_end()
            e.label(skip)

    def handoff(self, val, ops, shadow=None, touch=()):
        e = self.e
        t_st = e.T
        hk = (val - 2) % 4
        pick = lambda name, d: self.opt[name + "s"][hk] if name + "s" in self.opt else self.opt.get(name, d)
        self.deadline = lambda: t_st + pick("topup", 2600)
        self.own_end = 0
        while self.dma_ok():
            next(self.dmaf)
        while self.stage_step():
            pass
        self.finish_stage()
        self.restore(self.opt.get("rest1", 2))
        e.wait_all_lg()
        self.ring_barrier(self.cons + FI + self.opt.get("ahead", 16), ops)
        self.hold = None
        self.flag("row", val)
        self.stamp("flag")
        t_flag = e.T
        if self.opt.get("post_touch", 0):
            for k, (vo, sb, add, off) in enumerate(touch):
                sr = sE if k % 2 else sD
                e.S("s_add_u32", sr, sb, add)
                e.touch(vDum, vo, WS, sr, off, "sc1", cls=(750, 66, 30))
        self.deadline = lambda: t_flag + pick("topup2", 1500)
        while self.dma_ok():
            next(self.dmaf)
        while self.stage_step():
            pass
        self.finish_stage()
        self.warn.append(f"staged {len(self.staged)}")
        self.stage_plan = []
        self.prime()
        self.restore(self.opt.get("rest2", 8) if hk == 3 else 99)
        self.restg = self.restore_gen(99)
        if shadow:
            shadow()
        self.poll("row", val)
        e.T = max(e.T, t_flag + 1000)
        e.barrier()
        self.stamp("go")

    def phaseA(self, p):
        e = self.e
        opt = self.opt
        xv = 2 * p
        acc = lambda T, u: ACC[(T * 2 + u) * 4:(T * 2 + u) * 4 + 4]
        xf = lambda ks, u: a((ks * 2 + u) * 4, 4) if ks < 20 else XE[u]
        if p == 0:
            e.S("s_mov_b32", sSel[0], "0x00003f80")
            e.S("s_mov_b32", sSel[1], "0x3f800000")
            e.S("s_mov_b32", sOdd[0], "0xaaaaaaaa")
            e.S("s_mov_b32", sOdd[1], "0xaaaaaaaa")
            e.S("s_getpc_b64", s(96, 2))
            e.label("main_pc2")
            e.S("s_sub_u32", s(96), s(96), "main_pc2-" + self.kname)
            e.S("s_subb_u32", s(97), s(97), 0)
            for _ in range(opt.get("first_groups", 6 if self.al0 else 3)):
                for _ in self.dma_group():
                    pass
        if p == 0 and self.al0:
            al = None
            for _ in self.stats_gen(True):
                pass
            fl0 = [iter(())]
        else:
            al = self.ALoad(self, vAx, (sXr, XB[xv]), 20)
            al.upto(opt.get("adist", 4) - 1)
            self.stats_loads(xv)
            fl0 = [self.delay(opt.get("stdelay", 24), self.stats_gen(True))]
        sc_keep = self.last_scratch
        if p:
            fl0.append(self.restg)
        if p == 0:
            if opt.get("r2st", 2) == 0:
                self.r2_stores()
                self.late_loads()
            e.wait_all_lg()
            if opt.get("r2st", 2) == 2:
                self.ring_barrier(FI + 8, self.ops2)
                self.flag("col", 2)
                fl0.append(self.at_block(opt.get("w2at", 60), self.w2_gen()))
            else:
                self.ring_barrier(FI + 8)
            self.prime()
            self.stamp("start")
            if opt.get("keep", 12):
                self.capg = self.capture_gen(opt.get("keep0", 3), opt.get("keep", 12))
                next(self.capg)
                fl0.append(self.capg)
        st1 = {}

        def hook1(t):
            if t >= opt.get("w2flag_at", 30) and not st1.get("done"):
                st1["done"] = t
                return self.ops2, (lambda: self.flag("col", 2))
            return [], None

        def add1(t):
            if st1.get("done") and t >= opt.get("w2chk_at", 70) and not st1.get("chk"):
                st1["chk"] = True
                return self.w2_gen()
        i0 = self.seqstart[("A1", p)]
        fb = 102
        sst, sad = self.scratch(28, self.seq[i0 + fb][0])
        self.last_scratch = sc_keep
        self.hold = sst

        C2T = ACC[40:48]

        def pre_gen(first):
            while first.gi_frame is not None:
                yield "idle"
            e.S("s_mul_i32", s(7), sWave, 7168); yield
            e.S("s_add_u32", s(7), s(7), sad); yield
            e.V("v_add_u32", TMP[24], s(7), vL16); yield
            e.V("v_add_u32", TMP[25], sad, vKvSrc); yield
            e.S("s_mul_i32", s(7), sR, KVSZ); yield
            e.S("s_add_u32", s(7), s(7), sKv); yield
            e.S("s_add_u32", s(7), s(7), KVB[p]); yield
            for _ in range(8):
                yield "idle"
            for j in range(8):
                e.V("v_mul_f32", C2T[j], lit(LOG2E), RT[j]); yield
        fl0.append(pre_gen(fl0[0]))

        def must_gen():
            yield from fl0[0]
            yield from fl0[-1]
            while self.capg and self.cap_next < sst + 28:
                next(self.capg)
                yield

        def mf(t, W, u):
            ks, T = divmod(t, 5)
            e.mfma(acc(T, u), xf(ks, u), W, acc(T, u) if ks else 0)
        self.run_pass(105, mf, 5, xf, fl0, must=must_gen(), chunk=(8 if p == 0 else 24), stop_reads=self.seqstart[("A4", p)], aload=al,
                      force_bar=fb, tail=6000, mix=opt.get("mixA", 0) if p else 0,
                      late=(60, self.touch_gen([(vAx[0], sOo, OB[p], 0), (vAx[1], sOo, OB[p], 0), (vOh, sOoh, OB[p], 0), (vOh, sOoh, OB[p] + 20 * KB, 0)], p == 0)), hooks={"bar": hook1, "add": add1} if (p == 0 and opt.get("r2st", 2) == 0) else None)
        if p == 0 and opt.get("r2st", 2) == 1:
            self.dma_all()
            self.r2_stores()
            self.late_loads()
        assert sst + 28 <= self.freed and sst + 28 <= self.cap_hold, (sst, self.cap_hold)
        self.stamp("A1")
        self.bg_on(5000)
        KF = [TMP[8:12], TMP[12:16], TMP[16:20]]
        VF = {3: TMP[20:24], 4: ACC[56:60], 2: ACC[60:64]}
        tt = [ACC[48:52], ACC[52:56]]
        TA0, TA1 = TMP[24], TMP[25]
        n = 0
        for T in range(3):
            for u in range(2):
                for h in range(2):
                    t = tt[n % 2]
                    n += 1
                    self.phi_pair(acc(T, u)[2 * h:2 * h + 2], C2T[4 * u + 2 * h:4 * u + 2 * h + 2], False, t)
                    e.V("v_cvt_pk_bf16_f32", KF[T][2 * u + h], t[0], t[1])
        for T in (3, 4, 2):
            for u in range(2):
                for h in range(2):
                    x = acc(T, u)[2 * h:2 * h + 2]
                    e.V("v_pk_mul_f32", x, x, RT[4 * u + 2 * h:4 * u + 2 * h + 2])
            for u in range(2):
                for h in range(2):
                    x = acc(T, u)[2 * h:2 * h + 2]
                    e.V("v_cvt_pk_bf16_f32", VF[T][2 * u + h], x[0], x[1])
        for j in range(4):
            e.V("v_cndmask_b32", VF[2][j], VF[2][j], vOne, sMaskV)
        PR = [ACC[4 * i:4 * i + 4] for i in range(7)]
        prods = [(0, 3), (0, 2), (1, 4), (1, 2), (2, 3), (2, 4), (2, 2)]
        for i, (kt, vt) in enumerate(prods):
            e.mfma(PR[i], KF[kt], VF[vt], 0)
        for i in range(7):
            e.ds_write(TA0, PR[i], i * 1024)
        e.wait_all_lg()
        e.barrier()
        RD = [ACC[4 * w:4 * w + 4] for w in range(4)]
        for w in range(4):
            e.ds_read(RD[w], TA1, w * 7168)
        for h in range(2):
            e.V("v_pk_add_f32", RD[0][2 * h:2 * h + 2], RD[0][2 * h:2 * h + 2], RD[1][2 * h:2 * h + 2])
            e.V("v_pk_add_f32", RD[2][2 * h:2 * h + 2], RD[2][2 * h:2 * h + 2], RD[3][2 * h:2 * h + 2])
        for h in range(2):
            e.V("v_pk_add_f32", RD[0][2 * h:2 * h + 2], RD[0][2 * h:2 * h + 2], RD[2][2 * h:2 * h + 2])
        e.V("v_cvt_pk_bf16_f32", RD[1][0], RD[0][0], RD[0][1])
        e.V("v_cvt_pk_bf16_f32", RD[1][1], RD[0][2], RD[0][3])
        kvst = e.bstore(RD[1][0:2], vT16, WS, s(7), 0, "sc1")
        self.bg_off()
        self.stamp("kvpub")
        PL = [ACC[4 * i:4 * i + 4] for i in range(10)]

        st2 = {}

        def barhook(t):
            def rel():
                self.hold = None

            def relflag():
                self.hold = None
                self.flag("col", 2)
            if p == 0 and opt.get("r2st", 2) == 1 and not st2.get("done") and t >= opt.get("w2flag2_at", 12):
                st2["done"] = True
                return self.ops2, relflag
            return [], rel

        def kvloads():
            for i in range(8):
                if i % 2 == 0:
                    e.S("s_add_u32", sB, sKv, KVB[p] + i * KVSZ); yield
                e.bload(PL[i], vT16L, WS, sB, (i % 2) * KVSZ, "sc1", cls=(opt.get('kvlat', 800), 80, opt.get('kvsvc', 130))); yield

        def kvsum():
            SM = PL[8:10]
            for i in range(8):
                for d in range(4):
                    for h in range(2):
                        x = SM[d >> 1][2 * (d & 1) + h]
                        if i == 0:
                            e.V("v_dot2_f32_bf16", x, PL[i][d], sSel[h], 0)
                        else:
                            e.V("v_dot2c_f32_bf16", x, sSel[h], PL[i][d])
            for d in range(8):
                x = SM[d >> 2][d & 3]
                e.V("v_add_f32_dpp", x, x, x, mods="quad_perm:[1,0,3,2] row_mask:0xf bank_mask:0xf")
            for d in range(4):
                e.V("v_cndmask_b32", PL[0][d], SM[0][d], SM[1][d], sOdd)
            e.V("v_cmp_u_f32", VCC, PL[0][0], PL[0][1])
            e.V("v_cmp_u_f32", sNan, PL[0][2], PL[0][3])
            e.S("s_or_b64", VCC, VCC, sNan)

        def mfq(t, W, u):
            ks, T = divmod(t, 3)
            e.mfma(acc(5 + T, u), W, xf(ks, u), acc(5 + T, u) if ks else 0)
        self.lastbar = self.rd - 8
        fl = []
        if p == 0:
            fl = [self.local_gen()] + ([self.capg] if self.capg else [])
        self.run_pass(63, mfq, 3, xf, fl, stop_reads=self.seqstart[("A4", p)], hooks={"bar": barhook},
                      late=(opt.get("kvload_at", 40), kvloads()), see_all=True, force_bar=61, tail=1600 + self.opt.get("slack", 2400))
        if self.capg:
            n_ = 0
            for _ in self.capg:
                n_ += 1
                assert n_ < 1000
            self.capg = None
        self.stamp("A2")
        if p == 0 and opt.get("r2st", 2) == 1:
            assert st2.get("done")
            w2 = self.w2_gen()
            while next(w2) != "idle":
                pass
        if opt.get("qbg", 1):
            self.bg_on(1600 + self.opt.get("slack", 2400))
        PQ0 = [TMP[0:4], TMP[4:8]]
        PQ1 = [TMP[8:12], TMP[12:16]]
        tq = [TMP[16:20], TMP[20:24]]
        for u in range(2):
            c2 = vC2 if u == 0 else vC2b
            for h in range(2):
                self.phi_pair(acc(5, u)[2 * h:2 * h + 2], c2, True, tq[0])
                self.phi_pair(acc(6, u)[2 * h:2 * h + 2], c2, True, tq[1])
                e.V("v_cvt_pk_bf16_f32", PQ0[u][2 * h], tq[0][0], tq[1][0])
                e.V("v_cvt_pk_bf16_f32", PQ0[u][2 * h + 1], tq[0][1], tq[1][1])
            for h in range(2):
                self.phi_pair(acc(7, u)[2 * h:2 * h + 2], c2, True, tq[h])
                e.V("v_cvt_pk_bf16_f32", PQ1[u][h], tq[h][0], tq[h][1])
            e.V("v_mov_b32", PQ1[u][2], 0)
            e.V("v_mov_b32", PQ1[u][3], 0)
        self.bg_off()
        self.stamp("qepi")
        kvsum()
        lok, lre = e.newlabel("kvok"), e.newlabel("kvretry")
        e.branch("s_cbranch_scc0", lok)
        e.cond_begin()
        e.S("s_mov_b32", sCnt, 0)
        e.label(lre)
        e.misc("s_sleep 4")
        for _ in kvloads():
            pass
        kvsum()
        e.branch("s_cbranch_scc0", lok)
        e.S("s_add_u32", sCnt, sCnt, 1)
        e.S("s_cmp_lt_u32", sCnt, 0x10000)
        e.branch("s_cbranch_scc1", lre)
        e.cond_end()
        e.label(lok)
        self.stamp("kvgo")
        if p == 0 and opt.get("r2st", 2) == 1:
            for _ in w2:
                pass

        self.bg_on(900 + self.opt.get("slack", 2400))
        e.V("v_cvt_pk_bf16_f32", TMP[16], PL[0][0], PL[0][1])
        e.V("v_cvt_pk_bf16_f32", TMP[17], PL[0][2], PL[0][3])
        e.ds_write(vKvDst, TMP[16:18])
        e.wait_all_lg()
        e.barrier()
        FR = [ACC[40 + 4 * i:44 + 4 * i] for i in range(6)] + [TMP[16 + 4 * i:20 + 4 * i] for i in range(4)]
        for T in range(3):
            for ks in range(2):
                e.ds_read(FR[T * 2 + ks], vL16, IMG + (T * 2 + ks) * KB)
        for ks in range(2):
            e.ds_read(FR[6 + ks], vZ01, ks * 64)
            e.ds_read(FR[8 + ks], vZ2, ks * 64)
        oa = lambda T, u: ACC[(T * 2 + u) * 4:(T * 2 + u) * 4 + 4]
        ops = []

        def norm(u, packed):
            den = (oa(3, u)[0], oa(3, u)[2], oa(4, u)[0])
            for x in den:
                e.V("v_add_f32", x, vEps[0], x); yield
            for x in den:
                e.V("v_rcp_f32", x, x); yield
            for T in range(3):
                for h in range(2):
                    x = oa(T, u)[2 * h:2 * h + 2]
                    dn = oa(3, u)[2 * h:2 * h + 2] if T < 2 else oa(4, u)[0:2]
                    if packed:
                        e.V("v_pk_mul_f32", x, x, dn, mods="op_sel_hi:[1,0]"); yield
                    else:
                        e.V("v_mul_f32", x[0], x[0], dn[0]); yield
                        e.V("v_mul_f32", x[1], x[1], dn[0]); yield
            o4 = TMP[8 * u:8 * u + 4] if False else RT[4 * u:4 * u + 4]
            o2 = XE[u][0:2]
            for j in range(4):
                e.V("v_cvt_pk_bf16_f32", o4[j], oa(0, u)[j], oa(1, u)[j]); yield
            for h in range(2):
                e.V("v_cvt_pk_bf16_f32", o2[h], oa(2, u)[2 * h], oa(2, u)[2 * h + 1]); yield
            ops.extend(self.gstore([(o4, vAx[u], sA, 0), (o2, vOh, sB if u == 0 else sD, 0)], p == 0 or opt.get("osafe")))
            yield
        bg, e.bg = e.bg, None
        order = [(T, k) for k in range(2) for T in (3, 4, 0, 1, 2)]
        for T, k in order:
            e.mfma(oa(T, 0), FR[2 * T + k], (PQ0, PQ1)[k][0], oa(T, 0) if k else 0)
        e.S("s_add_u32", sA, sOo, OB[p])
        e.S("s_add_u32", sB, sOoh, OB[p])
        g0 = norm(0, False)
        for n_, (T, k) in enumerate(order):
            e.mfma(oa(T, 1), FR[2 * T + k], (PQ0, PQ1)[k][1], oa(T, 1) if k else 0)
            if n_ == 0:
                e.S("s_add_u32", sD, sOoh, OB[p] + 20 * KB)
            elif n_ < 9:
                next(g0)
                if n_ not in (2, 3):
                    next(g0)
        e.bg = bg
        for _ in g0:
            pass
        for _ in norm(1, True):
            pass
        self.bg_off()
        self.stamp("A3")
        def shadow():
            e.S("s_mul_i32", sB, sCG, 160)
            e.V("v_lshl_add_u32", TMP[2], vG, 4, sB)
            e.V("v_lshl_add_u32", TMP[3], vG, 3, sB)
            e.bload(ACC[40:44], TMP[2], SB2, 0, 0, cls=(800, 20, 0))
            e.bload(ACC[44:48], TMP[2], SB2, 0, 64, cls=(800, 20, 0))
            e.bload(ACC[48:50], TMP[3], SB2, 0, 128, cls=(800, 20, 0))
            if p == 0:
                self.unpack(RES, RES[10:20])
        self.handoff(4 * p + 2, ops, shadow, [(vAx[0], sOo, OB[p], 0), (vAx[1], sOo, OB[p], 0), (vOh, sOoh, OB[p], 0), (vOh, sOoh, OB[p] + 20 * KB, 0)])

    def phase64(self, p, kind):
        e = self.e
        opt = self.opt
        nks = 10 if kind == "O" else 27
        name = "A4" if kind == "O" else "B2"
        acc = lambda T, u: ACC[(u * 5 + T) * 4:(u * 5 + T) * 4 + 4]
        if kind == "O":
            al = self.ALoad(self, vAo, (sXr, OB[p]), nks)
        else:
            al = self.ALoad(self, vAh, (sHr, HB[p]), nks)
        al.upto(opt.get("adist", 4) - 1)
        xf = lambda ks, u: a(((ks % 20) * 2 + u) * 4, 4)
        if kind == "C":
            e.ds_read(TMP[2], vRF)
        i0 = self.seqstart[(name, p)]
        fb = 5 * nks - 3
        sst, sad = self.scratch(20, self.seq[i0 + fb][0])
        self.hold = sst
        stop = i0 + 5 * nks

        def mf(t, W, u):
            ks, T = divmod(t, 5)
            u = 1 - u
            c0 = RES[4 * T:4 * T + 4] if (kind == "O" and u == 0) else 0
            e.mfma(acc(T, u), W, xf(ks, u), acc(T, u) if ks else c0)

        def addr_gen():
            e.V("v_add_u32", TMP[0], sad, vXch); yield
            e.S("s_xor_b32", sA, sWave, 1); yield
            e.S("s_mul_i32", sA, sA, 5120); yield
            e.S("s_add_u32", sA, sA, sad); yield
            e.V("v_add_u32", TMP[1], sA, vL16); yield
            if kind == "C":
                e.V("v_mul_f32", TMP[2], TMP[2], TMP[2]); yield
            if not last:
                e.S("s_add_u32", sA, sOx, XB[xv]); yield
                e.S("s_add_u32", sB, sOxh, XB[xv]); yield
                e.S("s_add_u32", sD, sOst, STB[xv]); yield
        last = kind == "C" and p == 1
        xv = 2 * p + (1 if kind == "O" else 2)
        tg = None if last else (0, self.touch_gen([(vXs, sOx, XB[xv], 0), (vXs, sOx, XB[xv], 1024), (vXh, sOxh, XB[xv], 0), (vStW, sOst, STB[xv], 0)]))
        fl = [self.delay(20, addr_gen())]
        self.run_pass(5 * nks, mf, 5, xf, fl, late=tg, force_bar=fb, chunk=(opt.get("chunkO", 12) if kind == "O" else opt.get("chunkC", 12)), stop_reads=stop, aload=al,
                      mix=opt.get("mixO", 0) if kind == "O" else 0, tail=900 + self.opt.get("slack", 2400))
        self.stamp(name)
        self.bg_on(900 + self.opt.get("slack", 2400))
        assert sst + 20 <= self.freed
        for T in range(5):
            e.ds_write(TMP[0], acc(T, 1), T * KB)
        e.wait_all_lg()
        e.barrier()
        PT = TMP[4:24]
        for T in range(5):
            e.ds_read(PT[4 * T:4 * T + 4], TMP[1], T * KB)
        own = ACC[0:20]
        for h in range(10):
            x = own[2 * h:2 * h + 2]
            e.V("v_pk_add_f32", x, x, PT[2 * h:2 * h + 2])
            if kind == "C":
                e.V("v_pk_fma_f32", x, x, TMP[2:4], RES[2 * h:2 * h + 2], mods="op_sel_hi:[1,0,1]")
        PK = TMP[24:34]
        for a_ in range(2):
            for j in range(4):
                e.V("v_cvt_pk_bf16_f32", PK[4 * a_ + j], own[8 * a_ + j], own[8 * a_ + 4 + j])
        for h in range(2):
            e.V("v_cvt_pk_bf16_f32", PK[8 + h], own[16 + 2 * h], own[16 + 2 * h + 1])
        self.bg_off()
        if last:
            om = self.opt.get("outmod", "")
            e.bstore(PK[0:4], vOut, OUT, 0, 0, om)
            e.bstore(PK[4:8], vOut, OUT, 0, 64, om)
            e.bstore(PK[8:10], vOut4, OUT, 0, 128, om)
            self.stamp("end")
            return
        xv = 2 * p + (1 if kind == "O" else 2)
        ops = []
        ops += self.gstore([(PK[0:4], vXs, sA, 0), (PK[4:8], vXs, sA, 1024), (PK[8:10], vXh, sB, 0)])
        sm, sq, t0 = TMP[36], TMP[37], TMP[38]
        e.V("v_mov_b32", sm, 0)
        e.V("v_mov_b32", sq, 0)
        for j in range(10):
            e.V("v_dot2c_f32_bf16", sm, PK[j], vOne)
            e.V("v_dot2c_f32_bf16", sq, PK[j], PK[j])
        e.V("v_permlane32_swap_b32", sm, sq)
        e.V("v_add_f32", sm, sm, sq)
        e.V("v_mov_b32", t0, sm)
        e.V("v_permlane16_swap_b32", sm, t0)
        e.V("v_add_f32", sm, sm, t0)
        ops += self.gstore([(sm, vStW, sD, 0)])
        self.stamp(name + "epi")

        def shadow():
            self.unpack(RES, PK)
            if kind == "O":
                self.unpack(ACC[20:40], ACC[40:50])
                for h in range(10):
                    x = RES[2 * h:2 * h + 2]
                    e.V("v_pk_add_f32", x, x, ACC[20 + 2 * h:22 + 2 * h])
        self.handoff(4 * p + (3 if kind == "O" else 5), ops, shadow,
                     [(vStW, sOst, STB[xv], 0), (vXs, sOx, XB[xv], 0), (vXs, sOx, XB[xv], 1024), (vXh, sOxh, XB[xv], 0)])

    def phaseB1(self, p):
        e = self.e
        opt = self.opt
        xv = 2 * p + 1
        acc = lambda T, u: ACC[(T * 2 + u) * 4:(T * 2 + u) * 4 + 4]
        xf = lambda ks, u: a((ks * 2 + u) * 4, 4) if ks < 20 else XE[u]
        al = self.ALoad(self, vAx, (sXr, XB[xv]), 20)
        al.upto(opt.get("adist", 4) - 1)
        self.stats_loads(xv)
        stop = self.seqstart[("B2", p)]
        g0 = self.seq[stop][0] // 8 + RB // 8
        self.stage_plan = list(range(g0, g0 + (opt.get("nstage", 0) if p else 0)))

        def mf(t, W, u):
            ks, T = divmod(t, B1N)
            e.mfma(acc(T, u), W, xf(ks, u), acc(T, u) if ks else 0)
        tl = [(vHs, sOh, HB[p] + u * 54 * KB, a_ * KB) for a_ in range(3) for u in range(2)] + [(vHh, sOhh, HB[p] + u * 54 * KB, 0) for u in range(2)]
        sg = self.delay(opt.get("stdelay", 24), self.stats_gen(False))
        flb = [sg]
        if p == 0 and opt.get("keepb", 4):
            gb = self.capture_gen(self.segs[2][1] // 8 + opt.get("keepb0", 8), opt.get("keepb", 4), 12)
            next(gb)
            flb.append(gb)
        self.run_pass(21 * B1N, mf, B1N, xf, flb, late=(0, self.touch_gen(tl, p == 0)), stop_reads=stop, aload=al, must=sg, mix=opt.get("mixB", 0), tail=700 * (7 - B1N) + 300 + self.opt.get("slack", 2400))
        self.stamp("B1a")
        ops = []

        def epi(pairs, single):
            n = 0
            for u in range(2):
                sb = sD if u == 0 else sE
                e.S("s_add_u32", sb, sOh, HB[p] + u * 54 * KB); yield
                for a_ in pairs:
                    o = TMP[16 + 4 * (n % 4):20 + 4 * (n % 4)]
                    n += 1
                    for j in range(4):
                        x, y = acc(2 * a_, u)[j], acc(2 * a_ + 1, u)[j]
                        e.V("v_mul_f32_e64", x, x, f"|{x}|"); yield
                        e.V("v_mul_f32_e64", y, y, f"|{y}|"); yield
                        e.V("v_cvt_pk_bf16_f32", o[j], x, y); yield
                        e.V("v_pk_max_i16", o[j], o[j], 0); yield
                    ops.extend(self.gstore([(o, vHs, sb, a_ * KB)], p == 0 or opt.get("hsafe", 1) == 1 or (opt.get("hsafe", 1) == 2 and not single))); yield
            if single:
                for u in range(2):
                    o = TMP[32 + 2 * u:34 + 2 * u]
                    for j in range(4):
                        x = acc(6, u)[j]
                        e.V("v_mul_f32_e64", x, x, f"|{x}|"); yield
                    for h in range(2):
                        e.V("v_cvt_pk_bf16_f32", o[h], acc(6, u)[2 * h], acc(6, u)[2 * h + 1]); yield
                        e.V("v_pk_max_i16", o[h], o[h], 0); yield
                e.S("s_add_u32", sA, sOhh, HB[p])
                e.S("s_add_u32", sB, sOhh, HB[p] + 54 * KB)
                ops.extend(self.gstore([(TMP[32:34], vHh, sA, 0), (TMP[34:36], vHh, sB, 0)], p == 0 or opt.get("hsafe", 1) == 1))
                yield

        def mf2(t, W, u):
            ks, T = divmod(t, 7 - B1N)
            e.mfma(acc(B1N + T, u), W, xf(ks, u), acc(B1N + T, u) if ks else 0)
        self.run_pass(21 * (7 - B1N), mf2, 7 - B1N, xf, [epi(list(range(B1N // 2)), False)], stop_reads=stop, force_bar=21 * (7 - B1N) - 2, over=opt.get("b1over", 0), chunk=opt.get("chunkB", 24), tail=300 + self.opt.get("slack", 2400))
        self.stamp("B1b")
        for _ in epi(list(range(B1N // 2, 3)), True):
            pass
        self.stamp("B1epi")
        self.handoff(4 * p + 4, ops, None, tl)

    def gen(self):
        e = self.e
        e.reset_state()
        self.cInvD = s(63)
        self.dmaf = self.dma_filler()
        self.prologue()
        if self.opt.get("stamps"):
            e.memtime(sTm, True)
            e.V("v_writelane_b32", v(53), sTm[0], 62)
        self.startup()
        stop = self.opt.get("stop", 99)
        n = 0
        for p in range(2):
            for f in (lambda: self.phaseA(p), lambda: self.phase64(p, "O"), lambda: self.phaseB1(p), lambda: self.phase64(p, "C")):
                if n < stop:
                    f()
                n += 1
        if self.opt.get("stamps"):
            e.wait_all_vm()
            e.memtime(sTm, True)
            e.V("v_writelane_b32", v(53), sTm[0], 63)
            e.S("s_lshl_b32", sA, s(2), 2)
            e.S("s_add_u32", sA, sA, sWave)
            e.S("s_lshl_b32", sA, sA, 8)
            e.S("s_add_u32", sA, sA, STAMP)
            e.V("v_lshlrev_b32", TMP[1], 2, vLane)
            e.bstore(v(53), TMP[1], WS, sA)
        if self.opt.get("dbgst") is not None:
            skip = e.newlabel("nodbg")
            e.S("s_lshl_b32", sA, s(2), 2)
            e.S("s_add_u32", sA, sA, sWave)
            e.S("s_cmp_lg_u32", sA, 4 * self.opt.get("dbgwg", 77))
            e.branch("s_cbranch_scc1", skip)
            e.sload(s(84, 2), s(0, 2), 72)
            e.V("v_readlane_b32", sB, v(53), 0)
            e.V("v_subrev_u32", TMP[0], sB, v(53))
            e.V("v_subrev_u32", TMP[1], self.opt["dbgst"], vLane)
            e.V("v_cmp_gt_u32", VCC, 64 - self.opt["dbgst"], TMP[1])
            e.V("v_lshlrev_b32", TMP[1], 2, TMP[1])
            e.wait_all_lg()
            e.S("s_and_saveexec_b64", s(86, 2), VCC)
            e.misc(f"global_store_dword {TMP[1]}, {TMP[0]}, s[84:85]")
            e.S("s_mov_b64", EXEC, -1)
            e.label(skip)
        if self.opt.get("spin"):
            e.wait_all_vm()
            e.V("v_readfirstlane_b32", s(86), v(53))
            e.label("spin_loop")
            e.misc("s_memrealtime s[88:89]")
            e.misc("s_waitcnt lgkmcnt(0)")
            e.misc("s_sub_u32 s88, s88, s86")
            e.misc(f"s_cmp_lt_u32 s88, {self.opt['spin']}")
            e.misc("s_cbranch_scc1 spin_loop")
        e.S("s_add_u32", sA, s(2), sWave)
        e.S("s_cmp_lg_u32", sA, 0)
        e.branch("s_cbranch_scc1", "main_end")
        e.S("s_add_u32", sA, sBase, 16)
        e.V("v_mov_b32", TMP[0], sA)
        e.V("v_mov_b32", TMP[1], EPOCH)
        e.S("s_mov_b64", EXEC, 1)
        e.bstore(TMP[0], TMP[1], WS, 0, 0, "sc1")
        e.label("main_end")
        e.misc("s_endpgm")
```

```python
from asmgen import *
from layout import *
from gen_prep import mk_srd, allreduce_g
import math

BIG = 0x40000000
LOG2E = 1.4426950408889634
LN2 = 0.6931471805599453

IMG = 0
ZT = 6144
RST = 6400
DUMMY = 6912
RING = 8192
RB = 152
LDS_BYTES = RING + RB * KB
FI = 8

WS, OUT, XIN, SB2 = s(8, 4), s(12, 4), s(16, 4), s(20, 4)
sWave, sR, sC, sCG, sRH, sKH, sW2048 = [s(24 + i) for i in range(7)]
sSeg = {"A": s(31), "O": s(32), "B": s(33), "C": s(34)}
sXr, sHr, sSTr, sFRL, sFRG, sFC = [s(35 + i) for i in range(6)]
sA, sB, sD, sE, sDm, sLd = [s(41 + i) for i in range(6)]
sMaskV = s(48, 2)
sCnt = s(50)
sTT = s(51)
sTm = s(52, 2)
sOx, sOxh, sOst, sOo, sOoh, sOh, sOhh, sKv = [s(54 + i) for i in range(8)]
sLocal, sX1 = s(47), s(62)
sStg = s(3)
sSel = [s(84), s(85)]
sOdd = s(86, 2)
vT16L = v(37)
vStg = v(55)
sNan = s(90, 2)
sBase = s(92)
sOk = s(94, 2)
SR1, SR2 = s(84, 4), s(96, 4)
PP = s(64, 16)
pOut, pWs = s(80, 2), s(82, 2)
vDum = v(49)

vLane, vN, vG, vL16 = v(1), v(2), v(3), v(4)
vW = [v(5), v(6), v(7)]
vK = [v(8), v(9), v(10)]
vDma = v(11)
vAx = [v(12), v(13)]
vAo = [v(14), v(15)]
vAh = [v(16), v(17)]
vSt, vStW, vKvSrc, vKvDst, vT16, vZ01, vZ2, vRT, vRW, vRF, vOut, vOut4, vOne = [v(18 + i) for i in range(13)]
vOh, vXs, vXh, vHs, vHh, vFl, vPollR, vPollC, vXch = [v(31 + i) for i in range(9)]
XE = [v(40, 4), v(44, 4)]
vC2 = v(48, 2)
vC2b = v(50, 2)
vLn2 = v(52, 2)
vEps = v(54, 2)
RT = v(56, 8)
ACC = v(64, 64)
FIFO = v(128, 4 * FI)
RES = v(160, 20)
B2F = v(180, 20)
TMP = v(200, 56)


def keepreg(k, h):
    if k < 12:
        return a(160 + 8 * k + 4 * h, 4)
    t = 2 * (k - 12) + h
    return B2F[4 * t:4 * t + 4] if t < 5 else TMP[40 + 4 * (t - 5):44 + 4 * (t - 5)]


class Main:
    def __init__(self, e, opt):
        self.e = e
        self.opt = opt
        self.kname = opt["kname"]
        self.nstamp = 0
        self.segs = []
        pos = 0
        for p in range(2):
            for k, n in (("A", NA), ("O", NO), ("B", NB), ("C", NC)):
                self.segs.append((k, pos, n))
                pos += n
        self.total = pos
        self.ngroups = pos // 8
        self.issued = 0
        self.dmaop = {}
        self.freed = 0
        self.hold = None
        self.visible = 0
        self.seq = []
        self.seqstart = {}
        for p in range(2):
            b = self.segs[4 * p + 0][1]
            self.seqstart[("A1", p)] = len(self.seq)
            self.seq += [(b + i, "W") for i in range(105)]
            self.seqstart[("A2", p)] = len(self.seq)
            self.seq += [(b + 105 + i, "W") for i in range(63)]
            b = self.segs[4 * p + 1][1]
            self.seqstart[("A4", p)] = len(self.seq)
            self.seq += [(b + 2 * i, "K") for i in range(50)]
            b = self.segs[4 * p + 2][1]
            self.seqstart[("B1a", p)] = len(self.seq)
            self.seq += [(b + i, "W") for i in range(21 * B1N)]
            self.seqstart[("B1b", p)] = len(self.seq)
            self.seq += [(b + 21 * B1N + i, "W") for i in range(147 - 21 * B1N)]
            b = self.segs[4 * p + 3][1]
            self.seqstart[("B2", p)] = len(self.seq)
            self.seq += [(b + 2 * i, "K") for i in range(135)]
        self.rd = 0
        self.cons = 0
        self.lastbar = 0
        self.gate = NA // 8
        self.stage_plan = []
        self.staged = {}
        self.stage_mid = None
        self.cap_hold = 1 << 20
        self.deferred = []
        self.spares = []
        self.last_scratch = (0, 0)
        self.restg = None
        self.capg = None
        self.own_end_phase = 0
        self.cap_ops = []
        self.cap_next = 1 << 20
        self.warn = []
        self.model = []
        self.own_end = 0
        self.deadline = lambda: 1 << 30

    def stamp(self, name):
        self.model.append((name, self.e.T))
        if not self.opt.get("stamps"):
            return
        e = self.e
        e.wait_all_lg()
        e.memtime(sTm)
        e.V("v_writelane_b32", v(53), sTm[0], self.nstamp)
        self.opt.setdefault("stampnames", []).append(name)
        self.nstamp += 1
        assert self.nstamp <= 62

    def endpos(self, i):
        p, k = self.seq[i]
        return p + (2 if k == "K" else 1)

    def ldsaddr(self, pos):
        return RING + (pos % RB) * KB

    def can_issue(self):
        if self.issued >= min(self.ngroups, self.gate):
            return False
        lim = self.freed if self.hold is None else min(self.freed, self.hold)
        lim = min(lim, self.cap_hold)
        return 8 * (self.issued + 1) <= lim + RB

    def dma_group(self):
        e = self.e
        g = self.issued
        self.issued += 1
        pos = 8 * g
        if g in self.stage_plan:
            self.stage_plan = []
        if g in self.staged and self.opt.get("defer", 1) and 8 * g >= self.own_end_phase:
            self.deferred.append(g)
            self.dmaop[g] = None
            yield
            return
        if g in self.staged:
            self.finish_stage()
            k = self.staged[g]
            ad = self.ldsaddr(pos)
            e.V("v_add_u32", vStg, ad, vDma)
            yield
            e.ds_write(vStg, keepreg(k, 0), 0)
            yield
            self.dmaop[g] = e.ds_write(vStg, keepreg(k, 1), 1024)
            yield
            return
        for k, b, n in self.segs:
            if b <= pos < b + n:
                break
        e.S("s_add_u32", M0, sW2048, self.ldsaddr(pos))
        yield
        e.S("s_add_u32", sDm, sSeg[k], (pos - b) * KB)
        yield
        md = "nt" if k in self.opt.get("ntseg", "") else ""
        nvalid = min(8, {"A": 168, "O": 100, "B": 147, "C": 270}[k] - (pos - b)) if self.opt.get("skippad", 1) else 8
        for j in range(2):
            nw = (nvalid - j + 1) // 2
            if nw < 4:
                skip = e.newlabel("nopad")
                e.S("s_cmp_ge_u32", sWave, nw)
                e.branch("s_cbranch_scc1", skip)
                e.cond_begin()
            op = e.dma(vDma, WS, sDm, 1024 * j, md, cls=self.dcls(k))
            if nw < 4:
                e.cond_end()
                e.label(skip)
            if j:
                self.dmaop[g] = op
            yield

    def capture_gen(self, first, n, k0=0):
        e = self.e
        self.cap_hold = self.cap_next = 8 * first
        g1 = self.segs[4][1] // 8
        for k in range(k0, k0 + n):
            g = first + k - k0
            while self.visible < 8 * (g + 1):
                yield "idle"
            e.V("v_add_u32", vStg, self.ldsaddr(8 * g), vDma); yield
            e.ds_read(keepreg(k, 0), vStg, 0); yield
            self.cap_ops.append(e.ds_read(keepreg(k, 1), vStg, 1024))
            self.staged[g1 + g] = k
            self.cap_next = 8 * (g + 1) if k < k0 + n - 1 else 1 << 20
            yield

    def stage_group(self):
        e = self.e
        g = self.stage_plan.pop(0)
        k = len(self.staged) % 12
        self.staged[g] = k
        for sk, b, n in self.segs:
            if b <= 8 * g < b + n:
                break
        e.S("s_add_u32", sStg, sSeg[sk], (8 * g - b) * KB)
        yield
        e.bload(keepreg(k, 0), vDma, WS, sStg, 0, cls=self.dcls(sk))
        yield
        e.bload(keepreg(k, 1), vDma, WS, sStg, 1024, cls=self.dcls(sk))
        self.stage_mid = None
        yield

    def restore_gen(self, n):
        e = self.e
        while n > 0 and self.deferred:
            n -= 1
            g = self.deferred[0]
            k = self.staged[g]
            e.V("v_add_u32", vStg, self.ldsaddr(8 * g), vDma); yield
            old = 8 * g - RB
            clean = old + 8 <= self.last_scratch[0] or old >= self.last_scratch[1]
            if self.spares and self.opt.get("swap", 1) and clean and self.segof(8 * g) == "A":
                sp = self.spares.pop(0)
                e.ds_read(keepreg(sp, 0), vStg, 0); yield
                e.ds_read(keepreg(sp, 1), vStg, 1024); yield
                g2 = g - RB // 8 + self.segs[4][1] // 8
                assert self.segof(8 * g2) == "C"
                self.staged[g2] = sp
            e.ds_write(vStg, keepreg(k, 0), 0); yield
            self.dmaop[g] = e.ds_write(vStg, keepreg(k, 1), 1024)
            self.spares.append(k)
            self.deferred.pop(0)
            yield

    def restore(self, n):
        for _ in self.restore_gen(n):
            pass

    def finish_stage(self):
        while self.stage_mid:
            next(self.stage_mid)

    def stage_step(self):
        e = self.e
        if e.outstanding() >= self.opt.get("qmax", 13):
            return False
        if not self.stage_mid:
            if not self.stage_plan or self.can_issue() or self.mid_group():
                return False
            c = self.dcls("C")
            if e.predict(c) + c[2] > self.deadline():
                return False
            self.stage_mid = self.stage_group()
        next(self.stage_mid)
        return True

    def dcls(self, k):
        return (750, 80, self.opt.get("svcAB", 150)) if k in "AB" else (750, self.opt.get("svcOC", 92), 75)

    def dma_ok(self):
        e = self.e
        if self.mid_group():
            g = self.issued - 1
        elif self.can_issue():
            g = self.issued
        else:
            return False
        if g in self.staged:
            return True
        if e.outstanding() >= self.opt.get("qmax", 13):
            return False
        if self.mid_group() or 8 * g < self.own_end:
            return True
        c = self.dcls(self.segof(8 * g))
        return e.predict(c) + c[2] <= self.deadline()

    def dma_filler(self):
        while True:
            if self.can_issue():
                for _ in self.dma_group():
                    yield True
            else:
                yield False

    def flush_dma_partial(self):
        while self.issued > 0 and (self.issued - 1) not in self.dmaop:
            next(self.dmaf)

    def dma_all(self):
        self.flush_dma_partial()
        while self.can_issue():
            for _ in self.dma_group():
                pass

    def ring_barrier(self, need_idx, extra_ops=(), free_all=False):
        e = self.e
        need_idx = min(need_idx, len(self.seq))
        upto = self.endpos(need_idx - 1) if need_idx > 0 else 0
        g = (upto + 7) // 8
        self.flush_dma_partial()
        while self.issued < g:
            assert self.can_issue(), ("ring deadlock", self.issued, g, self.freed, self.hold)
            self.warn.append(f"forced dma group {self.issued} at seq {self.rd}")
            for _ in self.dma_group():
                pass
        ops = list(extra_ops)
        while self.deferred and self.deferred[0] < g:
            self.warn.append(f"forced restore {self.deferred[0]}")
            next(self.restg)
        for gg in range(self.visible // 8, g):
            assert gg not in self.deferred, gg
            ops.append(self.dmaop[gg])
        e.wait_ops(ops + self.cap_ops)
        self.cap_ops = []
        e.barrier()
        self.cap_hold = self.cap_next
        self.visible = max(self.visible, 8 * g)
        self.freed = self.seq[self.cons][0] if self.cons < len(self.seq) else self.total
        self.lastbar = self.rd

    def issue_read(self):
        e = self.e
        i = self.rd
        if i >= len(self.seq):
            return
        pos, k = self.seq[i]
        assert self.endpos(i) <= self.visible, ("read of invisible block", i, pos, self.visible)
        ad = self.ldsaddr(pos)
        base = (vW if k == "W" else vK)[ad >> 16]
        slot = i % FI
        e.ds_read(FIFO[4 * slot:4 * slot + 4], base, ad & 0xffff)
        self.rd += 1

    def prime(self):
        while self.rd < self.cons + FI and self.rd < len(self.seq) and self.endpos(self.rd) <= self.visible:
            self.issue_read()

    def run_pass(self, n, mf, ntile, xf, fillers=(), chunk=24, stop_reads=None, hooks=None,
                 aload=None, vrate=0.5, amix=(1, 0), over=0, force_bar=None, late=None, see_all=False, tail=2000, mix=0, must=None):
        e = self.e
        fillers = list(fillers)
        lim = stop_reads if stop_reads is not None else len(self.seq)
        st = {"next": 0, "k": 0, "t": 0}
        self.own_end = self.own_end_phase = self.endpos(lim - 1)
        self.deadline = lambda: e.T + (n - st["t"]) * 33 + tail

        i_first = self.cons

        def dma_need():
            g = self.issued - 1 if self.mid_group() else self.issued
            for i in range(self.cons, lim):
                if self.endpos(i) > 8 * g:
                    return i - i_first - FI - chunk
            return 1 << 20

        def one_vmem():
            na, nd = amix
            n0 = len(e.vm)
            if st.get("late"):
                if e.T < st["next"]:
                    return False
                try:
                    next(st["late"])
                except StopIteration:
                    st["late"] = None
                    return False
            else:
                na_ = (aload.n // 2) * ntile if (aload is not None and not aload.done) else 1 << 21
                nd_ = dma_need() if (self.mid_group() or self.can_issue()) else 1 << 22
                run = self.opt.get("run", 0)
                if run and na_ < 1 << 21 and nd_ < 1 << 20:
                    if st.get("cur") == "a" and na_ - run <= nd_:
                        nd_ = max(nd_, na_)
                    elif st.get("cur") == "d" and nd_ - run < na_:
                        na_ = max(na_, nd_ + 1)
                    st["cur"] = "a" if na_ <= nd_ else "d"
                urgent = min(na_, nd_) - st["t"] <= self.opt.get("horizon", 30) + run
                if e.T < st["next"] and not urgent:
                    return False
                if mix and na_ < 1 << 21 and st["k"] % mix == mix - 1 and na_ - st["t"] > self.opt.get("mixh", 10) and self.dma_ok():
                    next(self.dmaf)
                elif na_ <= nd_ and na_ < 1 << 21:
                    if e.outstanding() >= self.opt.get("qmax", 13) and not urgent:
                        return False
                    if aload.n // 2 >= st["t"] // ntile + aload.win - 1:
                        return False
                    aload.step()
                elif nd_ < 1 << 22 and (urgent or self.dma_ok()):
                    next(self.dmaf)
                elif not self.stage_step():
                    return False
            if len(e.vm) > n0:
                st["k"] += 1
                st["next"] = e.T + self.opt.get("vgap", 24)
            return True

        def fill(budget):
            while budget > 0:
                n0 = e.ninst
                did = one_vmem()
                if not did:
                    for f in list(fillers):
                        try:
                            if next(f) == "idle":
                                continue
                            did = True
                            break
                        except StopIteration:
                            fillers.remove(f)
                if not did:
                    return
                budget -= e.ninst - n0

        def waits_for(t):
            regs = []
            for tt in (t, t + 1):
                if tt < n:
                    ks = tt // ntile
                    if aload is not None:
                        aload.upto(ks)
                    idx = self.cons + (tt - t)
                    if idx < self.rd:
                        regs += FIFO[4 * (idx % FI):4 * (idx % FI) + 4].regs()
                    regs += xf(ks, 0).regs() + xf(ks, 1).regs()
            return e._pending(regs)

        e.wait_ops(waits_for(0))
        if aload is not None:
            self.stamp("1st")
            self.warn.append(f"fill {8 * self.issued - self.seq[self.cons][0]}")
        for t in range(n):
            if aload is not None and self.opt.get("midstamp") and t == n // 2:
                self.stamp("half")
            i = self.cons
            assert self.rd > i, ("fifo underrun", i)
            W = FIFO[4 * (i % FI):4 * (i % FI) + 4]
            st["t"] = t
            if must is not None and t == n - ntile - 2:
                for _ in must:
                    self.warn.append("must drained late")
            if t == int(n * self.opt.get("cfrac", 0.8)) and n > 30:
                fillers.insert(0, self.code_touch_gen())
            if hooks and hooks.get("add"):
                g_ = hooks["add"](t)
                if g_:
                    fillers.append(g_)
            ov = over if fillers else 0
            mf(t, W, 0)
            bar = self.rd < lim and (self.endpos(self.rd) > self.visible or self.rd - self.lastbar >= chunk)
            bar = bar or t == force_bar
            if late and t >= late[0] and not st.get("lateon") and (aload is None or aload.done) and 8 * self.issued >= min(self.own_end, self.endpos(min(i_first + n + FI, lim) - 1)) and not self.mid_group():
                st["late"] = late[1]
                st["lateon"] = True
                self.warn.append(f"late at {t}")
            if bar:
                ex, after = [], None
                if hooks and hooks.get("bar"):
                    ex, after = hooks["bar"](t)
                self.ring_barrier(lim if see_all else min(self.rd + chunk, lim), ex)
                if after:
                    after()
            else:
                fill(2 + ov)
            mf(t, W, 1)
            self.cons += 1
            used = 0
            if self.rd < lim:
                self.issue_read()
                used = 1
            pend = waits_for(t + 1) if (t % 2 == 1 and t + 1 < n) else []
            fill(2 + ov - used - (1 if pend else 0))
            if pend:
                e.wait_ops(waits_for(t + 1))
        if late and not st.get("lateon"):
            st["late"] = late[1]
        for f in fillers + ([st["late"]] if st.get("late") else []):
            if f is not self.capg:
                for _ in f:
                    pass

    def segof(self, pos):
        for k, b, n in self.segs:
            if b <= pos < b + n:
                return k
        return "O"

    def mid_group(self):
        return self.issued > 0 and (self.issued - 1) not in self.dmaop

    def dma_burst(self, maxgroups=99):
        e = self.e
        self.flush_dma_partial()
        gs = []
        while self.can_issue() and len(gs) < maxgroups:
            gs.append(self.issued)
            self.issued += 1
        for w in (1, 2, 3):
            mine = gs[w - 1::3]
            if not mine:
                continue
            skip = e.newlabel("noburst")
            e.S("s_cmp_lg_u32", sWave, w)
            e.branch("s_cbranch_scc1", skip)
            e.cond_begin()
            for g in mine:
                pos = 8 * g
                for k, b, n in self.segs:
                    if b <= pos < b + n:
                        break
                for h in range(2):
                    e.S("s_mov_b32", M0, self.ldsaddr(pos) + h * 4096)
                    e.S("s_add_u32", sDm, sSeg[k], (pos - b) * KB + h * 4096)
                    for q in range(4):
                        self.dmaop[g] = e.dma(vL16, WS, sDm, q * 1024)
            e.cond_end()
            e.label(skip)

    def prologue(self):
        e = self.e
        e.S("s_cmp_ge_u32", s(2), 256)
        e.branch("s_cbranch_scc1", "main_end")
        if self.opt.get("stamps"):
            e.V("v_mov_b32", v(53), 0)
        self.stamp("t0")
        if self.opt.get("spin"):
            e.memtime(sTm, True)
            e.V("v_mov_b32", v(53), sTm[0])
        e.sload(PP, s(0, 2), 0)
        e.sload(pOut, s(0, 2), 64)
        e.sload(pWs, s(0, 2), 80)
        T0, T1, T2, T3 = TMP[48], TMP[49], TMP[50], TMP[51]
        e.S("s_getpc_b64", s(88, 2))
        e.label("main_pc")
        e.V("v_lshlrev_b32", T2, 5, v(0))
        e.S("s_sub_u32", s(88), s(88), "main_pc-" + self.kname)
        e.S("s_subb_u32", s(89), s(89), 0)
        e.misc(f"global_load_dword {vDum}, {T2}, s[88:89]")
        e._vm([], (2000, 30, 0))
        e.V("v_lshrrev_b32", T0, 6, v(0))
        e.V("v_and_b32", vLane, 63, v(0))
        e.V("v_readfirstlane_b32", sWave, T0)
        e.S("s_lshr_b32", sB, s(2), 3)
        e.S("s_mul_i32", sB, sB, 1792)
        e.S("s_add_u32", sB, sB, 8192)
        e.V("v_lshl_add_u32", T2, v(0), 3, sB)
        e.V("v_min_u32", T2, self.opt.get("code_bytes", 32768) - 4, T2)
        e.misc(f"global_load_dword {vDum}, {T2}, s[88:89]")
        e._vm([], (2000, 30, 0))
        e.V("v_lshlrev_b32", vL16, 4, vLane)
        e.V("v_and_b32", vN, 15, vLane)
        e.V("v_lshrrev_b32", vG, 4, vLane)
        self.vBig = TMP[52]
        e.V("v_mov_b32", self.vBig, BIG)
        e.S("s_and_b32", sA, s(2), 7)
        e.S("s_lshl_b32", sA, sA, 1)
        e.S("s_lshr_b32", sB, s(2), 7)
        e.S("s_add_u32", sR, sA, sB)
        e.S("s_bfe_u32", sC, s(2), (4 << 16) | 3)

    def gather(self, raw, srd, sstride, vaddr, srow, n=8):
        e = self.e
        e.S("s_mul_i32", sLd, srow, sstride)
        for i in range(n):
            e.bload(raw[i], vaddr, srd, sLd, 0, w="ushort", cls=(2500, 32, 0))
            if i < n - 1:
                e.S("s_add_u32", sLd, sLd, sstride)

    def pack(self, raw, n=4):
        for i in range(n):
            self.e.V("v_lshl_or_b32", raw[i], raw[2 * i + 1], 16, raw[2 * i])

    def colsum(self, regs, ex, vs, vt):
        e = self.e
        e.V("v_mov_b32", vs, 0)
        for r_ in regs:
            e.V("v_dot2c_f32_bf16", vs, r_, vOne)
        allreduce_g(e, vs, vt)
        e.V("v_sub_f32", vs, 0, vs)
        e.V("v_cvt_pk_bf16_f32", vt, vs, vs)
        e.V("v_lshlrev_b32", vt, 16, vt)
        e.V("v_sub_f32", vt, vs, vt)
        e.V("v_cvt_pk_bf16_f32", ex[0], vs, vt)
        e.V("v_and_b32", ex[1], "0xffff", ex[0])

    def startup(self):
        e = self.e
        vBig = self.vBig
        RAW1, EX = ACC[0:20], ACC[20:24]
        RAW2 = TMP[8:40]
        vCol, vReg, vLeft, vT0, vT1, vSum, vLd = [FIFO[i] for i in range(7)]
        vA0, vA1, vA2, vSt2, vBias = RES[8], RES[9], B2F[8], B2F[9], ACC[38]
        sT, sP = s(7), s(93)
        sStr = s(56)
        XJ = [RES[0:4], RES[4:8], B2F[0:4]]
        XD, XA, XB_ = B2F[4], ACC[32], ACC[33]
        XM = [s(90), s(91), s(94)]
        T0, T1, T2, T3 = TMP[48], TMP[49], TMP[50], TMP[51]
        e.V("v_lshrrev_b32", T1, 3, vLane)
        e.V("v_and_b32", T3, 7, vLane)
        e.V("v_mul_u32_u24", T0, 1280, T3)
        e.V("v_lshl_add_u32", XA, T1, 4, T0)
        e.V("v_lshrrev_b32", T2, 4, vLane)
        e.V("v_lshl_add_u32", XB_, T2, 7, XA)
        e.V("v_lshlrev_b32", XD, 8, T1)
        e.V("v_lshl_add_u32", XD, T3, 4, XD)
        e.S("s_lshl_b32", sE, sR, 4)
        e.S("s_add_u32", sE, sE, sC)
        e.S("s_mul_i32", sE, sE, 8 * 1280)
        e.S("s_mul_i32", sD, sWave, 3)
        mk_srd(e, XIN, PP[0:2], XSZ)
        for k in range(3):
            e.S("s_add_u32", XM[k], sD, k)
            e.S("s_cmp_ge_u32", XM[k], 8)
            e.S("s_cselect_b64", VCC, -1, 0)
            e.S("s_cselect_b32", sA, 40, 10)
            e.S("s_cselect_b32", sB, 8 - 8 * 40, 0)
            e.V("v_cndmask_b32", T0 if k != 1 else T1, XA, XB_, VCC)
            e.S("s_mul_i32", sA, sA, XM[k])
            e.S("s_add_u32", sA, sA, sB)
            e.S("s_lshl_b32", sA, sA, 4)
            e.S("s_add_u32", sA, sA, sE)
            e.S("s_cmp_ge_u32", XM[k], 10)
            e.S("s_cselect_b32", sA, BIG, sA)
            e.S("s_cselect_b32", XM[k], BIG // 2048, XM[k])
            e.bload(XJ[k], T0 if k != 1 else T1, XIN, sA, 0, cls=(2000, 100, 0))
        self.stamp("issx")
        e.S("s_lshr_b32", sP, sR, 1)
        e.S("s_and_b32", sT, sR, 1)
        e.S("s_lshl_b32", sT, sT, 2)
        e.S("s_add_u32", sT, sT, sWave)
        e.S("s_mov_b32", s(4), (656 << 20) | (660 << 10) | 640)
        e.S("s_mov_b32", s(5), 0)
        e.S("s_mul_i32", sA, sT, 10)
        e.S("s_lshr_b32", sA, s(4), sA)
        e.S("s_and_b32", sA, sA, 1023)
        for t, val in ((3, 1280), (4, 1300), (5, 0), (6, 1), (7, 32)):
            e.S("s_cmp_eq_u32", sT, t)
            e.S("s_cselect_b32", sA, val, sA)
        e.S("s_mul_i32", sB, sC, 40)
        e.S("s_add_u32", sA, sA, sB)
        e.V("v_add_u32", vCol, sA, vN)
        e.V("v_add_u32", vT0, vCol, vN)
        e.S("s_sub_u32", sB, sT, 5)
        e.S("s_cmp_lt_u32", sB, 2)
        e.S("s_cselect_b64", VCC, -1, 0)
        e.V("v_cndmask_b32", vCol, vCol, vT0, VCC)
        e.V("v_lshrrev_b32", vT0, 3, vN)
        e.V("v_mul_u32_u24", vT0, 632 - 32, vT0)
        e.V("v_lshrrev_b32", vT1, 2, vN)
        e.V("v_lshl_add_u32", vT0, vT1, 4, vT0)
        e.V("v_add3_u32", vT0, vT0, vN, sA)
        e.S("s_cmp_eq_u32", sT, 2)
        e.S("s_cselect_b64", VCC, -1, 0)
        e.V("v_cndmask_b32", vCol, vCol, vT0, VCC)
        e.V("v_lshlrev_b32", vCol, 1, vCol)
        e.S("s_cmp_eq_u32", sT, 7)
        e.S("s_cselect_b32", sB, 8, 16)
        e.V("v_cmp_le_u32", VCC, sB, vN)
        e.S("s_mov_b32", sStr, 3840)
        e.V("v_cndmask_b32", vCol, vCol, vBig, VCC)
        e.S("s_mov_b32", sD, 8 * 3840)
        e.V("v_mad_u32_u24", vReg, vG, sD, vCol)
        e.V("v_and_b32", vT0, 1, vG)
        e.V("v_lshrrev_b32", vT1, 1, vG)
        e.V("v_lshl_add_u32", vLd, vT0, 1, vT1)
        e.S("s_mov_b32", sD, 4 * 3840)
        e.V("v_mad_u32_u24", vLeft, vLd, sD, vCol)
        mk_srd(e, SR1, PP[2:4], D * 3 * D * 2)
        e.S("s_mul_i32", sB, sP, 80)
        self.gather(RAW1[0:8], SR1, sStr, vReg, sB)
        e.S("s_add_u32", sA, sB, 32)
        self.gather(RAW1[8:16], SR1, sStr, vReg, sA)
        e.S("s_add_u32", sA, sB, 64)
        self.gather(RAW1[16:20], SR1, sStr, vLeft, sA, 4)
        self.stamp("iss1")
        def r2touch():
            e.S("s_lshl_b32", sA, s(2), 2)
            e.S("s_add_u32", sA, sA, sWave)
            e.V("v_min_u32", T0, 17, vLane)
            e.V("v_lshlrev_b32", T0, 7, T0)
            e.S("s_mul_i32", sB, sA, 2160)
            mk_srd(e, SR2, PP[8:10], F * D * 2)
            e.touch(vDum, T0, SR2, sB, 0, cls=(2000, 30, 0))
            mk_srd(e, SR2, PP[12:14], F * D * 2)
            e.touch(vDum, T0, SR2, sB, 0, cls=(2000, 30, 0))
            e.V("v_min_u32", T0, 7 * 128, T0)
            mk_srd(e, SR2, PP[4:6], D * D * 2)
            e.S("s_mul_i32", sB, sA, 800)
            e.touch(vDum, T0, SR2, sB, 0, cls=(2000, 30, 0))
        if self.opt.get("r2touch", 3) == 1:
            r2touch()
        if self.opt.get("wsoff"):
            e.S("s_add_u32", pWs[0], pWs[0], self.opt["wsoff"] << 20)
            e.S("s_addc_u32", pWs[1], pWs[1], 0)
        mk_srd(e, WS, pWs, WS_USED)
        e.sload(sBase, pWs, EPOCH)
        e.S("s_mov_b32", sA, "0x3f803f80")
        e.V("v_mov_b32", vOne, sA)
        e.S("s_and_b32", sCG, sC, 7)
        e.S("s_lshr_b32", sRH, sC, 3)
        if self.opt.get("r2touch", 0) == 3:
            r2touch()
        mk_srd(e, SB2, PP[14:16], D * 2)
        if not self.opt.get("l2first", 1):
            self.prologue2()
            self.stamp("pro2")
        sU, sP, sStr, sJ = s(88), s(89), s(100), s(101)
        rows = [s(3 + i) for i in range(4)]
        D2 = [s(64), s(65), s(66), s(67)]
        sDB, sDX = s(70), s(71)
        vSel0, vSel1 = vA1, vA2
        mk_srd(e, SR1, PP[10:12], F * 2)
        e.S("s_lshl_b32", sJ, sRH, 4)
        e.S("s_add_u32", sJ, sJ, sR)
        if self.opt.get("bal", 1):
            e.S("s_cmp_eq_u32", sJ, 15)
            e.S("s_cselect_b32", sA, 39, 127)
            e.S("s_mul_i32", sJ, sJ, 3)
            e.S("s_add_u32", sJ, sJ, sWave)
            e.S("s_add_u32", sJ, sJ, 39)
            e.S("s_cmp_ge_u32", sJ, 97)
            e.S("s_cselect_b32", sB, 97, 0)
            e.S("s_sub_u32", sJ, sJ, sB)
            e.S("s_cmp_eq_u32", sWave, 0)
            e.S("s_cselect_b32", sJ, sA, sJ)
        else:
            e.S("s_lshl_b32", sJ, sJ, 2)
            e.S("s_add_u32", sJ, sJ, sWave)
        e.V("v_lshrrev_b32", vT0, 1, vG)
        e.V("v_and_b32", vT1, 1, vG)
        e.V("v_mov_b32", vSt2, vL16)
        e.S("s_mov_b32", sDX, BIG)
        lo, lc, lj = e.newlabel("job_wo"), e.newlabel("job_w2"), e.newlabel("job_go")

        def unit(sbase, nu, stride, ca, cb, nreg, dB):
            e.S("s_lshl_b32", sA, sU, 5)
            e.S("s_add_u32", sA, sA, sbase)
            e.S("s_lshl_b32", sA, sA, 1)
            e.S("s_mov_b32", sDB, dB)
            e.S("s_cmp_lt_u32", sU, nu)
            e.S("s_cselect_b64", VCC, -1, 0)
            e.S("s_cselect_b32", sDB, sDB, BIG)
            e.V("v_lshlrev_b32", vCol, 2, vN)
            e.V("v_and_b32", vReg, 14, vN)
            e.V("v_lshlrev_b32", vReg, 1, vReg)
            e.V("v_cndmask_b32", vCol, vReg, vCol, VCC)
            e.V("v_add_u32", vCol, sA, vCol)
            e.V("v_and_b32", vReg, 1, vN)
            e.V("v_cndmask_b32", vReg, vReg, 0, VCC)
            e.S("s_mov_b32", sA, "0x02020202")
            e.V("v_mul_lo_u32", vReg, vReg, sA)
            e.V("v_add_u32", vSel0, "0x05040100", vReg)
            e.S("s_mov_b32", sStr, stride)
            e.S("s_mov_b32", sD, 8 * stride)
            e.V("v_mul_u32_u24", vReg, sD, vG)
            e.S("s_mov_b32", sD, ca * stride)
            e.V("v_mul_u32_u24", vLeft, sD, vT0)
            e.S("s_mov_b32", sD, cb * stride)
            e.V("v_mad_u32_u24", vLeft, vT1, sD, vLeft)
            e.S("s_cmp_lt_u32", sP, nreg)
            e.S("s_cselect_b64", VCC, -1, 0)
            e.V("v_cndmask_b32", vA0, vLeft, vReg, VCC)

        def split_dests(half):
            for b in range(4):
                e.S("s_lshl_b32", sA, sP, 2)
                e.S("s_add_u32", sA, sA, b)
                e.S("s_mul_i32", sD, sA, 10)
                e.S("s_cmp_ge_u32", sA, half)
                e.S("s_cselect_b32", sB, 10 * half - 1, 0)
                e.S("s_sub_u32", sD, sD, sB)
                e.S("s_add_u32", sD, sD, sE)
                e.S("s_lshl_b32", D2[b], sD, 10)
                if half == 27 and b >= 2:
                    e.S("s_cmp_ge_u32", sA, 54)
                    e.S("s_cselect_b32", D2[b], BIG, D2[b])

        def div3(dq, dr, src):
            e.S("s_mul_i32", dq, src, 43691)
            e.S("s_lshr_b32", dq, dq, 17)
            e.S("s_mul_i32", sA, dq, 3)
            e.S("s_sub_u32", dr, src, sA)

        e.S("s_cmp_ge_u32", sJ, 55)
        e.branch("s_cbranch_scc1", lc)
        e.S("s_cmp_ge_u32", sJ, 40)
        e.branch("s_cbranch_scc1", lo)
        e.cond_begin()
        mk_srd(e, SR2, PP[8:10], D * F * 2)
        e.S("s_and_b32", sU, sJ, 3)
        e.S("s_lshr_b32", sP, sJ, 2)
        e.S("s_cmp_ge_u32", sP, 5)
        e.S("s_cselect_b32", sA, 5, 0)
        e.S("s_cselect_b32", sJ, 8, 0)
        e.S("s_sub_u32", sP, sP, sA)
        e.S("s_add_u32", sJ, sJ, sCG)
        e.S("s_mul_i32", sE, sJ, 112)
        e.S("s_max_u32", sB, sJ, 12)
        e.S("s_sub_u32", sB, sB, 12)
        e.S("s_lshl_b32", sB, sB, 4)
        e.S("s_sub_u32", sE, sE, sB)
        unit(sE, 3, 3456, 80, 8, 4, 1024)
        e.S("s_lshl_b32", sA, sU, 4)
        e.S("s_add_u32", sA, sA, sJ)
        e.S("s_cmp_ge_u32", sA, 3 * 16 + 12)
        e.S("s_cselect_b64", VCC, -1, 0)
        e.V("v_cndmask_b32", vCol, vCol, vBig, VCC)
        for b in range(4):
            e.S("s_mul_i32", sA, sP, 160)
            e.S("s_add_u32", sA, sA, 80 * (b >> 1) + 32 * (b & 1))
            e.S("s_cmp_eq_u32", sP, 4)
            e.S("s_cselect_b32", rows[b], 160 * b + 64, sA)
        e.S("s_cmp_lt_u32", sU, B1N // 2)
        e.S("s_cselect_b32", s(79), B1N, 7 - B1N)
        e.S("s_cselect_b32", sE, 0, 20 * B1N)
        e.S("s_lshl_b32", sA, sU, 1)
        e.S("s_add_u32", sE, sE, sA)
        e.S("s_mul_i32", sB, sJ, NB)
        e.S("s_add_u32", sE, sE, sB)
        e.S("s_add_u32", sE, sE, WB // KB)
        for b in range(4):
            e.S("s_lshl_b32", sA, sP, 2)
            e.S("s_add_u32", sA, sA, b)
            e.S("s_mul_i32", sA, sA, s(79))
            e.S("s_add_u32", sA, sA, sE)
            e.S("s_lshl_b32", D2[b], sA, 10)
        e.S("s_mul_i32", sD, s(79), 20)
        e.S("s_add_u32", sD, sD, sE)
        e.S("s_lshl_b32", sDX, sD, 10)
        e.branch("s_branch", lj)
        e.cond_end()
        e.label(lo)
        e.cond_begin()
        mk_srd(e, SR2, PP[4:6], D * D * 2)
        e.S("s_sub_u32", sJ, sJ, 40)
        div3(sP, sU, sJ)
        e.S("s_mul_i32", sE, sCG, 80)
        unit(sE, 2, 1280, 80, 40, 4, 2048)
        for b in range(4):
            e.S("s_mul_i32", sA, sP, 160)
            e.S("s_add_u32", sA, sA, 40 * b)
            e.S("s_cmp_eq_u32", sP, 4)
            e.S("s_cselect_b32", rows[b], 160 * b + 32, sA)
        e.S("s_mul_i32", sE, sCG, NO)
        e.S("s_add_u32", sE, sE, WO // KB)
        e.S("s_lshl_b32", sA, sU, 2)
        e.S("s_add_u32", sE, sE, sA)
        split_dests(10)
        e.branch("s_branch", lj)
        e.cond_end()
        e.label(lc)
        e.cond_begin()
        mk_srd(e, SR2, PP[12:14], F * D * 2)
        e.S("s_sub_u32", sJ, sJ, 55)
        div3(sP, sU, sJ)
        e.S("s_mul_i32", sE, sCG, 80)
        unit(sE, 2, 1280, 112, 8, 12, 2048)
        e.S("s_cmp_ge_u32", sP, 14)
        e.S("s_cselect_b64", VCC, -1, 0)
        e.V("v_cndmask_b32", vCol, vCol, vBig, VCC)
        e.V("v_cndmask_b32", vSt2, vSt2, vBig, VCC)
        e.S("s_min_u32", sP, sP, 13)
        for b in range(4):
            e.S("s_lshl_b32", sD, sP, 2)
            e.S("s_add_u32", sD, sD, b)
            e.S("s_mul_i32", sA, sD, 43691)
            e.S("s_lshr_b32", sA, sA, 17)
            e.S("s_lshl_b32", sA, sA, 4)
            e.S("s_min_u32", sA, sA, 192)
            e.S("s_lshl_b32", sB, sD, 5)
            e.S("s_add_u32", sA, sA, sB)
            e.S("s_mul_i32", sB, sD, 224)
            e.S("s_sub_u32", sB, sB, 224 * 48 - 96)
            e.S("s_cmp_ge_u32", sD, 48)
            e.S("s_cselect_b32", rows[b], sB, sA)
        e.S("s_mul_i32", sE, sCG, NC)
        e.S("s_add_u32", sE, sE, WC // KB)
        e.S("s_lshl_b32", sA, sU, 2)
        e.S("s_add_u32", sE, sE, sA)
        split_dests(27)
        e.cond_end()
        e.label(lj)
        e.V("v_add_u32", vA0, vA0, vCol)
        e.S("s_cmp_lt_u32", sP, 2)
        e.S("s_cselect_b64", VCC, -1, 0)
        e.V("v_cndmask_b32", vBias, vBig, vCol, VCC)
        e.V("v_mov_b32", vSel1, "0x07060302")
        e.V("v_add_u32", vT0, sP, vG)
        e.V("v_lshrrev_b32", vT1, 1, vT0)
        e.V("v_lshlrev_b32", vLd, 4, vN)
        e.V("v_lshl_add_u32", vLd, vT1, 8, vLd)
        e.V("v_and_b32", vT0, 1, vT0)
        e.V("v_lshl_add_u32", vLd, vT0, 3, vLd)
        e.S("s_cmp_eq_u32", sP, 4)
        e.S("s_cselect_b32", sA, 4, 1)
        e.V("v_cmp_gt_u32", VCC, sA, vG)
        e.V("v_cndmask_b32", vLd, vBig, vLd, VCC)
        e.S("s_lshl_b32", sA, sC, 4)
        e.S("s_add_u32", sA, sA, sR)
        e.S("s_mul_i32", sA, sA, KVSZ)
        e.S("s_mul_i32", sB, sWave, KVSZ // 4)
        e.S("s_add_u32", sA, sA, sB)
        e.S("s_add_u32", s(79), sA, KVB[1])
        self.stamp("dec2")
        def r2_loads():
            for b in range(4):
                e.S("s_mul_i32", sE, rows[b], sStr); yield
                for i in range(8):
                    e.bload(RAW2[8 * b + i], vA0, SR2, sE, 0, cls=(1500, 32, 0)); yield
                    if i < 7:
                        e.S("s_add_u32", sE, sE, sStr); yield
            e.bload(vBias, vBias, SR1, 0, 0, cls=(1500, 10, 0)); yield

        self.r2_loads = r2_loads()
        if self.opt.get("l2first", 1):
            for _ in self.r2_loads:
                pass
            self.stamp("iss2a")
            self.prologue2()
            self.stamp("pro2")
        sP2 = sP
        wT0, wT1, wLd, wSum = FIFO[8], FIFO[9], FIFO[10], FIFO[11]
        sT, sP = s(7), s(93)
        ops1 = []
        e.S("s_lshr_b32", sA, sC, 1)
        e.S("s_lshl_b32", sB, sR, 3)
        e.S("s_add_u32", sA, sA, sB)
        e.S("s_mul_i32", sA, sA, 20 * KB)
        e.S("s_and_b32", sB, sC, 1)
        e.S("s_lshl_b32", sB, sB, 7)
        e.S("s_add_u32", sA, sA, sB)
        e.S("s_add_u32", sA, sA, XB[0])
        for k in range(3):
            e.S("s_lshl_b32", sB, XM[k], 11)
            e.S("s_add_u32", sB, sB, sA)
            ops1.append(e.bstore(XJ[k], XD, WS, sB, 0, "sc1", cls=(1000, 70, 0)))
        xs = ACC[26:28]
        xz = ACC[24:26]
        MK = ACC[28:32]
        for r_ in (xs[0], xs[1], xz[0], xz[1]):
            e.V("v_mov_b32", r_, 0)
        for k in range(3):
            for i in range(4):
                e.V("v_dot2c_f32_bf16", xs[0], XJ[k][i], vOne)
                e.V("v_dot2c_f32_bf16", xs[1], XJ[k][i], XJ[k][i])
        for h in range(2):
            e.V("v_add_f32_dpp", xs[h], xs[h], xs[h], mods="row_ror:8 row_mask:0xf bank_mask:0xf")
            allreduce_g(e, xs[h], wT0)
        e.S("s_lshl_b32", sA, sR, 3)
        e.S("s_add_u32", sA, sA, sWave)
        e.S("s_lshl_b32", sA, sA, 10)
        e.S("s_lshl_b32", sB, sC, 6)
        e.S("s_add_u32", sA, sA, sB)
        e.S("s_add_u32", sA, sA, STB[0])
        e.S("s_add_u32", sB, sA, 4096)
        e.V("v_lshlrev_b32", wT0, 3, vLane)
        e.S("s_mov_b64", EXEC, "0xff")
        ops1.append(e.bstore(xs, wT0, WS, sA, 0, "sc1", cls=(1000, 20, 0)))
        ops1.append(e.bstore(xz, wT0, WS, sB, 0, "sc1", cls=(1000, 20, 0)))
        e.S("s_mov_b64", EXEC, -1)
        self.stamp("xst")
        e.S("s_cmp_lt_u32", sT, 5)
        e.S("s_cselect_b32", sE, 5, 3)
        e.S("s_cselect_b32", sA, 0, 100)
        e.S("s_add_u32", sA, sA, sT)
        e.S("s_mul_i32", sB, sC, NA)
        e.S("s_add_u32", sA, sA, sB)
        e.S("s_add_u32", sA, sA, WA // KB)
        e.S("s_lshl_b32", sA, sA, 10)
        e.S("s_lshl_b32", sE, sE, 10)
        e.S("s_mul_i32", sB, sP, sE)
        e.S("s_lshl_b32", sB, sB, 1)
        e.S("s_add_u32", sB, sB, sA)
        self.pack(RAW1[0:8])
        ops1.append(e.bstore(RAW1[0:4], vL16, WS, sB, 0, "sc1", cls=(1000, 70, 0)))
        e.S("s_add_u32", sB, sB, sE)
        self.pack(RAW1[8:16])
        ops1.append(e.bstore(RAW1[8:12], vL16, WS, sB, 0, "sc1", cls=(1000, 70, 0)))
        e.S("s_lshr_b32", sB, sP, 1)
        e.S("s_add_u32", sB, sB, 16)
        e.S("s_mul_i32", sB, sB, sE)
        e.S("s_add_u32", sB, sB, sA)
        e.S("s_and_b32", sD, sP, 1)
        e.S("s_lshl_b32", s(95), sD, 9)
        e.S("s_add_u32", sB, sB, s(95))
        e.V("v_lshlrev_b32", wT0, 8, vG)
        e.V("v_and_b32", wT0, 256, wT0)
        e.V("v_lshl_add_u32", wT0, vN, 4, wT0)
        e.V("v_lshrrev_b32", wT1, 1, vG)
        e.V("v_lshl_add_u32", wLd, wT1, 3, wT0)
        self.pack(RAW1[16:20], 2)
        ops1.append(e.bstore(RAW1[16:18], wLd, WS, sB, 0, "sc1", cls=(1000, 40, 0)))
        self.colsum([RAW1[i] for i in (0, 1, 2, 3, 8, 9, 10, 11, 16, 17)], EX, wSum, wT0)
        e.S("s_mul_i32", sB, sE, 20)
        e.S("s_add_u32", sB, sB, sA)
        e.S("s_lshr_b32", sA, sP, 1)
        e.S("s_lshl_b32", sA, sA, 8)
        e.S("s_add_u32", sB, sB, sA)
        e.S("s_lshl_b32", sD, sD, 3)
        e.S("s_add_u32", sB, sB, sD)
        e.S("s_mov_b64", EXEC, "0xffff")
        ops1.append(e.bstore(EX[0:2], vL16, WS, sB, 0, "sc1", cls=(1000, 20, 0)))
        e.S("s_mov_b64", EXEC, -1)
        self.stamp("r1")
        if self.opt.get("r2touch", 3) == 2:
            r2touch()
        for i in range(4):
            e.V("v_mov_b32", MK[i], -1)
        e.S("s_lshl_b32", sA, sC, 4)
        e.S("s_add_u32", sA, sA, sR)
        e.S("s_mul_i32", sA, sA, KVSZ)
        e.S("s_mul_i32", sB, sWave, KVSZ // 4)
        e.S("s_add_u32", sA, sA, sB)
        e.S("s_add_u32", sA, sA, KVB[0])
        e.S("s_mov_b64", EXEC, "0xfffffff")
        ops1.append(e.bstore(MK, vL16, WS, sA, 0, "sc1", cls=(1000, 40, 0)))
        e.S("s_mov_b64", EXEC, -1)
        sP = sP2
        self.ops2 = []

        vs, vt, MK = TMP[48], TMP[49], TMP[40:44]
        EV = ACC[40:56]

        def r2_pack():
            for b in range(4):
                raw = RAW2[8 * b:8 * b + 8]
                for i in range(4):
                    e.V("v_perm_b32", EV[4 * b + i], raw[2 * i + 1], raw[2 * i], vSel0)
                for i in range(4):
                    e.V("v_perm_b32", raw[i], raw[2 * i + 1], raw[2 * i], vSel1)
            for i in range(4):
                e.V("v_mov_b32", MK[i], -1)
            e.V("v_cmp_eq_u32", sNan, 0, vG)
            for h in range(2):
                ex = TMP[44 + 2 * h:46 + 2 * h]
                self.colsum([EV[i] for i in range(16)] if h == 0 else [RAW2[8 * b + i] for b in range(4) for i in range(4)], ex, vs, vt)
                e.V("v_perm_b32", vt, vBias, vBias, vSel0 if h == 0 else vSel1)
                e.V("v_and_b32", vt, "0xffff0000", vt)
                e.V("v_or_b32", ex[1], ex[1], vt)
                e.V("v_cndmask_b32", ex[0], 0, ex[0], sNan)
                e.V("v_cndmask_b32", ex[1], 0, ex[1], sNan)
            e.V("v_mov_b32", vSel0, vLd)
            yield

        def r2_stores():
            for b in range(4):
                self.ops2.append(e.bstore(EV[4 * b:4 * b + 4], vSt2, WS, D2[b], 0, self.opt.get("r2mod", "sc1"), cls=(1000, 70, 0)))
                e.S("s_add_u32", sA, D2[b], sDB)
                self.ops2.append(e.bstore(RAW2[8 * b:8 * b + 4], vSt2, WS, sA, 0, self.opt.get("r2mod", "sc1"), cls=(1000, 70, 0)))
            e.S("s_mov_b64", EXEC, "0xfffffff")
            self.ops2.append(e.bstore(MK, vL16, WS, s(79), 0, "sc1", cls=(1000, 40, 0)))
            e.S("s_mov_b64", EXEC, -1)
            for h in range(2):
                if h:
                    e.S("s_add_u32", sDX, sDX, sDB)
                self.ops2.append(e.bstore(TMP[44 + 2 * h:46 + 2 * h], vSel0, WS, sDX, 0, "sc1", cls=(1000, 20, 0)))
        self.r2_stores = r2_stores
        self.r2_pack = r2_pack()
        npre = self.opt.get("r2pre", 50)
        for _ in self.r2_loads:
            npre -= 1
            if npre <= 0:
                break
        if self.opt.get("l2first", 1):
            for _ in self.r2_pack:
                pass
        self.stamp("iss2")
        e.wait_ops(ops1)
        e.barrier()
        self.flag("both", 1, ACC[34], ACC[35])
        self.stamp("w1flag")
        for _ in self.r2_loads:
            pass
        for _ in self.r2_pack:
            pass
        self.al0 = None
        if self.opt.get("early_a", 0):
            self.poll("row", 1)
            e.barrier()
        if self.opt.get("r2st", 2) == 2:
            r2_stores()
            self.late_loads()
        self.stamp("r2")
        if self.opt.get("early_a", 0):
            self.stats_loads(0)
            self.al0 = self.ALoad(self, vAx, (sXr, XB[0]), 20)
            self.al0.upto(19)
        self.poll("col" if self.al0 else "both", 1)
        e.barrier()
        self.stamp("w1go")

    def w2_gen(self):
        e = self.e
        t = RES[0]
        e.V("v_bfe_u32", t, vLane, 4, 1); yield
        e.V("v_lshl_add_u32", t, t, 11, vFl); yield
        e.S("s_lshl_b32", s(4), sCG, 8); yield
        e.S("s_add_u32", s(4), s(4), FLG_C); yield
        e.bload(RES[1], t, WS, s(4), 0, "sc1", cls=(900, 10, 0)); yield
        for _ in range(self.opt.get("w2wait", 50)):
            yield "idle"
        e.S("s_add_u32", s(5), sBase, 2); yield
        lok, lre = e.newlabel("w2ok"), e.newlabel("w2retry")
        e.V("v_cmp_ne_u32", VCC, s(5), RES[1])
        e.S("s_cmp_eq_u64", VCC, 0)
        e.branch("s_cbranch_scc1", lok)
        e.cond_begin()
        e.S("s_mov_b32", sCnt, 0)
        e.label(lre)
        e.misc("s_sleep 4")
        e.bload(RES[1], t, WS, s(4), 0, "sc1")
        e.V("v_cmp_ne_u32", VCC, s(5), RES[1])
        e.S("s_cmp_eq_u64", VCC, 0)
        e.branch("s_cbranch_scc1", lok)
        e.S("s_add_u32", sCnt, sCnt, 1)
        e.S("s_cmp_lt_u32", sCnt, 0x20000)
        e.branch("s_cbranch_scc1", lre)
        e.cond_end()
        e.label(lok)
        self.gate = 1 << 20
        yield

    def prologue2(self):
        e = self.e
        T0, T1, T2, T3, T4, T5 = [TMP[40 + i] for i in range(6)]
        mk_srd(e, OUT, pOut, XSZ)
        e.S("s_and_b32", sKH, sWave, 1)
        e.S("s_lshl_b32", sW2048, sWave, 11)
        e.S("s_mul_i32", sA, sC, NA * KB)
        e.S("s_add_u32", sSeg["A"], sA, WA)
        e.S("s_mul_i32", sA, sCG, NO * KB)
        e.S("s_add_u32", sSeg["O"], sA, WO)
        e.S("s_mul_i32", sA, sC, NB * KB)
        e.S("s_add_u32", sSeg["B"], sA, WB)
        e.S("s_mul_i32", sA, sCG, NC * KB)
        e.S("s_add_u32", sSeg["C"], sA, WC)
        e.V("v_add_u32", vDma, sW2048, vL16)
        e.S("s_mul_i32", sXr, sR, 160 * KB)
        e.S("s_mul_i32", sHr, sR, 432 * KB)
        e.S("s_lshl_b32", sSTr, sR, 13)
        e.S("s_mul_i32", sA, sWave, 40 * KB)
        e.V("v_add_u32", vAx[0], sA, vL16)
        e.V("v_add_u32", vAx[1], 20 * KB, vAx[0])
        e.V("v_lshlrev_b32", T0, 11, vG)
        e.V("v_lshl_add_u32", T0, vN, 3, T0)
        e.S("s_lshl_b32", sA, sWave, 8)
        e.V("v_add_u32", vSt, sA, T0)
        e.S("s_mov_b32", self.cInvD, lit(1.0 / D))
        for j in range(3):
            if j == 0:
                e.V("v_mov_b32", vW[0], vL16)
            else:
                e.V("v_add_u32", vW[j], j * 65536, vL16)
        e.S("s_lshl_b32", sA, sKH, 10)
        for j in range(3):
            e.V("v_add_u32", vK[j], sA, vW[j])
        e.V("v_lshlrev_b32", T4, 4, v(0))
        Z = TMP[44:48]
        Z = TMP[48:52]
        for j in range(4):
            e.V("v_mov_b32", Z[j], 0)
        e.ds_write(T4, Z, 0)
        e.ds_write(T4, Z, 4096)
        e.S("s_lshl_b32", sTT, sRH, 2)
        e.S("s_add_u32", sTT, sTT, sWave)
        e.S("s_xor_b32", sB, sTT, 1)
        for u, st in ((0, sTT), (1, sB)):
            e.S("s_mul_i32", sA, st, 20 * KB)
            e.S("s_mul_i32", sD, sKH, 10 * KB)
            e.S("s_add_u32", sA, sA, sD)
            e.V("v_add_u32", vAo[u], sA, vL16)
            e.S("s_mul_i32", sA, st, 54 * KB)
            e.S("s_mul_i32", sD, sKH, 27 * KB)
            e.S("s_add_u32", sA, sA, sD)
            e.V("v_add_u32", vAh[u], sA, vL16)
        e.V("v_lshrrev_b32", T0, 1, vG)
        e.V("v_and_b32", T1, 1, vG)
        e.V("v_lshlrev_b32", T2, 4, vN)
        e.V("v_lshl_add_u32", T3, T0, 8, T2)
        e.V("v_lshl_add_u32", T3, T1, 3, T3)
        e.S("s_mul_i32", sA, sTT, 20 * KB)
        e.V("v_add_u32", vXs, sA, vL16)
        e.V("v_add_u32", vXh, sA, T3)
        e.S("s_mul_i32", sA, sWave, 108 * KB)
        e.V("v_add_u32", vHs, sA, vL16)
        e.S("s_cmp_ge_u32", sC, 12)
        e.S("s_cselect_b32", sA, BIG, sA)
        e.V("v_add_u32", vHh, sA, T3)
        e.S("s_mul_i32", sA, sWave, 40 * KB)
        e.V("v_lshl_add_u32", T3, vG, 3, T2)
        e.V("v_add_u32", vOh, sA, T3)
        e.V("v_cmp_gt_u32", VCC, 2, vG)
        e.V("v_mov_b32", T3, BIG)
        e.V("v_cndmask_b32", vOh, T3, vOh, VCC)
        e.S("s_lshl_b32", sA, sTT, 7)
        e.V("v_lshl_add_u32", T3, vN, 3, sA)
        e.V("v_lshl_add_u32", vStW, T0, 2, T3)
        e.S("s_lshl_b32", sA, sWave, 7)
        e.S("s_add_u32", sA, sA, RST)
        e.V("v_lshl_add_u32", vRT, vG, 4, sA)
        e.V("v_lshl_add_u32", vRW, vN, 2, sA)
        e.S("s_lshl_b32", sA, sTT, 6)
        e.S("s_add_u32", sA, sA, RST)
        e.V("v_lshl_add_u32", vRF, vN, 2, sA)
        e.V("v_lshlrev_b32", T3, 4, vG)
        e.V("v_add_u32", vZ2, ZT + 128, T3)
        e.V("v_cmp_gt_u32", VCC, 10, vN)
        e.V("v_add_u32", T3, ZT, T3)
        e.V("v_cndmask_b32", vZ01, vZ2, T3, VCC)
        e.S("s_lshl_b32", sA, sR, 3)
        e.S("s_add_u32", sA, sA, sTT)
        e.S("s_mul_i32", sA, sA, 16 * 1280)
        e.S("s_mul_i32", sB, sCG, 160)
        e.S("s_add_u32", sA, sA, sB)
        e.V("v_mul_u32_u24", T3, 1280, vN)
        e.V("v_add_u32", T3, sA, T3)
        e.V("v_lshl_add_u32", vOut, vG, 4, T3)
        e.V("v_lshl_add_u32", vOut4, vG, 3, T3)
        e.S("s_mul_i32", sA, sWave, 5120)
        e.V("v_add_u32", vXch, sA, vL16)
        e.V("v_lshlrev_b32", vFl, 2, vN)
        e.V("v_mov_b32", vLn2[0], lit(LN2))
        e.V("v_mov_b32", vEps[0], lit(1e-6))
        e.S("s_mov_b32", sMaskV[0], "0x00ff00ff")
        e.S("s_mov_b32", sMaskV[1], "0x00ff00ff")
        e.S("s_lshl_b32", sA, sR, 8)
        e.S("s_add_u32", sFRL, sA, FLG_RL)
        e.S("s_add_u32", sFRG, sA, FLG_RG)
        e.S("s_lshl_b32", sA, sC, 8)
        e.S("s_add_u32", sFC, sA, FLG_C)
        e.S("s_lshl_b32", sA, sCG, 11)
        e.S("s_add_u32", sOx, sXr, sA)
        e.S("s_lshr_b32", sA, sCG, 1)
        e.S("s_lshl_b32", sA, sA, 10)
        e.S("s_and_b32", sB, sCG, 1)
        e.S("s_lshl_b32", sB, sB, 9)
        e.S("s_add_u32", sA, sA, sB)
        e.S("s_add_u32", sA, sA, 16 * KB)
        e.S("s_add_u32", sOxh, sXr, sA)
        e.S("s_lshl_b32", sA, sCG, 10)
        e.S("s_add_u32", sOst, sSTr, sA)
        e.S("s_lshl_b32", sA, sC, 10)
        e.S("s_add_u32", sOo, sXr, sA)
        e.S("s_lshl_b32", sA, sC, 8)
        e.S("s_add_u32", sA, sA, 16 * KB)
        e.S("s_add_u32", sOoh, sXr, sA)
        e.S("s_mul_i32", sA, sC, 3 * KB)
        e.S("s_add_u32", sOh, sHr, sA)
        e.S("s_lshl_b32", sA, sC, 9)
        e.S("s_add_u32", sA, sA, 48 * KB)
        e.S("s_add_u32", sOhh, sHr, sA)
        e.S("s_mul_i32", sKv, sC, 16 * KVSZ)
        e.misc(f"s_getreg_b32 {sX1}, hwreg(HW_REG_XCC_ID, 0, 4)")
        e.S("s_and_b32", sX1, sX1, 7)
        e.S("s_add_u32", sX1, sX1, 8)
        e.S("s_add_u32", sX1, sX1, sBase)
        e.S("s_mov_b32", sLocal, 0)
        U, Hh, Ee, Dq = T0, T1, T2, T3
        e.S("s_mov_b32", sA, 52429)
        e.V("v_mul_u32_u24", U, sA, v(0))
        e.V("v_lshrrev_b32", U, 18, U)
        e.V("v_mul_u32_u24", Dq, 5, U)
        e.V("v_sub_u32", Dq, v(0), Dq)
        e.V("v_cmp_le_u32", VCC, 21, U)
        e.V("v_cndmask_b32", Hh, 0, 1, VCC)
        e.V("v_mul_u32_u24", Ee, 21, Hh)
        e.V("v_sub_u32", Ee, U, Ee)
        A0, A1, A2, A3 = TMP[46], TMP[47], ACC[36], ACC[37]
        e.V("v_cmp_le_u32", s(100, 2), 16, Ee)
        e.V("v_cmp_eq_u32", s(88, 2), 4, Dq)
        e.V("v_cndmask_b32", A0, 0, 1, s(100, 2))
        e.V("v_lshl_add_u32", A0, Hh, 1, A0)
        e.V("v_add_u32", A1, 4, Hh)
        e.V("v_cndmask_b32", A1, A1, 6, s(100, 2))
        e.V("v_cndmask_b32", A0, A0, A1, s(88, 2))
        e.V("v_cndmask_b32", A1, Dq, Hh, s(88, 2))
        e.V("v_lshl_add_u32", A2, Hh, 2, Ee)
        e.V("v_subrev_u32", A2, 8, A2)
        e.V("v_cndmask_b32", A2, Ee, A2, s(100, 2))
        e.V("v_cmp_eq_u32", VCC, 20, Ee)
        e.V("v_cndmask_b32", A2, A2, 0, VCC)
        e.V("v_lshl_add_u32", A1, A1, 4, A2)
        e.V("v_lshlrev_b32", A1, 4, A1)
        e.V("v_lshl_add_u32", vKvSrc, A0, 10, A1)
        e.V("v_mul_u32_u24", A0, 5, Hh)
        e.V("v_add_u32", A0, A0, Dq)
        e.V("v_cmp_le_u32", s(88, 2), 8, A0)
        e.V("v_lshrrev_b32", A1, 1, A0)
        e.V("v_subrev_u32", A2, 8, A0)
        e.V("v_cndmask_b32", A1, A1, A2, s(88, 2))
        e.V("v_and_b32", A2, 1, A0)
        e.V("v_cndmask_b32", A2, A2, 0, s(88, 2))
        e.V("v_lshlrev_b32", A2, 3, A2)
        e.V("v_cndmask_b32", A0, 0, 1, s(88, 2))
        e.V("v_lshl_add_u32", A3, Hh, 1, A0)
        e.V("v_lshl_add_u32", A3, A3, 2, A1)
        e.V("v_lshl_add_u32", A3, A3, 4, A2)
        e.V("v_add_u32", A3, ZT, A3)
        e.V("v_mul_u32_u24", T4, 20, Hh)
        e.V("v_add_u32", T4, T4, Ee)
        e.V("v_cmp_le_u32", s(100, 2), 32, T4)
        e.V("v_and_b32", T5, 1, T4)
        e.V("v_cndmask_b32", T5, T5, 2, s(100, 2))
        e.V("v_lshl_add_u32", A0, T5, 1, A0)
        e.V("v_lshrrev_b32", T5, 1, T4)
        e.V("v_subrev_u32", T4, 32, T4)
        e.V("v_cndmask_b32", T4, T5, T4, s(100, 2))
        e.V("v_lshl_add_u32", T4, A1, 4, T4)
        e.V("v_lshl_add_u32", T4, T4, 4, A2)
        e.V("v_lshl_add_u32", T4, A0, 10, T4)
        e.V("v_cndmask_b32", T4, T4, A3, VCC)
        e.V("v_cmp_gt_u32", VCC, 210, v(0))
        e.V("v_mov_b32", T5, DUMMY)
        e.V("v_cndmask_b32", vKvDst, T5, T4, VCC)
        e.V("v_cndmask_b32", vKvSrc, 0, vKvSrc, VCC)
        e.V("v_lshlrev_b32", T4, 3, v(0))
        e.V("v_mov_b32", T5, BIG)
        e.V("v_cndmask_b32", vT16, T5, T4, VCC)
        e.V("v_and_b32", T4, -16, T4)
        e.V("v_and_b32", T0, 1, v(0))
        e.V("v_mul_u32_u24", T0, 8 * KVSZ, T0)
        e.V("v_add_u32", T4, T4, T0)
        e.V("v_cndmask_b32", vT16L, T5, T4, VCC)

    def late_loads(self):
        e = self.e
        T4, T5 = TMP[48], TMP[49]
        e.S("s_mul_i32", sB, sCG, 160)
        e.bload(RES[10:14], vOut, XIN, 0, 0)
        e.bload(RES[14:18], vOut, XIN, 0, 64)
        e.bload(RES[18:20], vOut4, XIN, 0, 128)
        skip = e.newlabel("noxid")
        e.S("s_cmp_lg_u32", sWave, 3)
        e.branch("s_cbranch_scc1", skip)
        e.cond_begin()
        e.S("s_lshl_b32", sA, sR, 8)
        e.S("s_add_u32", sA, sA, FLG_X)
        e.S("s_lshl_b32", sB, sC, 2)
        e.V("v_mov_b32", T4, sB)
        e.V("v_mov_b32", T5, sX1)
        e.S("s_mov_b64", EXEC, 1)
        e.bstore(T5, T4, WS, sA, 0, "sc1")
        e.S("s_mov_b64", EXEC, -1)
        e.cond_end()
        e.label(skip)

    def unpack(self, dst, pk):
        e = self.e
        for a_ in range(2):
            for j in range(4):
                e.V("v_lshlrev_b32", dst[8 * a_ + j], 16, pk[4 * a_ + j])
                e.V("v_and_b32", dst[8 * a_ + 4 + j], "0xffff0000", pk[4 * a_ + j])
        for j in range(2):
            e.V("v_lshlrev_b32", dst[16 + 2 * j], 16, pk[8 + j])
            e.V("v_and_b32", dst[16 + 2 * j + 1], "0xffff0000", pk[8 + j])

    class ALoad:
        def __init__(self, m, vaddr, terms, nks):
            self.m, self.vaddr, self.terms, self.nks = m, vaddr, terms, nks
            self.n = 0
            self.based = -1
            self.done = False
            self.win = 20

        def step(self):
            e = self.m.e
            ks, u = divmod(self.n, 2)
            if ks // 4 != self.based:
                self.based = ks // 4
                e.S("s_add_u32", sLd, self.terms[0], self.terms[1] + (ks // 4) * 4 * KB)
                return False
            e.bload(a((self.n % 40) * 4, 4), self.vaddr[u], WS, sLd, (ks % 4) * KB, self.m.opt.get("amod", "sc1"), cls=(self.m.opt.get("latA", 600), 76, 33 if self.nks == 27 else 16))
            self.n += 1
            self.done = self.n >= 2 * self.nks
            return True

        def upto(self, ks):
            while self.n < 2 * min(ks + 1, self.nks):
                self.step()

    def stats_loads(self, ver):
        e = self.e
        e.S("s_add_u32", sA, sSTr, STB[ver])
        for u in range(2):
            for k in range(2):
                e.bload(TMP[4 * u + 2 * k:4 * u + 2 * k + 2], vSt, WS, sA, k * 1024 + u * 128, "sc1", cls=(600, 20, 0))

    def stats_gen(self, need_T, have=False):
        e = self.e
        for u in range(2):
            sm, sq, t0, t1 = TMP[4 * u], TMP[4 * u + 1], TMP[4 * u + 2], TMP[4 * u + 3]
            if not have:
                e.V("v_add_f32", sm, sm, t0); yield
                e.V("v_add_f32", sq, sq, t1); yield
            for op in () if have else ("v_permlane32_swap_b32", "v_permlane16_swap_b32"):
                e.V("v_mov_b32", t0, sm); yield
                e.V("v_mov_b32", t1, sq); yield
                e.V(op, sm, t0); yield
                e.V(op, sq, t1); yield
                e.V("v_add_f32", sm, sm, t0); yield
                e.V("v_add_f32", sq, sq, t1); yield
            e.V("v_mul_f32", sm, lit(1.0 / D), sm); yield
            e.V("v_mul_f32", t0, sm, sm); yield
            e.V("v_fma_f32", sq, sq, self.cInvD, Neg(t0)); yield
            e.V("v_max_f32", sq, 0, sq); yield
            e.V("v_add_f32", sq, lit(1e-5), sq); yield
            e.V("v_rsq_f32", t0, sq); yield
            e.V("v_cvt_pk_bf16_f32", XE[u][0], sm, sm); yield
            e.V("v_mul_f32", sq, sq, t0); yield
            e.ds_write(vRW, t0, 64 * u); yield
            c2 = vC2 if u == 0 else vC2b
            e.V("v_mul_f32", c2[0], lit(LOG2E), t0); yield
            e.V("v_lshlrev_b32", t1, 16, XE[u][0]); yield
            e.V("v_sub_f32", sm, sm, t1); yield
            e.V("v_cvt_pk_bf16_f32", XE[u][1], sm, sq); yield
            e.V("v_and_b32", t1, "0xffff0000", XE[u][1]); yield
            e.V("v_sub_f32", t1, sq, t1); yield
            e.V("v_cvt_pk_bf16_f32", XE[u][3], sm, t1); yield
            e.V("v_mov_b32", XE[u][2], XE[u][0]); yield
        if need_T:
            for u in range(2):
                e.ds_read(RT[4 * u:4 * u + 4], vRT, 64 * u); yield

    def phi_pair(self, src, c2, bcast, t):
        e = self.e
        m = "op_sel_hi:[1,0]" if bcast else ""
        e.V("v_pk_mul_f32", t[0:2], src, c2, mods=m)
        e.V("v_exp_f32_e64", t[2], t[0], mods="clamp")
        e.V("v_exp_f32_e64", t[3], t[1], mods="clamp")
        e.V("v_max_f32", t[0], 0, t[0])
        e.V("v_max_f32", t[1], 0, t[1])
        e.V("v_pk_add_f32", t[2:4], t[2:4], vEps, mods="op_sel_hi:[1,0]")
        e.V("v_pk_fma_f32", t[0:2], t[0:2], vLn2, t[2:4], mods="op_sel_hi:[1,0,1]")

    def scratch(self, nblk, endpos):
        st = endpos - nblk
        if (st % RB) + nblk > RB:
            st = endpos - (endpos % RB) - nblk
        self.last_scratch = (st, st + nblk)
        return st, self.ldsaddr(st)

    def bg_on(self, tail):
        e = self.e
        st = {"next": 0}
        t_end = e.T + tail
        self.deadline = lambda: t_end

        def f():
            if e.T >= st["next"] and self.dma_ok():
                n0 = len(e.vm) + len(e.lg) + len(self.deferred)
                while len(e.vm) + len(e.lg) + len(self.deferred) == n0:
                    next(self.dmaf)
                st["next"] = e.T + self.opt.get("vgap", 24)
        self.e.bg = f

    def code_touch(self, ahead=None):
        e = self.e
        if not self.opt.get("ctouch", 1):
            return
        lab = e.newlabel("here")
        e.label(lab)
        ahead = self.opt.get("cahead", 2048) if ahead is None else ahead
        e.V("v_lshlrev_b32", v(51), 5, v(0))
        e.V("v_add_u32", v(51), f"{lab}-{self.kname}+{ahead}", v(51))
        e.V("v_min_u32", v(51), self.opt.get("code_bytes", 32768) - 4, v(51))
        e.misc(f"global_load_dword {vDum}, {v(51)}, s[96:97]")
        e._vm([], (800, 30, 10))

    def at_block(self, t, gen):
        i0 = self.cons
        while self.cons < i0 + t:
            yield "idle"
        yield from gen

    def delay(self, n, gen):
        for _ in range(n):
            yield "idle"
        yield from gen

    def code_touch_gen(self):
        self.code_touch(self.opt.get("cahead", 512))
        yield

    def bg_off(self):
        self.e.bg = None

    def gstore(self, lst, cold=False):
        e = self.e
        mode = self.opt.get("mode", "dual")
        if cold and not self.opt.get("touchcold", 0):
            mode = "safe"
        if mode != "dual":
            return [e.bstore(d, vo, WS, so, off, "sc1" if mode == "safe" else "") for d, vo, so, off in lst]
        ls, le = e.newlabel("st_safe"), e.newlabel("st_end")
        regs = []
        for d, vo, so, off in lst:
            regs += d.regs() + vo.regs()
        e.wait_ops(e._pending(regs))
        e.S("s_cmp_eq_u32", sLocal, 0)
        need = e._need("vmem", regs, [])
        if need > 1:
            e.nop(need - 1)
        e.branch("s_cbranch_scc1", ls)
        n0 = len(e.lines)
        ops = [e.bstore(d, vo, WS, so, off, "") for d, vo, so, off in lst]
        body = e.lines[n0:]
        assert len(body) == len(lst), body
        e.raw(f"  s_branch {le}")
        e.label(ls)
        for l in body:
            e.raw(l + " sc1")
        e.label(le)
        return ops

    def touch_gen(self, lst, cold=False):
        e = self.e
        if (cold and not self.opt.get("touchcold", 0)) or not self.opt.get("touch", 0):
            return
        for vo, sb, add, off in lst:
            e.S("s_add_u32", sE, sb, add); yield
            e.touch(vDum, vo, WS, sE, off, cls=(750, 80, 30)); yield

    def local_gen(self):
        e = self.e
        e.S("s_lshl_b32", s(6), sR, 8); yield
        e.S("s_add_u32", s(6), s(6), FLG_X); yield
        e.bload(TMP[39], vFl, WS, s(6), 0, "sc1"); yield
        for _ in range(40):
            yield "idle"
        e.V("v_cmp_ne_u32", VCC, sX1, TMP[39]); yield
        e.S("s_cmp_eq_u64", VCC, 0)
        e.S("s_cselect_b32", sLocal, 1, 0); yield

    def poll(self, kind, val):
        e = self.e
        skip = e.newlabel("nopoll")
        loop = e.newlabel("poll")
        e.S("s_cmp_lg_u32", sWave, 0)
        e.branch("s_cbranch_scc1", skip)
        e.cond_begin()
        t = TMP[38]
        e.S("s_mov_b32", sCnt, 0)
        e.S("s_mov_b64", sOk, 0)
        e.S("s_add_u32", sB, sBase, val)
        va, vb, sa, sb = (vFl, vFl, sFRL, sFRG) if kind != "col" else (vFl, vFl, sFC, sFC)
        if kind == "both":
            va, vb, sa, sb = TMP[36], TMP[37], 0, 0
            e.V("v_cmp_gt_u32", VCC, 2, vG)
            e.V("v_mov_b32", va, sFC)
            e.V("v_mov_b32", vb, sFRL)
            e.V("v_cndmask_b32", va, vb, va, VCC)
            e.V("v_add_u32", va, va, vFl)
            e.V("v_mov_b32", vb, FLG_RG - FLG_RL)
            e.V("v_cndmask_b32", vb, vb, 0, VCC)
            e.V("v_add_u32", vb, va, vb)
        if kind == "row":
            e.S("s_cmp_eq_u32", sLocal, 0)
            e.S("s_cselect_b32", sD, 3, -1)
        else:
            e.S("s_mov_b32", sD, 3)
        e.label(loop)

        def chk():
            e.misc("s_waitcnt vmcnt(0)")
            e.misc(f"v_subrev_u32 {t}, {sB}, {t}")
            e.misc(f"v_cmp_ge_u32 vcc, 1, {t}")
            e.misc(f"s_or_b64 {sOk}, {sOk}, vcc")
            e.misc(f"s_cmp_eq_u64 {sOk}, -1")
            e.misc(f"s_cbranch_scc1 {skip}")
        e.misc(f"buffer_load_dword {t}, {va}, {WS}, {sa} offen sc1")
        e.misc("s_add_u32 %s, %s, 1" % (sCnt, sCnt))
        chk()
        if kind != "row":
            e.misc("s_sleep 3")
        lnext = e.newlabel("pollnext")
        e.misc(f"s_and_b32 {sA}, {sCnt}, {sD}")
        e.misc(f"s_cbranch_scc1 {lnext}")
        e.misc(f"buffer_load_dword {t}, {vb}, {WS}, {sb} offen sc1")
        chk()
        e.label(lnext)
        e.misc(f"s_cmp_lt_u32 {sCnt}, 0x80000")
        e.misc(f"s_cbranch_scc1 {loop}")
        e.cond_end()
        e.label(skip)

    def flag(self, kind, val, t0=TMP[37], t1=TMP[38]):
        e = self.e
        lst = [(1, sFRG, "sc1", sC), (2, sFRL, "", sC)] if kind != "col" else []
        if kind != "row":
            lst.append((3, sFC, "sc1", sR))
        for w, sb, m, sidx in lst:
            skip = e.newlabel("noflag")
            if w == 1 and self.opt.get("skipg", 1):
                e.S("s_lshl_b32", sA, sLocal, 2)
                e.S("s_add_u32", sA, sA, sWave)
                e.S("s_cmp_lg_u32", sA, w)
            else:
                e.S("s_cmp_lg_u32", sWave, w)
            e.branch("s_cbranch_scc1", skip)
            e.cond_begin()
            e.S("s_lshl_b32", sA, sidx, 2)
            e.V("v_mov_b32", t0, sA)
            e.S("s_add_u32", sA, sBase, val)
            e.V("v_mov_b32", t1, sA)
            e.S("s_mov_b64", EXEC, 1)
            e.bstore(t1, t0, WS, sb, 0, m)
            e.S("s_mov_b64", EXEC, -1)
            e.cond_end()
            e.label(skip)

    def handoff(self, val, ops, shadow=None, touch=()):
        e = self.e
        t_st = e.T
        hk = (val - 2) % 4
        pick = lambda name, d: self.opt[name + "s"][hk] if name + "s" in self.opt else self.opt.get(name, d)
        self.deadline = lambda: t_st + pick("topup", 2600)
        self.own_end = 0
        while self.dma_ok():
            next(self.dmaf)
        while self.stage_step():
            pass
        self.finish_stage()
        self.restore(self.opt.get("rest1", 2))
        e.wait_all_lg()
        self.ring_barrier(self.cons + FI + self.opt.get("ahead", 16), ops)
        self.hold = None
        self.flag("row", val)
        self.stamp("flag")
        t_flag = e.T
        if self.opt.get("post_touch", 0):
            for k, (vo, sb, add, off) in enumerate(touch):
                sr = sE if k % 2 else sD
                e.S("s_add_u32", sr, sb, add)
                e.touch(vDum, vo, WS, sr, off, "sc1", cls=(750, 66, 30))
        self.deadline = lambda: t_flag + pick("topup2", 1500)
        while self.dma_ok():
            next(self.dmaf)
        while self.stage_step():
            pass
        self.finish_stage()
        self.warn.append(f"staged {len(self.staged)}")
        self.stage_plan = []
        self.prime()
        self.restore(self.opt.get("rest2", 8) if hk == 3 else 99)
        self.restg = self.restore_gen(99)
        if shadow:
            shadow()
        self.poll("row", val)
        e.T = max(e.T, t_flag + 1000)
        e.barrier()
        self.stamp("go")

    def phaseA(self, p):
        e = self.e
        opt = self.opt
        xv = 2 * p
        acc = lambda T, u: ACC[(T * 2 + u) * 4:(T * 2 + u) * 4 + 4]
        xf = lambda ks, u: a((ks * 2 + u) * 4, 4) if ks < 20 else XE[u]
        if p == 0:
            e.S("s_mov_b32", sSel[0], "0x00003f80")
            e.S("s_mov_b32", sSel[1], "0x3f800000")
            e.S("s_mov_b32", sOdd[0], "0xaaaaaaaa")
            e.S("s_mov_b32", sOdd[1], "0xaaaaaaaa")
            e.S("s_getpc_b64", s(96, 2))
            e.label("main_pc2")
            e.S("s_sub_u32", s(96), s(96), "main_pc2-" + self.kname)
            e.S("s_subb_u32", s(97), s(97), 0)
            for _ in range(opt.get("first_groups", 6 if self.al0 else 3)):
                for _ in self.dma_group():
                    pass
        if p == 0 and self.al0:
            al = None
            for _ in self.stats_gen(True):
                pass
            fl0 = [iter(())]
        else:
            al = self.ALoad(self, vAx, (sXr, XB[xv]), 20)
            al.upto(opt.get("adist", 4) - 1)
            self.stats_loads(xv)
            fl0 = [self.delay(opt.get("stdelay", 24), self.stats_gen(True))]
        sc_keep = self.last_scratch
        if p:
            fl0.append(self.restg)
        if p == 0:
            if opt.get("r2st", 2) == 0:
                self.r2_stores()
                self.late_loads()
            e.wait_all_lg()
            if opt.get("r2st", 2) == 2:
                self.ring_barrier(FI + 8, self.ops2)
                self.flag("col", 2)
                fl0.append(self.at_block(opt.get("w2at", 60), self.w2_gen()))
            else:
                self.ring_barrier(FI + 8)
            self.prime()
            self.stamp("start")
            if opt.get("keep", 12):
                self.capg = self.capture_gen(opt.get("keep0", 3), opt.get("keep", 12))
                next(self.capg)
                fl0.append(self.capg)
        st1 = {}

        def hook1(t):
            if t >= opt.get("w2flag_at", 30) and not st1.get("done"):
                st1["done"] = t
                return self.ops2, (lambda: self.flag("col", 2))
            return [], None

        def add1(t):
            if st1.get("done") and t >= opt.get("w2chk_at", 70) and not st1.get("chk"):
                st1["chk"] = True
                return self.w2_gen()
        i0 = self.seqstart[("A1", p)]
        fb = 102
        sst, sad = self.scratch(28, self.seq[i0 + fb][0])
        self.last_scratch = sc_keep
        self.hold = sst

        C2T = ACC[40:48]

        def pre_gen(first):
            while first.gi_frame is not None:
                yield "idle"
            e.S("s_mul_i32", s(7), sWave, 7168); yield
            e.S("s_add_u32", s(7), s(7), sad); yield
            e.V("v_add_u32", TMP[24], s(7), vL16); yield
            e.V("v_add_u32", TMP[25], sad, vKvSrc); yield
            e.S("s_mul_i32", s(7), sR, KVSZ); yield
            e.S("s_add_u32", s(7), s(7), sKv); yield
            e.S("s_add_u32", s(7), s(7), KVB[p]); yield
            for _ in range(8):
                yield "idle"
            for j in range(8):
                e.V("v_mul_f32", C2T[j], lit(LOG2E), RT[j]); yield
        fl0.append(pre_gen(fl0[0]))

        def must_gen():
            yield from fl0[0]
            yield from fl0[-1]
            while self.capg and self.cap_next < sst + 28:
                next(self.capg)
                yield

        def mf(t, W, u):
            ks, T = divmod(t, 5)
            e.mfma(acc(T, u), xf(ks, u), W, acc(T, u) if ks else 0)
        self.run_pass(105, mf, 5, xf, fl0, must=must_gen(), chunk=(8 if p == 0 else 24), stop_reads=self.seqstart[("A4", p)], aload=al,
                      force_bar=fb, tail=6000, mix=opt.get("mixA", 0) if p else 0,
                      late=(60, self.touch_gen([(vAx[0], sOo, OB[p], 0), (vAx[1], sOo, OB[p], 0), (vOh, sOoh, OB[p], 0), (vOh, sOoh, OB[p] + 20 * KB, 0)], p == 0)), hooks={"bar": hook1, "add": add1} if (p == 0 and opt.get("r2st", 2) == 0) else None)
        if p == 0 and opt.get("r2st", 2) == 1:
            self.dma_all()
            self.r2_stores()
            self.late_loads()
        assert sst + 28 <= self.freed and sst + 28 <= self.cap_hold, (sst, self.cap_hold)
        self.stamp("A1")
        self.bg_on(5000)
        KF = [TMP[8:12], TMP[12:16], TMP[16:20]]
        VF = {3: TMP[20:24], 4: ACC[56:60], 2: ACC[60:64]}
        tt = [ACC[48:52], ACC[52:56]]
        TA0, TA1 = TMP[24], TMP[25]
        n = 0
        for T in range(3):
            for u in range(2):
                for h in range(2):
                    t = tt[n % 2]
                    n += 1
                    self.phi_pair(acc(T, u)[2 * h:2 * h + 2], C2T[4 * u + 2 * h:4 * u + 2 * h + 2], False, t)
                    e.V("v_cvt_pk_bf16_f32", KF[T][2 * u + h], t[0], t[1])
        for T in (3, 4, 2):
            for u in range(2):
                for h in range(2):
                    x = acc(T, u)[2 * h:2 * h + 2]
                    e.V("v_pk_mul_f32", x, x, RT[4 * u + 2 * h:4 * u + 2 * h + 2])
            for u in range(2):
                for h in range(2):
                    x = acc(T, u)[2 * h:2 * h + 2]
                    e.V("v_cvt_pk_bf16_f32", VF[T][2 * u + h], x[0], x[1])
        for j in range(4):
            e.V("v_cndmask_b32", VF[2][j], VF[2][j], vOne, sMaskV)
        PR = [ACC[4 * i:4 * i + 4] for i in range(7)]
        prods = [(0, 3), (0, 2), (1, 4), (1, 2), (2, 3), (2, 4), (2, 2)]
        for i, (kt, vt) in enumerate(prods):
            e.mfma(PR[i], KF[kt], VF[vt], 0)
        for i in range(7):
            e.ds_write(TA0, PR[i], i * 1024)
        e.wait_all_lg()
        e.barrier()
        RD = [ACC[4 * w:4 * w + 4] for w in range(4)]
        for w in range(4):
            e.ds_read(RD[w], TA1, w * 7168)
        for h in range(2):
            e.V("v_pk_add_f32", RD[0][2 * h:2 * h + 2], RD[0][2 * h:2 * h + 2], RD[1][2 * h:2 * h + 2])
            e.V("v_pk_add_f32", RD[2][2 * h:2 * h + 2], RD[2][2 * h:2 * h + 2], RD[3][2 * h:2 * h + 2])
        for h in range(2):
            e.V("v_pk_add_f32", RD[0][2 * h:2 * h + 2], RD[0][2 * h:2 * h + 2], RD[2][2 * h:2 * h + 2])
        e.V("v_cvt_pk_bf16_f32", RD[1][0], RD[0][0], RD[0][1])
        e.V("v_cvt_pk_bf16_f32", RD[1][1], RD[0][2], RD[0][3])
        kvst = e.bstore(RD[1][0:2], vT16, WS, s(7), 0, "sc1")
        self.bg_off()
        self.stamp("kvpub")
        PL = [ACC[4 * i:4 * i + 4] for i in range(10)]

        st2 = {}

        def barhook(t):
            def rel():
                self.hold = None

            def relflag():
                self.hold = None
                self.flag("col", 2)
            if p == 0 and opt.get("r2st", 2) == 1 and not st2.get("done") and t >= opt.get("w2flag2_at", 12):
                st2["done"] = True
                return self.ops2, relflag
            return [], rel

        def kvloads():
            for i in range(8):
                if i % 2 == 0:
                    e.S("s_add_u32", sB, sKv, KVB[p] + i * KVSZ); yield
                e.bload(PL[i], vT16L, WS, sB, (i % 2) * KVSZ, "sc1", cls=(opt.get('kvlat', 800), 80, opt.get('kvsvc', 130))); yield

        def kvsum():
            SM = PL[8:10]
            for i in range(8):
                for d in range(4):
                    for h in range(2):
                        x = SM[d >> 1][2 * (d & 1) + h]
                        if i == 0:
                            e.V("v_dot2_f32_bf16", x, PL[i][d], sSel[h], 0)
                        else:
                            e.V("v_dot2c_f32_bf16", x, sSel[h], PL[i][d])
            for d in range(8):
                x = SM[d >> 2][d & 3]
                e.V("v_add_f32_dpp", x, x, x, mods="quad_perm:[1,0,3,2] row_mask:0xf bank_mask:0xf")
            for d in range(4):
                e.V("v_cndmask_b32", PL[0][d], SM[0][d], SM[1][d], sOdd)
            e.V("v_cmp_u_f32", VCC, PL[0][0], PL[0][1])
            e.V("v_cmp_u_f32", sNan, PL[0][2], PL[0][3])
            e.S("s_or_b64", VCC, VCC, sNan)

        def mfq(t, W, u):
            ks, T = divmod(t, 3)
            e.mfma(acc(5 + T, u), W, xf(ks, u), acc(5 + T, u) if ks else 0)
        self.lastbar = self.rd - 8
        fl = []
        if p == 0:
            fl = [self.local_gen()] + ([self.capg] if self.capg else [])
        self.run_pass(63, mfq, 3, xf, fl, stop_reads=self.seqstart[("A4", p)], hooks={"bar": barhook},
                      late=(opt.get("kvload_at", 40), kvloads()), see_all=True, force_bar=61, tail=1600 + self.opt.get("slack", 2400))
        if self.capg:
            n_ = 0
            for _ in self.capg:
                n_ += 1
                assert n_ < 1000
            self.capg = None
        self.stamp("A2")
        if p == 0 and opt.get("r2st", 2) == 1:
            assert st2.get("done")
            w2 = self.w2_gen()
            while next(w2) != "idle":
                pass
        if opt.get("qbg", 1):
            self.bg_on(1600 + self.opt.get("slack", 2400))
        PQ0 = [TMP[0:4], TMP[4:8]]
        PQ1 = [TMP[8:12], TMP[12:16]]
        tq = [TMP[16:20], TMP[20:24]]
        for u in range(2):
            c2 = vC2 if u == 0 else vC2b
            for h in range(2):
                self.phi_pair(acc(5, u)[2 * h:2 * h + 2], c2, True, tq[0])
                self.phi_pair(acc(6, u)[2 * h:2 * h + 2], c2, True, tq[1])
                e.V("v_cvt_pk_bf16_f32", PQ0[u][2 * h], tq[0][0], tq[1][0])
                e.V("v_cvt_pk_bf16_f32", PQ0[u][2 * h + 1], tq[0][1], tq[1][1])
            for h in range(2):
                self.phi_pair(acc(7, u)[2 * h:2 * h + 2], c2, True, tq[h])
                e.V("v_cvt_pk_bf16_f32", PQ1[u][h], tq[h][0], tq[h][1])
            e.V("v_mov_b32", PQ1[u][2], 0)
            e.V("v_mov_b32", PQ1[u][3], 0)
        self.bg_off()
        self.stamp("qepi")
        kvsum()
        lok, lre = e.newlabel("kvok"), e.newlabel("kvretry")
        e.branch("s_cbranch_scc0", lok)
        e.cond_begin()
        e.S("s_mov_b32", sCnt, 0)
        e.label(lre)
        e.misc("s_sleep 4")
        for _ in kvloads():
            pass
        kvsum()
        e.branch("s_cbranch_scc0", lok)
        e.S("s_add_u32", sCnt, sCnt, 1)
        e.S("s_cmp_lt_u32", sCnt, 0x10000)
        e.branch("s_cbranch_scc1", lre)
        e.cond_end()
        e.label(lok)
        self.stamp("kvgo")
        if p == 0 and opt.get("r2st", 2) == 1:
            for _ in w2:
                pass

        self.bg_on(900 + self.opt.get("slack", 2400))
        e.V("v_cvt_pk_bf16_f32", TMP[16], PL[0][0], PL[0][1])
        e.V("v_cvt_pk_bf16_f32", TMP[17], PL[0][2], PL[0][3])
        e.ds_write(vKvDst, TMP[16:18])
        e.wait_all_lg()
        e.barrier()
        FR = [ACC[40 + 4 * i:44 + 4 * i] for i in range(6)] + [TMP[16 + 4 * i:20 + 4 * i] for i in range(4)]
        for T in range(3):
            for ks in range(2):
                e.ds_read(FR[T * 2 + ks], vL16, IMG + (T * 2 + ks) * KB)
        for ks in range(2):
            e.ds_read(FR[6 + ks], vZ01, ks * 64)
            e.ds_read(FR[8 + ks], vZ2, ks * 64)
        oa = lambda T, u: ACC[(T * 2 + u) * 4:(T * 2 + u) * 4 + 4]
        ops = []

        def norm(u, packed):
            den = (oa(3, u)[0], oa(3, u)[2], oa(4, u)[0])
            for x in den:
                e.V("v_add_f32", x, vEps[0], x); yield
            for x in den:
                e.V("v_rcp_f32", x, x); yield
            for T in range(3):
                for h in range(2):
                    x = oa(T, u)[2 * h:2 * h + 2]
                    dn = oa(3, u)[2 * h:2 * h + 2] if T < 2 else oa(4, u)[0:2]
                    if packed:
                        e.V("v_pk_mul_f32", x, x, dn, mods="op_sel_hi:[1,0]"); yield
                    else:
                        e.V("v_mul_f32", x[0], x[0], dn[0]); yield
                        e.V("v_mul_f32", x[1], x[1], dn[0]); yield
            o4 = TMP[8 * u:8 * u + 4] if False else RT[4 * u:4 * u + 4]
            o2 = XE[u][0:2]
            for j in range(4):
                e.V("v_cvt_pk_bf16_f32", o4[j], oa(0, u)[j], oa(1, u)[j]); yield
            for h in range(2):
                e.V("v_cvt_pk_bf16_f32", o2[h], oa(2, u)[2 * h], oa(2, u)[2 * h + 1]); yield
            ops.extend(self.gstore([(o4, vAx[u], sA, 0), (o2, vOh, sB if u == 0 else sD, 0)], p == 0 or opt.get("osafe")))
            yield
        bg, e.bg = e.bg, None
        order = [(T, k) for k in range(2) for T in (3, 4, 0, 1, 2)]
        for T, k in order:
            e.mfma(oa(T, 0), FR[2 * T + k], (PQ0, PQ1)[k][0], oa(T, 0) if k else 0)
        e.S("s_add_u32", sA, sOo, OB[p])
        e.S("s_add_u32", sB, sOoh, OB[p])
        g0 = norm(0, False)
        for n_, (T, k) in enumerate(order):
            e.mfma(oa(T, 1), FR[2 * T + k], (PQ0, PQ1)[k][1], oa(T, 1) if k else 0)
            if n_ == 0:
                e.S("s_add_u32", sD, sOoh, OB[p] + 20 * KB)
            elif n_ < 9:
                next(g0)
                if n_ not in (2, 3):
                    next(g0)
        e.bg = bg
        for _ in g0:
            pass
        for _ in norm(1, True):
            pass
        self.bg_off()
        self.stamp("A3")
        def shadow():
            e.S("s_mul_i32", sB, sCG, 160)
            e.V("v_lshl_add_u32", TMP[2], vG, 4, sB)
            e.V("v_lshl_add_u32", TMP[3], vG, 3, sB)
            e.bload(ACC[40:44], TMP[2], SB2, 0, 0, cls=(800, 20, 0))
            e.bload(ACC[44:48], TMP[2], SB2, 0, 64, cls=(800, 20, 0))
            e.bload(ACC[48:50], TMP[3], SB2, 0, 128, cls=(800, 20, 0))
            if p == 0:
                self.unpack(RES, RES[10:20])
        self.handoff(4 * p + 2, ops, shadow, [(vAx[0], sOo, OB[p], 0), (vAx[1], sOo, OB[p], 0), (vOh, sOoh, OB[p], 0), (vOh, sOoh, OB[p] + 20 * KB, 0)])

    def phase64(self, p, kind):
        e = self.e
        opt = self.opt
        nks = 10 if kind == "O" else 27
        name = "A4" if kind == "O" else "B2"
        acc = lambda T, u: ACC[(u * 5 + T) * 4:(u * 5 + T) * 4 + 4]
        if kind == "O":
            al = self.ALoad(self, vAo, (sXr, OB[p]), nks)
        else:
            al = self.ALoad(self, vAh, (sHr, HB[p]), nks)
        al.upto(opt.get("adist", 4) - 1)
        xf = lambda ks, u: a(((ks % 20) * 2 + u) * 4, 4)
        if kind == "C":
            e.ds_read(TMP[2], vRF)
        i0 = self.seqstart[(name, p)]
        fb = 5 * nks - 3
        sst, sad = self.scratch(20, self.seq[i0 + fb][0])
        self.hold = sst
        stop = i0 + 5 * nks

        def mf(t, W, u):
            ks, T = divmod(t, 5)
            u = 1 - u
            c0 = RES[4 * T:4 * T + 4] if (kind == "O" and u == 0) else 0
            e.mfma(acc(T, u), W, xf(ks, u), acc(T, u) if ks else c0)

        def addr_gen():
            e.V("v_add_u32", TMP[0], sad, vXch); yield
            e.S("s_xor_b32", sA, sWave, 1); yield
            e.S("s_mul_i32", sA, sA, 5120); yield
            e.S("s_add_u32", sA, sA, sad); yield
            e.V("v_add_u32", TMP[1], sA, vL16); yield
            if kind == "C":
                e.V("v_mul_f32", TMP[2], TMP[2], TMP[2]); yield
            if not last:
                e.S("s_add_u32", sA, sOx, XB[xv]); yield
                e.S("s_add_u32", sB, sOxh, XB[xv]); yield
                e.S("s_add_u32", sD, sOst, STB[xv]); yield
        last = kind == "C" and p == 1
        xv = 2 * p + (1 if kind == "O" else 2)
        tg = None if last else (0, self.touch_gen([(vXs, sOx, XB[xv], 0), (vXs, sOx, XB[xv], 1024), (vXh, sOxh, XB[xv], 0), (vStW, sOst, STB[xv], 0)]))
        fl = [self.delay(20, addr_gen())]
        self.run_pass(5 * nks, mf, 5, xf, fl, late=tg, force_bar=fb, chunk=(opt.get("chunkO", 12) if kind == "O" else opt.get("chunkC", 12)), stop_reads=stop, aload=al,
                      mix=opt.get("mixO", 0) if kind == "O" else 0, tail=900 + self.opt.get("slack", 2400))
        self.stamp(name)
        self.bg_on(900 + self.opt.get("slack", 2400))
        assert sst + 20 <= self.freed
        for T in range(5):
            e.ds_write(TMP[0], acc(T, 1), T * KB)
        e.wait_all_lg()
        e.barrier()
        PT = TMP[4:24]
        for T in range(5):
            e.ds_read(PT[4 * T:4 * T + 4], TMP[1], T * KB)
        own = ACC[0:20]
        for h in range(10):
            x = own[2 * h:2 * h + 2]
            e.V("v_pk_add_f32", x, x, PT[2 * h:2 * h + 2])
            if kind == "C":
                e.V("v_pk_fma_f32", x, x, TMP[2:4], RES[2 * h:2 * h + 2], mods="op_sel_hi:[1,0,1]")
        PK = TMP[24:34]
        for a_ in range(2):
            for j in range(4):
                e.V("v_cvt_pk_bf16_f32", PK[4 * a_ + j], own[8 * a_ + j], own[8 * a_ + 4 + j])
        for h in range(2):
            e.V("v_cvt_pk_bf16_f32", PK[8 + h], own[16 + 2 * h], own[16 + 2 * h + 1])
        self.bg_off()
        if last:
            om = self.opt.get("outmod", "")
            e.bstore(PK[0:4], vOut, OUT, 0, 0, om)
            e.bstore(PK[4:8], vOut, OUT, 0, 64, om)
            e.bstore(PK[8:10], vOut4, OUT, 0, 128, om)
            self.stamp("end")
            return
        xv = 2 * p + (1 if kind == "O" else 2)
        ops = []
        ops += self.gstore([(PK[0:4], vXs, sA, 0), (PK[4:8], vXs, sA, 1024), (PK[8:10], vXh, sB, 0)])
        sm, sq, t0 = TMP[36], TMP[37], TMP[38]
        e.V("v_mov_b32", sm, 0)
        e.V("v_mov_b32", sq, 0)
        for j in range(10):
            e.V("v_dot2c_f32_bf16", sm, PK[j], vOne)
            e.V("v_dot2c_f32_bf16", sq, PK[j], PK[j])
        e.V("v_permlane32_swap_b32", sm, sq)
        e.V("v_add_f32", sm, sm, sq)
        e.V("v_mov_b32", t0, sm)
        e.V("v_permlane16_swap_b32", sm, t0)
        e.V("v_add_f32", sm, sm, t0)
        ops += self.gstore([(sm, vStW, sD, 0)])
        self.stamp(name + "epi")

        def shadow():
            self.unpack(RES, PK)
            if kind == "O":
                self.unpack(ACC[20:40], ACC[40:50])
                for h in range(10):
                    x = RES[2 * h:2 * h + 2]
                    e.V("v_pk_add_f32", x, x, ACC[20 + 2 * h:22 + 2 * h])
        self.handoff(4 * p + (3 if kind == "O" else 5), ops, shadow,
                     [(vStW, sOst, STB[xv], 0), (vXs, sOx, XB[xv], 0), (vXs, sOx, XB[xv], 1024), (vXh, sOxh, XB[xv], 0)])

    def phaseB1(self, p):
        e = self.e
        opt = self.opt
        xv = 2 * p + 1
        acc = lambda T, u: ACC[(T * 2 + u) * 4:(T * 2 + u) * 4 + 4]
        xf = lambda ks, u: a((ks * 2 + u) * 4, 4) if ks < 20 else XE[u]
        al = self.ALoad(self, vAx, (sXr, XB[xv]), 20)
        al.upto(opt.get("adist", 4) - 1)
        self.stats_loads(xv)
        stop = self.seqstart[("B2", p)]
        g0 = self.seq[stop][0] // 8 + RB // 8
        self.stage_plan = list(range(g0, g0 + (opt.get("nstage", 0) if p else 0)))

        def mf(t, W, u):
            ks, T = divmod(t, B1N)
            e.mfma(acc(T, u), W, xf(ks, u), acc(T, u) if ks else 0)
        tl = [(vHs, sOh, HB[p] + u * 54 * KB, a_ * KB) for a_ in range(3) for u in range(2)] + [(vHh, sOhh, HB[p] + u * 54 * KB, 0) for u in range(2)]
        sg = self.delay(opt.get("stdelay", 24), self.stats_gen(False))
        flb = [sg]
        if p == 0 and opt.get("keepb", 4):
            gb = self.capture_gen(self.segs[2][1] // 8 + opt.get("keepb0", 8), opt.get("keepb", 4), 12)
            next(gb)
            flb.append(gb)
        self.run_pass(21 * B1N, mf, B1N, xf, flb, late=(0, self.touch_gen(tl, p == 0)), stop_reads=stop, aload=al, must=sg, mix=opt.get("mixB", 0), tail=700 * (7 - B1N) + 300 + self.opt.get("slack", 2400))
        self.stamp("B1a")
        ops = []

        def epi(pairs, single):
            n = 0
            for u in range(2):
                sb = sD if u == 0 else sE
                e.S("s_add_u32", sb, sOh, HB[p] + u * 54 * KB); yield
                for a_ in pairs:
                    o = TMP[16 + 4 * (n % 4):20 + 4 * (n % 4)]
                    n += 1
                    for j in range(4):
                        x, y = acc(2 * a_, u)[j], acc(2 * a_ + 1, u)[j]
                        e.V("v_mul_f32_e64", x, x, f"|{x}|"); yield
                        e.V("v_mul_f32_e64", y, y, f"|{y}|"); yield
                        e.V("v_cvt_pk_bf16_f32", o[j], x, y); yield
                        e.V("v_pk_max_i16", o[j], o[j], 0); yield
                    ops.extend(self.gstore([(o, vHs, sb, a_ * KB)], p == 0 or opt.get("hsafe", 1) == 1 or (opt.get("hsafe", 1) == 2 and not single))); yield
            if single:
                for u in range(2):
                    o = TMP[32 + 2 * u:34 + 2 * u]
                    for j in range(4):
                        x = acc(6, u)[j]
                        e.V("v_mul_f32_e64", x, x, f"|{x}|"); yield
                    for h in range(2):
                        e.V("v_cvt_pk_bf16_f32", o[h], acc(6, u)[2 * h], acc(6, u)[2 * h + 1]); yield
                        e.V("v_pk_max_i16", o[h], o[h], 0); yield
                e.S("s_add_u32", sA, sOhh, HB[p])
                e.S("s_add_u32", sB, sOhh, HB[p] + 54 * KB)
                ops.extend(self.gstore([(TMP[32:34], vHh, sA, 0), (TMP[34:36], vHh, sB, 0)], p == 0 or opt.get("hsafe", 1) == 1))
                yield

        def mf2(t, W, u):
            ks, T = divmod(t, 7 - B1N)
            e.mfma(acc(B1N + T, u), W, xf(ks, u), acc(B1N + T, u) if ks else 0)
        self.run_pass(21 * (7 - B1N), mf2, 7 - B1N, xf, [epi(list(range(B1N // 2)), False)], stop_reads=stop, force_bar=21 * (7 - B1N) - 2, over=opt.get("b1over", 0), chunk=opt.get("chunkB", 24), tail=300 + self.opt.get("slack", 2400))
        self.stamp("B1b")
        for _ in epi(list(range(B1N // 2, 3)), True):
            pass
        self.stamp("B1epi")
        self.handoff(4 * p + 4, ops, None, tl)

    def gen(self):
        e = self.e
        e.reset_state()
        self.cInvD = s(63)
        self.dmaf = self.dma_filler()
        self.prologue()
        if self.opt.get("stamps"):
            e.memtime(sTm, True)
            e.V("v_writelane_b32", v(53), sTm[0], 62)
        self.startup()
        stop = self.opt.get("stop", 99)
        n = 0
        for p in range(2):
            for f in (lambda: self.phaseA(p), lambda: self.phase64(p, "O"), lambda: self.phaseB1(p), lambda: self.phase64(p, "C")):
                if n < stop:
                    f()
                n += 1
        if self.opt.get("stamps"):
            e.wait_all_vm()
            e.memtime(sTm, True)
            e.V("v_writelane_b32", v(53), sTm[0], 63)
            e.S("s_lshl_b32", sA, s(2), 2)
            e.S("s_add_u32", sA, sA, sWave)
            e.S("s_lshl_b32", sA, sA, 8)
            e.S("s_add_u32", sA, sA, STAMP)
            e.V("v_lshlrev_b32", TMP[1], 2, vLane)
            e.bstore(v(53), TMP[1], WS, sA)
        if self.opt.get("dbgst") is not None:
            skip = e.newlabel("nodbg")
            e.S("s_lshl_b32", sA, s(2), 2)
            e.S("s_add_u32", sA, sA, sWave)
            e.S("s_cmp_lg_u32", sA, 4 * self.opt.get("dbgwg", 77))
            e.branch("s_cbranch_scc1", skip)
            e.sload(s(84, 2), s(0, 2), 72)
            e.V("v_readlane_b32", sB, v(53), 0)
            e.V("v_subrev_u32", TMP[0], sB, v(53))
            e.V("v_subrev_u32", TMP[1], self.opt["dbgst"], vLane)
            e.V("v_cmp_gt_u32", VCC, 64 - self.opt["dbgst"], TMP[1])
            e.V("v_lshlrev_b32", TMP[1], 2, TMP[1])
            e.wait_all_lg()
            e.S("s_and_saveexec_b64", s(86, 2), VCC)
            e.misc(f"global_store_dword {TMP[1]}, {TMP[0]}, s[84:85]")
            e.S("s_mov_b64", EXEC, -1)
            e.label(skip)
        if self.opt.get("spin"):
            e.wait_all_vm()
            e.V("v_readfirstlane_b32", s(86), v(53))
            if self.opt.get("spinloc"):
                e.S("s_cmp_lg_u32", sLocal, 0)
                e.branch("s_cbranch_scc1", "spin_done")
            e.label("spin_loop")
            e.misc("s_memrealtime s[88:89]")
            e.misc("s_waitcnt lgkmcnt(0)")
            e.misc("s_sub_u32 s88, s88, s86")
            e.misc(f"s_cmp_lt_u32 s88, {self.opt['spin']}")
            e.misc("s_cbranch_scc1 spin_loop")
            e.label("spin_done")
        e.S("s_add_u32", sA, s(2), sWave)
        e.S("s_cmp_lg_u32", sA, 0)
        e.branch("s_cbranch_scc1", "main_end")
        e.S("s_add_u32", sA, sBase, 16)
        e.V("v_mov_b32", TMP[0], sA)
        e.V("v_mov_b32", TMP[1], EPOCH)
        e.S("s_mov_b64", EXEC, 1)
        e.bstore(TMP[0], TMP[1], WS, 0, 0, "sc1")
        e.label("main_end")
        e.misc("s_endpgm")
```

```python
from asmgen import *
from layout import *
from gen_prep import mk_srd, allreduce_g
import math

BIG = 0x40000000
LOG2E = 1.4426950408889634
LN2 = 0.6931471805599453

IMG = 0
ZT = 6144
RST = 6400
DUMMY = 6912
RING = 8192
RB = 152
LDS_BYTES = RING + RB * KB
FI = 8

WS, OUT, XIN, SB2 = s(8, 4), s(12, 4), s(16, 4), s(20, 4)
sWave, sR, sC, sCG, sRH, sKH, sW2048 = [s(24 + i) for i in range(7)]
sSeg = {"A": s(31), "O": s(32), "B": s(33), "C": s(34)}
sXr, sHr, sSTr, sFRL, sFRG, sFC = [s(35 + i) for i in range(6)]
sA, sB, sD, sE, sDm, sLd = [s(41 + i) for i in range(6)]
sMaskV = s(48, 2)
sCnt = s(50)
sTT = s(51)
sTm = s(52, 2)
sOx, sOxh, sOst, sOo, sOoh, sOh, sOhh, sKv = [s(54 + i) for i in range(8)]
sLocal, sX1 = s(47), s(62)
sStg = s(3)
sSel = [s(84), s(85)]
sOdd = s(86, 2)
vT16L = v(37)
vStg = v(55)
sNan = s(90, 2)
sBase = s(92)
sOk = s(94, 2)
SR1, SR2 = s(84, 4), s(96, 4)
PP = s(64, 16)
pOut, pWs = s(80, 2), s(82, 2)
vDum = v(49)

vLane, vN, vG, vL16 = v(1), v(2), v(3), v(4)
vW = [v(5), v(6), v(7)]
vK = [v(8), v(9), v(10)]
vDma = v(11)
vAx = [v(12), v(13)]
vAo = [v(14), v(15)]
vAh = [v(16), v(17)]
vSt, vStW, vKvSrc, vKvDst, vT16, vZ01, vZ2, vRT, vRW, vRF, vOut, vOut4, vOne = [v(18 + i) for i in range(13)]
vOh, vXs, vXh, vHs, vHh, vFl, vPollR, vPollC, vXch = [v(31 + i) for i in range(9)]
XE = [v(40, 4), v(44, 4)]
vC2 = v(48, 2)
vC2b = v(50, 2)
vLn2 = v(52, 2)
vEps = v(54, 2)
RT = v(56, 8)
ACC = v(64, 64)
FIFO = v(128, 4 * FI)
RES = v(160, 20)
B2F = v(180, 20)
TMP = v(200, 56)


def keepreg(k, h):
    if k < 12:
        return a(160 + 8 * k + 4 * h, 4)
    t = 2 * (k - 12) + h
    return B2F[4 * t:4 * t + 4] if t < 5 else TMP[40 + 4 * (t - 5):44 + 4 * (t - 5)]


class Main:
    def __init__(self, e, opt):
        self.e = e
        self.opt = opt
        self.kname = opt["kname"]
        self.nstamp = 0
        self.segs = []
        pos = 0
        for p in range(2):
            for k, n in (("A", NA), ("O", NO), ("B", NB), ("C", NC)):
                self.segs.append((k, pos, n))
                pos += n
        self.total = pos
        self.ngroups = pos // 8
        self.issued = 0
        self.dmaop = {}
        self.freed = 0
        self.hold = None
        self.visible = 0
        self.seq = []
        self.seqstart = {}
        for p in range(2):
            b = self.segs[4 * p + 0][1]
            self.seqstart[("A1", p)] = len(self.seq)
            self.seq += [(b + i, "W") for i in range(105)]
            self.seqstart[("A2", p)] = len(self.seq)
            self.seq += [(b + 105 + i, "W") for i in range(63)]
            b = self.segs[4 * p + 1][1]
            self.seqstart[("A4", p)] = len(self.seq)
            self.seq += [(b + 2 * i, "K") for i in range(50)]
            b = self.segs[4 * p + 2][1]
            self.seqstart[("B1a", p)] = len(self.seq)
            self.seq += [(b + i, "W") for i in range(21 * B1N)]
            self.seqstart[("B1b", p)] = len(self.seq)
            self.seq += [(b + 21 * B1N + i, "W") for i in range(147 - 21 * B1N)]
            b = self.segs[4 * p + 3][1]
            self.seqstart[("B2", p)] = len(self.seq)
            self.seq += [(b + 2 * i, "K") for i in range(135)]
        self.rd = 0
        self.cons = 0
        self.lastbar = 0
        self.gate = NA // 8
        self.stage_plan = []
        self.staged = {}
        self.stage_mid = None
        self.cap_hold = 1 << 20
        self.deferred = []
        self.spares = []
        self.last_scratch = (0, 0)
        self.restg = None
        self.capg = None
        self.own_end_phase = 0
        self.cap_ops = []
        self.cap_next = 1 << 20
        self.warn = []
        self.model = []
        self.own_end = 0
        self.deadline = lambda: 1 << 30

    def stamp(self, name):
        self.model.append((name, self.e.T))
        if self.opt.get("spinat") == name and not getattr(self, "_sp", 0):
            self._sp = 1
            self.e.wait_all_lg()
            self.e.memtime(sTm, True)
            self.e.V("v_mov_b32", v(53), sTm[0])
        if not self.opt.get("stamps"):
            return
        e = self.e
        e.wait_all_lg()
        e.memtime(sTm)
        e.V("v_writelane_b32", v(53), sTm[0], self.nstamp)
        self.opt.setdefault("stampnames", []).append(name)
        self.nstamp += 1
        assert self.nstamp <= 62

    def endpos(self, i):
        p, k = self.seq[i]
        return p + (2 if k == "K" else 1)

    def ldsaddr(self, pos):
        return RING + (pos % RB) * KB

    def can_issue(self):
        if self.issued >= min(self.ngroups, self.gate):
            return False
        lim = self.freed if self.hold is None else min(self.freed, self.hold)
        lim = min(lim, self.cap_hold)
        return 8 * (self.issued + 1) <= lim + RB

    def dma_group(self):
        e = self.e
        g = self.issued
        self.issued += 1
        pos = 8 * g
        if g in self.stage_plan:
            self.stage_plan = []
        if g in self.staged and self.opt.get("defer", 1) and 8 * g >= self.own_end_phase:
            self.deferred.append(g)
            self.dmaop[g] = None
            yield
            return
        if g in self.staged:
            self.finish_stage()
            k = self.staged[g]
            ad = self.ldsaddr(pos)
            e.V("v_add_u32", vStg, ad, vDma)
            yield
            e.ds_write(vStg, keepreg(k, 0), 0)
            yield
            self.dmaop[g] = e.ds_write(vStg, keepreg(k, 1), 1024)
            yield
            return
        for k, b, n in self.segs:
            if b <= pos < b + n:
                break
        e.S("s_add_u32", M0, sW2048, self.ldsaddr(pos))
        yield
        e.S("s_add_u32", sDm, sSeg[k], (pos - b) * KB)
        yield
        md = "nt" if k in self.opt.get("ntseg", "") else ""
        nvalid = min(8, {"A": 168, "O": 100, "B": 147, "C": 270}[k] - (pos - b)) if self.opt.get("skippad", 1) else 8
        for j in range(2):
            nw = (nvalid - j + 1) // 2
            if nw < 4:
                skip = e.newlabel("nopad")
                e.S("s_cmp_ge_u32", sWave, nw)
                e.branch("s_cbranch_scc1", skip)
                e.cond_begin()
            op = e.dma(vDma, WS, sDm, 1024 * j, md, cls=self.dcls(k))
            if nw < 4:
                e.cond_end()
                e.label(skip)
            if j:
                self.dmaop[g] = op
            yield

    def capture_gen(self, first, n, k0=0):
        e = self.e
        self.cap_hold = self.cap_next = 8 * first
        g1 = self.segs[4][1] // 8
        for k in range(k0, k0 + n):
            g = first + k - k0
            while self.visible < 8 * (g + 1):
                yield "idle"
            e.V("v_add_u32", vStg, self.ldsaddr(8 * g), vDma); yield
            e.ds_read(keepreg(k, 0), vStg, 0); yield
            self.cap_ops.append(e.ds_read(keepreg(k, 1), vStg, 1024))
            self.staged[g1 + g] = k
            self.cap_next = 8 * (g + 1) if k < k0 + n - 1 else 1 << 20
            yield

    def stage_group(self):
        e = self.e
        g = self.stage_plan.pop(0)
        k = len(self.staged) % 12
        self.staged[g] = k
        for sk, b, n in self.segs:
            if b <= 8 * g < b + n:
                break
        e.S("s_add_u32", sStg, sSeg[sk], (8 * g - b) * KB)
        yield
        e.bload(keepreg(k, 0), vDma, WS, sStg, 0, cls=self.dcls(sk))
        yield
        e.bload(keepreg(k, 1), vDma, WS, sStg, 1024, cls=self.dcls(sk))
        self.stage_mid = None
        yield

    def restore_gen(self, n):
        e = self.e
        while n > 0 and self.deferred:
            n -= 1
            g = self.deferred[0]
            k = self.staged[g]
            e.V("v_add_u32", vStg, self.ldsaddr(8 * g), vDma); yield
            old = 8 * g - RB
            clean = old + 8 <= self.last_scratch[0] or old >= self.last_scratch[1]
            if self.spares and self.opt.get("swap", 1) and clean and self.segof(8 * g) == "A":
                sp = self.spares.pop(0)
                e.ds_read(keepreg(sp, 0), vStg, 0); yield
                e.ds_read(keepreg(sp, 1), vStg, 1024); yield
                g2 = g - RB // 8 + self.segs[4][1] // 8
                assert self.segof(8 * g2) == "C"
                self.staged[g2] = sp
            e.ds_write(vStg, keepreg(k, 0), 0); yield
            self.dmaop[g] = e.ds_write(vStg, keepreg(k, 1), 1024)
            self.spares.append(k)
            self.deferred.pop(0)
            yield

    def restore(self, n):
        for _ in self.restore_gen(n):
            pass

    def finish_stage(self):
        while self.stage_mid:
            next(self.stage_mid)

    def stage_step(self):
        e = self.e
        if e.outstanding() >= self.opt.get("qmax", 13):
            return False
        if not self.stage_mid:
            if not self.stage_plan or self.can_issue() or self.mid_group():
                return False
            c = self.dcls("C")
            if e.predict(c) + c[2] > self.deadline():
                return False
            self.stage_mid = self.stage_group()
        next(self.stage_mid)
        return True

    def dcls(self, k):
        return (750, 80, self.opt.get("svcAB", 150)) if k in "AB" else (750, self.opt.get("svcOC", 92), 75)

    def dma_ok(self):
        e = self.e
        if self.mid_group():
            g = self.issued - 1
        elif self.can_issue():
            g = self.issued
        else:
            return False
        if g in self.staged:
            return True
        if e.outstanding() >= self.opt.get("qmax", 13):
            return False
        if self.mid_group() or 8 * g < self.own_end:
            return True
        c = self.dcls(self.segof(8 * g))
        return e.predict(c) + c[2] <= self.deadline()

    def dma_filler(self):
        while True:
            if self.can_issue():
                for _ in self.dma_group():
                    yield True
            else:
                yield False

    def flush_dma_partial(self):
        while self.issued > 0 and (self.issued - 1) not in self.dmaop:
            next(self.dmaf)

    def dma_all(self):
        self.flush_dma_partial()
        while self.can_issue():
            for _ in self.dma_group():
                pass

    def ring_barrier(self, need_idx, extra_ops=(), free_all=False):
        e = self.e
        need_idx = min(need_idx, len(self.seq))
        upto = self.endpos(need_idx - 1) if need_idx > 0 else 0
        g = (upto + 7) // 8
        self.flush_dma_partial()
        while self.issued < g:
            assert self.can_issue(), ("ring deadlock", self.issued, g, self.freed, self.hold)
            self.warn.append(f"forced dma group {self.issued} at seq {self.rd}")
            for _ in self.dma_group():
                pass
        ops = list(extra_ops)
        while self.deferred and self.deferred[0] < g:
            self.warn.append(f"forced restore {self.deferred[0]}")
            next(self.restg)
        for gg in range(self.visible // 8, g):
            assert gg not in self.deferred, gg
            ops.append(self.dmaop[gg])
        e.wait_ops(ops + self.cap_ops)
        self.cap_ops = []
        e.barrier()
        self.cap_hold = self.cap_next
        self.visible = max(self.visible, 8 * g)
        self.freed = self.seq[self.cons][0] if self.cons < len(self.seq) else self.total
        self.lastbar = self.rd

    def issue_read(self):
        e = self.e
        i = self.rd
        if i >= len(self.seq):
            return
        pos, k = self.seq[i]
        assert self.endpos(i) <= self.visible, ("read of invisible block", i, pos, self.visible)
        ad = self.ldsaddr(pos)
        base = (vW if k == "W" else vK)[ad >> 16]
        slot = i % FI
        e.ds_read(FIFO[4 * slot:4 * slot + 4], base, ad & 0xffff)
        self.rd += 1

    def prime(self):
        while self.rd < self.cons + FI and self.rd < len(self.seq) and self.endpos(self.rd) <= self.visible:
            self.issue_read()

    def run_pass(self, n, mf, ntile, xf, fillers=(), chunk=24, stop_reads=None, hooks=None,
                 aload=None, vrate=0.5, amix=(1, 0), over=0, force_bar=None, late=None, see_all=False, tail=2000, mix=0, must=None):
        e = self.e
        fillers = list(fillers)
        lim = stop_reads if stop_reads is not None else len(self.seq)
        st = {"next": 0, "k": 0, "t": 0}
        self.own_end = self.own_end_phase = self.endpos(lim - 1)
        self.deadline = lambda: e.T + (n - st["t"]) * 33 + tail

        i_first = self.cons

        def dma_need():
            g = self.issued - 1 if self.mid_group() else self.issued
            for i in range(self.cons, lim):
                if self.endpos(i) > 8 * g:
                    return i - i_first - FI - chunk
            return 1 << 20

        def one_vmem():
            na, nd = amix
            n0 = len(e.vm)
            if st.get("late"):
                if e.T < st["next"]:
                    return False
                try:
                    next(st["late"])
                except StopIteration:
                    st["late"] = None
                    return False
            else:
                na_ = (aload.n // 2) * ntile if (aload is not None and not aload.done) else 1 << 21
                nd_ = dma_need() if (self.mid_group() or self.can_issue()) else 1 << 22
                run = self.opt.get("run", 0)
                if run and na_ < 1 << 21 and nd_ < 1 << 20:
                    if st.get("cur") == "a" and na_ - run <= nd_:
                        nd_ = max(nd_, na_)
                    elif st.get("cur") == "d" and nd_ - run < na_:
                        na_ = max(na_, nd_ + 1)
                    st["cur"] = "a" if na_ <= nd_ else "d"
                urgent = min(na_, nd_) - st["t"] <= self.opt.get("horizon", 30) + run
                if e.T < st["next"] and not urgent:
                    return False
                if mix and na_ < 1 << 21 and st["k"] % mix == mix - 1 and na_ - st["t"] > self.opt.get("mixh", 10) and self.dma_ok():
                    next(self.dmaf)
                elif na_ <= nd_ and na_ < 1 << 21:
                    if e.outstanding() >= self.opt.get("qmax", 13) and not urgent:
                        return False
                    if aload.n // 2 >= st["t"] // ntile + aload.win - 1:
                        return False
                    aload.step()
                elif nd_ < 1 << 22 and (urgent or self.dma_ok()):
                    next(self.dmaf)
                elif not self.stage_step():
                    return False
            if len(e.vm) > n0:
                st["k"] += 1
                st["next"] = e.T + self.opt.get("vgap", 24)
            return True

        def fill(budget):
            while budget > 0:
                n0 = e.ninst
                did = one_vmem()
                if not did:
                    for f in list(fillers):
                        try:
                            if next(f) == "idle":
                                continue
                            did = True
                            break
                        except StopIteration:
                            fillers.remove(f)
                if not did:
                    return
                budget -= e.ninst - n0

        def waits_for(t):
            regs = []
            for tt in (t, t + 1):
                if tt < n:
                    ks = tt // ntile
                    if aload is not None:
                        aload.upto(ks)
                    idx = self.cons + (tt - t)
                    if idx < self.rd:
                        regs += FIFO[4 * (idx % FI):4 * (idx % FI) + 4].regs()
                    regs += xf(ks, 0).regs() + xf(ks, 1).regs()
            return e._pending(regs)

        e.wait_ops(waits_for(0))
        if aload is not None:
            self.stamp("1st")
            self.warn.append(f"fill {8 * self.issued - self.seq[self.cons][0]}")
        for t in range(n):
            if aload is not None and self.opt.get("midstamp") and t == n // 2:
                self.stamp("half")
            i = self.cons
            assert self.rd > i, ("fifo underrun", i)
            W = FIFO[4 * (i % FI):4 * (i % FI) + 4]
            st["t"] = t
            if must is not None and t == n - ntile - 2:
                for _ in must:
                    self.warn.append("must drained late")
            if t == int(n * self.opt.get("cfrac", 0.8)) and n > 30:
                fillers.insert(0, self.code_touch_gen())
            if hooks and hooks.get("add"):
                g_ = hooks["add"](t)
                if g_:
                    fillers.append(g_)
            ov = over if fillers else 0
            mf(t, W, 0)
            bar = self.rd < lim and (self.endpos(self.rd) > self.visible or self.rd - self.lastbar >= chunk)
            bar = bar or t == force_bar
            if late and t >= late[0] and not st.get("lateon") and (aload is None or aload.done) and 8 * self.issued >= min(self.own_end, self.endpos(min(i_first + n + FI, lim) - 1)) and not self.mid_group():
                st["late"] = late[1]
                st["lateon"] = True
                self.warn.append(f"late at {t}")
            if bar:
                ex, after = [], None
                if hooks and hooks.get("bar"):
                    ex, after = hooks["bar"](t)
                self.ring_barrier(lim if see_all else min(self.rd + chunk, lim), ex)
                if after:
                    after()
            else:
                fill(2 + ov)
            mf(t, W, 1)
            self.cons += 1
            used = 0
            if self.rd < lim:
                self.issue_read()
                used = 1
            pend = waits_for(t + 1) if (t % 2 == 1 and t + 1 < n) else []
            fill(2 + ov - used - (1 if pend else 0))
            if pend:
                e.wait_ops(waits_for(t + 1))
        if late and not st.get("lateon"):
            st["late"] = late[1]
        for f in fillers + ([st["late"]] if st.get("late") else []):
            if f is not self.capg:
                for _ in f:
                    pass

    def segof(self, pos):
        for k, b, n in self.segs:
            if b <= pos < b + n:
                return k
        return "O"

    def mid_group(self):
        return self.issued > 0 and (self.issued - 1) not in self.dmaop

    def dma_burst(self, maxgroups=99):
        e = self.e
        self.flush_dma_partial()
        gs = []
        while self.can_issue() and len(gs) < maxgroups:
            gs.append(self.issued)
            self.issued += 1
        for w in (1, 2, 3):
            mine = gs[w - 1::3]
            if not mine:
                continue
            skip = e.newlabel("noburst")
            e.S("s_cmp_lg_u32", sWave, w)
            e.branch("s_cbranch_scc1", skip)
            e.cond_begin()
            for g in mine:
                pos = 8 * g
                for k, b, n in self.segs:
                    if b <= pos < b + n:
                        break
                for h in range(2):
                    e.S("s_mov_b32", M0, self.ldsaddr(pos) + h * 4096)
                    e.S("s_add_u32", sDm, sSeg[k], (pos - b) * KB + h * 4096)
                    for q in range(4):
                        self.dmaop[g] = e.dma(vL16, WS, sDm, q * 1024)
            e.cond_end()
            e.label(skip)

    def prologue(self):
        e = self.e
        e.S("s_cmp_ge_u32", s(2), 256)
        e.branch("s_cbranch_scc1", "main_end")
        if self.opt.get("stamps"):
            e.V("v_mov_b32", v(53), 0)
        self.stamp("t0")
        if self.opt.get("spin") and not self.opt.get("spinat"):
            e.memtime(sTm, True)
            e.V("v_mov_b32", v(53), sTm[0])
        e.sload(PP, s(0, 2), 0)
        e.sload(pOut, s(0, 2), 64)
        e.sload(pWs, s(0, 2), 80)
        T0, T1, T2, T3 = TMP[48], TMP[49], TMP[50], TMP[51]
        e.S("s_getpc_b64", s(88, 2))
        e.label("main_pc")
        e.V("v_lshlrev_b32", T2, 5, v(0))
        e.S("s_sub_u32", s(88), s(88), "main_pc-" + self.kname)
        e.S("s_subb_u32", s(89), s(89), 0)
        e.misc(f"global_load_dword {vDum}, {T2}, s[88:89]")
        e._vm([], (2000, 30, 0))
        e.V("v_lshrrev_b32", T0, 6, v(0))
        e.V("v_and_b32", vLane, 63, v(0))
        e.V("v_readfirstlane_b32", sWave, T0)
        e.S("s_lshr_b32", sB, s(2), 3)
        e.S("s_mul_i32", sB, sB, 1792)
        e.S("s_add_u32", sB, sB, 8192)
        e.V("v_lshl_add_u32", T2, v(0), 3, sB)
        e.V("v_min_u32", T2, self.opt.get("code_bytes", 32768) - 4, T2)
        e.misc(f"global_load_dword {vDum}, {T2}, s[88:89]")
        e._vm([], (2000, 30, 0))
        e.V("v_lshlrev_b32", vL16, 4, vLane)
        e.V("v_and_b32", vN, 15, vLane)
        e.V("v_lshrrev_b32", vG, 4, vLane)
        self.vBig = TMP[52]
        e.V("v_mov_b32", self.vBig, BIG)
        e.S("s_and_b32", sA, s(2), 7)
        e.S("s_lshl_b32", sA, sA, 1)
        e.S("s_lshr_b32", sB, s(2), 7)
        e.S("s_add_u32", sR, sA, sB)
        e.S("s_bfe_u32", sC, s(2), (4 << 16) | 3)

    def gather(self, raw, srd, sstride, vaddr, srow, n=8):
        e = self.e
        e.S("s_mul_i32", sLd, srow, sstride)
        for i in range(n):
            e.bload(raw[i], vaddr, srd, sLd, 0, w="ushort", cls=(2500, 32, 0))
            if i < n - 1:
                e.S("s_add_u32", sLd, sLd, sstride)

    def pack(self, raw, n=4):
        for i in range(n):
            self.e.V("v_lshl_or_b32", raw[i], raw[2 * i + 1], 16, raw[2 * i])

    def colsum(self, regs, ex, vs, vt):
        e = self.e
        e.V("v_mov_b32", vs, 0)
        for r_ in regs:
            e.V("v_dot2c_f32_bf16", vs, r_, vOne)
        allreduce_g(e, vs, vt)
        e.V("v_sub_f32", vs, 0, vs)
        e.V("v_cvt_pk_bf16_f32", vt, vs, vs)
        e.V("v_lshlrev_b32", vt, 16, vt)
        e.V("v_sub_f32", vt, vs, vt)
        e.V("v_cvt_pk_bf16_f32", ex[0], vs, vt)
        e.V("v_and_b32", ex[1], "0xffff", ex[0])

    def x_dma(self):
        e = self.e
        V = [FIFO[12 + i] for i in range(10)]
        t0, t1 = FIFO[22], FIFO[23]
        e.S("s_mov_b32", sA, 52429)
        e.S("s_mov_b32", sB, 1280)
        for i in range(5):
            e.V("v_add_u32", t0, 64 * i, vLane)
            e.V("v_mul_u32_u24", t1, sA, t0)
            e.V("v_lshrrev_b32", t1, 22, t1)
            e.V("v_mul_u32_u24", V[i], 80, t1)
            e.V("v_sub_u32", t0, t0, V[i])
            e.V("v_lshlrev_b32", V[i], 1, t1)
            e.V("v_xor_b32", t0, t0, V[i])
            e.V("v_lshlrev_b32", t0, 4, t0)
            e.V("v_mad_u32_u24", V[i], t1, sB, t0)
            e.V("v_xor_b32", V[5 + i], 128, t0)
            e.V("v_mad_u32_u24", V[5 + i], t1, sB, V[5 + i])
            e.V("v_add_u32", V[5 + i], 4 * 1280, V[5 + i])
        sx, sl = s(90), s(95)
        e.S("s_lshl_b32", sx, sR, 2)
        e.S("s_add_u32", sx, sx, sWave)
        e.S("s_mul_i32", sx, sx, 32 * 1280)
        e.S("s_mul_i32", sl, sWave, 40 * KB)
        self.xops = []
        for q in range(4):
            for i in range(10):
                e.S("s_add_u32", M0, sl, (10 * q + i) * KB)
                if i == 0 and q:
                    e.S("s_add_u32", sx, sx, 8 * 1280)
                self.xops.append(e.dma(V[i], XIN, sx, 0, cls=(1000, 80, 16)))
                yield

    def x_frags(self, ops, side):
        e = self.e
        base, sg, gl, ad = FIFO[12], FIFO[13], FIFO[14], [FIFO[15], FIFO[16]]
        ONE = FIFO[24:28]
        SS, QQ = [ACC[0:4], ACC[4:8]], [ACC[8:12], ACC[12:16]]
        e.S("s_mul_i32", sB, sWave, 40 * KB)
        e.V("v_mul_u32_u24", base, 1280, vN)
        e.V("v_add_u32", base, sB, base)
        e.V("v_and_b32", sg, 7, vN)
        e.V("v_lshlrev_b32", sg, 1, sg)
        e.V("v_lshrrev_b32", gl, 1, vG)
        e.V("v_lshl_add_u32", gl, gl, 3, vG)
        for i in range(4):
            e.V("v_mov_b32", ONE[i], vOne)
        e.wait_ops(ops)
        for ks in range(20):
            t = ad[ks & 1]
            if ks < 16:
                e.V("v_add_u32", t, 10 * (ks >> 1) + 4 * (ks & 1), vG)
            else:
                e.V("v_add_u32", t, 20 * (ks - 16) + 8, gl)
            e.V("v_xor_b32", t, t, sg)
            e.V("v_lshl_add_u32", t, t, 4, base)
            for u in range(2):
                e.ds_read(a((ks * 2 + u) * 4, 4), t, u * 16 * 1280)
            next(side, None)
            if ks >= 3:
                for u in range(2):
                    x = a(((ks - 3) * 2 + u) * 4, 4)
                    e.mfma(SS[u], ONE, x, SS[u] if ks > 3 else 0)
                    e.mfma(QQ[u], x, x, QQ[u] if ks > 3 else 0)
        for ks in range(17, 20):
            for u in range(2):
                x = a((ks * 2 + u) * 4, 4)
                e.mfma(SS[u], ONE, x, SS[u])
                e.mfma(QQ[u], x, x, QQ[u])
        for _ in side:
            pass
        e.V("v_and_b32", ad[0], 3, vN)
        e.V("v_lshrrev_b32", ad[1], 2, vN)
        for u in range(2):
            sm, sq = TMP[4 * u], TMP[4 * u + 1]
            e.V("v_mov_b32", sq, QQ[u][0])
            for j in range(1, 4):
                e.V("v_cmp_eq_u32", VCC, j, ad[0])
                e.V("v_cndmask_b32", sq, sq, QQ[u][j], VCC)
            e.V("v_cmp_eq_u32", VCC, ad[1], vG)
            e.V("v_cndmask_b32", sq, 0, sq, VCC)
            e.V("v_mov_b32", sm, SS[u][0])
            allreduce_g(e, sq, TMP[4 * u + 2])

    def lds_init(self):
        e = self.e
        e.V("v_lshlrev_b32", FIFO[12], 4, v(0))
        Z = FIFO[24:28]
        for j in range(4):
            e.V("v_mov_b32", Z[j], 0)
        e.ds_write(FIFO[12], Z, 0)
        e.ds_write(FIFO[12], Z, 4096)

    def startup(self):
        e = self.e
        vBig = self.vBig
        RAW1, EX = ACC[0:20], ACC[20:24]
        RAW2 = TMP[8:40]
        vCol, vReg, vLeft, vT0, vT1, vSum, vLd = [FIFO[i] for i in range(7)]
        vA0, vA1, vA2, vSt2, vBias = RES[8], RES[9], B2F[8], B2F[9], ACC[38]
        sT, sP = s(7), s(93)
        sStr = s(56)
        T0, T1, T2, T3 = TMP[48], TMP[49], TMP[50], TMP[51]
        e.S("s_lshl_b32", sA, sR, 4)
        e.S("s_add_u32", sA, sA, sC)
        e.S("s_lshl_b32", sA, sA, 2)
        e.S("s_add_u32", sA, sA, sWave)
        e.S("s_mul_i32", sA, sA, 2560)
        e.V("v_min_u32", T1, 19, vLane)
        e.V("v_lshlrev_b32", T1, 7, T1)
        mk_srd(e, XIN, PP[0:2], XSZ)
        e.touch(vDum, T1, XIN, sA, 0, cls=(2000, 30, 0))
        self.stamp("issx")
        e.S("s_lshr_b32", sP, sR, 1)
        e.S("s_and_b32", sT, sR, 1)
        e.S("s_lshl_b32", sT, sT, 2)
        e.S("s_add_u32", sT, sT, sWave)
        e.S("s_mov_b32", s(4), (656 << 20) | (660 << 10) | 640)
        e.S("s_mov_b32", s(5), 0)
        e.S("s_mul_i32", sA, sT, 10)
        e.S("s_lshr_b32", sA, s(4), sA)
        e.S("s_and_b32", sA, sA, 1023)
        for t, val in ((3, 1280), (4, 1300), (5, 0), (6, 1), (7, 32)):
            e.S("s_cmp_eq_u32", sT, t)
            e.S("s_cselect_b32", sA, val, sA)
        e.S("s_mul_i32", sB, sC, 40)
        e.S("s_add_u32", sA, sA, sB)
        e.V("v_add_u32", vCol, sA, vN)
        e.V("v_add_u32", vT0, vCol, vN)
        e.S("s_sub_u32", sB, sT, 5)
        e.S("s_cmp_lt_u32", sB, 2)
        e.S("s_cselect_b64", VCC, -1, 0)
        e.V("v_cndmask_b32", vCol, vCol, vT0, VCC)
        e.V("v_lshrrev_b32", vT0, 3, vN)
        e.V("v_mul_u32_u24", vT0, 632 - 32, vT0)
        e.V("v_lshrrev_b32", vT1, 2, vN)
        e.V("v_lshl_add_u32", vT0, vT1, 4, vT0)
        e.V("v_add3_u32", vT0, vT0, vN, sA)
        e.S("s_cmp_eq_u32", sT, 2)
        e.S("s_cselect_b64", VCC, -1, 0)
        e.V("v_cndmask_b32", vCol, vCol, vT0, VCC)
        e.V("v_lshlrev_b32", vCol, 1, vCol)
        e.S("s_cmp_eq_u32", sT, 7)
        e.S("s_cselect_b32", sB, 8, 16)
        e.V("v_cmp_le_u32", VCC, sB, vN)
        e.S("s_mov_b32", sStr, 3840)
        e.V("v_cndmask_b32", vCol, vCol, vBig, VCC)
        e.S("s_mov_b32", sD, 8 * 3840)
        e.V("v_mad_u32_u24", vReg, vG, sD, vCol)
        e.V("v_and_b32", vT0, 1, vG)
        e.V("v_lshrrev_b32", vT1, 1, vG)
        e.V("v_lshl_add_u32", vLd, vT0, 1, vT1)
        e.S("s_mov_b32", sD, 4 * 3840)
        e.V("v_mad_u32_u24", vLeft, vLd, sD, vCol)
        mk_srd(e, SR1, PP[2:4], D * 3 * D * 2)
        e.S("s_mul_i32", sB, sP, 80)
        self.gather(RAW1[0:8], SR1, sStr, vReg, sB)
        e.S("s_add_u32", sA, sB, 32)
        self.gather(RAW1[8:16], SR1, sStr, vReg, sA)
        e.S("s_add_u32", sA, sB, 64)
        self.gather(RAW1[16:20], SR1, sStr, vLeft, sA, 4)
        self.stamp("iss1")
        def r2touch():
            e.S("s_lshl_b32", sA, s(2), 2)
            e.S("s_add_u32", sA, sA, sWave)
            e.V("v_min_u32", T0, 17, vLane)
            e.V("v_lshlrev_b32", T0, 7, T0)
            e.S("s_mul_i32", sB, sA, 2160)
            mk_srd(e, SR2, PP[8:10], F * D * 2)
            e.touch(vDum, T0, SR2, sB, 0, cls=(2000, 30, 0))
            mk_srd(e, SR2, PP[12:14], F * D * 2)
            e.touch(vDum, T0, SR2, sB, 0, cls=(2000, 30, 0))
            e.V("v_min_u32", T0, 7 * 128, T0)
            mk_srd(e, SR2, PP[4:6], D * D * 2)
            e.S("s_mul_i32", sB, sA, 800)
            e.touch(vDum, T0, SR2, sB, 0, cls=(2000, 30, 0))
        if self.opt.get("r2touch", 3) == 1:
            r2touch()
        if self.opt.get("wsoff"):
            e.S("s_add_u32", pWs[0], pWs[0], self.opt["wsoff"] << 20)
            e.S("s_addc_u32", pWs[1], pWs[1], 0)
        mk_srd(e, WS, pWs, WS_USED)
        e.sload(sBase, pWs, EPOCH)
        e.S("s_mov_b32", sA, "0x3f803f80")
        e.V("v_mov_b32", vOne, sA)
        e.S("s_and_b32", sCG, sC, 7)
        e.S("s_lshr_b32", sRH, sC, 3)
        if self.opt.get("r2touch", 0) == 3:
            r2touch()
        mk_srd(e, SB2, PP[14:16], D * 2)
        if not self.opt.get("l2first", 1):
            self.prologue2()
            self.stamp("pro2")
        sU, sP, sStr, sJ = s(88), s(89), s(100), s(101)
        rows = [s(3 + i) for i in range(4)]
        D2 = [s(64), s(65), s(66), s(67)]
        sDB, sDX = s(70), s(71)
        vSel0, vSel1 = vA1, vA2
        mk_srd(e, SR1, PP[10:12], F * 2)
        e.S("s_lshl_b32", sJ, sRH, 4)
        e.S("s_add_u32", sJ, sJ, sR)
        if self.opt.get("bal", 1):
            e.S("s_cmp_eq_u32", sJ, 15)
            e.S("s_cselect_b32", sA, 39, 127)
            e.S("s_mul_i32", sJ, sJ, 3)
            e.S("s_add_u32", sJ, sJ, sWave)
            e.S("s_add_u32", sJ, sJ, 39)
            e.S("s_cmp_ge_u32", sJ, 97)
            e.S("s_cselect_b32", sB, 97, 0)
            e.S("s_sub_u32", sJ, sJ, sB)
            e.S("s_cmp_eq_u32", sWave, 0)
            e.S("s_cselect_b32", sJ, sA, sJ)
        else:
            e.S("s_lshl_b32", sJ, sJ, 2)
            e.S("s_add_u32", sJ, sJ, sWave)
        e.V("v_lshrrev_b32", vT0, 1, vG)
        e.V("v_and_b32", vT1, 1, vG)
        e.V("v_mov_b32", vSt2, vL16)
        e.S("s_mov_b32", sDX, BIG)
        lo, lc, lj = e.newlabel("job_wo"), e.newlabel("job_w2"), e.newlabel("job_go")

        def unit(sbase, nu, stride, ca, cb, nreg, dB):
            e.S("s_lshl_b32", sA, sU, 5)
            e.S("s_add_u32", sA, sA, sbase)
            e.S("s_lshl_b32", sA, sA, 1)
            e.S("s_mov_b32", sDB, dB)
            e.S("s_cmp_lt_u32", sU, nu)
            e.S("s_cselect_b64", VCC, -1, 0)
            e.S("s_cselect_b32", sDB, sDB, BIG)
            e.V("v_lshlrev_b32", vCol, 2, vN)
            e.V("v_and_b32", vReg, 14, vN)
            e.V("v_lshlrev_b32", vReg, 1, vReg)
            e.V("v_cndmask_b32", vCol, vReg, vCol, VCC)
            e.V("v_add_u32", vCol, sA, vCol)
            e.V("v_and_b32", vReg, 1, vN)
            e.V("v_cndmask_b32", vReg, vReg, 0, VCC)
            e.S("s_mov_b32", sA, "0x02020202")
            e.V("v_mul_lo_u32", vReg, vReg, sA)
            e.V("v_add_u32", vSel0, "0x05040100", vReg)
            e.S("s_mov_b32", sStr, stride)
            e.S("s_mov_b32", sD, 8 * stride)
            e.V("v_mul_u32_u24", vReg, sD, vG)
            e.S("s_mov_b32", sD, ca * stride)
            e.V("v_mul_u32_u24", vLeft, sD, vT0)
            e.S("s_mov_b32", sD, cb * stride)
            e.V("v_mad_u32_u24", vLeft, vT1, sD, vLeft)
            e.S("s_cmp_lt_u32", sP, nreg)
            e.S("s_cselect_b64", VCC, -1, 0)
            e.V("v_cndmask_b32", vA0, vLeft, vReg, VCC)

        def split_dests(half):
            for b in range(4):
                e.S("s_lshl_b32", sA, sP, 2)
                e.S("s_add_u32", sA, sA, b)
                e.S("s_mul_i32", sD, sA, 10)
                e.S("s_cmp_ge_u32", sA, half)
                e.S("s_cselect_b32", sB, 10 * half - 1, 0)
                e.S("s_sub_u32", sD, sD, sB)
                e.S("s_add_u32", sD, sD, sE)
                e.S("s_lshl_b32", D2[b], sD, 10)
                if half == 27 and b >= 2:
                    e.S("s_cmp_ge_u32", sA, 54)
                    e.S("s_cselect_b32", D2[b], BIG, D2[b])

        def div3(dq, dr, src):
            e.S("s_mul_i32", dq, src, 43691)
            e.S("s_lshr_b32", dq, dq, 17)
            e.S("s_mul_i32", sA, dq, 3)
            e.S("s_sub_u32", dr, src, sA)

        e.S("s_cmp_ge_u32", sJ, 55)
        e.branch("s_cbranch_scc1", lc)
        e.S("s_cmp_ge_u32", sJ, 40)
        e.branch("s_cbranch_scc1", lo)
        e.cond_begin()
        mk_srd(e, SR2, PP[8:10], D * F * 2)
        e.S("s_and_b32", sU, sJ, 3)
        e.S("s_lshr_b32", sP, sJ, 2)
        e.S("s_cmp_ge_u32", sP, 5)
        e.S("s_cselect_b32", sA, 5, 0)
        e.S("s_cselect_b32", sJ, 8, 0)
        e.S("s_sub_u32", sP, sP, sA)
        e.S("s_add_u32", sJ, sJ, sCG)
        e.S("s_mul_i32", sE, sJ, 112)
        e.S("s_max_u32", sB, sJ, 12)
        e.S("s_sub_u32", sB, sB, 12)
        e.S("s_lshl_b32", sB, sB, 4)
        e.S("s_sub_u32", sE, sE, sB)
        unit(sE, 3, 3456, 80, 8, 4, 1024)
        e.S("s_lshl_b32", sA, sU, 4)
        e.S("s_add_u32", sA, sA, sJ)
        e.S("s_cmp_ge_u32", sA, 3 * 16 + 12)
        e.S("s_cselect_b64", VCC, -1, 0)
        e.V("v_cndmask_b32", vCol, vCol, vBig, VCC)
        for b in range(4):
            e.S("s_mul_i32", sA, sP, 160)
            e.S("s_add_u32", sA, sA, 80 * (b >> 1) + 32 * (b & 1))
            e.S("s_cmp_eq_u32", sP, 4)
            e.S("s_cselect_b32", rows[b], 160 * b + 64, sA)
        e.S("s_cmp_lt_u32", sU, B1N // 2)
        e.S("s_cselect_b32", s(79), B1N, 7 - B1N)
        e.S("s_cselect_b32", sE, 0, 20 * B1N)
        e.S("s_lshl_b32", sA, sU, 1)
        e.S("s_add_u32", sE, sE, sA)
        e.S("s_mul_i32", sB, sJ, NB)
        e.S("s_add_u32", sE, sE, sB)
        e.S("s_add_u32", sE, sE, WB // KB)
        for b in range(4):
            e.S("s_lshl_b32", sA, sP, 2)
            e.S("s_add_u32", sA, sA, b)
            e.S("s_mul_i32", sA, sA, s(79))
            e.S("s_add_u32", sA, sA, sE)
            e.S("s_lshl_b32", D2[b], sA, 10)
        e.S("s_mul_i32", sD, s(79), 20)
        e.S("s_add_u32", sD, sD, sE)
        e.S("s_lshl_b32", sDX, sD, 10)
        e.branch("s_branch", lj)
        e.cond_end()
        e.label(lo)
        e.cond_begin()
        mk_srd(e, SR2, PP[4:6], D * D * 2)
        e.S("s_sub_u32", sJ, sJ, 40)
        div3(sP, sU, sJ)
        e.S("s_mul_i32", sE, sCG, 80)
        unit(sE, 2, 1280, 80, 40, 4, 2048)
        for b in range(4):
            e.S("s_mul_i32", sA, sP, 160)
            e.S("s_add_u32", sA, sA, 40 * b)
            e.S("s_cmp_eq_u32", sP, 4)
            e.S("s_cselect_b32", rows[b], 160 * b + 32, sA)
        e.S("s_mul_i32", sE, sCG, NO)
        e.S("s_add_u32", sE, sE, WO // KB)
        e.S("s_lshl_b32", sA, sU, 2)
        e.S("s_add_u32", sE, sE, sA)
        split_dests(10)
        e.branch("s_branch", lj)
        e.cond_end()
        e.label(lc)
        e.cond_begin()
        mk_srd(e, SR2, PP[12:14], F * D * 2)
        e.S("s_sub_u32", sJ, sJ, 55)
        div3(sP, sU, sJ)
        e.S("s_mul_i32", sE, sCG, 80)
        unit(sE, 2, 1280, 112, 8, 12, 2048)
        e.S("s_cmp_ge_u32", sP, 14)
        e.S("s_cselect_b64", VCC, -1, 0)
        e.V("v_cndmask_b32", vCol, vCol, vBig, VCC)
        e.V("v_cndmask_b32", vSt2, vSt2, vBig, VCC)
        e.S("s_min_u32", sP, sP, 13)
        for b in range(4):
            e.S("s_lshl_b32", sD, sP, 2)
            e.S("s_add_u32", sD, sD, b)
            e.S("s_mul_i32", sA, sD, 43691)
            e.S("s_lshr_b32", sA, sA, 17)
            e.S("s_lshl_b32", sA, sA, 4)
            e.S("s_min_u32", sA, sA, 192)
            e.S("s_lshl_b32", sB, sD, 5)
            e.S("s_add_u32", sA, sA, sB)
            e.S("s_mul_i32", sB, sD, 224)
            e.S("s_sub_u32", sB, sB, 224 * 48 - 96)
            e.S("s_cmp_ge_u32", sD, 48)
            e.S("s_cselect_b32", rows[b], sB, sA)
        e.S("s_mul_i32", sE, sCG, NC)
        e.S("s_add_u32", sE, sE, WC // KB)
        e.S("s_lshl_b32", sA, sU, 2)
        e.S("s_add_u32", sE, sE, sA)
        split_dests(27)
        e.cond_end()
        e.label(lj)
        e.V("v_add_u32", vA0, vA0, vCol)
        e.S("s_cmp_lt_u32", sP, 2)
        e.S("s_cselect_b64", VCC, -1, 0)
        e.V("v_cndmask_b32", vBias, vBig, vCol, VCC)
        e.V("v_mov_b32", vSel1, "0x07060302")
        e.V("v_add_u32", vT0, sP, vG)
        e.V("v_lshrrev_b32", vT1, 1, vT0)
        e.V("v_lshlrev_b32", vLd, 4, vN)
        e.V("v_lshl_add_u32", vLd, vT1, 8, vLd)
        e.V("v_and_b32", vT0, 1, vT0)
        e.V("v_lshl_add_u32", vLd, vT0, 3, vLd)
        e.S("s_cmp_eq_u32", sP, 4)
        e.S("s_cselect_b32", sA, 4, 1)
        e.V("v_cmp_gt_u32", VCC, sA, vG)
        e.V("v_cndmask_b32", vLd, vBig, vLd, VCC)
        e.S("s_lshl_b32", sA, sC, 4)
        e.S("s_add_u32", sA, sA, sR)
        e.S("s_mul_i32", sA, sA, KVSZ)
        e.S("s_mul_i32", sB, sWave, KVSZ // 4)
        e.S("s_add_u32", sA, sA, sB)
        e.S("s_add_u32", s(79), sA, KVB[1])
        self.stamp("dec2")
        def r2_loads():
            for b in range(4):
                e.S("s_mul_i32", sE, rows[b], sStr); yield
                for i in range(8):
                    e.bload(RAW2[8 * b + i], vA0, SR2, sE, 0, cls=(1500, 32, 0)); yield
                    if i < 7:
                        e.S("s_add_u32", sE, sE, sStr); yield
            e.bload(vBias, vBias, SR1, 0, 0, cls=(1500, 10, 0)); yield

        self.r2_loads = r2_loads()
        if self.opt.get("l2first", 1):
            for _ in self.r2_loads:
                pass
            self.stamp("iss2a")
            self.prologue2()
            self.stamp("pro2")
        sP2 = sP
        wT0, wT1, wLd, wSum = FIFO[8], FIFO[9], FIFO[10], FIFO[11]
        sT, sP = s(7), s(93)
        ops1 = []
        MK = ACC[28:32]
        self.stamp("xst")
        e.S("s_cmp_lt_u32", sT, 5)
        e.S("s_cselect_b32", sE, 5, 3)
        e.S("s_cselect_b32", sA, 0, 100)
        e.S("s_add_u32", sA, sA, sT)
        e.S("s_mul_i32", sB, sC, NA)
        e.S("s_add_u32", sA, sA, sB)
        e.S("s_add_u32", sA, sA, WA // KB)
        e.S("s_lshl_b32", sA, sA, 10)
        e.S("s_lshl_b32", sE, sE, 10)
        e.S("s_mul_i32", sB, sP, sE)
        e.S("s_lshl_b32", sB, sB, 1)
        e.S("s_add_u32", sB, sB, sA)
        self.pack(RAW1[0:8])
        ops1.append(e.bstore(RAW1[0:4], vL16, WS, sB, 0, "sc1", cls=(1000, 70, 0)))
        e.S("s_add_u32", sB, sB, sE)
        self.pack(RAW1[8:16])
        ops1.append(e.bstore(RAW1[8:12], vL16, WS, sB, 0, "sc1", cls=(1000, 70, 0)))
        e.S("s_lshr_b32", sB, sP, 1)
        e.S("s_add_u32", sB, sB, 16)
        e.S("s_mul_i32", sB, sB, sE)
        e.S("s_add_u32", sB, sB, sA)
        e.S("s_and_b32", sD, sP, 1)
        e.S("s_lshl_b32", s(95), sD, 9)
        e.S("s_add_u32", sB, sB, s(95))
        e.V("v_lshlrev_b32", wT0, 8, vG)
        e.V("v_and_b32", wT0, 256, wT0)
        e.V("v_lshl_add_u32", wT0, vN, 4, wT0)
        e.V("v_lshrrev_b32", wT1, 1, vG)
        e.V("v_lshl_add_u32", wLd, wT1, 3, wT0)
        self.pack(RAW1[16:20], 2)
        ops1.append(e.bstore(RAW1[16:18], wLd, WS, sB, 0, "sc1", cls=(1000, 40, 0)))
        self.colsum([RAW1[i] for i in (0, 1, 2, 3, 8, 9, 10, 11, 16, 17)], EX, wSum, wT0)
        e.S("s_mul_i32", sB, sE, 20)
        e.S("s_add_u32", sB, sB, sA)
        e.S("s_lshr_b32", sA, sP, 1)
        e.S("s_lshl_b32", sA, sA, 8)
        e.S("s_add_u32", sB, sB, sA)
        e.S("s_lshl_b32", sD, sD, 3)
        e.S("s_add_u32", sB, sB, sD)
        e.S("s_mov_b64", EXEC, "0xffff")
        ops1.append(e.bstore(EX[0:2], vL16, WS, sB, 0, "sc1", cls=(1000, 20, 0)))
        e.S("s_mov_b64", EXEC, -1)
        self.stamp("r1")
        if self.opt.get("r2touch", 3) == 2:
            r2touch()
        for i in range(4):
            e.V("v_mov_b32", MK[i], -1)
        e.S("s_lshl_b32", sA, sC, 4)
        e.S("s_add_u32", sA, sA, sR)
        e.S("s_mul_i32", sA, sA, KVSZ)
        e.S("s_mul_i32", sB, sWave, KVSZ // 4)
        e.S("s_add_u32", sA, sA, sB)
        e.S("s_add_u32", sA, sA, KVB[0])
        e.S("s_mov_b64", EXEC, "0xfffffff")
        ops1.append(e.bstore(MK, vL16, WS, sA, 0, "sc1", cls=(1000, 40, 0)))
        e.S("s_mov_b64", EXEC, -1)
        sP = sP2
        self.ops2 = []

        vs, vt, MK = TMP[48], TMP[49], TMP[40:44]
        EV = ACC[40:56]

        def r2_pack():
            for b in range(4):
                raw = RAW2[8 * b:8 * b + 8]
                for i in range(4):
                    e.V("v_perm_b32", EV[4 * b + i], raw[2 * i + 1], raw[2 * i], vSel0)
                for i in range(4):
                    e.V("v_perm_b32", raw[i], raw[2 * i + 1], raw[2 * i], vSel1)
            for i in range(4):
                e.V("v_mov_b32", MK[i], -1)
            e.V("v_cmp_eq_u32", sNan, 0, vG)
            for h in range(2):
                ex = TMP[44 + 2 * h:46 + 2 * h]
                self.colsum([EV[i] for i in range(16)] if h == 0 else [RAW2[8 * b + i] for b in range(4) for i in range(4)], ex, vs, vt)
                e.V("v_perm_b32", vt, vBias, vBias, vSel0 if h == 0 else vSel1)
                e.V("v_and_b32", vt, "0xffff0000", vt)
                e.V("v_or_b32", ex[1], ex[1], vt)
                e.V("v_cndmask_b32", ex[0], 0, ex[0], sNan)
                e.V("v_cndmask_b32", ex[1], 0, ex[1], sNan)
            e.V("v_mov_b32", vSel0, vLd)
            yield

        def r2_stores():
            for b in range(4):
                self.ops2.append(e.bstore(EV[4 * b:4 * b + 4], vSt2, WS, D2[b], 0, self.opt.get("r2mod", "sc1"), cls=(1000, 70, 0)))
                yield
                e.S("s_add_u32", sA, D2[b], sDB)
                self.ops2.append(e.bstore(RAW2[8 * b:8 * b + 4], vSt2, WS, sA, 0, self.opt.get("r2mod", "sc1"), cls=(1000, 70, 0)))
                yield
            e.S("s_mov_b64", EXEC, "0xfffffff")
            self.ops2.append(e.bstore(MK, vL16, WS, s(79), 0, "sc1", cls=(1000, 40, 0)))
            e.S("s_mov_b64", EXEC, -1)
            yield
            for h in range(2):
                if h:
                    e.S("s_add_u32", sDX, sDX, sDB)
                self.ops2.append(e.bstore(TMP[44 + 2 * h:46 + 2 * h], vSel0, WS, sDX, 0, "sc1", cls=(1000, 20, 0)))
                yield
        self.r2_stores = r2_stores
        self.r2_pack = r2_pack()
        npre = self.opt.get("r2pre", 50)
        for _ in self.r2_loads:
            npre -= 1
            if npre <= 0:
                break
        for _ in self.r2_pack:
            pass
        xg = self.x_dma()
        for _ in range(self.opt.get("xpre", 8)):
            next(xg)
        self.stamp("iss2")
        e.wait_ops(ops1)
        e.barrier()
        self.flag("col", 1, ACC[34], ACC[35])
        self.stamp("w1flag")
        for _ in xg:
            pass
        sg_ = r2_stores()
        for _ in range(self.opt.get("s2pre", 0)):
            next(sg_, None)
        self.stamp("r2")
        self.x_frags(self.xops, sg_)
        self.late_loads()
        e.wait_all_lg()
        e.barrier()
        self.lds_init()
        e.wait_all_lg()
        self.al0 = True
        self.stamp("xfr")
        self.poll("col", 1)
        e.barrier()
        self.stamp("w1go")

    def w2_gen(self):
        e = self.e
        t = RES[0]
        e.V("v_bfe_u32", t, vLane, 4, 1); yield
        e.V("v_lshl_add_u32", t, t, 11, vFl); yield
        e.S("s_lshl_b32", s(4), sCG, 8); yield
        e.S("s_add_u32", s(4), s(4), FLG_C); yield
        e.bload(RES[1], t, WS, s(4), 0, "sc1", cls=(900, 10, 0)); yield
        for _ in range(self.opt.get("w2wait", 50)):
            yield "idle"
        e.S("s_add_u32", s(5), sBase, 2); yield
        lok, lre = e.newlabel("w2ok"), e.newlabel("w2retry")
        e.V("v_cmp_ne_u32", VCC, s(5), RES[1])
        e.S("s_cmp_eq_u64", VCC, 0)
        e.branch("s_cbranch_scc1", lok)
        e.cond_begin()
        e.S("s_mov_b32", sCnt, 0)
        e.label(lre)
        e.misc("s_sleep 4")
        e.bload(RES[1], t, WS, s(4), 0, "sc1")
        e.V("v_cmp_ne_u32", VCC, s(5), RES[1])
        e.S("s_cmp_eq_u64", VCC, 0)
        e.branch("s_cbranch_scc1", lok)
        e.S("s_add_u32", sCnt, sCnt, 1)
        e.S("s_cmp_lt_u32", sCnt, 0x20000)
        e.branch("s_cbranch_scc1", lre)
        e.cond_end()
        e.label(lok)
        self.gate = 1 << 20
        yield

    def prologue2(self):
        e = self.e
        T0, T1, T2, T3, T4, T5 = [TMP[40 + i] for i in range(6)]
        mk_srd(e, OUT, pOut, XSZ)
        e.S("s_and_b32", sKH, sWave, 1)
        e.S("s_lshl_b32", sW2048, sWave, 11)
        e.S("s_mul_i32", sA, sC, NA * KB)
        e.S("s_add_u32", sSeg["A"], sA, WA)
        e.S("s_mul_i32", sA, sCG, NO * KB)
        e.S("s_add_u32", sSeg["O"], sA, WO)
        e.S("s_mul_i32", sA, sC, NB * KB)
        e.S("s_add_u32", sSeg["B"], sA, WB)
        e.S("s_mul_i32", sA, sCG, NC * KB)
        e.S("s_add_u32", sSeg["C"], sA, WC)
        e.V("v_add_u32", vDma, sW2048, vL16)
        e.S("s_mul_i32", sXr, sR, 160 * KB)
        e.S("s_mul_i32", sHr, sR, 432 * KB)
        e.S("s_lshl_b32", sSTr, sR, 13)
        e.S("s_mul_i32", sA, sWave, 40 * KB)
        e.V("v_add_u32", vAx[0], sA, vL16)
        e.V("v_add_u32", vAx[1], 20 * KB, vAx[0])
        e.V("v_lshlrev_b32", T0, 11, vG)
        e.V("v_lshl_add_u32", T0, vN, 3, T0)
        e.S("s_lshl_b32", sA, sWave, 8)
        e.V("v_add_u32", vSt, sA, T0)
        e.S("s_mov_b32", self.cInvD, lit(1.0 / D))
        for j in range(3):
            if j == 0:
                e.V("v_mov_b32", vW[0], vL16)
            else:
                e.V("v_add_u32", vW[j], j * 65536, vL16)
        e.S("s_lshl_b32", sA, sKH, 10)
        for j in range(3):
            e.V("v_add_u32", vK[j], sA, vW[j])
        e.S("s_lshl_b32", sTT, sRH, 2)
        e.S("s_add_u32", sTT, sTT, sWave)
        e.S("s_xor_b32", sB, sTT, 1)
        for u, st in ((0, sTT), (1, sB)):
            e.S("s_mul_i32", sA, st, 20 * KB)
            e.S("s_mul_i32", sD, sKH, 10 * KB)
            e.S("s_add_u32", sA, sA, sD)
            e.V("v_add_u32", vAo[u], sA, vL16)
            e.S("s_mul_i32", sA, st, 54 * KB)
            e.S("s_mul_i32", sD, sKH, 27 * KB)
            e.S("s_add_u32", sA, sA, sD)
            e.V("v_add_u32", vAh[u], sA, vL16)
        e.V("v_lshrrev_b32", T0, 1, vG)
        e.V("v_and_b32", T1, 1, vG)
        e.V("v_lshlrev_b32", T2, 4, vN)
        e.V("v_lshl_add_u32", T3, T0, 8, T2)
        e.V("v_lshl_add_u32", T3, T1, 3, T3)
        e.S("s_mul_i32", sA, sTT, 20 * KB)
        e.V("v_add_u32", vXs, sA, vL16)
        e.V("v_add_u32", vXh, sA, T3)
        e.S("s_mul_i32", sA, sWave, 108 * KB)
        e.V("v_add_u32", vHs, sA, vL16)
        e.S("s_cmp_ge_u32", sC, 12)
        e.S("s_cselect_b32", sA, BIG, sA)
        e.V("v_add_u32", vHh, sA, T3)
        e.S("s_mul_i32", sA, sWave, 40 * KB)
        e.V("v_lshl_add_u32", T3, vG, 3, T2)
        e.V("v_add_u32", vOh, sA, T3)
        e.V("v_cmp_gt_u32", VCC, 2, vG)
        e.V("v_mov_b32", T3, BIG)
        e.V("v_cndmask_b32", vOh, T3, vOh, VCC)
        e.S("s_lshl_b32", sA, sTT, 7)
        e.V("v_lshl_add_u32", T3, vN, 3, sA)
        e.V("v_lshl_add_u32", vStW, T0, 2, T3)
        e.S("s_lshl_b32", sA, sWave, 7)
        e.S("s_add_u32", sA, sA, RST)
        e.V("v_lshl_add_u32", vRT, vG, 4, sA)
        e.V("v_lshl_add_u32", vRW, vN, 2, sA)
        e.S("s_lshl_b32", sA, sTT, 6)
        e.S("s_add_u32", sA, sA, RST)
        e.V("v_lshl_add_u32", vRF, vN, 2, sA)
        e.V("v_lshlrev_b32", T3, 4, vG)
        e.V("v_add_u32", vZ2, ZT + 128, T3)
        e.V("v_cmp_gt_u32", VCC, 10, vN)
        e.V("v_add_u32", T3, ZT, T3)
        e.V("v_cndmask_b32", vZ01, vZ2, T3, VCC)
        e.S("s_lshl_b32", sA, sR, 3)
        e.S("s_add_u32", sA, sA, sTT)
        e.S("s_mul_i32", sA, sA, 16 * 1280)
        e.S("s_mul_i32", sB, sCG, 160)
        e.S("s_add_u32", sA, sA, sB)
        e.V("v_mul_u32_u24", T3, 1280, vN)
        e.V("v_add_u32", T3, sA, T3)
        e.V("v_lshl_add_u32", vOut, vG, 4, T3)
        e.V("v_lshl_add_u32", vOut4, vG, 3, T3)
        e.S("s_mul_i32", sA, sWave, 5120)
        e.V("v_add_u32", vXch, sA, vL16)
        e.V("v_lshlrev_b32", vFl, 2, vN)
        e.V("v_mov_b32", vLn2[0], lit(LN2))
        e.V("v_mov_b32", vEps[0], lit(1e-6))
        e.S("s_mov_b32", sMaskV[0], "0x00ff00ff")
        e.S("s_mov_b32", sMaskV[1], "0x00ff00ff")
        e.S("s_lshl_b32", sA, sR, 8)
        e.S("s_add_u32", sFRL, sA, FLG_RL)
        e.S("s_add_u32", sFRG, sA, FLG_RG)
        e.S("s_lshl_b32", sA, sC, 8)
        e.S("s_add_u32", sFC, sA, FLG_C)
        e.S("s_lshl_b32", sA, sCG, 11)
        e.S("s_add_u32", sOx, sXr, sA)
        e.S("s_lshr_b32", sA, sCG, 1)
        e.S("s_lshl_b32", sA, sA, 10)
        e.S("s_and_b32", sB, sCG, 1)
        e.S("s_lshl_b32", sB, sB, 9)
        e.S("s_add_u32", sA, sA, sB)
        e.S("s_add_u32", sA, sA, 16 * KB)
        e.S("s_add_u32", sOxh, sXr, sA)
        e.S("s_lshl_b32", sA, sCG, 10)
        e.S("s_add_u32", sOst, sSTr, sA)
        e.S("s_lshl_b32", sA, sC, 10)
        e.S("s_add_u32", sOo, sXr, sA)
        e.S("s_lshl_b32", sA, sC, 8)
        e.S("s_add_u32", sA, sA, 16 * KB)
        e.S("s_add_u32", sOoh, sXr, sA)
        e.S("s_mul_i32", sA, sC, 3 * KB)
        e.S("s_add_u32", sOh, sHr, sA)
        e.S("s_lshl_b32", sA, sC, 9)
        e.S("s_add_u32", sA, sA, 48 * KB)
        e.S("s_add_u32", sOhh, sHr, sA)
        e.S("s_mul_i32", sKv, sC, 16 * KVSZ)
        e.misc(f"s_getreg_b32 {sX1}, hwreg(HW_REG_XCC_ID, 0, 4)")
        e.S("s_and_b32", sX1, sX1, 7)
        e.S("s_add_u32", sX1, sX1, 8)
        e.S("s_add_u32", sX1, sX1, sBase)
        e.S("s_mov_b32", sLocal, 0)
        U, Hh, Ee, Dq = T0, T1, T2, T3
        e.S("s_mov_b32", sA, 52429)
        e.V("v_mul_u32_u24", U, sA, v(0))
        e.V("v_lshrrev_b32", U, 18, U)
        e.V("v_mul_u32_u24", Dq, 5, U)
        e.V("v_sub_u32", Dq, v(0), Dq)
        e.V("v_cmp_le_u32", VCC, 21, U)
        e.V("v_cndmask_b32", Hh, 0, 1, VCC)
        e.V("v_mul_u32_u24", Ee, 21, Hh)
        e.V("v_sub_u32", Ee, U, Ee)
        A0, A1, A2, A3 = TMP[46], TMP[47], ACC[36], ACC[37]
        e.V("v_cmp_le_u32", s(100, 2), 16, Ee)
        e.V("v_cmp_eq_u32", s(88, 2), 4, Dq)
        e.V("v_cndmask_b32", A0, 0, 1, s(100, 2))
        e.V("v_lshl_add_u32", A0, Hh, 1, A0)
        e.V("v_add_u32", A1, 4, Hh)
        e.V("v_cndmask_b32", A1, A1, 6, s(100, 2))
        e.V("v_cndmask_b32", A0, A0, A1, s(88, 2))
        e.V("v_cndmask_b32", A1, Dq, Hh, s(88, 2))
        e.V("v_lshl_add_u32", A2, Hh, 2, Ee)
        e.V("v_subrev_u32", A2, 8, A2)
        e.V("v_cndmask_b32", A2, Ee, A2, s(100, 2))
        e.V("v_cmp_eq_u32", VCC, 20, Ee)
        e.V("v_cndmask_b32", A2, A2, 0, VCC)
        e.V("v_lshl_add_u32", A1, A1, 4, A2)
        e.V("v_lshlrev_b32", A1, 4, A1)
        e.V("v_lshl_add_u32", vKvSrc, A0, 10, A1)
        e.V("v_mul_u32_u24", A0, 5, Hh)
        e.V("v_add_u32", A0, A0, Dq)
        e.V("v_cmp_le_u32", s(88, 2), 8, A0)
        e.V("v_lshrrev_b32", A1, 1, A0)
        e.V("v_subrev_u32", A2, 8, A0)
        e.V("v_cndmask_b32", A1, A1, A2, s(88, 2))
        e.V("v_and_b32", A2, 1, A0)
        e.V("v_cndmask_b32", A2, A2, 0, s(88, 2))
        e.V("v_lshlrev_b32", A2, 3, A2)
        e.V("v_cndmask_b32", A0, 0, 1, s(88, 2))
        e.V("v_lshl_add_u32", A3, Hh, 1, A0)
        e.V("v_lshl_add_u32", A3, A3, 2, A1)
        e.V("v_lshl_add_u32", A3, A3, 4, A2)
        e.V("v_add_u32", A3, ZT, A3)
        e.V("v_mul_u32_u24", T4, 20, Hh)
        e.V("v_add_u32", T4, T4, Ee)
        e.V("v_cmp_le_u32", s(100, 2), 32, T4)
        e.V("v_and_b32", T5, 1, T4)
        e.V("v_cndmask_b32", T5, T5, 2, s(100, 2))
        e.V("v_lshl_add_u32", A0, T5, 1, A0)
        e.V("v_lshrrev_b32", T5, 1, T4)
        e.V("v_subrev_u32", T4, 32, T4)
        e.V("v_cndmask_b32", T4, T5, T4, s(100, 2))
        e.V("v_lshl_add_u32", T4, A1, 4, T4)
        e.V("v_lshl_add_u32", T4, T4, 4, A2)
        e.V("v_lshl_add_u32", T4, A0, 10, T4)
        e.V("v_cndmask_b32", T4, T4, A3, VCC)
        e.V("v_cmp_gt_u32", VCC, 210, v(0))
        e.V("v_mov_b32", T5, DUMMY)
        e.V("v_cndmask_b32", vKvDst, T5, T4, VCC)
        e.V("v_cndmask_b32", vKvSrc, 0, vKvSrc, VCC)
        e.V("v_lshlrev_b32", T4, 3, v(0))
        e.V("v_mov_b32", T5, BIG)
        e.V("v_cndmask_b32", vT16, T5, T4, VCC)
        e.V("v_and_b32", T4, -16, T4)
        e.V("v_and_b32", T0, 1, v(0))
        e.V("v_mul_u32_u24", T0, 8 * KVSZ, T0)
        e.V("v_add_u32", T4, T4, T0)
        e.V("v_cndmask_b32", vT16L, T5, T4, VCC)

    def late_loads(self):
        e = self.e
        T4, T5 = TMP[48], TMP[49]
        e.S("s_mul_i32", sB, sCG, 160)
        e.bload(RES[10:14], vOut, XIN, 0, 0)
        e.bload(RES[14:18], vOut, XIN, 0, 64)
        e.bload(RES[18:20], vOut4, XIN, 0, 128)
        skip = e.newlabel("noxid")
        e.S("s_cmp_lg_u32", sWave, 3)
        e.branch("s_cbranch_scc1", skip)
        e.cond_begin()
        e.S("s_lshl_b32", sA, sR, 8)
        e.S("s_add_u32", sA, sA, FLG_X)
        e.S("s_lshl_b32", sB, sC, 2)
        e.V("v_mov_b32", T4, sB)
        e.V("v_mov_b32", T5, sX1)
        e.S("s_mov_b64", EXEC, 1)
        e.bstore(T5, T4, WS, sA, 0, "sc1")
        e.S("s_mov_b64", EXEC, -1)
        e.cond_end()
        e.label(skip)

    def unpack(self, dst, pk):
        e = self.e
        for a_ in range(2):
            for j in range(4):
                e.V("v_lshlrev_b32", dst[8 * a_ + j], 16, pk[4 * a_ + j])
                e.V("v_and_b32", dst[8 * a_ + 4 + j], "0xffff0000", pk[4 * a_ + j])
        for j in range(2):
            e.V("v_lshlrev_b32", dst[16 + 2 * j], 16, pk[8 + j])
            e.V("v_and_b32", dst[16 + 2 * j + 1], "0xffff0000", pk[8 + j])

    class ALoad:
        def __init__(self, m, vaddr, terms, nks):
            self.m, self.vaddr, self.terms, self.nks = m, vaddr, terms, nks
            self.n = 0
            self.based = -1
            self.done = False
            self.win = 20

        def step(self):
            e = self.m.e
            ks, u = divmod(self.n, 2)
            if ks // 4 != self.based:
                self.based = ks // 4
                e.S("s_add_u32", sLd, self.terms[0], self.terms[1] + (ks // 4) * 4 * KB)
                return False
            e.bload(a((self.n % 40) * 4, 4), self.vaddr[u], WS, sLd, (ks % 4) * KB, self.m.opt.get("amod", "sc1"), cls=(self.m.opt.get("latA", 600), 76, 33 if self.nks == 27 else 16))
            self.n += 1
            self.done = self.n >= 2 * self.nks
            return True

        def upto(self, ks):
            while self.n < 2 * min(ks + 1, self.nks):
                self.step()

    def stats_loads(self, ver):
        e = self.e
        e.S("s_add_u32", sA, sSTr, STB[ver])
        for u in range(2):
            for k in range(2):
                e.bload(TMP[4 * u + 2 * k:4 * u + 2 * k + 2], vSt, WS, sA, k * 1024 + u * 128, "sc1", cls=(600, 20, 0))

    def stats_gen(self, need_T, have=False):
        e = self.e
        for u in range(2):
            sm, sq, t0, t1 = TMP[4 * u], TMP[4 * u + 1], TMP[4 * u + 2], TMP[4 * u + 3]
            if not have:
                e.V("v_add_f32", sm, sm, t0); yield
                e.V("v_add_f32", sq, sq, t1); yield
            for op in () if have else ("v_permlane32_swap_b32", "v_permlane16_swap_b32"):
                e.V("v_mov_b32", t0, sm); yield
                e.V("v_mov_b32", t1, sq); yield
                e.V(op, sm, t0); yield
                e.V(op, sq, t1); yield
                e.V("v_add_f32", sm, sm, t0); yield
                e.V("v_add_f32", sq, sq, t1); yield
            e.V("v_mul_f32", sm, lit(1.0 / D), sm); yield
            e.V("v_mul_f32", t0, sm, sm); yield
            e.V("v_fma_f32", sq, sq, self.cInvD, Neg(t0)); yield
            e.V("v_max_f32", sq, 0, sq); yield
            e.V("v_add_f32", sq, lit(1e-5), sq); yield
            e.V("v_rsq_f32", t0, sq); yield
            e.V("v_cvt_pk_bf16_f32", XE[u][0], sm, sm); yield
            e.V("v_mul_f32", sq, sq, t0); yield
            e.ds_write(vRW, t0, 64 * u); yield
            c2 = vC2 if u == 0 else vC2b
            e.V("v_mul_f32", c2[0], lit(LOG2E), t0); yield
            e.V("v_lshlrev_b32", t1, 16, XE[u][0]); yield
            e.V("v_sub_f32", sm, sm, t1); yield
            e.V("v_cvt_pk_bf16_f32", XE[u][1], sm, sq); yield
            e.V("v_and_b32", t1, "0xffff0000", XE[u][1]); yield
            e.V("v_sub_f32", t1, sq, t1); yield
            e.V("v_cvt_pk_bf16_f32", XE[u][3], sm, t1); yield
            e.V("v_mov_b32", XE[u][2], XE[u][0]); yield
        if need_T:
            for u in range(2):
                e.ds_read(RT[4 * u:4 * u + 4], vRT, 64 * u); yield

    def phi_pair(self, src, c2, bcast, t):
        e = self.e
        m = "op_sel_hi:[1,0]" if bcast else ""
        e.V("v_pk_mul_f32", t[0:2], src, c2, mods=m)
        e.V("v_exp_f32_e64", t[2], t[0], mods="clamp")
        e.V("v_exp_f32_e64", t[3], t[1], mods="clamp")
        e.V("v_max_f32", t[0], 0, t[0])
        e.V("v_max_f32", t[1], 0, t[1])
        e.V("v_pk_add_f32", t[2:4], t[2:4], vEps, mods="op_sel_hi:[1,0]")
        e.V("v_pk_fma_f32", t[0:2], t[0:2], vLn2, t[2:4], mods="op_sel_hi:[1,0,1]")

    def scratch(self, nblk, endpos):
        st = endpos - nblk
        if (st % RB) + nblk > RB:
            st = endpos - (endpos % RB) - nblk
        self.last_scratch = (st, st + nblk)
        return st, self.ldsaddr(st)

    def bg_on(self, tail):
        e = self.e
        st = {"next": 0}
        t_end = e.T + tail
        self.deadline = lambda: t_end

        def f():
            if e.T >= st["next"] and self.dma_ok():
                n0 = len(e.vm) + len(e.lg) + len(self.deferred)
                while len(e.vm) + len(e.lg) + len(self.deferred) == n0:
                    next(self.dmaf)
                st["next"] = e.T + self.opt.get("vgap", 24)
        self.e.bg = f

    def code_touch(self, ahead=None):
        e = self.e
        if not self.opt.get("ctouch", 1):
            return
        lab = e.newlabel("here")
        e.label(lab)
        ahead = self.opt.get("cahead", 2048) if ahead is None else ahead
        e.V("v_lshlrev_b32", v(51), 5, v(0))
        e.V("v_add_u32", v(51), f"{lab}-{self.kname}+{ahead}", v(51))
        e.V("v_min_u32", v(51), self.opt.get("code_bytes", 32768) - 4, v(51))
        e.misc(f"global_load_dword {vDum}, {v(51)}, s[96:97]")
        e._vm([], (800, 30, 10))

    def at_block(self, t, gen):
        i0 = self.cons
        while self.cons < i0 + t:
            yield "idle"
        yield from gen

    def delay(self, n, gen):
        for _ in range(n):
            yield "idle"
        yield from gen

    def code_touch_gen(self):
        self.code_touch(self.opt.get("cahead", 512))
        yield

    def bg_off(self):
        self.e.bg = None

    def gstore(self, lst, cold=False):
        e = self.e
        mode = self.opt.get("mode", "dual")
        if cold and not self.opt.get("touchcold", 0):
            mode = "safe"
        if mode != "dual":
            return [e.bstore(d, vo, WS, so, off, "sc1" if mode == "safe" else "") for d, vo, so, off in lst]
        ls, le = e.newlabel("st_safe"), e.newlabel("st_end")
        regs = []
        for d, vo, so, off in lst:
            regs += d.regs() + vo.regs()
        e.wait_ops(e._pending(regs))
        e.S("s_cmp_eq_u32", sLocal, 0)
        need = e._need("vmem", regs, [])
        if need > 1:
            e.nop(need - 1)
        e.branch("s_cbranch_scc1", ls)
        n0 = len(e.lines)
        ops = [e.bstore(d, vo, WS, so, off, "") for d, vo, so, off in lst]
        body = e.lines[n0:]
        assert len(body) == len(lst), body
        e.raw(f"  s_branch {le}")
        e.label(ls)
        for l in body:
            e.raw(l + " sc1")
        e.label(le)
        return ops

    def touch_gen(self, lst, cold=False):
        e = self.e
        if (cold and not self.opt.get("touchcold", 0)) or not self.opt.get("touch", 0):
            return
        for vo, sb, add, off in lst:
            e.S("s_add_u32", sE, sb, add); yield
            e.touch(vDum, vo, WS, sE, off, cls=(750, 80, 30)); yield

    def local_gen(self):
        e = self.e
        e.S("s_lshl_b32", s(6), sR, 8); yield
        e.S("s_add_u32", s(6), s(6), FLG_X); yield
        e.bload(TMP[39], vFl, WS, s(6), 0, "sc1"); yield
        for _ in range(40):
            yield "idle"
        e.V("v_cmp_ne_u32", VCC, sX1, TMP[39]); yield
        e.S("s_cmp_eq_u64", VCC, 0)
        e.S("s_cselect_b32", sLocal, 1, 0); yield

    def poll(self, kind, val):
        e = self.e
        skip = e.newlabel("nopoll")
        loop = e.newlabel("poll")
        e.S("s_cmp_lg_u32", sWave, 0)
        e.branch("s_cbranch_scc1", skip)
        e.cond_begin()
        t = TMP[38]
        e.S("s_mov_b32", sCnt, 0)
        e.S("s_mov_b64", sOk, 0)
        e.S("s_add_u32", sB, sBase, val)
        va, vb, sa, sb = (vFl, vFl, sFRL, sFRG) if kind != "col" else (vFl, vFl, sFC, sFC)
        if kind == "both":
            va, vb, sa, sb = TMP[36], TMP[37], 0, 0
            e.V("v_cmp_gt_u32", VCC, 2, vG)
            e.V("v_mov_b32", va, sFC)
            e.V("v_mov_b32", vb, sFRL)
            e.V("v_cndmask_b32", va, vb, va, VCC)
            e.V("v_add_u32", va, va, vFl)
            e.V("v_mov_b32", vb, FLG_RG - FLG_RL)
            e.V("v_cndmask_b32", vb, vb, 0, VCC)
            e.V("v_add_u32", vb, va, vb)
        if kind == "row":
            e.S("s_cmp_eq_u32", sLocal, 0)
            e.S("s_cselect_b32", sD, 3, -1)
        else:
            e.S("s_mov_b32", sD, 3)
        e.label(loop)

        def chk():
            e.misc("s_waitcnt vmcnt(0)")
            e.misc(f"v_subrev_u32 {t}, {sB}, {t}")
            e.misc(f"v_cmp_ge_u32 vcc, 1, {t}")
            e.misc(f"s_or_b64 {sOk}, {sOk}, vcc")
            e.misc(f"s_cmp_eq_u64 {sOk}, -1")
            e.misc(f"s_cbranch_scc1 {skip}")
        e.misc(f"buffer_load_dword {t}, {va}, {WS}, {sa} offen sc1")
        e.misc("s_add_u32 %s, %s, 1" % (sCnt, sCnt))
        chk()
        if kind != "row":
            e.misc("s_sleep 3")
        lnext = e.newlabel("pollnext")
        e.misc(f"s_and_b32 {sA}, {sCnt}, {sD}")
        e.misc(f"s_cbranch_scc1 {lnext}")
        e.misc(f"buffer_load_dword {t}, {vb}, {WS}, {sb} offen sc1")
        chk()
        e.label(lnext)
        e.misc(f"s_cmp_lt_u32 {sCnt}, 0x80000")
        e.misc(f"s_cbranch_scc1 {loop}")
        e.cond_end()
        e.label(skip)

    def flag(self, kind, val, t0=TMP[37], t1=TMP[38]):
        e = self.e
        lst = [(1, sFRG, "sc1", sC), (2, sFRL, "", sC)] if kind != "col" else []
        if kind != "row":
            lst.append((3, sFC, "sc1", sR))
        for w, sb, m, sidx in lst:
            skip = e.newlabel("noflag")
            if w == 1 and self.opt.get("skipg", 1):
                e.S("s_lshl_b32", sA, sLocal, 2)
                e.S("s_add_u32", sA, sA, sWave)
                e.S("s_cmp_lg_u32", sA, w)
            else:
                e.S("s_cmp_lg_u32", sWave, w)
            e.branch("s_cbranch_scc1", skip)
            e.cond_begin()
            e.S("s_lshl_b32", sA, sidx, 2)
            e.V("v_mov_b32", t0, sA)
            e.S("s_add_u32", sA, sBase, val)
            e.V("v_mov_b32", t1, sA)
            e.S("s_mov_b64", EXEC, 1)
            e.bstore(t1, t0, WS, sb, 0, m)
            e.S("s_mov_b64", EXEC, -1)
            e.cond_end()
            e.label(skip)

    def handoff(self, val, ops, shadow=None, touch=()):
        e = self.e
        t_st = e.T
        hk = (val - 2) % 4
        pick = lambda name, d: self.opt[name + "s"][hk] if name + "s" in self.opt else self.opt.get(name, d)
        self.deadline = lambda: t_st + pick("topup", 2600)
        self.own_end = 0
        while self.dma_ok():
            next(self.dmaf)
        while self.stage_step():
            pass
        self.finish_stage()
        self.restore(self.opt.get("rest1", 2))
        e.wait_all_lg()
        self.ring_barrier(self.cons + FI + self.opt.get("ahead", 16), ops)
        self.hold = None
        self.flag("row", val)
        self.stamp("flag")
        t_flag = e.T
        if self.opt.get("post_touch", 0):
            for k, (vo, sb, add, off) in enumerate(touch):
                sr = sE if k % 2 else sD
                e.S("s_add_u32", sr, sb, add)
                e.touch(vDum, vo, WS, sr, off, "sc1", cls=(750, 66, 30))
        self.deadline = lambda: t_flag + pick("topup2", 1500)
        while self.dma_ok():
            next(self.dmaf)
        while self.stage_step():
            pass
        self.finish_stage()
        self.warn.append(f"staged {len(self.staged)}")
        self.stage_plan = []
        self.prime()
        self.restore(self.opt.get("rest2", 8) if hk == 3 else 99)
        self.restg = self.restore_gen(99)
        if shadow:
            shadow()
        self.poll("row", val)
        e.T = max(e.T, t_flag + 1000)
        e.barrier()
        self.stamp("go")

    def phaseA(self, p):
        e = self.e
        opt = self.opt
        xv = 2 * p
        acc = lambda T, u: ACC[(T * 2 + u) * 4:(T * 2 + u) * 4 + 4]
        xf = lambda ks, u: a((ks * 2 + u) * 4, 4) if ks < 20 else XE[u]
        if p == 0:
            e.S("s_mov_b32", sSel[0], "0x00003f80")
            e.S("s_mov_b32", sSel[1], "0x3f800000")
            e.S("s_mov_b32", sOdd[0], "0xaaaaaaaa")
            e.S("s_mov_b32", sOdd[1], "0xaaaaaaaa")
            e.S("s_getpc_b64", s(96, 2))
            e.label("main_pc2")
            e.S("s_sub_u32", s(96), s(96), "main_pc2-" + self.kname)
            e.S("s_subb_u32", s(97), s(97), 0)
            for _ in range(opt.get("first_groups", 6 if self.al0 else 3)):
                for _ in self.dma_group():
                    pass
        if p == 0 and self.al0:
            al = None
            for _ in self.stats_gen(True, True):
                pass
            fl0 = [(x for x in ())]
            next(fl0[0], None)
        else:
            al = self.ALoad(self, vAx, (sXr, XB[xv]), 20)
            al.upto(opt.get("adist", 4) - 1)
            self.stats_loads(xv)
            fl0 = [self.delay(opt.get("stdelay", 24), self.stats_gen(True))]
        sc_keep = self.last_scratch
        if p:
            fl0.append(self.restg)
        if p == 0:
            if opt.get("r2st", 2) == 0:
                self.r2_stores()
                self.late_loads()
            e.wait_all_lg()
            if opt.get("r2st", 2) == 2:
                self.ring_barrier(FI + 8, self.ops2)
                self.flag("col", 2)
                fl0.append(self.at_block(opt.get("w2at", 72), self.w2_gen()))
            else:
                self.ring_barrier(FI + 8)
            self.prime()
            self.stamp("start")
            if opt.get("keep", 12):
                self.capg = self.capture_gen(opt.get("keep0", 3), opt.get("keep", 12))
                next(self.capg)
                fl0.append(self.capg)
        st1 = {}

        def hook1(t):
            if t >= opt.get("w2flag_at", 30) and not st1.get("done"):
                st1["done"] = t
                return self.ops2, (lambda: self.flag("col", 2))
            return [], None

        def add1(t):
            if st1.get("done") and t >= opt.get("w2chk_at", 70) and not st1.get("chk"):
                st1["chk"] = True
                return self.w2_gen()
        i0 = self.seqstart[("A1", p)]
        fb = 102
        sst, sad = self.scratch(28, self.seq[i0 + fb][0])
        self.last_scratch = sc_keep
        self.hold = sst

        C2T = ACC[40:48]

        def pre_gen(first):
            while first.gi_frame is not None:
                yield "idle"
            e.S("s_mul_i32", s(7), sWave, 7168); yield
            e.S("s_add_u32", s(7), s(7), sad); yield
            e.V("v_add_u32", TMP[24], s(7), vL16); yield
            e.V("v_add_u32", TMP[25], sad, vKvSrc); yield
            e.S("s_mul_i32", s(7), sR, KVSZ); yield
            e.S("s_add_u32", s(7), s(7), sKv); yield
            e.S("s_add_u32", s(7), s(7), KVB[p]); yield
            for _ in range(8):
                yield "idle"
            for j in range(8):
                e.V("v_mul_f32", C2T[j], lit(LOG2E), RT[j]); yield
        fl0.append(pre_gen(fl0[0]))

        def must_gen():
            yield from fl0[0]
            yield from fl0[-1]
            while self.capg and self.cap_next < sst + 28:
                next(self.capg)
                yield

        def mf(t, W, u):
            ks, T = divmod(t, 5)
            e.mfma(acc(T, u), xf(ks, u), W, acc(T, u) if ks else 0)
        self.run_pass(105, mf, 5, xf, fl0, must=must_gen(), chunk=(8 if p == 0 else 24), stop_reads=self.seqstart[("A4", p)], aload=al,
                      force_bar=fb, tail=6000, mix=opt.get("mixA", 0) if p else 0,
                      late=(60, self.touch_gen([(vAx[0], sOo, OB[p], 0), (vAx[1], sOo, OB[p], 0), (vOh, sOoh, OB[p], 0), (vOh, sOoh, OB[p] + 20 * KB, 0)], p == 0)), hooks={"bar": hook1, "add": add1} if (p == 0 and opt.get("r2st", 2) == 0) else None)
        if p == 0 and opt.get("r2st", 2) == 1:
            self.dma_all()
            self.r2_stores()
            self.late_loads()
        assert sst + 28 <= self.freed and sst + 28 <= self.cap_hold, (sst, self.cap_hold)
        self.stamp("A1")
        self.bg_on(5000)
        KF = [TMP[8:12], TMP[12:16], TMP[16:20]]
        VF = {3: TMP[20:24], 4: ACC[56:60], 2: ACC[60:64]}
        tt = [ACC[48:52], ACC[52:56]]
        TA0, TA1 = TMP[24], TMP[25]
        n = 0
        for T in range(3):
            for u in range(2):
                for h in range(2):
                    t = tt[n % 2]
                    n += 1
                    self.phi_pair(acc(T, u)[2 * h:2 * h + 2], C2T[4 * u + 2 * h:4 * u + 2 * h + 2], False, t)
                    e.V("v_cvt_pk_bf16_f32", KF[T][2 * u + h], t[0], t[1])
        for T in (3, 4, 2):
            for u in range(2):
                for h in range(2):
                    x = acc(T, u)[2 * h:2 * h + 2]
                    e.V("v_pk_mul_f32", x, x, RT[4 * u + 2 * h:4 * u + 2 * h + 2])
            for u in range(2):
                for h in range(2):
                    x = acc(T, u)[2 * h:2 * h + 2]
                    e.V("v_cvt_pk_bf16_f32", VF[T][2 * u + h], x[0], x[1])
        for j in range(4):
            e.V("v_cndmask_b32", VF[2][j], VF[2][j], vOne, sMaskV)
        PR = [ACC[4 * i:4 * i + 4] for i in range(7)]
        prods = [(0, 3), (0, 2), (1, 4), (1, 2), (2, 3), (2, 4), (2, 2)]
        for i, (kt, vt) in enumerate(prods):
            e.mfma(PR[i], KF[kt], VF[vt], 0)
        for i in range(7):
            e.ds_write(TA0, PR[i], i * 1024)
        e.wait_all_lg()
        e.barrier()
        RD = [ACC[4 * w:4 * w + 4] for w in range(4)]
        for w in range(4):
            e.ds_read(RD[w], TA1, w * 7168)
        for h in range(2):
            e.V("v_pk_add_f32", RD[0][2 * h:2 * h + 2], RD[0][2 * h:2 * h + 2], RD[1][2 * h:2 * h + 2])
            e.V("v_pk_add_f32", RD[2][2 * h:2 * h + 2], RD[2][2 * h:2 * h + 2], RD[3][2 * h:2 * h + 2])
        for h in range(2):
            e.V("v_pk_add_f32", RD[0][2 * h:2 * h + 2], RD[0][2 * h:2 * h + 2], RD[2][2 * h:2 * h + 2])
        e.V("v_cvt_pk_bf16_f32", RD[1][0], RD[0][0], RD[0][1])
        e.V("v_cvt_pk_bf16_f32", RD[1][1], RD[0][2], RD[0][3])
        kvst = e.bstore(RD[1][0:2], vT16, WS, s(7), 0, "sc1")
        self.bg_off()
        self.stamp("kvpub")
        PL = [ACC[4 * i:4 * i + 4] for i in range(10)]

        st2 = {}

        def barhook(t):
            def rel():
                self.hold = None

            def relflag():
                self.hold = None
                self.flag("col", 2)
            if p == 0 and opt.get("r2st", 2) == 1 and not st2.get("done") and t >= opt.get("w2flag2_at", 12):
                st2["done"] = True
                return self.ops2, relflag
            return [], rel

        def kvloads():
            for i in range(8):
                if i % 2 == 0:
                    e.S("s_add_u32", sB, sKv, KVB[p] + i * KVSZ); yield
                e.bload(PL[i], vT16L, WS, sB, (i % 2) * KVSZ, "sc1", cls=(opt.get('kvlat', 800), 80, opt.get('kvsvc', 130))); yield

        def kvsum():
            SM = PL[8:10]
            for i in range(8):
                for d in range(4):
                    for h in range(2):
                        x = SM[d >> 1][2 * (d & 1) + h]
                        if i == 0:
                            e.V("v_dot2_f32_bf16", x, PL[i][d], sSel[h], 0)
                        else:
                            e.V("v_dot2c_f32_bf16", x, sSel[h], PL[i][d])
            for d in range(8):
                x = SM[d >> 2][d & 3]
                e.V("v_add_f32_dpp", x, x, x, mods="quad_perm:[1,0,3,2] row_mask:0xf bank_mask:0xf")
            for d in range(4):
                e.V("v_cndmask_b32", PL[0][d], SM[0][d], SM[1][d], sOdd)
            e.V("v_cmp_u_f32", VCC, PL[0][0], PL[0][1])
            e.V("v_cmp_u_f32", sNan, PL[0][2], PL[0][3])
            e.S("s_or_b64", VCC, VCC, sNan)

        def mfq(t, W, u):
            ks, T = divmod(t, 3)
            e.mfma(acc(5 + T, u), W, xf(ks, u), acc(5 + T, u) if ks else 0)
        self.lastbar = self.rd - 8
        fl = []
        if p == 0:
            fl = [self.local_gen()] + ([self.capg] if self.capg else [])
        self.run_pass(63, mfq, 3, xf, fl, stop_reads=self.seqstart[("A4", p)], hooks={"bar": barhook},
                      late=(opt.get("kvload_at", 40), kvloads()), see_all=True, force_bar=61, tail=1600 + self.opt.get("slack", 2400))
        if self.capg:
            n_ = 0
            for _ in self.capg:
                n_ += 1
                assert n_ < 1000
            self.capg = None
        self.stamp("A2")
        if p == 0 and opt.get("r2st", 2) == 1:
            assert st2.get("done")
            w2 = self.w2_gen()
            while next(w2) != "idle":
                pass
        if opt.get("qbg", 1):
            self.bg_on(1600 + self.opt.get("slack", 2400))
        PQ0 = [TMP[0:4], TMP[4:8]]
        PQ1 = [TMP[8:12], TMP[12:16]]
        tq = [TMP[16:20], TMP[20:24]]
        for u in range(2):
            c2 = vC2 if u == 0 else vC2b
            for h in range(2):
                self.phi_pair(acc(5, u)[2 * h:2 * h + 2], c2, True, tq[0])
                self.phi_pair(acc(6, u)[2 * h:2 * h + 2], c2, True, tq[1])
                e.V("v_cvt_pk_bf16_f32", PQ0[u][2 * h], tq[0][0], tq[1][0])
                e.V("v_cvt_pk_bf16_f32", PQ0[u][2 * h + 1], tq[0][1], tq[1][1])
            for h in range(2):
                self.phi_pair(acc(7, u)[2 * h:2 * h + 2], c2, True, tq[h])
                e.V("v_cvt_pk_bf16_f32", PQ1[u][h], tq[h][0], tq[h][1])
            e.V("v_mov_b32", PQ1[u][2], 0)
            e.V("v_mov_b32", PQ1[u][3], 0)
        self.bg_off()
        self.stamp("qepi")
        kvsum()
        lok, lre = e.newlabel("kvok"), e.newlabel("kvretry")
        e.branch("s_cbranch_scc0", lok)
        e.cond_begin()
        e.S("s_mov_b32", sCnt, 0)
        e.label(lre)
        e.misc("s_sleep 4")
        for _ in kvloads():
            pass
        kvsum()
        e.branch("s_cbranch_scc0", lok)
        e.S("s_add_u32", sCnt, sCnt, 1)
        e.S("s_cmp_lt_u32", sCnt, 0x10000)
        e.branch("s_cbranch_scc1", lre)
        e.cond_end()
        e.label(lok)
        self.stamp("kvgo")
        if p == 0 and opt.get("r2st", 2) == 1:
            for _ in w2:
                pass

        self.bg_on(900 + self.opt.get("slack", 2400))
        e.V("v_cvt_pk_bf16_f32", TMP[16], PL[0][0], PL[0][1])
        e.V("v_cvt_pk_bf16_f32", TMP[17], PL[0][2], PL[0][3])
        e.ds_write(vKvDst, TMP[16:18])
        e.wait_all_lg()
        e.barrier()
        FR = [ACC[40 + 4 * i:44 + 4 * i] for i in range(6)] + [TMP[16 + 4 * i:20 + 4 * i] for i in range(4)]
        for T in range(3):
            for ks in range(2):
                e.ds_read(FR[T * 2 + ks], vL16, IMG + (T * 2 + ks) * KB)
        for ks in range(2):
            e.ds_read(FR[6 + ks], vZ01, ks * 64)
            e.ds_read(FR[8 + ks], vZ2, ks * 64)
        oa = lambda T, u: ACC[(T * 2 + u) * 4:(T * 2 + u) * 4 + 4]
        ops = []

        def norm(u, packed):
            den = (oa(3, u)[0], oa(3, u)[2], oa(4, u)[0])
            for x in den:
                e.V("v_add_f32", x, vEps[0], x); yield
            for x in den:
                e.V("v_rcp_f32", x, x); yield
            for T in range(3):
                for h in range(2):
                    x = oa(T, u)[2 * h:2 * h + 2]
                    dn = oa(3, u)[2 * h:2 * h + 2] if T < 2 else oa(4, u)[0:2]
                    if packed:
                        e.V("v_pk_mul_f32", x, x, dn, mods="op_sel_hi:[1,0]"); yield
                    else:
                        e.V("v_mul_f32", x[0], x[0], dn[0]); yield
                        e.V("v_mul_f32", x[1], x[1], dn[0]); yield
            o4 = TMP[8 * u:8 * u + 4] if False else RT[4 * u:4 * u + 4]
            o2 = XE[u][0:2]
            for j in range(4):
                e.V("v_cvt_pk_bf16_f32", o4[j], oa(0, u)[j], oa(1, u)[j]); yield
            for h in range(2):
                e.V("v_cvt_pk_bf16_f32", o2[h], oa(2, u)[2 * h], oa(2, u)[2 * h + 1]); yield
            ops.extend(self.gstore([(o4, vAx[u], sA, 0), (o2, vOh, sB if u == 0 else sD, 0)], p == 0 or opt.get("osafe")))
            yield
        bg, e.bg = e.bg, None
        order = [(T, k) for k in range(2) for T in (3, 4, 0, 1, 2)]
        for T, k in order:
            e.mfma(oa(T, 0), FR[2 * T + k], (PQ0, PQ1)[k][0], oa(T, 0) if k else 0)
        e.S("s_add_u32", sA, sOo, OB[p])
        e.S("s_add_u32", sB, sOoh, OB[p])
        g0 = norm(0, False)
        for n_, (T, k) in enumerate(order):
            e.mfma(oa(T, 1), FR[2 * T + k], (PQ0, PQ1)[k][1], oa(T, 1) if k else 0)
            if n_ == 0:
                e.S("s_add_u32", sD, sOoh, OB[p] + 20 * KB)
            elif n_ < 9:
                next(g0)
                if n_ not in (2, 3):
                    next(g0)
        e.bg = bg
        for _ in g0:
            pass
        for _ in norm(1, True):
            pass
        self.bg_off()
        self.stamp("A3")
        def shadow():
            e.S("s_mul_i32", sB, sCG, 160)
            e.V("v_lshl_add_u32", TMP[2], vG, 4, sB)
            e.V("v_lshl_add_u32", TMP[3], vG, 3, sB)
            e.bload(ACC[40:44], TMP[2], SB2, 0, 0, cls=(800, 20, 0))
            e.bload(ACC[44:48], TMP[2], SB2, 0, 64, cls=(800, 20, 0))
            e.bload(ACC[48:50], TMP[3], SB2, 0, 128, cls=(800, 20, 0))
            if p == 0:
                self.unpack(RES, RES[10:20])
        self.handoff(4 * p + 2, ops, shadow, [(vAx[0], sOo, OB[p], 0), (vAx[1], sOo, OB[p], 0), (vOh, sOoh, OB[p], 0), (vOh, sOoh, OB[p] + 20 * KB, 0)])

    def phase64(self, p, kind):
        e = self.e
        opt = self.opt
        nks = 10 if kind == "O" else 27
        name = "A4" if kind == "O" else "B2"
        acc = lambda T, u: ACC[(u * 5 + T) * 4:(u * 5 + T) * 4 + 4]
        if kind == "O":
            al = self.ALoad(self, vAo, (sXr, OB[p]), nks)
        else:
            al = self.ALoad(self, vAh, (sHr, HB[p]), nks)
        al.upto(opt.get("adist", 4) - 1)
        xf = lambda ks, u: a(((ks % 20) * 2 + u) * 4, 4)
        if kind == "C":
            e.ds_read(TMP[2], vRF)
        i0 = self.seqstart[(name, p)]
        fb = 5 * nks - 3
        sst, sad = self.scratch(20, self.seq[i0 + fb][0])
        self.hold = sst
        stop = i0 + 5 * nks

        def mf(t, W, u):
            ks, T = divmod(t, 5)
            u = 1 - u
            c0 = RES[4 * T:4 * T + 4] if (kind == "O" and u == 0) else 0
            e.mfma(acc(T, u), W, xf(ks, u), acc(T, u) if ks else c0)

        def addr_gen():
            e.V("v_add_u32", TMP[0], sad, vXch); yield
            e.S("s_xor_b32", sA, sWave, 1); yield
            e.S("s_mul_i32", sA, sA, 5120); yield
            e.S("s_add_u32", sA, sA, sad); yield
            e.V("v_add_u32", TMP[1], sA, vL16); yield
            if kind == "C":
                e.V("v_mul_f32", TMP[2], TMP[2], TMP[2]); yield
            if not last:
                e.S("s_add_u32", sA, sOx, XB[xv]); yield
                e.S("s_add_u32", sB, sOxh, XB[xv]); yield
                e.S("s_add_u32", sD, sOst, STB[xv]); yield
        last = kind == "C" and p == 1
        xv = 2 * p + (1 if kind == "O" else 2)
        tg = None if last else (0, self.touch_gen([(vXs, sOx, XB[xv], 0), (vXs, sOx, XB[xv], 1024), (vXh, sOxh, XB[xv], 0), (vStW, sOst, STB[xv], 0)]))
        fl = [self.delay(20, addr_gen())]
        self.run_pass(5 * nks, mf, 5, xf, fl, late=tg, force_bar=fb, chunk=(opt.get("chunkO", 12) if kind == "O" else opt.get("chunkC", 12)), stop_reads=stop, aload=al,
                      mix=opt.get("mixO", 0) if kind == "O" else 0, tail=900 + self.opt.get("slack", 2400))
        self.stamp(name)
        self.bg_on(900 + self.opt.get("slack", 2400))
        assert sst + 20 <= self.freed
        for T in range(5):
            e.ds_write(TMP[0], acc(T, 1), T * KB)
        e.wait_all_lg()
        e.barrier()
        PT = TMP[4:24]
        for T in range(5):
            e.ds_read(PT[4 * T:4 * T + 4], TMP[1], T * KB)
        own = ACC[0:20]
        for h in range(10):
            x = own[2 * h:2 * h + 2]
            e.V("v_pk_add_f32", x, x, PT[2 * h:2 * h + 2])
            if kind == "C":
                e.V("v_pk_fma_f32", x, x, TMP[2:4], RES[2 * h:2 * h + 2], mods="op_sel_hi:[1,0,1]")
        PK = TMP[24:34]
        for a_ in range(2):
            for j in range(4):
                e.V("v_cvt_pk_bf16_f32", PK[4 * a_ + j], own[8 * a_ + j], own[8 * a_ + 4 + j])
        for h in range(2):
            e.V("v_cvt_pk_bf16_f32", PK[8 + h], own[16 + 2 * h], own[16 + 2 * h + 1])
        self.bg_off()
        if last:
            om = self.opt.get("outmod", "")
            e.bstore(PK[0:4], vOut, OUT, 0, 0, om)
            e.bstore(PK[4:8], vOut, OUT, 0, 64, om)
            e.bstore(PK[8:10], vOut4, OUT, 0, 128, om)
            self.stamp("end")
            return
        xv = 2 * p + (1 if kind == "O" else 2)
        ops = []
        ops += self.gstore([(PK[0:4], vXs, sA, 0), (PK[4:8], vXs, sA, 1024), (PK[8:10], vXh, sB, 0)], xv == 1)
        sm, sq, t0 = TMP[36], TMP[37], TMP[38]
        e.V("v_mov_b32", sm, 0)
        e.V("v_mov_b32", sq, 0)
        for j in range(10):
            e.V("v_dot2c_f32_bf16", sm, PK[j], vOne)
            e.V("v_dot2c_f32_bf16", sq, PK[j], PK[j])
        e.V("v_permlane32_swap_b32", sm, sq)
        e.V("v_add_f32", sm, sm, sq)
        e.V("v_mov_b32", t0, sm)
        e.V("v_permlane16_swap_b32", sm, t0)
        e.V("v_add_f32", sm, sm, t0)
        ops += self.gstore([(sm, vStW, sD, 0)], xv == 1)
        self.stamp(name + "epi")

        def shadow():
            self.unpack(RES, PK)
            if kind == "O":
                self.unpack(ACC[20:40], ACC[40:50])
                for h in range(10):
                    x = RES[2 * h:2 * h + 2]
                    e.V("v_pk_add_f32", x, x, ACC[20 + 2 * h:22 + 2 * h])
        self.handoff(4 * p + (3 if kind == "O" else 5), ops, shadow,
                     [(vStW, sOst, STB[xv], 0), (vXs, sOx, XB[xv], 0), (vXs, sOx, XB[xv], 1024), (vXh, sOxh, XB[xv], 0)])

    def phaseB1(self, p):
        e = self.e
        opt = self.opt
        xv = 2 * p + 1
        acc = lambda T, u: ACC[(T * 2 + u) * 4:(T * 2 + u) * 4 + 4]
        xf = lambda ks, u: a((ks * 2 + u) * 4, 4) if ks < 20 else XE[u]
        al = self.ALoad(self, vAx, (sXr, XB[xv]), 20)
        al.upto(opt.get("adist", 4) - 1)
        self.stats_loads(xv)
        stop = self.seqstart[("B2", p)]
        g0 = self.seq[stop][0] // 8 + RB // 8
        self.stage_plan = list(range(g0, g0 + (opt.get("nstage", 0) if p else 0)))

        def mf(t, W, u):
            ks, T = divmod(t, B1N)
            e.mfma(acc(T, u), W, xf(ks, u), acc(T, u) if ks else 0)
        tl = [(vHs, sOh, HB[p] + u * 54 * KB, a_ * KB) for a_ in range(3) for u in range(2)] + [(vHh, sOhh, HB[p] + u * 54 * KB, 0) for u in range(2)]
        sg = self.delay(opt.get("stdelay", 24), self.stats_gen(False))
        flb = [sg]
        if p == 0 and opt.get("keepb", 4):
            gb = self.capture_gen(self.segs[2][1] // 8 + opt.get("keepb0", 8), opt.get("keepb", 4), 12)
            next(gb)
            flb.append(gb)
        self.run_pass(21 * B1N, mf, B1N, xf, flb, late=(0, self.touch_gen(tl, p == 0)), stop_reads=stop, aload=al, must=sg, mix=opt.get("mixB", 0), tail=700 * (7 - B1N) + 300 + self.opt.get("slack", 2400))
        self.stamp("B1a")
        ops = []

        def epi(pairs, single):
            n = 0
            for u in range(2):
                sb = sD if u == 0 else sE
                e.S("s_add_u32", sb, sOh, HB[p] + u * 54 * KB); yield
                for a_ in pairs:
                    o = TMP[16 + 4 * (n % 4):20 + 4 * (n % 4)]
                    n += 1
                    for j in range(4):
                        x, y = acc(2 * a_, u)[j], acc(2 * a_ + 1, u)[j]
                        e.V("v_mul_f32_e64", x, x, f"|{x}|"); yield
                        e.V("v_mul_f32_e64", y, y, f"|{y}|"); yield
                        e.V("v_cvt_pk_bf16_f32", o[j], x, y); yield
                        e.V("v_pk_max_i16", o[j], o[j], 0); yield
                    ops.extend(self.gstore([(o, vHs, sb, a_ * KB)], p == 0 or opt.get("hsafe", 1) == 1 or (opt.get("hsafe", 1) == 2 and not single))); yield
            if single:
                for u in range(2):
                    o = TMP[32 + 2 * u:34 + 2 * u]
                    for j in range(4):
                        x = acc(6, u)[j]
                        e.V("v_mul_f32_e64", x, x, f"|{x}|"); yield
                    for h in range(2):
                        e.V("v_cvt_pk_bf16_f32", o[h], acc(6, u)[2 * h], acc(6, u)[2 * h + 1]); yield
                        e.V("v_pk_max_i16", o[h], o[h], 0); yield
                e.S("s_add_u32", sA, sOhh, HB[p])
                e.S("s_add_u32", sB, sOhh, HB[p] + 54 * KB)
                ops.extend(self.gstore([(TMP[32:34], vHh, sA, 0), (TMP[34:36], vHh, sB, 0)], p == 0 or opt.get("hsafe", 1) == 1))
                yield

        def mf2(t, W, u):
            ks, T = divmod(t, 7 - B1N)
            e.mfma(acc(B1N + T, u), W, xf(ks, u), acc(B1N + T, u) if ks else 0)
        self.run_pass(21 * (7 - B1N), mf2, 7 - B1N, xf, [epi(list(range(B1N // 2)), False)], stop_reads=stop, force_bar=21 * (7 - B1N) - 2, over=opt.get("b1over", 0), chunk=opt.get("chunkB", 24), tail=300 + self.opt.get("slack", 2400))
        self.stamp("B1b")
        for _ in epi(list(range(B1N // 2, 3)), True):
            pass
        self.stamp("B1epi")
        self.handoff(4 * p + 4, ops, None, tl)

    def gen(self):
        e = self.e
        e.reset_state()
        self.cInvD = s(63)
        self.dmaf = self.dma_filler()
        self.prologue()
        if self.opt.get("stamps"):
            e.memtime(sTm, True)
            e.V("v_writelane_b32", v(53), sTm[0], 62)
        self.startup()
        stop = self.opt.get("stop", 99)
        n = 0
        for p in range(2):
            for f in (lambda: self.phaseA(p), lambda: self.phase64(p, "O"), lambda: self.phaseB1(p), lambda: self.phase64(p, "C")):
                if n < stop:
                    f()
                n += 1
        if self.opt.get("stamps"):
            e.wait_all_vm()
            e.memtime(sTm, True)
            e.V("v_writelane_b32", v(53), sTm[0], 63)
            e.S("s_lshl_b32", sA, s(2), 2)
            e.S("s_add_u32", sA, sA, sWave)
            e.S("s_lshl_b32", sA, sA, 8)
            e.S("s_add_u32", sA, sA, STAMP)
            e.V("v_lshlrev_b32", TMP[1], 2, vLane)
            e.bstore(v(53), TMP[1], WS, sA)
        if self.opt.get("dbgst") is not None:
            skip = e.newlabel("nodbg")
            e.S("s_lshl_b32", sA, s(2), 2)
            e.S("s_add_u32", sA, sA, sWave)
            e.S("s_cmp_lg_u32", sA, 4 * self.opt.get("dbgwg", 77))
            e.branch("s_cbranch_scc1", skip)
            e.sload(s(84, 2), s(0, 2), 72)
            e.V("v_readlane_b32", sB, v(53), 0)
            e.V("v_subrev_u32", TMP[0], sB, v(53))
            e.V("v_subrev_u32", TMP[1], self.opt["dbgst"], vLane)
            e.V("v_cmp_gt_u32", VCC, 64 - self.opt["dbgst"], TMP[1])
            e.V("v_lshlrev_b32", TMP[1], 2, TMP[1])
            e.wait_all_lg()
            e.S("s_and_saveexec_b64", s(86, 2), VCC)
            e.misc(f"global_store_dword {TMP[1]}, {TMP[0]}, s[84:85]")
            e.S("s_mov_b64", EXEC, -1)
            e.label(skip)
        if self.opt.get("spin"):
            e.wait_all_vm()
            e.V("v_readfirstlane_b32", s(86), v(53))
            e.label("spin_loop")
            e.misc("s_memrealtime s[88:89]")
            e.misc("s_waitcnt lgkmcnt(0)")
            e.misc("s_sub_u32 s88, s88, s86")
            e.misc(f"s_cmp_lt_u32 s88, {self.opt['spin']}")
            e.misc("s_cbranch_scc1 spin_loop")
        e.S("s_add_u32", sA, s(2), sWave)
        e.S("s_cmp_lg_u32", sA, 0)
        e.branch("s_cbranch_scc1", "main_end")
        e.S("s_add_u32", sA, sBase, 16)
        e.V("v_mov_b32", TMP[0], sA)
        e.V("v_mov_b32", TMP[1], EPOCH)
        e.S("s_mov_b64", EXEC, 1)
        e.bstore(TMP[0], TMP[1], WS, 0, 0, "sc1")
        e.label("main_end")
        e.misc("s_endpgm")
```

```python
from asmgen import *
from layout import *
from gen_prep import mk_srd, allreduce_g
import math

BIG = 0x40000000
LOG2E = 1.4426950408889634
LN2 = 0.6931471805599453

IMG = 0
ZT = 6144
RST = 6400
DUMMY = 6912
RING = 8192
RB = 152
LDS_BYTES = RING + RB * KB
FI = 8

WS, OUT, XIN, SB2 = s(8, 4), s(12, 4), s(16, 4), s(20, 4)
sWave, sR, sC, sCG, sRH, sKH, sW2048 = [s(24 + i) for i in range(7)]
sSeg = {"A": s(31), "O": s(32), "B": s(33), "C": s(34)}
sXr, sHr, sSTr, sFRL, sFRG, sFC = [s(35 + i) for i in range(6)]
sA, sB, sD, sE, sDm, sLd = [s(41 + i) for i in range(6)]
sMaskV = s(48, 2)
sCnt = s(50)
sTT = s(51)
sTm = s(52, 2)
sOx, sOxh, sOst, sOo, sOoh, sOh, sOhh, sKv = [s(54 + i) for i in range(8)]
sLocal, sX1 = s(47), s(62)
sStg = s(3)
sSel = [s(84), s(85)]
sOdd = s(86, 2)
vT16L = v(37)
vStg = v(55)
sNan = s(90, 2)
sBase = s(92)
sOk = s(94, 2)
SR1, SR2 = s(84, 4), s(96, 4)
PP = s(64, 16)
pOut, pWs = s(80, 2), s(82, 2)
vDum = v(49)

vLane, vN, vG, vL16 = v(1), v(2), v(3), v(4)
vW = [v(5), v(6), v(7)]
vK = [v(8), v(9), v(10)]
vDma = v(11)
vAx = [v(12), v(13)]
vAo = [v(14), v(15)]
vAh = [v(16), v(17)]
vSt, vStW, vKvSrc, vKvDst, vT16, vZ01, vZ2, vRT, vRW, vRF, vOut, vOut4, vOne = [v(18 + i) for i in range(13)]
vOh, vXs, vXh, vHs, vHh, vFl, vPollR, vPollC, vXch = [v(31 + i) for i in range(9)]
XE = [v(40, 4), v(44, 4)]
vC2 = v(48, 2)
vC2b = v(50, 2)
vLn2 = v(52, 2)
vEps = v(54, 2)
RT = v(56, 8)
ACC = v(64, 64)
FIFO = v(128, 4 * FI)
RES = v(160, 20)
B2F = v(180, 20)
TMP = v(200, 56)


def keepreg(k, h):
    if k < 12:
        return a(160 + 8 * k + 4 * h, 4)
    t = 2 * (k - 12) + h
    return B2F[4 * t:4 * t + 4] if t < 5 else TMP[40 + 4 * (t - 5):44 + 4 * (t - 5)]


class Main:
    def __init__(self, e, opt):
        self.e = e
        self.opt = opt
        self.kname = opt["kname"]
        self.nstamp = 0
        self.segs = []
        pos = 0
        for p in range(2):
            for k, n in (("A", NA), ("O", NO), ("B", NB), ("C", NC)):
                self.segs.append((k, pos, n))
                pos += n
        self.total = pos
        self.ngroups = pos // 8
        self.issued = 0
        self.dmaop = {}
        self.freed = 0
        self.hold = None
        self.visible = 0
        self.seq = []
        self.seqstart = {}
        for p in range(2):
            b = self.segs[4 * p + 0][1]
            self.seqstart[("A1", p)] = len(self.seq)
            self.seq += [(b + i, "W") for i in range(105)]
            self.seqstart[("A2", p)] = len(self.seq)
            self.seq += [(b + 105 + i, "W") for i in range(63)]
            b = self.segs[4 * p + 1][1]
            self.seqstart[("A4", p)] = len(self.seq)
            self.seq += [(b + 2 * i, "K") for i in range(50)]
            b = self.segs[4 * p + 2][1]
            self.seqstart[("B1a", p)] = len(self.seq)
            self.seq += [(b + i, "W") for i in range(21 * B1N)]
            self.seqstart[("B1b", p)] = len(self.seq)
            self.seq += [(b + 21 * B1N + i, "W") for i in range(147 - 21 * B1N)]
            b = self.segs[4 * p + 3][1]
            self.seqstart[("B2", p)] = len(self.seq)
            self.seq += [(b + 2 * i, "K") for i in range(135)]
        self.rd = 0
        self.cons = 0
        self.lastbar = 0
        self.gate = NA // 8
        self.stage_plan = []
        self.staged = {}
        self.stage_mid = None
        self.cap_hold = 1 << 20
        self.deferred = []
        self.spares = []
        self.last_scratch = (0, 0)
        self.restg = None
        self.capg = None
        self.own_end_phase = 0
        self.cap_ops = []
        self.cap_next = 1 << 20
        self.warn = []
        self.model = []
        self.own_end = 0
        self.deadline = lambda: 1 << 30

    def stamp(self, name):
        self.model.append((name, self.e.T))
        if self.opt.get("spinat") == name and not getattr(self, "_sp", 0):
            self._sp = 1
            self.e.wait_all_lg()
            self.e.memtime(sTm, True)
            self.e.V("v_mov_b32", v(53), sTm[0])
        if not self.opt.get("stamps"):
            return
        e = self.e
        e.wait_all_lg()
        e.memtime(sTm)
        e.V("v_writelane_b32", v(53), sTm[0], self.nstamp)
        self.opt.setdefault("stampnames", []).append(name)
        self.nstamp += 1
        assert self.nstamp <= 62

    def endpos(self, i):
        p, k = self.seq[i]
        return p + (2 if k == "K" else 1)

    def ldsaddr(self, pos):
        return RING + (pos % RB) * KB

    def can_issue(self):
        if self.issued >= min(self.ngroups, self.gate):
            return False
        lim = self.freed if self.hold is None else min(self.freed, self.hold)
        lim = min(lim, self.cap_hold)
        return 8 * (self.issued + 1) <= lim + RB

    def dma_group(self):
        e = self.e
        g = self.issued
        self.issued += 1
        pos = 8 * g
        if g in self.stage_plan:
            self.stage_plan = []
        if g in self.staged and self.opt.get("defer", 1) and 8 * g >= self.own_end_phase:
            self.deferred.append(g)
            self.dmaop[g] = None
            yield
            return
        if g in self.staged:
            self.finish_stage()
            k = self.staged[g]
            ad = self.ldsaddr(pos)
            e.V("v_add_u32", vStg, ad, vDma)
            yield
            e.ds_write(vStg, keepreg(k, 0), 0)
            yield
            self.dmaop[g] = e.ds_write(vStg, keepreg(k, 1), 1024)
            yield
            return
        for k, b, n in self.segs:
            if b <= pos < b + n:
                break
        e.S("s_add_u32", M0, sW2048, self.ldsaddr(pos))
        yield
        e.S("s_add_u32", sDm, sSeg[k], (pos - b) * KB)
        yield
        md = "nt" if k in self.opt.get("ntseg", "") else ""
        nvalid = min(8, {"A": 168, "O": 100, "B": 147, "C": 270}[k] - (pos - b)) if self.opt.get("skippad", 1) else 8
        for j in range(2):
            nw = (nvalid - j + 1) // 2
            if nw < 4:
                skip = e.newlabel("nopad")
                e.S("s_cmp_ge_u32", sWave, nw)
                e.branch("s_cbranch_scc1", skip)
                e.cond_begin()
            op = e.dma(vDma, WS, sDm, 1024 * j, md, cls=self.dcls(k))
            if nw < 4:
                e.cond_end()
                e.label(skip)
            if j:
                self.dmaop[g] = op
            yield

    def capture_gen(self, first, n, k0=0):
        e = self.e
        self.cap_hold = self.cap_next = 8 * first
        g1 = self.segs[4][1] // 8
        for k in range(k0, k0 + n):
            g = first + k - k0
            while self.visible < 8 * (g + 1):
                yield "idle"
            e.V("v_add_u32", vStg, self.ldsaddr(8 * g), vDma); yield
            e.ds_read(keepreg(k, 0), vStg, 0); yield
            self.cap_ops.append(e.ds_read(keepreg(k, 1), vStg, 1024))
            self.staged[g1 + g] = k
            self.cap_next = 8 * (g + 1) if k < k0 + n - 1 else 1 << 20
            yield

    def stage_group(self):
        e = self.e
        g = self.stage_plan.pop(0)
        k = len(self.staged) % 12
        self.staged[g] = k
        for sk, b, n in self.segs:
            if b <= 8 * g < b + n:
                break
        e.S("s_add_u32", sStg, sSeg[sk], (8 * g - b) * KB)
        yield
        e.bload(keepreg(k, 0), vDma, WS, sStg, 0, cls=self.dcls(sk))
        yield
        e.bload(keepreg(k, 1), vDma, WS, sStg, 1024, cls=self.dcls(sk))
        self.stage_mid = None
        yield

    def restore_gen(self, n):
        e = self.e
        while n > 0 and self.deferred:
            n -= 1
            g = self.deferred[0]
            k = self.staged[g]
            e.V("v_add_u32", vStg, self.ldsaddr(8 * g), vDma); yield
            old = 8 * g - RB
            clean = old + 8 <= self.last_scratch[0] or old >= self.last_scratch[1]
            if self.spares and self.opt.get("swap", 1) and clean and self.segof(8 * g) == "A":
                sp = self.spares.pop(0)
                e.ds_read(keepreg(sp, 0), vStg, 0); yield
                e.ds_read(keepreg(sp, 1), vStg, 1024); yield
                g2 = g - RB // 8 + self.segs[4][1] // 8
                assert self.segof(8 * g2) == "C"
                self.staged[g2] = sp
            e.ds_write(vStg, keepreg(k, 0), 0); yield
            self.dmaop[g] = e.ds_write(vStg, keepreg(k, 1), 1024)
            self.spares.append(k)
            self.deferred.pop(0)
            yield

    def restore(self, n):
        for _ in self.restore_gen(n):
            pass

    def finish_stage(self):
        while self.stage_mid:
            next(self.stage_mid)

    def stage_step(self):
        e = self.e
        if e.outstanding() >= self.opt.get("qmax", 13):
            return False
        if not self.stage_mid:
            if not self.stage_plan or self.can_issue() or self.mid_group():
                return False
            c = self.dcls("C")
            if e.predict(c) + c[2] > self.deadline():
                return False
            self.stage_mid = self.stage_group()
        next(self.stage_mid)
        return True

    def dcls(self, k):
        return (750, 80, self.opt.get("svcAB", 150)) if k in "AB" else (750, self.opt.get("svcOC", 92), 75)

    def dma_ok(self):
        e = self.e
        if self.mid_group():
            g = self.issued - 1
        elif self.can_issue():
            g = self.issued
        else:
            return False
        if g in self.staged:
            return True
        if e.outstanding() >= self.opt.get("qmax", 13):
            return False
        if self.mid_group() or 8 * g < self.own_end:
            return True
        c = self.dcls(self.segof(8 * g))
        return e.predict(c) + c[2] <= self.deadline()

    def dma_filler(self):
        while True:
            if self.can_issue():
                for _ in self.dma_group():
                    yield True
            else:
                yield False

    def flush_dma_partial(self):
        while self.issued > 0 and (self.issued - 1) not in self.dmaop:
            next(self.dmaf)

    def dma_all(self):
        self.flush_dma_partial()
        while self.can_issue():
            for _ in self.dma_group():
                pass

    def ring_barrier(self, need_idx, extra_ops=(), free_all=False):
        e = self.e
        need_idx = min(need_idx, len(self.seq))
        upto = self.endpos(need_idx - 1) if need_idx > 0 else 0
        g = (upto + 7) // 8
        self.flush_dma_partial()
        while self.issued < g:
            assert self.can_issue(), ("ring deadlock", self.issued, g, self.freed, self.hold)
            self.warn.append(f"forced dma group {self.issued} at seq {self.rd}")
            for _ in self.dma_group():
                pass
        ops = list(extra_ops)
        while self.deferred and self.deferred[0] < g:
            self.warn.append(f"forced restore {self.deferred[0]}")
            next(self.restg)
        for gg in range(self.visible // 8, g):
            assert gg not in self.deferred, gg
            ops.append(self.dmaop[gg])
        e.wait_ops(ops + self.cap_ops)
        self.cap_ops = []
        e.barrier()
        self.cap_hold = self.cap_next
        self.visible = max(self.visible, 8 * g)
        self.freed = self.seq[self.cons][0] if self.cons < len(self.seq) else self.total
        self.lastbar = self.rd

    def issue_read(self):
        e = self.e
        i = self.rd
        if i >= len(self.seq):
            return
        pos, k = self.seq[i]
        assert self.endpos(i) <= self.visible, ("read of invisible block", i, pos, self.visible)
        ad = self.ldsaddr(pos)
        base = (vW if k == "W" else vK)[ad >> 16]
        slot = i % FI
        e.ds_read(FIFO[4 * slot:4 * slot + 4], base, ad & 0xffff)
        self.rd += 1

    def prime(self):
        while self.rd < self.cons + FI and self.rd < len(self.seq) and self.endpos(self.rd) <= self.visible:
            self.issue_read()

    def run_pass(self, n, mf, ntile, xf, fillers=(), chunk=24, stop_reads=None, hooks=None,
                 aload=None, vrate=0.5, amix=(1, 0), over=0, force_bar=None, late=None, see_all=False, tail=2000, mix=0, must=None):
        e = self.e
        fillers = list(fillers)
        lim = stop_reads if stop_reads is not None else len(self.seq)
        st = {"next": 0, "k": 0, "t": 0}
        self.own_end = self.own_end_phase = self.endpos(lim - 1)
        self.deadline = lambda: e.T + (n - st["t"]) * 33 + tail

        i_first = self.cons

        def dma_need():
            g = self.issued - 1 if self.mid_group() else self.issued
            for i in range(self.cons, lim):
                if self.endpos(i) > 8 * g:
                    return i - i_first - FI - chunk
            return 1 << 20

        def one_vmem():
            na, nd = amix
            n0 = len(e.vm)
            if st.get("late"):
                if e.T < st["next"]:
                    return False
                try:
                    next(st["late"])
                except StopIteration:
                    st["late"] = None
                    return False
            else:
                na_ = (aload.n // 2) * ntile if (aload is not None and not aload.done) else 1 << 21
                nd_ = dma_need() if (self.mid_group() or self.can_issue()) else 1 << 22
                run = self.opt.get("run", 0)
                if run and na_ < 1 << 21 and nd_ < 1 << 20:
                    if st.get("cur") == "a" and na_ - run <= nd_:
                        nd_ = max(nd_, na_)
                    elif st.get("cur") == "d" and nd_ - run < na_:
                        na_ = max(na_, nd_ + 1)
                    st["cur"] = "a" if na_ <= nd_ else "d"
                urgent = min(na_, nd_) - st["t"] <= self.opt.get("horizon", 30) + run
                if e.T < st["next"] and not urgent:
                    return False
                if mix and na_ < 1 << 21 and st["k"] % mix == mix - 1 and na_ - st["t"] > self.opt.get("mixh", 10) and self.dma_ok():
                    next(self.dmaf)
                elif na_ <= nd_ and na_ < 1 << 21:
                    if e.outstanding() >= self.opt.get("qmax", 13) and not urgent:
                        return False
                    if aload.n // 2 >= st["t"] // ntile + aload.win - 1:
                        return False
                    aload.step()
                elif nd_ < 1 << 22 and (urgent or self.dma_ok()):
                    next(self.dmaf)
                elif not self.stage_step():
                    return False
            if len(e.vm) > n0:
                st["k"] += 1
                st["next"] = e.T + self.opt.get("vgap", 24)
            return True

        def fill(budget):
            while budget > 0:
                n0 = e.ninst
                did = one_vmem()
                if not did:
                    for f in list(fillers):
                        try:
                            if next(f) == "idle":
                                continue
                            did = True
                            break
                        except StopIteration:
                            fillers.remove(f)
                if not did:
                    return
                budget -= e.ninst - n0

        def waits_for(t):
            regs = []
            for tt in (t, t + 1):
                if tt < n:
                    ks = tt // ntile
                    if aload is not None:
                        aload.upto(ks)
                    idx = self.cons + (tt - t)
                    if idx < self.rd:
                        regs += FIFO[4 * (idx % FI):4 * (idx % FI) + 4].regs()
                    regs += xf(ks, 0).regs() + xf(ks, 1).regs()
            return e._pending(regs)

        e.wait_ops(waits_for(0))
        if aload is not None:
            self.stamp("1st")
            self.warn.append(f"fill {8 * self.issued - self.seq[self.cons][0]}")
        for t in range(n):
            if aload is not None and self.opt.get("midstamp") and t == n // 2:
                self.stamp("half")
            i = self.cons
            assert self.rd > i, ("fifo underrun", i)
            W = FIFO[4 * (i % FI):4 * (i % FI) + 4]
            st["t"] = t
            if must is not None and t == n - ntile - 2:
                for _ in must:
                    self.warn.append("must drained late")
            if t == int(n * self.opt.get("cfrac", 0.8)) and n > 30:
                fillers.insert(0, self.code_touch_gen())
            if hooks and hooks.get("add"):
                g_ = hooks["add"](t)
                if g_:
                    fillers.append(g_)
            ov = over if fillers else 0
            mf(t, W, 0)
            bar = self.rd < lim and (self.endpos(self.rd) > self.visible or self.rd - self.lastbar >= chunk)
            bar = bar or t == force_bar
            if late and t >= late[0] and not st.get("lateon") and (aload is None or aload.done) and 8 * self.issued >= min(self.own_end, self.endpos(min(i_first + n + FI, lim) - 1)) and not self.mid_group():
                st["late"] = late[1]
                st["lateon"] = True
                self.warn.append(f"late at {t}")
            if bar:
                ex, after = [], None
                if hooks and hooks.get("bar"):
                    ex, after = hooks["bar"](t)
                self.ring_barrier(lim if see_all else min(self.rd + chunk, lim), ex)
                if after:
                    after()
            else:
                fill(2 + ov)
            mf(t, W, 1)
            self.cons += 1
            used = 0
            if self.rd < lim:
                self.issue_read()
                used = 1
            pend = waits_for(t + 1) if (t % 2 == 1 and t + 1 < n) else []
            fill(2 + ov - used - (1 if pend else 0))
            if pend:
                e.wait_ops(waits_for(t + 1))
        if late and not st.get("lateon"):
            st["late"] = late[1]
        for f in fillers + ([st["late"]] if st.get("late") else []):
            if f is not self.capg:
                for _ in f:
                    pass

    def segof(self, pos):
        for k, b, n in self.segs:
            if b <= pos < b + n:
                return k
        return "O"

    def mid_group(self):
        return self.issued > 0 and (self.issued - 1) not in self.dmaop

    def dma_burst(self, maxgroups=99):
        e = self.e
        self.flush_dma_partial()
        gs = []
        while self.can_issue() and len(gs) < maxgroups:
            gs.append(self.issued)
            self.issued += 1
        for w in (1, 2, 3):
            mine = gs[w - 1::3]
            if not mine:
                continue
            skip = e.newlabel("noburst")
            e.S("s_cmp_lg_u32", sWave, w)
            e.branch("s_cbranch_scc1", skip)
            e.cond_begin()
            for g in mine:
                pos = 8 * g
                for k, b, n in self.segs:
                    if b <= pos < b + n:
                        break
                for h in range(2):
                    e.S("s_mov_b32", M0, self.ldsaddr(pos) + h * 4096)
                    e.S("s_add_u32", sDm, sSeg[k], (pos - b) * KB + h * 4096)
                    for q in range(4):
                        self.dmaop[g] = e.dma(vL16, WS, sDm, q * 1024)
            e.cond_end()
            e.label(skip)

    def prologue(self):
        e = self.e
        e.S("s_cmp_ge_u32", s(2), 256)
        e.branch("s_cbranch_scc1", "main_end")
        if self.opt.get("stamps"):
            e.V("v_mov_b32", v(53), 0)
        self.stamp("t0")
        if self.opt.get("spin") and not self.opt.get("spinat"):
            e.memtime(sTm, True)
            e.V("v_mov_b32", v(53), sTm[0])
        e.sload(PP, s(0, 2), 0)
        e.sload(pOut, s(0, 2), 64)
        e.sload(pWs, s(0, 2), 80)
        T0, T1, T2, T3 = TMP[48], TMP[49], TMP[50], TMP[51]
        e.S("s_getpc_b64", s(88, 2))
        e.label("main_pc")
        e.V("v_lshlrev_b32", T2, 5, v(0))
        e.S("s_sub_u32", s(88), s(88), "main_pc-" + self.kname)
        e.S("s_subb_u32", s(89), s(89), 0)
        e.misc(f"global_load_dword {vDum}, {T2}, s[88:89]")
        e._vm([], (2000, 30, 0))
        e.V("v_lshrrev_b32", T0, 6, v(0))
        e.V("v_and_b32", vLane, 63, v(0))
        e.V("v_readfirstlane_b32", sWave, T0)
        e.S("s_lshr_b32", sB, s(2), 3)
        e.S("s_mul_i32", sB, sB, 1792)
        e.S("s_add_u32", sB, sB, 8192)
        e.V("v_lshl_add_u32", T2, v(0), 3, sB)
        e.V("v_min_u32", T2, self.opt.get("code_bytes", 32768) - 4, T2)
        e.misc(f"global_load_dword {vDum}, {T2}, s[88:89]")
        e._vm([], (2000, 30, 0))
        e.V("v_lshlrev_b32", vL16, 4, vLane)
        e.V("v_and_b32", vN, 15, vLane)
        e.V("v_lshrrev_b32", vG, 4, vLane)
        self.vBig = TMP[52]
        e.V("v_mov_b32", self.vBig, BIG)
        e.S("s_and_b32", sA, s(2), 7)
        e.S("s_lshl_b32", sA, sA, 1)
        e.S("s_lshr_b32", sB, s(2), 7)
        e.S("s_add_u32", sR, sA, sB)
        e.S("s_bfe_u32", sC, s(2), (4 << 16) | 3)

    def gather(self, raw, srd, sstride, vaddr, srow, n=8):
        e = self.e
        e.S("s_mul_i32", sLd, srow, sstride)
        for i in range(n):
            e.bload(raw[i], vaddr, srd, sLd, 0, w="ushort", cls=(2500, 32, 0))
            if i < n - 1:
                e.S("s_add_u32", sLd, sLd, sstride)

    def pack(self, raw, n=4):
        for i in range(n):
            self.e.V("v_lshl_or_b32", raw[i], raw[2 * i + 1], 16, raw[2 * i])

    def colsum(self, regs, ex, vs, vt):
        e = self.e
        e.V("v_mov_b32", vs, 0)
        for r_ in regs:
            e.V("v_dot2c_f32_bf16", vs, r_, vOne)
        allreduce_g(e, vs, vt)
        e.V("v_sub_f32", vs, 0, vs)
        e.V("v_cvt_pk_bf16_f32", vt, vs, vs)
        e.V("v_lshlrev_b32", vt, 16, vt)
        e.V("v_sub_f32", vt, vs, vt)
        e.V("v_cvt_pk_bf16_f32", ex[0], vs, vt)
        e.V("v_and_b32", ex[1], "0xffff", ex[0])

    def startup(self):
        e = self.e
        vBig = self.vBig
        RAW1, EX = ACC[0:20], ACC[20:24]
        RAW2 = TMP[8:40]
        vCol, vReg, vLeft, vT0, vT1, vSum, vLd = [FIFO[i] for i in range(7)]
        vA0, vA1, vA2, vSt2, vBias = RES[8], RES[9], B2F[8], B2F[9], ACC[38]
        sT, sP = s(7), s(93)
        sStr = s(56)
        XJ = [RES[0:4], RES[4:8], B2F[0:4]]
        XD, XA, XB_ = B2F[4], ACC[32], ACC[33]
        XM = [s(90), s(91), s(94)]
        T0, T1, T2, T3 = TMP[48], TMP[49], TMP[50], TMP[51]
        e.V("v_lshrrev_b32", T1, 3, vLane)
        e.V("v_and_b32", T3, 7, vLane)
        e.V("v_mul_u32_u24", T0, 1280, T3)
        e.V("v_lshl_add_u32", XA, T1, 4, T0)
        e.V("v_lshrrev_b32", T2, 4, vLane)
        e.V("v_lshl_add_u32", XB_, T2, 7, XA)
        e.V("v_lshlrev_b32", XD, 8, T1)
        e.V("v_lshl_add_u32", XD, T3, 4, XD)
        e.S("s_lshl_b32", sE, sR, 4)
        e.S("s_add_u32", sE, sE, sC)
        e.S("s_mul_i32", sE, sE, 8 * 1280)
        e.S("s_mul_i32", sD, sWave, 3)
        mk_srd(e, XIN, PP[0:2], XSZ)
        for k in range(3):
            e.S("s_add_u32", XM[k], sD, k)
            e.S("s_cmp_ge_u32", XM[k], 8)
            e.S("s_cselect_b64", VCC, -1, 0)
            e.S("s_cselect_b32", sA, 40, 10)
            e.S("s_cselect_b32", sB, 8 - 8 * 40, 0)
            e.V("v_cndmask_b32", T0 if k != 1 else T1, XA, XB_, VCC)
            e.S("s_mul_i32", sA, sA, XM[k])
            e.S("s_add_u32", sA, sA, sB)
            e.S("s_lshl_b32", sA, sA, 4)
            e.S("s_add_u32", sA, sA, sE)
            e.S("s_cmp_ge_u32", XM[k], 10)
            e.S("s_cselect_b32", sA, BIG, sA)
            e.S("s_cselect_b32", XM[k], BIG // 2048, XM[k])
            e.bload(XJ[k], T0 if k != 1 else T1, XIN, sA, 0, cls=(2000, 100, 0))
        self.stamp("issx")
        e.S("s_lshr_b32", sP, sR, 1)
        e.S("s_and_b32", sT, sR, 1)
        e.S("s_lshl_b32", sT, sT, 2)
        e.S("s_add_u32", sT, sT, sWave)
        e.S("s_mov_b32", s(4), (656 << 20) | (660 << 10) | 640)
        e.S("s_mov_b32", s(5), 0)
        e.S("s_mul_i32", sA, sT, 10)
        e.S("s_lshr_b32", sA, s(4), sA)
        e.S("s_and_b32", sA, sA, 1023)
        for t, val in ((3, 1280), (4, 1300), (5, 0), (6, 1), (7, 32)):
            e.S("s_cmp_eq_u32", sT, t)
            e.S("s_cselect_b32", sA, val, sA)
        e.S("s_mul_i32", sB, sC, 40)
        e.S("s_add_u32", sA, sA, sB)
        e.V("v_add_u32", vCol, sA, vN)
        e.V("v_add_u32", vT0, vCol, vN)
        e.S("s_sub_u32", sB, sT, 5)
        e.S("s_cmp_lt_u32", sB, 2)
        e.S("s_cselect_b64", VCC, -1, 0)
        e.V("v_cndmask_b32", vCol, vCol, vT0, VCC)
        e.V("v_lshrrev_b32", vT0, 3, vN)
        e.V("v_mul_u32_u24", vT0, 632 - 32, vT0)
        e.V("v_lshrrev_b32", vT1, 2, vN)
        e.V("v_lshl_add_u32", vT0, vT1, 4, vT0)
        e.V("v_add3_u32", vT0, vT0, vN, sA)
        e.S("s_cmp_eq_u32", sT, 2)
        e.S("s_cselect_b64", VCC, -1, 0)
        e.V("v_cndmask_b32", vCol, vCol, vT0, VCC)
        e.V("v_lshlrev_b32", vCol, 1, vCol)
        e.S("s_cmp_eq_u32", sT, 7)
        e.S("s_cselect_b32", sB, 8, 16)
        e.V("v_cmp_le_u32", VCC, sB, vN)
        e.S("s_mov_b32", sStr, 3840)
        e.V("v_cndmask_b32", vCol, vCol, vBig, VCC)
        e.S("s_mov_b32", sD, 8 * 3840)
        e.V("v_mad_u32_u24", vReg, vG, sD, vCol)
        e.V("v_and_b32", vT0, 1, vG)
        e.V("v_lshrrev_b32", vT1, 1, vG)
        e.V("v_lshl_add_u32", vLd, vT0, 1, vT1)
        e.S("s_mov_b32", sD, 4 * 3840)
        e.V("v_mad_u32_u24", vLeft, vLd, sD, vCol)
        mk_srd(e, SR1, PP[2:4], D * 3 * D * 2)
        e.S("s_mul_i32", sB, sP, 80)
        self.gather(RAW1[0:8], SR1, sStr, vReg, sB)
        e.S("s_add_u32", sA, sB, 32)
        self.gather(RAW1[8:16], SR1, sStr, vReg, sA)
        e.S("s_add_u32", sA, sB, 64)
        self.gather(RAW1[16:20], SR1, sStr, vLeft, sA, 4)
        self.stamp("iss1")
        def r2touch():
            e.S("s_lshl_b32", sA, s(2), 2)
            e.S("s_add_u32", sA, sA, sWave)
            e.V("v_min_u32", T0, 17, vLane)
            e.V("v_lshlrev_b32", T0, 7, T0)
            e.S("s_mul_i32", sB, sA, 2160)
            mk_srd(e, SR2, PP[8:10], F * D * 2)
            e.touch(vDum, T0, SR2, sB, 0, cls=(2000, 30, 0))
            mk_srd(e, SR2, PP[12:14], F * D * 2)
            e.touch(vDum, T0, SR2, sB, 0, cls=(2000, 30, 0))
            e.V("v_min_u32", T0, 7 * 128, T0)
            mk_srd(e, SR2, PP[4:6], D * D * 2)
            e.S("s_mul_i32", sB, sA, 800)
            e.touch(vDum, T0, SR2, sB, 0, cls=(2000, 30, 0))
        if self.opt.get("r2touch", 3) == 1:
            r2touch()
        if self.opt.get("wsoff"):
            e.S("s_add_u32", pWs[0], pWs[0], self.opt["wsoff"] << 20)
            e.S("s_addc_u32", pWs[1], pWs[1], 0)
        mk_srd(e, WS, pWs, WS_USED)
        e.sload(sBase, pWs, EPOCH)
        e.S("s_mov_b32", sA, "0x3f803f80")
        e.V("v_mov_b32", vOne, sA)
        e.S("s_and_b32", sCG, sC, 7)
        e.S("s_lshr_b32", sRH, sC, 3)
        if self.opt.get("r2touch", 0) == 3:
            r2touch()
        mk_srd(e, SB2, PP[14:16], D * 2)
        if not self.opt.get("l2first", 1):
            self.prologue2()
            self.stamp("pro2")
        sU, sP, sStr, sJ = s(88), s(89), s(100), s(101)
        rows = [s(3 + i) for i in range(4)]
        D2 = [s(64), s(65), s(66), s(67)]
        sDB, sDX = s(70), s(71)
        vSel0, vSel1 = vA1, vA2
        mk_srd(e, SR1, PP[10:12], F * 2)
        e.S("s_lshl_b32", sJ, sRH, 4)
        e.S("s_add_u32", sJ, sJ, sR)
        if self.opt.get("bal", 1):
            e.S("s_cmp_eq_u32", sJ, 15)
            e.S("s_cselect_b32", sA, 39, 127)
            e.S("s_mul_i32", sJ, sJ, 3)
            e.S("s_add_u32", sJ, sJ, sWave)
            e.S("s_add_u32", sJ, sJ, 39)
            e.S("s_cmp_ge_u32", sJ, 97)
            e.S("s_cselect_b32", sB, 97, 0)
            e.S("s_sub_u32", sJ, sJ, sB)
            e.S("s_cmp_eq_u32", sWave, 0)
            e.S("s_cselect_b32", sJ, sA, sJ)
        else:
            e.S("s_lshl_b32", sJ, sJ, 2)
            e.S("s_add_u32", sJ, sJ, sWave)
        e.V("v_lshrrev_b32", vT0, 1, vG)
        e.V("v_and_b32", vT1, 1, vG)
        e.V("v_mov_b32", vSt2, vL16)
        e.S("s_mov_b32", sDX, BIG)
        lo, lc, lj = e.newlabel("job_wo"), e.newlabel("job_w2"), e.newlabel("job_go")

        def unit(sbase, nu, stride, ca, cb, nreg, dB):
            e.S("s_lshl_b32", sA, sU, 5)
            e.S("s_add_u32", sA, sA, sbase)
            e.S("s_lshl_b32", sA, sA, 1)
            e.S("s_mov_b32", sDB, dB)
            e.S("s_cmp_lt_u32", sU, nu)
            e.S("s_cselect_b64", VCC, -1, 0)
            e.S("s_cselect_b32", sDB, sDB, BIG)
            e.V("v_lshlrev_b32", vCol, 2, vN)
            e.V("v_and_b32", vReg, 14, vN)
            e.V("v_lshlrev_b32", vReg, 1, vReg)
            e.V("v_cndmask_b32", vCol, vReg, vCol, VCC)
            e.V("v_add_u32", vCol, sA, vCol)
            e.V("v_and_b32", vReg, 1, vN)
            e.V("v_cndmask_b32", vReg, vReg, 0, VCC)
            e.S("s_mov_b32", sA, "0x02020202")
            e.V("v_mul_lo_u32", vReg, vReg, sA)
            e.V("v_add_u32", vSel0, "0x05040100", vReg)
            e.S("s_mov_b32", sStr, stride)
            e.S("s_mov_b32", sD, 8 * stride)
            e.V("v_mul_u32_u24", vReg, sD, vG)
            e.S("s_mov_b32", sD, ca * stride)
            e.V("v_mul_u32_u24", vLeft, sD, vT0)
            e.S("s_mov_b32", sD, cb * stride)
            e.V("v_mad_u32_u24", vLeft, vT1, sD, vLeft)
            e.S("s_cmp_lt_u32", sP, nreg)
            e.S("s_cselect_b64", VCC, -1, 0)
            e.V("v_cndmask_b32", vA0, vLeft, vReg, VCC)

        def split_dests(half):
            for b in range(4):
                e.S("s_lshl_b32", sA, sP, 2)
                e.S("s_add_u32", sA, sA, b)
                e.S("s_mul_i32", sD, sA, 10)
                e.S("s_cmp_ge_u32", sA, half)
                e.S("s_cselect_b32", sB, 10 * half - 1, 0)
                e.S("s_sub_u32", sD, sD, sB)
                e.S("s_add_u32", sD, sD, sE)
                e.S("s_lshl_b32", D2[b], sD, 10)
                if half == 27 and b >= 2:
                    e.S("s_cmp_ge_u32", sA, 54)
                    e.S("s_cselect_b32", D2[b], BIG, D2[b])

        def div3(dq, dr, src):
            e.S("s_mul_i32", dq, src, 43691)
            e.S("s_lshr_b32", dq, dq, 17)
            e.S("s_mul_i32", sA, dq, 3)
            e.S("s_sub_u32", dr, src, sA)

        e.S("s_cmp_ge_u32", sJ, 55)
        e.branch("s_cbranch_scc1", lc)
        e.S("s_cmp_ge_u32", sJ, 40)
        e.branch("s_cbranch_scc1", lo)
        e.cond_begin()
        mk_srd(e, SR2, PP[8:10], D * F * 2)
        e.S("s_and_b32", sU, sJ, 3)
        e.S("s_lshr_b32", sP, sJ, 2)
        e.S("s_cmp_ge_u32", sP, 5)
        e.S("s_cselect_b32", sA, 5, 0)
        e.S("s_cselect_b32", sJ, 8, 0)
        e.S("s_sub_u32", sP, sP, sA)
        e.S("s_add_u32", sJ, sJ, sCG)
        e.S("s_mul_i32", sE, sJ, 112)
        e.S("s_max_u32", sB, sJ, 12)
        e.S("s_sub_u32", sB, sB, 12)
        e.S("s_lshl_b32", sB, sB, 4)
        e.S("s_sub_u32", sE, sE, sB)
        unit(sE, 3, 3456, 80, 8, 4, 1024)
        e.S("s_lshl_b32", sA, sU, 4)
        e.S("s_add_u32", sA, sA, sJ)
        e.S("s_cmp_ge_u32", sA, 3 * 16 + 12)
        e.S("s_cselect_b64", VCC, -1, 0)
        e.V("v_cndmask_b32", vCol, vCol, vBig, VCC)
        for b in range(4):
            e.S("s_mul_i32", sA, sP, 160)
            e.S("s_add_u32", sA, sA, 80 * (b >> 1) + 32 * (b & 1))
            e.S("s_cmp_eq_u32", sP, 4)
            e.S("s_cselect_b32", rows[b], 160 * b + 64, sA)
        e.S("s_cmp_lt_u32", sU, B1N // 2)
        e.S("s_cselect_b32", s(79), B1N, 7 - B1N)
        e.S("s_cselect_b32", sE, 0, 20 * B1N)
        e.S("s_lshl_b32", sA, sU, 1)
        e.S("s_add_u32", sE, sE, sA)
        e.S("s_mul_i32", sB, sJ, NB)
        e.S("s_add_u32", sE, sE, sB)
        e.S("s_add_u32", sE, sE, WB // KB)
        for b in range(4):
            e.S("s_lshl_b32", sA, sP, 2)
            e.S("s_add_u32", sA, sA, b)
            e.S("s_mul_i32", sA, sA, s(79))
            e.S("s_add_u32", sA, sA, sE)
            e.S("s_lshl_b32", D2[b], sA, 10)
        e.S("s_mul_i32", sD, s(79), 20)
        e.S("s_add_u32", sD, sD, sE)
        e.S("s_lshl_b32", sDX, sD, 10)
        e.branch("s_branch", lj)
        e.cond_end()
        e.label(lo)
        e.cond_begin()
        mk_srd(e, SR2, PP[4:6], D * D * 2)
        e.S("s_sub_u32", sJ, sJ, 40)
        div3(sP, sU, sJ)
        e.S("s_mul_i32", sE, sCG, 80)
        unit(sE, 2, 1280, 80, 40, 4, 2048)
        for b in range(4):
            e.S("s_mul_i32", sA, sP, 160)
            e.S("s_add_u32", sA, sA, 40 * b)
            e.S("s_cmp_eq_u32", sP, 4)
            e.S("s_cselect_b32", rows[b], 160 * b + 32, sA)
        e.S("s_mul_i32", sE, sCG, NO)
        e.S("s_add_u32", sE, sE, WO // KB)
        e.S("s_lshl_b32", sA, sU, 2)
        e.S("s_add_u32", sE, sE, sA)
        split_dests(10)
        e.branch("s_branch", lj)
        e.cond_end()
        e.label(lc)
        e.cond_begin()
        mk_srd(e, SR2, PP[12:14], F * D * 2)
        e.S("s_sub_u32", sJ, sJ, 55)
        div3(sP, sU, sJ)
        e.S("s_mul_i32", sE, sCG, 80)
        unit(sE, 2, 1280, 112, 8, 12, 2048)
        e.S("s_cmp_ge_u32", sP, 14)
        e.S("s_cselect_b64", VCC, -1, 0)
        e.V("v_cndmask_b32", vCol, vCol, vBig, VCC)
        e.V("v_cndmask_b32", vSt2, vSt2, vBig, VCC)
        e.S("s_min_u32", sP, sP, 13)
        for b in range(4):
            e.S("s_lshl_b32", sD, sP, 2)
            e.S("s_add_u32", sD, sD, b)
            e.S("s_mul_i32", sA, sD, 43691)
            e.S("s_lshr_b32", sA, sA, 17)
            e.S("s_lshl_b32", sA, sA, 4)
            e.S("s_min_u32", sA, sA, 192)
            e.S("s_lshl_b32", sB, sD, 5)
            e.S("s_add_u32", sA, sA, sB)
            e.S("s_mul_i32", sB, sD, 224)
            e.S("s_sub_u32", sB, sB, 224 * 48 - 96)
            e.S("s_cmp_ge_u32", sD, 48)
            e.S("s_cselect_b32", rows[b], sB, sA)
        e.S("s_mul_i32", sE, sCG, NC)
        e.S("s_add_u32", sE, sE, WC // KB)
        e.S("s_lshl_b32", sA, sU, 2)
        e.S("s_add_u32", sE, sE, sA)
        split_dests(27)
        e.cond_end()
        e.label(lj)
        e.V("v_add_u32", vA0, vA0, vCol)
        e.S("s_cmp_lt_u32", sP, 2)
        e.S("s_cselect_b64", VCC, -1, 0)
        e.V("v_cndmask_b32", vBias, vBig, vCol, VCC)
        e.V("v_mov_b32", vSel1, "0x07060302")
        e.V("v_add_u32", vT0, sP, vG)
        e.V("v_lshrrev_b32", vT1, 1, vT0)
        e.V("v_lshlrev_b32", vLd, 4, vN)
        e.V("v_lshl_add_u32", vLd, vT1, 8, vLd)
        e.V("v_and_b32", vT0, 1, vT0)
        e.V("v_lshl_add_u32", vLd, vT0, 3, vLd)
        e.S("s_cmp_eq_u32", sP, 4)
        e.S("s_cselect_b32", sA, 4, 1)
        e.V("v_cmp_gt_u32", VCC, sA, vG)
        e.V("v_cndmask_b32", vLd, vBig, vLd, VCC)
        e.S("s_lshl_b32", sA, sC, 4)
        e.S("s_add_u32", sA, sA, sR)
        e.S("s_mul_i32", sA, sA, KVSZ)
        e.S("s_mul_i32", sB, sWave, KVSZ // 4)
        e.S("s_add_u32", sA, sA, sB)
        e.S("s_add_u32", s(79), sA, KVB[1])
        self.stamp("dec2")
        def r2_loads():
            for b in range(4):
                e.S("s_mul_i32", sE, rows[b], sStr); yield
                for i in range(8):
                    e.bload(RAW2[8 * b + i], vA0, SR2, sE, 0, cls=(1500, 32, 0)); yield
                    if i < 7:
                        e.S("s_add_u32", sE, sE, sStr); yield
            e.bload(vBias, vBias, SR1, 0, 0, cls=(1500, 10, 0)); yield

        self.r2_loads = r2_loads()
        if self.opt.get("l2first", 1):
            for _ in self.r2_loads:
                pass
            self.stamp("iss2a")
            self.prologue2()
            self.stamp("pro2")
        sP2 = sP
        wT0, wT1, wLd, wSum = FIFO[8], FIFO[9], FIFO[10], FIFO[11]
        sT, sP = s(7), s(93)
        ops1 = []
        e.S("s_lshr_b32", sA, sC, 1)
        e.S("s_lshl_b32", sB, sR, 3)
        e.S("s_add_u32", sA, sA, sB)
        e.S("s_mul_i32", sA, sA, 20 * KB)
        e.S("s_and_b32", sB, sC, 1)
        e.S("s_lshl_b32", sB, sB, 7)
        e.S("s_add_u32", sA, sA, sB)
        e.S("s_add_u32", sA, sA, XB[0])
        for k in range(3):
            e.S("s_lshl_b32", sB, XM[k], 11)
            e.S("s_add_u32", sB, sB, sA)
            ops1.append(e.bstore(XJ[k], XD, WS, sB, 0, "sc1", cls=(1000, 70, 0)))
        xs = ACC[26:28]
        xz = ACC[24:26]
        MK = ACC[28:32]
        for r_ in (xs[0], xs[1], xz[0], xz[1]):
            e.V("v_mov_b32", r_, 0)
        for k in range(3):
            for i in range(4):
                e.V("v_dot2c_f32_bf16", xs[0], XJ[k][i], vOne)
                e.V("v_dot2c_f32_bf16", xs[1], XJ[k][i], XJ[k][i])
        for h in range(2):
            e.V("v_add_f32_dpp", xs[h], xs[h], xs[h], mods="row_ror:8 row_mask:0xf bank_mask:0xf")
            allreduce_g(e, xs[h], wT0)
        e.S("s_lshl_b32", sA, sR, 3)
        e.S("s_add_u32", sA, sA, sWave)
        e.S("s_lshl_b32", sA, sA, 10)
        e.S("s_lshl_b32", sB, sC, 6)
        e.S("s_add_u32", sA, sA, sB)
        e.S("s_add_u32", sA, sA, STB[0])
        e.S("s_add_u32", sB, sA, 4096)
        e.V("v_lshlrev_b32", wT0, 3, vLane)
        e.S("s_mov_b64", EXEC, "0xff")
        ops1.append(e.bstore(xs, wT0, WS, sA, 0, "sc1", cls=(1000, 20, 0)))
        ops1.append(e.bstore(xz, wT0, WS, sB, 0, "sc1", cls=(1000, 20, 0)))
        e.S("s_mov_b64", EXEC, -1)
        self.stamp("xst")
        e.S("s_cmp_lt_u32", sT, 5)
        e.S("s_cselect_b32", sE, 5, 3)
        e.S("s_cselect_b32", sA, 0, 100)
        e.S("s_add_u32", sA, sA, sT)
        e.S("s_mul_i32", sB, sC, NA)
        e.S("s_add_u32", sA, sA, sB)
        e.S("s_add_u32", sA, sA, WA // KB)
        e.S("s_lshl_b32", sA, sA, 10)
        e.S("s_lshl_b32", sE, sE, 10)
        e.S("s_mul_i32", sB, sP, sE)
        e.S("s_lshl_b32", sB, sB, 1)
        e.S("s_add_u32", sB, sB, sA)
        self.pack(RAW1[0:8])
        ops1.append(e.bstore(RAW1[0:4], vL16, WS, sB, 0, "sc1", cls=(1000, 70, 0)))
        e.S("s_add_u32", sB, sB, sE)
        self.pack(RAW1[8:16])
        ops1.append(e.bstore(RAW1[8:12], vL16, WS, sB, 0, "sc1", cls=(1000, 70, 0)))
        e.S("s_lshr_b32", sB, sP, 1)
        e.S("s_add_u32", sB, sB, 16)
        e.S("s_mul_i32", sB, sB, sE)
        e.S("s_add_u32", sB, sB, sA)
        e.S("s_and_b32", sD, sP, 1)
        e.S("s_lshl_b32", s(95), sD, 9)
        e.S("s_add_u32", sB, sB, s(95))
        e.V("v_lshlrev_b32", wT0, 8, vG)
        e.V("v_and_b32", wT0, 256, wT0)
        e.V("v_lshl_add_u32", wT0, vN, 4, wT0)
        e.V("v_lshrrev_b32", wT1, 1, vG)
        e.V("v_lshl_add_u32", wLd, wT1, 3, wT0)
        self.pack(RAW1[16:20], 2)
        ops1.append(e.bstore(RAW1[16:18], wLd, WS, sB, 0, "sc1", cls=(1000, 40, 0)))
        self.colsum([RAW1[i] for i in (0, 1, 2, 3, 8, 9, 10, 11, 16, 17)], EX, wSum, wT0)
        e.S("s_mul_i32", sB, sE, 20)
        e.S("s_add_u32", sB, sB, sA)
        e.S("s_lshr_b32", sA, sP, 1)
        e.S("s_lshl_b32", sA, sA, 8)
        e.S("s_add_u32", sB, sB, sA)
        e.S("s_lshl_b32", sD, sD, 3)
        e.S("s_add_u32", sB, sB, sD)
        e.S("s_mov_b64", EXEC, "0xffff")
        ops1.append(e.bstore(EX[0:2], vL16, WS, sB, 0, "sc1", cls=(1000, 20, 0)))
        e.S("s_mov_b64", EXEC, -1)
        self.stamp("r1")
        if self.opt.get("r2touch", 3) == 2:
            r2touch()
        for i in range(4):
            e.V("v_mov_b32", MK[i], -1)
        e.S("s_lshl_b32", sA, sC, 4)
        e.S("s_add_u32", sA, sA, sR)
        e.S("s_mul_i32", sA, sA, KVSZ)
        e.S("s_mul_i32", sB, sWave, KVSZ // 4)
        e.S("s_add_u32", sA, sA, sB)
        e.S("s_add_u32", sA, sA, KVB[0])
        e.S("s_mov_b64", EXEC, "0xfffffff")
        ops1.append(e.bstore(MK, vL16, WS, sA, 0, "sc1", cls=(1000, 40, 0)))
        e.S("s_mov_b64", EXEC, -1)
        sP = sP2
        self.ops2 = []

        vs, vt, MK = TMP[48], TMP[49], TMP[40:44]
        EV = ACC[40:56]

        def r2_pack():
            for b in range(4):
                raw = RAW2[8 * b:8 * b + 8]
                for i in range(4):
                    e.V("v_perm_b32", EV[4 * b + i], raw[2 * i + 1], raw[2 * i], vSel0)
                for i in range(4):
                    e.V("v_perm_b32", raw[i], raw[2 * i + 1], raw[2 * i], vSel1)
            for i in range(4):
                e.V("v_mov_b32", MK[i], -1)
            e.V("v_cmp_eq_u32", sNan, 0, vG)
            for h in range(2):
                ex = TMP[44 + 2 * h:46 + 2 * h]
                self.colsum([EV[i] for i in range(16)] if h == 0 else [RAW2[8 * b + i] for b in range(4) for i in range(4)], ex, vs, vt)
                e.V("v_perm_b32", vt, vBias, vBias, vSel0 if h == 0 else vSel1)
                e.V("v_and_b32", vt, "0xffff0000", vt)
                e.V("v_or_b32", ex[1], ex[1], vt)
                e.V("v_cndmask_b32", ex[0], 0, ex[0], sNan)
                e.V("v_cndmask_b32", ex[1], 0, ex[1], sNan)
            e.V("v_mov_b32", vSel0, vLd)
            yield

        def r2_stores():
            for b in range(4):
                self.ops2.append(e.bstore(EV[4 * b:4 * b + 4], vSt2, WS, D2[b], 0, self.opt.get("r2mod", "sc1"), cls=(1000, 70, 0)))
                e.S("s_add_u32", sA, D2[b], sDB)
                self.ops2.append(e.bstore(RAW2[8 * b:8 * b + 4], vSt2, WS, sA, 0, self.opt.get("r2mod", "sc1"), cls=(1000, 70, 0)))
            e.S("s_mov_b64", EXEC, "0xfffffff")
            self.ops2.append(e.bstore(MK, vL16, WS, s(79), 0, "sc1", cls=(1000, 40, 0)))
            e.S("s_mov_b64", EXEC, -1)
            for h in range(2):
                if h:
                    e.S("s_add_u32", sDX, sDX, sDB)
                self.ops2.append(e.bstore(TMP[44 + 2 * h:46 + 2 * h], vSel0, WS, sDX, 0, "sc1", cls=(1000, 20, 0)))
        self.r2_stores = r2_stores
        self.r2_pack = r2_pack()
        npre = self.opt.get("r2pre", 50)
        for _ in self.r2_loads:
            npre -= 1
            if npre <= 0:
                break
        if self.opt.get("l2first", 1):
            for _ in self.r2_pack:
                pass
        self.stamp("iss2")
        e.wait_ops(ops1)
        e.barrier()
        self.flag("both", 1, ACC[34], ACC[35])
        self.stamp("w1flag")
        for _ in self.r2_loads:
            pass
        for _ in self.r2_pack:
            pass
        self.al0 = None
        if self.opt.get("early_a", 0):
            self.poll("row", 1)
            e.barrier()
        if self.opt.get("r2st", 2) == 2:
            r2_stores()
            self.late_loads()
        self.stamp("r2")
        if self.opt.get("early_a", 0):
            self.stats_loads(0)
            self.al0 = self.ALoad(self, vAx, (sXr, XB[0]), 20)
            self.al0.upto(19)
        self.poll("col" if self.al0 else "both", 1)
        e.barrier()
        self.stamp("w1go")

    def w2_gen(self):
        e = self.e
        t = RES[0]
        e.V("v_bfe_u32", t, vLane, 4, 1); yield
        e.V("v_lshl_add_u32", t, t, 11, vFl); yield
        e.S("s_lshl_b32", s(4), sCG, 8); yield
        e.S("s_add_u32", s(4), s(4), FLG_C); yield
        e.bload(RES[1], t, WS, s(4), 0, "sc1", cls=(900, 10, 0)); yield
        for _ in range(self.opt.get("w2wait", 50)):
            yield "idle"
        e.S("s_add_u32", s(5), sBase, 2); yield
        lok, lre = e.newlabel("w2ok"), e.newlabel("w2retry")
        e.V("v_cmp_ne_u32", VCC, s(5), RES[1])
        e.S("s_cmp_eq_u64", VCC, 0)
        e.branch("s_cbranch_scc1", lok)
        e.cond_begin()
        e.S("s_mov_b32", sCnt, 0)
        e.label(lre)
        e.misc("s_sleep 4")
        e.bload(RES[1], t, WS, s(4), 0, "sc1")
        e.V("v_cmp_ne_u32", VCC, s(5), RES[1])
        e.S("s_cmp_eq_u64", VCC, 0)
        e.branch("s_cbranch_scc1", lok)
        e.S("s_add_u32", sCnt, sCnt, 1)
        e.S("s_cmp_lt_u32", sCnt, 0x20000)
        e.branch("s_cbranch_scc1", lre)
        e.cond_end()
        e.label(lok)
        self.gate = 1 << 20
        yield

    def prologue2(self):
        e = self.e
        T0, T1, T2, T3, T4, T5 = [TMP[40 + i] for i in range(6)]
        mk_srd(e, OUT, pOut, XSZ)
        e.S("s_and_b32", sKH, sWave, 1)
        e.S("s_lshl_b32", sW2048, sWave, 11)
        e.S("s_mul_i32", sA, sC, NA * KB)
        e.S("s_add_u32", sSeg["A"], sA, WA)
        e.S("s_mul_i32", sA, sCG, NO * KB)
        e.S("s_add_u32", sSeg["O"], sA, WO)
        e.S("s_mul_i32", sA, sC, NB * KB)
        e.S("s_add_u32", sSeg["B"], sA, WB)
        e.S("s_mul_i32", sA, sCG, NC * KB)
        e.S("s_add_u32", sSeg["C"], sA, WC)
        e.V("v_add_u32", vDma, sW2048, vL16)
        e.S("s_mul_i32", sXr, sR, 160 * KB)
        e.S("s_mul_i32", sHr, sR, 432 * KB)
        e.S("s_lshl_b32", sSTr, sR, 13)
        e.S("s_mul_i32", sA, sWave, 40 * KB)
        e.V("v_add_u32", vAx[0], sA, vL16)
        e.V("v_add_u32", vAx[1], 20 * KB, vAx[0])
        e.V("v_lshlrev_b32", T0, 11, vG)
        e.V("v_lshl_add_u32", T0, vN, 3, T0)
        e.S("s_lshl_b32", sA, sWave, 8)
        e.V("v_add_u32", vSt, sA, T0)
        e.S("s_mov_b32", self.cInvD, lit(1.0 / D))
        for j in range(3):
            if j == 0:
                e.V("v_mov_b32", vW[0], vL16)
            else:
                e.V("v_add_u32", vW[j], j * 65536, vL16)
        e.S("s_lshl_b32", sA, sKH, 10)
        for j in range(3):
            e.V("v_add_u32", vK[j], sA, vW[j])
        e.V("v_lshlrev_b32", T4, 4, v(0))
        Z = TMP[44:48]
        Z = TMP[48:52]
        for j in range(4):
            e.V("v_mov_b32", Z[j], 0)
        e.ds_write(T4, Z, 0)
        e.ds_write(T4, Z, 4096)
        e.S("s_lshl_b32", sTT, sRH, 2)
        e.S("s_add_u32", sTT, sTT, sWave)
        e.S("s_xor_b32", sB, sTT, 1)
        for u, st in ((0, sTT), (1, sB)):
            e.S("s_mul_i32", sA, st, 20 * KB)
            e.S("s_mul_i32", sD, sKH, 10 * KB)
            e.S("s_add_u32", sA, sA, sD)
            e.V("v_add_u32", vAo[u], sA, vL16)
            e.S("s_mul_i32", sA, st, 54 * KB)
            e.S("s_mul_i32", sD, sKH, 27 * KB)
            e.S("s_add_u32", sA, sA, sD)
            e.V("v_add_u32", vAh[u], sA, vL16)
        e.V("v_lshrrev_b32", T0, 1, vG)
        e.V("v_and_b32", T1, 1, vG)
        e.V("v_lshlrev_b32", T2, 4, vN)
        e.V("v_lshl_add_u32", T3, T0, 8, T2)
        e.V("v_lshl_add_u32", T3, T1, 3, T3)
        e.S("s_mul_i32", sA, sTT, 20 * KB)
        e.V("v_add_u32", vXs, sA, vL16)
        e.V("v_add_u32", vXh, sA, T3)
        e.S("s_mul_i32", sA, sWave, 108 * KB)
        e.V("v_add_u32", vHs, sA, vL16)
        e.S("s_cmp_ge_u32", sC, 12)
        e.S("s_cselect_b32", sA, BIG, sA)
        e.V("v_add_u32", vHh, sA, T3)
        e.S("s_mul_i32", sA, sWave, 40 * KB)
        e.V("v_lshl_add_u32", T3, vG, 3, T2)
        e.V("v_add_u32", vOh, sA, T3)
        e.V("v_cmp_gt_u32", VCC, 2, vG)
        e.V("v_mov_b32", T3, BIG)
        e.V("v_cndmask_b32", vOh, T3, vOh, VCC)
        e.S("s_lshl_b32", sA, sTT, 7)
        e.V("v_lshl_add_u32", T3, vN, 3, sA)
        e.V("v_lshl_add_u32", vStW, T0, 2, T3)
        e.S("s_lshl_b32", sA, sWave, 7)
        e.S("s_add_u32", sA, sA, RST)
        e.V("v_lshl_add_u32", vRT, vG, 4, sA)
        e.V("v_lshl_add_u32", vRW, vN, 2, sA)
        e.S("s_lshl_b32", sA, sTT, 6)
        e.S("s_add_u32", sA, sA, RST)
        e.V("v_lshl_add_u32", vRF, vN, 2, sA)
        e.V("v_lshlrev_b32", T3, 4, vG)
        e.V("v_add_u32", vZ2, ZT + 128, T3)
        e.V("v_cmp_gt_u32", VCC, 10, vN)
        e.V("v_add_u32", T3, ZT, T3)
        e.V("v_cndmask_b32", vZ01, vZ2, T3, VCC)
        e.S("s_lshl_b32", sA, sR, 3)
        e.S("s_add_u32", sA, sA, sTT)
        e.S("s_mul_i32", sA, sA, 16 * 1280)
        e.S("s_mul_i32", sB, sCG, 160)
        e.S("s_add_u32", sA, sA, sB)
        e.V("v_mul_u32_u24", T3, 1280, vN)
        e.V("v_add_u32", T3, sA, T3)
        e.V("v_lshl_add_u32", vOut, vG, 4, T3)
        e.V("v_lshl_add_u32", vOut4, vG, 3, T3)
        e.S("s_mul_i32", sA, sWave, 5120)
        e.V("v_add_u32", vXch, sA, vL16)
        e.V("v_lshlrev_b32", vFl, 2, vN)
        e.V("v_mov_b32", vLn2[0], lit(LN2))
        e.V("v_mov_b32", vEps[0], lit(1e-6))
        e.S("s_mov_b32", sMaskV[0], "0x00ff00ff")
        e.S("s_mov_b32", sMaskV[1], "0x00ff00ff")
        e.S("s_lshl_b32", sA, sR, 8)
        e.S("s_add_u32", sFRL, sA, FLG_RL)
        e.S("s_add_u32", sFRG, sA, FLG_RG)
        e.S("s_lshl_b32", sA, sC, 8)
        e.S("s_add_u32", sFC, sA, FLG_C)
        e.S("s_lshl_b32", sA, sCG, 11)
        e.S("s_add_u32", sOx, sXr, sA)
        e.S("s_lshr_b32", sA, sCG, 1)
        e.S("s_lshl_b32", sA, sA, 10)
        e.S("s_and_b32", sB, sCG, 1)
        e.S("s_lshl_b32", sB, sB, 9)
        e.S("s_add_u32", sA, sA, sB)
        e.S("s_add_u32", sA, sA, 16 * KB)
        e.S("s_add_u32", sOxh, sXr, sA)
        e.S("s_lshl_b32", sA, sCG, 10)
        e.S("s_add_u32", sOst, sSTr, sA)
        e.S("s_lshl_b32", sA, sC, 10)
        e.S("s_add_u32", sOo, sXr, sA)
        e.S("s_lshl_b32", sA, sC, 8)
        e.S("s_add_u32", sA, sA, 16 * KB)
        e.S("s_add_u32", sOoh, sXr, sA)
        e.S("s_mul_i32", sA, sC, 3 * KB)
        e.S("s_add_u32", sOh, sHr, sA)
        e.S("s_lshl_b32", sA, sC, 9)
        e.S("s_add_u32", sA, sA, 48 * KB)
        e.S("s_add_u32", sOhh, sHr, sA)
        e.S("s_mul_i32", sKv, sC, 16 * KVSZ)
        e.misc(f"s_getreg_b32 {sX1}, hwreg(HW_REG_XCC_ID, 0, 4)")
        e.S("s_and_b32", sX1, sX1, 7)
        e.S("s_add_u32", sX1, sX1, 8)
        e.S("s_add_u32", sX1, sX1, sBase)
        e.S("s_mov_b32", sLocal, 0)
        U, Hh, Ee, Dq = T0, T1, T2, T3
        e.S("s_mov_b32", sA, 52429)
        e.V("v_mul_u32_u24", U, sA, v(0))
        e.V("v_lshrrev_b32", U, 18, U)
        e.V("v_mul_u32_u24", Dq, 5, U)
        e.V("v_sub_u32", Dq, v(0), Dq)
        e.V("v_cmp_le_u32", VCC, 21, U)
        e.V("v_cndmask_b32", Hh, 0, 1, VCC)
        e.V("v_mul_u32_u24", Ee, 21, Hh)
        e.V("v_sub_u32", Ee, U, Ee)
        A0, A1, A2, A3 = TMP[46], TMP[47], ACC[36], ACC[37]
        e.V("v_cmp_le_u32", s(100, 2), 16, Ee)
        e.V("v_cmp_eq_u32", s(88, 2), 4, Dq)
        e.V("v_cndmask_b32", A0, 0, 1, s(100, 2))
        e.V("v_lshl_add_u32", A0, Hh, 1, A0)
        e.V("v_add_u32", A1, 4, Hh)
        e.V("v_cndmask_b32", A1, A1, 6, s(100, 2))
        e.V("v_cndmask_b32", A0, A0, A1, s(88, 2))
        e.V("v_cndmask_b32", A1, Dq, Hh, s(88, 2))
        e.V("v_lshl_add_u32", A2, Hh, 2, Ee)
        e.V("v_subrev_u32", A2, 8, A2)
        e.V("v_cndmask_b32", A2, Ee, A2, s(100, 2))
        e.V("v_cmp_eq_u32", VCC, 20, Ee)
        e.V("v_cndmask_b32", A2, A2, 0, VCC)
        e.V("v_lshl_add_u32", A1, A1, 4, A2)
        e.V("v_lshlrev_b32", A1, 4, A1)
        e.V("v_lshl_add_u32", vKvSrc, A0, 10, A1)
        e.V("v_mul_u32_u24", A0, 5, Hh)
        e.V("v_add_u32", A0, A0, Dq)
        e.V("v_cmp_le_u32", s(88, 2), 8, A0)
        e.V("v_lshrrev_b32", A1, 1, A0)
        e.V("v_subrev_u32", A2, 8, A0)
        e.V("v_cndmask_b32", A1, A1, A2, s(88, 2))
        e.V("v_and_b32", A2, 1, A0)
        e.V("v_cndmask_b32", A2, A2, 0, s(88, 2))
        e.V("v_lshlrev_b32", A2, 3, A2)
        e.V("v_cndmask_b32", A0, 0, 1, s(88, 2))
        e.V("v_lshl_add_u32", A3, Hh, 1, A0)
        e.V("v_lshl_add_u32", A3, A3, 2, A1)
        e.V("v_lshl_add_u32", A3, A3, 4, A2)
        e.V("v_add_u32", A3, ZT, A3)
        e.V("v_mul_u32_u24", T4, 20, Hh)
        e.V("v_add_u32", T4, T4, Ee)
        e.V("v_cmp_le_u32", s(100, 2), 32, T4)
        e.V("v_and_b32", T5, 1, T4)
        e.V("v_cndmask_b32", T5, T5, 2, s(100, 2))
        e.V("v_lshl_add_u32", A0, T5, 1, A0)
        e.V("v_lshrrev_b32", T5, 1, T4)
        e.V("v_subrev_u32", T4, 32, T4)
        e.V("v_cndmask_b32", T4, T5, T4, s(100, 2))
        e.V("v_lshl_add_u32", T4, A1, 4, T4)
        e.V("v_lshl_add_u32", T4, T4, 4, A2)
        e.V("v_lshl_add_u32", T4, A0, 10, T4)
        e.V("v_cndmask_b32", T4, T4, A3, VCC)
        e.V("v_cmp_gt_u32", VCC, 210, v(0))
        e.V("v_mov_b32", T5, DUMMY)
        e.V("v_cndmask_b32", vKvDst, T5, T4, VCC)
        e.V("v_cndmask_b32", vKvSrc, 0, vKvSrc, VCC)
        e.V("v_lshlrev_b32", T4, 3, v(0))
        e.V("v_mov_b32", T5, BIG)
        e.V("v_cndmask_b32", vT16, T5, T4, VCC)
        e.V("v_and_b32", T4, -16, T4)
        e.V("v_and_b32", T0, 1, v(0))
        e.V("v_mul_u32_u24", T0, 8 * KVSZ, T0)
        e.V("v_add_u32", T4, T4, T0)
        e.V("v_cndmask_b32", vT16L, T5, T4, VCC)

    def late_loads(self):
        e = self.e
        T4, T5 = TMP[48], TMP[49]
        e.S("s_mul_i32", sB, sCG, 160)
        e.bload(RES[10:14], vOut, XIN, 0, 0)
        e.bload(RES[14:18], vOut, XIN, 0, 64)
        e.bload(RES[18:20], vOut4, XIN, 0, 128)
        skip = e.newlabel("noxid")
        e.S("s_cmp_lg_u32", sWave, 3)
        e.branch("s_cbranch_scc1", skip)
        e.cond_begin()
        e.S("s_lshl_b32", sA, sR, 8)
        e.S("s_add_u32", sA, sA, FLG_X)
        e.S("s_lshl_b32", sB, sC, 2)
        e.V("v_mov_b32", T4, sB)
        e.V("v_mov_b32", T5, sX1)
        e.S("s_mov_b64", EXEC, 1)
        e.bstore(T5, T4, WS, sA, 0, "sc1")
        e.S("s_mov_b64", EXEC, -1)
        e.cond_end()
        e.label(skip)

    def unpack(self, dst, pk):
        e = self.e
        for a_ in range(2):
            for j in range(4):
                e.V("v_lshlrev_b32", dst[8 * a_ + j], 16, pk[4 * a_ + j])
                e.V("v_and_b32", dst[8 * a_ + 4 + j], "0xffff0000", pk[4 * a_ + j])
        for j in range(2):
            e.V("v_lshlrev_b32", dst[16 + 2 * j], 16, pk[8 + j])
            e.V("v_and_b32", dst[16 + 2 * j + 1], "0xffff0000", pk[8 + j])

    class ALoad:
        def __init__(self, m, vaddr, terms, nks):
            self.m, self.vaddr, self.terms, self.nks = m, vaddr, terms, nks
            self.n = 0
            self.based = -1
            self.done = False
            self.win = 20

        def step(self):
            e = self.m.e
            ks, u = divmod(self.n, 2)
            if ks // 4 != self.based:
                self.based = ks // 4
                e.S("s_add_u32", sLd, self.terms[0], self.terms[1] + (ks // 4) * 4 * KB)
                return False
            e.bload(a((self.n % 40) * 4, 4), self.vaddr[u], WS, sLd, (ks % 4) * KB, self.m.opt.get("amod", "sc1"), cls=(self.m.opt.get("latA", 600), 76, 33 if self.nks == 27 else 16))
            self.n += 1
            self.done = self.n >= 2 * self.nks
            return True

        def upto(self, ks):
            while self.n < 2 * min(ks + 1, self.nks):
                self.step()

    def stats_loads(self, ver):
        e = self.e
        e.S("s_add_u32", sA, sSTr, STB[ver])
        for u in range(2):
            for k in range(2):
                e.bload(TMP[4 * u + 2 * k:4 * u + 2 * k + 2], vSt, WS, sA, k * 1024 + u * 128, "sc1", cls=(600, 20, 0))

    def stats_gen(self, need_T, have=False):
        e = self.e
        for u in range(2):
            sm, sq, t0, t1 = TMP[4 * u], TMP[4 * u + 1], TMP[4 * u + 2], TMP[4 * u + 3]
            if not have:
                e.V("v_add_f32", sm, sm, t0); yield
                e.V("v_add_f32", sq, sq, t1); yield
            for op in () if have else ("v_permlane32_swap_b32", "v_permlane16_swap_b32"):
                e.V("v_mov_b32", t0, sm); yield
                e.V("v_mov_b32", t1, sq); yield
                e.V(op, sm, t0); yield
                e.V(op, sq, t1); yield
                e.V("v_add_f32", sm, sm, t0); yield
                e.V("v_add_f32", sq, sq, t1); yield
            e.V("v_mul_f32", sm, lit(1.0 / D), sm); yield
            e.V("v_mul_f32", t0, sm, sm); yield
            e.V("v_fma_f32", sq, sq, self.cInvD, Neg(t0)); yield
            e.V("v_max_f32", sq, 0, sq); yield
            e.V("v_add_f32", sq, lit(1e-5), sq); yield
            e.V("v_rsq_f32", t0, sq); yield
            e.V("v_cvt_pk_bf16_f32", XE[u][0], sm, sm); yield
            e.V("v_mul_f32", sq, sq, t0); yield
            e.ds_write(vRW, t0, 64 * u); yield
            c2 = vC2 if u == 0 else vC2b
            e.V("v_mul_f32", c2[0], lit(LOG2E), t0); yield
            e.V("v_lshlrev_b32", t1, 16, XE[u][0]); yield
            e.V("v_sub_f32", sm, sm, t1); yield
            e.V("v_cvt_pk_bf16_f32", XE[u][1], sm, sq); yield
            e.V("v_and_b32", t1, "0xffff0000", XE[u][1]); yield
            e.V("v_sub_f32", t1, sq, t1); yield
            e.V("v_cvt_pk_bf16_f32", XE[u][3], sm, t1); yield
            e.V("v_mov_b32", XE[u][2], XE[u][0]); yield
        if need_T:
            for u in range(2):
                e.ds_read(RT[4 * u:4 * u + 4], vRT, 64 * u); yield

    def phi_pair(self, src, c2, bcast, t):
        e = self.e
        m = "op_sel_hi:[1,0]" if bcast else ""
        e.V("v_pk_mul_f32", t[0:2], src, c2, mods=m)
        e.V("v_exp_f32_e64", t[2], t[0], mods="clamp")
        e.V("v_exp_f32_e64", t[3], t[1], mods="clamp")
        e.V("v_max_f32", t[0], 0, t[0])
        e.V("v_max_f32", t[1], 0, t[1])
        e.V("v_pk_add_f32", t[2:4], t[2:4], vEps, mods="op_sel_hi:[1,0]")
        e.V("v_pk_fma_f32", t[0:2], t[0:2], vLn2, t[2:4], mods="op_sel_hi:[1,0,1]")

    def scratch(self, nblk, endpos):
        st = endpos - nblk
        if (st % RB) + nblk > RB:
            st = endpos - (endpos % RB) - nblk
        self.last_scratch = (st, st + nblk)
        return st, self.ldsaddr(st)

    def bg_on(self, tail):
        e = self.e
        st = {"next": 0}
        t_end = e.T + tail
        self.deadline = lambda: t_end

        def f():
            if e.T >= st["next"] and self.dma_ok():
                n0 = len(e.vm) + len(e.lg) + len(self.deferred)
                while len(e.vm) + len(e.lg) + len(self.deferred) == n0:
                    next(self.dmaf)
                st["next"] = e.T + self.opt.get("vgap", 24)
        self.e.bg = f

    def code_touch(self, ahead=None):
        e = self.e
        if not self.opt.get("ctouch", 1):
            return
        lab = e.newlabel("here")
        e.label(lab)
        ahead = self.opt.get("cahead", 2048) if ahead is None else ahead
        e.V("v_lshlrev_b32", v(51), 5, v(0))
        e.V("v_add_u32", v(51), f"{lab}-{self.kname}+{ahead}", v(51))
        e.V("v_min_u32", v(51), self.opt.get("code_bytes", 32768) - 4, v(51))
        e.misc(f"global_load_dword {vDum}, {v(51)}, s[96:97]")
        e._vm([], (800, 30, 10))

    def at_block(self, t, gen):
        i0 = self.cons
        while self.cons < i0 + t:
            yield "idle"
        yield from gen

    def delay(self, n, gen):
        for _ in range(n):
            yield "idle"
        yield from gen

    def code_touch_gen(self):
        self.code_touch(self.opt.get("cahead", 512))
        yield

    def bg_off(self):
        self.e.bg = None

    def gstore(self, lst, cold=False):
        e = self.e
        mode = self.opt.get("mode", "dual")
        if cold and not self.opt.get("touchcold", 0):
            mode = "safe"
        if mode != "dual":
            return [e.bstore(d, vo, WS, so, off, "sc1" if mode == "safe" else "") for d, vo, so, off in lst]
        ls, le = e.newlabel("st_safe"), e.newlabel("st_end")
        regs = []
        for d, vo, so, off in lst:
            regs += d.regs() + vo.regs()
        e.wait_ops(e._pending(regs))
        e.S("s_cmp_eq_u32", sLocal, 0)
        need = e._need("vmem", regs, [])
        if need > 1:
            e.nop(need - 1)
        e.branch("s_cbranch_scc1", ls)
        n0 = len(e.lines)
        ops = [e.bstore(d, vo, WS, so, off, "") for d, vo, so, off in lst]
        body = e.lines[n0:]
        assert len(body) == len(lst), body
        e.raw(f"  s_branch {le}")
        e.label(ls)
        for l in body:
            e.raw(l + " sc1")
        e.label(le)
        return ops

    def touch_gen(self, lst, cold=False):
        e = self.e
        if (cold and not self.opt.get("touchcold", 0)) or not self.opt.get("touch", 0):
            return
        for vo, sb, add, off in lst:
            e.S("s_add_u32", sE, sb, add); yield
            e.touch(vDum, vo, WS, sE, off, cls=(750, 80, 30)); yield

    def local_gen(self):
        e = self.e
        e.S("s_lshl_b32", s(6), sR, 8); yield
        e.S("s_add_u32", s(6), s(6), FLG_X); yield
        e.bload(TMP[39], vFl, WS, s(6), 0, "sc1"); yield
        for _ in range(40):
            yield "idle"
        e.V("v_cmp_ne_u32", VCC, sX1, TMP[39]); yield
        e.S("s_cmp_eq_u64", VCC, 0)
        e.S("s_cselect_b32", sLocal, 1, 0); yield

    def poll(self, kind, val):
        e = self.e
        skip = e.newlabel("nopoll")
        loop = e.newlabel("poll")
        e.S("s_cmp_lg_u32", sWave, 0)
        e.branch("s_cbranch_scc1", skip)
        e.cond_begin()
        t = TMP[38]
        e.S("s_mov_b32", sCnt, 0)
        e.S("s_mov_b64", sOk, 0)
        e.S("s_add_u32", sB, sBase, val)
        va, vb, sa, sb = (vFl, vFl, sFRL, sFRG) if kind != "col" else (vFl, vFl, sFC, sFC)
        if kind == "both":
            va, vb, sa, sb = TMP[36], TMP[37], 0, 0
            e.V("v_cmp_gt_u32", VCC, 2, vG)
            e.V("v_mov_b32", va, sFC)
            e.V("v_mov_b32", vb, sFRL)
            e.V("v_cndmask_b32", va, vb, va, VCC)
            e.V("v_add_u32", va, va, vFl)
            e.V("v_mov_b32", vb, FLG_RG - FLG_RL)
            e.V("v_cndmask_b32", vb, vb, 0, VCC)
            e.V("v_add_u32", vb, va, vb)
        if kind == "row":
            e.S("s_cmp_eq_u32", sLocal, 0)
            e.S("s_cselect_b32", sD, 3, -1)
        else:
            e.S("s_mov_b32", sD, 3)
        e.label(loop)

        def chk():
            e.misc("s_waitcnt vmcnt(0)")
            e.misc(f"v_subrev_u32 {t}, {sB}, {t}")
            e.misc(f"v_cmp_ge_u32 vcc, 1, {t}")
            e.misc(f"s_or_b64 {sOk}, {sOk}, vcc")
            e.misc(f"s_cmp_eq_u64 {sOk}, -1")
            e.misc(f"s_cbranch_scc1 {skip}")
        e.misc(f"buffer_load_dword {t}, {va}, {WS}, {sa} offen sc1")
        e.misc("s_add_u32 %s, %s, 1" % (sCnt, sCnt))
        chk()
        if kind != "row":
            e.misc("s_sleep 3")
        lnext = e.newlabel("pollnext")
        e.misc(f"s_and_b32 {sA}, {sCnt}, {sD}")
        e.misc(f"s_cbranch_scc1 {lnext}")
        e.misc(f"buffer_load_dword {t}, {vb}, {WS}, {sb} offen sc1")
        chk()
        e.label(lnext)
        e.misc(f"s_cmp_lt_u32 {sCnt}, 0x80000")
        e.misc(f"s_cbranch_scc1 {loop}")
        e.cond_end()
        e.label(skip)

    def flag(self, kind, val, t0=TMP[37], t1=TMP[38]):
        e = self.e
        lst = [(1, sFRG, "sc1", sC), (2, sFRL, "", sC)] if kind != "col" else []
        if kind != "row":
            lst.append((3, sFC, "sc1", sR))
        for w, sb, m, sidx in lst:
            skip = e.newlabel("noflag")
            if w == 1 and self.opt.get("skipg", 1):
                e.S("s_lshl_b32", sA, sLocal, 2)
                e.S("s_add_u32", sA, sA, sWave)
                e.S("s_cmp_lg_u32", sA, w)
            else:
                e.S("s_cmp_lg_u32", sWave, w)
            e.branch("s_cbranch_scc1", skip)
            e.cond_begin()
            e.S("s_lshl_b32", sA, sidx, 2)
            e.V("v_mov_b32", t0, sA)
            e.S("s_add_u32", sA, sBase, val)
            e.V("v_mov_b32", t1, sA)
            e.S("s_mov_b64", EXEC, 1)
            e.bstore(t1, t0, WS, sb, 0, m)
            e.S("s_mov_b64", EXEC, -1)
            e.cond_end()
            e.label(skip)

    def handoff(self, val, ops, shadow=None, touch=()):
        e = self.e
        t_st = e.T
        hk = (val - 2) % 4
        pick = lambda name, d: self.opt[name + "s"][hk] if name + "s" in self.opt else self.opt.get(name, d)
        self.deadline = lambda: t_st + pick("topup", 2600)
        self.own_end = 0
        while self.dma_ok():
            next(self.dmaf)
        while self.stage_step():
            pass
        self.finish_stage()
        self.restore(self.opt.get("rest1", 2))
        e.wait_all_lg()
        self.ring_barrier(self.cons + FI + self.opt.get("ahead", 16), ops)
        self.hold = None
        self.flag("row", val)
        self.stamp("flag")
        t_flag = e.T
        if self.opt.get("post_touch", 0):
            for k, (vo, sb, add, off) in enumerate(touch):
                sr = sE if k % 2 else sD
                e.S("s_add_u32", sr, sb, add)
                e.touch(vDum, vo, WS, sr, off, "sc1", cls=(750, 66, 30))
        self.deadline = lambda: t_flag + pick("topup2", 1500)
        while self.dma_ok():
            next(self.dmaf)
        while self.stage_step():
            pass
        self.finish_stage()
        self.warn.append(f"staged {len(self.staged)}")
        self.stage_plan = []
        self.prime()
        self.restore(self.opt.get("rest2", 8) if hk == 3 else 99)
        self.restg = self.restore_gen(99)
        if shadow:
            shadow()
        self.poll("row", val)
        e.T = max(e.T, t_flag + 1000)
        e.barrier()
        self.stamp("go")

    def phaseA(self, p):
        e = self.e
        opt = self.opt
        xv = 2 * p
        acc = lambda T, u: ACC[(T * 2 + u) * 4:(T * 2 + u) * 4 + 4]
        xf = lambda ks, u: a((ks * 2 + u) * 4, 4) if ks < 20 else XE[u]
        if p == 0:
            e.S("s_mov_b32", sSel[0], "0x00003f80")
            e.S("s_mov_b32", sSel[1], "0x3f800000")
            e.S("s_mov_b32", sOdd[0], "0xaaaaaaaa")
            e.S("s_mov_b32", sOdd[1], "0xaaaaaaaa")
            e.S("s_getpc_b64", s(96, 2))
            e.label("main_pc2")
            e.S("s_sub_u32", s(96), s(96), "main_pc2-" + self.kname)
            e.S("s_subb_u32", s(97), s(97), 0)
            for _ in range(opt.get("first_groups", 6 if self.al0 else 3)):
                for _ in self.dma_group():
                    pass
        if p == 0 and self.al0:
            al = None
            for _ in self.stats_gen(True):
                pass
            fl0 = [iter(())]
        else:
            al = self.ALoad(self, vAx, (sXr, XB[xv]), 20)
            al.upto(opt.get("adist", 4) - 1)
            self.stats_loads(xv)
            fl0 = [self.delay(opt.get("stdelay", 24), self.stats_gen(True))]
        sc_keep = self.last_scratch
        if p:
            fl0.append(self.restg)
        if p == 0:
            if opt.get("r2st", 2) == 0:
                self.r2_stores()
                self.late_loads()
            e.wait_all_lg()
            if opt.get("r2st", 2) == 2:
                self.ring_barrier(FI + 8, self.ops2)
                self.flag("col", 2)
                fl0.append(self.at_block(opt.get("w2at", 60), self.w2_gen()))
            else:
                self.ring_barrier(FI + 8)
            self.prime()
            self.stamp("start")
            if opt.get("keep", 12):
                self.capg = self.capture_gen(opt.get("keep0", 3), opt.get("keep", 12))
                next(self.capg)
                fl0.append(self.capg)
        st1 = {}

        def hook1(t):
            if t >= opt.get("w2flag_at", 30) and not st1.get("done"):
                st1["done"] = t
                return self.ops2, (lambda: self.flag("col", 2))
            return [], None

        def add1(t):
            if st1.get("done") and t >= opt.get("w2chk_at", 70) and not st1.get("chk"):
                st1["chk"] = True
                return self.w2_gen()
        i0 = self.seqstart[("A1", p)]
        fb = 102
        sst, sad = self.scratch(28, self.seq[i0 + fb][0])
        self.last_scratch = sc_keep
        self.hold = sst

        C2T = ACC[40:48]

        def pre_gen(first):
            while first.gi_frame is not None:
                yield "idle"
            e.S("s_mul_i32", s(7), sWave, 7168); yield
            e.S("s_add_u32", s(7), s(7), sad); yield
            e.V("v_add_u32", TMP[24], s(7), vL16); yield
            e.V("v_add_u32", TMP[25], sad, vKvSrc); yield
            e.S("s_mul_i32", s(7), sR, KVSZ); yield
            e.S("s_add_u32", s(7), s(7), sKv); yield
            e.S("s_add_u32", s(7), s(7), KVB[p]); yield
            for _ in range(8):
                yield "idle"
            for j in range(8):
                e.V("v_mul_f32", C2T[j], lit(LOG2E), RT[j]); yield
        fl0.append(pre_gen(fl0[0]))

        def must_gen():
            yield from fl0[0]
            yield from fl0[-1]
            while self.capg and self.cap_next < sst + 28:
                next(self.capg)
                yield

        def mf(t, W, u):
            ks, T = divmod(t, 5)
            e.mfma(acc(T, u), xf(ks, u), W, acc(T, u) if ks else 0)
        self.run_pass(105, mf, 5, xf, fl0, must=must_gen(), chunk=(8 if p == 0 else 24), stop_reads=self.seqstart[("A4", p)], aload=al,
                      force_bar=fb, tail=6000, mix=opt.get("mixA", 0) if p else 0,
                      late=(60, self.touch_gen([(vAx[0], sOo, OB[p], 0), (vAx[1], sOo, OB[p], 0), (vOh, sOoh, OB[p], 0), (vOh, sOoh, OB[p] + 20 * KB, 0)], p == 0)), hooks={"bar": hook1, "add": add1} if (p == 0 and opt.get("r2st", 2) == 0) else None)
        if p == 0 and opt.get("r2st", 2) == 1:
            self.dma_all()
            self.r2_stores()
            self.late_loads()
        assert sst + 28 <= self.freed and sst + 28 <= self.cap_hold, (sst, self.cap_hold)
        self.stamp("A1")
        self.bg_on(5000)
        KF = [TMP[8:12], TMP[12:16], TMP[16:20]]
        VF = {3: TMP[20:24], 4: ACC[56:60], 2: ACC[60:64]}
        tt = [ACC[48:52], ACC[52:56]]
        TA0, TA1 = TMP[24], TMP[25]
        n = 0
        for T in range(3):
            for u in range(2):
                for h in range(2):
                    t = tt[n % 2]
                    n += 1
                    self.phi_pair(acc(T, u)[2 * h:2 * h + 2], C2T[4 * u + 2 * h:4 * u + 2 * h + 2], False, t)
                    e.V("v_cvt_pk_bf16_f32", KF[T][2 * u + h], t[0], t[1])
        for T in (3, 4, 2):
            for u in range(2):
                for h in range(2):
                    x = acc(T, u)[2 * h:2 * h + 2]
                    e.V("v_pk_mul_f32", x, x, RT[4 * u + 2 * h:4 * u + 2 * h + 2])
            for u in range(2):
                for h in range(2):
                    x = acc(T, u)[2 * h:2 * h + 2]
                    e.V("v_cvt_pk_bf16_f32", VF[T][2 * u + h], x[0], x[1])
        for j in range(4):
            e.V("v_cndmask_b32", VF[2][j], VF[2][j], vOne, sMaskV)
        PR = [ACC[4 * i:4 * i + 4] for i in range(7)]
        prods = [(0, 3), (0, 2), (1, 4), (1, 2), (2, 3), (2, 4), (2, 2)]
        for i, (kt, vt) in enumerate(prods):
            e.mfma(PR[i], KF[kt], VF[vt], 0)
        for i in range(7):
            e.ds_write(TA0, PR[i], i * 1024)
        e.wait_all_lg()
        e.barrier()
        RD = [ACC[4 * w:4 * w + 4] for w in range(4)]
        for w in range(4):
            e.ds_read(RD[w], TA1, w * 7168)
        for h in range(2):
            e.V("v_pk_add_f32", RD[0][2 * h:2 * h + 2], RD[0][2 * h:2 * h + 2], RD[1][2 * h:2 * h + 2])
            e.V("v_pk_add_f32", RD[2][2 * h:2 * h + 2], RD[2][2 * h:2 * h + 2], RD[3][2 * h:2 * h + 2])
        for h in range(2):
            e.V("v_pk_add_f32", RD[0][2 * h:2 * h + 2], RD[0][2 * h:2 * h + 2], RD[2][2 * h:2 * h + 2])
        e.V("v_cvt_pk_bf16_f32", RD[1][0], RD[0][0], RD[0][1])
        e.V("v_cvt_pk_bf16_f32", RD[1][1], RD[0][2], RD[0][3])
        kvst = e.bstore(RD[1][0:2], vT16, WS, s(7), 0, "sc1")
        self.bg_off()
        self.stamp("kvpub")
        PL = [ACC[4 * i:4 * i + 4] for i in range(10)]

        st2 = {}

        def barhook(t):
            def rel():
                self.hold = None

            def relflag():
                self.hold = None
                self.flag("col", 2)
            if p == 0 and opt.get("r2st", 2) == 1 and not st2.get("done") and t >= opt.get("w2flag2_at", 12):
                st2["done"] = True
                return self.ops2, relflag
            return [], rel

        def kvloads():
            for i in range(8):
                if i % 2 == 0:
                    e.S("s_add_u32", sB, sKv, KVB[p] + i * KVSZ); yield
                e.bload(PL[i], vT16L, WS, sB, (i % 2) * KVSZ, "sc1", cls=(opt.get('kvlat', 800), 80, opt.get('kvsvc', 130))); yield

        def kvsum():
            SM = PL[8:10]
            for i in range(8):
                for d in range(4):
                    for h in range(2):
                        x = SM[d >> 1][2 * (d & 1) + h]
                        if i == 0:
                            e.V("v_dot2_f32_bf16", x, PL[i][d], sSel[h], 0)
                        else:
                            e.V("v_dot2c_f32_bf16", x, sSel[h], PL[i][d])
            for d in range(8):
                x = SM[d >> 2][d & 3]
                e.V("v_add_f32_dpp", x, x, x, mods="quad_perm:[1,0,3,2] row_mask:0xf bank_mask:0xf")
            for d in range(4):
                e.V("v_cndmask_b32", PL[0][d], SM[0][d], SM[1][d], sOdd)
            e.V("v_cmp_u_f32", VCC, PL[0][0], PL[0][1])
            e.V("v_cmp_u_f32", sNan, PL[0][2], PL[0][3])
            e.S("s_or_b64", VCC, VCC, sNan)

        def mfq(t, W, u):
            ks, T = divmod(t, 3)
            e.mfma(acc(5 + T, u), W, xf(ks, u), acc(5 + T, u) if ks else 0)
        self.lastbar = self.rd - 8
        fl = []
        if p == 0:
            fl = [self.local_gen()] + ([self.capg] if self.capg else [])
        self.run_pass(63, mfq, 3, xf, fl, stop_reads=self.seqstart[("A4", p)], hooks={"bar": barhook},
                      late=(opt.get("kvload_at", 40), kvloads()), see_all=True, force_bar=61, tail=1600 + self.opt.get("slack", 2400))
        if self.capg:
            n_ = 0
            for _ in self.capg:
                n_ += 1
                assert n_ < 1000
            self.capg = None
        self.stamp("A2")
        if p == 0 and opt.get("r2st", 2) == 1:
            assert st2.get("done")
            w2 = self.w2_gen()
            while next(w2) != "idle":
                pass
        if opt.get("qbg", 1):
            self.bg_on(1600 + self.opt.get("slack", 2400))
        PQ0 = [TMP[0:4], TMP[4:8]]
        PQ1 = [TMP[8:12], TMP[12:16]]
        tq = [TMP[16:20], TMP[20:24]]
        for u in range(2):
            c2 = vC2 if u == 0 else vC2b
            for h in range(2):
                self.phi_pair(acc(5, u)[2 * h:2 * h + 2], c2, True, tq[0])
                self.phi_pair(acc(6, u)[2 * h:2 * h + 2], c2, True, tq[1])
                e.V("v_cvt_pk_bf16_f32", PQ0[u][2 * h], tq[0][0], tq[1][0])
                e.V("v_cvt_pk_bf16_f32", PQ0[u][2 * h + 1], tq[0][1], tq[1][1])
            for h in range(2):
                self.phi_pair(acc(7, u)[2 * h:2 * h + 2], c2, True, tq[h])
                e.V("v_cvt_pk_bf16_f32", PQ1[u][h], tq[h][0], tq[h][1])
            e.V("v_mov_b32", PQ1[u][2], 0)
            e.V("v_mov_b32", PQ1[u][3], 0)
        self.bg_off()
        self.stamp("qepi")
        kvsum()
        lok, lre = e.newlabel("kvok"), e.newlabel("kvretry")
        e.branch("s_cbranch_scc0", lok)
        e.cond_begin()
        e.S("s_mov_b32", sCnt, 0)
        e.label(lre)
        e.misc("s_sleep 4")
        for _ in kvloads():
            pass
        kvsum()
        e.branch("s_cbranch_scc0", lok)
        e.S("s_add_u32", sCnt, sCnt, 1)
        e.S("s_cmp_lt_u32", sCnt, 0x10000)
        e.branch("s_cbranch_scc1", lre)
        e.cond_end()
        e.label(lok)
        self.stamp("kvgo")
        if p == 0 and opt.get("r2st", 2) == 1:
            for _ in w2:
                pass

        self.bg_on(900 + self.opt.get("slack", 2400))
        e.V("v_cvt_pk_bf16_f32", TMP[16], PL[0][0], PL[0][1])
        e.V("v_cvt_pk_bf16_f32", TMP[17], PL[0][2], PL[0][3])
        e.ds_write(vKvDst, TMP[16:18])
        e.wait_all_lg()
        e.barrier()
        FR = [ACC[40 + 4 * i:44 + 4 * i] for i in range(6)] + [TMP[16 + 4 * i:20 + 4 * i] for i in range(4)]
        for T in range(3):
            for ks in range(2):
                e.ds_read(FR[T * 2 + ks], vL16, IMG + (T * 2 + ks) * KB)
        for ks in range(2):
            e.ds_read(FR[6 + ks], vZ01, ks * 64)
            e.ds_read(FR[8 + ks], vZ2, ks * 64)
        oa = lambda T, u: ACC[(T * 2 + u) * 4:(T * 2 + u) * 4 + 4]
        ops = []

        def norm(u, packed):
            den = (oa(3, u)[0], oa(3, u)[2], oa(4, u)[0])
            for x in den:
                e.V("v_add_f32", x, vEps[0], x); yield
            for x in den:
                e.V("v_rcp_f32", x, x); yield
            for T in range(3):
                for h in range(2):
                    x = oa(T, u)[2 * h:2 * h + 2]
                    dn = oa(3, u)[2 * h:2 * h + 2] if T < 2 else oa(4, u)[0:2]
                    if packed:
                        e.V("v_pk_mul_f32", x, x, dn, mods="op_sel_hi:[1,0]"); yield
                    else:
                        e.V("v_mul_f32", x[0], x[0], dn[0]); yield
                        e.V("v_mul_f32", x[1], x[1], dn[0]); yield
            o4 = TMP[8 * u:8 * u + 4] if False else RT[4 * u:4 * u + 4]
            o2 = XE[u][0:2]
            for j in range(4):
                e.V("v_cvt_pk_bf16_f32", o4[j], oa(0, u)[j], oa(1, u)[j]); yield
            for h in range(2):
                e.V("v_cvt_pk_bf16_f32", o2[h], oa(2, u)[2 * h], oa(2, u)[2 * h + 1]); yield
            ops.extend(self.gstore([(o4, vAx[u], sA, 0), (o2, vOh, sB if u == 0 else sD, 0)], p == 0 or opt.get("osafe")))
            yield
        bg, e.bg = e.bg, None
        order = [(T, k) for k in range(2) for T in (3, 4, 0, 1, 2)]
        for T, k in order:
            e.mfma(oa(T, 0), FR[2 * T + k], (PQ0, PQ1)[k][0], oa(T, 0) if k else 0)
        e.S("s_add_u32", sA, sOo, OB[p])
        e.S("s_add_u32", sB, sOoh, OB[p])
        g0 = norm(0, False)
        for n_, (T, k) in enumerate(order):
            e.mfma(oa(T, 1), FR[2 * T + k], (PQ0, PQ1)[k][1], oa(T, 1) if k else 0)
            if n_ == 0:
                e.S("s_add_u32", sD, sOoh, OB[p] + 20 * KB)
            elif n_ < 9:
                next(g0)
                if n_ not in (2, 3):
                    next(g0)
        e.bg = bg
        for _ in g0:
            pass
        for _ in norm(1, True):
            pass
        self.bg_off()
        self.stamp("A3")
        def shadow():
            e.S("s_mul_i32", sB, sCG, 160)
            e.V("v_lshl_add_u32", TMP[2], vG, 4, sB)
            e.V("v_lshl_add_u32", TMP[3], vG, 3, sB)
            e.bload(ACC[40:44], TMP[2], SB2, 0, 0, cls=(800, 20, 0))
            e.bload(ACC[44:48], TMP[2], SB2, 0, 64, cls=(800, 20, 0))
            e.bload(ACC[48:50], TMP[3], SB2, 0, 128, cls=(800, 20, 0))
            if p == 0:
                self.unpack(RES, RES[10:20])
        self.handoff(4 * p + 2, ops, shadow, [(vAx[0], sOo, OB[p], 0), (vAx[1], sOo, OB[p], 0), (vOh, sOoh, OB[p], 0), (vOh, sOoh, OB[p] + 20 * KB, 0)])

    def phase64(self, p, kind):
        e = self.e
        opt = self.opt
        nks = 10 if kind == "O" else 27
        name = "A4" if kind == "O" else "B2"
        acc = lambda T, u: ACC[(u * 5 + T) * 4:(u * 5 + T) * 4 + 4]
        if kind == "O":
            al = self.ALoad(self, vAo, (sXr, OB[p]), nks)
        else:
            al = self.ALoad(self, vAh, (sHr, HB[p]), nks)
        al.upto(opt.get("adist", 4) - 1)
        xf = lambda ks, u: a(((ks % 20) * 2 + u) * 4, 4)
        if kind == "C":
            e.ds_read(TMP[2], vRF)
        i0 = self.seqstart[(name, p)]
        fb = 5 * nks - 3
        sst, sad = self.scratch(20, self.seq[i0 + fb][0])
        self.hold = sst
        stop = i0 + 5 * nks

        def mf(t, W, u):
            ks, T = divmod(t, 5)
            u = 1 - u
            c0 = RES[4 * T:4 * T + 4] if (kind == "O" and u == 0) else 0
            e.mfma(acc(T, u), W, xf(ks, u), acc(T, u) if ks else c0)

        def addr_gen():
            e.V("v_add_u32", TMP[0], sad, vXch); yield
            e.S("s_xor_b32", sA, sWave, 1); yield
            e.S("s_mul_i32", sA, sA, 5120); yield
            e.S("s_add_u32", sA, sA, sad); yield
            e.V("v_add_u32", TMP[1], sA, vL16); yield
            if kind == "C":
                e.V("v_mul_f32", TMP[2], TMP[2], TMP[2]); yield
            if not last:
                e.S("s_add_u32", sA, sOx, XB[xv]); yield
                e.S("s_add_u32", sB, sOxh, XB[xv]); yield
                e.S("s_add_u32", sD, sOst, STB[xv]); yield
        last = kind == "C" and p == 1
        xv = 2 * p + (1 if kind == "O" else 2)
        tg = None if last else (0, self.touch_gen([(vXs, sOx, XB[xv], 0), (vXs, sOx, XB[xv], 1024), (vXh, sOxh, XB[xv], 0), (vStW, sOst, STB[xv], 0)]))
        fl = [self.delay(20, addr_gen())]
        self.run_pass(5 * nks, mf, 5, xf, fl, late=tg, force_bar=fb, chunk=(opt.get("chunkO", 12) if kind == "O" else opt.get("chunkC", 12)), stop_reads=stop, aload=al,
                      mix=opt.get("mixO", 0) if kind == "O" else 0, tail=900 + self.opt.get("slack", 2400))
        self.stamp(name)
        self.bg_on(900 + self.opt.get("slack", 2400))
        assert sst + 20 <= self.freed
        for T in range(5):
            e.ds_write(TMP[0], acc(T, 1), T * KB)
        e.wait_all_lg()
        e.barrier()
        PT = TMP[4:24]
        for T in range(5):
            e.ds_read(PT[4 * T:4 * T + 4], TMP[1], T * KB)
        own = ACC[0:20]
        for h in range(10):
            x = own[2 * h:2 * h + 2]
            e.V("v_pk_add_f32", x, x, PT[2 * h:2 * h + 2])
            if kind == "C":
                e.V("v_pk_fma_f32", x, x, TMP[2:4], RES[2 * h:2 * h + 2], mods="op_sel_hi:[1,0,1]")
        PK = TMP[24:34]
        for a_ in range(2):
            for j in range(4):
                e.V("v_cvt_pk_bf16_f32", PK[4 * a_ + j], own[8 * a_ + j], own[8 * a_ + 4 + j])
        for h in range(2):
            e.V("v_cvt_pk_bf16_f32", PK[8 + h], own[16 + 2 * h], own[16 + 2 * h + 1])
        self.bg_off()
        if last:
            om = self.opt.get("outmod", "")
            e.bstore(PK[0:4], vOut, OUT, 0, 0, om)
            e.bstore(PK[4:8], vOut, OUT, 0, 64, om)
            e.bstore(PK[8:10], vOut4, OUT, 0, 128, om)
            self.stamp("end")
            return
        xv = 2 * p + (1 if kind == "O" else 2)
        ops = []
        ops += self.gstore([(PK[0:4], vXs, sA, 0), (PK[4:8], vXs, sA, 1024), (PK[8:10], vXh, sB, 0)])
        sm, sq, t0 = TMP[36], TMP[37], TMP[38]
        e.V("v_mov_b32", sm, 0)
        e.V("v_mov_b32", sq, 0)
        for j in range(10):
            e.V("v_dot2c_f32_bf16", sm, PK[j], vOne)
            e.V("v_dot2c_f32_bf16", sq, PK[j], PK[j])
        e.V("v_permlane32_swap_b32", sm, sq)
        e.V("v_add_f32", sm, sm, sq)
        e.V("v_mov_b32", t0, sm)
        e.V("v_permlane16_swap_b32", sm, t0)
        e.V("v_add_f32", sm, sm, t0)
        ops += self.gstore([(sm, vStW, sD, 0)])
        self.stamp(name + "epi")

        def shadow():
            self.unpack(RES, PK)
            if kind == "O":
                self.unpack(ACC[20:40], ACC[40:50])
                for h in range(10):
                    x = RES[2 * h:2 * h + 2]
                    e.V("v_pk_add_f32", x, x, ACC[20 + 2 * h:22 + 2 * h])
        self.handoff(4 * p + (3 if kind == "O" else 5), ops, shadow,
                     [(vStW, sOst, STB[xv], 0), (vXs, sOx, XB[xv], 0), (vXs, sOx, XB[xv], 1024), (vXh, sOxh, XB[xv], 0)])

    def phaseB1(self, p):
        e = self.e
        opt = self.opt
        xv = 2 * p + 1
        acc = lambda T, u: ACC[(T * 2 + u) * 4:(T * 2 + u) * 4 + 4]
        xf = lambda ks, u: a((ks * 2 + u) * 4, 4) if ks < 20 else XE[u]
        al = self.ALoad(self, vAx, (sXr, XB[xv]), 20)
        al.upto(opt.get("adist", 4) - 1)
        self.stats_loads(xv)
        stop = self.seqstart[("B2", p)]
        g0 = self.seq[stop][0] // 8 + RB // 8
        self.stage_plan = list(range(g0, g0 + (opt.get("nstage", 0) if p else 0)))

        def mf(t, W, u):
            ks, T = divmod(t, B1N)
            e.mfma(acc(T, u), W, xf(ks, u), acc(T, u) if ks else 0)
        tl = [(vHs, sOh, HB[p] + u * 54 * KB, a_ * KB) for a_ in range(3) for u in range(2)] + [(vHh, sOhh, HB[p] + u * 54 * KB, 0) for u in range(2)]
        sg = self.delay(opt.get("stdelay", 24), self.stats_gen(False))
        flb = [sg]
        if p == 0 and opt.get("keepb", 4):
            gb = self.capture_gen(self.segs[2][1] // 8 + opt.get("keepb0", 8), opt.get("keepb", 4), 12)
            next(gb)
            flb.append(gb)
        self.run_pass(21 * B1N, mf, B1N, xf, flb, late=(0, self.touch_gen(tl, p == 0)), stop_reads=stop, aload=al, must=sg, mix=opt.get("mixB", 0), tail=700 * (7 - B1N) + 300 + self.opt.get("slack", 2400))
        self.stamp("B1a")
        ops = []

        def epi(pairs, single):
            n = 0
            for u in range(2):
                sb = sD if u == 0 else sE
                e.S("s_add_u32", sb, sOh, HB[p] + u * 54 * KB); yield
                for a_ in pairs:
                    o = TMP[16 + 4 * (n % 4):20 + 4 * (n % 4)]
                    n += 1
                    for j in range(4):
                        x, y = acc(2 * a_, u)[j], acc(2 * a_ + 1, u)[j]
                        e.V("v_mul_f32_e64", x, x, f"|{x}|"); yield
                        e.V("v_mul_f32_e64", y, y, f"|{y}|"); yield
                        e.V("v_cvt_pk_bf16_f32", o[j], x, y); yield
                        e.V("v_pk_max_i16", o[j], o[j], 0); yield
                    ops.extend(self.gstore([(o, vHs, sb, a_ * KB)], p == 0 or opt.get("hsafe", 1) == 1 or (opt.get("hsafe", 1) == 2 and not single))); yield
            if single:
                for u in range(2):
                    o = TMP[32 + 2 * u:34 + 2 * u]
                    for j in range(4):
                        x = acc(6, u)[j]
                        e.V("v_mul_f32_e64", x, x, f"|{x}|"); yield
                    for h in range(2):
                        e.V("v_cvt_pk_bf16_f32", o[h], acc(6, u)[2 * h], acc(6, u)[2 * h + 1]); yield
                        e.V("v_pk_max_i16", o[h], o[h], 0); yield
                e.S("s_add_u32", sA, sOhh, HB[p])
                e.S("s_add_u32", sB, sOhh, HB[p] + 54 * KB)
                ops.extend(self.gstore([(TMP[32:34], vHh, sA, 0), (TMP[34:36], vHh, sB, 0)], p == 0 or opt.get("hsafe", 1) == 1))
                yield

        def mf2(t, W, u):
            ks, T = divmod(t, 7 - B1N)
            e.mfma(acc(B1N + T, u), W, xf(ks, u), acc(B1N + T, u) if ks else 0)
        self.run_pass(21 * (7 - B1N), mf2, 7 - B1N, xf, [epi(list(range(B1N // 2)), False)], stop_reads=stop, force_bar=21 * (7 - B1N) - 2, over=opt.get("b1over", 0), chunk=opt.get("chunkB", 24), tail=300 + self.opt.get("slack", 2400))
        self.stamp("B1b")
        for _ in epi(list(range(B1N // 2, 3)), True):
            pass
        self.stamp("B1epi")
        self.handoff(4 * p + 4, ops, None, tl)

    def gen(self):
        e = self.e
        e.reset_state()
        self.cInvD = s(63)
        self.dmaf = self.dma_filler()
        self.prologue()
        if self.opt.get("stamps"):
            e.memtime(sTm, True)
            e.V("v_writelane_b32", v(53), sTm[0], 62)
        self.startup()
        stop = self.opt.get("stop", 99)
        n = 0
        for p in range(2):
            for f in (lambda: self.phaseA(p), lambda: self.phase64(p, "O"), lambda: self.phaseB1(p), lambda: self.phase64(p, "C")):
                if n < stop:
                    f()
                n += 1
        if self.opt.get("stamps"):
            e.wait_all_vm()
            e.memtime(sTm, True)
            e.V("v_writelane_b32", v(53), sTm[0], 63)
            e.S("s_lshl_b32", sA, s(2), 2)
            e.S("s_add_u32", sA, sA, sWave)
            e.S("s_lshl_b32", sA, sA, 8)
            e.S("s_add_u32", sA, sA, STAMP)
            e.V("v_lshlrev_b32", TMP[1], 2, vLane)
            e.bstore(v(53), TMP[1], WS, sA)
        if self.opt.get("dbgst") is not None:
            skip = e.newlabel("nodbg")
            e.S("s_lshl_b32", sA, s(2), 2)
            e.S("s_add_u32", sA, sA, sWave)
            e.S("s_cmp_lg_u32", sA, 4 * self.opt.get("dbgwg", 77))
            e.branch("s_cbranch_scc1", skip)
            e.sload(s(84, 2), s(0, 2), 72)
            e.V("v_readlane_b32", sB, v(53), 0)
            e.V("v_subrev_u32", TMP[0], sB, v(53))
            e.V("v_subrev_u32", TMP[1], self.opt["dbgst"], vLane)
            e.V("v_cmp_gt_u32", VCC, 64 - self.opt["dbgst"], TMP[1])
            e.V("v_lshlrev_b32", TMP[1], 2, TMP[1])
            e.wait_all_lg()
            e.S("s_and_saveexec_b64", s(86, 2), VCC)
            e.misc(f"global_store_dword {TMP[1]}, {TMP[0]}, s[84:85]")
            e.S("s_mov_b64", EXEC, -1)
            e.label(skip)
        if self.opt.get("spin"):
            e.wait_all_vm()
            e.V("v_readfirstlane_b32", s(86), v(53))
            if self.opt.get("spinloc"):
                e.S("s_cmp_lg_u32", sLocal, 0)
                e.branch("s_cbranch_scc1", "spin_done")
            e.label("spin_loop")
            e.misc("s_memrealtime s[88:89]")
            e.misc("s_waitcnt lgkmcnt(0)")
            e.misc("s_sub_u32 s88, s88, s86")
            e.misc(f"s_cmp_lt_u32 s88, {self.opt['spin']}")
            e.misc("s_cbranch_scc1 spin_loop")
            e.label("spin_done")
        e.S("s_add_u32", sA, s(2), sWave)
        e.S("s_cmp_lg_u32", sA, 0)
        e.branch("s_cbranch_scc1", "main_end")
        e.S("s_add_u32", sA, sBase, 16)
        e.V("v_mov_b32", TMP[0], sA)
        e.V("v_mov_b32", TMP[1], EPOCH)
        e.S("s_mov_b64", EXEC, 1)
        e.bstore(TMP[0], TMP[1], WS, 0, 0, "sc1")
        e.label("main_end")
        e.misc("s_endpgm")
```

```python
from asmgen import *
from layout import *
from gen_prep import mk_srd, allreduce_g
import math

BIG = 0x40000000
LOG2E = 1.4426950408889634
LN2 = 0.6931471805599453

IMG = 0
ZT = 6144
RST = 6400
DUMMY = 6912
RING = 8192
RB = 152
LDS_BYTES = RING + RB * KB
FI = 8

WS, OUT, XIN, SB2 = s(8, 4), s(12, 4), s(16, 4), s(20, 4)
sWave, sR, sC, sCG, sRH, sKH, sW2048 = [s(24 + i) for i in range(7)]
sSeg = {"A": s(31), "O": s(32), "B": s(33), "C": s(34)}
sXr, sHr, sSTr, sFRL, sFRG, sFC = [s(35 + i) for i in range(6)]
sA, sB, sD, sE, sDm, sLd = [s(41 + i) for i in range(6)]
sMaskV = s(48, 2)
sCnt = s(50)
sTT = s(51)
sTm = s(52, 2)
sOx, sOxh, sOst, sOo, sOoh, sOh, sOhh, sKv = [s(54 + i) for i in range(8)]
sLocal, sX1 = s(47), s(62)
sStg = s(3)
sSel = [s(84), s(85)]
sOdd = s(86, 2)
vT16L = v(37)
vStg = v(55)
sNan = s(90, 2)
sBase = s(92)
sOk = s(94, 2)
SR1, SR2 = s(84, 4), s(96, 4)
PP = s(64, 16)
pOut, pWs = s(80, 2), s(82, 2)
vDum = v(49)

vLane, vN, vG, vL16 = v(1), v(2), v(3), v(4)
vW = [v(5), v(6), v(7)]
vK = [v(8), v(9), v(10)]
vDma = v(11)
vAx = [v(12), v(13)]
vAo = [v(14), v(15)]
vAh = [v(16), v(17)]
vSt, vStW, vKvSrc, vKvDst, vT16, vZ01, vZ2, vRT, vRW, vRF, vOut, vOut4, vOne = [v(18 + i) for i in range(13)]
vOh, vXs, vXh, vHs, vHh, vFl, vPollR, vPollC, vXch = [v(31 + i) for i in range(9)]
XE = [v(40, 4), v(44, 4)]
vC2 = v(48, 2)
vC2b = v(50, 2)
vLn2 = v(52, 2)
vEps = v(54, 2)
RT = v(56, 8)
ACC = v(64, 64)
FIFO = v(128, 4 * FI)
RES = v(160, 20)
B2F = v(180, 20)
TMP = v(200, 56)


def keepreg(k, h):
    if k < 12:
        return a(160 + 8 * k + 4 * h, 4)
    t = 2 * (k - 12) + h
    return B2F[4 * t:4 * t + 4] if t < 5 else TMP[40 + 4 * (t - 5):44 + 4 * (t - 5)]


class Main:
    def __init__(self, e, opt):
        self.e = e
        self.opt = opt
        self.kname = opt["kname"]
        self.nstamp = 0
        self.segs = []
        pos = 0
        for p in range(2):
            for k, n in (("A", NA), ("O", NO), ("B", NB), ("C", NC)):
                self.segs.append((k, pos, n))
                pos += n
        self.total = pos
        self.ngroups = pos // 8
        self.issued = 0
        self.dmaop = {}
        self.freed = 0
        self.hold = None
        self.visible = 0
        self.seq = []
        self.seqstart = {}
        for p in range(2):
            b = self.segs[4 * p + 0][1]
            self.seqstart[("A1", p)] = len(self.seq)
            self.seq += [(b + i, "W") for i in range(105)]
            self.seqstart[("A2", p)] = len(self.seq)
            self.seq += [(b + 105 + i, "W") for i in range(63)]
            b = self.segs[4 * p + 1][1]
            self.seqstart[("A4", p)] = len(self.seq)
            self.seq += [(b + 2 * i, "K") for i in range(50)]
            b = self.segs[4 * p + 2][1]
            self.seqstart[("B1a", p)] = len(self.seq)
            self.seq += [(b + i, "W") for i in range(21 * B1N)]
            self.seqstart[("B1b", p)] = len(self.seq)
            self.seq += [(b + 21 * B1N + i, "W") for i in range(147 - 21 * B1N)]
            b = self.segs[4 * p + 3][1]
            self.seqstart[("B2", p)] = len(self.seq)
            self.seq += [(b + 2 * i, "K") for i in range(135)]
        self.rd = 0
        self.cons = 0
        self.lastbar = 0
        self.gate = NA // 8
        self.stage_plan = []
        self.staged = {}
        self.stage_mid = None
        self.cap_hold = 1 << 20
        self.deferred = []
        self.spares = []
        self.last_scratch = (0, 0)
        self.restg = None
        self.capg = None
        self.own_end_phase = 0
        self.cap_ops = []
        self.cap_next = 1 << 20
        self.warn = []
        self.model = []
        self.own_end = 0
        self.deadline = lambda: 1 << 30

    def stamp(self, name):
        self.model.append((name, self.e.T))
        if self.opt.get("spinat") in (name, f"{name}#{sum(1 for n_, _ in self.model if n_ == name)}") and not getattr(self, "_sp", 0):
            self._sp = 1
            self.e.wait_all_lg()
            self.e.memtime(sTm, True)
            self.e.V("v_mov_b32", v(53), sTm[0])
        if not self.opt.get("stamps"):
            return
        e = self.e
        e.wait_all_lg()
        e.memtime(sTm)
        e.V("v_writelane_b32", v(53), sTm[0], self.nstamp)
        self.opt.setdefault("stampnames", []).append(name)
        self.nstamp += 1
        assert self.nstamp <= 62

    def endpos(self, i):
        p, k = self.seq[i]
        return p + (2 if k == "K" else 1)

    def ldsaddr(self, pos):
        return RING + (pos % RB) * KB

    def can_issue(self):
        if self.issued >= min(self.ngroups, self.gate):
            return False
        lim = self.freed if self.hold is None else min(self.freed, self.hold)
        lim = min(lim, self.cap_hold)
        return 8 * (self.issued + 1) <= lim + RB

    def dma_group(self):
        e = self.e
        g = self.issued
        self.issued += 1
        pos = 8 * g
        if g in self.stage_plan:
            self.stage_plan = []
        if g in self.staged and self.opt.get("defer", 1) and 8 * g >= self.own_end_phase:
            self.deferred.append(g)
            self.dmaop[g] = None
            yield
            return
        if g in self.staged:
            self.finish_stage()
            k = self.staged[g]
            ad = self.ldsaddr(pos)
            e.V("v_add_u32", vStg, ad, vDma)
            yield
            e.ds_write(vStg, keepreg(k, 0), 0)
            yield
            self.dmaop[g] = e.ds_write(vStg, keepreg(k, 1), 1024)
            yield
            return
        for k, b, n in self.segs:
            if b <= pos < b + n:
                break
        e.S("s_add_u32", M0, sW2048, self.ldsaddr(pos))
        yield
        e.S("s_add_u32", sDm, sSeg[k], (pos - b) * KB)
        yield
        md = "nt" if k in self.opt.get("ntseg", "") else ""
        nvalid = min(8, {"A": 168, "O": 100, "B": 147, "C": 270}[k] - (pos - b)) if self.opt.get("skippad", 1) else 8
        for j in range(2):
            nw = (nvalid - j + 1) // 2
            if nw < 4:
                skip = e.newlabel("nopad")
                e.S("s_cmp_ge_u32", sWave, nw)
                e.branch("s_cbranch_scc1", skip)
                e.cond_begin()
            op = e.dma(vDma, WS, sDm, 1024 * j, md, cls=self.dcls(k))
            if nw < 4:
                e.cond_end()
                e.label(skip)
            if j:
                self.dmaop[g] = op
            yield

    def capture_gen(self, first, n, k0=0):
        e = self.e
        self.cap_hold = self.cap_next = 8 * first
        g1 = self.segs[4][1] // 8
        for k in range(k0, k0 + n):
            g = first + k - k0
            while self.visible < 8 * (g + 1):
                yield "idle"
            e.V("v_add_u32", vStg, self.ldsaddr(8 * g), vDma); yield
            e.ds_read(keepreg(k, 0), vStg, 0); yield
            self.cap_ops.append(e.ds_read(keepreg(k, 1), vStg, 1024))
            self.staged[g1 + g] = k
            self.cap_next = 8 * (g + 1) if k < k0 + n - 1 else 1 << 20
            yield

    def stage_group(self):
        e = self.e
        g = self.stage_plan.pop(0)
        k = len(self.staged) % 12
        self.staged[g] = k
        for sk, b, n in self.segs:
            if b <= 8 * g < b + n:
                break
        e.S("s_add_u32", sStg, sSeg[sk], (8 * g - b) * KB)
        yield
        e.bload(keepreg(k, 0), vDma, WS, sStg, 0, cls=self.dcls(sk))
        yield
        e.bload(keepreg(k, 1), vDma, WS, sStg, 1024, cls=self.dcls(sk))
        self.stage_mid = None
        yield

    def restore_gen(self, n):
        e = self.e
        while n > 0 and self.deferred:
            n -= 1
            g = self.deferred[0]
            k = self.staged[g]
            e.V("v_add_u32", vStg, self.ldsaddr(8 * g), vDma); yield
            old = 8 * g - RB
            clean = old + 8 <= self.last_scratch[0] or old >= self.last_scratch[1]
            if self.spares and self.opt.get("swap", 1) and clean and self.segof(8 * g) == "A":
                sp = self.spares.pop(0)
                e.ds_read(keepreg(sp, 0), vStg, 0); yield
                e.ds_read(keepreg(sp, 1), vStg, 1024); yield
                g2 = g - RB // 8 + self.segs[4][1] // 8
                assert self.segof(8 * g2) == "C"
                self.staged[g2] = sp
            e.ds_write(vStg, keepreg(k, 0), 0); yield
            self.dmaop[g] = e.ds_write(vStg, keepreg(k, 1), 1024)
            self.spares.append(k)
            self.deferred.pop(0)
            yield

    def restore(self, n):
        for _ in self.restore_gen(n):
            pass

    def finish_stage(self):
        while self.stage_mid:
            next(self.stage_mid)

    def stage_step(self):
        e = self.e
        if e.outstanding() >= self.opt.get("qmax", 13):
            return False
        if not self.stage_mid:
            if not self.stage_plan or self.can_issue() or self.mid_group():
                return False
            c = self.dcls("C")
            if e.predict(c) + c[2] > self.deadline():
                return False
            self.stage_mid = self.stage_group()
        next(self.stage_mid)
        return True

    def dcls(self, k):
        return (750, 80, self.opt.get("svcAB", 150)) if k in "AB" else (750, self.opt.get("svcOC", 92), 75)

    def dma_ok(self):
        e = self.e
        if self.mid_group():
            g = self.issued - 1
        elif self.can_issue():
            g = self.issued
        else:
            return False
        if g in self.staged:
            return True
        if e.outstanding() >= self.opt.get("qmax", 13):
            return False
        if self.mid_group() or 8 * g < self.own_end:
            return True
        c = self.dcls(self.segof(8 * g))
        return e.predict(c) + c[2] <= self.deadline()

    def dma_filler(self):
        while True:
            if self.can_issue():
                for _ in self.dma_group():
                    yield True
            else:
                yield False

    def flush_dma_partial(self):
        while self.issued > 0 and (self.issued - 1) not in self.dmaop:
            next(self.dmaf)

    def dma_all(self):
        self.flush_dma_partial()
        while self.can_issue():
            for _ in self.dma_group():
                pass

    def ring_barrier(self, need_idx, extra_ops=(), free_all=False):
        e = self.e
        need_idx = min(need_idx, len(self.seq))
        upto = self.endpos(need_idx - 1) if need_idx > 0 else 0
        g = (upto + 7) // 8
        self.flush_dma_partial()
        while self.issued < g:
            assert self.can_issue(), ("ring deadlock", self.issued, g, self.freed, self.hold)
            self.warn.append(f"forced dma group {self.issued} at seq {self.rd}")
            for _ in self.dma_group():
                pass
        ops = list(extra_ops)
        while self.deferred and self.deferred[0] < g:
            self.warn.append(f"forced restore {self.deferred[0]}")
            next(self.restg)
        for gg in range(self.visible // 8, g):
            assert gg not in self.deferred, gg
            ops.append(self.dmaop[gg])
        e.wait_ops(ops + self.cap_ops)
        self.cap_ops = []
        e.barrier()
        self.cap_hold = self.cap_next
        self.visible = max(self.visible, 8 * g)
        self.freed = self.seq[self.cons][0] if self.cons < len(self.seq) else self.total
        self.lastbar = self.rd

    def issue_read(self):
        e = self.e
        i = self.rd
        if i >= len(self.seq):
            return
        pos, k = self.seq[i]
        assert self.endpos(i) <= self.visible, ("read of invisible block", i, pos, self.visible)
        ad = self.ldsaddr(pos)
        base = (vW if k == "W" else vK)[ad >> 16]
        slot = i % FI
        e.ds_read(FIFO[4 * slot:4 * slot + 4], base, ad & 0xffff)
        self.rd += 1

    def prime(self):
        while self.rd < self.cons + FI and self.rd < len(self.seq) and self.endpos(self.rd) <= self.visible:
            self.issue_read()

    def run_pass(self, n, mf, ntile, xf, fillers=(), chunk=24, stop_reads=None, hooks=None,
                 aload=None, vrate=0.5, amix=(1, 0), over=0, force_bar=None, late=None, see_all=False, tail=2000, mix=0, must=None):
        e = self.e
        fillers = list(fillers)
        lim = stop_reads if stop_reads is not None else len(self.seq)
        st = {"next": 0, "k": 0, "t": 0}
        self.own_end = self.own_end_phase = self.endpos(lim - 1)
        self.deadline = lambda: e.T + (n - st["t"]) * 33 + tail

        i_first = self.cons

        def dma_need():
            g = self.issued - 1 if self.mid_group() else self.issued
            for i in range(self.cons, lim):
                if self.endpos(i) > 8 * g:
                    return i - i_first - FI - chunk
            return 1 << 20

        def one_vmem():
            na, nd = amix
            n0 = len(e.vm)
            if st.get("late"):
                if e.T < st["next"]:
                    return False
                try:
                    next(st["late"])
                except StopIteration:
                    st["late"] = None
                    return False
            else:
                na_ = (aload.n // 2) * ntile if (aload is not None and not aload.done) else 1 << 21
                nd_ = dma_need() if (self.mid_group() or self.can_issue()) else 1 << 22
                run = self.opt.get("run", 0)
                if run and na_ < 1 << 21 and nd_ < 1 << 20:
                    if st.get("cur") == "a" and na_ - run <= nd_:
                        nd_ = max(nd_, na_)
                    elif st.get("cur") == "d" and nd_ - run < na_:
                        na_ = max(na_, nd_ + 1)
                    st["cur"] = "a" if na_ <= nd_ else "d"
                urgent = min(na_, nd_) - st["t"] <= self.opt.get("horizon", 30) + run
                if e.T < st["next"] and not urgent:
                    return False
                if mix and na_ < 1 << 21 and st["k"] % mix == mix - 1 and na_ - st["t"] > self.opt.get("mixh", 10) and self.dma_ok():
                    next(self.dmaf)
                elif na_ <= nd_ and na_ < 1 << 21:
                    if e.outstanding() >= self.opt.get("qmax", 13) and not urgent:
                        return False
                    if aload.n // 2 >= st["t"] // ntile + aload.win - 1:
                        return False
                    aload.step()
                elif nd_ < 1 << 22 and (urgent or self.dma_ok()):
                    next(self.dmaf)
                elif not self.stage_step():
                    return False
            if len(e.vm) > n0:
                st["k"] += 1
                st["next"] = e.T + self.opt.get("vgap", 24)
            return True

        def fill(budget):
            while budget > 0:
                n0 = e.ninst
                did = one_vmem()
                if not did:
                    for f in list(fillers):
                        try:
                            if next(f) == "idle":
                                continue
                            did = True
                            break
                        except StopIteration:
                            fillers.remove(f)
                if not did:
                    return
                budget -= e.ninst - n0

        def waits_for(t):
            regs = []
            for tt in (t, t + 1):
                if tt < n:
                    ks = tt // ntile
                    if aload is not None:
                        aload.upto(ks)
                    idx = self.cons + (tt - t)
                    if idx < self.rd:
                        regs += FIFO[4 * (idx % FI):4 * (idx % FI) + 4].regs()
                    regs += xf(ks, 0).regs() + xf(ks, 1).regs()
            return e._pending(regs)

        e.wait_ops(waits_for(0))
        if aload is not None:
            self.stamp("1st")
            self.warn.append(f"fill {8 * self.issued - self.seq[self.cons][0]}")
        for t in range(n):
            if aload is not None and self.opt.get("midstamp") and t == n // 2:
                self.stamp("half")
            i = self.cons
            assert self.rd > i, ("fifo underrun", i)
            W = FIFO[4 * (i % FI):4 * (i % FI) + 4]
            st["t"] = t
            if must is not None and t == n - ntile - 2:
                for _ in must:
                    self.warn.append("must drained late")
            if t == int(n * self.opt.get("cfrac", 0.8)) and n > 30:
                fillers.insert(0, self.code_touch_gen())
            if hooks and hooks.get("add"):
                g_ = hooks["add"](t)
                if g_:
                    fillers.append(g_)
            ov = over if fillers else 0
            mf(t, W, 0)
            bar = self.rd < lim and (self.endpos(self.rd) > self.visible or self.rd - self.lastbar >= chunk)
            bar = bar or t == force_bar
            if late and t >= late[0] and not st.get("lateon") and (aload is None or aload.done) and 8 * self.issued >= min(self.own_end, self.endpos(min(i_first + n + FI, lim) - 1)) and not self.mid_group():
                st["late"] = late[1]
                st["lateon"] = True
                self.warn.append(f"late at {t}")
            if bar:
                ex, after = [], None
                if hooks and hooks.get("bar"):
                    ex, after = hooks["bar"](t)
                self.ring_barrier(lim if see_all else min(self.rd + chunk, lim), ex)
                if after:
                    after()
            else:
                fill(2 + ov)
            mf(t, W, 1)
            self.cons += 1
            used = 0
            if self.rd < lim:
                self.issue_read()
                used = 1
            pend = waits_for(t + 1) if (t % 2 == 1 and t + 1 < n) else []
            fill(2 + ov - used - (1 if pend else 0))
            if pend:
                e.wait_ops(waits_for(t + 1))
        if late and not st.get("lateon"):
            st["late"] = late[1]
        for f in fillers + ([st["late"]] if st.get("late") else []):
            if f is not self.capg:
                for _ in f:
                    pass

    def segof(self, pos):
        for k, b, n in self.segs:
            if b <= pos < b + n:
                return k
        return "O"

    def mid_group(self):
        return self.issued > 0 and (self.issued - 1) not in self.dmaop

    def dma_burst(self, maxgroups=99):
        e = self.e
        self.flush_dma_partial()
        gs = []
        while self.can_issue() and len(gs) < maxgroups:
            gs.append(self.issued)
            self.issued += 1
        for w in (1, 2, 3):
            mine = gs[w - 1::3]
            if not mine:
                continue
            skip = e.newlabel("noburst")
            e.S("s_cmp_lg_u32", sWave, w)
            e.branch("s_cbranch_scc1", skip)
            e.cond_begin()
            for g in mine:
                pos = 8 * g
                for k, b, n in self.segs:
                    if b <= pos < b + n:
                        break
                for h in range(2):
                    e.S("s_mov_b32", M0, self.ldsaddr(pos) + h * 4096)
                    e.S("s_add_u32", sDm, sSeg[k], (pos - b) * KB + h * 4096)
                    for q in range(4):
                        self.dmaop[g] = e.dma(vL16, WS, sDm, q * 1024)
            e.cond_end()
            e.label(skip)

    def prologue(self):
        e = self.e
        e.S("s_cmp_ge_u32", s(2), 256)
        e.branch("s_cbranch_scc1", "main_end")
        if self.opt.get("stamps"):
            e.V("v_mov_b32", v(53), 0)
        self.stamp("t0")
        if self.opt.get("spin") and not self.opt.get("spinat"):
            e.memtime(sTm, True)
            e.V("v_mov_b32", v(53), sTm[0])
        e.sload(PP, s(0, 2), 0)
        e.sload(pOut, s(0, 2), 64)
        e.sload(pWs, s(0, 2), 80)
        T0, T1, T2, T3 = TMP[48], TMP[49], TMP[50], TMP[51]
        e.S("s_getpc_b64", s(88, 2))
        e.label("main_pc")
        e.V("v_lshlrev_b32", T2, 5, v(0))
        e.S("s_sub_u32", s(88), s(88), "main_pc-" + self.kname)
        e.S("s_subb_u32", s(89), s(89), 0)
        e.misc(f"global_load_dword {vDum}, {T2}, s[88:89]")
        e._vm([], (2000, 30, 0))
        e.V("v_lshrrev_b32", T0, 6, v(0))
        e.V("v_and_b32", vLane, 63, v(0))
        e.V("v_readfirstlane_b32", sWave, T0)
        e.S("s_lshr_b32", sB, s(2), 3)
        e.S("s_mul_i32", sB, sB, 1792)
        e.S("s_add_u32", sB, sB, 8192)
        e.V("v_lshl_add_u32", T2, v(0), 3, sB)
        e.V("v_min_u32", T2, self.opt.get("code_bytes", 32768) - 4, T2)
        e.misc(f"global_load_dword {vDum}, {T2}, s[88:89]")
        e._vm([], (2000, 30, 0))
        e.V("v_lshlrev_b32", vL16, 4, vLane)
        e.V("v_and_b32", vN, 15, vLane)
        e.V("v_lshrrev_b32", vG, 4, vLane)
        self.vBig = TMP[52]
        e.V("v_mov_b32", self.vBig, BIG)
        e.S("s_and_b32", sA, s(2), 7)
        e.S("s_lshl_b32", sA, sA, 1)
        e.S("s_lshr_b32", sB, s(2), 7)
        e.S("s_add_u32", sR, sA, sB)
        e.S("s_bfe_u32", sC, s(2), (4 << 16) | 3)

    def gather(self, raw, srd, sstride, vaddr, srow, n=8):
        e = self.e
        e.S("s_mul_i32", sLd, srow, sstride)
        for i in range(n):
            e.bload(raw[i], vaddr, srd, sLd, 0, w="ushort", cls=(2500, 32, 0))
            if i < n - 1:
                e.S("s_add_u32", sLd, sLd, sstride)

    def pack(self, raw, n=4):
        for i in range(n):
            self.e.V("v_lshl_or_b32", raw[i], raw[2 * i + 1], 16, raw[2 * i])

    def colsum(self, regs, ex, vs, vt):
        e = self.e
        e.V("v_mov_b32", vs, 0)
        for r_ in regs:
            e.V("v_dot2c_f32_bf16", vs, r_, vOne)
        allreduce_g(e, vs, vt)
        e.V("v_sub_f32", vs, 0, vs)
        e.V("v_cvt_pk_bf16_f32", vt, vs, vs)
        e.V("v_lshlrev_b32", vt, 16, vt)
        e.V("v_sub_f32", vt, vs, vt)
        e.V("v_cvt_pk_bf16_f32", ex[0], vs, vt)
        e.V("v_and_b32", ex[1], "0xffff", ex[0])

    def x_dma(self):
        e = self.e
        V = [FIFO[12 + i] for i in range(10)]
        t0, t1 = FIFO[22], FIFO[23]
        e.S("s_mov_b32", sA, 52429)
        e.S("s_mov_b32", sB, 1280)
        for i in range(5):
            e.V("v_add_u32", t0, 64 * i, vLane)
            e.V("v_mul_u32_u24", t1, sA, t0)
            e.V("v_lshrrev_b32", t1, 22, t1)
            e.V("v_mul_u32_u24", V[i], 80, t1)
            e.V("v_sub_u32", t0, t0, V[i])
            e.V("v_lshlrev_b32", V[i], 1, t1)
            e.V("v_xor_b32", t0, t0, V[i])
            e.V("v_lshlrev_b32", t0, 4, t0)
            e.V("v_mad_u32_u24", V[i], t1, sB, t0)
            e.V("v_xor_b32", V[5 + i], 128, t0)
            e.V("v_mad_u32_u24", V[5 + i], t1, sB, V[5 + i])
            e.V("v_add_u32", V[5 + i], 4 * 1280, V[5 + i])
        sx, sl = s(90), s(95)
        e.S("s_lshl_b32", sx, sR, 2)
        e.S("s_add_u32", sx, sx, sWave)
        e.S("s_mul_i32", sx, sx, 32 * 1280)
        e.S("s_mul_i32", sl, sWave, 40 * KB)
        self.xops = []
        for q in range(4):
            for i in range(10):
                e.S("s_add_u32", M0, sl, (10 * q + i) * KB)
                if i == 0 and q:
                    e.S("s_add_u32", sx, sx, 8 * 1280)
                self.xops.append(e.dma(V[i], XIN, sx, 0, cls=(1000, 80, 16)))
                yield

    def x_frags(self, ops, side):
        e = self.e
        base, sg, gl, ad = FIFO[12], FIFO[13], FIFO[14], [FIFO[15], FIFO[16]]
        ONE = FIFO[24:28]
        SS, QQ = [ACC[0:4], ACC[4:8]], [ACC[8:12], ACC[12:16]]
        e.S("s_mul_i32", sB, sWave, 40 * KB)
        e.V("v_mul_u32_u24", base, 1280, vN)
        e.V("v_add_u32", base, sB, base)
        e.V("v_and_b32", sg, 7, vN)
        e.V("v_lshlrev_b32", sg, 1, sg)
        e.V("v_lshrrev_b32", gl, 1, vG)
        e.V("v_lshl_add_u32", gl, gl, 3, vG)
        for i in range(4):
            e.V("v_mov_b32", ONE[i], vOne)
        e.wait_ops(ops)
        for ks in range(20):
            t = ad[ks & 1]
            if ks < 16:
                e.V("v_add_u32", t, 10 * (ks >> 1) + 4 * (ks & 1), vG)
            else:
                e.V("v_add_u32", t, 20 * (ks - 16) + 8, gl)
            e.V("v_xor_b32", t, t, sg)
            e.V("v_lshl_add_u32", t, t, 4, base)
            for u in range(2):
                e.ds_read(a((ks * 2 + u) * 4, 4), t, u * 16 * 1280)
            next(side, None)
            if ks >= 3:
                for u in range(2):
                    x = a(((ks - 3) * 2 + u) * 4, 4)
                    e.mfma(SS[u], ONE, x, SS[u] if ks > 3 else 0)
                    e.mfma(QQ[u], x, x, QQ[u] if ks > 3 else 0)
        for ks in range(17, 20):
            for u in range(2):
                x = a((ks * 2 + u) * 4, 4)
                e.mfma(SS[u], ONE, x, SS[u])
                e.mfma(QQ[u], x, x, QQ[u])
        for _ in side:
            pass
        e.V("v_and_b32", ad[0], 3, vN)
        e.V("v_lshrrev_b32", ad[1], 2, vN)
        for u in range(2):
            sm, sq = TMP[4 * u], TMP[4 * u + 1]
            e.V("v_mov_b32", sq, QQ[u][0])
            for j in range(1, 4):
                e.V("v_cmp_eq_u32", VCC, j, ad[0])
                e.V("v_cndmask_b32", sq, sq, QQ[u][j], VCC)
            e.V("v_cmp_eq_u32", VCC, ad[1], vG)
            e.V("v_cndmask_b32", sq, 0, sq, VCC)
            e.V("v_mov_b32", sm, SS[u][0])
            allreduce_g(e, sq, TMP[4 * u + 2])

    def lds_init(self):
        e = self.e
        e.V("v_lshlrev_b32", FIFO[12], 4, v(0))
        Z = FIFO[24:28]
        for j in range(4):
            e.V("v_mov_b32", Z[j], 0)
        e.ds_write(FIFO[12], Z, 0)
        e.ds_write(FIFO[12], Z, 4096)

    def startup(self):
        e = self.e
        vBig = self.vBig
        RAW1, EX = ACC[0:20], ACC[20:24]
        RAW2 = TMP[8:40]
        vCol, vReg, vLeft, vT0, vT1, vSum, vLd = [FIFO[i] for i in range(7)]
        vA0, vA1, vA2, vSt2, vBias = RES[8], RES[9], B2F[8], B2F[9], ACC[38]
        sT, sP = s(7), s(93)
        sStr = s(56)
        T0, T1, T2, T3 = TMP[48], TMP[49], TMP[50], TMP[51]
        e.S("s_lshl_b32", sA, sR, 4)
        e.S("s_add_u32", sA, sA, sC)
        e.S("s_lshl_b32", sA, sA, 2)
        e.S("s_add_u32", sA, sA, sWave)
        e.S("s_mul_i32", sA, sA, 2560)
        e.V("v_min_u32", T1, 19, vLane)
        e.V("v_lshlrev_b32", T1, 7, T1)
        mk_srd(e, XIN, PP[0:2], XSZ)
        e.touch(vDum, T1, XIN, sA, 0, cls=(2000, 30, 0))
        self.stamp("issx")
        e.S("s_lshr_b32", sP, sR, 1)
        e.S("s_and_b32", sT, sR, 1)
        e.S("s_lshl_b32", sT, sT, 2)
        e.S("s_add_u32", sT, sT, sWave)
        e.S("s_mov_b32", s(4), (656 << 20) | (660 << 10) | 640)
        e.S("s_mov_b32", s(5), 0)
        e.S("s_mul_i32", sA, sT, 10)
        e.S("s_lshr_b32", sA, s(4), sA)
        e.S("s_and_b32", sA, sA, 1023)
        for t, val in ((3, 1280), (4, 1300), (5, 0), (6, 1), (7, 32)):
            e.S("s_cmp_eq_u32", sT, t)
            e.S("s_cselect_b32", sA, val, sA)
        e.S("s_mul_i32", sB, sC, 40)
        e.S("s_add_u32", sA, sA, sB)
        e.V("v_add_u32", vCol, sA, vN)
        e.V("v_add_u32", vT0, vCol, vN)
        e.S("s_sub_u32", sB, sT, 5)
        e.S("s_cmp_lt_u32", sB, 2)
        e.S("s_cselect_b64", VCC, -1, 0)
        e.V("v_cndmask_b32", vCol, vCol, vT0, VCC)
        e.V("v_lshrrev_b32", vT0, 3, vN)
        e.V("v_mul_u32_u24", vT0, 632 - 32, vT0)
        e.V("v_lshrrev_b32", vT1, 2, vN)
        e.V("v_lshl_add_u32", vT0, vT1, 4, vT0)
        e.V("v_add3_u32", vT0, vT0, vN, sA)
        e.S("s_cmp_eq_u32", sT, 2)
        e.S("s_cselect_b64", VCC, -1, 0)
        e.V("v_cndmask_b32", vCol, vCol, vT0, VCC)
        e.V("v_lshlrev_b32", vCol, 1, vCol)
        e.S("s_cmp_eq_u32", sT, 7)
        e.S("s_cselect_b32", sB, 8, 16)
        e.V("v_cmp_le_u32", VCC, sB, vN)
        e.S("s_mov_b32", sStr, 3840)
        e.V("v_cndmask_b32", vCol, vCol, vBig, VCC)
        e.S("s_mov_b32", sD, 8 * 3840)
        e.V("v_mad_u32_u24", vReg, vG, sD, vCol)
        e.V("v_and_b32", vT0, 1, vG)
        e.V("v_lshrrev_b32", vT1, 1, vG)
        e.V("v_lshl_add_u32", vLd, vT0, 1, vT1)
        e.S("s_mov_b32", sD, 4 * 3840)
        e.V("v_mad_u32_u24", vLeft, vLd, sD, vCol)
        mk_srd(e, SR1, PP[2:4], D * 3 * D * 2)
        e.S("s_mul_i32", sB, sP, 80)
        self.gather(RAW1[0:8], SR1, sStr, vReg, sB)
        e.S("s_add_u32", sA, sB, 32)
        self.gather(RAW1[8:16], SR1, sStr, vReg, sA)
        e.S("s_add_u32", sA, sB, 64)
        self.gather(RAW1[16:20], SR1, sStr, vLeft, sA, 4)
        self.stamp("iss1")
        def r2touch():
            e.S("s_lshl_b32", sA, s(2), 2)
            e.S("s_add_u32", sA, sA, sWave)
            e.V("v_min_u32", T0, 17, vLane)
            e.V("v_lshlrev_b32", T0, 7, T0)
            e.S("s_mul_i32", sB, sA, 2160)
            mk_srd(e, SR2, PP[8:10], F * D * 2)
            e.touch(vDum, T0, SR2, sB, 0, cls=(2000, 30, 0))
            mk_srd(e, SR2, PP[12:14], F * D * 2)
            e.touch(vDum, T0, SR2, sB, 0, cls=(2000, 30, 0))
            e.V("v_min_u32", T0, 7 * 128, T0)
            mk_srd(e, SR2, PP[4:6], D * D * 2)
            e.S("s_mul_i32", sB, sA, 800)
            e.touch(vDum, T0, SR2, sB, 0, cls=(2000, 30, 0))
        if self.opt.get("r2touch", 3) == 1:
            r2touch()
        if self.opt.get("wsoff"):
            e.S("s_add_u32", pWs[0], pWs[0], self.opt["wsoff"] << 20)
            e.S("s_addc_u32", pWs[1], pWs[1], 0)
        mk_srd(e, WS, pWs, WS_USED)
        e.sload(sBase, pWs, EPOCH)
        e.S("s_mov_b32", sA, "0x3f803f80")
        e.V("v_mov_b32", vOne, sA)
        e.S("s_and_b32", sCG, sC, 7)
        e.S("s_lshr_b32", sRH, sC, 3)
        if self.opt.get("r2touch", 0) == 3:
            r2touch()
        mk_srd(e, SB2, PP[14:16], D * 2)
        if not self.opt.get("l2first", 1):
            self.prologue2()
            self.stamp("pro2")
        sU, sP, sStr, sJ = s(88), s(89), s(100), s(101)
        rows = [s(3 + i) for i in range(4)]
        D2 = [s(64), s(65), s(66), s(67)]
        sDB, sDX = s(70), s(71)
        vSel0, vSel1 = vA1, vA2
        mk_srd(e, SR1, PP[10:12], F * 2)
        e.S("s_lshl_b32", sJ, sRH, 4)
        e.S("s_add_u32", sJ, sJ, sR)
        if self.opt.get("bal", 1):
            e.S("s_cmp_eq_u32", sJ, 15)
            e.S("s_cselect_b32", sA, 39, 127)
            e.S("s_mul_i32", sJ, sJ, 3)
            e.S("s_add_u32", sJ, sJ, sWave)
            e.S("s_add_u32", sJ, sJ, 39)
            e.S("s_cmp_ge_u32", sJ, 97)
            e.S("s_cselect_b32", sB, 97, 0)
            e.S("s_sub_u32", sJ, sJ, sB)
            e.S("s_cmp_eq_u32", sWave, 0)
            e.S("s_cselect_b32", sJ, sA, sJ)
        else:
            e.S("s_lshl_b32", sJ, sJ, 2)
            e.S("s_add_u32", sJ, sJ, sWave)
        e.V("v_lshrrev_b32", vT0, 1, vG)
        e.V("v_and_b32", vT1, 1, vG)
        e.V("v_mov_b32", vSt2, vL16)
        e.S("s_mov_b32", sDX, BIG)
        lo, lc, lj = e.newlabel("job_wo"), e.newlabel("job_w2"), e.newlabel("job_go")

        def unit(sbase, nu, stride, ca, cb, nreg, dB):
            e.S("s_lshl_b32", sA, sU, 5)
            e.S("s_add_u32", sA, sA, sbase)
            e.S("s_lshl_b32", sA, sA, 1)
            e.S("s_mov_b32", sDB, dB)
            e.S("s_cmp_lt_u32", sU, nu)
            e.S("s_cselect_b64", VCC, -1, 0)
            e.S("s_cselect_b32", sDB, sDB, BIG)
            e.V("v_lshlrev_b32", vCol, 2, vN)
            e.V("v_and_b32", vReg, 14, vN)
            e.V("v_lshlrev_b32", vReg, 1, vReg)
            e.V("v_cndmask_b32", vCol, vReg, vCol, VCC)
            e.V("v_add_u32", vCol, sA, vCol)
            e.V("v_and_b32", vReg, 1, vN)
            e.V("v_cndmask_b32", vReg, vReg, 0, VCC)
            e.S("s_mov_b32", sA, "0x02020202")
            e.V("v_mul_lo_u32", vReg, vReg, sA)
            e.V("v_add_u32", vSel0, "0x05040100", vReg)
            e.S("s_mov_b32", sStr, stride)
            e.S("s_mov_b32", sD, 8 * stride)
            e.V("v_mul_u32_u24", vReg, sD, vG)
            e.S("s_mov_b32", sD, ca * stride)
            e.V("v_mul_u32_u24", vLeft, sD, vT0)
            e.S("s_mov_b32", sD, cb * stride)
            e.V("v_mad_u32_u24", vLeft, vT1, sD, vLeft)
            e.S("s_cmp_lt_u32", sP, nreg)
            e.S("s_cselect_b64", VCC, -1, 0)
            e.V("v_cndmask_b32", vA0, vLeft, vReg, VCC)

        def split_dests(half):
            for b in range(4):
                e.S("s_lshl_b32", sA, sP, 2)
                e.S("s_add_u32", sA, sA, b)
                e.S("s_mul_i32", sD, sA, 10)
                e.S("s_cmp_ge_u32", sA, half)
                e.S("s_cselect_b32", sB, 10 * half - 1, 0)
                e.S("s_sub_u32", sD, sD, sB)
                e.S("s_add_u32", sD, sD, sE)
                e.S("s_lshl_b32", D2[b], sD, 10)
                if half == 27 and b >= 2:
                    e.S("s_cmp_ge_u32", sA, 54)
                    e.S("s_cselect_b32", D2[b], BIG, D2[b])

        def div3(dq, dr, src):
            e.S("s_mul_i32", dq, src, 43691)
            e.S("s_lshr_b32", dq, dq, 17)
            e.S("s_mul_i32", sA, dq, 3)
            e.S("s_sub_u32", dr, src, sA)

        e.S("s_cmp_ge_u32", sJ, 55)
        e.branch("s_cbranch_scc1", lc)
        e.S("s_cmp_ge_u32", sJ, 40)
        e.branch("s_cbranch_scc1", lo)
        e.cond_begin()
        mk_srd(e, SR2, PP[8:10], D * F * 2)
        e.S("s_and_b32", sU, sJ, 3)
        e.S("s_lshr_b32", sP, sJ, 2)
        e.S("s_cmp_ge_u32", sP, 5)
        e.S("s_cselect_b32", sA, 5, 0)
        e.S("s_cselect_b32", sJ, 8, 0)
        e.S("s_sub_u32", sP, sP, sA)
        e.S("s_add_u32", sJ, sJ, sCG)
        e.S("s_mul_i32", sE, sJ, 112)
        e.S("s_max_u32", sB, sJ, 12)
        e.S("s_sub_u32", sB, sB, 12)
        e.S("s_lshl_b32", sB, sB, 4)
        e.S("s_sub_u32", sE, sE, sB)
        unit(sE, 3, 3456, 80, 8, 4, 1024)
        e.S("s_lshl_b32", sA, sU, 4)
        e.S("s_add_u32", sA, sA, sJ)
        e.S("s_cmp_ge_u32", sA, 3 * 16 + 12)
        e.S("s_cselect_b64", VCC, -1, 0)
        e.V("v_cndmask_b32", vCol, vCol, vBig, VCC)
        for b in range(4):
            e.S("s_mul_i32", sA, sP, 160)
            e.S("s_add_u32", sA, sA, 80 * (b >> 1) + 32 * (b & 1))
            e.S("s_cmp_eq_u32", sP, 4)
            e.S("s_cselect_b32", rows[b], 160 * b + 64, sA)
        e.S("s_cmp_lt_u32", sU, B1N // 2)
        e.S("s_cselect_b32", s(79), B1N, 7 - B1N)
        e.S("s_cselect_b32", sE, 0, 20 * B1N)
        e.S("s_lshl_b32", sA, sU, 1)
        e.S("s_add_u32", sE, sE, sA)
        e.S("s_mul_i32", sB, sJ, NB)
        e.S("s_add_u32", sE, sE, sB)
        e.S("s_add_u32", sE, sE, WB // KB)
        for b in range(4):
            e.S("s_lshl_b32", sA, sP, 2)
            e.S("s_add_u32", sA, sA, b)
            e.S("s_mul_i32", sA, sA, s(79))
            e.S("s_add_u32", sA, sA, sE)
            e.S("s_lshl_b32", D2[b], sA, 10)
        e.S("s_mul_i32", sD, s(79), 20)
        e.S("s_add_u32", sD, sD, sE)
        e.S("s_lshl_b32", sDX, sD, 10)
        e.branch("s_branch", lj)
        e.cond_end()
        e.label(lo)
        e.cond_begin()
        mk_srd(e, SR2, PP[4:6], D * D * 2)
        e.S("s_sub_u32", sJ, sJ, 40)
        div3(sP, sU, sJ)
        e.S("s_mul_i32", sE, sCG, 80)
        unit(sE, 2, 1280, 80, 40, 4, 2048)
        for b in range(4):
            e.S("s_mul_i32", sA, sP, 160)
            e.S("s_add_u32", sA, sA, 40 * b)
            e.S("s_cmp_eq_u32", sP, 4)
            e.S("s_cselect_b32", rows[b], 160 * b + 32, sA)
        e.S("s_mul_i32", sE, sCG, NO)
        e.S("s_add_u32", sE, sE, WO // KB)
        e.S("s_lshl_b32", sA, sU, 2)
        e.S("s_add_u32", sE, sE, sA)
        split_dests(10)
        e.branch("s_branch", lj)
        e.cond_end()
        e.label(lc)
        e.cond_begin()
        mk_srd(e, SR2, PP[12:14], F * D * 2)
        e.S("s_sub_u32", sJ, sJ, 55)
        div3(sP, sU, sJ)
        e.S("s_mul_i32", sE, sCG, 80)
        unit(sE, 2, 1280, 112, 8, 12, 2048)
        e.S("s_cmp_ge_u32", sP, 14)
        e.S("s_cselect_b64", VCC, -1, 0)
        e.V("v_cndmask_b32", vCol, vCol, vBig, VCC)
        e.V("v_cndmask_b32", vSt2, vSt2, vBig, VCC)
        e.S("s_min_u32", sP, sP, 13)
        for b in range(4):
            e.S("s_lshl_b32", sD, sP, 2)
            e.S("s_add_u32", sD, sD, b)
            e.S("s_mul_i32", sA, sD, 43691)
            e.S("s_lshr_b32", sA, sA, 17)
            e.S("s_lshl_b32", sA, sA, 4)
            e.S("s_min_u32", sA, sA, 192)
            e.S("s_lshl_b32", sB, sD, 5)
            e.S("s_add_u32", sA, sA, sB)
            e.S("s_mul_i32", sB, sD, 224)
            e.S("s_sub_u32", sB, sB, 224 * 48 - 96)
            e.S("s_cmp_ge_u32", sD, 48)
            e.S("s_cselect_b32", rows[b], sB, sA)
        e.S("s_mul_i32", sE, sCG, NC)
        e.S("s_add_u32", sE, sE, WC // KB)
        e.S("s_lshl_b32", sA, sU, 2)
        e.S("s_add_u32", sE, sE, sA)
        split_dests(27)
        e.cond_end()
        e.label(lj)
        e.V("v_add_u32", vA0, vA0, vCol)
        e.S("s_cmp_lt_u32", sP, 2)
        e.S("s_cselect_b64", VCC, -1, 0)
        e.V("v_cndmask_b32", vBias, vBig, vCol, VCC)
        e.V("v_mov_b32", vSel1, "0x07060302")
        e.V("v_add_u32", vT0, sP, vG)
        e.V("v_lshrrev_b32", vT1, 1, vT0)
        e.V("v_lshlrev_b32", vLd, 4, vN)
        e.V("v_lshl_add_u32", vLd, vT1, 8, vLd)
        e.V("v_and_b32", vT0, 1, vT0)
        e.V("v_lshl_add_u32", vLd, vT0, 3, vLd)
        e.S("s_cmp_eq_u32", sP, 4)
        e.S("s_cselect_b32", sA, 4, 1)
        e.V("v_cmp_gt_u32", VCC, sA, vG)
        e.V("v_cndmask_b32", vLd, vBig, vLd, VCC)
        e.S("s_lshl_b32", sA, sC, 4)
        e.S("s_add_u32", sA, sA, sR)
        e.S("s_mul_i32", sA, sA, KVSZ)
        e.S("s_mul_i32", sB, sWave, KVSZ // 4)
        e.S("s_add_u32", sA, sA, sB)
        e.S("s_add_u32", s(79), sA, KVB[1])
        self.stamp("dec2")
        def r2_loads():
            for b in range(4):
                e.S("s_mul_i32", sE, rows[b], sStr); yield
                for i in range(8):
                    e.bload(RAW2[8 * b + i], vA0, SR2, sE, 0, cls=(1500, 32, 0)); yield
                    if i < 7:
                        e.S("s_add_u32", sE, sE, sStr); yield
            e.bload(vBias, vBias, SR1, 0, 0, cls=(1500, 10, 0)); yield

        self.r2_loads = r2_loads()
        if self.opt.get("l2first", 1):
            for _ in self.r2_loads:
                pass
            self.stamp("iss2a")
            self.prologue2()
            self.stamp("pro2")
        sP2 = sP
        wT0, wT1, wLd, wSum = FIFO[8], FIFO[9], FIFO[10], FIFO[11]
        sT, sP = s(7), s(93)
        ops1 = []
        MK = ACC[28:32]
        self.stamp("xst")
        e.S("s_cmp_lt_u32", sT, 5)
        e.S("s_cselect_b32", sE, 5, 3)
        e.S("s_cselect_b32", sA, 0, 100)
        e.S("s_add_u32", sA, sA, sT)
        e.S("s_mul_i32", sB, sC, NA)
        e.S("s_add_u32", sA, sA, sB)
        e.S("s_add_u32", sA, sA, WA // KB)
        e.S("s_lshl_b32", sA, sA, 10)
        e.S("s_lshl_b32", sE, sE, 10)
        e.S("s_mul_i32", sB, sP, sE)
        e.S("s_lshl_b32", sB, sB, 1)
        e.S("s_add_u32", sB, sB, sA)
        self.pack(RAW1[0:8])
        ops1.append(e.bstore(RAW1[0:4], vL16, WS, sB, 0, "sc1", cls=(1000, 70, 0)))
        e.S("s_add_u32", sB, sB, sE)
        self.pack(RAW1[8:16])
        ops1.append(e.bstore(RAW1[8:12], vL16, WS, sB, 0, "sc1", cls=(1000, 70, 0)))
        e.S("s_lshr_b32", sB, sP, 1)
        e.S("s_add_u32", sB, sB, 16)
        e.S("s_mul_i32", sB, sB, sE)
        e.S("s_add_u32", sB, sB, sA)
        e.S("s_and_b32", sD, sP, 1)
        e.S("s_lshl_b32", s(95), sD, 9)
        e.S("s_add_u32", sB, sB, s(95))
        e.V("v_lshlrev_b32", wT0, 8, vG)
        e.V("v_and_b32", wT0, 256, wT0)
        e.V("v_lshl_add_u32", wT0, vN, 4, wT0)
        e.V("v_lshrrev_b32", wT1, 1, vG)
        e.V("v_lshl_add_u32", wLd, wT1, 3, wT0)
        self.pack(RAW1[16:20], 2)
        ops1.append(e.bstore(RAW1[16:18], wLd, WS, sB, 0, "sc1", cls=(1000, 40, 0)))
        self.colsum([RAW1[i] for i in (0, 1, 2, 3, 8, 9, 10, 11, 16, 17)], EX, wSum, wT0)
        e.S("s_mul_i32", sB, sE, 20)
        e.S("s_add_u32", sB, sB, sA)
        e.S("s_lshr_b32", sA, sP, 1)
        e.S("s_lshl_b32", sA, sA, 8)
        e.S("s_add_u32", sB, sB, sA)
        e.S("s_lshl_b32", sD, sD, 3)
        e.S("s_add_u32", sB, sB, sD)
        e.S("s_mov_b64", EXEC, "0xffff")
        ops1.append(e.bstore(EX[0:2], vL16, WS, sB, 0, "sc1", cls=(1000, 20, 0)))
        e.S("s_mov_b64", EXEC, -1)
        self.stamp("r1")
        if self.opt.get("r2touch", 3) == 2:
            r2touch()
        for i in range(4):
            e.V("v_mov_b32", MK[i], -1)
        e.S("s_lshl_b32", sA, sC, 4)
        e.S("s_add_u32", sA, sA, sR)
        e.S("s_mul_i32", sA, sA, KVSZ)
        e.S("s_mul_i32", sB, sWave, KVSZ // 4)
        e.S("s_add_u32", sA, sA, sB)
        e.S("s_add_u32", sA, sA, KVB[0])
        e.S("s_mov_b64", EXEC, "0xfffffff")
        ops1.append(e.bstore(MK, vL16, WS, sA, 0, "sc1", cls=(1000, 40, 0)))
        e.S("s_mov_b64", EXEC, -1)
        sP = sP2
        self.ops2 = []

        vs, vt, MK = TMP[48], TMP[49], TMP[40:44]
        EV = ACC[40:56]

        def r2_pack():
            for b in range(4):
                raw = RAW2[8 * b:8 * b + 8]
                for i in range(4):
                    e.V("v_perm_b32", EV[4 * b + i], raw[2 * i + 1], raw[2 * i], vSel0)
                for i in range(4):
                    e.V("v_perm_b32", raw[i], raw[2 * i + 1], raw[2 * i], vSel1)
            for i in range(4):
                e.V("v_mov_b32", MK[i], -1)
            e.V("v_cmp_eq_u32", sNan, 0, vG)
            for h in range(2):
                ex = TMP[44 + 2 * h:46 + 2 * h]
                self.colsum([EV[i] for i in range(16)] if h == 0 else [RAW2[8 * b + i] for b in range(4) for i in range(4)], ex, vs, vt)
                e.V("v_perm_b32", vt, vBias, vBias, vSel0 if h == 0 else vSel1)
                e.V("v_and_b32", vt, "0xffff0000", vt)
                e.V("v_or_b32", ex[1], ex[1], vt)
                e.V("v_cndmask_b32", ex[0], 0, ex[0], sNan)
                e.V("v_cndmask_b32", ex[1], 0, ex[1], sNan)
            e.V("v_mov_b32", vSel0, vLd)
            yield

        def r2_stores():
            for b in range(4):
                self.ops2.append(e.bstore(EV[4 * b:4 * b + 4], vSt2, WS, D2[b], 0, self.opt.get("r2mod", "sc1"), cls=(1000, 70, 0)))
                yield
                e.S("s_add_u32", sA, D2[b], sDB)
                self.ops2.append(e.bstore(RAW2[8 * b:8 * b + 4], vSt2, WS, sA, 0, self.opt.get("r2mod", "sc1"), cls=(1000, 70, 0)))
                yield
            e.S("s_mov_b64", EXEC, "0xfffffff")
            self.ops2.append(e.bstore(MK, vL16, WS, s(79), 0, "sc1", cls=(1000, 40, 0)))
            e.S("s_mov_b64", EXEC, -1)
            yield
            for h in range(2):
                if h:
                    e.S("s_add_u32", sDX, sDX, sDB)
                self.ops2.append(e.bstore(TMP[44 + 2 * h:46 + 2 * h], vSel0, WS, sDX, 0, "sc1", cls=(1000, 20, 0)))
                yield
        self.r2_stores = r2_stores
        self.r2_pack = r2_pack()
        npre = self.opt.get("r2pre", 50)
        for _ in self.r2_loads:
            npre -= 1
            if npre <= 0:
                break
        for _ in self.r2_pack:
            pass
        xg = self.x_dma()
        for _ in range(self.opt.get("xpre", 8)):
            next(xg)
        self.stamp("iss2")
        e.wait_ops(ops1)
        e.barrier()
        self.flag("col", 1, ACC[34], ACC[35])
        self.stamp("w1flag")
        for _ in xg:
            pass
        sg_ = r2_stores()
        for _ in range(self.opt.get("s2pre", 0)):
            next(sg_, None)
        self.stamp("r2")
        self.x_frags(self.xops, sg_)
        self.late_loads()
        e.wait_all_lg()
        e.barrier()
        self.lds_init()
        e.wait_all_lg()
        self.al0 = True
        self.stamp("xfr")
        self.poll("col", 1)
        e.barrier()
        self.stamp("w1go")

    def w2_gen(self):
        e = self.e
        t = RES[0]
        e.V("v_bfe_u32", t, vLane, 4, 1); yield
        e.V("v_lshl_add_u32", t, t, 11, vFl); yield
        e.S("s_lshl_b32", s(4), sCG, 8); yield
        e.S("s_add_u32", s(4), s(4), FLG_C); yield
        e.bload(RES[1], t, WS, s(4), 0, "sc1", cls=(900, 10, 0)); yield
        for _ in range(self.opt.get("w2wait", 50)):
            yield "idle"
        e.S("s_add_u32", s(5), sBase, 2); yield
        lok, lre = e.newlabel("w2ok"), e.newlabel("w2retry")
        e.V("v_cmp_ne_u32", VCC, s(5), RES[1])
        e.S("s_cmp_eq_u64", VCC, 0)
        e.branch("s_cbranch_scc1", lok)
        e.cond_begin()
        e.S("s_mov_b32", sCnt, 0)
        e.label(lre)
        e.misc("s_sleep 4")
        e.bload(RES[1], t, WS, s(4), 0, "sc1")
        e.V("v_cmp_ne_u32", VCC, s(5), RES[1])
        e.S("s_cmp_eq_u64", VCC, 0)
        e.branch("s_cbranch_scc1", lok)
        e.S("s_add_u32", sCnt, sCnt, 1)
        e.S("s_cmp_lt_u32", sCnt, 0x20000)
        e.branch("s_cbranch_scc1", lre)
        e.cond_end()
        e.label(lok)
        self.gate = 1 << 20
        yield

    def prologue2(self):
        e = self.e
        T0, T1, T2, T3, T4, T5 = [TMP[40 + i] for i in range(6)]
        mk_srd(e, OUT, pOut, XSZ)
        e.S("s_and_b32", sKH, sWave, 1)
        e.S("s_lshl_b32", sW2048, sWave, 11)
        e.S("s_mul_i32", sA, sC, NA * KB)
        e.S("s_add_u32", sSeg["A"], sA, WA)
        e.S("s_mul_i32", sA, sCG, NO * KB)
        e.S("s_add_u32", sSeg["O"], sA, WO)
        e.S("s_mul_i32", sA, sC, NB * KB)
        e.S("s_add_u32", sSeg["B"], sA, WB)
        e.S("s_mul_i32", sA, sCG, NC * KB)
        e.S("s_add_u32", sSeg["C"], sA, WC)
        e.V("v_add_u32", vDma, sW2048, vL16)
        e.S("s_mul_i32", sXr, sR, 160 * KB)
        e.S("s_mul_i32", sHr, sR, 432 * KB)
        e.S("s_lshl_b32", sSTr, sR, 13)
        e.S("s_mul_i32", sA, sWave, 40 * KB)
        e.V("v_add_u32", vAx[0], sA, vL16)
        e.V("v_add_u32", vAx[1], 20 * KB, vAx[0])
        e.V("v_lshlrev_b32", T0, 11, vG)
        e.V("v_lshl_add_u32", T0, vN, 3, T0)
        e.S("s_lshl_b32", sA, sWave, 8)
        e.V("v_add_u32", vSt, sA, T0)
        e.S("s_mov_b32", self.cInvD, lit(1.0 / D))
        for j in range(3):
            if j == 0:
                e.V("v_mov_b32", vW[0], vL16)
            else:
                e.V("v_add_u32", vW[j], j * 65536, vL16)
        e.S("s_lshl_b32", sA, sKH, 10)
        for j in range(3):
            e.V("v_add_u32", vK[j], sA, vW[j])
        e.S("s_lshl_b32", sTT, sRH, 2)
        e.S("s_add_u32", sTT, sTT, sWave)
        e.S("s_xor_b32", sB, sTT, 1)
        for u, st in ((0, sTT), (1, sB)):
            e.S("s_mul_i32", sA, st, 20 * KB)
            e.S("s_mul_i32", sD, sKH, 10 * KB)
            e.S("s_add_u32", sA, sA, sD)
            e.V("v_add_u32", vAo[u], sA, vL16)
            e.S("s_mul_i32", sA, st, 54 * KB)
            e.S("s_mul_i32", sD, sKH, 27 * KB)
            e.S("s_add_u32", sA, sA, sD)
            e.V("v_add_u32", vAh[u], sA, vL16)
        e.V("v_lshrrev_b32", T0, 1, vG)
        e.V("v_and_b32", T1, 1, vG)
        e.V("v_lshlrev_b32", T2, 4, vN)
        e.V("v_lshl_add_u32", T3, T0, 8, T2)
        e.V("v_lshl_add_u32", T3, T1, 3, T3)
        e.S("s_mul_i32", sA, sTT, 20 * KB)
        e.V("v_add_u32", vXs, sA, vL16)
        e.V("v_add_u32", vXh, sA, T3)
        e.S("s_mul_i32", sA, sWave, 108 * KB)
        e.V("v_add_u32", vHs, sA, vL16)
        e.S("s_cmp_ge_u32", sC, 12)
        e.S("s_cselect_b32", sA, BIG, sA)
        e.V("v_add_u32", vHh, sA, T3)
        e.S("s_mul_i32", sA, sWave, 40 * KB)
        e.V("v_lshl_add_u32", T3, vG, 3, T2)
        e.V("v_add_u32", vOh, sA, T3)
        e.V("v_cmp_gt_u32", VCC, 2, vG)
        e.V("v_mov_b32", T3, BIG)
        e.V("v_cndmask_b32", vOh, T3, vOh, VCC)
        e.S("s_lshl_b32", sA, sTT, 7)
        e.V("v_lshl_add_u32", T3, vN, 3, sA)
        e.V("v_lshl_add_u32", vStW, T0, 2, T3)
        e.S("s_lshl_b32", sA, sWave, 7)
        e.S("s_add_u32", sA, sA, RST)
        e.V("v_lshl_add_u32", vRT, vG, 4, sA)
        e.V("v_lshl_add_u32", vRW, vN, 2, sA)
        e.S("s_lshl_b32", sA, sTT, 6)
        e.S("s_add_u32", sA, sA, RST)
        e.V("v_lshl_add_u32", vRF, vN, 2, sA)
        e.V("v_lshlrev_b32", T3, 4, vG)
        e.V("v_add_u32", vZ2, ZT + 128, T3)
        e.V("v_cmp_gt_u32", VCC, 10, vN)
        e.V("v_add_u32", T3, ZT, T3)
        e.V("v_cndmask_b32", vZ01, vZ2, T3, VCC)
        e.S("s_lshl_b32", sA, sR, 3)
        e.S("s_add_u32", sA, sA, sTT)
        e.S("s_mul_i32", sA, sA, 16 * 1280)
        e.S("s_mul_i32", sB, sCG, 160)
        e.S("s_add_u32", sA, sA, sB)
        e.V("v_mul_u32_u24", T3, 1280, vN)
        e.V("v_add_u32", T3, sA, T3)
        e.V("v_lshl_add_u32", vOut, vG, 4, T3)
        e.V("v_lshl_add_u32", vOut4, vG, 3, T3)
        e.S("s_mul_i32", sA, sWave, 5120)
        e.V("v_add_u32", vXch, sA, vL16)
        e.V("v_lshlrev_b32", vFl, 2, vN)
        e.V("v_mov_b32", vLn2[0], lit(LN2))
        e.V("v_mov_b32", vEps[0], lit(1e-6))
        e.S("s_mov_b32", sMaskV[0], "0x00ff00ff")
        e.S("s_mov_b32", sMaskV[1], "0x00ff00ff")
        e.S("s_lshl_b32", sA, sR, 8)
        e.S("s_add_u32", sFRL, sA, FLG_RL)
        e.S("s_add_u32", sFRG, sA, FLG_RG)
        e.S("s_lshl_b32", sA, sC, 8)
        e.S("s_add_u32", sFC, sA, FLG_C)
        e.S("s_lshl_b32", sA, sCG, 11)
        e.S("s_add_u32", sOx, sXr, sA)
        e.S("s_lshr_b32", sA, sCG, 1)
        e.S("s_lshl_b32", sA, sA, 10)
        e.S("s_and_b32", sB, sCG, 1)
        e.S("s_lshl_b32", sB, sB, 9)
        e.S("s_add_u32", sA, sA, sB)
        e.S("s_add_u32", sA, sA, 16 * KB)
        e.S("s_add_u32", sOxh, sXr, sA)
        e.S("s_lshl_b32", sA, sCG, 10)
        e.S("s_add_u32", sOst, sSTr, sA)
        e.S("s_lshl_b32", sA, sC, 10)
        e.S("s_add_u32", sOo, sXr, sA)
        e.S("s_lshl_b32", sA, sC, 8)
        e.S("s_add_u32", sA, sA, 16 * KB)
        e.S("s_add_u32", sOoh, sXr, sA)
        e.S("s_mul_i32", sA, sC, 3 * KB)
        e.S("s_add_u32", sOh, sHr, sA)
        e.S("s_lshl_b32", sA, sC, 9)
        e.S("s_add_u32", sA, sA, 48 * KB)
        e.S("s_add_u32", sOhh, sHr, sA)
        e.S("s_mul_i32", sKv, sC, 16 * KVSZ)
        e.misc(f"s_getreg_b32 {sX1}, hwreg(HW_REG_XCC_ID, 0, 4)")
        e.S("s_and_b32", sX1, sX1, 7)
        e.S("s_add_u32", sX1, sX1, 8)
        e.S("s_add_u32", sX1, sX1, sBase)
        e.S("s_mov_b32", sLocal, 0)
        U, Hh, Ee, Dq = T0, T1, T2, T3
        e.S("s_mov_b32", sA, 52429)
        e.V("v_mul_u32_u24", U, sA, v(0))
        e.V("v_lshrrev_b32", U, 18, U)
        e.V("v_mul_u32_u24", Dq, 5, U)
        e.V("v_sub_u32", Dq, v(0), Dq)
        e.V("v_cmp_le_u32", VCC, 21, U)
        e.V("v_cndmask_b32", Hh, 0, 1, VCC)
        e.V("v_mul_u32_u24", Ee, 21, Hh)
        e.V("v_sub_u32", Ee, U, Ee)
        A0, A1, A2, A3 = TMP[46], TMP[47], ACC[36], ACC[37]
        e.V("v_cmp_le_u32", s(100, 2), 16, Ee)
        e.V("v_cmp_eq_u32", s(88, 2), 4, Dq)
        e.V("v_cndmask_b32", A0, 0, 1, s(100, 2))
        e.V("v_lshl_add_u32", A0, Hh, 1, A0)
        e.V("v_add_u32", A1, 4, Hh)
        e.V("v_cndmask_b32", A1, A1, 6, s(100, 2))
        e.V("v_cndmask_b32", A0, A0, A1, s(88, 2))
        e.V("v_cndmask_b32", A1, Dq, Hh, s(88, 2))
        e.V("v_lshl_add_u32", A2, Hh, 2, Ee)
        e.V("v_subrev_u32", A2, 8, A2)
        e.V("v_cndmask_b32", A2, Ee, A2, s(100, 2))
        e.V("v_cmp_eq_u32", VCC, 20, Ee)
        e.V("v_cndmask_b32", A2, A2, 0, VCC)
        e.V("v_lshl_add_u32", A1, A1, 4, A2)
        e.V("v_lshlrev_b32", A1, 4, A1)
        e.V("v_lshl_add_u32", vKvSrc, A0, 10, A1)
        e.V("v_mul_u32_u24", A0, 5, Hh)
        e.V("v_add_u32", A0, A0, Dq)
        e.V("v_cmp_le_u32", s(88, 2), 8, A0)
        e.V("v_lshrrev_b32", A1, 1, A0)
        e.V("v_subrev_u32", A2, 8, A0)
        e.V("v_cndmask_b32", A1, A1, A2, s(88, 2))
        e.V("v_and_b32", A2, 1, A0)
        e.V("v_cndmask_b32", A2, A2, 0, s(88, 2))
        e.V("v_lshlrev_b32", A2, 3, A2)
        e.V("v_cndmask_b32", A0, 0, 1, s(88, 2))
        e.V("v_lshl_add_u32", A3, Hh, 1, A0)
        e.V("v_lshl_add_u32", A3, A3, 2, A1)
        e.V("v_lshl_add_u32", A3, A3, 4, A2)
        e.V("v_add_u32", A3, ZT, A3)
        e.V("v_mul_u32_u24", T4, 20, Hh)
        e.V("v_add_u32", T4, T4, Ee)
        e.V("v_cmp_le_u32", s(100, 2), 32, T4)
        e.V("v_and_b32", T5, 1, T4)
        e.V("v_cndmask_b32", T5, T5, 2, s(100, 2))
        e.V("v_lshl_add_u32", A0, T5, 1, A0)
        e.V("v_lshrrev_b32", T5, 1, T4)
        e.V("v_subrev_u32", T4, 32, T4)
        e.V("v_cndmask_b32", T4, T5, T4, s(100, 2))
        e.V("v_lshl_add_u32", T4, A1, 4, T4)
        e.V("v_lshl_add_u32", T4, T4, 4, A2)
        e.V("v_lshl_add_u32", T4, A0, 10, T4)
        e.V("v_cndmask_b32", T4, T4, A3, VCC)
        e.V("v_cmp_gt_u32", VCC, 210, v(0))
        e.V("v_mov_b32", T5, DUMMY)
        e.V("v_cndmask_b32", vKvDst, T5, T4, VCC)
        e.V("v_cndmask_b32", vKvSrc, 0, vKvSrc, VCC)
        e.V("v_lshlrev_b32", T4, 3, v(0))
        e.V("v_mov_b32", T5, BIG)
        e.V("v_cndmask_b32", vT16, T5, T4, VCC)
        e.V("v_and_b32", T4, -16, T4)
        e.V("v_and_b32", T0, 1, v(0))
        e.V("v_mul_u32_u24", T0, 8 * KVSZ, T0)
        e.V("v_add_u32", T4, T4, T0)
        e.V("v_cndmask_b32", vT16L, T5, T4, VCC)

    def late_loads(self):
        e = self.e
        T4, T5 = TMP[48], TMP[49]
        e.S("s_mul_i32", sB, sCG, 160)
        e.bload(RES[10:14], vOut, XIN, 0, 0)
        e.bload(RES[14:18], vOut, XIN, 0, 64)
        e.bload(RES[18:20], vOut4, XIN, 0, 128)
        skip = e.newlabel("noxid")
        e.S("s_cmp_lg_u32", sWave, 3)
        e.branch("s_cbranch_scc1", skip)
        e.cond_begin()
        e.S("s_lshl_b32", sA, sR, 8)
        e.S("s_add_u32", sA, sA, FLG_X)
        e.S("s_lshl_b32", sB, sC, 2)
        e.V("v_mov_b32", T4, sB)
        e.V("v_mov_b32", T5, sX1)
        e.S("s_mov_b64", EXEC, 1)
        e.bstore(T5, T4, WS, sA, 0, "sc1")
        e.S("s_mov_b64", EXEC, -1)
        e.cond_end()
        e.label(skip)

    def unpack(self, dst, pk):
        e = self.e
        for a_ in range(2):
            for j in range(4):
                e.V("v_lshlrev_b32", dst[8 * a_ + j], 16, pk[4 * a_ + j])
                e.V("v_and_b32", dst[8 * a_ + 4 + j], "0xffff0000", pk[4 * a_ + j])
        for j in range(2):
            e.V("v_lshlrev_b32", dst[16 + 2 * j], 16, pk[8 + j])
            e.V("v_and_b32", dst[16 + 2 * j + 1], "0xffff0000", pk[8 + j])

    class ALoad:
        def __init__(self, m, vaddr, terms, nks):
            self.m, self.vaddr, self.terms, self.nks = m, vaddr, terms, nks
            self.n = 0
            self.based = -1
            self.done = False
            self.win = 20

        def step(self):
            e = self.m.e
            ks, u = divmod(self.n, 2)
            if ks // 4 != self.based:
                self.based = ks // 4
                e.S("s_add_u32", sLd, self.terms[0], self.terms[1] + (ks // 4) * 4 * KB)
                return False
            e.bload(a((self.n % 40) * 4, 4), self.vaddr[u], WS, sLd, (ks % 4) * KB, self.m.opt.get("amod", "sc1"), cls=(self.m.opt.get("latA", 600), 76, 33 if self.nks == 27 else 16))
            self.n += 1
            self.done = self.n >= 2 * self.nks
            return True

        def upto(self, ks):
            while self.n < 2 * min(ks + 1, self.nks):
                self.step()

    def stats_loads(self, ver):
        e = self.e
        e.S("s_add_u32", sA, sSTr, STB[ver])
        for u in range(2):
            for k in range(2):
                e.bload(TMP[4 * u + 2 * k:4 * u + 2 * k + 2], vSt, WS, sA, k * 1024 + u * 128, "sc1", cls=(600, 20, 0))

    def stats_gen(self, need_T, have=False):
        e = self.e
        for u in range(2):
            sm, sq, t0, t1 = TMP[4 * u], TMP[4 * u + 1], TMP[4 * u + 2], TMP[4 * u + 3]
            if not have:
                e.V("v_add_f32", sm, sm, t0); yield
                e.V("v_add_f32", sq, sq, t1); yield
            for op in () if have else ("v_permlane32_swap_b32", "v_permlane16_swap_b32"):
                e.V("v_mov_b32", t0, sm); yield
                e.V("v_mov_b32", t1, sq); yield
                e.V(op, sm, t0); yield
                e.V(op, sq, t1); yield
                e.V("v_add_f32", sm, sm, t0); yield
                e.V("v_add_f32", sq, sq, t1); yield
            e.V("v_mul_f32", sm, lit(1.0 / D), sm); yield
            e.V("v_mul_f32", t0, sm, sm); yield
            e.V("v_fma_f32", sq, sq, self.cInvD, Neg(t0)); yield
            e.V("v_max_f32", sq, 0, sq); yield
            e.V("v_add_f32", sq, lit(1e-5), sq); yield
            e.V("v_rsq_f32", t0, sq); yield
            e.V("v_cvt_pk_bf16_f32", XE[u][0], sm, sm); yield
            e.V("v_mul_f32", sq, sq, t0); yield
            e.ds_write(vRW, t0, 64 * u); yield
            c2 = vC2 if u == 0 else vC2b
            e.V("v_mul_f32", c2[0], lit(LOG2E), t0); yield
            e.V("v_lshlrev_b32", t1, 16, XE[u][0]); yield
            e.V("v_sub_f32", sm, sm, t1); yield
            e.V("v_cvt_pk_bf16_f32", XE[u][1], sm, sq); yield
            e.V("v_and_b32", t1, "0xffff0000", XE[u][1]); yield
            e.V("v_sub_f32", t1, sq, t1); yield
            e.V("v_cvt_pk_bf16_f32", XE[u][3], sm, t1); yield
            e.V("v_mov_b32", XE[u][2], XE[u][0]); yield
        if need_T:
            for u in range(2):
                e.ds_read(RT[4 * u:4 * u + 4], vRT, 64 * u); yield

    def phi_pair(self, src, c2, bcast, t):
        e = self.e
        m = "op_sel_hi:[1,0]" if bcast else ""
        e.V("v_pk_mul_f32", t[0:2], src, c2, mods=m)
        e.V("v_exp_f32_e64", t[2], t[0], mods="clamp")
        e.V("v_exp_f32_e64", t[3], t[1], mods="clamp")
        e.V("v_max_f32", t[0], 0, t[0])
        e.V("v_max_f32", t[1], 0, t[1])
        e.V("v_pk_add_f32", t[2:4], t[2:4], vEps, mods="op_sel_hi:[1,0]")
        e.V("v_pk_fma_f32", t[0:2], t[0:2], vLn2, t[2:4], mods="op_sel_hi:[1,0,1]")

    def scratch(self, nblk, endpos):
        st = endpos - nblk
        if (st % RB) + nblk > RB:
            st = endpos - (endpos % RB) - nblk
        self.last_scratch = (st, st + nblk)
        return st, self.ldsaddr(st)

    def bg_on(self, tail):
        e = self.e
        st = {"next": 0}
        t_end = e.T + tail
        self.deadline = lambda: t_end

        def f():
            if e.T >= st["next"] and self.dma_ok():
                n0 = len(e.vm) + len(e.lg) + len(self.deferred)
                while len(e.vm) + len(e.lg) + len(self.deferred) == n0:
                    next(self.dmaf)
                st["next"] = e.T + self.opt.get("vgap", 24)
        self.e.bg = f

    def code_touch(self, ahead=None):
        e = self.e
        if not self.opt.get("ctouch", 1):
            return
        lab = e.newlabel("here")
        e.label(lab)
        ahead = self.opt.get("cahead", 2048) if ahead is None else ahead
        e.V("v_lshlrev_b32", v(51), 5, v(0))
        e.V("v_add_u32", v(51), f"{lab}-{self.kname}+{ahead}", v(51))
        e.V("v_min_u32", v(51), self.opt.get("code_bytes", 32768) - 4, v(51))
        e.misc(f"global_load_dword {vDum}, {v(51)}, s[96:97]")
        e._vm([], (800, 30, 10))

    def at_block(self, t, gen):
        i0 = self.cons
        while self.cons < i0 + t:
            yield "idle"
        yield from gen

    def delay(self, n, gen):
        for _ in range(n):
            yield "idle"
        yield from gen

    def code_touch_gen(self):
        self.code_touch(self.opt.get("cahead", 512))
        yield

    def bg_off(self):
        self.e.bg = None

    def gstore(self, lst, cold=False):
        e = self.e
        mode = self.opt.get("mode", "dual")
        if cold and not self.opt.get("touchcold", 0):
            mode = "safe"
        if mode != "dual":
            return [e.bstore(d, vo, WS, so, off, "sc1" if mode == "safe" else "") for d, vo, so, off in lst]
        ls, le = e.newlabel("st_safe"), e.newlabel("st_end")
        regs = []
        for d, vo, so, off in lst:
            regs += d.regs() + vo.regs()
        e.wait_ops(e._pending(regs))
        e.S("s_cmp_eq_u32", sLocal, 0)
        need = e._need("vmem", regs, [])
        if need > 1:
            e.nop(need - 1)
        e.branch("s_cbranch_scc1", ls)
        n0 = len(e.lines)
        ops = [e.bstore(d, vo, WS, so, off, "") for d, vo, so, off in lst]
        body = e.lines[n0:]
        assert len(body) == len(lst), body
        e.raw(f"  s_branch {le}")
        e.label(ls)
        for l in body:
            e.raw(l + " sc1")
        e.label(le)
        return ops

    def touch_gen(self, lst, cold=False):
        e = self.e
        if (cold and not self.opt.get("touchcold", 0)) or not self.opt.get("touch", 0):
            return
        for vo, sb, add, off in lst:
            e.S("s_add_u32", sE, sb, add); yield
            e.touch(vDum, vo, WS, sE, off, cls=(750, 80, 30)); yield

    def local_gen(self):
        e = self.e
        e.S("s_lshl_b32", s(6), sR, 8); yield
        e.S("s_add_u32", s(6), s(6), FLG_X); yield
        e.bload(TMP[39], vFl, WS, s(6), 0, "sc1"); yield
        for _ in range(40):
            yield "idle"
        e.V("v_cmp_ne_u32", VCC, sX1, TMP[39]); yield
        e.S("s_cmp_eq_u64", VCC, 0)
        e.S("s_cselect_b32", sLocal, 1, 0); yield

    def poll(self, kind, val):
        e = self.e
        skip = e.newlabel("nopoll")
        loop = e.newlabel("poll")
        e.S("s_cmp_lg_u32", sWave, 0)
        e.branch("s_cbranch_scc1", skip)
        e.cond_begin()
        t = TMP[38]
        e.S("s_mov_b32", sCnt, 0)
        e.S("s_mov_b64", sOk, 0)
        e.S("s_add_u32", sB, sBase, val)
        va, vb, sa, sb = (vFl, vFl, sFRL, sFRG) if kind != "col" else (vFl, vFl, sFC, sFC)
        if kind == "both":
            va, vb, sa, sb = TMP[36], TMP[37], 0, 0
            e.V("v_cmp_gt_u32", VCC, 2, vG)
            e.V("v_mov_b32", va, sFC)
            e.V("v_mov_b32", vb, sFRL)
            e.V("v_cndmask_b32", va, vb, va, VCC)
            e.V("v_add_u32", va, va, vFl)
            e.V("v_mov_b32", vb, FLG_RG - FLG_RL)
            e.V("v_cndmask_b32", vb, vb, 0, VCC)
            e.V("v_add_u32", vb, va, vb)
        if kind == "row":
            e.S("s_cmp_eq_u32", sLocal, 0)
            e.S("s_cselect_b32", sD, 3, -1)
        else:
            e.S("s_mov_b32", sD, 3)
        e.label(loop)

        def chk():
            e.misc("s_waitcnt vmcnt(0)")
            e.misc(f"v_subrev_u32 {t}, {sB}, {t}")
            e.misc(f"v_cmp_ge_u32 vcc, 1, {t}")
            e.misc(f"s_or_b64 {sOk}, {sOk}, vcc")
            e.misc(f"s_cmp_eq_u64 {sOk}, -1")
            e.misc(f"s_cbranch_scc1 {skip}")
        e.misc(f"buffer_load_dword {t}, {va}, {WS}, {sa} offen sc1")
        e.misc("s_add_u32 %s, %s, 1" % (sCnt, sCnt))
        chk()
        if kind != "row":
            e.misc("s_sleep 3")
        lnext = e.newlabel("pollnext")
        e.misc(f"s_and_b32 {sA}, {sCnt}, {sD}")
        e.misc(f"s_cbranch_scc1 {lnext}")
        e.misc(f"buffer_load_dword {t}, {vb}, {WS}, {sb} offen sc1")
        chk()
        e.label(lnext)
        e.misc(f"s_cmp_lt_u32 {sCnt}, 0x80000")
        e.misc(f"s_cbranch_scc1 {loop}")
        e.cond_end()
        e.label(skip)

    def flag(self, kind, val, t0=TMP[37], t1=TMP[38]):
        e = self.e
        lst = [(1, sFRG, "sc1", sC), (2, sFRL, "", sC)] if kind != "col" else []
        if kind != "row":
            lst.append((3, sFC, "sc1", sR))
        for w, sb, m, sidx in lst:
            skip = e.newlabel("noflag")
            if w == 1 and self.opt.get("skipg", 1):
                e.S("s_lshl_b32", sA, sLocal, 2)
                e.S("s_add_u32", sA, sA, sWave)
                e.S("s_cmp_lg_u32", sA, w)
            else:
                e.S("s_cmp_lg_u32", sWave, w)
            e.branch("s_cbranch_scc1", skip)
            e.cond_begin()
            e.S("s_lshl_b32", sA, sidx, 2)
            e.V("v_mov_b32", t0, sA)
            e.S("s_add_u32", sA, sBase, val)
            e.V("v_mov_b32", t1, sA)
            e.S("s_mov_b64", EXEC, 1)
            e.bstore(t1, t0, WS, sb, 0, m)
            e.S("s_mov_b64", EXEC, -1)
            e.cond_end()
            e.label(skip)

    def handoff(self, val, ops, shadow=None, touch=()):
        e = self.e
        t_st = e.T
        hk = (val - 2) % 4
        pick = lambda name, d: self.opt[name + "s"][hk] if name + "s" in self.opt else self.opt.get(name, d)
        self.deadline = lambda: t_st + pick("topup", 2600)
        self.own_end = 0
        while self.dma_ok():
            next(self.dmaf)
        while self.stage_step():
            pass
        self.finish_stage()
        self.restore(self.opt.get("rest1", 2))
        e.wait_all_lg()
        self.ring_barrier(self.cons + FI + self.opt.get("ahead", 16), ops)
        self.hold = None
        self.flag("row", val)
        self.stamp("flag")
        t_flag = e.T
        if self.opt.get("post_touch", 0):
            for k, (vo, sb, add, off) in enumerate(touch):
                sr = sE if k % 2 else sD
                e.S("s_add_u32", sr, sb, add)
                e.touch(vDum, vo, WS, sr, off, "sc1", cls=(750, 66, 30))
        self.deadline = lambda: t_flag + pick("topup2", 1500)
        while self.dma_ok():
            next(self.dmaf)
        while self.stage_step():
            pass
        self.finish_stage()
        self.warn.append(f"staged {len(self.staged)}")
        self.stage_plan = []
        self.prime()
        self.restore(self.opt.get("rest2", 8) if hk == 3 else 99)
        self.restg = self.restore_gen(99)
        if shadow:
            shadow()
        self.poll("row", val)
        e.T = max(e.T, t_flag + 1000)
        e.barrier()
        self.stamp("go")

    def phaseA(self, p):
        e = self.e
        opt = self.opt
        xv = 2 * p
        acc = lambda T, u: ACC[(T * 2 + u) * 4:(T * 2 + u) * 4 + 4]
        xf = lambda ks, u: a((ks * 2 + u) * 4, 4) if ks < 20 else XE[u]
        if p == 0:
            e.S("s_mov_b32", sSel[0], "0x00003f80")
            e.S("s_mov_b32", sSel[1], "0x3f800000")
            e.S("s_mov_b32", sOdd[0], "0xaaaaaaaa")
            e.S("s_mov_b32", sOdd[1], "0xaaaaaaaa")
            e.S("s_getpc_b64", s(96, 2))
            e.label("main_pc2")
            e.S("s_sub_u32", s(96), s(96), "main_pc2-" + self.kname)
            e.S("s_subb_u32", s(97), s(97), 0)
            for _ in range(opt.get("first_groups", 6 if self.al0 else 3)):
                for _ in self.dma_group():
                    pass
        if p == 0 and self.al0:
            al = None
            for _ in self.stats_gen(True, True):
                pass
            fl0 = [(x for x in ())]
            next(fl0[0], None)
        else:
            al = self.ALoad(self, vAx, (sXr, XB[xv]), 20)
            al.upto(opt.get("adist", 4) - 1)
            self.stats_loads(xv)
            fl0 = [self.delay(opt.get("stdelay", 24), self.stats_gen(True))]
        sc_keep = self.last_scratch
        if p:
            fl0.append(self.restg)
        if p == 0:
            if opt.get("r2st", 2) == 0:
                self.r2_stores()
                self.late_loads()
            e.wait_all_lg()
            if opt.get("r2st", 2) == 2:
                self.ring_barrier(FI + 8, self.ops2)
                self.flag("col", 2)
                fl0.append(self.at_block(opt.get("w2at", 72), self.w2_gen()))
            else:
                self.ring_barrier(FI + 8)
            self.prime()
            self.stamp("start")
            if opt.get("keep", 12):
                self.capg = self.capture_gen(opt.get("keep0", 3), opt.get("keep", 12))
                next(self.capg)
                fl0.append(self.capg)
        st1 = {}

        def hook1(t):
            if t >= opt.get("w2flag_at", 30) and not st1.get("done"):
                st1["done"] = t
                return self.ops2, (lambda: self.flag("col", 2))
            return [], None

        def add1(t):
            if st1.get("done") and t >= opt.get("w2chk_at", 70) and not st1.get("chk"):
                st1["chk"] = True
                return self.w2_gen()
        i0 = self.seqstart[("A1", p)]
        fb = 102
        sst, sad = self.scratch(28, self.seq[i0 + fb][0])
        self.last_scratch = sc_keep
        self.hold = sst

        C2T = ACC[40:48]

        def pre_gen(first):
            while first.gi_frame is not None:
                yield "idle"
            e.S("s_mul_i32", s(7), sWave, 7168); yield
            e.S("s_add_u32", s(7), s(7), sad); yield
            e.V("v_add_u32", TMP[24], s(7), vL16); yield
            e.V("v_add_u32", TMP[25], sad, vKvSrc); yield
            e.S("s_mul_i32", s(7), sR, KVSZ); yield
            e.S("s_add_u32", s(7), s(7), sKv); yield
            e.S("s_add_u32", s(7), s(7), KVB[p]); yield
            for _ in range(8):
                yield "idle"
            for j in range(8):
                e.V("v_mul_f32", C2T[j], lit(LOG2E), RT[j]); yield
        fl0.append(pre_gen(fl0[0]))

        def must_gen():
            yield from fl0[0]
            yield from fl0[-1]
            while self.capg and self.cap_next < sst + 28:
                next(self.capg)
                yield

        def mf(t, W, u):
            ks, T = divmod(t, 5)
            e.mfma(acc(T, u), xf(ks, u), W, acc(T, u) if ks else 0)
        self.run_pass(105, mf, 5, xf, fl0, must=must_gen(), chunk=(8 if p == 0 else 24), stop_reads=self.seqstart[("A4", p)], aload=al,
                      force_bar=fb, tail=6000, mix=opt.get("mixA", 0) if p else 0,
                      late=(60, self.touch_gen([(vAx[0], sOo, OB[p], 0), (vAx[1], sOo, OB[p], 0), (vOh, sOoh, OB[p], 0), (vOh, sOoh, OB[p] + 20 * KB, 0)], p == 0)), hooks={"bar": hook1, "add": add1} if (p == 0 and opt.get("r2st", 2) == 0) else None)
        if p == 0 and opt.get("r2st", 2) == 1:
            self.dma_all()
            self.r2_stores()
            self.late_loads()
        assert sst + 28 <= self.freed and sst + 28 <= self.cap_hold, (sst, self.cap_hold)
        self.stamp("A1")
        self.bg_on(5000)
        KF = [TMP[8:12], TMP[12:16], TMP[16:20]]
        VF = {3: TMP[20:24], 4: ACC[56:60], 2: ACC[60:64]}
        tt = [ACC[48:52], ACC[52:56]]
        TA0, TA1 = TMP[24], TMP[25]
        n = 0
        for T in range(3):
            for u in range(2):
                for h in range(2):
                    t = tt[n % 2]
                    n += 1
                    self.phi_pair(acc(T, u)[2 * h:2 * h + 2], C2T[4 * u + 2 * h:4 * u + 2 * h + 2], False, t)
                    e.V("v_cvt_pk_bf16_f32", KF[T][2 * u + h], t[0], t[1])
        for T in (3, 4, 2):
            for u in range(2):
                for h in range(2):
                    x = acc(T, u)[2 * h:2 * h + 2]
                    e.V("v_pk_mul_f32", x, x, RT[4 * u + 2 * h:4 * u + 2 * h + 2])
            for u in range(2):
                for h in range(2):
                    x = acc(T, u)[2 * h:2 * h + 2]
                    e.V("v_cvt_pk_bf16_f32", VF[T][2 * u + h], x[0], x[1])
        for j in range(4):
            e.V("v_cndmask_b32", VF[2][j], VF[2][j], vOne, sMaskV)
        PR = [ACC[4 * i:4 * i + 4] for i in range(7)]
        prods = [(0, 3), (0, 2), (1, 4), (1, 2), (2, 3), (2, 4), (2, 2)]
        for i, (kt, vt) in enumerate(prods):
            e.mfma(PR[i], KF[kt], VF[vt], 0)
        for i in range(7):
            e.ds_write(TA0, PR[i], i * 1024)
        e.wait_all_lg()
        e.barrier()
        RD = [ACC[4 * w:4 * w + 4] for w in range(4)]
        for w in range(4):
            e.ds_read(RD[w], TA1, w * 7168)
        for h in range(2):
            e.V("v_pk_add_f32", RD[0][2 * h:2 * h + 2], RD[0][2 * h:2 * h + 2], RD[1][2 * h:2 * h + 2])
            e.V("v_pk_add_f32", RD[2][2 * h:2 * h + 2], RD[2][2 * h:2 * h + 2], RD[3][2 * h:2 * h + 2])
        for h in range(2):
            e.V("v_pk_add_f32", RD[0][2 * h:2 * h + 2], RD[0][2 * h:2 * h + 2], RD[2][2 * h:2 * h + 2])
        e.V("v_cvt_pk_bf16_f32", RD[1][0], RD[0][0], RD[0][1])
        e.V("v_cvt_pk_bf16_f32", RD[1][1], RD[0][2], RD[0][3])
        kvst = e.bstore(RD[1][0:2], vT16, WS, s(7), 0, "sc1")
        self.bg_off()
        self.stamp("kvpub")
        PL = [ACC[4 * i:4 * i + 4] for i in range(10)]

        st2 = {}

        def barhook(t):
            def rel():
                self.hold = None

            def relflag():
                self.hold = None
                self.flag("col", 2)
            if p == 0 and opt.get("r2st", 2) == 1 and not st2.get("done") and t >= opt.get("w2flag2_at", 12):
                st2["done"] = True
                return self.ops2, relflag
            return [], rel

        def kvloads():
            for i in range(8):
                if i % 2 == 0:
                    e.S("s_add_u32", sB, sKv, KVB[p] + i * KVSZ); yield
                e.bload(PL[i], vT16L, WS, sB, (i % 2) * KVSZ, "sc1", cls=(opt.get('kvlat', 800), 80, opt.get('kvsvc', 130))); yield

        def kvsum():
            SM = PL[8:10]
            for i in range(8):
                for d in range(4):
                    for h in range(2):
                        x = SM[d >> 1][2 * (d & 1) + h]
                        if i == 0:
                            e.V("v_dot2_f32_bf16", x, PL[i][d], sSel[h], 0)
                        else:
                            e.V("v_dot2c_f32_bf16", x, sSel[h], PL[i][d])
            for d in range(8):
                x = SM[d >> 2][d & 3]
                e.V("v_add_f32_dpp", x, x, x, mods="quad_perm:[1,0,3,2] row_mask:0xf bank_mask:0xf")
            for d in range(4):
                e.V("v_cndmask_b32", PL[0][d], SM[0][d], SM[1][d], sOdd)
            e.V("v_cmp_u_f32", VCC, PL[0][0], PL[0][1])
            e.V("v_cmp_u_f32", sNan, PL[0][2], PL[0][3])
            e.S("s_or_b64", VCC, VCC, sNan)

        def mfq(t, W, u):
            ks, T = divmod(t, 3)
            e.mfma(acc(5 + T, u), W, xf(ks, u), acc(5 + T, u) if ks else 0)
        self.lastbar = self.rd - 8
        fl = []
        if p == 0:
            fl = [self.local_gen()] + ([self.capg] if self.capg else [])
        self.run_pass(63, mfq, 3, xf, fl, stop_reads=self.seqstart[("A4", p)], hooks={"bar": barhook},
                      late=(opt.get("kvload_at", 40), kvloads()), see_all=True, force_bar=61, tail=1600 + self.opt.get("slack", 2400))
        if self.capg:
            n_ = 0
            for _ in self.capg:
                n_ += 1
                assert n_ < 1000
            self.capg = None
        self.stamp("A2")
        if p == 0 and opt.get("r2st", 2) == 1:
            assert st2.get("done")
            w2 = self.w2_gen()
            while next(w2) != "idle":
                pass
        if opt.get("qbg", 1):
            self.bg_on(1600 + self.opt.get("slack", 2400))
        PQ0 = [TMP[0:4], TMP[4:8]]
        PQ1 = [TMP[8:12], TMP[12:16]]
        tq = [TMP[16:20], TMP[20:24]]
        for u in range(2):
            c2 = vC2 if u == 0 else vC2b
            for h in range(2):
                self.phi_pair(acc(5, u)[2 * h:2 * h + 2], c2, True, tq[0])
                self.phi_pair(acc(6, u)[2 * h:2 * h + 2], c2, True, tq[1])
                e.V("v_cvt_pk_bf16_f32", PQ0[u][2 * h], tq[0][0], tq[1][0])
                e.V("v_cvt_pk_bf16_f32", PQ0[u][2 * h + 1], tq[0][1], tq[1][1])
            for h in range(2):
                self.phi_pair(acc(7, u)[2 * h:2 * h + 2], c2, True, tq[h])
                e.V("v_cvt_pk_bf16_f32", PQ1[u][h], tq[h][0], tq[h][1])
            e.V("v_mov_b32", PQ1[u][2], 0)
            e.V("v_mov_b32", PQ1[u][3], 0)
        self.bg_off()
        self.stamp("qepi")
        kvsum()
        lok, lre = e.newlabel("kvok"), e.newlabel("kvretry")
        e.branch("s_cbranch_scc0", lok)
        e.cond_begin()
        e.S("s_mov_b32", sCnt, 0)
        e.label(lre)
        e.misc("s_sleep 4")
        for _ in kvloads():
            pass
        kvsum()
        e.branch("s_cbranch_scc0", lok)
        e.S("s_add_u32", sCnt, sCnt, 1)
        e.S("s_cmp_lt_u32", sCnt, 0x10000)
        e.branch("s_cbranch_scc1", lre)
        e.cond_end()
        e.label(lok)
        self.stamp("kvgo")
        if p == 0 and opt.get("r2st", 2) == 1:
            for _ in w2:
                pass

        self.bg_on(900 + self.opt.get("slack", 2400))
        e.V("v_cvt_pk_bf16_f32", TMP[16], PL[0][0], PL[0][1])
        e.V("v_cvt_pk_bf16_f32", TMP[17], PL[0][2], PL[0][3])
        e.ds_write(vKvDst, TMP[16:18])
        e.wait_all_lg()
        e.barrier()
        FR = [ACC[40 + 4 * i:44 + 4 * i] for i in range(6)] + [TMP[16 + 4 * i:20 + 4 * i] for i in range(4)]
        for T in range(3):
            for ks in range(2):
                e.ds_read(FR[T * 2 + ks], vL16, IMG + (T * 2 + ks) * KB)
        for ks in range(2):
            e.ds_read(FR[6 + ks], vZ01, ks * 64)
            e.ds_read(FR[8 + ks], vZ2, ks * 64)
        oa = lambda T, u: ACC[(T * 2 + u) * 4:(T * 2 + u) * 4 + 4]
        ops = []

        def norm(u, packed):
            den = (oa(3, u)[0], oa(3, u)[2], oa(4, u)[0])
            for x in den:
                e.V("v_add_f32", x, vEps[0], x); yield
            for x in den:
                e.V("v_rcp_f32", x, x); yield
            for T in range(3):
                for h in range(2):
                    x = oa(T, u)[2 * h:2 * h + 2]
                    dn = oa(3, u)[2 * h:2 * h + 2] if T < 2 else oa(4, u)[0:2]
                    if packed:
                        e.V("v_pk_mul_f32", x, x, dn, mods="op_sel_hi:[1,0]"); yield
                    else:
                        e.V("v_mul_f32", x[0], x[0], dn[0]); yield
                        e.V("v_mul_f32", x[1], x[1], dn[0]); yield
            o4 = TMP[8 * u:8 * u + 4] if False else RT[4 * u:4 * u + 4]
            o2 = XE[u][0:2]
            for j in range(4):
                e.V("v_cvt_pk_bf16_f32", o4[j], oa(0, u)[j], oa(1, u)[j]); yield
            for h in range(2):
                e.V("v_cvt_pk_bf16_f32", o2[h], oa(2, u)[2 * h], oa(2, u)[2 * h + 1]); yield
            ops.extend(self.gstore([(o4, vAx[u], sA, 0), (o2, vOh, sB if u == 0 else sD, 0)], p == 0 or opt.get("osafe")))
            yield
        bg, e.bg = e.bg, None
        order = [(T, k) for k in range(2) for T in (3, 4, 0, 1, 2)]
        for T, k in order:
            e.mfma(oa(T, 0), FR[2 * T + k], (PQ0, PQ1)[k][0], oa(T, 0) if k else 0)
        e.S("s_add_u32", sA, sOo, OB[p])
        e.S("s_add_u32", sB, sOoh, OB[p])
        g0 = norm(0, False)
        for n_, (T, k) in enumerate(order):
            e.mfma(oa(T, 1), FR[2 * T + k], (PQ0, PQ1)[k][1], oa(T, 1) if k else 0)
            if n_ == 0:
                e.S("s_add_u32", sD, sOoh, OB[p] + 20 * KB)
            elif n_ < 9:
                next(g0)
                if n_ not in (2, 3):
                    next(g0)
        e.bg = bg
        for _ in g0:
            pass
        for _ in norm(1, True):
            pass
        self.bg_off()
        self.stamp("A3")
        def shadow():
            e.S("s_mul_i32", sB, sCG, 160)
            e.V("v_lshl_add_u32", TMP[2], vG, 4, sB)
            e.V("v_lshl_add_u32", TMP[3], vG, 3, sB)
            e.bload(ACC[40:44], TMP[2], SB2, 0, 0, cls=(800, 20, 0))
            e.bload(ACC[44:48], TMP[2], SB2, 0, 64, cls=(800, 20, 0))
            e.bload(ACC[48:50], TMP[3], SB2, 0, 128, cls=(800, 20, 0))
            if p == 0:
                self.unpack(RES, RES[10:20])
        self.handoff(4 * p + 2, ops, shadow, [(vAx[0], sOo, OB[p], 0), (vAx[1], sOo, OB[p], 0), (vOh, sOoh, OB[p], 0), (vOh, sOoh, OB[p] + 20 * KB, 0)])

    def phase64(self, p, kind):
        e = self.e
        opt = self.opt
        nks = 10 if kind == "O" else 27
        name = "A4" if kind == "O" else "B2"
        acc = lambda T, u: ACC[(u * 5 + T) * 4:(u * 5 + T) * 4 + 4]
        if kind == "O":
            al = self.ALoad(self, vAo, (sXr, OB[p]), nks)
        else:
            al = self.ALoad(self, vAh, (sHr, HB[p]), nks)
        al.upto(opt.get("adist", 4) - 1)
        xf = lambda ks, u: a(((ks % 20) * 2 + u) * 4, 4)
        if kind == "C":
            e.ds_read(TMP[2], vRF)
        i0 = self.seqstart[(name, p)]
        fb = 5 * nks - 3
        sst, sad = self.scratch(20, self.seq[i0 + fb][0])
        self.hold = sst
        stop = i0 + 5 * nks

        def mf(t, W, u):
            ks, T = divmod(t, 5)
            u = 1 - u
            c0 = RES[4 * T:4 * T + 4] if (kind == "O" and u == 0) else 0
            e.mfma(acc(T, u), W, xf(ks, u), acc(T, u) if ks else c0)

        def addr_gen():
            e.V("v_add_u32", TMP[0], sad, vXch); yield
            e.S("s_xor_b32", sA, sWave, 1); yield
            e.S("s_mul_i32", sA, sA, 5120); yield
            e.S("s_add_u32", sA, sA, sad); yield
            e.V("v_add_u32", TMP[1], sA, vL16); yield
            if kind == "C":
                e.V("v_mul_f32", TMP[2], TMP[2], TMP[2]); yield
            if not last:
                e.S("s_add_u32", sA, sOx, XB[xv]); yield
                e.S("s_add_u32", sB, sOxh, XB[xv]); yield
                e.S("s_add_u32", sD, sOst, STB[xv]); yield
        last = kind == "C" and p == 1
        xv = 2 * p + (1 if kind == "O" else 2)
        tg = None if last else (0, self.touch_gen([(vXs, sOx, XB[xv], 0), (vXs, sOx, XB[xv], 1024), (vXh, sOxh, XB[xv], 0), (vStW, sOst, STB[xv], 0)]))
        fl = [self.delay(20, addr_gen())]
        self.run_pass(5 * nks, mf, 5, xf, fl, late=tg, force_bar=fb, chunk=(opt.get("chunkO", 12) if kind == "O" else opt.get("chunkC", 12)), stop_reads=stop, aload=al,
                      mix=opt.get("mixO", 0) if kind == "O" else 0, tail=900 + self.opt.get("slack", 2400))
        self.stamp(name)
        self.bg_on(900 + self.opt.get("slack", 2400))
        assert sst + 20 <= self.freed
        for T in range(5):
            e.ds_write(TMP[0], acc(T, 1), T * KB)
        e.wait_all_lg()
        e.barrier()
        PT = TMP[4:24]
        for T in range(5):
            e.ds_read(PT[4 * T:4 * T + 4], TMP[1], T * KB)
        own = ACC[0:20]
        for h in range(10):
            x = own[2 * h:2 * h + 2]
            e.V("v_pk_add_f32", x, x, PT[2 * h:2 * h + 2])
            if kind == "C":
                e.V("v_pk_fma_f32", x, x, TMP[2:4], RES[2 * h:2 * h + 2], mods="op_sel_hi:[1,0,1]")
        PK = TMP[24:34]
        for a_ in range(2):
            for j in range(4):
                e.V("v_cvt_pk_bf16_f32", PK[4 * a_ + j], own[8 * a_ + j], own[8 * a_ + 4 + j])
        for h in range(2):
            e.V("v_cvt_pk_bf16_f32", PK[8 + h], own[16 + 2 * h], own[16 + 2 * h + 1])
        self.bg_off()
        if last:
            om = self.opt.get("outmod", "")
            e.bstore(PK[0:4], vOut, OUT, 0, 0, om)
            e.bstore(PK[4:8], vOut, OUT, 0, 64, om)
            e.bstore(PK[8:10], vOut4, OUT, 0, 128, om)
            self.stamp("end")
            return
        xv = 2 * p + (1 if kind == "O" else 2)
        ops = []
        ops += self.gstore([(PK[0:4], vXs, sA, 0), (PK[4:8], vXs, sA, 1024), (PK[8:10], vXh, sB, 0)], xv == 1)
        sm, sq, t0 = TMP[36], TMP[37], TMP[38]
        e.V("v_mov_b32", sm, 0)
        e.V("v_mov_b32", sq, 0)
        for j in range(10):
            e.V("v_dot2c_f32_bf16", sm, PK[j], vOne)
            e.V("v_dot2c_f32_bf16", sq, PK[j], PK[j])
        e.V("v_permlane32_swap_b32", sm, sq)
        e.V("v_add_f32", sm, sm, sq)
        e.V("v_mov_b32", t0, sm)
        e.V("v_permlane16_swap_b32", sm, t0)
        e.V("v_add_f32", sm, sm, t0)
        ops += self.gstore([(sm, vStW, sD, 0)], xv == 1)
        self.stamp(name + "epi")

        def shadow():
            self.unpack(RES, PK)
            if kind == "O":
                self.unpack(ACC[20:40], ACC[40:50])
                for h in range(10):
                    x = RES[2 * h:2 * h + 2]
                    e.V("v_pk_add_f32", x, x, ACC[20 + 2 * h:22 + 2 * h])
        self.handoff(4 * p + (3 if kind == "O" else 5), ops, shadow,
                     [(vStW, sOst, STB[xv], 0), (vXs, sOx, XB[xv], 0), (vXs, sOx, XB[xv], 1024), (vXh, sOxh, XB[xv], 0)])

    def phaseB1(self, p):
        e = self.e
        opt = self.opt
        xv = 2 * p + 1
        acc = lambda T, u: ACC[(T * 2 + u) * 4:(T * 2 + u) * 4 + 4]
        xf = lambda ks, u: a((ks * 2 + u) * 4, 4) if ks < 20 else XE[u]
        al = self.ALoad(self, vAx, (sXr, XB[xv]), 20)
        al.upto(opt.get("adist", 4) - 1)
        self.stats_loads(xv)
        stop = self.seqstart[("B2", p)]
        g0 = self.seq[stop][0] // 8 + RB // 8
        self.stage_plan = list(range(g0, g0 + (opt.get("nstage", 0) if p else 0)))

        def mf(t, W, u):
            ks, T = divmod(t, B1N)
            e.mfma(acc(T, u), W, xf(ks, u), acc(T, u) if ks else 0)
        tl = [(vHs, sOh, HB[p] + u * 54 * KB, a_ * KB) for a_ in range(3) for u in range(2)] + [(vHh, sOhh, HB[p] + u * 54 * KB, 0) for u in range(2)]
        sg = self.delay(opt.get("stdelay", 24), self.stats_gen(False))
        flb = [sg]
        if p == 0 and opt.get("keepb", 4):
            gb = self.capture_gen(self.segs[2][1] // 8 + opt.get("keepb0", 8), opt.get("keepb", 4), 12)
            next(gb)
            flb.append(gb)
        self.run_pass(21 * B1N, mf, B1N, xf, flb, late=(0, self.touch_gen(tl, p == 0)), stop_reads=stop, aload=al, must=sg, mix=opt.get("mixB", 0), tail=700 * (7 - B1N) + 300 + self.opt.get("slack", 2400))
        self.stamp("B1a")
        ops = []

        def epi(pairs, single):
            n = 0
            for u in range(2):
                sb = sD if u == 0 else sE
                e.S("s_add_u32", sb, sOh, HB[p] + u * 54 * KB); yield
                for a_ in pairs:
                    o = TMP[16 + 4 * (n % 4):20 + 4 * (n % 4)]
                    n += 1
                    for j in range(4):
                        x, y = acc(2 * a_, u)[j], acc(2 * a_ + 1, u)[j]
                        e.V("v_mul_f32_e64", x, x, f"|{x}|"); yield
                        e.V("v_mul_f32_e64", y, y, f"|{y}|"); yield
                        e.V("v_cvt_pk_bf16_f32", o[j], x, y); yield
                        e.V("v_pk_max_i16", o[j], o[j], 0); yield
                    ops.extend(self.gstore([(o, vHs, sb, a_ * KB)], p == 0 or opt.get("hsafe", 1) == 1 or (opt.get("hsafe", 1) == 2 and not single))); yield
            if single:
                for u in range(2):
                    o = TMP[32 + 2 * u:34 + 2 * u]
                    for j in range(4):
                        x = acc(6, u)[j]
                        e.V("v_mul_f32_e64", x, x, f"|{x}|"); yield
                    for h in range(2):
                        e.V("v_cvt_pk_bf16_f32", o[h], acc(6, u)[2 * h], acc(6, u)[2 * h + 1]); yield
                        e.V("v_pk_max_i16", o[h], o[h], 0); yield
                e.S("s_add_u32", sA, sOhh, HB[p])
                e.S("s_add_u32", sB, sOhh, HB[p] + 54 * KB)
                ops.extend(self.gstore([(TMP[32:34], vHh, sA, 0), (TMP[34:36], vHh, sB, 0)], p == 0 or opt.get("hsafe", 1) == 1))
                yield

        def mf2(t, W, u):
            ks, T = divmod(t, 7 - B1N)
            e.mfma(acc(B1N + T, u), W, xf(ks, u), acc(B1N + T, u) if ks else 0)
        self.run_pass(21 * (7 - B1N), mf2, 7 - B1N, xf, [epi(list(range(B1N // 2)), False)], stop_reads=stop, force_bar=21 * (7 - B1N) - 2, over=opt.get("b1over", 0), chunk=opt.get("chunkB", 24), tail=300 + self.opt.get("slack", 2400))
        self.stamp("B1b")
        for _ in epi(list(range(B1N // 2, 3)), True):
            pass
        self.stamp("B1epi")
        self.handoff(4 * p + 4, ops, None, tl)

    def gen(self):
        e = self.e
        e.reset_state()
        self.cInvD = s(63)
        self.dmaf = self.dma_filler()
        self.prologue()
        if self.opt.get("stamps"):
            e.memtime(sTm, True)
            e.V("v_writelane_b32", v(53), sTm[0], 62)
        self.startup()
        stop = self.opt.get("stop", 99)
        n = 0
        for p in range(2):
            for f in (lambda: self.phaseA(p), lambda: self.phase64(p, "O"), lambda: self.phaseB1(p), lambda: self.phase64(p, "C")):
                if n < stop:
                    f()
                n += 1
        if self.opt.get("stamps"):
            e.wait_all_vm()
            e.memtime(sTm, True)
            e.V("v_writelane_b32", v(53), sTm[0], 63)
            e.S("s_lshl_b32", sA, s(2), 2)
            e.S("s_add_u32", sA, sA, sWave)
            e.S("s_lshl_b32", sA, sA, 8)
            e.S("s_add_u32", sA, sA, STAMP)
            e.V("v_lshlrev_b32", TMP[1], 2, vLane)
            e.bstore(v(53), TMP[1], WS, sA)
        if self.opt.get("dbgst") is not None:
            skip = e.newlabel("nodbg")
            e.S("s_lshl_b32", sA, s(2), 2)
            e.S("s_add_u32", sA, sA, sWave)
            e.S("s_cmp_lg_u32", sA, 4 * self.opt.get("dbgwg", 77))
            e.branch("s_cbranch_scc1", skip)
            e.sload(s(84, 2), s(0, 2), 72)
            e.V("v_readlane_b32", sB, v(53), 0)
            e.V("v_subrev_u32", TMP[0], sB, v(53))
            e.V("v_subrev_u32", TMP[1], self.opt["dbgst"], vLane)
            e.V("v_cmp_gt_u32", VCC, 64 - self.opt["dbgst"], TMP[1])
            e.V("v_lshlrev_b32", TMP[1], 2, TMP[1])
            e.wait_all_lg()
            e.S("s_and_saveexec_b64", s(86, 2), VCC)
            e.misc(f"global_store_dword {TMP[1]}, {TMP[0]}, s[84:85]")
            e.S("s_mov_b64", EXEC, -1)
            e.label(skip)
        if self.opt.get("spin"):
            e.wait_all_vm()
            e.V("v_readfirstlane_b32", s(86), v(53))
            e.label("spin_loop")
            e.misc("s_memrealtime s[88:89]")
            e.misc("s_waitcnt lgkmcnt(0)")
            e.misc("s_sub_u32 s88, s88, s86")
            e.misc(f"s_cmp_lt_u32 s88, {self.opt['spin']}")
            e.misc("s_cbranch_scc1 spin_loop")
        e.S("s_add_u32", sA, s(2), sWave)
        e.S("s_cmp_lg_u32", sA, 0)
        e.branch("s_cbranch_scc1", "main_end")
        e.S("s_add_u32", sA, sBase, 16)
        e.V("v_mov_b32", TMP[0], sA)
        e.V("v_mov_b32", TMP[1], EPOCH)
        e.S("s_mov_b64", EXEC, 1)
        e.bstore(TMP[0], TMP[1], WS, 0, 0, "sc1")
        e.label("main_end")
        e.misc("s_endpgm")
```

```python
from asmgen import *
from layout import *
from gen_prep import mk_srd, allreduce_g
import math

BIG = 0x40000000
LOG2E = 1.4426950408889634
LN2 = 0.6931471805599453

IMG = 0
ZT = 6144
RST = 6400
DUMMY = 6912
RING = 8192
RB = 152
LDS_BYTES = RING + RB * KB
FI = 8

WS, OUT, XIN, SB2 = s(8, 4), s(12, 4), s(16, 4), s(20, 4)
sWave, sR, sC, sCG, sRH, sKH, sW2048 = [s(24 + i) for i in range(7)]
sSeg = {"A": s(31), "O": s(32), "B": s(33), "C": s(34)}
sXr, sHr, sSTr, sFRL, sFRG, sFC = [s(35 + i) for i in range(6)]
sA, sB, sD, sE, sDm, sLd = [s(41 + i) for i in range(6)]
sMaskV = s(48, 2)
sCnt = s(50)
sTT = s(51)
sTm = s(52, 2)
sOx, sOxh, sOst, sOo, sOoh, sOh, sOhh, sKv = [s(54 + i) for i in range(8)]
sLocal, sX1 = s(47), s(62)
sStg = s(3)
sSel = [s(84), s(85)]
sOdd = s(86, 2)
vT16L = v(37)
vStg = v(55)
sNan = s(90, 2)
sBase = s(92)
sOk = s(94, 2)
SR1, SR2 = s(84, 4), s(96, 4)
PP = s(64, 16)
pOut, pWs = s(80, 2), s(82, 2)
vDum = v(49)

vLane, vN, vG, vL16 = v(1), v(2), v(3), v(4)
vW = [v(5), v(6), v(7)]
vK = [v(8), v(9), v(10)]
vDma = v(11)
vAx = [v(12), v(13)]
vAo = [v(14), v(15)]
vAh = [v(16), v(17)]
vSt, vStW, vKvSrc, vKvDst, vT16, vZ01, vZ2, vRT, vRW, vRF, vOut, vOut4, vOne = [v(18 + i) for i in range(13)]
vOh, vXs, vXh, vHs, vHh, vFl, vPollR, vPollC, vXch = [v(31 + i) for i in range(9)]
XE = [v(40, 4), v(44, 4)]
vC2 = v(48, 2)
vC2b = v(50, 2)
vLn2 = v(52, 2)
vEps = v(54, 2)
RT = v(56, 8)
ACC = v(64, 64)
FIFO = v(128, 4 * FI)
RES = v(160, 20)
B2F = v(180, 20)
TMP = v(200, 56)


def keepreg(k, h):
    if k < 12:
        return a(160 + 8 * k + 4 * h, 4)
    t = 2 * (k - 12) + h
    return B2F[4 * t:4 * t + 4] if t < 5 else TMP[40 + 4 * (t - 5):44 + 4 * (t - 5)]


class Main:
    def __init__(self, e, opt):
        self.e = e
        self.opt = opt
        self.kname = opt["kname"]
        self.nstamp = 0
        self.segs = []
        pos = 0
        for p in range(2):
            for k, n in (("A", NA), ("O", NO), ("B", NB), ("C", NC)):
                self.segs.append((k, pos, n))
                pos += n
        self.total = pos
        self.ngroups = pos // 8
        self.issued = 0
        self.dmaop = {}
        self.freed = 0
        self.hold = None
        self.visible = 0
        self.seq = []
        self.seqstart = {}
        for p in range(2):
            b = self.segs[4 * p + 0][1]
            self.seqstart[("A1", p)] = len(self.seq)
            self.seq += [(b + i, "W") for i in range(105)]
            self.seqstart[("A2", p)] = len(self.seq)
            self.seq += [(b + 105 + i, "W") for i in range(63)]
            b = self.segs[4 * p + 1][1]
            self.seqstart[("A4", p)] = len(self.seq)
            self.seq += [(b + 2 * i, "K") for i in range(50)]
            b = self.segs[4 * p + 2][1]
            self.seqstart[("B1a", p)] = len(self.seq)
            self.seq += [(b + i, "W") for i in range(21 * B1N)]
            self.seqstart[("B1b", p)] = len(self.seq)
            self.seq += [(b + 21 * B1N + i, "W") for i in range(147 - 21 * B1N)]
            b = self.segs[4 * p + 3][1]
            self.seqstart[("B2", p)] = len(self.seq)
            self.seq += [(b + 2 * i, "K") for i in range(135)]
        self.rd = 0
        self.cons = 0
        self.lastbar = 0
        self.gate = NA // 8
        self.stage_plan = []
        self.staged = {}
        self.stage_mid = None
        self.cap_hold = 1 << 20
        self.deferred = []
        self.spares = []
        self.last_scratch = (0, 0)
        self.restg = None
        self.capg = None
        self.own_end_phase = 0
        self.cap_ops = []
        self.cap_next = 1 << 20
        self.warn = []
        self.model = []
        self.own_end = 0
        self.deadline = lambda: 1 << 30

    def stamp(self, name):
        self.model.append((name, self.e.T))
        if self.opt.get("spinat") in (name, f"{name}#{sum(1 for n_, _ in self.model if n_ == name)}") and not getattr(self, "_sp", 0):
            self._sp = 1
            self.e.wait_all_lg()
            self.e.memtime(sTm, True)
            self.e.V("v_mov_b32", v(53), sTm[0])
        if not self.opt.get("stamps"):
            return
        e = self.e
        e.wait_all_lg()
        e.memtime(sTm)
        e.V("v_writelane_b32", v(53), sTm[0], self.nstamp)
        self.opt.setdefault("stampnames", []).append(name)
        self.nstamp += 1
        assert self.nstamp <= 62

    def endpos(self, i):
        p, k = self.seq[i]
        return p + (2 if k == "K" else 1)

    def ldsaddr(self, pos):
        return RING + (pos % RB) * KB

    def can_issue(self):
        if self.issued >= min(self.ngroups, self.gate):
            return False
        lim = self.freed if self.hold is None else min(self.freed, self.hold)
        lim = min(lim, self.cap_hold)
        return 8 * (self.issued + 1) <= lim + RB

    def dma_group(self):
        e = self.e
        g = self.issued
        self.issued += 1
        pos = 8 * g
        if g in self.stage_plan:
            self.stage_plan = []
        if g in self.staged and self.opt.get("defer", 1) and 8 * g >= self.own_end_phase:
            self.deferred.append(g)
            self.dmaop[g] = None
            yield
            return
        if g in self.staged:
            self.finish_stage()
            k = self.staged[g]
            ad = self.ldsaddr(pos)
            e.V("v_add_u32", vStg, ad, vDma)
            yield
            e.ds_write(vStg, keepreg(k, 0), 0)
            yield
            self.dmaop[g] = e.ds_write(vStg, keepreg(k, 1), 1024)
            yield
            return
        for k, b, n in self.segs:
            if b <= pos < b + n:
                break
        e.S("s_add_u32", M0, sW2048, self.ldsaddr(pos))
        yield
        e.S("s_add_u32", sDm, sSeg[k], (pos - b) * KB)
        yield
        md = "nt" if k in self.opt.get("ntseg", "") else ""
        nvalid = min(8, {"A": 168, "O": 100, "B": 147, "C": 270}[k] - (pos - b)) if self.opt.get("skippad", 1) else 8
        for j in range(2):
            nw = (nvalid - j + 1) // 2
            if nw < 4:
                skip = e.newlabel("nopad")
                e.S("s_cmp_ge_u32", sWave, nw)
                e.branch("s_cbranch_scc1", skip)
                e.cond_begin()
            op = e.dma(vDma, WS, sDm, 1024 * j, md, cls=self.dcls(k))
            if nw < 4:
                e.cond_end()
                e.label(skip)
            if j:
                self.dmaop[g] = op
            yield

    def capture_gen(self, first, n, k0=0):
        e = self.e
        self.cap_hold = self.cap_next = 8 * first
        g1 = self.segs[4][1] // 8
        for k in range(k0, k0 + n):
            g = first + k - k0
            while self.visible < 8 * (g + 1):
                yield "idle"
            e.V("v_add_u32", vStg, self.ldsaddr(8 * g), vDma); yield
            e.ds_read(keepreg(k, 0), vStg, 0); yield
            self.cap_ops.append(e.ds_read(keepreg(k, 1), vStg, 1024))
            self.staged[g1 + g] = k
            self.cap_next = 8 * (g + 1) if k < k0 + n - 1 else 1 << 20
            yield

    def stage_group(self):
        e = self.e
        g = self.stage_plan.pop(0)
        k = len(self.staged) % 12
        self.staged[g] = k
        for sk, b, n in self.segs:
            if b <= 8 * g < b + n:
                break
        e.S("s_add_u32", sStg, sSeg[sk], (8 * g - b) * KB)
        yield
        e.bload(keepreg(k, 0), vDma, WS, sStg, 0, cls=self.dcls(sk))
        yield
        e.bload(keepreg(k, 1), vDma, WS, sStg, 1024, cls=self.dcls(sk))
        self.stage_mid = None
        yield

    def restore_gen(self, n):
        e = self.e
        while n > 0 and self.deferred:
            n -= 1
            g = self.deferred[0]
            k = self.staged[g]
            e.V("v_add_u32", vStg, self.ldsaddr(8 * g), vDma); yield
            old = 8 * g - RB
            clean = old + 8 <= self.last_scratch[0] or old >= self.last_scratch[1]
            if self.spares and self.opt.get("swap", 1) and clean and self.segof(8 * g) == "A":
                sp = self.spares.pop(0)
                e.ds_read(keepreg(sp, 0), vStg, 0); yield
                e.ds_read(keepreg(sp, 1), vStg, 1024); yield
                g2 = g - RB // 8 + self.segs[4][1] // 8
                assert self.segof(8 * g2) == "C"
                self.staged[g2] = sp
            e.ds_write(vStg, keepreg(k, 0), 0); yield
            self.dmaop[g] = e.ds_write(vStg, keepreg(k, 1), 1024)
            self.spares.append(k)
            self.deferred.pop(0)
            yield

    def restore(self, n):
        for _ in self.restore_gen(n):
            pass

    def finish_stage(self):
        while self.stage_mid:
            next(self.stage_mid)

    def stage_step(self):
        e = self.e
        if e.outstanding() >= self.opt.get("qmax", 13):
            return False
        if not self.stage_mid:
            if not self.stage_plan or self.can_issue() or self.mid_group():
                return False
            c = self.dcls("C")
            if e.predict(c) + c[2] > self.deadline():
                return False
            self.stage_mid = self.stage_group()
        next(self.stage_mid)
        return True

    def dcls(self, k):
        return (750, 80, self.opt.get("svcAB", 150)) if k in "AB" else (750, self.opt.get("svcOC", 92), 75)

    def dma_ok(self):
        e = self.e
        if self.mid_group():
            g = self.issued - 1
        elif self.can_issue():
            g = self.issued
        else:
            return False
        if g in self.staged:
            return True
        if e.outstanding() >= self.opt.get("qmax", 13):
            return False
        if self.mid_group() or 8 * g < self.own_end:
            return True
        c = self.dcls(self.segof(8 * g))
        return e.predict(c) + c[2] <= self.deadline()

    def dma_filler(self):
        while True:
            if self.can_issue():
                for _ in self.dma_group():
                    yield True
            else:
                yield False

    def flush_dma_partial(self):
        while self.issued > 0 and (self.issued - 1) not in self.dmaop:
            next(self.dmaf)

    def dma_all(self):
        self.flush_dma_partial()
        while self.can_issue():
            for _ in self.dma_group():
                pass

    def ring_barrier(self, need_idx, extra_ops=(), free_all=False):
        e = self.e
        need_idx = min(need_idx, len(self.seq))
        upto = self.endpos(need_idx - 1) if need_idx > 0 else 0
        g = (upto + 7) // 8
        self.flush_dma_partial()
        while self.issued < g:
            assert self.can_issue(), ("ring deadlock", self.issued, g, self.freed, self.hold)
            self.warn.append(f"forced dma group {self.issued} at seq {self.rd}")
            for _ in self.dma_group():
                pass
        ops = list(extra_ops)
        while self.deferred and self.deferred[0] < g:
            self.warn.append(f"forced restore {self.deferred[0]}")
            next(self.restg)
        for gg in range(self.visible // 8, g):
            assert gg not in self.deferred, gg
            ops.append(self.dmaop[gg])
        e.wait_ops(ops + self.cap_ops)
        self.cap_ops = []
        e.barrier()
        self.cap_hold = self.cap_next
        self.visible = max(self.visible, 8 * g)
        self.freed = self.seq[self.cons][0] if self.cons < len(self.seq) else self.total
        self.lastbar = self.rd

    def issue_read(self):
        e = self.e
        i = self.rd
        if i >= len(self.seq):
            return
        pos, k = self.seq[i]
        assert self.endpos(i) <= self.visible, ("read of invisible block", i, pos, self.visible)
        ad = self.ldsaddr(pos)
        base = (vW if k == "W" else vK)[ad >> 16]
        slot = i % FI
        e.ds_read(FIFO[4 * slot:4 * slot + 4], base, ad & 0xffff)
        self.rd += 1

    def prime(self):
        while self.rd < self.cons + FI and self.rd < len(self.seq) and self.endpos(self.rd) <= self.visible:
            self.issue_read()

    def run_pass(self, n, mf, ntile, xf, fillers=(), chunk=24, stop_reads=None, hooks=None,
                 aload=None, vrate=0.5, amix=(1, 0), over=0, force_bar=None, late=None, see_all=False, tail=2000, mix=0, must=None):
        e = self.e
        fillers = list(fillers)
        lim = stop_reads if stop_reads is not None else len(self.seq)
        st = {"next": 0, "k": 0, "t": 0}
        self.own_end = self.own_end_phase = self.endpos(lim - 1)
        self.deadline = lambda: e.T + (n - st["t"]) * 33 + tail

        i_first = self.cons

        def dma_need():
            g = self.issued - 1 if self.mid_group() else self.issued
            for i in range(self.cons, lim):
                if self.endpos(i) > 8 * g:
                    return i - i_first - FI - chunk
            return 1 << 20

        def one_vmem():
            na, nd = amix
            n0 = len(e.vm)
            if st.get("late"):
                if e.T < st["next"]:
                    return False
                try:
                    next(st["late"])
                except StopIteration:
                    st["late"] = None
                    return False
            else:
                na_ = (aload.n // 2) * ntile if (aload is not None and not aload.done) else 1 << 21
                nd_ = dma_need() if (self.mid_group() or self.can_issue()) else 1 << 22
                run = self.opt.get("run", 0)
                if run and na_ < 1 << 21 and nd_ < 1 << 20:
                    if st.get("cur") == "a" and na_ - run <= nd_:
                        nd_ = max(nd_, na_)
                    elif st.get("cur") == "d" and nd_ - run < na_:
                        na_ = max(na_, nd_ + 1)
                    st["cur"] = "a" if na_ <= nd_ else "d"
                urgent = min(na_, nd_) - st["t"] <= self.opt.get("horizon", 30) + run
                if e.T < st["next"] and not urgent:
                    return False
                if mix and na_ < 1 << 21 and st["k"] % mix == mix - 1 and na_ - st["t"] > self.opt.get("mixh", 10) and self.dma_ok():
                    next(self.dmaf)
                elif na_ <= nd_ and na_ < 1 << 21:
                    if e.outstanding() >= self.opt.get("qmax", 13) and not urgent:
                        return False
                    if aload.n // 2 >= st["t"] // ntile + aload.win - 1:
                        return False
                    aload.step()
                elif nd_ < 1 << 22 and (urgent or self.dma_ok()):
                    next(self.dmaf)
                elif not self.stage_step():
                    return False
            if len(e.vm) > n0:
                st["k"] += 1
                st["next"] = e.T + self.opt.get("vgap", 24)
            return True

        def fill(budget):
            while budget > 0:
                n0 = e.ninst
                did = one_vmem()
                if not did:
                    for f in list(fillers):
                        try:
                            if next(f) == "idle":
                                continue
                            did = True
                            break
                        except StopIteration:
                            fillers.remove(f)
                if not did:
                    return
                budget -= e.ninst - n0

        def waits_for(t):
            regs = []
            for tt in (t, t + 1):
                if tt < n:
                    ks = tt // ntile
                    if aload is not None:
                        aload.upto(ks)
                    idx = self.cons + (tt - t)
                    if idx < self.rd:
                        regs += FIFO[4 * (idx % FI):4 * (idx % FI) + 4].regs()
                    regs += xf(ks, 0).regs() + xf(ks, 1).regs()
            return e._pending(regs)

        e.wait_ops(waits_for(0))
        if aload is not None:
            self.stamp("1st")
            self.warn.append(f"fill {8 * self.issued - self.seq[self.cons][0]}")
        for t in range(n):
            if aload is not None and self.opt.get("midstamp") and t == n // 2:
                self.stamp("half")
            i = self.cons
            assert self.rd > i, ("fifo underrun", i)
            W = FIFO[4 * (i % FI):4 * (i % FI) + 4]
            st["t"] = t
            if must is not None and t == n - ntile - 2:
                for _ in must:
                    self.warn.append("must drained late")
            if t == int(n * self.opt.get("cfrac", 0.8)) and n > 30:
                fillers.insert(0, self.code_touch_gen())
            if hooks and hooks.get("add"):
                g_ = hooks["add"](t)
                if g_:
                    fillers.append(g_)
            ov = over if fillers else 0
            mf(t, W, 0)
            bar = self.rd < lim and (self.endpos(self.rd) > self.visible or self.rd - self.lastbar >= chunk)
            bar = bar or t == force_bar
            if late and t >= late[0] and not st.get("lateon") and (aload is None or aload.done) and 8 * self.issued >= min(self.own_end, self.endpos(min(i_first + n + FI, lim) - 1)) and not self.mid_group():
                st["late"] = late[1]
                st["lateon"] = True
                self.warn.append(f"late at {t}")
            if bar:
                ex, after = [], None
                if hooks and hooks.get("bar"):
                    ex, after = hooks["bar"](t)
                self.ring_barrier(lim if see_all else min(self.rd + chunk, lim), ex)
                if after:
                    after()
            else:
                fill(2 + ov)
            mf(t, W, 1)
            self.cons += 1
            used = 0
            if self.rd < lim:
                self.issue_read()
                used = 1
            pend = waits_for(t + 1) if (t % 2 == 1 and t + 1 < n) else []
            fill(2 + ov - used - (1 if pend else 0))
            if pend:
                e.wait_ops(waits_for(t + 1))
        if late and not st.get("lateon"):
            st["late"] = late[1]
        for f in fillers + ([st["late"]] if st.get("late") else []):
            if f is not self.capg:
                for _ in f:
                    pass

    def segof(self, pos):
        for k, b, n in self.segs:
            if b <= pos < b + n:
                return k
        return "O"

    def mid_group(self):
        return self.issued > 0 and (self.issued - 1) not in self.dmaop

    def dma_burst(self, maxgroups=99):
        e = self.e
        self.flush_dma_partial()
        gs = []
        while self.can_issue() and len(gs) < maxgroups:
            gs.append(self.issued)
            self.issued += 1
        for w in (1, 2, 3):
            mine = gs[w - 1::3]
            if not mine:
                continue
            skip = e.newlabel("noburst")
            e.S("s_cmp_lg_u32", sWave, w)
            e.branch("s_cbranch_scc1", skip)
            e.cond_begin()
            for g in mine:
                pos = 8 * g
                for k, b, n in self.segs:
                    if b <= pos < b + n:
                        break
                for h in range(2):
                    e.S("s_mov_b32", M0, self.ldsaddr(pos) + h * 4096)
                    e.S("s_add_u32", sDm, sSeg[k], (pos - b) * KB + h * 4096)
                    for q in range(4):
                        self.dmaop[g] = e.dma(vL16, WS, sDm, q * 1024)
            e.cond_end()
            e.label(skip)

    def prologue(self):
        e = self.e
        e.S("s_cmp_ge_u32", s(2), 256)
        e.branch("s_cbranch_scc1", "main_end")
        if self.opt.get("stamps"):
            e.V("v_mov_b32", v(53), 0)
        self.stamp("t0")
        if self.opt.get("spin") and not self.opt.get("spinat"):
            e.memtime(sTm, True)
            e.V("v_mov_b32", v(53), sTm[0])
        e.sload(PP, s(0, 2), 0)
        e.sload(pOut, s(0, 2), 64)
        e.sload(pWs, s(0, 2), 80)
        T0, T1, T2, T3 = TMP[48], TMP[49], TMP[50], TMP[51]
        e.S("s_getpc_b64", s(88, 2))
        e.label("main_pc")
        e.V("v_lshlrev_b32", T2, 5, v(0))
        e.S("s_sub_u32", s(88), s(88), "main_pc-" + self.kname)
        e.S("s_subb_u32", s(89), s(89), 0)
        e.misc(f"global_load_dword {vDum}, {T2}, s[88:89]")
        e._vm([], (2000, 30, 0))
        e.V("v_lshrrev_b32", T0, 6, v(0))
        e.V("v_and_b32", vLane, 63, v(0))
        e.V("v_readfirstlane_b32", sWave, T0)
        e.S("s_lshr_b32", sB, s(2), 3)
        e.S("s_mul_i32", sB, sB, 1792)
        e.S("s_add_u32", sB, sB, 8192)
        e.V("v_lshl_add_u32", T2, v(0), 3, sB)
        e.V("v_min_u32", T2, self.opt.get("code_bytes", 32768) - 4, T2)
        e.misc(f"global_load_dword {vDum}, {T2}, s[88:89]")
        e._vm([], (2000, 30, 0))
        e.V("v_lshlrev_b32", vL16, 4, vLane)
        e.V("v_and_b32", vN, 15, vLane)
        e.V("v_lshrrev_b32", vG, 4, vLane)
        self.vBig = TMP[52]
        e.V("v_mov_b32", self.vBig, BIG)
        e.S("s_and_b32", sA, s(2), 7)
        e.S("s_lshl_b32", sA, sA, 1)
        e.S("s_lshr_b32", sB, s(2), 7)
        e.S("s_add_u32", sR, sA, sB)
        e.S("s_bfe_u32", sC, s(2), (4 << 16) | 3)

    def gather(self, raw, srd, sstride, vaddr, srow, n=8):
        e = self.e
        e.S("s_mul_i32", sLd, srow, sstride)
        for i in range(n):
            e.bload(raw[i], vaddr, srd, sLd, 0, w="ushort", cls=(2500, 32, 0))
            if i < n - 1:
                e.S("s_add_u32", sLd, sLd, sstride)

    def pack(self, raw, n=4):
        for i in range(n):
            self.e.V("v_lshl_or_b32", raw[i], raw[2 * i + 1], 16, raw[2 * i])

    def colsum(self, regs, ex, vs, vt):
        e = self.e
        e.V("v_mov_b32", vs, 0)
        for r_ in regs:
            e.V("v_dot2c_f32_bf16", vs, r_, vOne)
        allreduce_g(e, vs, vt)
        e.V("v_sub_f32", vs, 0, vs)
        e.V("v_cvt_pk_bf16_f32", vt, vs, vs)
        e.V("v_lshlrev_b32", vt, 16, vt)
        e.V("v_sub_f32", vt, vs, vt)
        e.V("v_cvt_pk_bf16_f32", ex[0], vs, vt)
        e.V("v_and_b32", ex[1], "0xffff", ex[0])

    def startup(self):
        e = self.e
        vBig = self.vBig
        RAW1, EX = ACC[0:20], ACC[20:24]
        RAW2 = TMP[8:40]
        vCol, vReg, vLeft, vT0, vT1, vSum, vLd = [FIFO[i] for i in range(7)]
        vA0, vA1, vA2, vSt2, vBias = RES[8], RES[9], B2F[8], B2F[9], ACC[38]
        sT, sP = s(7), s(93)
        sStr = s(56)
        XJ = [RES[0:4], RES[4:8], B2F[0:4]]
        XD, XA, XB_ = B2F[4], ACC[32], ACC[33]
        XM = [s(90), s(91), s(94)]
        T0, T1, T2, T3 = TMP[48], TMP[49], TMP[50], TMP[51]
        e.V("v_lshrrev_b32", T1, 3, vLane)
        e.V("v_and_b32", T3, 7, vLane)
        e.V("v_mul_u32_u24", T0, 1280, T3)
        e.V("v_lshl_add_u32", XA, T1, 4, T0)
        e.V("v_lshrrev_b32", T2, 4, vLane)
        e.V("v_lshl_add_u32", XB_, T2, 7, XA)
        e.V("v_lshlrev_b32", XD, 8, T1)
        e.V("v_lshl_add_u32", XD, T3, 4, XD)
        e.S("s_lshl_b32", sE, sR, 4)
        e.S("s_add_u32", sE, sE, sC)
        e.S("s_mul_i32", sE, sE, 8 * 1280)
        e.S("s_mul_i32", sD, sWave, 3)
        mk_srd(e, XIN, PP[0:2], XSZ)
        for k in range(3):
            e.S("s_add_u32", XM[k], sD, k)
            e.S("s_cmp_ge_u32", XM[k], 8)
            e.S("s_cselect_b64", VCC, -1, 0)
            e.S("s_cselect_b32", sA, 40, 10)
            e.S("s_cselect_b32", sB, 8 - 8 * 40, 0)
            e.V("v_cndmask_b32", T0 if k != 1 else T1, XA, XB_, VCC)
            e.S("s_mul_i32", sA, sA, XM[k])
            e.S("s_add_u32", sA, sA, sB)
            e.S("s_lshl_b32", sA, sA, 4)
            e.S("s_add_u32", sA, sA, sE)
            e.S("s_cmp_ge_u32", XM[k], 10)
            e.S("s_cselect_b32", sA, BIG, sA)
            e.S("s_cselect_b32", XM[k], BIG // 2048, XM[k])
            e.bload(XJ[k], T0 if k != 1 else T1, XIN, sA, 0, cls=(2000, 100, 0))
        self.stamp("issx")
        e.S("s_lshr_b32", sP, sR, 1)
        e.S("s_and_b32", sT, sR, 1)
        e.S("s_lshl_b32", sT, sT, 2)
        e.S("s_add_u32", sT, sT, sWave)
        e.S("s_mov_b32", s(4), (656 << 20) | (660 << 10) | 640)
        e.S("s_mov_b32", s(5), 0)
        e.S("s_mul_i32", sA, sT, 10)
        e.S("s_lshr_b32", sA, s(4), sA)
        e.S("s_and_b32", sA, sA, 1023)
        for t, val in ((3, 1280), (4, 1300), (5, 0), (6, 1), (7, 32)):
            e.S("s_cmp_eq_u32", sT, t)
            e.S("s_cselect_b32", sA, val, sA)
        e.S("s_mul_i32", sB, sC, 40)
        e.S("s_add_u32", sA, sA, sB)
        e.V("v_add_u32", vCol, sA, vN)
        e.V("v_add_u32", vT0, vCol, vN)
        e.S("s_sub_u32", sB, sT, 5)
        e.S("s_cmp_lt_u32", sB, 2)
        e.S("s_cselect_b64", VCC, -1, 0)
        e.V("v_cndmask_b32", vCol, vCol, vT0, VCC)
        e.V("v_lshrrev_b32", vT0, 3, vN)
        e.V("v_mul_u32_u24", vT0, 632 - 32, vT0)
        e.V("v_lshrrev_b32", vT1, 2, vN)
        e.V("v_lshl_add_u32", vT0, vT1, 4, vT0)
        e.V("v_add3_u32", vT0, vT0, vN, sA)
        e.S("s_cmp_eq_u32", sT, 2)
        e.S("s_cselect_b64", VCC, -1, 0)
        e.V("v_cndmask_b32", vCol, vCol, vT0, VCC)
        e.V("v_lshlrev_b32", vCol, 1, vCol)
        e.S("s_cmp_eq_u32", sT, 7)
        e.S("s_cselect_b32", sB, 8, 16)
        e.V("v_cmp_le_u32", VCC, sB, vN)
        e.S("s_mov_b32", sStr, 3840)
        e.V("v_cndmask_b32", vCol, vCol, vBig, VCC)
        e.S("s_mov_b32", sD, 8 * 3840)
        e.V("v_mad_u32_u24", vReg, vG, sD, vCol)
        e.V("v_and_b32", vT0, 1, vG)
        e.V("v_lshrrev_b32", vT1, 1, vG)
        e.V("v_lshl_add_u32", vLd, vT0, 1, vT1)
        e.S("s_mov_b32", sD, 4 * 3840)
        e.V("v_mad_u32_u24", vLeft, vLd, sD, vCol)
        mk_srd(e, SR1, PP[2:4], D * 3 * D * 2)
        e.S("s_mul_i32", sB, sP, 80)
        self.gather(RAW1[0:8], SR1, sStr, vReg, sB)
        e.S("s_add_u32", sA, sB, 32)
        self.gather(RAW1[8:16], SR1, sStr, vReg, sA)
        e.S("s_add_u32", sA, sB, 64)
        self.gather(RAW1[16:20], SR1, sStr, vLeft, sA, 4)
        self.stamp("iss1")
        def r2touch():
            e.S("s_lshl_b32", sA, s(2), 2)
            e.S("s_add_u32", sA, sA, sWave)
            e.V("v_min_u32", T0, 17, vLane)
            e.V("v_lshlrev_b32", T0, 7, T0)
            e.S("s_mul_i32", sB, sA, 2160)
            mk_srd(e, SR2, PP[8:10], F * D * 2)
            e.touch(vDum, T0, SR2, sB, 0, cls=(2000, 30, 0))
            mk_srd(e, SR2, PP[12:14], F * D * 2)
            e.touch(vDum, T0, SR2, sB, 0, cls=(2000, 30, 0))
            e.V("v_min_u32", T0, 7 * 128, T0)
            mk_srd(e, SR2, PP[4:6], D * D * 2)
            e.S("s_mul_i32", sB, sA, 800)
            e.touch(vDum, T0, SR2, sB, 0, cls=(2000, 30, 0))
        if self.opt.get("r2touch", 3) == 1:
            r2touch()
        if self.opt.get("wsoff"):
            e.S("s_add_u32", pWs[0], pWs[0], self.opt["wsoff"] << 20)
            e.S("s_addc_u32", pWs[1], pWs[1], 0)
        mk_srd(e, WS, pWs, WS_USED)
        e.sload(sBase, pWs, EPOCH)
        e.S("s_mov_b32", sA, "0x3f803f80")
        e.V("v_mov_b32", vOne, sA)
        e.S("s_and_b32", sCG, sC, 7)
        e.S("s_lshr_b32", sRH, sC, 3)
        if self.opt.get("r2touch", 0) == 3:
            r2touch()
        mk_srd(e, SB2, PP[14:16], D * 2)
        if not self.opt.get("l2first", 1):
            self.prologue2()
            self.stamp("pro2")
        sU, sP, sStr, sJ = s(88), s(89), s(100), s(101)
        rows = [s(3 + i) for i in range(4)]
        D2 = [s(64), s(65), s(66), s(67)]
        sDB, sDX = s(70), s(71)
        vSel0, vSel1 = vA1, vA2
        mk_srd(e, SR1, PP[10:12], F * 2)
        e.S("s_lshl_b32", sJ, sRH, 4)
        e.S("s_add_u32", sJ, sJ, sR)
        if self.opt.get("bal", 1):
            e.S("s_cmp_eq_u32", sJ, 15)
            e.S("s_cselect_b32", sA, 39, 127)
            e.S("s_mul_i32", sJ, sJ, 3)
            e.S("s_add_u32", sJ, sJ, sWave)
            e.S("s_add_u32", sJ, sJ, 39)
            e.S("s_cmp_ge_u32", sJ, 97)
            e.S("s_cselect_b32", sB, 97, 0)
            e.S("s_sub_u32", sJ, sJ, sB)
            e.S("s_cmp_eq_u32", sWave, 0)
            e.S("s_cselect_b32", sJ, sA, sJ)
        else:
            e.S("s_lshl_b32", sJ, sJ, 2)
            e.S("s_add_u32", sJ, sJ, sWave)
        e.V("v_lshrrev_b32", vT0, 1, vG)
        e.V("v_and_b32", vT1, 1, vG)
        e.V("v_mov_b32", vSt2, vL16)
        e.S("s_mov_b32", sDX, BIG)
        lo, lc, lj = e.newlabel("job_wo"), e.newlabel("job_w2"), e.newlabel("job_go")

        def unit(sbase, nu, stride, ca, cb, nreg, dB):
            e.S("s_lshl_b32", sA, sU, 5)
            e.S("s_add_u32", sA, sA, sbase)
            e.S("s_lshl_b32", sA, sA, 1)
            e.S("s_mov_b32", sDB, dB)
            e.S("s_cmp_lt_u32", sU, nu)
            e.S("s_cselect_b64", VCC, -1, 0)
            e.S("s_cselect_b32", sDB, sDB, BIG)
            e.V("v_lshlrev_b32", vCol, 2, vN)
            e.V("v_and_b32", vReg, 14, vN)
            e.V("v_lshlrev_b32", vReg, 1, vReg)
            e.V("v_cndmask_b32", vCol, vReg, vCol, VCC)
            e.V("v_add_u32", vCol, sA, vCol)
            e.V("v_and_b32", vReg, 1, vN)
            e.V("v_cndmask_b32", vReg, vReg, 0, VCC)
            e.S("s_mov_b32", sA, "0x02020202")
            e.V("v_mul_lo_u32", vReg, vReg, sA)
            e.V("v_add_u32", vSel0, "0x05040100", vReg)
            e.S("s_mov_b32", sStr, stride)
            e.S("s_mov_b32", sD, 8 * stride)
            e.V("v_mul_u32_u24", vReg, sD, vG)
            e.S("s_mov_b32", sD, ca * stride)
            e.V("v_mul_u32_u24", vLeft, sD, vT0)
            e.S("s_mov_b32", sD, cb * stride)
            e.V("v_mad_u32_u24", vLeft, vT1, sD, vLeft)
            e.S("s_cmp_lt_u32", sP, nreg)
            e.S("s_cselect_b64", VCC, -1, 0)
            e.V("v_cndmask_b32", vA0, vLeft, vReg, VCC)

        def split_dests(half):
            for b in range(4):
                e.S("s_lshl_b32", sA, sP, 2)
                e.S("s_add_u32", sA, sA, b)
                e.S("s_mul_i32", sD, sA, 10)
                e.S("s_cmp_ge_u32", sA, half)
                e.S("s_cselect_b32", sB, 10 * half - 1, 0)
                e.S("s_sub_u32", sD, sD, sB)
                e.S("s_add_u32", sD, sD, sE)
                e.S("s_lshl_b32", D2[b], sD, 10)
                if half == 27 and b >= 2:
                    e.S("s_cmp_ge_u32", sA, 54)
                    e.S("s_cselect_b32", D2[b], BIG, D2[b])

        def div3(dq, dr, src):
            e.S("s_mul_i32", dq, src, 43691)
            e.S("s_lshr_b32", dq, dq, 17)
            e.S("s_mul_i32", sA, dq, 3)
            e.S("s_sub_u32", dr, src, sA)

        e.S("s_cmp_ge_u32", sJ, 55)
        e.branch("s_cbranch_scc1", lc)
        e.S("s_cmp_ge_u32", sJ, 40)
        e.branch("s_cbranch_scc1", lo)
        e.cond_begin()
        mk_srd(e, SR2, PP[8:10], D * F * 2)
        e.S("s_and_b32", sU, sJ, 3)
        e.S("s_lshr_b32", sP, sJ, 2)
        e.S("s_cmp_ge_u32", sP, 5)
        e.S("s_cselect_b32", sA, 5, 0)
        e.S("s_cselect_b32", sJ, 8, 0)
        e.S("s_sub_u32", sP, sP, sA)
        e.S("s_add_u32", sJ, sJ, sCG)
        e.S("s_mul_i32", sE, sJ, 112)
        e.S("s_max_u32", sB, sJ, 12)
        e.S("s_sub_u32", sB, sB, 12)
        e.S("s_lshl_b32", sB, sB, 4)
        e.S("s_sub_u32", sE, sE, sB)
        unit(sE, 3, 3456, 80, 8, 4, 1024)
        e.S("s_lshl_b32", sA, sU, 4)
        e.S("s_add_u32", sA, sA, sJ)
        e.S("s_cmp_ge_u32", sA, 3 * 16 + 12)
        e.S("s_cselect_b64", VCC, -1, 0)
        e.V("v_cndmask_b32", vCol, vCol, vBig, VCC)
        for b in range(4):
            e.S("s_mul_i32", sA, sP, 160)
            e.S("s_add_u32", sA, sA, 80 * (b >> 1) + 32 * (b & 1))
            e.S("s_cmp_eq_u32", sP, 4)
            e.S("s_cselect_b32", rows[b], 160 * b + 64, sA)
        e.S("s_cmp_lt_u32", sU, B1N // 2)
        e.S("s_cselect_b32", s(79), B1N, 7 - B1N)
        e.S("s_cselect_b32", sE, 0, 20 * B1N)
        e.S("s_lshl_b32", sA, sU, 1)
        e.S("s_add_u32", sE, sE, sA)
        e.S("s_mul_i32", sB, sJ, NB)
        e.S("s_add_u32", sE, sE, sB)
        e.S("s_add_u32", sE, sE, WB // KB)
        for b in range(4):
            e.S("s_lshl_b32", sA, sP, 2)
            e.S("s_add_u32", sA, sA, b)
            e.S("s_mul_i32", sA, sA, s(79))
            e.S("s_add_u32", sA, sA, sE)
            e.S("s_lshl_b32", D2[b], sA, 10)
        e.S("s_mul_i32", sD, s(79), 20)
        e.S("s_add_u32", sD, sD, sE)
        e.S("s_lshl_b32", sDX, sD, 10)
        e.branch("s_branch", lj)
        e.cond_end()
        e.label(lo)
        e.cond_begin()
        mk_srd(e, SR2, PP[4:6], D * D * 2)
        e.S("s_sub_u32", sJ, sJ, 40)
        div3(sP, sU, sJ)
        e.S("s_mul_i32", sE, sCG, 80)
        unit(sE, 2, 1280, 80, 40, 4, 2048)
        for b in range(4):
            e.S("s_mul_i32", sA, sP, 160)
            e.S("s_add_u32", sA, sA, 40 * b)
            e.S("s_cmp_eq_u32", sP, 4)
            e.S("s_cselect_b32", rows[b], 160 * b + 32, sA)
        e.S("s_mul_i32", sE, sCG, NO)
        e.S("s_add_u32", sE, sE, WO // KB)
        e.S("s_lshl_b32", sA, sU, 2)
        e.S("s_add_u32", sE, sE, sA)
        split_dests(10)
        e.branch("s_branch", lj)
        e.cond_end()
        e.label(lc)
        e.cond_begin()
        mk_srd(e, SR2, PP[12:14], F * D * 2)
        e.S("s_sub_u32", sJ, sJ, 55)
        div3(sP, sU, sJ)
        e.S("s_mul_i32", sE, sCG, 80)
        unit(sE, 2, 1280, 112, 8, 12, 2048)
        e.S("s_cmp_ge_u32", sP, 14)
        e.S("s_cselect_b64", VCC, -1, 0)
        e.V("v_cndmask_b32", vCol, vCol, vBig, VCC)
        e.V("v_cndmask_b32", vSt2, vSt2, vBig, VCC)
        e.S("s_min_u32", sP, sP, 13)
        for b in range(4):
            e.S("s_lshl_b32", sD, sP, 2)
            e.S("s_add_u32", sD, sD, b)
            e.S("s_mul_i32", sA, sD, 43691)
            e.S("s_lshr_b32", sA, sA, 17)
            e.S("s_lshl_b32", sA, sA, 4)
            e.S("s_min_u32", sA, sA, 192)
            e.S("s_lshl_b32", sB, sD, 5)
            e.S("s_add_u32", sA, sA, sB)
            e.S("s_mul_i32", sB, sD, 224)
            e.S("s_sub_u32", sB, sB, 224 * 48 - 96)
            e.S("s_cmp_ge_u32", sD, 48)
            e.S("s_cselect_b32", rows[b], sB, sA)
        e.S("s_mul_i32", sE, sCG, NC)
        e.S("s_add_u32", sE, sE, WC // KB)
        e.S("s_lshl_b32", sA, sU, 2)
        e.S("s_add_u32", sE, sE, sA)
        split_dests(27)
        e.cond_end()
        e.label(lj)
        e.V("v_add_u32", vA0, vA0, vCol)
        e.S("s_cmp_lt_u32", sP, 2)
        e.S("s_cselect_b64", VCC, -1, 0)
        e.V("v_cndmask_b32", vBias, vBig, vCol, VCC)
        e.V("v_mov_b32", vSel1, "0x07060302")
        e.V("v_add_u32", vT0, sP, vG)
        e.V("v_lshrrev_b32", vT1, 1, vT0)
        e.V("v_lshlrev_b32", vLd, 4, vN)
        e.V("v_lshl_add_u32", vLd, vT1, 8, vLd)
        e.V("v_and_b32", vT0, 1, vT0)
        e.V("v_lshl_add_u32", vLd, vT0, 3, vLd)
        e.S("s_cmp_eq_u32", sP, 4)
        e.S("s_cselect_b32", sA, 4, 1)
        e.V("v_cmp_gt_u32", VCC, sA, vG)
        e.V("v_cndmask_b32", vLd, vBig, vLd, VCC)
        e.S("s_lshl_b32", sA, sC, 4)
        e.S("s_add_u32", sA, sA, sR)
        e.S("s_mul_i32", sA, sA, KVSZ)
        e.S("s_mul_i32", sB, sWave, KVSZ // 4)
        e.S("s_add_u32", sA, sA, sB)
        e.S("s_add_u32", s(79), sA, KVB[1])
        self.stamp("dec2")
        def r2_loads():
            for b in range(4):
                e.S("s_mul_i32", sE, rows[b], sStr); yield
                for i in range(8):
                    e.bload(RAW2[8 * b + i], vA0, SR2, sE, 0, cls=(1500, 32, 0)); yield
                    if i < 7:
                        e.S("s_add_u32", sE, sE, sStr); yield
            e.bload(vBias, vBias, SR1, 0, 0, cls=(1500, 10, 0)); yield

        self.r2_loads = r2_loads()
        if self.opt.get("l2first", 1):
            for _ in self.r2_loads:
                pass
            self.stamp("iss2a")
            self.prologue2()
            self.stamp("pro2")
        sP2 = sP
        wT0, wT1, wLd, wSum = FIFO[8], FIFO[9], FIFO[10], FIFO[11]
        sT, sP = s(7), s(93)
        ops1 = []
        e.S("s_lshr_b32", sA, sC, 1)
        e.S("s_lshl_b32", sB, sR, 3)
        e.S("s_add_u32", sA, sA, sB)
        e.S("s_mul_i32", sA, sA, 20 * KB)
        e.S("s_and_b32", sB, sC, 1)
        e.S("s_lshl_b32", sB, sB, 7)
        e.S("s_add_u32", sA, sA, sB)
        e.S("s_add_u32", sA, sA, XB[0])
        for k in range(3):
            e.S("s_lshl_b32", sB, XM[k], 11)
            e.S("s_add_u32", sB, sB, sA)
            ops1.append(e.bstore(XJ[k], XD, WS, sB, 0, "sc1", cls=(1000, 70, 0)))
        xs = ACC[26:28]
        xz = ACC[24:26]
        MK = ACC[28:32]
        for r_ in (xs[0], xs[1], xz[0], xz[1]):
            e.V("v_mov_b32", r_, 0)
        for k in range(3):
            for i in range(4):
                e.V("v_dot2c_f32_bf16", xs[0], XJ[k][i], vOne)
                e.V("v_dot2c_f32_bf16", xs[1], XJ[k][i], XJ[k][i])
        for h in range(2):
            e.V("v_add_f32_dpp", xs[h], xs[h], xs[h], mods="row_ror:8 row_mask:0xf bank_mask:0xf")
            allreduce_g(e, xs[h], wT0)
        e.S("s_lshl_b32", sA, sR, 3)
        e.S("s_add_u32", sA, sA, sWave)
        e.S("s_lshl_b32", sA, sA, 10)
        e.S("s_lshl_b32", sB, sC, 6)
        e.S("s_add_u32", sA, sA, sB)
        e.S("s_add_u32", sA, sA, STB[0])
        e.S("s_add_u32", sB, sA, 4096)
        e.V("v_lshlrev_b32", wT0, 3, vLane)
        e.S("s_mov_b64", EXEC, "0xff")
        ops1.append(e.bstore(xs, wT0, WS, sA, 0, "sc1", cls=(1000, 20, 0)))
        ops1.append(e.bstore(xz, wT0, WS, sB, 0, "sc1", cls=(1000, 20, 0)))
        e.S("s_mov_b64", EXEC, -1)
        self.stamp("xst")
        e.S("s_cmp_lt_u32", sT, 5)
        e.S("s_cselect_b32", sE, 5, 3)
        e.S("s_cselect_b32", sA, 0, 100)
        e.S("s_add_u32", sA, sA, sT)
        e.S("s_mul_i32", sB, sC, NA)
        e.S("s_add_u32", sA, sA, sB)
        e.S("s_add_u32", sA, sA, WA // KB)
        e.S("s_lshl_b32", sA, sA, 10)
        e.S("s_lshl_b32", sE, sE, 10)
        e.S("s_mul_i32", sB, sP, sE)
        e.S("s_lshl_b32", sB, sB, 1)
        e.S("s_add_u32", sB, sB, sA)
        self.pack(RAW1[0:8])
        ops1.append(e.bstore(RAW1[0:4], vL16, WS, sB, 0, "sc1", cls=(1000, 70, 0)))
        e.S("s_add_u32", sB, sB, sE)
        self.pack(RAW1[8:16])
        ops1.append(e.bstore(RAW1[8:12], vL16, WS, sB, 0, "sc1", cls=(1000, 70, 0)))
        e.S("s_lshr_b32", sB, sP, 1)
        e.S("s_add_u32", sB, sB, 16)
        e.S("s_mul_i32", sB, sB, sE)
        e.S("s_add_u32", sB, sB, sA)
        e.S("s_and_b32", sD, sP, 1)
        e.S("s_lshl_b32", s(95), sD, 9)
        e.S("s_add_u32", sB, sB, s(95))
        e.V("v_lshlrev_b32", wT0, 8, vG)
        e.V("v_and_b32", wT0, 256, wT0)
        e.V("v_lshl_add_u32", wT0, vN, 4, wT0)
        e.V("v_lshrrev_b32", wT1, 1, vG)
        e.V("v_lshl_add_u32", wLd, wT1, 3, wT0)
        self.pack(RAW1[16:20], 2)
        ops1.append(e.bstore(RAW1[16:18], wLd, WS, sB, 0, "sc1", cls=(1000, 40, 0)))
        self.colsum([RAW1[i] for i in (0, 1, 2, 3, 8, 9, 10, 11, 16, 17)], EX, wSum, wT0)
        e.S("s_mul_i32", sB, sE, 20)
        e.S("s_add_u32", sB, sB, sA)
        e.S("s_lshr_b32", sA, sP, 1)
        e.S("s_lshl_b32", sA, sA, 8)
        e.S("s_add_u32", sB, sB, sA)
        e.S("s_lshl_b32", sD, sD, 3)
        e.S("s_add_u32", sB, sB, sD)
        e.S("s_mov_b64", EXEC, "0xffff")
        ops1.append(e.bstore(EX[0:2], vL16, WS, sB, 0, "sc1", cls=(1000, 20, 0)))
        e.S("s_mov_b64", EXEC, -1)
        self.stamp("r1")
        if self.opt.get("r2touch", 3) == 2:
            r2touch()
        for i in range(4):
            e.V("v_mov_b32", MK[i], -1)
        e.S("s_lshl_b32", sA, sC, 4)
        e.S("s_add_u32", sA, sA, sR)
        e.S("s_mul_i32", sA, sA, KVSZ)
        e.S("s_mul_i32", sB, sWave, KVSZ // 4)
        e.S("s_add_u32", sA, sA, sB)
        e.S("s_add_u32", sA, sA, KVB[0])
        e.S("s_mov_b64", EXEC, "0xfffffff")
        ops1.append(e.bstore(MK, vL16, WS, sA, 0, "sc1", cls=(1000, 40, 0)))
        e.S("s_mov_b64", EXEC, -1)
        sP = sP2
        self.ops2 = []

        vs, vt, MK = TMP[48], TMP[49], TMP[40:44]
        EV = ACC[40:56]

        def r2_pack():
            for b in range(4):
                raw = RAW2[8 * b:8 * b + 8]
                for i in range(4):
                    e.V("v_perm_b32", EV[4 * b + i], raw[2 * i + 1], raw[2 * i], vSel0)
                for i in range(4):
                    e.V("v_perm_b32", raw[i], raw[2 * i + 1], raw[2 * i], vSel1)
            for i in range(4):
                e.V("v_mov_b32", MK[i], -1)
            e.V("v_cmp_eq_u32", sNan, 0, vG)
            for h in range(2):
                ex = TMP[44 + 2 * h:46 + 2 * h]
                self.colsum([EV[i] for i in range(16)] if h == 0 else [RAW2[8 * b + i] for b in range(4) for i in range(4)], ex, vs, vt)
                e.V("v_perm_b32", vt, vBias, vBias, vSel0 if h == 0 else vSel1)
                e.V("v_and_b32", vt, "0xffff0000", vt)
                e.V("v_or_b32", ex[1], ex[1], vt)
                e.V("v_cndmask_b32", ex[0], 0, ex[0], sNan)
                e.V("v_cndmask_b32", ex[1], 0, ex[1], sNan)
            e.V("v_mov_b32", vSel0, vLd)
            yield

        def r2_stores():
            for b in range(4):
                self.ops2.append(e.bstore(EV[4 * b:4 * b + 4], vSt2, WS, D2[b], 0, self.opt.get("r2mod", "sc1"), cls=(1000, 70, 0)))
                e.S("s_add_u32", sA, D2[b], sDB)
                self.ops2.append(e.bstore(RAW2[8 * b:8 * b + 4], vSt2, WS, sA, 0, self.opt.get("r2mod", "sc1"), cls=(1000, 70, 0)))
            e.S("s_mov_b64", EXEC, "0xfffffff")
            self.ops2.append(e.bstore(MK, vL16, WS, s(79), 0, "sc1", cls=(1000, 40, 0)))
            e.S("s_mov_b64", EXEC, -1)
            for h in range(2):
                if h:
                    e.S("s_add_u32", sDX, sDX, sDB)
                self.ops2.append(e.bstore(TMP[44 + 2 * h:46 + 2 * h], vSel0, WS, sDX, 0, "sc1", cls=(1000, 20, 0)))
        self.r2_stores = r2_stores
        self.r2_pack = r2_pack()
        npre = self.opt.get("r2pre", 50)
        for _ in self.r2_loads:
            npre -= 1
            if npre <= 0:
                break
        if self.opt.get("l2first", 1):
            for _ in self.r2_pack:
                pass
        self.stamp("iss2")
        e.wait_ops(ops1)
        e.barrier()
        self.flag("both", 1, ACC[34], ACC[35])
        self.stamp("w1flag")
        for _ in self.r2_loads:
            pass
        for _ in self.r2_pack:
            pass
        self.al0 = None
        if self.opt.get("early_a", 0):
            self.poll("row", 1)
            e.barrier()
        if self.opt.get("r2st", 2) == 2:
            r2_stores()
            self.late_loads()
        self.stamp("r2")
        if self.opt.get("early_a", 0):
            self.stats_loads(0)
            self.al0 = self.ALoad(self, vAx, (sXr, XB[0]), 20)
            self.al0.upto(19)
        self.poll("col" if self.al0 else "both", 1)
        e.barrier()
        self.stamp("w1go")

    def w2_gen(self):
        e = self.e
        t = RES[0]
        e.V("v_bfe_u32", t, vLane, 4, 1); yield
        e.V("v_lshl_add_u32", t, t, 11, vFl); yield
        e.S("s_lshl_b32", s(4), sCG, 8); yield
        e.S("s_add_u32", s(4), s(4), FLG_C); yield
        e.bload(RES[1], t, WS, s(4), 0, "sc1", cls=(900, 10, 0)); yield
        for _ in range(self.opt.get("w2wait", 50)):
            yield "idle"
        e.S("s_add_u32", s(5), sBase, 2); yield
        lok, lre = e.newlabel("w2ok"), e.newlabel("w2retry")
        e.V("v_cmp_ne_u32", VCC, s(5), RES[1])
        e.S("s_cmp_eq_u64", VCC, 0)
        e.branch("s_cbranch_scc1", lok)
        e.cond_begin()
        e.S("s_mov_b32", sCnt, 0)
        e.label(lre)
        e.misc("s_sleep 4")
        e.bload(RES[1], t, WS, s(4), 0, "sc1")
        e.V("v_cmp_ne_u32", VCC, s(5), RES[1])
        e.S("s_cmp_eq_u64", VCC, 0)
        e.branch("s_cbranch_scc1", lok)
        e.S("s_add_u32", sCnt, sCnt, 1)
        e.S("s_cmp_lt_u32", sCnt, 0x20000)
        e.branch("s_cbranch_scc1", lre)
        e.cond_end()
        e.label(lok)
        self.gate = 1 << 20
        yield

    def prologue2(self):
        e = self.e
        T0, T1, T2, T3, T4, T5 = [TMP[40 + i] for i in range(6)]
        mk_srd(e, OUT, pOut, XSZ)
        e.S("s_and_b32", sKH, sWave, 1)
        e.S("s_lshl_b32", sW2048, sWave, 11)
        e.S("s_mul_i32", sA, sC, NA * KB)
        e.S("s_add_u32", sSeg["A"], sA, WA)
        e.S("s_mul_i32", sA, sCG, NO * KB)
        e.S("s_add_u32", sSeg["O"], sA, WO)
        e.S("s_mul_i32", sA, sC, NB * KB)
        e.S("s_add_u32", sSeg["B"], sA, WB)
        e.S("s_mul_i32", sA, sCG, NC * KB)
        e.S("s_add_u32", sSeg["C"], sA, WC)
        e.V("v_add_u32", vDma, sW2048, vL16)
        e.S("s_mul_i32", sXr, sR, 160 * KB)
        e.S("s_mul_i32", sHr, sR, 432 * KB)
        e.S("s_lshl_b32", sSTr, sR, 13)
        e.S("s_mul_i32", sA, sWave, 40 * KB)
        e.V("v_add_u32", vAx[0], sA, vL16)
        e.V("v_add_u32", vAx[1], 20 * KB, vAx[0])
        e.V("v_lshlrev_b32", T0, 11, vG)
        e.V("v_lshl_add_u32", T0, vN, 3, T0)
        e.S("s_lshl_b32", sA, sWave, 8)
        e.V("v_add_u32", vSt, sA, T0)
        e.S("s_mov_b32", self.cInvD, lit(1.0 / D))
        for j in range(3):
            if j == 0:
                e.V("v_mov_b32", vW[0], vL16)
            else:
                e.V("v_add_u32", vW[j], j * 65536, vL16)
        e.S("s_lshl_b32", sA, sKH, 10)
        for j in range(3):
            e.V("v_add_u32", vK[j], sA, vW[j])
        e.V("v_lshlrev_b32", T4, 4, v(0))
        Z = TMP[44:48]
        Z = TMP[48:52]
        for j in range(4):
            e.V("v_mov_b32", Z[j], 0)
        e.ds_write(T4, Z, 0)
        e.ds_write(T4, Z, 4096)
        e.S("s_lshl_b32", sTT, sRH, 2)
        e.S("s_add_u32", sTT, sTT, sWave)
        e.S("s_xor_b32", sB, sTT, 1)
        for u, st in ((0, sTT), (1, sB)):
            e.S("s_mul_i32", sA, st, 20 * KB)
            e.S("s_mul_i32", sD, sKH, 10 * KB)
            e.S("s_add_u32", sA, sA, sD)
            e.V("v_add_u32", vAo[u], sA, vL16)
            e.S("s_mul_i32", sA, st, 54 * KB)
            e.S("s_mul_i32", sD, sKH, 27 * KB)
            e.S("s_add_u32", sA, sA, sD)
            e.V("v_add_u32", vAh[u], sA, vL16)
        e.V("v_lshrrev_b32", T0, 1, vG)
        e.V("v_and_b32", T1, 1, vG)
        e.V("v_lshlrev_b32", T2, 4, vN)
        e.V("v_lshl_add_u32", T3, T0, 8, T2)
        e.V("v_lshl_add_u32", T3, T1, 3, T3)
        e.S("s_mul_i32", sA, sTT, 20 * KB)
        e.V("v_add_u32", vXs, sA, vL16)
        e.V("v_add_u32", vXh, sA, T3)
        e.S("s_mul_i32", sA, sWave, 108 * KB)
        e.V("v_add_u32", vHs, sA, vL16)
        e.S("s_cmp_ge_u32", sC, 12)
        e.S("s_cselect_b32", sA, BIG, sA)
        e.V("v_add_u32", vHh, sA, T3)
        e.S("s_mul_i32", sA, sWave, 40 * KB)
        e.V("v_lshl_add_u32", T3, vG, 3, T2)
        e.V("v_add_u32", vOh, sA, T3)
        e.V("v_cmp_gt_u32", VCC, 2, vG)
        e.V("v_mov_b32", T3, BIG)
        e.V("v_cndmask_b32", vOh, T3, vOh, VCC)
        e.S("s_lshl_b32", sA, sTT, 7)
        e.V("v_lshl_add_u32", T3, vN, 3, sA)
        e.V("v_lshl_add_u32", vStW, T0, 2, T3)
        e.S("s_lshl_b32", sA, sWave, 7)
        e.S("s_add_u32", sA, sA, RST)
        e.V("v_lshl_add_u32", vRT, vG, 4, sA)
        e.V("v_lshl_add_u32", vRW, vN, 2, sA)
        e.S("s_lshl_b32", sA, sTT, 6)
        e.S("s_add_u32", sA, sA, RST)
        e.V("v_lshl_add_u32", vRF, vN, 2, sA)
        e.V("v_lshlrev_b32", T3, 4, vG)
        e.V("v_add_u32", vZ2, ZT + 128, T3)
        e.V("v_cmp_gt_u32", VCC, 10, vN)
        e.V("v_add_u32", T3, ZT, T3)
        e.V("v_cndmask_b32", vZ01, vZ2, T3, VCC)
        e.S("s_lshl_b32", sA, sR, 3)
        e.S("s_add_u32", sA, sA, sTT)
        e.S("s_mul_i32", sA, sA, 16 * 1280)
        e.S("s_mul_i32", sB, sCG, 160)
        e.S("s_add_u32", sA, sA, sB)
        e.V("v_mul_u32_u24", T3, 1280, vN)
        e.V("v_add_u32", T3, sA, T3)
        e.V("v_lshl_add_u32", vOut, vG, 4, T3)
        e.V("v_lshl_add_u32", vOut4, vG, 3, T3)
        e.S("s_mul_i32", sA, sWave, 5120)
        e.V("v_add_u32", vXch, sA, vL16)
        e.V("v_lshlrev_b32", vFl, 2, vN)
        e.V("v_mov_b32", vLn2[0], lit(LN2))
        e.V("v_mov_b32", vEps[0], lit(1e-6))
        e.S("s_mov_b32", sMaskV[0], "0x00ff00ff")
        e.S("s_mov_b32", sMaskV[1], "0x00ff00ff")
        e.S("s_lshl_b32", sA, sR, 8)
        e.S("s_add_u32", sFRL, sA, FLG_RL)
        e.S("s_add_u32", sFRG, sA, FLG_RG)
        e.S("s_lshl_b32", sA, sC, 8)
        e.S("s_add_u32", sFC, sA, FLG_C)
        e.S("s_lshl_b32", sA, sCG, 11)
        e.S("s_add_u32", sOx, sXr, sA)
        e.S("s_lshr_b32", sA, sCG, 1)
        e.S("s_lshl_b32", sA, sA, 10)
        e.S("s_and_b32", sB, sCG, 1)
        e.S("s_lshl_b32", sB, sB, 9)
        e.S("s_add_u32", sA, sA, sB)
        e.S("s_add_u32", sA, sA, 16 * KB)
        e.S("s_add_u32", sOxh, sXr, sA)
        e.S("s_lshl_b32", sA, sCG, 10)
        e.S("s_add_u32", sOst, sSTr, sA)
        e.S("s_lshl_b32", sA, sC, 10)
        e.S("s_add_u32", sOo, sXr, sA)
        e.S("s_lshl_b32", sA, sC, 8)
        e.S("s_add_u32", sA, sA, 16 * KB)
        e.S("s_add_u32", sOoh, sXr, sA)
        e.S("s_mul_i32", sA, sC, 3 * KB)
        e.S("s_add_u32", sOh, sHr, sA)
        e.S("s_lshl_b32", sA, sC, 9)
        e.S("s_add_u32", sA, sA, 48 * KB)
        e.S("s_add_u32", sOhh, sHr, sA)
        e.S("s_mul_i32", sKv, sC, 16 * KVSZ)
        e.misc(f"s_getreg_b32 {sX1}, hwreg(HW_REG_XCC_ID, 0, 4)")
        e.S("s_and_b32", sX1, sX1, 7)
        e.S("s_add_u32", sX1, sX1, 8)
        e.S("s_add_u32", sX1, sX1, sBase)
        e.S("s_mov_b32", sLocal, 0)
        U, Hh, Ee, Dq = T0, T1, T2, T3
        e.S("s_mov_b32", sA, 52429)
        e.V("v_mul_u32_u24", U, sA, v(0))
        e.V("v_lshrrev_b32", U, 18, U)
        e.V("v_mul_u32_u24", Dq, 5, U)
        e.V("v_sub_u32", Dq, v(0), Dq)
        e.V("v_cmp_le_u32", VCC, 21, U)
        e.V("v_cndmask_b32", Hh, 0, 1, VCC)
        e.V("v_mul_u32_u24", Ee, 21, Hh)
        e.V("v_sub_u32", Ee, U, Ee)
        A0, A1, A2, A3 = TMP[46], TMP[47], ACC[36], ACC[37]
        e.V("v_cmp_le_u32", s(100, 2), 16, Ee)
        e.V("v_cmp_eq_u32", s(88, 2), 4, Dq)
        e.V("v_cndmask_b32", A0, 0, 1, s(100, 2))
        e.V("v_lshl_add_u32", A0, Hh, 1, A0)
        e.V("v_add_u32", A1, 4, Hh)
        e.V("v_cndmask_b32", A1, A1, 6, s(100, 2))
        e.V("v_cndmask_b32", A0, A0, A1, s(88, 2))
        e.V("v_cndmask_b32", A1, Dq, Hh, s(88, 2))
        e.V("v_lshl_add_u32", A2, Hh, 2, Ee)
        e.V("v_subrev_u32", A2, 8, A2)
        e.V("v_cndmask_b32", A2, Ee, A2, s(100, 2))
        e.V("v_cmp_eq_u32", VCC, 20, Ee)
        e.V("v_cndmask_b32", A2, A2, 0, VCC)
        e.V("v_lshl_add_u32", A1, A1, 4, A2)
        e.V("v_lshlrev_b32", A1, 4, A1)
        e.V("v_lshl_add_u32", vKvSrc, A0, 10, A1)
        e.V("v_mul_u32_u24", A0, 5, Hh)
        e.V("v_add_u32", A0, A0, Dq)
        e.V("v_cmp_le_u32", s(88, 2), 8, A0)
        e.V("v_lshrrev_b32", A1, 1, A0)
        e.V("v_subrev_u32", A2, 8, A0)
        e.V("v_cndmask_b32", A1, A1, A2, s(88, 2))
        e.V("v_and_b32", A2, 1, A0)
        e.V("v_cndmask_b32", A2, A2, 0, s(88, 2))
        e.V("v_lshlrev_b32", A2, 3, A2)
        e.V("v_cndmask_b32", A0, 0, 1, s(88, 2))
        e.V("v_lshl_add_u32", A3, Hh, 1, A0)
        e.V("v_lshl_add_u32", A3, A3, 2, A1)
        e.V("v_lshl_add_u32", A3, A3, 4, A2)
        e.V("v_add_u32", A3, ZT, A3)
        e.V("v_mul_u32_u24", T4, 20, Hh)
        e.V("v_add_u32", T4, T4, Ee)
        e.V("v_cmp_le_u32", s(100, 2), 32, T4)
        e.V("v_and_b32", T5, 1, T4)
        e.V("v_cndmask_b32", T5, T5, 2, s(100, 2))
        e.V("v_lshl_add_u32", A0, T5, 1, A0)
        e.V("v_lshrrev_b32", T5, 1, T4)
        e.V("v_subrev_u32", T4, 32, T4)
        e.V("v_cndmask_b32", T4, T5, T4, s(100, 2))
        e.V("v_lshl_add_u32", T4, A1, 4, T4)
        e.V("v_lshl_add_u32", T4, T4, 4, A2)
        e.V("v_lshl_add_u32", T4, A0, 10, T4)
        e.V("v_cndmask_b32", T4, T4, A3, VCC)
        e.V("v_cmp_gt_u32", VCC, 210, v(0))
        e.V("v_mov_b32", T5, DUMMY)
        e.V("v_cndmask_b32", vKvDst, T5, T4, VCC)
        e.V("v_cndmask_b32", vKvSrc, 0, vKvSrc, VCC)
        e.V("v_lshlrev_b32", T4, 3, v(0))
        e.V("v_mov_b32", T5, BIG)
        e.V("v_cndmask_b32", vT16, T5, T4, VCC)
        e.V("v_and_b32", T4, -16, T4)
        e.V("v_and_b32", T0, 1, v(0))
        e.V("v_mul_u32_u24", T0, 8 * KVSZ, T0)
        e.V("v_add_u32", T4, T4, T0)
        e.V("v_cndmask_b32", vT16L, T5, T4, VCC)

    def late_loads(self):
        e = self.e
        T4, T5 = TMP[48], TMP[49]
        e.S("s_mul_i32", sB, sCG, 160)
        e.bload(RES[10:14], vOut, XIN, 0, 0)
        e.bload(RES[14:18], vOut, XIN, 0, 64)
        e.bload(RES[18:20], vOut4, XIN, 0, 128)
        skip = e.newlabel("noxid")
        e.S("s_cmp_lg_u32", sWave, 3)
        e.branch("s_cbranch_scc1", skip)
        e.cond_begin()
        e.S("s_lshl_b32", sA, sR, 8)
        e.S("s_add_u32", sA, sA, FLG_X)
        e.S("s_lshl_b32", sB, sC, 2)
        e.V("v_mov_b32", T4, sB)
        e.V("v_mov_b32", T5, sX1)
        e.S("s_mov_b64", EXEC, 1)
        e.bstore(T5, T4, WS, sA, 0, "sc1")
        e.S("s_mov_b64", EXEC, -1)
        e.cond_end()
        e.label(skip)

    def unpack(self, dst, pk):
        e = self.e
        for a_ in range(2):
            for j in range(4):
                e.V("v_lshlrev_b32", dst[8 * a_ + j], 16, pk[4 * a_ + j])
                e.V("v_and_b32", dst[8 * a_ + 4 + j], "0xffff0000", pk[4 * a_ + j])
        for j in range(2):
            e.V("v_lshlrev_b32", dst[16 + 2 * j], 16, pk[8 + j])
            e.V("v_and_b32", dst[16 + 2 * j + 1], "0xffff0000", pk[8 + j])

    class ALoad:
        def __init__(self, m, vaddr, terms, nks):
            self.m, self.vaddr, self.terms, self.nks = m, vaddr, terms, nks
            self.n = 0
            self.based = -1
            self.done = False
            self.win = 20

        def step(self):
            e = self.m.e
            ks, u = divmod(self.n, 2)
            if ks // 4 != self.based:
                self.based = ks // 4
                e.S("s_add_u32", sLd, self.terms[0], self.terms[1] + (ks // 4) * 4 * KB)
                return False
            e.bload(a((self.n % 40) * 4, 4), self.vaddr[u], WS, sLd, (ks % 4) * KB, self.m.opt.get("amod", "sc1"), cls=(self.m.opt.get("latA", 600), 76, 33 if self.nks == 27 else 16))
            self.n += 1
            self.done = self.n >= 2 * self.nks
            return True

        def upto(self, ks):
            while self.n < 2 * min(ks + 1, self.nks):
                self.step()

    def stats_loads(self, ver):
        e = self.e
        e.S("s_add_u32", sA, sSTr, STB[ver])
        for u in range(2):
            for k in range(2):
                e.bload(TMP[4 * u + 2 * k:4 * u + 2 * k + 2], vSt, WS, sA, k * 1024 + u * 128, "sc1", cls=(600, 20, 0))

    def stats_gen(self, need_T, have=False):
        e = self.e
        for u in range(2):
            sm, sq, t0, t1 = TMP[4 * u], TMP[4 * u + 1], TMP[4 * u + 2], TMP[4 * u + 3]
            if not have:
                e.V("v_add_f32", sm, sm, t0); yield
                e.V("v_add_f32", sq, sq, t1); yield
            for op in () if have else ("v_permlane32_swap_b32", "v_permlane16_swap_b32"):
                e.V("v_mov_b32", t0, sm); yield
                e.V("v_mov_b32", t1, sq); yield
                e.V(op, sm, t0); yield
                e.V(op, sq, t1); yield
                e.V("v_add_f32", sm, sm, t0); yield
                e.V("v_add_f32", sq, sq, t1); yield
            e.V("v_mul_f32", sm, lit(1.0 / D), sm); yield
            e.V("v_mul_f32", t0, sm, sm); yield
            e.V("v_fma_f32", sq, sq, self.cInvD, Neg(t0)); yield
            e.V("v_max_f32", sq, 0, sq); yield
            e.V("v_add_f32", sq, lit(1e-5), sq); yield
            e.V("v_rsq_f32", t0, sq); yield
            e.V("v_cvt_pk_bf16_f32", XE[u][0], sm, sm); yield
            e.V("v_mul_f32", sq, sq, t0); yield
            e.ds_write(vRW, t0, 64 * u); yield
            c2 = vC2 if u == 0 else vC2b
            e.V("v_mul_f32", c2[0], lit(LOG2E), t0); yield
            e.V("v_lshlrev_b32", t1, 16, XE[u][0]); yield
            e.V("v_sub_f32", sm, sm, t1); yield
            e.V("v_cvt_pk_bf16_f32", XE[u][1], sm, sq); yield
            e.V("v_and_b32", t1, "0xffff0000", XE[u][1]); yield
            e.V("v_sub_f32", t1, sq, t1); yield
            e.V("v_cvt_pk_bf16_f32", XE[u][3], sm, t1); yield
            e.V("v_mov_b32", XE[u][2], XE[u][0]); yield
        if need_T:
            for u in range(2):
                e.ds_read(RT[4 * u:4 * u + 4], vRT, 64 * u); yield

    def phi_pair(self, src, c2, bcast, t):
        e = self.e
        m = "op_sel_hi:[1,0]" if bcast else ""
        e.V("v_pk_mul_f32", t[0:2], src, c2, mods=m)
        e.V("v_exp_f32_e64", t[2], t[0], mods="clamp")
        e.V("v_exp_f32_e64", t[3], t[1], mods="clamp")
        e.V("v_max_f32", t[0], 0, t[0])
        e.V("v_max_f32", t[1], 0, t[1])
        e.V("v_pk_add_f32", t[2:4], t[2:4], vEps, mods="op_sel_hi:[1,0]")
        e.V("v_pk_fma_f32", t[0:2], t[0:2], vLn2, t[2:4], mods="op_sel_hi:[1,0,1]")

    def scratch(self, nblk, endpos):
        st = endpos - nblk
        if (st % RB) + nblk > RB:
            st = endpos - (endpos % RB) - nblk
        self.last_scratch = (st, st + nblk)
        return st, self.ldsaddr(st)

    def bg_on(self, tail):
        e = self.e
        st = {"next": 0}
        t_end = e.T + tail
        self.deadline = lambda: t_end

        def f():
            if e.T >= st["next"] and self.dma_ok():
                n0 = len(e.vm) + len(e.lg) + len(self.deferred)
                while len(e.vm) + len(e.lg) + len(self.deferred) == n0:
                    next(self.dmaf)
                st["next"] = e.T + self.opt.get("vgap", 24)
        self.e.bg = f

    def code_touch(self, ahead=None):
        e = self.e
        if not self.opt.get("ctouch", 1):
            return
        lab = e.newlabel("here")
        e.label(lab)
        ahead = self.opt.get("cahead", 2048) if ahead is None else ahead
        e.V("v_lshlrev_b32", v(51), 5, v(0))
        e.V("v_add_u32", v(51), f"{lab}-{self.kname}+{ahead}", v(51))
        e.V("v_min_u32", v(51), self.opt.get("code_bytes", 32768) - 4, v(51))
        e.misc(f"global_load_dword {vDum}, {v(51)}, s[96:97]")
        e._vm([], (800, 30, 10))

    def at_block(self, t, gen):
        i0 = self.cons
        while self.cons < i0 + t:
            yield "idle"
        yield from gen

    def delay(self, n, gen):
        for _ in range(n):
            yield "idle"
        yield from gen

    def code_touch_gen(self):
        self.code_touch(self.opt.get("cahead", 512))
        yield

    def bg_off(self):
        self.e.bg = None

    def gstore(self, lst, cold=False):
        e = self.e
        mode = self.opt.get("mode", "dual")
        if cold and not self.opt.get("touchcold", 0):
            mode = "safe"
        if mode != "dual":
            return [e.bstore(d, vo, WS, so, off, "sc1" if mode == "safe" else "") for d, vo, so, off in lst]
        ls, le = e.newlabel("st_safe"), e.newlabel("st_end")
        regs = []
        for d, vo, so, off in lst:
            regs += d.regs() + vo.regs()
        e.wait_ops(e._pending(regs))
        e.S("s_cmp_eq_u32", sLocal, 0)
        need = e._need("vmem", regs, [])
        if need > 1:
            e.nop(need - 1)
        e.branch("s_cbranch_scc1", ls)
        n0 = len(e.lines)
        ops = [e.bstore(d, vo, WS, so, off, "") for d, vo, so, off in lst]
        body = e.lines[n0:]
        assert len(body) == len(lst), body
        e.raw(f"  s_branch {le}")
        e.label(ls)
        for l in body:
            e.raw(l + " sc1")
        e.label(le)
        return ops

    def touch_gen(self, lst, cold=False):
        e = self.e
        if (cold and not self.opt.get("touchcold", 0)) or not self.opt.get("touch", 0):
            return
        for vo, sb, add, off in lst:
            e.S("s_add_u32", sE, sb, add); yield
            e.touch(vDum, vo, WS, sE, off, cls=(750, 80, 30)); yield

    def local_gen(self):
        e = self.e
        e.S("s_lshl_b32", s(6), sR, 8); yield
        e.S("s_add_u32", s(6), s(6), FLG_X); yield
        e.bload(TMP[39], vFl, WS, s(6), 0, "sc1"); yield
        for _ in range(40):
            yield "idle"
        e.V("v_cmp_ne_u32", VCC, sX1, TMP[39]); yield
        e.S("s_cmp_eq_u64", VCC, 0)
        e.S("s_cselect_b32", sLocal, 1, 0); yield

    def poll(self, kind, val):
        e = self.e
        skip = e.newlabel("nopoll")
        loop = e.newlabel("poll")
        e.S("s_cmp_lg_u32", sWave, 0)
        e.branch("s_cbranch_scc1", skip)
        e.cond_begin()
        t = TMP[38]
        e.S("s_mov_b32", sCnt, 0)
        e.S("s_mov_b64", sOk, 0)
        e.S("s_add_u32", sB, sBase, val)
        va, vb, sa, sb = (vFl, vFl, sFRL, sFRG) if kind != "col" else (vFl, vFl, sFC, sFC)
        if kind == "both":
            va, vb, sa, sb = TMP[36], TMP[37], 0, 0
            e.V("v_cmp_gt_u32", VCC, 2, vG)
            e.V("v_mov_b32", va, sFC)
            e.V("v_mov_b32", vb, sFRL)
            e.V("v_cndmask_b32", va, vb, va, VCC)
            e.V("v_add_u32", va, va, vFl)
            e.V("v_mov_b32", vb, FLG_RG - FLG_RL)
            e.V("v_cndmask_b32", vb, vb, 0, VCC)
            e.V("v_add_u32", vb, va, vb)
        if kind == "row":
            e.S("s_cmp_eq_u32", sLocal, 0)
            e.S("s_cselect_b32", sD, 3, -1)
        else:
            e.S("s_mov_b32", sD, 3)
        e.label(loop)

        def chk():
            e.misc("s_waitcnt vmcnt(0)")
            e.misc(f"v_subrev_u32 {t}, {sB}, {t}")
            e.misc(f"v_cmp_ge_u32 vcc, 1, {t}")
            e.misc(f"s_or_b64 {sOk}, {sOk}, vcc")
            e.misc(f"s_cmp_eq_u64 {sOk}, -1")
            e.misc(f"s_cbranch_scc1 {skip}")
        e.misc(f"buffer_load_dword {t}, {va}, {WS}, {sa} offen sc1")
        e.misc("s_add_u32 %s, %s, 1" % (sCnt, sCnt))
        chk()
        if kind != "row":
            e.misc("s_sleep 3")
        lnext = e.newlabel("pollnext")
        e.misc(f"s_and_b32 {sA}, {sCnt}, {sD}")
        e.misc(f"s_cbranch_scc1 {lnext}")
        e.misc(f"buffer_load_dword {t}, {vb}, {WS}, {sb} offen sc1")
        chk()
        e.label(lnext)
        e.misc(f"s_cmp_lt_u32 {sCnt}, 0x80000")
        e.misc(f"s_cbranch_scc1 {loop}")
        e.cond_end()
        e.label(skip)

    def flag(self, kind, val, t0=TMP[37], t1=TMP[38]):
        e = self.e
        lst = [(1, sFRG, "sc1", sC), (2, sFRL, "", sC)] if kind != "col" else []
        if kind != "row":
            lst.append((3, sFC, "sc1", sR))
        for w, sb, m, sidx in lst:
            skip = e.newlabel("noflag")
            if w == 1 and self.opt.get("skipg", 1):
                e.S("s_lshl_b32", sA, sLocal, 2)
                e.S("s_add_u32", sA, sA, sWave)
                e.S("s_cmp_lg_u32", sA, w)
            else:
                e.S("s_cmp_lg_u32", sWave, w)
            e.branch("s_cbranch_scc1", skip)
            e.cond_begin()
            e.S("s_lshl_b32", sA, sidx, 2)
            e.V("v_mov_b32", t0, sA)
            e.S("s_add_u32", sA, sBase, val)
            e.V("v_mov_b32", t1, sA)
            e.S("s_mov_b64", EXEC, 1)
            e.bstore(t1, t0, WS, sb, 0, m)
            e.S("s_mov_b64", EXEC, -1)
            e.cond_end()
            e.label(skip)

    def handoff(self, val, ops, shadow=None, touch=()):
        e = self.e
        t_st = e.T
        hk = (val - 2) % 4
        pick = lambda name, d: self.opt[name + "s"][hk] if name + "s" in self.opt else self.opt.get(name, d)
        self.deadline = lambda: t_st + pick("topup", 2600)
        self.own_end = 0
        while self.dma_ok():
            next(self.dmaf)
        while self.stage_step():
            pass
        self.finish_stage()
        self.restore(self.opt.get("rest1", 2))
        e.wait_all_lg()
        self.ring_barrier(self.cons + FI + self.opt.get("ahead", 16), ops)
        self.hold = None
        self.flag("row", val)
        self.stamp("flag")
        t_flag = e.T
        if self.opt.get("post_touch", 0):
            for k, (vo, sb, add, off) in enumerate(touch):
                sr = sE if k % 2 else sD
                e.S("s_add_u32", sr, sb, add)
                e.touch(vDum, vo, WS, sr, off, "sc1", cls=(750, 66, 30))
        self.deadline = lambda: t_flag + pick("topup2", 1500)
        while self.dma_ok():
            next(self.dmaf)
        while self.stage_step():
            pass
        self.finish_stage()
        self.warn.append(f"staged {len(self.staged)}")
        self.stage_plan = []
        self.prime()
        self.restore(self.opt.get("rest2", 8) if hk == 3 else 99)
        self.restg = self.restore_gen(99)
        if shadow:
            shadow()
        self.poll("row", val)
        e.T = max(e.T, t_flag + 1000)
        e.barrier()
        self.stamp("go")

    def phaseA(self, p):
        e = self.e
        opt = self.opt
        xv = 2 * p
        acc = lambda T, u: ACC[(T * 2 + u) * 4:(T * 2 + u) * 4 + 4]
        xf = lambda ks, u: a((ks * 2 + u) * 4, 4) if ks < 20 else XE[u]
        if p == 0:
            e.S("s_mov_b32", sSel[0], "0x00003f80")
            e.S("s_mov_b32", sSel[1], "0x3f800000")
            e.S("s_mov_b32", sOdd[0], "0xaaaaaaaa")
            e.S("s_mov_b32", sOdd[1], "0xaaaaaaaa")
            e.S("s_getpc_b64", s(96, 2))
            e.label("main_pc2")
            e.S("s_sub_u32", s(96), s(96), "main_pc2-" + self.kname)
            e.S("s_subb_u32", s(97), s(97), 0)
            for _ in range(opt.get("first_groups", 6 if self.al0 else 3)):
                for _ in self.dma_group():
                    pass
        if p == 0 and self.al0:
            al = None
            for _ in self.stats_gen(True):
                pass
            fl0 = [iter(())]
        else:
            al = self.ALoad(self, vAx, (sXr, XB[xv]), 20)
            al.upto(opt.get("adist", 4) - 1)
            self.stats_loads(xv)
            fl0 = [self.delay(opt.get("stdelay", 24), self.stats_gen(True))]
        sc_keep = self.last_scratch
        if p:
            fl0.append(self.restg)
        if p == 0:
            if opt.get("r2st", 2) == 0:
                self.r2_stores()
                self.late_loads()
            e.wait_all_lg()
            if opt.get("r2st", 2) == 2:
                self.ring_barrier(FI + 8, self.ops2)
                self.flag("col", 2)
                fl0.append(self.at_block(opt.get("w2at", 60), self.w2_gen()))
            else:
                self.ring_barrier(FI + 8)
            self.prime()
            self.stamp("start")
            if opt.get("keep", 12):
                self.capg = self.capture_gen(opt.get("keep0", 3), opt.get("keep", 12))
                next(self.capg)
                fl0.append(self.capg)
        st1 = {}

        def hook1(t):
            if t >= opt.get("w2flag_at", 30) and not st1.get("done"):
                st1["done"] = t
                return self.ops2, (lambda: self.flag("col", 2))
            return [], None

        def add1(t):
            if st1.get("done") and t >= opt.get("w2chk_at", 70) and not st1.get("chk"):
                st1["chk"] = True
                return self.w2_gen()
        i0 = self.seqstart[("A1", p)]
        fb = 102
        sst, sad = self.scratch(28, self.seq[i0 + fb][0])
        self.last_scratch = sc_keep
        self.hold = sst

        C2T = ACC[40:48]

        def pre_gen(first):
            while first.gi_frame is not None:
                yield "idle"
            e.S("s_mul_i32", s(7), sWave, 7168); yield
            e.S("s_add_u32", s(7), s(7), sad); yield
            e.V("v_add_u32", TMP[24], s(7), vL16); yield
            e.V("v_add_u32", TMP[25], sad, vKvSrc); yield
            e.S("s_mul_i32", s(7), sR, KVSZ); yield
            e.S("s_add_u32", s(7), s(7), sKv); yield
            e.S("s_add_u32", s(7), s(7), KVB[p]); yield
            for _ in range(8):
                yield "idle"
            for j in range(8):
                e.V("v_mul_f32", C2T[j], lit(LOG2E), RT[j]); yield
        fl0.append(pre_gen(fl0[0]))

        def must_gen():
            yield from fl0[0]
            yield from fl0[-1]
            while self.capg and self.cap_next < sst + 28:
                next(self.capg)
                yield

        def mf(t, W, u):
            ks, T = divmod(t, 5)
            e.mfma(acc(T, u), xf(ks, u), W, acc(T, u) if ks else 0)
        self.run_pass(105, mf, 5, xf, fl0, must=must_gen(), chunk=(8 if p == 0 else 24), stop_reads=self.seqstart[("A4", p)], aload=al,
                      force_bar=fb, tail=6000, mix=opt.get("mixA", 0) if p else 0,
                      late=(60, self.touch_gen([(vAx[0], sOo, OB[p], 0), (vAx[1], sOo, OB[p], 0), (vOh, sOoh, OB[p], 0), (vOh, sOoh, OB[p] + 20 * KB, 0)], p == 0)), hooks={"bar": hook1, "add": add1} if (p == 0 and opt.get("r2st", 2) == 0) else None)
        if p == 0 and opt.get("r2st", 2) == 1:
            self.dma_all()
            self.r2_stores()
            self.late_loads()
        assert sst + 28 <= self.freed and sst + 28 <= self.cap_hold, (sst, self.cap_hold)
        self.stamp("A1")
        self.bg_on(5000)
        KF = [TMP[8:12], TMP[12:16], TMP[16:20]]
        VF = {3: TMP[20:24], 4: ACC[56:60], 2: ACC[60:64]}
        tt = [ACC[48:52], ACC[52:56]]
        TA0, TA1 = TMP[24], TMP[25]
        n = 0
        for T in range(3):
            for u in range(2):
                for h in range(2):
                    t = tt[n % 2]
                    n += 1
                    self.phi_pair(acc(T, u)[2 * h:2 * h + 2], C2T[4 * u + 2 * h:4 * u + 2 * h + 2], False, t)
                    e.V("v_cvt_pk_bf16_f32", KF[T][2 * u + h], t[0], t[1])
        for T in (3, 4, 2):
            for u in range(2):
                for h in range(2):
                    x = acc(T, u)[2 * h:2 * h + 2]
                    e.V("v_pk_mul_f32", x, x, RT[4 * u + 2 * h:4 * u + 2 * h + 2])
            for u in range(2):
                for h in range(2):
                    x = acc(T, u)[2 * h:2 * h + 2]
                    e.V("v_cvt_pk_bf16_f32", VF[T][2 * u + h], x[0], x[1])
        for j in range(4):
            e.V("v_cndmask_b32", VF[2][j], VF[2][j], vOne, sMaskV)
        PR = [ACC[4 * i:4 * i + 4] for i in range(7)]
        prods = [(0, 3), (0, 2), (1, 4), (1, 2), (2, 3), (2, 4), (2, 2)]
        for i, (kt, vt) in enumerate(prods):
            e.mfma(PR[i], KF[kt], VF[vt], 0)
        for i in range(7):
            e.ds_write(TA0, PR[i], i * 1024)
        e.wait_all_lg()
        e.barrier()
        RD = [ACC[4 * w:4 * w + 4] for w in range(4)]
        for w in range(4):
            e.ds_read(RD[w], TA1, w * 7168)
        for h in range(2):
            e.V("v_pk_add_f32", RD[0][2 * h:2 * h + 2], RD[0][2 * h:2 * h + 2], RD[1][2 * h:2 * h + 2])
            e.V("v_pk_add_f32", RD[2][2 * h:2 * h + 2], RD[2][2 * h:2 * h + 2], RD[3][2 * h:2 * h + 2])
        for h in range(2):
            e.V("v_pk_add_f32", RD[0][2 * h:2 * h + 2], RD[0][2 * h:2 * h + 2], RD[2][2 * h:2 * h + 2])
        e.V("v_cvt_pk_bf16_f32", RD[1][0], RD[0][0], RD[0][1])
        e.V("v_cvt_pk_bf16_f32", RD[1][1], RD[0][2], RD[0][3])
        kvst = e.bstore(RD[1][0:2], vT16, WS, s(7), 0, "sc1")
        self.bg_off()
        self.stamp("kvpub")
        PL = [ACC[4 * i:4 * i + 4] for i in range(10)]

        st2 = {}

        def barhook(t):
            def rel():
                self.hold = None

            def relflag():
                self.hold = None
                self.flag("col", 2)
            if p == 0 and opt.get("r2st", 2) == 1 and not st2.get("done") and t >= opt.get("w2flag2_at", 12):
                st2["done"] = True
                return self.ops2, relflag
            return [], rel

        def kvloads():
            for i in range(8):
                if i % 2 == 0:
                    e.S("s_add_u32", sB, sKv, KVB[p] + i * KVSZ); yield
                e.bload(PL[i], vT16L, WS, sB, (i % 2) * KVSZ, "sc1", cls=(opt.get('kvlat', 800), 80, opt.get('kvsvc', 130))); yield

        def kvsum():
            SM = PL[8:10]
            for i in range(8):
                for d in range(4):
                    for h in range(2):
                        x = SM[d >> 1][2 * (d & 1) + h]
                        if i == 0:
                            e.V("v_dot2_f32_bf16", x, PL[i][d], sSel[h], 0)
                        else:
                            e.V("v_dot2c_f32_bf16", x, sSel[h], PL[i][d])
            for d in range(8):
                x = SM[d >> 2][d & 3]
                e.V("v_add_f32_dpp", x, x, x, mods="quad_perm:[1,0,3,2] row_mask:0xf bank_mask:0xf")
            for d in range(4):
                e.V("v_cndmask_b32", PL[0][d], SM[0][d], SM[1][d], sOdd)
            e.V("v_cmp_u_f32", VCC, PL[0][0], PL[0][1])
            e.V("v_cmp_u_f32", sNan, PL[0][2], PL[0][3])
            e.S("s_or_b64", VCC, VCC, sNan)

        def mfq(t, W, u):
            ks, T = divmod(t, 3)
            e.mfma(acc(5 + T, u), W, xf(ks, u), acc(5 + T, u) if ks else 0)
        self.lastbar = self.rd - 8
        fl = []
        if p == 0:
            fl = [self.local_gen()] + ([self.capg] if self.capg else [])
        self.run_pass(63, mfq, 3, xf, fl, stop_reads=self.seqstart[("A4", p)], hooks={"bar": barhook},
                      late=(opt.get("kvload_at", 40), kvloads()), see_all=True, force_bar=61, tail=1600 + self.opt.get("slack", 2400))
        if self.capg:
            n_ = 0
            for _ in self.capg:
                n_ += 1
                assert n_ < 1000
            self.capg = None
        self.stamp("A2")
        if p == 0 and opt.get("r2st", 2) == 1:
            assert st2.get("done")
            w2 = self.w2_gen()
            while next(w2) != "idle":
                pass
        if opt.get("qbg", 1):
            self.bg_on(1600 + self.opt.get("slack", 2400))
        PQ0 = [TMP[0:4], TMP[4:8]]
        PQ1 = [TMP[8:12], TMP[12:16]]
        tq = [TMP[16:20], TMP[20:24]]
        for u in range(2):
            c2 = vC2 if u == 0 else vC2b
            for h in range(2):
                self.phi_pair(acc(5, u)[2 * h:2 * h + 2], c2, True, tq[0])
                self.phi_pair(acc(6, u)[2 * h:2 * h + 2], c2, True, tq[1])
                e.V("v_cvt_pk_bf16_f32", PQ0[u][2 * h], tq[0][0], tq[1][0])
                e.V("v_cvt_pk_bf16_f32", PQ0[u][2 * h + 1], tq[0][1], tq[1][1])
            for h in range(2):
                self.phi_pair(acc(7, u)[2 * h:2 * h + 2], c2, True, tq[h])
                e.V("v_cvt_pk_bf16_f32", PQ1[u][h], tq[h][0], tq[h][1])
            e.V("v_mov_b32", PQ1[u][2], 0)
            e.V("v_mov_b32", PQ1[u][3], 0)
        self.bg_off()
        self.stamp("qepi")
        kvsum()
        lok, lre = e.newlabel("kvok"), e.newlabel("kvretry")
        e.branch("s_cbranch_scc0", lok)
        e.cond_begin()
        e.S("s_mov_b32", sCnt, 0)
        e.label(lre)
        e.misc("s_sleep 4")
        for _ in kvloads():
            pass
        kvsum()
        e.branch("s_cbranch_scc0", lok)
        e.S("s_add_u32", sCnt, sCnt, 1)
        e.S("s_cmp_lt_u32", sCnt, 0x10000)
        e.branch("s_cbranch_scc1", lre)
        e.cond_end()
        e.label(lok)
        self.stamp("kvgo")
        if p == 0 and opt.get("r2st", 2) == 1:
            for _ in w2:
                pass

        self.bg_on(900 + self.opt.get("slack", 2400))
        e.V("v_cvt_pk_bf16_f32", TMP[16], PL[0][0], PL[0][1])
        e.V("v_cvt_pk_bf16_f32", TMP[17], PL[0][2], PL[0][3])
        e.ds_write(vKvDst, TMP[16:18])
        e.wait_all_lg()
        e.barrier()
        FR = [ACC[40 + 4 * i:44 + 4 * i] for i in range(6)] + [TMP[16 + 4 * i:20 + 4 * i] for i in range(4)]
        for T in range(3):
            for ks in range(2):
                e.ds_read(FR[T * 2 + ks], vL16, IMG + (T * 2 + ks) * KB)
        for ks in range(2):
            e.ds_read(FR[6 + ks], vZ01, ks * 64)
            e.ds_read(FR[8 + ks], vZ2, ks * 64)
        oa = lambda T, u: ACC[(T * 2 + u) * 4:(T * 2 + u) * 4 + 4]
        ops = []

        def norm(u, packed):
            den = (oa(3, u)[0], oa(3, u)[2], oa(4, u)[0])
            for x in den:
                e.V("v_add_f32", x, vEps[0], x); yield
            for x in den:
                e.V("v_rcp_f32", x, x); yield
            for T in range(3):
                for h in range(2):
                    x = oa(T, u)[2 * h:2 * h + 2]
                    dn = oa(3, u)[2 * h:2 * h + 2] if T < 2 else oa(4, u)[0:2]
                    if packed:
                        e.V("v_pk_mul_f32", x, x, dn, mods="op_sel_hi:[1,0]"); yield
                    else:
                        e.V("v_mul_f32", x[0], x[0], dn[0]); yield
                        e.V("v_mul_f32", x[1], x[1], dn[0]); yield
            o4 = TMP[8 * u:8 * u + 4] if False else RT[4 * u:4 * u + 4]
            o2 = XE[u][0:2]
            for j in range(4):
                e.V("v_cvt_pk_bf16_f32", o4[j], oa(0, u)[j], oa(1, u)[j]); yield
            for h in range(2):
                e.V("v_cvt_pk_bf16_f32", o2[h], oa(2, u)[2 * h], oa(2, u)[2 * h + 1]); yield
            ops.extend(self.gstore([(o4, vAx[u], sA, 0), (o2, vOh, sB if u == 0 else sD, 0)], p == 0 or opt.get("osafe")))
            yield
        bg, e.bg = e.bg, None
        order = [(T, k) for k in range(2) for T in (3, 4, 0, 1, 2)]
        for T, k in order:
            e.mfma(oa(T, 0), FR[2 * T + k], (PQ0, PQ1)[k][0], oa(T, 0) if k else 0)
        e.S("s_add_u32", sA, sOo, OB[p])
        e.S("s_add_u32", sB, sOoh, OB[p])
        g0 = norm(0, False)
        for n_, (T, k) in enumerate(order):
            e.mfma(oa(T, 1), FR[2 * T + k], (PQ0, PQ1)[k][1], oa(T, 1) if k else 0)
            if n_ == 0:
                e.S("s_add_u32", sD, sOoh, OB[p] + 20 * KB)
            elif n_ < 9:
                next(g0)
                if n_ not in (2, 3):
                    next(g0)
        e.bg = bg
        for _ in g0:
            pass
        for _ in norm(1, True):
            pass
        self.bg_off()
        self.stamp("A3")
        def shadow():
            e.S("s_mul_i32", sB, sCG, 160)
            e.V("v_lshl_add_u32", TMP[2], vG, 4, sB)
            e.V("v_lshl_add_u32", TMP[3], vG, 3, sB)
            e.bload(ACC[40:44], TMP[2], SB2, 0, 0, cls=(800, 20, 0))
            e.bload(ACC[44:48], TMP[2], SB2, 0, 64, cls=(800, 20, 0))
            e.bload(ACC[48:50], TMP[3], SB2, 0, 128, cls=(800, 20, 0))
            if p == 0:
                self.unpack(RES, RES[10:20])
        self.handoff(4 * p + 2, ops, shadow, [(vAx[0], sOo, OB[p], 0), (vAx[1], sOo, OB[p], 0), (vOh, sOoh, OB[p], 0), (vOh, sOoh, OB[p] + 20 * KB, 0)])

    def phase64(self, p, kind):
        e = self.e
        opt = self.opt
        nks = 10 if kind == "O" else 27
        name = "A4" if kind == "O" else "B2"
        acc = lambda T, u: ACC[(u * 5 + T) * 4:(u * 5 + T) * 4 + 4]
        if kind == "O":
            al = self.ALoad(self, vAo, (sXr, OB[p]), nks)
        else:
            al = self.ALoad(self, vAh, (sHr, HB[p]), nks)
        al.upto(opt.get("adist", 4) - 1)
        xf = lambda ks, u: a(((ks % 20) * 2 + u) * 4, 4)
        if kind == "C":
            e.ds_read(TMP[2], vRF)
        i0 = self.seqstart[(name, p)]
        fb = 5 * nks - 3
        sst, sad = self.scratch(20, self.seq[i0 + fb][0])
        self.hold = sst
        stop = i0 + 5 * nks

        def mf(t, W, u):
            ks, T = divmod(t, 5)
            u = 1 - u
            c0 = RES[4 * T:4 * T + 4] if (kind == "O" and u == 0) else 0
            e.mfma(acc(T, u), W, xf(ks, u), acc(T, u) if ks else c0)

        def addr_gen():
            e.V("v_add_u32", TMP[0], sad, vXch); yield
            e.S("s_xor_b32", sA, sWave, 1); yield
            e.S("s_mul_i32", sA, sA, 5120); yield
            e.S("s_add_u32", sA, sA, sad); yield
            e.V("v_add_u32", TMP[1], sA, vL16); yield
            if kind == "C":
                e.V("v_mul_f32", TMP[2], TMP[2], TMP[2]); yield
            if not last:
                e.S("s_add_u32", sA, sOx, XB[xv]); yield
                e.S("s_add_u32", sB, sOxh, XB[xv]); yield
                e.S("s_add_u32", sD, sOst, STB[xv]); yield
        last = kind == "C" and p == 1
        xv = 2 * p + (1 if kind == "O" else 2)
        tg = None if last else (0, self.touch_gen([(vXs, sOx, XB[xv], 0), (vXs, sOx, XB[xv], 1024), (vXh, sOxh, XB[xv], 0), (vStW, sOst, STB[xv], 0)]))
        fl = [self.delay(20, addr_gen())]
        self.run_pass(5 * nks, mf, 5, xf, fl, late=tg, force_bar=fb, chunk=(opt.get("chunkO", 12) if kind == "O" else opt.get("chunkC", 12)), stop_reads=stop, aload=al,
                      mix=opt.get("mixO", 0) if kind == "O" else 0, tail=900 + self.opt.get("slack", 2400))
        self.stamp(name)
        self.bg_on(900 + self.opt.get("slack", 2400))
        assert sst + 20 <= self.freed
        for T in range(5):
            e.ds_write(TMP[0], acc(T, 1), T * KB)
        e.wait_all_lg()
        e.barrier()
        PT = TMP[4:24]
        for T in range(5):
            e.ds_read(PT[4 * T:4 * T + 4], TMP[1], T * KB)
        own = ACC[0:20]
        for h in range(10):
            x = own[2 * h:2 * h + 2]
            e.V("v_pk_add_f32", x, x, PT[2 * h:2 * h + 2])
            if kind == "C":
                e.V("v_pk_fma_f32", x, x, TMP[2:4], RES[2 * h:2 * h + 2], mods="op_sel_hi:[1,0,1]")
        PK = TMP[24:34]
        for a_ in range(2):
            for j in range(4):
                e.V("v_cvt_pk_bf16_f32", PK[4 * a_ + j], own[8 * a_ + j], own[8 * a_ + 4 + j])
        for h in range(2):
            e.V("v_cvt_pk_bf16_f32", PK[8 + h], own[16 + 2 * h], own[16 + 2 * h + 1])
        self.bg_off()
        if last:
            om = self.opt.get("outmod", "")
            e.bstore(PK[0:4], vOut, OUT, 0, 0, om)
            e.bstore(PK[4:8], vOut, OUT, 0, 64, om)
            e.bstore(PK[8:10], vOut4, OUT, 0, 128, om)
            self.stamp("end")
            return
        xv = 2 * p + (1 if kind == "O" else 2)
        ops = []
        ops += self.gstore([(PK[0:4], vXs, sA, 0), (PK[4:8], vXs, sA, 1024), (PK[8:10], vXh, sB, 0)])
        sm, sq, t0 = TMP[36], TMP[37], TMP[38]
        e.V("v_mov_b32", sm, 0)
        e.V("v_mov_b32", sq, 0)
        for j in range(10):
            e.V("v_dot2c_f32_bf16", sm, PK[j], vOne)
            e.V("v_dot2c_f32_bf16", sq, PK[j], PK[j])
        e.V("v_permlane32_swap_b32", sm, sq)
        e.V("v_add_f32", sm, sm, sq)
        e.V("v_mov_b32", t0, sm)
        e.V("v_permlane16_swap_b32", sm, t0)
        e.V("v_add_f32", sm, sm, t0)
        ops += self.gstore([(sm, vStW, sD, 0)])
        self.stamp(name + "epi")

        def shadow():
            self.unpack(RES, PK)
            if kind == "O":
                self.unpack(ACC[20:40], ACC[40:50])
                for h in range(10):
                    x = RES[2 * h:2 * h + 2]
                    e.V("v_pk_add_f32", x, x, ACC[20 + 2 * h:22 + 2 * h])
        self.handoff(4 * p + (3 if kind == "O" else 5), ops, shadow,
                     [(vStW, sOst, STB[xv], 0), (vXs, sOx, XB[xv], 0), (vXs, sOx, XB[xv], 1024), (vXh, sOxh, XB[xv], 0)])

    def phaseB1(self, p):
        e = self.e
        opt = self.opt
        xv = 2 * p + 1
        acc = lambda T, u: ACC[(T * 2 + u) * 4:(T * 2 + u) * 4 + 4]
        xf = lambda ks, u: a((ks * 2 + u) * 4, 4) if ks < 20 else XE[u]
        al = self.ALoad(self, vAx, (sXr, XB[xv]), 20)
        al.upto(opt.get("adist", 4) - 1)
        self.stats_loads(xv)
        stop = self.seqstart[("B2", p)]
        g0 = self.seq[stop][0] // 8 + RB // 8
        self.stage_plan = list(range(g0, g0 + (opt.get("nstage", 0) if p else 0)))

        def mf(t, W, u):
            ks, T = divmod(t, B1N)
            e.mfma(acc(T, u), W, xf(ks, u), acc(T, u) if ks else 0)
        tl = [(vHs, sOh, HB[p] + u * 54 * KB, a_ * KB) for a_ in range(3) for u in range(2)] + [(vHh, sOhh, HB[p] + u * 54 * KB, 0) for u in range(2)]
        sg = self.delay(opt.get("stdelay", 24), self.stats_gen(False))
        flb = [sg]
        if p == 0 and opt.get("keepb", 4):
            gb = self.capture_gen(self.segs[2][1] // 8 + opt.get("keepb0", 8), opt.get("keepb", 4), 12)
            next(gb)
            flb.append(gb)
        self.run_pass(21 * B1N, mf, B1N, xf, flb, late=(0, self.touch_gen(tl, p == 0)), stop_reads=stop, aload=al, must=sg, mix=opt.get("mixB", 0), tail=700 * (7 - B1N) + 300 + self.opt.get("slack", 2400))
        self.stamp("B1a")
        ops = []

        def epi(pairs, single):
            n = 0
            for u in range(2):
                sb = sD if u == 0 else sE
                e.S("s_add_u32", sb, sOh, HB[p] + u * 54 * KB); yield
                for a_ in pairs:
                    o = TMP[16 + 4 * (n % 4):20 + 4 * (n % 4)]
                    n += 1
                    for j in range(4):
                        x, y = acc(2 * a_, u)[j], acc(2 * a_ + 1, u)[j]
                        e.V("v_mul_f32_e64", x, x, f"|{x}|"); yield
                        e.V("v_mul_f32_e64", y, y, f"|{y}|"); yield
                        e.V("v_cvt_pk_bf16_f32", o[j], x, y); yield
                        e.V("v_pk_max_i16", o[j], o[j], 0); yield
                    ops.extend(self.gstore([(o, vHs, sb, a_ * KB)], p == 0 or opt.get("hsafe", 1) == 1 or (opt.get("hsafe", 1) == 2 and not single))); yield
            if single:
                for u in range(2):
                    o = TMP[32 + 2 * u:34 + 2 * u]
                    for j in range(4):
                        x = acc(6, u)[j]
                        e.V("v_mul_f32_e64", x, x, f"|{x}|"); yield
                    for h in range(2):
                        e.V("v_cvt_pk_bf16_f32", o[h], acc(6, u)[2 * h], acc(6, u)[2 * h + 1]); yield
                        e.V("v_pk_max_i16", o[h], o[h], 0); yield
                e.S("s_add_u32", sA, sOhh, HB[p])
                e.S("s_add_u32", sB, sOhh, HB[p] + 54 * KB)
                ops.extend(self.gstore([(TMP[32:34], vHh, sA, 0), (TMP[34:36], vHh, sB, 0)], p == 0 or opt.get("hsafe", 1) == 1))
                yield

        def mf2(t, W, u):
            ks, T = divmod(t, 7 - B1N)
            e.mfma(acc(B1N + T, u), W, xf(ks, u), acc(B1N + T, u) if ks else 0)
        self.run_pass(21 * (7 - B1N), mf2, 7 - B1N, xf, [epi(list(range(B1N // 2)), False)], stop_reads=stop, force_bar=21 * (7 - B1N) - 2, over=opt.get("b1over", 0), chunk=opt.get("chunkB", 24), tail=300 + self.opt.get("slack", 2400))
        self.stamp("B1b")
        for _ in epi(list(range(B1N // 2, 3)), True):
            pass
        self.stamp("B1epi")
        self.handoff(4 * p + 4, ops, None, tl)

    def gen(self):
        e = self.e
        e.reset_state()
        self.cInvD = s(63)
        self.dmaf = self.dma_filler()
        self.prologue()
        if self.opt.get("stamps"):
            e.memtime(sTm, True)
            e.V("v_writelane_b32", v(53), sTm[0], 62)
        self.startup()
        stop = self.opt.get("stop", 99)
        n = 0
        for p in range(2):
            for f in (lambda: self.phaseA(p), lambda: self.phase64(p, "O"), lambda: self.phaseB1(p), lambda: self.phase64(p, "C")):
                if n < stop:
                    f()
                n += 1
        if self.opt.get("stamps"):
            e.wait_all_vm()
            e.memtime(sTm, True)
            e.V("v_writelane_b32", v(53), sTm[0], 63)
            e.S("s_lshl_b32", sA, s(2), 2)
            e.S("s_add_u32", sA, sA, sWave)
            e.S("s_lshl_b32", sA, sA, 8)
            e.S("s_add_u32", sA, sA, STAMP)
            e.V("v_lshlrev_b32", TMP[1], 2, vLane)
            e.bstore(v(53), TMP[1], WS, sA)
        if self.opt.get("dbgst") is not None:
            skip = e.newlabel("nodbg")
            e.S("s_lshl_b32", sA, s(2), 2)
            e.S("s_add_u32", sA, sA, sWave)
            e.S("s_cmp_lg_u32", sA, 4 * self.opt.get("dbgwg", 77))
            e.branch("s_cbranch_scc1", skip)
            e.sload(s(84, 2), s(0, 2), 72)
            e.V("v_readlane_b32", sB, v(53), 0)
            e.V("v_subrev_u32", TMP[0], sB, v(53))
            e.V("v_subrev_u32", TMP[1], self.opt["dbgst"], vLane)
            e.V("v_cmp_gt_u32", VCC, 64 - self.opt["dbgst"], TMP[1])
            e.V("v_lshlrev_b32", TMP[1], 2, TMP[1])
            e.wait_all_lg()
            e.S("s_and_saveexec_b64", s(86, 2), VCC)
            e.misc(f"global_store_dword {TMP[1]}, {TMP[0]}, s[84:85]")
            e.S("s_mov_b64", EXEC, -1)
            e.label(skip)
        if self.opt.get("spin"):
            e.wait_all_vm()
            e.V("v_readfirstlane_b32", s(86), v(53))
            if self.opt.get("spinloc"):
                e.S("s_cmp_lg_u32", sLocal, 0)
                e.branch("s_cbranch_scc1", "spin_done")
            e.label("spin_loop")
            e.misc("s_memrealtime s[88:89]")
            e.misc("s_waitcnt lgkmcnt(0)")
            e.misc("s_sub_u32 s88, s88, s86")
            e.misc(f"s_cmp_lt_u32 s88, {self.opt['spin']}")
            e.misc("s_cbranch_scc1 spin_loop")
            e.label("spin_done")
        if self.opt.get("sweep"):
            e.wait_all_vm()
            e.barrier()
            e.S("s_mov_b32", s(64), 0)
            e.S("s_mov_b32", M0, sW2048)
            e.label("sw_outer")
            e.S("s_mul_i32", s(65), sC, 480 * KB)
            e.S("s_add_u32", s(65), s(65), WA)
            e.S("s_mov_b32", s(66), 0)
            e.label("sw_inner")
            e.misc(f"buffer_load_dwordx4 {vDma}, {WS}, s65 offen lds")
            e.misc(f"buffer_load_dwordx4 {vDma}, {WS}, s65 offen offset:1024 lds")
            e.misc("s_add_u32 s65, s65, 8192")
            e.misc("s_waitcnt vmcnt(12)")
            e.misc("s_add_u32 s66, s66, 1")
            e.misc("s_cmp_lt_u32 s66, 60")
            e.misc("s_cbranch_scc1 sw_inner")
            e.misc("s_add_u32 s64, s64, 1")
            e.misc(f"s_cmp_lt_u32 s64, {self.opt['sweep']}")
            e.misc("s_cbranch_scc1 sw_outer")
            e.misc("s_waitcnt vmcnt(0)")
        e.S("s_add_u32", sA, s(2), sWave)
        e.S("s_cmp_lg_u32", sA, 0)
        e.branch("s_cbranch_scc1", "main_end")
        e.S("s_add_u32", sA, sBase, 16)
        e.V("v_mov_b32", TMP[0], sA)
        e.V("v_mov_b32", TMP[1], EPOCH)
        e.S("s_mov_b64", EXEC, 1)
        e.bstore(TMP[0], TMP[1], WS, 0, 0, "sc1")
        e.label("main_end")
        e.misc("s_endpgm")
```

```python
from asmgen import *
from layout import *
from gen_prep import mk_srd, allreduce_g
import math

BIG = 0x40000000
LOG2E = 1.4426950408889634
LN2 = 0.6931471805599453

IMG = 0
ZT = 6144
RST = 6400
DUMMY = 6912
RING = 8192
RB = 152
LDS_BYTES = RING + RB * KB
FI = 8

WS, OUT, XIN, SB2 = s(8, 4), s(12, 4), s(16, 4), s(20, 4)
sWave, sR, sC, sCG, sRH, sKH, sW2048 = [s(24 + i) for i in range(7)]
sSeg = {"A": s(31), "O": s(32), "B": s(33), "C": s(34)}
sXr, sHr, sSTr, sFRL, sFRG, sFC = [s(35 + i) for i in range(6)]
sA, sB, sD, sE, sDm, sLd = [s(41 + i) for i in range(6)]
sMaskV = s(48, 2)
sCnt = s(50)
sTT = s(51)
sTm = s(52, 2)
sOx, sOxh, sOst, sOo, sOoh, sOh, sOhh, sKv = [s(54 + i) for i in range(8)]
sLocal, sX1 = s(47), s(62)
sStg = s(3)
sSel = [s(84), s(85)]
sOdd = s(86, 2)
vT16L = v(37)
vStg = v(55)
sNan = s(90, 2)
sBase = s(92)
sOk = s(94, 2)
SR1, SR2 = s(84, 4), s(96, 4)
PP = s(64, 16)
pOut, pWs = s(80, 2), s(82, 2)
vDum = v(49)

vLane, vN, vG, vL16 = v(1), v(2), v(3), v(4)
vW = [v(5), v(6), v(7)]
vK = [v(8), v(9), v(10)]
vDma = v(11)
vAx = [v(12), v(13)]
vAo = [v(14), v(15)]
vAh = [v(16), v(17)]
vSt, vStW, vKvSrc, vKvDst, vT16, vZ01, vZ2, vRT, vRW, vRF, vOut, vOut4, vOne = [v(18 + i) for i in range(13)]
vOh, vXs, vXh, vHs, vHh, vFl, vPollR, vPollC, vXch = [v(31 + i) for i in range(9)]
XE = [v(40, 4), v(44, 4)]
vC2 = v(48, 2)
vC2b = v(50, 2)
vLn2 = v(52, 2)
vEps = v(54, 2)
RT = v(56, 8)
ACC = v(64, 64)
FIFO = v(128, 4 * FI)
RES = v(160, 20)
B2F = v(180, 20)
TMP = v(200, 56)


def keepreg(k, h):
    if k < 12:
        return a(160 + 8 * k + 4 * h, 4)
    t = 2 * (k - 12) + h
    return B2F[4 * t:4 * t + 4] if t < 5 else TMP[40 + 4 * (t - 5):44 + 4 * (t - 5)]


class Main:
    def __init__(self, e, opt):
        self.e = e
        self.opt = opt
        self.kname = opt["kname"]
        self.nstamp = 0
        self.segs = []
        pos = 0
        for p in range(2):
            for k, n in (("A", NA), ("O", NO), ("B", NB), ("C", NC)):
                self.segs.append((k, pos, n))
                pos += n
        self.total = pos
        self.ngroups = pos // 8
        self.issued = 0
        self.dmaop = {}
        self.freed = 0
        self.hold = None
        self.visible = 0
        self.seq = []
        self.seqstart = {}
        for p in range(2):
            b = self.segs[4 * p + 0][1]
            self.seqstart[("A1", p)] = len(self.seq)
            self.seq += [(b + i, "W") for i in range(105)]
            self.seqstart[("A2", p)] = len(self.seq)
            self.seq += [(b + 105 + i, "W") for i in range(63)]
            b = self.segs[4 * p + 1][1]
            self.seqstart[("A4", p)] = len(self.seq)
            self.seq += [(b + 2 * i, "K") for i in range(50)]
            b = self.segs[4 * p + 2][1]
            self.seqstart[("B1a", p)] = len(self.seq)
            self.seq += [(b + i, "W") for i in range(21 * B1N)]
            self.seqstart[("B1b", p)] = len(self.seq)
            self.seq += [(b + 21 * B1N + i, "W") for i in range(147 - 21 * B1N)]
            b = self.segs[4 * p + 3][1]
            self.seqstart[("B2", p)] = len(self.seq)
            self.seq += [(b + 2 * i, "K") for i in range(135)]
        self.rd = 0
        self.cons = 0
        self.lastbar = 0
        self.gate = NA // 8
        self.stage_plan = []
        self.staged = {}
        self.stage_mid = None
        self.cap_hold = 1 << 20
        self.deferred = []
        self.spares = []
        self.last_scratch = (0, 0)
        self.restg = None
        self.capg = None
        self.own_end_phase = 0
        self.cap_ops = []
        self.cap_next = 1 << 20
        self.warn = []
        self.model = []
        self.own_end = 0
        self.deadline = lambda: 1 << 30

    def stamp(self, name):
        self.model.append((name, self.e.T))
        if self.opt.get("spinat") in (name, f"{name}#{sum(1 for n_, _ in self.model if n_ == name)}") and not getattr(self, "_sp", 0):
            self._sp = 1
            self.e.wait_all_lg()
            self.e.memtime(sTm, True)
            self.e.V("v_mov_b32", v(53), sTm[0])
        if not self.opt.get("stamps"):
            return
        e = self.e
        e.wait_all_lg()
        e.memtime(sTm)
        e.V("v_writelane_b32", v(53), sTm[0], self.nstamp)
        self.opt.setdefault("stampnames", []).append(name)
        self.nstamp += 1
        assert self.nstamp <= 62

    def endpos(self, i):
        p, k = self.seq[i]
        return p + (2 if k == "K" else 1)

    def ldsaddr(self, pos):
        return RING + (pos % RB) * KB

    def can_issue(self):
        if self.issued >= min(self.ngroups, self.gate):
            return False
        lim = self.freed if self.hold is None else min(self.freed, self.hold)
        lim = min(lim, self.cap_hold)
        return 8 * (self.issued + 1) <= lim + RB

    def dma_group(self):
        e = self.e
        g = self.issued
        self.issued += 1
        pos = 8 * g
        if g in self.stage_plan:
            self.stage_plan = []
        if g in self.staged and self.opt.get("defer", 1) and 8 * g >= self.own_end_phase:
            self.deferred.append(g)
            self.dmaop[g] = None
            yield
            return
        if g in self.staged:
            self.finish_stage()
            k = self.staged[g]
            ad = self.ldsaddr(pos)
            e.V("v_add_u32", vStg, ad, vDma)
            yield
            e.ds_write(vStg, keepreg(k, 0), 0)
            yield
            self.dmaop[g] = e.ds_write(vStg, keepreg(k, 1), 1024)
            yield
            return
        for k, b, n in self.segs:
            if b <= pos < b + n:
                break
        e.S("s_add_u32", M0, sW2048, self.ldsaddr(pos))
        yield
        e.S("s_add_u32", sDm, sSeg[k], (pos - b) * KB)
        yield
        md = "nt" if k in self.opt.get("ntseg", "") else ""
        nvalid = min(8, {"A": 168, "O": 100, "B": 147, "C": 270}[k] - (pos - b)) if self.opt.get("skippad", 1) else 8
        for j in range(2):
            nw = (nvalid - j + 1) // 2
            if nw < 4:
                skip = e.newlabel("nopad")
                e.S("s_cmp_ge_u32", sWave, nw)
                e.branch("s_cbranch_scc1", skip)
                e.cond_begin()
            op = e.dma(vDma, WS, sDm, 1024 * j, md, cls=self.dcls(k))
            if nw < 4:
                e.cond_end()
                e.label(skip)
            if j:
                self.dmaop[g] = op
            yield

    def capture_gen(self, first, n, k0=0):
        e = self.e
        self.cap_hold = self.cap_next = 8 * first
        g1 = self.segs[4][1] // 8
        for k in range(k0, k0 + n):
            g = first + k - k0
            while self.visible < 8 * (g + 1):
                yield "idle"
            e.V("v_add_u32", vStg, self.ldsaddr(8 * g), vDma); yield
            e.ds_read(keepreg(k, 0), vStg, 0); yield
            self.cap_ops.append(e.ds_read(keepreg(k, 1), vStg, 1024))
            self.staged[g1 + g] = k
            self.cap_next = 8 * (g + 1) if k < k0 + n - 1 else 1 << 20
            yield

    def stage_group(self):
        e = self.e
        g = self.stage_plan.pop(0)
        k = len(self.staged) % 12
        self.staged[g] = k
        for sk, b, n in self.segs:
            if b <= 8 * g < b + n:
                break
        e.S("s_add_u32", sStg, sSeg[sk], (8 * g - b) * KB)
        yield
        e.bload(keepreg(k, 0), vDma, WS, sStg, 0, cls=self.dcls(sk))
        yield
        e.bload(keepreg(k, 1), vDma, WS, sStg, 1024, cls=self.dcls(sk))
        self.stage_mid = None
        yield

    def restore_gen(self, n):
        e = self.e
        while n > 0 and self.deferred:
            n -= 1
            g = self.deferred[0]
            k = self.staged[g]
            e.V("v_add_u32", vStg, self.ldsaddr(8 * g), vDma); yield
            old = 8 * g - RB
            clean = old + 8 <= self.last_scratch[0] or old >= self.last_scratch[1]
            if self.spares and self.opt.get("swap", 1) and clean and self.segof(8 * g) == "A":
                sp = self.spares.pop(0)
                e.ds_read(keepreg(sp, 0), vStg, 0); yield
                e.ds_read(keepreg(sp, 1), vStg, 1024); yield
                g2 = g - RB // 8 + self.segs[4][1] // 8
                assert self.segof(8 * g2) == "C"
                self.staged[g2] = sp
            e.ds_write(vStg, keepreg(k, 0), 0); yield
            self.dmaop[g] = e.ds_write(vStg, keepreg(k, 1), 1024)
            self.spares.append(k)
            self.deferred.pop(0)
            yield

    def restore(self, n):
        for _ in self.restore_gen(n):
            pass

    def finish_stage(self):
        while self.stage_mid:
            next(self.stage_mid)

    def stage_step(self):
        e = self.e
        if e.outstanding() >= self.opt.get("qmax", 13):
            return False
        if not self.stage_mid:
            if not self.stage_plan or self.can_issue() or self.mid_group():
                return False
            c = self.dcls("C")
            if e.predict(c) + c[2] > self.deadline():
                return False
            self.stage_mid = self.stage_group()
        next(self.stage_mid)
        return True

    def dcls(self, k):
        return (750, 80, self.opt.get("svcAB", 150)) if k in "AB" else (750, self.opt.get("svcOC", 92), 75)

    def dma_ok(self):
        e = self.e
        if self.mid_group():
            g = self.issued - 1
        elif self.can_issue():
            g = self.issued
        else:
            return False
        if g in self.staged:
            return True
        if e.outstanding() >= self.opt.get("qmax", 13):
            return False
        if self.mid_group() or 8 * g < self.own_end:
            return True
        c = self.dcls(self.segof(8 * g))
        return e.predict(c) + c[2] <= self.deadline()

    def dma_filler(self):
        while True:
            if self.can_issue():
                for _ in self.dma_group():
                    yield True
            else:
                yield False

    def flush_dma_partial(self):
        while self.issued > 0 and (self.issued - 1) not in self.dmaop:
            next(self.dmaf)

    def dma_all(self):
        self.flush_dma_partial()
        while self.can_issue():
            for _ in self.dma_group():
                pass

    def ring_barrier(self, need_idx, extra_ops=(), free_all=False):
        e = self.e
        need_idx = min(need_idx, len(self.seq))
        upto = self.endpos(need_idx - 1) if need_idx > 0 else 0
        g = (upto + 7) // 8
        self.flush_dma_partial()
        while self.issued < g:
            assert self.can_issue(), ("ring deadlock", self.issued, g, self.freed, self.hold)
            self.warn.append(f"forced dma group {self.issued} at seq {self.rd}")
            for _ in self.dma_group():
                pass
        ops = list(extra_ops)
        while self.deferred and self.deferred[0] < g:
            self.warn.append(f"forced restore {self.deferred[0]}")
            next(self.restg)
        for gg in range(self.visible // 8, g):
            assert gg not in self.deferred, gg
            ops.append(self.dmaop[gg])
        e.wait_ops(ops + self.cap_ops)
        self.cap_ops = []
        e.barrier()
        self.cap_hold = self.cap_next
        self.visible = max(self.visible, 8 * g)
        self.freed = self.seq[self.cons][0] if self.cons < len(self.seq) else self.total
        self.lastbar = self.rd

    def issue_read(self):
        e = self.e
        i = self.rd
        if i >= len(self.seq):
            return
        pos, k = self.seq[i]
        assert self.endpos(i) <= self.visible, ("read of invisible block", i, pos, self.visible)
        ad = self.ldsaddr(pos)
        base = (vW if k == "W" else vK)[ad >> 16]
        slot = i % FI
        e.ds_read(FIFO[4 * slot:4 * slot + 4], base, ad & 0xffff)
        self.rd += 1

    def prime(self):
        while self.rd < self.cons + FI and self.rd < len(self.seq) and self.endpos(self.rd) <= self.visible:
            self.issue_read()

    def run_pass(self, n, mf, ntile, xf, fillers=(), chunk=24, stop_reads=None, hooks=None,
                 aload=None, vrate=0.5, amix=(1, 0), over=0, force_bar=None, late=None, see_all=False, tail=2000, mix=0, must=None):
        e = self.e
        fillers = list(fillers)
        lim = stop_reads if stop_reads is not None else len(self.seq)
        st = {"next": 0, "k": 0, "t": 0}
        self.own_end = self.own_end_phase = self.endpos(lim - 1)
        self.deadline = lambda: e.T + (n - st["t"]) * 33 + tail

        i_first = self.cons

        def dma_need():
            g = self.issued - 1 if self.mid_group() else self.issued
            for i in range(self.cons, lim):
                if self.endpos(i) > 8 * g:
                    return i - i_first - FI - chunk
            return 1 << 20

        def one_vmem():
            na, nd = amix
            n0 = len(e.vm)
            if st.get("late"):
                if e.T < st["next"]:
                    return False
                try:
                    next(st["late"])
                except StopIteration:
                    st["late"] = None
                    return False
            else:
                na_ = (aload.n // 2) * ntile if (aload is not None and not aload.done) else 1 << 21
                nd_ = dma_need() if (self.mid_group() or self.can_issue()) else 1 << 22
                run = self.opt.get("run", 0)
                if run and na_ < 1 << 21 and nd_ < 1 << 20:
                    if st.get("cur") == "a" and na_ - run <= nd_:
                        nd_ = max(nd_, na_)
                    elif st.get("cur") == "d" and nd_ - run < na_:
                        na_ = max(na_, nd_ + 1)
                    st["cur"] = "a" if na_ <= nd_ else "d"
                urgent = min(na_, nd_) - st["t"] <= self.opt.get("horizon", 30) + run
                if e.T < st["next"] and not urgent:
                    return False
                if mix and na_ < 1 << 21 and st["k"] % mix == mix - 1 and na_ - st["t"] > self.opt.get("mixh", 10) and self.dma_ok():
                    next(self.dmaf)
                elif na_ <= nd_ and na_ < 1 << 21:
                    if e.outstanding() >= self.opt.get("qmax", 13) and not urgent:
                        return False
                    if aload.n // 2 >= st["t"] // ntile + aload.win - 1:
                        return False
                    aload.step()
                elif nd_ < 1 << 22 and (urgent or self.dma_ok()):
                    next(self.dmaf)
                elif not self.stage_step():
                    return False
            if len(e.vm) > n0:
                st["k"] += 1
                st["next"] = e.T + self.opt.get("vgap", 24)
            return True

        def fill(budget):
            while budget > 0:
                n0 = e.ninst
                did = one_vmem()
                if not did:
                    for f in list(fillers):
                        try:
                            if next(f) == "idle":
                                continue
                            did = True
                            break
                        except StopIteration:
                            fillers.remove(f)
                if not did:
                    return
                budget -= e.ninst - n0

        def waits_for(t):
            regs = []
            for tt in (t, t + 1):
                if tt < n:
                    ks = tt // ntile
                    if aload is not None:
                        aload.upto(ks)
                    idx = self.cons + (tt - t)
                    if idx < self.rd:
                        regs += FIFO[4 * (idx % FI):4 * (idx % FI) + 4].regs()
                    regs += xf(ks, 0).regs() + xf(ks, 1).regs()
            return e._pending(regs)

        e.wait_ops(waits_for(0))
        if aload is not None:
            self.stamp("1st")
            self.warn.append(f"fill {8 * self.issued - self.seq[self.cons][0]}")
        for t in range(n):
            if aload is not None and self.opt.get("midstamp") and t == n // 2:
                self.stamp("half")
            i = self.cons
            assert self.rd > i, ("fifo underrun", i)
            W = FIFO[4 * (i % FI):4 * (i % FI) + 4]
            st["t"] = t
            if must is not None and t == n - ntile - 2:
                for _ in must:
                    self.warn.append("must drained late")
            if t in (int(n * self.opt.get("cfrac", 0.65)), int(n * self.opt.get("cfrac2", 9))) and n > 30:
                fillers.insert(0, self.code_touch_gen())
            if hooks and hooks.get("add"):
                g_ = hooks["add"](t)
                if g_:
                    fillers.append(g_)
            ov = over if fillers else 0
            mf(t, W, 0)
            bar = self.rd < lim and (self.endpos(self.rd) > self.visible or self.rd - self.lastbar >= chunk)
            bar = bar or t == force_bar
            if late and t >= late[0] and not st.get("lateon") and (aload is None or aload.done) and 8 * self.issued >= min(self.own_end, self.endpos(min(i_first + n + FI, lim) - 1)) and not self.mid_group():
                st["late"] = late[1]
                st["lateon"] = True
                self.warn.append(f"late at {t}")
            if bar:
                ex, after = [], None
                if hooks and hooks.get("bar"):
                    ex, after = hooks["bar"](t)
                self.ring_barrier(lim if see_all else min(self.rd + chunk, lim), ex)
                if after:
                    after()
            else:
                fill(2 + ov)
            mf(t, W, 1)
            self.cons += 1
            used = 0
            if self.rd < lim:
                self.issue_read()
                used = 1
            pend = waits_for(t + 1) if (t % 2 == 1 and t + 1 < n) else []
            fill(2 + ov - used - (1 if pend else 0))
            if pend:
                e.wait_ops(waits_for(t + 1))
        if late and not st.get("lateon"):
            st["late"] = late[1]
        for f in fillers + ([st["late"]] if st.get("late") else []):
            if f is not self.capg:
                for _ in f:
                    pass

    def segof(self, pos):
        for k, b, n in self.segs:
            if b <= pos < b + n:
                return k
        return "O"

    def mid_group(self):
        return self.issued > 0 and (self.issued - 1) not in self.dmaop

    def dma_burst(self, maxgroups=99):
        e = self.e
        self.flush_dma_partial()
        gs = []
        while self.can_issue() and len(gs) < maxgroups:
            gs.append(self.issued)
            self.issued += 1
        for w in (1, 2, 3):
            mine = gs[w - 1::3]
            if not mine:
                continue
            skip = e.newlabel("noburst")
            e.S("s_cmp_lg_u32", sWave, w)
            e.branch("s_cbranch_scc1", skip)
            e.cond_begin()
            for g in mine:
                pos = 8 * g
                for k, b, n in self.segs:
                    if b <= pos < b + n:
                        break
                for h in range(2):
                    e.S("s_mov_b32", M0, self.ldsaddr(pos) + h * 4096)
                    e.S("s_add_u32", sDm, sSeg[k], (pos - b) * KB + h * 4096)
                    for q in range(4):
                        self.dmaop[g] = e.dma(vL16, WS, sDm, q * 1024)
            e.cond_end()
            e.label(skip)

    def prologue(self):
        e = self.e
        e.S("s_cmp_ge_u32", s(2), 256)
        e.branch("s_cbranch_scc1", "main_end")
        if self.opt.get("stamps"):
            e.V("v_mov_b32", v(53), 0)
        self.stamp("t0")
        if self.opt.get("spin") and not self.opt.get("spinat"):
            e.memtime(sTm, True)
            e.V("v_mov_b32", v(53), sTm[0])
        e.sload(PP, s(0, 2), 0)
        e.sload(pOut, s(0, 2), 64)
        e.sload(pWs, s(0, 2), 80)
        T0, T1, T2, T3 = TMP[48], TMP[49], TMP[50], TMP[51]
        e.S("s_getpc_b64", s(88, 2))
        e.label("main_pc")
        if self.opt.get("cshare0", 1):
            e.S("s_bfe_u32", sA, s(2), (2 << 16) | 3)
            e.V("v_and_b32", T2, 15, v(0))
            e.S("s_lshl_b32", sA, sA, 4)
            e.V("v_add_lshl_u32", T2, T2, sA, 7)
        else:
            e.V("v_lshlrev_b32", T2, 5, v(0))
        e.S("s_sub_u32", s(88), s(88), "main_pc-" + self.kname)
        e.S("s_subb_u32", s(89), s(89), 0)
        e.misc(f"global_load_dword {vDum}, {T2}, s[88:89]")
        e._vm([], (2000, 30, 0))
        e.V("v_lshrrev_b32", T0, 6, v(0))
        e.V("v_and_b32", vLane, 63, v(0))
        e.V("v_readfirstlane_b32", sWave, T0)
        e.S("s_lshr_b32", sB, s(2), 3)
        e.S("s_mul_i32", sB, sB, 1792)
        e.S("s_add_u32", sB, sB, 8192)
        e.V("v_lshl_add_u32", T2, v(0), 3, sB)
        e.V("v_min_u32", T2, self.opt.get("code_bytes", 32768) - 4, T2)
        e.misc(f"global_load_dword {vDum}, {T2}, s[88:89]")
        e._vm([], (2000, 30, 0))
        e.V("v_lshlrev_b32", vL16, 4, vLane)
        e.V("v_and_b32", vN, 15, vLane)
        e.V("v_lshrrev_b32", vG, 4, vLane)
        self.vBig = TMP[52]
        e.V("v_mov_b32", self.vBig, BIG)
        e.S("s_and_b32", sA, s(2), 7)
        e.S("s_lshl_b32", sA, sA, 1)
        e.S("s_lshr_b32", sB, s(2), 7)
        e.S("s_add_u32", sR, sA, sB)
        e.S("s_bfe_u32", sC, s(2), (4 << 16) | 3)

    def gather(self, raw, srd, sstride, vaddr, srow, n=8):
        e = self.e
        e.S("s_mul_i32", sLd, srow, sstride)
        for i in range(n):
            e.bload(raw[i], vaddr, srd, sLd, 0, w="ushort", cls=(2500, 32, 0))
            if i < n - 1:
                e.S("s_add_u32", sLd, sLd, sstride)

    def pack(self, raw, n=4):
        for i in range(n):
            self.e.V("v_lshl_or_b32", raw[i], raw[2 * i + 1], 16, raw[2 * i])

    def colsum(self, regs, ex, vs, vt):
        e = self.e
        e.V("v_mov_b32", vs, 0)
        for r_ in regs:
            e.V("v_dot2c_f32_bf16", vs, r_, vOne)
        allreduce_g(e, vs, vt)
        e.V("v_sub_f32", vs, 0, vs)
        e.V("v_cvt_pk_bf16_f32", vt, vs, vs)
        e.V("v_lshlrev_b32", vt, 16, vt)
        e.V("v_sub_f32", vt, vs, vt)
        e.V("v_cvt_pk_bf16_f32", ex[0], vs, vt)
        e.V("v_and_b32", ex[1], "0xffff", ex[0])

    def startup(self):
        e = self.e
        vBig = self.vBig
        RAW1, EX = ACC[0:20], ACC[20:24]
        RAW2 = TMP[8:40]
        vCol, vReg, vLeft, vT0, vT1, vSum, vLd = [FIFO[i] for i in range(7)]
        vA0, vA1, vA2, vSt2, vBias = RES[8], RES[9], B2F[8], B2F[9], ACC[38]
        sT, sP = s(7), s(93)
        sStr = s(56)
        XJ = [RES[0:4], RES[4:8], B2F[0:4]]
        XD, XA, XB_ = B2F[4], ACC[32], ACC[33]
        XM = [s(90), s(91), s(94)]
        T0, T1, T2, T3 = TMP[48], TMP[49], TMP[50], TMP[51]
        e.V("v_lshrrev_b32", T1, 3, vLane)
        e.V("v_and_b32", T3, 7, vLane)
        e.V("v_mul_u32_u24", T0, 1280, T3)
        e.V("v_lshl_add_u32", XA, T1, 4, T0)
        e.V("v_lshrrev_b32", T2, 4, vLane)
        e.V("v_lshl_add_u32", XB_, T2, 7, XA)
        e.V("v_lshlrev_b32", XD, 8, T1)
        e.V("v_lshl_add_u32", XD, T3, 4, XD)
        e.S("s_lshl_b32", sE, sR, 4)
        e.S("s_add_u32", sE, sE, sC)
        e.S("s_mul_i32", sE, sE, 8 * 1280)
        e.S("s_mul_i32", sD, sWave, 3)
        mk_srd(e, XIN, PP[0:2], XSZ)
        for k in range(3):
            e.S("s_add_u32", XM[k], sD, k)
            e.S("s_cmp_ge_u32", XM[k], 8)
            e.S("s_cselect_b64", VCC, -1, 0)
            e.S("s_cselect_b32", sA, 40, 10)
            e.S("s_cselect_b32", sB, 8 - 8 * 40, 0)
            e.V("v_cndmask_b32", T0 if k != 1 else T1, XA, XB_, VCC)
            e.S("s_mul_i32", sA, sA, XM[k])
            e.S("s_add_u32", sA, sA, sB)
            e.S("s_lshl_b32", sA, sA, 4)
            e.S("s_add_u32", sA, sA, sE)
            e.S("s_cmp_ge_u32", XM[k], 10)
            e.S("s_cselect_b32", sA, BIG, sA)
            e.S("s_cselect_b32", XM[k], BIG // 2048, XM[k])
            e.bload(XJ[k], T0 if k != 1 else T1, XIN, sA, 0, cls=(2000, 100, 0))
        self.stamp("issx")
        e.S("s_lshr_b32", sP, sR, 1)
        e.S("s_and_b32", sT, sR, 1)
        e.S("s_lshl_b32", sT, sT, 2)
        e.S("s_add_u32", sT, sT, sWave)
        e.S("s_mov_b32", s(4), (656 << 20) | (660 << 10) | 640)
        e.S("s_mov_b32", s(5), 0)
        e.S("s_mul_i32", sA, sT, 10)
        e.S("s_lshr_b32", sA, s(4), sA)
        e.S("s_and_b32", sA, sA, 1023)
        for t, val in ((3, 1280), (4, 1300), (5, 0), (6, 1), (7, 32)):
            e.S("s_cmp_eq_u32", sT, t)
            e.S("s_cselect_b32", sA, val, sA)
        e.S("s_mul_i32", sB, sC, 40)
        e.S("s_add_u32", sA, sA, sB)
        e.V("v_add_u32", vCol, sA, vN)
        e.V("v_add_u32", vT0, vCol, vN)
        e.S("s_sub_u32", sB, sT, 5)
        e.S("s_cmp_lt_u32", sB, 2)
        e.S("s_cselect_b64", VCC, -1, 0)
        e.V("v_cndmask_b32", vCol, vCol, vT0, VCC)
        e.V("v_lshrrev_b32", vT0, 3, vN)
        e.V("v_mul_u32_u24", vT0, 632 - 32, vT0)
        e.V("v_lshrrev_b32", vT1, 2, vN)
        e.V("v_lshl_add_u32", vT0, vT1, 4, vT0)
        e.V("v_add3_u32", vT0, vT0, vN, sA)
        e.S("s_cmp_eq_u32", sT, 2)
        e.S("s_cselect_b64", VCC, -1, 0)
        e.V("v_cndmask_b32", vCol, vCol, vT0, VCC)
        e.V("v_lshlrev_b32", vCol, 1, vCol)
        e.S("s_cmp_eq_u32", sT, 7)
        e.S("s_cselect_b32", sB, 8, 16)
        e.V("v_cmp_le_u32", VCC, sB, vN)
        e.S("s_mov_b32", sStr, 3840)
        e.V("v_cndmask_b32", vCol, vCol, vBig, VCC)
        e.S("s_mov_b32", sD, 8 * 3840)
        e.V("v_mad_u32_u24", vReg, vG, sD, vCol)
        e.V("v_and_b32", vT0, 1, vG)
        e.V("v_lshrrev_b32", vT1, 1, vG)
        e.V("v_lshl_add_u32", vLd, vT0, 1, vT1)
        e.S("s_mov_b32", sD, 4 * 3840)
        e.V("v_mad_u32_u24", vLeft, vLd, sD, vCol)
        mk_srd(e, SR1, PP[2:4], D * 3 * D * 2)
        e.S("s_mul_i32", sB, sP, 80)
        self.gather(RAW1[0:8], SR1, sStr, vReg, sB)
        e.S("s_add_u32", sA, sB, 32)
        self.gather(RAW1[8:16], SR1, sStr, vReg, sA)
        e.S("s_add_u32", sA, sB, 64)
        self.gather(RAW1[16:20], SR1, sStr, vLeft, sA, 4)
        self.stamp("iss1")
        def r2touch():
            e.S("s_lshl_b32", sA, s(2), 2)
            e.S("s_add_u32", sA, sA, sWave)
            e.V("v_min_u32", T0, 17, vLane)
            e.V("v_lshlrev_b32", T0, 7, T0)
            e.S("s_mul_i32", sB, sA, 2160)
            mk_srd(e, SR2, PP[8:10], F * D * 2)
            e.touch(vDum, T0, SR2, sB, 0, cls=(2000, 30, 0))
            mk_srd(e, SR2, PP[12:14], F * D * 2)
            e.touch(vDum, T0, SR2, sB, 0, cls=(2000, 30, 0))
            e.V("v_min_u32", T0, 7 * 128, T0)
            mk_srd(e, SR2, PP[4:6], D * D * 2)
            e.S("s_mul_i32", sB, sA, 800)
            e.touch(vDum, T0, SR2, sB, 0, cls=(2000, 30, 0))
        if self.opt.get("r2touch", 3) == 1:
            r2touch()
        if self.opt.get("wsoff"):
            e.S("s_add_u32", pWs[0], pWs[0], self.opt["wsoff"] << 20)
            e.S("s_addc_u32", pWs[1], pWs[1], 0)
        mk_srd(e, WS, pWs, WS_USED)
        e.sload(sBase, pWs, EPOCH)
        e.S("s_mov_b32", sA, "0x3f803f80")
        e.V("v_mov_b32", vOne, sA)
        e.S("s_and_b32", sCG, sC, 7)
        e.S("s_lshr_b32", sRH, sC, 3)
        if self.opt.get("r2touch", 0) == 3:
            r2touch()
        mk_srd(e, SB2, PP[14:16], D * 2)
        if not self.opt.get("l2first", 0):
            self.prologue2()
            self.stamp("pro2")
        sU, sP, sStr, sJ = s(88), s(89), s(100), s(101)
        rows = [s(3 + i) for i in range(4)]
        D2 = [s(64), s(65), s(66), s(67)]
        sDB, sDX = s(70), s(71)
        vSel0, vSel1 = vA1, vA2
        mk_srd(e, SR1, PP[10:12], F * 2)
        e.S("s_lshl_b32", sJ, sRH, 4)
        e.S("s_add_u32", sJ, sJ, sR)
        if self.opt.get("bal", 1):
            e.S("s_cmp_eq_u32", sJ, 15)
            e.S("s_cselect_b32", sA, 39, 127)
            e.S("s_mul_i32", sJ, sJ, 3)
            e.S("s_add_u32", sJ, sJ, sWave)
            e.S("s_add_u32", sJ, sJ, 39)
            e.S("s_cmp_ge_u32", sJ, 97)
            e.S("s_cselect_b32", sB, 97, 0)
            e.S("s_sub_u32", sJ, sJ, sB)
            e.S("s_cmp_eq_u32", sWave, 0)
            e.S("s_cselect_b32", sJ, sA, sJ)
        else:
            e.S("s_lshl_b32", sJ, sJ, 2)
            e.S("s_add_u32", sJ, sJ, sWave)
        e.V("v_lshrrev_b32", vT0, 1, vG)
        e.V("v_and_b32", vT1, 1, vG)
        e.V("v_mov_b32", vSt2, vL16)
        e.S("s_mov_b32", sDX, BIG)
        lo, lc, lj = e.newlabel("job_wo"), e.newlabel("job_w2"), e.newlabel("job_go")

        def unit(sbase, nu, stride, ca, cb, nreg, dB):
            e.S("s_lshl_b32", sA, sU, 5)
            e.S("s_add_u32", sA, sA, sbase)
            e.S("s_lshl_b32", sA, sA, 1)
            e.S("s_mov_b32", sDB, dB)
            e.S("s_cmp_lt_u32", sU, nu)
            e.S("s_cselect_b64", VCC, -1, 0)
            e.S("s_cselect_b32", sDB, sDB, BIG)
            e.V("v_lshlrev_b32", vCol, 2, vN)
            e.V("v_and_b32", vReg, 14, vN)
            e.V("v_lshlrev_b32", vReg, 1, vReg)
            e.V("v_cndmask_b32", vCol, vReg, vCol, VCC)
            e.V("v_add_u32", vCol, sA, vCol)
            e.V("v_and_b32", vReg, 1, vN)
            e.V("v_cndmask_b32", vReg, vReg, 0, VCC)
            e.S("s_mov_b32", sA, "0x02020202")
            e.V("v_mul_lo_u32", vReg, vReg, sA)
            e.V("v_add_u32", vSel0, "0x05040100", vReg)
            e.S("s_mov_b32", sStr, stride)
            e.S("s_mov_b32", sD, 8 * stride)
            e.V("v_mul_u32_u24", vReg, sD, vG)
            e.S("s_mov_b32", sD, ca * stride)
            e.V("v_mul_u32_u24", vLeft, sD, vT0)
            e.S("s_mov_b32", sD, cb * stride)
            e.V("v_mad_u32_u24", vLeft, vT1, sD, vLeft)
            e.S("s_cmp_lt_u32", sP, nreg)
            e.S("s_cselect_b64", VCC, -1, 0)
            e.V("v_cndmask_b32", vA0, vLeft, vReg, VCC)

        def split_dests(half):
            for b in range(4):
                e.S("s_lshl_b32", sA, sP, 2)
                e.S("s_add_u32", sA, sA, b)
                e.S("s_mul_i32", sD, sA, 10)
                e.S("s_cmp_ge_u32", sA, half)
                e.S("s_cselect_b32", sB, 10 * half - 1, 0)
                e.S("s_sub_u32", sD, sD, sB)
                e.S("s_add_u32", sD, sD, sE)
                e.S("s_lshl_b32", D2[b], sD, 10)
                if half == 27 and b >= 2:
                    e.S("s_cmp_ge_u32", sA, 54)
                    e.S("s_cselect_b32", D2[b], BIG, D2[b])

        def div3(dq, dr, src):
            e.S("s_mul_i32", dq, src, 43691)
            e.S("s_lshr_b32", dq, dq, 17)
            e.S("s_mul_i32", sA, dq, 3)
            e.S("s_sub_u32", dr, src, sA)

        e.S("s_cmp_ge_u32", sJ, 55)
        e.branch("s_cbranch_scc1", lc)
        e.S("s_cmp_ge_u32", sJ, 40)
        e.branch("s_cbranch_scc1", lo)
        e.cond_begin()
        mk_srd(e, SR2, PP[8:10], D * F * 2)
        e.S("s_and_b32", sU, sJ, 3)
        e.S("s_lshr_b32", sP, sJ, 2)
        e.S("s_cmp_ge_u32", sP, 5)
        e.S("s_cselect_b32", sA, 5, 0)
        e.S("s_cselect_b32", sJ, 8, 0)
        e.S("s_sub_u32", sP, sP, sA)
        e.S("s_add_u32", sJ, sJ, sCG)
        e.S("s_mul_i32", sE, sJ, 112)
        e.S("s_max_u32", sB, sJ, 12)
        e.S("s_sub_u32", sB, sB, 12)
        e.S("s_lshl_b32", sB, sB, 4)
        e.S("s_sub_u32", sE, sE, sB)
        unit(sE, 3, 3456, 80, 8, 4, 1024)
        e.S("s_lshl_b32", sA, sU, 4)
        e.S("s_add_u32", sA, sA, sJ)
        e.S("s_cmp_ge_u32", sA, 3 * 16 + 12)
        e.S("s_cselect_b64", VCC, -1, 0)
        e.V("v_cndmask_b32", vCol, vCol, vBig, VCC)
        for b in range(4):
            e.S("s_mul_i32", sA, sP, 160)
            e.S("s_add_u32", sA, sA, 80 * (b >> 1) + 32 * (b & 1))
            e.S("s_cmp_eq_u32", sP, 4)
            e.S("s_cselect_b32", rows[b], 160 * b + 64, sA)
        e.S("s_cmp_lt_u32", sU, B1N // 2)
        e.S("s_cselect_b32", s(79), B1N, 7 - B1N)
        e.S("s_cselect_b32", sE, 0, 20 * B1N)
        e.S("s_lshl_b32", sA, sU, 1)
        e.S("s_add_u32", sE, sE, sA)
        e.S("s_mul_i32", sB, sJ, NB)
        e.S("s_add_u32", sE, sE, sB)
        e.S("s_add_u32", sE, sE, WB // KB)
        for b in range(4):
            e.S("s_lshl_b32", sA, sP, 2)
            e.S("s_add_u32", sA, sA, b)
            e.S("s_mul_i32", sA, sA, s(79))
            e.S("s_add_u32", sA, sA, sE)
            e.S("s_lshl_b32", D2[b], sA, 10)
        e.S("s_mul_i32", sD, s(79), 20)
        e.S("s_add_u32", sD, sD, sE)
        e.S("s_lshl_b32", sDX, sD, 10)
        e.branch("s_branch", lj)
        e.cond_end()
        e.label(lo)
        e.cond_begin()
        mk_srd(e, SR2, PP[4:6], D * D * 2)
        e.S("s_sub_u32", sJ, sJ, 40)
        div3(sP, sU, sJ)
        e.S("s_mul_i32", sE, sCG, 80)
        unit(sE, 2, 1280, 80, 40, 4, 2048)
        for b in range(4):
            e.S("s_mul_i32", sA, sP, 160)
            e.S("s_add_u32", sA, sA, 40 * b)
            e.S("s_cmp_eq_u32", sP, 4)
            e.S("s_cselect_b32", rows[b], 160 * b + 32, sA)
        e.S("s_mul_i32", sE, sCG, NO)
        e.S("s_add_u32", sE, sE, WO // KB)
        e.S("s_lshl_b32", sA, sU, 2)
        e.S("s_add_u32", sE, sE, sA)
        split_dests(10)
        e.branch("s_branch", lj)
        e.cond_end()
        e.label(lc)
        e.cond_begin()
        mk_srd(e, SR2, PP[12:14], F * D * 2)
        e.S("s_sub_u32", sJ, sJ, 55)
        div3(sP, sU, sJ)
        e.S("s_mul_i32", sE, sCG, 80)
        unit(sE, 2, 1280, 112, 8, 12, 2048)
        e.S("s_cmp_ge_u32", sP, 14)
        e.S("s_cselect_b64", VCC, -1, 0)
        e.V("v_cndmask_b32", vCol, vCol, vBig, VCC)
        e.V("v_cndmask_b32", vSt2, vSt2, vBig, VCC)
        e.S("s_min_u32", sP, sP, 13)
        for b in range(4):
            e.S("s_lshl_b32", sD, sP, 2)
            e.S("s_add_u32", sD, sD, b)
            e.S("s_mul_i32", sA, sD, 43691)
            e.S("s_lshr_b32", sA, sA, 17)
            e.S("s_lshl_b32", sA, sA, 4)
            e.S("s_min_u32", sA, sA, 192)
            e.S("s_lshl_b32", sB, sD, 5)
            e.S("s_add_u32", sA, sA, sB)
            e.S("s_mul_i32", sB, sD, 224)
            e.S("s_sub_u32", sB, sB, 224 * 48 - 96)
            e.S("s_cmp_ge_u32", sD, 48)
            e.S("s_cselect_b32", rows[b], sB, sA)
        e.S("s_mul_i32", sE, sCG, NC)
        e.S("s_add_u32", sE, sE, WC // KB)
        e.S("s_lshl_b32", sA, sU, 2)
        e.S("s_add_u32", sE, sE, sA)
        split_dests(27)
        e.cond_end()
        e.label(lj)
        e.V("v_add_u32", vA0, vA0, vCol)
        e.S("s_cmp_lt_u32", sP, 2)
        e.S("s_cselect_b64", VCC, -1, 0)
        e.V("v_cndmask_b32", vBias, vBig, vCol, VCC)
        e.V("v_mov_b32", vSel1, "0x07060302")
        e.V("v_add_u32", vT0, sP, vG)
        e.V("v_lshrrev_b32", vT1, 1, vT0)
        e.V("v_lshlrev_b32", vLd, 4, vN)
        e.V("v_lshl_add_u32", vLd, vT1, 8, vLd)
        e.V("v_and_b32", vT0, 1, vT0)
        e.V("v_lshl_add_u32", vLd, vT0, 3, vLd)
        e.S("s_cmp_eq_u32", sP, 4)
        e.S("s_cselect_b32", sA, 4, 1)
        e.V("v_cmp_gt_u32", VCC, sA, vG)
        e.V("v_cndmask_b32", vLd, vBig, vLd, VCC)
        e.S("s_lshl_b32", sA, sC, 4)
        e.S("s_add_u32", sA, sA, sR)
        e.S("s_mul_i32", sA, sA, KVSZ)
        e.S("s_mul_i32", sB, sWave, KVSZ // 4)
        e.S("s_add_u32", sA, sA, sB)
        e.S("s_add_u32", s(79), sA, KVB[1])
        self.stamp("dec2")
        def r2_loads():
            for b in range(4):
                e.S("s_mul_i32", sE, rows[b], sStr); yield
                for i in range(8):
                    e.bload(RAW2[8 * b + i], vA0, SR2, sE, 0, cls=(1500, 32, 0)); yield
                    if i < 7:
                        e.S("s_add_u32", sE, sE, sStr); yield
            e.bload(vBias, vBias, SR1, 0, 0, cls=(1500, 10, 0)); yield

        self.r2_loads = r2_loads()
        if self.opt.get("l2first", 0):
            for _ in self.r2_loads:
                pass
            self.stamp("iss2a")
            self.prologue2()
            self.stamp("pro2")
        sP2 = sP
        wT0, wT1, wLd, wSum = FIFO[8], FIFO[9], FIFO[10], FIFO[11]
        sT, sP = s(7), s(93)
        ops1 = []
        e.S("s_lshr_b32", sA, sC, 1)
        e.S("s_lshl_b32", sB, sR, 3)
        e.S("s_add_u32", sA, sA, sB)
        e.S("s_mul_i32", sA, sA, 20 * KB)
        e.S("s_and_b32", sB, sC, 1)
        e.S("s_lshl_b32", sB, sB, 7)
        e.S("s_add_u32", sA, sA, sB)
        e.S("s_add_u32", sA, sA, XB[0])
        for k in range(3):
            e.S("s_lshl_b32", sB, XM[k], 11)
            e.S("s_add_u32", sB, sB, sA)
            ops1.append(e.bstore(XJ[k], XD, WS, sB, 0, "sc1", cls=(1000, 70, 0)))
        xs = ACC[26:28]
        xz = ACC[24:26]
        MK = ACC[28:32]
        for r_ in (xs[0], xs[1], xz[0], xz[1]):
            e.V("v_mov_b32", r_, 0)
        for k in range(3):
            for i in range(4):
                e.V("v_dot2c_f32_bf16", xs[0], XJ[k][i], vOne)
                e.V("v_dot2c_f32_bf16", xs[1], XJ[k][i], XJ[k][i])
        for h in range(2):
            e.V("v_add_f32_dpp", xs[h], xs[h], xs[h], mods="row_ror:8 row_mask:0xf bank_mask:0xf")
            allreduce_g(e, xs[h], wT0)
        e.S("s_lshl_b32", sA, sR, 3)
        e.S("s_add_u32", sA, sA, sWave)
        e.S("s_lshl_b32", sA, sA, 10)
        e.S("s_lshl_b32", sB, sC, 6)
        e.S("s_add_u32", sA, sA, sB)
        e.S("s_add_u32", sA, sA, STB[0])
        e.S("s_add_u32", sB, sA, 4096)
        e.V("v_lshlrev_b32", wT0, 3, vLane)
        e.S("s_mov_b64", EXEC, "0xff")
        ops1.append(e.bstore(xs, wT0, WS, sA, 0, "sc1", cls=(1000, 20, 0)))
        ops1.append(e.bstore(xz, wT0, WS, sB, 0, "sc1", cls=(1000, 20, 0)))
        e.S("s_mov_b64", EXEC, -1)
        self.stamp("xst")
        e.S("s_cmp_lt_u32", sT, 5)
        e.S("s_cselect_b32", sE, 5, 3)
        e.S("s_cselect_b32", sA, 0, 100)
        e.S("s_add_u32", sA, sA, sT)
        e.S("s_mul_i32", sB, sC, NA)
        e.S("s_add_u32", sA, sA, sB)
        e.S("s_add_u32", sA, sA, WA // KB)
        e.S("s_lshl_b32", sA, sA, 10)
        e.S("s_lshl_b32", sE, sE, 10)
        e.S("s_mul_i32", sB, sP, sE)
        e.S("s_lshl_b32", sB, sB, 1)
        e.S("s_add_u32", sB, sB, sA)
        self.pack(RAW1[0:8])
        ops1.append(e.bstore(RAW1[0:4], vL16, WS, sB, 0, "sc1", cls=(1000, 70, 0)))
        e.S("s_add_u32", sB, sB, sE)
        self.pack(RAW1[8:16])
        ops1.append(e.bstore(RAW1[8:12], vL16, WS, sB, 0, "sc1", cls=(1000, 70, 0)))
        e.S("s_lshr_b32", sB, sP, 1)
        e.S("s_add_u32", sB, sB, 16)
        e.S("s_mul_i32", sB, sB, sE)
        e.S("s_add_u32", sB, sB, sA)
        e.S("s_and_b32", sD, sP, 1)
        e.S("s_lshl_b32", s(95), sD, 9)
        e.S("s_add_u32", sB, sB, s(95))
        e.V("v_lshlrev_b32", wT0, 8, vG)
        e.V("v_and_b32", wT0, 256, wT0)
        e.V("v_lshl_add_u32", wT0, vN, 4, wT0)
        e.V("v_lshrrev_b32", wT1, 1, vG)
        e.V("v_lshl_add_u32", wLd, wT1, 3, wT0)
        self.pack(RAW1[16:20], 2)
        ops1.append(e.bstore(RAW1[16:18], wLd, WS, sB, 0, "sc1", cls=(1000, 40, 0)))
        self.colsum([RAW1[i] for i in (0, 1, 2, 3, 8, 9, 10, 11, 16, 17)], EX, wSum, wT0)
        e.S("s_mul_i32", sB, sE, 20)
        e.S("s_add_u32", sB, sB, sA)
        e.S("s_lshr_b32", sA, sP, 1)
        e.S("s_lshl_b32", sA, sA, 8)
        e.S("s_add_u32", sB, sB, sA)
        e.S("s_lshl_b32", sD, sD, 3)
        e.S("s_add_u32", sB, sB, sD)
        e.S("s_mov_b64", EXEC, "0xffff")
        ops1.append(e.bstore(EX[0:2], vL16, WS, sB, 0, "sc1", cls=(1000, 20, 0)))
        e.S("s_mov_b64", EXEC, -1)
        self.stamp("r1")
        if self.opt.get("r2touch", 3) == 2:
            r2touch()
        for i in range(4):
            e.V("v_mov_b32", MK[i], -1)
        e.S("s_lshl_b32", sA, sC, 4)
        e.S("s_add_u32", sA, sA, sR)
        e.S("s_mul_i32", sA, sA, KVSZ)
        e.S("s_mul_i32", sB, sWave, KVSZ // 4)
        e.S("s_add_u32", sA, sA, sB)
        e.S("s_add_u32", sA, sA, KVB[0])
        e.S("s_mov_b64", EXEC, "0xfffffff")
        ops1.append(e.bstore(MK, vL16, WS, sA, 0, "sc1", cls=(1000, 40, 0)))
        e.S("s_mov_b64", EXEC, -1)
        sP = sP2
        self.ops2 = []

        vs, vt, MK = TMP[48], TMP[49], TMP[40:44]
        EV = ACC[40:56]

        def r2_pack():
            for b in range(4):
                raw = RAW2[8 * b:8 * b + 8]
                for i in range(4):
                    e.V("v_perm_b32", EV[4 * b + i], raw[2 * i + 1], raw[2 * i], vSel0)
                for i in range(4):
                    e.V("v_perm_b32", raw[i], raw[2 * i + 1], raw[2 * i], vSel1)
            for i in range(4):
                e.V("v_mov_b32", MK[i], -1)
            e.V("v_cmp_eq_u32", sNan, 0, vG)
            for h in range(2):
                ex = TMP[44 + 2 * h:46 + 2 * h]
                self.colsum([EV[i] for i in range(16)] if h == 0 else [RAW2[8 * b + i] for b in range(4) for i in range(4)], ex, vs, vt)
                e.V("v_perm_b32", vt, vBias, vBias, vSel0 if h == 0 else vSel1)
                e.V("v_and_b32", vt, "0xffff0000", vt)
                e.V("v_or_b32", ex[1], ex[1], vt)
                e.V("v_cndmask_b32", ex[0], 0, ex[0], sNan)
                e.V("v_cndmask_b32", ex[1], 0, ex[1], sNan)
            e.V("v_mov_b32", vSel0, vLd)
            yield

        def r2_stores():
            for b in range(4):
                self.ops2.append(e.bstore(EV[4 * b:4 * b + 4], vSt2, WS, D2[b], 0, self.opt.get("r2mod", "sc1"), cls=(1000, 70, 0)))
                e.S("s_add_u32", sA, D2[b], sDB)
                self.ops2.append(e.bstore(RAW2[8 * b:8 * b + 4], vSt2, WS, sA, 0, self.opt.get("r2mod", "sc1"), cls=(1000, 70, 0)))
            e.S("s_mov_b64", EXEC, "0xfffffff")
            self.ops2.append(e.bstore(MK, vL16, WS, s(79), 0, "sc1", cls=(1000, 40, 0)))
            e.S("s_mov_b64", EXEC, -1)
            for h in range(2):
                if h:
                    e.S("s_add_u32", sDX, sDX, sDB)
                self.ops2.append(e.bstore(TMP[44 + 2 * h:46 + 2 * h], vSel0, WS, sDX, 0, "sc1", cls=(1000, 20, 0)))
        self.r2_stores = r2_stores
        self.r2_pack = r2_pack()
        npre = self.opt.get("r2pre", 50)
        for _ in self.r2_loads:
            npre -= 1
            if npre <= 0:
                break
        if self.opt.get("l2first", 0):
            for _ in self.r2_pack:
                pass
        self.stamp("iss2")
        e.wait_ops(ops1)
        e.barrier()
        self.flag("both", 1, ACC[34], ACC[35])
        self.stamp("w1flag")
        for _ in self.r2_loads:
            pass
        for _ in self.r2_pack:
            pass
        self.al0 = None
        if self.opt.get("early_a", 0):
            self.poll("row", 1)
            e.barrier()
        if self.opt.get("r2st", 2) == 2:
            r2_stores()
            self.late_loads()
        self.stamp("r2")
        if self.opt.get("early_a", 0):
            self.stats_loads(0)
            self.al0 = self.ALoad(self, vAx, (sXr, XB[0]), 20)
            self.al0.upto(19)
        self.poll("col" if self.al0 else "both", 1)
        e.barrier()
        self.stamp("w1go")

    def w2_gen(self):
        e = self.e
        t = RES[0]
        e.V("v_bfe_u32", t, vLane, 4, 1); yield
        e.V("v_lshl_add_u32", t, t, 11, vFl); yield
        e.S("s_lshl_b32", s(4), sCG, 8); yield
        e.S("s_add_u32", s(4), s(4), FLG_C); yield
        e.bload(RES[1], t, WS, s(4), 0, "sc1", cls=(900, 10, 0)); yield
        for _ in range(self.opt.get("w2wait", 50)):
            yield "idle"
        e.S("s_add_u32", s(5), sBase, 2); yield
        lok, lre = e.newlabel("w2ok"), e.newlabel("w2retry")
        e.V("v_cmp_ne_u32", VCC, s(5), RES[1])
        e.S("s_cmp_eq_u64", VCC, 0)
        e.branch("s_cbranch_scc1", lok)
        e.cond_begin()
        e.S("s_mov_b32", sCnt, 0)
        e.label(lre)
        e.misc("s_sleep 4")
        e.bload(RES[1], t, WS, s(4), 0, "sc1")
        e.V("v_cmp_ne_u32", VCC, s(5), RES[1])
        e.S("s_cmp_eq_u64", VCC, 0)
        e.branch("s_cbranch_scc1", lok)
        e.S("s_add_u32", sCnt, sCnt, 1)
        e.S("s_cmp_lt_u32", sCnt, 0x20000)
        e.branch("s_cbranch_scc1", lre)
        e.cond_end()
        e.label(lok)
        self.gate = 1 << 20
        yield

    def prologue2(self):
        e = self.e
        T0, T1, T2, T3, T4, T5 = [TMP[40 + i] for i in range(6)]
        mk_srd(e, OUT, pOut, XSZ)
        e.S("s_and_b32", sKH, sWave, 1)
        e.S("s_lshl_b32", sW2048, sWave, 11)
        e.S("s_mul_i32", sA, sC, NA * KB)
        e.S("s_add_u32", sSeg["A"], sA, WA)
        e.S("s_mul_i32", sA, sCG, NO * KB)
        e.S("s_add_u32", sSeg["O"], sA, WO)
        e.S("s_mul_i32", sA, sC, NB * KB)
        e.S("s_add_u32", sSeg["B"], sA, WB)
        e.S("s_mul_i32", sA, sCG, NC * KB)
        e.S("s_add_u32", sSeg["C"], sA, WC)
        e.V("v_add_u32", vDma, sW2048, vL16)
        e.S("s_mul_i32", sXr, sR, 160 * KB)
        e.S("s_mul_i32", sHr, sR, 432 * KB)
        e.S("s_lshl_b32", sSTr, sR, 13)
        e.S("s_mul_i32", sA, sWave, 40 * KB)
        e.V("v_add_u32", vAx[0], sA, vL16)
        e.V("v_add_u32", vAx[1], 20 * KB, vAx[0])
        e.V("v_lshlrev_b32", T0, 11, vG)
        e.V("v_lshl_add_u32", T0, vN, 3, T0)
        e.S("s_lshl_b32", sA, sWave, 8)
        e.V("v_add_u32", vSt, sA, T0)
        e.S("s_mov_b32", self.cInvD, lit(1.0 / D))
        for j in range(3):
            if j == 0:
                e.V("v_mov_b32", vW[0], vL16)
            else:
                e.V("v_add_u32", vW[j], j * 65536, vL16)
        e.S("s_lshl_b32", sA, sKH, 10)
        for j in range(3):
            e.V("v_add_u32", vK[j], sA, vW[j])
        e.V("v_lshlrev_b32", T4, 4, v(0))
        Z = TMP[44:48]
        Z = TMP[48:52]
        for j in range(4):
            e.V("v_mov_b32", Z[j], 0)
        e.ds_write(T4, Z, 0)
        e.ds_write(T4, Z, 4096)
        e.S("s_lshl_b32", sTT, sRH, 2)
        e.S("s_add_u32", sTT, sTT, sWave)
        e.S("s_xor_b32", sB, sTT, 1)
        for u, st in ((0, sTT), (1, sB)):
            e.S("s_mul_i32", sA, st, 20 * KB)
            e.S("s_mul_i32", sD, sKH, 10 * KB)
            e.S("s_add_u32", sA, sA, sD)
            e.V("v_add_u32", vAo[u], sA, vL16)
            e.S("s_mul_i32", sA, st, 54 * KB)
            e.S("s_mul_i32", sD, sKH, 27 * KB)
            e.S("s_add_u32", sA, sA, sD)
            e.V("v_add_u32", vAh[u], sA, vL16)
        e.V("v_lshrrev_b32", T0, 1, vG)
        e.V("v_and_b32", T1, 1, vG)
        e.V("v_lshlrev_b32", T2, 4, vN)
        e.V("v_lshl_add_u32", T3, T0, 8, T2)
        e.V("v_lshl_add_u32", T3, T1, 3, T3)
        e.S("s_mul_i32", sA, sTT, 20 * KB)
        e.V("v_add_u32", vXs, sA, vL16)
        e.V("v_add_u32", vXh, sA, T3)
        e.S("s_mul_i32", sA, sWave, 108 * KB)
        e.V("v_add_u32", vHs, sA, vL16)
        e.S("s_cmp_ge_u32", sC, 12)
        e.S("s_cselect_b32", sA, BIG, sA)
        e.V("v_add_u32", vHh, sA, T3)
        e.S("s_mul_i32", sA, sWave, 40 * KB)
        e.V("v_lshl_add_u32", T3, vG, 3, T2)
        e.V("v_add_u32", vOh, sA, T3)
        e.V("v_cmp_gt_u32", VCC, 2, vG)
        e.V("v_mov_b32", T3, BIG)
        e.V("v_cndmask_b32", vOh, T3, vOh, VCC)
        e.S("s_lshl_b32", sA, sTT, 7)
        e.V("v_lshl_add_u32", T3, vN, 3, sA)
        e.V("v_lshl_add_u32", vStW, T0, 2, T3)
        e.S("s_lshl_b32", sA, sWave, 7)
        e.S("s_add_u32", sA, sA, RST)
        e.V("v_lshl_add_u32", vRT, vG, 4, sA)
        e.V("v_lshl_add_u32", vRW, vN, 2, sA)
        e.S("s_lshl_b32", sA, sTT, 6)
        e.S("s_add_u32", sA, sA, RST)
        e.V("v_lshl_add_u32", vRF, vN, 2, sA)
        e.V("v_lshlrev_b32", T3, 4, vG)
        e.V("v_add_u32", vZ2, ZT + 128, T3)
        e.V("v_cmp_gt_u32", VCC, 10, vN)
        e.V("v_add_u32", T3, ZT, T3)
        e.V("v_cndmask_b32", vZ01, vZ2, T3, VCC)
        e.S("s_lshl_b32", sA, sR, 3)
        e.S("s_add_u32", sA, sA, sTT)
        e.S("s_mul_i32", sA, sA, 16 * 1280)
        e.S("s_mul_i32", sB, sCG, 160)
        e.S("s_add_u32", sA, sA, sB)
        e.V("v_mul_u32_u24", T3, 1280, vN)
        e.V("v_add_u32", T3, sA, T3)
        e.V("v_lshl_add_u32", vOut, vG, 4, T3)
        e.V("v_lshl_add_u32", vOut4, vG, 3, T3)
        e.S("s_mul_i32", sA, sWave, 5120)
        e.V("v_add_u32", vXch, sA, vL16)
        e.V("v_lshlrev_b32", vFl, 2, vN)
        e.V("v_and_b32", v(38), 7, vLane)
        e.S("s_lshl_b32", sA, sCG, 3)
        e.V("v_add_lshl_u32", v(38), v(38), sA, 7)
        e.V("v_mov_b32", vLn2[0], lit(LN2))
        e.V("v_mov_b32", vEps[0], lit(1e-6))
        e.S("s_mov_b32", sMaskV[0], "0x00ff00ff")
        e.S("s_mov_b32", sMaskV[1], "0x00ff00ff")
        e.S("s_lshl_b32", sA, sR, 8)
        e.S("s_add_u32", sFRL, sA, FLG_RL)
        e.S("s_add_u32", sFRG, sA, FLG_RG)
        e.S("s_lshl_b32", sA, sC, 8)
        e.S("s_add_u32", sFC, sA, FLG_C)
        e.S("s_lshl_b32", sA, sCG, 11)
        e.S("s_add_u32", sOx, sXr, sA)
        e.S("s_lshr_b32", sA, sCG, 1)
        e.S("s_lshl_b32", sA, sA, 10)
        e.S("s_and_b32", sB, sCG, 1)
        e.S("s_lshl_b32", sB, sB, 9)
        e.S("s_add_u32", sA, sA, sB)
        e.S("s_add_u32", sA, sA, 16 * KB)
        e.S("s_add_u32", sOxh, sXr, sA)
        e.S("s_lshl_b32", sA, sCG, 10)
        e.S("s_add_u32", sOst, sSTr, sA)
        e.S("s_lshl_b32", sA, sC, 10)
        e.S("s_add_u32", sOo, sXr, sA)
        e.S("s_lshl_b32", sA, sC, 8)
        e.S("s_add_u32", sA, sA, 16 * KB)
        e.S("s_add_u32", sOoh, sXr, sA)
        e.S("s_mul_i32", sA, sC, 3 * KB)
        e.S("s_add_u32", sOh, sHr, sA)
        e.S("s_lshl_b32", sA, sC, 9)
        e.S("s_add_u32", sA, sA, 48 * KB)
        e.S("s_add_u32", sOhh, sHr, sA)
        e.S("s_mul_i32", sKv, sC, 16 * KVSZ)
        e.misc(f"s_getreg_b32 {sX1}, hwreg(HW_REG_XCC_ID, 0, 4)")
        e.S("s_and_b32", sX1, sX1, 7)
        e.S("s_add_u32", sX1, sX1, 8)
        e.S("s_add_u32", sX1, sX1, sBase)
        e.S("s_mov_b32", sLocal, 0)
        U, Hh, Ee, Dq = T0, T1, T2, T3
        e.S("s_mov_b32", sA, 52429)
        e.V("v_mul_u32_u24", U, sA, v(0))
        e.V("v_lshrrev_b32", U, 18, U)
        e.V("v_mul_u32_u24", Dq, 5, U)
        e.V("v_sub_u32", Dq, v(0), Dq)
        e.V("v_cmp_le_u32", VCC, 21, U)
        e.V("v_cndmask_b32", Hh, 0, 1, VCC)
        e.V("v_mul_u32_u24", Ee, 21, Hh)
        e.V("v_sub_u32", Ee, U, Ee)
        A0, A1, A2, A3 = TMP[46], TMP[47], ACC[36], ACC[37]
        e.V("v_cmp_le_u32", s(100, 2), 16, Ee)
        e.V("v_cmp_eq_u32", s(88, 2), 4, Dq)
        e.V("v_cndmask_b32", A0, 0, 1, s(100, 2))
        e.V("v_lshl_add_u32", A0, Hh, 1, A0)
        e.V("v_add_u32", A1, 4, Hh)
        e.V("v_cndmask_b32", A1, A1, 6, s(100, 2))
        e.V("v_cndmask_b32", A0, A0, A1, s(88, 2))
        e.V("v_cndmask_b32", A1, Dq, Hh, s(88, 2))
        e.V("v_lshl_add_u32", A2, Hh, 2, Ee)
        e.V("v_subrev_u32", A2, 8, A2)
        e.V("v_cndmask_b32", A2, Ee, A2, s(100, 2))
        e.V("v_cmp_eq_u32", VCC, 20, Ee)
        e.V("v_cndmask_b32", A2, A2, 0, VCC)
        e.V("v_lshl_add_u32", A1, A1, 4, A2)
        e.V("v_lshlrev_b32", A1, 4, A1)
        e.V("v_lshl_add_u32", vKvSrc, A0, 10, A1)
        e.V("v_mul_u32_u24", A0, 5, Hh)
        e.V("v_add_u32", A0, A0, Dq)
        e.V("v_cmp_le_u32", s(88, 2), 8, A0)
        e.V("v_lshrrev_b32", A1, 1, A0)
        e.V("v_subrev_u32", A2, 8, A0)
        e.V("v_cndmask_b32", A1, A1, A2, s(88, 2))
        e.V("v_and_b32", A2, 1, A0)
        e.V("v_cndmask_b32", A2, A2, 0, s(88, 2))
        e.V("v_lshlrev_b32", A2, 3, A2)
        e.V("v_cndmask_b32", A0, 0, 1, s(88, 2))
        e.V("v_lshl_add_u32", A3, Hh, 1, A0)
        e.V("v_lshl_add_u32", A3, A3, 2, A1)
        e.V("v_lshl_add_u32", A3, A3, 4, A2)
        e.V("v_add_u32", A3, ZT, A3)
        e.V("v_mul_u32_u24", T4, 20, Hh)
        e.V("v_add_u32", T4, T4, Ee)
        e.V("v_cmp_le_u32", s(100, 2), 32, T4)
        e.V("v_and_b32", T5, 1, T4)
        e.V("v_cndmask_b32", T5, T5, 2, s(100, 2))
        e.V("v_lshl_add_u32", A0, T5, 1, A0)
        e.V("v_lshrrev_b32", T5, 1, T4)
        e.V("v_subrev_u32", T4, 32, T4)
        e.V("v_cndmask_b32", T4, T5, T4, s(100, 2))
        e.V("v_lshl_add_u32", T4, A1, 4, T4)
        e.V("v_lshl_add_u32", T4, T4, 4, A2)
        e.V("v_lshl_add_u32", T4, A0, 10, T4)
        e.V("v_cndmask_b32", T4, T4, A3, VCC)
        e.V("v_cmp_gt_u32", VCC, 210, v(0))
        e.V("v_mov_b32", T5, DUMMY)
        e.V("v_cndmask_b32", vKvDst, T5, T4, VCC)
        e.V("v_cndmask_b32", vKvSrc, 0, vKvSrc, VCC)
        e.V("v_lshlrev_b32", T4, 3, v(0))
        e.V("v_mov_b32", T5, BIG)
        e.V("v_cndmask_b32", vT16, T5, T4, VCC)
        e.V("v_and_b32", T4, -16, T4)
        e.V("v_and_b32", T0, 1, v(0))
        e.V("v_mul_u32_u24", T0, 8 * KVSZ, T0)
        e.V("v_add_u32", T4, T4, T0)
        e.V("v_cndmask_b32", vT16L, T5, T4, VCC)

    def late_loads(self):
        e = self.e
        T4, T5 = TMP[48], TMP[49]
        e.S("s_mul_i32", sB, sCG, 160)
        e.bload(RES[10:14], vOut, XIN, 0, 0)
        e.bload(RES[14:18], vOut, XIN, 0, 64)
        e.bload(RES[18:20], vOut4, XIN, 0, 128)
        skip = e.newlabel("noxid")
        e.S("s_cmp_lg_u32", sWave, 3)
        e.branch("s_cbranch_scc1", skip)
        e.cond_begin()
        e.S("s_lshl_b32", sA, sR, 8)
        e.S("s_add_u32", sA, sA, FLG_X)
        e.S("s_lshl_b32", sB, sC, 2)
        e.V("v_mov_b32", T4, sB)
        e.V("v_mov_b32", T5, sX1)
        e.S("s_mov_b64", EXEC, 1)
        e.bstore(T5, T4, WS, sA, 0, "sc1")
        e.S("s_mov_b64", EXEC, -1)
        e.cond_end()
        e.label(skip)

    def unpack(self, dst, pk):
        e = self.e
        for a_ in range(2):
            for j in range(4):
                e.V("v_lshlrev_b32", dst[8 * a_ + j], 16, pk[4 * a_ + j])
                e.V("v_and_b32", dst[8 * a_ + 4 + j], "0xffff0000", pk[4 * a_ + j])
        for j in range(2):
            e.V("v_lshlrev_b32", dst[16 + 2 * j], 16, pk[8 + j])
            e.V("v_and_b32", dst[16 + 2 * j + 1], "0xffff0000", pk[8 + j])

    class ALoad:
        def __init__(self, m, vaddr, terms, nks):
            self.m, self.vaddr, self.terms, self.nks = m, vaddr, terms, nks
            self.n = 0
            self.based = -1
            self.done = False
            self.win = 20

        def step(self):
            e = self.m.e
            ks, u = divmod(self.n, 2)
            if ks // 4 != self.based:
                self.based = ks // 4
                e.S("s_add_u32", sLd, self.terms[0], self.terms[1] + (ks // 4) * 4 * KB)
                return False
            e.bload(a((self.n % 40) * 4, 4), self.vaddr[u], WS, sLd, (ks % 4) * KB, self.m.opt.get("amod", "sc1"), cls=(self.m.opt.get("latA", 600), 76, 33 if self.nks == 27 else 16))
            self.n += 1
            self.done = self.n >= 2 * self.nks
            return True

        def upto(self, ks):
            while self.n < 2 * min(ks + 1, self.nks):
                self.step()

    def stats_loads(self, ver):
        e = self.e
        e.S("s_add_u32", sA, sSTr, STB[ver])
        for u in range(2):
            for k in range(2):
                e.bload(TMP[4 * u + 2 * k:4 * u + 2 * k + 2], vSt, WS, sA, k * 1024 + u * 128, "sc1", cls=(600, 20, 0))

    def stats_gen(self, need_T, have=False):
        e = self.e
        for u in range(2):
            sm, sq, t0, t1 = TMP[4 * u], TMP[4 * u + 1], TMP[4 * u + 2], TMP[4 * u + 3]
            if not have:
                e.V("v_add_f32", sm, sm, t0); yield
                e.V("v_add_f32", sq, sq, t1); yield
            for op in () if have else ("v_permlane32_swap_b32", "v_permlane16_swap_b32"):
                e.V("v_mov_b32", t0, sm); yield
                e.V("v_mov_b32", t1, sq); yield
                e.V(op, sm, t0); yield
                e.V(op, sq, t1); yield
                e.V("v_add_f32", sm, sm, t0); yield
                e.V("v_add_f32", sq, sq, t1); yield
            e.V("v_mul_f32", sm, lit(1.0 / D), sm); yield
            e.V("v_mul_f32", t0, sm, sm); yield
            e.V("v_fma_f32", sq, sq, self.cInvD, Neg(t0)); yield
            e.V("v_max_f32", sq, 0, sq); yield
            e.V("v_add_f32", sq, lit(1e-5), sq); yield
            e.V("v_rsq_f32", t0, sq); yield
            e.V("v_cvt_pk_bf16_f32", XE[u][0], sm, sm); yield
            e.V("v_mul_f32", sq, sq, t0); yield
            e.ds_write(vRW, t0, 64 * u); yield
            c2 = vC2 if u == 0 else vC2b
            e.V("v_mul_f32", c2[0], lit(LOG2E), t0); yield
            e.V("v_lshlrev_b32", t1, 16, XE[u][0]); yield
            e.V("v_sub_f32", sm, sm, t1); yield
            e.V("v_cvt_pk_bf16_f32", XE[u][1], sm, sq); yield
            e.V("v_and_b32", t1, "0xffff0000", XE[u][1]); yield
            e.V("v_sub_f32", t1, sq, t1); yield
            e.V("v_cvt_pk_bf16_f32", XE[u][3], sm, t1); yield
            e.V("v_mov_b32", XE[u][2], XE[u][0]); yield
        if need_T:
            for u in range(2):
                e.ds_read(RT[4 * u:4 * u + 4], vRT, 64 * u); yield

    def phi_pair(self, src, c2, bcast, t):
        e = self.e
        m = "op_sel_hi:[1,0]" if bcast else ""
        e.V("v_pk_mul_f32", t[0:2], src, c2, mods=m)
        e.V("v_exp_f32_e64", t[2], t[0], mods="clamp")
        e.V("v_exp_f32_e64", t[3], t[1], mods="clamp")
        e.V("v_max_f32", t[0], 0, t[0])
        e.V("v_max_f32", t[1], 0, t[1])
        e.V("v_pk_add_f32", t[2:4], t[2:4], vEps, mods="op_sel_hi:[1,0]")
        e.V("v_pk_fma_f32", t[0:2], t[0:2], vLn2, t[2:4], mods="op_sel_hi:[1,0,1]")

    def scratch(self, nblk, endpos):
        st = endpos - nblk
        if (st % RB) + nblk > RB:
            st = endpos - (endpos % RB) - nblk
        self.last_scratch = (st, st + nblk)
        return st, self.ldsaddr(st)

    def bg_on(self, tail):
        e = self.e
        st = {"next": 0}
        t_end = e.T + tail
        self.deadline = lambda: t_end

        def f():
            if e.T >= st["next"] and self.dma_ok():
                n0 = len(e.vm) + len(e.lg) + len(self.deferred)
                while len(e.vm) + len(e.lg) + len(self.deferred) == n0:
                    next(self.dmaf)
                st["next"] = e.T + self.opt.get("vgap", 24)
        self.e.bg = f

    def code_touch(self, ahead=None):
        e = self.e
        if not self.opt.get("ctouch", 1):
            return
        lab = e.newlabel("here")
        e.label(lab)
        ahead = self.opt.get("cahead", 2048) if ahead is None else ahead
        if self.opt.get("cshare", 1):
            e.V("v_add_u32", v(51), f"{lab}-{self.kname}+{ahead}", v(38))
        else:
            e.V("v_lshlrev_b32", v(51), 5, v(0))
            e.V("v_add_u32", v(51), f"{lab}-{self.kname}+{ahead}", v(51))
        e.V("v_min_u32", v(51), self.opt.get("code_bytes", 32768) - 4, v(51))
        e.misc(f"global_load_dword {vDum}, {v(51)}, s[96:97]")
        e._vm([], (800, 30, 10))

    def at_block(self, t, gen):
        i0 = self.cons
        while self.cons < i0 + t:
            yield "idle"
        yield from gen

    def delay(self, n, gen):
        for _ in range(n):
            yield "idle"
        yield from gen

    def code_touch_gen(self):
        self.code_touch(self.opt.get("cahead", 1024))
        yield

    def bg_off(self):
        self.e.bg = None

    def gstore(self, lst, cold=False):
        e = self.e
        mode = self.opt.get("mode", "dual")
        if cold and not self.opt.get("touchcold", 0):
            mode = "safe"
        if mode != "dual":
            return [e.bstore(d, vo, WS, so, off, "sc1" if mode == "safe" else "") for d, vo, so, off in lst]
        ls, le = e.newlabel("st_safe"), e.newlabel("st_end")
        regs = []
        for d, vo, so, off in lst:
            regs += d.regs() + vo.regs()
        e.wait_ops(e._pending(regs))
        e.S("s_cmp_eq_u32", sLocal, 0)
        need = e._need("vmem", regs, [])
        if need > 1:
            e.nop(need - 1)
        e.branch("s_cbranch_scc1", ls)
        n0 = len(e.lines)
        ops = [e.bstore(d, vo, WS, so, off, "") for d, vo, so, off in lst]
        body = e.lines[n0:]
        assert len(body) == len(lst), body
        e.raw(f"  s_branch {le}")
        e.label(ls)
        for l in body:
            e.raw(l + " sc1")
        e.label(le)
        return ops

    def touch_gen(self, lst, cold=False):
        e = self.e
        if (cold and not self.opt.get("touchcold", 0)) or not self.opt.get("touch", 0):
            return
        for vo, sb, add, off in lst:
            e.S("s_add_u32", sE, sb, add); yield
            e.touch(vDum, vo, WS, sE, off, cls=(750, 80, 30)); yield

    def local_gen(self):
        e = self.e
        e.S("s_lshl_b32", s(6), sR, 8); yield
        e.S("s_add_u32", s(6), s(6), FLG_X); yield
        e.bload(TMP[39], vFl, WS, s(6), 0, "sc1"); yield
        for _ in range(40):
            yield "idle"
        e.V("v_cmp_ne_u32", VCC, sX1, TMP[39]); yield
        e.S("s_cmp_eq_u64", VCC, 0)
        e.S("s_cselect_b32", sLocal, 1, 0); yield

    def poll(self, kind, val, allw=False):
        e = self.e
        skip = e.newlabel("nopoll")
        loop = e.newlabel("poll")
        if not allw:
            e.S("s_cmp_lg_u32", sWave, 0)
            e.branch("s_cbranch_scc1", skip)
        e.cond_begin()
        t = TMP[38]
        e.S("s_mov_b32", sCnt, 0)
        e.S("s_mov_b64", sOk, 0)
        e.S("s_add_u32", sB, sBase, val)
        va, vb, sa, sb = (vFl, vFl, sFRL, sFRG) if kind != "col" else (vFl, vFl, sFC, sFC)
        if kind == "both":
            va, vb, sa, sb = TMP[36], TMP[37], 0, 0
            e.V("v_cmp_gt_u32", VCC, 2, vG)
            e.V("v_mov_b32", va, sFC)
            e.V("v_mov_b32", vb, sFRL)
            e.V("v_cndmask_b32", va, vb, va, VCC)
            e.V("v_add_u32", va, va, vFl)
            e.V("v_mov_b32", vb, FLG_RG - FLG_RL)
            e.V("v_cndmask_b32", vb, vb, 0, VCC)
            e.V("v_add_u32", vb, va, vb)
        if kind == "row":
            e.S("s_cmp_eq_u32", sLocal, 0)
            e.S("s_cselect_b32", sD, 3, -1)
        else:
            e.S("s_mov_b32", sD, 3)
        e.label(loop)

        def chk():
            e.misc("s_waitcnt vmcnt(0)")
            e.misc(f"v_subrev_u32 {t}, {sB}, {t}")
            e.misc(f"v_cmp_ge_u32 vcc, 1, {t}")
            e.misc(f"s_or_b64 {sOk}, {sOk}, vcc")
            e.misc(f"s_cmp_eq_u64 {sOk}, -1")
            e.misc(f"s_cbranch_scc1 {skip}")
        e.misc(f"buffer_load_dword {t}, {va}, {WS}, {sa} offen sc1")
        e.misc("s_add_u32 %s, %s, 1" % (sCnt, sCnt))
        chk()
        if kind != "row":
            e.misc("s_sleep 3")
        lnext = e.newlabel("pollnext")
        e.misc(f"s_and_b32 {sA}, {sCnt}, {sD}")
        e.misc(f"s_cbranch_scc1 {lnext}")
        e.misc(f"buffer_load_dword {t}, {vb}, {WS}, {sb} offen sc1")
        chk()
        e.label(lnext)
        e.misc(f"s_cmp_lt_u32 {sCnt}, 0x80000")
        e.misc(f"s_cbranch_scc1 {loop}")
        e.cond_end()
        e.label(skip)

    def flag(self, kind, val, t0=TMP[37], t1=TMP[38]):
        e = self.e
        lst = [(1, sFRG, "sc1", sC), (2, sFRL, "", sC)] if kind != "col" else []
        if kind != "row":
            lst.append((3, sFC, "sc1", sR))
        for w, sb, m, sidx in lst:
            skip = e.newlabel("noflag")
            if w == 1 and self.opt.get("skipg", 1):
                e.S("s_lshl_b32", sA, sLocal, 2)
                e.S("s_add_u32", sA, sA, sWave)
                e.S("s_cmp_lg_u32", sA, w)
            else:
                e.S("s_cmp_lg_u32", sWave, w)
            e.branch("s_cbranch_scc1", skip)
            e.cond_begin()
            e.S("s_lshl_b32", sA, sidx, 2)
            e.V("v_mov_b32", t0, sA)
            e.S("s_add_u32", sA, sBase, val)
            e.V("v_mov_b32", t1, sA)
            e.S("s_mov_b64", EXEC, 1)
            e.bstore(t1, t0, WS, sb, 0, m)
            e.S("s_mov_b64", EXEC, -1)
            e.cond_end()
            e.label(skip)

    def handoff(self, val, ops, shadow=None, touch=()):
        e = self.e
        t_st = e.T
        hk = (val - 2) % 4
        pick = lambda name, d: self.opt[name + "s"][hk] if name + "s" in self.opt else self.opt.get(name, d)
        self.deadline = lambda: t_st + pick("topup", 2600)
        self.own_end = 0
        while self.dma_ok():
            next(self.dmaf)
        while self.stage_step():
            pass
        self.finish_stage()
        self.restore(self.opt.get("rest1", 2))
        e.wait_all_lg()
        self.ring_barrier(self.cons + FI + self.opt.get("ahead", 16), ops)
        self.hold = None
        self.flag("row", val)
        self.stamp("flag")
        t_flag = e.T
        if self.opt.get("post_touch", 0):
            for k, (vo, sb, add, off) in enumerate(touch):
                sr = sE if k % 2 else sD
                e.S("s_add_u32", sr, sb, add)
                e.touch(vDum, vo, WS, sr, off, "sc1", cls=(750, 66, 30))
        self.deadline = lambda: t_flag + pick("topup2", 1500)
        while self.dma_ok():
            next(self.dmaf)
        while self.stage_step():
            pass
        self.finish_stage()
        self.warn.append(f"staged {len(self.staged)}")
        self.stage_plan = []
        self.prime()
        self.restore(self.opt.get("rest2", 8) if hk == 3 else 99)
        self.restg = self.restore_gen(99)
        if shadow:
            shadow()
        self.poll("row", val, self.opt.get("allpoll", 0))
        e.T = max(e.T, t_flag + 1000)
        if not self.opt.get("allpoll", 0):
            e.barrier()
        self.stamp("go")

    def phaseA(self, p):
        e = self.e
        opt = self.opt
        xv = 2 * p
        acc = lambda T, u: ACC[(T * 2 + u) * 4:(T * 2 + u) * 4 + 4]
        xf = lambda ks, u: a((ks * 2 + u) * 4, 4) if ks < 20 else XE[u]
        if p == 0:
            e.S("s_mov_b32", sSel[0], "0x00003f80")
            e.S("s_mov_b32", sSel[1], "0x3f800000")
            e.S("s_mov_b32", sOdd[0], "0xaaaaaaaa")
            e.S("s_mov_b32", sOdd[1], "0xaaaaaaaa")
            e.S("s_getpc_b64", s(96, 2))
            e.label("main_pc2")
            e.S("s_sub_u32", s(96), s(96), "main_pc2-" + self.kname)
            e.S("s_subb_u32", s(97), s(97), 0)
            for _ in range(opt.get("first_groups", 5)):
                for _ in self.dma_group():
                    pass
        if p == 0 and self.al0:
            al = None
            for _ in self.stats_gen(True):
                pass
            fl0 = [iter(())]
        else:
            al = self.ALoad(self, vAx, (sXr, XB[xv]), 20)
            al.upto(opt.get("adist", 4) - 1)
            self.stats_loads(xv)
            fl0 = [self.delay(opt.get("stdelay", 24), self.stats_gen(True))]
        sc_keep = self.last_scratch
        if p:
            fl0.append(self.restg)
        if p == 0:
            if opt.get("r2st", 2) == 0:
                self.r2_stores()
                self.late_loads()
            e.wait_all_lg()
            if opt.get("r2st", 2) == 2:
                self.ring_barrier(FI + 8, self.ops2)
                self.flag("col", 2)
                fl0.append(self.at_block(opt.get("w2at", 60), self.w2_gen()))
            else:
                self.ring_barrier(FI + 8)
            self.prime()
            self.stamp("start")
            if opt.get("keep", 12):
                self.capg = self.capture_gen(opt.get("keep0", 3), opt.get("keep", 12))
                next(self.capg)
                fl0.append(self.capg)
        st1 = {}

        def hook1(t):
            if t >= opt.get("w2flag_at", 30) and not st1.get("done"):
                st1["done"] = t
                return self.ops2, (lambda: self.flag("col", 2))
            return [], None

        def add1(t):
            if st1.get("done") and t >= opt.get("w2chk_at", 70) and not st1.get("chk"):
                st1["chk"] = True
                return self.w2_gen()
        i0 = self.seqstart[("A1", p)]
        fb = 102
        sst, sad = self.scratch(28, self.seq[i0 + fb][0])
        self.last_scratch = sc_keep
        self.hold = sst

        C2T = ACC[40:48]

        def pre_gen(first):
            while first.gi_frame is not None:
                yield "idle"
            e.S("s_mul_i32", s(7), sWave, 7168); yield
            e.S("s_add_u32", s(7), s(7), sad); yield
            e.V("v_add_u32", TMP[24], s(7), vL16); yield
            e.V("v_add_u32", TMP[25], sad, vKvSrc); yield
            e.S("s_mul_i32", s(7), sR, KVSZ); yield
            e.S("s_add_u32", s(7), s(7), sKv); yield
            e.S("s_add_u32", s(7), s(7), KVB[p]); yield
            for _ in range(8):
                yield "idle"
            for j in range(8):
                e.V("v_mul_f32", C2T[j], lit(LOG2E), RT[j]); yield
        fl0.append(pre_gen(fl0[0]))

        def must_gen():
            yield from fl0[0]
            yield from fl0[-1]
            while self.capg and self.cap_next < sst + 28:
                next(self.capg)
                yield

        def mf(t, W, u):
            ks, T = divmod(t, 5)
            e.mfma(acc(T, u), xf(ks, u), W, acc(T, u) if ks else 0)
        self.run_pass(105, mf, 5, xf, fl0, must=must_gen(), chunk=(opt.get("chunkA0", 12) if p == 0 else opt.get("chunkA", 24)), stop_reads=self.seqstart[("A4", p)], aload=al,
                      force_bar=fb, tail=6000, mix=opt.get("mixA", 0) if p else 0,
                      late=(60, self.touch_gen([(vAx[0], sOo, OB[p], 0), (vAx[1], sOo, OB[p], 0), (vOh, sOoh, OB[p], 0), (vOh, sOoh, OB[p] + 20 * KB, 0)], p == 0)), hooks={"bar": hook1, "add": add1} if (p == 0 and opt.get("r2st", 2) == 0) else None)
        if p == 0 and opt.get("r2st", 2) == 1:
            self.dma_all()
            self.r2_stores()
            self.late_loads()
        assert sst + 28 <= self.freed and sst + 28 <= self.cap_hold, (sst, self.cap_hold)
        self.stamp("A1")
        self.bg_on(5000)
        KF = [TMP[8:12], TMP[12:16], TMP[16:20]]
        VF = {3: TMP[20:24], 4: ACC[56:60], 2: ACC[60:64]}
        tt = [ACC[48:52], ACC[52:56]]
        TA0, TA1 = TMP[24], TMP[25]
        n = 0
        for T in range(3):
            for u in range(2):
                for h in range(2):
                    t = tt[n % 2]
                    n += 1
                    self.phi_pair(acc(T, u)[2 * h:2 * h + 2], C2T[4 * u + 2 * h:4 * u + 2 * h + 2], False, t)
                    e.V("v_cvt_pk_bf16_f32", KF[T][2 * u + h], t[0], t[1])
        for T in (3, 4, 2):
            for u in range(2):
                for h in range(2):
                    x = acc(T, u)[2 * h:2 * h + 2]
                    e.V("v_pk_mul_f32", x, x, RT[4 * u + 2 * h:4 * u + 2 * h + 2])
            for u in range(2):
                for h in range(2):
                    x = acc(T, u)[2 * h:2 * h + 2]
                    e.V("v_cvt_pk_bf16_f32", VF[T][2 * u + h], x[0], x[1])
        for j in range(4):
            e.V("v_cndmask_b32", VF[2][j], VF[2][j], vOne, sMaskV)
        PR = [ACC[4 * i:4 * i + 4] for i in range(7)]
        prods = [(0, 3), (0, 2), (1, 4), (1, 2), (2, 3), (2, 4), (2, 2)]
        for i, (kt, vt) in enumerate(prods):
            e.mfma(PR[i], KF[kt], VF[vt], 0)
        for i in range(7):
            e.ds_write(TA0, PR[i], i * 1024)
        e.wait_all_lg()
        e.barrier()
        RD = [ACC[4 * w:4 * w + 4] for w in range(4)]
        for w in range(4):
            e.ds_read(RD[w], TA1, w * 7168)
        for h in range(2):
            e.V("v_pk_add_f32", RD[0][2 * h:2 * h + 2], RD[0][2 * h:2 * h + 2], RD[1][2 * h:2 * h + 2])
            e.V("v_pk_add_f32", RD[2][2 * h:2 * h + 2], RD[2][2 * h:2 * h + 2], RD[3][2 * h:2 * h + 2])
        for h in range(2):
            e.V("v_pk_add_f32", RD[0][2 * h:2 * h + 2], RD[0][2 * h:2 * h + 2], RD[2][2 * h:2 * h + 2])
        e.V("v_cvt_pk_bf16_f32", RD[1][0], RD[0][0], RD[0][1])
        e.V("v_cvt_pk_bf16_f32", RD[1][1], RD[0][2], RD[0][3])
        kvst = e.bstore(RD[1][0:2], vT16, WS, s(7), 0, "sc1")
        self.bg_off()
        self.stamp("kvpub")
        PL = [ACC[4 * i:4 * i + 4] for i in range(10)]

        st2 = {}

        def barhook(t):
            def rel():
                self.hold = None

            def relflag():
                self.hold = None
                self.flag("col", 2)
            if p == 0 and opt.get("r2st", 2) == 1 and not st2.get("done") and t >= opt.get("w2flag2_at", 12):
                st2["done"] = True
                return self.ops2, relflag
            return [], rel

        def kvloads():
            for i in range(8):
                if i % 2 == 0:
                    e.S("s_add_u32", sB, sKv, KVB[p] + i * KVSZ); yield
                e.bload(PL[i], vT16L, WS, sB, (i % 2) * KVSZ, "sc1", cls=(opt.get('kvlat', 800), 80, opt.get('kvsvc', 130))); yield

        def kvsum():
            SM = PL[8:10]
            for i in range(8):
                for d in range(4):
                    for h in range(2):
                        x = SM[d >> 1][2 * (d & 1) + h]
                        if i == 0:
                            e.V("v_dot2_f32_bf16", x, PL[i][d], sSel[h], 0)
                        else:
                            e.V("v_dot2c_f32_bf16", x, sSel[h], PL[i][d])
            for d in range(8):
                x = SM[d >> 2][d & 3]
                e.V("v_add_f32_dpp", x, x, x, mods="quad_perm:[1,0,3,2] row_mask:0xf bank_mask:0xf")
            for d in range(4):
                e.V("v_cndmask_b32", PL[0][d], SM[0][d], SM[1][d], sOdd)
            e.V("v_cmp_u_f32", VCC, PL[0][0], PL[0][1])
            e.V("v_cmp_u_f32", sNan, PL[0][2], PL[0][3])
            e.S("s_or_b64", VCC, VCC, sNan)

        def mfq(t, W, u):
            ks, T = divmod(t, 3)
            e.mfma(acc(5 + T, u), W, xf(ks, u), acc(5 + T, u) if ks else 0)
        self.lastbar = self.rd - 8
        fl = []
        if p == 0:
            fl = [self.local_gen()] + ([self.capg] if self.capg else [])
        self.run_pass(63, mfq, 3, xf, fl, stop_reads=self.seqstart[("A4", p)], hooks={"bar": barhook},
                      late=(opt.get("kvload_at", 40), kvloads()), see_all=True, force_bar=61, tail=1600 + self.opt.get("slack", 2400))
        if self.capg:
            n_ = 0
            for _ in self.capg:
                n_ += 1
                assert n_ < 1000
            self.capg = None
        self.stamp("A2")
        if p == 0 and opt.get("r2st", 2) == 1:
            assert st2.get("done")
            w2 = self.w2_gen()
            while next(w2) != "idle":
                pass
        if opt.get("qbg", 1):
            self.bg_on(1600 + self.opt.get("slack", 2400))
        PQ0 = [TMP[0:4], TMP[4:8]]
        PQ1 = [TMP[8:12], TMP[12:16]]
        tq = [TMP[16:20], TMP[20:24]]
        for u in range(2):
            c2 = vC2 if u == 0 else vC2b
            for h in range(2):
                self.phi_pair(acc(5, u)[2 * h:2 * h + 2], c2, True, tq[0])
                self.phi_pair(acc(6, u)[2 * h:2 * h + 2], c2, True, tq[1])
                e.V("v_cvt_pk_bf16_f32", PQ0[u][2 * h], tq[0][0], tq[1][0])
                e.V("v_cvt_pk_bf16_f32", PQ0[u][2 * h + 1], tq[0][1], tq[1][1])
            for h in range(2):
                self.phi_pair(acc(7, u)[2 * h:2 * h + 2], c2, True, tq[h])
                e.V("v_cvt_pk_bf16_f32", PQ1[u][h], tq[h][0], tq[h][1])
            e.V("v_mov_b32", PQ1[u][2], 0)
            e.V("v_mov_b32", PQ1[u][3], 0)
        self.bg_off()
        self.stamp("qepi")
        kvsum()
        lok, lre = e.newlabel("kvok"), e.newlabel("kvretry")
        e.branch("s_cbranch_scc0", lok)
        e.cond_begin()
        e.S("s_mov_b32", sCnt, 0)
        e.label(lre)
        e.misc("s_sleep 4")
        for _ in kvloads():
            pass
        kvsum()
        e.branch("s_cbranch_scc0", lok)
        e.S("s_add_u32", sCnt, sCnt, 1)
        e.S("s_cmp_lt_u32", sCnt, 0x10000)
        e.branch("s_cbranch_scc1", lre)
        e.cond_end()
        e.label(lok)
        self.stamp("kvgo")
        if p == 0 and opt.get("r2st", 2) == 1:
            for _ in w2:
                pass

        self.bg_on(900 + self.opt.get("slack", 2400))
        e.V("v_cvt_pk_bf16_f32", TMP[16], PL[0][0], PL[0][1])
        e.V("v_cvt_pk_bf16_f32", TMP[17], PL[0][2], PL[0][3])
        e.ds_write(vKvDst, TMP[16:18])
        e.wait_all_lg()
        e.barrier()
        FR = [ACC[40 + 4 * i:44 + 4 * i] for i in range(6)] + [TMP[16 + 4 * i:20 + 4 * i] for i in range(4)]
        for T in range(3):
            for ks in range(2):
                e.ds_read(FR[T * 2 + ks], vL16, IMG + (T * 2 + ks) * KB)
        for ks in range(2):
            e.ds_read(FR[6 + ks], vZ01, ks * 64)
            e.ds_read(FR[8 + ks], vZ2, ks * 64)
        oa = lambda T, u: ACC[(T * 2 + u) * 4:(T * 2 + u) * 4 + 4]
        ops = []

        def norm(u, packed):
            den = (oa(3, u)[0], oa(3, u)[2], oa(4, u)[0])
            for x in den:
                e.V("v_add_f32", x, vEps[0], x); yield
            for x in den:
                e.V("v_rcp_f32", x, x); yield
            for T in range(3):
                for h in range(2):
                    x = oa(T, u)[2 * h:2 * h + 2]
                    dn = oa(3, u)[2 * h:2 * h + 2] if T < 2 else oa(4, u)[0:2]
                    if packed:
                        e.V("v_pk_mul_f32", x, x, dn, mods="op_sel_hi:[1,0]"); yield
                    else:
                        e.V("v_mul_f32", x[0], x[0], dn[0]); yield
                        e.V("v_mul_f32", x[1], x[1], dn[0]); yield
            o4 = TMP[8 * u:8 * u + 4] if False else RT[4 * u:4 * u + 4]
            o2 = XE[u][0:2]
            for j in range(4):
                e.V("v_cvt_pk_bf16_f32", o4[j], oa(0, u)[j], oa(1, u)[j]); yield
            for h in range(2):
                e.V("v_cvt_pk_bf16_f32", o2[h], oa(2, u)[2 * h], oa(2, u)[2 * h + 1]); yield
            ops.extend(self.gstore([(o4, vAx[u], sA, 0), (o2, vOh, sB if u == 0 else sD, 0)], p == 0 or opt.get("osafe")))
            yield
        bg, e.bg = e.bg, None
        order = [(T, k) for k in range(2) for T in (3, 4, 0, 1, 2)]
        for T, k in order:
            e.mfma(oa(T, 0), FR[2 * T + k], (PQ0, PQ1)[k][0], oa(T, 0) if k else 0)
        e.S("s_add_u32", sA, sOo, OB[p])
        e.S("s_add_u32", sB, sOoh, OB[p])
        g0 = norm(0, False)
        for n_, (T, k) in enumerate(order):
            e.mfma(oa(T, 1), FR[2 * T + k], (PQ0, PQ1)[k][1], oa(T, 1) if k else 0)
            if n_ == 0:
                e.S("s_add_u32", sD, sOoh, OB[p] + 20 * KB)
            elif n_ < 9:
                next(g0)
                if n_ not in (2, 3):
                    next(g0)
        e.bg = bg
        for _ in g0:
            pass
        for _ in norm(1, True):
            pass
        self.bg_off()
        self.stamp("A3")
        def shadow():
            e.S("s_mul_i32", sB, sCG, 160)
            e.V("v_lshl_add_u32", TMP[2], vG, 4, sB)
            e.V("v_lshl_add_u32", TMP[3], vG, 3, sB)
            e.bload(ACC[40:44], TMP[2], SB2, 0, 0, cls=(800, 20, 0))
            e.bload(ACC[44:48], TMP[2], SB2, 0, 64, cls=(800, 20, 0))
            e.bload(ACC[48:50], TMP[3], SB2, 0, 128, cls=(800, 20, 0))
            if p == 0:
                self.unpack(RES, RES[10:20])
        self.handoff(4 * p + 2, ops, shadow, [(vAx[0], sOo, OB[p], 0), (vAx[1], sOo, OB[p], 0), (vOh, sOoh, OB[p], 0), (vOh, sOoh, OB[p] + 20 * KB, 0)])

    def phase64(self, p, kind):
        e = self.e
        opt = self.opt
        nks = 10 if kind == "O" else 27
        name = "A4" if kind == "O" else "B2"
        acc = lambda T, u: ACC[(u * 5 + T) * 4:(u * 5 + T) * 4 + 4]
        if kind == "O":
            al = self.ALoad(self, vAo, (sXr, OB[p]), nks)
        else:
            al = self.ALoad(self, vAh, (sHr, HB[p]), nks)
        al.upto(opt.get("adist", 4) - 1)
        xf = lambda ks, u: a(((ks % 20) * 2 + u) * 4, 4)
        if kind == "C":
            e.ds_read(TMP[2], vRF)
        i0 = self.seqstart[(name, p)]
        fb = 5 * nks - 3
        sst, sad = self.scratch(20, self.seq[i0 + fb][0])
        self.hold = sst
        stop = i0 + 5 * nks

        def mf(t, W, u):
            ks, T = divmod(t, 5)
            u = 1 - u
            c0 = RES[4 * T:4 * T + 4] if (kind == "O" and u == 0) else 0
            e.mfma(acc(T, u), W, xf(ks, u), acc(T, u) if ks else c0)

        def addr_gen():
            e.V("v_add_u32", TMP[0], sad, vXch); yield
            e.S("s_xor_b32", sA, sWave, 1); yield
            e.S("s_mul_i32", sA, sA, 5120); yield
            e.S("s_add_u32", sA, sA, sad); yield
            e.V("v_add_u32", TMP[1], sA, vL16); yield
            if kind == "C":
                e.V("v_mul_f32", TMP[2], TMP[2], TMP[2]); yield
            if not last:
                e.S("s_add_u32", sA, sOx, XB[xv]); yield
                e.S("s_add_u32", sB, sOxh, XB[xv]); yield
                e.S("s_add_u32", sD, sOst, STB[xv]); yield
        last = kind == "C" and p == 1
        xv = 2 * p + (1 if kind == "O" else 2)
        tg = None if last else (0, self.touch_gen([(vXs, sOx, XB[xv], 0), (vXs, sOx, XB[xv], 1024), (vXh, sOxh, XB[xv], 0), (vStW, sOst, STB[xv], 0)]))
        fl = [self.delay(20, addr_gen())]
        self.run_pass(5 * nks, mf, 5, xf, fl, late=tg, force_bar=fb, chunk=(opt.get("chunkO", 12) if kind == "O" else opt.get("chunkC", 12)), stop_reads=stop, aload=al,
                      mix=opt.get("mixO", 0) if kind == "O" else 0, tail=900 + self.opt.get("slack", 2400))
        self.stamp(name)
        self.bg_on(900 + self.opt.get("slack", 2400))
        assert sst + 20 <= self.freed
        for T in range(5):
            e.ds_write(TMP[0], acc(T, 1), T * KB)
        e.wait_all_lg()
        e.barrier()
        PT = TMP[4:24]
        for T in range(5):
            e.ds_read(PT[4 * T:4 * T + 4], TMP[1], T * KB)
        own = ACC[0:20]
        for h in range(10):
            x = own[2 * h:2 * h + 2]
            e.V("v_pk_add_f32", x, x, PT[2 * h:2 * h + 2])
            if kind == "C":
                e.V("v_pk_fma_f32", x, x, TMP[2:4], RES[2 * h:2 * h + 2], mods="op_sel_hi:[1,0,1]")
        PK = TMP[24:34]
        for a_ in range(2):
            for j in range(4):
                e.V("v_cvt_pk_bf16_f32", PK[4 * a_ + j], own[8 * a_ + j], own[8 * a_ + 4 + j])
        for h in range(2):
            e.V("v_cvt_pk_bf16_f32", PK[8 + h], own[16 + 2 * h], own[16 + 2 * h + 1])
        self.bg_off()
        if last:
            om = self.opt.get("outmod", "")
            e.bstore(PK[0:4], vOut, OUT, 0, 0, om)
            e.bstore(PK[4:8], vOut, OUT, 0, 64, om)
            e.bstore(PK[8:10], vOut4, OUT, 0, 128, om)
            self.stamp("end")
            return
        xv = 2 * p + (1 if kind == "O" else 2)
        ops = []
        ops += self.gstore([(PK[0:4], vXs, sA, 0), (PK[4:8], vXs, sA, 1024), (PK[8:10], vXh, sB, 0)])
        sm, sq, t0 = TMP[36], TMP[37], TMP[38]
        e.V("v_mov_b32", sm, 0)
        e.V("v_mov_b32", sq, 0)
        for j in range(10):
            e.V("v_dot2c_f32_bf16", sm, PK[j], vOne)
            e.V("v_dot2c_f32_bf16", sq, PK[j], PK[j])
        e.V("v_permlane32_swap_b32", sm, sq)
        e.V("v_add_f32", sm, sm, sq)
        e.V("v_mov_b32", t0, sm)
        e.V("v_permlane16_swap_b32", sm, t0)
        e.V("v_add_f32", sm, sm, t0)
        ops += self.gstore([(sm, vStW, sD, 0)])
        self.stamp(name + "epi")

        def shadow():
            self.unpack(RES, PK)
            if kind == "O":
                self.unpack(ACC[20:40], ACC[40:50])
                for h in range(10):
                    x = RES[2 * h:2 * h + 2]
                    e.V("v_pk_add_f32", x, x, ACC[20 + 2 * h:22 + 2 * h])
        self.handoff(4 * p + (3 if kind == "O" else 5), ops, shadow,
                     [(vStW, sOst, STB[xv], 0), (vXs, sOx, XB[xv], 0), (vXs, sOx, XB[xv], 1024), (vXh, sOxh, XB[xv], 0)])

    def phaseB1(self, p):
        e = self.e
        opt = self.opt
        xv = 2 * p + 1
        acc = lambda T, u: ACC[(T * 2 + u) * 4:(T * 2 + u) * 4 + 4]
        xf = lambda ks, u: a((ks * 2 + u) * 4, 4) if ks < 20 else XE[u]
        al = self.ALoad(self, vAx, (sXr, XB[xv]), 20)
        al.upto(opt.get("adist", 4) - 1)
        self.stats_loads(xv)
        stop = self.seqstart[("B2", p)]
        g0 = self.seq[stop][0] // 8 + RB // 8
        self.stage_plan = list(range(g0, g0 + (opt.get("nstage", 0) if p else 0)))

        def mf(t, W, u):
            ks, T = divmod(t, B1N)
            e.mfma(acc(T, u), W, xf(ks, u), acc(T, u) if ks else 0)
        tl = [(vHs, sOh, HB[p] + u * 54 * KB, a_ * KB) for a_ in range(3) for u in range(2)] + [(vHh, sOhh, HB[p] + u * 54 * KB, 0) for u in range(2)]
        sg = self.delay(opt.get("stdelay", 24), self.stats_gen(False))
        flb = [sg]
        if p == 0 and opt.get("keepb", 4):
            gb = self.capture_gen(self.segs[2][1] // 8 + opt.get("keepb0", 8), opt.get("keepb", 4), 12)
            next(gb)
            flb.append(gb)
        self.run_pass(21 * B1N, mf, B1N, xf, flb, late=(0, self.touch_gen(tl, p == 0)), stop_reads=stop, aload=al, must=sg, chunk=opt.get("chunkA", 24), mix=opt.get("mixB", 0), tail=700 * (7 - B1N) + 300 + self.opt.get("slack", 2400))
        self.stamp("B1a")
        ops = []

        def epi(pairs, single):
            n = 0
            for u in range(2):
                sb = sD if u == 0 else sE
                e.S("s_add_u32", sb, sOh, HB[p] + u * 54 * KB); yield
                for a_ in pairs:
                    o = TMP[16 + 4 * (n % 4):20 + 4 * (n % 4)]
                    n += 1
                    for j in range(4):
                        x, y = acc(2 * a_, u)[j], acc(2 * a_ + 1, u)[j]
                        e.V("v_mul_f32_e64", x, x, f"|{x}|"); yield
                        e.V("v_mul_f32_e64", y, y, f"|{y}|"); yield
                        e.V("v_cvt_pk_bf16_f32", o[j], x, y); yield
                        e.V("v_pk_max_i16", o[j], o[j], 0); yield
                    ops.extend(self.gstore([(o, vHs, sb, a_ * KB)], p == 0 or opt.get("hsafe", 1) == 1 or (opt.get("hsafe", 1) == 2 and not single))); yield
            if single:
                for u in range(2):
                    o = TMP[32 + 2 * u:34 + 2 * u]
                    for j in range(4):
                        x = acc(6, u)[j]
                        e.V("v_mul_f32_e64", x, x, f"|{x}|"); yield
                    for h in range(2):
                        e.V("v_cvt_pk_bf16_f32", o[h], acc(6, u)[2 * h], acc(6, u)[2 * h + 1]); yield
                        e.V("v_pk_max_i16", o[h], o[h], 0); yield
                e.S("s_add_u32", sA, sOhh, HB[p])
                e.S("s_add_u32", sB, sOhh, HB[p] + 54 * KB)
                ops.extend(self.gstore([(TMP[32:34], vHh, sA, 0), (TMP[34:36], vHh, sB, 0)], p == 0 or opt.get("hsafe", 1) == 1))
                yield

        def mf2(t, W, u):
            ks, T = divmod(t, 7 - B1N)
            e.mfma(acc(B1N + T, u), W, xf(ks, u), acc(B1N + T, u) if ks else 0)
        self.run_pass(21 * (7 - B1N), mf2, 7 - B1N, xf, [epi(list(range(B1N // 2)), False)], stop_reads=stop, force_bar=21 * (7 - B1N) - 2, over=opt.get("b1over", 0), chunk=opt.get("chunkB", 24), tail=300 + self.opt.get("slack", 2400))
        self.stamp("B1b")
        for _ in epi(list(range(B1N // 2, 3)), True):
            pass
        self.stamp("B1epi")
        self.handoff(4 * p + 4, ops, None, tl)

    def gen(self):
        e = self.e
        e.reset_state()
        self.cInvD = s(63)
        self.dmaf = self.dma_filler()
        self.prologue()
        if self.opt.get("stamps"):
            e.memtime(sTm, True)
            e.V("v_writelane_b32", v(53), sTm[0], 62)
        self.startup()
        stop = self.opt.get("stop", 99)
        n = 0
        for p in range(2):
            for f in (lambda: self.phaseA(p), lambda: self.phase64(p, "O"), lambda: self.phaseB1(p), lambda: self.phase64(p, "C")):
                if n < stop:
                    f()
                n += 1
        if self.opt.get("stamps"):
            e.wait_all_vm()
            e.memtime(sTm, True)
            e.V("v_writelane_b32", v(53), sTm[0], 63)
            e.S("s_lshl_b32", sA, s(2), 2)
            e.S("s_add_u32", sA, sA, sWave)
            e.S("s_lshl_b32", sA, sA, 8)
            e.S("s_add_u32", sA, sA, STAMP)
            e.V("v_lshlrev_b32", TMP[1], 2, vLane)
            e.bstore(v(53), TMP[1], WS, sA)
        if self.opt.get("dbgst") is not None:
            skip = e.newlabel("nodbg")
            e.S("s_lshl_b32", sA, s(2), 2)
            e.S("s_add_u32", sA, sA, sWave)
            e.S("s_cmp_lg_u32", sA, 4 * self.opt.get("dbgwg", 77))
            e.branch("s_cbranch_scc1", skip)
            e.sload(s(84, 2), s(0, 2), 72)
            e.V("v_readlane_b32", sB, v(53), 0)
            e.V("v_subrev_u32", TMP[0], sB, v(53))
            e.V("v_subrev_u32", TMP[1], self.opt["dbgst"], vLane)
            e.V("v_cmp_gt_u32", VCC, 64 - self.opt["dbgst"], TMP[1])
            e.V("v_lshlrev_b32", TMP[1], 2, TMP[1])
            e.wait_all_lg()
            e.S("s_and_saveexec_b64", s(86, 2), VCC)
            e.misc(f"global_store_dword {TMP[1]}, {TMP[0]}, s[84:85]")
            e.S("s_mov_b64", EXEC, -1)
            e.label(skip)
        if self.opt.get("spin"):
            e.wait_all_vm()
            e.V("v_readfirstlane_b32", s(86), v(53))
            if self.opt.get("spinloc"):
                e.S("s_cmp_lg_u32", sLocal, 0)
                e.branch("s_cbranch_scc1", "spin_done")
            e.label("spin_loop")
            e.misc("s_memrealtime s[88:89]")
            e.misc("s_waitcnt lgkmcnt(0)")
            e.misc("s_sub_u32 s88, s88, s86")
            e.misc(f"s_cmp_lt_u32 s88, {self.opt['spin']}")
            e.misc("s_cbranch_scc1 spin_loop")
            e.label("spin_done")
        if self.opt.get("sweep"):
            e.wait_all_vm()
            e.barrier()
            e.S("s_mov_b32", s(64), 0)
            e.S("s_mov_b32", M0, sW2048)
            e.label("sw_outer")
            e.S("s_mul_i32", s(65), sC, 480 * KB)
            e.S("s_add_u32", s(65), s(65), WA)
            e.S("s_mov_b32", s(66), 0)
            e.label("sw_inner")
            e.misc(f"buffer_load_dwordx4 {vDma}, {WS}, s65 offen lds")
            e.misc(f"buffer_load_dwordx4 {vDma}, {WS}, s65 offen offset:1024 lds")
            e.misc("s_add_u32 s65, s65, 8192")
            e.misc("s_waitcnt vmcnt(12)")
            e.misc("s_add_u32 s66, s66, 1")
            e.misc("s_cmp_lt_u32 s66, 60")
            e.misc("s_cbranch_scc1 sw_inner")
            e.misc("s_add_u32 s64, s64, 1")
            e.misc(f"s_cmp_lt_u32 s64, {self.opt['sweep']}")
            e.misc("s_cbranch_scc1 sw_outer")
            e.misc("s_waitcnt vmcnt(0)")
        e.S("s_add_u32", sA, s(2), sWave)
        e.S("s_cmp_lg_u32", sA, 0)
        e.branch("s_cbranch_scc1", "main_end")
        e.S("s_add_u32", sA, sBase, 16)
        e.V("v_mov_b32", TMP[0], sA)
        e.V("v_mov_b32", TMP[1], EPOCH)
        e.S("s_mov_b64", EXEC, 1)
        e.bstore(TMP[0], TMP[1], WS, 0, 0, "sc1")
        e.label("main_end")
        e.misc("s_endpgm")
```
